```python
import torch

def _softmax(x, axis=-1):
    return torch.softmax(x, dim=axis)
def _gelu(x):
    return torch.nn.functional.gelu(x, approximate="tanh")
def _silu(x):
    return torch.nn.functional.silu(x)
def _sigmoid(x):
    return torch.sigmoid(x)
def _layernorm(x, axis=-1, eps=1e-5):
    m = x.mean(dim=axis, keepdim=True)
    v = x.var(dim=axis, keepdim=True, unbiased=False)
    return (x - m) / torch.sqrt(v + eps)
def _scatter_add(tgt, idx, src, axis=0):
    return tgt.clone().index_add_(axis, idx, src)
def _segment_sum(src, seg, n):
    out = torch.zeros((n,) + src.shape[1:], dtype=src.dtype)
    return out.index_add_(0, seg, src)
def _pad(x, pw):
    flat = tuple(v for pair in reversed(pw) for v in pair)
    return torch.nn.functional.pad(x, flat)

kernel_name = 'standalone__mpnn_edge_mlp__graph'

def setup_inputs():

    _w = (lambda a: (lambda t: t.to(torch.bfloat16) if t.is_floating_point() else t)(torch.as_tensor(a)))
    N, deg, D, De = 10000, 32, 128, max(16, 1)
    E = N * deg
    return {
        "x": _w((lambda *s: torch.randn(*s, dtype=torch.bfloat16) * 0.05)(N, D)),
        "e_attr": _w((lambda *s: torch.randn(*s, dtype=torch.bfloat16) * 0.4)(E, De)),
        "src": _w((lambda lo, hi, *s: torch.randint(lo, hi, s))(0, N, E).to(torch.int64)),
        "dst": _w((lambda lo, hi, *s: torch.randint(lo, hi, s))(0, N, E).to(torch.int64)),
        "w_msg": _w((lambda *s: torch.randn(*s, dtype=torch.bfloat16) * 0.4)(2 * D + De, D)),
        "w_upd": _w((lambda *s: torch.randn(*s, dtype=torch.bfloat16) * 0.05)(2 * D, D)),
    }

def reference(x, e_attr, src, dst, w_msg, w_upd):
    N, D = x.shape
    m_in = torch.concatenate([x[src], x[dst], e_attr], axis=-1)
    msg = _silu(m_in @ w_msg)
    agg = _segment_sum(msg, dst, N)
    return _silu(torch.concatenate([x, agg], axis=-1) @ w_upd)
```

```python
import sys, struct

N = 10000; E = 320000
G = 125
CH = 2560
NB = 256
MAGIC = 26843
CELLB = 128
BSTR = G * CELLB

WS_P = 256
WS_CELL = 0x280000
WS_WF = 0x680000
WF_W2, WF_UT, WF_UB, WF_3H, WF_3L = 0, 32768, 65536, 98304, 102400
WF_SIZE = 106496
WS_OVF = 0x6A0000
OVSTR = 64 + CH * 8
WS_OVF_SIZE = G * OVSTR

def f32(x): return struct.unpack("<I", struct.pack("<f", x))[0]
LOG2E = 1.4426950408889634
LN2 = 0.6931471805599453
NLOG2E = f32(-LOG2E); NLN2 = f32(-LN2)

OPT = dict(lo=0, pfP=1, pfE=1, k8=1)
for a in sys.argv[2:]:
    k, v = a.split("="); OPT[k] = int(v)

class Asm:
    def __init__(self): self.L = []
    def __call__(self, s):
        for x in s.strip("\n").split("\n"):
            self.L.append(x)
    def text(self): return "\n".join(self.L) + "\n"

class Regs:
    def __init__(self, start=0): self.n = start; self.names = {}
    def alloc(self, name, cnt=1, align=1):
        self.n = (self.n + align - 1) // align * align
        r = self.n; self.n += cnt; self.names[name] = (r, cnt); return r

def v(r, n=1): return f"v{r}" if n == 1 else f"v[{r}:{r+n-1}]"
def s(r, n=1): return f"s{r}" if n == 1 else f"s[{r}:{r+n-1}]"

def srd(a, r, lo, nbytes, add=0, addreg=None):
    if add:
        a(f"  s_add_u32 s{r}, s{lo}, {add}\n  s_addc_u32 s{r+1}, s{lo+1}, 0")
    else:
        a(f"  s_mov_b32 s{r}, s{lo}\n  s_mov_b32 s{r+1}, s{lo+1}")
    if addreg is not None:
        a(f"  s_add_u32 s{r}, s{r}, s{addreg}\n  s_addc_u32 s{r+1}, s{r+1}, 0")
    a(f"  s_mov_b32 s{r+2}, {nbytes}\n  s_mov_b32 s{r+3}, 0x20000")

K1_LDS = 34048
def wfrag_loads(a, srdr, voff, dst, stmp):
    for st in range(4):
        a(f"  s_mov_b32 s{stmp+st}, {st*8192}")
    for st in range(4):
        for jj in range(8):
            a(f"  buffer_load_ushort v{dst+st*8+jj}, v{voff}, {s(srdr,4)}, s{stmp+st} offen offset:{jj*256}")
def wfrag_pack(a, src, dst):
    for i in range(16):
        a(f"  v_lshl_or_b32 v{dst+i}, v{src+2*i+1}, 16, v{src+2*i}")

def gen_k1():
    a = Asm()
    a(f"""
.globl mpnn_k1_kernel
.p2align 8
.type mpnn_k1_kernel,@function
mpnn_k1_kernel:
  s_cmp_ge_u32 s2, 254
  s_cbranch_scc1 K1_END
  s_load_dwordx4 s[4:7], s[0:1], 0      ; x, e_attr
  s_load_dwordx4 s[8:11], s[0:1], 16
  s_load_dwordx4 s[12:15], s[0:1], 32
  s_load_dwordx2 s[16:17], s[0:1], 64   ; ws
  v_lshrrev_b32 v1, 6, v0
  v_and_b32 v2, 63, v0                  ; lane
  s_nop 0
  v_readfirstlane_b32 s3, v1
  s_cmp_ge_u32 s2, {G}
  s_cbranch_scc1 K1_NOTBIN
  ; ---------------- binning ----------------
  v_mov_b32 v4, 0
  v_mov_b32 v5, 0
  v_mov_b32 v6, 0
  v_mov_b32 v7, 0
  v_lshlrev_b32 v3, 4, v0
  ds_write_b128 v3, v[4:7]
  ds_write_b128 v3, v[4:7] offset:8192
  ds_write_b128 v3, v[4:7] offset:16384
  ds_write_b128 v3, v[4:7] offset:24576
  v_lshlrev_b32 v8, 2, v0               ; tid*4
  v_cmp_gt_u32 vcc, 320, v0
  s_and_saveexec_b64 s[40:41], vcc
  ds_write_b32 v8, v4 offset:32768
  s_mov_b64 exec, s[40:41]
  s_mul_i32 s18, s2, {CH*4}
  s_add_u32 s19, s18, 2048
  s_add_u32 s20, s18, 4096
  s_add_u32 s21, s18, 6144
  s_add_u32 s22, s18, 8192
  s_waitcnt lgkmcnt(0)
""")
    srd(a, 24, 10, E*4)
    srd(a, 28, 8, E*4)
    for j in range(5):
        a(f"  buffer_load_dword v{10+j}, v8, s[24:27], s{18+j} offen")
    for j in range(5):
        a(f"  buffer_load_dword v{15+j}, v8, s[28:31], s{18+j} offen")
    srd(a, 32, 16, NB*BSTR, add=WS_CELL)
    srd(a, 36, 16, WS_OVF_SIZE, add=WS_OVF)
    a(f"""
  s_mov_b32 s42, {MAGIC}
  v_lshlrev_b32 v9, 6, v0
  v_add_u32 v9, {1<<18}, v9             ; (1<<18) + tid<<6
  v_mov_b32 v40, 1
  s_barrier
  s_waitcnt vmcnt(5)
""")
    for j in range(5):
        a(f"""
  v_mul_u32_u24 v{20+j}, s42, v{10+j}
  v_lshrrev_b32 v{20+j}, 18, v{20+j}
  v_and_b32 v{20+j}, 0x3fc, v{20+j}      ; bucket*4
  ds_add_rtn_u32 v{25+j}, v{20+j}, v40 offset:32768""")
    a("  s_waitcnt vmcnt(0)")
    for j in range(5):
        a(f"""
  v_lshl_add_u32 v{30+j}, v{15+j}, 18, v9
  v_and_or_b32 v{30+j}, v{10+j}, 63, v{30+j}""")
        if j < 4: a(f"  v_add_u32 v9, {512<<6}, v9")
    a("  s_waitcnt lgkmcnt(0)\n  s_mov_b64 s[44:45], 0")
    for j in range(5):
        a(f"""
  v_lshlrev_b32 v{35+j}, 2, v{25+j}
  v_lshl_add_u32 v{35+j}, v{20+j}, 5, v{35+j}
  v_cmp_gt_u32 vcc, 31, v{25+j}
  s_and_saveexec_b64 s[40:41], vcc
  ds_write_b32 v{35+j}, v{30+j}
  s_mov_b64 exec, s[40:41]
  s_orn2_b64 s[44:45], s[44:45], vcc""")
    a(f"""
  s_waitcnt lgkmcnt(0)
  s_barrier
  s_cmp_eq_u64 s[44:45], 0
  s_cbranch_scc1 K1_NOOVF
  s_mul_i32 s43, s2, {OVSTR}
  s_add_u32 s43, s43, 64
  v_mov_b32 v41, {32768+1024}
  v_mov_b32 v42, 0xfffc0000""")
    for j in range(5):
        a(f"""
  v_cmp_le_u32 vcc, 31, v{25+j}
  s_and_saveexec_b64 s[40:41], vcc
  s_cbranch_execz K1_OV{j}
  ds_read_b32 v43, v{20+j} offset:32768
  v_lshlrev_b32 v44, 5, v{20+j}
  s_waitcnt lgkmcnt(0)
  v_cmp_ne_u32 vcc, 32, v43
  s_nop 1
  v_cndmask_b32 v45, v{30+j}, v42, vcc
  ds_write_b32 v44, v45 offset:124
  s_and_b64 exec, exec, vcc
  s_cbranch_execz K1_OV{j}
  ds_add_rtn_u32 v43, v41, v40
  v_mov_b32 v46, v{30+j}
  v_lshrrev_b32 v47, 2, v{20+j}
  s_waitcnt lgkmcnt(0)
  v_lshlrev_b32 v43, 3, v43
  buffer_store_dwordx2 v[46:47], v43, s[36:39], s43 offen
K1_OV{j}:
  s_mov_b64 exec, s[40:41]""")
    a(f"""
  s_waitcnt lgkmcnt(0)
K1_NOOVF:
  s_barrier
  ds_read_b128 v[12:15], v3
  ds_read_b128 v[16:19], v3 offset:8192
  ds_read_b128 v[20:23], v3 offset:16384
  ds_read_b128 v[24:27], v3 offset:24576
  v_mov_b32 v41, {32768+1024}
  ds_read_b32 v28, v41
  v_lshrrev_b32 v4, 3, v0
  s_mov_b32 s42, {BSTR}
  v_mul_u32_u24 v4, s42, v4
  v_and_b32 v5, 7, v0
  v_lshl_add_u32 v4, v5, 4, v4
  s_lshl_b32 s18, s2, 7
  s_add_u32 s19, s18, {64*BSTR}
  s_add_u32 s20, s18, {128*BSTR}
  s_add_u32 s21, s18, {192*BSTR}
  s_waitcnt lgkmcnt(4)
  buffer_store_dwordx4 v[12:15], v4, s[32:35], s18 offen
  s_waitcnt lgkmcnt(3)
  buffer_store_dwordx4 v[16:19], v4, s[32:35], s19 offen
  s_waitcnt lgkmcnt(2)
  buffer_store_dwordx4 v[20:23], v4, s[32:35], s20 offen
  s_waitcnt lgkmcnt(1)
  buffer_store_dwordx4 v[24:27], v4, s[32:35], s21 offen
  s_waitcnt lgkmcnt(0)
  s_mul_i32 s43, s2, {OVSTR}
  v_mov_b32 v5, 0
  v_cmp_eq_u32 vcc, 0, v0
  s_and_saveexec_b64 s[40:41], vcc
  s_cbranch_execz K1_END
  buffer_store_dword v28, v5, s[36:39], s43 offen
  s_endpgm
K1_NOTBIN:
  v_and_b32 v3, 15, v2
  v_lshrrev_b32 v4, 4, v2
  s_lshl_b32 s18, s3, 5
  v_lshlrev_b32 v5, 11, v4              ; 8g*256
  v_lshl_add_u32 v5, v3, 1, v5
  v_add_u32 v5, s18, v5
  s_cmp_ge_u32 s2, {2*G}
  s_cbranch_scc1 K1_PREP
  s_sub_u32 s19, s2, {G}
  s_mul_i32 s19, s19, {80*256}
  v_lshlrev_b32 v6, 4, v0               ; piece*16
  v_lshrrev_b32 v7, 4, v0               ; row
  v_lshl_add_u32 v7, v7, 4, v6
  v_add_u32 v6, s19, v6
  v_add_u32 v20, 8192, v6
  v_add_u32 v21, 16384, v6
  s_waitcnt lgkmcnt(0)
""")
    srd(a, 24, 4, N*256)
    srd(a, 28, 12, 128*256)
    a("""
  buffer_load_dwordx4 v[8:11], v6, s[24:27], 0 offen
  buffer_load_dwordx4 v[12:15], v20, s[24:27], 0 offen
  buffer_load_dwordx4 v[16:19], v21, s[24:27], 0 offen""")
    wfrag_loads(a, 28, 5, 32, 44)
    srd(a, 32, 16, N*256, add=WS_P)
    a(f"""
  s_waitcnt vmcnt(34)
  ds_write_b128 v7, v[8:11]
  s_waitcnt vmcnt(33)
  ds_write_b128 v7, v[12:15] offset:{32*272}
  s_waitcnt vmcnt(32)
  s_cmp_ge_u32 s3, 4
  s_cbranch_scc1 K1_G1
  ds_write_b128 v7, v[16:19] offset:{64*272}
K1_G1:
  v_mul_u32_u24 v6, 272, v3
  v_lshl_add_u32 v6, v4, 4, v6
  v_lshlrev_b32 v7, 8, v3
  v_lshl_add_u32 v7, v4, 3, v7
  v_add_u32 v7, s18, v7
  s_waitcnt lgkmcnt(0)
  s_barrier""")
    for nt in range(5):
        for st in range(4):
            r = 64 + (nt*4+st)*4
            a(f"  ds_read_b128 {v(r,4)}, v6 offset:{nt*16*272 + st*64}")
    a("  s_waitcnt vmcnt(0)")
    wfrag_pack(a, 32, 8)
    a("  s_waitcnt lgkmcnt(0)")
    a(f"  s_mov_b32 s42, {NLOG2E}\n  s_mov_b32 s43, {NLOG2E}")
    for nt in range(5):
        for st in range(4):
            r = 64 + (nt*4+st)*4
            c = "0" if st == 0 else v(32+4*nt, 4)
            a(f"  v_mfma_f32_16x16x32_bf16 {v(32+4*nt,4)}, {v(8+4*st,4)}, {v(r,4)}, {c}")
    a("  s_nop 7\n  s_nop 1")
    for nt in range(5):
        d = 32 + 4*nt
        a(f"""
  v_pk_mul_f32 {v(d,2)}, {v(d,2)}, s[42:43]
  v_pk_mul_f32 {v(d+2,2)}, {v(d+2,2)}, s[42:43]
  v_cvt_pk_bf16_f32 v{56+2*nt}, v{d}, v{d+1}
  v_cvt_pk_bf16_f32 v{57+2*nt}, v{d+2}, v{d+3}
  s_add_u32 s20, s19, {nt*4096}
  buffer_store_dwordx2 {v(56+2*nt,2)}, v7, s[32:35], s20 offen""")
    a(f"""
  s_endpgm
K1_PREP:
  s_waitcnt lgkmcnt(0)""")
    srd(a, 32, 16, WF_SIZE, add=WS_WF)
    a(f"""
  s_cmp_eq_u32 s2, {2*G+3}
  s_cbranch_scc1 K1_PREP3
  s_cmp_eq_u32 s2, {2*G}
  s_cselect_b32 s28, s12, s14
  s_cselect_b32 s29, s13, s15
  s_cmp_eq_u32 s2, {2*G+1}
  s_cselect_b32 s19, 0, 32768
  s_add_u32 s28, s28, s19
  s_addc_u32 s29, s29, 0
  s_mov_b32 s30, 32768
  s_mov_b32 s31, 0x20000""")
    wfrag_loads(a, 28, 5, 32, 44)
    a(f"""
  s_sub_u32 s19, s2, {2*G}
  s_lshl_b32 s19, s19, 15
  s_lshl_b32 s20, s3, 12
  s_add_u32 s19, s19, s20
  v_lshlrev_b32 v6, 4, v2
  s_waitcnt vmcnt(0)""")
    wfrag_pack(a, 32, 8)
    for st in range(4):
        a(f"  buffer_store_dwordx4 {v(8+4*st,4)}, v6, s[32:35], s19 offen offset:{st*1024}")
    a(f"""
  s_endpgm
K1_PREP3:
  s_cmp_ge_u32 s3, 4
  s_cbranch_scc1 K1_END""")
    srd(a, 28, 12, 16*256, add=256*256)
    a(f"""
  v_and_b32 v3, 31, v2
  v_lshrrev_b32 v4, 5, v2
  v_lshlrev_b32 v5, 11, v4
  v_lshl_add_u32 v5, v3, 1, v5
  s_lshl_b32 s18, s3, 6""")
    for jj in range(8):
        a(f"  buffer_load_ushort v{8+jj}, v5, s[28:31], s18 offen offset:{jj*256}")
    a(f"  s_mov_b32 s42, {NLOG2E}\n  v_lshlrev_b32 v6, 4, v2\n  s_lshl_b32 s19, s3, 10\n  s_waitcnt vmcnt(0)")
    for jj in range(8):
        a(f"  v_lshlrev_b32 v{8+jj}, 16, v{8+jj}\n  v_mul_f32 v{8+jj}, s42, v{8+jj}")
    for i in range(4):
        a(f"  v_cvt_pk_bf16_f32 v{16+i}, v{8+2*i}, v{9+2*i}")
    for i in range(4):
        a(f"""
  v_lshlrev_b32 v24, 16, v{16+i}
  v_and_b32 v25, 0xffff0000, v{16+i}
  v_sub_f32 v24, v{8+2*i}, v24
  v_sub_f32 v25, v{9+2*i}, v25
  v_cvt_pk_bf16_f32 v{20+i}, v24, v25""")
    a(f"""
  s_add_u32 s20, s19, {WF_3H}
  s_add_u32 s21, s19, {WF_3L}
  buffer_store_dwordx4 v[16:19], v6, s[32:35], s20 offen
  buffer_store_dwordx4 v[20:23], v6, s[32:35], s21 offen
K1_END:
  s_endpgm
""")
    return a.text(), 144

CAPB = 68
L_ENT = 0
L_GN = (CAPB + 1) * 256
L_CNT = L_GN + (CAPB + 17) * 32
L_FLG = L_CNT + 256
L_ACC = L_FLG + 32
AS = 1040
L_Q = L_ACC + 40 * AS
QS = 320
L_X = L_Q + 40 * QS
XS = 272
L_STG = L_X + 40 * XS
STG = 8 * 1040 + 1024
K2_LDS = L_STG + 8 * STG
PADS, PADE = 0x8000003f, 0x80000000

def gen_k2():
    a = Asm()
    R = Regs(1)
    al = R.alloc
    vl = al("lane")
    t0 = al("t", 8, 2); t1, t2, t3, t4, t5, t6, t7 = range(t0+1, t0+8)
    vchunk = al("vchunk"); vechunk = al("vechunk")
    vent = al("vent"); vrow = al("vrow"); vgq = al("vgq"); vga = al("vga")
    vAlo = al("Alo"); vAhi = al("Ahi"); vEF = al("vEF")
    vqlane = al("vqlane"); vacl = al("vacl"); vxb = al("vxb")
    vebase = al("vebase"); vone = al("vone")
    vqa = al("vqa"); vsrow = al("vsrow"); vgn1 = al("vgn1")
    ENT = al("ENT", 2, 2)
    MAC = al("MAC", 2, 2)
    PAT = al("PAT", 2, 2)
    nq = 2 if OPT["k8"] else 4
    AQ = al("AQ", nq, 2)
    GN = al("GN", 4, 2); AD = al("AD", 4)
    DO = al("DO", 2)
    I0 = al("I0", 4, 2); I1 = al("I1", 4, 2)
    W3 = al("W3", 16, 2)
    W3L = al("W3L", 16, 2) if OPT["lo"] else None
    BQ = al("BQ", 4*nq, 2)
    EF = al("EF", 4, 2)
    PF = al("PF", 32, 2)
    D0 = al("D0", 16, 2); D1 = al("D1", 16, 2)
    EA = al("EA", 8, 2); TA = al("TA", 8, 2); EB = al("EB", 8, 2); TB = al("TB", 8, 2)
    RA = al("RA", 2, 2); RB = al("RB", 2, 2)
    SA = al("SA", 2, 2); SB = al("SB", 2, 2)
    CV = al("CV", 8, 2)
    U = al("U", 12, 2); WUB = al("WUB", 16, 2)
    DUM = al("DUM", 4, 2)
    REC = D0
    NOD = D0 + 8
    RNK = D1
    XL = D1 + 8
    W2F = EA
    WUT = EB
    assert TA == EA + 8 and TB == EB + 8
    XF = PF
    QD = CV
    nv = R.n
    sX, sE_, sOUT, sWS = 4, 6, 8, 10
    sW = 3
    SP, SE, SC, SW, SX, SO, SV = 12, 16, 20, 24, 28, 32, 36
    sStart, sNb, sStg, sCnt, sT, sMode, sKind, sFirst = 40, 41, 42, 43, 44, 45, 46, 47
    sAS, sQS = 48, 49
    sOV = 50
    sTmp = 54
    sEx = 64
    sK = 66
    sBad = 68
    sP = 70

    a(f"""
.globl mpnn_k2_kernel
.p2align 8
.type mpnn_k2_kernel,@function
mpnn_k2_kernel:
  s_cmp_ge_u32 s2, {NB}
  s_cbranch_scc1 K2_END
  s_load_dwordx4 s[4:7], s[0:1], 0
  s_load_dwordx2 s[8:9], s[0:1], 48
  s_load_dwordx2 s[10:11], s[0:1], 64
  v_lshrrev_b32 v{t0}, 6, v0
  v_and_b32 v{vl}, 63, v0
  s_mul_i32 s{sStart}, s2, 640013
  v_readfirstlane_b32 s{sW}, v{t0}
  s_add_u32 s{sNb}, s{sStart}, {640013+16383}
  s_add_u32 s{sStart}, s{sStart}, 16383
  s_lshr_b32 s{sStart}, s{sStart}, 14
  s_lshr_b32 s{sNb}, s{sNb}, 14
  s_min_u32 s{sNb}, s{sNb}, {N}
  s_sub_u32 s{sNb}, s{sNb}, s{sStart}
  s_mov_b32 s{sMode}, 0
  s_mov_b32 s{sKind}, 0
  s_mov_b32 s{sFirst}, 1
  s_mov_b32 s{sAS}, {AS}
  s_mov_b32 s{sQS}, {QS}
  s_mul_i32 s{sStg}, s{sW}, {STG}
  s_add_u32 s{sStg}, s{sStg}, {L_STG}
  v_lshrrev_b32 v{t1}, 2, v0
  v_and_b32 v{t2}, 3, v0
  v_lshlrev_b32 v{t2}, 4, v{t2}
  v_lshl_add_u32 v{t2}, v{t1}, 7, v{t2}
  s_mov_b32 s{sTmp}, {CH*32}
  v_mul_u32_u24 v{vebase}, s{sTmp}, v{t1}
  v_lshlrev_b32 v{t3}, 4, v0            ; tid*16
  v_lshlrev_b32 v{t4}, 4, v{vl}         ; lane*16
  s_mul_i32 s{sTmp}, s2, {BSTR}
  s_lshl_b32 s{sTmp+1}, s{sStart}, 8
  s_lshl_b32 s{sTmp+2}, s{sNb}, 8
  s_lshl_b32 s{sTmp+3}, s{sW}, 12
  s_waitcnt lgkmcnt(0)""")
    srd(a, SC, sWS, BSTR, add=WS_CELL, addreg=sTmp)
    a(f"""
  buffer_load_dwordx4 {v(REC,4)}, v{t2}, {s(SC,4)}, 0 offen
  buffer_load_dwordx4 {v(REC+4,4)}, v{t2}, {s(SC,4)}, 0 offen offset:64""")
    srd(a, SX, sX, f"s{sTmp+2}", addreg=sTmp+1)
    a(f"""
  v_add_u32 v{t5}, 8192, v{t3}
  buffer_load_dwordx4 {v(XL,4)}, v{t3}, {s(SX,4)}, 0 offen
  buffer_load_dwordx4 {v(XL+4,4)}, v{t5}, {s(SX,4)}, 0 offen""")
    srd(a, SW, sWS, WF_SIZE, add=WS_WF)
    a(f"  s_add_u32 s{sTmp+4}, s{sTmp+3}, {WF_UT}\n  s_add_u32 s{sTmp+5}, s{sTmp+3}, {WF_UB}\n  s_mov_b32 s{sTmp+6}, {WF_3H}\n  s_mov_b32 s{sTmp+7}, {WF_3L}")
    nld = 4
    for st in range(4):
        a(f"  buffer_load_dwordx4 {v(W2F+4*st,4)}, v{t4}, {s(SW,4)}, s{sTmp+3} offen offset:{st*1024}")
    for st in range(4):
        a(f"  buffer_load_dwordx4 {v(WUT+4*st,4)}, v{t4}, {s(SW,4)}, s{sTmp+4} offen offset:{st*1024}")
    for st in range(4):
        a(f"  buffer_load_dwordx4 {v(W3+4*st,4)}, v{t4}, {s(SW,4)}, s{sTmp+6} offen offset:{st*1024}")
    nld += 12
    if OPT["lo"]:
        for st in range(4):
            a(f"  buffer_load_dwordx4 {v(W3L+4*st,4)}, v{t4}, {s(SW,4)}, s{sTmp+7} offen offset:{st*1024}")
        nld += 4
    for st in range(4):
        a(f"  buffer_load_dwordx4 {v(WUB+4*st,4)}, v{t4}, {s(SW,4)}, s{sTmp+5} offen offset:{st*1024}")
    nld += 4
    srd(a, SP, sWS, (N+1)*256, add=WS_P-256 if WS_P != 256 else 0)
    srd(a, SE, sE_, E*32)
    srd(a, SO, sOUT, f"s{sTmp+2}", addreg=sTmp+1)
    srd(a, SV, sWS, WS_OVF_SIZE, add=WS_OVF)
    npf = 0
    if OPT["pfP"]:
        a(f"  s_lshr_b32 s{sTmp}, s2, 3\n  s_mul_i32 s{sTmp}, s{sTmp}, 81920\n  v_add_u32 v{t5}, s{sTmp}, v{t3}")
        for j in range(10):
            a(f"  buffer_load_dwordx4 {v(DUM,4)}, v{t5}, {s(SP,4)}, 0 offen\n  v_add_u32 v{t5}, 8192, v{t5}")
        npf += 10
    if OPT["pfE"]:
        a(f"  s_mul_i32 s{sTmp}, s2, 40000\n  v_add_u32 v{t5}, s{sTmp}, v{t3}")
        for j in range(5):
            a(f"  buffer_load_dwordx4 {v(DUM,4)}, v{t5}, {s(SE,4)}, 0 offen\n  v_add_u32 v{t5}, 8192, v{t5}")
        npf += 5
    NL = nld + npf
    a(f"""
  v_mov_b32 v{CV}, 0
  v_mov_b32 v{CV+1}, 0
  v_mov_b32 v{CV+2}, 0
  v_mov_b32 v{CV+3}, 0""")
    for j in range(6):
        a(f"  ds_write_b128 v{t3}, {v(CV,4)} offset:{L_GN + j*8192}")
    def prefill():
        a(f"""
  v_mov_b32 v{CV+4}, {PADS}
  v_mov_b32 v{CV+5}, {PADE}
  v_mov_b32 v{CV+6}, {PADS}
  v_mov_b32 v{CV+7}, {PADE}
  ds_write_b128 v{t3}, {v(CV+4,4)}
  ds_write_b128 v{t3}, {v(CV+4,4)} offset:8192
  v_cmp_gt_u32 vcc, {(L_GN-16384)//16}, v0
  s_and_saveexec_b64 {s(sEx,2)}, vcc
  ds_write_b128 v{t3}, {v(CV+4,4)} offset:16384
  s_mov_b64 exec, {s(sEx,2)}""")
    prefill()
    a(f"""
  v_mov_b32 v{vone}, 1
  v_mov_b32 v{MAC}, 0
  v_mov_b32 v{MAC+1}, 0
  v_and_b32 v{t0}, 15, v{vl}                 ; l&15
  v_bfe_u32 v{t1}, v{vl}, 4, 1               ; r4&1
  v_lshlrev_b32 v{t2}, 3, v{t1}
  v_xor_b32 v{t2}, v{t0}, v{t2}
  v_lshlrev_b32 v{vchunk}, 4, v{t2}
  v_and_b32 v{t2}, 1, v{vl}
  v_xor_b32 v{t2}, v{t2}, v{t1}
  v_lshlrev_b32 v{vechunk}, 4, v{t2}
  ; vent = w*256 + (8*(l>>4) + ((l&15)>>1))*8
  v_lshrrev_b32 v{t2}, 4, v{vl}
  v_lshlrev_b32 v{t2}, 6, v{t2}
  v_lshrrev_b32 v{t4}, 1, v{t0}
  v_lshl_add_u32 v{t2}, v{t4}, 3, v{t2}
  s_lshl_b32 s{sTmp}, s{sW}, 8
  v_add_u32 v{vent}, s{sTmp}, v{t2}
  v_bfe_u32 v{t2}, v{vl}, 2, 1               ; h
  v_and_b32 v{t4}, 1, v{vl}                  ; xy
  v_lshl_add_u32 v{t5}, v{t2}, 1, v{t4}      ; r4
  v_bfe_u32 v{t6}, v{vl}, 3, 2               ; 2o + bit3
  v_bfe_u32 v{t7}, v{vl}, 1, 1
  v_lshl_add_u32 v{t6}, v{t6}, 1, v{t7}
  v_lshl_add_u32 v{t7}, v{t5}, 3, v{t6}      ; q = 8 r4 + j
  v_lshlrev_b32 v{t7}, 3, v{t7}
  v_add_u32 v{vrow}, s{sTmp}, v{t7}
  v_lshrrev_b32 v{t7}, 5, v{vl}              ; hh
  ; A addresses
  v_mul_u32_u24 v{vAlo}, 1040, v{t6}
  v_lshl_add_u32 v{vAlo}, v{t5}, 8, v{vAlo}
  v_lshl_add_u32 v{vAlo}, v{t7}, 4, v{vAlo}
  v_add_u32 v{vAlo}, s{sStg}, v{vAlo}
  v_xor_b32 v{vAhi}, 1, v{t4}
  v_lshl_add_u32 v{vAhi}, v{vAhi}, 7, v{vAlo}
  v_lshl_add_u32 v{vAlo}, v{t4}, 7, v{vAlo}
  v_xor_b32 v{vEF}, v{t7}, v{t4}
  v_lshl_add_u32 v{vEF}, v{t6}, 1, v{vEF}
  v_lshl_add_u32 v{vEF}, v{t5}, 4, v{vEF}
  v_lshlrev_b32 v{vEF}, 4, v{vEF}
  s_add_u32 s{sTmp+1}, s{sStg}, 8320
  v_add_u32 v{vEF}, s{sTmp+1}, v{vEF}
  v_bfe_u32 v{t5}, v{vl}, 4, 1               ; o
  v_lshlrev_b32 v{t5}, 4, v{t5}
  v_mov_b32 v{t6}, 0x3f80
  v_lshlrev_b32 v{t5}, v{t5}, v{t6}
  v_cmp_eq_u32 vcc, v{t7}, v{t2}
  s_nop 1
  v_cndmask_b32 v{t5}, 0, v{t5}, vcc
  v_cmp_eq_u32 vcc, 0, v{t4}
  s_nop 1
  v_cndmask_b32 v{PAT}, 0, v{t5}, vcc
  v_cndmask_b32 v{PAT+1}, v{t5}, 0, vcc
  s_lshl_b32 s{sTmp}, s{sW}, 5
  s_add_u32 s{sTmp}, s{sTmp}, {L_GN}
  v_lshlrev_b32 v{vga}, 4, v{t7}
  v_add_u32 v{vga}, s{sTmp}, v{vga}
  v_and_b32 v{t2}, 12, v{vl}
  v_add_u32 v{vgq}, v{vga}, v{t2}
  v_and_b32 v{t2}, 3, v{vl}
  v_lshlrev_b32 v{t2}, 3, v{t2}
  v_lshl_add_u32 v{t2}, v{t1}, 5, v{t2}
  v_add_u32 v{vqlane}, {L_Q}, v{t2}
  v_and_b32 v{t2}, 31, v{vl}
  v_lshlrev_b32 v{t4}, 3, v{t2}
  v_add_u32 v{vacl}, {L_ACC}, v{t4}
  v_mul_u32_u24 v{vxb}, {XS}, v{t0}
  v_lshrrev_b32 v{t4}, 4, v{vl}
  v_lshl_add_u32 v{vxb}, v{t4}, 4, v{vxb}
  v_add_u32 v{vxb}, {L_X}, v{vxb}
  v_and_b32 v{t4}, 1, v{vl}
  v_lshlrev_b32 v{t4}, 4, v{t4}
  v_lshlrev_b32 v{t4}, v{t4}, v{t6}
  v_bfe_u32 v{t5}, v{vl}, 1, 4               ; (n>>1) = 4*(n>>3) + reg
  v_lshlrev_b32 v{t7}, 2, v{t7}
  v_sub_u32 v{t5}, v{t5}, v{t7}""")
    for i in range(4):
        a(f"  v_cmp_eq_u32 vcc, {i}, v{t5}\n  s_nop 1\n  v_cndmask_b32 v{I0+i}, 0, v{t4}, vcc")
        a(f"  v_cmp_eq_u32 vcc, {8+i}, v{t5}\n  s_nop 1\n  v_cndmask_b32 v{I1+i}, 0, v{t4}, vcc")
    if not OPT["k8"]:
        a(f"  v_mov_b32 v{AQ+2}, 0\n  v_mov_b32 v{AQ+3}, 0")
        for t in range(4):
            a(f"  v_mov_b32 v{BQ+4*t+2}, 0\n  v_mov_b32 v{BQ+4*t+3}, 0")
    a(f"""
  s_waitcnt lgkmcnt(0)
  s_barrier
  s_waitcnt vmcnt({NL-2})
K2_PHASE1:
  v_cmp_le_u32 vcc, 0xfffc0000, v{REC+7}
  s_cbranch_vccz K2_NOMARK
  s_and_saveexec_b64 {s(sEx,2)}, vcc
  v_lshrrev_b32 v{t0}, 2, v0                 ; producer
  v_lshrrev_b32 v{t1}, 5, v{t0}
  v_lshlrev_b32 v{t1}, 2, v{t1}
  v_lshlrev_b32 v{t0}, v{t0}, v{vone}
  ds_or_b32 v{t1}, v{t0} offset:{L_FLG+16}
  v_mov_b32 v{REC+7}, 0
  s_mov_b64 exec, {s(sEx,2)}
K2_NOMARK:""")
    for k in range(8):
        a(f"""
  v_and_b32 v{NOD+k}, 63, v{REC+k}
  v_cmpx_ne_u32 vcc, 0, v{REC+k}
  s_cbranch_execz K2_P1_{k}
  v_lshlrev_b32 v{NOD+k}, 2, v{NOD+k}
  ds_add_rtn_u32 v{RNK+k}, v{NOD+k}, v{vone} offset:{L_CNT}
K2_P1_{k}:
  s_mov_b64 exec, -1""")
    a(f"""
  s_cmp_eq_u32 s{sFirst}, 0
  s_cbranch_scc1 K2_NOX
  v_lshrrev_b32 v{t0}, 4, v0
  v_lshlrev_b32 v{t1}, 4, v0
  v_lshl_add_u32 v{t0}, v{t0}, 4, v{t1}
  v_add_u32 v{t0}, {L_X}, v{t0}
  s_waitcnt vmcnt({NL-4})
  ds_write_b128 v{t0}, {v(XL,4)}
  s_cmp_ge_u32 s{sW}, 2
  s_cbranch_scc1 K2_NOX
  ds_write_b128 v{t0}, {v(XL+4,4)} offset:{32*XS}
K2_NOX:
  s_waitcnt lgkmcnt(0)
  s_barrier
  v_lshlrev_b32 v{t0}, 2, v{vl}
  ds_read_b32 v{t1}, v{t0} offset:{L_CNT}
  v_subrev_u32 v{t4}, s{sStart}, v{vl}
  v_and_b32 v{t4}, 63, v{t4}
  s_waitcnt lgkmcnt(0)
  v_add_u32 v{t1}, 3, v{t1}
  v_and_b32 v{t1}, -4, v{t1}
  v_mov_b32 v{t2}, v{t1}
  s_nop 1
  v_add_u32_dpp v{t2}, v{t2}, v{t2} row_shr:1 row_mask:0xf bank_mask:0xf
  s_nop 1
  v_add_u32_dpp v{t2}, v{t2}, v{t2} row_shr:2 row_mask:0xf bank_mask:0xf
  s_nop 1
  v_add_u32_dpp v{t2}, v{t2}, v{t2} row_shr:4 row_mask:0xf bank_mask:0xf
  s_nop 1
  v_add_u32_dpp v{t2}, v{t2}, v{t2} row_shr:8 row_mask:0xf bank_mask:0xf
  s_nop 1
  v_add_u32_dpp v{t2}, v{t2}, v{t2} row_bcast:15 row_mask:0xa bank_mask:0xf
  s_nop 1
  v_add_u32_dpp v{t2}, v{t2}, v{t2} row_bcast:31 row_mask:0xc bank_mask:0xf
  s_nop 1
  v_readlane_b32 s{sT}, v{t2}, 63
  v_sub_u32 v{t1}, v{t2}, v{t1}              ; start
  s_cmp_gt_u32 s{sT}, {CAPB*32}
  s_cbranch_scc1 K2_SPLIT""")
    for k in range(4):
        a(f"  ds_bpermute_b32 v{NOD+k}, v{NOD+k}, v{t1}")
    a(f"""
  v_or3_b32 v{t3}, v{REC+4}, v{REC+5}, v{REC+6}
  v_or_b32 v{t3}, v{t3}, v{REC+7}
  v_cmp_ne_u32 vcc, 0, v{t3}
  s_cbranch_vccz K2_P2A""")
    for k in range(4, 8):
        a(f"  ds_bpermute_b32 v{NOD+k}, v{NOD+k}, v{t1}")
    a("K2_P2A:\n  s_waitcnt lgkmcnt(0)")
    for k in range(8):
        e = t6 if k % 2 == 0 else CV
        a(f"""
  v_cmpx_ne_u32 vcc, 0, v{REC+k}
  s_cbranch_execz K2_P2_{k}
  v_lshrrev_b32 v{e}, 10, v{REC+k}
  v_and_b32 v{e}, 0xffffff00, v{e}
  v_bfe_u32 v{e+1}, v{REC+k}, 6, 12
  v_lshl_add_u32 v{e+1}, v{e+1}, 5, v{vebase}
  v_add_lshl_u32 v{NOD+k}, v{NOD+k}, v{RNK+k}, 3
  ds_write_b64 v{NOD+k}, {v(e,2)}
K2_P2_{k}:
  s_mov_b64 exec, -1""")
    assert t6 % 2 == 0
    a(f"""
  v_lshrrev_b32 v{t1}, 2, v{t1}
  v_lshrrev_b32 v{t2}, 2, v{t2}
  v_add_u32 v{t1}, s{sW}, v{t1}
K2_GNL:
  v_cmpx_lt_u32 vcc, v{t1}, v{t2}
  s_cbranch_execz K2_GNE
  v_lshlrev_b32 v{t3}, 2, v{t1}
  ds_write_b32 v{t3}, v{t4} offset:{L_GN}
  v_add_u32 v{t1}, 8, v{t1}
  s_branch K2_GNL
K2_GNE:
  s_mov_b64 exec, -1
  s_add_u32 s{sT}, s{sT}, 31
  s_lshr_b32 s{sT}, s{sT}, 5
  s_add_u32 s{sCnt}, s{sT}, 7
  s_sub_u32 s{sCnt}, s{sCnt}, s{sW}
  s_lshr_b32 s{sCnt}, s{sCnt}, 3
  s_waitcnt lgkmcnt(0)
  s_barrier""")

    def dma_issue():
        L = []
        for j in range(8):
            d = DO + (j & 1)
            L.append([f"  s_add_u32 m0, s{sStg}, {j*1040}",
                      f"  v_add_u32_dpp v{d}, v{ENT}, v{vchunk} row_newbcast:{2*j} row_mask:0xf bank_mask:0xf",
                      f"  buffer_load_dwordx4 v{d}, {s(SP,4)}, 0 offen lds"])
        L.append([f"  s_add_u32 m0, s{sStg}, 8320",
                  f"  v_add_u32 v{DO}, v{ENT+1}, v{vechunk}",
                  f"  buffer_load_dwordx4 v{DO}, {s(SE,4)}, 0 offen lds"])
        return L
    def frag_reads():
        L = []
        for st in range(8):
            L.append(f"  ds_read_b128 {v(PF+4*st,4)}, v{vAlo if st < 4 else vAhi} offset:{32*(st&3)}")
        L.insert(2, f"  ds_read_b128 {v(EF,4)}, v{vEF}")
        return L
    def bq_reads():
        return [f"  ds_read_b64_tr_b16 {v(BQ+nq*t,2)}, v{vqa} offset:{64*t}" for t in range(4)]
    def chain(t, D):
        L = [f"  v_mfma_f32_32x32x16_bf16 {v(D,16)}, {v(EF,4)}, {v(W3+4*t,4)}, 0"]
        if OPT["lo"]:
            L.append(f"  v_mfma_f32_32x32x16_bf16 {v(D,16)}, {v(EF,4)}, {v(W3L+4*t,4)}, {v(D,16)}")
        L.append(f"  v_mfma_f32_32x32x16_bf16 {v(D,16)}, {v(PF+8*t,4)}, {v(I0,4)}, {v(D,16)}")
        L.append(f"  v_mfma_f32_32x32x16_bf16 {v(D,16)}, {v(PF+8*t+4,4)}, {v(I1,4)}, {v(D,16)}")
        if OPT["k8"]:
            L.append(f"  v_mfma_f32_32x32x8bf16_1k {v(D,16)}, {v(AQ,2)}, {v(BQ+2*t,2)}, {v(D,16)}")
        else:
            L.append(f"  v_mfma_f32_32x32x16_bf16 {v(D,16)}, {v(AQ,4)}, {v(BQ+4*t,4)}, {v(D,16)}")
        return L

    a(f"  ds_read_b64 {v(ENT,2)}, v{vent}\n  s_waitcnt lgkmcnt(0)")
    for x in dma_issue(): a("\n".join(x))
    a(f"  ds_read_b64 {v(ENT,2)}, v{vent} offset:2048")
    a(f"""
  s_cmp_eq_u32 s{sFirst}, 0
  s_cbranch_scc1 K2_NOGEMM
  s_mov_b32 s{sFirst}, 0
  s_mov_b32 s{sK}, {NLOG2E}
  s_mov_b32 s{sK+1}, {NLOG2E}
  s_waitcnt vmcnt({NL-12+9})""")
    a(f"""
  v_and_b32 v{t0}, 15, v{vl}
  v_mul_u32_u24 v{t0}, {QS}, v{t0}
  v_lshrrev_b32 v{t1}, 4, v{vl}
  v_lshl_add_u32 v{t0}, v{t1}, 3, v{t0}
  s_lshl_b32 s{sTmp}, s{sW}, 5
  s_add_u32 s{sTmp}, s{sTmp}, {L_Q}
  v_add_u32 v{t0}, s{sTmp}, v{t0}""")
    for nt in range(3):
        xf = XF + 16*(nt & 1)
        for st in range(4):
            a(f"  ds_read_b128 {v(xf+4*st,4)}, v{vxb} offset:{nt*16*XS + st*64}")
        a("  s_waitcnt lgkmcnt(0)")
        for st in range(4):
            c = "0" if st == 0 else v(QD, 4)
            a(f"  v_mfma_f32_16x16x32_bf16 {v(QD,4)}, {v(W2F+4*st,4)}, {v(xf+4*st,4)}, {c}")
        for st in range(4):
            c = "0" if st == 0 else v(U+4*nt, 4)
            a(f"  v_mfma_f32_16x16x32_bf16 {v(U+4*nt,4)}, {v(WUT+4*st,4)}, {v(xf+4*st,4)}, {c}")
        a(f"""
  s_nop 4
  v_pk_mul_f32 {v(QD,2)}, {v(QD,2)}, {s(sK,2)}
  v_pk_mul_f32 {v(QD+2,2)}, {v(QD+2,2)}, {s(sK,2)}
  v_cvt_pk_bf16_f32 v{QD+4}, v{QD}, v{QD+1}
  v_cvt_pk_bf16_f32 v{QD+5}, v{QD+2}, v{QD+3}""")
        if nt == 2:
            a(f"  v_and_b32 v{t1}, 8, v{vl}\n  v_cmpx_eq_u32 vcc, 0, v{t1}")
        a(f"  ds_write_b64 v{t0}, {v(QD+4,2)} offset:{nt*16*QS}")
        if nt == 2:
            a("  s_mov_b64 exec, -1")
        a("  s_nop 4")
    a(f"""
  s_waitcnt lgkmcnt(0)
  s_barrier
K2_NOGEMM:
  ds_read_b32 v{vgn1}, v{vgq}
  ds_read_b32 v{vsrow}, v{vrow}
  ds_read_b128 {v(GN,4)}, v{vga}
  s_waitcnt vmcnt(0)""")
    for x in frag_reads(): a(x)
    a(f"""
  s_waitcnt lgkmcnt(9)
  v_mad_u32_u24 v{vqa}, v{vgn1}, s{sQS}, v{vqlane}
  v_lshrrev_b64 {v(AQ,2)}, v{vsrow}, {v(PAT,2)}""")
    for x in bq_reads(): a(x)
    a("  s_waitcnt lgkmcnt(0)")
    for x in dma_issue(): a("\n".join(x))
    for x in chain(0, D0): a(x)
    a(f"""
  s_nop 7
  s_nop 3
  s_cmp_eq_u32 s{sCnt}, 0
  s_cbranch_scc1 K2_LOOPEND
  s_cmp_lg_u32 s{sMode}, 0
  s_cbranch_scc1 K2_SAFE""")

    def p(r): return v(r, 2)
    def octet_fast(d, e, t, r, sres):
        ex = [f"  v_exp_f32 v{e+i}, v{d+i}" for i in range(8)]
        L = [f"  v_pk_add_f32 {p(t)}, {p(e)}, 1.0 op_sel_hi:[1,0]",
             f"  v_pk_add_f32 {p(t+2)}, {p(e+4)}, 1.0 op_sel_hi:[1,0]",
             f"  v_pk_fma_f32 {p(t+4)}, {p(d)}, {p(e+2)}, {p(d)}",
             f"  v_pk_fma_f32 {p(t+6)}, {p(d+4)}, {p(e+6)}, {p(d+4)}",
             f"  v_pk_fma_f32 {p(e)}, {p(t)}, {p(e+2)}, {p(t)}",
             f"  v_pk_fma_f32 {p(e+4)}, {p(t+2)}, {p(e+6)}, {p(t+2)}",
             f"  v_pk_fma_f32 {p(t+4)}, {p(d+2)}, {p(t)}, {p(t+4)}",
             f"  v_pk_fma_f32 {p(t+6)}, {p(d+6)}, {p(t+2)}, {p(t+6)}",
             f"  v_pk_mul_f32 {p(t)}, {p(e)}, {p(e+4)}",
             f"  v_pk_mul_f32 {p(t+4)}, {p(t+4)}, {p(e+4)}",
             f"  v_rcp_f32 v{r}, v{t}",
             f"  v_rcp_f32 v{r+1}, v{t+1}",
             f"  v_pk_fma_f32 {p(t+4)}, {p(t+6)}, {p(e)}, {p(t+4)}",
             f"  v_pk_mul_f32 {p(sres)}, {p(t+4)}, {p(r)}"]
        return ex, L
    def octet_safe(d, e, t, r, sres):
        ex = [f"  v_exp_f32 v{e+i}, v{d+i}" for i in range(8)]
        L = [f"  v_pk_add_f32 {p(e+2*i)}, {p(e+2*i)}, 1.0 op_sel_hi:[1,0]" for i in range(4)]
        L += [f"  v_rcp_f32 v{t+i}, v{e+i}" for i in range(8)]
        L += [f"  v_pk_mul_f32 {p(sres)}, {p(d)}, {p(t)}"]
        L += [f"  v_pk_fma_f32 {p(sres)}, {p(d+2*i)}, {p(t+2*i)}, {p(sres)}" for i in range(1, 4)]
        return ex, L
    def zipl(x, y):
        o = []
        for i in range(max(len(x), len(y))):
            if i < len(x): o.append(x[i])
            if i < len(y): o.append(y[i])
        return o

    def loop(safe):
        lab = "K2_SAFE" if safe else "K2_FAST"
        oc = octet_safe if safe else octet_fast
        a(f".p2align 6\n{lab}:")
        for t in range(4):
            D = D0 if t % 2 == 0 else D1
            Dn = D1 if t % 2 == 0 else D0
            exa, La = oc(D, EA, TA, RA, SA)
            exb, Lb = oc(D+8, EB, TB, RB, SB)
            ex = exa + exb
            ch = chain((t+1) % 4, Dn)
            pk = zipl(La, Lb)
            if not safe:
                idx = max(i for i, x in enumerate(pk) if x.startswith(f"  v_pk_mul_f32 {p(TB)}, {p(EB)}"))
                pk.insert(idx+1, f"  v_pk_fma_f32 {p(MAC)}, {p(TA)}, {p(TB)}, {p(MAC)}")
            fin = []
            for o, S in ((0, SA), (1, SB)):
                for xy in range(2):
                    c = CV + 2*(2*o+xy)
                    fin.append(f"  v_cvt_f64_f32 {v(c,2)}, v{S+xy}")
            for o in range(2):
                for xy in range(2):
                    c = CV + 2*(2*o+xy)
                    fin.append(f"  ds_add_f64 v{AD+2*xy+o}, {v(c,2)} offset:{256*t}")
            head = []
            per = 16 // len(ch)
            e = 0
            pre = []
            if t == 0:
                pre = [f"  v_mad_u32_u24 v{AD+i}, v{GN+i}, s{sAS}, v{vacl}" for i in range(4)]
                pk = pk[:4] + pre + pk[4:]
            if t == 2:
                a(f"  ds_read_b64 {v(ENT,2)}, v{vent} offset:4096")
                a(f"  ds_read_b32 v{vgn1}, v{vgq} offset:256")
                a(f"  ds_read_b32 v{vsrow}, v{vrow} offset:2048")
                a(f"  ds_read_b128 {v(GN,4)}, v{vga} offset:256")
            if t == 3:
                a("  s_waitcnt lgkmcnt(4)")
            dma = dma_issue() if t == 3 else []
            for i, m in enumerate(ch):
                head.append(m)
                n = per if i < len(ch)-1 else 16 - e
                for x in ex[e:e+n]:
                    head.append(x)
                    if dma and (len(head) % 2 == 0):
                        head += dma.pop(0)
                e += n
            for x in dma: head += x
            for x in head: a(x)
            if t == 2:
                mid = [f"  s_waitcnt vmcnt(0) lgkmcnt(0)",
                       f"  v_mad_u32_u24 v{vqa}, v{vgn1}, s{sQS}, v{vqlane}",
                       f"  v_lshrrev_b64 {v(AQ,2)}, v{vsrow}, {v(PAT,2)}"]
                rd = frag_reads() + bq_reads()
                body = pk[:6] + mid + zipl(pk[6:], rd)
                for x in body: a(x)
            elif t == 3:
                inc = [f"  v_add_u32 v{vent}, 2048, v{vent}", f"  v_add_u32 v{vrow}, 2048, v{vrow}",
                       f"  v_add_u32 v{vgq}, 256, v{vgq}", f"  v_add_u32 v{vga}, 256, v{vga}"]
                for x in pk[:4] + inc + pk[4:]: a(x)
            else:
                for x in pk: a(x)
            for x in fin: a(x)
        a(f"""
  s_sub_u32 s{sCnt}, s{sCnt}, 1
  s_cmp_lg_u32 s{sCnt}, 0
  s_cbranch_scc1 {lab}""")
    loop(False)
    a(f"""
K2_LOOPEND:
  s_waitcnt vmcnt(0) lgkmcnt(0)
  s_barrier
  s_cmp_eq_u32 s{sKind}, 1
  s_cbranch_scc1 K2_HALF1
  s_cmp_eq_u32 s{sKind}, 3
  s_cbranch_scc1 K2_OVPART1
  s_cmp_eq_u32 s{sKind}, 4
  s_cbranch_scc1 K2_NEXTOV
  v_mov_b32 v{t0}, {L_FLG+16}
  ds_read_b128 {v(CV,4)}, v{t0}
K2_CONV:
  s_mul_i32 s{sTmp}, s{sW}, {AS}
  s_add_u32 s{sTmp}, s{sTmp}, {L_ACC}
  v_lshlrev_b32 v{t1}, 4, v{vl}
  v_add_u32 v{t1}, s{sTmp}, v{t1}""")
    for k in range(5):
        a(f"  ds_read_b128 {v(D0+4*k,4)}, v{t1} offset:{k*8*AS}")
    a(f"""
  s_mul_i32 s{sTmp}, s{sW}, {XS}
  s_add_u32 s{sTmp}, s{sTmp}, {L_X}
  v_lshlrev_b32 v{t2}, 2, v{vl}
  v_add_u32 v{t2}, s{sTmp}, v{t2}
  s_cmp_ge_u32 s{sKind}, 3
  s_cbranch_scc1 K2_CONV2
  s_waitcnt lgkmcnt(5)
  v_or3_b32 v{t0}, v{CV}, v{CV+1}, v{CV+2}
  v_or_b32 v{t0}, v{t0}, v{CV+3}
  v_cmp_ne_u32 vcc, 0, v{t0}
  s_cbranch_vccnz K2_STARTOV
K2_CONV2:
  s_mov_b32 s{sTmp}, 0x71800000              ; 2^100
  v_cmp_nle_f32 {s(sBad,2)}, v{MAC}, s{sTmp}
  v_cmp_nle_f32 vcc, v{MAC+1}, s{sTmp}
  s_or_b64 {s(sBad,2)}, {s(sBad,2)}, vcc
  s_movk_i32 s{sTmp}, 0x207""")
    for k in range(5):
        a(f"""
  s_waitcnt lgkmcnt({4-k})
  v_cvt_f32_f64 v{EA+2*k}, {v(D0+4*k,2)}
  v_cvt_f32_f64 v{EA+2*k+1}, {v(D0+4*k+2,2)}
  v_cmp_class_f32 vcc, v{EA+2*k}, s{sTmp}
  s_or_b64 {s(sBad,2)}, {s(sBad,2)}, vcc
  v_cmp_class_f32 vcc, v{EA+2*k+1}, s{sTmp}
  s_or_b64 {s(sBad,2)}, {s(sBad,2)}, vcc
  v_cvt_pk_bf16_f32 v{EB+k}, v{EA+2*k}, v{EA+2*k+1}""")
    for k in range(5):
        a(f"  ds_write_b32 v{t2}, v{EB+k} offset:{k*8*XS}")
    a(f"""
  s_cmp_eq_u64 {s(sBad,2)}, 0
  s_cbranch_scc1 K2_OKW
  v_mov_b32 v{t0}, {L_FLG}
  ds_write_b32 v{t0}, v{vone}
K2_OKW:
  s_waitcnt lgkmcnt(0)
  s_barrier
  v_mov_b32 v{t0}, {L_FLG}
  ds_read_b32 v{t0}, v{t0}""")
    for nt in range(2):
        for st in range(4):
            a(f"  ds_read_b128 {v(XF+16*nt+4*st,4)}, v{vxb} offset:{nt*16*XS + st*64}")
    a(f"""
  s_waitcnt lgkmcnt(8)
  v_readfirstlane_b32 s{sTmp}, v{t0}
  s_cmp_gt_u32 s{sTmp}, s{sMode}
  s_cbranch_scc1 K2_RESTART
  s_waitcnt lgkmcnt(4)""")
    for st in range(4):
        c = "0" if st == 0 else v(D0, 4)
        a(f"  v_mfma_f32_16x16x32_bf16 {v(D0,4)}, {v(WUB+4*st,4)}, {v(XF+4*st,4)}, {c}")
    for st in range(4):
        a(f"  ds_read_b128 {v(D1+4*st,4)}, v{vxb} offset:{2*16*XS + st*64}")
    a("  s_waitcnt lgkmcnt(4)")
    for st in range(4):
        c = "0" if st == 0 else v(D0+4, 4)
        a(f"  v_mfma_f32_16x16x32_bf16 {v(D0+4,4)}, {v(WUB+4*st,4)}, {v(XF+16+4*st,4)}, {c}")
    a("  s_waitcnt lgkmcnt(0)")
    for st in range(4):
        c = "0" if st == 0 else v(D0+8, 4)
        a(f"  v_mfma_f32_16x16x32_bf16 {v(D0+8,4)}, {v(WUB+4*st,4)}, {v(D1+4*st,4)}, {c}")
    a(f"""
  s_mov_b32 s{sK}, {NLN2}
  s_mov_b32 s{sK+1}, {NLN2}
  s_mov_b32 s{sTmp}, {NLOG2E}
  s_mov_b32 s{sTmp+1}, {NLOG2E}
  v_and_b32 v{t0}, 15, v{vl}
  v_lshlrev_b32 v{t0}, 8, v{t0}
  v_lshrrev_b32 v{t1}, 4, v{vl}
  v_lshl_add_u32 v{t0}, v{t1}, 3, v{t0}
  s_lshl_b32 s{sTmp+2}, s{sW}, 5
  v_add_u32 v{t0}, s{sTmp+2}, v{t0}
  v_add_u32 v{t1}, 4096, v{t0}
  v_add_u32 v{t2}, 8192, v{t0}""")
    for nt in range(3):
        d = D0 + 4*nt
        a(f"""
  v_pk_fma_f32 {p(d)}, {p(d)}, {s(sK,2)}, {p(U+4*nt)}
  v_pk_fma_f32 {p(d+2)}, {p(d+2)}, {s(sK,2)}, {p(U+4*nt+2)}
  v_pk_mul_f32 {p(EA)}, {p(d)}, {s(sTmp,2)}
  v_pk_mul_f32 {p(EA+2)}, {p(d+2)}, {s(sTmp,2)}""")
        for i in range(4): a(f"  v_exp_f32 v{EA+i}, v{EA+i}")
        a(f"  s_nop 0\n  v_pk_add_f32 {p(EA)}, {p(EA)}, 1.0 op_sel_hi:[1,0]\n  v_pk_add_f32 {p(EA+2)}, {p(EA+2)}, 1.0 op_sel_hi:[1,0]")
        for i in range(4): a(f"  v_rcp_f32 v{EA+i}, v{EA+i}")
        a(f"""
  s_nop 0
  v_pk_mul_f32 {p(d)}, {p(d)}, {p(EA)}
  v_pk_mul_f32 {p(d+2)}, {p(d+2)}, {p(EA+2)}
  v_cvt_pk_bf16_f32 v{EB+2*nt}, v{d}, v{d+1}
  v_cvt_pk_bf16_f32 v{EB+2*nt+1}, v{d+2}, v{d+3}
  buffer_store_dwordx2 {v(EB+2*nt,2)}, v{t0+nt}, {s(SO,4)}, 0 offen""")
    a(f"""
K2_END:
  s_endpgm
""")
    loop(True)
    a("  s_branch K2_LOOPEND")
    a(f"""
K2_RESTART:
  s_mov_b32 s{sMode}, 1
  s_mov_b32 s{sKind}, 0
  s_waitcnt lgkmcnt(0)
  s_barrier
  v_lshlrev_b32 v{t3}, 4, v0
  v_mov_b32 v{CV}, 0
  v_mov_b32 v{CV+1}, 0
  v_mov_b32 v{CV+2}, 0
  v_mov_b32 v{CV+3}, 0""")
    for j in range(5):
        a(f"  ds_write_b128 v{t3}, {v(CV,4)} offset:{L_ACC + j*8192}")
    a(f"""
  v_cmp_gt_u32 vcc, {(40*AS-5*8192)//16}, v0
  s_and_saveexec_b64 {s(sEx,2)}, vcc
  ds_write_b128 v{t3}, {v(CV,4)} offset:{L_ACC + 5*8192}
  s_mov_b64 exec, {s(sEx,2)}
  s_branch K2_RELOAD
K2_SPLIT:
  s_mov_b32 s{sKind}, 1
  s_waitcnt lgkmcnt(0)
  s_barrier
  s_branch K2_RELOAD
K2_HALF1:
  s_mov_b32 s{sKind}, 2
K2_RELOAD:
  v_lshrrev_b32 v{t1}, 2, v0
  v_and_b32 v{t2}, 3, v0
  v_lshlrev_b32 v{t2}, 4, v{t2}
  v_lshl_add_u32 v{t2}, v{t1}, 7, v{t2}
  s_mov_b32 s{sTmp}, {CH*32}
  v_mul_u32_u24 v{vebase}, s{sTmp}, v{t1}
  s_waitcnt vmcnt(0)
  buffer_load_dwordx4 {v(REC,4)}, v{t2}, {s(SC,4)}, 0 offen
  buffer_load_dwordx4 {v(REC+4,4)}, v{t2}, {s(SC,4)}, 0 offen offset:64
  s_waitcnt vmcnt(0)
  s_cmp_eq_u32 s{sKind}, 0
  s_cbranch_scc1 K2_ROUND
  s_cmp_lt_u32 s{sW}, 4
  s_cselect_b32 s{sTmp}, 1, 2
  s_cmp_eq_u32 s{sTmp}, s{sKind}
  s_cbranch_scc1 K2_ROUND""")
    for k in range(8): a(f"  v_mov_b32 v{REC+k}, 0")
    a(f"""
K2_ROUND:
  v_lshlrev_b32 v{t3}, 4, v0
  v_mov_b32 v{CV}, 0
  v_mov_b32 v{CV+1}, 0
  v_mov_b32 v{CV+2}, 0
  v_mov_b32 v{CV+3}, 0
  v_cmp_gt_u32 vcc, {(L_FLG-L_GN)//16}, v0
  s_and_saveexec_b64 {s(sEx,2)}, vcc
  ds_write_b128 v{t3}, {v(CV,4)} offset:{L_GN}
  s_mov_b64 exec, {s(sEx,2)}""")
    prefill()
    a(f"""
  v_and_b32 v{vent}, 2047, v{vent}
  v_and_b32 v{vrow}, 2047, v{vrow}
  v_subrev_u32 v{vga}, {L_GN}, v{vga}
  v_and_b32 v{vga}, 255, v{vga}
  v_add_u32 v{vga}, {L_GN}, v{vga}
  v_and_b32 v{t2}, 12, v{vl}
  v_add_u32 v{vgq}, v{vga}, v{t2}
  s_waitcnt lgkmcnt(0)
  s_barrier
  s_branch K2_PHASE1
K2_STARTOV:
  v_readfirstlane_b32 s{sOV}, v{CV}
  v_readfirstlane_b32 s{sOV+1}, v{CV+1}
  v_readfirstlane_b32 s{sOV+2}, v{CV+2}
  v_readfirstlane_b32 s{sOV+3}, v{CV+3}
  s_mov_b32 s{sKind}, 4
  s_waitcnt lgkmcnt(0)
K2_NEXTOV:
  s_ff1_i32_b64 s{sP}, {s(sOV,2)}
  s_cmp_lg_u32 s{sP}, -1
  s_cbranch_scc1 K2_OVLO
  s_ff1_i32_b64 s{sP}, {s(sOV+2,2)}
  s_cmp_eq_u32 s{sP}, -1
  s_cbranch_scc1 K2_CONV
  s_bitset0_b64 {s(sOV+2,2)}, s{sP}
  s_add_u32 s{sP}, s{sP}, 64
  s_branch K2_OVGO
K2_OVLO:
  s_bitset0_b64 {s(sOV,2)}, s{sP}
K2_OVGO:
  s_mov_b32 s{sKind}, 3
  v_mov_b32 v{t4}, v0
  s_branch K2_OVLD
K2_OVPART1:
  s_mov_b32 s{sKind}, 4
  v_add_u32 v{t4}, 2048, v0
K2_OVLD:
  s_mul_i32 s{sTmp}, s{sP}, {OVSTR}
  s_mul_i32 s{sTmp+1}, s{sP}, {CH*32}
  v_mov_b32 v{vebase}, s{sTmp+1}
  v_mov_b32 v{t0}, s{sTmp}
  buffer_load_dword v{t1}, v{t0}, {s(SV,4)}, 0 offen
  v_lshl_add_u32 v{t2}, v{t4}, 3, v{t0}""")
    for k in range(4):
        a(f"  buffer_load_dwordx2 {v(PF+2*k,2)}, v{t2}, {s(SV,4)}, 0 offen offset:64\n  v_add_u32 v{t2}, 4096, v{t2}")
    a(f"  s_waitcnt vmcnt(0)")
    for k in range(4):
        a(f"""
  v_cmp_lt_u32 vcc, v{t4}, v{t1}
  v_cmp_eq_u32 {s(sEx,2)}, s2, v{PF+2*k+1}
  s_and_b64 vcc, vcc, {s(sEx,2)}
  v_add_u32 v{t4}, 512, v{t4}
  s_nop 1
  v_cndmask_b32 v{REC+k}, 0, v{PF+2*k}, vcc""")
    for k in range(4, 8): a(f"  v_mov_b32 v{REC+k}, 0")
    a("  s_branch K2_ROUND")
    return a.text(), nv

def desc(name, nv, ns):
    return f"""
.amdhsa_kernel {name}
  .amdhsa_next_free_vgpr {nv}
  .amdhsa_next_free_sgpr {ns}
  .amdhsa_accum_offset {(nv+3)//4*4}
  .amdhsa_group_segment_fixed_size 0
  .amdhsa_kernarg_size 72
  .amdhsa_user_sgpr_count 2
  .amdhsa_user_sgpr_kernarg_segment_ptr 1
  .amdhsa_system_sgpr_workgroup_id_x 1
.end_amdhsa_kernel
"""

HEAD = """; Kernarg layout for this problem (72 bytes, ptrs only, base s[0:1]):
"""

def main():
    k1, nv1 = gen_k1()
    k2, nv2 = gen_k2()
    out = HEAD
    out += f"; @launch kernel=mpnn_k1_kernel grid=(254,1,1) block=(512,1,1) lds={K1_LDS}\n"
    out += f"; @launch kernel=mpnn_k2_kernel grid=({NB},1,1) block=(512,1,1) lds={K2_LDS}\n"
    out += '.amdgcn_target "amdgcn-amd-amdhsa--gfx950"\n.text\n' + k1 + k2
    out += '.section .rodata,"a"\n.p2align 6\n' + desc("mpnn_k1_kernel", nv1, 64) + ".p2align 6\n" + desc("mpnn_k2_kernel", nv2, 80)
    open(sys.argv[1], "w").write(out)
    print("vgprs", nv1, nv2, "lds", K1_LDS, K2_LDS)
main()
```

```python
import sys, struct

N = 10000; E = 320000
G = 125
CH = 2560
NB = 256
MAGIC = 26843
CELLB = 128
BSTR = G * CELLB

WS_P = 256
WS_CELL = 0x280000
WS_WF = 0x680000
WF_W2, WF_UT, WF_UB, WF_3H, WF_3L = 0, 32768, 65536, 98304, 102400
WF_SIZE = 106496
WS_OVF = 0x6A0000
OVSTR = 64 + CH * 8
WS_OVF_SIZE = G * OVSTR

def f32(x): return struct.unpack("<I", struct.pack("<f", x))[0]
LOG2E = 1.4426950408889634
LN2 = 0.6931471805599453
NLOG2E = f32(-LOG2E); NLN2 = f32(-LN2)

OPT = dict(lo=0, pfP=1, pfE=1, k8=1, stamp=0, nodma=0, noadd=0, noe=0, hot=0)
for a in sys.argv[2:]:
    k, v = a.split("="); OPT[k] = int(v)

class Asm:
    def __init__(self): self.L = []
    def __call__(self, s):
        for x in s.strip("\n").split("\n"):
            self.L.append(x)
    def text(self): return "\n".join(self.L) + "\n"

class Regs:
    def __init__(self, start=0): self.n = start; self.names = {}
    def alloc(self, name, cnt=1, align=1):
        self.n = (self.n + align - 1) // align * align
        r = self.n; self.n += cnt; self.names[name] = (r, cnt); return r

def v(r, n=1): return f"v{r}" if n == 1 else f"v[{r}:{r+n-1}]"
def s(r, n=1): return f"s{r}" if n == 1 else f"s[{r}:{r+n-1}]"

WS_STAMP = 0x1000000
def stamp(a, i, cyc=None):
    if OPT["stamp"]:
        a(f"  s_memrealtime s[{80+2*i}:{81+2*i}]")
        if cyc is not None: a(f"  s_memtime s[{cyc}:{cyc+1}]")
def stamp_out(a, wsreg, kern, n, wreg):
    if not OPT["stamp"]: return
    a(f"""
  s_waitcnt lgkmcnt(0)
  s_lshl_b32 s96, s2, 3
  s_add_u32 s96, s96, s{wreg}
  s_lshl_b32 s96, s96, 6
  s_add_u32 s96, s96, {WS_STAMP + kern*0x100000}
  s_add_u32 s98, s{wsreg}, s96
  s_addc_u32 s99, s{wsreg+1}, 0
  s_mov_b64 exec, 1
  v_mov_b32 v1, 0""")
    for i in range(n):
        a(f"  v_mov_b32 v2, s{80+2*i}\n  global_store_dword v1, v2, s[98:99] offset:{4*i}")
    if kern == 1:
        for i, r in enumerate((72, 74, 44)):
            a(f"  v_mov_b32 v2, s{r}\n  global_store_dword v1, v2, s[98:99] offset:{32+4*i}")
    a("  s_mov_b64 exec, -1")

def srd(a, r, lo, nbytes, add=0, addreg=None):
    if add:
        a(f"  s_add_u32 s{r}, s{lo}, {add}\n  s_addc_u32 s{r+1}, s{lo+1}, 0")
    else:
        a(f"  s_mov_b32 s{r}, s{lo}\n  s_mov_b32 s{r+1}, s{lo+1}")
    if addreg is not None:
        a(f"  s_add_u32 s{r}, s{r}, s{addreg}\n  s_addc_u32 s{r+1}, s{r+1}, 0")
    a(f"  s_mov_b32 s{r+2}, {nbytes}\n  s_mov_b32 s{r+3}, 0x20000")

K1_LDS = 34048
def wfrag_loads(a, srdr, voff, dst, stmp):
    for st in range(4):
        a(f"  s_mov_b32 s{stmp+st}, {st*8192}")
    for st in range(4):
        for jj in range(8):
            a(f"  buffer_load_ushort v{dst+st*8+jj}, v{voff}, {s(srdr,4)}, s{stmp+st} offen offset:{jj*256}")
def wfrag_pack(a, src, dst):
    for i in range(16):
        a(f"  v_lshl_or_b32 v{dst+i}, v{src+2*i+1}, 16, v{src+2*i}")

def gen_k1():
    a = Asm()
    a(f"""
.globl mpnn_k1_kernel
.p2align 8
.type mpnn_k1_kernel,@function
mpnn_k1_kernel:
  s_cmp_ge_u32 s2, 254
  s_cbranch_scc1 K1_END""")
    stamp(a, 0)
    a(f"""
  s_load_dwordx4 s[4:7], s[0:1], 0      ; x, e_attr
  s_load_dwordx4 s[8:11], s[0:1], 16
  s_load_dwordx4 s[12:15], s[0:1], 32
  s_load_dwordx2 s[16:17], s[0:1], 64   ; ws
  v_lshrrev_b32 v1, 6, v0
  v_and_b32 v2, 63, v0                  ; lane
  s_nop 0
  v_readfirstlane_b32 s3, v1
  s_cmp_ge_u32 s2, {G}
  s_cbranch_scc1 K1_NOTBIN
  ; ---------------- binning ----------------
  v_mov_b32 v4, 0
  v_mov_b32 v5, 0
  v_mov_b32 v6, 0
  v_mov_b32 v7, 0
  v_lshlrev_b32 v3, 4, v0
  ds_write_b128 v3, v[4:7]
  ds_write_b128 v3, v[4:7] offset:8192
  ds_write_b128 v3, v[4:7] offset:16384
  ds_write_b128 v3, v[4:7] offset:24576
  v_lshlrev_b32 v8, 2, v0               ; tid*4
  v_cmp_gt_u32 vcc, 320, v0
  s_and_saveexec_b64 s[40:41], vcc
  ds_write_b32 v8, v4 offset:32768
  s_mov_b64 exec, s[40:41]
  s_mul_i32 s18, s2, {CH*4}
  s_add_u32 s19, s18, 2048
  s_add_u32 s20, s18, 4096
  s_add_u32 s21, s18, 6144
  s_add_u32 s22, s18, 8192
  s_waitcnt lgkmcnt(0)
""")
    srd(a, 24, 10, E*4)
    srd(a, 28, 8, E*4)
    for j in range(5):
        a(f"  buffer_load_dword v{10+j}, v8, s[24:27], s{18+j} offen")
    for j in range(5):
        a(f"  buffer_load_dword v{15+j}, v8, s[28:31], s{18+j} offen")
    srd(a, 32, 16, NB*BSTR, add=WS_CELL)
    srd(a, 36, 16, WS_OVF_SIZE, add=WS_OVF)
    a(f"""
  s_mov_b32 s42, {MAGIC}
  v_lshlrev_b32 v9, 6, v0
  v_add_u32 v9, {1<<18}, v9             ; (1<<18) + tid<<6
  v_mov_b32 v40, 1
  s_barrier
  s_waitcnt vmcnt(5)
""")
    stamp(a, 1)
    for j in range(5):
        a(f"""
  v_mul_u32_u24 v{20+j}, s42, v{10+j}
  v_lshrrev_b32 v{20+j}, 18, v{20+j}
  v_and_b32 v{20+j}, 0x3fc, v{20+j}      ; bucket*4
  ds_add_rtn_u32 v{25+j}, v{20+j}, v40 offset:32768""")
    a("  s_waitcnt vmcnt(0)")
    for j in range(5):
        a(f"""
  v_lshl_add_u32 v{30+j}, v{15+j}, 18, v9
  v_and_or_b32 v{30+j}, v{10+j}, 63, v{30+j}""")
        if j < 4: a(f"  v_add_u32 v9, {512<<6}, v9")
    a("  s_waitcnt lgkmcnt(0)\n  s_mov_b64 s[44:45], 0")
    for j in range(5):
        a(f"""
  v_lshlrev_b32 v{35+j}, 2, v{25+j}
  v_lshl_add_u32 v{35+j}, v{20+j}, 5, v{35+j}
  v_cmp_gt_u32 vcc, 31, v{25+j}
  s_and_saveexec_b64 s[40:41], vcc
  ds_write_b32 v{35+j}, v{30+j}
  s_mov_b64 exec, s[40:41]
  s_orn2_b64 s[44:45], s[44:45], vcc""")
    a(f"""
  s_waitcnt lgkmcnt(0)
  s_barrier
  s_cmp_eq_u64 s[44:45], 0
  s_cbranch_scc1 K1_NOOVF
  s_mul_i32 s43, s2, {OVSTR}
  s_add_u32 s43, s43, 64
  v_mov_b32 v41, {32768+1024}
  v_mov_b32 v42, 0xfffc0000""")
    for j in range(5):
        a(f"""
  v_cmp_le_u32 vcc, 31, v{25+j}
  s_and_saveexec_b64 s[40:41], vcc
  s_cbranch_execz K1_OV{j}
  ds_read_b32 v43, v{20+j} offset:32768
  v_lshlrev_b32 v44, 5, v{20+j}
  s_waitcnt lgkmcnt(0)
  v_cmp_ne_u32 vcc, 32, v43
  s_nop 1
  v_cndmask_b32 v45, v{30+j}, v42, vcc
  ds_write_b32 v44, v45 offset:124
  s_and_b64 exec, exec, vcc
  s_cbranch_execz K1_OV{j}
  ds_add_rtn_u32 v43, v41, v40
  v_mov_b32 v46, v{30+j}
  v_lshrrev_b32 v47, 2, v{20+j}
  s_waitcnt lgkmcnt(0)
  v_lshlrev_b32 v43, 3, v43
  buffer_store_dwordx2 v[46:47], v43, s[36:39], s43 offen
K1_OV{j}:
  s_mov_b64 exec, s[40:41]""")
    a(f"""
  s_waitcnt lgkmcnt(0)
K1_NOOVF:
  s_barrier
  ds_read_b128 v[12:15], v3
  ds_read_b128 v[16:19], v3 offset:8192
  ds_read_b128 v[20:23], v3 offset:16384
  ds_read_b128 v[24:27], v3 offset:24576
  v_mov_b32 v41, {32768+1024}
  ds_read_b32 v28, v41
  v_lshrrev_b32 v4, 3, v0
  s_mov_b32 s42, {BSTR}
  v_mul_u32_u24 v4, s42, v4
  v_and_b32 v5, 7, v0
  v_lshl_add_u32 v4, v5, 4, v4
  s_lshl_b32 s18, s2, 7
  s_add_u32 s19, s18, {64*BSTR}
  s_add_u32 s20, s18, {128*BSTR}
  s_add_u32 s21, s18, {192*BSTR}
  s_waitcnt lgkmcnt(4)
  buffer_store_dwordx4 v[12:15], v4, s[32:35], s18 offen
  s_waitcnt lgkmcnt(3)
  buffer_store_dwordx4 v[16:19], v4, s[32:35], s19 offen
  s_waitcnt lgkmcnt(2)
  buffer_store_dwordx4 v[20:23], v4, s[32:35], s20 offen
  s_waitcnt lgkmcnt(1)
  buffer_store_dwordx4 v[24:27], v4, s[32:35], s21 offen
  s_waitcnt lgkmcnt(0)""")
    stamp(a, 2)
    if OPT["stamp"]: a("  s_waitcnt vmcnt(0)")
    stamp(a, 3)
    stamp_out(a, 16, 0, 4, 3)
    a(f"""
  s_mul_i32 s43, s2, {OVSTR}
  v_mov_b32 v5, 0
  v_cmp_eq_u32 vcc, 0, v0
  s_and_saveexec_b64 s[40:41], vcc
  s_cbranch_execz K1_END
  buffer_store_dword v28, v5, s[36:39], s43 offen
  s_endpgm
K1_NOTBIN:
  v_and_b32 v3, 15, v2
  v_lshrrev_b32 v4, 4, v2
  s_lshl_b32 s18, s3, 5
  v_lshlrev_b32 v5, 11, v4              ; 8g*256
  v_lshl_add_u32 v5, v3, 1, v5
  v_add_u32 v5, s18, v5
  s_cmp_ge_u32 s2, {2*G}
  s_cbranch_scc1 K1_PREP
  s_sub_u32 s19, s2, {G}
  s_mul_i32 s19, s19, {80*256}
  v_lshlrev_b32 v6, 4, v0               ; piece*16
  v_lshrrev_b32 v7, 4, v0               ; row
  v_lshl_add_u32 v7, v7, 4, v6
  v_add_u32 v6, s19, v6
  v_add_u32 v20, 8192, v6
  v_add_u32 v21, 16384, v6
  s_waitcnt lgkmcnt(0)
""")
    srd(a, 24, 4, N*256)
    srd(a, 28, 12, 128*256)
    a("""
  buffer_load_dwordx4 v[8:11], v6, s[24:27], 0 offen
  buffer_load_dwordx4 v[12:15], v20, s[24:27], 0 offen
  buffer_load_dwordx4 v[16:19], v21, s[24:27], 0 offen""")
    wfrag_loads(a, 28, 5, 32, 44)
    srd(a, 32, 16, N*256, add=WS_P)
    a(f"""
  s_waitcnt vmcnt(34)
  ds_write_b128 v7, v[8:11]
  s_waitcnt vmcnt(33)
  ds_write_b128 v7, v[12:15] offset:{32*272}
  s_waitcnt vmcnt(32)
  s_cmp_ge_u32 s3, 4
  s_cbranch_scc1 K1_G1
  ds_write_b128 v7, v[16:19] offset:{64*272}
K1_G1:
  v_mul_u32_u24 v6, 272, v3
  v_lshl_add_u32 v6, v4, 4, v6
  v_lshlrev_b32 v7, 8, v3
  v_lshl_add_u32 v7, v4, 3, v7
  v_add_u32 v7, s18, v7
  s_waitcnt lgkmcnt(0)
  s_barrier""")
    for nt in range(5):
        for st in range(4):
            r = 64 + (nt*4+st)*4
            a(f"  ds_read_b128 {v(r,4)}, v6 offset:{nt*16*272 + st*64}")
    a("  s_waitcnt vmcnt(0)")
    stamp(a, 1)
    wfrag_pack(a, 32, 8)
    a("  s_waitcnt lgkmcnt(0)")
    a(f"  s_mov_b32 s42, {NLOG2E}\n  s_mov_b32 s43, {NLOG2E}")
    for nt in range(5):
        for st in range(4):
            r = 64 + (nt*4+st)*4
            c = "0" if st == 0 else v(32+4*nt, 4)
            a(f"  v_mfma_f32_16x16x32_bf16 {v(32+4*nt,4)}, {v(8+4*st,4)}, {v(r,4)}, {c}")
    a("  s_nop 7\n  s_nop 1")
    for nt in range(5):
        d = 32 + 4*nt
        a(f"""
  v_pk_mul_f32 {v(d,2)}, {v(d,2)}, s[42:43]
  v_pk_mul_f32 {v(d+2,2)}, {v(d+2,2)}, s[42:43]
  v_cvt_pk_bf16_f32 v{56+2*nt}, v{d}, v{d+1}
  v_cvt_pk_bf16_f32 v{57+2*nt}, v{d+2}, v{d+3}
  s_add_u32 s20, s19, {nt*4096}
  buffer_store_dwordx2 {v(56+2*nt,2)}, v7, s[32:35], s20 offen""")
    stamp(a, 2)
    if OPT["stamp"]: a("  s_waitcnt vmcnt(0)")
    stamp(a, 3)
    stamp_out(a, 16, 0, 4, 3)
    a(f"""
  s_endpgm
K1_PREP:
  s_waitcnt lgkmcnt(0)""")
    srd(a, 32, 16, WF_SIZE, add=WS_WF)
    a(f"""
  s_cmp_eq_u32 s2, {2*G+3}
  s_cbranch_scc1 K1_PREP3
  s_cmp_eq_u32 s2, {2*G}
  s_cselect_b32 s28, s12, s14
  s_cselect_b32 s29, s13, s15
  s_cmp_eq_u32 s2, {2*G+1}
  s_cselect_b32 s19, 0, 32768
  s_add_u32 s28, s28, s19
  s_addc_u32 s29, s29, 0
  s_mov_b32 s30, 32768
  s_mov_b32 s31, 0x20000""")
    wfrag_loads(a, 28, 5, 32, 44)
    a(f"""
  s_sub_u32 s19, s2, {2*G}
  s_lshl_b32 s19, s19, 15
  s_lshl_b32 s20, s3, 12
  s_add_u32 s19, s19, s20
  v_lshlrev_b32 v6, 4, v2
  s_waitcnt vmcnt(0)""")
    wfrag_pack(a, 32, 8)
    for st in range(4):
        a(f"  buffer_store_dwordx4 {v(8+4*st,4)}, v6, s[32:35], s19 offen offset:{st*1024}")
    a(f"""
  s_endpgm
K1_PREP3:
  s_cmp_ge_u32 s3, 4
  s_cbranch_scc1 K1_END""")
    srd(a, 28, 12, 16*256, add=256*256)
    a(f"""
  v_and_b32 v3, 31, v2
  v_lshrrev_b32 v4, 5, v2
  v_lshlrev_b32 v5, 11, v4
  v_lshl_add_u32 v5, v3, 1, v5
  s_lshl_b32 s18, s3, 6""")
    for jj in range(8):
        a(f"  buffer_load_ushort v{8+jj}, v5, s[28:31], s18 offen offset:{jj*256}")
    a(f"  s_mov_b32 s42, {NLOG2E}\n  v_lshlrev_b32 v6, 4, v2\n  s_lshl_b32 s19, s3, 10\n  s_waitcnt vmcnt(0)")
    for jj in range(8):
        a(f"  v_lshlrev_b32 v{8+jj}, 16, v{8+jj}\n  v_mul_f32 v{8+jj}, s42, v{8+jj}")
    for i in range(4):
        a(f"  v_cvt_pk_bf16_f32 v{16+i}, v{8+2*i}, v{9+2*i}")
    for i in range(4):
        a(f"""
  v_lshlrev_b32 v24, 16, v{16+i}
  v_and_b32 v25, 0xffff0000, v{16+i}
  v_sub_f32 v24, v{8+2*i}, v24
  v_sub_f32 v25, v{9+2*i}, v25
  v_cvt_pk_bf16_f32 v{20+i}, v24, v25""")
    a(f"""
  s_add_u32 s20, s19, {WF_3H}
  s_add_u32 s21, s19, {WF_3L}
  buffer_store_dwordx4 v[16:19], v6, s[32:35], s20 offen
  buffer_store_dwordx4 v[20:23], v6, s[32:35], s21 offen
K1_END:
  s_endpgm
""")
    return a.text(), 144

CAPB = 68
L_ENT = 0
L_GN = (CAPB + 1) * 256
L_CNT = L_GN + (CAPB + 17) * 32
L_FLG = L_CNT + 256
L_ACC = L_FLG + 32
AS = 1040
L_Q = L_ACC + 40 * AS
QS = 320
L_X = L_Q + 40 * QS
XS = 272
L_STG = L_X + 40 * XS
STG = 8 * 1040 + 1024
K2_LDS = L_STG + 8 * STG
PADS, PADE = 0x8000003f, 0x80000000

def gen_k2():
    a = Asm()
    R = Regs(1)
    al = R.alloc
    vl = al("lane")
    t0 = al("t", 8, 2); t1, t2, t3, t4, t5, t6, t7 = range(t0+1, t0+8)
    vchunk = al("vchunk"); vechunk = al("vechunk")
    vent = al("vent"); vrow = al("vrow"); vgq = al("vgq"); vga = al("vga")
    vAlo = al("Alo"); vAhi = al("Ahi"); vEF = al("vEF")
    vqlane = al("vqlane"); vacl = al("vacl"); vxb = al("vxb")
    vebase = al("vebase"); vone = al("vone")
    vqa = al("vqa"); vsrow = al("vsrow"); vgn1 = al("vgn1")
    ENT = al("ENT", 2, 2)
    MAC = al("MAC", 2, 2)
    PAT = al("PAT", 2, 2)
    nq = 2 if OPT["k8"] else 4
    AQ = al("AQ", nq, 2)
    GN = al("GN", 4, 2); AD = al("AD", 4)
    DO = al("DO", 2)
    I0 = al("I0", 4, 2); I1 = al("I1", 4, 2)
    W3 = al("W3", 16, 2)
    W3L = al("W3L", 16, 2) if OPT["lo"] else None
    BQ = al("BQ", 4*nq, 2)
    EF = al("EF", 4, 2)
    PF = al("PF", 32, 2)
    D0 = al("D0", 16, 2); D1 = al("D1", 16, 2)
    EA = al("EA", 8, 2); TA = al("TA", 8, 2); EB = al("EB", 8, 2); TB = al("TB", 8, 2)
    RA = al("RA", 2, 2); RB = al("RB", 2, 2)
    SA = al("SA", 2, 2); SB = al("SB", 2, 2)
    CV = al("CV", 8, 2)
    U = al("U", 12, 2); WUB = al("WUB", 16, 2)
    DUM = al("DUM", 4, 2)
    REC = D0
    NOD = D0 + 8
    RNK = D1
    XL = D1 + 8
    W2F = EA
    WUT = EB
    assert TA == EA + 8 and TB == EB + 8
    XF = PF
    QD = CV
    nv = R.n
    sX, sE_, sOUT, sWS = 4, 6, 8, 10
    sW = 3
    SP, SE, SC, SW, SX, SO, SV = 12, 16, 20, 24, 28, 32, 36
    sStart, sNb, sStg, sCnt, sT, sMode, sKind, sFirst = 40, 41, 42, 43, 44, 45, 46, 47
    sAS, sQS = 48, 49
    sOV = 50
    sTmp = 54
    sEx = 64
    sK = 66
    sBad = 68
    sP = 70
    sUB = 71

    a(f"""
.globl mpnn_k2_kernel
.p2align 8
.type mpnn_k2_kernel,@function
mpnn_k2_kernel:
  s_cmp_ge_u32 s2, {NB}
  s_cbranch_scc1 K2_END""")
    stamp(a, 0)
    a(f"""
  s_load_dwordx4 s[4:7], s[0:1], 0
  s_load_dwordx2 s[8:9], s[0:1], 48
  s_load_dwordx2 s[10:11], s[0:1], 64
  v_lshrrev_b32 v{t0}, 6, v0
  v_and_b32 v{vl}, 63, v0
  s_mul_i32 s{sStart}, s2, 640013
  v_readfirstlane_b32 s{sW}, v{t0}
  s_add_u32 s{sNb}, s{sStart}, {640013+16383}
  s_add_u32 s{sStart}, s{sStart}, 16383
  s_lshr_b32 s{sStart}, s{sStart}, 14
  s_lshr_b32 s{sNb}, s{sNb}, 14
  s_min_u32 s{sNb}, s{sNb}, {N}
  s_sub_u32 s{sNb}, s{sNb}, s{sStart}
  s_mov_b32 s{sMode}, 0
  s_mov_b32 s{sKind}, 0
  s_mov_b32 s{sFirst}, 1
  s_mov_b32 s{sAS}, {AS}
  s_mov_b32 s{sQS}, {QS}
  s_mul_i32 s{sStg}, s{sW}, {STG}
  s_add_u32 s{sStg}, s{sStg}, {L_STG}
  v_lshrrev_b32 v{t1}, 2, v0
  v_and_b32 v{t2}, 3, v0
  v_lshlrev_b32 v{t2}, 4, v{t2}
  v_lshl_add_u32 v{vqa}, v{t1}, 7, v{t2}
  s_mov_b32 s{sTmp}, {CH*32}
  v_mul_u32_u24 v{vebase}, s{sTmp}, v{t1}""")
    a(f"""
  v_mov_b32 v{vone}, 1
  v_mov_b32 v{MAC}, 0
  v_mov_b32 v{MAC+1}, 0
  v_and_b32 v{t0}, 15, v{vl}                 ; l&15
  v_bfe_u32 v{t1}, v{vl}, 4, 1               ; r4&1
  v_lshlrev_b32 v{t2}, 3, v{t1}
  v_xor_b32 v{t2}, v{t0}, v{t2}
  v_lshlrev_b32 v{vchunk}, 4, v{t2}
  v_and_b32 v{t2}, 1, v{vl}
  v_xor_b32 v{t2}, v{t2}, v{t1}
  v_lshlrev_b32 v{vechunk}, 4, v{t2}
  ; vent = w*256 + (8*(l>>4) + ((l&15)>>1))*8
  v_lshrrev_b32 v{t2}, 4, v{vl}
  v_lshlrev_b32 v{t2}, 6, v{t2}
  v_lshrrev_b32 v{t4}, 1, v{t0}
  v_lshl_add_u32 v{t2}, v{t4}, 3, v{t2}
  s_lshl_b32 s{sTmp}, s{sW}, 8
  v_add_u32 v{vent}, s{sTmp}, v{t2}
  v_bfe_u32 v{t2}, v{vl}, 2, 1               ; h
  v_and_b32 v{t4}, 1, v{vl}                  ; xy
  v_lshl_add_u32 v{t5}, v{t2}, 1, v{t4}      ; r4
  v_bfe_u32 v{t6}, v{vl}, 3, 2               ; 2o + bit3
  v_bfe_u32 v{t7}, v{vl}, 1, 1
  v_lshl_add_u32 v{t6}, v{t6}, 1, v{t7}
  v_lshl_add_u32 v{t7}, v{t5}, 3, v{t6}      ; q = 8 r4 + j
  v_lshlrev_b32 v{t7}, 3, v{t7}
  v_add_u32 v{vrow}, s{sTmp}, v{t7}
  v_lshrrev_b32 v{t7}, 5, v{vl}              ; hh
  ; A addresses
  v_mul_u32_u24 v{vAlo}, 1040, v{t6}
  v_lshl_add_u32 v{vAlo}, v{t5}, 8, v{vAlo}
  v_lshl_add_u32 v{vAlo}, v{t7}, 4, v{vAlo}
  v_add_u32 v{vAlo}, s{sStg}, v{vAlo}
  v_xor_b32 v{vAhi}, 1, v{t4}
  v_lshl_add_u32 v{vAhi}, v{vAhi}, 7, v{vAlo}
  v_lshl_add_u32 v{vAlo}, v{t4}, 7, v{vAlo}
  v_xor_b32 v{vEF}, v{t7}, v{t4}
  v_lshl_add_u32 v{vEF}, v{t6}, 1, v{vEF}
  v_lshl_add_u32 v{vEF}, v{t5}, 4, v{vEF}
  v_lshlrev_b32 v{vEF}, 4, v{vEF}
  s_add_u32 s{sTmp+1}, s{sStg}, 8320
  v_add_u32 v{vEF}, s{sTmp+1}, v{vEF}
  v_bfe_u32 v{t5}, v{vl}, 4, 1               ; o
  v_lshlrev_b32 v{t5}, 4, v{t5}
  v_mov_b32 v{t6}, 0x3f80
  v_lshlrev_b32 v{t5}, v{t5}, v{t6}
  v_cmp_eq_u32 vcc, v{t7}, v{t2}
  s_nop 1
  v_cndmask_b32 v{t5}, 0, v{t5}, vcc
  v_cmp_eq_u32 vcc, 0, v{t4}
  s_nop 1
  v_cndmask_b32 v{PAT}, 0, v{t5}, vcc
  v_cndmask_b32 v{PAT+1}, v{t5}, 0, vcc
  s_lshl_b32 s{sTmp}, s{sW}, 5
  s_add_u32 s{sTmp}, s{sTmp}, {L_GN}
  v_lshlrev_b32 v{vga}, 4, v{t7}
  v_add_u32 v{vga}, s{sTmp}, v{vga}
  v_and_b32 v{t2}, 12, v{vl}
  v_add_u32 v{vgq}, v{vga}, v{t2}
  v_and_b32 v{t2}, 3, v{vl}
  v_lshlrev_b32 v{t2}, 3, v{t2}
  v_lshl_add_u32 v{t2}, v{t1}, 5, v{t2}
  v_add_u32 v{vqlane}, {L_Q}, v{t2}
  v_and_b32 v{t2}, 31, v{vl}
  v_lshlrev_b32 v{t4}, 3, v{t2}
  v_add_u32 v{vacl}, {L_ACC}, v{t4}
  v_mul_u32_u24 v{vxb}, {XS}, v{t0}
  v_lshrrev_b32 v{t4}, 4, v{vl}
  v_lshl_add_u32 v{vxb}, v{t4}, 4, v{vxb}
  v_add_u32 v{vxb}, {L_X}, v{vxb}
  v_and_b32 v{t4}, 1, v{vl}
  v_lshlrev_b32 v{t4}, 4, v{t4}
  v_lshlrev_b32 v{t4}, v{t4}, v{t6}
  v_bfe_u32 v{t5}, v{vl}, 1, 4               ; (n>>1) = 4*(n>>3) + reg
  v_lshlrev_b32 v{t7}, 2, v{t7}
  v_sub_u32 v{t5}, v{t5}, v{t7}""")
    for i in range(4):
        a(f"  v_cmp_eq_u32 vcc, {i}, v{t5}\n  s_nop 1\n  v_cndmask_b32 v{I0+i}, 0, v{t4}, vcc")
        a(f"  v_cmp_eq_u32 vcc, {8+i}, v{t5}\n  s_nop 1\n  v_cndmask_b32 v{I1+i}, 0, v{t4}, vcc")
    if not OPT["k8"]:
        a(f"  v_mov_b32 v{AQ+2}, 0\n  v_mov_b32 v{AQ+3}, 0")
        for t in range(4):
            a(f"  v_mov_b32 v{BQ+4*t+2}, 0\n  v_mov_b32 v{BQ+4*t+3}, 0")
    a(f"""
  v_lshlrev_b32 v{t3}, 4, v0            ; tid*16
  v_lshlrev_b32 v{t4}, 4, v{vl}         ; lane*16
  s_mul_i32 s{sTmp}, s2, {BSTR}
  s_lshl_b32 s{sTmp+1}, s{sStart}, 8
  s_lshl_b32 s{sTmp+2}, s{sNb}, 8
  s_lshl_b32 s{sTmp+3}, s{sW}, 12
  s_waitcnt lgkmcnt(0)""")
    srd(a, SC, sWS, BSTR, add=WS_CELL, addreg=sTmp)
    a(f"""
  buffer_load_dwordx4 {v(REC,4)}, v{vqa}, {s(SC,4)}, 0 offen
  buffer_load_dwordx4 {v(REC+4,4)}, v{vqa}, {s(SC,4)}, 0 offen offset:64""")
    srd(a, SX, sX, f"s{sTmp+2}", addreg=sTmp+1)
    a(f"""
  v_add_u32 v{t5}, 8192, v{t3}
  buffer_load_dwordx4 {v(XL,4)}, v{t3}, {s(SX,4)}, 0 offen
  buffer_load_dwordx4 {v(XL+4,4)}, v{t5}, {s(SX,4)}, 0 offen""")
    srd(a, SW, sWS, WF_SIZE, add=WS_WF)
    a(f"  s_add_u32 s{sTmp+4}, s{sTmp+3}, {WF_UT}\n  s_add_u32 s{sUB}, s{sTmp+3}, {WF_UB}\n  s_mov_b32 s{sTmp+6}, {WF_3H}\n  s_mov_b32 s{sTmp+7}, {WF_3L}")
    nld = 4
    for st in range(4):
        a(f"  buffer_load_dwordx4 {v(W2F+4*st,4)}, v{t4}, {s(SW,4)}, s{sTmp+3} offen offset:{st*1024}")
    srd(a, SP, sWS, (N+1)*256, add=WS_P-256 if WS_P != 256 else 0)
    srd(a, SE, sE_, E*32)
    srd(a, SO, sOUT, f"s{sTmp+2}", addreg=sTmp+1)
    srd(a, SV, sWS, WS_OVF_SIZE, add=WS_OVF)
    a(f"""
  v_mov_b32 v{CV}, 0
  v_mov_b32 v{CV+1}, 0
  v_mov_b32 v{CV+2}, 0
  v_mov_b32 v{CV+3}, 0""")
    for j in range(6):
        a(f"  ds_write_b128 v{t3}, {v(CV,4)} offset:{L_GN + j*8192}")
    def prefill():
        a(f"""
  v_mov_b32 v{CV+4}, {PADS}
  v_mov_b32 v{CV+5}, {PADE}
  v_mov_b32 v{CV+6}, {PADS}
  v_mov_b32 v{CV+7}, {PADE}
  ds_write_b128 v{t3}, {v(CV+4,4)}
  ds_write_b128 v{t3}, {v(CV+4,4)} offset:8192
  v_cmp_gt_u32 vcc, {(L_GN-16384)//16}, v0
  s_and_saveexec_b64 {s(sEx,2)}, vcc
  ds_write_b128 v{t3}, {v(CV+4,4)} offset:16384
  s_mov_b64 exec, {s(sEx,2)}""")
    prefill()

    for st in range(4):
        a(f"  buffer_load_dwordx4 {v(WUT+4*st,4)}, v{t4}, {s(SW,4)}, s{sTmp+4} offen offset:{st*1024}")
    for st in range(4):
        a(f"  buffer_load_dwordx4 {v(W3+4*st,4)}, v{t4}, {s(SW,4)}, s{sTmp+6} offen offset:{st*1024}")
    nld += 12
    if OPT["lo"]:
        for st in range(4):
            a(f"  buffer_load_dwordx4 {v(W3L+4*st,4)}, v{t4}, {s(SW,4)}, s{sTmp+7} offen offset:{st*1024}")
        nld += 4
    npf = 0
    if OPT["pfE"]:
        a(f"  s_mul_i32 s{sTmp}, s2, 40000\n  v_lshlrev_b32 v{t5}, 7, v0\n  v_add_u32 v{t5}, s{sTmp}, v{t5}")
        a(f"  v_cmp_gt_u32 vcc, 320, v0\n  s_nop 1\n  v_cndmask_b32 v{t5}, -1, v{t5}, vcc")
        a(f"  buffer_load_dword v{DUM}, v{t5}, {s(SE,4)}, 0 offen")
        npf += 1
    if OPT["pfP"]:
        a(f"  s_lshr_b32 s{sTmp}, s2, 3\n  s_mul_i32 s{sTmp}, s{sTmp}, 81920\n  v_lshlrev_b32 v{t5}, 7, v0\n  v_add_u32 v{t5}, s{sTmp}, v{t5}")
        a(f"  buffer_load_dword v{DUM}, v{t5}, {s(SP,4)}, 0 offen\n  v_add_u32 v{t5}, 65536, v{t5}")
        a(f"  v_cmp_gt_u32 vcc, 128, v0\n  s_nop 1\n  v_cndmask_b32 v{t5}, -1, v{t5}, vcc")
        a(f"  buffer_load_dword v{DUM}, v{t5}, {s(SP,4)}, 0 offen")
        npf += 2
    NL = nld + npf
    a(f"""
  s_waitcnt lgkmcnt(0)
  s_barrier
  s_waitcnt vmcnt({NL-2})""")
    stamp(a, 1)
    a(f"""
K2_PHASE1:
  v_cmp_le_u32 vcc, 0xfffc0000, v{REC+7}
  s_cbranch_vccz K2_NOMARK
  s_and_saveexec_b64 {s(sEx,2)}, vcc
  v_lshrrev_b32 v{t0}, 2, v0                 ; producer
  v_lshrrev_b32 v{t1}, 5, v{t0}
  v_lshlrev_b32 v{t1}, 2, v{t1}
  v_lshlrev_b32 v{t0}, v{t0}, v{vone}
  ds_or_b32 v{t1}, v{t0} offset:{L_FLG+16}
  v_mov_b32 v{REC+7}, 0
  s_mov_b64 exec, {s(sEx,2)}
K2_NOMARK:""")
    for k in range(8):
        a(f"""
  v_and_b32 v{NOD+k}, 63, v{REC+k}
  v_cmpx_ne_u32 vcc, 0, v{REC+k}
  s_cbranch_execz K2_P1_{k}
  v_lshlrev_b32 v{NOD+k}, 2, v{NOD+k}
  ds_add_rtn_u32 v{RNK+k}, v{NOD+k}, v{vone} offset:{L_CNT}
K2_P1_{k}:
  s_mov_b64 exec, -1""")
    a(f"""
  s_cmp_eq_u32 s{sFirst}, 0
  s_cbranch_scc1 K2_NOX
  v_lshrrev_b32 v{t0}, 4, v0
  v_lshlrev_b32 v{t1}, 4, v0
  v_lshl_add_u32 v{t0}, v{t0}, 4, v{t1}
  v_add_u32 v{t0}, {L_X}, v{t0}
  s_waitcnt vmcnt({NL-4})
  ds_write_b128 v{t0}, {v(XL,4)}
  s_cmp_ge_u32 s{sW}, 2
  s_cbranch_scc1 K2_NOX
  ds_write_b128 v{t0}, {v(XL+4,4)} offset:{32*XS}
K2_NOX:
  s_waitcnt lgkmcnt(0)
  s_barrier
  v_lshlrev_b32 v{t0}, 2, v{vl}
  ds_read_b32 v{t1}, v{t0} offset:{L_CNT}
  v_subrev_u32 v{t4}, s{sStart}, v{vl}
  v_and_b32 v{t4}, 63, v{t4}
  s_waitcnt lgkmcnt(0)
  v_add_u32 v{t1}, 3, v{t1}
  v_and_b32 v{t1}, -4, v{t1}
  v_mov_b32 v{t2}, v{t1}
  s_nop 1
  v_add_u32_dpp v{t2}, v{t2}, v{t2} row_shr:1 row_mask:0xf bank_mask:0xf
  s_nop 1
  v_add_u32_dpp v{t2}, v{t2}, v{t2} row_shr:2 row_mask:0xf bank_mask:0xf
  s_nop 1
  v_add_u32_dpp v{t2}, v{t2}, v{t2} row_shr:4 row_mask:0xf bank_mask:0xf
  s_nop 1
  v_add_u32_dpp v{t2}, v{t2}, v{t2} row_shr:8 row_mask:0xf bank_mask:0xf
  s_nop 1
  v_add_u32_dpp v{t2}, v{t2}, v{t2} row_bcast:15 row_mask:0xa bank_mask:0xf
  s_nop 1
  v_add_u32_dpp v{t2}, v{t2}, v{t2} row_bcast:31 row_mask:0xc bank_mask:0xf
  s_nop 1
  v_readlane_b32 s{sT}, v{t2}, 63
  v_sub_u32 v{t1}, v{t2}, v{t1}              ; start
  s_cmp_gt_u32 s{sT}, {CAPB*32}
  s_cbranch_scc1 K2_SPLIT""")
    for k in range(4):
        a(f"  ds_bpermute_b32 v{NOD+k}, v{NOD+k}, v{t1}")
    a(f"""
  v_or3_b32 v{t3}, v{REC+4}, v{REC+5}, v{REC+6}
  v_or_b32 v{t3}, v{t3}, v{REC+7}
  v_cmp_ne_u32 vcc, 0, v{t3}
  s_cbranch_vccz K2_P2A""")
    for k in range(4, 8):
        a(f"  ds_bpermute_b32 v{NOD+k}, v{NOD+k}, v{t1}")
    a("K2_P2A:\n  s_waitcnt lgkmcnt(0)")
    for k in range(8):
        e = t6 if k % 2 == 0 else CV
        a(f"""
  v_cmpx_ne_u32 vcc, 0, v{REC+k}
  s_cbranch_execz K2_P2_{k}
  v_lshrrev_b32 v{e}, 10, v{REC+k}
  v_and_b32 v{e}, {hex(0xffffff00 if not OPT['hot'] else 0x1f00 if OPT['hot']==1 else 0x1fff00)}, v{e}
  v_bfe_u32 v{e+1}, v{REC+k}, 6, 12
  v_lshl_add_u32 v{e+1}, v{e+1}, 5, v{vebase}
  {'v_and_b32 v%d, 0xfe0, v%d' % (e+1,e+1) if OPT['hot'] else ''}
  v_add_lshl_u32 v{NOD+k}, v{NOD+k}, v{RNK+k}, 3
  ds_write_b64 v{NOD+k}, {v(e,2)}
K2_P2_{k}:
  s_mov_b64 exec, -1""")
    assert t6 % 2 == 0
    a(f"""
  v_lshrrev_b32 v{t1}, 2, v{t1}
  v_lshrrev_b32 v{t2}, 2, v{t2}
  v_add_u32 v{t1}, s{sW}, v{t1}
K2_GNL:
  v_cmpx_lt_u32 vcc, v{t1}, v{t2}
  s_cbranch_execz K2_GNE
  v_lshlrev_b32 v{t3}, 2, v{t1}
  ds_write_b32 v{t3}, v{t4} offset:{L_GN}
  v_add_u32 v{t1}, 8, v{t1}
  s_branch K2_GNL
K2_GNE:
  s_mov_b64 exec, -1
  s_add_u32 s{sT}, s{sT}, 31
  s_lshr_b32 s{sT}, s{sT}, 5
  s_add_u32 s{sCnt}, s{sT}, 7
  s_sub_u32 s{sCnt}, s{sCnt}, s{sW}
  s_lshr_b32 s{sCnt}, s{sCnt}, 3
  s_waitcnt lgkmcnt(0)
  s_barrier""")

    def dma_issue():
        L = []
        for j in range(8):
            d = DO + (j & 1)
            L.append([f"  s_add_u32 m0, s{sStg}, {j*1040}",
                      f"  v_add_u32_dpp v{d}, v{ENT}, v{vchunk} row_newbcast:{2*j} row_mask:0xf bank_mask:0xf",
                      f"  buffer_load_dwordx4 v{d}, {s(SP,4)}, 0 offen lds" if not OPT["nodma"] else "  s_nop 0"])
        L.append([f"  s_add_u32 m0, s{sStg}, 8320",
                  f"  v_add_u32 v{DO}, v{ENT+1}, v{vechunk}",
                  f"  buffer_load_dwordx4 v{DO}, {s(SE,4)}, 0 offen lds" if not (OPT["nodma"] or OPT["noe"]) else "  s_nop 0"])
        return L
    def frag_reads():
        L = []
        for st in range(8):
            L.append(f"  ds_read_b128 {v(PF+4*st,4)}, v{vAlo if st < 4 else vAhi} offset:{32*(st&3)}")
        L.insert(2, f"  ds_read_b128 {v(EF,4)}, v{vEF}")
        return L
    def bq_reads():
        return [f"  ds_read_b64_tr_b16 {v(BQ+nq*t,2)}, v{vqa} offset:{64*t}" for t in range(4)]
    def chain(t, D):
        L = [f"  v_mfma_f32_32x32x16_bf16 {v(D,16)}, {v(EF,4)}, {v(W3+4*t,4)}, 0"]
        if OPT["lo"]:
            L.append(f"  v_mfma_f32_32x32x16_bf16 {v(D,16)}, {v(EF,4)}, {v(W3L+4*t,4)}, {v(D,16)}")
        L.append(f"  v_mfma_f32_32x32x16_bf16 {v(D,16)}, {v(PF+8*t,4)}, {v(I0,4)}, {v(D,16)}")
        L.append(f"  v_mfma_f32_32x32x16_bf16 {v(D,16)}, {v(PF+8*t+4,4)}, {v(I1,4)}, {v(D,16)}")
        if OPT["k8"]:
            L.append(f"  v_mfma_f32_32x32x8bf16_1k {v(D,16)}, {v(AQ,2)}, {v(BQ+2*t,2)}, {v(D,16)}")
        else:
            L.append(f"  v_mfma_f32_32x32x16_bf16 {v(D,16)}, {v(AQ,4)}, {v(BQ+4*t,4)}, {v(D,16)}")
        return L

    stamp(a, 2)
    a(f"  ds_read_b64 {v(ENT,2)}, v{vent}\n  s_waitcnt lgkmcnt(0)")
    for x in dma_issue(): a("\n".join(x))
    a(f"  ds_read_b64 {v(ENT,2)}, v{vent} offset:2048")
    a(f"""
  s_cmp_eq_u32 s{sFirst}, 0
  s_cbranch_scc1 K2_NOGEMM0
  s_mov_b32 s{sFirst}, 0
  s_mov_b32 s{sK}, {NLOG2E}
  s_mov_b32 s{sK+1}, {NLOG2E}
  s_waitcnt vmcnt({NL-12+(0 if OPT['nodma'] else 8 if OPT['noe'] else 9)})""")
    a(f"""
  v_and_b32 v{t0}, 15, v{vl}
  v_mul_u32_u24 v{t0}, {QS}, v{t0}
  v_lshrrev_b32 v{t1}, 4, v{vl}
  v_lshl_add_u32 v{t0}, v{t1}, 3, v{t0}
  s_lshl_b32 s{sTmp}, s{sW}, 5
  s_add_u32 s{sTmp}, s{sTmp}, {L_Q}
  v_add_u32 v{t0}, s{sTmp}, v{t0}""")
    for nt in range(3):
        xf = XF + 16*(nt & 1)
        for st in range(4):
            a(f"  ds_read_b128 {v(xf+4*st,4)}, v{vxb} offset:{nt*16*XS + st*64}")
        a("  s_waitcnt lgkmcnt(0)")
        for st in range(4):
            c = "0" if st == 0 else v(QD, 4)
            a(f"  v_mfma_f32_16x16x32_bf16 {v(QD,4)}, {v(W2F+4*st,4)}, {v(xf+4*st,4)}, {c}")
        for st in range(4):
            c = "0" if st == 0 else v(U+4*nt, 4)
            a(f"  v_mfma_f32_16x16x32_bf16 {v(U+4*nt,4)}, {v(WUT+4*st,4)}, {v(xf+4*st,4)}, {c}")
        a(f"""
  s_nop 4
  v_pk_mul_f32 {v(QD,2)}, {v(QD,2)}, {s(sK,2)}
  v_pk_mul_f32 {v(QD+2,2)}, {v(QD+2,2)}, {s(sK,2)}
  v_cvt_pk_bf16_f32 v{QD+4}, v{QD}, v{QD+1}
  v_cvt_pk_bf16_f32 v{QD+5}, v{QD+2}, v{QD+3}""")
        if nt == 2:
            a(f"  v_and_b32 v{t1}, 8, v{vl}\n  v_cmpx_eq_u32 vcc, 0, v{t1}")
        a(f"  ds_write_b64 v{t0}, {v(QD+4,2)} offset:{nt*16*QS}")
        if nt == 2:
            a("  s_mov_b64 exec, -1")
        a("  s_nop 4")
    a(f"""
  v_lshlrev_b32 v{t4}, 4, v{vl}""")
    for st in range(4):
        a(f"  buffer_load_dwordx4 {v(WUB+4*st,4)}, v{t4}, {s(SW,4)}, s{sUB} offen offset:{st*1024}")
    a(f"""
  s_waitcnt lgkmcnt(0)
  s_barrier
K2_NOGEMM:
  ds_read_b32 v{vgn1}, v{vgq}
  ds_read_b32 v{vsrow}, v{vrow}
  ds_read_b128 {v(GN,4)}, v{vga}
  s_waitcnt vmcnt(4)""")
    stamp(a, 3, 72)
    if OPT["stamp"]: a("  s_waitcnt lgkmcnt(0)")
    for x in frag_reads(): a(x)
    a(f"""
  s_waitcnt lgkmcnt(9)
  v_mad_u32_u24 v{vqa}, v{vgn1}, s{sQS}, v{vqlane}
  v_lshrrev_b64 {v(AQ,2)}, v{vsrow}, {v(PAT,2)}""")
    for x in bq_reads(): a(x)
    a("  s_waitcnt lgkmcnt(0)")
    for x in dma_issue(): a("\n".join(x))
    for x in chain(0, D0): a(x)
    a(f"""
  s_nop 7
  s_nop 3
  s_cmp_eq_u32 s{sCnt}, 0
  s_cbranch_scc1 K2_LOOPEND
  s_cmp_lg_u32 s{sMode}, 0
  s_cbranch_scc1 K2_SAFE""")

    def p(r): return v(r, 2)
    def octet_fast(d, e, t, r, sres):
        ex = [f"  v_exp_f32 v{e+i}, v{d+i}" for i in range(8)]
        L = [f"  v_pk_add_f32 {p(t)}, {p(e)}, 1.0 op_sel_hi:[1,0]",
             f"  v_pk_add_f32 {p(t+2)}, {p(e+4)}, 1.0 op_sel_hi:[1,0]",
             f"  v_pk_fma_f32 {p(t+4)}, {p(d)}, {p(e+2)}, {p(d)}",
             f"  v_pk_fma_f32 {p(t+6)}, {p(d+4)}, {p(e+6)}, {p(d+4)}",
             f"  v_pk_fma_f32 {p(e)}, {p(t)}, {p(e+2)}, {p(t)}",
             f"  v_pk_fma_f32 {p(e+4)}, {p(t+2)}, {p(e+6)}, {p(t+2)}",
             f"  v_pk_fma_f32 {p(t+4)}, {p(d+2)}, {p(t)}, {p(t+4)}",
             f"  v_pk_fma_f32 {p(t+6)}, {p(d+6)}, {p(t+2)}, {p(t+6)}",
             f"  v_pk_mul_f32 {p(t)}, {p(e)}, {p(e+4)}",
             f"  v_pk_mul_f32 {p(t+4)}, {p(t+4)}, {p(e+4)}",
             f"  v_rcp_f32 v{r}, v{t}",
             f"  v_rcp_f32 v{r+1}, v{t+1}",
             f"  v_pk_fma_f32 {p(t+4)}, {p(t+6)}, {p(e)}, {p(t+4)}",
             f"  v_pk_mul_f32 {p(sres)}, {p(t+4)}, {p(r)}"]
        return ex, L
    def octet_safe(d, e, t, r, sres):
        ex = [f"  v_exp_f32 v{e+i}, v{d+i}" for i in range(8)]
        L = [f"  v_pk_add_f32 {p(e+2*i)}, {p(e+2*i)}, 1.0 op_sel_hi:[1,0]" for i in range(4)]
        L += [f"  v_rcp_f32 v{t+i}, v{e+i}" for i in range(8)]
        L += [f"  v_pk_mul_f32 {p(sres)}, {p(d)}, {p(t)}"]
        L += [f"  v_pk_fma_f32 {p(sres)}, {p(d+2*i)}, {p(t+2*i)}, {p(sres)}" for i in range(1, 4)]
        return ex, L
    def zipl(x, y):
        o = []
        for i in range(max(len(x), len(y))):
            if i < len(x): o.append(x[i])
            if i < len(y): o.append(y[i])
        return o

    def loop(safe):
        lab = "K2_SAFE" if safe else "K2_FAST"
        oc = octet_safe if safe else octet_fast
        a(f".p2align 6\n{lab}:")
        for t in range(4):
            D = D0 if t % 2 == 0 else D1
            Dn = D1 if t % 2 == 0 else D0
            exa, La = oc(D, EA, TA, RA, SA)
            exb, Lb = oc(D+8, EB, TB, RB, SB)
            ex = exa + exb
            ch = chain((t+1) % 4, Dn)
            pk = zipl(La, Lb)
            if not safe:
                idx = max(i for i, x in enumerate(pk) if x.startswith(f"  v_pk_mul_f32 {p(TB)}, {p(EB)}"))
                pk.insert(idx+1, f"  v_pk_fma_f32 {p(MAC)}, {p(TA)}, {p(TB)}, {p(MAC)}")
            fin = []
            for o, S in ((0, SA), (1, SB)):
                for xy in range(2):
                    c = CV + 2*(2*o+xy)
                    fin.append(f"  v_cvt_f64_f32 {v(c,2)}, v{S+xy}")
            for o in range(2):
                for xy in range(2):
                    c = CV + 2*(2*o+xy)
                    fin.append(f"  ds_add_f64 v{AD+2*xy+o}, {v(c,2)} offset:{256*t}" if not OPT["noadd"] else f"  ds_read_b32 v{DUM}, v{vgq}")
            head = []
            per = 16 // len(ch)
            e = 0
            pre = []
            if t == 0:
                pre = [f"  v_mad_u32_u24 v{AD+i}, v{GN+i}, s{sAS}, v{vacl}" for i in range(4)]
                pk = pk[:4] + pre + pk[4:]
            if t == 2:
                a(f"  ds_read_b64 {v(ENT,2)}, v{vent} offset:4096")
                a(f"  ds_read_b32 v{vgn1}, v{vgq} offset:256")
                a(f"  ds_read_b32 v{vsrow}, v{vrow} offset:2048")
                a(f"  ds_read_b128 {v(GN,4)}, v{vga} offset:256")
            if t == 3:
                a("  s_waitcnt lgkmcnt(4)")
            dma = dma_issue() if t == 3 else []
            for i, m in enumerate(ch):
                head.append(m)
                n = per if i < len(ch)-1 else 16 - e
                for x in ex[e:e+n]:
                    head.append(x)
                    if dma and (len(head) % 2 == 0):
                        head += dma.pop(0)
                e += n
            for x in dma: head += x
            for x in head: a(x)
            if t == 2:
                mid = [f"  s_waitcnt vmcnt(0) lgkmcnt(0)",
                       f"  v_mad_u32_u24 v{vqa}, v{vgn1}, s{sQS}, v{vqlane}",
                       f"  v_lshrrev_b64 {v(AQ,2)}, v{vsrow}, {v(PAT,2)}"]
                rd = frag_reads() + bq_reads()
                body = pk[:6] + mid + zipl(pk[6:], rd)
                for x in body: a(x)
            elif t == 3:
                inc = [f"  v_add_u32 v{vent}, 2048, v{vent}", f"  v_add_u32 v{vrow}, 2048, v{vrow}",
                       f"  v_add_u32 v{vgq}, 256, v{vgq}", f"  v_add_u32 v{vga}, 256, v{vga}"]
                for x in pk[:4] + inc + pk[4:]: a(x)
            else:
                for x in pk: a(x)
            for x in fin: a(x)
        a(f"""
  s_sub_u32 s{sCnt}, s{sCnt}, 1
  s_cmp_lg_u32 s{sCnt}, 0
  s_cbranch_scc1 {lab}""")
    loop(False)
    a(f"""
K2_LOOPEND:""")
    stamp(a, 4)
    a(f"""
  s_waitcnt vmcnt(0) lgkmcnt(0)
  s_barrier""")
    stamp(a, 5, 74)
    if OPT["stamp"]: a("  s_waitcnt lgkmcnt(0)")
    a(f"""
  s_cmp_eq_u32 s{sKind}, 1
  s_cbranch_scc1 K2_HALF1
  s_cmp_eq_u32 s{sKind}, 3
  s_cbranch_scc1 K2_OVPART1
  s_cmp_eq_u32 s{sKind}, 4
  s_cbranch_scc1 K2_NEXTOV
  v_mov_b32 v{t0}, {L_FLG+16}
  ds_read_b128 {v(CV,4)}, v{t0}
K2_CONV:
  s_mul_i32 s{sTmp}, s{sW}, {AS}
  s_add_u32 s{sTmp}, s{sTmp}, {L_ACC}
  v_lshlrev_b32 v{t1}, 4, v{vl}
  v_add_u32 v{t1}, s{sTmp}, v{t1}""")
    for k in range(5):
        a(f"  ds_read_b128 {v(D0+4*k,4)}, v{t1} offset:{k*8*AS}")
    a(f"""
  s_mul_i32 s{sTmp}, s{sW}, {XS}
  s_add_u32 s{sTmp}, s{sTmp}, {L_X}
  v_lshlrev_b32 v{t2}, 2, v{vl}
  v_add_u32 v{t2}, s{sTmp}, v{t2}
  s_cmp_ge_u32 s{sKind}, 3
  s_cbranch_scc1 K2_CONV2
  s_waitcnt lgkmcnt(5)
  v_or3_b32 v{t0}, v{CV}, v{CV+1}, v{CV+2}
  v_or_b32 v{t0}, v{t0}, v{CV+3}
  v_cmp_ne_u32 vcc, 0, v{t0}
  s_cbranch_vccnz K2_STARTOV
K2_CONV2:
  s_mov_b32 s{sTmp}, 0x71800000              ; 2^100
  v_cmp_nle_f32 {s(sBad,2)}, v{MAC}, s{sTmp}
  v_cmp_nle_f32 vcc, v{MAC+1}, s{sTmp}
  s_or_b64 {s(sBad,2)}, {s(sBad,2)}, vcc
  s_movk_i32 s{sTmp}, 0x207""")
    for k in range(5):
        a(f"""
  s_waitcnt lgkmcnt({4-k})
  v_cvt_f32_f64 v{EA+2*k}, {v(D0+4*k,2)}
  v_cvt_f32_f64 v{EA+2*k+1}, {v(D0+4*k+2,2)}
  v_cmp_class_f32 vcc, v{EA+2*k}, s{sTmp}
  s_or_b64 {s(sBad,2)}, {s(sBad,2)}, vcc
  v_cmp_class_f32 vcc, v{EA+2*k+1}, s{sTmp}
  s_or_b64 {s(sBad,2)}, {s(sBad,2)}, vcc
  v_cvt_pk_bf16_f32 v{EB+k}, v{EA+2*k}, v{EA+2*k+1}""")
    for k in range(5):
        a(f"  ds_write_b32 v{t2}, v{EB+k} offset:{k*8*XS}")
    a(f"""
  s_cmp_eq_u64 {s(sBad,2)}, 0
  s_cbranch_scc1 K2_OKW
  v_mov_b32 v{t0}, {L_FLG}
  ds_write_b32 v{t0}, v{vone}
K2_OKW:
  s_waitcnt lgkmcnt(0)
  s_barrier
  v_mov_b32 v{t0}, {L_FLG}
  ds_read_b32 v{t0}, v{t0}""")
    for nt in range(2):
        for st in range(4):
            a(f"  ds_read_b128 {v(XF+16*nt+4*st,4)}, v{vxb} offset:{nt*16*XS + st*64}")
    a(f"""
  s_waitcnt lgkmcnt(8)
  v_readfirstlane_b32 s{sTmp}, v{t0}
  s_cmp_gt_u32 s{sTmp}, s{sMode}
  {"s_cbranch_scc1 K2_RESTART" if not (OPT["nodma"] or OPT["noe"] or OPT["noadd"] or OPT["hot"]) else "s_nop 0"}
  s_waitcnt lgkmcnt(4)""")
    for st in range(4):
        c = "0" if st == 0 else v(D0, 4)
        a(f"  v_mfma_f32_16x16x32_bf16 {v(D0,4)}, {v(WUB+4*st,4)}, {v(XF+4*st,4)}, {c}")
    for st in range(4):
        a(f"  ds_read_b128 {v(D1+4*st,4)}, v{vxb} offset:{2*16*XS + st*64}")
    a("  s_waitcnt lgkmcnt(4)")
    for st in range(4):
        c = "0" if st == 0 else v(D0+4, 4)
        a(f"  v_mfma_f32_16x16x32_bf16 {v(D0+4,4)}, {v(WUB+4*st,4)}, {v(XF+16+4*st,4)}, {c}")
    a("  s_waitcnt lgkmcnt(0)")
    for st in range(4):
        c = "0" if st == 0 else v(D0+8, 4)
        a(f"  v_mfma_f32_16x16x32_bf16 {v(D0+8,4)}, {v(WUB+4*st,4)}, {v(D1+4*st,4)}, {c}")
    a(f"""
  s_mov_b32 s{sK}, {NLN2}
  s_mov_b32 s{sK+1}, {NLN2}
  s_mov_b32 s{sTmp}, {NLOG2E}
  s_mov_b32 s{sTmp+1}, {NLOG2E}
  v_and_b32 v{t0}, 15, v{vl}
  v_lshlrev_b32 v{t0}, 8, v{t0}
  v_lshrrev_b32 v{t1}, 4, v{vl}
  v_lshl_add_u32 v{t0}, v{t1}, 3, v{t0}
  s_lshl_b32 s{sTmp+2}, s{sW}, 5
  v_add_u32 v{t0}, s{sTmp+2}, v{t0}
  v_add_u32 v{t1}, 4096, v{t0}
  v_add_u32 v{t2}, 8192, v{t0}""")
    for nt in range(3):
        d = D0 + 4*nt
        a(f"""
  v_pk_fma_f32 {p(d)}, {p(d)}, {s(sK,2)}, {p(U+4*nt)}
  v_pk_fma_f32 {p(d+2)}, {p(d+2)}, {s(sK,2)}, {p(U+4*nt+2)}
  v_pk_mul_f32 {p(EA)}, {p(d)}, {s(sTmp,2)}
  v_pk_mul_f32 {p(EA+2)}, {p(d+2)}, {s(sTmp,2)}""")
        for i in range(4): a(f"  v_exp_f32 v{EA+i}, v{EA+i}")
        a(f"  s_nop 0\n  v_pk_add_f32 {p(EA)}, {p(EA)}, 1.0 op_sel_hi:[1,0]\n  v_pk_add_f32 {p(EA+2)}, {p(EA+2)}, 1.0 op_sel_hi:[1,0]")
        for i in range(4): a(f"  v_rcp_f32 v{EA+i}, v{EA+i}")
        a(f"""
  s_nop 0
  v_pk_mul_f32 {p(d)}, {p(d)}, {p(EA)}
  v_pk_mul_f32 {p(d+2)}, {p(d+2)}, {p(EA+2)}
  v_cvt_pk_bf16_f32 v{EB+2*nt}, v{d}, v{d+1}
  v_cvt_pk_bf16_f32 v{EB+2*nt+1}, v{d+2}, v{d+3}
  buffer_store_dwordx2 {v(EB+2*nt,2)}, v{t0+nt}, {s(SO,4)}, 0 offen""")
    stamp(a, 6)
    if OPT["stamp"]: a("  s_waitcnt vmcnt(0)")
    stamp(a, 7)
    stamp_out(a, sWS, 1, 8, sW)
    a(f"""
K2_END:
  s_endpgm
""")
    loop(True)
    a("  s_branch K2_LOOPEND")
    a(f"""
K2_NOGEMM0:
  s_waitcnt vmcnt(0)
  s_branch K2_NOGEMM
K2_RESTART:
  s_mov_b32 s{sMode}, 1
  s_mov_b32 s{sKind}, 0
  s_waitcnt lgkmcnt(0)
  s_barrier
  v_lshlrev_b32 v{t3}, 4, v0
  v_mov_b32 v{CV}, 0
  v_mov_b32 v{CV+1}, 0
  v_mov_b32 v{CV+2}, 0
  v_mov_b32 v{CV+3}, 0""")
    for j in range(5):
        a(f"  ds_write_b128 v{t3}, {v(CV,4)} offset:{L_ACC + j*8192}")
    a(f"""
  v_cmp_gt_u32 vcc, {(40*AS-5*8192)//16}, v0
  s_and_saveexec_b64 {s(sEx,2)}, vcc
  ds_write_b128 v{t3}, {v(CV,4)} offset:{L_ACC + 5*8192}
  s_mov_b64 exec, {s(sEx,2)}
  s_branch K2_RELOAD
K2_SPLIT:
  s_mov_b32 s{sKind}, 1
  s_waitcnt lgkmcnt(0)
  s_barrier
  s_branch K2_RELOAD
K2_HALF1:
  s_mov_b32 s{sKind}, 2
K2_RELOAD:
  v_lshrrev_b32 v{t1}, 2, v0
  v_and_b32 v{t2}, 3, v0
  v_lshlrev_b32 v{t2}, 4, v{t2}
  v_lshl_add_u32 v{t2}, v{t1}, 7, v{t2}
  s_mov_b32 s{sTmp}, {CH*32}
  v_mul_u32_u24 v{vebase}, s{sTmp}, v{t1}
  s_waitcnt vmcnt(0)
  buffer_load_dwordx4 {v(REC,4)}, v{t2}, {s(SC,4)}, 0 offen
  buffer_load_dwordx4 {v(REC+4,4)}, v{t2}, {s(SC,4)}, 0 offen offset:64
  s_waitcnt vmcnt(0)
  s_cmp_eq_u32 s{sKind}, 0
  s_cbranch_scc1 K2_ROUND
  s_cmp_lt_u32 s{sW}, 4
  s_cselect_b32 s{sTmp}, 1, 2
  s_cmp_eq_u32 s{sTmp}, s{sKind}
  s_cbranch_scc1 K2_ROUND""")
    for k in range(8): a(f"  v_mov_b32 v{REC+k}, 0")
    a(f"""
K2_ROUND:
  v_lshlrev_b32 v{t3}, 4, v0
  v_mov_b32 v{CV}, 0
  v_mov_b32 v{CV+1}, 0
  v_mov_b32 v{CV+2}, 0
  v_mov_b32 v{CV+3}, 0
  v_cmp_gt_u32 vcc, {(L_FLG-L_GN)//16}, v0
  s_and_saveexec_b64 {s(sEx,2)}, vcc
  ds_write_b128 v{t3}, {v(CV,4)} offset:{L_GN}
  s_mov_b64 exec, {s(sEx,2)}""")
    prefill()
    a(f"""
  v_and_b32 v{vent}, 2047, v{vent}
  v_and_b32 v{vrow}, 2047, v{vrow}
  v_subrev_u32 v{vga}, {L_GN}, v{vga}
  v_and_b32 v{vga}, 255, v{vga}
  v_add_u32 v{vga}, {L_GN}, v{vga}
  v_and_b32 v{t2}, 12, v{vl}
  v_add_u32 v{vgq}, v{vga}, v{t2}
  s_waitcnt lgkmcnt(0)
  s_barrier
  s_branch K2_PHASE1
K2_STARTOV:
  v_readfirstlane_b32 s{sOV}, v{CV}
  v_readfirstlane_b32 s{sOV+1}, v{CV+1}
  v_readfirstlane_b32 s{sOV+2}, v{CV+2}
  v_readfirstlane_b32 s{sOV+3}, v{CV+3}
  s_mov_b32 s{sKind}, 4
  s_waitcnt lgkmcnt(0)
K2_NEXTOV:
  s_ff1_i32_b64 s{sP}, {s(sOV,2)}
  s_cmp_lg_u32 s{sP}, -1
  s_cbranch_scc1 K2_OVLO
  s_ff1_i32_b64 s{sP}, {s(sOV+2,2)}
  s_cmp_eq_u32 s{sP}, -1
  s_cbranch_scc1 K2_CONV
  s_bitset0_b64 {s(sOV+2,2)}, s{sP}
  s_add_u32 s{sP}, s{sP}, 64
  s_branch K2_OVGO
K2_OVLO:
  s_bitset0_b64 {s(sOV,2)}, s{sP}
K2_OVGO:
  s_mov_b32 s{sKind}, 3
  v_mov_b32 v{t4}, v0
  s_branch K2_OVLD
K2_OVPART1:
  s_mov_b32 s{sKind}, 4
  v_add_u32 v{t4}, 2048, v0
K2_OVLD:
  s_mul_i32 s{sTmp}, s{sP}, {OVSTR}
  s_mul_i32 s{sTmp+1}, s{sP}, {CH*32}
  v_mov_b32 v{vebase}, s{sTmp+1}
  v_mov_b32 v{t0}, s{sTmp}
  buffer_load_dword v{t1}, v{t0}, {s(SV,4)}, 0 offen
  v_lshl_add_u32 v{t2}, v{t4}, 3, v{t0}""")
    for k in range(4):
        a(f"  buffer_load_dwordx2 {v(PF+2*k,2)}, v{t2}, {s(SV,4)}, 0 offen offset:64\n  v_add_u32 v{t2}, 4096, v{t2}")
    a(f"  s_waitcnt vmcnt(0)")
    for k in range(4):
        a(f"""
  v_cmp_lt_u32 vcc, v{t4}, v{t1}
  v_cmp_eq_u32 {s(sEx,2)}, s2, v{PF+2*k+1}
  s_and_b64 vcc, vcc, {s(sEx,2)}
  v_add_u32 v{t4}, 512, v{t4}
  s_nop 1
  v_cndmask_b32 v{REC+k}, 0, v{PF+2*k}, vcc""")
    for k in range(4, 8): a(f"  v_mov_b32 v{REC+k}, 0")
    a("  s_branch K2_ROUND")
    return a.text(), nv

def desc(name, nv, ns):
    return f"""
.amdhsa_kernel {name}
  .amdhsa_next_free_vgpr {nv}
  .amdhsa_next_free_sgpr {ns}
  .amdhsa_accum_offset {(nv+3)//4*4}
  .amdhsa_group_segment_fixed_size 0
  .amdhsa_kernarg_size 72
  .amdhsa_user_sgpr_count 2
  .amdhsa_user_sgpr_kernarg_segment_ptr 1
  .amdhsa_system_sgpr_workgroup_id_x 1
.end_amdhsa_kernel
"""

HEAD = """; Kernarg layout for this problem (72 bytes, ptrs only, base s[0:1]):
"""

def main():
    k1, nv1 = gen_k1()
    k2, nv2 = gen_k2()
    out = HEAD
    out += f"; @launch kernel=mpnn_k1_kernel grid=(254,1,1) block=(512,1,1) lds={K1_LDS}\n"
    out += f"; @launch kernel=mpnn_k2_kernel grid=({NB},1,1) block=(512,1,1) lds={K2_LDS}\n"
    out += '.amdgcn_target "amdgcn-amd-amdhsa--gfx950"\n.text\n' + k1 + k2
    out += '.section .rodata,"a"\n.p2align 6\n' + desc("mpnn_k1_kernel", nv1, 102 if OPT["stamp"] else 64) + ".p2align 6\n" + desc("mpnn_k2_kernel", nv2, 102 if OPT["stamp"] else 80)
    open(sys.argv[1], "w").write(out)
    print("vgprs", nv1, nv2, "lds", K1_LDS, K2_LDS)
main()
```

```python
import sys, struct

N = 10000; E = 320000
G = 125
CH = 2560
NB = 256
MAGIC = 26843
CELLB = 128
BSTR = G * CELLB

WS_P = 256
WS_CELL = 0x280000
WS_WF = 0x680000
WF_W2, WF_UT, WF_UB, WF_3H, WF_3L = 0, 32768, 65536, 98304, 102400
WF_SIZE = 106496
WS_OVF = 0x6A0000
OVSTR = 64 + CH * 8
WS_OVF_SIZE = G * OVSTR

def f32(x): return struct.unpack("<I", struct.pack("<f", x))[0]
LOG2E = 1.4426950408889634
LN2 = 0.6931471805599453
NLOG2E = f32(-LOG2E); NLN2 = f32(-LN2)

OPT = dict(lo=0, pfP=1, pfE=1, k8=1, stamp=0, nodma=0, noadd=0, noe=0, hot=0)
for a in sys.argv[2:]:
    k, v = a.split("="); OPT[k] = int(v)

class Asm:
    def __init__(self): self.L = []
    def __call__(self, s):
        for x in s.strip("\n").split("\n"):
            self.L.append(x)
    def text(self): return "\n".join(self.L) + "\n"

class Regs:
    def __init__(self, start=0): self.n = start; self.names = {}
    def alloc(self, name, cnt=1, align=1):
        self.n = (self.n + align - 1) // align * align
        r = self.n; self.n += cnt; self.names[name] = (r, cnt); return r

def v(r, n=1): return f"v{r}" if n == 1 else f"v[{r}:{r+n-1}]"
def s(r, n=1): return f"s{r}" if n == 1 else f"s[{r}:{r+n-1}]"

WS_STAMP = 0x1000000
def stamp(a, i, cyc=None):
    if OPT["stamp"]:
        a(f"  s_memrealtime s[{80+2*i}:{81+2*i}]")
        if cyc is not None: a(f"  s_memtime s[{cyc}:{cyc+1}]")
def stamp_out(a, wsreg, kern, n, wreg):
    if not OPT["stamp"]: return
    if OPT["stamp"] == 2:
        a(f"""
  s_load_dwordx2 s[98:99], s[0:1], 56
  s_waitcnt lgkmcnt(0)
  s_sub_u32 s98, s98, {512*kern}
  s_subb_u32 s99, s99, 0
  s_mov_b64 exec, 1
  v_mov_b32 v1, 0
  s_not_b32 s96, s80
  v_mov_b32 v2, s96
  global_atomic_umax v1, v2, s[98:99] offset:{kern*20}""")
        for i in range(n):
            a(f"  v_mov_b32 v2, s{80+2*i}\n  global_atomic_umax v1, v2, s[98:99] offset:{kern*20+4+4*i}")
        a("  s_mov_b64 exec, -1")
        return
    a(f"""
  s_waitcnt lgkmcnt(0)
  s_lshl_b32 s96, s2, 3
  s_add_u32 s96, s96, s{wreg}
  s_lshl_b32 s96, s96, 6
  s_add_u32 s96, s96, {WS_STAMP + kern*0x100000}
  s_add_u32 s98, s{wsreg}, s96
  s_addc_u32 s99, s{wsreg+1}, 0
  s_mov_b64 exec, 1
  v_mov_b32 v1, 0""")
    for i in range(n):
        a(f"  v_mov_b32 v2, s{80+2*i}\n  global_store_dword v1, v2, s[98:99] offset:{4*i}")
    if kern == 1:
        for i, r in enumerate((72, 74, 44)):
            a(f"  v_mov_b32 v2, s{r}\n  global_store_dword v1, v2, s[98:99] offset:{32+4*i}")
    a("  s_mov_b64 exec, -1")

def srd(a, r, lo, nbytes, add=0, addreg=None):
    if add:
        a(f"  s_add_u32 s{r}, s{lo}, {add}\n  s_addc_u32 s{r+1}, s{lo+1}, 0")
    else:
        a(f"  s_mov_b32 s{r}, s{lo}\n  s_mov_b32 s{r+1}, s{lo+1}")
    if addreg is not None:
        a(f"  s_add_u32 s{r}, s{r}, s{addreg}\n  s_addc_u32 s{r+1}, s{r+1}, 0")
    a(f"  s_mov_b32 s{r+2}, {nbytes}\n  s_mov_b32 s{r+3}, 0x20000")

K1_LDS = 34048
def wfrag_loads(a, srdr, voff, dst, stmp):
    for st in range(4):
        a(f"  s_mov_b32 s{stmp+st}, {st*8192}")
    for st in range(4):
        for jj in range(8):
            a(f"  buffer_load_ushort v{dst+st*8+jj}, v{voff}, {s(srdr,4)}, s{stmp+st} offen offset:{jj*256}")
def wfrag_pack(a, src, dst):
    for i in range(16):
        a(f"  v_lshl_or_b32 v{dst+i}, v{src+2*i+1}, 16, v{src+2*i}")

def gen_k1():
    a = Asm()
    a(f"""
.globl mpnn_k1_kernel
.p2align 8
.type mpnn_k1_kernel,@function
mpnn_k1_kernel:
  s_cmp_ge_u32 s2, 254
  s_cbranch_scc1 K1_END""")
    stamp(a, 0)
    a(f"""
  s_load_dwordx4 s[4:7], s[0:1], 0      ; x, e_attr
  s_load_dwordx4 s[8:11], s[0:1], 16
  s_load_dwordx4 s[12:15], s[0:1], 32
  s_load_dwordx2 s[16:17], s[0:1], 64   ; ws
  v_lshrrev_b32 v1, 6, v0
  v_and_b32 v2, 63, v0                  ; lane
  s_nop 0
  v_readfirstlane_b32 s3, v1
  s_cmp_ge_u32 s2, {G}
  s_cbranch_scc1 K1_NOTBIN
  ; ---------------- binning ----------------
  v_mov_b32 v4, 0
  v_mov_b32 v5, 0
  v_mov_b32 v6, 0
  v_mov_b32 v7, 0
  v_lshlrev_b32 v3, 4, v0
  ds_write_b128 v3, v[4:7]
  ds_write_b128 v3, v[4:7] offset:8192
  ds_write_b128 v3, v[4:7] offset:16384
  ds_write_b128 v3, v[4:7] offset:24576
  v_lshlrev_b32 v8, 2, v0               ; tid*4
  v_cmp_gt_u32 vcc, 320, v0
  s_and_saveexec_b64 s[40:41], vcc
  ds_write_b32 v8, v4 offset:32768
  s_mov_b64 exec, s[40:41]
  s_mul_i32 s18, s2, {CH*4}
  s_add_u32 s19, s18, 2048
  s_add_u32 s20, s18, 4096
  s_add_u32 s21, s18, 6144
  s_add_u32 s22, s18, 8192
  s_waitcnt lgkmcnt(0)
""")
    srd(a, 24, 10, E*4)
    srd(a, 28, 8, E*4)
    for j in range(5):
        a(f"  buffer_load_dword v{10+j}, v8, s[24:27], s{18+j} offen")
    for j in range(5):
        a(f"  buffer_load_dword v{15+j}, v8, s[28:31], s{18+j} offen")
    srd(a, 32, 16, NB*BSTR, add=WS_CELL)
    srd(a, 36, 16, WS_OVF_SIZE, add=WS_OVF)
    a(f"""
  s_mov_b32 s42, {MAGIC}
  v_lshlrev_b32 v9, 6, v0
  v_add_u32 v9, {1<<18}, v9             ; (1<<18) + tid<<6
  v_mov_b32 v40, 1
  s_barrier
  s_waitcnt vmcnt(5)
""")
    stamp(a, 1)
    for j in range(5):
        a(f"""
  v_mul_u32_u24 v{20+j}, s42, v{10+j}
  v_lshrrev_b32 v{20+j}, 18, v{20+j}
  v_and_b32 v{20+j}, 0x3fc, v{20+j}      ; bucket*4
  ds_add_rtn_u32 v{25+j}, v{20+j}, v40 offset:32768""")
    a("  s_waitcnt vmcnt(0)")
    for j in range(5):
        a(f"""
  v_lshl_add_u32 v{30+j}, v{15+j}, 18, v9
  v_and_or_b32 v{30+j}, v{10+j}, 63, v{30+j}""")
        if j < 4: a(f"  v_add_u32 v9, {512<<6}, v9")
    a("  s_waitcnt lgkmcnt(0)\n  s_mov_b64 s[44:45], 0")
    for j in range(5):
        a(f"""
  v_lshlrev_b32 v{35+j}, 2, v{25+j}
  v_lshl_add_u32 v{35+j}, v{20+j}, 5, v{35+j}
  v_cmp_gt_u32 vcc, 31, v{25+j}
  s_and_saveexec_b64 s[40:41], vcc
  ds_write_b32 v{35+j}, v{30+j}
  s_mov_b64 exec, s[40:41]
  s_orn2_b64 s[44:45], s[44:45], vcc""")
    a(f"""
  s_waitcnt lgkmcnt(0)
  s_barrier
  s_cmp_eq_u64 s[44:45], 0
  s_cbranch_scc1 K1_NOOVF
  s_mul_i32 s43, s2, {OVSTR}
  s_add_u32 s43, s43, 64
  v_mov_b32 v41, {32768+1024}
  v_mov_b32 v42, 0xfffc0000""")
    for j in range(5):
        a(f"""
  v_cmp_le_u32 vcc, 31, v{25+j}
  s_and_saveexec_b64 s[40:41], vcc
  s_cbranch_execz K1_OV{j}
  ds_read_b32 v43, v{20+j} offset:32768
  v_lshlrev_b32 v44, 5, v{20+j}
  s_waitcnt lgkmcnt(0)
  v_cmp_ne_u32 vcc, 32, v43
  s_nop 1
  v_cndmask_b32 v45, v{30+j}, v42, vcc
  ds_write_b32 v44, v45 offset:124
  s_and_b64 exec, exec, vcc
  s_cbranch_execz K1_OV{j}
  ds_add_rtn_u32 v43, v41, v40
  v_mov_b32 v46, v{30+j}
  v_lshrrev_b32 v47, 2, v{20+j}
  s_waitcnt lgkmcnt(0)
  v_lshlrev_b32 v43, 3, v43
  buffer_store_dwordx2 v[46:47], v43, s[36:39], s43 offen
K1_OV{j}:
  s_mov_b64 exec, s[40:41]""")
    a(f"""
  s_waitcnt lgkmcnt(0)
K1_NOOVF:
  s_barrier
  ds_read_b128 v[12:15], v3
  ds_read_b128 v[16:19], v3 offset:8192
  ds_read_b128 v[20:23], v3 offset:16384
  ds_read_b128 v[24:27], v3 offset:24576
  v_mov_b32 v41, {32768+1024}
  ds_read_b32 v28, v41
  v_lshrrev_b32 v4, 3, v0
  s_mov_b32 s42, {BSTR}
  v_mul_u32_u24 v4, s42, v4
  v_and_b32 v5, 7, v0
  v_lshl_add_u32 v4, v5, 4, v4
  s_lshl_b32 s18, s2, 7
  s_add_u32 s19, s18, {64*BSTR}
  s_add_u32 s20, s18, {128*BSTR}
  s_add_u32 s21, s18, {192*BSTR}
  s_waitcnt lgkmcnt(4)
  buffer_store_dwordx4 v[12:15], v4, s[32:35], s18 offen
  s_waitcnt lgkmcnt(3)
  buffer_store_dwordx4 v[16:19], v4, s[32:35], s19 offen
  s_waitcnt lgkmcnt(2)
  buffer_store_dwordx4 v[20:23], v4, s[32:35], s20 offen
  s_waitcnt lgkmcnt(1)
  buffer_store_dwordx4 v[24:27], v4, s[32:35], s21 offen
  s_waitcnt lgkmcnt(0)""")
    stamp(a, 2)
    if OPT["stamp"]: a("  s_waitcnt vmcnt(0)")
    stamp(a, 3)
    stamp_out(a, 16, 0, 4, 3)
    a(f"""
  s_mul_i32 s43, s2, {OVSTR}
  v_mov_b32 v5, 0
  v_cmp_eq_u32 vcc, 0, v0
  s_and_saveexec_b64 s[40:41], vcc
  s_cbranch_execz K1_END
  buffer_store_dword v28, v5, s[36:39], s43 offen
  s_endpgm
K1_NOTBIN:
  v_and_b32 v3, 15, v2
  v_lshrrev_b32 v4, 4, v2
  s_lshl_b32 s18, s3, 5
  v_lshlrev_b32 v5, 11, v4              ; 8g*256
  v_lshl_add_u32 v5, v3, 1, v5
  v_add_u32 v5, s18, v5
  s_cmp_ge_u32 s2, {2*G}
  s_cbranch_scc1 K1_PREP
  s_sub_u32 s19, s2, {G}
  s_mul_i32 s19, s19, {80*256}
  v_lshlrev_b32 v6, 4, v0               ; piece*16
  v_lshrrev_b32 v7, 4, v0               ; row
  v_lshl_add_u32 v7, v7, 4, v6
  v_add_u32 v6, s19, v6
  v_add_u32 v20, 8192, v6
  v_add_u32 v21, 16384, v6
  s_waitcnt lgkmcnt(0)
""")
    srd(a, 24, 4, N*256)
    srd(a, 28, 12, 128*256)
    a("""
  buffer_load_dwordx4 v[8:11], v6, s[24:27], 0 offen
  buffer_load_dwordx4 v[12:15], v20, s[24:27], 0 offen
  buffer_load_dwordx4 v[16:19], v21, s[24:27], 0 offen""")
    wfrag_loads(a, 28, 5, 32, 44)
    srd(a, 32, 16, N*256, add=WS_P)
    a(f"""
  s_waitcnt vmcnt(34)
  ds_write_b128 v7, v[8:11]
  s_waitcnt vmcnt(33)
  ds_write_b128 v7, v[12:15] offset:{32*272}
  s_waitcnt vmcnt(32)
  s_cmp_ge_u32 s3, 4
  s_cbranch_scc1 K1_G1
  ds_write_b128 v7, v[16:19] offset:{64*272}
K1_G1:
  v_mul_u32_u24 v6, 272, v3
  v_lshl_add_u32 v6, v4, 4, v6
  v_lshlrev_b32 v7, 8, v3
  v_lshl_add_u32 v7, v4, 3, v7
  v_add_u32 v7, s18, v7
  s_waitcnt lgkmcnt(0)
  s_barrier""")
    for nt in range(5):
        for st in range(4):
            r = 64 + (nt*4+st)*4
            a(f"  ds_read_b128 {v(r,4)}, v6 offset:{nt*16*272 + st*64}")
    a("  s_waitcnt vmcnt(0)")
    stamp(a, 1)
    wfrag_pack(a, 32, 8)
    a("  s_waitcnt lgkmcnt(0)")
    a(f"  s_mov_b32 s42, {NLOG2E}\n  s_mov_b32 s43, {NLOG2E}")
    for nt in range(5):
        for st in range(4):
            r = 64 + (nt*4+st)*4
            c = "0" if st == 0 else v(32+4*nt, 4)
            a(f"  v_mfma_f32_16x16x32_bf16 {v(32+4*nt,4)}, {v(8+4*st,4)}, {v(r,4)}, {c}")
    a("  s_nop 7\n  s_nop 1")
    for nt in range(5):
        d = 32 + 4*nt
        a(f"""
  v_pk_mul_f32 {v(d,2)}, {v(d,2)}, s[42:43]
  v_pk_mul_f32 {v(d+2,2)}, {v(d+2,2)}, s[42:43]
  v_cvt_pk_bf16_f32 v{56+2*nt}, v{d}, v{d+1}
  v_cvt_pk_bf16_f32 v{57+2*nt}, v{d+2}, v{d+3}
  s_add_u32 s20, s19, {nt*4096}
  buffer_store_dwordx2 {v(56+2*nt,2)}, v7, s[32:35], s20 offen""")
    stamp(a, 2)
    if OPT["stamp"]: a("  s_waitcnt vmcnt(0)")
    stamp(a, 3)
    stamp_out(a, 16, 0, 4, 3)
    a(f"""
  s_endpgm
K1_PREP:
  s_waitcnt lgkmcnt(0)""")
    srd(a, 32, 16, WF_SIZE, add=WS_WF)
    a(f"""
  s_cmp_eq_u32 s2, {2*G+3}
  s_cbranch_scc1 K1_PREP3
  s_cmp_eq_u32 s2, {2*G}
  s_cselect_b32 s28, s12, s14
  s_cselect_b32 s29, s13, s15
  s_cmp_eq_u32 s2, {2*G+1}
  s_cselect_b32 s19, 0, 32768
  s_add_u32 s28, s28, s19
  s_addc_u32 s29, s29, 0
  s_mov_b32 s30, 32768
  s_mov_b32 s31, 0x20000""")
    wfrag_loads(a, 28, 5, 32, 44)
    a(f"""
  s_sub_u32 s19, s2, {2*G}
  s_lshl_b32 s19, s19, 15
  s_lshl_b32 s20, s3, 12
  s_add_u32 s19, s19, s20
  v_lshlrev_b32 v6, 4, v2
  s_waitcnt vmcnt(0)""")
    wfrag_pack(a, 32, 8)
    for st in range(4):
        a(f"  buffer_store_dwordx4 {v(8+4*st,4)}, v6, s[32:35], s19 offen offset:{st*1024}")
    a(f"""
  s_endpgm
K1_PREP3:
  s_cmp_ge_u32 s3, 4
  s_cbranch_scc1 K1_END""")
    srd(a, 28, 12, 16*256, add=256*256)
    a(f"""
  v_and_b32 v3, 31, v2
  v_lshrrev_b32 v4, 5, v2
  v_lshlrev_b32 v5, 11, v4
  v_lshl_add_u32 v5, v3, 1, v5
  s_lshl_b32 s18, s3, 6""")
    for jj in range(8):
        a(f"  buffer_load_ushort v{8+jj}, v5, s[28:31], s18 offen offset:{jj*256}")
    a(f"  s_mov_b32 s42, {NLOG2E}\n  v_lshlrev_b32 v6, 4, v2\n  s_lshl_b32 s19, s3, 10\n  s_waitcnt vmcnt(0)")
    for jj in range(8):
        a(f"  v_lshlrev_b32 v{8+jj}, 16, v{8+jj}\n  v_mul_f32 v{8+jj}, s42, v{8+jj}")
    for i in range(4):
        a(f"  v_cvt_pk_bf16_f32 v{16+i}, v{8+2*i}, v{9+2*i}")
    for i in range(4):
        a(f"""
  v_lshlrev_b32 v24, 16, v{16+i}
  v_and_b32 v25, 0xffff0000, v{16+i}
  v_sub_f32 v24, v{8+2*i}, v24
  v_sub_f32 v25, v{9+2*i}, v25
  v_cvt_pk_bf16_f32 v{20+i}, v24, v25""")
    a(f"""
  s_add_u32 s20, s19, {WF_3H}
  s_add_u32 s21, s19, {WF_3L}
  buffer_store_dwordx4 v[16:19], v6, s[32:35], s20 offen
  buffer_store_dwordx4 v[20:23], v6, s[32:35], s21 offen
K1_END:
  s_endpgm
""")
    return a.text(), 144

CAPB = 68
L_ENT = 0
L_GN = (CAPB + 1) * 256
L_CNT = L_GN + (CAPB + 17) * 32
L_FLG = L_CNT + 256
L_ACC = L_FLG + 32
AS = 1040
L_Q = L_ACC + 40 * AS
QS = 320
L_X = L_Q + 40 * QS
XS = 272
L_STG = L_X + 40 * XS
STG = 8 * 1040 + 1024
K2_LDS = L_STG + 8 * STG
PADS, PADE = 0x8000003f, 0x80000000

def gen_k2():
    a = Asm()
    R = Regs(1)
    al = R.alloc
    vl = al("lane")
    t0 = al("t", 8, 2); t1, t2, t3, t4, t5, t6, t7 = range(t0+1, t0+8)
    vchunk = al("vchunk"); vechunk = al("vechunk")
    vent = al("vent"); vrow = al("vrow"); vgq = al("vgq"); vga = al("vga")
    vAlo = al("Alo"); vAhi = al("Ahi"); vEF = al("vEF")
    vqlane = al("vqlane"); vacl = al("vacl"); vxb = al("vxb")
    vebase = al("vebase"); vone = al("vone")
    vqa = al("vqa"); vsrow = al("vsrow"); vgn1 = al("vgn1")
    ENT = al("ENT", 2, 2)
    MAC = al("MAC", 2, 2)
    PAT = al("PAT", 2, 2)
    nq = 2 if OPT["k8"] else 4
    AQ = al("AQ", nq, 2)
    GN = al("GN", 4, 2); AD = al("AD", 4)
    DO = al("DO", 2)
    I0 = al("I0", 4, 2); I1 = al("I1", 4, 2)
    W3 = al("W3", 16, 2)
    W3L = al("W3L", 16, 2) if OPT["lo"] else None
    BQ = al("BQ", 4*nq, 2)
    EF = al("EF", 4, 2)
    PF = al("PF", 32, 2)
    D0 = al("D0", 16, 2); D1 = al("D1", 16, 2)
    EA = al("EA", 8, 2); TA = al("TA", 8, 2); EB = al("EB", 8, 2); TB = al("TB", 8, 2)
    RA = al("RA", 2, 2); RB = al("RB", 2, 2)
    SA = al("SA", 2, 2); SB = al("SB", 2, 2)
    CV = al("CV", 8, 2)
    U = al("U", 12, 2); WUB = al("WUB", 16, 2)
    DUM = al("DUM", 4, 2)
    REC = D0
    NOD = D0 + 8
    RNK = D1
    XL = D1 + 8
    W2F = EA
    WUT = EB
    assert TA == EA + 8 and TB == EB + 8
    XF = PF
    QD = CV
    nv = R.n
    sX, sE_, sOUT, sWS = 4, 6, 8, 10
    sW = 3
    SP, SE, SC, SW, SX, SO, SV = 12, 16, 20, 24, 28, 32, 36
    sStart, sNb, sStg, sCnt, sT, sMode, sKind, sFirst = 40, 41, 42, 43, 44, 45, 46, 47
    sAS, sQS = 48, 49
    sOV = 50
    sTmp = 54
    sEx = 64
    sK = 66
    sBad = 68
    sP = 70
    sUB = 71

    a(f"""
.globl mpnn_k2_kernel
.p2align 8
.type mpnn_k2_kernel,@function
mpnn_k2_kernel:
  s_cmp_ge_u32 s2, {NB}
  s_cbranch_scc1 K2_END""")
    stamp(a, 0)
    a(f"""
  s_load_dwordx4 s[4:7], s[0:1], 0
  s_load_dwordx2 s[8:9], s[0:1], 48
  s_load_dwordx2 s[10:11], s[0:1], 64
  v_lshrrev_b32 v{t0}, 6, v0
  v_and_b32 v{vl}, 63, v0
  s_mul_i32 s{sStart}, s2, 640013
  v_readfirstlane_b32 s{sW}, v{t0}
  s_add_u32 s{sNb}, s{sStart}, {640013+16383}
  s_add_u32 s{sStart}, s{sStart}, 16383
  s_lshr_b32 s{sStart}, s{sStart}, 14
  s_lshr_b32 s{sNb}, s{sNb}, 14
  s_min_u32 s{sNb}, s{sNb}, {N}
  s_sub_u32 s{sNb}, s{sNb}, s{sStart}
  s_mov_b32 s{sMode}, 0
  s_mov_b32 s{sKind}, 0
  s_mov_b32 s{sFirst}, 1
  s_mov_b32 s{sAS}, {AS}
  s_mov_b32 s{sQS}, {QS}
  s_mul_i32 s{sStg}, s{sW}, {STG}
  s_add_u32 s{sStg}, s{sStg}, {L_STG}
  v_lshrrev_b32 v{t1}, 2, v0
  v_and_b32 v{t2}, 3, v0
  v_lshlrev_b32 v{t2}, 4, v{t2}
  v_lshl_add_u32 v{vqa}, v{t1}, 7, v{t2}
  s_mov_b32 s{sTmp}, {CH*32}
  v_mul_u32_u24 v{vebase}, s{sTmp}, v{t1}""")
    a(f"""
  v_mov_b32 v{vone}, 1
  v_mov_b32 v{MAC}, 0
  v_mov_b32 v{MAC+1}, 0
  v_and_b32 v{t0}, 15, v{vl}                 ; l&15
  v_bfe_u32 v{t1}, v{vl}, 4, 1               ; r4&1
  v_lshlrev_b32 v{t2}, 3, v{t1}
  v_xor_b32 v{t2}, v{t0}, v{t2}
  v_lshlrev_b32 v{vchunk}, 4, v{t2}
  v_and_b32 v{t2}, 1, v{vl}
  v_xor_b32 v{t2}, v{t2}, v{t1}
  v_lshlrev_b32 v{vechunk}, 4, v{t2}
  ; vent = w*256 + (8*(l>>4) + ((l&15)>>1))*8
  v_lshrrev_b32 v{t2}, 4, v{vl}
  v_lshlrev_b32 v{t2}, 6, v{t2}
  v_lshrrev_b32 v{t4}, 1, v{t0}
  v_lshl_add_u32 v{t2}, v{t4}, 3, v{t2}
  s_lshl_b32 s{sTmp}, s{sW}, 8
  v_add_u32 v{vent}, s{sTmp}, v{t2}
  v_bfe_u32 v{t2}, v{vl}, 2, 1               ; h
  v_and_b32 v{t4}, 1, v{vl}                  ; xy
  v_lshl_add_u32 v{t5}, v{t2}, 1, v{t4}      ; r4
  v_bfe_u32 v{t6}, v{vl}, 3, 2               ; 2o + bit3
  v_bfe_u32 v{t7}, v{vl}, 1, 1
  v_lshl_add_u32 v{t6}, v{t6}, 1, v{t7}
  v_lshl_add_u32 v{t7}, v{t5}, 3, v{t6}      ; q = 8 r4 + j
  v_lshlrev_b32 v{t7}, 3, v{t7}
  v_add_u32 v{vrow}, s{sTmp}, v{t7}
  v_lshrrev_b32 v{t7}, 5, v{vl}              ; hh
  ; A addresses
  v_mul_u32_u24 v{vAlo}, 1040, v{t6}
  v_lshl_add_u32 v{vAlo}, v{t5}, 8, v{vAlo}
  v_lshl_add_u32 v{vAlo}, v{t7}, 4, v{vAlo}
  v_add_u32 v{vAlo}, s{sStg}, v{vAlo}
  v_xor_b32 v{vAhi}, 1, v{t4}
  v_lshl_add_u32 v{vAhi}, v{vAhi}, 7, v{vAlo}
  v_lshl_add_u32 v{vAlo}, v{t4}, 7, v{vAlo}
  v_xor_b32 v{vEF}, v{t7}, v{t4}
  v_lshl_add_u32 v{vEF}, v{t6}, 1, v{vEF}
  v_lshl_add_u32 v{vEF}, v{t5}, 4, v{vEF}
  v_lshlrev_b32 v{vEF}, 4, v{vEF}
  s_add_u32 s{sTmp+1}, s{sStg}, 8320
  v_add_u32 v{vEF}, s{sTmp+1}, v{vEF}
  v_bfe_u32 v{t5}, v{vl}, 4, 1               ; o
  v_lshlrev_b32 v{t5}, 4, v{t5}
  v_mov_b32 v{t6}, 0x3f80
  v_lshlrev_b32 v{t5}, v{t5}, v{t6}
  v_cmp_eq_u32 vcc, v{t7}, v{t2}
  s_nop 1
  v_cndmask_b32 v{t5}, 0, v{t5}, vcc
  v_cmp_eq_u32 vcc, 0, v{t4}
  s_nop 1
  v_cndmask_b32 v{PAT}, 0, v{t5}, vcc
  v_cndmask_b32 v{PAT+1}, v{t5}, 0, vcc
  s_lshl_b32 s{sTmp}, s{sW}, 5
  s_add_u32 s{sTmp}, s{sTmp}, {L_GN}
  v_lshlrev_b32 v{vga}, 4, v{t7}
  v_add_u32 v{vga}, s{sTmp}, v{vga}
  v_and_b32 v{t2}, 12, v{vl}
  v_add_u32 v{vgq}, v{vga}, v{t2}
  v_and_b32 v{t2}, 3, v{vl}
  v_lshlrev_b32 v{t2}, 3, v{t2}
  v_lshl_add_u32 v{t2}, v{t1}, 5, v{t2}
  v_add_u32 v{vqlane}, {L_Q}, v{t2}
  v_and_b32 v{t2}, 31, v{vl}
  v_lshlrev_b32 v{t4}, 3, v{t2}
  v_add_u32 v{vacl}, {L_ACC}, v{t4}
  v_mul_u32_u24 v{vxb}, {XS}, v{t0}
  v_lshrrev_b32 v{t4}, 4, v{vl}
  v_lshl_add_u32 v{vxb}, v{t4}, 4, v{vxb}
  v_add_u32 v{vxb}, {L_X}, v{vxb}
  v_and_b32 v{t4}, 1, v{vl}
  v_lshlrev_b32 v{t4}, 4, v{t4}
  v_lshlrev_b32 v{t4}, v{t4}, v{t6}
  v_bfe_u32 v{t5}, v{vl}, 1, 4               ; (n>>1) = 4*(n>>3) + reg
  v_lshlrev_b32 v{t7}, 2, v{t7}
  v_sub_u32 v{t5}, v{t5}, v{t7}""")
    for i in range(4):
        a(f"  v_cmp_eq_u32 vcc, {i}, v{t5}\n  s_nop 1\n  v_cndmask_b32 v{I0+i}, 0, v{t4}, vcc")
        a(f"  v_cmp_eq_u32 vcc, {8+i}, v{t5}\n  s_nop 1\n  v_cndmask_b32 v{I1+i}, 0, v{t4}, vcc")
    if not OPT["k8"]:
        a(f"  v_mov_b32 v{AQ+2}, 0\n  v_mov_b32 v{AQ+3}, 0")
        for t in range(4):
            a(f"  v_mov_b32 v{BQ+4*t+2}, 0\n  v_mov_b32 v{BQ+4*t+3}, 0")
    a(f"""
  v_lshlrev_b32 v{t3}, 4, v0            ; tid*16
  v_lshlrev_b32 v{t4}, 4, v{vl}         ; lane*16
  s_mul_i32 s{sTmp}, s2, {BSTR}
  s_lshl_b32 s{sTmp+1}, s{sStart}, 8
  s_lshl_b32 s{sTmp+2}, s{sNb}, 8
  s_lshl_b32 s{sTmp+3}, s{sW}, 12
  s_waitcnt lgkmcnt(0)""")
    srd(a, SC, sWS, BSTR, add=WS_CELL, addreg=sTmp)
    a(f"""
  buffer_load_dwordx4 {v(REC,4)}, v{vqa}, {s(SC,4)}, 0 offen
  buffer_load_dwordx4 {v(REC+4,4)}, v{vqa}, {s(SC,4)}, 0 offen offset:64""")
    srd(a, SX, sX, f"s{sTmp+2}", addreg=sTmp+1)
    a(f"""
  v_add_u32 v{t5}, 8192, v{t3}
  buffer_load_dwordx4 {v(XL,4)}, v{t3}, {s(SX,4)}, 0 offen
  buffer_load_dwordx4 {v(XL+4,4)}, v{t5}, {s(SX,4)}, 0 offen""")
    srd(a, SW, sWS, WF_SIZE, add=WS_WF)
    a(f"  s_add_u32 s{sTmp+4}, s{sTmp+3}, {WF_UT}\n  s_add_u32 s{sUB}, s{sTmp+3}, {WF_UB}\n  s_mov_b32 s{sTmp+6}, {WF_3H}\n  s_mov_b32 s{sTmp+7}, {WF_3L}")
    nld = 4
    for st in range(4):
        a(f"  buffer_load_dwordx4 {v(W2F+4*st,4)}, v{t4}, {s(SW,4)}, s{sTmp+3} offen offset:{st*1024}")
    srd(a, SP, sWS, (N+1)*256, add=WS_P-256 if WS_P != 256 else 0)
    srd(a, SE, sE_, E*32)
    srd(a, SO, sOUT, f"s{sTmp+2}", addreg=sTmp+1)
    srd(a, SV, sWS, WS_OVF_SIZE, add=WS_OVF)
    a(f"""
  v_mov_b32 v{CV}, 0
  v_mov_b32 v{CV+1}, 0
  v_mov_b32 v{CV+2}, 0
  v_mov_b32 v{CV+3}, 0""")
    for j in range(6):
        a(f"  ds_write_b128 v{t3}, {v(CV,4)} offset:{L_GN + j*8192}")
    def prefill():
        a(f"""
  v_mov_b32 v{CV+4}, {PADS}
  v_mov_b32 v{CV+5}, {PADE}
  v_mov_b32 v{CV+6}, {PADS}
  v_mov_b32 v{CV+7}, {PADE}
  ds_write_b128 v{t3}, {v(CV+4,4)}
  ds_write_b128 v{t3}, {v(CV+4,4)} offset:8192
  v_cmp_gt_u32 vcc, {(L_GN-16384)//16}, v0
  s_and_saveexec_b64 {s(sEx,2)}, vcc
  ds_write_b128 v{t3}, {v(CV+4,4)} offset:16384
  s_mov_b64 exec, {s(sEx,2)}""")
    prefill()

    for st in range(4):
        a(f"  buffer_load_dwordx4 {v(WUT+4*st,4)}, v{t4}, {s(SW,4)}, s{sTmp+4} offen offset:{st*1024}")
    for st in range(4):
        a(f"  buffer_load_dwordx4 {v(W3+4*st,4)}, v{t4}, {s(SW,4)}, s{sTmp+6} offen offset:{st*1024}")
    nld += 12
    if OPT["lo"]:
        for st in range(4):
            a(f"  buffer_load_dwordx4 {v(W3L+4*st,4)}, v{t4}, {s(SW,4)}, s{sTmp+7} offen offset:{st*1024}")
        nld += 4
    npf = 0
    if OPT["pfE"]:
        a(f"  s_mul_i32 s{sTmp}, s2, 40000\n  v_lshlrev_b32 v{t5}, 7, v0\n  v_add_u32 v{t5}, s{sTmp}, v{t5}")
        a(f"  v_cmp_gt_u32 vcc, 320, v0\n  s_nop 1\n  v_cndmask_b32 v{t5}, -1, v{t5}, vcc")
        a(f"  buffer_load_dword v{DUM}, v{t5}, {s(SE,4)}, 0 offen")
        npf += 1
    if OPT["pfP"]:
        a(f"  s_lshr_b32 s{sTmp}, s2, 3\n  s_mul_i32 s{sTmp}, s{sTmp}, 81920\n  v_lshlrev_b32 v{t5}, 7, v0\n  v_add_u32 v{t5}, s{sTmp}, v{t5}")
        a(f"  buffer_load_dword v{DUM}, v{t5}, {s(SP,4)}, 0 offen\n  v_add_u32 v{t5}, 65536, v{t5}")
        a(f"  v_cmp_gt_u32 vcc, 128, v0\n  s_nop 1\n  v_cndmask_b32 v{t5}, -1, v{t5}, vcc")
        a(f"  buffer_load_dword v{DUM}, v{t5}, {s(SP,4)}, 0 offen")
        npf += 2
    NL = nld + npf
    a(f"""
  s_waitcnt lgkmcnt(0)
  s_barrier
  s_waitcnt vmcnt({NL-2})""")
    stamp(a, 1)
    a(f"""
K2_PHASE1:
  v_cmp_le_u32 vcc, 0xfffc0000, v{REC+7}
  s_cbranch_vccz K2_NOMARK
  s_and_saveexec_b64 {s(sEx,2)}, vcc
  v_lshrrev_b32 v{t0}, 2, v0                 ; producer
  v_lshrrev_b32 v{t1}, 5, v{t0}
  v_lshlrev_b32 v{t1}, 2, v{t1}
  v_lshlrev_b32 v{t0}, v{t0}, v{vone}
  ds_or_b32 v{t1}, v{t0} offset:{L_FLG+16}
  v_mov_b32 v{REC+7}, 0
  s_mov_b64 exec, {s(sEx,2)}
K2_NOMARK:""")
    for k in range(8):
        a(f"""
  v_and_b32 v{NOD+k}, 63, v{REC+k}
  v_cmpx_ne_u32 vcc, 0, v{REC+k}
  s_cbranch_execz K2_P1_{k}
  v_lshlrev_b32 v{NOD+k}, 2, v{NOD+k}
  ds_add_rtn_u32 v{RNK+k}, v{NOD+k}, v{vone} offset:{L_CNT}
K2_P1_{k}:
  s_mov_b64 exec, -1""")
    a(f"""
  s_cmp_eq_u32 s{sFirst}, 0
  s_cbranch_scc1 K2_NOX
  v_lshrrev_b32 v{t0}, 4, v0
  v_lshlrev_b32 v{t1}, 4, v0
  v_lshl_add_u32 v{t0}, v{t0}, 4, v{t1}
  v_add_u32 v{t0}, {L_X}, v{t0}
  s_waitcnt vmcnt({NL-4})
  ds_write_b128 v{t0}, {v(XL,4)}
  s_cmp_ge_u32 s{sW}, 2
  s_cbranch_scc1 K2_NOX
  ds_write_b128 v{t0}, {v(XL+4,4)} offset:{32*XS}
K2_NOX:
  s_waitcnt lgkmcnt(0)
  s_barrier
  v_lshlrev_b32 v{t0}, 2, v{vl}
  ds_read_b32 v{t1}, v{t0} offset:{L_CNT}
  v_subrev_u32 v{t4}, s{sStart}, v{vl}
  v_and_b32 v{t4}, 63, v{t4}
  s_waitcnt lgkmcnt(0)
  v_add_u32 v{t1}, 3, v{t1}
  v_and_b32 v{t1}, -4, v{t1}
  v_mov_b32 v{t2}, v{t1}
  s_nop 1
  v_add_u32_dpp v{t2}, v{t2}, v{t2} row_shr:1 row_mask:0xf bank_mask:0xf
  s_nop 1
  v_add_u32_dpp v{t2}, v{t2}, v{t2} row_shr:2 row_mask:0xf bank_mask:0xf
  s_nop 1
  v_add_u32_dpp v{t2}, v{t2}, v{t2} row_shr:4 row_mask:0xf bank_mask:0xf
  s_nop 1
  v_add_u32_dpp v{t2}, v{t2}, v{t2} row_shr:8 row_mask:0xf bank_mask:0xf
  s_nop 1
  v_add_u32_dpp v{t2}, v{t2}, v{t2} row_bcast:15 row_mask:0xa bank_mask:0xf
  s_nop 1
  v_add_u32_dpp v{t2}, v{t2}, v{t2} row_bcast:31 row_mask:0xc bank_mask:0xf
  s_nop 1
  v_readlane_b32 s{sT}, v{t2}, 63
  v_sub_u32 v{t1}, v{t2}, v{t1}              ; start
  s_cmp_gt_u32 s{sT}, {CAPB*32}
  s_cbranch_scc1 K2_SPLIT""")
    for k in range(4):
        a(f"  ds_bpermute_b32 v{NOD+k}, v{NOD+k}, v{t1}")
    a(f"""
  v_or3_b32 v{t3}, v{REC+4}, v{REC+5}, v{REC+6}
  v_or_b32 v{t3}, v{t3}, v{REC+7}
  v_cmp_ne_u32 vcc, 0, v{t3}
  s_cbranch_vccz K2_P2A""")
    for k in range(4, 8):
        a(f"  ds_bpermute_b32 v{NOD+k}, v{NOD+k}, v{t1}")
    a("K2_P2A:\n  s_waitcnt lgkmcnt(0)")
    for k in range(8):
        e = t6 if k % 2 == 0 else CV
        a(f"""
  v_cmpx_ne_u32 vcc, 0, v{REC+k}
  s_cbranch_execz K2_P2_{k}
  v_lshrrev_b32 v{e}, 10, v{REC+k}
  v_and_b32 v{e}, {hex(0xffffff00 if not OPT['hot'] else 0x1f00 if OPT['hot']==1 else 0x1fff00)}, v{e}
  v_bfe_u32 v{e+1}, v{REC+k}, 6, 12
  v_lshl_add_u32 v{e+1}, v{e+1}, 5, v{vebase}
  {'v_and_b32 v%d, 0xfe0, v%d' % (e+1,e+1) if OPT['hot'] else ''}
  v_add_lshl_u32 v{NOD+k}, v{NOD+k}, v{RNK+k}, 3
  ds_write_b64 v{NOD+k}, {v(e,2)}
K2_P2_{k}:
  s_mov_b64 exec, -1""")
    assert t6 % 2 == 0
    a(f"""
  v_lshrrev_b32 v{t1}, 2, v{t1}
  v_lshrrev_b32 v{t2}, 2, v{t2}
  v_add_u32 v{t1}, s{sW}, v{t1}
K2_GNL:
  v_cmpx_lt_u32 vcc, v{t1}, v{t2}
  s_cbranch_execz K2_GNE
  v_lshlrev_b32 v{t3}, 2, v{t1}
  ds_write_b32 v{t3}, v{t4} offset:{L_GN}
  v_add_u32 v{t1}, 8, v{t1}
  s_branch K2_GNL
K2_GNE:
  s_mov_b64 exec, -1
  s_add_u32 s{sT}, s{sT}, 31
  s_lshr_b32 s{sT}, s{sT}, 5
  s_add_u32 s{sCnt}, s{sT}, 7
  s_sub_u32 s{sCnt}, s{sCnt}, s{sW}
  s_lshr_b32 s{sCnt}, s{sCnt}, 3
  s_waitcnt lgkmcnt(0)
  s_barrier""")

    def dma_issue():
        L = []
        for j in range(8):
            d = DO + (j & 1)
            L.append([f"  s_add_u32 m0, s{sStg}, {j*1040}",
                      f"  v_add_u32_dpp v{d}, v{ENT}, v{vchunk} row_newbcast:{2*j} row_mask:0xf bank_mask:0xf",
                      f"  buffer_load_dwordx4 v{d}, {s(SP,4)}, 0 offen lds" if not OPT["nodma"] else "  s_nop 0"])
        L.append([f"  s_add_u32 m0, s{sStg}, 8320",
                  f"  v_add_u32 v{DO}, v{ENT+1}, v{vechunk}",
                  f"  buffer_load_dwordx4 v{DO}, {s(SE,4)}, 0 offen lds" if not (OPT["nodma"] or OPT["noe"]) else "  s_nop 0"])
        return L
    def frag_reads():
        L = []
        for st in range(8):
            L.append(f"  ds_read_b128 {v(PF+4*st,4)}, v{vAlo if st < 4 else vAhi} offset:{32*(st&3)}")
        L.insert(2, f"  ds_read_b128 {v(EF,4)}, v{vEF}")
        return L
    def bq_reads():
        return [f"  ds_read_b64_tr_b16 {v(BQ+nq*t,2)}, v{vqa} offset:{64*t}" for t in range(4)]
    def chain(t, D):
        L = [f"  v_mfma_f32_32x32x16_bf16 {v(D,16)}, {v(EF,4)}, {v(W3+4*t,4)}, 0"]
        if OPT["lo"]:
            L.append(f"  v_mfma_f32_32x32x16_bf16 {v(D,16)}, {v(EF,4)}, {v(W3L+4*t,4)}, {v(D,16)}")
        L.append(f"  v_mfma_f32_32x32x16_bf16 {v(D,16)}, {v(PF+8*t,4)}, {v(I0,4)}, {v(D,16)}")
        L.append(f"  v_mfma_f32_32x32x16_bf16 {v(D,16)}, {v(PF+8*t+4,4)}, {v(I1,4)}, {v(D,16)}")
        if OPT["k8"]:
            L.append(f"  v_mfma_f32_32x32x8bf16_1k {v(D,16)}, {v(AQ,2)}, {v(BQ+2*t,2)}, {v(D,16)}")
        else:
            L.append(f"  v_mfma_f32_32x32x16_bf16 {v(D,16)}, {v(AQ,4)}, {v(BQ+4*t,4)}, {v(D,16)}")
        return L

    stamp(a, 2)
    a(f"  ds_read_b64 {v(ENT,2)}, v{vent}\n  s_waitcnt lgkmcnt(0)")
    for x in dma_issue(): a("\n".join(x))
    a(f"  ds_read_b64 {v(ENT,2)}, v{vent} offset:2048")
    a(f"""
  s_cmp_eq_u32 s{sFirst}, 0
  s_cbranch_scc1 K2_NOGEMM0
  s_mov_b32 s{sFirst}, 0
  s_mov_b32 s{sK}, {NLOG2E}
  s_mov_b32 s{sK+1}, {NLOG2E}
  s_waitcnt vmcnt({NL-12+(0 if OPT['nodma'] else 8 if OPT['noe'] else 9)})""")
    a(f"""
  v_and_b32 v{t0}, 15, v{vl}
  v_mul_u32_u24 v{t0}, {QS}, v{t0}
  v_lshrrev_b32 v{t1}, 4, v{vl}
  v_lshl_add_u32 v{t0}, v{t1}, 3, v{t0}
  s_lshl_b32 s{sTmp}, s{sW}, 5
  s_add_u32 s{sTmp}, s{sTmp}, {L_Q}
  v_add_u32 v{t0}, s{sTmp}, v{t0}""")
    for nt in range(3):
        xf = XF + 16*(nt & 1)
        for st in range(4):
            a(f"  ds_read_b128 {v(xf+4*st,4)}, v{vxb} offset:{nt*16*XS + st*64}")
        a("  s_waitcnt lgkmcnt(0)")
        for st in range(4):
            c = "0" if st == 0 else v(QD, 4)
            a(f"  v_mfma_f32_16x16x32_bf16 {v(QD,4)}, {v(W2F+4*st,4)}, {v(xf+4*st,4)}, {c}")
        for st in range(4):
            c = "0" if st == 0 else v(U+4*nt, 4)
            a(f"  v_mfma_f32_16x16x32_bf16 {v(U+4*nt,4)}, {v(WUT+4*st,4)}, {v(xf+4*st,4)}, {c}")
        a(f"""
  s_nop 4
  v_pk_mul_f32 {v(QD,2)}, {v(QD,2)}, {s(sK,2)}
  v_pk_mul_f32 {v(QD+2,2)}, {v(QD+2,2)}, {s(sK,2)}
  v_cvt_pk_bf16_f32 v{QD+4}, v{QD}, v{QD+1}
  v_cvt_pk_bf16_f32 v{QD+5}, v{QD+2}, v{QD+3}""")
        if nt == 2:
            a(f"  v_and_b32 v{t1}, 8, v{vl}\n  v_cmpx_eq_u32 vcc, 0, v{t1}")
        a(f"  ds_write_b64 v{t0}, {v(QD+4,2)} offset:{nt*16*QS}")
        if nt == 2:
            a("  s_mov_b64 exec, -1")
        a("  s_nop 4")
    a(f"""
  v_lshlrev_b32 v{t4}, 4, v{vl}""")
    for st in range(4):
        a(f"  buffer_load_dwordx4 {v(WUB+4*st,4)}, v{t4}, {s(SW,4)}, s{sUB} offen offset:{st*1024}")
    a(f"""
  s_waitcnt lgkmcnt(0)
  s_barrier
K2_NOGEMM:
  ds_read_b32 v{vgn1}, v{vgq}
  ds_read_b32 v{vsrow}, v{vrow}
  ds_read_b128 {v(GN,4)}, v{vga}
  s_waitcnt vmcnt(4)""")
    stamp(a, 3, 72)
    if OPT["stamp"]: a("  s_waitcnt lgkmcnt(0)")
    for x in frag_reads(): a(x)
    a(f"""
  s_waitcnt lgkmcnt(9)
  v_mad_u32_u24 v{vqa}, v{vgn1}, s{sQS}, v{vqlane}
  v_lshrrev_b64 {v(AQ,2)}, v{vsrow}, {v(PAT,2)}""")
    for x in bq_reads(): a(x)
    a("  s_waitcnt lgkmcnt(0)")
    for x in dma_issue(): a("\n".join(x))
    for x in chain(0, D0): a(x)
    a(f"""
  s_nop 7
  s_nop 3
  s_cmp_eq_u32 s{sCnt}, 0
  s_cbranch_scc1 K2_LOOPEND
  s_cmp_lg_u32 s{sMode}, 0
  s_cbranch_scc1 K2_SAFE""")

    def p(r): return v(r, 2)
    def octet_fast(d, e, t, r, sres):
        ex = [f"  v_exp_f32 v{e+i}, v{d+i}" for i in range(8)]
        L = [f"  v_pk_add_f32 {p(t)}, {p(e)}, 1.0 op_sel_hi:[1,0]",
             f"  v_pk_add_f32 {p(t+2)}, {p(e+4)}, 1.0 op_sel_hi:[1,0]",
             f"  v_pk_fma_f32 {p(t+4)}, {p(d)}, {p(e+2)}, {p(d)}",
             f"  v_pk_fma_f32 {p(t+6)}, {p(d+4)}, {p(e+6)}, {p(d+4)}",
             f"  v_pk_fma_f32 {p(e)}, {p(t)}, {p(e+2)}, {p(t)}",
             f"  v_pk_fma_f32 {p(e+4)}, {p(t+2)}, {p(e+6)}, {p(t+2)}",
             f"  v_pk_fma_f32 {p(t+4)}, {p(d+2)}, {p(t)}, {p(t+4)}",
             f"  v_pk_fma_f32 {p(t+6)}, {p(d+6)}, {p(t+2)}, {p(t+6)}",
             f"  v_pk_mul_f32 {p(t)}, {p(e)}, {p(e+4)}",
             f"  v_pk_mul_f32 {p(t+4)}, {p(t+4)}, {p(e+4)}",
             f"  v_rcp_f32 v{r}, v{t}",
             f"  v_rcp_f32 v{r+1}, v{t+1}",
             f"  v_pk_fma_f32 {p(t+4)}, {p(t+6)}, {p(e)}, {p(t+4)}",
             f"  v_pk_mul_f32 {p(sres)}, {p(t+4)}, {p(r)}"]
        return ex, L
    def octet_safe(d, e, t, r, sres):
        ex = [f"  v_exp_f32 v{e+i}, v{d+i}" for i in range(8)]
        L = [f"  v_pk_add_f32 {p(e+2*i)}, {p(e+2*i)}, 1.0 op_sel_hi:[1,0]" for i in range(4)]
        L += [f"  v_rcp_f32 v{t+i}, v{e+i}" for i in range(8)]
        L += [f"  v_pk_mul_f32 {p(sres)}, {p(d)}, {p(t)}"]
        L += [f"  v_pk_fma_f32 {p(sres)}, {p(d+2*i)}, {p(t+2*i)}, {p(sres)}" for i in range(1, 4)]
        return ex, L
    def zipl(x, y):
        o = []
        for i in range(max(len(x), len(y))):
            if i < len(x): o.append(x[i])
            if i < len(y): o.append(y[i])
        return o

    def loop(safe):
        lab = "K2_SAFE" if safe else "K2_FAST"
        oc = octet_safe if safe else octet_fast
        a(f".p2align 6\n{lab}:")
        for t in range(4):
            D = D0 if t % 2 == 0 else D1
            Dn = D1 if t % 2 == 0 else D0
            exa, La = oc(D, EA, TA, RA, SA)
            exb, Lb = oc(D+8, EB, TB, RB, SB)
            ex = exa + exb
            ch = chain((t+1) % 4, Dn)
            pk = zipl(La, Lb)
            if not safe:
                idx = max(i for i, x in enumerate(pk) if x.startswith(f"  v_pk_mul_f32 {p(TB)}, {p(EB)}"))
                pk.insert(idx+1, f"  v_pk_fma_f32 {p(MAC)}, {p(TA)}, {p(TB)}, {p(MAC)}")
            fin = []
            for o, S in ((0, SA), (1, SB)):
                for xy in range(2):
                    c = CV + 2*(2*o+xy)
                    fin.append(f"  v_cvt_f64_f32 {v(c,2)}, v{S+xy}")
            for o in range(2):
                for xy in range(2):
                    c = CV + 2*(2*o+xy)
                    fin.append(f"  ds_add_f64 v{AD+2*xy+o}, {v(c,2)} offset:{256*t}" if not OPT["noadd"] else f"  ds_read_b32 v{DUM}, v{vgq}")
            head = []
            per = 16 // len(ch)
            e = 0
            pre = []
            if t == 0:
                pre = [f"  v_mad_u32_u24 v{AD+i}, v{GN+i}, s{sAS}, v{vacl}" for i in range(4)]
                pk = pk[:4] + pre + pk[4:]
            if t == 2:
                a(f"  ds_read_b64 {v(ENT,2)}, v{vent} offset:4096")
                a(f"  ds_read_b32 v{vgn1}, v{vgq} offset:256")
                a(f"  ds_read_b32 v{vsrow}, v{vrow} offset:2048")
                a(f"  ds_read_b128 {v(GN,4)}, v{vga} offset:256")
            if t == 3:
                a("  s_waitcnt lgkmcnt(4)")
            dma = dma_issue() if t == 3 else []
            for i, m in enumerate(ch):
                head.append(m)
                n = per if i < len(ch)-1 else 16 - e
                for x in ex[e:e+n]:
                    head.append(x)
                    if dma and (len(head) % 2 == 0):
                        head += dma.pop(0)
                e += n
            for x in dma: head += x
            for x in head: a(x)
            if t == 2:
                mid = [f"  s_waitcnt vmcnt(0) lgkmcnt(0)",
                       f"  v_mad_u32_u24 v{vqa}, v{vgn1}, s{sQS}, v{vqlane}",
                       f"  v_lshrrev_b64 {v(AQ,2)}, v{vsrow}, {v(PAT,2)}"]
                rd = frag_reads() + bq_reads()
                body = pk[:6] + mid + zipl(pk[6:], rd)
                for x in body: a(x)
            elif t == 3:
                inc = [f"  v_add_u32 v{vent}, 2048, v{vent}", f"  v_add_u32 v{vrow}, 2048, v{vrow}",
                       f"  v_add_u32 v{vgq}, 256, v{vgq}", f"  v_add_u32 v{vga}, 256, v{vga}"]
                for x in pk[:4] + inc + pk[4:]: a(x)
            else:
                for x in pk: a(x)
            for x in fin: a(x)
        a(f"""
  s_sub_u32 s{sCnt}, s{sCnt}, 1
  s_cmp_lg_u32 s{sCnt}, 0
  s_cbranch_scc1 {lab}""")
    loop(False)
    a(f"""
K2_LOOPEND:""")
    stamp(a, 4)
    a(f"""
  s_waitcnt vmcnt(0) lgkmcnt(0)
  s_barrier""")
    stamp(a, 5, 74)
    if OPT["stamp"]: a("  s_waitcnt lgkmcnt(0)")
    a(f"""
  s_cmp_eq_u32 s{sKind}, 1
  s_cbranch_scc1 K2_HALF1
  s_cmp_eq_u32 s{sKind}, 3
  s_cbranch_scc1 K2_OVPART1
  s_cmp_eq_u32 s{sKind}, 4
  s_cbranch_scc1 K2_NEXTOV
  v_mov_b32 v{t0}, {L_FLG+16}
  ds_read_b128 {v(CV,4)}, v{t0}
K2_CONV:
  s_mul_i32 s{sTmp}, s{sW}, {AS}
  s_add_u32 s{sTmp}, s{sTmp}, {L_ACC}
  v_lshlrev_b32 v{t1}, 4, v{vl}
  v_add_u32 v{t1}, s{sTmp}, v{t1}""")
    for k in range(5):
        a(f"  ds_read_b128 {v(D0+4*k,4)}, v{t1} offset:{k*8*AS}")
    a(f"""
  s_mul_i32 s{sTmp}, s{sW}, {XS}
  s_add_u32 s{sTmp}, s{sTmp}, {L_X}
  v_lshlrev_b32 v{t2}, 2, v{vl}
  v_add_u32 v{t2}, s{sTmp}, v{t2}
  s_cmp_ge_u32 s{sKind}, 3
  s_cbranch_scc1 K2_CONV2
  s_waitcnt lgkmcnt(5)
  v_or3_b32 v{t0}, v{CV}, v{CV+1}, v{CV+2}
  v_or_b32 v{t0}, v{t0}, v{CV+3}
  v_cmp_ne_u32 vcc, 0, v{t0}
  s_cbranch_vccnz K2_STARTOV
K2_CONV2:
  s_mov_b32 s{sTmp}, 0x71800000              ; 2^100
  v_cmp_nle_f32 {s(sBad,2)}, v{MAC}, s{sTmp}
  v_cmp_nle_f32 vcc, v{MAC+1}, s{sTmp}
  s_or_b64 {s(sBad,2)}, {s(sBad,2)}, vcc
  s_movk_i32 s{sTmp}, 0x207""")
    for k in range(5):
        a(f"""
  s_waitcnt lgkmcnt({4-k})
  v_cvt_f32_f64 v{EA+2*k}, {v(D0+4*k,2)}
  v_cvt_f32_f64 v{EA+2*k+1}, {v(D0+4*k+2,2)}
  v_cmp_class_f32 vcc, v{EA+2*k}, s{sTmp}
  s_or_b64 {s(sBad,2)}, {s(sBad,2)}, vcc
  v_cmp_class_f32 vcc, v{EA+2*k+1}, s{sTmp}
  s_or_b64 {s(sBad,2)}, {s(sBad,2)}, vcc
  v_cvt_pk_bf16_f32 v{EB+k}, v{EA+2*k}, v{EA+2*k+1}""")
    for k in range(5):
        a(f"  ds_write_b32 v{t2}, v{EB+k} offset:{k*8*XS}")
    a(f"""
  s_cmp_eq_u64 {s(sBad,2)}, 0
  s_cbranch_scc1 K2_OKW
  v_mov_b32 v{t0}, {L_FLG}
  ds_write_b32 v{t0}, v{vone}
K2_OKW:
  s_waitcnt lgkmcnt(0)
  s_barrier
  v_mov_b32 v{t0}, {L_FLG}
  ds_read_b32 v{t0}, v{t0}""")
    for nt in range(2):
        for st in range(4):
            a(f"  ds_read_b128 {v(XF+16*nt+4*st,4)}, v{vxb} offset:{nt*16*XS + st*64}")
    a(f"""
  s_waitcnt lgkmcnt(8)
  v_readfirstlane_b32 s{sTmp}, v{t0}
  s_cmp_gt_u32 s{sTmp}, s{sMode}
  {"s_cbranch_scc1 K2_RESTART" if not (OPT["nodma"] or OPT["noe"] or OPT["noadd"] or OPT["hot"]) else "s_nop 0"}
  s_waitcnt lgkmcnt(4)""")
    for st in range(4):
        c = "0" if st == 0 else v(D0, 4)
        a(f"  v_mfma_f32_16x16x32_bf16 {v(D0,4)}, {v(WUB+4*st,4)}, {v(XF+4*st,4)}, {c}")
    for st in range(4):
        a(f"  ds_read_b128 {v(D1+4*st,4)}, v{vxb} offset:{2*16*XS + st*64}")
    a("  s_waitcnt lgkmcnt(4)")
    for st in range(4):
        c = "0" if st == 0 else v(D0+4, 4)
        a(f"  v_mfma_f32_16x16x32_bf16 {v(D0+4,4)}, {v(WUB+4*st,4)}, {v(XF+16+4*st,4)}, {c}")
    a("  s_waitcnt lgkmcnt(0)")
    for st in range(4):
        c = "0" if st == 0 else v(D0+8, 4)
        a(f"  v_mfma_f32_16x16x32_bf16 {v(D0+8,4)}, {v(WUB+4*st,4)}, {v(D1+4*st,4)}, {c}")
    a(f"""
  s_mov_b32 s{sK}, {NLN2}
  s_mov_b32 s{sK+1}, {NLN2}
  s_mov_b32 s{sTmp}, {NLOG2E}
  s_mov_b32 s{sTmp+1}, {NLOG2E}
  v_and_b32 v{t0}, 15, v{vl}
  v_lshlrev_b32 v{t0}, 8, v{t0}
  v_lshrrev_b32 v{t1}, 4, v{vl}
  v_lshl_add_u32 v{t0}, v{t1}, 3, v{t0}
  s_lshl_b32 s{sTmp+2}, s{sW}, 5
  v_add_u32 v{t0}, s{sTmp+2}, v{t0}
  v_add_u32 v{t1}, 4096, v{t0}
  v_add_u32 v{t2}, 8192, v{t0}""")
    for nt in range(3):
        d = D0 + 4*nt
        a(f"""
  v_pk_fma_f32 {p(d)}, {p(d)}, {s(sK,2)}, {p(U+4*nt)}
  v_pk_fma_f32 {p(d+2)}, {p(d+2)}, {s(sK,2)}, {p(U+4*nt+2)}
  v_pk_mul_f32 {p(EA)}, {p(d)}, {s(sTmp,2)}
  v_pk_mul_f32 {p(EA+2)}, {p(d+2)}, {s(sTmp,2)}""")
        for i in range(4): a(f"  v_exp_f32 v{EA+i}, v{EA+i}")
        a(f"  s_nop 0\n  v_pk_add_f32 {p(EA)}, {p(EA)}, 1.0 op_sel_hi:[1,0]\n  v_pk_add_f32 {p(EA+2)}, {p(EA+2)}, 1.0 op_sel_hi:[1,0]")
        for i in range(4): a(f"  v_rcp_f32 v{EA+i}, v{EA+i}")
        a(f"""
  s_nop 0
  v_pk_mul_f32 {p(d)}, {p(d)}, {p(EA)}
  v_pk_mul_f32 {p(d+2)}, {p(d+2)}, {p(EA+2)}
  v_cvt_pk_bf16_f32 v{EB+2*nt}, v{d}, v{d+1}
  v_cvt_pk_bf16_f32 v{EB+2*nt+1}, v{d+2}, v{d+3}
  buffer_store_dwordx2 {v(EB+2*nt,2)}, v{t0+nt}, {s(SO,4)}, 0 offen""")
    stamp(a, 6)
    if OPT["stamp"]: a("  s_waitcnt vmcnt(0)")
    stamp(a, 7)
    stamp_out(a, sWS, 1, 8, sW)
    a(f"""
K2_END:
  s_endpgm
""")
    loop(True)
    a("  s_branch K2_LOOPEND")
    a(f"""
K2_NOGEMM0:
  s_waitcnt vmcnt(0)
  s_branch K2_NOGEMM
K2_RESTART:
  s_mov_b32 s{sMode}, 1
  s_mov_b32 s{sKind}, 0
  s_waitcnt lgkmcnt(0)
  s_barrier
  v_lshlrev_b32 v{t3}, 4, v0
  v_mov_b32 v{CV}, 0
  v_mov_b32 v{CV+1}, 0
  v_mov_b32 v{CV+2}, 0
  v_mov_b32 v{CV+3}, 0""")
    for j in range(5):
        a(f"  ds_write_b128 v{t3}, {v(CV,4)} offset:{L_ACC + j*8192}")
    a(f"""
  v_cmp_gt_u32 vcc, {(40*AS-5*8192)//16}, v0
  s_and_saveexec_b64 {s(sEx,2)}, vcc
  ds_write_b128 v{t3}, {v(CV,4)} offset:{L_ACC + 5*8192}
  s_mov_b64 exec, {s(sEx,2)}
  s_branch K2_RELOAD
K2_SPLIT:
  s_mov_b32 s{sKind}, 1
  s_waitcnt lgkmcnt(0)
  s_barrier
  s_branch K2_RELOAD
K2_HALF1:
  s_mov_b32 s{sKind}, 2
K2_RELOAD:
  v_lshrrev_b32 v{t1}, 2, v0
  v_and_b32 v{t2}, 3, v0
  v_lshlrev_b32 v{t2}, 4, v{t2}
  v_lshl_add_u32 v{t2}, v{t1}, 7, v{t2}
  s_mov_b32 s{sTmp}, {CH*32}
  v_mul_u32_u24 v{vebase}, s{sTmp}, v{t1}
  s_waitcnt vmcnt(0)
  buffer_load_dwordx4 {v(REC,4)}, v{t2}, {s(SC,4)}, 0 offen
  buffer_load_dwordx4 {v(REC+4,4)}, v{t2}, {s(SC,4)}, 0 offen offset:64
  s_waitcnt vmcnt(0)
  s_cmp_eq_u32 s{sKind}, 0
  s_cbranch_scc1 K2_ROUND
  s_cmp_lt_u32 s{sW}, 4
  s_cselect_b32 s{sTmp}, 1, 2
  s_cmp_eq_u32 s{sTmp}, s{sKind}
  s_cbranch_scc1 K2_ROUND""")
    for k in range(8): a(f"  v_mov_b32 v{REC+k}, 0")
    a(f"""
K2_ROUND:
  v_lshlrev_b32 v{t3}, 4, v0
  v_mov_b32 v{CV}, 0
  v_mov_b32 v{CV+1}, 0
  v_mov_b32 v{CV+2}, 0
  v_mov_b32 v{CV+3}, 0
  v_cmp_gt_u32 vcc, {(L_FLG-L_GN)//16}, v0
  s_and_saveexec_b64 {s(sEx,2)}, vcc
  ds_write_b128 v{t3}, {v(CV,4)} offset:{L_GN}
  s_mov_b64 exec, {s(sEx,2)}""")
    prefill()
    a(f"""
  v_and_b32 v{vent}, 2047, v{vent}
  v_and_b32 v{vrow}, 2047, v{vrow}
  v_subrev_u32 v{vga}, {L_GN}, v{vga}
  v_and_b32 v{vga}, 255, v{vga}
  v_add_u32 v{vga}, {L_GN}, v{vga}
  v_and_b32 v{t2}, 12, v{vl}
  v_add_u32 v{vgq}, v{vga}, v{t2}
  s_waitcnt lgkmcnt(0)
  s_barrier
  s_branch K2_PHASE1
K2_STARTOV:
  v_readfirstlane_b32 s{sOV}, v{CV}
  v_readfirstlane_b32 s{sOV+1}, v{CV+1}
  v_readfirstlane_b32 s{sOV+2}, v{CV+2}
  v_readfirstlane_b32 s{sOV+3}, v{CV+3}
  s_mov_b32 s{sKind}, 4
  s_waitcnt lgkmcnt(0)
K2_NEXTOV:
  s_ff1_i32_b64 s{sP}, {s(sOV,2)}
  s_cmp_lg_u32 s{sP}, -1
  s_cbranch_scc1 K2_OVLO
  s_ff1_i32_b64 s{sP}, {s(sOV+2,2)}
  s_cmp_eq_u32 s{sP}, -1
  s_cbranch_scc1 K2_CONV
  s_bitset0_b64 {s(sOV+2,2)}, s{sP}
  s_add_u32 s{sP}, s{sP}, 64
  s_branch K2_OVGO
K2_OVLO:
  s_bitset0_b64 {s(sOV,2)}, s{sP}
K2_OVGO:
  s_mov_b32 s{sKind}, 3
  v_mov_b32 v{t4}, v0
  s_branch K2_OVLD
K2_OVPART1:
  s_mov_b32 s{sKind}, 4
  v_add_u32 v{t4}, 2048, v0
K2_OVLD:
  s_mul_i32 s{sTmp}, s{sP}, {OVSTR}
  s_mul_i32 s{sTmp+1}, s{sP}, {CH*32}
  v_mov_b32 v{vebase}, s{sTmp+1}
  v_mov_b32 v{t0}, s{sTmp}
  buffer_load_dword v{t1}, v{t0}, {s(SV,4)}, 0 offen
  v_lshl_add_u32 v{t2}, v{t4}, 3, v{t0}""")
    for k in range(4):
        a(f"  buffer_load_dwordx2 {v(PF+2*k,2)}, v{t2}, {s(SV,4)}, 0 offen offset:64\n  v_add_u32 v{t2}, 4096, v{t2}")
    a(f"  s_waitcnt vmcnt(0)")
    for k in range(4):
        a(f"""
  v_cmp_lt_u32 vcc, v{t4}, v{t1}
  v_cmp_eq_u32 {s(sEx,2)}, s2, v{PF+2*k+1}
  s_and_b64 vcc, vcc, {s(sEx,2)}
  v_add_u32 v{t4}, 512, v{t4}
  s_nop 1
  v_cndmask_b32 v{REC+k}, 0, v{PF+2*k}, vcc""")
    for k in range(4, 8): a(f"  v_mov_b32 v{REC+k}, 0")
    a("  s_branch K2_ROUND")
    return a.text(), nv

def desc(name, nv, ns):
    return f"""
.amdhsa_kernel {name}
  .amdhsa_next_free_vgpr {nv}
  .amdhsa_next_free_sgpr {ns}
  .amdhsa_accum_offset {(nv+3)//4*4}
  .amdhsa_group_segment_fixed_size 0
  .amdhsa_kernarg_size 72
  .amdhsa_user_sgpr_count 2
  .amdhsa_user_sgpr_kernarg_segment_ptr 1
  .amdhsa_system_sgpr_workgroup_id_x 1
.end_amdhsa_kernel
"""

HEAD = """; Kernarg layout for this problem (72 bytes, ptrs only, base s[0:1]):
"""

def main():
    k1, nv1 = gen_k1()
    k2, nv2 = gen_k2()
    out = HEAD
    out += f"; @launch kernel=mpnn_k1_kernel grid=(254,1,1) block=(512,1,1) lds={K1_LDS}\n"
    out += f"; @launch kernel=mpnn_k2_kernel grid=({NB},1,1) block=(512,1,1) lds={K2_LDS}\n"
    out += '.amdgcn_target "amdgcn-amd-amdhsa--gfx950"\n.text\n' + k1 + k2
    out += '.section .rodata,"a"\n.p2align 6\n' + desc("mpnn_k1_kernel", nv1, 102 if OPT["stamp"] else 64) + ".p2align 6\n" + desc("mpnn_k2_kernel", nv2, 102 if OPT["stamp"] else 80)
    open(sys.argv[1], "w").write(out)
    print("vgprs", nv1, nv2, "lds", K1_LDS, K2_LDS)
main()
```

```python
import sys, struct

N = 10000; E = 320000
G = 125
CH = 2560
NB = 256
MAGIC = 26843
CELLB = 128
BSTR = G * CELLB

WS_P = 256
WS_CELL = 0x280000
WS_WF = 0x680000
WF_W2, WF_UT, WF_UB, WF_3H, WF_3L = 0, 32768, 65536, 98304, 102400
WF_SIZE = 106496
WS_OVF = 0x6A0000
OVSTR = 64 + CH * 8
WS_OVF_SIZE = G * OVSTR

def f32(x): return struct.unpack("<I", struct.pack("<f", x))[0]
LOG2E = 1.4426950408889634
LN2 = 0.6931471805599453
NLOG2E = f32(-LOG2E); NLN2 = f32(-LN2)

OPT = dict(lo=0, pfP=1, pfE=1, k8=1, stamp=0, nodma=0, noadd=0, noe=0, hot=0)
for a in sys.argv[2:]:
    k, v = a.split("="); OPT[k] = int(v)

class Asm:
    def __init__(self): self.L = []
    def __call__(self, s):
        for x in s.strip("\n").split("\n"):
            self.L.append(x)
    def text(self): return "\n".join(self.L) + "\n"

class Regs:
    def __init__(self, start=0): self.n = start; self.names = {}
    def alloc(self, name, cnt=1, align=1):
        self.n = (self.n + align - 1) // align * align
        r = self.n; self.n += cnt; self.names[name] = (r, cnt); return r

def v(r, n=1): return f"v{r}" if n == 1 else f"v[{r}:{r+n-1}]"
def s(r, n=1): return f"s{r}" if n == 1 else f"s[{r}:{r+n-1}]"

WS_STAMP = 0x1000000
def stamp(a, i, cyc=None):
    if OPT["stamp"]:
        a(f"  s_memrealtime s[{80+2*i}:{81+2*i}]")
        if cyc is not None: a(f"  s_memtime s[{cyc}:{cyc+1}]")
def stamp_out(a, wsreg, kern, n, wreg):
    if not OPT["stamp"]: return
    if OPT["stamp"] == 2:
        lab = f"ST_SKIP{len(a.L)}"
        a(f"""
  s_load_dwordx2 s[98:99], s[0:1], 56
  s_waitcnt lgkmcnt(0)
  s_cmp_lg_u32 s{wreg}, 0
  s_cbranch_scc1 {lab}
  s_mov_b64 exec, 1
  v_mov_b32 v1, 0
  s_not_b32 s96, s80
  v_mov_b32 v2, s96
  global_atomic_umax v1, v2, s[98:99] offset:{kern*20}""")
        for i in range(n):
            a(f"  v_mov_b32 v2, s{80+2*i}\n  global_atomic_umax v1, v2, s[98:99] offset:{kern*20+4+4*i}")
        if kern == 1:
            a(f"""
  s_cmp_lg_u32 s2, 0
  s_cbranch_scc1 {lab}
  global_load_dwordx4 v[4:7], v1, s[98:99] offset:-512
  global_load_dword v8, v1, s[98:99] offset:-496
  s_waitcnt vmcnt(0)
  global_store_dwordx4 v1, v[4:7], s[98:99]
  global_store_dword v1, v8, s[98:99] offset:16""")
        a(f"{lab}:\n  s_mov_b64 exec, -1")
        return
    a(f"""
  s_waitcnt lgkmcnt(0)
  s_lshl_b32 s96, s2, 3
  s_add_u32 s96, s96, s{wreg}
  s_lshl_b32 s96, s96, 6
  s_add_u32 s96, s96, {WS_STAMP + kern*0x100000}
  s_add_u32 s98, s{wsreg}, s96
  s_addc_u32 s99, s{wsreg+1}, 0
  s_mov_b64 exec, 1
  v_mov_b32 v1, 0""")
    for i in range(n):
        a(f"  v_mov_b32 v2, s{80+2*i}\n  global_store_dword v1, v2, s[98:99] offset:{4*i}")
    if kern == 1:
        for i, r in enumerate((72, 74, 44)):
            a(f"  v_mov_b32 v2, s{r}\n  global_store_dword v1, v2, s[98:99] offset:{32+4*i}")
    a("  s_mov_b64 exec, -1")

def srd(a, r, lo, nbytes, add=0, addreg=None):
    if add:
        a(f"  s_add_u32 s{r}, s{lo}, {add}\n  s_addc_u32 s{r+1}, s{lo+1}, 0")
    else:
        a(f"  s_mov_b32 s{r}, s{lo}\n  s_mov_b32 s{r+1}, s{lo+1}")
    if addreg is not None:
        a(f"  s_add_u32 s{r}, s{r}, s{addreg}\n  s_addc_u32 s{r+1}, s{r+1}, 0")
    a(f"  s_mov_b32 s{r+2}, {nbytes}\n  s_mov_b32 s{r+3}, 0x20000")

K1_LDS = 34048
def wfrag_loads(a, srdr, voff, dst, stmp):
    for st in range(4):
        a(f"  s_mov_b32 s{stmp+st}, {st*8192}")
    for st in range(4):
        for jj in range(8):
            a(f"  buffer_load_ushort v{dst+st*8+jj}, v{voff}, {s(srdr,4)}, s{stmp+st} offen offset:{jj*256}")
def wfrag_pack(a, src, dst):
    for i in range(16):
        a(f"  v_lshl_or_b32 v{dst+i}, v{src+2*i+1}, 16, v{src+2*i}")

def gen_k1():
    a = Asm()
    a(f"""
.globl mpnn_k1_kernel
.p2align 8
.type mpnn_k1_kernel,@function
mpnn_k1_kernel:
  s_cmp_ge_u32 s2, 254
  s_cbranch_scc1 K1_END""")
    stamp(a, 0)
    a(f"""
  s_load_dwordx4 s[4:7], s[0:1], 0      ; x, e_attr
  s_load_dwordx4 s[8:11], s[0:1], 16
  s_load_dwordx4 s[12:15], s[0:1], 32
  s_load_dwordx2 s[16:17], s[0:1], 64   ; ws
  v_lshrrev_b32 v1, 6, v0
  v_and_b32 v2, 63, v0                  ; lane
  s_nop 0
  v_readfirstlane_b32 s3, v1
  s_cmp_ge_u32 s2, {G}
  s_cbranch_scc1 K1_NOTBIN
  ; ---------------- binning ----------------
  v_mov_b32 v4, 0
  v_mov_b32 v5, 0
  v_mov_b32 v6, 0
  v_mov_b32 v7, 0
  v_lshlrev_b32 v3, 4, v0
  ds_write_b128 v3, v[4:7]
  ds_write_b128 v3, v[4:7] offset:8192
  ds_write_b128 v3, v[4:7] offset:16384
  ds_write_b128 v3, v[4:7] offset:24576
  v_lshlrev_b32 v8, 2, v0               ; tid*4
  v_cmp_gt_u32 vcc, 320, v0
  s_and_saveexec_b64 s[40:41], vcc
  ds_write_b32 v8, v4 offset:32768
  s_mov_b64 exec, s[40:41]
  s_mul_i32 s18, s2, {CH*4}
  s_add_u32 s19, s18, 2048
  s_add_u32 s20, s18, 4096
  s_add_u32 s21, s18, 6144
  s_add_u32 s22, s18, 8192
  s_waitcnt lgkmcnt(0)
""")
    srd(a, 24, 10, E*4)
    srd(a, 28, 8, E*4)
    for j in range(5):
        a(f"  buffer_load_dword v{10+j}, v8, s[24:27], s{18+j} offen")
    for j in range(5):
        a(f"  buffer_load_dword v{15+j}, v8, s[28:31], s{18+j} offen")
    srd(a, 32, 16, NB*BSTR, add=WS_CELL)
    srd(a, 36, 16, WS_OVF_SIZE, add=WS_OVF)
    a(f"""
  s_mov_b32 s42, {MAGIC}
  v_lshlrev_b32 v9, 6, v0
  v_add_u32 v9, {1<<18}, v9             ; (1<<18) + tid<<6
  v_mov_b32 v40, 1
  s_barrier
  s_waitcnt vmcnt(5)
""")
    stamp(a, 1)
    for j in range(5):
        a(f"""
  v_mul_u32_u24 v{20+j}, s42, v{10+j}
  v_lshrrev_b32 v{20+j}, 18, v{20+j}
  v_and_b32 v{20+j}, 0x3fc, v{20+j}      ; bucket*4
  ds_add_rtn_u32 v{25+j}, v{20+j}, v40 offset:32768""")
    a("  s_waitcnt vmcnt(0)")
    for j in range(5):
        a(f"""
  v_lshl_add_u32 v{30+j}, v{15+j}, 18, v9
  v_and_or_b32 v{30+j}, v{10+j}, 63, v{30+j}""")
        if j < 4: a(f"  v_add_u32 v9, {512<<6}, v9")
    a("  s_waitcnt lgkmcnt(0)\n  s_mov_b64 s[44:45], 0")
    for j in range(5):
        a(f"""
  v_lshlrev_b32 v{35+j}, 2, v{25+j}
  v_lshl_add_u32 v{35+j}, v{20+j}, 5, v{35+j}
  v_cmp_gt_u32 vcc, 31, v{25+j}
  s_and_saveexec_b64 s[40:41], vcc
  ds_write_b32 v{35+j}, v{30+j}
  s_mov_b64 exec, s[40:41]
  s_orn2_b64 s[44:45], s[44:45], vcc""")
    a(f"""
  s_waitcnt lgkmcnt(0)
  s_barrier
  s_cmp_eq_u64 s[44:45], 0
  s_cbranch_scc1 K1_NOOVF
  s_mul_i32 s43, s2, {OVSTR}
  s_add_u32 s43, s43, 64
  v_mov_b32 v41, {32768+1024}
  v_mov_b32 v42, 0xfffc0000""")
    for j in range(5):
        a(f"""
  v_cmp_le_u32 vcc, 31, v{25+j}
  s_and_saveexec_b64 s[40:41], vcc
  s_cbranch_execz K1_OV{j}
  ds_read_b32 v43, v{20+j} offset:32768
  v_lshlrev_b32 v44, 5, v{20+j}
  s_waitcnt lgkmcnt(0)
  v_cmp_ne_u32 vcc, 32, v43
  s_nop 1
  v_cndmask_b32 v45, v{30+j}, v42, vcc
  ds_write_b32 v44, v45 offset:124
  s_and_b64 exec, exec, vcc
  s_cbranch_execz K1_OV{j}
  ds_add_rtn_u32 v43, v41, v40
  v_mov_b32 v46, v{30+j}
  v_lshrrev_b32 v47, 2, v{20+j}
  s_waitcnt lgkmcnt(0)
  v_lshlrev_b32 v43, 3, v43
  buffer_store_dwordx2 v[46:47], v43, s[36:39], s43 offen
K1_OV{j}:
  s_mov_b64 exec, s[40:41]""")
    a(f"""
  s_waitcnt lgkmcnt(0)
K1_NOOVF:
  s_barrier
  ds_read_b128 v[12:15], v3
  ds_read_b128 v[16:19], v3 offset:8192
  ds_read_b128 v[20:23], v3 offset:16384
  ds_read_b128 v[24:27], v3 offset:24576
  v_mov_b32 v41, {32768+1024}
  ds_read_b32 v28, v41
  v_lshrrev_b32 v4, 3, v0
  s_mov_b32 s42, {BSTR}
  v_mul_u32_u24 v4, s42, v4
  v_and_b32 v5, 7, v0
  v_lshl_add_u32 v4, v5, 4, v4
  s_lshl_b32 s18, s2, 7
  s_add_u32 s19, s18, {64*BSTR}
  s_add_u32 s20, s18, {128*BSTR}
  s_add_u32 s21, s18, {192*BSTR}
  s_waitcnt lgkmcnt(4)
  buffer_store_dwordx4 v[12:15], v4, s[32:35], s18 offen
  s_waitcnt lgkmcnt(3)
  buffer_store_dwordx4 v[16:19], v4, s[32:35], s19 offen
  s_waitcnt lgkmcnt(2)
  buffer_store_dwordx4 v[20:23], v4, s[32:35], s20 offen
  s_waitcnt lgkmcnt(1)
  buffer_store_dwordx4 v[24:27], v4, s[32:35], s21 offen
  s_waitcnt lgkmcnt(0)""")
    stamp(a, 2)
    if OPT["stamp"]: a("  s_waitcnt vmcnt(0)")
    stamp(a, 3)
    stamp_out(a, 16, 0, 4, 3)
    a(f"""
  s_mul_i32 s43, s2, {OVSTR}
  v_mov_b32 v5, 0
  v_cmp_eq_u32 vcc, 0, v0
  s_and_saveexec_b64 s[40:41], vcc
  s_cbranch_execz K1_END
  buffer_store_dword v28, v5, s[36:39], s43 offen
  s_endpgm
K1_NOTBIN:
  v_and_b32 v3, 15, v2
  v_lshrrev_b32 v4, 4, v2
  s_lshl_b32 s18, s3, 5
  v_lshlrev_b32 v5, 11, v4              ; 8g*256
  v_lshl_add_u32 v5, v3, 1, v5
  v_add_u32 v5, s18, v5
  s_cmp_ge_u32 s2, {2*G}
  s_cbranch_scc1 K1_PREP
  s_sub_u32 s19, s2, {G}
  s_mul_i32 s19, s19, {80*256}
  v_lshlrev_b32 v6, 4, v0               ; piece*16
  v_lshrrev_b32 v7, 4, v0               ; row
  v_lshl_add_u32 v7, v7, 4, v6
  v_add_u32 v6, s19, v6
  v_add_u32 v20, 8192, v6
  v_add_u32 v21, 16384, v6
  s_waitcnt lgkmcnt(0)
""")
    srd(a, 24, 4, N*256)
    srd(a, 28, 12, 128*256)
    a("""
  buffer_load_dwordx4 v[8:11], v6, s[24:27], 0 offen
  buffer_load_dwordx4 v[12:15], v20, s[24:27], 0 offen
  buffer_load_dwordx4 v[16:19], v21, s[24:27], 0 offen""")
    wfrag_loads(a, 28, 5, 32, 44)
    srd(a, 32, 16, N*256, add=WS_P)
    a(f"""
  s_waitcnt vmcnt(34)
  ds_write_b128 v7, v[8:11]
  s_waitcnt vmcnt(33)
  ds_write_b128 v7, v[12:15] offset:{32*272}
  s_waitcnt vmcnt(32)
  s_cmp_ge_u32 s3, 4
  s_cbranch_scc1 K1_G1
  ds_write_b128 v7, v[16:19] offset:{64*272}
K1_G1:
  v_mul_u32_u24 v6, 272, v3
  v_lshl_add_u32 v6, v4, 4, v6
  v_lshlrev_b32 v7, 8, v3
  v_lshl_add_u32 v7, v4, 3, v7
  v_add_u32 v7, s18, v7
  s_waitcnt lgkmcnt(0)
  s_barrier""")
    for nt in range(5):
        for st in range(4):
            r = 64 + (nt*4+st)*4
            a(f"  ds_read_b128 {v(r,4)}, v6 offset:{nt*16*272 + st*64}")
    a("  s_waitcnt vmcnt(0)")
    stamp(a, 1)
    wfrag_pack(a, 32, 8)
    a("  s_waitcnt lgkmcnt(0)")
    a(f"  s_mov_b32 s42, {NLOG2E}\n  s_mov_b32 s43, {NLOG2E}")
    for nt in range(5):
        for st in range(4):
            r = 64 + (nt*4+st)*4
            c = "0" if st == 0 else v(32+4*nt, 4)
            a(f"  v_mfma_f32_16x16x32_bf16 {v(32+4*nt,4)}, {v(8+4*st,4)}, {v(r,4)}, {c}")
    a("  s_nop 7\n  s_nop 1")
    for nt in range(5):
        d = 32 + 4*nt
        a(f"""
  v_pk_mul_f32 {v(d,2)}, {v(d,2)}, s[42:43]
  v_pk_mul_f32 {v(d+2,2)}, {v(d+2,2)}, s[42:43]
  v_cvt_pk_bf16_f32 v{56+2*nt}, v{d}, v{d+1}
  v_cvt_pk_bf16_f32 v{57+2*nt}, v{d+2}, v{d+3}
  s_add_u32 s20, s19, {nt*4096}
  buffer_store_dwordx2 {v(56+2*nt,2)}, v7, s[32:35], s20 offen""")
    stamp(a, 2)
    if OPT["stamp"]: a("  s_waitcnt vmcnt(0)")
    stamp(a, 3)
    stamp_out(a, 16, 0, 4, 3)
    a(f"""
  s_endpgm
K1_PREP:
  s_waitcnt lgkmcnt(0)""")
    srd(a, 32, 16, WF_SIZE, add=WS_WF)
    a(f"""
  s_cmp_eq_u32 s2, {2*G+3}
  s_cbranch_scc1 K1_PREP3
  s_cmp_eq_u32 s2, {2*G}
  s_cselect_b32 s28, s12, s14
  s_cselect_b32 s29, s13, s15
  s_cmp_eq_u32 s2, {2*G+1}
  s_cselect_b32 s19, 0, 32768
  s_add_u32 s28, s28, s19
  s_addc_u32 s29, s29, 0
  s_mov_b32 s30, 32768
  s_mov_b32 s31, 0x20000""")
    wfrag_loads(a, 28, 5, 32, 44)
    a(f"""
  s_sub_u32 s19, s2, {2*G}
  s_lshl_b32 s19, s19, 15
  s_lshl_b32 s20, s3, 12
  s_add_u32 s19, s19, s20
  v_lshlrev_b32 v6, 4, v2
  s_waitcnt vmcnt(0)""")
    wfrag_pack(a, 32, 8)
    for st in range(4):
        a(f"  buffer_store_dwordx4 {v(8+4*st,4)}, v6, s[32:35], s19 offen offset:{st*1024}")
    a(f"""
  s_endpgm
K1_PREP3:
  s_cmp_ge_u32 s3, 4
  s_cbranch_scc1 K1_END""")
    srd(a, 28, 12, 16*256, add=256*256)
    a(f"""
  v_and_b32 v3, 31, v2
  v_lshrrev_b32 v4, 5, v2
  v_lshlrev_b32 v5, 11, v4
  v_lshl_add_u32 v5, v3, 1, v5
  s_lshl_b32 s18, s3, 6""")
    for jj in range(8):
        a(f"  buffer_load_ushort v{8+jj}, v5, s[28:31], s18 offen offset:{jj*256}")
    a(f"  s_mov_b32 s42, {NLOG2E}\n  v_lshlrev_b32 v6, 4, v2\n  s_lshl_b32 s19, s3, 10\n  s_waitcnt vmcnt(0)")
    for jj in range(8):
        a(f"  v_lshlrev_b32 v{8+jj}, 16, v{8+jj}\n  v_mul_f32 v{8+jj}, s42, v{8+jj}")
    for i in range(4):
        a(f"  v_cvt_pk_bf16_f32 v{16+i}, v{8+2*i}, v{9+2*i}")
    for i in range(4):
        a(f"""
  v_lshlrev_b32 v24, 16, v{16+i}
  v_and_b32 v25, 0xffff0000, v{16+i}
  v_sub_f32 v24, v{8+2*i}, v24
  v_sub_f32 v25, v{9+2*i}, v25
  v_cvt_pk_bf16_f32 v{20+i}, v24, v25""")
    a(f"""
  s_add_u32 s20, s19, {WF_3H}
  s_add_u32 s21, s19, {WF_3L}
  buffer_store_dwordx4 v[16:19], v6, s[32:35], s20 offen
  buffer_store_dwordx4 v[20:23], v6, s[32:35], s21 offen
K1_END:
  s_endpgm
""")
    return a.text(), 144

CAPB = 68
L_ENT = 0
L_GN = (CAPB + 1) * 256
L_CNT = L_GN + (CAPB + 17) * 32
L_FLG = L_CNT + 256
L_ACC = L_FLG + 32
AS = 1040
L_Q = L_ACC + 40 * AS
QS = 320
L_X = L_Q + 40 * QS
XS = 272
L_STG = L_X + 40 * XS
STG = 8 * 1040 + 1024
K2_LDS = L_STG + 8 * STG
PADS, PADE = 0x8000003f, 0x80000000

def gen_k2():
    a = Asm()
    R = Regs(1)
    al = R.alloc
    vl = al("lane")
    t0 = al("t", 8, 2); t1, t2, t3, t4, t5, t6, t7 = range(t0+1, t0+8)
    vchunk = al("vchunk"); vechunk = al("vechunk")
    vent = al("vent"); vrow = al("vrow"); vgq = al("vgq"); vga = al("vga")
    vAlo = al("Alo"); vAhi = al("Ahi"); vEF = al("vEF")
    vqlane = al("vqlane"); vacl = al("vacl"); vxb = al("vxb")
    vebase = al("vebase"); vone = al("vone")
    vqa = al("vqa"); vsrow = al("vsrow"); vgn1 = al("vgn1")
    ENT = al("ENT", 2, 2)
    MAC = al("MAC", 2, 2)
    PAT = al("PAT", 2, 2)
    nq = 2 if OPT["k8"] else 4
    AQ = al("AQ", nq, 2)
    GN = al("GN", 4, 2); AD = al("AD", 4)
    DO = al("DO", 2)
    I0 = al("I0", 4, 2); I1 = al("I1", 4, 2)
    W3 = al("W3", 16, 2)
    W3L = al("W3L", 16, 2) if OPT["lo"] else None
    BQ = al("BQ", 4*nq, 2)
    EF = al("EF", 4, 2)
    PF = al("PF", 32, 2)
    D0 = al("D0", 16, 2); D1 = al("D1", 16, 2)
    EA = al("EA", 8, 2); TA = al("TA", 8, 2); EB = al("EB", 8, 2); TB = al("TB", 8, 2)
    RA = al("RA", 2, 2); RB = al("RB", 2, 2)
    SA = al("SA", 2, 2); SB = al("SB", 2, 2)
    CV = al("CV", 8, 2)
    U = al("U", 12, 2); WUB = al("WUB", 16, 2)
    DUM = al("DUM", 4, 2)
    REC = D0
    NOD = D0 + 8
    RNK = D1
    XL = D1 + 8
    W2F = EA
    WUT = EB
    assert TA == EA + 8 and TB == EB + 8
    XF = PF
    QD = CV
    nv = R.n
    sX, sE_, sOUT, sWS = 4, 6, 8, 10
    sW = 3
    SP, SE, SC, SW, SX, SO, SV = 12, 16, 20, 24, 28, 32, 36
    sStart, sNb, sStg, sCnt, sT, sMode, sKind, sFirst = 40, 41, 42, 43, 44, 45, 46, 47
    sAS, sQS = 48, 49
    sOV = 50
    sTmp = 54
    sEx = 64
    sK = 66
    sBad = 68
    sP = 70
    sUB = 71

    a(f"""
.globl mpnn_k2_kernel
.p2align 8
.type mpnn_k2_kernel,@function
mpnn_k2_kernel:
  s_cmp_ge_u32 s2, {NB}
  s_cbranch_scc1 K2_END""")
    stamp(a, 0)
    a(f"""
  s_load_dwordx4 s[4:7], s[0:1], 0
  s_load_dwordx2 s[8:9], s[0:1], 48
  s_load_dwordx2 s[10:11], s[0:1], 64
  v_lshrrev_b32 v{t0}, 6, v0
  v_and_b32 v{vl}, 63, v0
  s_mul_i32 s{sStart}, s2, 640013
  v_readfirstlane_b32 s{sW}, v{t0}
  s_add_u32 s{sNb}, s{sStart}, {640013+16383}
  s_add_u32 s{sStart}, s{sStart}, 16383
  s_lshr_b32 s{sStart}, s{sStart}, 14
  s_lshr_b32 s{sNb}, s{sNb}, 14
  s_min_u32 s{sNb}, s{sNb}, {N}
  s_sub_u32 s{sNb}, s{sNb}, s{sStart}
  s_mov_b32 s{sMode}, 0
  s_mov_b32 s{sKind}, 0
  s_mov_b32 s{sFirst}, 1
  s_mov_b32 s{sAS}, {AS}
  s_mov_b32 s{sQS}, {QS}
  s_mul_i32 s{sStg}, s{sW}, {STG}
  s_add_u32 s{sStg}, s{sStg}, {L_STG}
  v_lshrrev_b32 v{t1}, 2, v0
  v_and_b32 v{t2}, 3, v0
  v_lshlrev_b32 v{t2}, 4, v{t2}
  v_lshl_add_u32 v{vqa}, v{t1}, 7, v{t2}
  s_mov_b32 s{sTmp}, {CH*32}
  v_mul_u32_u24 v{vebase}, s{sTmp}, v{t1}""")
    a(f"""
  v_mov_b32 v{vone}, 1
  v_mov_b32 v{MAC}, 0
  v_mov_b32 v{MAC+1}, 0
  v_and_b32 v{t0}, 15, v{vl}                 ; l&15
  v_bfe_u32 v{t1}, v{vl}, 4, 1               ; r4&1
  v_lshlrev_b32 v{t2}, 3, v{t1}
  v_xor_b32 v{t2}, v{t0}, v{t2}
  v_lshlrev_b32 v{vchunk}, 4, v{t2}
  v_and_b32 v{t2}, 1, v{vl}
  v_xor_b32 v{t2}, v{t2}, v{t1}
  v_lshlrev_b32 v{vechunk}, 4, v{t2}
  ; vent = w*256 + (8*(l>>4) + ((l&15)>>1))*8
  v_lshrrev_b32 v{t2}, 4, v{vl}
  v_lshlrev_b32 v{t2}, 6, v{t2}
  v_lshrrev_b32 v{t4}, 1, v{t0}
  v_lshl_add_u32 v{t2}, v{t4}, 3, v{t2}
  s_lshl_b32 s{sTmp}, s{sW}, 8
  v_add_u32 v{vent}, s{sTmp}, v{t2}
  v_bfe_u32 v{t2}, v{vl}, 2, 1               ; h
  v_and_b32 v{t4}, 1, v{vl}                  ; xy
  v_lshl_add_u32 v{t5}, v{t2}, 1, v{t4}      ; r4
  v_bfe_u32 v{t6}, v{vl}, 3, 2               ; 2o + bit3
  v_bfe_u32 v{t7}, v{vl}, 1, 1
  v_lshl_add_u32 v{t6}, v{t6}, 1, v{t7}
  v_lshl_add_u32 v{t7}, v{t5}, 3, v{t6}      ; q = 8 r4 + j
  v_lshlrev_b32 v{t7}, 3, v{t7}
  v_add_u32 v{vrow}, s{sTmp}, v{t7}
  v_lshrrev_b32 v{t7}, 5, v{vl}              ; hh
  ; A addresses
  v_mul_u32_u24 v{vAlo}, 1040, v{t6}
  v_lshl_add_u32 v{vAlo}, v{t5}, 8, v{vAlo}
  v_lshl_add_u32 v{vAlo}, v{t7}, 4, v{vAlo}
  v_add_u32 v{vAlo}, s{sStg}, v{vAlo}
  v_xor_b32 v{vAhi}, 1, v{t4}
  v_lshl_add_u32 v{vAhi}, v{vAhi}, 7, v{vAlo}
  v_lshl_add_u32 v{vAlo}, v{t4}, 7, v{vAlo}
  v_xor_b32 v{vEF}, v{t7}, v{t4}
  v_lshl_add_u32 v{vEF}, v{t6}, 1, v{vEF}
  v_lshl_add_u32 v{vEF}, v{t5}, 4, v{vEF}
  v_lshlrev_b32 v{vEF}, 4, v{vEF}
  s_add_u32 s{sTmp+1}, s{sStg}, 8320
  v_add_u32 v{vEF}, s{sTmp+1}, v{vEF}
  v_bfe_u32 v{t5}, v{vl}, 4, 1               ; o
  v_lshlrev_b32 v{t5}, 4, v{t5}
  v_mov_b32 v{t6}, 0x3f80
  v_lshlrev_b32 v{t5}, v{t5}, v{t6}
  v_cmp_eq_u32 vcc, v{t7}, v{t2}
  s_nop 1
  v_cndmask_b32 v{t5}, 0, v{t5}, vcc
  v_cmp_eq_u32 vcc, 0, v{t4}
  s_nop 1
  v_cndmask_b32 v{PAT}, 0, v{t5}, vcc
  v_cndmask_b32 v{PAT+1}, v{t5}, 0, vcc
  s_lshl_b32 s{sTmp}, s{sW}, 5
  s_add_u32 s{sTmp}, s{sTmp}, {L_GN}
  v_lshlrev_b32 v{vga}, 4, v{t7}
  v_add_u32 v{vga}, s{sTmp}, v{vga}
  v_and_b32 v{t2}, 12, v{vl}
  v_add_u32 v{vgq}, v{vga}, v{t2}
  v_and_b32 v{t2}, 3, v{vl}
  v_lshlrev_b32 v{t2}, 3, v{t2}
  v_lshl_add_u32 v{t2}, v{t1}, 5, v{t2}
  v_add_u32 v{vqlane}, {L_Q}, v{t2}
  v_and_b32 v{t2}, 31, v{vl}
  v_lshlrev_b32 v{t4}, 3, v{t2}
  v_add_u32 v{vacl}, {L_ACC}, v{t4}
  v_mul_u32_u24 v{vxb}, {XS}, v{t0}
  v_lshrrev_b32 v{t4}, 4, v{vl}
  v_lshl_add_u32 v{vxb}, v{t4}, 4, v{vxb}
  v_add_u32 v{vxb}, {L_X}, v{vxb}
  v_and_b32 v{t4}, 1, v{vl}
  v_lshlrev_b32 v{t4}, 4, v{t4}
  v_lshlrev_b32 v{t4}, v{t4}, v{t6}
  v_bfe_u32 v{t5}, v{vl}, 1, 4               ; (n>>1) = 4*(n>>3) + reg
  v_lshlrev_b32 v{t7}, 2, v{t7}
  v_sub_u32 v{t5}, v{t5}, v{t7}""")
    for i in range(4):
        a(f"  v_cmp_eq_u32 vcc, {i}, v{t5}\n  s_nop 1\n  v_cndmask_b32 v{I0+i}, 0, v{t4}, vcc")
        a(f"  v_cmp_eq_u32 vcc, {8+i}, v{t5}\n  s_nop 1\n  v_cndmask_b32 v{I1+i}, 0, v{t4}, vcc")
    if not OPT["k8"]:
        a(f"  v_mov_b32 v{AQ+2}, 0\n  v_mov_b32 v{AQ+3}, 0")
        for t in range(4):
            a(f"  v_mov_b32 v{BQ+4*t+2}, 0\n  v_mov_b32 v{BQ+4*t+3}, 0")
    a(f"""
  v_lshlrev_b32 v{t3}, 4, v0            ; tid*16
  v_lshlrev_b32 v{t4}, 4, v{vl}         ; lane*16
  s_mul_i32 s{sTmp}, s2, {BSTR}
  s_lshl_b32 s{sTmp+1}, s{sStart}, 8
  s_lshl_b32 s{sTmp+2}, s{sNb}, 8
  s_lshl_b32 s{sTmp+3}, s{sW}, 12
  s_waitcnt lgkmcnt(0)""")
    srd(a, SC, sWS, BSTR, add=WS_CELL, addreg=sTmp)
    a(f"""
  buffer_load_dwordx4 {v(REC,4)}, v{vqa}, {s(SC,4)}, 0 offen
  buffer_load_dwordx4 {v(REC+4,4)}, v{vqa}, {s(SC,4)}, 0 offen offset:64""")
    srd(a, SX, sX, f"s{sTmp+2}", addreg=sTmp+1)
    a(f"""
  v_add_u32 v{t5}, 8192, v{t3}
  buffer_load_dwordx4 {v(XL,4)}, v{t3}, {s(SX,4)}, 0 offen
  buffer_load_dwordx4 {v(XL+4,4)}, v{t5}, {s(SX,4)}, 0 offen""")
    srd(a, SW, sWS, WF_SIZE, add=WS_WF)
    a(f"  s_add_u32 s{sTmp+4}, s{sTmp+3}, {WF_UT}\n  s_add_u32 s{sUB}, s{sTmp+3}, {WF_UB}\n  s_mov_b32 s{sTmp+6}, {WF_3H}\n  s_mov_b32 s{sTmp+7}, {WF_3L}")
    nld = 4
    for st in range(4):
        a(f"  buffer_load_dwordx4 {v(W2F+4*st,4)}, v{t4}, {s(SW,4)}, s{sTmp+3} offen offset:{st*1024}")
    srd(a, SP, sWS, (N+1)*256, add=WS_P-256 if WS_P != 256 else 0)
    srd(a, SE, sE_, E*32)
    srd(a, SO, sOUT, f"s{sTmp+2}", addreg=sTmp+1)
    srd(a, SV, sWS, WS_OVF_SIZE, add=WS_OVF)
    a(f"""
  v_mov_b32 v{CV}, 0
  v_mov_b32 v{CV+1}, 0
  v_mov_b32 v{CV+2}, 0
  v_mov_b32 v{CV+3}, 0""")
    for j in range(6):
        a(f"  ds_write_b128 v{t3}, {v(CV,4)} offset:{L_GN + j*8192}")
    def prefill():
        a(f"""
  v_mov_b32 v{CV+4}, {PADS}
  v_mov_b32 v{CV+5}, {PADE}
  v_mov_b32 v{CV+6}, {PADS}
  v_mov_b32 v{CV+7}, {PADE}
  ds_write_b128 v{t3}, {v(CV+4,4)}
  ds_write_b128 v{t3}, {v(CV+4,4)} offset:8192
  v_cmp_gt_u32 vcc, {(L_GN-16384)//16}, v0
  s_and_saveexec_b64 {s(sEx,2)}, vcc
  ds_write_b128 v{t3}, {v(CV+4,4)} offset:16384
  s_mov_b64 exec, {s(sEx,2)}""")
    prefill()

    for st in range(4):
        a(f"  buffer_load_dwordx4 {v(WUT+4*st,4)}, v{t4}, {s(SW,4)}, s{sTmp+4} offen offset:{st*1024}")
    for st in range(4):
        a(f"  buffer_load_dwordx4 {v(W3+4*st,4)}, v{t4}, {s(SW,4)}, s{sTmp+6} offen offset:{st*1024}")
    nld += 12
    if OPT["lo"]:
        for st in range(4):
            a(f"  buffer_load_dwordx4 {v(W3L+4*st,4)}, v{t4}, {s(SW,4)}, s{sTmp+7} offen offset:{st*1024}")
        nld += 4
    npf = 0
    if OPT["pfE"]:
        a(f"  s_mul_i32 s{sTmp}, s2, 40000\n  v_lshlrev_b32 v{t5}, 7, v0\n  v_add_u32 v{t5}, s{sTmp}, v{t5}")
        a(f"  v_cmp_gt_u32 vcc, 320, v0\n  s_nop 1\n  v_cndmask_b32 v{t5}, -1, v{t5}, vcc")
        a(f"  buffer_load_dword v{DUM}, v{t5}, {s(SE,4)}, 0 offen")
        npf += 1
    if OPT["pfP"]:
        a(f"  s_lshr_b32 s{sTmp}, s2, 3\n  s_mul_i32 s{sTmp}, s{sTmp}, 81920\n  v_lshlrev_b32 v{t5}, 7, v0\n  v_add_u32 v{t5}, s{sTmp}, v{t5}")
        a(f"  buffer_load_dword v{DUM}, v{t5}, {s(SP,4)}, 0 offen\n  v_add_u32 v{t5}, 65536, v{t5}")
        a(f"  v_cmp_gt_u32 vcc, 128, v0\n  s_nop 1\n  v_cndmask_b32 v{t5}, -1, v{t5}, vcc")
        a(f"  buffer_load_dword v{DUM}, v{t5}, {s(SP,4)}, 0 offen")
        npf += 2
    NL = nld + npf
    a(f"""
  s_waitcnt lgkmcnt(0)
  s_barrier
  s_waitcnt vmcnt({NL-2})""")
    stamp(a, 1)
    a(f"""
K2_PHASE1:
  v_cmp_le_u32 vcc, 0xfffc0000, v{REC+7}
  s_cbranch_vccz K2_NOMARK
  s_and_saveexec_b64 {s(sEx,2)}, vcc
  v_lshrrev_b32 v{t0}, 2, v0                 ; producer
  v_lshrrev_b32 v{t1}, 5, v{t0}
  v_lshlrev_b32 v{t1}, 2, v{t1}
  v_lshlrev_b32 v{t0}, v{t0}, v{vone}
  ds_or_b32 v{t1}, v{t0} offset:{L_FLG+16}
  v_mov_b32 v{REC+7}, 0
  s_mov_b64 exec, {s(sEx,2)}
K2_NOMARK:""")
    for k in range(8):
        a(f"""
  v_and_b32 v{NOD+k}, 63, v{REC+k}
  v_cmpx_ne_u32 vcc, 0, v{REC+k}
  s_cbranch_execz K2_P1_{k}
  v_lshlrev_b32 v{NOD+k}, 2, v{NOD+k}
  ds_add_rtn_u32 v{RNK+k}, v{NOD+k}, v{vone} offset:{L_CNT}
K2_P1_{k}:
  s_mov_b64 exec, -1""")
    a(f"""
  s_cmp_eq_u32 s{sFirst}, 0
  s_cbranch_scc1 K2_NOX
  v_lshrrev_b32 v{t0}, 4, v0
  v_lshlrev_b32 v{t1}, 4, v0
  v_lshl_add_u32 v{t0}, v{t0}, 4, v{t1}
  v_add_u32 v{t0}, {L_X}, v{t0}
  s_waitcnt vmcnt({NL-4})
  ds_write_b128 v{t0}, {v(XL,4)}
  s_cmp_ge_u32 s{sW}, 2
  s_cbranch_scc1 K2_NOX
  ds_write_b128 v{t0}, {v(XL+4,4)} offset:{32*XS}
K2_NOX:
  s_waitcnt lgkmcnt(0)
  s_barrier
  v_lshlrev_b32 v{t0}, 2, v{vl}
  ds_read_b32 v{t1}, v{t0} offset:{L_CNT}
  v_subrev_u32 v{t4}, s{sStart}, v{vl}
  v_and_b32 v{t4}, 63, v{t4}
  s_waitcnt lgkmcnt(0)
  v_add_u32 v{t1}, 3, v{t1}
  v_and_b32 v{t1}, -4, v{t1}
  v_mov_b32 v{t2}, v{t1}
  s_nop 1
  v_add_u32_dpp v{t2}, v{t2}, v{t2} row_shr:1 row_mask:0xf bank_mask:0xf
  s_nop 1
  v_add_u32_dpp v{t2}, v{t2}, v{t2} row_shr:2 row_mask:0xf bank_mask:0xf
  s_nop 1
  v_add_u32_dpp v{t2}, v{t2}, v{t2} row_shr:4 row_mask:0xf bank_mask:0xf
  s_nop 1
  v_add_u32_dpp v{t2}, v{t2}, v{t2} row_shr:8 row_mask:0xf bank_mask:0xf
  s_nop 1
  v_add_u32_dpp v{t2}, v{t2}, v{t2} row_bcast:15 row_mask:0xa bank_mask:0xf
  s_nop 1
  v_add_u32_dpp v{t2}, v{t2}, v{t2} row_bcast:31 row_mask:0xc bank_mask:0xf
  s_nop 1
  v_readlane_b32 s{sT}, v{t2}, 63
  v_sub_u32 v{t1}, v{t2}, v{t1}              ; start
  s_cmp_gt_u32 s{sT}, {CAPB*32}
  s_cbranch_scc1 K2_SPLIT""")
    for k in range(4):
        a(f"  ds_bpermute_b32 v{NOD+k}, v{NOD+k}, v{t1}")
    a(f"""
  v_or3_b32 v{t3}, v{REC+4}, v{REC+5}, v{REC+6}
  v_or_b32 v{t3}, v{t3}, v{REC+7}
  v_cmp_ne_u32 vcc, 0, v{t3}
  s_cbranch_vccz K2_P2A""")
    for k in range(4, 8):
        a(f"  ds_bpermute_b32 v{NOD+k}, v{NOD+k}, v{t1}")
    a("K2_P2A:\n  s_waitcnt lgkmcnt(0)")
    for k in range(8):
        e = t6 if k % 2 == 0 else CV
        a(f"""
  v_cmpx_ne_u32 vcc, 0, v{REC+k}
  s_cbranch_execz K2_P2_{k}
  v_lshrrev_b32 v{e}, 10, v{REC+k}
  v_and_b32 v{e}, {hex(0xffffff00 if not OPT['hot'] else 0x1f00 if OPT['hot']==1 else 0x1fff00)}, v{e}
  v_bfe_u32 v{e+1}, v{REC+k}, 6, 12
  v_lshl_add_u32 v{e+1}, v{e+1}, 5, v{vebase}
  {'v_and_b32 v%d, 0xfe0, v%d' % (e+1,e+1) if OPT['hot'] else ''}
  v_add_lshl_u32 v{NOD+k}, v{NOD+k}, v{RNK+k}, 3
  ds_write_b64 v{NOD+k}, {v(e,2)}
K2_P2_{k}:
  s_mov_b64 exec, -1""")
    assert t6 % 2 == 0
    a(f"""
  v_lshrrev_b32 v{t1}, 2, v{t1}
  v_lshrrev_b32 v{t2}, 2, v{t2}
  v_add_u32 v{t1}, s{sW}, v{t1}
K2_GNL:
  v_cmpx_lt_u32 vcc, v{t1}, v{t2}
  s_cbranch_execz K2_GNE
  v_lshlrev_b32 v{t3}, 2, v{t1}
  ds_write_b32 v{t3}, v{t4} offset:{L_GN}
  v_add_u32 v{t1}, 8, v{t1}
  s_branch K2_GNL
K2_GNE:
  s_mov_b64 exec, -1
  s_add_u32 s{sT}, s{sT}, 31
  s_lshr_b32 s{sT}, s{sT}, 5
  s_add_u32 s{sCnt}, s{sT}, 7
  s_sub_u32 s{sCnt}, s{sCnt}, s{sW}
  s_lshr_b32 s{sCnt}, s{sCnt}, 3
  s_waitcnt lgkmcnt(0)
  s_barrier""")

    def dma_issue():
        L = []
        for j in range(8):
            d = DO + (j & 1)
            L.append([f"  s_add_u32 m0, s{sStg}, {j*1040}",
                      f"  v_add_u32_dpp v{d}, v{ENT}, v{vchunk} row_newbcast:{2*j} row_mask:0xf bank_mask:0xf",
                      f"  buffer_load_dwordx4 v{d}, {s(SP,4)}, 0 offen lds" if not OPT["nodma"] else "  s_nop 0"])
        L.append([f"  s_add_u32 m0, s{sStg}, 8320",
                  f"  v_add_u32 v{DO}, v{ENT+1}, v{vechunk}",
                  f"  buffer_load_dwordx4 v{DO}, {s(SE,4)}, 0 offen lds" if not (OPT["nodma"] or OPT["noe"]) else "  s_nop 0"])
        return L
    def frag_reads():
        L = []
        for st in range(8):
            L.append(f"  ds_read_b128 {v(PF+4*st,4)}, v{vAlo if st < 4 else vAhi} offset:{32*(st&3)}")
        L.insert(2, f"  ds_read_b128 {v(EF,4)}, v{vEF}")
        return L
    def bq_reads():
        return [f"  ds_read_b64_tr_b16 {v(BQ+nq*t,2)}, v{vqa} offset:{64*t}" for t in range(4)]
    def chain(t, D):
        L = [f"  v_mfma_f32_32x32x16_bf16 {v(D,16)}, {v(EF,4)}, {v(W3+4*t,4)}, 0"]
        if OPT["lo"]:
            L.append(f"  v_mfma_f32_32x32x16_bf16 {v(D,16)}, {v(EF,4)}, {v(W3L+4*t,4)}, {v(D,16)}")
        L.append(f"  v_mfma_f32_32x32x16_bf16 {v(D,16)}, {v(PF+8*t,4)}, {v(I0,4)}, {v(D,16)}")
        L.append(f"  v_mfma_f32_32x32x16_bf16 {v(D,16)}, {v(PF+8*t+4,4)}, {v(I1,4)}, {v(D,16)}")
        if OPT["k8"]:
            L.append(f"  v_mfma_f32_32x32x8bf16_1k {v(D,16)}, {v(AQ,2)}, {v(BQ+2*t,2)}, {v(D,16)}")
        else:
            L.append(f"  v_mfma_f32_32x32x16_bf16 {v(D,16)}, {v(AQ,4)}, {v(BQ+4*t,4)}, {v(D,16)}")
        return L

    stamp(a, 2)
    a(f"  ds_read_b64 {v(ENT,2)}, v{vent}\n  s_waitcnt lgkmcnt(0)")
    for x in dma_issue(): a("\n".join(x))
    a(f"  ds_read_b64 {v(ENT,2)}, v{vent} offset:2048")
    a(f"""
  s_cmp_eq_u32 s{sFirst}, 0
  s_cbranch_scc1 K2_NOGEMM0
  s_mov_b32 s{sFirst}, 0
  s_mov_b32 s{sK}, {NLOG2E}
  s_mov_b32 s{sK+1}, {NLOG2E}
  s_waitcnt vmcnt({NL-12+(0 if OPT['nodma'] else 8 if OPT['noe'] else 9)})""")
    a(f"""
  v_and_b32 v{t0}, 15, v{vl}
  v_mul_u32_u24 v{t0}, {QS}, v{t0}
  v_lshrrev_b32 v{t1}, 4, v{vl}
  v_lshl_add_u32 v{t0}, v{t1}, 3, v{t0}
  s_lshl_b32 s{sTmp}, s{sW}, 5
  s_add_u32 s{sTmp}, s{sTmp}, {L_Q}
  v_add_u32 v{t0}, s{sTmp}, v{t0}""")
    for nt in range(3):
        xf = XF + 16*(nt & 1)
        for st in range(4):
            a(f"  ds_read_b128 {v(xf+4*st,4)}, v{vxb} offset:{nt*16*XS + st*64}")
        a("  s_waitcnt lgkmcnt(0)")
        for st in range(4):
            c = "0" if st == 0 else v(QD, 4)
            a(f"  v_mfma_f32_16x16x32_bf16 {v(QD,4)}, {v(W2F+4*st,4)}, {v(xf+4*st,4)}, {c}")
        for st in range(4):
            c = "0" if st == 0 else v(U+4*nt, 4)
            a(f"  v_mfma_f32_16x16x32_bf16 {v(U+4*nt,4)}, {v(WUT+4*st,4)}, {v(xf+4*st,4)}, {c}")
        a(f"""
  s_nop 4
  v_pk_mul_f32 {v(QD,2)}, {v(QD,2)}, {s(sK,2)}
  v_pk_mul_f32 {v(QD+2,2)}, {v(QD+2,2)}, {s(sK,2)}
  v_cvt_pk_bf16_f32 v{QD+4}, v{QD}, v{QD+1}
  v_cvt_pk_bf16_f32 v{QD+5}, v{QD+2}, v{QD+3}""")
        if nt == 2:
            a(f"  v_and_b32 v{t1}, 8, v{vl}\n  v_cmpx_eq_u32 vcc, 0, v{t1}")
        a(f"  ds_write_b64 v{t0}, {v(QD+4,2)} offset:{nt*16*QS}")
        if nt == 2:
            a("  s_mov_b64 exec, -1")
        a("  s_nop 4")
    a(f"""
  v_lshlrev_b32 v{t4}, 4, v{vl}""")
    for st in range(4):
        a(f"  buffer_load_dwordx4 {v(WUB+4*st,4)}, v{t4}, {s(SW,4)}, s{sUB} offen offset:{st*1024}")
    a(f"""
  s_waitcnt lgkmcnt(0)
  s_barrier
K2_NOGEMM:
  ds_read_b32 v{vgn1}, v{vgq}
  ds_read_b32 v{vsrow}, v{vrow}
  ds_read_b128 {v(GN,4)}, v{vga}
  s_waitcnt vmcnt(4)""")
    stamp(a, 3, 72)
    if OPT["stamp"]: a("  s_waitcnt lgkmcnt(0)")
    for x in frag_reads(): a(x)
    a(f"""
  s_waitcnt lgkmcnt(9)
  v_mad_u32_u24 v{vqa}, v{vgn1}, s{sQS}, v{vqlane}
  v_lshrrev_b64 {v(AQ,2)}, v{vsrow}, {v(PAT,2)}""")
    for x in bq_reads(): a(x)
    a("  s_waitcnt lgkmcnt(0)")
    for x in dma_issue(): a("\n".join(x))
    for x in chain(0, D0): a(x)
    a(f"""
  s_nop 7
  s_nop 3
  s_cmp_eq_u32 s{sCnt}, 0
  s_cbranch_scc1 K2_LOOPEND
  s_cmp_lg_u32 s{sMode}, 0
  s_cbranch_scc1 K2_SAFE""")

    def p(r): return v(r, 2)
    def octet_fast(d, e, t, r, sres):
        ex = [f"  v_exp_f32 v{e+i}, v{d+i}" for i in range(8)]
        L = [f"  v_pk_add_f32 {p(t)}, {p(e)}, 1.0 op_sel_hi:[1,0]",
             f"  v_pk_add_f32 {p(t+2)}, {p(e+4)}, 1.0 op_sel_hi:[1,0]",
             f"  v_pk_fma_f32 {p(t+4)}, {p(d)}, {p(e+2)}, {p(d)}",
             f"  v_pk_fma_f32 {p(t+6)}, {p(d+4)}, {p(e+6)}, {p(d+4)}",
             f"  v_pk_fma_f32 {p(e)}, {p(t)}, {p(e+2)}, {p(t)}",
             f"  v_pk_fma_f32 {p(e+4)}, {p(t+2)}, {p(e+6)}, {p(t+2)}",
             f"  v_pk_fma_f32 {p(t+4)}, {p(d+2)}, {p(t)}, {p(t+4)}",
             f"  v_pk_fma_f32 {p(t+6)}, {p(d+6)}, {p(t+2)}, {p(t+6)}",
             f"  v_pk_mul_f32 {p(t)}, {p(e)}, {p(e+4)}",
             f"  v_pk_mul_f32 {p(t+4)}, {p(t+4)}, {p(e+4)}",
             f"  v_rcp_f32 v{r}, v{t}",
             f"  v_rcp_f32 v{r+1}, v{t+1}",
             f"  v_pk_fma_f32 {p(t+4)}, {p(t+6)}, {p(e)}, {p(t+4)}",
             f"  v_pk_mul_f32 {p(sres)}, {p(t+4)}, {p(r)}"]
        return ex, L
    def octet_safe(d, e, t, r, sres):
        ex = [f"  v_exp_f32 v{e+i}, v{d+i}" for i in range(8)]
        L = [f"  v_pk_add_f32 {p(e+2*i)}, {p(e+2*i)}, 1.0 op_sel_hi:[1,0]" for i in range(4)]
        L += [f"  v_rcp_f32 v{t+i}, v{e+i}" for i in range(8)]
        L += [f"  v_pk_mul_f32 {p(sres)}, {p(d)}, {p(t)}"]
        L += [f"  v_pk_fma_f32 {p(sres)}, {p(d+2*i)}, {p(t+2*i)}, {p(sres)}" for i in range(1, 4)]
        return ex, L
    def zipl(x, y):
        o = []
        for i in range(max(len(x), len(y))):
            if i < len(x): o.append(x[i])
            if i < len(y): o.append(y[i])
        return o

    def loop(safe):
        lab = "K2_SAFE" if safe else "K2_FAST"
        oc = octet_safe if safe else octet_fast
        a(f".p2align 6\n{lab}:")
        for t in range(4):
            D = D0 if t % 2 == 0 else D1
            Dn = D1 if t % 2 == 0 else D0
            exa, La = oc(D, EA, TA, RA, SA)
            exb, Lb = oc(D+8, EB, TB, RB, SB)
            ex = exa + exb
            ch = chain((t+1) % 4, Dn)
            pk = zipl(La, Lb)
            if not safe:
                idx = max(i for i, x in enumerate(pk) if x.startswith(f"  v_pk_mul_f32 {p(TB)}, {p(EB)}"))
                pk.insert(idx+1, f"  v_pk_fma_f32 {p(MAC)}, {p(TA)}, {p(TB)}, {p(MAC)}")
            fin = []
            for o, S in ((0, SA), (1, SB)):
                for xy in range(2):
                    c = CV + 2*(2*o+xy)
                    fin.append(f"  v_cvt_f64_f32 {v(c,2)}, v{S+xy}")
            for o in range(2):
                for xy in range(2):
                    c = CV + 2*(2*o+xy)
                    fin.append(f"  ds_add_f64 v{AD+2*xy+o}, {v(c,2)} offset:{256*t}" if not OPT["noadd"] else f"  ds_read_b32 v{DUM}, v{vgq}")
            head = []
            per = 16 // len(ch)
            e = 0
            pre = []
            if t == 0:
                pre = [f"  v_mad_u32_u24 v{AD+i}, v{GN+i}, s{sAS}, v{vacl}" for i in range(4)]
                pk = pk[:4] + pre + pk[4:]
            if t == 2:
                a(f"  ds_read_b64 {v(ENT,2)}, v{vent} offset:4096")
                a(f"  ds_read_b32 v{vgn1}, v{vgq} offset:256")
                a(f"  ds_read_b32 v{vsrow}, v{vrow} offset:2048")
                a(f"  ds_read_b128 {v(GN,4)}, v{vga} offset:256")
            if t == 3:
                a("  s_waitcnt lgkmcnt(4)")
            dma = dma_issue() if t == 3 else []
            for i, m in enumerate(ch):
                head.append(m)
                n = per if i < len(ch)-1 else 16 - e
                for x in ex[e:e+n]:
                    head.append(x)
                    if dma and (len(head) % 2 == 0):
                        head += dma.pop(0)
                e += n
            for x in dma: head += x
            for x in head: a(x)
            if t == 2:
                mid = [f"  s_waitcnt vmcnt(0) lgkmcnt(0)",
                       f"  v_mad_u32_u24 v{vqa}, v{vgn1}, s{sQS}, v{vqlane}",
                       f"  v_lshrrev_b64 {v(AQ,2)}, v{vsrow}, {v(PAT,2)}"]
                rd = frag_reads() + bq_reads()
                body = pk[:6] + mid + zipl(pk[6:], rd)
                for x in body: a(x)
            elif t == 3:
                inc = [f"  v_add_u32 v{vent}, 2048, v{vent}", f"  v_add_u32 v{vrow}, 2048, v{vrow}",
                       f"  v_add_u32 v{vgq}, 256, v{vgq}", f"  v_add_u32 v{vga}, 256, v{vga}"]
                for x in pk[:4] + inc + pk[4:]: a(x)
            else:
                for x in pk: a(x)
            for x in fin: a(x)
        a(f"""
  s_sub_u32 s{sCnt}, s{sCnt}, 1
  s_cmp_lg_u32 s{sCnt}, 0
  s_cbranch_scc1 {lab}""")
    loop(False)
    a(f"""
K2_LOOPEND:""")
    stamp(a, 4)
    a(f"""
  s_waitcnt vmcnt(0) lgkmcnt(0)
  s_barrier""")
    stamp(a, 5, 74)
    if OPT["stamp"]: a("  s_waitcnt lgkmcnt(0)")
    a(f"""
  s_cmp_eq_u32 s{sKind}, 1
  s_cbranch_scc1 K2_HALF1
  s_cmp_eq_u32 s{sKind}, 3
  s_cbranch_scc1 K2_OVPART1
  s_cmp_eq_u32 s{sKind}, 4
  s_cbranch_scc1 K2_NEXTOV
  v_mov_b32 v{t0}, {L_FLG+16}
  ds_read_b128 {v(CV,4)}, v{t0}
K2_CONV:
  s_mul_i32 s{sTmp}, s{sW}, {AS}
  s_add_u32 s{sTmp}, s{sTmp}, {L_ACC}
  v_lshlrev_b32 v{t1}, 4, v{vl}
  v_add_u32 v{t1}, s{sTmp}, v{t1}""")
    for k in range(5):
        a(f"  ds_read_b128 {v(D0+4*k,4)}, v{t1} offset:{k*8*AS}")
    a(f"""
  s_mul_i32 s{sTmp}, s{sW}, {XS}
  s_add_u32 s{sTmp}, s{sTmp}, {L_X}
  v_lshlrev_b32 v{t2}, 2, v{vl}
  v_add_u32 v{t2}, s{sTmp}, v{t2}
  s_cmp_ge_u32 s{sKind}, 3
  s_cbranch_scc1 K2_CONV2
  s_waitcnt lgkmcnt(5)
  v_or3_b32 v{t0}, v{CV}, v{CV+1}, v{CV+2}
  v_or_b32 v{t0}, v{t0}, v{CV+3}
  v_cmp_ne_u32 vcc, 0, v{t0}
  s_cbranch_vccnz K2_STARTOV
K2_CONV2:
  s_mov_b32 s{sTmp}, 0x71800000              ; 2^100
  v_cmp_nle_f32 {s(sBad,2)}, v{MAC}, s{sTmp}
  v_cmp_nle_f32 vcc, v{MAC+1}, s{sTmp}
  s_or_b64 {s(sBad,2)}, {s(sBad,2)}, vcc
  s_movk_i32 s{sTmp}, 0x207""")
    for k in range(5):
        a(f"""
  s_waitcnt lgkmcnt({4-k})
  v_cvt_f32_f64 v{EA+2*k}, {v(D0+4*k,2)}
  v_cvt_f32_f64 v{EA+2*k+1}, {v(D0+4*k+2,2)}
  v_cmp_class_f32 vcc, v{EA+2*k}, s{sTmp}
  s_or_b64 {s(sBad,2)}, {s(sBad,2)}, vcc
  v_cmp_class_f32 vcc, v{EA+2*k+1}, s{sTmp}
  s_or_b64 {s(sBad,2)}, {s(sBad,2)}, vcc
  v_cvt_pk_bf16_f32 v{EB+k}, v{EA+2*k}, v{EA+2*k+1}""")
    for k in range(5):
        a(f"  ds_write_b32 v{t2}, v{EB+k} offset:{k*8*XS}")
    a(f"""
  s_cmp_eq_u64 {s(sBad,2)}, 0
  s_cbranch_scc1 K2_OKW
  v_mov_b32 v{t0}, {L_FLG}
  ds_write_b32 v{t0}, v{vone}
K2_OKW:
  s_waitcnt lgkmcnt(0)
  s_barrier
  v_mov_b32 v{t0}, {L_FLG}
  ds_read_b32 v{t0}, v{t0}""")
    for nt in range(2):
        for st in range(4):
            a(f"  ds_read_b128 {v(XF+16*nt+4*st,4)}, v{vxb} offset:{nt*16*XS + st*64}")
    a(f"""
  s_waitcnt lgkmcnt(8)
  v_readfirstlane_b32 s{sTmp}, v{t0}
  s_cmp_gt_u32 s{sTmp}, s{sMode}
  {"s_cbranch_scc1 K2_RESTART" if not (OPT["nodma"] or OPT["noe"] or OPT["noadd"] or OPT["hot"]) else "s_nop 0"}
  s_waitcnt lgkmcnt(4)""")
    for st in range(4):
        c = "0" if st == 0 else v(D0, 4)
        a(f"  v_mfma_f32_16x16x32_bf16 {v(D0,4)}, {v(WUB+4*st,4)}, {v(XF+4*st,4)}, {c}")
    for st in range(4):
        a(f"  ds_read_b128 {v(D1+4*st,4)}, v{vxb} offset:{2*16*XS + st*64}")
    a("  s_waitcnt lgkmcnt(4)")
    for st in range(4):
        c = "0" if st == 0 else v(D0+4, 4)
        a(f"  v_mfma_f32_16x16x32_bf16 {v(D0+4,4)}, {v(WUB+4*st,4)}, {v(XF+16+4*st,4)}, {c}")
    a("  s_waitcnt lgkmcnt(0)")
    for st in range(4):
        c = "0" if st == 0 else v(D0+8, 4)
        a(f"  v_mfma_f32_16x16x32_bf16 {v(D0+8,4)}, {v(WUB+4*st,4)}, {v(D1+4*st,4)}, {c}")
    a(f"""
  s_mov_b32 s{sK}, {NLN2}
  s_mov_b32 s{sK+1}, {NLN2}
  s_mov_b32 s{sTmp}, {NLOG2E}
  s_mov_b32 s{sTmp+1}, {NLOG2E}
  v_and_b32 v{t0}, 15, v{vl}
  v_lshlrev_b32 v{t0}, 8, v{t0}
  v_lshrrev_b32 v{t1}, 4, v{vl}
  v_lshl_add_u32 v{t0}, v{t1}, 3, v{t0}
  s_lshl_b32 s{sTmp+2}, s{sW}, 5
  v_add_u32 v{t0}, s{sTmp+2}, v{t0}
  v_add_u32 v{t1}, 4096, v{t0}
  v_add_u32 v{t2}, 8192, v{t0}""")
    for nt in range(3):
        d = D0 + 4*nt
        a(f"""
  v_pk_fma_f32 {p(d)}, {p(d)}, {s(sK,2)}, {p(U+4*nt)}
  v_pk_fma_f32 {p(d+2)}, {p(d+2)}, {s(sK,2)}, {p(U+4*nt+2)}
  v_pk_mul_f32 {p(EA)}, {p(d)}, {s(sTmp,2)}
  v_pk_mul_f32 {p(EA+2)}, {p(d+2)}, {s(sTmp,2)}""")
        for i in range(4): a(f"  v_exp_f32 v{EA+i}, v{EA+i}")
        a(f"  s_nop 0\n  v_pk_add_f32 {p(EA)}, {p(EA)}, 1.0 op_sel_hi:[1,0]\n  v_pk_add_f32 {p(EA+2)}, {p(EA+2)}, 1.0 op_sel_hi:[1,0]")
        for i in range(4): a(f"  v_rcp_f32 v{EA+i}, v{EA+i}")
        a(f"""
  s_nop 0
  v_pk_mul_f32 {p(d)}, {p(d)}, {p(EA)}
  v_pk_mul_f32 {p(d+2)}, {p(d+2)}, {p(EA+2)}
  v_cvt_pk_bf16_f32 v{EB+2*nt}, v{d}, v{d+1}
  v_cvt_pk_bf16_f32 v{EB+2*nt+1}, v{d+2}, v{d+3}
  buffer_store_dwordx2 {v(EB+2*nt,2)}, v{t0+nt}, {s(SO,4)}, 0 offen""")
    stamp(a, 6)
    if OPT["stamp"]: a("  s_waitcnt vmcnt(0)")
    stamp(a, 7)
    stamp_out(a, sWS, 1, 8, sW)
    a(f"""
K2_END:
  s_endpgm
""")
    loop(True)
    a("  s_branch K2_LOOPEND")
    a(f"""
K2_NOGEMM0:
  s_waitcnt vmcnt(0)
  s_branch K2_NOGEMM
K2_RESTART:
  s_mov_b32 s{sMode}, 1
  s_mov_b32 s{sKind}, 0
  s_waitcnt lgkmcnt(0)
  s_barrier
  v_lshlrev_b32 v{t3}, 4, v0
  v_mov_b32 v{CV}, 0
  v_mov_b32 v{CV+1}, 0
  v_mov_b32 v{CV+2}, 0
  v_mov_b32 v{CV+3}, 0""")
    for j in range(5):
        a(f"  ds_write_b128 v{t3}, {v(CV,4)} offset:{L_ACC + j*8192}")
    a(f"""
  v_cmp_gt_u32 vcc, {(40*AS-5*8192)//16}, v0
  s_and_saveexec_b64 {s(sEx,2)}, vcc
  ds_write_b128 v{t3}, {v(CV,4)} offset:{L_ACC + 5*8192}
  s_mov_b64 exec, {s(sEx,2)}
  s_branch K2_RELOAD
K2_SPLIT:
  s_mov_b32 s{sKind}, 1
  s_waitcnt lgkmcnt(0)
  s_barrier
  s_branch K2_RELOAD
K2_HALF1:
  s_mov_b32 s{sKind}, 2
K2_RELOAD:
  v_lshrrev_b32 v{t1}, 2, v0
  v_and_b32 v{t2}, 3, v0
  v_lshlrev_b32 v{t2}, 4, v{t2}
  v_lshl_add_u32 v{t2}, v{t1}, 7, v{t2}
  s_mov_b32 s{sTmp}, {CH*32}
  v_mul_u32_u24 v{vebase}, s{sTmp}, v{t1}
  s_waitcnt vmcnt(0)
  buffer_load_dwordx4 {v(REC,4)}, v{t2}, {s(SC,4)}, 0 offen
  buffer_load_dwordx4 {v(REC+4,4)}, v{t2}, {s(SC,4)}, 0 offen offset:64
  s_waitcnt vmcnt(0)
  s_cmp_eq_u32 s{sKind}, 0
  s_cbranch_scc1 K2_ROUND
  s_cmp_lt_u32 s{sW}, 4
  s_cselect_b32 s{sTmp}, 1, 2
  s_cmp_eq_u32 s{sTmp}, s{sKind}
  s_cbranch_scc1 K2_ROUND""")
    for k in range(8): a(f"  v_mov_b32 v{REC+k}, 0")
    a(f"""
K2_ROUND:
  v_lshlrev_b32 v{t3}, 4, v0
  v_mov_b32 v{CV}, 0
  v_mov_b32 v{CV+1}, 0
  v_mov_b32 v{CV+2}, 0
  v_mov_b32 v{CV+3}, 0
  v_cmp_gt_u32 vcc, {(L_FLG-L_GN)//16}, v0
  s_and_saveexec_b64 {s(sEx,2)}, vcc
  ds_write_b128 v{t3}, {v(CV,4)} offset:{L_GN}
  s_mov_b64 exec, {s(sEx,2)}""")
    prefill()
    a(f"""
  v_and_b32 v{vent}, 2047, v{vent}
  v_and_b32 v{vrow}, 2047, v{vrow}
  v_subrev_u32 v{vga}, {L_GN}, v{vga}
  v_and_b32 v{vga}, 255, v{vga}
  v_add_u32 v{vga}, {L_GN}, v{vga}
  v_and_b32 v{t2}, 12, v{vl}
  v_add_u32 v{vgq}, v{vga}, v{t2}
  s_waitcnt lgkmcnt(0)
  s_barrier
  s_branch K2_PHASE1
K2_STARTOV:
  v_readfirstlane_b32 s{sOV}, v{CV}
  v_readfirstlane_b32 s{sOV+1}, v{CV+1}
  v_readfirstlane_b32 s{sOV+2}, v{CV+2}
  v_readfirstlane_b32 s{sOV+3}, v{CV+3}
  s_mov_b32 s{sKind}, 4
  s_waitcnt lgkmcnt(0)
K2_NEXTOV:
  s_ff1_i32_b64 s{sP}, {s(sOV,2)}
  s_cmp_lg_u32 s{sP}, -1
  s_cbranch_scc1 K2_OVLO
  s_ff1_i32_b64 s{sP}, {s(sOV+2,2)}
  s_cmp_eq_u32 s{sP}, -1
  s_cbranch_scc1 K2_CONV
  s_bitset0_b64 {s(sOV+2,2)}, s{sP}
  s_add_u32 s{sP}, s{sP}, 64
  s_branch K2_OVGO
K2_OVLO:
  s_bitset0_b64 {s(sOV,2)}, s{sP}
K2_OVGO:
  s_mov_b32 s{sKind}, 3
  v_mov_b32 v{t4}, v0
  s_branch K2_OVLD
K2_OVPART1:
  s_mov_b32 s{sKind}, 4
  v_add_u32 v{t4}, 2048, v0
K2_OVLD:
  s_mul_i32 s{sTmp}, s{sP}, {OVSTR}
  s_mul_i32 s{sTmp+1}, s{sP}, {CH*32}
  v_mov_b32 v{vebase}, s{sTmp+1}
  v_mov_b32 v{t0}, s{sTmp}
  buffer_load_dword v{t1}, v{t0}, {s(SV,4)}, 0 offen
  v_lshl_add_u32 v{t2}, v{t4}, 3, v{t0}""")
    for k in range(4):
        a(f"  buffer_load_dwordx2 {v(PF+2*k,2)}, v{t2}, {s(SV,4)}, 0 offen offset:64\n  v_add_u32 v{t2}, 4096, v{t2}")
    a(f"  s_waitcnt vmcnt(0)")
    for k in range(4):
        a(f"""
  v_cmp_lt_u32 vcc, v{t4}, v{t1}
  v_cmp_eq_u32 {s(sEx,2)}, s2, v{PF+2*k+1}
  s_and_b64 vcc, vcc, {s(sEx,2)}
  v_add_u32 v{t4}, 512, v{t4}
  s_nop 1
  v_cndmask_b32 v{REC+k}, 0, v{PF+2*k}, vcc""")
    for k in range(4, 8): a(f"  v_mov_b32 v{REC+k}, 0")
    a("  s_branch K2_ROUND")
    return a.text(), nv

def desc(name, nv, ns):
    return f"""
.amdhsa_kernel {name}
  .amdhsa_next_free_vgpr {nv}
  .amdhsa_next_free_sgpr {ns}
  .amdhsa_accum_offset {(nv+3)//4*4}
  .amdhsa_group_segment_fixed_size 0
  .amdhsa_kernarg_size 72
  .amdhsa_user_sgpr_count 2
  .amdhsa_user_sgpr_kernarg_segment_ptr 1
  .amdhsa_system_sgpr_workgroup_id_x 1
.end_amdhsa_kernel
"""

HEAD = """; Kernarg layout for this problem (72 bytes, ptrs only, base s[0:1]):
"""

def main():
    k1, nv1 = gen_k1()
    k2, nv2 = gen_k2()
    out = HEAD
    out += f"; @launch kernel=mpnn_k1_kernel grid=(254,1,1) block=(512,1,1) lds={K1_LDS}\n"
    out += f"; @launch kernel=mpnn_k2_kernel grid=({NB},1,1) block=(512,1,1) lds={K2_LDS}\n"
    out += '.amdgcn_target "amdgcn-amd-amdhsa--gfx950"\n.text\n' + k1 + k2
    out += '.section .rodata,"a"\n.p2align 6\n' + desc("mpnn_k1_kernel", nv1, 102 if OPT["stamp"] else 64) + ".p2align 6\n" + desc("mpnn_k2_kernel", nv2, 102 if OPT["stamp"] else 80)
    open(sys.argv[1], "w").write(out)
    print("vgprs", nv1, nv2, "lds", K1_LDS, K2_LDS)
main()
```

```python
import sys, struct

N = 10000; E = 320000
G = 125
CH = 2560
NB = 256
MAGIC = 26843
CELLB = 128
BSTR = G * CELLB

WS_P = 256
WS_CELL = 0x280000
WS_WF = 0x680000
WF_W2, WF_UT, WF_UB, WF_3H, WF_3L = 0, 32768, 65536, 98304, 102400
WF_SIZE = 106496
WS_OVF = 0x6A0000
OVSTR = 64 + CH * 8
WS_OVF_SIZE = G * OVSTR

def f32(x): return struct.unpack("<I", struct.pack("<f", x))[0]
LOG2E = 1.4426950408889634
LN2 = 0.6931471805599453
NLOG2E = f32(-LOG2E); NLN2 = f32(-LN2)

OPT = dict(lo=0, pfP=1, pfE=1, k8=1, stamp=0, nodma=0, noadd=0, noe=0, hot=0, diag=-1)
for a in sys.argv[2:]:
    k, v = a.split("="); OPT[k] = int(v)

class Asm:
    def __init__(self): self.L = []
    def __call__(self, s):
        for x in s.strip("\n").split("\n"):
            self.L.append(x)
    def text(self): return "\n".join(self.L) + "\n"

class Regs:
    def __init__(self, start=0): self.n = start; self.names = {}
    def alloc(self, name, cnt=1, align=1):
        self.n = (self.n + align - 1) // align * align
        r = self.n; self.n += cnt; self.names[name] = (r, cnt); return r

def v(r, n=1): return f"v{r}" if n == 1 else f"v[{r}:{r+n-1}]"
def s(r, n=1): return f"s{r}" if n == 1 else f"s[{r}:{r+n-1}]"

WS_STAMP = 0x1000000
def stamp(a, i, cyc=None):
    if OPT["stamp"]:
        a(f"  s_memrealtime s[{80+2*i}:{81+2*i}]")
        if cyc is not None: a(f"  s_memtime s[{cyc}:{cyc+1}]")
def stamp_out(a, wsreg, kern, n, wreg):
    if not OPT["stamp"]: return
    if OPT["stamp"] == 2:
        lab = f"ST_SKIP{len(a.L)}"
        a(f"""
  s_load_dwordx2 s[98:99], s[0:1], 56
  s_waitcnt lgkmcnt(0)
  s_cmp_lg_u32 s{wreg}, 0
  s_cbranch_scc1 {lab}
  s_mov_b64 exec, 1
  v_mov_b32 v1, 0
  s_not_b32 s96, s80
  v_mov_b32 v2, s96
  global_atomic_umax v1, v2, s[98:99] offset:{kern*20}""")
        for i in range(n):
            a(f"  v_mov_b32 v2, s{80+2*i}\n  global_atomic_umax v1, v2, s[98:99] offset:{kern*20+4+4*i}")
        if kern == 1:
            a(f"""
  s_cmp_lg_u32 s2, 0
  s_cbranch_scc1 {lab}
  global_load_dwordx4 v[4:7], v1, s[98:99] offset:-512
  global_load_dword v8, v1, s[98:99] offset:-496
  s_waitcnt vmcnt(0)
  global_store_dwordx4 v1, v[4:7], s[98:99]
  global_store_dword v1, v8, s[98:99] offset:16""")
        a(f"{lab}:\n  s_mov_b64 exec, -1")
        return
    a(f"""
  s_waitcnt lgkmcnt(0)
  s_lshl_b32 s96, s2, 3
  s_add_u32 s96, s96, s{wreg}
  s_lshl_b32 s96, s96, 6
  s_add_u32 s96, s96, {WS_STAMP + kern*0x100000}
  s_add_u32 s98, s{wsreg}, s96
  s_addc_u32 s99, s{wsreg+1}, 0
  s_mov_b64 exec, 1
  v_mov_b32 v1, 0""")
    for i in range(n):
        a(f"  v_mov_b32 v2, s{80+2*i}\n  global_store_dword v1, v2, s[98:99] offset:{4*i}")
    if kern == 1:
        for i, r in enumerate((72, 74, 44)):
            a(f"  v_mov_b32 v2, s{r}\n  global_store_dword v1, v2, s[98:99] offset:{32+4*i}")
    a("  s_mov_b64 exec, -1")

def srd(a, r, lo, nbytes, add=0, addreg=None):
    if add:
        a(f"  s_add_u32 s{r}, s{lo}, {add}\n  s_addc_u32 s{r+1}, s{lo+1}, 0")
    else:
        a(f"  s_mov_b32 s{r}, s{lo}\n  s_mov_b32 s{r+1}, s{lo+1}")
    if addreg is not None:
        a(f"  s_add_u32 s{r}, s{r}, s{addreg}\n  s_addc_u32 s{r+1}, s{r+1}, 0")
    a(f"  s_mov_b32 s{r+2}, {nbytes}\n  s_mov_b32 s{r+3}, 0x20000")

K1_LDS = 34048
def wfrag_loads(a, srdr, voff, dst, stmp):
    for st in range(4):
        a(f"  s_mov_b32 s{stmp+st}, {st*8192}")
    for st in range(4):
        for jj in range(8):
            a(f"  buffer_load_ushort v{dst+st*8+jj}, v{voff}, {s(srdr,4)}, s{stmp+st} offen offset:{jj*256}")
def wfrag_pack(a, src, dst):
    for i in range(16):
        a(f"  v_lshl_or_b32 v{dst+i}, v{src+2*i+1}, 16, v{src+2*i}")

def gen_k1():
    a = Asm()
    a(f"""
.globl mpnn_k1_kernel
.p2align 8
.type mpnn_k1_kernel,@function
mpnn_k1_kernel:
  s_cmp_ge_u32 s2, 254
  s_cbranch_scc1 K1_END""")
    stamp(a, 0)
    a(f"""
  s_load_dwordx4 s[4:7], s[0:1], 0      ; x, e_attr
  s_load_dwordx4 s[8:11], s[0:1], 16
  s_load_dwordx4 s[12:15], s[0:1], 32
  s_load_dwordx2 s[16:17], s[0:1], 64   ; ws
  v_lshrrev_b32 v1, 6, v0
  v_and_b32 v2, 63, v0                  ; lane
  s_nop 0
  v_readfirstlane_b32 s3, v1
  s_cmp_ge_u32 s2, {G}
  s_cbranch_scc1 K1_NOTBIN
  ; ---------------- binning ----------------
  v_mov_b32 v4, 0
  v_mov_b32 v5, 0
  v_mov_b32 v6, 0
  v_mov_b32 v7, 0
  v_lshlrev_b32 v3, 4, v0
  ds_write_b128 v3, v[4:7]
  ds_write_b128 v3, v[4:7] offset:8192
  ds_write_b128 v3, v[4:7] offset:16384
  ds_write_b128 v3, v[4:7] offset:24576
  v_lshlrev_b32 v8, 2, v0               ; tid*4
  v_cmp_gt_u32 vcc, 320, v0
  s_and_saveexec_b64 s[40:41], vcc
  ds_write_b32 v8, v4 offset:32768
  s_mov_b64 exec, s[40:41]
  s_mul_i32 s18, s2, {CH*4}
  s_add_u32 s19, s18, 2048
  s_add_u32 s20, s18, 4096
  s_add_u32 s21, s18, 6144
  s_add_u32 s22, s18, 8192
  s_waitcnt lgkmcnt(0)
""")
    srd(a, 24, 10, E*4)
    srd(a, 28, 8, E*4)
    for j in range(5):
        a(f"  buffer_load_dword v{10+j}, v8, s[24:27], s{18+j} offen")
    for j in range(5):
        a(f"  buffer_load_dword v{15+j}, v8, s[28:31], s{18+j} offen")
    srd(a, 32, 16, NB*BSTR, add=WS_CELL)
    srd(a, 36, 16, WS_OVF_SIZE, add=WS_OVF)
    a(f"""
  s_mov_b32 s42, {MAGIC}
  v_lshlrev_b32 v9, 6, v0
  v_add_u32 v9, {1<<18}, v9             ; (1<<18) + tid<<6
  v_mov_b32 v40, 1
  s_barrier
  s_waitcnt vmcnt(5)
""")
    stamp(a, 1)
    for j in range(5):
        a(f"""
  v_mul_u32_u24 v{20+j}, s42, v{10+j}
  v_lshrrev_b32 v{20+j}, 18, v{20+j}
  v_and_b32 v{20+j}, 0x3fc, v{20+j}      ; bucket*4
  ds_add_rtn_u32 v{25+j}, v{20+j}, v40 offset:32768""")
    a("  s_waitcnt vmcnt(0)")
    for j in range(5):
        a(f"""
  v_lshl_add_u32 v{30+j}, v{15+j}, 18, v9
  v_and_or_b32 v{30+j}, v{10+j}, 63, v{30+j}""")
        if j < 4: a(f"  v_add_u32 v9, {512<<6}, v9")
    a("  s_waitcnt lgkmcnt(0)\n  s_mov_b64 s[44:45], 0")
    for j in range(5):
        a(f"""
  v_lshlrev_b32 v{35+j}, 2, v{25+j}
  v_lshl_add_u32 v{35+j}, v{20+j}, 5, v{35+j}
  v_cmp_gt_u32 vcc, 31, v{25+j}
  s_and_saveexec_b64 s[40:41], vcc
  ds_write_b32 v{35+j}, v{30+j}
  s_mov_b64 exec, s[40:41]
  s_orn2_b64 s[44:45], s[44:45], vcc""")
    a(f"""
  s_waitcnt lgkmcnt(0)
  s_barrier
  s_cmp_eq_u64 s[44:45], 0
  s_cbranch_scc1 K1_NOOVF
  s_mul_i32 s43, s2, {OVSTR}
  s_add_u32 s43, s43, 64
  v_mov_b32 v41, {32768+1024}
  v_mov_b32 v42, 0xfffc0000""")
    for j in range(5):
        a(f"""
  v_cmp_le_u32 vcc, 31, v{25+j}
  s_and_saveexec_b64 s[40:41], vcc
  s_cbranch_execz K1_OV{j}
  ds_read_b32 v43, v{20+j} offset:32768
  v_lshlrev_b32 v44, 5, v{20+j}
  s_waitcnt lgkmcnt(0)
  v_cmp_ne_u32 vcc, 32, v43
  s_nop 1
  v_cndmask_b32 v45, v{30+j}, v42, vcc
  ds_write_b32 v44, v45 offset:124
  s_and_b64 exec, exec, vcc
  s_cbranch_execz K1_OV{j}
  ds_add_rtn_u32 v43, v41, v40
  v_mov_b32 v46, v{30+j}
  v_lshrrev_b32 v47, 2, v{20+j}
  s_waitcnt lgkmcnt(0)
  v_lshlrev_b32 v43, 3, v43
  buffer_store_dwordx2 v[46:47], v43, s[36:39], s43 offen
K1_OV{j}:
  s_mov_b64 exec, s[40:41]""")
    a(f"""
  s_waitcnt lgkmcnt(0)
K1_NOOVF:
  s_barrier
  ds_read_b128 v[12:15], v3
  ds_read_b128 v[16:19], v3 offset:8192
  ds_read_b128 v[20:23], v3 offset:16384
  ds_read_b128 v[24:27], v3 offset:24576
  v_mov_b32 v41, {32768+1024}
  ds_read_b32 v28, v41
  v_lshrrev_b32 v4, 3, v0
  s_mov_b32 s42, {BSTR}
  v_mul_u32_u24 v4, s42, v4
  v_and_b32 v5, 7, v0
  v_lshl_add_u32 v4, v5, 4, v4
  s_lshl_b32 s18, s2, 7
  s_add_u32 s19, s18, {64*BSTR}
  s_add_u32 s20, s18, {128*BSTR}
  s_add_u32 s21, s18, {192*BSTR}
  s_waitcnt lgkmcnt(4)
  buffer_store_dwordx4 v[12:15], v4, s[32:35], s18 offen
  s_waitcnt lgkmcnt(3)
  buffer_store_dwordx4 v[16:19], v4, s[32:35], s19 offen
  s_waitcnt lgkmcnt(2)
  buffer_store_dwordx4 v[20:23], v4, s[32:35], s20 offen
  s_waitcnt lgkmcnt(1)
  buffer_store_dwordx4 v[24:27], v4, s[32:35], s21 offen
  s_waitcnt lgkmcnt(0)""")
    stamp(a, 2)
    if OPT["stamp"]: a("  s_waitcnt vmcnt(0)")
    stamp(a, 3)
    stamp_out(a, 16, 0, 4, 3)
    a(f"""
  s_mul_i32 s43, s2, {OVSTR}
  v_mov_b32 v5, 0
  v_cmp_eq_u32 vcc, 0, v0
  s_and_saveexec_b64 s[40:41], vcc
  s_cbranch_execz K1_END
  buffer_store_dword v28, v5, s[36:39], s43 offen
  s_endpgm
K1_NOTBIN:
  v_and_b32 v3, 15, v2
  v_lshrrev_b32 v4, 4, v2
  s_lshl_b32 s18, s3, 5
  v_lshlrev_b32 v5, 11, v4              ; 8g*256
  v_lshl_add_u32 v5, v3, 1, v5
  v_add_u32 v5, s18, v5
  s_cmp_ge_u32 s2, {2*G}
  s_cbranch_scc1 K1_PREP
  s_sub_u32 s19, s2, {G}
  s_mul_i32 s19, s19, {80*256}
  v_lshlrev_b32 v6, 4, v0               ; piece*16
  v_lshrrev_b32 v7, 4, v0               ; row
  v_lshl_add_u32 v7, v7, 4, v6
  v_add_u32 v6, s19, v6
  v_add_u32 v20, 8192, v6
  v_add_u32 v21, 16384, v6
  s_waitcnt lgkmcnt(0)
""")
    srd(a, 24, 4, N*256)
    srd(a, 28, 12, 128*256)
    a("""
  buffer_load_dwordx4 v[8:11], v6, s[24:27], 0 offen
  buffer_load_dwordx4 v[12:15], v20, s[24:27], 0 offen
  buffer_load_dwordx4 v[16:19], v21, s[24:27], 0 offen""")
    wfrag_loads(a, 28, 5, 32, 44)
    srd(a, 32, 16, N*256, add=WS_P)
    a(f"""
  s_waitcnt vmcnt(34)
  ds_write_b128 v7, v[8:11]
  s_waitcnt vmcnt(33)
  ds_write_b128 v7, v[12:15] offset:{32*272}
  s_waitcnt vmcnt(32)
  s_cmp_ge_u32 s3, 4
  s_cbranch_scc1 K1_G1
  ds_write_b128 v7, v[16:19] offset:{64*272}
K1_G1:
  v_mul_u32_u24 v6, 272, v3
  v_lshl_add_u32 v6, v4, 4, v6
  v_lshlrev_b32 v7, 8, v3
  v_lshl_add_u32 v7, v4, 3, v7
  v_add_u32 v7, s18, v7
  s_waitcnt lgkmcnt(0)
  s_barrier""")
    for nt in range(5):
        for st in range(4):
            r = 64 + (nt*4+st)*4
            a(f"  ds_read_b128 {v(r,4)}, v6 offset:{nt*16*272 + st*64}")
    a("  s_waitcnt vmcnt(0)")
    stamp(a, 1)
    wfrag_pack(a, 32, 8)
    a("  s_waitcnt lgkmcnt(0)")
    a(f"  s_mov_b32 s42, {NLOG2E}\n  s_mov_b32 s43, {NLOG2E}")
    for nt in range(5):
        for st in range(4):
            r = 64 + (nt*4+st)*4
            c = "0" if st == 0 else v(32+4*nt, 4)
            a(f"  v_mfma_f32_16x16x32_bf16 {v(32+4*nt,4)}, {v(8+4*st,4)}, {v(r,4)}, {c}")
    a("  s_nop 7\n  s_nop 1")
    for nt in range(5):
        d = 32 + 4*nt
        a(f"""
  v_pk_mul_f32 {v(d,2)}, {v(d,2)}, s[42:43]
  v_pk_mul_f32 {v(d+2,2)}, {v(d+2,2)}, s[42:43]
  v_cvt_pk_bf16_f32 v{56+2*nt}, v{d}, v{d+1}
  v_cvt_pk_bf16_f32 v{57+2*nt}, v{d+2}, v{d+3}
  s_add_u32 s20, s19, {nt*4096}
  buffer_store_dwordx2 {v(56+2*nt,2)}, v7, s[32:35], s20 offen""")
    stamp(a, 2)
    if OPT["stamp"]: a("  s_waitcnt vmcnt(0)")
    stamp(a, 3)
    stamp_out(a, 16, 0, 4, 3)
    a(f"""
  s_endpgm
K1_PREP:
  s_waitcnt lgkmcnt(0)""")
    srd(a, 32, 16, WF_SIZE, add=WS_WF)
    a(f"""
  s_cmp_eq_u32 s2, {2*G+3}
  s_cbranch_scc1 K1_PREP3
  s_cmp_eq_u32 s2, {2*G}
  s_cselect_b32 s28, s12, s14
  s_cselect_b32 s29, s13, s15
  s_cmp_eq_u32 s2, {2*G+1}
  s_cselect_b32 s19, 0, 32768
  s_add_u32 s28, s28, s19
  s_addc_u32 s29, s29, 0
  s_mov_b32 s30, 32768
  s_mov_b32 s31, 0x20000""")
    wfrag_loads(a, 28, 5, 32, 44)
    a(f"""
  s_sub_u32 s19, s2, {2*G}
  s_lshl_b32 s19, s19, 15
  s_lshl_b32 s20, s3, 12
  s_add_u32 s19, s19, s20
  v_lshlrev_b32 v6, 4, v2
  s_waitcnt vmcnt(0)""")
    wfrag_pack(a, 32, 8)
    for st in range(4):
        a(f"  buffer_store_dwordx4 {v(8+4*st,4)}, v6, s[32:35], s19 offen offset:{st*1024}")
    a(f"""
  s_endpgm
K1_PREP3:
  s_cmp_ge_u32 s3, 4
  s_cbranch_scc1 K1_END""")
    srd(a, 28, 12, 16*256, add=256*256)
    a(f"""
  v_and_b32 v3, 31, v2
  v_lshrrev_b32 v4, 5, v2
  v_lshlrev_b32 v5, 11, v4
  v_lshl_add_u32 v5, v3, 1, v5
  s_lshl_b32 s18, s3, 6""")
    for jj in range(8):
        a(f"  buffer_load_ushort v{8+jj}, v5, s[28:31], s18 offen offset:{jj*256}")
    a(f"  s_mov_b32 s42, {NLOG2E}\n  v_lshlrev_b32 v6, 4, v2\n  s_lshl_b32 s19, s3, 10\n  s_waitcnt vmcnt(0)")
    for jj in range(8):
        a(f"  v_lshlrev_b32 v{8+jj}, 16, v{8+jj}\n  v_mul_f32 v{8+jj}, s42, v{8+jj}")
    for i in range(4):
        a(f"  v_cvt_pk_bf16_f32 v{16+i}, v{8+2*i}, v{9+2*i}")
    for i in range(4):
        a(f"""
  v_lshlrev_b32 v24, 16, v{16+i}
  v_and_b32 v25, 0xffff0000, v{16+i}
  v_sub_f32 v24, v{8+2*i}, v24
  v_sub_f32 v25, v{9+2*i}, v25
  v_cvt_pk_bf16_f32 v{20+i}, v24, v25""")
    a(f"""
  s_add_u32 s20, s19, {WF_3H}
  s_add_u32 s21, s19, {WF_3L}
  buffer_store_dwordx4 v[16:19], v6, s[32:35], s20 offen
  buffer_store_dwordx4 v[20:23], v6, s[32:35], s21 offen
K1_END:
  s_endpgm
""")
    return a.text(), 144

CAPB = 68
L_ENT = 0
L_GN = (CAPB + 1) * 256
L_CNT = L_GN + (CAPB + 17) * 32
L_FLG = L_CNT + 256
L_ACC = L_FLG + 32
AS = 1040
L_Q = L_ACC + 40 * AS
QS = 320
L_X = L_Q + 40 * QS
XS = 272
L_STG = L_X + 40 * XS
STG = 8 * 1040 + 1024
K2_LDS = L_STG + 8 * STG
PADS, PADE = 0x8000003f, 0x80000000

def gen_k2():
    a = Asm()
    R = Regs(1)
    al = R.alloc
    vl = al("lane")
    t0 = al("t", 8, 2); t1, t2, t3, t4, t5, t6, t7 = range(t0+1, t0+8)
    vchunk = al("vchunk"); vechunk = al("vechunk")
    vent = al("vent"); vrow = al("vrow"); vgq = al("vgq"); vga = al("vga")
    vAlo = al("Alo"); vAhi = al("Ahi"); vEF = al("vEF")
    vqlane = al("vqlane"); vacl = al("vacl"); vxb = al("vxb")
    vebase = al("vebase"); vone = al("vone")
    vqa = al("vqa"); vsrow = al("vsrow"); vgn1 = al("vgn1")
    ENT = al("ENT", 2, 2)
    MAC = al("MAC", 2, 2)
    PAT = al("PAT", 2, 2)
    nq = 2 if OPT["k8"] else 4
    AQ = al("AQ", nq, 2)
    GN = al("GN", 4, 2); AD = al("AD", 4)
    DO = al("DO", 2)
    I0 = al("I0", 4, 2); I1 = al("I1", 4, 2)
    W3 = al("W3", 16, 2)
    W3L = al("W3L", 16, 2) if OPT["lo"] else None
    BQ = al("BQ", 4*nq, 2)
    EF = al("EF", 4, 2)
    PF = al("PF", 32, 2)
    D0 = al("D0", 16, 2); D1 = al("D1", 16, 2)
    EA = al("EA", 8, 2); TA = al("TA", 8, 2); EB = al("EB", 8, 2); TB = al("TB", 8, 2)
    RA = al("RA", 2, 2); RB = al("RB", 2, 2)
    SA = al("SA", 2, 2); SB = al("SB", 2, 2)
    CV = al("CV", 8, 2)
    U = al("U", 12, 2); WUB = al("WUB", 16, 2)
    DUM = al("DUM", 4, 2)
    REC = D0
    NOD = D0 + 8
    RNK = D1
    XL = D1 + 8
    W2F = EA
    WUT = EB
    assert TA == EA + 8 and TB == EB + 8
    XF = PF
    QD = CV
    nv = R.n
    sX, sE_, sOUT, sWS = 4, 6, 8, 10
    sW = 3
    SP, SE, SC, SW, SX, SO, SV = 12, 16, 20, 24, 28, 32, 36
    sStart, sNb, sStg, sCnt, sT, sMode, sKind, sFirst = 40, 41, 42, 43, 44, 45, 46, 47
    sAS, sQS = 48, 49
    sOV = 50
    sTmp = 54
    sEx = 64
    sK = 66
    sBad = 68
    sP = 70
    sUB = 71

    a(f"""
.globl mpnn_k2_kernel
.p2align 8
.type mpnn_k2_kernel,@function
mpnn_k2_kernel:
  s_cmp_ge_u32 s2, {NB}
  s_cbranch_scc1 K2_END""")
    stamp(a, 0)
    a(f"""
  s_load_dwordx4 s[4:7], s[0:1], 0
  s_load_dwordx2 s[8:9], s[0:1], 48
  s_load_dwordx2 s[10:11], s[0:1], 64
  v_lshrrev_b32 v{t0}, 6, v0
  v_and_b32 v{vl}, 63, v0
  s_mul_i32 s{sStart}, s2, 640013
  v_readfirstlane_b32 s{sW}, v{t0}
  s_add_u32 s{sNb}, s{sStart}, {640013+16383}
  s_add_u32 s{sStart}, s{sStart}, 16383
  s_lshr_b32 s{sStart}, s{sStart}, 14
  s_lshr_b32 s{sNb}, s{sNb}, 14
  s_min_u32 s{sNb}, s{sNb}, {N}
  s_sub_u32 s{sNb}, s{sNb}, s{sStart}
  s_mov_b32 s{sMode}, 0
  s_mov_b32 s{sKind}, 0
  s_mov_b32 s{sFirst}, 1
  s_mov_b32 s{sAS}, {AS}
  s_mov_b32 s{sQS}, {QS}
  s_mul_i32 s{sStg}, s{sW}, {STG}
  s_add_u32 s{sStg}, s{sStg}, {L_STG}
  v_lshrrev_b32 v{t1}, 2, v0
  v_and_b32 v{t2}, 3, v0
  v_lshlrev_b32 v{t2}, 4, v{t2}
  v_lshl_add_u32 v{vqa}, v{t1}, 7, v{t2}
  s_mov_b32 s{sTmp}, {CH*32}
  v_mul_u32_u24 v{vebase}, s{sTmp}, v{t1}""")
    a(f"""
  v_mov_b32 v{vone}, 1
  v_mov_b32 v{MAC}, 0
  v_mov_b32 v{MAC+1}, 0
  v_and_b32 v{t0}, 15, v{vl}                 ; l&15
  v_bfe_u32 v{t1}, v{vl}, 4, 1               ; r4&1
  v_lshlrev_b32 v{t2}, 3, v{t1}
  v_xor_b32 v{t2}, v{t0}, v{t2}
  v_lshlrev_b32 v{vchunk}, 4, v{t2}
  v_and_b32 v{t2}, 1, v{vl}
  v_xor_b32 v{t2}, v{t2}, v{t1}
  v_lshlrev_b32 v{vechunk}, 4, v{t2}
  ; vent = w*256 + (8*(l>>4) + ((l&15)>>1))*8
  v_lshrrev_b32 v{t2}, 4, v{vl}
  v_lshlrev_b32 v{t2}, 6, v{t2}
  v_lshrrev_b32 v{t4}, 1, v{t0}
  v_lshl_add_u32 v{t2}, v{t4}, 3, v{t2}
  s_lshl_b32 s{sTmp}, s{sW}, 8
  v_add_u32 v{vent}, s{sTmp}, v{t2}
  v_bfe_u32 v{t2}, v{vl}, 2, 1               ; h
  v_and_b32 v{t4}, 1, v{vl}                  ; xy
  v_lshl_add_u32 v{t5}, v{t2}, 1, v{t4}      ; r4
  v_bfe_u32 v{t6}, v{vl}, 3, 2               ; 2o + bit3
  v_bfe_u32 v{t7}, v{vl}, 1, 1
  v_lshl_add_u32 v{t6}, v{t6}, 1, v{t7}
  v_lshl_add_u32 v{t7}, v{t5}, 3, v{t6}      ; q = 8 r4 + j
  v_lshlrev_b32 v{t7}, 3, v{t7}
  v_add_u32 v{vrow}, s{sTmp}, v{t7}
  v_lshrrev_b32 v{t7}, 5, v{vl}              ; hh
  ; A addresses
  v_mul_u32_u24 v{vAlo}, 1040, v{t6}
  v_lshl_add_u32 v{vAlo}, v{t5}, 8, v{vAlo}
  v_lshl_add_u32 v{vAlo}, v{t7}, 4, v{vAlo}
  v_add_u32 v{vAlo}, s{sStg}, v{vAlo}
  v_xor_b32 v{vAhi}, 1, v{t4}
  v_lshl_add_u32 v{vAhi}, v{vAhi}, 7, v{vAlo}
  v_lshl_add_u32 v{vAlo}, v{t4}, 7, v{vAlo}
  v_xor_b32 v{vEF}, v{t7}, v{t4}
  v_lshl_add_u32 v{vEF}, v{t6}, 1, v{vEF}
  v_lshl_add_u32 v{vEF}, v{t5}, 4, v{vEF}
  v_lshlrev_b32 v{vEF}, 4, v{vEF}
  s_add_u32 s{sTmp+1}, s{sStg}, 8320
  v_add_u32 v{vEF}, s{sTmp+1}, v{vEF}
  v_bfe_u32 v{t5}, v{vl}, 4, 1               ; o
  v_lshlrev_b32 v{t5}, 4, v{t5}
  v_mov_b32 v{t6}, 0x3f80
  v_lshlrev_b32 v{t5}, v{t5}, v{t6}
  v_cmp_eq_u32 vcc, v{t7}, v{t2}
  s_nop 1
  v_cndmask_b32 v{t5}, 0, v{t5}, vcc
  v_cmp_eq_u32 vcc, 0, v{t4}
  s_nop 1
  v_cndmask_b32 v{PAT}, 0, v{t5}, vcc
  v_cndmask_b32 v{PAT+1}, v{t5}, 0, vcc
  s_lshl_b32 s{sTmp}, s{sW}, 5
  s_add_u32 s{sTmp}, s{sTmp}, {L_GN}
  v_lshlrev_b32 v{vga}, 4, v{t7}
  v_add_u32 v{vga}, s{sTmp}, v{vga}
  v_and_b32 v{t2}, 12, v{vl}
  v_add_u32 v{vgq}, v{vga}, v{t2}
  v_and_b32 v{t2}, 3, v{vl}
  v_lshlrev_b32 v{t2}, 3, v{t2}
  v_lshl_add_u32 v{t2}, v{t1}, 5, v{t2}
  v_add_u32 v{vqlane}, {L_Q}, v{t2}
  v_and_b32 v{t2}, 31, v{vl}
  v_lshlrev_b32 v{t4}, 3, v{t2}
  v_add_u32 v{vacl}, {L_ACC}, v{t4}
  v_mul_u32_u24 v{vxb}, {XS}, v{t0}
  v_lshrrev_b32 v{t4}, 4, v{vl}
  v_lshl_add_u32 v{vxb}, v{t4}, 4, v{vxb}
  v_add_u32 v{vxb}, {L_X}, v{vxb}
  v_and_b32 v{t4}, 1, v{vl}
  v_lshlrev_b32 v{t4}, 4, v{t4}
  v_lshlrev_b32 v{t4}, v{t4}, v{t6}
  v_bfe_u32 v{t5}, v{vl}, 1, 4               ; (n>>1) = 4*(n>>3) + reg
  v_lshlrev_b32 v{t7}, 2, v{t7}
  v_sub_u32 v{t5}, v{t5}, v{t7}""")
    for i in range(4):
        a(f"  v_cmp_eq_u32 vcc, {i}, v{t5}\n  s_nop 1\n  v_cndmask_b32 v{I0+i}, 0, v{t4}, vcc")
        a(f"  v_cmp_eq_u32 vcc, {8+i}, v{t5}\n  s_nop 1\n  v_cndmask_b32 v{I1+i}, 0, v{t4}, vcc")
    if not OPT["k8"]:
        a(f"  v_mov_b32 v{AQ+2}, 0\n  v_mov_b32 v{AQ+3}, 0")
        for t in range(4):
            a(f"  v_mov_b32 v{BQ+4*t+2}, 0\n  v_mov_b32 v{BQ+4*t+3}, 0")
    a(f"""
  v_lshlrev_b32 v{t3}, 4, v0            ; tid*16
  v_lshlrev_b32 v{t4}, 4, v{vl}         ; lane*16
  s_mul_i32 s{sTmp}, s2, {BSTR}
  s_lshl_b32 s{sTmp+1}, s{sStart}, 8
  s_lshl_b32 s{sTmp+2}, s{sNb}, 8
  s_lshl_b32 s{sTmp+3}, s{sW}, 12
  s_waitcnt lgkmcnt(0)""")
    srd(a, SC, sWS, BSTR, add=WS_CELL, addreg=sTmp)
    a(f"""
  buffer_load_dwordx4 {v(REC,4)}, v{vqa}, {s(SC,4)}, 0 offen
  buffer_load_dwordx4 {v(REC+4,4)}, v{vqa}, {s(SC,4)}, 0 offen offset:64""")
    srd(a, SX, sX, f"s{sTmp+2}", addreg=sTmp+1)
    a(f"""
  v_add_u32 v{t5}, 8192, v{t3}
  buffer_load_dwordx4 {v(XL,4)}, v{t3}, {s(SX,4)}, 0 offen
  buffer_load_dwordx4 {v(XL+4,4)}, v{t5}, {s(SX,4)}, 0 offen""")
    srd(a, SW, sWS, WF_SIZE, add=WS_WF)
    a(f"  s_add_u32 s{sTmp+4}, s{sTmp+3}, {WF_UT}\n  s_add_u32 s{sUB}, s{sTmp+3}, {WF_UB}\n  s_mov_b32 s{sTmp+6}, {WF_3H}\n  s_mov_b32 s{sTmp+7}, {WF_3L}")
    nld = 4
    for st in range(4):
        a(f"  buffer_load_dwordx4 {v(W2F+4*st,4)}, v{t4}, {s(SW,4)}, s{sTmp+3} offen offset:{st*1024}")
    srd(a, SP, sWS, (N+1)*256, add=WS_P-256 if WS_P != 256 else 0)
    srd(a, SE, sE_, E*32)
    srd(a, SO, sOUT, f"s{sTmp+2}", addreg=sTmp+1)
    srd(a, SV, sWS, WS_OVF_SIZE, add=WS_OVF)
    a(f"""
  v_mov_b32 v{CV}, 0
  v_mov_b32 v{CV+1}, 0
  v_mov_b32 v{CV+2}, 0
  v_mov_b32 v{CV+3}, 0""")
    for j in range(6):
        a(f"  ds_write_b128 v{t3}, {v(CV,4)} offset:{L_GN + j*8192}")
    def prefill():
        a(f"""
  v_mov_b32 v{CV+4}, {PADS}
  v_mov_b32 v{CV+5}, {PADE}
  v_mov_b32 v{CV+6}, {PADS}
  v_mov_b32 v{CV+7}, {PADE}
  ds_write_b128 v{t3}, {v(CV+4,4)}
  ds_write_b128 v{t3}, {v(CV+4,4)} offset:8192
  v_cmp_gt_u32 vcc, {(L_GN-16384)//16}, v0
  s_and_saveexec_b64 {s(sEx,2)}, vcc
  ds_write_b128 v{t3}, {v(CV+4,4)} offset:16384
  s_mov_b64 exec, {s(sEx,2)}""")
    prefill()

    for st in range(4):
        a(f"  buffer_load_dwordx4 {v(WUT+4*st,4)}, v{t4}, {s(SW,4)}, s{sTmp+4} offen offset:{st*1024}")
    for st in range(4):
        a(f"  buffer_load_dwordx4 {v(W3+4*st,4)}, v{t4}, {s(SW,4)}, s{sTmp+6} offen offset:{st*1024}")
    nld += 12
    if OPT["lo"]:
        for st in range(4):
            a(f"  buffer_load_dwordx4 {v(W3L+4*st,4)}, v{t4}, {s(SW,4)}, s{sTmp+7} offen offset:{st*1024}")
        nld += 4
    npf = 0
    if OPT["pfE"]:
        a(f"  s_mul_i32 s{sTmp}, s2, 40000\n  v_lshlrev_b32 v{t5}, 7, v0\n  v_add_u32 v{t5}, s{sTmp}, v{t5}")
        a(f"  v_cmp_gt_u32 vcc, 320, v0\n  s_nop 1\n  v_cndmask_b32 v{t5}, -1, v{t5}, vcc")
        a(f"  buffer_load_dword v{DUM}, v{t5}, {s(SE,4)}, 0 offen")
        npf += 1
    if OPT["pfP"]:
        a(f"  s_lshr_b32 s{sTmp}, s2, 3\n  s_mul_i32 s{sTmp}, s{sTmp}, 81920\n  v_lshlrev_b32 v{t5}, 7, v0\n  v_add_u32 v{t5}, s{sTmp}, v{t5}")
        a(f"  buffer_load_dword v{DUM}, v{t5}, {s(SP,4)}, 0 offen\n  v_add_u32 v{t5}, 65536, v{t5}")
        a(f"  v_cmp_gt_u32 vcc, 128, v0\n  s_nop 1\n  v_cndmask_b32 v{t5}, -1, v{t5}, vcc")
        a(f"  buffer_load_dword v{DUM}, v{t5}, {s(SP,4)}, 0 offen")
        npf += 2
    NL = nld + npf
    a(f"""
  s_waitcnt lgkmcnt(0)
  s_barrier
  s_waitcnt vmcnt({NL-2})""")
    stamp(a, 1)
    a(f"""
K2_PHASE1:
  v_cmp_le_u32 vcc, 0xfffc0000, v{REC+7}
  s_cbranch_vccz K2_NOMARK
  s_and_saveexec_b64 {s(sEx,2)}, vcc
  v_lshrrev_b32 v{t0}, 2, v0                 ; producer
  v_lshrrev_b32 v{t1}, 5, v{t0}
  v_lshlrev_b32 v{t1}, 2, v{t1}
  v_lshlrev_b32 v{t0}, v{t0}, v{vone}
  ds_or_b32 v{t1}, v{t0} offset:{L_FLG+16}
  v_mov_b32 v{REC+7}, 0
  s_mov_b64 exec, {s(sEx,2)}
K2_NOMARK:""")
    for k in range(8):
        a(f"""
  v_and_b32 v{NOD+k}, 63, v{REC+k}
  v_cmpx_ne_u32 vcc, 0, v{REC+k}
  s_cbranch_execz K2_P1_{k}
  v_lshlrev_b32 v{NOD+k}, 2, v{NOD+k}
  ds_add_rtn_u32 v{RNK+k}, v{NOD+k}, v{vone} offset:{L_CNT}
K2_P1_{k}:
  s_mov_b64 exec, -1""")
    a(f"""
  s_cmp_eq_u32 s{sFirst}, 0
  s_cbranch_scc1 K2_NOX
  v_lshrrev_b32 v{t0}, 4, v0
  v_lshlrev_b32 v{t1}, 4, v0
  v_lshl_add_u32 v{t0}, v{t0}, 4, v{t1}
  v_add_u32 v{t0}, {L_X}, v{t0}
  s_waitcnt vmcnt({NL-4})
  ds_write_b128 v{t0}, {v(XL,4)}
  s_cmp_ge_u32 s{sW}, 2
  s_cbranch_scc1 K2_NOX
  ds_write_b128 v{t0}, {v(XL+4,4)} offset:{32*XS}
K2_NOX:
  s_waitcnt lgkmcnt(0)
  s_barrier
  v_lshlrev_b32 v{t0}, 2, v{vl}
  ds_read_b32 v{t1}, v{t0} offset:{L_CNT}
  v_subrev_u32 v{t4}, s{sStart}, v{vl}
  v_and_b32 v{t4}, 63, v{t4}
  s_waitcnt lgkmcnt(0)
  v_add_u32 v{t1}, 3, v{t1}
  v_and_b32 v{t1}, -4, v{t1}
  v_mov_b32 v{t2}, v{t1}
  s_nop 1
  v_add_u32_dpp v{t2}, v{t2}, v{t2} row_shr:1 row_mask:0xf bank_mask:0xf
  s_nop 1
  v_add_u32_dpp v{t2}, v{t2}, v{t2} row_shr:2 row_mask:0xf bank_mask:0xf
  s_nop 1
  v_add_u32_dpp v{t2}, v{t2}, v{t2} row_shr:4 row_mask:0xf bank_mask:0xf
  s_nop 1
  v_add_u32_dpp v{t2}, v{t2}, v{t2} row_shr:8 row_mask:0xf bank_mask:0xf
  s_nop 1
  v_add_u32_dpp v{t2}, v{t2}, v{t2} row_bcast:15 row_mask:0xa bank_mask:0xf
  s_nop 1
  v_add_u32_dpp v{t2}, v{t2}, v{t2} row_bcast:31 row_mask:0xc bank_mask:0xf
  s_nop 1
  v_readlane_b32 s{sT}, v{t2}, 63
  v_sub_u32 v{t1}, v{t2}, v{t1}              ; start
  s_cmp_gt_u32 s{sT}, {CAPB*32}
  s_cbranch_scc1 K2_SPLIT""")
    for k in range(4):
        a(f"  ds_bpermute_b32 v{NOD+k}, v{NOD+k}, v{t1}")
    a(f"""
  v_or3_b32 v{t3}, v{REC+4}, v{REC+5}, v{REC+6}
  v_or_b32 v{t3}, v{t3}, v{REC+7}
  v_cmp_ne_u32 vcc, 0, v{t3}
  s_cbranch_vccz K2_P2A""")
    for k in range(4, 8):
        a(f"  ds_bpermute_b32 v{NOD+k}, v{NOD+k}, v{t1}")
    a("K2_P2A:\n  s_waitcnt lgkmcnt(0)")
    for k in range(8):
        e = t6 if k % 2 == 0 else CV
        a(f"""
  v_cmpx_ne_u32 vcc, 0, v{REC+k}
  s_cbranch_execz K2_P2_{k}
  v_lshrrev_b32 v{e}, 10, v{REC+k}
  v_and_b32 v{e}, {hex(0xffffff00 if not OPT['hot'] else 0x1f00 if OPT['hot']==1 else 0x1fff00)}, v{e}
  v_bfe_u32 v{e+1}, v{REC+k}, 6, 12
  v_lshl_add_u32 v{e+1}, v{e+1}, 5, v{vebase}
  {'v_and_b32 v%d, 0xfe0, v%d' % (e+1,e+1) if OPT['hot'] else ''}
  v_add_lshl_u32 v{NOD+k}, v{NOD+k}, v{RNK+k}, 3
  ds_write_b64 v{NOD+k}, {v(e,2)}
K2_P2_{k}:
  s_mov_b64 exec, -1""")
    assert t6 % 2 == 0
    a(f"""
  v_lshrrev_b32 v{t1}, 2, v{t1}
  v_lshrrev_b32 v{t2}, 2, v{t2}
  v_add_u32 v{t1}, s{sW}, v{t1}
K2_GNL:
  v_cmpx_lt_u32 vcc, v{t1}, v{t2}
  s_cbranch_execz K2_GNE
  v_lshlrev_b32 v{t3}, 2, v{t1}
  ds_write_b32 v{t3}, v{t4} offset:{L_GN}
  v_add_u32 v{t1}, 8, v{t1}
  s_branch K2_GNL
K2_GNE:
  s_mov_b64 exec, -1
  s_add_u32 s{sT}, s{sT}, 31
  s_lshr_b32 s{sT}, s{sT}, 5
  s_add_u32 s{sCnt}, s{sT}, 7
  s_sub_u32 s{sCnt}, s{sCnt}, s{sW}
  s_lshr_b32 s{sCnt}, s{sCnt}, 3
  s_waitcnt lgkmcnt(0)
  s_barrier""")

    def dma_issue():
        L = []
        for j in range(8):
            d = DO + (j & 1)
            L.append([f"  s_add_u32 m0, s{sStg}, {j*1040}",
                      f"  v_add_u32_dpp v{d}, v{ENT}, v{vchunk} row_newbcast:{2*j} row_mask:0xf bank_mask:0xf",
                      f"  buffer_load_dwordx4 v{d}, {s(SP,4)}, 0 offen lds" if not OPT["nodma"] else "  s_nop 0"])
        L.append([f"  s_add_u32 m0, s{sStg}, 8320",
                  f"  v_add_u32 v{DO}, v{ENT+1}, v{vechunk}",
                  f"  buffer_load_dwordx4 v{DO}, {s(SE,4)}, 0 offen lds" if not (OPT["nodma"] or OPT["noe"]) else "  s_nop 0"])
        return L
    def frag_reads():
        L = []
        for st in range(8):
            L.append(f"  ds_read_b128 {v(PF+4*st,4)}, v{vAlo if st < 4 else vAhi} offset:{32*(st&3)}")
        L.insert(2, f"  ds_read_b128 {v(EF,4)}, v{vEF}")
        return L
    def bq_reads():
        return [f"  ds_read_b64_tr_b16 {v(BQ+nq*t,2)}, v{vqa} offset:{64*t}" for t in range(4)]
    def chain(t, D):
        L = [f"  v_mfma_f32_32x32x16_bf16 {v(D,16)}, {v(EF,4)}, {v(W3+4*t,4)}, 0"]
        if OPT["lo"]:
            L.append(f"  v_mfma_f32_32x32x16_bf16 {v(D,16)}, {v(EF,4)}, {v(W3L+4*t,4)}, {v(D,16)}")
        L.append(f"  v_mfma_f32_32x32x16_bf16 {v(D,16)}, {v(PF+8*t,4)}, {v(I0,4)}, {v(D,16)}")
        L.append(f"  v_mfma_f32_32x32x16_bf16 {v(D,16)}, {v(PF+8*t+4,4)}, {v(I1,4)}, {v(D,16)}")
        if OPT["k8"]:
            L.append(f"  v_mfma_f32_32x32x8bf16_1k {v(D,16)}, {v(AQ,2)}, {v(BQ+2*t,2)}, {v(D,16)}")
        else:
            L.append(f"  v_mfma_f32_32x32x16_bf16 {v(D,16)}, {v(AQ,4)}, {v(BQ+4*t,4)}, {v(D,16)}")
        return L

    stamp(a, 2)
    a(f"  ds_read_b64 {v(ENT,2)}, v{vent}\n  s_waitcnt lgkmcnt(0)")
    for x in dma_issue(): a("\n".join(x))
    a(f"  ds_read_b64 {v(ENT,2)}, v{vent} offset:2048")
    a(f"""
  s_cmp_eq_u32 s{sFirst}, 0
  s_cbranch_scc1 K2_NOGEMM0
  s_mov_b32 s{sFirst}, 0
  s_mov_b32 s{sK}, {NLOG2E}
  s_mov_b32 s{sK+1}, {NLOG2E}
  s_waitcnt vmcnt({NL-12+(0 if OPT['nodma'] else 8 if OPT['noe'] else 9)})""")
    a(f"""
  v_and_b32 v{t0}, 15, v{vl}
  v_mul_u32_u24 v{t0}, {QS}, v{t0}
  v_lshrrev_b32 v{t1}, 4, v{vl}
  v_lshl_add_u32 v{t0}, v{t1}, 3, v{t0}
  s_lshl_b32 s{sTmp}, s{sW}, 5
  s_add_u32 s{sTmp}, s{sTmp}, {L_Q}
  v_add_u32 v{t0}, s{sTmp}, v{t0}""")
    for nt in range(3):
        xf = XF + 16*(nt & 1)
        for st in range(4):
            a(f"  ds_read_b128 {v(xf+4*st,4)}, v{vxb} offset:{nt*16*XS + st*64}")
        a("  s_waitcnt lgkmcnt(0)")
        for st in range(4):
            c = "0" if st == 0 else v(QD, 4)
            a(f"  v_mfma_f32_16x16x32_bf16 {v(QD,4)}, {v(W2F+4*st,4)}, {v(xf+4*st,4)}, {c}")
        for st in range(4):
            c = "0" if st == 0 else v(U+4*nt, 4)
            a(f"  v_mfma_f32_16x16x32_bf16 {v(U+4*nt,4)}, {v(WUT+4*st,4)}, {v(xf+4*st,4)}, {c}")
        a(f"""
  s_nop 4
  v_pk_mul_f32 {v(QD,2)}, {v(QD,2)}, {s(sK,2)}
  v_pk_mul_f32 {v(QD+2,2)}, {v(QD+2,2)}, {s(sK,2)}
  v_cvt_pk_bf16_f32 v{QD+4}, v{QD}, v{QD+1}
  v_cvt_pk_bf16_f32 v{QD+5}, v{QD+2}, v{QD+3}""")
        if nt == 2:
            a(f"  v_and_b32 v{t1}, 8, v{vl}\n  v_cmpx_eq_u32 vcc, 0, v{t1}")
        a(f"  ds_write_b64 v{t0}, {v(QD+4,2)} offset:{nt*16*QS}")
        if nt == 2:
            a("  s_mov_b64 exec, -1")
        a("  s_nop 4")
    a(f"""
  v_lshlrev_b32 v{t4}, 4, v{vl}""")
    for st in range(4):
        a(f"  buffer_load_dwordx4 {v(WUB+4*st,4)}, v{t4}, {s(SW,4)}, s{sUB} offen offset:{st*1024}")
    a(f"""
  s_waitcnt lgkmcnt(0)
  s_barrier
K2_NOGEMM:
  ds_read_b32 v{vgn1}, v{vgq}
  ds_read_b32 v{vsrow}, v{vrow}
  ds_read_b128 {v(GN,4)}, v{vga}
  s_waitcnt vmcnt(4)""")
    stamp(a, 3, 72)
    if OPT["stamp"]: a("  s_waitcnt lgkmcnt(0)")
    for x in frag_reads(): a(x)
    a(f"""
  s_waitcnt lgkmcnt(9)
  v_mad_u32_u24 v{vqa}, v{vgn1}, s{sQS}, v{vqlane}
  v_lshrrev_b64 {v(AQ,2)}, v{vsrow}, {v(PAT,2)}""")
    for x in bq_reads(): a(x)
    a("  s_waitcnt lgkmcnt(0)")
    for x in dma_issue(): a("\n".join(x))
    for x in chain(0, D0): a(x)
    a(f"""
  s_nop 7
  s_nop 3
  s_cmp_eq_u32 s{sCnt}, 0
  s_cbranch_scc1 K2_LOOPEND
  s_cmp_lg_u32 s{sMode}, 0
  s_cbranch_scc1 K2_SAFE""")

    def p(r): return v(r, 2)
    def octet_fast(d, e, t, r, sres):
        ex = [f"  v_exp_f32 v{e+i}, v{d+i}" for i in range(8)]
        L = [f"  v_pk_add_f32 {p(t)}, {p(e)}, 1.0 op_sel_hi:[1,0]",
             f"  v_pk_add_f32 {p(t+2)}, {p(e+4)}, 1.0 op_sel_hi:[1,0]",
             f"  v_pk_fma_f32 {p(t+4)}, {p(d)}, {p(e+2)}, {p(d)}",
             f"  v_pk_fma_f32 {p(t+6)}, {p(d+4)}, {p(e+6)}, {p(d+4)}",
             f"  v_pk_fma_f32 {p(e)}, {p(t)}, {p(e+2)}, {p(t)}",
             f"  v_pk_fma_f32 {p(e+4)}, {p(t+2)}, {p(e+6)}, {p(t+2)}",
             f"  v_pk_fma_f32 {p(t+4)}, {p(d+2)}, {p(t)}, {p(t+4)}",
             f"  v_pk_fma_f32 {p(t+6)}, {p(d+6)}, {p(t+2)}, {p(t+6)}",
             f"  v_pk_mul_f32 {p(t)}, {p(e)}, {p(e+4)}",
             f"  v_pk_mul_f32 {p(t+4)}, {p(t+4)}, {p(e+4)}",
             f"  v_rcp_f32 v{r}, v{t}",
             f"  v_rcp_f32 v{r+1}, v{t+1}",
             f"  v_pk_fma_f32 {p(t+4)}, {p(t+6)}, {p(e)}, {p(t+4)}",
             f"  v_pk_mul_f32 {p(sres)}, {p(t+4)}, {p(r)}"]
        return ex, L
    def octet_safe(d, e, t, r, sres):
        ex = [f"  v_exp_f32 v{e+i}, v{d+i}" for i in range(8)]
        L = [f"  v_pk_add_f32 {p(e+2*i)}, {p(e+2*i)}, 1.0 op_sel_hi:[1,0]" for i in range(4)]
        L += [f"  v_rcp_f32 v{t+i}, v{e+i}" for i in range(8)]
        L += [f"  v_pk_mul_f32 {p(sres)}, {p(d)}, {p(t)}"]
        L += [f"  v_pk_fma_f32 {p(sres)}, {p(d+2*i)}, {p(t+2*i)}, {p(sres)}" for i in range(1, 4)]
        return ex, L
    def zipl(x, y):
        o = []
        for i in range(max(len(x), len(y))):
            if i < len(x): o.append(x[i])
            if i < len(y): o.append(y[i])
        return o

    def loop(safe):
        lab = "K2_SAFE" if safe else "K2_FAST"
        oc = octet_safe if safe else octet_fast
        a(f".p2align 6\n{lab}:")
        for t in range(4):
            D = D0 if t % 2 == 0 else D1
            Dn = D1 if t % 2 == 0 else D0
            exa, La = oc(D, EA, TA, RA, SA)
            exb, Lb = oc(D+8, EB, TB, RB, SB)
            ex = exa + exb
            ch = chain((t+1) % 4, Dn)
            pk = zipl(La, Lb)
            if not safe:
                idx = max(i for i, x in enumerate(pk) if x.startswith(f"  v_pk_mul_f32 {p(TB)}, {p(EB)}"))
                pk.insert(idx+1, f"  v_pk_fma_f32 {p(MAC)}, {p(TA)}, {p(TB)}, {p(MAC)}")
            fin = []
            for o, S in ((0, SA), (1, SB)):
                for xy in range(2):
                    c = CV + 2*(2*o+xy)
                    fin.append(f"  v_cvt_f64_f32 {v(c,2)}, v{S+xy}")
            for o in range(2):
                for xy in range(2):
                    c = CV + 2*(2*o+xy)
                    fin.append(f"  ds_add_f64 v{AD+2*xy+o}, {v(c,2)} offset:{256*t}" if not OPT["noadd"] else f"  ds_read_b32 v{DUM}, v{vgq}")
            head = []
            per = 16 // len(ch)
            e = 0
            pre = []
            if t == 0:
                pre = [f"  v_mad_u32_u24 v{AD+i}, v{GN+i}, s{sAS}, v{vacl}" for i in range(4)]
                pk = pk[:4] + pre + pk[4:]
            if t == 2:
                a(f"  ds_read_b64 {v(ENT,2)}, v{vent} offset:4096")
                a(f"  ds_read_b32 v{vgn1}, v{vgq} offset:256")
                a(f"  ds_read_b32 v{vsrow}, v{vrow} offset:2048")
                a(f"  ds_read_b128 {v(GN,4)}, v{vga} offset:256")
            if t == 3:
                a("  s_waitcnt lgkmcnt(4)")
            dma = dma_issue() if t == 3 else []
            for i, m in enumerate(ch):
                head.append(m)
                n = per if i < len(ch)-1 else 16 - e
                for x in ex[e:e+n]:
                    head.append(x)
                    if dma and (len(head) % 2 == 0):
                        head += dma.pop(0)
                e += n
            for x in dma: head += x
            for x in head: a(x)
            if t == 2:
                mid = [f"  s_waitcnt vmcnt(0) lgkmcnt(0)",
                       f"  v_mad_u32_u24 v{vqa}, v{vgn1}, s{sQS}, v{vqlane}",
                       f"  v_lshrrev_b64 {v(AQ,2)}, v{vsrow}, {v(PAT,2)}"]
                rd = frag_reads() + bq_reads()
                body = pk[:6] + mid + zipl(pk[6:], rd)
                for x in body: a(x)
            elif t == 3:
                inc = [f"  v_add_u32 v{vent}, 2048, v{vent}", f"  v_add_u32 v{vrow}, 2048, v{vrow}",
                       f"  v_add_u32 v{vgq}, 256, v{vgq}", f"  v_add_u32 v{vga}, 256, v{vga}"]
                for x in pk[:4] + inc + pk[4:]: a(x)
            else:
                for x in pk: a(x)
            for x in fin: a(x)
        a(f"""
  s_sub_u32 s{sCnt}, s{sCnt}, 1
  s_cmp_lg_u32 s{sCnt}, 0
  s_cbranch_scc1 {lab}""")
    loop(False)
    a(f"""
K2_LOOPEND:""")
    stamp(a, 4)
    a(f"""
  s_waitcnt vmcnt(0) lgkmcnt(0)
  s_barrier""")
    stamp(a, 5, 74)
    if OPT["stamp"]: a("  s_waitcnt lgkmcnt(0)")
    a(f"""
  s_cmp_eq_u32 s{sKind}, 1
  s_cbranch_scc1 K2_HALF1
  s_cmp_eq_u32 s{sKind}, 3
  s_cbranch_scc1 K2_OVPART1
  s_cmp_eq_u32 s{sKind}, 4
  s_cbranch_scc1 K2_NEXTOV
  v_mov_b32 v{t0}, {L_FLG+16}
  ds_read_b128 {v(CV,4)}, v{t0}
K2_CONV:
  s_mul_i32 s{sTmp}, s{sW}, {AS}
  s_add_u32 s{sTmp}, s{sTmp}, {L_ACC}
  v_lshlrev_b32 v{t1}, 4, v{vl}
  v_add_u32 v{t1}, s{sTmp}, v{t1}""")
    for k in range(5):
        a(f"  ds_read_b128 {v(D0+4*k,4)}, v{t1} offset:{k*8*AS}")
    a(f"""
  s_mul_i32 s{sTmp}, s{sW}, {XS}
  s_add_u32 s{sTmp}, s{sTmp}, {L_X}
  v_lshlrev_b32 v{t2}, 2, v{vl}
  v_add_u32 v{t2}, s{sTmp}, v{t2}
  s_cmp_ge_u32 s{sKind}, 3
  s_cbranch_scc1 K2_CONV2
  s_waitcnt lgkmcnt(5)
  v_or3_b32 v{t0}, v{CV}, v{CV+1}, v{CV+2}
  v_or_b32 v{t0}, v{t0}, v{CV+3}
  v_cmp_ne_u32 vcc, 0, v{t0}
  s_cbranch_vccnz K2_STARTOV
K2_CONV2:
  s_mov_b32 s{sTmp}, 0x71800000              ; 2^100
  v_cmp_nle_f32 {s(sBad,2)}, v{MAC}, s{sTmp}
  v_cmp_nle_f32 vcc, v{MAC+1}, s{sTmp}
  s_or_b64 {s(sBad,2)}, {s(sBad,2)}, vcc
  s_movk_i32 s{sTmp}, 0x207""")
    for k in range(5):
        a(f"""
  s_waitcnt lgkmcnt({4-k})
  v_cvt_f32_f64 v{EA+2*k}, {v(D0+4*k,2)}
  v_cvt_f32_f64 v{EA+2*k+1}, {v(D0+4*k+2,2)}
  v_cmp_class_f32 vcc, v{EA+2*k}, s{sTmp}
  s_or_b64 {s(sBad,2)}, {s(sBad,2)}, vcc
  v_cmp_class_f32 vcc, v{EA+2*k+1}, s{sTmp}
  s_or_b64 {s(sBad,2)}, {s(sBad,2)}, vcc
  v_cvt_pk_bf16_f32 v{EB+k}, v{EA+2*k}, v{EA+2*k+1}""")
    for k in range(5):
        a(f"  ds_write_b32 v{t2}, v{EB+k} offset:{k*8*XS}")
    a(f"""
  s_cmp_eq_u64 {s(sBad,2)}, 0
  s_cbranch_scc1 K2_OKW
  v_mov_b32 v{t0}, {L_FLG}
  ds_write_b32 v{t0}, v{vone}
K2_OKW:
  s_waitcnt lgkmcnt(0)
  s_barrier
  v_mov_b32 v{t0}, {L_FLG}
  ds_read_b32 v{t0}, v{t0}""")
    for nt in range(2):
        for st in range(4):
            a(f"  ds_read_b128 {v(XF+16*nt+4*st,4)}, v{vxb} offset:{nt*16*XS + st*64}")
    a(f"""
  s_waitcnt lgkmcnt(8)
  v_readfirstlane_b32 s{sTmp}, v{t0}
  s_cmp_gt_u32 s{sTmp}, s{sMode}
  {"s_cbranch_scc1 K2_RESTART" if not (OPT["nodma"] or OPT["noe"] or OPT["noadd"] or OPT["hot"]) else "s_nop 0"}
  s_waitcnt lgkmcnt(4)""")
    for st in range(4):
        c = "0" if st == 0 else v(D0, 4)
        a(f"  v_mfma_f32_16x16x32_bf16 {v(D0,4)}, {v(WUB+4*st,4)}, {v(XF+4*st,4)}, {c}")
    for st in range(4):
        a(f"  ds_read_b128 {v(D1+4*st,4)}, v{vxb} offset:{2*16*XS + st*64}")
    a("  s_waitcnt lgkmcnt(4)")
    for st in range(4):
        c = "0" if st == 0 else v(D0+4, 4)
        a(f"  v_mfma_f32_16x16x32_bf16 {v(D0+4,4)}, {v(WUB+4*st,4)}, {v(XF+16+4*st,4)}, {c}")
    a("  s_waitcnt lgkmcnt(0)")
    for st in range(4):
        c = "0" if st == 0 else v(D0+8, 4)
        a(f"  v_mfma_f32_16x16x32_bf16 {v(D0+8,4)}, {v(WUB+4*st,4)}, {v(D1+4*st,4)}, {c}")
    a(f"""
  s_mov_b32 s{sK}, {NLN2}
  s_mov_b32 s{sK+1}, {NLN2}
  s_mov_b32 s{sTmp}, {NLOG2E}
  s_mov_b32 s{sTmp+1}, {NLOG2E}
  v_and_b32 v{t0}, 15, v{vl}
  v_lshlrev_b32 v{t0}, 8, v{t0}
  v_lshrrev_b32 v{t1}, 4, v{vl}
  v_lshl_add_u32 v{t0}, v{t1}, 3, v{t0}
  s_lshl_b32 s{sTmp+2}, s{sW}, 5
  v_add_u32 v{t0}, s{sTmp+2}, v{t0}
  v_add_u32 v{t1}, 4096, v{t0}
  v_add_u32 v{t2}, 8192, v{t0}""")
    for nt in range(3):
        d = D0 + 4*nt
        a(f"""
  v_pk_fma_f32 {p(d)}, {p(d)}, {s(sK,2)}, {p(U+4*nt)}
  v_pk_fma_f32 {p(d+2)}, {p(d+2)}, {s(sK,2)}, {p(U+4*nt+2)}
  v_pk_mul_f32 {p(EA)}, {p(d)}, {s(sTmp,2)}
  v_pk_mul_f32 {p(EA+2)}, {p(d+2)}, {s(sTmp,2)}""")
        for i in range(4): a(f"  v_exp_f32 v{EA+i}, v{EA+i}")
        a(f"  s_nop 0\n  v_pk_add_f32 {p(EA)}, {p(EA)}, 1.0 op_sel_hi:[1,0]\n  v_pk_add_f32 {p(EA+2)}, {p(EA+2)}, 1.0 op_sel_hi:[1,0]")
        for i in range(4): a(f"  v_rcp_f32 v{EA+i}, v{EA+i}")
        a(f"""
  s_nop 0
  v_pk_mul_f32 {p(d)}, {p(d)}, {p(EA)}
  v_pk_mul_f32 {p(d+2)}, {p(d+2)}, {p(EA+2)}
  v_cvt_pk_bf16_f32 v{EB+2*nt}, v{d}, v{d+1}
  v_cvt_pk_bf16_f32 v{EB+2*nt+1}, v{d+2}, v{d+3}
  buffer_store_dwordx2 {v(EB+2*nt,2)}, v{t0+nt}, {s(SO,4)}, 0 offen""")
    stamp(a, 6)
    if OPT["stamp"]: a("  s_waitcnt vmcnt(0)")
    stamp(a, 7)
    stamp_out(a, sWS, 1, 8, sW)
    a(f"""
K2_END:
  s_endpgm
""")
    loop(True)
    a("  s_branch K2_LOOPEND")
    a(f"""
K2_NOGEMM0:
  s_waitcnt vmcnt(0)
  s_branch K2_NOGEMM
K2_RESTART:
  s_mov_b32 s{sMode}, 1
  s_mov_b32 s{sKind}, 0
  s_waitcnt lgkmcnt(0)
  s_barrier
  v_lshlrev_b32 v{t3}, 4, v0
  v_mov_b32 v{CV}, 0
  v_mov_b32 v{CV+1}, 0
  v_mov_b32 v{CV+2}, 0
  v_mov_b32 v{CV+3}, 0""")
    for j in range(5):
        a(f"  ds_write_b128 v{t3}, {v(CV,4)} offset:{L_ACC + j*8192}")
    a(f"""
  v_cmp_gt_u32 vcc, {(40*AS-5*8192)//16}, v0
  s_and_saveexec_b64 {s(sEx,2)}, vcc
  ds_write_b128 v{t3}, {v(CV,4)} offset:{L_ACC + 5*8192}
  s_mov_b64 exec, {s(sEx,2)}
  s_branch K2_RELOAD
K2_SPLIT:
  s_mov_b32 s{sKind}, 1
  s_waitcnt lgkmcnt(0)
  s_barrier
  s_branch K2_RELOAD
K2_HALF1:
  s_mov_b32 s{sKind}, 2
K2_RELOAD:
  v_lshrrev_b32 v{t1}, 2, v0
  v_and_b32 v{t2}, 3, v0
  v_lshlrev_b32 v{t2}, 4, v{t2}
  v_lshl_add_u32 v{t2}, v{t1}, 7, v{t2}
  s_mov_b32 s{sTmp}, {CH*32}
  v_mul_u32_u24 v{vebase}, s{sTmp}, v{t1}
  s_waitcnt vmcnt(0)
  buffer_load_dwordx4 {v(REC,4)}, v{t2}, {s(SC,4)}, 0 offen
  buffer_load_dwordx4 {v(REC+4,4)}, v{t2}, {s(SC,4)}, 0 offen offset:64
  s_waitcnt vmcnt(0)
  s_cmp_eq_u32 s{sKind}, 0
  s_cbranch_scc1 K2_ROUND
  s_cmp_lt_u32 s{sW}, 4
  s_cselect_b32 s{sTmp}, 1, 2
  s_cmp_eq_u32 s{sTmp}, s{sKind}
  s_cbranch_scc1 K2_ROUND""")
    for k in range(8): a(f"  v_mov_b32 v{REC+k}, 0")
    a(f"""
K2_ROUND:
  v_lshlrev_b32 v{t3}, 4, v0
  v_mov_b32 v{CV}, 0
  v_mov_b32 v{CV+1}, 0
  v_mov_b32 v{CV+2}, 0
  v_mov_b32 v{CV+3}, 0
  v_cmp_gt_u32 vcc, {(L_FLG-L_GN)//16}, v0
  s_and_saveexec_b64 {s(sEx,2)}, vcc
  ds_write_b128 v{t3}, {v(CV,4)} offset:{L_GN}
  s_mov_b64 exec, {s(sEx,2)}""")
    prefill()
    a(f"""
  v_and_b32 v{vent}, 2047, v{vent}
  v_and_b32 v{vrow}, 2047, v{vrow}
  v_subrev_u32 v{vga}, {L_GN}, v{vga}
  v_and_b32 v{vga}, 255, v{vga}
  v_add_u32 v{vga}, {L_GN}, v{vga}
  v_and_b32 v{t2}, 12, v{vl}
  v_add_u32 v{vgq}, v{vga}, v{t2}
  s_waitcnt lgkmcnt(0)
  s_barrier
  s_branch K2_PHASE1
K2_STARTOV:
  v_readfirstlane_b32 s{sOV}, v{CV}
  v_readfirstlane_b32 s{sOV+1}, v{CV+1}
  v_readfirstlane_b32 s{sOV+2}, v{CV+2}
  v_readfirstlane_b32 s{sOV+3}, v{CV+3}
  s_mov_b32 s{sKind}, 4
  s_waitcnt lgkmcnt(0)
K2_NEXTOV:
  s_ff1_i32_b64 s{sP}, {s(sOV,2)}
  s_cmp_lg_u32 s{sP}, -1
  s_cbranch_scc1 K2_OVLO
  s_ff1_i32_b64 s{sP}, {s(sOV+2,2)}
  s_cmp_eq_u32 s{sP}, -1
  s_cbranch_scc1 K2_CONV
  s_bitset0_b64 {s(sOV+2,2)}, s{sP}
  s_add_u32 s{sP}, s{sP}, 64
  s_branch K2_OVGO
K2_OVLO:
  s_bitset0_b64 {s(sOV,2)}, s{sP}
K2_OVGO:
  s_mov_b32 s{sKind}, 3
  v_mov_b32 v{t4}, v0
  s_branch K2_OVLD
K2_OVPART1:
  s_mov_b32 s{sKind}, 4
  v_add_u32 v{t4}, 2048, v0
K2_OVLD:
  s_mul_i32 s{sTmp}, s{sP}, {OVSTR}
  s_mul_i32 s{sTmp+1}, s{sP}, {CH*32}
  v_mov_b32 v{vebase}, s{sTmp+1}
  v_mov_b32 v{t0}, s{sTmp}
  buffer_load_dword v{t1}, v{t0}, {s(SV,4)}, 0 offen
  v_lshl_add_u32 v{t2}, v{t4}, 3, v{t0}""")
    for k in range(4):
        a(f"  buffer_load_dwordx2 {v(PF+2*k,2)}, v{t2}, {s(SV,4)}, 0 offen offset:64\n  v_add_u32 v{t2}, 4096, v{t2}")
    a(f"  s_waitcnt vmcnt(0)")
    for k in range(4):
        a(f"""
  v_cmp_lt_u32 vcc, v{t4}, v{t1}
  v_cmp_eq_u32 {s(sEx,2)}, s2, v{PF+2*k+1}
  s_and_b64 vcc, vcc, {s(sEx,2)}
  v_add_u32 v{t4}, 512, v{t4}
  s_nop 1
  v_cndmask_b32 v{REC+k}, 0, v{PF+2*k}, vcc""")
    for k in range(4, 8): a(f"  v_mov_b32 v{REC+k}, 0")
    a("  s_branch K2_ROUND")
    return a.text(), nv

DIAG = [None, ((1,7,1),(0,0,0)), ((0,3,1),(0,0,0)), ((1,0,0),(0,3,1)), ((1,1,1),(1,0,0)), ((1,3,1),(1,0,0)), ((1,5,1),(1,3,1)), ((0,1,1),(0,0,0)), ((1,2,1),(1,0,0)), ((1,7,1),(1,5,1))]
def gen_diag():
    a = Asm()
    a(f"""
.globl mpnn_d_kernel
.p2align 8
.type mpnn_d_kernel,@function
mpnn_d_kernel:
  s_cmp_ge_u32 s2, 1
  s_cbranch_scc1 D_END
  s_load_dwordx2 s[4:5], s[0:1], 64
  s_waitcnt lgkmcnt(0)
  s_add_u32 s4, s4, {WS_STAMP}
  s_addc_u32 s5, s5, 0
  s_load_dword s6, s[4:5], 0
  s_waitcnt lgkmcnt(0)
  s_sub_u32 s6, s6, 100000
  s_mov_b32 s20, 0
  s_mov_b32 s21, 0""")
    d = DIAG[OPT["diag"]]
    if d:
        for q, (kern, idx, ismax) in enumerate(d):
            n = 31 if kern == 0 else 32
            op = "max" if ismax else "min"
            a(f"  v_lshlrev_b32 v1, 6, v0\n  v_add_u32 v1, {kern*0x100000 + idx*4}, v1\n  v_mov_b32 v3, {0 if ismax else -1}")
            for k in range(n):
                a(f"  global_load_dword v2, v1, s[4:5]\n  v_add_u32 v1, 4096, v1\n  s_waitcnt vmcnt(0)\n  v_subrev_u32 v2, s6, v2\n  v_{op}_u32 v3, v3, v2")
            a(f"  s_mov_b32 s{20+q}, {0 if ismax else -1}\n  s_nop 1")
            for l in range(64):
                a(f"  v_readlane_b32 s8, v3, {l}\n  s_nop 0\n  s_{op}_u32 s{20+q}, s{20+q}, s8")
    a(f"""
  s_sub_u32 s20, s20, s21
  s_min_u32 s20, s20, 20000
  s_lshl_b32 s20, s20, 3
  s_memrealtime s[8:9]
  s_waitcnt lgkmcnt(0)
D_L:
  s_memrealtime s[10:11]
  s_waitcnt lgkmcnt(0)
  s_sub_u32 s12, s10, s8
  s_cmp_lt_u32 s12, s20
  s_cbranch_scc1 D_L
D_END:
  s_endpgm
""")
    return a.text()

def desc(name, nv, ns):
    return f"""
.amdhsa_kernel {name}
  .amdhsa_next_free_vgpr {nv}
  .amdhsa_next_free_sgpr {ns}
  .amdhsa_accum_offset {(nv+3)//4*4}
  .amdhsa_group_segment_fixed_size 0
  .amdhsa_kernarg_size 72
  .amdhsa_user_sgpr_count 2
  .amdhsa_user_sgpr_kernarg_segment_ptr 1
  .amdhsa_system_sgpr_workgroup_id_x 1
.end_amdhsa_kernel
"""

HEAD = """; Kernarg layout for this problem (72 bytes, ptrs only, base s[0:1]):
"""

def main():
    k1, nv1 = gen_k1()
    k2, nv2 = gen_k2()
    out = HEAD
    out += f"; @launch kernel=mpnn_k1_kernel grid=(254,1,1) block=(512,1,1) lds={K1_LDS}\n"
    out += f"; @launch kernel=mpnn_k2_kernel grid=({NB},1,1) block=(512,1,1) lds={K2_LDS}\n"
    if OPT["diag"] >= 0:
        out += "; @launch kernel=mpnn_d_kernel grid=(1,1,1) block=(64,1,1) lds=0\n"; k2 += gen_diag()
    out += '.amdgcn_target "amdgcn-amd-amdhsa--gfx950"\n.text\n' + k1 + k2
    out += '.section .rodata,"a"\n.p2align 6\n' + desc("mpnn_k1_kernel", nv1, 102 if OPT["stamp"] else 64) + ".p2align 6\n" + desc("mpnn_k2_kernel", nv2, 102 if OPT["stamp"] else 80)
    if OPT["diag"] >= 0: out += ".p2align 6\n" + desc("mpnn_d_kernel", 8, 32)
    open(sys.argv[1], "w").write(out)
    print("vgprs", nv1, nv2, "lds", K1_LDS, K2_LDS)
main()
```

```python
import sys, struct
def f32(x): return struct.unpack("<I", struct.pack("<f", x))[0]
LOG2E = 1.4426950408889634
LN2 = 0.6931471805599453
NLOG2E = f32(-LOG2E); NLN2 = f32(-LN2)
class Asm:
    def __init__(self): self.L = []
    def __call__(self, s):
        for x in s.strip("\n").split("\n"):
            self.L.append(x)
    def text(self): return "\n".join(self.L) + "\n"

import re
def isize(x):
    x = x.split(";")[0].strip()
    if not x or x.endswith(":") or x.startswith("."): return 0
    op = x.split()[0]
    args = x[len(op):]
    lit = False
    for tok in re.findall(r"(?<![\w\[:])(-?0x[0-9a-fA-F]+|-?\d+)(?![\w\]:.])", args.split(" offset")[0].split(" op_sel")[0].split(" row_")[0]):
        val = int(tok, 0)
        if not (-16 <= val <= 64): lit = True
    if op.startswith(("s_waitcnt", "s_nop", "s_barrier", "s_branch", "s_cbranch", "s_endpgm", "s_setprio", "s_sleep", "s_movk", "s_addk")): return 4
    if op.startswith(("s_load", "s_memtime", "s_memrealtime")): return 8
    if op.startswith("s_"): return 8 if lit else 4
    if op.startswith(("ds_", "buffer_", "global_")): return 8
    if op.endswith("_e64") or "_dpp" in op or op.startswith(("v_pk_", "v_mfma", "v_smfmac", "v_mad_", "v_cvt_pk", "v_lshl_add", "v_add_lshl", "v_lshl_or", "v_and_or", "v_or3", "v_add3", "v_bfe", "v_fma_", "v_max3", "v_lshrrev_b64", "v_lshlrev_b64", "v_readlane", "v_mul_lo", "v_perm")): return 8
    return 8 if lit else 4
def align8(L):
    out = []; pos = 0
    for x in L:
        n = isize(x)
        if n == 8 and pos % 8 == 4:
            k = len(out) - 1; done = False; q = pos
            while k >= 0 and isize(out[k]) in (0, 4):
                q -= isize(out[k])
                y = out[k].strip()
                if q % 8 == 0 and y.startswith("v_") and isize(out[k]) == 4 and not y.startswith(("v_readfirstlane", "v_cmp")):
                    op = y.split()[0]
                    out[k] = out[k].replace(op, op + "_e64", 1); done = True; break
                k -= 1
            if not done: out.append("  s_nop 0")
            pos += 4
        out.append(x); pos += n
    return out

class Regs:
    def __init__(self, start=0): self.n = start; self.names = {}
    def alloc(self, name, cnt=1, align=1):
        self.n = (self.n + align - 1) // align * align
        r = self.n; self.n += cnt; self.names[name] = (r, cnt); return r

def v(r, n=1): return f"v{r}" if n == 1 else f"v[{r}:{r+n-1}]"
def s(r, n=1): return f"s{r}" if n == 1 else f"s[{r}:{r+n-1}]"

def srd(a, r, lo, nbytes, add=0, addreg=None):
    if add:
        a(f"  s_add_u32 s{r}, s{lo}, {add}\n  s_addc_u32 s{r+1}, s{lo+1}, 0")
    else:
        a(f"  s_mov_b32 s{r}, s{lo}\n  s_mov_b32 s{r+1}, s{lo+1}")
    if addreg is not None:
        a(f"  s_add_u32 s{r}, s{r}, s{addreg}\n  s_addc_u32 s{r+1}, s{r+1}, 0")
    a(f"  s_mov_b32 s{r+2}, {nbytes}\n  s_mov_b32 s{r+3}, 0x20000")

def wfrag_loads(a, srdr, voff, dst, stmp):
    for st in range(4):
        a(f"  s_mov_b32 s{stmp+st}, {st*8192}")
    for st in range(4):
        for jj in range(8):
            a(f"  buffer_load_ushort v{dst+st*8+jj}, v{voff}, {s(srdr,4)}, s{stmp+st} offen offset:{jj*256}")
def wfrag_pack(a, src, dst):
    for i in range(16):
        a(f"  v_lshl_or_b32 v{dst+i}, v{src+2*i+1}, 16, v{src+2*i}")
```

```python
from common import *

N = 10000; E = 320000
G = 125
CH = 2560
NB = 256
MAGIC = 26843
CAP = 32
CELLB = CAP * 4
BSTR = G * CELLB

WS_P = 256
WS_CELL = 0x280000
WS_WF = 0x1280000
WF_W2, WF_UT, WF_UB, WF_3H, WF_3L = 0, 32768, 65536, 98304, 102400
WF_SIZE = 106496
WS_OVF = 0x12A0000
OVSTR = 64 + CH * 8
WS_FLAG = 0x1520000
WS_STAMP = 0x1600000

OPT = dict(lo=0, k8=1, stamp=0, nodma=0, noadd=0, noe=0, hot=0, align=1, unroll=2, dmapos=0, rdpos=0, dsc=1, pf=1, slp=0, stf=1)
for a_ in sys.argv[2:]:
    k_, v_ = a_.split("="); OPT[k_] = int(v_)
EXP = OPT["nodma"] or OPT["noe"] or OPT["noadd"] or OPT["hot"]

STF = ['', 'sc1', 'sc0 sc1', 'sc1 nt'][OPT['stf']]
CAPB = 68
L_ENT = 0
L_GN = (CAPB + 1) * 256
L_CNT = L_GN + (CAPB + 17) * 32
L_FLG = L_CNT + 256
L_ACC = L_FLG + 64
AS = 1040
L_Q = L_ACC + 40 * AS
QS = 320
L_X = L_Q + 40 * QS
XS = 272
L_STG = L_X + 40 * XS
STG = 8 * 1040 + 1024
LDS = L_STG + 8 * STG
L_CIMG = L_STG
L_BCNT = L_CIMG + NB * CELLB
L_GX = L_STG
L_GP = L_GX + 80 * XS
assert L_BCNT + 1024 <= LDS and L_STG % 16 == 0 and L_ACC % 16 == 0
PADS, PADE = 0x8000003f, 0x80000000
KN = "standalone__mpnn_edge_mlp__graph_kernel"

def stamp(a, i, cyc=None):
    if OPT["stamp"]:
        if cyc is None:
            a(f"  s_memrealtime s[{80+2*i}:{81+2*i}]\n  s_waitcnt lgkmcnt(0)")
        else:
            a(f"  s_memrealtime s[96:97]\n  s_memtime s[98:99]\n  s_waitcnt lgkmcnt(0)\n  s_mov_b32 s{i}, s96\n  s_mov_b32 s{i+2}, s98")

def gen():
    a = Asm()
    R = Regs(1)
    al = R.alloc
    vl = al("lane")
    t0 = al("t", 8, 2); t1, t2, t3, t4, t5, t6, t7 = range(t0+1, t0+8)
    vchunk = al("vchunk"); vechunk = al("vechunk")
    vent = al("vent"); vrow = al("vrow"); vgq = al("vgq"); vga = al("vga")
    vAlo = al("Alo"); vAhi = al("Ahi"); vEF = al("vEF")
    vqlane = al("vqlane"); vacl = al("vacl"); vxb = al("vxb"); vqw = al("vqw")
    vebase = al("vebase"); vone = al("vone"); vt16 = al("vt16"); vcell = al("vcell")
    vqa = al("vqa"); vsrow = al("vsrow"); vgn1 = al("vgn1")
    ENT = al("ENT", 2, 2)
    MAC = al("MAC", 2, 2)
    PAT = al("PAT", 2, 2)
    nq = 2 if OPT["k8"] else 4
    AQ = al("AQ", nq, 2)
    GN = al("GN", 4, 2); AD = al("AD", 4)
    DO = al("DO", 2)
    I0 = al("I0", 4, 2); I1 = al("I1", 4, 2)
    W3 = al("W3", 16, 2)
    W3L = al("W3L", 16, 2) if OPT["lo"] else None
    BQ = al("BQ", 4*nq, 2)
    EF = al("EF", 4, 2)
    PF = al("PF", 32, 2)
    D0 = al("D0", 16, 2); D1 = al("D1", 16, 2)
    EA = al("EA", 8, 2); TA = al("TA", 8, 2); EB = al("EB", 8, 2); TB = al("TB", 8, 2)
    RA = al("RA", 2, 2); RB = al("RB", 2, 2)
    SA = al("SA", 2, 2); SB = al("SB", 2, 2)
    CV = al("CV", 8, 2)
    U = al("U", 12, 2); WUB = al("WUB", 16, 2)
    DUM = al("DUM", 4, 2)
    nv = R.n
    assert TA == EA + 8 and EB == EA + 16 and TB == EA + 24 and D1 == D0 + 16
    DD = D0; SS_ = D0 + 5; B4 = D0 + 10; RK = D0 + 15; CA = D0 + 20
    CP = PF
    XL = U
    GX = W3
    WR = EA
    W1F = WUB
    REC = D0; NOD = D0 + 8; RNK = D1
    W2F = EA; WUT = EB; XF = PF; QD = CV
    sW = 3
    pX, pE, pS, pD, pWM, pWU, pO, pWS = 4, 6, 8, 10, 12, 14, 16, 18
    SP, SE, SC, SW, SO, SV, SF = 20, 24, 28, 32, 36, 40, 44
    T0, T1, T2 = 48, 52, 56
    sStart, sNb, sStg, sCnt, sT, sMode, sKind, sFirst = 60, 61, 62, 63, 64, 65, 66, 67
    sAS, sQS, sTag, sP, sUB, sLo2 = 68, 69, 70, 71, 72, 73
    sEx, sK, sBad = 74, 76, 78
    sTmp = 4
    sA = 48
    sOV = 48
    sOVT = 74
    sq = 100
    if OPT["stamp"]: NS = 102
    else: NS = 102

    a(f"""
.globl {KN}
.p2align 8
.type {KN},@function
{KN}:
  s_cmp_ge_u32 s2, {NB}
  s_cbranch_scc1 K_END""")
    if OPT["stamp"]: a("  s_memrealtime s[80:81]")
    a(f"""
  s_load_dwordx8 s[4:11], s[0:1], 0
  s_load_dwordx4 s[12:15], s[0:1], 32
  s_load_dwordx2 s[16:17], s[0:1], 48
  s_load_dwordx2 s[18:19], s[0:1], 64
  v_lshrrev_b32 v{t0}, 6, v0
  v_and_b32 v{vl}, 63, v0
  s_mul_i32 s{sStart}, s2, 640013
  v_readfirstlane_b32 s{sW}, v{t0}
  s_add_u32 s{sNb}, s{sStart}, {640013+16383}
  s_add_u32 s{sStart}, s{sStart}, 16383
  s_lshr_b32 s{sStart}, s{sStart}, 14
  s_lshr_b32 s{sNb}, s{sNb}, 14
  s_min_u32 s{sNb}, s{sNb}, {N}
  s_sub_u32 s{sNb}, s{sNb}, s{sStart}
  s_mov_b32 s{sMode}, 0
  s_mov_b32 s{sKind}, 0
  s_mov_b32 s{sFirst}, 1
  s_mov_b32 s{sAS}, {AS}
  s_mov_b32 s{sQS}, {QS}
  s_mul_i32 s{sStg}, s{sW}, {STG}
  s_add_u32 s{sStg}, s{sStg}, {L_STG}
  v_lshlrev_b32 v{vt16}, 4, v0
  v_lshrrev_b32 v{t1}, 2, v0
  v_and_b32 v{t4}, 3, v0
  v_lshlrev_b32 v{t4}, 4, v{t4}
  v_lshl_add_u32 v{vcell}, v{t1}, 7, v{t4}
  s_mov_b32 s{sq}, {CH*32}
  v_mul_u32_u24 v{vebase}, s{sq}, v{t1}
  s_mul_i32 s{sq}, s2, {CH*4}
  v_lshl_add_u32 v{t2}, v0, 2, s{sq}
  v_add_u32 v{t3}, 4096, v{t2}
  s_sub_u32 s{sq}, s2, {G}
  s_mul_i32 s{sq}, s{sq}, {80*256}
  v_add_u32 v{t5}, s{sq}, v{vt16}
  v_and_b32 v{t0}, 15, v{vl}
  v_lshrrev_b32 v{t4}, 4, v{vl}
  s_lshl_b32 s{sq}, s{sW}, 5
  v_lshlrev_b32 v{vqa}, 11, v{t4}
  v_lshl_add_u32 v{vqa}, v{t0}, 1, v{vqa}
  v_add_u32 v{vqa}, s{sq}, v{vqa}
  s_lshl_b32 s{sq}, s{sStart}, 8
  s_lshl_b32 s{sq+1}, s{sNb}, 8
  v_add_u32 v{t6}, 8192, v{vt16}
  s_waitcnt lgkmcnt(0)
  s_add_u32 s{SF}, s{pWS}, {WS_FLAG}
  s_addc_u32 s{SF+1}, s{pWS+1}, 0
  s_load_dword s{sTag}, s[{SF}:{SF+1}], 0x10000
  s_mov_b32 s{SF+2}, 0x10004
  s_mov_b32 s{SF+3}, 0x20000""")
    srd(a, T2, pX, f"s{sq+1}", addreg=sq)
    a(f"""
  s_cmp_ge_u32 s2, {G}
  s_cbranch_scc1 K_LD2""")
    srd(a, T0, pD, E*4)
    srd(a, T1, pS, E*4)
    a(f"  s_movk_i32 s{sq}, 0x2000")
    for r_, T in ((DD, T0), (SS_, T1)):
        a(f"""
  buffer_load_dword v{r_}, v{t2}, {s(T,4)}, 0 offen
  buffer_load_dword v{r_+1}, v{t2}, {s(T,4)}, 0 offen offset:2048
  buffer_load_dword v{r_+2}, v{t3}, {s(T,4)}, 0 offen
  buffer_load_dword v{r_+3}, v{t3}, {s(T,4)}, 0 offen offset:2048
  buffer_load_dword v{r_+4}, v{t2}, {s(T,4)}, s{sq} offen""")
    a(f"""
  s_branch K_LD3
K_LD2:
  s_cmp_ge_u32 s2, {2*G}
  s_cbranch_scc1 K_LD3""")
    srd(a, T0, pX, N*256)
    srd(a, T1, pWM, 128*256)
    a(f"""
  buffer_load_dwordx4 {v(GX,4)}, v{t5}, {s(T0,4)}, 0 offen
  v_add_u32 v{t5}, 8192, v{t5}
  buffer_load_dwordx4 {v(GX+4,4)}, v{t5}, {s(T0,4)}, 0 offen
  v_add_u32 v{t5}, 8192, v{t5}
  buffer_load_dwordx4 {v(GX+8,4)}, v{t5}, {s(T0,4)}, 0 offen""")
    wfrag_loads(a, T1, vqa, WR, sOVT)
    a(f"""
K_LD3:
  buffer_load_dwordx4 {v(XL,4)}, v{vt16}, {s(T2,4)}, 0 offen
  buffer_load_dwordx4 {v(XL+4,4)}, v{t6}, {s(T2,4)}, 0 offen""")
    a(f"""
  v_mov_b32 v{CV}, 0
  v_mov_b32 v{CV+1}, 0
  v_mov_b32 v{CV+2}, 0
  v_mov_b32 v{CV+3}, 0
  v_add_u32 v{t0}, {L_CIMG}, v{vt16}""")
    a(f"  s_cmp_ge_u32 s2, {G}\n  s_cbranch_scc1 K_NOZ")
    for j in range(5):
        a(f"  ds_write_b128 v{t0}, {v(CV,4)} offset:{j*8192}")
    a("K_NOZ:")
    for j in range(6):
        a(f"  ds_write_b128 v{vt16}, {v(CV,4)} offset:{L_GN + j*8192}")
    def prefill():
        a(f"""
  v_mov_b32 v{CV+4}, {PADS}
  v_mov_b32 v{CV+5}, {PADE}
  v_mov_b32 v{CV+6}, {PADS}
  v_mov_b32 v{CV+7}, {PADE}
  ds_write_b128 v{vt16}, {v(CV+4,4)}
  ds_write_b128 v{vt16}, {v(CV+4,4)} offset:8192
  v_cmp_gt_u32 vcc, {(L_GN-16384)//16}, v0
  s_and_saveexec_b64 {s(sEx,2)}, vcc
  ds_write_b128 v{vt16}, {v(CV+4,4)} offset:16384
  s_mov_b64 exec, {s(sEx,2)}""")
    prefill()
    a(f"  s_mul_i32 s{sq}, s2, {BSTR}\n  s_lshl_b32 s{sq+1}, s{sStart}, 8\n  s_lshl_b32 s{sK}, s{sNb}, 8")
    srd(a, SC, pWS, G*CELLB, add=WS_CELL, addreg=sq)
    srd(a, SP, pWS, (N+1)*256)
    srd(a, SE, pE, E*32)
    srd(a, SW, pWS, WF_SIZE, add=WS_WF)
    srd(a, SO, pO, f"s{sK}", addreg=sq+1)
    srd(a, SV, pWS, G*OVSTR, add=WS_OVF)
    a(f"""
  v_mov_b32 v{vone}, 1
  v_mov_b32 v{MAC}, 0
  v_mov_b32 v{MAC+1}, 0
  v_and_b32 v{t0}, 15, v{vl}                 ; l&15
  v_bfe_u32 v{t1}, v{vl}, 4, 1               ; r4&1
  v_lshlrev_b32 v{t2}, 3, v{t1}
  v_xor_b32 v{t2}, v{t0}, v{t2}
  v_lshlrev_b32 v{vchunk}, 4, v{t2}
  v_and_b32 v{t2}, 1, v{vl}
  v_xor_b32 v{t2}, v{t2}, v{t1}
  v_lshlrev_b32 v{vechunk}, 4, v{t2}
  v_lshrrev_b32 v{t2}, 4, v{vl}
  v_lshlrev_b32 v{t2}, 6, v{t2}
  v_lshrrev_b32 v{t4}, 1, v{t0}
  v_lshl_add_u32 v{t2}, v{t4}, 3, v{t2}
  s_lshl_b32 s{sq}, s{sW}, 8
  v_add_u32 v{vent}, s{sq}, v{t2}
  v_bfe_u32 v{t2}, v{vl}, 2, 1               ; h
  v_and_b32 v{t4}, 1, v{vl}                  ; xy
  v_lshl_add_u32 v{t5}, v{t2}, 1, v{t4}      ; r4
  v_bfe_u32 v{t6}, v{vl}, 3, 2
  v_bfe_u32 v{t7}, v{vl}, 1, 1
  v_lshl_add_u32 v{t6}, v{t6}, 1, v{t7}      ; j
  v_lshl_add_u32 v{t7}, v{t5}, 3, v{t6}      ; q = 8 r4 + j
  v_lshlrev_b32 v{t7}, 3, v{t7}
  v_add_u32 v{vrow}, s{sq}, v{t7}
  v_lshrrev_b32 v{t7}, 5, v{vl}              ; hh
  v_mul_u32_u24 v{vAlo}, 1040, v{t6}
  v_lshl_add_u32 v{vAlo}, v{t5}, 8, v{vAlo}
  v_lshl_add_u32 v{vAlo}, v{t7}, 4, v{vAlo}
  v_add_u32 v{vAlo}, s{sStg}, v{vAlo}
  v_xor_b32 v{vAhi}, 1, v{t4}
  v_lshl_add_u32 v{vAhi}, v{vAhi}, 7, v{vAlo}
  v_lshl_add_u32 v{vAlo}, v{t4}, 7, v{vAlo}
  v_xor_b32 v{vEF}, v{t7}, v{t4}
  v_lshl_add_u32 v{vEF}, v{t6}, 1, v{vEF}
  v_lshl_add_u32 v{vEF}, v{t5}, 4, v{vEF}
  v_lshlrev_b32 v{vEF}, 4, v{vEF}
  s_add_u32 s{sq+1}, s{sStg}, 8320
  v_add_u32 v{vEF}, s{sq+1}, v{vEF}
  v_bfe_u32 v{t5}, v{vl}, 4, 1               ; o
  v_lshlrev_b32 v{t5}, 4, v{t5}
  v_mov_b32 v{t6}, 0x3f80
  v_lshlrev_b32 v{t5}, v{t5}, v{t6}
  v_cmp_eq_u32 vcc, v{t7}, v{t2}
  s_nop 1
  v_cndmask_b32 v{t5}, 0, v{t5}, vcc
  v_cmp_eq_u32 vcc, 0, v{t4}
  s_nop 1
  v_cndmask_b32 v{PAT}, 0, v{t5}, vcc
  v_cndmask_b32 v{PAT+1}, v{t5}, 0, vcc
  s_lshl_b32 s{sq}, s{sW}, 5
  s_add_u32 s{sq+1}, s{sq}, {L_GN}
  v_lshlrev_b32 v{vga}, 4, v{t7}
  v_add_u32 v{vga}, s{sq+1}, v{vga}
  v_and_b32 v{t2}, 12, v{vl}
  v_add_u32 v{vgq}, v{vga}, v{t2}
  v_and_b32 v{t2}, 3, v{vl}
  v_lshlrev_b32 v{t2}, 3, v{t2}
  v_lshl_add_u32 v{t2}, v{t1}, 5, v{t2}
  v_add_u32 v{vqlane}, {L_Q}, v{t2}
  v_and_b32 v{t2}, 31, v{vl}
  v_lshlrev_b32 v{t4}, 3, v{t2}
  v_add_u32 v{vacl}, {L_ACC}, v{t4}
  v_lshrrev_b32 v{t4}, 4, v{vl}              ; g
  v_mul_u32_u24 v{vxb}, {XS}, v{t0}
  v_lshl_add_u32 v{vxb}, v{t4}, 4, v{vxb}
  v_add_u32 v{vxb}, {L_X}, v{vxb}
  v_mul_u32_u24 v{vqw}, {QS}, v{t0}
  v_lshl_add_u32 v{vqw}, v{t4}, 3, v{vqw}
  s_add_u32 s{sq+1}, s{sq}, {L_Q}
  v_add_u32 v{vqw}, s{sq+1}, v{vqw}
  v_and_b32 v{t4}, 1, v{vl}
  v_lshlrev_b32 v{t4}, 4, v{t4}
  v_lshlrev_b32 v{t4}, v{t4}, v{t6}
  v_bfe_u32 v{t5}, v{vl}, 1, 4
  v_lshlrev_b32 v{t7}, 2, v{t7}
  v_sub_u32 v{t5}, v{t5}, v{t7}""")
    for i in range(4):
        a(f"  v_cmp_eq_u32 vcc, {i}, v{t5}\n  s_nop 1\n  v_cndmask_b32 v{I0+i}, 0, v{t4}, vcc")
        a(f"  v_cmp_eq_u32 vcc, {8+i}, v{t5}\n  s_nop 1\n  v_cndmask_b32 v{I1+i}, 0, v{t4}, vcc")
    if not OPT["k8"]:
        a(f"  v_mov_b32 v{AQ+2}, 0\n  v_mov_b32 v{AQ+3}, 0")
        for t in range(4):
            a(f"  v_mov_b32 v{BQ+4*t+2}, 0\n  v_mov_b32 v{BQ+4*t+3}, 0")
    def prefetch():
        if not OPT["pf"]: return
        a(f"  s_mul_i32 s{sq}, s2, 40000\n  s_sub_u32 s{sq}, s{sq}, 4096\n  v_add_u32 v{t0}, s{sq}, v{vt16}")
        for j in range(10):
            a(f"  buffer_load_dwordx4 {v(DUM,4)}, v{t0}, {s(SE,4)}, 0 offen")
            if j < 9: a(f"  v_add_u32 v{t0}, 4096, v{t0}")
    def own_x(nyounger):
        a(f"""
  v_lshrrev_b32 v{t0}, 4, v0
  v_lshl_add_u32 v{t0}, v{t0}, 4, v{vt16}
  v_add_u32 v{t0}, {L_X}, v{t0}
  s_waitcnt vmcnt({nyounger})
  ds_write_b128 v{t0}, {v(XL,4)}
  s_mov_b32 exec_lo, s{sLo2}
  s_mov_b32 exec_hi, s{sLo2}
  ds_write_b128 v{t0}, {v(XL+4,4)} offset:{32*XS}
  s_mov_b64 exec, -1""")
    a(f"""
  s_cmp_lt_u32 s{sW}, 2
  s_cselect_b32 s{sLo2}, -1, 0
  s_lshr_b32 s{sq}, s2, 4
  s_lshl_b32 s{sq}, s{sq}, 8
  s_and_b32 s{sq+1}, s2, 15
  s_lshl_b32 s{sq+1}, s{sq+1}, 2
  s_add_u32 s{sq}, s{sq}, s{sq+1}
  v_lshlrev_b32 v{vgn1}, 12, v{vl}
  v_add_u32 v{vgn1}, s{sq}, v{vgn1}
  s_and_b32 s{sq}, s2, 7
  s_lshl_b32 s{sq}, s{sq}, 12
  v_lshrrev_b32 v{t2}, 2, v{vl}
  v_lshlrev_b32 v{t2}, 8, v{t2}
  v_and_b32 v{t3}, 3, v{vl}
  v_lshl_add_u32 v{t2}, v{t3}, 4, v{t2}
  v_add_u32 v{vsrow}, s{sq}, v{t2}
  s_mov_b32 s{sK}, {NLOG2E}
  s_mov_b32 s{sK+1}, {NLOG2E}
  s_waitcnt lgkmcnt(0)
  s_add_u32 s{sTag}, s{sTag}, 1
  s_cmp_ge_u32 s2, {G}
  s_cbranch_scc1 K_NOTBIN
  s_mov_b32 s{sq}, {MAGIC}
  v_lshlrev_b32 v{t7}, 6, v0
  v_add_u32 v{t7}, {1<<18}, v{t7}
  s_barrier
  s_waitcnt vmcnt(7)""")
    stamp(a, 1)
    for j in range(5):
        a(f"""
  v_mul_u32_u24 v{B4+j}, s{sq}, v{DD+j}
  v_lshrrev_b32 v{B4+j}, 18, v{B4+j}
  v_and_b32 v{B4+j}, 0x3fc, v{B4+j}
  v_add_u32 v{t0+j}, {L_BCNT}, v{B4+j}
  ds_add_rtn_u32 v{RK+j}, v{t0+j}, v{vone}""")
    a("  s_waitcnt vmcnt(2)")
    for j in range(5):
        a(f"""
  v_lshl_add_u32 v{SS_+j}, v{SS_+j}, 18, v{t7}
  v_and_or_b32 v{SS_+j}, v{DD+j}, 63, v{SS_+j}
  v_lshlrev_b32 v{CA+j}, 5, v{B4+j}
  v_add_u32 v{CA+j}, {L_CIMG}, v{CA+j}""")
        if j < 4: a(f"  v_add_u32 v{t7}, {512<<6}, v{t7}")
    a(f"  s_waitcnt lgkmcnt(0)\n  s_mov_b64 {s(sBad,2)}, 0")
    for j in range(5):
        a(f"""
  v_lshl_add_u32 v{t0}, v{RK+j}, 2, v{CA+j}
  v_cmp_le_u32 vcc, {CAP-1}, v{RK+j}
  s_or_b64 {s(sBad,2)}, {s(sBad,2)}, vcc
  s_andn2_b64 exec, exec, vcc
  ds_write_b32 v{t0}, v{SS_+j}
  s_mov_b64 exec, -1""")
    own_x(0)
    a(f"""
  s_cmp_lt_u32 s{sW}, 4
  s_cbranch_scc1 K_B1""")
    prefetch()
    a(f"""
K_B1:
  s_waitcnt lgkmcnt(0)
  s_barrier
  s_cmp_eq_u64 {s(sBad,2)}, 0
  s_cbranch_scc0 K_OVF
K_OVFDONE:
  s_barrier""")
    stamp(a, 2)
    a(f"""
  s_cmp_ge_u32 s{sW}, 4
  s_cbranch_scc1 K_DONE2
  v_add_u32 v{t0}, {L_CIMG}, v{vt16}
  v_mov_b32 v{t2}, {L_FLG+8}
  ds_read_b32 v{t2}, v{t2}""")
    for j in range(8):
        a(f"  ds_read_b128 {v(CP+4*j,4)}, v{t0} offset:{4096*j}")
    srd(a, T2, pWS, NB*BSTR, add=WS_CELL)
    a(f"""
  s_mul_i32 s{sq}, s2, {OVSTR}
  v_mov_b32 v{t3}, s{sq}
  v_lshrrev_b32 v{t4}, 3, v0
  s_mov_b32 s{sq}, {BSTR}
  v_mul_u32_u24 v{t4}, s{sq}, v{t4}
  v_and_b32 v{t5}, 7, v0
  v_lshl_add_u32 v{t4}, v{t5}, 4, v{t4}
  s_lshl_b32 s{sq}, s2, 7""")
    for j in range(8):
        a(f"  s_waitcnt lgkmcnt({7-j})\n  buffer_store_dwordx4 {v(CP+4*j,4)}, v{t4}, {s(T2,4)}, s{sq} offen {STF}\n  s_add_u32 s{sq}, s{sq}, {32*BSTR}")
    a(f"""
  s_cmp_lg_u32 s{sW}, 0
  s_cbranch_scc1 K_DONE
  s_mov_b64 exec, 1
  buffer_store_dword v{t2}, v{t3}, {s(SV,4)}, 0 offen sc1
  s_mov_b64 exec, -1
  s_branch K_DONE
K_NOTBIN:
  s_cmp_ge_u32 s2, {2*G}
  s_cbranch_scc1 K_PREP
  v_lshrrev_b32 v{t0}, 4, v0
  v_lshl_add_u32 v{t0}, v{t0}, 4, v{vt16}
  v_add_u32 v{t0}, {L_GX}, v{t0}
  s_cmp_lt_u32 s{sW}, 4
  s_cselect_b32 s{sq}, -1, 0
  s_waitcnt vmcnt(36)
  ds_write_b128 v{t0}, {v(GX,4)}
  s_waitcnt vmcnt(35)
  ds_write_b128 v{t0}, {v(GX+4,4)} offset:{32*XS}
  s_waitcnt vmcnt(34)
  s_mov_b32 exec_lo, s{sq}
  s_mov_b32 exec_hi, s{sq}
  ds_write_b128 v{t0}, {v(GX+8,4)} offset:{64*XS}
  s_mov_b64 exec, -1
  v_subrev_u32 v{t1}, {L_X - L_GX}, v{vxb}
  v_and_b32 v{t2}, 15, v{vl}
  v_mul_u32_u24 v{t2}, {XS}, v{t2}
  v_lshrrev_b32 v{t3}, 4, v{vl}
  v_lshl_add_u32 v{t2}, v{t3}, 3, v{t2}
  s_lshl_b32 s{sq}, s{sW}, 5
  s_add_u32 s{sq}, s{sq}, {L_GP}
  v_add_u32 v{t2}, s{sq}, v{t2}
  s_waitcnt lgkmcnt(0)
  s_barrier""")
    for nt in range(2):
        for st in range(4):
            a(f"  ds_read_b128 {v(PF+16*nt+4*st,4)}, v{t1} offset:{nt*16*XS + st*64}")
    a("  s_waitcnt vmcnt(2)")
    stamp(a, 1)
    wfrag_pack(a, WR, W1F)
    own_x(0)
    a(f"""
  s_cmp_lt_u32 s{sW}, 4
  s_cbranch_scc1 K_G1""")
    prefetch()
    a("K_G1:\n  s_waitcnt lgkmcnt(0)")
    for nt in range(5):
        xf = PF + 16*(nt & 1)
        if nt >= 2: a(f"  s_waitcnt lgkmcnt({4 if nt < 4 else 0})")
        for st in range(4):
            c = "0" if st == 0 else v(D0+4*nt, 4)
            a(f"  v_mfma_f32_16x16x32_bf16 {v(D0+4*nt,4)}, {v(W1F+4*st,4)}, {v(xf+4*st,4)}, {c}")
        if nt < 3:
            for st in range(4):
                a(f"  ds_read_b128 {v(xf+4*st,4)}, v{t1} offset:{(nt+2)*16*XS + st*64}")
    a("  s_nop 7")
    for nt in range(5):
        d = D0 + 4*nt
        a(f"""
  v_pk_mul_f32 {v(d,2)}, {v(d,2)}, {s(sK,2)}
  v_pk_mul_f32 {v(d+2,2)}, {v(d+2,2)}, {s(sK,2)}
  v_cvt_pk_bf16_f32 v{EA+2*nt}, v{d}, v{d+1}
  v_cvt_pk_bf16_f32 v{EA+2*nt+1}, v{d+2}, v{d+3}
  ds_write_b64 v{t2}, {v(EA+2*nt,2)} offset:{nt*16*XS}""")
    srd(a, T0, pWS, N*256, add=WS_P)
    a(f"""
  v_add_u32 v{t0}, {L_GP - L_X}, v{t0}
  s_sub_u32 s{sq}, s2, {G}
  s_mul_i32 s{sq}, s{sq}, {80*256}
  s_waitcnt lgkmcnt(0)
  s_barrier""")
    stamp(a, 2)
    a(f"""
  s_cmp_ge_u32 s{sW}, 4
  s_cbranch_scc1 K_DONE2""")
    for j in range(5):
        a(f"  ds_read_b128 {v(PF+4*j,4)}, v{t0} offset:{j*16*XS}")
    for j in range(5):
        a(f"  s_waitcnt lgkmcnt({4-j})\n  buffer_store_dwordx4 {v(PF+4*j,4)}, v{vt16}, {s(T0,4)}, s{sq} offen {STF}\n  s_add_u32 s{sq}, s{sq}, 4096")
    a(f"""
K_DONE:""")
    stamp(a, 4)
    if OPT["stf"] == 0: a("  s_waitcnt vmcnt(0)\n  buffer_wbl2 sc1")
    a(f"""
  s_waitcnt vmcnt(0)
K_DONE2:
  v_mov_b32 v{t7}, s{sTag}
  s_waitcnt lgkmcnt(0)
  s_barrier""")
    stamp(a, 3)
    a(f"""
  s_cmp_lg_u32 s{sW}, 0
  s_cbranch_scc1 K_F1
  s_mov_b64 exec, 0xff
  buffer_store_dword v{t7}, v{vgn1}, {s(SF,4)}, 0 offen sc1
  s_mov_b64 exec, -1
K_F1:""")
    def node_gemm(WA, WB=None):
        for nt in range(3):
            xf = XF + 16*(nt & 1)
            if nt == 0:
                for n2 in range(2):
                    for st in range(4):
                        a(f"  ds_read_b128 {v(XF+16*n2+4*st,4)}, v{vxb} offset:{n2*16*XS + st*64}")
            a(f"  s_waitcnt lgkmcnt({4 if nt == 0 else 5 if nt == 1 else 1})")
            q = QD if nt != 1 else SA
            for st in range(4):
                c = "0" if st == 0 else v(q, 4)
                a(f"  v_mfma_f32_16x16x32_bf16 {v(q,4)}, {v(WA+4*st,4)}, {v(xf+4*st,4)}, {c}")
            if WB is not None:
                for st in range(4):
                    c = "0" if st == 0 else v(U+4*nt, 4)
                    a(f"  v_mfma_f32_16x16x32_bf16 {v(U+4*nt,4)}, {v(WB+4*st,4)}, {v(xf+4*st,4)}, {c}")
            if nt == 0:
                for st in range(4):
                    a(f"  ds_read_b128 {v(XF+4*st,4)}, v{vxb} offset:{2*16*XS + st*64}")
            a(f"""
  s_nop 7
  v_pk_mul_f32 {v(q,2)}, {v(q,2)}, {s(sK,2)}
  v_pk_mul_f32 {v(q+2,2)}, {v(q+2,2)}, {s(sK,2)}
  v_cvt_pk_bf16_f32 v{QD+4+2*(nt&1)}, v{q}, v{q+1}
  v_cvt_pk_bf16_f32 v{QD+5+2*(nt&1)}, v{q+2}, v{q+3}""")
            if nt == 2:
                a(f"  s_mov_b32 exec_lo, 0x00ff00ff\n  s_mov_b32 exec_hi, 0x00ff00ff")
            a(f"  ds_write_b64 v{vqw}, {v(QD+4+2*(nt&1),2)} offset:{nt*16*QS}")
            if nt == 2:
                a("  s_mov_b64 exec, -1")
    assert SB == SA + 2
    def poll(lab, want):
        m = [sum(1 << l for l in range(64) if want(4*l + k)) for k in range(4)]
        a(f"""
  s_cmp_lg_u32 s{sW}, 0
  s_cbranch_scc1 {lab}_D
  s_mov_b32 s{sq}, 0""")
        for k in range(4):
            a(f"  s_mov_b32 s{sOV+2*k}, {hex(m[k] & 0xffffffff)}\n  s_mov_b32 s{sOV+2*k+1}, {hex(m[k] >> 32)}")
        a(f"""
{lab}:
  buffer_load_dwordx4 {v(DUM,4)}, v{vsrow}, {s(SF,4)}, 0 offen sc1
  s_add_u32 s{sq}, s{sq}, 1
  s_waitcnt vmcnt(0)
  v_cmp_ne_u32 vcc, s{sTag}, v{DUM}
  s_and_b64 {s(sBad,2)}, vcc, {s(sOV,2)}""")
        for k in range(1, 4):
            a(f"""
  v_cmp_ne_u32 vcc, s{sTag}, v{DUM+k}
  s_and_b64 vcc, vcc, {s(sOV+2*k,2)}
  s_or_b64 {s(sBad,2)}, {s(sBad,2)}, vcc""")
        a(f"""
  s_cbranch_scc0 {lab}_D
  {"s_sleep %d" % OPT["slp"] if OPT["slp"] else ""}
  s_cmp_lt_u32 s{sq}, 0x8000
  s_cbranch_scc1 {lab}
{lab}_D:""")
    poll("K_POLL1", lambda b: b < G or 2*G <= b < 2*G + 4)
    a(f"""
  v_lshlrev_b32 v{t4}, 4, v{vl}
  s_lshl_b32 s{sTmp}, s{sW}, 12
  s_add_u32 s{sTmp+1}, s{sTmp}, {WF_UT}
  s_add_u32 s{sUB}, s{sTmp}, {WF_UB}
  s_mov_b32 s{sTmp+2}, {WF_3H}
  s_mov_b32 s{sTmp+3}, {WF_3L}
  s_barrier""")
    stamp(a, 5)
    for k in range(2):
        a(f"  buffer_load_dwordx4 {v(REC+4*k,4)}, v{vcell}, {s(SC,4)}, 0 offen offset:{64*k} sc1")
    nld = 0
    for st in range(4):
        a(f"  buffer_load_dwordx4 {v(W2F+4*st,4)}, v{t4}, {s(SW,4)}, s{sTmp} offen offset:{st*1024} sc1")
    for st in range(4):
        a(f"  buffer_load_dwordx4 {v(WUT+4*st,4)}, v{t4}, {s(SW,4)}, s{sTmp+1} offen offset:{st*1024} sc1")
    for st in range(4):
        a(f"  buffer_load_dwordx4 {v(W3+4*st,4)}, v{t4}, {s(SW,4)}, s{sTmp+2} offen offset:{st*1024} sc1")
    nld = 12
    if OPT["lo"]:
        for st in range(4):
            a(f"  buffer_load_dwordx4 {v(W3L+4*st,4)}, v{t4}, {s(SW,4)}, s{sTmp+3} offen offset:{st*1024} sc1")
        nld += 4
    a(f"  s_waitcnt vmcnt({nld})")
    stamp(a, 6)
    NR = 8
    a(f"""
K_PHASE1:
  v_cmp_le_u32 vcc, 0xfffc0000, v{REC+NR-1}
  s_cbranch_vccz K_NOMARK
  s_and_saveexec_b64 {s(sEx,2)}, vcc
  v_lshrrev_b32 v{t0}, 2, v0                 ; producer
  v_lshrrev_b32 v{t1}, 5, v{t0}
  v_lshlrev_b32 v{t1}, 2, v{t1}
  v_lshlrev_b32 v{t0}, v{t0}, v{vone}
  ds_or_b32 v{t1}, v{t0} offset:{L_FLG+32}
  v_mov_b32 v{REC+NR-1}, 0
  s_mov_b64 exec, {s(sEx,2)}
K_NOMARK:""")
    for k in range(NR):
        if k == 4:
            a(f"""
  v_or3_b32 v{t3}, v{REC+k}, v{REC+k+1}, v{REC+k+2}
  v_or_b32 v{t3}, v{t3}, v{REC+k+3}
  v_cmp_ne_u32 vcc, 0, v{t3}
  s_cbranch_vccz K_P1E""")
        a(f"""
  v_and_b32 v{NOD+k}, 63, v{REC+k}
  v_cmpx_ne_u32 vcc, 0, v{REC+k}
  s_cbranch_execz K_P1_{k}
  v_lshlrev_b32 v{NOD+k}, 2, v{NOD+k}
  ds_add_rtn_u32 v{RNK+k}, v{NOD+k}, v{vone} offset:{L_CNT}
K_P1_{k}:
  s_mov_b64 exec, -1""")
    a(f"""
K_P1E:
  v_lshlrev_b32 v{t0}, 2, v{vl}
  v_subrev_u32 v{t4}, s{sStart}, v{vl}
  v_and_b32 v{t4}, 63, v{t4}
  s_waitcnt lgkmcnt(0)
  s_barrier
  ds_read_b32 v{t1}, v{t0} offset:{L_CNT}
  s_waitcnt lgkmcnt(0)
  v_add_u32 v{t1}, 3, v{t1}
  v_and_b32 v{t1}, -4, v{t1}
  v_mov_b32 v{t2}, v{t1}
  s_nop 1
  v_add_u32_dpp v{t2}, v{t2}, v{t2} row_shr:1 row_mask:0xf bank_mask:0xf
  s_nop 1
  v_add_u32_dpp v{t2}, v{t2}, v{t2} row_shr:2 row_mask:0xf bank_mask:0xf
  s_nop 1
  v_add_u32_dpp v{t2}, v{t2}, v{t2} row_shr:4 row_mask:0xf bank_mask:0xf
  s_nop 1
  v_add_u32_dpp v{t2}, v{t2}, v{t2} row_shr:8 row_mask:0xf bank_mask:0xf
  s_nop 1
  v_add_u32_dpp v{t2}, v{t2}, v{t2} row_bcast:15 row_mask:0xa bank_mask:0xf
  s_nop 1
  v_add_u32_dpp v{t2}, v{t2}, v{t2} row_bcast:31 row_mask:0xc bank_mask:0xf
  s_nop 1
  v_readlane_b32 s{sT}, v{t2}, 63
  v_sub_u32 v{t1}, v{t2}, v{t1}              ; start
  s_cmp_gt_u32 s{sT}, {CAPB*32}
  s_cbranch_scc1 K_SPLIT""")
    for k0 in (0, 4):
        if k0:
            a(f"""
  v_or3_b32 v{t3}, v{REC+k0}, v{REC+k0+1}, v{REC+k0+2}
  v_or_b32 v{t3}, v{t3}, v{REC+k0+3}
  v_cmp_ne_u32 vcc, 0, v{t3}
  s_cbranch_vccz K_P2E""")
        for k in range(k0, k0+4):
            a(f"  ds_bpermute_b32 v{NOD+k}, v{NOD+k}, v{t1}")
        for k in range(k0, k0+4):
            e = PF + 16 + 2*(k & 3)
            a(f"""
  v_lshrrev_b32 v{e}, 10, v{REC+k}
  v_and_b32 v{e}, {hex(0xffffff00 if not OPT['hot'] else 0x1f00)}, v{e}
  v_bfe_u32 v{e+1}, v{REC+k}, 6, 12
  v_lshl_add_u32 v{e+1}, v{e+1}, 5, v{vebase}""")
            if OPT["hot"]: a(f"  v_and_b32 v{e+1}, 0xfe0, v{e+1}")
        a("  s_waitcnt lgkmcnt(0)")
        for k in range(k0, k0+4):
            e = PF + 16 + 2*(k & 3)
            a(f"""
  v_add_lshl_u32 v{NOD+k}, v{NOD+k}, v{RNK+k}, 3
  v_cmpx_ne_u32 vcc, 0, v{REC+k}
  ds_write_b64 v{NOD+k}, {v(e,2)}
  s_mov_b64 exec, -1""")
    a(f"""
K_P2E:
  v_lshrrev_b32 v{t1}, 2, v{t1}
  v_lshrrev_b32 v{t2}, 2, v{t2}
  v_add_u32 v{t1}, s{sW}, v{t1}
K_GNL:
  v_cmpx_lt_u32 vcc, v{t1}, v{t2}
  s_cbranch_execz K_GNE
  v_lshlrev_b32 v{t3}, 2, v{t1}
  ds_write_b32 v{t3}, v{t4} offset:{L_GN}
  v_add_u32 v{t1}, 8, v{t1}
  s_branch K_GNL
K_GNE:
  s_mov_b64 exec, -1
  s_add_u32 s{sT}, s{sT}, 31
  s_lshr_b32 s{sT}, s{sT}, 5
  s_add_u32 s{sCnt}, s{sT}, 7
  s_sub_u32 s{sCnt}, s{sCnt}, s{sW}
  s_lshr_b32 s{sCnt}, s{sCnt}, 3
  s_cmp_eq_u32 s{sFirst}, 0
  s_cbranch_scc1 K_POLL2_D""")
    poll("K_POLL2", lambda b: G <= b < 2*G)
    a("  s_waitcnt lgkmcnt(0)\n  s_barrier")
    stamp(a, 7)
    dsc = " sc1" if OPT["dsc"] else ""
    def dma_issue():
        L = []
        for j in range(8):
            d = DO + (j & 1)
            L.append([f"  s_add_u32 m0, s{sStg}, {j*1040}",
                      f"  v_add_u32_dpp v{d}, v{ENT}, v{vchunk} row_newbcast:{2*j} row_mask:0xf bank_mask:0xf",
                      f"  buffer_load_dwordx4 v{d}, {s(SP,4)}, 0 offen{dsc} lds" if not OPT["nodma"] else "  s_nop 0"])
        L.append([f"  s_add_u32 m0, s{sStg}, 8320",
                  f"  v_add_u32 v{DO}, v{ENT+1}, v{vechunk}",
                  f"  buffer_load_dwordx4 v{DO}, {s(SE,4)}, 0 offen lds" if not (OPT["nodma"] or OPT["noe"]) else "  s_nop 0"])
        return L
    ndma = 0 if OPT["nodma"] else 8 if OPT["noe"] else 9
    def frag_reads():
        L = []
        for st in range(8):
            L.append(f"  ds_read_b128 {v(PF+4*st,4)}, v{vAlo if st < 4 else vAhi} offset:{32*(st&3)}")
        L.insert(2, f"  ds_read_b128 {v(EF,4)}, v{vEF}")
        return L
    def bq_reads():
        return [f"  ds_read_b64_tr_b16 {v(BQ+nq*t,2)}, v{vqa} offset:{64*t}" for t in range(4)]
    def chain(t, D):
        L = [f"  v_mfma_f32_32x32x16_bf16 {v(D,16)}, {v(EF,4)}, {v(W3+4*t,4)}, 0"]
        if OPT["lo"]:
            L.append(f"  v_mfma_f32_32x32x16_bf16 {v(D,16)}, {v(EF,4)}, {v(W3L+4*t,4)}, {v(D,16)}")
        L.append(f"  v_mfma_f32_32x32x16_bf16 {v(D,16)}, {v(PF+8*t,4)}, {v(I0,4)}, {v(D,16)}")
        L.append(f"  v_mfma_f32_32x32x16_bf16 {v(D,16)}, {v(PF+8*t+4,4)}, {v(I1,4)}, {v(D,16)}")
        if OPT["k8"]:
            L.append(f"  v_mfma_f32_32x32x8bf16_1k {v(D,16)}, {v(AQ,2)}, {v(BQ+2*t,2)}, {v(D,16)}")
        else:
            L.append(f"  v_mfma_f32_32x32x16_bf16 {v(D,16)}, {v(AQ,4)}, {v(BQ+4*t,4)}, {v(D,16)}")
        return L

    a(f"  ds_read_b64 {v(ENT,2)}, v{vent}\n  s_waitcnt lgkmcnt(0)")
    for x in dma_issue(): a("\n".join(x))
    a(f"  ds_read_b64 {v(ENT,2)}, v{vent} offset:2048")
    a(f"""
  s_cmp_eq_u32 s{sFirst}, 0
  s_cbranch_scc1 K_NOGEMM0
  s_mov_b32 s{sFirst}, 0
  s_waitcnt vmcnt({nld-8+ndma}) lgkmcnt(0)""")
    node_gemm(W2F, WUT)
    a(f"  v_lshlrev_b32 v{t4}, 4, v{vl}")
    for st in range(4):
        a(f"  buffer_load_dwordx4 {v(WUB+4*st,4)}, v{t4}, {s(SW,4)}, s{sUB} offen offset:{st*1024} sc1")
    a(f"""
  s_or_b32 s{sq}, s2, s{sW}
  s_cmp_lg_u32 s{sq}, 0
  s_cbranch_scc1 K_NONONCE
  s_mov_b64 exec, 1
  v_mov_b32 v{t0}, 0x10000
  v_mov_b32 v{t1}, s{sTag}
  buffer_store_dword v{t1}, v{t0}, {s(SF,4)}, 0 offen
  s_mov_b64 exec, -1
  s_waitcnt vmcnt(0)
K_NONONCE:
  s_waitcnt lgkmcnt(0)
  s_barrier
K_NOGEMM:
  ds_read_b32 v{vgn1}, v{vgq}
  ds_read_b32 v{vsrow}, v{vrow}
  ds_read_b128 {v(GN,4)}, v{vga}
  s_waitcnt vmcnt(4)""")
    stamp(a, 8, 96)
    for x in frag_reads(): a(x)
    a(f"""
  s_waitcnt lgkmcnt(9)
  v_mad_u32_u24 v{vqa}, v{vgn1}, s{sQS}, v{vqlane}
  v_lshrrev_b64 {v(AQ,2)}, v{vsrow}, {v(PAT,2)}""")
    for x in bq_reads(): a(x)
    a("  s_waitcnt lgkmcnt(0)")
    for x in dma_issue(): a("\n".join(x))
    for x in chain(0, D0): a(x)
    a(f"""
  s_nop 7
  s_nop 3
  s_cmp_eq_u32 s{sCnt}, 0
  s_cbranch_scc1 K_LOOPEND
  s_cmp_lg_u32 s{sMode}, 0
  s_cbranch_scc1 K_SAFE""")

    def p(r): return v(r, 2)
    def octet_fast(d, e, t, r, sres):
        ex = [f"  v_exp_f32 v{e+i}, v{d+i}" for i in range(8)]
        L = [f"  v_pk_add_f32 {p(t)}, {p(e)}, 1.0 op_sel_hi:[1,0]",
             f"  v_pk_add_f32 {p(t+2)}, {p(e+4)}, 1.0 op_sel_hi:[1,0]",
             f"  v_pk_fma_f32 {p(t+4)}, {p(d)}, {p(e+2)}, {p(d)}",
             f"  v_pk_fma_f32 {p(t+6)}, {p(d+4)}, {p(e+6)}, {p(d+4)}",
             f"  v_pk_fma_f32 {p(e)}, {p(t)}, {p(e+2)}, {p(t)}",
             f"  v_pk_fma_f32 {p(e+4)}, {p(t+2)}, {p(e+6)}, {p(t+2)}",
             f"  v_pk_fma_f32 {p(t+4)}, {p(d+2)}, {p(t)}, {p(t+4)}",
             f"  v_pk_fma_f32 {p(t+6)}, {p(d+6)}, {p(t+2)}, {p(t+6)}",
             f"  v_pk_mul_f32 {p(t)}, {p(e)}, {p(e+4)}",
             f"  v_pk_mul_f32 {p(t+4)}, {p(t+4)}, {p(e+4)}",
             f"  v_rcp_f32 v{r}, v{t}",
             f"  v_rcp_f32 v{r+1}, v{t+1}",
             f"  v_pk_fma_f32 {p(t+4)}, {p(t+6)}, {p(e)}, {p(t+4)}",
             f"  v_pk_mul_f32 {p(sres)}, {p(t+4)}, {p(r)}"]
        return ex, L
    def octet_safe(d, e, t, r, sres):
        ex = [f"  v_exp_f32 v{e+i}, v{d+i}" for i in range(8)]
        L = [f"  v_pk_add_f32 {p(e+2*i)}, {p(e+2*i)}, 1.0 op_sel_hi:[1,0]" for i in range(4)]
        L += [f"  v_rcp_f32 v{t+i}, v{e+i}" for i in range(8)]
        L += [f"  v_pk_mul_f32 {p(sres)}, {p(d)}, {p(t)}"]
        L += [f"  v_pk_fma_f32 {p(sres)}, {p(d+2*i)}, {p(t+2*i)}, {p(sres)}" for i in range(1, 4)]
        return ex, L
    def zipl(x, y):
        o = []
        for i in range(max(len(x), len(y))):
            if i < len(x): o.append(x[i])
            if i < len(y): o.append(y[i])
        return o
    def block_body(safe, u, nun):
        oc = octet_safe if safe else octet_fast
        B = []
        for t in range(4):
            D = D0 if t % 2 == 0 else D1
            Dn = D1 if t % 2 == 0 else D0
            exa, La = oc(D, EA, TA, RA, SA)
            exb, Lb = oc(D+8, EB, TB, RB, SB)
            ex = exa + exb
            ch = chain((t+1) % 4, Dn)
            pk = zipl(La, Lb)
            if not safe:
                idx = max(i for i, x in enumerate(pk) if x.startswith(f"  v_pk_mul_f32 {p(TB)}, {p(EB)}"))
                pk.insert(idx+1, f"  v_pk_fma_f32 {p(MAC)}, {p(TA)}, {p(TB)}, {p(MAC)}")
            fin = []
            for o, S in ((0, SA), (1, SB)):
                for xy in range(2):
                    fin.append(f"  v_cvt_f64_f32 {v(CV+2*(2*o+xy),2)}, v{S+xy}")
            for o in range(2):
                for xy in range(2):
                    c = CV + 2*(2*o+xy)
                    fin.append(f"  ds_add_f64 v{AD+2*xy+o}, {v(c,2)} offset:{256*t}" if not OPT["noadd"] else f"  ds_read_b32 v{DUM}, v{vgq}")
            if t == 0:
                pk = pk[:4] + [f"  v_mad_u32_u24 v{AD+i}, v{GN+i}, s{sAS}, v{vacl}" for i in range(4)] + pk[4:]
            if t == 1:
                pk = pk[:8] + [f"  ds_read_b64 {v(ENT,2)}, v{vent} offset:{4096+2048*u}",
                      f"  ds_read_b32 v{vgn1}, v{vgq} offset:{256+256*u}",
                      f"  ds_read_b32 v{vsrow}, v{vrow} offset:{2048+2048*u}",
                      f"  ds_read_b128 {v(GN,4)}, v{vga} offset:{256+256*u}"] + pk[8:]
            if t == 3:
                B.append("  s_waitcnt lgkmcnt(4)")
            dma = dma_issue() if t == 3 else []
            per = 16 // len(ch); e = 0
            for i, m in enumerate(ch):
                B.append(m)
                n = per if i < len(ch)-1 else 16 - e
                B += ex[e:e+n]; e += n
                if OPT["dmapos"] == 0:
                    for _ in range(2):
                        if dma: B += dma.pop(0)
            if t == 2:
                mid = [f"  s_waitcnt vmcnt(0) lgkmcnt(4)",
                       f"  v_mad_u32_u24 v{vqa}, v{vgn1}, s{sQS}, v{vqlane}"]
                rd = frag_reads() + bq_reads()
                aq = [f"  v_lshrrev_b64 {v(AQ,2)}, v{vsrow}, {v(PAT,2)}"]
                if OPT["rdpos"] == 0: B += mid + rd + aq + pk
                else: B += mid + aq + zipl(rd, pk)
            elif t == 3:
                inc = []
                if u == nun - 1:
                    inc = [f"  v_add_u32 v{vent}, {2048*nun}, v{vent}", f"  v_add_u32 v{vrow}, {2048*nun}, v{vrow}",
                           f"  v_add_u32 v{vgq}, {256*nun}, v{vgq}", f"  v_add_u32 v{vga}, {256*nun}, v{vga}"]
                pk = pk + inc
                if OPT["dmapos"] == 1:
                    q = []
                    for i, x in enumerate(pk):
                        if dma and i % 3 == 0: q += dma.pop(0)
                        q.append(x)
                    pk = q
                for x in dma: B += x
                B += pk
            else:
                B += pk
            B += fin
        return B
    def loop(safe):
        lab = "K_SAFE" if safe else "K_FAST"
        nun = 1 if safe else OPT["unroll"]
        L = []
        for u in range(nun):
            L += block_body(safe, u, nun)
            L.append(f"  s_sub_u32 s{sCnt}, s{sCnt}, 1")
            L.append(f"  s_cmp_lg_u32 s{sCnt}, 0")
            L.append(f"  s_cbranch_scc1 {lab}" if u == nun - 1 else f"  s_cbranch_scc0 K_LOOPEND")
        if OPT["align"]: L = align8(L)
        a(f".p2align 6\n{lab}:")
        for x in L: a(x)
    loop(False)
    a(f"""
K_LOOPEND:
  s_waitcnt vmcnt(0) lgkmcnt(0)
  s_barrier""")
    stamp(a, 9, 98)
    a(f"""
  s_cmp_lg_u32 s{sKind}, 0
  s_cbranch_scc1 K_NEXT
K_CELLSDONE:
  v_mov_b32 v{t0}, {L_FLG+32}
  ds_read_b128 {v(CV,4)}, v{t0}
K_CONV:
  s_mul_i32 s{sTmp}, s{sW}, {AS}
  s_add_u32 s{sTmp}, s{sTmp}, {L_ACC}
  v_lshlrev_b32 v{t1}, 4, v{vl}
  v_add_u32 v{t1}, s{sTmp}, v{t1}""")
    for k in range(5):
        a(f"  ds_read_b128 {v(D0+4*k,4)}, v{t1} offset:{k*8*AS}")
    a(f"""
  s_mul_i32 s{sTmp}, s{sW}, {XS}
  s_add_u32 s{sTmp}, s{sTmp}, {L_X}
  v_lshlrev_b32 v{t2}, 2, v{vl}
  v_add_u32 v{t2}, s{sTmp}, v{t2}
  s_cmp_ge_u32 s{sKind}, 3
  s_cbranch_scc1 K_CONV2
  s_waitcnt lgkmcnt(5)
  v_or3_b32 v{t0}, v{CV}, v{CV+1}, v{CV+2}
  v_or_b32 v{t0}, v{t0}, v{CV+3}
  v_cmp_ne_u32 vcc, 0, v{t0}
  s_cbranch_vccnz K_STARTOV
K_CONV2:
  s_mov_b32 s{sTmp}, 0x71800000              ; 2^100
  v_cmp_nle_f32 {s(sBad,2)}, v{MAC}, s{sTmp}
  v_cmp_nle_f32 vcc, v{MAC+1}, s{sTmp}
  s_or_b64 {s(sBad,2)}, {s(sBad,2)}, vcc
  s_movk_i32 s{sTmp}, 0x207""")
    for k in range(5):
        a(f"""
  s_waitcnt lgkmcnt({4-k})
  v_cvt_f32_f64 v{EA+2*k}, {v(D0+4*k,2)}
  v_cvt_f32_f64 v{EA+2*k+1}, {v(D0+4*k+2,2)}
  v_cmp_class_f32 vcc, v{EA+2*k}, s{sTmp}
  s_or_b64 {s(sBad,2)}, {s(sBad,2)}, vcc
  v_cmp_class_f32 vcc, v{EA+2*k+1}, s{sTmp}
  s_or_b64 {s(sBad,2)}, {s(sBad,2)}, vcc
  v_cvt_pk_bf16_f32 v{EB+k}, v{EA+2*k}, v{EA+2*k+1}""")
    for k in range(5):
        a(f"  ds_write_b32 v{t2}, v{EB+k} offset:{k*8*XS}")
    a(f"""
  s_cmp_eq_u64 {s(sBad,2)}, 0
  s_cbranch_scc1 K_OKW
  v_mov_b32 v{t0}, {L_FLG}
  ds_write_b32 v{t0}, v{vone}
K_OKW:
  s_waitcnt lgkmcnt(0)
  s_barrier
  v_mov_b32 v{t0}, {L_FLG}
  ds_read_b32 v{t0}, v{t0}""")
    for nt in range(2):
        for st in range(4):
            a(f"  ds_read_b128 {v(XF+16*nt+4*st,4)}, v{vxb} offset:{nt*16*XS + st*64}")
    a(f"""
  s_waitcnt lgkmcnt(8)
  v_readfirstlane_b32 s{sTmp}, v{t0}
  s_cmp_gt_u32 s{sTmp}, s{sMode}
  {"s_cbranch_scc1 K_RESTART" if not EXP else "s_nop 0"}
  s_waitcnt lgkmcnt(4)""")
    for st in range(4):
        c = "0" if st == 0 else v(D0, 4)
        a(f"  v_mfma_f32_16x16x32_bf16 {v(D0,4)}, {v(WUB+4*st,4)}, {v(XF+4*st,4)}, {c}")
    for st in range(4):
        a(f"  ds_read_b128 {v(D1+4*st,4)}, v{vxb} offset:{2*16*XS + st*64}")
    a("  s_waitcnt lgkmcnt(4)")
    for st in range(4):
        c = "0" if st == 0 else v(D0+4, 4)
        a(f"  v_mfma_f32_16x16x32_bf16 {v(D0+4,4)}, {v(WUB+4*st,4)}, {v(XF+16+4*st,4)}, {c}")
    a("  s_waitcnt lgkmcnt(0)")
    for st in range(4):
        c = "0" if st == 0 else v(D0+8, 4)
        a(f"  v_mfma_f32_16x16x32_bf16 {v(D0+8,4)}, {v(WUB+4*st,4)}, {v(D1+4*st,4)}, {c}")
    a(f"""
  s_mov_b32 s{sK}, {NLN2}
  s_mov_b32 s{sK+1}, {NLN2}
  s_mov_b32 s{sTmp}, {NLOG2E}
  s_mov_b32 s{sTmp+1}, {NLOG2E}
  v_and_b32 v{t0}, 15, v{vl}
  v_lshlrev_b32 v{t0}, 8, v{t0}
  v_lshrrev_b32 v{t1}, 4, v{vl}
  v_lshl_add_u32 v{t0}, v{t1}, 3, v{t0}
  s_lshl_b32 s{sTmp+2}, s{sW}, 5
  v_add_u32 v{t0}, s{sTmp+2}, v{t0}
  v_add_u32 v{t1}, 4096, v{t0}
  v_add_u32 v{t2}, 8192, v{t0}""")
    for nt in range(3):
        d = D0 + 4*nt
        a(f"""
  v_pk_fma_f32 {p(d)}, {p(d)}, {s(sK,2)}, {p(U+4*nt)}
  v_pk_fma_f32 {p(d+2)}, {p(d+2)}, {s(sK,2)}, {p(U+4*nt+2)}
  v_pk_mul_f32 {p(EA)}, {p(d)}, {s(sTmp,2)}
  v_pk_mul_f32 {p(EA+2)}, {p(d+2)}, {s(sTmp,2)}""")
        for i in range(4): a(f"  v_exp_f32 v{EA+i}, v{EA+i}")
        a(f"  s_nop 0\n  v_pk_add_f32 {p(EA)}, {p(EA)}, 1.0 op_sel_hi:[1,0]\n  v_pk_add_f32 {p(EA+2)}, {p(EA+2)}, 1.0 op_sel_hi:[1,0]")
        for i in range(4): a(f"  v_rcp_f32 v{EA+i}, v{EA+i}")
        a(f"""
  s_nop 0
  v_pk_mul_f32 {p(d)}, {p(d)}, {p(EA)}
  v_pk_mul_f32 {p(d+2)}, {p(d+2)}, {p(EA+2)}
  v_cvt_pk_bf16_f32 v{EB+2*nt}, v{d}, v{d+1}
  v_cvt_pk_bf16_f32 v{EB+2*nt+1}, v{d+2}, v{d+3}
  buffer_store_dwordx2 {v(EB+2*nt,2)}, v{t0+nt}, {s(SO,4)}, 0 offen""")
    if OPT["stamp"]:
        a(f"""
  s_waitcnt vmcnt(0)
  s_memrealtime s[4:5]
  s_waitcnt lgkmcnt(0)
  s_lshl_b32 s6, s2, 3
  s_add_u32 s6, s6, s{sW}
  s_lshl_b32 s6, s6, 6
  s_add_u32 s6, s6, {WS_STAMP}
  s_add_u32 s6, s{pWS}, s6
  s_addc_u32 s7, s{pWS+1}, 0
  s_mov_b64 exec, 1
  v_mov_b32 v1, 0""")
        for i, r in enumerate([80+2*i for i in range(8)] + [96, 98, 4]):
            pass
        regs = [80, 82, 84, 86, 88, 90, 92, 94, 8, 9, 4, 10, 11, sT]
        for i, r in enumerate(regs):
            a(f"  v_mov_b32 v2, s{r}\n  global_store_dword v1, v2, s[6:7] offset:{4*i}")
    a(f"""
K_END:
  s_endpgm
""")
    a(f"""
K_PREP:
  s_cmp_ge_u32 s2, {2*G+4}
  s_cbranch_scc1 K_PREPD
  s_cmp_eq_u32 s2, {2*G+3}
  s_cbranch_scc1 K_PREP3
  s_cmp_eq_u32 s2, {2*G}
  s_cselect_b32 s{T0}, s{pWM}, s{pWU}
  s_cselect_b32 s{T0+1}, s{pWM+1}, s{pWU+1}
  s_cmp_eq_u32 s2, {2*G+1}
  s_cselect_b32 s{sq}, 0, 32768
  s_add_u32 s{T0}, s{T0}, s{sq}
  s_addc_u32 s{T0+1}, s{T0+1}, 0
  s_mov_b32 s{T0+2}, 32768
  s_mov_b32 s{T0+3}, 0x20000""")
    wfrag_loads(a, T0, vqa, WR, T2)
    a(f"""
  s_sub_u32 s{sq}, s2, {2*G}
  s_lshl_b32 s{sq}, s{sq}, 15
  s_lshl_b32 s{sq+1}, s{sW}, 12
  s_add_u32 s{sq}, s{sq}, s{sq+1}
  v_lshlrev_b32 v{t0}, 4, v{vl}
  s_waitcnt vmcnt(0)""")
    wfrag_pack(a, WR, PF)
    for st in range(4):
        a(f"  buffer_store_dwordx4 {v(PF+4*st,4)}, v{t0}, {s(SW,4)}, s{sq} offen offset:{st*1024} sc1")
    a(f"""
  s_branch K_PREPD
K_PREP3:
  s_cmp_ge_u32 s{sW}, 4
  s_cbranch_scc1 K_PREPD""")
    srd(a, T0, pWM, 16*256, add=256*256)
    a(f"""
  v_and_b32 v{t0}, 31, v{vl}
  v_lshrrev_b32 v{t1}, 5, v{vl}
  v_lshlrev_b32 v{t1}, 11, v{t1}
  v_lshl_add_u32 v{t1}, v{t0}, 1, v{t1}
  s_lshl_b32 s{sq}, s{sW}, 6""")
    for jj in range(8):
        a(f"  buffer_load_ushort v{PF+jj}, v{t1}, {s(T0,4)}, s{sq} offen offset:{jj*256}")
    a(f"  s_mov_b32 s{sq+1}, {NLOG2E}\n  v_lshlrev_b32 v{t0}, 4, v{vl}\n  s_lshl_b32 s{sq}, s{sW}, 10\n  s_waitcnt vmcnt(0)")
    for jj in range(8):
        a(f"  v_lshlrev_b32 v{PF+jj}, 16, v{PF+jj}\n  v_mul_f32 v{PF+jj}, s{sq+1}, v{PF+jj}")
    for i in range(4):
        a(f"  v_cvt_pk_bf16_f32 v{PF+8+i}, v{PF+2*i}, v{PF+1+2*i}")
    for i in range(4):
        a(f"""
  v_lshlrev_b32 v{t2}, 16, v{PF+8+i}
  v_and_b32 v{t3}, 0xffff0000, v{PF+8+i}
  v_sub_f32 v{t2}, v{PF+2*i}, v{t2}
  v_sub_f32 v{t3}, v{PF+1+2*i}, v{t3}
  v_cvt_pk_bf16_f32 v{PF+12+i}, v{t2}, v{t3}""")
    a(f"""
  s_add_u32 s{sq+1}, s{sq}, {WF_3L}
  s_add_u32 s{sq}, s{sq}, {WF_3H}
  buffer_store_dwordx4 {v(PF+8,4)}, v{t0}, {s(SW,4)}, s{sq} offen sc1
  buffer_store_dwordx4 {v(PF+12,4)}, v{t0}, {s(SW,4)}, s{sq+1} offen sc1
K_PREPD:""")
    own_x(0)
    a(f"  s_cmp_lt_u32 s{sW}, 4\n  s_cbranch_scc1 K_DONE2")
    prefetch()
    a("  s_branch K_DONE2")
    a(f"""
K_OVF:
  s_mul_i32 s{sq}, s2, {OVSTR}
  s_add_u32 s{sq}, s{sq}, 64
  v_mov_b32 v{t5}, {L_FLG+8}
  v_mov_b32 v{t6}, -1""")
    for j in range(5):
        a(f"""
  v_cmp_le_u32 vcc, {CAP-1}, v{RK+j}
  s_and_b64 exec, exec, vcc
  s_cbranch_execz K_OV{j}
  v_add_u32 v{t1}, {L_BCNT}, v{B4+j}
  ds_read_b32 v{t1}, v{t1}
  s_waitcnt lgkmcnt(0)
  v_cmp_ne_u32 vcc, {CAP}, v{t1}
  s_nop 1
  v_cndmask_b32 v{t3}, v{SS_+j}, v{t6}, vcc
  ds_write_b32 v{CA+j}, v{t3} offset:{CELLB-4}
  s_and_b64 exec, exec, vcc
  s_cbranch_execz K_OV{j}
  ds_add_rtn_u32 v{t1}, v{t5}, v{vone}
  v_mov_b32 v{CV}, v{SS_+j}
  v_lshrrev_b32 v{CV+1}, 2, v{B4+j}
  s_waitcnt lgkmcnt(0)
  v_lshl_add_u32 v{t1}, v{t1}, 3, s{sq}
  buffer_store_dwordx2 {v(CV,2)}, v{t1}, {s(SV,4)}, 0 offen sc1
  s_waitcnt vmcnt(0)
K_OV{j}:
  s_mov_b64 exec, -1""")
    a("  s_waitcnt lgkmcnt(0)")
    a("  s_branch K_OVFDONE")
    loop(True)
    a("  s_branch K_LOOPEND")
    a(f"""
K_NOGEMM0:
  s_waitcnt vmcnt(0)
  s_branch K_NOGEMM
K_RESTART:
  s_mov_b32 s{sMode}, 1
  s_mov_b32 s{sKind}, 0
  s_waitcnt lgkmcnt(0)
  s_barrier
  v_mov_b32 v{CV}, 0
  v_mov_b32 v{CV+1}, 0
  v_mov_b32 v{CV+2}, 0
  v_mov_b32 v{CV+3}, 0""")
    for j in range(5):
        a(f"  ds_write_b128 v{vt16}, {v(CV,4)} offset:{L_ACC + j*8192}")
    a(f"""
  v_cmp_gt_u32 vcc, {(40*AS-5*8192)//16}, v0
  s_and_saveexec_b64 {s(sEx,2)}, vcc
  ds_write_b128 v{vt16}, {v(CV,4)} offset:{L_ACC + 5*8192}
  s_mov_b64 exec, {s(sEx,2)}
  s_branch K_RELOAD
K_SPLIT:
  s_mov_b32 s{sKind}, 1
  s_waitcnt lgkmcnt(0)
  s_barrier
  s_branch K_RELOAD
K_NEXT:
  s_cmp_eq_u32 s{sKind}, 4
  s_cbranch_scc1 K_NEXTOV
  s_cmp_eq_u32 s{sKind}, 3
  s_cbranch_scc1 K_OVPART1
  s_cmp_eq_u32 s{sKind}, 2
  s_cbranch_scc1 K_CELLSDONE
  s_mov_b32 s{sKind}, 2
K_RELOAD:
  v_lshrrev_b32 v{t1}, 2, v0
  s_mov_b32 s{sq}, {CH*32}
  v_mul_u32_u24 v{vebase}, s{sq}, v{t1}
  s_waitcnt vmcnt(0)""")
    for k in range(2):
        a(f"  buffer_load_dwordx4 {v(REC+4*k,4)}, v{vcell}, {s(SC,4)}, 0 offen offset:{64*k} sc1")
    a(f"""
  s_waitcnt vmcnt(0)
  s_cmp_eq_u32 s{sKind}, 0
  s_cbranch_scc1 K_ROUND
  s_lshr_b32 s{sq}, s{sW}, 2
  s_add_u32 s{sq}, s{sq}, 1
  s_cmp_eq_u32 s{sq}, s{sKind}
  s_cbranch_scc1 K_ROUND""")
    for k in range(NR): a(f"  v_mov_b32 v{REC+k}, 0")
    a(f"""
K_ROUND:
  v_mov_b32 v{CV}, 0
  v_mov_b32 v{CV+1}, 0
  v_mov_b32 v{CV+2}, 0
  v_mov_b32 v{CV+3}, 0
  v_cmp_gt_u32 vcc, {(L_FLG-L_GN)//16}, v0
  s_and_saveexec_b64 {s(sEx,2)}, vcc
  ds_write_b128 v{vt16}, {v(CV,4)} offset:{L_GN}
  s_mov_b64 exec, {s(sEx,2)}""")
    prefill()
    a(f"""
  v_and_b32 v{vent}, 2047, v{vent}
  v_and_b32 v{vrow}, 2047, v{vrow}
  v_subrev_u32 v{vga}, {L_GN}, v{vga}
  v_and_b32 v{vga}, 255, v{vga}
  v_add_u32 v{vga}, {L_GN}, v{vga}
  v_and_b32 v{t2}, 12, v{vl}
  v_add_u32 v{vgq}, v{vga}, v{t2}
  s_waitcnt lgkmcnt(0)
  s_barrier
  s_branch K_PHASE1
K_STARTOV:""")
    for i in range(4): a(f"  v_readfirstlane_b32 s{sOV+i}, v{CV+i}")
    a(f"""
  s_mov_b32 s{sKind}, 4
  s_waitcnt lgkmcnt(0)
K_NEXTOV:""")
    for i in range(2):
        a(f"""
  s_ff1_i32_b64 s{sP}, {s(sOV+2*i,2)}
  s_cmp_eq_u32 s{sP}, -1
  s_cbranch_scc1 K_OVN{i}
  s_bitset0_b64 {s(sOV+2*i,2)}, s{sP}
  s_add_u32 s{sP}, s{sP}, {64*i}
  s_branch K_OVGO
K_OVN{i}:""")
    a(f"""
  s_branch K_CONV
K_OVGO:
  s_mov_b32 s{sKind}, 3
  v_mov_b32 v{t4}, v0
  s_branch K_OVLD
K_OVPART1:
  s_mov_b32 s{sKind}, 4
  v_add_u32 v{t4}, 2048, v0
K_OVLD:
  s_mul_i32 s{sq}, s{sP}, {OVSTR}
  s_mul_i32 s{sq+1}, s{sP}, {CH*32}
  v_mov_b32 v{vebase}, s{sq+1}
  v_mov_b32 v{t0}, s{sq}
  buffer_load_dword v{t1}, v{t0}, {s(SV,4)}, 0 offen sc1
  v_lshl_add_u32 v{t2}, v{t4}, 3, v{t0}""")
    for k in range(4):
        a(f"  buffer_load_dwordx2 {v(PF+2*k,2)}, v{t2}, {s(SV,4)}, 0 offen offset:64 sc1\n  v_add_u32 v{t2}, 4096, v{t2}")
    a(f"  s_waitcnt vmcnt(0)")
    for k in range(4):
        a(f"""
  v_cmp_lt_u32 vcc, v{t4}, v{t1}
  v_cmp_eq_u32 {s(sEx,2)}, s2, v{PF+2*k+1}
  s_and_b64 vcc, vcc, {s(sEx,2)}
  v_add_u32 v{t4}, 512, v{t4}
  s_nop 1
  v_cndmask_b32 v{REC+k}, 0, v{PF+2*k}, vcc""")
    for k in range(4, NR): a(f"  v_mov_b32 v{REC+k}, 0")
    a("  s_branch K_ROUND")
    return a.text(), nv, NS

HEAD = """; Kernarg layout for this problem (72 bytes, ptrs only, base s[0:1]):
"""
def main():
    k, nv, ns = gen()
    out = HEAD + f"; @launch grid=({NB},1,1) block=(512,1,1) lds={LDS}\n"
    out += '.amdgcn_target "amdgcn-amd-amdhsa--gfx950"\n.text\n' + k
    out += f""".section .rodata,"a"
.p2align 6
.amdhsa_kernel {KN}
  .amdhsa_next_free_vgpr {nv}
  .amdhsa_next_free_sgpr {ns}
  .amdhsa_accum_offset {(nv+3)//4*4}
  .amdhsa_group_segment_fixed_size 0
  .amdhsa_kernarg_size 72
  .amdhsa_user_sgpr_count 2
  .amdhsa_user_sgpr_kernarg_segment_ptr 1
  .amdhsa_system_sgpr_workgroup_id_x 1
.end_amdhsa_kernel
"""
    open(sys.argv[1], "w").write(out)
    print("vgprs", nv, "lds", LDS)
main()
```

```python
from common import *

N = 10000; E = 320000
G = 125
CH = 2560
NB = 256
MAGIC = 26843
CAP = 32
CELLB = CAP * 4
BSTR = G * CELLB

WS_P = 256
WS_CELL = 0x280000
WS_WF = 0x1280000
WF_W2, WF_UT, WF_UB, WF_3H, WF_3L = 0, 32768, 65536, 98304, 102400
WF_SIZE = 106496
WS_OVF = 0x12A0000
OVSTR = 64 + CH * 8
WS_FLAG = 0x1520000
WS_STAMP = 0x1600000

OPT = dict(lo=0, k8=1, stamp=0, nodma=0, noadd=0, noe=0, hot=0, align=1, unroll=2, dmapos=0, rdpos=0, dsc=1, pf=1, slp=0, stf=1, addpos=0, rdgap=0, prio=0, bench=0, octo=1, frep=8, fln=16, slp0=0, plf=1, flf=1, diag=-1, touch=0, dz=0)
for a_ in sys.argv[2:]:
    k_, v_ = a_.split("="); OPT[k_] = int(v_)
EXP = OPT["bench"] or OPT["nodma"] or OPT["noe"] or OPT["noadd"] or OPT["hot"]

FL_ = ['', 'sc1', 'sc0 sc1', 'sc1 nt', 'sc0 sc1 nt']; PLF = FL_[OPT['plf']]; FLF = FL_[OPT['flf']]
STF = ['', 'sc1', 'sc0 sc1', 'sc1 nt'][OPT['stf']]
FREP = OPT['frep']; FLN = OPT['fln']; FSH = (128//FLN).bit_length()-1; FHALF = FREP*FLN*256; FNON = 2*FHALF; FMASK = hex((1<<FREP)-1)
CAPB = 70
L_ENT = 0
L_GN = (CAPB + 1) * 256
L_CNT = L_GN + (CAPB + 17) * 32
L_FLG = L_CNT + 256
L_ACC = L_FLG + 64
AS = 1040
L_Q = L_ACC + 40 * AS
QS = 320
L_X = L_Q + 40 * QS
XS = 272
L_STG = L_X + 40 * XS
STG = 8 * 1040 + 1024
LDS = L_STG + 8 * STG
L_CIMG = L_STG
L_BCNT = L_CIMG + NB * CELLB
WPITCH = 1088
L_GP = L_STG + 1024
L_WS = L_STG + 32 * WPITCH
assert L_BCNT + 1024 <= LDS and L_STG % 16 == 0 and L_ACC % 16 == 0
PADS, PADE = 0x8000003f, 0x80000000
KN = "standalone__mpnn_edge_mlp__graph_kernel"

def stamp(a, i, cyc=None):
    if OPT["stamp"]:
        if cyc is None:
            a(f"  s_memrealtime s[{80+2*i}:{81+2*i}]\n  s_waitcnt lgkmcnt(0)")
        else:
            a(f"  s_memrealtime s[96:97]\n  s_memtime s[98:99]\n  s_waitcnt lgkmcnt(0)\n  s_mov_b32 s{i}, s96\n  s_mov_b32 s{i+2}, s98")

def gen():
    a = Asm()
    R = Regs(1)
    al = R.alloc
    vl = al("lane")
    t0 = al("t", 8, 2); t1, t2, t3, t4, t5, t6, t7 = range(t0+1, t0+8)
    vchunk = al("vchunk"); vechunk = al("vechunk")
    vent = al("vent"); vrow = al("vrow"); vgq = al("vgq"); vga = al("vga")
    vAlo = al("Alo"); vAhi = al("Ahi"); vEF = al("vEF")
    vqlane = al("vqlane"); vacl = al("vacl"); vxb = al("vxb"); vqw = al("vqw")
    vebase = al("vebase"); vone = al("vone"); vt16 = al("vt16"); vcell = al("vcell")
    vqa = al("vqa"); vsrow = al("vsrow"); vgn1 = al("vgn1")
    ENT = al("ENT", 2, 2)
    MAC = al("MAC", 2, 2)
    PAT = al("PAT", 2, 2)
    nq = 2 if OPT["k8"] else 4
    AQ = al("AQ", nq, 2)
    GN = al("GN", 4, 2); AD = al("AD", 4)
    DO = al("DO", 2)
    I0 = al("I0", 4, 2); I1 = al("I1", 4, 2)
    W3 = al("W3", 16, 2)
    W3L = al("W3L", 16, 2) if OPT["lo"] else None
    BQ = al("BQ", 4*nq, 2)
    EF = al("EF", 4, 2)
    PF = al("PF", 32, 2)
    D0 = al("D0", 16, 2); D1 = al("D1", 16, 2)
    EA = al("EA", 8, 2); TA = al("TA", 8, 2); EB = al("EB", 8, 2); TB = al("TB", 8, 2)
    RA = al("RA", 2, 2); RB = al("RB", 2, 2)
    SA = al("SA", 2, 2); SB = al("SB", 2, 2)
    CV = al("CV", 8, 2)
    U = al("U", 12, 2); WUB = al("WUB", 16, 2)
    DUM = al("DUM", 4, 2)
    DK = al("DK", 4, 2)
    nv = R.n
    assert TA == EA + 8 and EB == EA + 16 and TB == EA + 24 and D1 == D0 + 16
    DD = D0; SS_ = D0 + 5; B4 = D0 + 10; RK = D0 + 15; CA = D0 + 20
    CP = PF
    GX = W3
    XL = U
    W1F = WUB
    REC = D0; NOD = D0 + 8; RNK = D1
    W2F = EA; WUT = EB; XF = PF; QD = CV
    sW = 3
    pX, pE, pS, pD, pWM, pWU, pO, pWS = 4, 6, 8, 10, 12, 14, 16, 18
    SP, SE, SC, SW, SO, SV, SF = 20, 24, 28, 32, 36, 40, 44
    T0, T1, T2 = 48, 52, 56
    sStart, sNb, sStg, sCnt, sT, sMode, sKind, sFirst = 60, 61, 62, 63, 64, 65, 66, 67
    sAS, sQS, sTag, sP, sUB, sLo2 = 68, 69, 70, 71, 72, 73
    sCO = 59
    sNp = 79
    sEx, sK, sBad = 74, 76, 78
    sTmp = 4
    sA = 48
    sOV = 48
    sOVT = 74
    sq = 100
    if OPT["stamp"]: NS = 102
    else: NS = 102

    a(f"""
.globl {KN}
.p2align 8
.type {KN},@function
{KN}:
  s_cmp_ge_u32 s2, {NB}
  s_cbranch_scc1 K_END""")
    if OPT["stamp"]: a("  s_memrealtime s[80:81]")
    a(f"""
  s_load_dwordx8 s[4:11], s[0:1], 0
  s_load_dwordx4 s[12:15], s[0:1], 32
  s_load_dwordx2 s[16:17], s[0:1], 48
  s_load_dwordx2 s[18:19], s[0:1], 64
  v_lshrrev_b32 v{t0}, 6, v0
  v_and_b32 v{vl}, 63, v0
  s_and_b32 s{sP}, s2, {FREP-1}
  s_mul_i32 s{sP}, s{sP}, {FLN*256}
  s_and_b32 s{sq}, s2, 7
  s_lshl_b32 s{sq}, s{sq}, 1
  s_bfe_u32 s{sq+1}, s2, 0x10003
  s_and_b32 s2, s2, 0xf0
  s_or_b32 s2, s2, s{sq}
  s_or_b32 s2, s2, s{sq+1}
  s_mul_i32 s{sStart}, s2, 640013
  v_readfirstlane_b32 s{sW}, v{t0}
  s_add_u32 s{sNb}, s{sStart}, {640013+16383}
  s_add_u32 s{sStart}, s{sStart}, 16383
  s_sub_u32 s{sNp}, s{sStart}, 640013
  s_lshr_b32 s{sStart}, s{sStart}, 14
  s_lshr_b32 s{sNb}, s{sNb}, 14
  s_lshr_b32 s{sNp}, s{sNp}, 14
  s_min_u32 s{sNb}, s{sNb}, {N}
  s_sub_u32 s{sCnt}, s{sNb}, s{sNp}
  s_sub_u32 s{sNb}, s{sNb}, s{sStart}
  s_lshl_b32 s{sT}, s{sNp}, 8
  s_sub_u32 s{sNp}, s{sStart}, s{sNp}
  s_mov_b32 s{sMode}, 0
  s_mov_b32 s{sKind}, 0
  s_mov_b32 s{sFirst}, 1
  s_mov_b32 s{sAS}, {AS}
  s_mov_b32 s{sQS}, {QS}
  s_mul_i32 s{sStg}, s{sW}, {STG}
  s_add_u32 s{sStg}, s{sStg}, {L_STG}
  v_lshlrev_b32 v{vt16}, 4, v0
  s_mul_i32 s{sq}, s2, {CH*2}
  v_lshl_add_u32 v{t2}, v0, 2, s{sq}
  v_add_u32 v{t3}, 4096, v{t2}
  v_lshrrev_b32 v{t4}, 4, v{vl}
  v_lshlrev_b32 v{t0}, 1, v{t4}
  v_xor_b32 v{t0}, v{t0}, v{vl}
  v_lshlrev_b32 v{t0}, 4, v{t0}
  s_lshl_b32 s{sq}, s{sW}, 12
  v_add_u32 v{t7}, s{sq}, v{t0}
  s_mul_i32 s{sUB}, s{sW}, {4*WPITCH}
  s_add_u32 s{sUB}, s{sUB}, {L_WS}
  v_add_u32 v{t6}, 8192, v{vt16}
  v_add_u32 v{t5}, 16384, v{vt16}
  s_bitcmp1_b32 s2, 0
  s_waitcnt lgkmcnt(0)
  s_cbranch_scc1 K_LDG
  s_cmp_ge_u32 s2, {2*G}
  s_cbranch_scc1 K_LDP""")
    srd(a, T0, pD, E*4)
    srd(a, T1, pS, E*4)
    a(f"  s_movk_i32 s{sq}, 0x2000")
    for r_, T in ((DD, T0), (SS_, T1)):
        a(f"""
  buffer_load_dword v{r_}, v{t2}, {s(T,4)}, 0 offen
  buffer_load_dword v{r_+1}, v{t2}, {s(T,4)}, 0 offen offset:2048
  buffer_load_dword v{r_+2}, v{t3}, {s(T,4)}, 0 offen
  buffer_load_dword v{r_+3}, v{t3}, {s(T,4)}, 0 offen offset:2048
  buffer_load_dword v{r_+4}, v{t2}, {s(T,4)}, s{sq} offen""")
    def wdma(T):
        for q in range(4):
            a(f"  s_add_u32 m0, s{sUB}, {64*q}\n  s_nop 0\n  buffer_load_dwordx4 v{t7}, {s(T,4)}, 0 offen offset:{1024*q} lds")
    a(f"""
K_LDX:
  s_lshl_b32 s{sq}, s{sStart}, 8
  s_lshl_b32 s{sq+1}, s{sNb}, 8""")
    srd(a, T2, pX, f"s{sq+1}", addreg=sq)
    a(f"""
  buffer_load_dwordx4 {v(XL,4)}, v{vt16}, {s(T2,4)}, 0 offen
  buffer_load_dwordx4 {v(XL+4,4)}, v{t6}, {s(T2,4)}, 0 offen
  s_branch K_LD3
K_LDP:
  s_cmp_eq_u32 s2, {2*G}
  s_cselect_b32 s{T1}, s{pWM}, s{pWU}
  s_cselect_b32 s{T1+1}, s{pWM+1}, s{pWU+1}
  s_cmp_eq_u32 s2, {2*G+2}
  s_cselect_b32 s{sq}, 0, 32768
  s_add_u32 s{T1}, s{T1}, s{sq}
  s_addc_u32 s{T1+1}, s{T1+1}, 0
  s_mov_b32 s{T1+2}, 32768
  s_mov_b32 s{T1+3}, 0x20000""")
    wdma(T1)
    srd(a, T0, pWM, 16*256, add=256*256)
    a(f"""
  v_and_b32 v{t0}, 31, v{vl}
  v_lshrrev_b32 v{t1}, 5, v{vl}
  v_lshlrev_b32 v{t1}, 11, v{t1}
  v_lshl_add_u32 v{t1}, v{t0}, 1, v{t1}
  s_and_b32 s{sq}, s{sW}, 3
  s_lshl_b32 s{sq}, s{sq}, 6""")
    for jj in range(8):
        a(f"  buffer_load_ushort v{D0+jj}, v{t1}, {s(T0,4)}, s{sq} offen offset:{jj*256}")
    a(f"""
  s_branch K_LDX
K_LDG:
  s_lshl_b32 s{sCnt}, s{sCnt}, 8""")
    srd(a, T0, pX, f"s{sCnt}", addreg=sT)
    srd(a, T1, pWM, 128*256)
    a(f"""
  buffer_load_dwordx4 {v(GX,4)}, v{vt16}, {s(T0,4)}, 0 offen
  buffer_load_dwordx4 {v(GX+4,4)}, v{t6}, {s(T0,4)}, 0 offen
  buffer_load_dwordx4 {v(GX+8,4)}, v{t5}, {s(T0,4)}, 0 offen""")
    wdma(T1)
    a(f"""
K_LD3:
  s_add_u32 s{SF}, s{pWS}, {WS_FLAG}
  s_addc_u32 s{SF+1}, s{pWS+1}, 0
  s_load_dword s{sTag}, s[{SF}:{SF+1}], {FNON}
  s_mov_b32 s{SF+2}, {FNON+4}
  s_mov_b32 s{SF+3}, 0x20000
  v_lshrrev_b32 v{t1}, 2, v0
  v_and_b32 v{t4}, 3, v0
  v_lshlrev_b32 v{t4}, 4, v{t4}
  v_lshl_add_u32 v{vcell}, v{t1}, 7, v{t4}
  s_mov_b32 s{sq}, {CH*32}
  v_mul_u32_u24 v{vebase}, s{sq}, v{t1}""")
    a(f"""
  v_mov_b32 v{CV}, 0
  v_mov_b32 v{CV+1}, 0
  v_mov_b32 v{CV+2}, 0
  v_mov_b32 v{CV+3}, 0
  v_add_u32 v{t0}, {L_CIMG}, v{vt16}""")
    a(f"  s_bitcmp1_b32 s2, 0\n  s_cbranch_scc1 K_NOZ")
    for j in range(4):
        a(f"  ds_write_b128 v{t0}, {v(CV,4)} offset:{j*8192}")
    a(f"  s_cmp_lg_u32 s{sW}, 0\n  s_cbranch_scc1 K_NOZ\n  ds_write_b128 v{t0}, {v(CV,4)} offset:32768")
    a("K_NOZ:")
    for j in range(5):
        a(f"  ds_write_b128 v{vt16}, {v(CV,4)} offset:{L_GN + j*8192}")
    a(f"""
  v_cmp_gt_u32 vcc, {(L_Q-L_GN-5*8192)//16}, v0
  s_and_saveexec_b64 {s(sEx,2)}, vcc
  ds_write_b128 v{vt16}, {v(CV,4)} offset:{L_GN + 5*8192}
  s_mov_b64 exec, {s(sEx,2)}""")
    def prefill():
        a(f"""
  v_mov_b32 v{CV+4}, {PADS}
  v_mov_b32 v{CV+5}, {PADE}
  v_mov_b32 v{CV+6}, {PADS}
  v_mov_b32 v{CV+7}, {PADE}
  ds_write_b128 v{vt16}, {v(CV+4,4)}
  ds_write_b128 v{vt16}, {v(CV+4,4)} offset:8192
  v_cmp_gt_u32 vcc, {(L_GN-16384)//16}, v0
  s_and_saveexec_b64 {s(sEx,2)}, vcc
  ds_write_b128 v{vt16}, {v(CV+4,4)} offset:16384
  s_mov_b64 exec, {s(sEx,2)}""")
    prefill()
    a(f"  s_mul_i32 s{sq}, s2, {BSTR}\n  s_lshl_b32 s{sq+1}, s{sStart}, 8\n  s_lshl_b32 s{sK}, s{sNb}, 8")
    srd(a, SC, pWS, G*CELLB, add=WS_CELL, addreg=sq)
    srd(a, SP, pWS, (N+1)*256)
    srd(a, SE, pE, E*32)
    srd(a, SW, pWS, WF_SIZE, add=WS_WF)
    srd(a, SO, pO, f"s{sK}", addreg=sq+1)
    srd(a, SV, pWS, G*OVSTR, add=WS_OVF)
    a(f"""
  v_mov_b32 v{vone}, 1
  v_mov_b32 v{MAC}, 0
  v_mov_b32 v{MAC+1}, 0
  v_and_b32 v{t0}, 15, v{vl}                 ; l&15
  v_bfe_u32 v{t1}, v{vl}, 4, 1               ; r4&1
  v_lshlrev_b32 v{t2}, 3, v{t1}
  v_xor_b32 v{t2}, v{t0}, v{t2}
  v_lshlrev_b32 v{vchunk}, 4, v{t2}
  v_and_b32 v{t2}, 1, v{vl}
  v_xor_b32 v{t2}, v{t2}, v{t1}
  v_lshlrev_b32 v{vechunk}, 4, v{t2}
  v_lshrrev_b32 v{t2}, 4, v{vl}
  v_lshlrev_b32 v{t2}, 6, v{t2}
  v_lshrrev_b32 v{t4}, 1, v{t0}
  v_lshl_add_u32 v{t2}, v{t4}, 3, v{t2}
  s_lshl_b32 s{sq}, s{sW}, 8
  v_add_u32 v{vent}, s{sq}, v{t2}
  v_bfe_u32 v{t2}, v{vl}, 2, 1               ; h
  v_and_b32 v{t4}, 1, v{vl}                  ; xy
  v_lshl_add_u32 v{t5}, v{t2}, 1, v{t4}      ; r4
  v_bfe_u32 v{t6}, v{vl}, 3, 2
  v_bfe_u32 v{t7}, v{vl}, 1, 1
  v_lshl_add_u32 v{t6}, v{t6}, 1, v{t7}      ; j
  v_lshl_add_u32 v{t7}, v{t5}, 3, v{t6}      ; q = 8 r4 + j
  v_lshlrev_b32 v{t7}, 3, v{t7}
  v_add_u32 v{vrow}, s{sq}, v{t7}
  v_lshrrev_b32 v{t7}, 5, v{vl}              ; hh
  v_mul_u32_u24 v{vAlo}, 1040, v{t6}
  v_lshl_add_u32 v{vAlo}, v{t5}, 8, v{vAlo}
  v_lshl_add_u32 v{vAlo}, v{t7}, 4, v{vAlo}
  v_add_u32 v{vAlo}, s{sStg}, v{vAlo}
  v_xor_b32 v{vAhi}, 1, v{t4}
  v_lshl_add_u32 v{vAhi}, v{vAhi}, 7, v{vAlo}
  v_lshl_add_u32 v{vAlo}, v{t4}, 7, v{vAlo}
  v_xor_b32 v{vEF}, v{t7}, v{t4}
  v_lshl_add_u32 v{vEF}, v{t6}, 1, v{vEF}
  v_lshl_add_u32 v{vEF}, v{t5}, 4, v{vEF}
  v_lshlrev_b32 v{vEF}, 4, v{vEF}
  s_add_u32 s{sq+1}, s{sStg}, 8320
  v_add_u32 v{vEF}, s{sq+1}, v{vEF}
  v_bfe_u32 v{t5}, v{vl}, 4, 1               ; o
  v_lshlrev_b32 v{t5}, 4, v{t5}
  v_mov_b32 v{t6}, 0x3f80
  v_lshlrev_b32 v{t5}, v{t5}, v{t6}
  v_cmp_eq_u32 vcc, v{t7}, v{t2}
  s_nop 1
  v_cndmask_b32 v{t5}, 0, v{t5}, vcc
  v_cmp_eq_u32 vcc, 0, v{t4}
  s_nop 1
  v_cndmask_b32 v{PAT}, 0, v{t5}, vcc
  v_cndmask_b32 v{PAT+1}, v{t5}, 0, vcc
  s_lshl_b32 s{sq}, s{sW}, 5
  s_add_u32 s{sq+1}, s{sq}, {L_GN}
  v_lshlrev_b32 v{vga}, 4, v{t7}
  v_add_u32 v{vga}, s{sq+1}, v{vga}
  v_and_b32 v{t2}, 12, v{vl}
  v_add_u32 v{vgq}, v{vga}, v{t2}
  v_and_b32 v{t2}, 3, v{vl}
  v_lshlrev_b32 v{t2}, 3, v{t2}
  v_lshl_add_u32 v{t2}, v{t1}, 5, v{t2}
  v_add_u32 v{vqlane}, {L_Q}, v{t2}
  v_and_b32 v{t2}, 31, v{vl}
  v_lshlrev_b32 v{t4}, 3, v{t2}
  v_add_u32 v{vacl}, {L_ACC}, v{t4}
  v_lshrrev_b32 v{t4}, 4, v{vl}              ; g
  v_mul_u32_u24 v{vxb}, {XS}, v{t0}
  v_lshl_add_u32 v{vxb}, v{t4}, 4, v{vxb}
  v_add_u32 v{vxb}, {L_X}, v{vxb}
  v_mul_u32_u24 v{vqw}, {QS}, v{t0}
  v_lshl_add_u32 v{vqw}, v{t4}, 3, v{vqw}
  s_add_u32 s{sq+1}, s{sq}, {L_Q}
  v_add_u32 v{vqw}, s{sq+1}, v{vqw}
  v_mul_u32_u24 v{vqa}, {2*WPITCH}, v{t4}
  v_bfe_u32 v{t5}, v{vl}, 2, 2
  v_lshl_add_u32 v{vqa}, v{t5}, 8, v{vqa}
  v_xor_b32 v{t5}, s{sW}, v{t5}
  v_lshl_add_u32 v{vqa}, v{t5}, 5, v{vqa}
  v_and_b32 v{t5}, 3, v{vl}
  v_lshl_add_u32 v{vqa}, v{t5}, 3, v{vqa}
  v_add_u32 v{vqa}, {L_WS}, v{vqa}
  v_and_b32 v{t4}, 1, v{vl}
  v_lshlrev_b32 v{t4}, 4, v{t4}
  v_lshlrev_b32 v{t4}, v{t4}, v{t6}
  v_bfe_u32 v{t5}, v{vl}, 1, 4
  v_lshlrev_b32 v{t7}, 2, v{t7}
  v_sub_u32 v{t5}, v{t5}, v{t7}""")
    for i in range(4):
        a(f"  v_cmp_eq_u32 vcc, {i}, v{t5}\n  s_nop 1\n  v_cndmask_b32 v{I0+i}, 0, v{t4}, vcc")
        a(f"  v_cmp_eq_u32 vcc, {8+i}, v{t5}\n  s_nop 1\n  v_cndmask_b32 v{I1+i}, 0, v{t4}, vcc")
    if not OPT["k8"]:
        a(f"  v_mov_b32 v{AQ+2}, 0\n  v_mov_b32 v{AQ+3}, 0")
        for t in range(4):
            a(f"  v_mov_b32 v{BQ+4*t+2}, 0\n  v_mov_b32 v{BQ+4*t+3}, 0")
    def prefetch():
        if not OPT["pf"]: return
        a(f"  s_mul_i32 s{sq}, s2, 40000\n  s_sub_u32 s{sq}, s{sq}, 4096\n  v_add_u32 v{t0}, s{sq}, v{vt16}")
        for j in range(10):
            a(f"  buffer_load_dwordx4 {v(DUM,4)}, v{t0}, {s(SE,4)}, 0 offen")
            if j < 9: a(f"  v_add_u32 v{t0}, 4096, v{t0}")
    def wtr(dst, ad):
        for st in range(4):
            for hf in range(2):
                a(f"  ds_read_b64_tr_b16 {v(dst+4*st+2*hf,2)}, v{ad} offset:{(8*st+hf)*WPITCH}")
    def own_x(nyounger):
        a(f"""
  v_lshrrev_b32 v{t0}, 4, v0
  v_lshl_add_u32 v{t0}, v{t0}, 4, v{vt16}
  v_add_u32 v{t0}, {L_X}, v{t0}
  s_waitcnt vmcnt({nyounger})
  ds_write_b128 v{t0}, {v(XL,4)}
  s_mov_b32 exec_lo, s{sLo2}
  s_mov_b32 exec_hi, s{sLo2}
  ds_write_b128 v{t0}, {v(XL+4,4)} offset:{32*XS}
  s_mov_b64 exec, -1""")
    a(f"""
  s_cmp_lt_u32 s{sW}, 2
  s_cselect_b32 s{sLo2}, -1, 0
  s_lshr_b32 s{sq}, s2, {1+FSH}
  s_lshl_b32 s{sq}, s{sq}, 8
  s_bfe_u32 s{sq+1}, s2, {hex((FSH<<16)|1)}
  s_lshl_b32 s{sq+1}, s{sq+1}, 2
  s_add_u32 s{sq}, s{sq}, s{sq+1}
  s_and_b32 s{sq+1}, s2, 1
  s_mul_i32 s{sq+1}, s{sq+1}, {FHALF}
  s_add_u32 s{sq}, s{sq}, s{sq+1}
  v_mul_u32_u24 v{vgn1}, {FLN*256}, v{vl}
  v_add_u32 v{vgn1}, s{sq}, v{vgn1}
  v_lshrrev_b32 v{t2}, {FSH-1}, v{vl}
  v_lshlrev_b32 v{t2}, 8, v{t2}
  v_and_b32 v{t3}, {(1<<(FSH-1))-1}, v{vl}
  v_lshl_add_u32 v{t2}, v{t3}, 3, v{t2}
  v_add_u32 v{vsrow}, s{sP}, v{t2}
  s_mov_b32 s{sK}, {NLOG2E}
  s_mov_b32 s{sK+1}, {NLOG2E}
  s_waitcnt lgkmcnt(0)
  s_add_u32 s{sTag}, s{sTag}, 1
  s_bitcmp1_b32 s2, 0
  s_cbranch_scc1 K_GEMM
  s_cmp_ge_u32 s2, {2*G}
  s_cbranch_scc1 K_PREP
  s_mov_b32 s{sq}, {MAGIC}
  v_lshlrev_b32 v{t7}, 6, v0
  v_add_u32 v{t7}, {1<<18}, v{t7}
  s_barrier
  s_waitcnt vmcnt(7)""")
    stamp(a, 1)
    for j in range(5):
        a(f"""
  v_mul_u32_u24 v{B4+j}, s{sq}, v{DD+j}
  v_lshrrev_b32 v{B4+j}, 18, v{B4+j}
  v_and_b32 v{B4+j}, 0x3fc, v{B4+j}
  v_add_u32 v{t0+j}, {L_BCNT}, v{B4+j}
  ds_add_rtn_u32 v{RK+j}, v{t0+j}, v{vone}""")
    a("  s_waitcnt vmcnt(2)")
    for j in range(5):
        a(f"""
  v_lshl_add_u32 v{SS_+j}, v{SS_+j}, 18, v{t7}
  v_and_or_b32 v{SS_+j}, v{DD+j}, 63, v{SS_+j}
  v_lshlrev_b32 v{CA+j}, 5, v{B4+j}
  v_add_u32 v{CA+j}, {L_CIMG}, v{CA+j}""")
        if j < 4: a(f"  v_add_u32 v{t7}, {512<<6}, v{t7}")
    a(f"  s_waitcnt lgkmcnt(0)\n  s_mov_b64 {s(sBad,2)}, 0")
    for j in range(5):
        a(f"""
  v_lshl_add_u32 v{t0}, v{RK+j}, 2, v{CA+j}
  v_cmp_le_u32 vcc, {CAP-1}, v{RK+j}
  s_or_b64 {s(sBad,2)}, {s(sBad,2)}, vcc
  s_andn2_b64 exec, exec, vcc
  ds_write_b32 v{t0}, v{SS_+j}
  s_mov_b64 exec, -1""")
    srd(a, T2, pWS, NB*BSTR, add=WS_CELL)
    a(f"""
  v_lshrrev_b32 v{t4}, 3, v0
  s_mov_b32 s{sq}, {BSTR}
  v_mul_u32_u24 v{t4}, s{sq}, v{t4}
  v_and_b32 v{t5}, 7, v0
  v_lshl_add_u32 v{t4}, v{t5}, 4, v{t4}
  v_mov_b32 v{t7}, s{sTag}
  s_lshl_b32 s{sq}, s2, 6
  s_waitcnt lgkmcnt(0)
  s_barrier
  s_cmp_eq_u64 {s(sBad,2)}, 0
  s_cbranch_scc0 K_OVF
K_OVFDONE:
  s_barrier""")
    stamp(a, 2)
    a(f"""
  v_add_u32 v{t0}, {L_CIMG}, v{vt16}
  v_mov_b32 v{t2}, {L_FLG+8}""")
    for j in range(4):
        a(f"  ds_read_b128 {v(CP+4*j,4)}, v{t0} offset:{8192*j}")
    a(f"  ds_read_b32 v{t2}, v{t2}")
    for j in range(4):
        a(f"  s_waitcnt lgkmcnt({4-j})\n  buffer_store_dwordx4 {v(CP+4*j,4)}, v{t4}, {s(T2,4)}, s{sq} offen {STF}\n  s_add_u32 s{sq}, s{sq}, {64*BSTR}")
    a(f"""
  s_cmp_lg_u32 s{sW}, 0
  s_cbranch_scc1 K_DONE
  s_mul_i32 s{sq}, s2, {OVSTR//2}
  v_mov_b32 v{t3}, s{sq}
  s_mov_b64 exec, 1
  s_waitcnt lgkmcnt(0)
  buffer_store_dword v{t2}, v{t3}, {s(SV,4)}, 0 offen sc1
  s_mov_b64 exec, -1
K_DONE:""")
    stamp(a, 4)
    own_x(4)
    a(f"""
  s_waitcnt vmcnt(0)
  s_barrier""")
    stamp(a, 3)
    a(f"""
  s_cmp_lg_u32 s{sW}, 0
  s_cbranch_scc1 K_PST
  s_mov_b64 exec, {FMASK}
  buffer_store_dword v{t7}, v{vgn1}, {s(SF,4)}, 0 offen {FLF}
  s_mov_b64 exec, -1
  s_branch K_PST
K_GEMM:
  s_mul_i32 s{sq}, s{sNp}, {XS}
  s_sub_u32 s{sq}, {L_X}, s{sq}
  v_lshrrev_b32 v{t0}, 4, v0
  v_lshl_add_u32 v{t0}, v{t0}, 4, v{vt16}
  v_add_u32 v{t3}, s{sq}, v{t0}
  s_cmp_lt_u32 s{sW}, 4
  s_cselect_b32 s{sq+1}, -1, 0
  v_subrev_u32 v{t1}, {L_X}, v{vxb}
  v_add_u32 v{t1}, s{sq}, v{t1}
  s_waitcnt vmcnt(6)
  ds_write_b128 v{t3}, {v(GX,4)}
  s_waitcnt vmcnt(5)
  ds_write_b128 v{t3}, {v(GX+4,4)} offset:{32*XS}
  s_waitcnt vmcnt(4)
  s_mov_b32 exec_lo, s{sq+1}
  s_mov_b32 exec_hi, s{sq+1}
  ds_write_b128 v{t3}, {v(GX+8,4)} offset:{64*XS}
  s_mov_b64 exec, -1
  v_and_b32 v{t2}, 15, v{vl}
  v_mul_u32_u24 v{t2}, {XS}, v{t2}
  v_lshrrev_b32 v{t3}, 4, v{vl}
  v_lshl_add_u32 v{t2}, v{t3}, 3, v{t2}
  s_lshl_b32 s{sq}, s{sW}, 5
  s_add_u32 s{sq}, s{sq}, {L_GP}
  v_add_u32 v{t2}, s{sq}, v{t2}
  v_add_u32 v{t0}, {L_GP - 16*XS}, v{t0}
  v_subrev_u32 v{t4}, 4096, v{vt16}""")
    srd(a, T0, pWS, f"s{sCnt}", add=WS_P, addreg=sT)
    a("  s_waitcnt vmcnt(0) lgkmcnt(0)\n  s_barrier")
    stamp(a, 1)
    wtr(W1F, vqa)
    XT = [PF, PF+16, EA, EB, PF]
    for nt in range(4):
        for st in range(4):
            a(f"  ds_read_b128 {v(XT[nt]+4*st,4)}, v{t1} offset:{nt*16*XS + st*64}")
    for nt in range(5):
        a(f"  s_waitcnt lgkmcnt({(12, 12, 8, 4, 0)[nt]})")
        for st in range(4):
            c = "0" if st == 0 else v(D0+4*nt, 4)
            a(f"  v_mfma_f32_16x16x32_bf16 {v(D0+4*nt,4)}, {v(W1F+4*st,4)}, {v(XT[nt]+4*st,4)}, {c}")
        if nt == 0:
            for st in range(4):
                a(f"  ds_read_b128 {v(PF+4*st,4)}, v{t1} offset:{4*16*XS + st*64}")
    for nt in range(5):
        d = D0 + 4*nt
        if nt == 4: a("  s_nop 1")
        a(f"""
  v_pk_mul_f32 {v(d,2)}, {v(d,2)}, {s(sK,2)}
  v_pk_mul_f32 {v(d+2,2)}, {v(d+2,2)}, {s(sK,2)}
  v_cvt_pk_bf16_f32 v{W3+2*nt}, v{d}, v{d+1}
  v_cvt_pk_bf16_f32 v{W3+2*nt+1}, v{d+2}, v{d+3}
  ds_write_b64 v{t2}, {v(W3+2*nt,2)} offset:{nt*16*XS}""")
    a("  s_waitcnt lgkmcnt(0)\n  s_barrier")
    stamp(a, 2)
    a(f"""
  s_cmp_lt_u32 s{sW}, 4
  s_cbranch_scc1 K_PST""")
    for j in range(5):
        a(f"  ds_read_b128 {v(PF+4*j,4)}, v{t0} offset:{j*16*XS}")
    for j in range(5):
        a(f"  s_waitcnt lgkmcnt({4-j})\n  buffer_store_dwordx4 {v(PF+4*j,4)}, v{t4}, {s(T0,4)}, 0 offen {STF}")
        if j < 4: a(f"  v_add_u32 v{t4}, 4096, v{t4}")
    a("K_PST:")
    def node_gemm(WA, WB=None):
        for nt in range(3):
            xf = XF + 16*(nt & 1)
            if nt == 0:
                for n2 in range(2):
                    for st in range(4):
                        a(f"  ds_read_b128 {v(XF+16*n2+4*st,4)}, v{vxb} offset:{n2*16*XS + st*64}")
            a(f"  s_waitcnt lgkmcnt({4 if nt == 0 else 5 if nt == 1 else 1})")
            q = QD if nt != 1 else SA
            for st in range(4):
                c = "0" if st == 0 else v(q, 4)
                a(f"  v_mfma_f32_16x16x32_bf16 {v(q,4)}, {v(WA+4*st,4)}, {v(xf+4*st,4)}, {c}")
            if WB is not None:
                for st in range(4):
                    c = "0" if st == 0 else v(U+4*nt, 4)
                    a(f"  v_mfma_f32_16x16x32_bf16 {v(U+4*nt,4)}, {v(WB+4*st,4)}, {v(xf+4*st,4)}, {c}")
            if nt == 0:
                for st in range(4):
                    a(f"  ds_read_b128 {v(XF+4*st,4)}, v{vxb} offset:{2*16*XS + st*64}")
            a(f"""
  s_nop 7
  v_pk_mul_f32 {v(q,2)}, {v(q,2)}, {s(sK,2)}
  v_pk_mul_f32 {v(q+2,2)}, {v(q+2,2)}, {s(sK,2)}
  v_cvt_pk_bf16_f32 v{QD+4+2*(nt&1)}, v{q}, v{q+1}
  v_cvt_pk_bf16_f32 v{QD+5+2*(nt&1)}, v{q+2}, v{q+3}""")
            if nt == 2:
                a(f"  s_mov_b32 exec_lo, 0x00ff00ff\n  s_mov_b32 exec_hi, 0x00ff00ff")
            a(f"  ds_write_b64 v{vqw}, {v(QD+4+2*(nt&1),2)} offset:{nt*16*QS}")
            if nt == 2:
                a("  s_mov_b64 exec, -1")
    assert SB == SA + 2
    def poll(lab, off):
        a(f"""
  s_cmp_lg_u32 s{sW}, 1
  s_cbranch_scc1 {lab}_D
  s_mov_b32 s{sq}, 0
  s_mov_b32 s{sq+1}, {off}
  {"s_sleep %d" % OPT["slp0"] if OPT["slp0"] and off == 0 else ""}
{lab}:
  buffer_load_dwordx2 {v(DUM,2)}, v{vsrow}, {s(SF,4)}, s{sq+1} offen {PLF}
  s_add_u32 s{sq}, s{sq}, 1
  s_waitcnt vmcnt(0)
  v_cmp_ne_u32 vcc, s{sTag}, v{DUM}
  v_cmp_ne_u32 {s(sBad,2)}, s{sTag}, v{DUM+1}
  s_or_b64 vcc, vcc, {s(sBad,2)}
  s_cbranch_scc0 {lab}_D
  {"s_sleep %d" % OPT["slp"] if OPT["slp"] else ""}
  s_cmp_lt_u32 s{sq}, 0x8000
  s_cbranch_scc1 {lab}
{lab}_D:""")
    poll("K_POLL1", 0)
    a(f"""
  v_lshlrev_b32 v{t4}, 4, v{vl}
  s_lshl_b32 s{sTmp}, s{sW}, 12
  s_add_u32 s{sTmp+1}, s{sTmp}, {WF_UT}
  s_add_u32 s{sUB}, s{sTmp}, {WF_UB}
  s_mov_b32 s{sTmp+2}, {WF_3H}
  s_mov_b32 s{sTmp+3}, {WF_3L}
  s_barrier""")
    stamp(a, 5)
    for k in range(2):
        a(f"  buffer_load_dwordx4 {v(REC+4*k,4)}, v{vcell}, {s(SC,4)}, 0 offen offset:{64*k} sc1")
    nld = 0
    for st in range(4):
        a(f"  buffer_load_dwordx4 {v(W2F+4*st,4)}, v{t4}, {s(SW,4)}, s{sTmp} offen offset:{st*1024} sc1")
    for st in range(4):
        a(f"  buffer_load_dwordx4 {v(WUT+4*st,4)}, v{t4}, {s(SW,4)}, s{sTmp+1} offen offset:{st*1024} sc1")
    for st in range(4):
        a(f"  buffer_load_dwordx4 {v(W3+4*st,4)}, v{t4}, {s(SW,4)}, s{sTmp+2} offen offset:{st*1024} sc1")
    nld = 12
    if OPT["lo"]:
        for st in range(4):
            a(f"  buffer_load_dwordx4 {v(W3L+4*st,4)}, v{t4}, {s(SW,4)}, s{sTmp+3} offen offset:{st*1024} sc1")
        nld += 4
    a(f"""
  s_and_b32 s{sq}, s2, 1
  s_lshl_b32 s{sq}, s{sq}, 2
  s_and_b32 s{sq}, s{sq}, s{sW}
  s_cbranch_scc0 K_F2
  v_mov_b32 v{t0}, {L_FLG+12}
  v_mov_b32 v{t7}, s{sTag}
  s_mov_b64 exec, 1
  s_waitcnt vmcnt({nld+2})
  ds_add_rtn_u32 v{t0}, v{t0}, v{vone}
  s_waitcnt lgkmcnt(0)
  v_readfirstlane_b32 s{sq}, v{t0}
  s_mov_b64 exec, -1
  s_cmp_lg_u32 s{sq}, 3
  s_cbranch_scc1 K_F2
  s_mov_b64 exec, {FMASK}
  buffer_store_dword v{t7}, v{vgn1}, {s(SF,4)}, 0 offen {FLF}
  s_mov_b64 exec, -1
  s_waitcnt vmcnt({nld+1})
  s_branch K_F3
K_F2:
  s_waitcnt vmcnt({nld})
K_F3:""")
    if OPT["pf"]:
        a(f"  s_cmp_lt_u32 s{sW}, 4\n  s_cbranch_scc1 K_NOPF")
        prefetch()
        a("K_NOPF:")
    stamp(a, 6)
    NR = 8
    a(f"""
K_PHASE1:
  v_cmp_le_u32 vcc, 0xfffc0000, v{REC+NR-1}
  s_cbranch_vccz K_NOMARK
  s_and_saveexec_b64 {s(sEx,2)}, vcc
  v_lshrrev_b32 v{t0}, 2, v0                 ; producer
  v_lshrrev_b32 v{t1}, 5, v{t0}
  v_lshlrev_b32 v{t1}, 2, v{t1}
  v_lshlrev_b32 v{t0}, v{t0}, v{vone}
  ds_or_b32 v{t1}, v{t0} offset:{L_FLG+32}
  v_mov_b32 v{REC+NR-1}, 0
  s_mov_b64 exec, {s(sEx,2)}
K_NOMARK:""")
    for k in range(NR):
        if k == 4:
            a(f"""
  v_or3_b32 v{t3}, v{REC+k}, v{REC+k+1}, v{REC+k+2}
  v_or_b32 v{t3}, v{t3}, v{REC+k+3}
  v_cmp_ne_u32 vcc, 0, v{t3}
  s_cbranch_vccz K_P1E""")
        a(f"""
  v_lshlrev_b32 v{NOD+k}, 2, v{REC+k}
  v_and_b32 v{NOD+k}, 0xfc, v{NOD+k}
  v_cmpx_ne_u32 vcc, 0, v{REC+k}
  ds_add_rtn_u32 v{RNK+k}, v{NOD+k}, v{vone} offset:{L_CNT}
  s_mov_b64 exec, -1""")
    a(f"""
K_P1E:
  v_lshlrev_b32 v{t0}, 2, v{vl}
  v_subrev_u32 v{t4}, s{sStart}, v{vl}
  v_and_b32 v{t4}, 63, v{t4}
  s_waitcnt lgkmcnt(0)
  s_barrier
  ds_read_b32 v{t1}, v{t0} offset:{L_CNT}
  s_waitcnt lgkmcnt(0)
  v_add_u32 v{t1}, 3, v{t1}
  v_bfe_u32 v{t5}, v{t1}, 2, 1               ; left-over quad
  v_lshrrev_b32 v{t6}, 3, v{t1}
  v_lshl_or_b32 v{t1}, v{t5}, 16, v{t6}
  v_mov_b32 v{t2}, v{t1}
  s_nop 1
  v_add_u32_dpp v{t2}, v{t2}, v{t2} row_shr:1 row_mask:0xf bank_mask:0xf
  s_nop 1
  v_add_u32_dpp v{t2}, v{t2}, v{t2} row_shr:2 row_mask:0xf bank_mask:0xf
  s_nop 1
  v_add_u32_dpp v{t2}, v{t2}, v{t2} row_shr:4 row_mask:0xf bank_mask:0xf
  s_nop 1
  v_add_u32_dpp v{t2}, v{t2}, v{t2} row_shr:8 row_mask:0xf bank_mask:0xf
  s_nop 1
  v_add_u32_dpp v{t2}, v{t2}, v{t2} row_bcast:15 row_mask:0xa bank_mask:0xf
  s_nop 1
  v_add_u32_dpp v{t2}, v{t2}, v{t2} row_bcast:31 row_mask:0xc bank_mask:0xf
  s_nop 1
  v_readlane_b32 s{sT}, v{t2}, 63
  v_sub_u32 v{t1}, v{t2}, v{t1}
  s_lshr_b32 s{sq}, s{sT}, 16
  s_and_b32 s{sCO}, s{sT}, 0xffff
  s_add_u32 s{sCO}, s{sCO}, 3
  s_lshr_b32 s{sCO}, s{sCO}, 2
  s_add_u32 s{sq}, s{sq}, 7
  s_lshr_b32 s{sq}, s{sq}, 3
  s_add_u32 s{sT}, s{sCO}, s{sq}
  s_lshl_b32 s{sq}, s{sCO}, 3
  v_lshrrev_b32 v{t2}, 16, v{t1}
  v_add_u32 v{t2}, s{sq}, v{t2}              ; quad slot of the left-over quad
  v_and_b32 v{t1}, 0xffff, v{t1}
  v_lshl_or_b32 v{t0}, v{t6}, 16, v{t1}
  v_lshlrev_b32 v{t0}, 3, v{t0}              ; 8*start8 | 8*n8 << 16
  v_lshlrev_b32 v{t7}, 1, v{t6}
  v_sub_u32 v{t7}, v{t2}, v{t7}
  v_lshlrev_b32 v{t7}, 2, v{t7}              ; position base of the left-over quad
  s_cmp_gt_u32 s{sT}, {CAPB}
  s_cbranch_scc1 K_SPLIT""")
    for k0 in (0, 4):
        if k0:
            a(f"""
  v_or3_b32 v{t3}, v{REC+k0}, v{REC+k0+1}, v{REC+k0+2}
  v_or_b32 v{t3}, v{t3}, v{REC+k0+3}
  v_cmp_ne_u32 vcc, 0, v{t3}
  s_cbranch_vccz K_P2E""")
        for k in range(k0, k0+4):
            a(f"  ds_bpermute_b32 v{PF+24+(k&3)}, v{NOD+k}, v{t7}")
            a(f"  ds_bpermute_b32 v{NOD+k}, v{NOD+k}, v{t0}")
        for k in range(k0, k0+4):
            e = PF + 16 + 2*(k & 3)
            a(f"""
  v_lshrrev_b32 v{e}, 10, v{REC+k}
  v_and_b32 v{e}, {hex(0xffffff00 if not OPT['hot'] else 0x1f00)}, v{e}
  v_bfe_u32 v{e+1}, v{REC+k}, 6, 12
  v_lshl_add_u32 v{e+1}, v{e+1}, 5, v{vebase}""")
            if OPT["hot"]: a(f"  v_and_b32 v{e+1}, 0xfe0, v{e+1}")
        a("  s_waitcnt lgkmcnt(0)")
        for k in range(k0, k0+4):
            a(f"  v_cmp_lt_u32_sdwa {s(8+2*(k&3),2)}, v{RNK+k}, v{NOD+k} src0_sel:DWORD src1_sel:WORD_1")
        for k in range(k0, k0+4):
            a(f"  v_and_b32 v{NOD+k}, 0xffff, v{NOD+k}")
        for k in range(k0, k0+4):
            a(f"  v_cndmask_b32 v{NOD+k}, v{PF+24+(k&3)}, v{NOD+k}, {s(8+2*(k&3),2)}")
        for k in range(k0, k0+4):
            e = PF + 16 + 2*(k & 3)
            a(f"""
  v_add_lshl_u32 v{NOD+k}, v{NOD+k}, v{RNK+k}, 3
  v_cmpx_ne_u32 vcc, 0, v{REC+k}
  ds_write_b64 v{NOD+k}, {v(e,2)}
  s_mov_b64 exec, -1""")
    a(f"""
K_P2E:
  v_lshlrev_b32 v{t2}, 2, v{t2}
  v_cmpx_ne_u32 vcc, 0, v{t5}
  ds_write_b32 v{t2}, v{t4} offset:{L_GN}
  s_mov_b64 exec, -1
  v_add_lshl_u32 v{t2}, v{t1}, v{t6}, 3
  v_lshl_add_u32 v{t1}, v{t1}, 1, s{sW}
  v_lshlrev_b32 v{t1}, 2, v{t1}
K_GNL:
  v_cmpx_lt_u32 vcc, v{t1}, v{t2}
  ds_write_b32 v{t1}, v{t4} offset:{L_GN}
  v_add_u32 v{t1}, 32, v{t1}
  v_cmpx_lt_u32 vcc, v{t1}, v{t2}
  ds_write_b32 v{t1}, v{t4} offset:{L_GN}
  v_add_u32 v{t1}, 32, v{t1}
  v_cmpx_lt_u32 vcc, v{t1}, v{t2}
  s_cbranch_execnz K_GNL
  s_mov_b64 exec, -1
  s_add_u32 s{sCnt}, s{sT}, 7
  s_sub_u32 s{sCnt}, s{sCnt}, s{sW}
  s_lshr_b32 s{sCnt}, s{sCnt}, 3
  s_add_u32 s{sCO}, s{sCO}, 7
  s_sub_u32 s{sCO}, s{sCO}, s{sW}
  s_lshr_b32 s{sCO}, s{sCO}, 3
  {("s_mov_b32 s%d, 40" % sCnt + chr(10) + "  s_movk_i32 s%d, 320" % sT + chr(10) + "  s_mov_b32 s%d, 40" % sCO) if OPT["bench"] else ""}
  s_cmp_eq_u32 s{sFirst}, 0
  s_cbranch_scc1 K_POLL2_D""")
    poll("K_POLL2", FHALF)
    a("  s_waitcnt lgkmcnt(0)\n  s_barrier")
    stamp(a, 7)
    dsc = " sc1" if OPT["dsc"] else ""
    def dma_issue():
        L = []
        for j in range(8):
            d = DO + (j & 1)
            L.append([f"  s_add_u32 m0, s{sStg}, {j*1040}",
                      f"  v_add_u32_dpp v{d}, v{ENT}, v{vchunk} row_newbcast:{2*j} row_mask:0xf bank_mask:0xf",
                      f"  buffer_load_dwordx4 v{d}, {s(SP,4)}, 0 offen{dsc} lds" if not OPT["nodma"] else "  s_nop 0"])
        L.append([f"  s_add_u32 m0, s{sStg}, 8320",
                  f"  v_add_u32 v{DO}, v{ENT+1}, v{vechunk}",
                  f"  buffer_load_dwordx4 v{DO}, {s(SE,4)}, 0 offen lds" if not (OPT["nodma"] or OPT["noe"]) else "  s_nop 0"])
        return L
    ndma = 0 if OPT["nodma"] else 8 if OPT["noe"] else 9
    def frag_reads():
        L = []
        for st in range(8):
            L.append(f"  ds_read_b128 {v(PF+4*st,4)}, v{vAlo if st < 4 else vAhi} offset:{32*(st&3)}")
        L.insert(2, f"  ds_read_b128 {v(EF,4)}, v{vEF}")
        return L
    def bq_reads():
        return [f"  ds_read_b64_tr_b16 {v(BQ+nq*t,2)}, v{vqa} offset:{64*t}" for t in range(4)]
    def chain(t, D):
        L = [f"  v_mfma_f32_32x32x16_bf16 {v(D,16)}, {v(EF,4)}, {v(W3+4*t,4)}, 0"]
        if OPT["lo"]:
            L.append(f"  v_mfma_f32_32x32x16_bf16 {v(D,16)}, {v(EF,4)}, {v(W3L+4*t,4)}, {v(D,16)}")
        L.append(f"  v_mfma_f32_32x32x16_bf16 {v(D,16)}, {v(PF+8*t,4)}, {v(I0,4)}, {v(D,16)}")
        L.append(f"  v_mfma_f32_32x32x16_bf16 {v(D,16)}, {v(PF+8*t+4,4)}, {v(I1,4)}, {v(D,16)}")
        if OPT["k8"]:
            L.append(f"  v_mfma_f32_32x32x8bf16_1k {v(D,16)}, {v(AQ,2)}, {v(BQ+2*t,2)}, {v(D,16)}")
        else:
            L.append(f"  v_mfma_f32_32x32x16_bf16 {v(D,16)}, {v(AQ,4)}, {v(BQ+4*t,4)}, {v(D,16)}")
        return L

    a(f"  ds_read_b64 {v(ENT,2)}, v{vent}\n  s_waitcnt lgkmcnt(0)")
    for x in dma_issue(): a("\n".join(x))
    a(f"  ds_read_b64 {v(ENT,2)}, v{vent} offset:2048")
    a(f"""
  s_cmp_eq_u32 s{sFirst}, 0
  s_cbranch_scc1 K_NOGEMM0
  s_mov_b32 s{sFirst}, 0
  s_waitcnt vmcnt({ndma}) lgkmcnt(0)""")
    node_gemm(W2F, WUT)
    a(f"  v_lshlrev_b32 v{t4}, 4, v{vl}")
    for st in range(4):
        a(f"  buffer_load_dwordx4 {v(WUB+4*st,4)}, v{t4}, {s(SW,4)}, s{sUB} offen offset:{st*1024} sc1")
    a(f"""
  s_or_b32 s{sq}, s2, s{sW}
  s_cmp_lg_u32 s{sq}, 0
  s_cbranch_scc1 K_NONONCE
  s_mov_b64 exec, 1
  v_mov_b32 v{t0}, {FNON}
  v_mov_b32 v{t1}, s{sTag}
  buffer_store_dword v{t1}, v{t0}, {s(SF,4)}, 0 offen
  s_mov_b64 exec, -1
  s_waitcnt vmcnt(0)
K_NONONCE:
  s_waitcnt lgkmcnt(0)
  s_barrier
K_NOGEMM:
  ds_read_b32 v{vgn1}, v{vgq}
  ds_read_b32 v{vsrow}, v{vrow}
  ds_read_b128 {v(GN,4)}, v{vga}
  s_waitcnt vmcnt(4)""")
    stamp(a, 8, 96)
    for x in frag_reads(): a(x)
    a(f"""
  s_waitcnt lgkmcnt(9)
  v_mad_u32_u24 v{vqa}, v{vgn1}, s{sQS}, v{vqlane}
  v_lshrrev_b64 {v(AQ,2)}, v{vsrow}, {v(PAT,2)}""")
    for x in bq_reads(): a(x)
    a("  s_waitcnt lgkmcnt(0)")
    for x in dma_issue(): a("\n".join(x))
    for x in chain(0, D0): a(x)
    if OPT["prio"]:
        a(f"  s_cmp_lt_u32 s{sW}, 4\n  s_cbranch_scc1 K_PR\n  s_setprio 1\nK_PR:")
    a(f"""
  s_nop 7
  s_nop 3
  s_cmp_eq_u32 s{sCnt}, 0
  s_cbranch_scc1 K_LOOPEND
  s_cmp_lg_u32 s{sMode}, 0
  s_cbranch_scc1 K_SAFE
  {"s_branch K_QUAD" if not OPT["octo"] else ""}
  s_sub_u32 s{sCnt}, s{sCnt}, s{sCO}
  s_cmp_eq_u32 s{sCO}, 0
  s_cbranch_scc1 K_QUAD""")

    def p(r): return v(r, 2)
    def octet_fast(d, e, t, r, sres):
        ex = [f"  v_exp_f32 v{e+i}, v{d+i}" for i in range(8)]
        L = [f"  v_pk_add_f32 {p(t)}, {p(e)}, 1.0 op_sel_hi:[1,0]",
             f"  v_pk_add_f32 {p(t+2)}, {p(e+4)}, 1.0 op_sel_hi:[1,0]",
             f"  v_pk_fma_f32 {p(t+4)}, {p(d)}, {p(e+2)}, {p(d)}",
             f"  v_pk_fma_f32 {p(t+6)}, {p(d+4)}, {p(e+6)}, {p(d+4)}",
             f"  v_pk_fma_f32 {p(e)}, {p(t)}, {p(e+2)}, {p(t)}",
             f"  v_pk_fma_f32 {p(e+4)}, {p(t+2)}, {p(e+6)}, {p(t+2)}",
             f"  v_pk_fma_f32 {p(t+4)}, {p(d+2)}, {p(t)}, {p(t+4)}",
             f"  v_pk_fma_f32 {p(t+6)}, {p(d+6)}, {p(t+2)}, {p(t+6)}",
             f"  v_pk_mul_f32 {p(t)}, {p(e)}, {p(e+4)}",
             f"  v_pk_mul_f32 {p(t+4)}, {p(t+4)}, {p(e+4)}",
             f"  v_rcp_f32 v{r}, v{t}",
             f"  v_rcp_f32 v{r+1}, v{t+1}",
             f"  v_pk_fma_f32 {p(t+4)}, {p(t+6)}, {p(e)}, {p(t+4)}",
             f"  v_pk_mul_f32 {p(sres)}, {p(t+4)}, {p(r)}"]
        return ex, L
    def octet_safe(d, e, t, r, sres):
        ex = [f"  v_exp_f32 v{e+i}, v{d+i}" for i in range(8)]
        L = [f"  v_pk_add_f32 {p(e+2*i)}, {p(e+2*i)}, 1.0 op_sel_hi:[1,0]" for i in range(4)]
        L += [f"  v_rcp_f32 v{t+i}, v{e+i}" for i in range(8)]
        L += [f"  v_pk_mul_f32 {p(sres)}, {p(d)}, {p(t)}"]
        L += [f"  v_pk_fma_f32 {p(sres)}, {p(d+2*i)}, {p(t+2*i)}, {p(sres)}" for i in range(1, 4)]
        return ex, L
    def zipl(x, y):
        o = []
        for i in range(max(len(x), len(y))):
            if i < len(x): o.append(x[i])
            if i < len(y): o.append(y[i])
        return o
    def adds(t, kind):
        if OPT["noadd"]: return [f"  ds_read_b32 v{DUM}, v{vgq}"] * (2 if kind == "octo" else 4)
        if kind == "octo": return [f"  ds_add_f64 v{AD+2*xy}, {v(CV+2*xy,2)} offset:{256*t}" for xy in range(2)]
        return [f"  ds_add_f64 v{AD+2*xy+o}, {v(CV+2*(2*o+xy),2)} offset:{256*t}" for o in range(2) for xy in range(2)]
    def block_body(kind, u, nun):
        oc = octet_safe if kind == "safe" else octet_fast
        nadd = 2 if kind == "octo" else 4
        B = []
        for t in range(4):
            D = D0 if t % 2 == 0 else D1
            Dn = D1 if t % 2 == 0 else D0
            exa, La = oc(D, EA, TA, RA, SA)
            exb, Lb = oc(D+8, EB, TB, RB, SB)
            ex = exa + exb
            ch = chain((t+1) % 4, Dn)
            late = []
            if kind == "octo":
                keep = lambda L: [x for x in L[:-1] if "v_rcp" not in x]
                dk = DK + 2*(t & 1)
                pk = zipl(keep(La), keep(Lb))
                pk = pk[:-4] + [f"  v_pk_mul_f32 {p(dk)}, {p(TA)}, {p(TB)}"] + pk[-4:-2] + \
                     [f"  v_rcp_f32 v{RA}, v{dk}", f"  v_rcp_f32 v{RA+1}, v{dk+1}"] + pk[-2:] + \
                     [f"  v_pk_mul_f32 {p(TA+4)}, {p(TA+4)}, {p(TB)}"]
                if t & 1: pk.append(f"  v_pk_fma_f32 {p(MAC)}, {p(DK)}, {p(DK+2)}, {p(MAC)}")
                pk += [f"  v_pk_fma_f32 {p(TA+4)}, {p(TB+4)}, {p(TA)}, {p(TA+4)}",
                       f"  v_pk_mul_f32 {p(SA)}, {p(TA+4)}, {p(RA)}"]
                fin = [f"  v_cvt_f64_f32 {v(CV+2*xy,2)}, v{SA+xy}" for xy in range(2)]
                adr = (0, 2)
            else:
                pk = zipl(La, Lb)
                if kind == "quad":
                    idx = max(i for i, x in enumerate(pk) if x.startswith(f"  v_pk_mul_f32 {p(TB)}, {p(EB)}"))
                    pk.insert(idx+1, f"  v_pk_fma_f32 {p(MAC)}, {p(TA)}, {p(TB)}, {p(MAC)}")
                fin = [f"  v_cvt_f64_f32 {v(CV+2*(2*o+xy),2)}, v{S+xy}" for o, S in ((0, SA), (1, SB)) for xy in range(2)]
                adr = range(4)
            fin += adds(t, kind)
            if t == 0:
                pk = pk[:4] + [f"  v_mad_u32_u24 v{AD+i}, v{GN+i}, s{sAS}, v{vacl}" for i in adr] + pk[4:]
            if t == 1:
                pk = pk[:8] + [f"  ds_read_b64 {v(ENT,2)}, v{vent} offset:{4096+2048*u}",
                      f"  ds_read_b32 v{vgn1}, v{vgq} offset:{256+256*u}",
                      f"  ds_read_b32 v{vsrow}, v{vrow} offset:{2048+2048*u}",
                      f"  ds_read_b128 {v(GN,4)}, v{vga} offset:{256+256*u}"] + pk[8:]
            if t == 3:
                B.append(f"  s_waitcnt lgkmcnt({nadd})")
            dma = dma_issue() if t == 3 else []
            per = 16 // len(ch); e = 0
            for i, m in enumerate(ch):
                B.append(m)
                n = per if i < len(ch)-1 else 16 - e
                B += ex[e:e+2]
                if late: B.append(late.pop(0))
                B += ex[e+2:e+n]; e += n
                if OPT["dmapos"] == 0:
                    for _ in range(2):
                        if dma: B += dma.pop(0)
            if t == 2:
                mid = [f"  s_waitcnt vmcnt(0) lgkmcnt({nadd})",
                       f"  v_mad_u32_u24 v{vqa}, v{vgn1}, s{sQS}, v{vqlane}"]
                rd = frag_reads() + bq_reads()
                aq = [f"  v_lshrrev_b64 {v(AQ,2)}, v{vsrow}, {v(PAT,2)}"]
                if OPT["rdgap"] == 0: B += mid + rd + aq + pk
                else:
                    q = []
                    for i, x in enumerate(aq + pk):
                        if rd and i % OPT["rdgap"] == 0: q.append(rd.pop(0))
                        q.append(x)
                    B += mid + q + rd
            elif t == 3:
                inc = []
                if u == nun - 1 and OPT["bench"]:
                    inc = [f"  v_add_u32 v{DUM+i}, {2048*nun}, v{vent}" for i in range(4)]
                elif u == nun - 1:
                    inc = incs(nun)
                pk = pk + inc
                if OPT["dmapos"] == 1:
                    q = []
                    for i, x in enumerate(pk):
                        if dma and i % 3 == 0: q += dma.pop(0)
                        q.append(x)
                    pk = q
                for x in dma: B += x
                B += pk
            else:
                B += pk
            B += fin
        return B
    def incs(n):
        return [f"  v_add_u32 v{vent}, {2048*n}, v{vent}", f"  v_add_u32 v{vrow}, {2048*n}, v{vrow}",
                f"  v_add_u32 v{vgq}, {256*n}, v{vgq}", f"  v_add_u32 v{vga}, {256*n}, v{vga}"]
    def loop(kind):
        lab = {"safe": "K_SAFE", "quad": "K_QUAD", "octo": "K_FAST"}[kind]
        nun = OPT["unroll"] if kind == "octo" else 1
        cnt = sCO if kind == "octo" else sCnt
        L = []
        for u in range(nun):
            L += block_body(kind, u, nun)
            L.append(f"  s_sub_u32 s{cnt}, s{cnt}, 1")
            L.append(f"  s_cmp_lg_u32 s{cnt}, 0")
            L.append(f"  s_cbranch_scc1 {lab}" if u == nun - 1 else f"  s_cbranch_scc0 K_OX{u}")
        if OPT["align"]: L = align8(L)
        a(f".p2align 6\n{lab}:")
        for x in L: a(x)
    loop("octo")
    a(f"""
K_OXE:
  s_cmp_lg_u32 s{sCnt}, 0
  s_cbranch_scc1 K_QUAD""")
    a(f"""
K_LOOPEND:""")
    a(f"""
  s_waitcnt vmcnt(0) lgkmcnt(0)
  s_barrier""")
    stamp(a, 9, 98)
    a(f"""
  s_cmp_lg_u32 s{sKind}, 0
  s_cbranch_scc1 K_NEXT
K_CELLSDONE:
  v_mov_b32 v{t0}, {L_FLG+32}
  ds_read_b128 {v(CV,4)}, v{t0}
K_CONV:
  s_mul_i32 s{sTmp}, s{sW}, {AS}
  s_add_u32 s{sTmp}, s{sTmp}, {L_ACC}
  v_lshlrev_b32 v{t1}, 4, v{vl}
  v_add_u32 v{t1}, s{sTmp}, v{t1}""")
    for k in range(5):
        a(f"  ds_read_b128 {v(D0+4*k,4)}, v{t1} offset:{k*8*AS}")
    a(f"""
  s_mul_i32 s{sTmp}, s{sW}, {XS}
  s_add_u32 s{sTmp}, s{sTmp}, {L_X}
  v_lshlrev_b32 v{t2}, 2, v{vl}
  v_add_u32 v{t2}, s{sTmp}, v{t2}
  s_cmp_ge_u32 s{sKind}, 3
  s_cbranch_scc1 K_CONV2
  s_waitcnt lgkmcnt(5)
  v_or3_b32 v{t0}, v{CV}, v{CV+1}, v{CV+2}
  v_or_b32 v{t0}, v{t0}, v{CV+3}
  v_cmp_ne_u32 vcc, 0, v{t0}
  s_cbranch_vccnz K_STARTOV
K_CONV2:
  s_mov_b32 s{sTmp}, 0x71800000              ; 2^100
  v_cmp_nle_f32 {s(sBad,2)}, v{MAC}, s{sTmp}
  v_cmp_nle_f32 vcc, v{MAC+1}, s{sTmp}
  s_or_b64 {s(sBad,2)}, {s(sBad,2)}, vcc
  s_movk_i32 s{sTmp}, 0x207""")
    for k in range(5):
        a(f"""
  s_waitcnt lgkmcnt({4-k})
  v_cvt_f32_f64 v{EA+2*k}, {v(D0+4*k,2)}
  v_cvt_f32_f64 v{EA+2*k+1}, {v(D0+4*k+2,2)}
  v_cmp_class_f32 vcc, v{EA+2*k}, s{sTmp}
  s_or_b64 {s(sBad,2)}, {s(sBad,2)}, vcc
  v_cmp_class_f32 vcc, v{EA+2*k+1}, s{sTmp}
  s_or_b64 {s(sBad,2)}, {s(sBad,2)}, vcc
  v_cvt_pk_bf16_f32 v{EB+k}, v{EA+2*k}, v{EA+2*k+1}""")
    for k in range(5):
        a(f"  ds_write_b32 v{t2}, v{EB+k} offset:{k*8*XS}")
    a(f"""
  s_cmp_eq_u64 {s(sBad,2)}, 0
  s_cbranch_scc1 K_OKW
  v_mov_b32 v{t0}, {L_FLG}
  ds_write_b32 v{t0}, v{vone}
K_OKW:
  s_waitcnt lgkmcnt(0)
  s_barrier
  v_mov_b32 v{t0}, {L_FLG}
  ds_read_b32 v{t0}, v{t0}""")
    for nt in range(2):
        for st in range(4):
            a(f"  ds_read_b128 {v(XF+16*nt+4*st,4)}, v{vxb} offset:{nt*16*XS + st*64}")
    a(f"""
  s_waitcnt lgkmcnt(8)
  v_readfirstlane_b32 s{sTmp}, v{t0}
  s_cmp_gt_u32 s{sTmp}, s{sMode}
  {"s_cbranch_scc1 K_RESTART" if not EXP else "s_nop 0"}
  s_waitcnt lgkmcnt(4)""")
    for st in range(4):
        c = "0" if st == 0 else v(D0, 4)
        a(f"  v_mfma_f32_16x16x32_bf16 {v(D0,4)}, {v(WUB+4*st,4)}, {v(XF+4*st,4)}, {c}")
    for st in range(4):
        a(f"  ds_read_b128 {v(D1+4*st,4)}, v{vxb} offset:{2*16*XS + st*64}")
    a("  s_waitcnt lgkmcnt(4)")
    for st in range(4):
        c = "0" if st == 0 else v(D0+4, 4)
        a(f"  v_mfma_f32_16x16x32_bf16 {v(D0+4,4)}, {v(WUB+4*st,4)}, {v(XF+16+4*st,4)}, {c}")
    a("  s_waitcnt lgkmcnt(0)")
    for st in range(4):
        c = "0" if st == 0 else v(D0+8, 4)
        a(f"  v_mfma_f32_16x16x32_bf16 {v(D0+8,4)}, {v(WUB+4*st,4)}, {v(D1+4*st,4)}, {c}")
    a(f"""
  s_mov_b32 s{sK}, {NLN2}
  s_mov_b32 s{sK+1}, {NLN2}
  s_mov_b32 s{sTmp}, {NLOG2E}
  s_mov_b32 s{sTmp+1}, {NLOG2E}
  v_and_b32 v{t0}, 15, v{vl}
  v_lshlrev_b32 v{t0}, 8, v{t0}
  v_lshrrev_b32 v{t1}, 4, v{vl}
  v_lshl_add_u32 v{t0}, v{t1}, 3, v{t0}
  s_lshl_b32 s{sTmp+2}, s{sW}, 5
  v_add_u32 v{t0}, s{sTmp+2}, v{t0}
  v_add_u32 v{t1}, 4096, v{t0}
  v_add_u32 v{t2}, 8192, v{t0}""")
    for nt in range(3):
        d = D0 + 4*nt
        a(f"""
  v_pk_fma_f32 {p(d)}, {p(d)}, {s(sK,2)}, {p(U+4*nt)}
  v_pk_fma_f32 {p(d+2)}, {p(d+2)}, {s(sK,2)}, {p(U+4*nt+2)}
  v_pk_mul_f32 {p(EA)}, {p(d)}, {s(sTmp,2)}
  v_pk_mul_f32 {p(EA+2)}, {p(d+2)}, {s(sTmp,2)}""")
        for i in range(4): a(f"  v_exp_f32 v{EA+i}, v{EA+i}")
        a(f"  s_nop 0\n  v_pk_add_f32 {p(EA)}, {p(EA)}, 1.0 op_sel_hi:[1,0]\n  v_pk_add_f32 {p(EA+2)}, {p(EA+2)}, 1.0 op_sel_hi:[1,0]")
        for i in range(4): a(f"  v_rcp_f32 v{EA+i}, v{EA+i}")
        a(f"""
  s_nop 0
  v_pk_mul_f32 {p(d)}, {p(d)}, {p(EA)}
  v_pk_mul_f32 {p(d+2)}, {p(d+2)}, {p(EA+2)}
  v_cvt_pk_bf16_f32 v{EB+2*nt}, v{d}, v{d+1}
  v_cvt_pk_bf16_f32 v{EB+2*nt+1}, v{d+2}, v{d+3}
  buffer_store_dwordx2 {v(EB+2*nt,2)}, v{t0+nt}, {s(SO,4)}, 0 offen""")
    if OPT["stamp"]:
        a(f"""
  s_waitcnt vmcnt(0)
  s_memrealtime s[4:5]
  s_waitcnt lgkmcnt(0)
  s_lshl_b32 s6, s2, 3
  s_add_u32 s6, s6, s{sW}
  s_lshl_b32 s6, s6, 6
  s_add_u32 s6, s6, {WS_STAMP}
  s_add_u32 s6, s{pWS}, s6
  s_addc_u32 s7, s{pWS+1}, 0
  s_mov_b64 exec, 1
  v_mov_b32 v1, 0""")
        for i, r in enumerate([80+2*i for i in range(8)] + [96, 98, 4]):
            pass
        regs = [80, 82, 84, 86, 88, 90, 92, 94, 8, 9, 4, 10, 11, sT]
        for i, r in enumerate(regs):
            a(f"  v_mov_b32 v2, s{r}\n  global_store_dword v1, v2, s[6:7] offset:{4*i}")
    a(f"""
K_END:
  s_endpgm
""")
    a(f"""
K_PREP:
  s_sub_u32 s{sq}, s2, {2*G}
  s_lshl_b32 s{sq}, s{sq}, 14
  s_lshl_b32 s{sq+1}, s{sW}, 12
  s_add_u32 s{sq}, s{sq}, s{sq+1}
  v_lshlrev_b32 v{t0}, 4, v{vl}
  v_mov_b32 v{t7}, s{sTag}
  s_waitcnt vmcnt(10)
  s_barrier""")
    wtr(PF, vqa)
    a("  s_waitcnt lgkmcnt(0)")
    for st in range(4):
        a(f"  buffer_store_dwordx4 {v(PF+4*st,4)}, v{t0}, {s(SW,4)}, s{sq} offen offset:{st*1024} sc1")
    a(f"""
  s_lshr_b32 s{sq}, s{sW}, 2
  s_add_u32 s{sq}, s{sq}, s2
  s_cmp_lg_u32 s{sq}, {2*G}
  s_cbranch_scc1 K_PREPD
  s_mov_b32 s{sq+1}, {NLOG2E}
  s_lshl_b32 s{sq}, s{sW}, 10
  s_waitcnt vmcnt(6)""")
    for jj in range(8):
        a(f"  v_lshlrev_b32 v{D0+jj}, 16, v{D0+jj}\n  v_mul_f32 v{D0+jj}, s{sq+1}, v{D0+jj}")
    for i in range(4):
        a(f"  v_cvt_pk_bf16_f32 v{D0+8+i}, v{D0+2*i}, v{D0+1+2*i}")
    for i in range(4):
        a(f"""
  v_lshlrev_b32 v{t2}, 16, v{D0+8+i}
  v_and_b32 v{t3}, 0xffff0000, v{D0+8+i}
  v_sub_f32 v{t2}, v{D0+2*i}, v{t2}
  v_sub_f32 v{t3}, v{D0+1+2*i}, v{t3}
  v_cvt_pk_bf16_f32 v{D0+12+i}, v{t2}, v{t3}""")
    a(f"""
  s_add_u32 s{sq+1}, s{sq}, {WF_3L}
  s_add_u32 s{sq}, s{sq}, {WF_3H}
  buffer_store_dwordx4 {v(D0+8,4)}, v{t0}, {s(SW,4)}, s{sq} offen sc1
  buffer_store_dwordx4 {v(D0+12,4)}, v{t0}, {s(SW,4)}, s{sq+1} offen sc1
K_PREPD:
  s_waitcnt vmcnt(4)
  s_branch K_DONE""")
    a(f"""
K_OVF:
  s_mul_i32 s{sq+1}, s2, {OVSTR//2}
  s_add_u32 s{sq+1}, s{sq+1}, 64
  v_mov_b32 v{t5}, {L_FLG+8}
  v_mov_b32 v{t6}, -1""")
    for j in range(5):
        a(f"""
  v_cmp_le_u32 vcc, {CAP-1}, v{RK+j}
  s_and_b64 exec, exec, vcc
  s_cbranch_execz K_OV{j}
  v_add_u32 v{t1}, {L_BCNT}, v{B4+j}
  ds_read_b32 v{t1}, v{t1}
  s_waitcnt lgkmcnt(0)
  v_cmp_ne_u32 vcc, {CAP}, v{t1}
  s_nop 1
  v_cndmask_b32 v{t3}, v{SS_+j}, v{t6}, vcc
  ds_write_b32 v{CA+j}, v{t3} offset:{CELLB-4}
  s_and_b64 exec, exec, vcc
  s_cbranch_execz K_OV{j}
  ds_add_rtn_u32 v{t1}, v{t5}, v{vone}
  v_mov_b32 v{CV}, v{SS_+j}
  v_lshrrev_b32 v{CV+1}, 2, v{B4+j}
  s_waitcnt lgkmcnt(0)
  v_lshl_add_u32 v{t1}, v{t1}, 3, s{sq+1}
  buffer_store_dwordx2 {v(CV,2)}, v{t1}, {s(SV,4)}, 0 offen sc1
  s_waitcnt vmcnt(0)
K_OV{j}:
  s_mov_b64 exec, -1""")
    a("  s_waitcnt lgkmcnt(0)")
    a("  s_branch K_OVFDONE")
    for u in range(OPT["unroll"] - 1):
        a(f"K_OX{u}:\n  s_cmp_eq_u32 s{sCnt}, 0\n  s_cbranch_scc1 K_LOOPEND")
        for x in incs(u + 1): a(x)
        a("  s_branch K_QUAD")
    loop("quad")
    a("  s_branch K_LOOPEND")
    loop("safe")
    a("  s_branch K_LOOPEND")
    a(f"""
K_NOGEMM0:
  s_waitcnt vmcnt(0)
  s_branch K_NOGEMM
K_RESTART:
  s_mov_b32 s{sMode}, 1
  s_mov_b32 s{sKind}, 0
  s_waitcnt lgkmcnt(0)
  s_barrier
  v_mov_b32 v{CV}, 0
  v_mov_b32 v{CV+1}, 0
  v_mov_b32 v{CV+2}, 0
  v_mov_b32 v{CV+3}, 0""")
    for j in range(5):
        a(f"  ds_write_b128 v{vt16}, {v(CV,4)} offset:{L_ACC + j*8192}")
    a(f"""
  v_cmp_gt_u32 vcc, {(40*AS-5*8192)//16}, v0
  s_and_saveexec_b64 {s(sEx,2)}, vcc
  ds_write_b128 v{vt16}, {v(CV,4)} offset:{L_ACC + 5*8192}
  s_mov_b64 exec, {s(sEx,2)}
  s_branch K_RELOAD
K_SPLIT:
  s_mov_b32 s{sKind}, 1
  s_waitcnt lgkmcnt(0)
  s_barrier
  s_branch K_RELOAD
K_NEXT:
  s_cmp_eq_u32 s{sKind}, 4
  s_cbranch_scc1 K_NEXTOV
  s_cmp_eq_u32 s{sKind}, 3
  s_cbranch_scc1 K_OVPART1
  s_cmp_eq_u32 s{sKind}, 2
  s_cbranch_scc1 K_CELLSDONE
  s_mov_b32 s{sKind}, 2
K_RELOAD:
  v_lshrrev_b32 v{t1}, 2, v0
  s_mov_b32 s{sq}, {CH*32}
  v_mul_u32_u24 v{vebase}, s{sq}, v{t1}
  s_waitcnt vmcnt(0)""")
    for k in range(2):
        a(f"  buffer_load_dwordx4 {v(REC+4*k,4)}, v{vcell}, {s(SC,4)}, 0 offen offset:{64*k} sc1")
    a(f"""
  s_waitcnt vmcnt(0)
  s_cmp_eq_u32 s{sKind}, 0
  s_cbranch_scc1 K_ROUND
  s_lshr_b32 s{sq}, s{sW}, 2
  s_add_u32 s{sq}, s{sq}, 1
  s_cmp_eq_u32 s{sq}, s{sKind}
  s_cbranch_scc1 K_ROUND""")
    for k in range(NR): a(f"  v_mov_b32 v{REC+k}, 0")
    a(f"""
K_ROUND:
  v_mov_b32 v{CV}, 0
  v_mov_b32 v{CV+1}, 0
  v_mov_b32 v{CV+2}, 0
  v_mov_b32 v{CV+3}, 0
  v_cmp_gt_u32 vcc, {(L_FLG-L_GN)//16}, v0
  s_and_saveexec_b64 {s(sEx,2)}, vcc
  ds_write_b128 v{vt16}, {v(CV,4)} offset:{L_GN}
  s_mov_b64 exec, {s(sEx,2)}""")
    prefill()
    a(f"""
  v_and_b32 v{vent}, 2047, v{vent}
  v_and_b32 v{vrow}, 2047, v{vrow}
  v_subrev_u32 v{vga}, {L_GN}, v{vga}
  v_and_b32 v{vga}, 255, v{vga}
  v_add_u32 v{vga}, {L_GN}, v{vga}
  v_and_b32 v{t2}, 12, v{vl}
  v_add_u32 v{vgq}, v{vga}, v{t2}
  s_waitcnt lgkmcnt(0)
  s_barrier
  s_branch K_PHASE1
K_STARTOV:""")
    for i in range(4): a(f"  v_readfirstlane_b32 s{sOV+i}, v{CV+i}")
    a(f"""
  s_mov_b32 s{sKind}, 4
  s_waitcnt lgkmcnt(0)
K_NEXTOV:""")
    for i in range(2):
        a(f"""
  s_ff1_i32_b64 s{sP}, {s(sOV+2*i,2)}
  s_cmp_eq_u32 s{sP}, -1
  s_cbranch_scc1 K_OVN{i}
  s_bitset0_b64 {s(sOV+2*i,2)}, s{sP}
  s_add_u32 s{sP}, s{sP}, {64*i}
  s_branch K_OVGO
K_OVN{i}:""")
    a(f"""
  s_branch K_CONV
K_OVGO:
  s_mov_b32 s{sKind}, 3
  v_mov_b32 v{t4}, v0
  s_branch K_OVLD
K_OVPART1:
  s_mov_b32 s{sKind}, 4
  v_add_u32 v{t4}, 2048, v0
K_OVLD:
  s_mul_i32 s{sq}, s{sP}, {OVSTR}
  s_mul_i32 s{sq+1}, s{sP}, {CH*32}
  v_mov_b32 v{vebase}, s{sq+1}
  v_mov_b32 v{t0}, s{sq}
  buffer_load_dword v{t1}, v{t0}, {s(SV,4)}, 0 offen sc1
  v_lshl_add_u32 v{t2}, v{t4}, 3, v{t0}""")
    for k in range(4):
        a(f"  buffer_load_dwordx2 {v(PF+2*k,2)}, v{t2}, {s(SV,4)}, 0 offen offset:64 sc1\n  v_add_u32 v{t2}, 4096, v{t2}")
    a(f"  s_waitcnt vmcnt(0)")
    for k in range(4):
        a(f"""
  v_cmp_lt_u32 vcc, v{t4}, v{t1}
  v_cmp_eq_u32 {s(sEx,2)}, s2, v{PF+2*k+1}
  s_and_b64 vcc, vcc, {s(sEx,2)}
  v_add_u32 v{t4}, 512, v{t4}
  s_nop 1
  v_cndmask_b32 v{REC+k}, 0, v{PF+2*k}, vcc""")
    for k in range(4, NR): a(f"  v_mov_b32 v{REC+k}, 0")
    a("  s_branch K_ROUND")
    return a.text(), nv, NS

def gen_diag(idx):
    a = Asm()
    a(f"""
.globl mpnn_d_kernel
.p2align 8
.type mpnn_d_kernel,@function
mpnn_d_kernel:
  s_cmp_ge_u32 s2, 1
  s_cbranch_scc1 D_END
  s_load_dwordx2 s[4:5], s[0:1], 64
  s_waitcnt lgkmcnt(0)
  s_add_u32 s4, s4, {WS_STAMP}
  s_addc_u32 s5, s5, 0
  s_load_dword s6, s[4:5], 0
  s_waitcnt lgkmcnt(0)
  s_sub_u32 s6, s6, 100000""")
    for q, (ix, ismax) in enumerate(((idx, 1), (0, 0))):
        op = "max" if ismax else "min"
        a(f"  v_min_u32 v1, 61, v0\n  v_lshlrev_b32 v1, 10, v1\n  v_add_u32 v1, {ix*4}, v1\n  v_mov_b32 v3, {0 if ismax else -1}")
        for k in range(2):
            a(f"  global_load_dword v2, v1, s[4:5]\n  v_add_u32 v1, {63*1024}, v1\n  s_waitcnt vmcnt(0)\n  v_subrev_u32 v2, s6, v2\n  v_{op}_u32 v3, v3, v2")
        a(f"  s_mov_b32 s{20+q}, {0 if ismax else -1}\n  s_nop 1")
        for l in range(64):
            a(f"  v_readlane_b32 s8, v3, {l}\n  s_nop 0\n  s_{op}_u32 s{20+q}, s{20+q}, s8")
    a(f"""
  s_sub_u32 s20, s20, s21
  s_min_u32 s20, s20, 20000
  s_lshl_b32 s20, s20, 3
  {'s_mov_b32 s20, 0' if OPT['dz'] else ''}
  s_memrealtime s[8:9]
  s_waitcnt lgkmcnt(0)
D_L:
  s_memrealtime s[10:11]
  s_waitcnt lgkmcnt(0)
  s_sub_u32 s12, s10, s8
  s_cmp_lt_u32 s12, s20
  s_cbranch_scc1 D_L
D_END:
  s_endpgm
""")
    return a.text()

HEAD = """; Kernarg layout for this problem (72 bytes, ptrs only, base s[0:1]):
"""
def main():
    k, nv, ns = gen()
    out = HEAD + f"; @launch grid=({NB},1,1) block=(512,1,1) lds={LDS}\n"
    if OPT["diag"] >= 0:
        out = HEAD + f"; @launch kernel={KN} grid=({NB},1,1) block=(512,1,1) lds={LDS}\n; @launch kernel=mpnn_d_kernel grid=(1,1,1) block=(64,1,1) lds=0\n"
        k += gen_diag(OPT["diag"])
    out += '.amdgcn_target "amdgcn-amd-amdhsa--gfx950"\n.text\n' + k
    out += f""".section .rodata,"a"
.p2align 6
.amdhsa_kernel {KN}
  .amdhsa_next_free_vgpr {nv}
  .amdhsa_next_free_sgpr {ns}
  .amdhsa_accum_offset {(nv+3)//4*4}
  .amdhsa_group_segment_fixed_size 0
  .amdhsa_kernarg_size 72
  .amdhsa_user_sgpr_count 2
  .amdhsa_user_sgpr_kernarg_segment_ptr 1
  .amdhsa_system_sgpr_workgroup_id_x 1
.end_amdhsa_kernel
"""
    if OPT["diag"] >= 0:
        out += """.p2align 6
.amdhsa_kernel mpnn_d_kernel
  .amdhsa_next_free_vgpr 8
  .amdhsa_next_free_sgpr 32
  .amdhsa_accum_offset 8
  .amdhsa_group_segment_fixed_size 0
  .amdhsa_kernarg_size 72
  .amdhsa_user_sgpr_count 2
  .amdhsa_user_sgpr_kernarg_segment_ptr 1
  .amdhsa_system_sgpr_workgroup_id_x 1
.end_amdhsa_kernel
"""
    open(sys.argv[1], "w").write(out)
    print("vgprs", nv, "lds", LDS)
main()
```

```python
from common import *

N = 10000; E = 320000
G = 125
CH = 2560
NB = 256
MAGIC = 26843
CAP = 28
CELLB = 128
BSTR = G * CELLB

WS_P = 256
WS_CELL = 0x280000
WS_WF = 0x1280000
WF_W2, WF_UT, WF_UB, WF_3H, WF_3L = 0, 32768, 65536, 98304, 102400
WF_SIZE = 106496
WS_OVF = 0x12A0000
OVSTR = 64 + CH * 8
WS_FLAG = 0x1520000
WS_STAMP = 0x1600000

OPT = dict(lo=0, k8=1, stamp=0, nodma=0, noadd=0, noe=0, hot=0, align=1, unroll=2, dmapos=0, rdpos=0, dsc=1, pf=1, slp=0, stf=1, addpos=0, rdgap=0, prio=0, bench=0, octo=1, frep=8, fln=16, slp0=0, plf=1, flf=1, diag=-1, touch=0, dz=0, abl=0)
for a_ in sys.argv[2:]:
    k_, v_ = a_.split("="); OPT[k_] = int(v_)
EXP = OPT["bench"] or OPT["nodma"] or OPT["noe"] or OPT["noadd"] or OPT["hot"]

FL_ = ['', 'sc1', 'sc0 sc1', 'sc1 nt', 'sc0 sc1 nt']; PLF = FL_[OPT['plf']]; FLF = FL_[OPT['flf']]
STF = ['', 'sc1', 'sc0 sc1', 'sc1 nt'][OPT['stf']]
FREP = OPT['frep']; FLN = OPT['fln']; FSH = (128//FLN).bit_length()-1; FHALF = FREP*FLN*256; FNON = 2*FHALF; FMASK = hex((1<<FREP)-1)
CAPB = 70
L_ENT = 0
L_GN = (CAPB + 1) * 256
L_CNT = L_GN + (CAPB + 17) * 32
L_FLG = L_CNT + 256
L_ACC = L_FLG + 64
AS = 1040
L_Q = L_ACC + 40 * AS
QS = 320
L_X = L_Q + 40 * QS
XS = 288
L_STG = L_X + 40 * XS
STG = 8 * 1040 + 1024
LDS = L_STG + 8 * STG
L_CIMG = L_STG
L_BCNT = L_CIMG + NB * CELLB
WPITCH = 1088
L_GP = L_STG + 1024
L_WS = L_STG + 32 * WPITCH
assert L_BCNT + 1024 <= LDS and L_STG % 16 == 0 and L_ACC % 16 == 0
PADS, PADE = 0x8000003f, 0x80000000
KN = "standalone__mpnn_edge_mlp__graph_kernel"

def stamp(a, i, cyc=None):
    if OPT["stamp"]:
        if cyc is None:
            a(f"  s_memrealtime s[{80+2*i}:{81+2*i}]\n  s_waitcnt lgkmcnt(0)")
        else:
            a(f"  s_memrealtime s[96:97]\n  s_memtime s[98:99]\n  s_waitcnt lgkmcnt(0)\n  s_mov_b32 s{i}, s96\n  s_mov_b32 s{i+2}, s98")

def gen():
    a = Asm()
    R = Regs(1)
    al = R.alloc
    vl = al("lane")
    t0 = al("t", 8, 2); t1, t2, t3, t4, t5, t6, t7 = range(t0+1, t0+8)
    vchunk = al("vchunk"); vechunk = al("vechunk")
    vent = al("vent"); vrow = al("vrow"); vgq = al("vgq"); vga = al("vga")
    vAlo = al("Alo"); vAhi = al("Ahi"); vEF = al("vEF")
    vqlane = al("vqlane"); vacl = al("vacl"); vxb = al("vxb"); vqw = al("vqw")
    vebase = al("vebase"); vone = al("vone"); vt16 = al("vt16"); vcell = al("vcell")
    vqa = al("vqa"); vsrow = al("vsrow"); vgn1 = al("vgn1")
    ENT = al("ENT", 2, 2)
    MAC = al("MAC", 2, 2)
    PAT = al("PAT", 2, 2)
    nq = 2 if OPT["k8"] else 4
    AQ = al("AQ", nq, 2)
    GN = al("GN", 4, 2); AD = al("AD", 4)
    DO = al("DO", 2)
    I0 = al("I0", 4, 2); I1 = al("I1", 4, 2)
    W3 = al("W3", 16, 2)
    W3L = al("W3L", 16, 2) if OPT["lo"] else None
    BQ = al("BQ", 4*nq, 2)
    EF = al("EF", 4, 2)
    PF = al("PF", 32, 2)
    D0 = al("D0", 16, 2); D1 = al("D1", 16, 2)
    EA = al("EA", 8, 2); TA = al("TA", 8, 2); EB = al("EB", 8, 2); TB = al("TB", 8, 2)
    RA = al("RA", 2, 2); RB = al("RB", 2, 2)
    SA = al("SA", 2, 2); SB = al("SB", 2, 2)
    CV = al("CV", 8, 2)
    U = al("U", 12, 2); WUB = al("WUB", 16, 2)
    DUM = al("DUM", 4, 2)
    DK = al("DK", 4, 2)
    nv = R.n
    assert TA == EA + 8 and EB == EA + 16 and TB == EA + 24 and D1 == D0 + 16
    DD = D0; SS_ = D0 + 5; B4 = D0 + 10; RK = D0 + 15; CA = D0 + 20
    CP = PF
    GX = W3
    XL = U
    W1F = WUB
    REC = D0; NOD = D0 + 8; RNK = D1
    W2F = EA; WUT = EB; XF = PF; QD = CV
    sW = 3
    pX, pE, pS, pD, pWM, pWU, pO, pWS = 4, 6, 8, 10, 12, 14, 16, 18
    SP, SE, SC, SW, SO, SV, SF = 20, 24, 28, 32, 36, 40, 44
    T0, T1, T2 = 48, 52, 56
    sStart, sNb, sStg, sCnt, sT, sMode, sKind, sFirst = 60, 61, 62, 63, 64, 65, 66, 67
    sAS, sQS, sTag, sP, sUB, sLo2 = 68, 69, 70, 71, 72, 73
    sCO = 59
    sNp = 79
    sEx, sK, sBad = 74, 76, 78
    sTmp = 4
    sA = 48
    sOV = 48
    sOVT = 74
    sq = 100
    if OPT["stamp"]: NS = 102
    else: NS = 102

    a(f"""
.globl {KN}
.p2align 8
.type {KN},@function
{KN}:
  s_cmp_ge_u32 s2, {NB}
  s_cbranch_scc1 K_END""")
    if OPT["stamp"]: a("  s_memrealtime s[80:81]")
    a(f"""
  s_load_dwordx8 s[4:11], s[0:1], 0
  s_load_dwordx4 s[12:15], s[0:1], 32
  s_load_dwordx2 s[16:17], s[0:1], 48
  s_load_dwordx2 s[18:19], s[0:1], 64
  v_lshrrev_b32 v{t0}, 6, v0
  v_and_b32 v{vl}, 63, v0
  s_and_b32 s{sP}, s2, {FREP-1}
  s_mul_i32 s{sP}, s{sP}, {FLN*256}
  s_and_b32 s{sq}, s2, 7
  s_lshl_b32 s{sq}, s{sq}, 1
  s_bfe_u32 s{sq+1}, s2, 0x10003
  s_and_b32 s2, s2, 0xf0
  s_or_b32 s2, s2, s{sq}
  s_or_b32 s2, s2, s{sq+1}
  s_mul_i32 s{sStart}, s2, 640013
  v_readfirstlane_b32 s{sW}, v{t0}
  s_add_u32 s{sNb}, s{sStart}, {640013+16383}
  s_add_u32 s{sStart}, s{sStart}, 16383
  s_sub_u32 s{sNp}, s{sStart}, 640013
  s_lshr_b32 s{sStart}, s{sStart}, 14
  s_lshr_b32 s{sNb}, s{sNb}, 14
  s_lshr_b32 s{sNp}, s{sNp}, 14
  s_min_u32 s{sNb}, s{sNb}, {N}
  s_sub_u32 s{sCnt}, s{sNb}, s{sNp}
  s_sub_u32 s{sNb}, s{sNb}, s{sStart}
  s_lshl_b32 s{sT}, s{sNp}, 8
  s_sub_u32 s{sNp}, s{sStart}, s{sNp}
  s_mov_b32 s{sMode}, 0
  s_mov_b32 s{sKind}, 0
  s_mov_b32 s{sFirst}, 1
  s_mov_b32 s{sAS}, {AS}
  s_mov_b32 s{sQS}, {QS}
  s_mul_i32 s{sStg}, s{sW}, {STG}
  s_add_u32 s{sStg}, s{sStg}, {L_STG}
  v_lshlrev_b32 v{vt16}, 4, v0
  s_mul_i32 s{sq}, s2, {CH*2}
  v_lshl_add_u32 v{t2}, v0, 2, s{sq}
  v_add_u32 v{t3}, 4096, v{t2}
  v_lshrrev_b32 v{t4}, 4, v{vl}
  v_lshlrev_b32 v{t0}, 1, v{t4}
  v_xor_b32 v{t0}, v{t0}, v{vl}
  v_lshlrev_b32 v{t0}, 4, v{t0}
  s_lshl_b32 s{sq}, s{sW}, 12
  v_add_u32 v{t7}, s{sq}, v{t0}
  s_mul_i32 s{sUB}, s{sW}, {4*WPITCH}
  s_add_u32 s{sUB}, s{sUB}, {L_WS}
  v_add_u32 v{t6}, 8192, v{vt16}
  v_add_u32 v{t5}, 16384, v{vt16}
  s_bitcmp1_b32 s2, 0
  s_waitcnt lgkmcnt(0)
  s_cbranch_scc1 K_LDG
  s_cmp_ge_u32 s2, {2*G}
  s_cbranch_scc1 K_LDP""")
    srd(a, T0, pD, E*4)
    srd(a, T1, pS, E*4)
    a(f"  s_movk_i32 s{sq}, 0x2000")
    for r_, T in ((DD, T0), (SS_, T1)):
        a(f"""
  buffer_load_dword v{r_}, v{t2}, {s(T,4)}, 0 offen
  buffer_load_dword v{r_+1}, v{t2}, {s(T,4)}, 0 offen offset:2048
  buffer_load_dword v{r_+2}, v{t3}, {s(T,4)}, 0 offen
  buffer_load_dword v{r_+3}, v{t3}, {s(T,4)}, 0 offen offset:2048
  buffer_load_dword v{r_+4}, v{t2}, {s(T,4)}, s{sq} offen""")
    def wdma(T):
        for q in range(4):
            a(f"  s_add_u32 m0, s{sUB}, {64*q}\n  s_nop 0\n  buffer_load_dwordx4 v{t7}, {s(T,4)}, 0 offen offset:{1024*q} lds")
    a(f"""
K_LDX:
  s_lshl_b32 s{sq}, s{sStart}, 8
  s_lshl_b32 s{sq+1}, s{sNb}, 8""")
    srd(a, T2, pX, f"s{sq+1}", addreg=sq)
    a(f"""
  buffer_load_dwordx4 {v(XL,4)}, v{vt16}, {s(T2,4)}, 0 offen
  buffer_load_dwordx4 {v(XL+4,4)}, v{t6}, {s(T2,4)}, 0 offen
  s_branch K_LD3
K_LDP:
  s_cmp_eq_u32 s2, {2*G}
  s_cselect_b32 s{T1}, s{pWM}, s{pWU}
  s_cselect_b32 s{T1+1}, s{pWM+1}, s{pWU+1}
  s_cmp_eq_u32 s2, {2*G+2}
  s_cselect_b32 s{sq}, 0, 32768
  s_add_u32 s{T1}, s{T1}, s{sq}
  s_addc_u32 s{T1+1}, s{T1+1}, 0
  s_mov_b32 s{T1+2}, 32768
  s_mov_b32 s{T1+3}, 0x20000""")
    wdma(T1)
    srd(a, T0, pWM, 16*256, add=256*256)
    a(f"""
  v_and_b32 v{t0}, 31, v{vl}
  v_lshrrev_b32 v{t1}, 5, v{vl}
  v_lshlrev_b32 v{t1}, 11, v{t1}
  v_lshl_add_u32 v{t1}, v{t0}, 1, v{t1}
  s_and_b32 s{sq}, s{sW}, 3
  s_lshl_b32 s{sq}, s{sq}, 6""")
    for jj in range(8):
        a(f"  buffer_load_ushort v{D0+jj}, v{t1}, {s(T0,4)}, s{sq} offen offset:{jj*256}")
    a(f"""
  s_branch K_LDX
K_LDG:
  s_lshl_b32 s{sCnt}, s{sCnt}, 8""")
    srd(a, T0, pX, f"s{sCnt}", addreg=sT)
    srd(a, T1, pWM, 128*256)
    a(f"""
  buffer_load_dwordx4 {v(GX,4)}, v{vt16}, {s(T0,4)}, 0 offen
  buffer_load_dwordx4 {v(GX+4,4)}, v{t6}, {s(T0,4)}, 0 offen
  buffer_load_dwordx4 {v(GX+8,4)}, v{t5}, {s(T0,4)}, 0 offen""")
    wdma(T1)
    a(f"""
K_LD3:
  s_add_u32 s{SF}, s{pWS}, {WS_FLAG}
  s_addc_u32 s{SF+1}, s{pWS+1}, 0
  s_load_dword s{sTag}, s[{SF}:{SF+1}], {FNON}
  s_mov_b32 s{SF+2}, {FNON+4}
  s_mov_b32 s{SF+3}, 0x20000
  v_lshrrev_b32 v{t1}, 2, v0
  v_and_b32 v{t4}, 3, v0
  v_lshlrev_b32 v{t4}, 4, v{t4}
  v_lshl_add_u32 v{vcell}, v{t1}, 7, v{t4}
  s_mov_b32 s{sq}, {CH*32}
  v_mul_u32_u24 v{vebase}, s{sq}, v{t1}""")
    a(f"""
  v_mov_b32 v{CV}, 0
  v_mov_b32 v{CV+1}, 0
  v_mov_b32 v{CV+2}, 0
  v_mov_b32 v{CV+3}, 0
  v_add_u32 v{t0}, {L_CIMG}, v{vt16}""")
    a(f"  s_bitcmp1_b32 s2, 0\n  s_cbranch_scc1 K_NOZ")
    for j in range(4):
        a(f"  ds_write_b128 v{t0}, {v(CV,4)} offset:{j*8192}")
    a(f"  s_cmp_lg_u32 s{sW}, 0\n  s_cbranch_scc1 K_NOZ\n  ds_write_b128 v{t0}, {v(CV,4)} offset:32768")
    a("K_NOZ:")
    for j in range(5):
        a(f"  ds_write_b128 v{vt16}, {v(CV,4)} offset:{L_GN + j*8192}")
    a(f"""
  v_cmp_gt_u32 vcc, {(L_Q-L_GN-5*8192)//16}, v0
  s_and_saveexec_b64 {s(sEx,2)}, vcc
  ds_write_b128 v{vt16}, {v(CV,4)} offset:{L_GN + 5*8192}
  s_mov_b64 exec, {s(sEx,2)}""")
    def prefill():
        a(f"""
  v_mov_b32 v{CV+4}, {PADS}
  v_mov_b32 v{CV+5}, {PADE}
  v_mov_b32 v{CV+6}, {PADS}
  v_mov_b32 v{CV+7}, {PADE}
  ds_write_b128 v{vt16}, {v(CV+4,4)}
  ds_write_b128 v{vt16}, {v(CV+4,4)} offset:8192
  v_cmp_gt_u32 vcc, {(L_GN-16384)//16}, v0
  s_and_saveexec_b64 {s(sEx,2)}, vcc
  ds_write_b128 v{vt16}, {v(CV+4,4)} offset:16384
  s_mov_b64 exec, {s(sEx,2)}""")
    prefill()
    a(f"  s_mul_i32 s{sq}, s2, {BSTR}\n  s_lshl_b32 s{sq+1}, s{sStart}, 8\n  s_lshl_b32 s{sK}, s{sNb}, 8")
    srd(a, SC, pWS, G*CELLB, add=WS_CELL, addreg=sq)
    srd(a, SP, pWS, (N+1)*256)
    srd(a, SE, pE, E*32)
    srd(a, SW, pWS, WF_SIZE, add=WS_WF)
    srd(a, SO, pO, f"s{sK}", addreg=sq+1)
    srd(a, SV, pWS, G*OVSTR, add=WS_OVF)
    a(f"""
  v_mov_b32 v{vone}, 1
  v_mov_b32 v{MAC}, 0
  v_mov_b32 v{MAC+1}, 0
  v_and_b32 v{t0}, 15, v{vl}                 ; l&15
  v_bfe_u32 v{t1}, v{vl}, 4, 1               ; r4&1
  v_lshlrev_b32 v{t2}, 3, v{t1}
  v_xor_b32 v{t2}, v{t0}, v{t2}
  v_lshlrev_b32 v{vchunk}, 4, v{t2}
  v_and_b32 v{t2}, 1, v{vl}
  v_xor_b32 v{t2}, v{t2}, v{t1}
  v_lshlrev_b32 v{vechunk}, 4, v{t2}
  v_lshrrev_b32 v{t2}, 4, v{vl}
  v_lshlrev_b32 v{t2}, 6, v{t2}
  v_lshrrev_b32 v{t4}, 1, v{t0}
  v_lshl_add_u32 v{t2}, v{t4}, 3, v{t2}
  s_lshl_b32 s{sq}, s{sW}, 8
  v_add_u32 v{vent}, s{sq}, v{t2}
  v_bfe_u32 v{t2}, v{vl}, 2, 1               ; h
  v_and_b32 v{t4}, 1, v{vl}                  ; xy
  v_lshl_add_u32 v{t5}, v{t2}, 1, v{t4}      ; r4
  v_bfe_u32 v{t6}, v{vl}, 3, 2
  v_bfe_u32 v{t7}, v{vl}, 1, 1
  v_lshl_add_u32 v{t6}, v{t6}, 1, v{t7}      ; j
  v_lshl_add_u32 v{t7}, v{t5}, 3, v{t6}      ; q = 8 r4 + j
  v_lshlrev_b32 v{t7}, 3, v{t7}
  v_add_u32 v{vrow}, s{sq}, v{t7}
  v_lshrrev_b32 v{t7}, 5, v{vl}              ; hh
  v_mul_u32_u24 v{vAlo}, 1040, v{t6}
  v_lshl_add_u32 v{vAlo}, v{t5}, 8, v{vAlo}
  v_lshl_add_u32 v{vAlo}, v{t7}, 4, v{vAlo}
  v_add_u32 v{vAlo}, s{sStg}, v{vAlo}
  v_xor_b32 v{vAhi}, 1, v{t4}
  v_lshl_add_u32 v{vAhi}, v{vAhi}, 7, v{vAlo}
  v_lshl_add_u32 v{vAlo}, v{t4}, 7, v{vAlo}
  v_xor_b32 v{vEF}, v{t7}, v{t4}
  v_lshl_add_u32 v{vEF}, v{t6}, 1, v{vEF}
  v_lshl_add_u32 v{vEF}, v{t5}, 4, v{vEF}
  v_lshlrev_b32 v{vEF}, 4, v{vEF}
  s_add_u32 s{sq+1}, s{sStg}, 8320
  v_add_u32 v{vEF}, s{sq+1}, v{vEF}
  v_bfe_u32 v{t5}, v{vl}, 4, 1               ; o
  v_lshlrev_b32 v{t5}, 4, v{t5}
  v_mov_b32 v{t6}, 0x3f80
  v_lshlrev_b32 v{t5}, v{t5}, v{t6}
  v_cmp_eq_u32 vcc, v{t7}, v{t2}
  s_nop 1
  v_cndmask_b32 v{t5}, 0, v{t5}, vcc
  v_cmp_eq_u32 vcc, 0, v{t4}
  s_nop 1
  v_cndmask_b32 v{PAT}, 0, v{t5}, vcc
  v_cndmask_b32 v{PAT+1}, v{t5}, 0, vcc
  s_lshl_b32 s{sq}, s{sW}, 5
  s_add_u32 s{sq+1}, s{sq}, {L_GN}
  v_lshlrev_b32 v{vga}, 4, v{t7}
  v_add_u32 v{vga}, s{sq+1}, v{vga}
  v_and_b32 v{t2}, 12, v{vl}
  v_add_u32 v{vgq}, v{vga}, v{t2}
  v_and_b32 v{t2}, 3, v{vl}
  v_lshlrev_b32 v{t2}, 3, v{t2}
  v_lshl_add_u32 v{t2}, v{t1}, 5, v{t2}
  v_add_u32 v{vqlane}, {L_Q}, v{t2}
  v_and_b32 v{t2}, 31, v{vl}
  v_lshlrev_b32 v{t4}, 3, v{t2}
  v_add_u32 v{vacl}, {L_ACC}, v{t4}
  v_lshrrev_b32 v{t4}, 4, v{vl}              ; g
  v_mul_u32_u24 v{vxb}, {XS}, v{t0}
  v_lshl_add_u32 v{vxb}, v{t4}, 4, v{vxb}
  v_add_u32 v{vxb}, {L_X}, v{vxb}
  v_mul_u32_u24 v{vqw}, {QS}, v{t0}
  v_lshl_add_u32 v{vqw}, v{t4}, 3, v{vqw}
  s_add_u32 s{sq+1}, s{sq}, {L_Q}
  v_add_u32 v{vqw}, s{sq+1}, v{vqw}
  v_mul_u32_u24 v{vqa}, {2*WPITCH}, v{t4}
  v_bfe_u32 v{t5}, v{vl}, 2, 2
  v_lshl_add_u32 v{vqa}, v{t5}, 8, v{vqa}
  v_xor_b32 v{t5}, s{sW}, v{t5}
  v_lshl_add_u32 v{vqa}, v{t5}, 5, v{vqa}
  v_and_b32 v{t5}, 3, v{vl}
  v_lshl_add_u32 v{vqa}, v{t5}, 3, v{vqa}
  v_add_u32 v{vqa}, {L_WS}, v{vqa}
  v_and_b32 v{t4}, 1, v{vl}
  v_lshlrev_b32 v{t4}, 4, v{t4}
  v_lshlrev_b32 v{t4}, v{t4}, v{t6}
  v_bfe_u32 v{t5}, v{vl}, 1, 4
  v_lshlrev_b32 v{t7}, 2, v{t7}
  v_sub_u32 v{t5}, v{t5}, v{t7}""")
    for i in range(4):
        a(f"  v_cmp_eq_u32 vcc, {i}, v{t5}\n  s_nop 1\n  v_cndmask_b32 v{I0+i}, 0, v{t4}, vcc")
        a(f"  v_cmp_eq_u32 vcc, {8+i}, v{t5}\n  s_nop 1\n  v_cndmask_b32 v{I1+i}, 0, v{t4}, vcc")
    if not OPT["k8"]:
        a(f"  v_mov_b32 v{AQ+2}, 0\n  v_mov_b32 v{AQ+3}, 0")
        for t in range(4):
            a(f"  v_mov_b32 v{BQ+4*t+2}, 0\n  v_mov_b32 v{BQ+4*t+3}, 0")
    def prefetch():
        if not OPT["pf"]: return
        a(f"  s_mul_i32 s{sq}, s2, 40000\n  s_sub_u32 s{sq}, s{sq}, 4096\n  v_add_u32 v{t0}, s{sq}, v{vt16}")
        for j in range(10):
            a(f"  buffer_load_dwordx4 {v(DUM,4)}, v{t0}, {s(SE,4)}, 0 offen")
            if j < 9: a(f"  v_add_u32 v{t0}, 4096, v{t0}")
    def wtr(dst, ad):
        for st in range(4):
            for hf in range(2):
                a(f"  ds_read_b64_tr_b16 {v(dst+4*st+2*hf,2)}, v{ad} offset:{(8*st+hf)*WPITCH}")
    def own_x(nyounger):
        a(f"""
  v_lshrrev_b32 v{t0}, 4, v0
  v_lshl_add_u32 v{t0}, v{t0}, 5, v{vt16}
  v_add_u32 v{t0}, {L_X}, v{t0}
  s_waitcnt vmcnt({nyounger})
  ds_write_b128 v{t0}, {v(XL,4)}
  s_mov_b32 exec_lo, s{sLo2}
  s_mov_b32 exec_hi, s{sLo2}
  ds_write_b128 v{t0}, {v(XL+4,4)} offset:{32*XS}
  s_mov_b64 exec, -1""")
    a(f"""
  s_cmp_lt_u32 s{sW}, 2
  s_cselect_b32 s{sLo2}, -1, 0
  s_lshr_b32 s{sq}, s2, {1+FSH}
  s_lshl_b32 s{sq}, s{sq}, 8
  s_bfe_u32 s{sq+1}, s2, {hex((FSH<<16)|1)}
  s_lshl_b32 s{sq+1}, s{sq+1}, 2
  s_add_u32 s{sq}, s{sq}, s{sq+1}
  s_and_b32 s{sq+1}, s2, 1
  s_mul_i32 s{sq+1}, s{sq+1}, {FHALF}
  s_add_u32 s{sq}, s{sq}, s{sq+1}
  v_mul_u32_u24 v{vgn1}, {FLN*256}, v{vl}
  v_add_u32 v{vgn1}, s{sq}, v{vgn1}
  v_lshrrev_b32 v{t2}, {FSH-1}, v{vl}
  v_lshlrev_b32 v{t2}, 8, v{t2}
  v_and_b32 v{t3}, {(1<<(FSH-1))-1}, v{vl}
  v_lshl_add_u32 v{t2}, v{t3}, 3, v{t2}
  v_add_u32 v{vsrow}, s{sP}, v{t2}
  s_mov_b32 s{sK}, {NLOG2E}
  s_mov_b32 s{sK+1}, {NLOG2E}
  s_waitcnt lgkmcnt(0)
  s_add_u32 s{sTag}, s{sTag}, 1
  s_bitcmp1_b32 s2, 0
  s_cbranch_scc1 K_GEMM
  s_cmp_ge_u32 s2, {2*G}
  s_cbranch_scc1 K_PREP
  s_mov_b32 s{sq}, {MAGIC}
  v_lshlrev_b32 v{t7}, 6, v0
  v_add_u32 v{t7}, {1<<18}, v{t7}
  s_barrier
  s_waitcnt vmcnt(7)""")
    stamp(a, 1)
    for j in range(5):
        a(f"""
  v_mul_u32_u24 v{B4+j}, s{sq}, v{DD+j}
  v_lshrrev_b32 v{B4+j}, 18, v{B4+j}
  v_and_b32 v{B4+j}, 0x3fc, v{B4+j}
  v_add_u32 v{t0+j}, {L_BCNT}, v{B4+j}
  ds_add_rtn_u32 v{RK+j}, v{t0+j}, v{vone}""")
    a("  s_waitcnt vmcnt(2)")
    for j in range(5):
        a(f"""
  v_lshl_add_u32 v{SS_+j}, v{SS_+j}, 18, v{t7}
  v_and_or_b32 v{SS_+j}, v{DD+j}, 63, v{SS_+j}
  v_lshlrev_b32 v{CA+j}, 5, v{B4+j}
  v_add_u32 v{CA+j}, {L_CIMG}, v{CA+j}""")
        if j < 4: a(f"  v_add_u32 v{t7}, {512<<6}, v{t7}")
    srd(a, T2, pWS, NB*BSTR, add=WS_CELL)
    a(f"""
  v_lshrrev_b32 v{t4}, 3, v0
  s_mov_b32 s{sq}, {BSTR}
  v_mul_u32_u24 v{t4}, s{sq}, v{t4}
  v_and_b32 v{t5}, 7, v0
  v_lshl_add_u32 v{t4}, v{t5}, 4, v{t4}
  s_lshl_b32 s{sq}, s2, 6
  s_mov_b64 {s(sBad,2)}, 0
  s_waitcnt lgkmcnt(0)""")
    for j in range(5):
        a(f"""
  v_mul_u32_u24 v{t1}, 37, v{RK+j}
  v_lshl_add_u32 v{t0}, v{RK+j}, 2, v{CA+j}
  v_lshrrev_b32 v{t1}, 8, v{t1}
  v_cmp_le_u32 vcc, {CAP-1}, v{RK+j}
  v_lshl_add_u32 v{t0}, v{t1}, 2, v{t0}
  s_or_b64 {s(sBad,2)}, {s(sBad,2)}, vcc
  s_andn2_b64 exec, exec, vcc
  ds_write_b32 v{t0}, v{SS_+j}
  s_mov_b64 exec, -1""")
    a(f"""
  v_add_u32 v{t0}, {L_CIMG}, v{vt16}
  v_mov_b32 v{t2}, {L_FLG+4}
  s_cmp_eq_u64 {s(sBad,2)}, 0
  s_cbranch_scc1 K_NOFULL
  ds_write_b32 v{t2}, v{vone}
K_NOFULL:
  s_waitcnt lgkmcnt(0)
  s_barrier""")
    stamp(a, 2)
    a(f"  ds_read_b32 v{t2}, v{t2}\nK_OVFDONE:")
    for j in range(4):
        a(f"  ds_read_b128 {v(CP+4*j,4)}, v{t0} offset:{8192*j}")
    a(f"""
  s_waitcnt lgkmcnt(4)
  v_cmp_ne_u32 vcc, 0, v{t2}
  s_cbranch_vccnz K_OVF""")
    for j in range(4):
        a(f"""
  s_mov_b32 exec_lo, 0xaaaaaaaa
  s_mov_b32 exec_hi, 0xaaaaaaaa
  s_waitcnt lgkmcnt({3-j})
  v_mov_b32 v{CP+4*j+3}, s{sTag}
  s_mov_b64 exec, -1
  buffer_store_dwordx4 {v(CP+4*j,4)}, v{t4}, {s(T2,4)}, s{sq} offen {STF}
  s_add_u32 s{sq}, s{sq}, {64*BSTR}""")
    stamp(a, 4)
    own_x(4)
    a(f"""
  s_branch K_PST
K_GEMM:
  s_mul_i32 s{sq}, s{sNp}, {XS}
  s_sub_u32 s{sq}, {L_X}, s{sq}
  v_lshrrev_b32 v{t0}, 4, v0
  v_lshl_add_u32 v{t0}, v{t0}, 5, v{vt16}
  v_add_u32 v{t3}, s{sq}, v{t0}
  s_cmp_lt_u32 s{sW}, 4
  s_cselect_b32 s{sq+1}, -1, 0
  v_subrev_u32 v{t1}, {L_X}, v{vxb}
  v_add_u32 v{t1}, s{sq}, v{t1}
  s_waitcnt vmcnt(6)
  ds_write_b128 v{t3}, {v(GX,4)}
  s_waitcnt vmcnt(5)
  ds_write_b128 v{t3}, {v(GX+4,4)} offset:{32*XS}
  s_waitcnt vmcnt(4)
  s_mov_b32 exec_lo, s{sq+1}
  s_mov_b32 exec_hi, s{sq+1}
  ds_write_b128 v{t3}, {v(GX+8,4)} offset:{64*XS}
  s_mov_b64 exec, -1
  v_and_b32 v{t2}, 15, v{vl}
  v_mul_u32_u24 v{t2}, {XS}, v{t2}
  v_lshrrev_b32 v{t3}, 4, v{vl}
  v_lshl_add_u32 v{t2}, v{t3}, 3, v{t2}
  s_lshl_b32 s{sq}, s{sW}, 5
  s_add_u32 s{sq}, s{sq}, {L_GP}
  v_add_u32 v{t2}, s{sq}, v{t2}
  v_add_u32 v{t0}, {L_GP - 16*XS}, v{t0}
  v_subrev_u32 v{t4}, 4096, v{vt16}""")
    srd(a, T0, pWS, f"s{sCnt}", add=WS_P, addreg=sT)
    a("  s_waitcnt vmcnt(0) lgkmcnt(0)\n  s_barrier")
    stamp(a, 1)
    wtr(W1F, vqa)
    XT = [PF, PF+16, EA, EB, PF]
    for nt in range(4):
        for st in range(4):
            a(f"  ds_read_b128 {v(XT[nt]+4*st,4)}, v{t1} offset:{nt*16*XS + st*64}")
    for nt in range(5):
        a(f"  s_waitcnt lgkmcnt({(12, 12, 8, 4, 0)[nt]})")
        for st in range(4):
            c = "0" if st == 0 else v(D0+4*nt, 4)
            a(f"  v_mfma_f32_16x16x32_bf16 {v(D0+4*nt,4)}, {v(W1F+4*st,4)}, {v(XT[nt]+4*st,4)}, {c}")
        if nt == 0:
            for st in range(4):
                a(f"  ds_read_b128 {v(PF+4*st,4)}, v{t1} offset:{4*16*XS + st*64}")
    for nt in range(5):
        d = D0 + 4*nt
        if nt == 4: a("  s_nop 1")
        a(f"""
  v_pk_mul_f32 {v(d,2)}, {v(d,2)}, {s(sK,2)}
  v_pk_mul_f32 {v(d+2,2)}, {v(d+2,2)}, {s(sK,2)}
  v_cvt_pk_bf16_f32 v{W3+2*nt}, v{d}, v{d+1}
  v_cvt_pk_bf16_f32 v{W3+2*nt+1}, v{d+2}, v{d+3}
  ds_write_b64 v{t2}, {v(W3+2*nt,2)} offset:{nt*16*XS}""")
    a("  s_waitcnt lgkmcnt(0)\n  s_barrier")
    stamp(a, 2)
    a(f"""
  s_cmp_lt_u32 s{sW}, 4
  s_cbranch_scc1 K_PST""")
    for j in range(5):
        a(f"  ds_read_b128 {v(PF+4*j,4)}, v{t0} offset:{j*16*XS}")
    for j in range(5):
        a(f"  s_waitcnt lgkmcnt({4-j})\n  buffer_store_dwordx4 {v(PF+4*j,4)}, v{t4}, {s(T0,4)}, 0 offen {STF}")
        if j < 4: a(f"  v_add_u32 v{t4}, 4096, v{t4}")
    a(f"""
  v_mov_b32 v{t0}, {L_FLG+12}
  v_mov_b32 v{t7}, s{sTag}
  s_mov_b64 exec, 1
  s_waitcnt vmcnt(0)
  ds_add_rtn_u32 v{t0}, v{t0}, v{vone}
  s_waitcnt lgkmcnt(0)
  v_readfirstlane_b32 s{sq}, v{t0}
  s_mov_b64 exec, -1
  s_cmp_lg_u32 s{sq}, 3
  s_cbranch_scc1 K_PST
K_FLAG:
  s_mov_b64 exec, {FMASK}
  buffer_store_dword v{t7}, v{vgn1}, {s(SF,4)}, 0 offen {FLF}
  s_mov_b64 exec, -1
K_PST:""")
    def node_gemm(WA, WB=None):
        for nt in range(3):
            xf = XF + 16*(nt & 1)
            if nt == 0:
                for n2 in range(2):
                    for st in range(4):
                        a(f"  ds_read_b128 {v(XF+16*n2+4*st,4)}, v{vxb} offset:{n2*16*XS + st*64}")
            a(f"  s_waitcnt lgkmcnt({4 if nt == 0 else 5 if nt == 1 else 1})")
            q = QD if nt != 1 else SA
            for st in range(4):
                c = "0" if st == 0 else v(q, 4)
                a(f"  v_mfma_f32_16x16x32_bf16 {v(q,4)}, {v(WA+4*st,4)}, {v(xf+4*st,4)}, {c}")
            if WB is not None:
                for st in range(4):
                    c = "0" if st == 0 else v(U+4*nt, 4)
                    a(f"  v_mfma_f32_16x16x32_bf16 {v(U+4*nt,4)}, {v(WB+4*st,4)}, {v(xf+4*st,4)}, {c}")
            if nt == 0:
                for st in range(4):
                    a(f"  ds_read_b128 {v(XF+4*st,4)}, v{vxb} offset:{2*16*XS + st*64}")
            a(f"""
  s_nop 7
  v_pk_mul_f32 {v(q,2)}, {v(q,2)}, {s(sK,2)}
  v_pk_mul_f32 {v(q+2,2)}, {v(q+2,2)}, {s(sK,2)}
  v_cvt_pk_bf16_f32 v{QD+4+2*(nt&1)}, v{q}, v{q+1}
  v_cvt_pk_bf16_f32 v{QD+5+2*(nt&1)}, v{q+2}, v{q+3}""")
            if nt == 2:
                a(f"  s_mov_b32 exec_lo, 0x00ff00ff\n  s_mov_b32 exec_hi, 0x00ff00ff")
            a(f"  ds_write_b64 v{vqw}, {v(QD+4+2*(nt&1),2)} offset:{nt*16*QS}")
            if nt == 2:
                a("  s_mov_b64 exec, -1")
    assert SB == SA + 2
    def poll(lab, off):
        a(f"""
  s_cmp_lg_u32 s{sW}, 1
  s_cbranch_scc1 {lab}_D
  s_mov_b32 s{sq}, 0
  s_mov_b32 s{sq+1}, {off}
  {"s_sleep %d" % OPT["slp0"] if OPT["slp0"] and off == 0 else ""}
{lab}:
  buffer_load_dwordx2 {v(DUM,2)}, v{vsrow}, {s(SF,4)}, s{sq+1} offen {PLF}
  s_add_u32 s{sq}, s{sq}, 1
  s_waitcnt vmcnt(0)
  v_cmp_ne_u32 vcc, s{sTag}, v{DUM}
  v_cmp_ne_u32 {s(sBad,2)}, s{sTag}, v{DUM+1}
  s_or_b64 vcc, vcc, {s(sBad,2)}
  s_cbranch_scc0 {lab}_D
  {"s_sleep %d" % OPT["slp"] if OPT["slp"] else ""}
  s_cmp_lt_u32 s{sq}, 0x8000
  s_cbranch_scc1 {lab}
{lab}_D:""")
    stamp(a, 5)
    nld = 16 if OPT["lo"] else 12
    a(f"""
  s_lshl_b32 s{sTmp}, s{sW}, 12
  s_add_u32 s{sTmp+1}, s{sTmp}, {WF_UT}
  s_add_u32 s{sUB}, s{sTmp}, {WF_UB}
  s_mov_b32 s{sTmp+2}, {WF_3H}
  s_mov_b32 s{sTmp+3}, {WF_3L}
  s_mov_b32 s{sOV}, 0xaaaaaaaa
  s_cmp_eq_u32 s{sW}, 7
  s_cselect_b32 s{sOV+1}, 0xaaaaa, s{sOV}
  v_min_u32 v{t4}, 2, v{vl}
  v_lshl_add_u32 v{t4}, v{t4}, 2, s{sP}
  v_mov_b32 v{t5}, s{sTag}
  s_mov_b32 s{sq}, 0
  {"s_sleep %d" % OPT["slp0"] if OPT["slp0"] else ""}
K_CPOLL:
  buffer_load_dwordx4 {v(REC,4)}, v{vcell}, {s(SC,4)}, 0 offen sc1
  buffer_load_dwordx4 {v(REC+4,4)}, v{vcell}, {s(SC,4)}, 0 offen offset:64 sc1
  s_cmp_lg_u32 s{sW}, 1
  s_cbranch_scc1 K_CPOLL1
  buffer_load_dword v{t5}, v{t4}, {s(SF,4)}, 0 offen offset:{(FLN-1)*256 + (125 - (FLN-1)*(128//FLN))*4} sc1
K_CPOLL1:
  s_add_u32 s{sq}, s{sq}, 1
  s_waitcnt vmcnt(0)
  v_cmp_ne_u32 vcc, s{sTag}, v{REC+3}
  v_cmp_ne_u32 {s(sBad,2)}, s{sTag}, v{REC+7}
  s_or_b64 {s(sBad,2)}, vcc, {s(sBad,2)}
  v_cmp_ne_u32 vcc, s{sTag}, v{t5}
  s_and_b64 {s(sBad,2)}, {s(sBad,2)}, {s(sOV,2)}
  s_or_b64 {s(sBad,2)}, {s(sBad,2)}, vcc
  s_cbranch_scc0 K_CPOLLD
  {"s_sleep %d" % OPT["slp"] if OPT["slp"] else ""}
  s_cmp_lt_u32 s{sq}, 0x8000
  s_cbranch_scc1 K_CPOLL
K_CPOLLD:
  s_mov_b32 exec_lo, 0xaaaaaaaa
  s_mov_b32 exec_hi, 0xaaaaaaaa
  v_mov_b32 v{REC+3}, 0
  v_mov_b32 v{REC+7}, 0
  s_mov_b64 exec, -1""")
    stamp(a, 6)
    wl = [f"  buffer_load_dwordx4 {v(W2F+4*st,4)}, v{t0}, {s(SW,4)}, s{sTmp} offen offset:{st*1024} sc1" for st in range(4)]
    wl += [f"  buffer_load_dwordx4 {v(WUT+4*st,4)}, v{t0}, {s(SW,4)}, s{sTmp+1} offen offset:{st*1024} sc1" for st in range(4)]
    wl += [f"  buffer_load_dwordx4 {v(W3+4*st,4)}, v{t0}, {s(SW,4)}, s{sTmp+2} offen offset:{st*1024} sc1" for st in range(4)]
    if OPT["lo"]:
        wl += [f"  buffer_load_dwordx4 {v(W3L+4*st,4)}, v{t0}, {s(SW,4)}, s{sTmp+3} offen offset:{st*1024} sc1" for st in range(4)]
    NR = 8
    a(f"""
K_PHASE1:
  v_cmp_le_u32 vcc, 0xfffc0000, v{REC+NR-2}
  s_cbranch_vccz K_NOMARK
  s_and_saveexec_b64 {s(sEx,2)}, vcc
  v_lshrrev_b32 v{t0}, 2, v0                 ; producer
  v_lshrrev_b32 v{t1}, 5, v{t0}
  v_lshlrev_b32 v{t1}, 2, v{t1}
  v_lshlrev_b32 v{t0}, v{t0}, v{vone}
  ds_or_b32 v{t1}, v{t0} offset:{L_FLG+32}
  v_mov_b32 v{REC+NR-2}, 0
  s_mov_b64 exec, {s(sEx,2)}
K_NOMARK:""")
    for k in range(NR):
        if k == 4:
            a(f"""
  v_or3_b32 v{t3}, v{REC+k}, v{REC+k+1}, v{REC+k+2}
  v_or_b32 v{t3}, v{t3}, v{REC+k+3}
  v_cmp_ne_u32 vcc, 0, v{t3}
  s_cbranch_vccz K_P1E""")
        a(f"""
  v_lshlrev_b32 v{NOD+k}, 2, v{REC+k}
  v_and_b32 v{NOD+k}, 0xfc, v{NOD+k}
  v_cmpx_ne_u32 vcc, 0, v{REC+k}
  ds_add_rtn_u32 v{RNK+k}, v{NOD+k}, v{vone} offset:{L_CNT}
  s_mov_b64 exec, -1""")
    a(f"""
K_P1E:
  v_lshlrev_b32 v{t0}, 2, v{vl}
  v_subrev_u32 v{t4}, s{sStart}, v{vl}
  v_and_b32 v{t4}, 63, v{t4}
  s_waitcnt lgkmcnt(0)
  s_barrier
  ds_read_b32 v{t1}, v{t0} offset:{L_CNT}
  v_lshlrev_b32 v{t0}, 4, v{vl}
  s_cmp_eq_u32 s{sFirst}, 0
  s_cbranch_scc1 K_NOWL""")
    for x in wl: a(x)
    a(f"""
K_NOWL:
  s_waitcnt lgkmcnt(0)
  v_add_u32 v{t1}, 3, v{t1}
  v_bfe_u32 v{t5}, v{t1}, 2, 1               ; left-over quad
  v_lshrrev_b32 v{t6}, 3, v{t1}
  v_lshl_or_b32 v{t1}, v{t5}, 16, v{t6}
  v_mov_b32 v{t2}, v{t1}
  s_nop 1
  v_add_u32_dpp v{t2}, v{t2}, v{t2} row_shr:1 row_mask:0xf bank_mask:0xf
  s_nop 1
  v_add_u32_dpp v{t2}, v{t2}, v{t2} row_shr:2 row_mask:0xf bank_mask:0xf
  s_nop 1
  v_add_u32_dpp v{t2}, v{t2}, v{t2} row_shr:4 row_mask:0xf bank_mask:0xf
  s_nop 1
  v_add_u32_dpp v{t2}, v{t2}, v{t2} row_shr:8 row_mask:0xf bank_mask:0xf
  s_nop 1
  v_add_u32_dpp v{t2}, v{t2}, v{t2} row_bcast:15 row_mask:0xa bank_mask:0xf
  s_nop 1
  v_add_u32_dpp v{t2}, v{t2}, v{t2} row_bcast:31 row_mask:0xc bank_mask:0xf
  s_nop 1
  v_readlane_b32 s{sT}, v{t2}, 63
  v_sub_u32 v{t1}, v{t2}, v{t1}
  s_lshr_b32 s{sq+1}, s{sT}, 16
  s_and_b32 s{sCO}, s{sT}, 0xffff
  s_lshl_b32 s{sq}, s{sCO}, 1                ; quads in the groups of eight
  s_lshr_b32 s{sCO}, s{sCO}, 2
  s_add_u32 s{sT}, s{sq}, s{sq+1}
  s_add_u32 s{sT}, s{sT}, 7
  s_lshr_b32 s{sT}, s{sT}, 3
  v_lshrrev_b32 v{t2}, 16, v{t1}
  v_add_u32 v{t2}, s{sq}, v{t2}              ; quad slot of the left-over quad
  v_and_b32 v{t1}, 0xffff, v{t1}
  v_lshl_or_b32 v{t0}, v{t6}, 16, v{t1}
  v_lshlrev_b32 v{t0}, 3, v{t0}              ; 8*start8 | 8*n8 << 16
  v_lshlrev_b32 v{t7}, 1, v{t6}
  v_sub_u32 v{t7}, v{t2}, v{t7}
  v_lshlrev_b32 v{t7}, 2, v{t7}              ; position base of the left-over quad
  s_cmp_gt_u32 s{sT}, {CAPB}
  s_cbranch_scc1 K_SPLIT""")
    for k0 in (0, 4):
        if k0:
            a(f"""
  v_or3_b32 v{t3}, v{REC+k0}, v{REC+k0+1}, v{REC+k0+2}
  v_or_b32 v{t3}, v{t3}, v{REC+k0+3}
  v_cmp_ne_u32 vcc, 0, v{t3}
  s_cbranch_vccz K_P2E""")
        for k in range(k0, k0+4):
            a(f"  ds_bpermute_b32 v{PF+24+(k&3)}, v{NOD+k}, v{t7}")
            a(f"  ds_bpermute_b32 v{NOD+k}, v{NOD+k}, v{t0}")
        for k in range(k0, k0+4):
            e = PF + 16 + 2*(k & 3)
            a(f"""
  v_lshrrev_b32 v{e}, 10, v{REC+k}
  v_and_b32 v{e}, {hex(0xffffff00 if not OPT['hot'] else 0x1f00)}, v{e}
  v_bfe_u32 v{e+1}, v{REC+k}, 6, 12
  v_lshl_add_u32 v{e+1}, v{e+1}, 5, v{vebase}""")
            if OPT["hot"]: a(f"  v_and_b32 v{e+1}, 0xfe0, v{e+1}")
        a("  s_waitcnt lgkmcnt(0)")
        for k in range(k0, k0+4):
            a(f"  v_cmp_lt_u32_sdwa {s(8+2*(k&3),2)}, v{RNK+k}, v{NOD+k} src0_sel:DWORD src1_sel:WORD_1")
        for k in range(k0, k0+4):
            a(f"  v_and_b32 v{NOD+k}, 0xffff, v{NOD+k}")
        for k in range(k0, k0+4):
            a(f"  v_cndmask_b32 v{NOD+k}, v{PF+24+(k&3)}, v{NOD+k}, {s(8+2*(k&3),2)}")
        for k in range(k0, k0+4):
            e = PF + 16 + 2*(k & 3)
            a(f"""
  v_add_lshl_u32 v{NOD+k}, v{NOD+k}, v{RNK+k}, 3
  v_cmpx_ne_u32 vcc, 0, v{REC+k}
  ds_write_b64 v{NOD+k}, {v(e,2)}
  s_mov_b64 exec, -1""")
    a(f"""
K_P2E:
  v_lshlrev_b32 v{t2}, 2, v{t2}
  v_cmpx_ne_u32 vcc, 0, v{t5}
  ds_write_b32 v{t2}, v{t4} offset:{L_GN}
  s_mov_b64 exec, -1
  v_add_lshl_u32 v{t2}, v{t1}, v{t6}, 3
  v_lshl_add_u32 v{t1}, v{t1}, 1, s{sW}
  v_lshlrev_b32 v{t1}, 2, v{t1}
K_GNL:
  v_cmpx_lt_u32 vcc, v{t1}, v{t2}
  ds_write_b32 v{t1}, v{t4} offset:{L_GN}
  v_add_u32 v{t1}, 32, v{t1}
  v_cmpx_lt_u32 vcc, v{t1}, v{t2}
  ds_write_b32 v{t1}, v{t4} offset:{L_GN}
  v_add_u32 v{t1}, 32, v{t1}
  v_cmpx_lt_u32 vcc, v{t1}, v{t2}
  s_cbranch_execnz K_GNL
  s_mov_b64 exec, -1
  s_add_u32 s{sCnt}, s{sT}, 7
  s_sub_u32 s{sCnt}, s{sCnt}, s{sW}
  s_lshr_b32 s{sCnt}, s{sCnt}, 3
  s_add_u32 s{sCO}, s{sCO}, 7
  s_sub_u32 s{sCO}, s{sCO}, s{sW}
  s_lshr_b32 s{sCO}, s{sCO}, 3
  {("s_mov_b32 s%d, 40" % sCnt + chr(10) + "  s_movk_i32 s%d, 320" % sT + chr(10) + "  s_mov_b32 s%d, 40" % sCO) if OPT["bench"] else ""}
  s_cmp_eq_u32 s{sFirst}, 0
  s_cbranch_scc1 K_POLL2_D""")
    poll("K_POLL2", FHALF)
    a("  s_waitcnt lgkmcnt(0)\n  s_barrier")
    stamp(a, 7)
    dsc = " sc1" if OPT["dsc"] else ""
    def dma_issue():
        L = []
        for j in range(8):
            d = DO + (j & 1)
            L.append([f"  s_add_u32 m0, s{sStg}, {j*1040}",
                      f"  v_add_u32_dpp v{d}, v{ENT}, v{vchunk} row_newbcast:{2*j} row_mask:0xf bank_mask:0xf",
                      f"  buffer_load_dwordx4 v{d}, {s(SP,4)}, 0 offen{dsc} lds" if not OPT["nodma"] else "  s_nop 0"])
        L.append([f"  s_add_u32 m0, s{sStg}, 8320",
                  f"  v_add_u32 v{DO}, v{ENT+1}, v{vechunk}",
                  f"  buffer_load_dwordx4 v{DO}, {s(SE,4)}, 0 offen lds" if not (OPT["nodma"] or OPT["noe"]) else "  s_nop 0"])
        return L
    ndma = 0 if OPT["nodma"] else 8 if OPT["noe"] else 9
    def frag_reads():
        L = []
        for st in range(8):
            L.append(f"  ds_read_b128 {v(PF+4*st,4)}, v{vAlo if st < 4 else vAhi} offset:{32*(st&3)}")
        L.insert(2, f"  ds_read_b128 {v(EF,4)}, v{vEF}")
        return L
    def bq_reads():
        return [f"  ds_read_b64_tr_b16 {v(BQ+nq*t,2)}, v{vqa} offset:{64*t}" for t in range(4)]
    def chain(t, D):
        L = [f"  v_mfma_f32_32x32x16_bf16 {v(D,16)}, {v(EF,4)}, {v(W3+4*t,4)}, 0"]
        if OPT["lo"]:
            L.append(f"  v_mfma_f32_32x32x16_bf16 {v(D,16)}, {v(EF,4)}, {v(W3L+4*t,4)}, {v(D,16)}")
        L.append(f"  v_mfma_f32_32x32x16_bf16 {v(D,16)}, {v(PF+8*t,4)}, {v(I0,4)}, {v(D,16)}")
        L.append(f"  v_mfma_f32_32x32x16_bf16 {v(D,16)}, {v(PF+8*t+4,4)}, {v(I1,4)}, {v(D,16)}")
        if OPT["k8"]:
            L.append(f"  v_mfma_f32_32x32x8bf16_1k {v(D,16)}, {v(AQ,2)}, {v(BQ+2*t,2)}, {v(D,16)}")
        else:
            L.append(f"  v_mfma_f32_32x32x16_bf16 {v(D,16)}, {v(AQ,4)}, {v(BQ+4*t,4)}, {v(D,16)}")
        return L

    a(f"  ds_read_b64 {v(ENT,2)}, v{vent}\n  s_waitcnt lgkmcnt(0)")
    for x in dma_issue(): a("\n".join(x))
    a(f"  ds_read_b64 {v(ENT,2)}, v{vent} offset:2048")
    a(f"""
  s_cmp_eq_u32 s{sFirst}, 0
  s_cbranch_scc1 K_NOGEMM0
  s_mov_b32 s{sFirst}, 0
  s_waitcnt vmcnt({ndma}) lgkmcnt(0)""")
    node_gemm(W2F, WUT)
    a(f"  v_lshlrev_b32 v{t4}, 4, v{vl}")
    for st in range(4):
        a(f"  buffer_load_dwordx4 {v(WUB+4*st,4)}, v{t4}, {s(SW,4)}, s{sUB} offen offset:{st*1024} sc1")
    a(f"""
  s_or_b32 s{sq}, s2, s{sW}
  s_cmp_lg_u32 s{sq}, 0
  s_cbranch_scc1 K_NONONCE
  s_mov_b64 exec, 1
  v_mov_b32 v{t0}, {FNON}
  v_mov_b32 v{t1}, s{sTag}
  buffer_store_dword v{t1}, v{t0}, {s(SF,4)}, 0 offen
  s_mov_b64 exec, -1
  s_waitcnt vmcnt(0)
K_NONONCE:
  s_waitcnt lgkmcnt(0)
  s_barrier
K_NOGEMM:
  ds_read_b32 v{vgn1}, v{vgq}
  ds_read_b32 v{vsrow}, v{vrow}
  ds_read_b128 {v(GN,4)}, v{vga}
  s_waitcnt vmcnt(4)""")
    stamp(a, 8, 96)
    for x in frag_reads(): a(x)
    a(f"""
  s_waitcnt lgkmcnt(9)
  v_mad_u32_u24 v{vqa}, v{vgn1}, s{sQS}, v{vqlane}
  v_lshrrev_b64 {v(AQ,2)}, v{vsrow}, {v(PAT,2)}""")
    for x in bq_reads(): a(x)
    a("  s_waitcnt lgkmcnt(0)")
    for x in dma_issue(): a("\n".join(x))
    for x in chain(0, D0): a(x)
    if OPT["prio"]:
        a(f"  s_cmp_lt_u32 s{sW}, 4\n  s_cbranch_scc1 K_PR\n  s_setprio 1\nK_PR:")
    a(f"""
  s_nop 7
  s_nop 3
  s_cmp_eq_u32 s{sCnt}, 0
  s_cbranch_scc1 K_LOOPEND
  s_cmp_lg_u32 s{sMode}, 0
  s_cbranch_scc1 K_SAFE
  {"s_branch K_QUAD" if not OPT["octo"] else ""}
  s_sub_u32 s{sCnt}, s{sCnt}, s{sCO}
  s_cmp_eq_u32 s{sCO}, 0
  s_cbranch_scc1 K_QUAD""")

    def p(r): return v(r, 2)
    def octet_fast(d, e, t, r, sres):
        ex = [f"  v_exp_f32 v{e+i}, v{d+i}" for i in range(8)]
        L = [f"  v_pk_add_f32 {p(t)}, {p(e)}, 1.0 op_sel_hi:[1,0]",
             f"  v_pk_add_f32 {p(t+2)}, {p(e+4)}, 1.0 op_sel_hi:[1,0]",
             f"  v_pk_fma_f32 {p(t+4)}, {p(d)}, {p(e+2)}, {p(d)}",
             f"  v_pk_fma_f32 {p(t+6)}, {p(d+4)}, {p(e+6)}, {p(d+4)}",
             f"  v_pk_fma_f32 {p(e)}, {p(t)}, {p(e+2)}, {p(t)}",
             f"  v_pk_fma_f32 {p(e+4)}, {p(t+2)}, {p(e+6)}, {p(t+2)}",
             f"  v_pk_fma_f32 {p(t+4)}, {p(d+2)}, {p(t)}, {p(t+4)}",
             f"  v_pk_fma_f32 {p(t+6)}, {p(d+6)}, {p(t+2)}, {p(t+6)}",
             f"  v_pk_mul_f32 {p(t)}, {p(e)}, {p(e+4)}",
             f"  v_pk_mul_f32 {p(t+4)}, {p(t+4)}, {p(e+4)}",
             f"  v_rcp_f32 v{r}, v{t}",
             f"  v_rcp_f32 v{r+1}, v{t+1}",
             f"  v_pk_fma_f32 {p(t+4)}, {p(t+6)}, {p(e)}, {p(t+4)}",
             f"  v_pk_mul_f32 {p(sres)}, {p(t+4)}, {p(r)}"]
        return ex, L
    def octet_safe(d, e, t, r, sres):
        ex = [f"  v_exp_f32 v{e+i}, v{d+i}" for i in range(8)]
        L = [f"  v_pk_add_f32 {p(e+2*i)}, {p(e+2*i)}, 1.0 op_sel_hi:[1,0]" for i in range(4)]
        L += [f"  v_rcp_f32 v{t+i}, v{e+i}" for i in range(8)]
        L += [f"  v_pk_mul_f32 {p(sres)}, {p(d)}, {p(t)}"]
        L += [f"  v_pk_fma_f32 {p(sres)}, {p(d+2*i)}, {p(t+2*i)}, {p(sres)}" for i in range(1, 4)]
        return ex, L
    def zipl(x, y):
        o = []
        for i in range(max(len(x), len(y))):
            if i < len(x): o.append(x[i])
            if i < len(y): o.append(y[i])
        return o
    def adds(t, kind):
        if OPT["noadd"]: return [f"  ds_read_b32 v{DUM}, v{vgq}"] * (2 if kind == "octo" else 4)
        if kind == "octo": return [f"  ds_add_f64 v{AD+2*xy}, {v(CV+2*xy,2)} offset:{256*t}" for xy in range(2)]
        return [f"  ds_add_f64 v{AD+2*xy+o}, {v(CV+2*(2*o+xy),2)} offset:{256*t}" for o in range(2) for xy in range(2)]
    def block_body(kind, u, nun):
        oc = octet_safe if kind == "safe" else octet_fast
        nadd = 2 if kind == "octo" else 4
        B = []
        for t in range(4):
            D = D0 if t % 2 == 0 else D1
            Dn = D1 if t % 2 == 0 else D0
            exa, La = oc(D, EA, TA, RA, SA)
            exb, Lb = oc(D+8, EB, TB, RB, SB)
            ex = exa + exb
            ch = chain((t+1) % 4, Dn)
            late = []
            if kind == "octo":
                keep = lambda L: [x for x in L[:-1] if "v_rcp" not in x]
                dk = DK + 2*(t & 1)
                pk = zipl(keep(La), keep(Lb))
                pk = pk[:-4] + [f"  v_pk_mul_f32 {p(dk)}, {p(TA)}, {p(TB)}"] + pk[-4:-2] + \
                     [f"  v_rcp_f32 v{RA}, v{dk}", f"  v_rcp_f32 v{RA+1}, v{dk+1}"] + pk[-2:] + \
                     [f"  v_pk_mul_f32 {p(TA+4)}, {p(TA+4)}, {p(TB)}"]
                if t & 1: pk.append(f"  v_pk_fma_f32 {p(MAC)}, {p(DK)}, {p(DK+2)}, {p(MAC)}")
                pk += [f"  v_pk_fma_f32 {p(TA+4)}, {p(TB+4)}, {p(TA)}, {p(TA+4)}",
                       f"  v_pk_mul_f32 {p(SA)}, {p(TA+4)}, {p(RA)}"]
                fin = [f"  v_cvt_f64_f32 {v(CV+2*xy,2)}, v{SA+xy}" for xy in range(2)]
                adr = (0, 2)
            else:
                pk = zipl(La, Lb)
                if kind == "quad":
                    idx = max(i for i, x in enumerate(pk) if x.startswith(f"  v_pk_mul_f32 {p(TB)}, {p(EB)}"))
                    pk.insert(idx+1, f"  v_pk_fma_f32 {p(MAC)}, {p(TA)}, {p(TB)}, {p(MAC)}")
                fin = [f"  v_cvt_f64_f32 {v(CV+2*(2*o+xy),2)}, v{S+xy}" for o, S in ((0, SA), (1, SB)) for xy in range(2)]
                adr = range(4)
            fin += adds(t, kind)
            if t == 0:
                pk = pk[:4] + [f"  v_mad_u32_u24 v{AD+i}, v{GN+i}, s{sAS}, v{vacl}" for i in adr] + pk[4:]
            if t == 1:
                pk = pk[:8] + [f"  ds_read_b64 {v(ENT,2)}, v{vent} offset:{4096+2048*u}",
                      f"  ds_read_b32 v{vgn1}, v{vgq} offset:{256+256*u}",
                      f"  ds_read_b32 v{vsrow}, v{vrow} offset:{2048+2048*u}",
                      f"  ds_read_b128 {v(GN,4)}, v{vga} offset:{256+256*u}"] + pk[8:]
            if t == 3:
                B.append(f"  s_waitcnt lgkmcnt({nadd})")
            dma = dma_issue() if t == 3 else []
            per = 16 // len(ch); e = 0
            for i, m in enumerate(ch):
                B.append(m)
                n = per if i < len(ch)-1 else 16 - e
                B += ex[e:e+2]
                if late: B.append(late.pop(0))
                B += ex[e+2:e+n]; e += n
                if OPT["dmapos"] == 0:
                    for _ in range(2):
                        if dma: B += dma.pop(0)
            if t == 2:
                mid = [f"  s_waitcnt vmcnt(0) lgkmcnt({nadd})",
                       f"  v_mad_u32_u24 v{vqa}, v{vgn1}, s{sQS}, v{vqlane}"]
                rd = frag_reads() + bq_reads()
                aq = [f"  v_lshrrev_b64 {v(AQ,2)}, v{vsrow}, {v(PAT,2)}"]
                if OPT["rdgap"] == 0: B += mid + rd + aq + pk
                else:
                    q = []
                    for i, x in enumerate(aq + pk):
                        if rd and i % OPT["rdgap"] == 0: q.append(rd.pop(0))
                        q.append(x)
                    B += mid + q + rd
            elif t == 3:
                inc = []
                if u == nun - 1 and OPT["bench"]:
                    inc = [f"  v_add_u32 v{DUM+i}, {2048*nun}, v{vent}" for i in range(4)]
                elif u == nun - 1:
                    inc = incs(nun)
                pk = pk + inc
                if OPT["dmapos"] == 1:
                    q = []
                    for i, x in enumerate(pk):
                        if dma and i % 3 == 0: q += dma.pop(0)
                        q.append(x)
                    pk = q
                for x in dma: B += x
                B += pk
            else:
                B += pk
            B += fin
        return B
    def incs(n):
        return [f"  v_add_u32 v{vent}, {2048*n}, v{vent}", f"  v_add_u32 v{vrow}, {2048*n}, v{vrow}",
                f"  v_add_u32 v{vgq}, {256*n}, v{vgq}", f"  v_add_u32 v{vga}, {256*n}, v{vga}"]
    def loop(kind):
        lab = {"safe": "K_SAFE", "quad": "K_QUAD", "octo": "K_FAST"}[kind]
        nun = OPT["unroll"] if kind == "octo" else 1
        cnt = sCO if kind == "octo" else sCnt
        L = []
        for u in range(nun):
            L += block_body(kind, u, nun)
            L.append(f"  s_sub_u32 s{cnt}, s{cnt}, 1")
            L.append(f"  s_cmp_lg_u32 s{cnt}, 0")
            L.append(f"  s_cbranch_scc1 {lab}" if u == nun - 1 else f"  s_cbranch_scc0 K_OX{u}")
        ab = OPT["abl"]
        if ab & 1: L = [x for x in L if not ("v_mfma" in x and (f", {v(I0,4)}," in x or f", {v(I1,4)}," in x))]
        if ab & 2: L = [x for x in L if "v_mfma_f32_32x32x8" not in x and "tr_b16" not in x]
        if ab & 4: L = [x.replace("v_exp_f32", "v_mov_b32") for x in L]
        if ab & 8: L = [x for x in L if "v_pk_" not in x]
        if ab & 16: L = [x for x in L if "v_mfma" not in x]
        if ab & 32: L = [x for x in L if "ds_read_b128" not in x]
        if ab & 64: L = [x for x in L if "v_exp" not in x]
        if ab & 128:
            M = []
            for x in L:
                if "v_mfma" in x and f", {v(I1,4)}," in x: continue
                if "v_mfma" in x and f", {v(I0,4)}," in x:
                    m = re.match(r"\s*v_mfma_f32_32x32x16_bf16 (v\[\d+:\d+\]), v\[(\d+):", x)
                    M.append(f"  v_smfmac_f32_32x32x32_bf16 {m.group(1)}, {v(I0,4)}, {v(int(m.group(2)),8)}, v{vone}"); continue
                m = re.match(r"\s*ds_read_b128 v\[(\d+):\d+\], v(\d+) offset:(\d+)", x)
                if m and PF <= int(m.group(1)) < PF + 32:
                    r0 = int(m.group(1))
                    M.append(f"  ds_read_b64_tr_b16 {v(r0,2)}, v{vqa} offset:{m.group(3)}")
                    M.append(f"  ds_read_b64_tr_b16 {v(r0+2,2)}, v{vqa} offset:{int(m.group(3))+128}"); continue
                M.append(x)
            L = M
        if ab & 256:
            M = []
            for x in L:
                if "v_mfma" in x and (f", {v(I1,4)}," in x or f", {v(I0,4)}," in x): continue
                if "v_mfma_f32_32x32x16" in x and x.rstrip().endswith(", 0"): x = x.rstrip()[:-1] + v(PF, 16)
                m = re.match(r"\s*ds_read_b128 v\[(\d+):\d+\], v(\d+) offset:(\d+)", x)
                if m and PF <= int(m.group(1)) < PF + 32:
                    for q in range(8): M.append(f"  ds_read_u16_d16_hi v{PF+(int(m.group(1))+q)%32}, v{vacl} offset:{64*q}")
                    continue
                M.append(x)
            L = M
        if OPT["align"]: L = align8(L)
        a(f".p2align 6\n{lab}:")
        for x in L: a(x)
    loop("octo")
    a(f"""
K_OXE:
  s_cmp_lg_u32 s{sCnt}, 0
  s_cbranch_scc1 K_QUAD""")
    a(f"""
K_LOOPEND:""")
    a(f"""
  s_waitcnt vmcnt(0) lgkmcnt(0)
  s_barrier""")
    stamp(a, 9, 98)
    a(f"""
  s_cmp_lg_u32 s{sKind}, 0
  s_cbranch_scc1 K_NEXT
K_CELLSDONE:
  v_mov_b32 v{t0}, {L_FLG+32}
  ds_read_b128 {v(CV,4)}, v{t0}
K_CONV:
  s_mul_i32 s{sTmp}, s{sW}, {AS}
  s_add_u32 s{sTmp}, s{sTmp}, {L_ACC}
  v_lshlrev_b32 v{t1}, 4, v{vl}
  v_add_u32 v{t1}, s{sTmp}, v{t1}""")
    for k in range(5):
        a(f"  ds_read_b128 {v(D0+4*k,4)}, v{t1} offset:{k*8*AS}")
    a(f"""
  s_mul_i32 s{sTmp}, s{sW}, {XS}
  s_add_u32 s{sTmp}, s{sTmp}, {L_X}
  v_lshlrev_b32 v{t2}, 2, v{vl}
  v_add_u32 v{t2}, s{sTmp}, v{t2}
  s_cmp_ge_u32 s{sKind}, 3
  s_cbranch_scc1 K_CONV2
  s_waitcnt lgkmcnt(5)
  v_or3_b32 v{t0}, v{CV}, v{CV+1}, v{CV+2}
  v_or_b32 v{t0}, v{t0}, v{CV+3}
  v_cmp_ne_u32 vcc, 0, v{t0}
  s_cbranch_vccnz K_STARTOV
K_CONV2:
  s_mov_b32 s{sTmp}, 0x71800000              ; 2^100
  v_cmp_nle_f32 {s(sBad,2)}, v{MAC}, s{sTmp}
  v_cmp_nle_f32 vcc, v{MAC+1}, s{sTmp}
  s_or_b64 {s(sBad,2)}, {s(sBad,2)}, vcc
  s_movk_i32 s{sTmp}, 0x207""")
    for k in range(5):
        a(f"""
  s_waitcnt lgkmcnt({4-k})
  v_cvt_f32_f64 v{EA+2*k}, {v(D0+4*k,2)}
  v_cvt_f32_f64 v{EA+2*k+1}, {v(D0+4*k+2,2)}
  v_cmp_class_f32 vcc, v{EA+2*k}, s{sTmp}
  s_or_b64 {s(sBad,2)}, {s(sBad,2)}, vcc
  v_cmp_class_f32 vcc, v{EA+2*k+1}, s{sTmp}
  s_or_b64 {s(sBad,2)}, {s(sBad,2)}, vcc
  v_cvt_pk_bf16_f32 v{EB+k}, v{EA+2*k}, v{EA+2*k+1}""")
    for k in range(5):
        a(f"  ds_write_b32 v{t2}, v{EB+k} offset:{k*8*XS}")
    a(f"""
  s_cmp_eq_u64 {s(sBad,2)}, 0
  s_cbranch_scc1 K_OKW
  v_mov_b32 v{t0}, {L_FLG}
  ds_write_b32 v{t0}, v{vone}
K_OKW:
  s_waitcnt lgkmcnt(0)
  s_barrier
  v_mov_b32 v{t0}, {L_FLG}
  ds_read_b32 v{t0}, v{t0}""")
    for nt in range(2):
        for st in range(4):
            a(f"  ds_read_b128 {v(XF+16*nt+4*st,4)}, v{vxb} offset:{nt*16*XS + st*64}")
    a(f"""
  s_waitcnt lgkmcnt(8)
  v_readfirstlane_b32 s{sTmp}, v{t0}
  s_cmp_gt_u32 s{sTmp}, s{sMode}
  {"s_cbranch_scc1 K_RESTART" if not EXP else "s_nop 0"}
  s_waitcnt lgkmcnt(4)""")
    for st in range(4):
        c = "0" if st == 0 else v(D0, 4)
        a(f"  v_mfma_f32_16x16x32_bf16 {v(D0,4)}, {v(WUB+4*st,4)}, {v(XF+4*st,4)}, {c}")
    for st in range(4):
        a(f"  ds_read_b128 {v(D1+4*st,4)}, v{vxb} offset:{2*16*XS + st*64}")
    a("  s_waitcnt lgkmcnt(4)")
    for st in range(4):
        c = "0" if st == 0 else v(D0+4, 4)
        a(f"  v_mfma_f32_16x16x32_bf16 {v(D0+4,4)}, {v(WUB+4*st,4)}, {v(XF+16+4*st,4)}, {c}")
    a("  s_waitcnt lgkmcnt(0)")
    for st in range(4):
        c = "0" if st == 0 else v(D0+8, 4)
        a(f"  v_mfma_f32_16x16x32_bf16 {v(D0+8,4)}, {v(WUB+4*st,4)}, {v(D1+4*st,4)}, {c}")
    a(f"""
  s_mov_b32 s{sK}, {NLN2}
  s_mov_b32 s{sK+1}, {NLN2}
  s_mov_b32 s{sTmp}, {NLOG2E}
  s_mov_b32 s{sTmp+1}, {NLOG2E}
  v_and_b32 v{t0}, 15, v{vl}
  v_lshlrev_b32 v{t0}, 8, v{t0}
  v_lshrrev_b32 v{t1}, 4, v{vl}
  v_lshl_add_u32 v{t0}, v{t1}, 3, v{t0}
  s_lshl_b32 s{sTmp+2}, s{sW}, 5
  v_add_u32 v{t0}, s{sTmp+2}, v{t0}
  v_add_u32 v{t1}, 4096, v{t0}
  v_add_u32 v{t2}, 8192, v{t0}""")
    for nt in range(3):
        d = D0 + 4*nt
        a(f"""
  v_pk_fma_f32 {p(d)}, {p(d)}, {s(sK,2)}, {p(U+4*nt)}
  v_pk_fma_f32 {p(d+2)}, {p(d+2)}, {s(sK,2)}, {p(U+4*nt+2)}
  v_pk_mul_f32 {p(EA)}, {p(d)}, {s(sTmp,2)}
  v_pk_mul_f32 {p(EA+2)}, {p(d+2)}, {s(sTmp,2)}""")
        for i in range(4): a(f"  v_exp_f32 v{EA+i}, v{EA+i}")
        a(f"  s_nop 0\n  v_pk_add_f32 {p(EA)}, {p(EA)}, 1.0 op_sel_hi:[1,0]\n  v_pk_add_f32 {p(EA+2)}, {p(EA+2)}, 1.0 op_sel_hi:[1,0]")
        for i in range(4): a(f"  v_rcp_f32 v{EA+i}, v{EA+i}")
        a(f"""
  s_nop 0
  v_pk_mul_f32 {p(d)}, {p(d)}, {p(EA)}
  v_pk_mul_f32 {p(d+2)}, {p(d+2)}, {p(EA+2)}
  v_cvt_pk_bf16_f32 v{EB+2*nt}, v{d}, v{d+1}
  v_cvt_pk_bf16_f32 v{EB+2*nt+1}, v{d+2}, v{d+3}
  buffer_store_dwordx2 {v(EB+2*nt,2)}, v{t0+nt}, {s(SO,4)}, 0 offen""")
    if OPT["stamp"]:
        a(f"""
  s_waitcnt vmcnt(0)
  s_memrealtime s[4:5]
  s_waitcnt lgkmcnt(0)
  s_lshl_b32 s6, s2, 3
  s_add_u32 s6, s6, s{sW}
  s_lshl_b32 s6, s6, 6
  s_add_u32 s6, s6, {WS_STAMP}
  s_add_u32 s6, s{pWS}, s6
  s_addc_u32 s7, s{pWS+1}, 0
  s_mov_b64 exec, 1
  v_mov_b32 v1, 0""")
        for i, r in enumerate([80+2*i for i in range(8)] + [96, 98, 4]):
            pass
        regs = [80, 82, 84, 86, 88, 90, 92, 94, 8, 9, 4, 10, 11, sT]
        for i, r in enumerate(regs):
            a(f"  v_mov_b32 v2, s{r}\n  global_store_dword v1, v2, s[6:7] offset:{4*i}")
    a(f"""
K_END:
  s_endpgm
""")
    a(f"""
K_PREP:
  s_sub_u32 s{sq}, s2, {2*G}
  s_lshl_b32 s{sq}, s{sq}, 14
  s_lshl_b32 s{sq+1}, s{sW}, 12
  s_add_u32 s{sq}, s{sq}, s{sq+1}
  v_lshlrev_b32 v{t0}, 4, v{vl}
  v_mov_b32 v{t7}, s{sTag}
  s_waitcnt vmcnt(10)
  s_barrier""")
    wtr(PF, vqa)
    a("  s_waitcnt lgkmcnt(0)")
    for st in range(4):
        a(f"  buffer_store_dwordx4 {v(PF+4*st,4)}, v{t0}, {s(SW,4)}, s{sq} offen offset:{st*1024} sc1")
    a(f"""
  s_lshr_b32 s{sq}, s{sW}, 2
  s_add_u32 s{sq}, s{sq}, s2
  s_cmp_lg_u32 s{sq}, {2*G}
  s_cbranch_scc1 K_PREPD
  s_mov_b32 s{sq+1}, {NLOG2E}
  s_lshl_b32 s{sq}, s{sW}, 10
  s_waitcnt vmcnt(6)""")
    for jj in range(8):
        a(f"  v_lshlrev_b32 v{D0+jj}, 16, v{D0+jj}\n  v_mul_f32 v{D0+jj}, s{sq+1}, v{D0+jj}")
    for i in range(4):
        a(f"  v_cvt_pk_bf16_f32 v{D0+8+i}, v{D0+2*i}, v{D0+1+2*i}")
    for i in range(4):
        a(f"""
  v_lshlrev_b32 v{t2}, 16, v{D0+8+i}
  v_and_b32 v{t3}, 0xffff0000, v{D0+8+i}
  v_sub_f32 v{t2}, v{D0+2*i}, v{t2}
  v_sub_f32 v{t3}, v{D0+1+2*i}, v{t3}
  v_cvt_pk_bf16_f32 v{D0+12+i}, v{t2}, v{t3}""")
    a(f"""
  s_add_u32 s{sq+1}, s{sq}, {WF_3L}
  s_add_u32 s{sq}, s{sq}, {WF_3H}
  buffer_store_dwordx4 {v(D0+8,4)}, v{t0}, {s(SW,4)}, s{sq} offen sc1
  buffer_store_dwordx4 {v(D0+12,4)}, v{t0}, {s(SW,4)}, s{sq+1} offen sc1
K_PREPD:""")
    own_x(4)
    a(f"""
  s_waitcnt vmcnt(0)
  s_barrier
  s_cmp_eq_u32 s{sW}, 0
  s_cbranch_scc1 K_FLAG
  s_branch K_PST""")
    a(f"""
K_OVF:
  s_waitcnt lgkmcnt(0)
  s_barrier
  s_mul_i32 s{sq+1}, s2, {OVSTR//2}
  s_add_u32 s{sq+1}, s{sq+1}, 64
  v_mov_b32 v{t5}, {L_FLG+8}
  v_mov_b32 v{t6}, -1""")
    for j in range(5):
        a(f"""
  v_cmp_le_u32 vcc, {CAP-1}, v{RK+j}
  s_and_b64 exec, exec, vcc
  s_cbranch_execz K_OV{j}
  v_add_u32 v{t1}, {L_BCNT}, v{B4+j}
  ds_read_b32 v{t1}, v{t1}
  s_waitcnt lgkmcnt(0)
  v_cmp_ne_u32 vcc, {CAP}, v{t1}
  s_nop 1
  v_cndmask_b32 v{t3}, v{SS_+j}, v{t6}, vcc
  ds_write_b32 v{CA+j}, v{t3} offset:{CELLB-8}
  s_and_b64 exec, exec, vcc
  s_cbranch_execz K_OV{j}
  ds_add_rtn_u32 v{t1}, v{t5}, v{vone}
  v_mov_b32 v{CV}, v{SS_+j}
  v_lshrrev_b32 v{CV+1}, 2, v{B4+j}
  s_waitcnt lgkmcnt(0)
  v_lshl_add_u32 v{t1}, v{t1}, 3, s{sq+1}
  buffer_store_dwordx2 {v(CV,2)}, v{t1}, {s(SV,4)}, 0 offen sc1
  s_waitcnt vmcnt(0)
K_OV{j}:
  s_mov_b64 exec, -1""")
    a(f"""
  s_waitcnt lgkmcnt(0)
  s_barrier
  ds_read_b32 v{t1}, v{t5}
  s_sub_u32 s{sq+1}, s{sq+1}, 64
  v_mov_b32 v{t3}, s{sq+1}
  v_mov_b32 v{t2}, 0
  s_waitcnt lgkmcnt(0)
  buffer_store_dword v{t1}, v{t3}, {s(SV,4)}, 0 offen sc1
  s_waitcnt vmcnt(0)
  s_branch K_OVFDONE""")
    for u in range(OPT["unroll"] - 1):
        a(f"K_OX{u}:\n  s_cmp_eq_u32 s{sCnt}, 0\n  s_cbranch_scc1 K_LOOPEND")
        for x in incs(u + 1): a(x)
        a("  s_branch K_QUAD")
    loop("quad")
    a("  s_branch K_LOOPEND")
    loop("safe")
    a("  s_branch K_LOOPEND")
    a(f"""
K_NOGEMM0:
  s_waitcnt vmcnt(0)
  s_branch K_NOGEMM
K_RESTART:
  s_mov_b32 s{sMode}, 1
  s_mov_b32 s{sKind}, 0
  s_waitcnt lgkmcnt(0)
  s_barrier
  v_mov_b32 v{CV}, 0
  v_mov_b32 v{CV+1}, 0
  v_mov_b32 v{CV+2}, 0
  v_mov_b32 v{CV+3}, 0""")
    for j in range(5):
        a(f"  ds_write_b128 v{vt16}, {v(CV,4)} offset:{L_ACC + j*8192}")
    a(f"""
  v_cmp_gt_u32 vcc, {(40*AS-5*8192)//16}, v0
  s_and_saveexec_b64 {s(sEx,2)}, vcc
  ds_write_b128 v{vt16}, {v(CV,4)} offset:{L_ACC + 5*8192}
  s_mov_b64 exec, {s(sEx,2)}
  s_branch K_RELOAD
K_SPLIT:
  s_mov_b32 s{sKind}, 1
  s_waitcnt lgkmcnt(0)
  s_barrier
  s_branch K_RELOAD
K_NEXT:
  s_cmp_eq_u32 s{sKind}, 4
  s_cbranch_scc1 K_NEXTOV
  s_cmp_eq_u32 s{sKind}, 3
  s_cbranch_scc1 K_OVPART1
  s_cmp_eq_u32 s{sKind}, 2
  s_cbranch_scc1 K_CELLSDONE
  s_mov_b32 s{sKind}, 2
K_RELOAD:
  v_lshrrev_b32 v{t1}, 2, v0
  s_mov_b32 s{sq}, {CH*32}
  v_mul_u32_u24 v{vebase}, s{sq}, v{t1}
  s_waitcnt vmcnt(0)""")
    for k in range(2):
        a(f"  buffer_load_dwordx4 {v(REC+4*k,4)}, v{vcell}, {s(SC,4)}, 0 offen offset:{64*k} sc1")
    a(f"""
  s_waitcnt vmcnt(0)
  s_mov_b32 exec_lo, 0xaaaaaaaa
  s_mov_b32 exec_hi, 0xaaaaaaaa
  v_mov_b32 v{REC+3}, 0
  v_mov_b32 v{REC+7}, 0
  s_mov_b64 exec, -1
  s_cmp_eq_u32 s{sKind}, 0
  s_cbranch_scc1 K_ROUND
  s_lshr_b32 s{sq}, s{sW}, 2
  s_add_u32 s{sq}, s{sq}, 1
  s_cmp_eq_u32 s{sq}, s{sKind}
  s_cbranch_scc1 K_ROUND""")
    for k in range(NR): a(f"  v_mov_b32 v{REC+k}, 0")
    a(f"""
K_ROUND:
  v_mov_b32 v{CV}, 0
  v_mov_b32 v{CV+1}, 0
  v_mov_b32 v{CV+2}, 0
  v_mov_b32 v{CV+3}, 0
  v_cmp_gt_u32 vcc, {(L_FLG-L_GN)//16}, v0
  s_and_saveexec_b64 {s(sEx,2)}, vcc
  ds_write_b128 v{vt16}, {v(CV,4)} offset:{L_GN}
  s_mov_b64 exec, {s(sEx,2)}""")
    prefill()
    a(f"""
  v_and_b32 v{vent}, 2047, v{vent}
  v_and_b32 v{vrow}, 2047, v{vrow}
  v_subrev_u32 v{vga}, {L_GN}, v{vga}
  v_and_b32 v{vga}, 255, v{vga}
  v_add_u32 v{vga}, {L_GN}, v{vga}
  v_and_b32 v{t2}, 12, v{vl}
  v_add_u32 v{vgq}, v{vga}, v{t2}
  s_waitcnt lgkmcnt(0)
  s_barrier
  s_branch K_PHASE1
K_STARTOV:""")
    for i in range(4): a(f"  v_readfirstlane_b32 s{sOV+i}, v{CV+i}")
    a(f"""
  s_mov_b32 s{sKind}, 4
  s_waitcnt lgkmcnt(0)
K_NEXTOV:""")
    for i in range(2):
        a(f"""
  s_ff1_i32_b64 s{sP}, {s(sOV+2*i,2)}
  s_cmp_eq_u32 s{sP}, -1
  s_cbranch_scc1 K_OVN{i}
  s_bitset0_b64 {s(sOV+2*i,2)}, s{sP}
  s_add_u32 s{sP}, s{sP}, {64*i}
  s_branch K_OVGO
K_OVN{i}:""")
    a(f"""
  s_branch K_CONV
K_OVGO:
  s_mov_b32 s{sKind}, 3
  v_mov_b32 v{t4}, v0
  s_branch K_OVLD
K_OVPART1:
  s_mov_b32 s{sKind}, 4
  v_add_u32 v{t4}, 2048, v0
K_OVLD:
  s_mul_i32 s{sq}, s{sP}, {OVSTR}
  s_mul_i32 s{sq+1}, s{sP}, {CH*32}
  v_mov_b32 v{vebase}, s{sq+1}
  v_mov_b32 v{t0}, s{sq}
  buffer_load_dword v{t1}, v{t0}, {s(SV,4)}, 0 offen sc1
  v_lshl_add_u32 v{t2}, v{t4}, 3, v{t0}""")
    for k in range(4):
        a(f"  buffer_load_dwordx2 {v(PF+2*k,2)}, v{t2}, {s(SV,4)}, 0 offen offset:64 sc1\n  v_add_u32 v{t2}, 4096, v{t2}")
    a(f"  s_waitcnt vmcnt(0)")
    for k in range(4):
        a(f"""
  v_cmp_lt_u32 vcc, v{t4}, v{t1}
  v_cmp_eq_u32 {s(sEx,2)}, s2, v{PF+2*k+1}
  s_and_b64 vcc, vcc, {s(sEx,2)}
  v_add_u32 v{t4}, 512, v{t4}
  s_nop 1
  v_cndmask_b32 v{REC+k}, 0, v{PF+2*k}, vcc""")
    for k in range(4, NR): a(f"  v_mov_b32 v{REC+k}, 0")
    a("  s_branch K_ROUND")
    return a.text(), nv, NS

def gen_diag(idx):
    a = Asm()
    a(f"""
.globl mpnn_d_kernel
.p2align 8
.type mpnn_d_kernel,@function
mpnn_d_kernel:
  s_cmp_ge_u32 s2, 1
  s_cbranch_scc1 D_END
  s_load_dwordx2 s[4:5], s[0:1], 64
  s_waitcnt lgkmcnt(0)
  s_add_u32 s4, s4, {WS_STAMP}
  s_addc_u32 s5, s5, 0
  s_load_dword s6, s[4:5], 0
  s_waitcnt lgkmcnt(0)
  s_sub_u32 s6, s6, 100000""")
    for q, (ix, ismax) in enumerate(((idx, 1), (0, 0))):
        op = "max" if ismax else "min"
        a(f"  v_min_u32 v1, 61, v0\n  v_lshlrev_b32 v1, 10, v1\n  v_add_u32 v1, {ix*4}, v1\n  v_mov_b32 v3, {0 if ismax else -1}")
        for k in range(2):
            a(f"  global_load_dword v2, v1, s[4:5]\n  v_add_u32 v1, {63*1024}, v1\n  s_waitcnt vmcnt(0)\n  v_subrev_u32 v2, s6, v2\n  v_{op}_u32 v3, v3, v2")
        a(f"  s_mov_b32 s{20+q}, {0 if ismax else -1}\n  s_nop 1")
        for l in range(64):
            a(f"  v_readlane_b32 s8, v3, {l}\n  s_nop 0\n  s_{op}_u32 s{20+q}, s{20+q}, s8")
    a(f"""
  s_sub_u32 s20, s20, s21
  s_min_u32 s20, s20, 20000
  s_lshl_b32 s20, s20, 3
  {'s_mov_b32 s20, 0' if OPT['dz'] else ''}
  s_memrealtime s[8:9]
  s_waitcnt lgkmcnt(0)
D_L:
  s_memrealtime s[10:11]
  s_waitcnt lgkmcnt(0)
  s_sub_u32 s12, s10, s8
  s_cmp_lt_u32 s12, s20
  s_cbranch_scc1 D_L
D_END:
  s_endpgm
""")
    return a.text()

HEAD = """; Kernarg layout for this problem (72 bytes, ptrs only, base s[0:1]):
"""
def main():
    k, nv, ns = gen()
    out = HEAD + f"; @launch grid=({NB},1,1) block=(512,1,1) lds={LDS}\n"
    if OPT["diag"] >= 0:
        out = HEAD + f"; @launch kernel={KN} grid=({NB},1,1) block=(512,1,1) lds={LDS}\n; @launch kernel=mpnn_d_kernel grid=(1,1,1) block=(64,1,1) lds=0\n"
        k += gen_diag(OPT["diag"])
    out += '.amdgcn_target "amdgcn-amd-amdhsa--gfx950"\n.text\n' + k
    out += f""".section .rodata,"a"
.p2align 6
.amdhsa_kernel {KN}
  .amdhsa_next_free_vgpr {nv}
  .amdhsa_next_free_sgpr {ns}
  .amdhsa_accum_offset {(nv+3)//4*4}
  .amdhsa_group_segment_fixed_size 0
  .amdhsa_kernarg_size 72
  .amdhsa_user_sgpr_count 2
  .amdhsa_user_sgpr_kernarg_segment_ptr 1
  .amdhsa_system_sgpr_workgroup_id_x 1
.end_amdhsa_kernel
"""
    if OPT["diag"] >= 0:
        out += """.p2align 6
.amdhsa_kernel mpnn_d_kernel
  .amdhsa_next_free_vgpr 8
  .amdhsa_next_free_sgpr 32
  .amdhsa_accum_offset 8
  .amdhsa_group_segment_fixed_size 0
  .amdhsa_kernarg_size 72
  .amdhsa_user_sgpr_count 2
  .amdhsa_user_sgpr_kernarg_segment_ptr 1
  .amdhsa_system_sgpr_workgroup_id_x 1
.end_amdhsa_kernel
"""
    open(sys.argv[1], "w").write(out)
    print("vgprs", nv, "lds", LDS)
main()
```

```python
from common import *

N = 10000; E = 320000
G = 125
CH = 2560
NB = 256
MAGIC = 26843
CAP = 28
CELLB = 128
BSTR = G * CELLB

WS_P = 256
WS_CELL = 0x280000
WS_WF = 0x1280000
WF_W2, WF_UT, WF_UB, WF_3H, WF_3L = 0, 32768, 65536, 98304, 102400
WF_SIZE = 106496
WS_OVF = 0x12A0000
OVSTR = 64 + CH * 8
WS_FLAG = 0x1520000
WS_STAMP = 0x1600000

OPT = dict(lo=0, k8=1, stamp=0, nodma=0, noadd=0, noe=0, hot=0, align=1, unroll=2, dmapos=0, rdpos=0, dsc=1, pf=1, slp=0, stf=1, addpos=0, rdgap=0, prio=0, bench=0, octo=1, frep=8, fln=16, slp0=0, plf=1, flf=1, diag=-1, touch=0, dz=0, abl=0, dodd=0)
for a_ in sys.argv[2:]:
    k_, v_ = a_.split("="); OPT[k_] = int(v_)
EXP = OPT["bench"] or OPT["nodma"] or OPT["noe"] or OPT["noadd"] or OPT["hot"]

FL_ = ['', 'sc1', 'sc0 sc1', 'sc1 nt', 'sc0 sc1 nt']; PLF = FL_[OPT['plf']]; FLF = FL_[OPT['flf']]
STF = ['', 'sc1', 'sc0 sc1', 'sc1 nt'][OPT['stf']]
FREP = OPT['frep']; FLN = OPT['fln']; FSH = (128//FLN).bit_length()-1; FHALF = FREP*FLN*256; FNON = 2*FHALF; FMASK = hex((1<<FREP)-1)
CAPB = 70
L_ENT = 0
L_GN = (CAPB + 1) * 256
L_CNT = L_GN + (CAPB + 17) * 32
L_FLG = L_CNT + 256
L_ACC = L_FLG + 64
AS = 1040
L_Q = L_ACC + 40 * AS
QS = 320
L_X = L_Q + 40 * QS
XS = 288
L_STG = L_X + 40 * XS
STG = 8 * 1040 + 1024
LDS = L_STG + 8 * STG
L_CIMG = L_STG
L_BCNT = L_CIMG + NB * CELLB
WPITCH = 1088
L_GP = L_STG + 1024
L_WS = L_STG + 32 * WPITCH
assert L_BCNT + 1024 <= LDS and L_STG % 16 == 0 and L_ACC % 16 == 0
PADS, PADE = 0x8000003f, 0x80000000
KN = "standalone__mpnn_edge_mlp__graph_kernel"

def stamp(a, i, cyc=None):
    if OPT["stamp"]:
        if cyc is None:
            a(f"  s_memrealtime s[{80+2*i}:{81+2*i}]\n  s_waitcnt lgkmcnt(0)")
        else:
            a(f"  s_memrealtime s[96:97]\n  s_memtime s[98:99]\n  s_waitcnt lgkmcnt(0)\n  s_mov_b32 s{i}, s96\n  s_mov_b32 s{i+2}, s98")

def gen():
    a = Asm()
    R = Regs(1)
    al = R.alloc
    vl = al("lane")
    t0 = al("t", 8, 2); t1, t2, t3, t4, t5, t6, t7 = range(t0+1, t0+8)
    vchunk = al("vchunk"); vechunk = al("vechunk")
    vent = al("vent"); vrow = al("vrow"); vgq = al("vgq"); vga = al("vga")
    vAlo = al("Alo"); vAhi = al("Ahi"); vEF = al("vEF")
    vqlane = al("vqlane"); vacl = al("vacl"); vxb = al("vxb"); vqw = al("vqw")
    vebase = al("vebase"); vone = al("vone"); vt16 = al("vt16"); vcell = al("vcell")
    vqa = al("vqa"); vsrow = al("vsrow"); vgn1 = al("vgn1")
    ENT = al("ENT", 2, 2)
    MAC = al("MAC", 2, 2)
    PAT = al("PAT", 2, 2)
    nq = 2 if OPT["k8"] else 4
    AQ = al("AQ", nq, 2)
    GN = al("GN", 4, 2); AD = al("AD", 4)
    DO = al("DO", 2)
    I0 = al("I0", 4, 2); I1 = al("I1", 4, 2)
    W3 = al("W3", 16, 2)
    W3L = al("W3L", 16, 2) if OPT["lo"] else None
    BQ = al("BQ", 4*nq, 2)
    EF = al("EF", 4, 2)
    PF = al("PF", 32, 2)
    D0 = al("D0", 16, 2); D1 = al("D1", 16, 2)
    EA = al("EA", 8, 2); TA = al("TA", 8, 2); EB = al("EB", 8, 2); TB = al("TB", 8, 2)
    RA = al("RA", 2, 2); RB = al("RB", 2, 2)
    SA = al("SA", 2, 2); SB = al("SB", 2, 2)
    CV = al("CV", 8, 2)
    U = al("U", 12, 2); WUB = al("WUB", 16, 2)
    DUM = al("DUM", 4, 2)
    DK = al("DK", 4, 2)
    nv = R.n
    assert TA == EA + 8 and EB == EA + 16 and TB == EA + 24 and D1 == D0 + 16
    DD = D0; SS_ = D0 + 5; B4 = D0 + 10; RK = D0 + 15; CA = D0 + 20
    CP = PF
    GX = W3
    XL = U
    W1F = WUB
    REC = D0; NOD = D0 + 8; RNK = D1
    W2F = EA; WUT = EB; XF = PF; QD = CV
    sW = 3
    pX, pE, pS, pD, pWM, pWU, pO, pWS = 4, 6, 8, 10, 12, 14, 16, 18
    SP, SE, SC, SW, SO, SV, SF = 20, 24, 28, 32, 36, 40, 44
    T0, T1, T2 = 48, 52, 56
    sStart, sNb, sStg, sCnt, sT, sMode, sKind, sFirst = 60, 61, 62, 63, 64, 65, 66, 67
    sAS, sQS, sTag, sP, sUB, sLo2 = 68, 69, 70, 71, 72, 73
    sCO = 59
    sNp = 79
    sEx, sK, sBad = 74, 76, 78
    sTmp = 4
    sA = 48
    sOV = 48
    sOVT = 74
    sq = 100
    if OPT["stamp"]: NS = 102
    else: NS = 102

    a(f"""
.globl {KN}
.p2align 8
.type {KN},@function
{KN}:
  s_cmp_ge_u32 s2, {NB}
  s_cbranch_scc1 K_END""")
    if OPT["stamp"]: a("  s_memrealtime s[80:81]")
    a(f"""
  s_load_dwordx8 s[4:11], s[0:1], 0
  s_load_dwordx4 s[12:15], s[0:1], 32
  s_load_dwordx2 s[16:17], s[0:1], 48
  s_load_dwordx2 s[18:19], s[0:1], 64
  v_lshrrev_b32 v{t0}, 6, v0
  v_and_b32 v{vl}, 63, v0
  s_and_b32 s{sP}, s2, {FREP-1}
  s_mul_i32 s{sP}, s{sP}, {FLN*256}
  s_and_b32 s{sq}, s2, 7
  s_lshl_b32 s{sq}, s{sq}, 1
  s_bfe_u32 s{sq+1}, s2, 0x10003
  s_and_b32 s2, s2, 0xf0
  s_or_b32 s2, s2, s{sq}
  s_or_b32 s2, s2, s{sq+1}
  s_mul_i32 s{sStart}, s2, 640013
  v_readfirstlane_b32 s{sW}, v{t0}
  s_add_u32 s{sNb}, s{sStart}, {640013+16383}
  s_add_u32 s{sStart}, s{sStart}, 16383
  s_sub_u32 s{sNp}, s{sStart}, 640013
  s_lshr_b32 s{sStart}, s{sStart}, 14
  s_lshr_b32 s{sNb}, s{sNb}, 14
  s_lshr_b32 s{sNp}, s{sNp}, 14
  s_min_u32 s{sNb}, s{sNb}, {N}
  s_sub_u32 s{sCnt}, s{sNb}, s{sNp}
  s_sub_u32 s{sNb}, s{sNb}, s{sStart}
  s_lshl_b32 s{sT}, s{sNp}, 8
  s_sub_u32 s{sNp}, s{sStart}, s{sNp}
  s_mov_b32 s{sMode}, 0
  s_mov_b32 s{sKind}, 0
  s_mov_b32 s{sFirst}, 1
  s_mov_b32 s{sAS}, {AS}
  s_mov_b32 s{sQS}, {QS}
  s_mul_i32 s{sStg}, s{sW}, {STG}
  s_add_u32 s{sStg}, s{sStg}, {L_STG}
  v_lshlrev_b32 v{vt16}, 4, v0
  s_mul_i32 s{sq}, s2, {CH*2}
  v_lshl_add_u32 v{t2}, v0, 2, s{sq}
  v_add_u32 v{t3}, 4096, v{t2}
  v_lshrrev_b32 v{t4}, 4, v{vl}
  v_lshlrev_b32 v{t0}, 1, v{t4}
  v_xor_b32 v{t0}, v{t0}, v{vl}
  v_lshlrev_b32 v{t0}, 4, v{t0}
  s_lshl_b32 s{sq}, s{sW}, 12
  v_add_u32 v{t7}, s{sq}, v{t0}
  s_mul_i32 s{sUB}, s{sW}, {4*WPITCH}
  s_add_u32 s{sUB}, s{sUB}, {L_WS}
  v_add_u32 v{t6}, 8192, v{vt16}
  v_add_u32 v{t5}, 16384, v{vt16}
  s_bitcmp1_b32 s2, 0
  s_waitcnt lgkmcnt(0)
  s_cbranch_scc1 K_LDG
  s_cmp_ge_u32 s2, {2*G}
  s_cbranch_scc1 K_LDP""")
    srd(a, T0, pD, E*4)
    srd(a, T1, pS, E*4)
    a(f"  s_movk_i32 s{sq}, 0x2000")
    for r_, T in ((DD, T0), (SS_, T1)):
        a(f"""
  buffer_load_dword v{r_}, v{t2}, {s(T,4)}, 0 offen
  buffer_load_dword v{r_+1}, v{t2}, {s(T,4)}, 0 offen offset:2048
  buffer_load_dword v{r_+2}, v{t3}, {s(T,4)}, 0 offen
  buffer_load_dword v{r_+3}, v{t3}, {s(T,4)}, 0 offen offset:2048
  buffer_load_dword v{r_+4}, v{t2}, {s(T,4)}, s{sq} offen""")
    def wdma(T):
        for q in range(4):
            a(f"  s_add_u32 m0, s{sUB}, {64*q}\n  s_nop 0\n  buffer_load_dwordx4 v{t7}, {s(T,4)}, 0 offen offset:{1024*q} lds")
    a(f"""
K_LDX:
  s_lshl_b32 s{sq}, s{sStart}, 8
  s_lshl_b32 s{sq+1}, s{sNb}, 8""")
    srd(a, T2, pX, f"s{sq+1}", addreg=sq)
    a(f"""
  buffer_load_dwordx4 {v(XL,4)}, v{vt16}, {s(T2,4)}, 0 offen
  buffer_load_dwordx4 {v(XL+4,4)}, v{t6}, {s(T2,4)}, 0 offen
  s_branch K_LD3
K_LDP:
  s_cmp_eq_u32 s2, {2*G}
  s_cselect_b32 s{T1}, s{pWM}, s{pWU}
  s_cselect_b32 s{T1+1}, s{pWM+1}, s{pWU+1}
  s_cmp_eq_u32 s2, {2*G+2}
  s_cselect_b32 s{sq}, 0, 32768
  s_add_u32 s{T1}, s{T1}, s{sq}
  s_addc_u32 s{T1+1}, s{T1+1}, 0
  s_mov_b32 s{T1+2}, 32768
  s_mov_b32 s{T1+3}, 0x20000""")
    wdma(T1)
    srd(a, T0, pWM, 16*256, add=256*256)
    a(f"""
  v_and_b32 v{t0}, 31, v{vl}
  v_lshrrev_b32 v{t1}, 5, v{vl}
  v_lshlrev_b32 v{t1}, 11, v{t1}
  v_lshl_add_u32 v{t1}, v{t0}, 1, v{t1}
  s_and_b32 s{sq}, s{sW}, 3
  s_lshl_b32 s{sq}, s{sq}, 6""")
    for jj in range(8):
        a(f"  buffer_load_ushort v{D0+jj}, v{t1}, {s(T0,4)}, s{sq} offen offset:{jj*256}")
    a(f"""
  s_branch K_LDX
K_LDG:
  s_lshl_b32 s{sCnt}, s{sCnt}, 8""")
    srd(a, T0, pX, f"s{sCnt}", addreg=sT)
    srd(a, T1, pWM, 128*256)
    a(f"""
  buffer_load_dwordx4 {v(GX,4)}, v{vt16}, {s(T0,4)}, 0 offen
  buffer_load_dwordx4 {v(GX+4,4)}, v{t6}, {s(T0,4)}, 0 offen
  buffer_load_dwordx4 {v(GX+8,4)}, v{t5}, {s(T0,4)}, 0 offen""")
    wdma(T1)
    a(f"""
K_LD3:
  s_add_u32 s{SF}, s{pWS}, {WS_FLAG}
  s_addc_u32 s{SF+1}, s{pWS+1}, 0
  s_load_dword s{sTag}, s[{SF}:{SF+1}], {FNON}
  s_mov_b32 s{SF+2}, {FNON+4}
  s_mov_b32 s{SF+3}, 0x20000
  v_lshrrev_b32 v{t1}, 2, v0
  v_and_b32 v{t4}, 3, v0
  v_lshlrev_b32 v{t4}, 4, v{t4}
  v_lshl_add_u32 v{vcell}, v{t1}, 7, v{t4}
  s_mov_b32 s{sq}, {CH*32}
  v_mul_u32_u24 v{vebase}, s{sq}, v{t1}""")
    a(f"""
  v_mov_b32 v{CV}, 0
  v_mov_b32 v{CV+1}, 0
  v_mov_b32 v{CV+2}, 0
  v_mov_b32 v{CV+3}, 0
  v_add_u32 v{t0}, {L_CIMG}, v{vt16}""")
    a(f"  s_bitcmp1_b32 s2, 0\n  s_cbranch_scc1 K_NOZ")
    for j in range(4):
        a(f"  ds_write_b128 v{t0}, {v(CV,4)} offset:{j*8192}")
    a(f"  s_cmp_lg_u32 s{sW}, 0\n  s_cbranch_scc1 K_NOZ\n  ds_write_b128 v{t0}, {v(CV,4)} offset:32768")
    a("K_NOZ:")
    for j in range(5):
        a(f"  ds_write_b128 v{vt16}, {v(CV,4)} offset:{L_GN + j*8192}")
    a(f"""
  v_cmp_gt_u32 vcc, {(L_Q-L_GN-5*8192)//16}, v0
  s_and_saveexec_b64 {s(sEx,2)}, vcc
  ds_write_b128 v{vt16}, {v(CV,4)} offset:{L_GN + 5*8192}
  s_mov_b64 exec, {s(sEx,2)}""")
    def prefill():
        a(f"""
  v_mov_b32 v{CV+4}, {PADS}
  v_mov_b32 v{CV+5}, {PADE}
  v_mov_b32 v{CV+6}, {PADS}
  v_mov_b32 v{CV+7}, {PADE}
  ds_write_b128 v{vt16}, {v(CV+4,4)}
  ds_write_b128 v{vt16}, {v(CV+4,4)} offset:8192
  v_cmp_gt_u32 vcc, {(L_GN-16384)//16}, v0
  s_and_saveexec_b64 {s(sEx,2)}, vcc
  ds_write_b128 v{vt16}, {v(CV+4,4)} offset:16384
  s_mov_b64 exec, {s(sEx,2)}""")
    prefill()
    a(f"  s_mul_i32 s{sq}, s2, {BSTR}\n  s_lshl_b32 s{sq+1}, s{sStart}, 8\n  s_lshl_b32 s{sK}, s{sNb}, 8")
    srd(a, SC, pWS, G*CELLB, add=WS_CELL, addreg=sq)
    srd(a, SP, pWS, (N+1)*256)
    srd(a, SE, pE, E*32)
    srd(a, SW, pWS, WF_SIZE, add=WS_WF)
    srd(a, SO, pO, f"s{sK}", addreg=sq+1)
    srd(a, SV, pWS, G*OVSTR, add=WS_OVF)
    a(f"""
  v_mov_b32 v{vone}, 1
  v_mov_b32 v{MAC}, 0
  v_mov_b32 v{MAC+1}, 0
  v_and_b32 v{t0}, 15, v{vl}                 ; l&15
  v_bfe_u32 v{t1}, v{vl}, 4, 1               ; r4&1
  v_lshlrev_b32 v{t2}, 3, v{t1}
  v_xor_b32 v{t2}, v{t0}, v{t2}
  v_lshlrev_b32 v{vchunk}, 4, v{t2}
  v_and_b32 v{t2}, 1, v{vl}
  v_xor_b32 v{t2}, v{t2}, v{t1}
  v_lshlrev_b32 v{vechunk}, 4, v{t2}
  v_lshrrev_b32 v{t2}, 4, v{vl}
  v_lshlrev_b32 v{t2}, 6, v{t2}
  v_lshrrev_b32 v{t4}, 1, v{t0}
  v_lshl_add_u32 v{t2}, v{t4}, 3, v{t2}
  s_lshl_b32 s{sq}, s{sW}, 8
  v_add_u32 v{vent}, s{sq}, v{t2}
  v_bfe_u32 v{t2}, v{vl}, 2, 1               ; h
  v_and_b32 v{t4}, 1, v{vl}                  ; xy
  v_lshl_add_u32 v{t5}, v{t2}, 1, v{t4}      ; r4
  v_bfe_u32 v{t6}, v{vl}, 3, 2
  v_bfe_u32 v{t7}, v{vl}, 1, 1
  v_lshl_add_u32 v{t6}, v{t6}, 1, v{t7}      ; j
  v_lshl_add_u32 v{t7}, v{t5}, 3, v{t6}      ; q = 8 r4 + j
  v_lshlrev_b32 v{t7}, 3, v{t7}
  v_add_u32 v{vrow}, s{sq}, v{t7}
  v_lshrrev_b32 v{t7}, 5, v{vl}              ; hh
  v_mul_u32_u24 v{vAlo}, 1040, v{t6}
  v_lshl_add_u32 v{vAlo}, v{t5}, 8, v{vAlo}
  v_lshl_add_u32 v{vAlo}, v{t7}, 4, v{vAlo}
  v_add_u32 v{vAlo}, s{sStg}, v{vAlo}
  v_xor_b32 v{vAhi}, 1, v{t4}
  v_lshl_add_u32 v{vAhi}, v{vAhi}, 7, v{vAlo}
  v_lshl_add_u32 v{vAlo}, v{t4}, 7, v{vAlo}
  v_xor_b32 v{vEF}, v{t7}, v{t4}
  v_lshl_add_u32 v{vEF}, v{t6}, 1, v{vEF}
  v_lshl_add_u32 v{vEF}, v{t5}, 4, v{vEF}
  v_lshlrev_b32 v{vEF}, 4, v{vEF}
  s_add_u32 s{sq+1}, s{sStg}, 8320
  v_add_u32 v{vEF}, s{sq+1}, v{vEF}
  v_bfe_u32 v{t5}, v{vl}, 4, 1               ; o
  v_lshlrev_b32 v{t5}, 4, v{t5}
  v_mov_b32 v{t6}, 0x3f80
  v_lshlrev_b32 v{t5}, v{t5}, v{t6}
  v_cmp_eq_u32 vcc, v{t7}, v{t2}
  s_nop 1
  v_cndmask_b32 v{t5}, 0, v{t5}, vcc
  v_cmp_eq_u32 vcc, 0, v{t4}
  s_nop 1
  v_cndmask_b32 v{PAT}, 0, v{t5}, vcc
  v_cndmask_b32 v{PAT+1}, v{t5}, 0, vcc
  s_lshl_b32 s{sq}, s{sW}, 5
  s_add_u32 s{sq+1}, s{sq}, {L_GN}
  v_lshlrev_b32 v{vga}, 4, v{t7}
  v_add_u32 v{vga}, s{sq+1}, v{vga}
  v_and_b32 v{t2}, 12, v{vl}
  v_add_u32 v{vgq}, v{vga}, v{t2}
  v_and_b32 v{t2}, 3, v{vl}
  v_lshlrev_b32 v{t2}, 3, v{t2}
  v_lshl_add_u32 v{t2}, v{t1}, 5, v{t2}
  v_add_u32 v{vqlane}, {L_Q}, v{t2}
  v_and_b32 v{t2}, 31, v{vl}
  v_lshlrev_b32 v{t4}, 3, v{t2}
  v_add_u32 v{vacl}, {L_ACC}, v{t4}
  v_lshrrev_b32 v{t4}, 4, v{vl}              ; g
  v_mul_u32_u24 v{vxb}, {XS}, v{t0}
  v_lshl_add_u32 v{vxb}, v{t4}, 4, v{vxb}
  v_add_u32 v{vxb}, {L_X}, v{vxb}
  v_mul_u32_u24 v{vqw}, {QS}, v{t0}
  v_lshl_add_u32 v{vqw}, v{t4}, 3, v{vqw}
  s_add_u32 s{sq+1}, s{sq}, {L_Q}
  v_add_u32 v{vqw}, s{sq+1}, v{vqw}
  v_mul_u32_u24 v{vqa}, {2*WPITCH}, v{t4}
  v_bfe_u32 v{t5}, v{vl}, 2, 2
  v_lshl_add_u32 v{vqa}, v{t5}, 8, v{vqa}
  v_xor_b32 v{t5}, s{sW}, v{t5}
  v_lshl_add_u32 v{vqa}, v{t5}, 5, v{vqa}
  v_and_b32 v{t5}, 3, v{vl}
  v_lshl_add_u32 v{vqa}, v{t5}, 3, v{vqa}
  v_add_u32 v{vqa}, {L_WS}, v{vqa}
  v_and_b32 v{t4}, 1, v{vl}
  v_lshlrev_b32 v{t4}, 4, v{t4}
  v_lshlrev_b32 v{t4}, v{t4}, v{t6}
  v_bfe_u32 v{t5}, v{vl}, 1, 4
  v_lshlrev_b32 v{t7}, 2, v{t7}
  v_sub_u32 v{t5}, v{t5}, v{t7}""")
    for i in range(4):
        a(f"  v_cmp_eq_u32 vcc, {i}, v{t5}\n  s_nop 1\n  v_cndmask_b32 v{I0+i}, 0, v{t4}, vcc")
        a(f"  v_cmp_eq_u32 vcc, {8+i}, v{t5}\n  s_nop 1\n  v_cndmask_b32 v{I1+i}, 0, v{t4}, vcc")
    if not OPT["k8"]:
        a(f"  v_mov_b32 v{AQ+2}, 0\n  v_mov_b32 v{AQ+3}, 0")
        for t in range(4):
            a(f"  v_mov_b32 v{BQ+4*t+2}, 0\n  v_mov_b32 v{BQ+4*t+3}, 0")
    def prefetch():
        if not OPT["pf"]: return
        a(f"  s_mul_i32 s{sq}, s2, 40000\n  s_sub_u32 s{sq}, s{sq}, 4096\n  v_add_u32 v{t0}, s{sq}, v{vt16}")
        for j in range(10):
            a(f"  buffer_load_dwordx4 {v(DUM,4)}, v{t0}, {s(SE,4)}, 0 offen")
            if j < 9: a(f"  v_add_u32 v{t0}, 4096, v{t0}")
    def wtr(dst, ad):
        for st in range(4):
            for hf in range(2):
                a(f"  ds_read_b64_tr_b16 {v(dst+4*st+2*hf,2)}, v{ad} offset:{(8*st+hf)*WPITCH}")
    def own_x(nyounger):
        a(f"""
  v_lshrrev_b32 v{t0}, 4, v0
  v_lshl_add_u32 v{t0}, v{t0}, 5, v{vt16}
  v_add_u32 v{t0}, {L_X}, v{t0}
  s_waitcnt vmcnt({nyounger})
  ds_write_b128 v{t0}, {v(XL,4)}
  s_mov_b32 exec_lo, s{sLo2}
  s_mov_b32 exec_hi, s{sLo2}
  ds_write_b128 v{t0}, {v(XL+4,4)} offset:{32*XS}
  s_mov_b64 exec, -1""")
    a(f"""
  s_cmp_lt_u32 s{sW}, 2
  s_cselect_b32 s{sLo2}, -1, 0
  s_lshr_b32 s{sq}, s2, {1+FSH}
  s_lshl_b32 s{sq}, s{sq}, 8
  s_bfe_u32 s{sq+1}, s2, {hex((FSH<<16)|1)}
  s_lshl_b32 s{sq+1}, s{sq+1}, 2
  s_add_u32 s{sq}, s{sq}, s{sq+1}
  s_and_b32 s{sq+1}, s2, 1
  s_mul_i32 s{sq+1}, s{sq+1}, {FHALF}
  s_add_u32 s{sq}, s{sq}, s{sq+1}
  v_mul_u32_u24 v{vgn1}, {FLN*256}, v{vl}
  v_add_u32 v{vgn1}, s{sq}, v{vgn1}
  v_lshrrev_b32 v{t2}, {FSH-1}, v{vl}
  v_lshlrev_b32 v{t2}, 8, v{t2}
  v_and_b32 v{t3}, {(1<<(FSH-1))-1}, v{vl}
  v_lshl_add_u32 v{t2}, v{t3}, 3, v{t2}
  v_add_u32 v{vsrow}, s{sP}, v{t2}
  s_mov_b32 s{sK}, {NLOG2E}
  s_mov_b32 s{sK+1}, {NLOG2E}
  s_waitcnt lgkmcnt(0)
  s_add_u32 s{sTag}, s{sTag}, 1
  s_bitcmp1_b32 s2, 0
  s_cbranch_scc1 K_GEMM
  s_cmp_ge_u32 s2, {2*G}
  s_cbranch_scc1 K_PREP
  s_mov_b32 s{sq}, {MAGIC}
  v_lshlrev_b32 v{t7}, 6, v0
  v_add_u32 v{t7}, {1<<18}, v{t7}
  s_barrier
  s_waitcnt vmcnt(7)""")
    stamp(a, 1)
    for j in range(5):
        a(f"""
  v_mul_u32_u24 v{B4+j}, s{sq}, v{DD+j}
  v_lshrrev_b32 v{B4+j}, 18, v{B4+j}
  v_and_b32 v{B4+j}, 0x3fc, v{B4+j}
  v_add_u32 v{t0+j}, {L_BCNT}, v{B4+j}
  ds_add_rtn_u32 v{RK+j}, v{t0+j}, v{vone}""")
    a("  s_waitcnt vmcnt(2)")
    for j in range(5):
        a(f"""
  v_lshl_add_u32 v{SS_+j}, v{SS_+j}, 18, v{t7}
  v_and_or_b32 v{SS_+j}, v{DD+j}, 63, v{SS_+j}
  v_lshlrev_b32 v{CA+j}, 5, v{B4+j}
  v_add_u32 v{CA+j}, {L_CIMG}, v{CA+j}""")
        if j < 4: a(f"  v_add_u32 v{t7}, {512<<6}, v{t7}")
    srd(a, T2, pWS, NB*BSTR, add=WS_CELL)
    a(f"""
  v_lshrrev_b32 v{t4}, 3, v0
  s_mov_b32 s{sq}, {BSTR}
  v_mul_u32_u24 v{t4}, s{sq}, v{t4}
  v_and_b32 v{t5}, 7, v0
  v_lshl_add_u32 v{t4}, v{t5}, 4, v{t4}
  s_lshl_b32 s{sq}, s2, 6
  s_mov_b64 {s(sBad,2)}, 0
  s_waitcnt lgkmcnt(0)""")
    for j in range(5):
        a(f"""
  v_mul_u32_u24 v{t1}, 37, v{RK+j}
  v_lshl_add_u32 v{t0}, v{RK+j}, 2, v{CA+j}
  v_lshrrev_b32 v{t1}, 8, v{t1}
  v_cmp_le_u32 vcc, {CAP-1}, v{RK+j}
  v_lshl_add_u32 v{t0}, v{t1}, 2, v{t0}
  s_or_b64 {s(sBad,2)}, {s(sBad,2)}, vcc
  s_andn2_b64 exec, exec, vcc
  ds_write_b32 v{t0}, v{SS_+j}
  s_mov_b64 exec, -1""")
    a(f"""
  v_add_u32 v{t0}, {L_CIMG}, v{vt16}
  v_mov_b32 v{t2}, {L_FLG+4}
  s_cmp_eq_u64 {s(sBad,2)}, 0
  s_cbranch_scc1 K_NOFULL
  ds_write_b32 v{t2}, v{vone}
K_NOFULL:
  s_waitcnt lgkmcnt(0)
  s_barrier""")
    stamp(a, 2)
    a(f"  ds_read_b32 v{t2}, v{t2}\nK_OVFDONE:")
    for j in range(4):
        a(f"  ds_read_b128 {v(CP+4*j,4)}, v{t0} offset:{8192*j}")
    a(f"""
  s_waitcnt lgkmcnt(4)
  v_cmp_ne_u32 vcc, 0, v{t2}
  s_cbranch_vccnz K_OVF""")
    for j in range(4):
        a(f"""
  s_mov_b32 exec_lo, 0xaaaaaaaa
  s_mov_b32 exec_hi, 0xaaaaaaaa
  s_waitcnt lgkmcnt({3-j})
  v_mov_b32 v{CP+4*j+3}, s{sTag}
  s_mov_b64 exec, -1
  buffer_store_dwordx4 {v(CP+4*j,4)}, v{t4}, {s(T2,4)}, s{sq} offen {STF}
  s_add_u32 s{sq}, s{sq}, {64*BSTR}""")
    stamp(a, 4)
    own_x(4)
    a(f"""
  s_branch K_PST
K_GEMM:
  s_mul_i32 s{sq}, s{sNp}, {XS}
  s_sub_u32 s{sq}, {L_X}, s{sq}
  v_lshrrev_b32 v{t0}, 4, v0
  v_lshl_add_u32 v{t0}, v{t0}, 5, v{vt16}
  v_add_u32 v{t3}, s{sq}, v{t0}
  s_cmp_lt_u32 s{sW}, 4
  s_cselect_b32 s{sq+1}, -1, 0
  v_subrev_u32 v{t1}, {L_X}, v{vxb}
  v_add_u32 v{t1}, s{sq}, v{t1}
  s_waitcnt vmcnt(6)
  ds_write_b128 v{t3}, {v(GX,4)}
  s_waitcnt vmcnt(5)
  ds_write_b128 v{t3}, {v(GX+4,4)} offset:{32*XS}
  s_waitcnt vmcnt(4)
  s_mov_b32 exec_lo, s{sq+1}
  s_mov_b32 exec_hi, s{sq+1}
  ds_write_b128 v{t3}, {v(GX+8,4)} offset:{64*XS}
  s_mov_b64 exec, -1
  v_and_b32 v{t2}, 15, v{vl}
  v_mul_u32_u24 v{t2}, {XS}, v{t2}
  v_lshrrev_b32 v{t3}, 4, v{vl}
  v_lshl_add_u32 v{t2}, v{t3}, 3, v{t2}
  s_lshl_b32 s{sq}, s{sW}, 5
  s_add_u32 s{sq}, s{sq}, {L_GP}
  v_add_u32 v{t2}, s{sq}, v{t2}
  v_add_u32 v{t0}, {L_GP - 16*XS}, v{t0}
  v_subrev_u32 v{t4}, 4096, v{vt16}""")
    srd(a, T0, pWS, f"s{sCnt}", add=WS_P, addreg=sT)
    a("  s_waitcnt vmcnt(0) lgkmcnt(0)\n  s_barrier")
    stamp(a, 1)
    wtr(W1F, vqa)
    XT = [PF, PF+16, EA, EB, PF]
    for nt in range(4):
        for st in range(4):
            a(f"  ds_read_b128 {v(XT[nt]+4*st,4)}, v{t1} offset:{nt*16*XS + st*64}")
    for nt in range(5):
        a(f"  s_waitcnt lgkmcnt({(12, 12, 8, 4, 0)[nt]})")
        for st in range(4):
            c = "0" if st == 0 else v(D0+4*nt, 4)
            a(f"  v_mfma_f32_16x16x32_bf16 {v(D0+4*nt,4)}, {v(W1F+4*st,4)}, {v(XT[nt]+4*st,4)}, {c}")
        if nt == 0:
            for st in range(4):
                a(f"  ds_read_b128 {v(PF+4*st,4)}, v{t1} offset:{4*16*XS + st*64}")
    for nt in range(5):
        d = D0 + 4*nt
        if nt == 4: a("  s_nop 1")
        a(f"""
  v_pk_mul_f32 {v(d,2)}, {v(d,2)}, {s(sK,2)}
  v_pk_mul_f32 {v(d+2,2)}, {v(d+2,2)}, {s(sK,2)}
  v_cvt_pk_bf16_f32 v{W3+2*nt}, v{d}, v{d+1}
  v_cvt_pk_bf16_f32 v{W3+2*nt+1}, v{d+2}, v{d+3}
  ds_write_b64 v{t2}, {v(W3+2*nt,2)} offset:{nt*16*XS}""")
    a("  s_waitcnt lgkmcnt(0)\n  s_barrier")
    stamp(a, 2)
    a(f"""
  s_cmp_lt_u32 s{sW}, 4
  s_cbranch_scc1 K_PST""")
    for j in range(5):
        a(f"  ds_read_b128 {v(PF+4*j,4)}, v{t0} offset:{j*16*XS}")
    for j in range(5):
        a(f"  s_waitcnt lgkmcnt({4-j})\n  buffer_store_dwordx4 {v(PF+4*j,4)}, v{t4}, {s(T0,4)}, 0 offen {STF}")
        if j < 4: a(f"  v_add_u32 v{t4}, 4096, v{t4}")
    a(f"""
  v_mov_b32 v{t0}, {L_FLG+12}
  v_mov_b32 v{t7}, s{sTag}
  s_mov_b64 exec, 1
  s_waitcnt vmcnt(0)
  ds_add_rtn_u32 v{t0}, v{t0}, v{vone}
  s_waitcnt lgkmcnt(0)
  v_readfirstlane_b32 s{sq}, v{t0}
  s_mov_b64 exec, -1
  s_cmp_lg_u32 s{sq}, 3
  s_cbranch_scc1 K_PST
K_FLAG:
  s_mov_b64 exec, {FMASK}
  buffer_store_dword v{t7}, v{vgn1}, {s(SF,4)}, 0 offen {FLF}
  s_mov_b64 exec, -1
K_PST:""")
    def node_gemm(WA, WB=None):
        for nt in range(3):
            xf = XF + 16*(nt & 1)
            if nt == 0:
                for n2 in range(2):
                    for st in range(4):
                        a(f"  ds_read_b128 {v(XF+16*n2+4*st,4)}, v{vxb} offset:{n2*16*XS + st*64}")
            a(f"  s_waitcnt lgkmcnt({4 if nt == 0 else 5 if nt == 1 else 1})")
            q = QD if nt != 1 else SA
            for st in range(4):
                c = "0" if st == 0 else v(q, 4)
                a(f"  v_mfma_f32_16x16x32_bf16 {v(q,4)}, {v(WA+4*st,4)}, {v(xf+4*st,4)}, {c}")
            if WB is not None:
                for st in range(4):
                    c = "0" if st == 0 else v(U+4*nt, 4)
                    a(f"  v_mfma_f32_16x16x32_bf16 {v(U+4*nt,4)}, {v(WB+4*st,4)}, {v(xf+4*st,4)}, {c}")
            if nt == 0:
                for st in range(4):
                    a(f"  ds_read_b128 {v(XF+4*st,4)}, v{vxb} offset:{2*16*XS + st*64}")
            a(f"""
  s_nop 7
  v_pk_mul_f32 {v(q,2)}, {v(q,2)}, {s(sK,2)}
  v_pk_mul_f32 {v(q+2,2)}, {v(q+2,2)}, {s(sK,2)}
  v_cvt_pk_bf16_f32 v{QD+4+2*(nt&1)}, v{q}, v{q+1}
  v_cvt_pk_bf16_f32 v{QD+5+2*(nt&1)}, v{q+2}, v{q+3}""")
            if nt == 2:
                a(f"  s_mov_b32 exec_lo, 0x00ff00ff\n  s_mov_b32 exec_hi, 0x00ff00ff")
            a(f"  ds_write_b64 v{vqw}, {v(QD+4+2*(nt&1),2)} offset:{nt*16*QS}")
            if nt == 2:
                a("  s_mov_b64 exec, -1")
    assert SB == SA + 2
    def poll(lab, off):
        a(f"""
  s_cmp_lg_u32 s{sW}, 1
  s_cbranch_scc1 {lab}_D
  s_mov_b32 s{sq}, 0
  s_mov_b32 s{sq+1}, {off}
  {"s_sleep %d" % OPT["slp0"] if OPT["slp0"] and off == 0 else ""}
{lab}:
  buffer_load_dwordx2 {v(DUM,2)}, v{vsrow}, {s(SF,4)}, s{sq+1} offen {PLF}
  s_add_u32 s{sq}, s{sq}, 1
  s_waitcnt vmcnt(0)
  v_cmp_ne_u32 vcc, s{sTag}, v{DUM}
  v_cmp_ne_u32 {s(sBad,2)}, s{sTag}, v{DUM+1}
  s_or_b64 vcc, vcc, {s(sBad,2)}
  s_cbranch_scc0 {lab}_D
  {"s_sleep %d" % OPT["slp"] if OPT["slp"] else ""}
  s_cmp_lt_u32 s{sq}, 0x8000
  s_cbranch_scc1 {lab}
{lab}_D:""")
    stamp(a, 5)
    nld = 16 if OPT["lo"] else 12
    a(f"""
  s_lshl_b32 s{sTmp}, s{sW}, 12
  s_add_u32 s{sTmp+1}, s{sTmp}, {WF_UT}
  s_add_u32 s{sUB}, s{sTmp}, {WF_UB}
  s_mov_b32 s{sTmp+2}, {WF_3H}
  s_mov_b32 s{sTmp+3}, {WF_3L}
  s_mov_b32 s{sOV}, 0xaaaaaaaa
  s_cmp_eq_u32 s{sW}, 7
  s_cselect_b32 s{sOV+1}, 0xaaaaa, s{sOV}
  v_min_u32 v{t4}, 2, v{vl}
  v_lshl_add_u32 v{t4}, v{t4}, 2, s{sP}
  v_mov_b32 v{t5}, s{sTag}
  s_mov_b32 s{sq}, 0
  {"s_sleep %d" % OPT["slp0"] if OPT["slp0"] else ""}
K_CPOLL:
  buffer_load_dwordx4 {v(REC,4)}, v{vcell}, {s(SC,4)}, 0 offen sc1
  buffer_load_dwordx4 {v(REC+4,4)}, v{vcell}, {s(SC,4)}, 0 offen offset:64 sc1
  s_cmp_lg_u32 s{sW}, 1
  s_cbranch_scc1 K_CPOLL1
  buffer_load_dword v{t5}, v{t4}, {s(SF,4)}, 0 offen offset:{(FLN-1)*256 + (125 - (FLN-1)*(128//FLN))*4} sc1
K_CPOLL1:
  s_add_u32 s{sq}, s{sq}, 1
  s_waitcnt vmcnt(0)
  v_cmp_ne_u32 vcc, s{sTag}, v{REC+3}
  v_cmp_ne_u32 {s(sBad,2)}, s{sTag}, v{REC+7}
  s_or_b64 {s(sBad,2)}, vcc, {s(sBad,2)}
  v_cmp_ne_u32 vcc, s{sTag}, v{t5}
  s_and_b64 {s(sBad,2)}, {s(sBad,2)}, {s(sOV,2)}
  s_or_b64 {s(sBad,2)}, {s(sBad,2)}, vcc
  s_cbranch_scc0 K_CPOLLD
  {"s_sleep %d" % OPT["slp"] if OPT["slp"] else ""}
  s_cmp_lt_u32 s{sq}, 0x8000
  s_cbranch_scc1 K_CPOLL
K_CPOLLD:
  s_mov_b32 exec_lo, 0xaaaaaaaa
  s_mov_b32 exec_hi, 0xaaaaaaaa
  v_mov_b32 v{REC+3}, 0
  v_mov_b32 v{REC+7}, 0
  s_mov_b64 exec, -1""")
    stamp(a, 6)
    wl = [f"  buffer_load_dwordx4 {v(W2F+4*st,4)}, v{t0}, {s(SW,4)}, s{sTmp} offen offset:{st*1024} sc1" for st in range(4)]
    wl += [f"  buffer_load_dwordx4 {v(WUT+4*st,4)}, v{t0}, {s(SW,4)}, s{sTmp+1} offen offset:{st*1024} sc1" for st in range(4)]
    wl += [f"  buffer_load_dwordx4 {v(W3+4*st,4)}, v{t0}, {s(SW,4)}, s{sTmp+2} offen offset:{st*1024} sc1" for st in range(4)]
    if OPT["lo"]:
        wl += [f"  buffer_load_dwordx4 {v(W3L+4*st,4)}, v{t0}, {s(SW,4)}, s{sTmp+3} offen offset:{st*1024} sc1" for st in range(4)]
    NR = 8
    a(f"""
K_PHASE1:
  v_cmp_le_u32 vcc, 0xfffc0000, v{REC+NR-2}
  s_cbranch_vccz K_NOMARK
  s_and_saveexec_b64 {s(sEx,2)}, vcc
  v_lshrrev_b32 v{t0}, 2, v0                 ; producer
  v_lshrrev_b32 v{t1}, 5, v{t0}
  v_lshlrev_b32 v{t1}, 2, v{t1}
  v_lshlrev_b32 v{t0}, v{t0}, v{vone}
  ds_or_b32 v{t1}, v{t0} offset:{L_FLG+32}
  v_mov_b32 v{REC+NR-2}, 0
  s_mov_b64 exec, {s(sEx,2)}
K_NOMARK:""")
    for k in range(NR):
        if k == 4:
            a(f"""
  v_or3_b32 v{t3}, v{REC+k}, v{REC+k+1}, v{REC+k+2}
  v_or_b32 v{t3}, v{t3}, v{REC+k+3}
  v_cmp_ne_u32 vcc, 0, v{t3}
  s_cbranch_vccz K_P1E""")
        a(f"""
  v_lshlrev_b32 v{NOD+k}, 2, v{REC+k}
  v_and_b32 v{NOD+k}, 0xfc, v{NOD+k}
  v_cmpx_ne_u32 vcc, 0, v{REC+k}
  ds_add_rtn_u32 v{RNK+k}, v{NOD+k}, v{vone} offset:{L_CNT}
  s_mov_b64 exec, -1""")
    a(f"""
K_P1E:
  v_lshlrev_b32 v{t0}, 2, v{vl}
  v_subrev_u32 v{t4}, s{sStart}, v{vl}
  v_and_b32 v{t4}, 63, v{t4}
  s_waitcnt lgkmcnt(0)
  s_barrier
  ds_read_b32 v{t1}, v{t0} offset:{L_CNT}
  v_lshlrev_b32 v{t0}, 4, v{vl}
  s_cmp_eq_u32 s{sFirst}, 0
  s_cbranch_scc1 K_NOWL""")
    for x in wl: a(x)
    a(f"""
K_NOWL:
  s_waitcnt lgkmcnt(0)
  v_add_u32 v{t1}, 3, v{t1}
  v_bfe_u32 v{t5}, v{t1}, 2, 1               ; left-over quad
  v_lshrrev_b32 v{t6}, 3, v{t1}
  v_lshl_or_b32 v{t1}, v{t5}, 16, v{t6}
  v_mov_b32 v{t2}, v{t1}
  s_nop 1
  v_add_u32_dpp v{t2}, v{t2}, v{t2} row_shr:1 row_mask:0xf bank_mask:0xf
  s_nop 1
  v_add_u32_dpp v{t2}, v{t2}, v{t2} row_shr:2 row_mask:0xf bank_mask:0xf
  s_nop 1
  v_add_u32_dpp v{t2}, v{t2}, v{t2} row_shr:4 row_mask:0xf bank_mask:0xf
  s_nop 1
  v_add_u32_dpp v{t2}, v{t2}, v{t2} row_shr:8 row_mask:0xf bank_mask:0xf
  s_nop 1
  v_add_u32_dpp v{t2}, v{t2}, v{t2} row_bcast:15 row_mask:0xa bank_mask:0xf
  s_nop 1
  v_add_u32_dpp v{t2}, v{t2}, v{t2} row_bcast:31 row_mask:0xc bank_mask:0xf
  s_nop 1
  v_readlane_b32 s{sT}, v{t2}, 63
  v_sub_u32 v{t1}, v{t2}, v{t1}
  s_lshr_b32 s{sq+1}, s{sT}, 16
  s_and_b32 s{sCO}, s{sT}, 0xffff
  s_lshl_b32 s{sq}, s{sCO}, 1                ; quads in the groups of eight
  s_lshr_b32 s{sCO}, s{sCO}, 2
  s_add_u32 s{sT}, s{sq}, s{sq+1}
  s_add_u32 s{sT}, s{sT}, 7
  s_lshr_b32 s{sT}, s{sT}, 3
  v_lshrrev_b32 v{t2}, 16, v{t1}
  v_add_u32 v{t2}, s{sq}, v{t2}              ; quad slot of the left-over quad
  v_and_b32 v{t1}, 0xffff, v{t1}
  v_lshl_or_b32 v{t0}, v{t6}, 16, v{t1}
  v_lshlrev_b32 v{t0}, 3, v{t0}              ; 8*start8 | 8*n8 << 16
  v_lshlrev_b32 v{t7}, 1, v{t6}
  v_sub_u32 v{t7}, v{t2}, v{t7}
  v_lshlrev_b32 v{t7}, 2, v{t7}              ; position base of the left-over quad
  s_cmp_gt_u32 s{sT}, {CAPB}
  s_cbranch_scc1 K_SPLIT""")
    for k0 in (0, 4):
        if k0:
            a(f"""
  v_or3_b32 v{t3}, v{REC+k0}, v{REC+k0+1}, v{REC+k0+2}
  v_or_b32 v{t3}, v{t3}, v{REC+k0+3}
  v_cmp_ne_u32 vcc, 0, v{t3}
  s_cbranch_vccz K_P2E""")
        for k in range(k0, k0+4):
            a(f"  ds_bpermute_b32 v{PF+24+(k&3)}, v{NOD+k}, v{t7}")
            a(f"  ds_bpermute_b32 v{NOD+k}, v{NOD+k}, v{t0}")
        for k in range(k0, k0+4):
            e = PF + 16 + 2*(k & 3)
            a(f"""
  v_lshrrev_b32 v{e}, 10, v{REC+k}
  v_and_b32 v{e}, {hex(0xffffff00 if not OPT['hot'] else 0x1f00)}, v{e}
  v_bfe_u32 v{e+1}, v{REC+k}, 6, 12
  v_lshl_add_u32 v{e+1}, v{e+1}, 5, v{vebase}""")
            if OPT["hot"]: a(f"  v_and_b32 v{e+1}, 0xfe0, v{e+1}")
        a("  s_waitcnt lgkmcnt(0)")
        for k in range(k0, k0+4):
            a(f"  v_cmp_lt_u32_sdwa {s(8+2*(k&3),2)}, v{RNK+k}, v{NOD+k} src0_sel:DWORD src1_sel:WORD_1")
        for k in range(k0, k0+4):
            a(f"  v_and_b32 v{NOD+k}, 0xffff, v{NOD+k}")
        for k in range(k0, k0+4):
            a(f"  v_cndmask_b32 v{NOD+k}, v{PF+24+(k&3)}, v{NOD+k}, {s(8+2*(k&3),2)}")
        for k in range(k0, k0+4):
            e = PF + 16 + 2*(k & 3)
            a(f"""
  v_add_lshl_u32 v{NOD+k}, v{NOD+k}, v{RNK+k}, 3
  v_cmpx_ne_u32 vcc, 0, v{REC+k}
  ds_write_b64 v{NOD+k}, {v(e,2)}
  s_mov_b64 exec, -1""")
    a(f"""
K_P2E:
  v_lshlrev_b32 v{t2}, 2, v{t2}
  v_cmpx_ne_u32 vcc, 0, v{t5}
  ds_write_b32 v{t2}, v{t4} offset:{L_GN}
  s_mov_b64 exec, -1
  v_add_lshl_u32 v{t2}, v{t1}, v{t6}, 3
  v_lshl_add_u32 v{t1}, v{t1}, 1, s{sW}
  v_lshlrev_b32 v{t1}, 2, v{t1}
K_GNL:
  v_cmpx_lt_u32 vcc, v{t1}, v{t2}
  ds_write_b32 v{t1}, v{t4} offset:{L_GN}
  v_add_u32 v{t1}, 32, v{t1}
  v_cmpx_lt_u32 vcc, v{t1}, v{t2}
  ds_write_b32 v{t1}, v{t4} offset:{L_GN}
  v_add_u32 v{t1}, 32, v{t1}
  v_cmpx_lt_u32 vcc, v{t1}, v{t2}
  s_cbranch_execnz K_GNL
  s_mov_b64 exec, -1
  s_add_u32 s{sCnt}, s{sT}, 7
  s_sub_u32 s{sCnt}, s{sCnt}, s{sW}
  s_lshr_b32 s{sCnt}, s{sCnt}, 3
  s_add_u32 s{sCO}, s{sCO}, 7
  s_sub_u32 s{sCO}, s{sCO}, s{sW}
  s_lshr_b32 s{sCO}, s{sCO}, 3
  {("s_mov_b32 s%d, 40" % sCnt + chr(10) + "  s_movk_i32 s%d, 320" % sT + chr(10) + "  s_mov_b32 s%d, 40" % sCO) if OPT["bench"] else ""}
  s_cmp_eq_u32 s{sFirst}, 0
  s_cbranch_scc1 K_POLL2_D""")
    poll("K_POLL2", FHALF)
    a("  s_waitcnt lgkmcnt(0)\n  s_barrier")
    stamp(a, 7)
    dsc = " sc1" if OPT["dsc"] else ""
    def dma_issue():
        L = []
        for j in range(8):
            d = DO + (j & 1)
            L.append([f"  s_add_u32 m0, s{sStg}, {j*1040}",
                      f"  v_add_u32_dpp v{d}, v{ENT}, v{vchunk} row_newbcast:{2*j} row_mask:0xf bank_mask:0xf",
                      f"  buffer_load_dwordx4 v{d}, {s(SP,4)}, 0 offen{dsc} lds" if not OPT["nodma"] else "  s_nop 0"])
        L.append([f"  s_add_u32 m0, s{sStg}, 8320",
                  f"  v_add_u32 v{DO}, v{ENT+1}, v{vechunk}",
                  f"  buffer_load_dwordx4 v{DO}, {s(SE,4)}, 0 offen lds" if not (OPT["nodma"] or OPT["noe"]) else "  s_nop 0"])
        return L
    ndma = 0 if OPT["nodma"] else 8 if OPT["noe"] else 9
    def frag_reads():
        L = []
        for st in range(8):
            L.append(f"  ds_read_b128 {v(PF+4*st,4)}, v{vAlo if st < 4 else vAhi} offset:{32*(st&3)}")
        L.insert(2, f"  ds_read_b128 {v(EF,4)}, v{vEF}")
        return L
    def bq_reads():
        return [f"  ds_read_b64_tr_b16 {v(BQ+nq*t,2)}, v{vqa} offset:{64*t}" for t in range(4)]
    def chain(t, D):
        L = [f"  v_mfma_f32_32x32x16_bf16 {v(D,16)}, {v(EF,4)}, {v(W3+4*t,4)}, 0"]
        if OPT["lo"]:
            L.append(f"  v_mfma_f32_32x32x16_bf16 {v(D,16)}, {v(EF,4)}, {v(W3L+4*t,4)}, {v(D,16)}")
        L.append(f"  v_mfma_f32_32x32x16_bf16 {v(D,16)}, {v(PF+8*t,4)}, {v(I0,4)}, {v(D,16)}")
        L.append(f"  v_mfma_f32_32x32x16_bf16 {v(D,16)}, {v(PF+8*t+4,4)}, {v(I1,4)}, {v(D,16)}")
        if OPT["k8"]:
            L.append(f"  v_mfma_f32_32x32x8bf16_1k {v(D,16)}, {v(AQ,2)}, {v(BQ+2*t,2)}, {v(D,16)}")
        else:
            L.append(f"  v_mfma_f32_32x32x16_bf16 {v(D,16)}, {v(AQ,4)}, {v(BQ+4*t,4)}, {v(D,16)}")
        return L

    a(f"  ds_read_b64 {v(ENT,2)}, v{vent}\n  s_waitcnt lgkmcnt(0)")
    for x in dma_issue(): a("\n".join(x))
    a(f"  ds_read_b64 {v(ENT,2)}, v{vent} offset:2048")
    a(f"""
  s_cmp_eq_u32 s{sFirst}, 0
  s_cbranch_scc1 K_NOGEMM0
  s_mov_b32 s{sFirst}, 0
  s_waitcnt vmcnt({ndma}) lgkmcnt(0)""")
    node_gemm(W2F, WUT)
    a(f"  v_lshlrev_b32 v{t4}, 4, v{vl}")
    for st in range(4):
        a(f"  buffer_load_dwordx4 {v(WUB+4*st,4)}, v{t4}, {s(SW,4)}, s{sUB} offen offset:{st*1024} sc1")
    a(f"""
  s_or_b32 s{sq}, s2, s{sW}
  s_cmp_lg_u32 s{sq}, 0
  s_cbranch_scc1 K_NONONCE
  s_mov_b64 exec, 1
  v_mov_b32 v{t0}, {FNON}
  v_mov_b32 v{t1}, s{sTag}
  buffer_store_dword v{t1}, v{t0}, {s(SF,4)}, 0 offen
  s_mov_b64 exec, -1
  s_waitcnt vmcnt(0)
K_NONONCE:
  s_waitcnt lgkmcnt(0)
  s_barrier
K_NOGEMM:
  ds_read_b32 v{vgn1}, v{vgq}
  ds_read_b32 v{vsrow}, v{vrow}
  ds_read_b128 {v(GN,4)}, v{vga}
  s_waitcnt vmcnt(4)""")
    stamp(a, 8, 96)
    for x in frag_reads(): a(x)
    a(f"""
  s_waitcnt lgkmcnt(9)
  v_mad_u32_u24 v{vqa}, v{vgn1}, s{sQS}, v{vqlane}
  v_lshrrev_b64 {v(AQ,2)}, v{vsrow}, {v(PAT,2)}""")
    for x in bq_reads(): a(x)
    a("  s_waitcnt lgkmcnt(0)")
    for x in dma_issue(): a("\n".join(x))
    for x in chain(0, D0): a(x)
    if OPT["prio"]:
        a(f"  s_cmp_lt_u32 s{sW}, 4\n  s_cbranch_scc1 K_PR\n  s_setprio 1\nK_PR:")
    a(f"""
  s_nop 7
  s_nop 3
  s_cmp_eq_u32 s{sCnt}, 0
  s_cbranch_scc1 K_LOOPEND
  s_cmp_lg_u32 s{sMode}, 0
  s_cbranch_scc1 K_SAFE
  {"s_branch K_QUAD" if not OPT["octo"] else ""}
  s_sub_u32 s{sCnt}, s{sCnt}, s{sCO}
  s_cmp_eq_u32 s{sCO}, 0
  s_cbranch_scc1 K_QUAD""")

    def p(r): return v(r, 2)
    def octet_fast(d, e, t, r, sres):
        ex = [f"  v_exp_f32 v{e+i}, v{d+i}" for i in range(8)]
        L = [f"  v_pk_add_f32 {p(t)}, {p(e)}, 1.0 op_sel_hi:[1,0]",
             f"  v_pk_add_f32 {p(t+2)}, {p(e+4)}, 1.0 op_sel_hi:[1,0]",
             f"  v_pk_fma_f32 {p(t+4)}, {p(d)}, {p(e+2)}, {p(d)}",
             f"  v_pk_fma_f32 {p(t+6)}, {p(d+4)}, {p(e+6)}, {p(d+4)}",
             f"  v_pk_fma_f32 {p(e)}, {p(t)}, {p(e+2)}, {p(t)}",
             f"  v_pk_fma_f32 {p(e+4)}, {p(t+2)}, {p(e+6)}, {p(t+2)}",
             f"  v_pk_fma_f32 {p(t+4)}, {p(d+2)}, {p(t)}, {p(t+4)}",
             f"  v_pk_fma_f32 {p(t+6)}, {p(d+6)}, {p(t+2)}, {p(t+6)}",
             f"  v_pk_mul_f32 {p(t)}, {p(e)}, {p(e+4)}",
             f"  v_pk_mul_f32 {p(t+4)}, {p(t+4)}, {p(e+4)}",
             f"  v_rcp_f32 v{r}, v{t}",
             f"  v_rcp_f32 v{r+1}, v{t+1}",
             f"  v_pk_fma_f32 {p(t+4)}, {p(t+6)}, {p(e)}, {p(t+4)}",
             f"  v_pk_mul_f32 {p(sres)}, {p(t+4)}, {p(r)}"]
        return ex, L
    def octet_safe(d, e, t, r, sres):
        ex = [f"  v_exp_f32 v{e+i}, v{d+i}" for i in range(8)]
        L = [f"  v_pk_add_f32 {p(e+2*i)}, {p(e+2*i)}, 1.0 op_sel_hi:[1,0]" for i in range(4)]
        L += [f"  v_rcp_f32 v{t+i}, v{e+i}" for i in range(8)]
        L += [f"  v_pk_mul_f32 {p(sres)}, {p(d)}, {p(t)}"]
        L += [f"  v_pk_fma_f32 {p(sres)}, {p(d+2*i)}, {p(t+2*i)}, {p(sres)}" for i in range(1, 4)]
        return ex, L
    def zipl(x, y):
        o = []
        for i in range(max(len(x), len(y))):
            if i < len(x): o.append(x[i])
            if i < len(y): o.append(y[i])
        return o
    def adds(t, kind):
        if OPT["noadd"]: return [f"  ds_read_b32 v{DUM}, v{vgq}"] * (2 if kind == "octo" else 4)
        if kind == "octo": return [f"  ds_add_f64 v{AD+2*xy}, {v(CV+2*xy,2)} offset:{256*t}" for xy in range(2)]
        return [f"  ds_add_f64 v{AD+2*xy+o}, {v(CV+2*(2*o+xy),2)} offset:{256*t}" for o in range(2) for xy in range(2)]
    def block_body(kind, u, nun):
        oc = octet_safe if kind == "safe" else octet_fast
        nadd = 2 if kind == "octo" else 4
        B = []
        for t in range(4):
            D = D0 if t % 2 == 0 else D1
            Dn = D1 if t % 2 == 0 else D0
            exa, La = oc(D, EA, TA, RA, SA)
            exb, Lb = oc(D+8, EB, TB, RB, SB)
            ex = exa + exb
            ch = chain((t+1) % 4, Dn)
            late = []
            if kind == "octo":
                keep = lambda L: [x for x in L[:-1] if "v_rcp" not in x]
                dk = DK + 2*(t & 1)
                pk = zipl(keep(La), keep(Lb))
                pk = pk[:-4] + [f"  v_pk_mul_f32 {p(dk)}, {p(TA)}, {p(TB)}"] + pk[-4:-2] + \
                     [f"  v_rcp_f32 v{RA}, v{dk}", f"  v_rcp_f32 v{RA+1}, v{dk+1}"] + pk[-2:] + \
                     [f"  v_pk_mul_f32 {p(TA+4)}, {p(TA+4)}, {p(TB)}"]
                if t & 1: pk.append(f"  v_pk_fma_f32 {p(MAC)}, {p(DK)}, {p(DK+2)}, {p(MAC)}")
                pk += [f"  v_pk_fma_f32 {p(TA+4)}, {p(TB+4)}, {p(TA)}, {p(TA+4)}",
                       f"  v_pk_mul_f32 {p(SA)}, {p(TA+4)}, {p(RA)}"]
                fin = [f"  v_cvt_f64_f32 {v(CV+2*xy,2)}, v{SA+xy}" for xy in range(2)]
                adr = (0, 2)
            else:
                pk = zipl(La, Lb)
                if kind == "quad":
                    idx = max(i for i, x in enumerate(pk) if x.startswith(f"  v_pk_mul_f32 {p(TB)}, {p(EB)}"))
                    pk.insert(idx+1, f"  v_pk_fma_f32 {p(MAC)}, {p(TA)}, {p(TB)}, {p(MAC)}")
                fin = [f"  v_cvt_f64_f32 {v(CV+2*(2*o+xy),2)}, v{S+xy}" for o, S in ((0, SA), (1, SB)) for xy in range(2)]
                adr = range(4)
            fin += adds(t, kind)
            if t == 0:
                pk = pk[:4] + [f"  v_mad_u32_u24 v{AD+i}, v{GN+i}, s{sAS}, v{vacl}" for i in adr] + pk[4:]
            if t == 1:
                pk = pk[:8] + [f"  ds_read_b64 {v(ENT,2)}, v{vent} offset:{4096+2048*u}",
                      f"  ds_read_b32 v{vgn1}, v{vgq} offset:{256+256*u}",
                      f"  ds_read_b32 v{vsrow}, v{vrow} offset:{2048+2048*u}",
                      f"  ds_read_b128 {v(GN,4)}, v{vga} offset:{256+256*u}"] + pk[8:]
            if t == 3:
                B.append(f"  s_waitcnt lgkmcnt({nadd})")
            dma = dma_issue() if t == 3 else []
            per = 16 // len(ch); e = 0
            for i, m in enumerate(ch):
                B.append(m)
                n = per if i < len(ch)-1 else 16 - e
                B += ex[e:e+2]
                if late: B.append(late.pop(0))
                B += ex[e+2:e+n]; e += n
                if OPT["dmapos"] == 0:
                    for _ in range(2):
                        if dma: B += dma.pop(0)
            if t == 2:
                mid = [f"  s_waitcnt vmcnt(0) lgkmcnt({nadd})",
                       f"  v_mad_u32_u24 v{vqa}, v{vgn1}, s{sQS}, v{vqlane}"]
                rd = frag_reads() + bq_reads()
                aq = [f"  v_lshrrev_b64 {v(AQ,2)}, v{vsrow}, {v(PAT,2)}"]
                if OPT["rdgap"] == 0: B += mid + rd + aq + pk
                else:
                    q = []
                    for i, x in enumerate(aq + pk):
                        if rd and i % OPT["rdgap"] == 0: q.append(rd.pop(0))
                        q.append(x)
                    B += mid + q + rd
            elif t == 3:
                inc = []
                if u == nun - 1 and OPT["bench"]:
                    inc = [f"  v_add_u32 v{DUM+i}, {2048*nun}, v{vent}" for i in range(4)]
                elif u == nun - 1:
                    inc = incs(nun)
                pk = pk + inc
                if OPT["dmapos"] == 1:
                    q = []
                    for i, x in enumerate(pk):
                        if dma and i % 3 == 0: q += dma.pop(0)
                        q.append(x)
                    pk = q
                for x in dma: B += x
                B += pk
            else:
                B += pk
            B += fin
        return B
    def incs(n):
        return [f"  v_add_u32 v{vent}, {2048*n}, v{vent}", f"  v_add_u32 v{vrow}, {2048*n}, v{vrow}",
                f"  v_add_u32 v{vgq}, {256*n}, v{vgq}", f"  v_add_u32 v{vga}, {256*n}, v{vga}"]
    def loop(kind):
        lab = {"safe": "K_SAFE", "quad": "K_QUAD", "octo": "K_FAST"}[kind]
        nun = OPT["unroll"] if kind == "octo" else 1
        cnt = sCO if kind == "octo" else sCnt
        L = []
        for u in range(nun):
            L += block_body(kind, u, nun)
            L.append(f"  s_sub_u32 s{cnt}, s{cnt}, 1")
            L.append(f"  s_cmp_lg_u32 s{cnt}, 0")
            L.append(f"  s_cbranch_scc1 {lab}" if u == nun - 1 else f"  s_cbranch_scc0 K_OX{u}")
        ab = OPT["abl"]
        if ab & 1: L = [x for x in L if not ("v_mfma" in x and (f", {v(I0,4)}," in x or f", {v(I1,4)}," in x))]
        if ab & 2: L = [x for x in L if "v_mfma_f32_32x32x8" not in x and "tr_b16" not in x]
        if ab & 4: L = [x.replace("v_exp_f32", "v_mov_b32") for x in L]
        if ab & 8: L = [x for x in L if "v_pk_" not in x]
        if ab & 16: L = [x for x in L if "v_mfma" not in x]
        if ab & 32: L = [x for x in L if "ds_read_b128" not in x]
        if ab & 64: L = [x for x in L if "v_exp" not in x]
        if ab & 128:
            M = []
            for x in L:
                if "v_mfma" in x and f", {v(I1,4)}," in x: continue
                if "v_mfma" in x and f", {v(I0,4)}," in x:
                    m = re.match(r"\s*v_mfma_f32_32x32x16_bf16 (v\[\d+:\d+\]), v\[(\d+):", x)
                    M.append(f"  v_smfmac_f32_32x32x32_bf16 {m.group(1)}, {v(I0,4)}, {v(int(m.group(2)),8)}, v{vone}"); continue
                m = re.match(r"\s*ds_read_b128 v\[(\d+):\d+\], v(\d+) offset:(\d+)", x)
                if m and PF <= int(m.group(1)) < PF + 32:
                    r0 = int(m.group(1))
                    M.append(f"  ds_read_b64_tr_b16 {v(r0,2)}, v{vqa} offset:{m.group(3)}")
                    M.append(f"  ds_read_b64_tr_b16 {v(r0+2,2)}, v{vqa} offset:{int(m.group(3))+128}"); continue
                M.append(x)
            L = M
        if ab & 256:
            M = []
            for x in L:
                if "v_mfma" in x and (f", {v(I1,4)}," in x or f", {v(I0,4)}," in x): continue
                if "v_mfma_f32_32x32x16" in x and x.rstrip().endswith(", 0"): x = x.rstrip()[:-1] + v(PF, 16)
                m = re.match(r"\s*ds_read_b128 v\[(\d+):\d+\], v(\d+) offset:(\d+)", x)
                if m and PF <= int(m.group(1)) < PF + 32:
                    for q in range(8): M.append(f"  ds_read_u16_d16_hi v{PF+(int(m.group(1))+q)%32}, v{vacl} offset:{64*q}")
                    continue
                M.append(x)
            L = M
        if OPT["align"]: L = align8(L)
        a(f".p2align 6\n{lab}:")
        for x in L: a(x)
    loop("octo")
    a(f"""
K_OXE:
  s_cmp_lg_u32 s{sCnt}, 0
  s_cbranch_scc1 K_QUAD""")
    a(f"""
K_LOOPEND:""")
    a(f"""
  s_waitcnt vmcnt(0) lgkmcnt(0)
  s_barrier""")
    stamp(a, 9, 98)
    a(f"""
  s_cmp_lg_u32 s{sKind}, 0
  s_cbranch_scc1 K_NEXT
K_CELLSDONE:
  v_mov_b32 v{t0}, {L_FLG+32}
  ds_read_b128 {v(CV,4)}, v{t0}
K_CONV:
  s_mul_i32 s{sTmp}, s{sW}, {AS}
  s_add_u32 s{sTmp}, s{sTmp}, {L_ACC}
  v_lshlrev_b32 v{t1}, 4, v{vl}
  v_add_u32 v{t1}, s{sTmp}, v{t1}""")
    for k in range(5):
        a(f"  ds_read_b128 {v(D0+4*k,4)}, v{t1} offset:{k*8*AS}")
    a(f"""
  s_mul_i32 s{sTmp}, s{sW}, {XS}
  s_add_u32 s{sTmp}, s{sTmp}, {L_X}
  v_lshlrev_b32 v{t2}, 2, v{vl}
  v_add_u32 v{t2}, s{sTmp}, v{t2}
  s_cmp_ge_u32 s{sKind}, 3
  s_cbranch_scc1 K_CONV2
  s_waitcnt lgkmcnt(5)
  v_or3_b32 v{t0}, v{CV}, v{CV+1}, v{CV+2}
  v_or_b32 v{t0}, v{t0}, v{CV+3}
  v_cmp_ne_u32 vcc, 0, v{t0}
  s_cbranch_vccnz K_STARTOV
K_CONV2:
  s_mov_b32 s{sTmp}, 0x71800000              ; 2^100
  v_cmp_nle_f32 {s(sBad,2)}, v{MAC}, s{sTmp}
  v_cmp_nle_f32 vcc, v{MAC+1}, s{sTmp}
  s_or_b64 {s(sBad,2)}, {s(sBad,2)}, vcc
  s_movk_i32 s{sTmp}, 0x207""")
    for k in range(5):
        a(f"""
  s_waitcnt lgkmcnt({4-k})
  v_cvt_f32_f64 v{EA+2*k}, {v(D0+4*k,2)}
  v_cvt_f32_f64 v{EA+2*k+1}, {v(D0+4*k+2,2)}
  v_cmp_class_f32 vcc, v{EA+2*k}, s{sTmp}
  s_or_b64 {s(sBad,2)}, {s(sBad,2)}, vcc
  v_cmp_class_f32 vcc, v{EA+2*k+1}, s{sTmp}
  s_or_b64 {s(sBad,2)}, {s(sBad,2)}, vcc
  v_cvt_pk_bf16_f32 v{EB+k}, v{EA+2*k}, v{EA+2*k+1}""")
    for k in range(5):
        a(f"  ds_write_b32 v{t2}, v{EB+k} offset:{k*8*XS}")
    a(f"""
  s_cmp_eq_u64 {s(sBad,2)}, 0
  s_cbranch_scc1 K_OKW
  v_mov_b32 v{t0}, {L_FLG}
  ds_write_b32 v{t0}, v{vone}
K_OKW:
  s_waitcnt lgkmcnt(0)
  s_barrier
  v_mov_b32 v{t0}, {L_FLG}
  ds_read_b32 v{t0}, v{t0}""")
    for nt in range(2):
        for st in range(4):
            a(f"  ds_read_b128 {v(XF+16*nt+4*st,4)}, v{vxb} offset:{nt*16*XS + st*64}")
    a(f"""
  s_waitcnt lgkmcnt(8)
  v_readfirstlane_b32 s{sTmp}, v{t0}
  s_cmp_gt_u32 s{sTmp}, s{sMode}
  {"s_cbranch_scc1 K_RESTART" if not EXP else "s_nop 0"}
  s_waitcnt lgkmcnt(4)""")
    for st in range(4):
        c = "0" if st == 0 else v(D0, 4)
        a(f"  v_mfma_f32_16x16x32_bf16 {v(D0,4)}, {v(WUB+4*st,4)}, {v(XF+4*st,4)}, {c}")
    for st in range(4):
        a(f"  ds_read_b128 {v(D1+4*st,4)}, v{vxb} offset:{2*16*XS + st*64}")
    a("  s_waitcnt lgkmcnt(4)")
    for st in range(4):
        c = "0" if st == 0 else v(D0+4, 4)
        a(f"  v_mfma_f32_16x16x32_bf16 {v(D0+4,4)}, {v(WUB+4*st,4)}, {v(XF+16+4*st,4)}, {c}")
    a("  s_waitcnt lgkmcnt(0)")
    for st in range(4):
        c = "0" if st == 0 else v(D0+8, 4)
        a(f"  v_mfma_f32_16x16x32_bf16 {v(D0+8,4)}, {v(WUB+4*st,4)}, {v(D1+4*st,4)}, {c}")
    a(f"""
  s_mov_b32 s{sK}, {NLN2}
  s_mov_b32 s{sK+1}, {NLN2}
  s_mov_b32 s{sTmp}, {NLOG2E}
  s_mov_b32 s{sTmp+1}, {NLOG2E}
  v_and_b32 v{t0}, 15, v{vl}
  v_lshlrev_b32 v{t0}, 8, v{t0}
  v_lshrrev_b32 v{t1}, 4, v{vl}
  v_lshl_add_u32 v{t0}, v{t1}, 3, v{t0}
  s_lshl_b32 s{sTmp+2}, s{sW}, 5
  v_add_u32 v{t0}, s{sTmp+2}, v{t0}
  v_add_u32 v{t1}, 4096, v{t0}
  v_add_u32 v{t2}, 8192, v{t0}""")
    for nt in range(3):
        d = D0 + 4*nt
        a(f"""
  v_pk_fma_f32 {p(d)}, {p(d)}, {s(sK,2)}, {p(U+4*nt)}
  v_pk_fma_f32 {p(d+2)}, {p(d+2)}, {s(sK,2)}, {p(U+4*nt+2)}
  v_pk_mul_f32 {p(EA)}, {p(d)}, {s(sTmp,2)}
  v_pk_mul_f32 {p(EA+2)}, {p(d+2)}, {s(sTmp,2)}""")
        for i in range(4): a(f"  v_exp_f32 v{EA+i}, v{EA+i}")
        a(f"  s_nop 0\n  v_pk_add_f32 {p(EA)}, {p(EA)}, 1.0 op_sel_hi:[1,0]\n  v_pk_add_f32 {p(EA+2)}, {p(EA+2)}, 1.0 op_sel_hi:[1,0]")
        for i in range(4): a(f"  v_rcp_f32 v{EA+i}, v{EA+i}")
        a(f"""
  s_nop 0
  v_pk_mul_f32 {p(d)}, {p(d)}, {p(EA)}
  v_pk_mul_f32 {p(d+2)}, {p(d+2)}, {p(EA+2)}
  v_cvt_pk_bf16_f32 v{EB+2*nt}, v{d}, v{d+1}
  v_cvt_pk_bf16_f32 v{EB+2*nt+1}, v{d+2}, v{d+3}
  buffer_store_dwordx2 {v(EB+2*nt,2)}, v{t0+nt}, {s(SO,4)}, 0 offen""")
    if OPT["stamp"]:
        a(f"""
  s_waitcnt vmcnt(0)
  s_memrealtime s[4:5]
  s_waitcnt lgkmcnt(0)
  s_lshl_b32 s6, s2, 3
  s_add_u32 s6, s6, s{sW}
  s_lshl_b32 s6, s6, 6
  s_add_u32 s6, s6, {WS_STAMP}
  s_add_u32 s6, s{pWS}, s6
  s_addc_u32 s7, s{pWS+1}, 0
  s_mov_b64 exec, 1
  v_mov_b32 v1, 0""")
        for i, r in enumerate([80+2*i for i in range(8)] + [96, 98, 4]):
            pass
        regs = [80, 82, 84, 86, 88, 90, 92, 94, 8, 9, 4, 10, 11, sT]
        for i, r in enumerate(regs):
            a(f"  v_mov_b32 v2, s{r}\n  global_store_dword v1, v2, s[6:7] offset:{4*i}")
    a(f"""
K_END:
  s_endpgm
""")
    a(f"""
K_PREP:
  s_sub_u32 s{sq}, s2, {2*G}
  s_lshl_b32 s{sq}, s{sq}, 14
  s_lshl_b32 s{sq+1}, s{sW}, 12
  s_add_u32 s{sq}, s{sq}, s{sq+1}
  v_lshlrev_b32 v{t0}, 4, v{vl}
  v_mov_b32 v{t7}, s{sTag}
  s_waitcnt vmcnt(10)
  s_barrier""")
    wtr(PF, vqa)
    a("  s_waitcnt lgkmcnt(0)")
    for st in range(4):
        a(f"  buffer_store_dwordx4 {v(PF+4*st,4)}, v{t0}, {s(SW,4)}, s{sq} offen offset:{st*1024} sc1")
    a(f"""
  s_lshr_b32 s{sq}, s{sW}, 2
  s_add_u32 s{sq}, s{sq}, s2
  s_cmp_lg_u32 s{sq}, {2*G}
  s_cbranch_scc1 K_PREPD
  s_mov_b32 s{sq+1}, {NLOG2E}
  s_lshl_b32 s{sq}, s{sW}, 10
  s_waitcnt vmcnt(6)""")
    for jj in range(8):
        a(f"  v_lshlrev_b32 v{D0+jj}, 16, v{D0+jj}\n  v_mul_f32 v{D0+jj}, s{sq+1}, v{D0+jj}")
    for i in range(4):
        a(f"  v_cvt_pk_bf16_f32 v{D0+8+i}, v{D0+2*i}, v{D0+1+2*i}")
    for i in range(4):
        a(f"""
  v_lshlrev_b32 v{t2}, 16, v{D0+8+i}
  v_and_b32 v{t3}, 0xffff0000, v{D0+8+i}
  v_sub_f32 v{t2}, v{D0+2*i}, v{t2}
  v_sub_f32 v{t3}, v{D0+1+2*i}, v{t3}
  v_cvt_pk_bf16_f32 v{D0+12+i}, v{t2}, v{t3}""")
    a(f"""
  s_add_u32 s{sq+1}, s{sq}, {WF_3L}
  s_add_u32 s{sq}, s{sq}, {WF_3H}
  buffer_store_dwordx4 {v(D0+8,4)}, v{t0}, {s(SW,4)}, s{sq} offen sc1
  buffer_store_dwordx4 {v(D0+12,4)}, v{t0}, {s(SW,4)}, s{sq+1} offen sc1
K_PREPD:""")
    own_x(4)
    a(f"""
  s_waitcnt vmcnt(0)
  s_barrier
  s_cmp_eq_u32 s{sW}, 0
  s_cbranch_scc1 K_FLAG
  s_branch K_PST""")
    a(f"""
K_OVF:
  s_waitcnt lgkmcnt(0)
  s_barrier
  s_mul_i32 s{sq+1}, s2, {OVSTR//2}
  s_add_u32 s{sq+1}, s{sq+1}, 64
  v_mov_b32 v{t5}, {L_FLG+8}
  v_mov_b32 v{t6}, -1""")
    for j in range(5):
        a(f"""
  v_cmp_le_u32 vcc, {CAP-1}, v{RK+j}
  s_and_b64 exec, exec, vcc
  s_cbranch_execz K_OV{j}
  v_add_u32 v{t1}, {L_BCNT}, v{B4+j}
  ds_read_b32 v{t1}, v{t1}
  s_waitcnt lgkmcnt(0)
  v_cmp_ne_u32 vcc, {CAP}, v{t1}
  s_nop 1
  v_cndmask_b32 v{t3}, v{SS_+j}, v{t6}, vcc
  ds_write_b32 v{CA+j}, v{t3} offset:{CELLB-8}
  s_and_b64 exec, exec, vcc
  s_cbranch_execz K_OV{j}
  ds_add_rtn_u32 v{t1}, v{t5}, v{vone}
  v_mov_b32 v{CV}, v{SS_+j}
  v_lshrrev_b32 v{CV+1}, 2, v{B4+j}
  s_waitcnt lgkmcnt(0)
  v_lshl_add_u32 v{t1}, v{t1}, 3, s{sq+1}
  buffer_store_dwordx2 {v(CV,2)}, v{t1}, {s(SV,4)}, 0 offen sc1
  s_waitcnt vmcnt(0)
K_OV{j}:
  s_mov_b64 exec, -1""")
    a(f"""
  s_waitcnt lgkmcnt(0)
  s_barrier
  ds_read_b32 v{t1}, v{t5}
  s_sub_u32 s{sq+1}, s{sq+1}, 64
  v_mov_b32 v{t3}, s{sq+1}
  v_mov_b32 v{t2}, 0
  s_waitcnt lgkmcnt(0)
  buffer_store_dword v{t1}, v{t3}, {s(SV,4)}, 0 offen sc1
  s_waitcnt vmcnt(0)
  s_branch K_OVFDONE""")
    for u in range(OPT["unroll"] - 1):
        a(f"K_OX{u}:\n  s_cmp_eq_u32 s{sCnt}, 0\n  s_cbranch_scc1 K_LOOPEND")
        for x in incs(u + 1): a(x)
        a("  s_branch K_QUAD")
    loop("quad")
    a("  s_branch K_LOOPEND")
    loop("safe")
    a("  s_branch K_LOOPEND")
    a(f"""
K_NOGEMM0:
  s_waitcnt vmcnt(0)
  s_branch K_NOGEMM
K_RESTART:
  s_mov_b32 s{sMode}, 1
  s_mov_b32 s{sKind}, 0
  s_waitcnt lgkmcnt(0)
  s_barrier
  v_mov_b32 v{CV}, 0
  v_mov_b32 v{CV+1}, 0
  v_mov_b32 v{CV+2}, 0
  v_mov_b32 v{CV+3}, 0""")
    for j in range(5):
        a(f"  ds_write_b128 v{vt16}, {v(CV,4)} offset:{L_ACC + j*8192}")
    a(f"""
  v_cmp_gt_u32 vcc, {(40*AS-5*8192)//16}, v0
  s_and_saveexec_b64 {s(sEx,2)}, vcc
  ds_write_b128 v{vt16}, {v(CV,4)} offset:{L_ACC + 5*8192}
  s_mov_b64 exec, {s(sEx,2)}
  s_branch K_RELOAD
K_SPLIT:
  s_mov_b32 s{sKind}, 1
  s_waitcnt lgkmcnt(0)
  s_barrier
  s_branch K_RELOAD
K_NEXT:
  s_cmp_eq_u32 s{sKind}, 4
  s_cbranch_scc1 K_NEXTOV
  s_cmp_eq_u32 s{sKind}, 3
  s_cbranch_scc1 K_OVPART1
  s_cmp_eq_u32 s{sKind}, 2
  s_cbranch_scc1 K_CELLSDONE
  s_mov_b32 s{sKind}, 2
K_RELOAD:
  v_lshrrev_b32 v{t1}, 2, v0
  s_mov_b32 s{sq}, {CH*32}
  v_mul_u32_u24 v{vebase}, s{sq}, v{t1}
  s_waitcnt vmcnt(0)""")
    for k in range(2):
        a(f"  buffer_load_dwordx4 {v(REC+4*k,4)}, v{vcell}, {s(SC,4)}, 0 offen offset:{64*k} sc1")
    a(f"""
  s_waitcnt vmcnt(0)
  s_mov_b32 exec_lo, 0xaaaaaaaa
  s_mov_b32 exec_hi, 0xaaaaaaaa
  v_mov_b32 v{REC+3}, 0
  v_mov_b32 v{REC+7}, 0
  s_mov_b64 exec, -1
  s_cmp_eq_u32 s{sKind}, 0
  s_cbranch_scc1 K_ROUND
  s_lshr_b32 s{sq}, s{sW}, 2
  s_add_u32 s{sq}, s{sq}, 1
  s_cmp_eq_u32 s{sq}, s{sKind}
  s_cbranch_scc1 K_ROUND""")
    for k in range(NR): a(f"  v_mov_b32 v{REC+k}, 0")
    a(f"""
K_ROUND:
  v_mov_b32 v{CV}, 0
  v_mov_b32 v{CV+1}, 0
  v_mov_b32 v{CV+2}, 0
  v_mov_b32 v{CV+3}, 0
  v_cmp_gt_u32 vcc, {(L_FLG-L_GN)//16}, v0
  s_and_saveexec_b64 {s(sEx,2)}, vcc
  ds_write_b128 v{vt16}, {v(CV,4)} offset:{L_GN}
  s_mov_b64 exec, {s(sEx,2)}""")
    prefill()
    a(f"""
  v_and_b32 v{vent}, 2047, v{vent}
  v_and_b32 v{vrow}, 2047, v{vrow}
  v_subrev_u32 v{vga}, {L_GN}, v{vga}
  v_and_b32 v{vga}, 255, v{vga}
  v_add_u32 v{vga}, {L_GN}, v{vga}
  v_and_b32 v{t2}, 12, v{vl}
  v_add_u32 v{vgq}, v{vga}, v{t2}
  s_waitcnt lgkmcnt(0)
  s_barrier
  s_branch K_PHASE1
K_STARTOV:""")
    for i in range(4): a(f"  v_readfirstlane_b32 s{sOV+i}, v{CV+i}")
    a(f"""
  s_mov_b32 s{sKind}, 4
  s_waitcnt lgkmcnt(0)
K_NEXTOV:""")
    for i in range(2):
        a(f"""
  s_ff1_i32_b64 s{sP}, {s(sOV+2*i,2)}
  s_cmp_eq_u32 s{sP}, -1
  s_cbranch_scc1 K_OVN{i}
  s_bitset0_b64 {s(sOV+2*i,2)}, s{sP}
  s_add_u32 s{sP}, s{sP}, {64*i}
  s_branch K_OVGO
K_OVN{i}:""")
    a(f"""
  s_branch K_CONV
K_OVGO:
  s_mov_b32 s{sKind}, 3
  v_mov_b32 v{t4}, v0
  s_branch K_OVLD
K_OVPART1:
  s_mov_b32 s{sKind}, 4
  v_add_u32 v{t4}, 2048, v0
K_OVLD:
  s_mul_i32 s{sq}, s{sP}, {OVSTR}
  s_mul_i32 s{sq+1}, s{sP}, {CH*32}
  v_mov_b32 v{vebase}, s{sq+1}
  v_mov_b32 v{t0}, s{sq}
  buffer_load_dword v{t1}, v{t0}, {s(SV,4)}, 0 offen sc1
  v_lshl_add_u32 v{t2}, v{t4}, 3, v{t0}""")
    for k in range(4):
        a(f"  buffer_load_dwordx2 {v(PF+2*k,2)}, v{t2}, {s(SV,4)}, 0 offen offset:64 sc1\n  v_add_u32 v{t2}, 4096, v{t2}")
    a(f"  s_waitcnt vmcnt(0)")
    for k in range(4):
        a(f"""
  v_cmp_lt_u32 vcc, v{t4}, v{t1}
  v_cmp_eq_u32 {s(sEx,2)}, s2, v{PF+2*k+1}
  s_and_b64 vcc, vcc, {s(sEx,2)}
  v_add_u32 v{t4}, 512, v{t4}
  s_nop 1
  v_cndmask_b32 v{REC+k}, 0, v{PF+2*k}, vcc""")
    for k in range(4, NR): a(f"  v_mov_b32 v{REC+k}, 0")
    a("  s_branch K_ROUND")
    return a.text(), nv, NS

def gen_diag(idx):
    a = Asm()
    a(f"""
.globl mpnn_d_kernel
.p2align 8
.type mpnn_d_kernel,@function
mpnn_d_kernel:
  s_cmp_ge_u32 s2, 1
  s_cbranch_scc1 D_END
  s_load_dwordx2 s[4:5], s[0:1], 64
  s_waitcnt lgkmcnt(0)
  s_add_u32 s4, s4, {WS_STAMP}
  s_addc_u32 s5, s5, 0
  s_load_dword s6, s[4:5], 0
  s_waitcnt lgkmcnt(0)
  s_sub_u32 s6, s6, 100000""")
    for q, (ix, ismax) in enumerate(((idx, 1), (0, 0))):
        op = "max" if ismax else "min"
        a(f"  v_lshlrev_b32 v1, {6 if not OPT['dodd'] else 10}, v0\n  v_add_u32 v1, {ix*4 + (512 if OPT['dodd'] else 0)}, v1\n  v_mov_b32 v3, {0 if ismax else -1}")
        nk = 32 if not OPT['dodd'] else 2
        for k in range(nk):
            a(f"  global_load_dword v{8+k}, v1, s[4:5]\n  v_add_u32 v1, {4096 if not OPT['dodd'] else 65536}, v1")
        a("  s_waitcnt vmcnt(0)")
        for k in range(nk):
            a(f"  v_subrev_u32 v2, s6, v{8+k}\n  v_{op}_u32 v3, v3, v2")
        a(f"  s_mov_b32 s{20+q}, {0 if ismax else -1}\n  s_nop 1")
        for l in range(64):
            a(f"  v_readlane_b32 s8, v3, {l}\n  s_nop 0\n  s_{op}_u32 s{20+q}, s{20+q}, s8")
    a(f"""
  s_sub_u32 s20, s20, s21
  s_min_u32 s20, s20, 20000
  s_lshl_b32 s20, s20, 3
  {'s_mov_b32 s20, 0' if OPT['dz'] else ''}
  s_memrealtime s[8:9]
  s_waitcnt lgkmcnt(0)
D_L:
  s_memrealtime s[10:11]
  s_waitcnt lgkmcnt(0)
  s_sub_u32 s12, s10, s8
  s_cmp_lt_u32 s12, s20
  s_cbranch_scc1 D_L
D_END:
  s_endpgm
""")
    return a.text()

HEAD = """; Kernarg layout for this problem (72 bytes, ptrs only, base s[0:1]):
"""
def main():
    k, nv, ns = gen()
    out = HEAD + f"; @launch grid=({NB},1,1) block=(512,1,1) lds={LDS}\n"
    if OPT["diag"] >= 0:
        out = HEAD + f"; @launch kernel={KN} grid=({NB},1,1) block=(512,1,1) lds={LDS}\n; @launch kernel=mpnn_d_kernel grid=(1,1,1) block=(64,1,1) lds=0\n"
        k += gen_diag(OPT["diag"])
    out += '.amdgcn_target "amdgcn-amd-amdhsa--gfx950"\n.text\n' + k
    out += f""".section .rodata,"a"
.p2align 6
.amdhsa_kernel {KN}
  .amdhsa_next_free_vgpr {nv}
  .amdhsa_next_free_sgpr {ns}
  .amdhsa_accum_offset {(nv+3)//4*4}
  .amdhsa_group_segment_fixed_size 0
  .amdhsa_kernarg_size 72
  .amdhsa_user_sgpr_count 2
  .amdhsa_user_sgpr_kernarg_segment_ptr 1
  .amdhsa_system_sgpr_workgroup_id_x 1
.end_amdhsa_kernel
"""
    if OPT["diag"] >= 0:
        out += """.p2align 6
.amdhsa_kernel mpnn_d_kernel
  .amdhsa_next_free_vgpr 48
  .amdhsa_next_free_sgpr 32
  .amdhsa_accum_offset 48
  .amdhsa_group_segment_fixed_size 0
  .amdhsa_kernarg_size 72
  .amdhsa_user_sgpr_count 2
  .amdhsa_user_sgpr_kernarg_segment_ptr 1
  .amdhsa_system_sgpr_workgroup_id_x 1
.end_amdhsa_kernel
"""
    open(sys.argv[1], "w").write(out)
    print("vgprs", nv, "lds", LDS)
main()
```

```python
from common import *

N = 10000; E = 320000
G = 125
CH = 2560
NB = 256
MAGIC = 26843
CAP = 28
CELLB = 128
BSTR = G * CELLB

WS_P = 256
WS_CELL = 0x280000
WS_WF = 0x1280000
WF_W2, WF_UT, WF_UB, WF_3H, WF_3L = 0, 32768, 65536, 98304, 102400
WF_SIZE = 106496
WS_OVF = 0x12A0000
OVSTR = 64 + CH * 8
WS_FLAG = 0x1520000
WS_STAMP = 0x1600000

OPT = dict(lo=0, k8=1, stamp=0, nodma=0, noadd=0, noe=0, hot=0, align=1, unroll=2, dmapos=0, rdpos=0, dsc=1, pf=1, slp=0, stf=1, addpos=0, rdgap=0, prio=0, bench=0, octo=1, frep=8, fln=16, slp0=0, plf=1, flf=1, diag=-1, touch=0, dz=0, abl=0, dodd=0, wsb=0)
for a_ in sys.argv[2:]:
    k_, v_ = a_.split("="); OPT[k_] = int(v_)
EXP = OPT["bench"] or OPT["nodma"] or OPT["noe"] or OPT["noadd"] or OPT["hot"]

FL_ = ['', 'sc1', 'sc0 sc1', 'sc1 nt', 'sc0 sc1 nt']; PLF = FL_[OPT['plf']]; FLF = FL_[OPT['flf']]
STF = ['', 'sc1', 'sc0 sc1', 'sc1 nt'][OPT['stf']]
FREP = OPT['frep']; FLN = OPT['fln']; FSH = (128//FLN).bit_length()-1; FHALF = FREP*FLN*256; FNON = 2*FHALF; FMASK = hex((1<<FREP)-1)
CAPB = 70
L_ENT = 0
L_GN = (CAPB + 1) * 256
L_CNT = L_GN + (CAPB + 17) * 32
L_FLG = L_CNT + 256
L_ACC = L_FLG + 64
AS = 1040
L_Q = L_ACC + 40 * AS
QS = 320
L_X = L_Q + 40 * QS
XS = 288
L_STG = L_X + 40 * XS
STG = 8 * 1040 + 1024
LDS = L_STG + 8 * STG
L_CIMG = L_STG
L_BCNT = L_CIMG + NB * CELLB
WPITCH = 1088
L_GP = L_STG + 1024
L_WS = L_STG + 32 * WPITCH
assert L_BCNT + 1024 <= LDS and L_STG % 16 == 0 and L_ACC % 16 == 0
PADS, PADE = 0x8000003f, 0x80000000
KN = "standalone__mpnn_edge_mlp__graph_kernel"

def stamp(a, i, cyc=None):
    if OPT["stamp"]:
        if cyc is None:
            a(f"  s_memrealtime s[{80+2*i}:{81+2*i}]\n  s_waitcnt lgkmcnt(0)")
        else:
            a(f"  s_memrealtime s[96:97]\n  s_memtime s[98:99]\n  s_waitcnt lgkmcnt(0)\n  s_mov_b32 s{i}, s96\n  s_mov_b32 s{i+2}, s98")

def gen():
    a = Asm()
    R = Regs(1)
    al = R.alloc
    vl = al("lane")
    t0 = al("t", 8, 2); t1, t2, t3, t4, t5, t6, t7 = range(t0+1, t0+8)
    vchunk = al("vchunk"); vechunk = al("vechunk")
    vent = al("vent"); vrow = al("vrow"); vgq = al("vgq"); vga = al("vga")
    vAlo = al("Alo"); vAhi = al("Ahi"); vEF = al("vEF")
    vqlane = al("vqlane"); vacl = al("vacl"); vxb = al("vxb"); vqw = al("vqw")
    vebase = al("vebase"); vone = al("vone"); vt16 = al("vt16"); vcell = al("vcell")
    vqa = al("vqa"); vsrow = al("vsrow"); vgn1 = al("vgn1")
    ENT = al("ENT", 2, 2)
    MAC = al("MAC", 2, 2)
    PAT = al("PAT", 2, 2)
    nq = 2 if OPT["k8"] else 4
    AQ = al("AQ", nq, 2)
    GN = al("GN", 4, 2); AD = al("AD", 4)
    DO = al("DO", 2)
    I0 = al("I0", 4, 2); I1 = al("I1", 4, 2)
    W3 = al("W3", 16, 2)
    W3L = al("W3L", 16, 2) if OPT["lo"] else None
    BQ = al("BQ", 4*nq, 2)
    EF = al("EF", 4, 2)
    PF = al("PF", 32, 2)
    D0 = al("D0", 16, 2); D1 = al("D1", 16, 2)
    EA = al("EA", 8, 2); TA = al("TA", 8, 2); EB = al("EB", 8, 2); TB = al("TB", 8, 2)
    RA = al("RA", 2, 2); RB = al("RB", 2, 2)
    SA = al("SA", 2, 2); SB = al("SB", 2, 2)
    CV = al("CV", 8, 2)
    U = al("U", 12, 2); WUB = al("WUB", 16, 2)
    DUM = al("DUM", 4, 2)
    DK = al("DK", 4, 2)
    nv = R.n
    assert TA == EA + 8 and EB == EA + 16 and TB == EA + 24 and D1 == D0 + 16
    DD = D0; SS_ = D0 + 5; B4 = D0 + 10; RK = D0 + 15; CA = D0 + 20
    CP = PF
    GX = W3
    XL = U
    W1F = WUB
    REC = D0; NOD = D0 + 8; RNK = D1
    W2F = EA; WUT = EB; XF = PF; QD = CV
    sW = 3
    pX, pE, pS, pD, pWM, pWU, pO, pWS = 4, 6, 8, 10, 12, 14, 16, 18
    SP, SE, SC, SW, SO, SV, SF = 20, 24, 28, 32, 36, 40, 44
    T0, T1, T2 = 48, 52, 56
    sStart, sNb, sStg, sCnt, sT, sMode, sKind, sFirst = 60, 61, 62, 63, 64, 65, 66, 67
    sAS, sQS, sTag, sP, sUB, sLo2 = 68, 69, 70, 71, 72, 73
    sCO = 59
    sNp = 79
    sEx, sK, sBad = 74, 76, 78
    sTmp = 4
    sA = 48
    sOV = 48
    sOVT = 74
    sq = 100
    if OPT["stamp"]: NS = 102
    else: NS = 102

    a(f"""
.globl {KN}
.p2align 8
.type {KN},@function
{KN}:
  s_cmp_ge_u32 s2, {NB}
  s_cbranch_scc1 K_END""")
    if OPT["stamp"]: a("  s_memrealtime s[80:81]")
    a(f"""
  s_load_dwordx8 s[4:11], s[0:1], 0
  s_load_dwordx4 s[12:15], s[0:1], 32
  s_load_dwordx2 s[16:17], s[0:1], 48
  s_load_dwordx2 s[18:19], s[0:1], 64
  v_lshrrev_b32 v{t0}, 6, v0
  v_and_b32 v{vl}, 63, v0
  s_and_b32 s{sP}, s2, {FREP-1}
  s_mul_i32 s{sP}, s{sP}, {FLN*256}
  s_and_b32 s{sq}, s2, 7
  s_lshl_b32 s{sq}, s{sq}, 1
  s_bfe_u32 s{sq+1}, s2, 0x10003
  s_and_b32 s2, s2, 0xf0
  s_or_b32 s2, s2, s{sq}
  s_or_b32 s2, s2, s{sq+1}
  s_mul_i32 s{sStart}, s2, 640013
  v_readfirstlane_b32 s{sW}, v{t0}
  s_add_u32 s{sNb}, s{sStart}, {640013+16383}
  s_add_u32 s{sStart}, s{sStart}, 16383
  s_sub_u32 s{sNp}, s{sStart}, 640013
  s_lshr_b32 s{sStart}, s{sStart}, 14
  s_lshr_b32 s{sNb}, s{sNb}, 14
  s_lshr_b32 s{sNp}, s{sNp}, 14
  s_min_u32 s{sNb}, s{sNb}, {N}
  s_sub_u32 s{sCnt}, s{sNb}, s{sNp}
  s_sub_u32 s{sNb}, s{sNb}, s{sStart}
  s_lshl_b32 s{sT}, s{sNp}, 8
  s_sub_u32 s{sNp}, s{sStart}, s{sNp}
  s_mov_b32 s{sMode}, 0
  s_mov_b32 s{sKind}, 0
  s_mov_b32 s{sFirst}, 1
  s_mov_b32 s{sAS}, {AS}
  s_mov_b32 s{sQS}, {QS}
  s_mul_i32 s{sStg}, s{sW}, {STG}
  s_add_u32 s{sStg}, s{sStg}, {L_STG}
  v_lshlrev_b32 v{vt16}, 4, v0
  s_mul_i32 s{sq}, s2, {CH*2}
  v_lshl_add_u32 v{t2}, v0, 2, s{sq}
  v_add_u32 v{t3}, 4096, v{t2}
  v_lshrrev_b32 v{t4}, 4, v{vl}
  v_lshlrev_b32 v{t0}, 1, v{t4}
  v_xor_b32 v{t0}, v{t0}, v{vl}
  v_lshlrev_b32 v{t0}, 4, v{t0}
  s_lshl_b32 s{sq}, s{sW}, 12
  v_add_u32 v{t7}, s{sq}, v{t0}
  s_mul_i32 s{sUB}, s{sW}, {4*WPITCH}
  s_add_u32 s{sUB}, s{sUB}, {L_WS}
  v_add_u32 v{t6}, 8192, v{vt16}
  v_add_u32 v{t5}, 16384, v{vt16}
  s_waitcnt lgkmcnt(0)
  {"s_add_u32 s%d, s%d, %d" % (pWS, pWS, OPT["wsb"] << 20) + chr(10) + "  s_addc_u32 s%d, s%d, 0" % (pWS+1, pWS+1) if OPT["wsb"] else ""}
  s_bitcmp1_b32 s2, 0
  s_cbranch_scc1 K_LDG
  s_cmp_ge_u32 s2, {2*G}
  s_cbranch_scc1 K_LDP""")
    srd(a, T0, pD, E*4)
    srd(a, T1, pS, E*4)
    a(f"  s_movk_i32 s{sq}, 0x2000")
    for r_, T in ((DD, T0), (SS_, T1)):
        a(f"""
  buffer_load_dword v{r_}, v{t2}, {s(T,4)}, 0 offen
  buffer_load_dword v{r_+1}, v{t2}, {s(T,4)}, 0 offen offset:2048
  buffer_load_dword v{r_+2}, v{t3}, {s(T,4)}, 0 offen
  buffer_load_dword v{r_+3}, v{t3}, {s(T,4)}, 0 offen offset:2048
  buffer_load_dword v{r_+4}, v{t2}, {s(T,4)}, s{sq} offen""")
    def wdma(T):
        for q in range(4):
            a(f"  s_add_u32 m0, s{sUB}, {64*q}\n  s_nop 0\n  buffer_load_dwordx4 v{t7}, {s(T,4)}, 0 offen offset:{1024*q} lds")
    a(f"""
K_LDX:
  s_lshl_b32 s{sq}, s{sStart}, 8
  s_lshl_b32 s{sq+1}, s{sNb}, 8""")
    srd(a, T2, pX, f"s{sq+1}", addreg=sq)
    a(f"""
  buffer_load_dwordx4 {v(XL,4)}, v{vt16}, {s(T2,4)}, 0 offen
  buffer_load_dwordx4 {v(XL+4,4)}, v{t6}, {s(T2,4)}, 0 offen
  s_branch K_LD3
K_LDP:
  s_cmp_eq_u32 s2, {2*G}
  s_cselect_b32 s{T1}, s{pWM}, s{pWU}
  s_cselect_b32 s{T1+1}, s{pWM+1}, s{pWU+1}
  s_cmp_eq_u32 s2, {2*G+2}
  s_cselect_b32 s{sq}, 0, 32768
  s_add_u32 s{T1}, s{T1}, s{sq}
  s_addc_u32 s{T1+1}, s{T1+1}, 0
  s_mov_b32 s{T1+2}, 32768
  s_mov_b32 s{T1+3}, 0x20000""")
    wdma(T1)
    srd(a, T0, pWM, 16*256, add=256*256)
    a(f"""
  v_and_b32 v{t0}, 31, v{vl}
  v_lshrrev_b32 v{t1}, 5, v{vl}
  v_lshlrev_b32 v{t1}, 11, v{t1}
  v_lshl_add_u32 v{t1}, v{t0}, 1, v{t1}
  s_and_b32 s{sq}, s{sW}, 3
  s_lshl_b32 s{sq}, s{sq}, 6""")
    for jj in range(8):
        a(f"  buffer_load_ushort v{D0+jj}, v{t1}, {s(T0,4)}, s{sq} offen offset:{jj*256}")
    a(f"""
  s_branch K_LDX
K_LDG:
  s_lshl_b32 s{sCnt}, s{sCnt}, 8""")
    srd(a, T0, pX, f"s{sCnt}", addreg=sT)
    srd(a, T1, pWM, 128*256)
    a(f"""
  buffer_load_dwordx4 {v(GX,4)}, v{vt16}, {s(T0,4)}, 0 offen
  buffer_load_dwordx4 {v(GX+4,4)}, v{t6}, {s(T0,4)}, 0 offen
  buffer_load_dwordx4 {v(GX+8,4)}, v{t5}, {s(T0,4)}, 0 offen""")
    wdma(T1)
    a(f"""
K_LD3:
  s_add_u32 s{SF}, s{pWS}, {WS_FLAG}
  s_addc_u32 s{SF+1}, s{pWS+1}, 0
  s_load_dword s{sTag}, s[{SF}:{SF+1}], {FNON}
  s_mov_b32 s{SF+2}, {FNON+4}
  s_mov_b32 s{SF+3}, 0x20000
  v_lshrrev_b32 v{t1}, 2, v0
  v_and_b32 v{t4}, 3, v0
  v_lshlrev_b32 v{t4}, 4, v{t4}
  v_lshl_add_u32 v{vcell}, v{t1}, 7, v{t4}
  s_mov_b32 s{sq}, {CH*32}
  v_mul_u32_u24 v{vebase}, s{sq}, v{t1}""")
    a(f"""
  v_mov_b32 v{CV}, 0
  v_mov_b32 v{CV+1}, 0
  v_mov_b32 v{CV+2}, 0
  v_mov_b32 v{CV+3}, 0
  v_add_u32 v{t0}, {L_CIMG}, v{vt16}""")
    a(f"  s_bitcmp1_b32 s2, 0\n  s_cbranch_scc1 K_NOZ")
    for j in range(4):
        a(f"  ds_write_b128 v{t0}, {v(CV,4)} offset:{j*8192}")
    a(f"  s_cmp_lg_u32 s{sW}, 0\n  s_cbranch_scc1 K_NOZ\n  ds_write_b128 v{t0}, {v(CV,4)} offset:32768")
    a("K_NOZ:")
    for j in range(5):
        a(f"  ds_write_b128 v{vt16}, {v(CV,4)} offset:{L_GN + j*8192}")
    a(f"""
  v_cmp_gt_u32 vcc, {(L_Q-L_GN-5*8192)//16}, v0
  s_and_saveexec_b64 {s(sEx,2)}, vcc
  ds_write_b128 v{vt16}, {v(CV,4)} offset:{L_GN + 5*8192}
  s_mov_b64 exec, {s(sEx,2)}""")
    def prefill():
        a(f"""
  v_mov_b32 v{CV+4}, {PADS}
  v_mov_b32 v{CV+5}, {PADE}
  v_mov_b32 v{CV+6}, {PADS}
  v_mov_b32 v{CV+7}, {PADE}
  ds_write_b128 v{vt16}, {v(CV+4,4)}
  ds_write_b128 v{vt16}, {v(CV+4,4)} offset:8192
  v_cmp_gt_u32 vcc, {(L_GN-16384)//16}, v0
  s_and_saveexec_b64 {s(sEx,2)}, vcc
  ds_write_b128 v{vt16}, {v(CV+4,4)} offset:16384
  s_mov_b64 exec, {s(sEx,2)}""")
    prefill()
    a(f"  s_mul_i32 s{sq}, s2, {BSTR}\n  s_lshl_b32 s{sq+1}, s{sStart}, 8\n  s_lshl_b32 s{sK}, s{sNb}, 8")
    srd(a, SC, pWS, G*CELLB, add=WS_CELL, addreg=sq)
    srd(a, SP, pWS, (N+1)*256)
    srd(a, SE, pE, E*32)
    srd(a, SW, pWS, WF_SIZE, add=WS_WF)
    srd(a, SO, pO, f"s{sK}", addreg=sq+1)
    srd(a, SV, pWS, G*OVSTR, add=WS_OVF)
    a(f"""
  v_mov_b32 v{vone}, 1
  v_mov_b32 v{MAC}, 0
  v_mov_b32 v{MAC+1}, 0
  v_and_b32 v{t0}, 15, v{vl}                 ; l&15
  v_bfe_u32 v{t1}, v{vl}, 4, 1               ; r4&1
  v_lshlrev_b32 v{t2}, 3, v{t1}
  v_xor_b32 v{t2}, v{t0}, v{t2}
  v_lshlrev_b32 v{vchunk}, 4, v{t2}
  v_and_b32 v{t2}, 1, v{vl}
  v_xor_b32 v{t2}, v{t2}, v{t1}
  v_lshlrev_b32 v{vechunk}, 4, v{t2}
  v_lshrrev_b32 v{t2}, 4, v{vl}
  v_lshlrev_b32 v{t2}, 6, v{t2}
  v_lshrrev_b32 v{t4}, 1, v{t0}
  v_lshl_add_u32 v{t2}, v{t4}, 3, v{t2}
  s_lshl_b32 s{sq}, s{sW}, 8
  v_add_u32 v{vent}, s{sq}, v{t2}
  v_bfe_u32 v{t2}, v{vl}, 2, 1               ; h
  v_and_b32 v{t4}, 1, v{vl}                  ; xy
  v_lshl_add_u32 v{t5}, v{t2}, 1, v{t4}      ; r4
  v_bfe_u32 v{t6}, v{vl}, 3, 2
  v_bfe_u32 v{t7}, v{vl}, 1, 1
  v_lshl_add_u32 v{t6}, v{t6}, 1, v{t7}      ; j
  v_lshl_add_u32 v{t7}, v{t5}, 3, v{t6}      ; q = 8 r4 + j
  v_lshlrev_b32 v{t7}, 3, v{t7}
  v_add_u32 v{vrow}, s{sq}, v{t7}
  v_lshrrev_b32 v{t7}, 5, v{vl}              ; hh
  v_mul_u32_u24 v{vAlo}, 1040, v{t6}
  v_lshl_add_u32 v{vAlo}, v{t5}, 8, v{vAlo}
  v_lshl_add_u32 v{vAlo}, v{t7}, 4, v{vAlo}
  v_add_u32 v{vAlo}, s{sStg}, v{vAlo}
  v_xor_b32 v{vAhi}, 1, v{t4}
  v_lshl_add_u32 v{vAhi}, v{vAhi}, 7, v{vAlo}
  v_lshl_add_u32 v{vAlo}, v{t4}, 7, v{vAlo}
  v_xor_b32 v{vEF}, v{t7}, v{t4}
  v_lshl_add_u32 v{vEF}, v{t6}, 1, v{vEF}
  v_lshl_add_u32 v{vEF}, v{t5}, 4, v{vEF}
  v_lshlrev_b32 v{vEF}, 4, v{vEF}
  s_add_u32 s{sq+1}, s{sStg}, 8320
  v_add_u32 v{vEF}, s{sq+1}, v{vEF}
  v_bfe_u32 v{t5}, v{vl}, 4, 1               ; o
  v_lshlrev_b32 v{t5}, 4, v{t5}
  v_mov_b32 v{t6}, 0x3f80
  v_lshlrev_b32 v{t5}, v{t5}, v{t6}
  v_cmp_eq_u32 vcc, v{t7}, v{t2}
  s_nop 1
  v_cndmask_b32 v{t5}, 0, v{t5}, vcc
  v_cmp_eq_u32 vcc, 0, v{t4}
  s_nop 1
  v_cndmask_b32 v{PAT}, 0, v{t5}, vcc
  v_cndmask_b32 v{PAT+1}, v{t5}, 0, vcc
  s_lshl_b32 s{sq}, s{sW}, 5
  s_add_u32 s{sq+1}, s{sq}, {L_GN}
  v_lshlrev_b32 v{vga}, 4, v{t7}
  v_add_u32 v{vga}, s{sq+1}, v{vga}
  v_and_b32 v{t2}, 12, v{vl}
  v_add_u32 v{vgq}, v{vga}, v{t2}
  v_and_b32 v{t2}, 3, v{vl}
  v_lshlrev_b32 v{t2}, 3, v{t2}
  v_lshl_add_u32 v{t2}, v{t1}, 5, v{t2}
  v_add_u32 v{vqlane}, {L_Q}, v{t2}
  v_and_b32 v{t2}, 31, v{vl}
  v_lshlrev_b32 v{t4}, 3, v{t2}
  v_add_u32 v{vacl}, {L_ACC}, v{t4}
  v_lshrrev_b32 v{t4}, 4, v{vl}              ; g
  v_mul_u32_u24 v{vxb}, {XS}, v{t0}
  v_lshl_add_u32 v{vxb}, v{t4}, 4, v{vxb}
  v_add_u32 v{vxb}, {L_X}, v{vxb}
  v_mul_u32_u24 v{vqw}, {QS}, v{t0}
  v_lshl_add_u32 v{vqw}, v{t4}, 3, v{vqw}
  s_add_u32 s{sq+1}, s{sq}, {L_Q}
  v_add_u32 v{vqw}, s{sq+1}, v{vqw}
  v_mul_u32_u24 v{vqa}, {2*WPITCH}, v{t4}
  v_bfe_u32 v{t5}, v{vl}, 2, 2
  v_lshl_add_u32 v{vqa}, v{t5}, 8, v{vqa}
  v_xor_b32 v{t5}, s{sW}, v{t5}
  v_lshl_add_u32 v{vqa}, v{t5}, 5, v{vqa}
  v_and_b32 v{t5}, 3, v{vl}
  v_lshl_add_u32 v{vqa}, v{t5}, 3, v{vqa}
  v_add_u32 v{vqa}, {L_WS}, v{vqa}
  v_and_b32 v{t4}, 1, v{vl}
  v_lshlrev_b32 v{t4}, 4, v{t4}
  v_lshlrev_b32 v{t4}, v{t4}, v{t6}
  v_bfe_u32 v{t5}, v{vl}, 1, 4
  v_lshlrev_b32 v{t7}, 2, v{t7}
  v_sub_u32 v{t5}, v{t5}, v{t7}""")
    for i in range(4):
        a(f"  v_cmp_eq_u32 vcc, {i}, v{t5}\n  s_nop 1\n  v_cndmask_b32 v{I0+i}, 0, v{t4}, vcc")
        a(f"  v_cmp_eq_u32 vcc, {8+i}, v{t5}\n  s_nop 1\n  v_cndmask_b32 v{I1+i}, 0, v{t4}, vcc")
    if not OPT["k8"]:
        a(f"  v_mov_b32 v{AQ+2}, 0\n  v_mov_b32 v{AQ+3}, 0")
        for t in range(4):
            a(f"  v_mov_b32 v{BQ+4*t+2}, 0\n  v_mov_b32 v{BQ+4*t+3}, 0")
    def prefetch():
        if not OPT["pf"]: return
        a(f"  s_mul_i32 s{sq}, s2, 40000\n  s_sub_u32 s{sq}, s{sq}, 4096\n  v_add_u32 v{t0}, s{sq}, v{vt16}")
        for j in range(10):
            a(f"  buffer_load_dwordx4 {v(DUM,4)}, v{t0}, {s(SE,4)}, 0 offen")
            if j < 9: a(f"  v_add_u32 v{t0}, 4096, v{t0}")
    def wtr(dst, ad):
        for st in range(4):
            for hf in range(2):
                a(f"  ds_read_b64_tr_b16 {v(dst+4*st+2*hf,2)}, v{ad} offset:{(8*st+hf)*WPITCH}")
    def own_x(nyounger):
        a(f"""
  v_lshrrev_b32 v{t0}, 4, v0
  v_lshl_add_u32 v{t0}, v{t0}, 5, v{vt16}
  v_add_u32 v{t0}, {L_X}, v{t0}
  s_waitcnt vmcnt({nyounger})
  ds_write_b128 v{t0}, {v(XL,4)}
  s_mov_b32 exec_lo, s{sLo2}
  s_mov_b32 exec_hi, s{sLo2}
  ds_write_b128 v{t0}, {v(XL+4,4)} offset:{32*XS}
  s_mov_b64 exec, -1""")
    a(f"""
  s_cmp_lt_u32 s{sW}, 2
  s_cselect_b32 s{sLo2}, -1, 0
  s_lshr_b32 s{sq}, s2, {1+FSH}
  s_lshl_b32 s{sq}, s{sq}, 8
  s_bfe_u32 s{sq+1}, s2, {hex((FSH<<16)|1)}
  s_lshl_b32 s{sq+1}, s{sq+1}, 2
  s_add_u32 s{sq}, s{sq}, s{sq+1}
  s_and_b32 s{sq+1}, s2, 1
  s_mul_i32 s{sq+1}, s{sq+1}, {FHALF}
  s_add_u32 s{sq}, s{sq}, s{sq+1}
  v_mul_u32_u24 v{vgn1}, {FLN*256}, v{vl}
  v_add_u32 v{vgn1}, s{sq}, v{vgn1}
  v_lshrrev_b32 v{t2}, {FSH-1}, v{vl}
  v_lshlrev_b32 v{t2}, 8, v{t2}
  v_and_b32 v{t3}, {(1<<(FSH-1))-1}, v{vl}
  v_lshl_add_u32 v{t2}, v{t3}, 3, v{t2}
  v_add_u32 v{vsrow}, s{sP}, v{t2}
  s_mov_b32 s{sK}, {NLOG2E}
  s_mov_b32 s{sK+1}, {NLOG2E}
  s_waitcnt lgkmcnt(0)
  s_add_u32 s{sTag}, s{sTag}, 1
  s_bitcmp1_b32 s2, 0
  s_cbranch_scc1 K_GEMM
  s_cmp_ge_u32 s2, {2*G}
  s_cbranch_scc1 K_PREP
  s_mov_b32 s{sq}, {MAGIC}
  v_lshlrev_b32 v{t7}, 6, v0
  v_add_u32 v{t7}, {1<<18}, v{t7}
  s_barrier
  s_waitcnt vmcnt(7)""")
    stamp(a, 1)
    for j in range(5):
        a(f"""
  v_mul_u32_u24 v{B4+j}, s{sq}, v{DD+j}
  v_lshrrev_b32 v{B4+j}, 18, v{B4+j}
  v_and_b32 v{B4+j}, 0x3fc, v{B4+j}
  v_add_u32 v{t0+j}, {L_BCNT}, v{B4+j}
  ds_add_rtn_u32 v{RK+j}, v{t0+j}, v{vone}""")
    a("  s_waitcnt vmcnt(2)")
    for j in range(5):
        a(f"""
  v_lshl_add_u32 v{SS_+j}, v{SS_+j}, 18, v{t7}
  v_and_or_b32 v{SS_+j}, v{DD+j}, 63, v{SS_+j}
  v_lshlrev_b32 v{CA+j}, 5, v{B4+j}
  v_add_u32 v{CA+j}, {L_CIMG}, v{CA+j}""")
        if j < 4: a(f"  v_add_u32 v{t7}, {512<<6}, v{t7}")
    srd(a, T2, pWS, NB*BSTR, add=WS_CELL)
    a(f"""
  v_lshrrev_b32 v{t4}, 3, v0
  s_mov_b32 s{sq}, {BSTR}
  v_mul_u32_u24 v{t4}, s{sq}, v{t4}
  v_and_b32 v{t5}, 7, v0
  v_lshl_add_u32 v{t4}, v{t5}, 4, v{t4}
  s_lshl_b32 s{sq}, s2, 6
  s_mov_b64 {s(sBad,2)}, 0
  s_waitcnt lgkmcnt(0)""")
    for j in range(5):
        a(f"""
  v_mul_u32_u24 v{t1}, 37, v{RK+j}
  v_lshl_add_u32 v{t0}, v{RK+j}, 2, v{CA+j}
  v_lshrrev_b32 v{t1}, 8, v{t1}
  v_cmp_le_u32 vcc, {CAP-1}, v{RK+j}
  v_lshl_add_u32 v{t0}, v{t1}, 2, v{t0}
  s_or_b64 {s(sBad,2)}, {s(sBad,2)}, vcc
  s_andn2_b64 exec, exec, vcc
  ds_write_b32 v{t0}, v{SS_+j}
  s_mov_b64 exec, -1""")
    a(f"""
  v_add_u32 v{t0}, {L_CIMG}, v{vt16}
  v_mov_b32 v{t2}, {L_FLG+4}
  s_cmp_eq_u64 {s(sBad,2)}, 0
  s_cbranch_scc1 K_NOFULL
  ds_write_b32 v{t2}, v{vone}
K_NOFULL:
  s_waitcnt lgkmcnt(0)
  s_barrier""")
    stamp(a, 2)
    a(f"  ds_read_b32 v{t2}, v{t2}\nK_OVFDONE:")
    for j in range(4):
        a(f"  ds_read_b128 {v(CP+4*j,4)}, v{t0} offset:{8192*j}")
    a(f"""
  s_waitcnt lgkmcnt(4)
  v_cmp_ne_u32 vcc, 0, v{t2}
  s_cbranch_vccnz K_OVF""")
    for j in range(4):
        a(f"""
  s_mov_b32 exec_lo, 0xaaaaaaaa
  s_mov_b32 exec_hi, 0xaaaaaaaa
  s_waitcnt lgkmcnt({3-j})
  v_mov_b32 v{CP+4*j+3}, s{sTag}
  s_mov_b64 exec, -1
  buffer_store_dwordx4 {v(CP+4*j,4)}, v{t4}, {s(T2,4)}, s{sq} offen {STF}
  s_add_u32 s{sq}, s{sq}, {64*BSTR}""")
    stamp(a, 4)
    own_x(4)
    a(f"""
  s_branch K_PST
K_GEMM:
  ; ---------------- P gemm role: rows of this bucket and the one before ----------------""")
    if OPT["touch"]:
        a(f"""
  s_cmp_lg_u32 s{sW}, 0
  s_cbranch_scc1 K_NOTOUCH
  s_waitcnt vmcnt(0)
  s_mov_b64 exec, {FMASK}
  buffer_load_dword v{DUM}, v{vgn1}, {s(SF,4)}, 0 offen sc1
  s_mov_b64 exec, -1
K_NOTOUCH:""")
    a(f"""
  s_mul_i32 s{sq}, s{sNp}, {XS}
  s_sub_u32 s{sq}, {L_X}, s{sq}
  v_lshrrev_b32 v{t0}, 4, v0
  v_lshl_add_u32 v{t0}, v{t0}, 5, v{vt16}
  v_add_u32 v{t3}, s{sq}, v{t0}
  s_cmp_lt_u32 s{sW}, 4
  s_cselect_b32 s{sq+1}, -1, 0
  v_subrev_u32 v{t1}, {L_X}, v{vxb}
  v_add_u32 v{t1}, s{sq}, v{t1}
  s_waitcnt vmcnt(6)
  ds_write_b128 v{t3}, {v(GX,4)}
  s_waitcnt vmcnt(5)
  ds_write_b128 v{t3}, {v(GX+4,4)} offset:{32*XS}
  s_waitcnt vmcnt(4)
  s_mov_b32 exec_lo, s{sq+1}
  s_mov_b32 exec_hi, s{sq+1}
  ds_write_b128 v{t3}, {v(GX+8,4)} offset:{64*XS}
  s_mov_b64 exec, -1
  v_and_b32 v{t2}, 15, v{vl}
  v_mul_u32_u24 v{t2}, {XS}, v{t2}
  v_lshrrev_b32 v{t3}, 4, v{vl}
  v_lshl_add_u32 v{t2}, v{t3}, 3, v{t2}
  s_lshl_b32 s{sq}, s{sW}, 5
  s_add_u32 s{sq}, s{sq}, {L_GP}
  v_add_u32 v{t2}, s{sq}, v{t2}
  v_add_u32 v{t0}, {L_GP - 16*XS}, v{t0}
  v_subrev_u32 v{t4}, 4096, v{vt16}""")
    srd(a, T0, pWS, f"s{sCnt}", add=WS_P, addreg=sT)
    a("  s_waitcnt vmcnt(0) lgkmcnt(0)\n  s_barrier")
    stamp(a, 1)
    wtr(W1F, vqa)
    XT = [PF, PF+16, EA, EB, PF]
    for nt in range(4):
        for st in range(4):
            a(f"  ds_read_b128 {v(XT[nt]+4*st,4)}, v{t1} offset:{nt*16*XS + st*64}")
    for nt in range(5):
        a(f"  s_waitcnt lgkmcnt({(12, 12, 8, 4, 0)[nt]})")
        for st in range(4):
            c = "0" if st == 0 else v(D0+4*nt, 4)
            a(f"  v_mfma_f32_16x16x32_bf16 {v(D0+4*nt,4)}, {v(W1F+4*st,4)}, {v(XT[nt]+4*st,4)}, {c}")
        if nt == 0:
            for st in range(4):
                a(f"  ds_read_b128 {v(PF+4*st,4)}, v{t1} offset:{4*16*XS + st*64}")
    for nt in range(5):
        d = D0 + 4*nt
        if nt == 4: a("  s_nop 1")
        a(f"""
  v_pk_mul_f32 {v(d,2)}, {v(d,2)}, {s(sK,2)}
  v_pk_mul_f32 {v(d+2,2)}, {v(d+2,2)}, {s(sK,2)}
  v_cvt_pk_bf16_f32 v{W3+2*nt}, v{d}, v{d+1}
  v_cvt_pk_bf16_f32 v{W3+2*nt+1}, v{d+2}, v{d+3}
  ds_write_b64 v{t2}, {v(W3+2*nt,2)} offset:{nt*16*XS}""")
    a("  s_waitcnt lgkmcnt(0)\n  s_barrier")
    stamp(a, 2)
    a(f"""
  s_cmp_lt_u32 s{sW}, 4
  s_cbranch_scc1 K_PST""")
    for j in range(5):
        a(f"  ds_read_b128 {v(PF+4*j,4)}, v{t0} offset:{j*16*XS}")
    for j in range(5):
        a(f"  s_waitcnt lgkmcnt({4-j})\n  buffer_store_dwordx4 {v(PF+4*j,4)}, v{t4}, {s(T0,4)}, 0 offen {STF}")
        if j < 4: a(f"  v_add_u32 v{t4}, 4096, v{t4}")
    a(f"""
  v_mov_b32 v{t0}, {L_FLG+12}
  v_mov_b32 v{t7}, s{sTag}
  s_mov_b64 exec, 1
  s_waitcnt vmcnt(0)
  ds_add_rtn_u32 v{t0}, v{t0}, v{vone}
  s_waitcnt lgkmcnt(0)
  v_readfirstlane_b32 s{sq}, v{t0}
  s_mov_b64 exec, -1
  s_cmp_lg_u32 s{sq}, 3
  s_cbranch_scc1 K_PST
K_FLAG:
  s_mov_b64 exec, {FMASK}
  buffer_store_dword v{t7}, v{vgn1}, {s(SF,4)}, 0 offen {FLF}
  s_mov_b64 exec, -1
K_PST:""")
    def node_gemm(WA, WB=None):
        for nt in range(3):
            xf = XF + 16*(nt & 1)
            if nt == 0:
                for n2 in range(2):
                    for st in range(4):
                        a(f"  ds_read_b128 {v(XF+16*n2+4*st,4)}, v{vxb} offset:{n2*16*XS + st*64}")
            a(f"  s_waitcnt lgkmcnt({4 if nt == 0 else 5 if nt == 1 else 1})")
            q = QD if nt != 1 else SA
            for st in range(4):
                c = "0" if st == 0 else v(q, 4)
                a(f"  v_mfma_f32_16x16x32_bf16 {v(q,4)}, {v(WA+4*st,4)}, {v(xf+4*st,4)}, {c}")
            if WB is not None:
                for st in range(4):
                    c = "0" if st == 0 else v(U+4*nt, 4)
                    a(f"  v_mfma_f32_16x16x32_bf16 {v(U+4*nt,4)}, {v(WB+4*st,4)}, {v(xf+4*st,4)}, {c}")
            if nt == 0:
                for st in range(4):
                    a(f"  ds_read_b128 {v(XF+4*st,4)}, v{vxb} offset:{2*16*XS + st*64}")
            a(f"""
  s_nop 7
  v_pk_mul_f32 {v(q,2)}, {v(q,2)}, {s(sK,2)}
  v_pk_mul_f32 {v(q+2,2)}, {v(q+2,2)}, {s(sK,2)}
  v_cvt_pk_bf16_f32 v{QD+4+2*(nt&1)}, v{q}, v{q+1}
  v_cvt_pk_bf16_f32 v{QD+5+2*(nt&1)}, v{q+2}, v{q+3}""")
            if nt == 2:
                a(f"  s_mov_b32 exec_lo, 0x00ff00ff\n  s_mov_b32 exec_hi, 0x00ff00ff")
            a(f"  ds_write_b64 v{vqw}, {v(QD+4+2*(nt&1),2)} offset:{nt*16*QS}")
            if nt == 2:
                a("  s_mov_b64 exec, -1")
    assert SB == SA + 2
    def poll(lab, off):
        a(f"""
  s_cmp_lg_u32 s{sW}, 1
  s_cbranch_scc1 {lab}_D
  s_mov_b32 s{sq}, 0
  s_mov_b32 s{sq+1}, {off}
  {"s_sleep %d" % OPT["slp0"] if OPT["slp0"] and off == 0 else ""}
{lab}:
  buffer_load_dwordx2 {v(DUM,2)}, v{vsrow}, {s(SF,4)}, s{sq+1} offen {PLF}
  s_add_u32 s{sq}, s{sq}, 1
  s_waitcnt vmcnt(0)
  v_cmp_ne_u32 vcc, s{sTag}, v{DUM}
  v_cmp_ne_u32 {s(sBad,2)}, s{sTag}, v{DUM+1}
  s_or_b64 vcc, vcc, {s(sBad,2)}
  s_cbranch_scc0 {lab}_D
  {"s_sleep %d" % OPT["slp"] if OPT["slp"] else ""}
  s_cmp_lt_u32 s{sq}, 0x8000
  s_cbranch_scc1 {lab}
{lab}_D:""")
    stamp(a, 5)
    nld = 16 if OPT["lo"] else 12
    a(f"""
  s_lshl_b32 s{sTmp}, s{sW}, 12
  s_add_u32 s{sTmp+1}, s{sTmp}, {WF_UT}
  s_add_u32 s{sUB}, s{sTmp}, {WF_UB}
  s_mov_b32 s{sTmp+2}, {WF_3H}
  s_mov_b32 s{sTmp+3}, {WF_3L}
  s_mov_b32 s{sOV}, 0xaaaaaaaa
  s_cmp_eq_u32 s{sW}, 7
  s_cselect_b32 s{sOV+1}, 0xaaaaa, s{sOV}
  v_min_u32 v{t4}, 2, v{vl}
  v_lshl_add_u32 v{t4}, v{t4}, 2, s{sP}
  v_mov_b32 v{t5}, s{sTag}
  s_mov_b32 s{sq}, 0
  {"s_sleep %d" % OPT["slp0"] if OPT["slp0"] else ""}
K_CPOLL:
  buffer_load_dwordx4 {v(REC,4)}, v{vcell}, {s(SC,4)}, 0 offen sc1
  buffer_load_dwordx4 {v(REC+4,4)}, v{vcell}, {s(SC,4)}, 0 offen offset:64 sc1
  s_cmp_lg_u32 s{sW}, 1
  s_cbranch_scc1 K_CPOLL1
  buffer_load_dword v{t5}, v{t4}, {s(SF,4)}, 0 offen offset:{(FLN-1)*256 + (125 - (FLN-1)*(128//FLN))*4} sc1
K_CPOLL1:
  s_add_u32 s{sq}, s{sq}, 1
  s_waitcnt vmcnt(0)
  v_cmp_ne_u32 vcc, s{sTag}, v{REC+3}
  v_cmp_ne_u32 {s(sBad,2)}, s{sTag}, v{REC+7}
  s_or_b64 {s(sBad,2)}, vcc, {s(sBad,2)}
  v_cmp_ne_u32 vcc, s{sTag}, v{t5}
  s_and_b64 {s(sBad,2)}, {s(sBad,2)}, {s(sOV,2)}
  s_or_b64 {s(sBad,2)}, {s(sBad,2)}, vcc
  s_cbranch_scc0 K_CPOLLD
  {"s_sleep %d" % OPT["slp"] if OPT["slp"] else ""}
  s_cmp_lt_u32 s{sq}, 0x8000
  s_cbranch_scc1 K_CPOLL
K_CPOLLD:
  s_mov_b32 exec_lo, 0xaaaaaaaa
  s_mov_b32 exec_hi, 0xaaaaaaaa
  v_mov_b32 v{REC+3}, 0
  v_mov_b32 v{REC+7}, 0
  s_mov_b64 exec, -1""")
    stamp(a, 6)
    wl = [f"  buffer_load_dwordx4 {v(W2F+4*st,4)}, v{t0}, {s(SW,4)}, s{sTmp} offen offset:{st*1024} sc1" for st in range(4)]
    wl += [f"  buffer_load_dwordx4 {v(WUT+4*st,4)}, v{t0}, {s(SW,4)}, s{sTmp+1} offen offset:{st*1024} sc1" for st in range(4)]
    wl += [f"  buffer_load_dwordx4 {v(W3+4*st,4)}, v{t0}, {s(SW,4)}, s{sTmp+2} offen offset:{st*1024} sc1" for st in range(4)]
    if OPT["lo"]:
        wl += [f"  buffer_load_dwordx4 {v(W3L+4*st,4)}, v{t0}, {s(SW,4)}, s{sTmp+3} offen offset:{st*1024} sc1" for st in range(4)]
    NR = 8
    a(f"""
K_PHASE1:
  v_cmp_le_u32 vcc, 0xfffc0000, v{REC+NR-2}
  s_cbranch_vccz K_NOMARK
  s_and_saveexec_b64 {s(sEx,2)}, vcc
  v_lshrrev_b32 v{t0}, 2, v0                 ; producer
  v_lshrrev_b32 v{t1}, 5, v{t0}
  v_lshlrev_b32 v{t1}, 2, v{t1}
  v_lshlrev_b32 v{t0}, v{t0}, v{vone}
  ds_or_b32 v{t1}, v{t0} offset:{L_FLG+32}
  v_mov_b32 v{REC+NR-2}, 0
  s_mov_b64 exec, {s(sEx,2)}
K_NOMARK:""")
    for k in range(NR):
        if k == 4:
            a(f"""
  v_or3_b32 v{t3}, v{REC+k}, v{REC+k+1}, v{REC+k+2}
  v_or_b32 v{t3}, v{t3}, v{REC+k+3}
  v_cmp_ne_u32 vcc, 0, v{t3}
  s_cbranch_vccz K_P1E""")
        a(f"""
  v_lshlrev_b32 v{NOD+k}, 2, v{REC+k}
  v_and_b32 v{NOD+k}, 0xfc, v{NOD+k}
  v_cmpx_ne_u32 vcc, 0, v{REC+k}
  ds_add_rtn_u32 v{RNK+k}, v{NOD+k}, v{vone} offset:{L_CNT}
  s_mov_b64 exec, -1""")
    a(f"""
K_P1E:
  v_lshlrev_b32 v{t0}, 2, v{vl}
  v_subrev_u32 v{t4}, s{sStart}, v{vl}
  v_and_b32 v{t4}, 63, v{t4}
  s_waitcnt lgkmcnt(0)
  s_barrier
  ds_read_b32 v{t1}, v{t0} offset:{L_CNT}
  v_lshlrev_b32 v{t0}, 4, v{vl}
  s_cmp_eq_u32 s{sFirst}, 0
  s_cbranch_scc1 K_NOWL""")
    for x in wl: a(x)
    a(f"""
K_NOWL:
  s_waitcnt lgkmcnt(0)
  v_add_u32 v{t1}, 3, v{t1}
  v_bfe_u32 v{t5}, v{t1}, 2, 1               ; left-over quad
  v_lshrrev_b32 v{t6}, 3, v{t1}
  v_lshl_or_b32 v{t1}, v{t5}, 16, v{t6}
  v_mov_b32 v{t2}, v{t1}
  s_nop 1
  v_add_u32_dpp v{t2}, v{t2}, v{t2} row_shr:1 row_mask:0xf bank_mask:0xf
  s_nop 1
  v_add_u32_dpp v{t2}, v{t2}, v{t2} row_shr:2 row_mask:0xf bank_mask:0xf
  s_nop 1
  v_add_u32_dpp v{t2}, v{t2}, v{t2} row_shr:4 row_mask:0xf bank_mask:0xf
  s_nop 1
  v_add_u32_dpp v{t2}, v{t2}, v{t2} row_shr:8 row_mask:0xf bank_mask:0xf
  s_nop 1
  v_add_u32_dpp v{t2}, v{t2}, v{t2} row_bcast:15 row_mask:0xa bank_mask:0xf
  s_nop 1
  v_add_u32_dpp v{t2}, v{t2}, v{t2} row_bcast:31 row_mask:0xc bank_mask:0xf
  s_nop 1
  v_readlane_b32 s{sT}, v{t2}, 63
  v_sub_u32 v{t1}, v{t2}, v{t1}
  s_lshr_b32 s{sq+1}, s{sT}, 16
  s_and_b32 s{sCO}, s{sT}, 0xffff
  s_lshl_b32 s{sq}, s{sCO}, 1                ; quads in the groups of eight
  s_lshr_b32 s{sCO}, s{sCO}, 2
  s_add_u32 s{sT}, s{sq}, s{sq+1}
  s_add_u32 s{sT}, s{sT}, 7
  s_lshr_b32 s{sT}, s{sT}, 3
  v_lshrrev_b32 v{t2}, 16, v{t1}
  v_add_u32 v{t2}, s{sq}, v{t2}              ; quad slot of the left-over quad
  v_and_b32 v{t1}, 0xffff, v{t1}
  v_lshl_or_b32 v{t0}, v{t6}, 16, v{t1}
  v_lshlrev_b32 v{t0}, 3, v{t0}              ; 8*start8 | 8*n8 << 16
  v_lshlrev_b32 v{t7}, 1, v{t6}
  v_sub_u32 v{t7}, v{t2}, v{t7}
  v_lshlrev_b32 v{t7}, 2, v{t7}              ; position base of the left-over quad
  s_cmp_gt_u32 s{sT}, {CAPB}
  s_cbranch_scc1 K_SPLIT""")
    for k0 in (0, 4):
        if k0:
            a(f"""
  v_or3_b32 v{t3}, v{REC+k0}, v{REC+k0+1}, v{REC+k0+2}
  v_or_b32 v{t3}, v{t3}, v{REC+k0+3}
  v_cmp_ne_u32 vcc, 0, v{t3}
  s_cbranch_vccz K_P2E""")
        for k in range(k0, k0+4):
            a(f"  ds_bpermute_b32 v{PF+24+(k&3)}, v{NOD+k}, v{t7}")
            a(f"  ds_bpermute_b32 v{NOD+k}, v{NOD+k}, v{t0}")
        for k in range(k0, k0+4):
            e = PF + 16 + 2*(k & 3)
            a(f"""
  v_lshrrev_b32 v{e}, 10, v{REC+k}
  v_and_b32 v{e}, {hex(0xffffff00 if not OPT['hot'] else 0x1f00)}, v{e}
  v_bfe_u32 v{e+1}, v{REC+k}, 6, 12
  v_lshl_add_u32 v{e+1}, v{e+1}, 5, v{vebase}""")
            if OPT["hot"]: a(f"  v_and_b32 v{e+1}, 0xfe0, v{e+1}")
        a("  s_waitcnt lgkmcnt(0)")
        for k in range(k0, k0+4):
            a(f"  v_cmp_lt_u32_sdwa {s(8+2*(k&3),2)}, v{RNK+k}, v{NOD+k} src0_sel:DWORD src1_sel:WORD_1")
        for k in range(k0, k0+4):
            a(f"  v_and_b32 v{NOD+k}, 0xffff, v{NOD+k}")
        for k in range(k0, k0+4):
            a(f"  v_cndmask_b32 v{NOD+k}, v{PF+24+(k&3)}, v{NOD+k}, {s(8+2*(k&3),2)}")
        for k in range(k0, k0+4):
            e = PF + 16 + 2*(k & 3)
            a(f"""
  v_add_lshl_u32 v{NOD+k}, v{NOD+k}, v{RNK+k}, 3
  v_cmpx_ne_u32 vcc, 0, v{REC+k}
  ds_write_b64 v{NOD+k}, {v(e,2)}
  s_mov_b64 exec, -1""")
    a(f"""
K_P2E:
  v_lshlrev_b32 v{t2}, 2, v{t2}
  v_cmpx_ne_u32 vcc, 0, v{t5}
  ds_write_b32 v{t2}, v{t4} offset:{L_GN}
  s_mov_b64 exec, -1
  v_add_lshl_u32 v{t2}, v{t1}, v{t6}, 3
  v_lshl_add_u32 v{t1}, v{t1}, 1, s{sW}
  v_lshlrev_b32 v{t1}, 2, v{t1}
K_GNL:
  v_cmpx_lt_u32 vcc, v{t1}, v{t2}
  ds_write_b32 v{t1}, v{t4} offset:{L_GN}
  v_add_u32 v{t1}, 32, v{t1}
  v_cmpx_lt_u32 vcc, v{t1}, v{t2}
  ds_write_b32 v{t1}, v{t4} offset:{L_GN}
  v_add_u32 v{t1}, 32, v{t1}
  v_cmpx_lt_u32 vcc, v{t1}, v{t2}
  s_cbranch_execnz K_GNL
  s_mov_b64 exec, -1
  s_add_u32 s{sCnt}, s{sT}, 7
  s_sub_u32 s{sCnt}, s{sCnt}, s{sW}
  s_lshr_b32 s{sCnt}, s{sCnt}, 3
  s_add_u32 s{sCO}, s{sCO}, 7
  s_sub_u32 s{sCO}, s{sCO}, s{sW}
  s_lshr_b32 s{sCO}, s{sCO}, 3
  {("s_mov_b32 s%d, 40" % sCnt + chr(10) + "  s_movk_i32 s%d, 320" % sT + chr(10) + "  s_mov_b32 s%d, 40" % sCO) if OPT["bench"] else ""}
  s_cmp_eq_u32 s{sFirst}, 0
  s_cbranch_scc1 K_POLL2_D""")
    poll("K_POLL2", FHALF)
    a("  s_waitcnt lgkmcnt(0)\n  s_barrier")
    stamp(a, 7)
    dsc = " sc1" if OPT["dsc"] else ""
    def dma_issue():
        L = []
        for j in range(8):
            d = DO + (j & 1)
            L.append([f"  s_add_u32 m0, s{sStg}, {j*1040}",
                      f"  v_add_u32_dpp v{d}, v{ENT}, v{vchunk} row_newbcast:{2*j} row_mask:0xf bank_mask:0xf",
                      f"  buffer_load_dwordx4 v{d}, {s(SP,4)}, 0 offen{dsc} lds" if not OPT["nodma"] else "  s_nop 0"])
        L.append([f"  s_add_u32 m0, s{sStg}, 8320",
                  f"  v_add_u32 v{DO}, v{ENT+1}, v{vechunk}",
                  f"  buffer_load_dwordx4 v{DO}, {s(SE,4)}, 0 offen lds" if not (OPT["nodma"] or OPT["noe"]) else "  s_nop 0"])
        return L
    ndma = 0 if OPT["nodma"] else 8 if OPT["noe"] else 9
    def frag_reads():
        L = []
        for st in range(8):
            L.append(f"  ds_read_b128 {v(PF+4*st,4)}, v{vAlo if st < 4 else vAhi} offset:{32*(st&3)}")
        L.insert(2, f"  ds_read_b128 {v(EF,4)}, v{vEF}")
        return L
    def bq_reads():
        return [f"  ds_read_b64_tr_b16 {v(BQ+nq*t,2)}, v{vqa} offset:{64*t}" for t in range(4)]
    def chain(t, D):
        L = [f"  v_mfma_f32_32x32x16_bf16 {v(D,16)}, {v(EF,4)}, {v(W3+4*t,4)}, 0"]
        if OPT["lo"]:
            L.append(f"  v_mfma_f32_32x32x16_bf16 {v(D,16)}, {v(EF,4)}, {v(W3L+4*t,4)}, {v(D,16)}")
        L.append(f"  v_mfma_f32_32x32x16_bf16 {v(D,16)}, {v(PF+8*t,4)}, {v(I0,4)}, {v(D,16)}")
        L.append(f"  v_mfma_f32_32x32x16_bf16 {v(D,16)}, {v(PF+8*t+4,4)}, {v(I1,4)}, {v(D,16)}")
        if OPT["k8"]:
            L.append(f"  v_mfma_f32_32x32x8bf16_1k {v(D,16)}, {v(AQ,2)}, {v(BQ+2*t,2)}, {v(D,16)}")
        else:
            L.append(f"  v_mfma_f32_32x32x16_bf16 {v(D,16)}, {v(AQ,4)}, {v(BQ+4*t,4)}, {v(D,16)}")
        return L

    a(f"  ds_read_b64 {v(ENT,2)}, v{vent}\n  s_waitcnt lgkmcnt(0)")
    for x in dma_issue(): a("\n".join(x))
    a(f"  ds_read_b64 {v(ENT,2)}, v{vent} offset:2048")
    a(f"""
  s_cmp_eq_u32 s{sFirst}, 0
  s_cbranch_scc1 K_NOGEMM0
  s_mov_b32 s{sFirst}, 0
  s_waitcnt vmcnt({ndma}) lgkmcnt(0)""")
    node_gemm(W2F, WUT)
    a(f"  v_lshlrev_b32 v{t4}, 4, v{vl}")
    for st in range(4):
        a(f"  buffer_load_dwordx4 {v(WUB+4*st,4)}, v{t4}, {s(SW,4)}, s{sUB} offen offset:{st*1024} sc1")
    a(f"""
  s_or_b32 s{sq}, s2, s{sW}
  s_cmp_lg_u32 s{sq}, 0
  s_cbranch_scc1 K_NONONCE
  s_mov_b64 exec, 1
  v_mov_b32 v{t0}, {FNON}
  v_mov_b32 v{t1}, s{sTag}
  buffer_store_dword v{t1}, v{t0}, {s(SF,4)}, 0 offen
  s_mov_b64 exec, -1
  s_waitcnt vmcnt(0)
K_NONONCE:
  s_waitcnt lgkmcnt(0)
  s_barrier
K_NOGEMM:
  ds_read_b32 v{vgn1}, v{vgq}
  ds_read_b32 v{vsrow}, v{vrow}
  ds_read_b128 {v(GN,4)}, v{vga}
  s_waitcnt vmcnt(4)""")
    stamp(a, 8, 96)
    for x in frag_reads(): a(x)
    a(f"""
  s_waitcnt lgkmcnt(9)
  v_mad_u32_u24 v{vqa}, v{vgn1}, s{sQS}, v{vqlane}
  v_lshrrev_b64 {v(AQ,2)}, v{vsrow}, {v(PAT,2)}""")
    for x in bq_reads(): a(x)
    a("  s_waitcnt lgkmcnt(0)")
    for x in dma_issue(): a("\n".join(x))
    for x in chain(0, D0): a(x)
    if OPT["prio"]:
        a(f"  s_cmp_lt_u32 s{sW}, 4\n  s_cbranch_scc1 K_PR\n  s_setprio 1\nK_PR:")
    a(f"""
  s_nop 7
  s_nop 3
  s_cmp_eq_u32 s{sCnt}, 0
  s_cbranch_scc1 K_LOOPEND
  s_cmp_lg_u32 s{sMode}, 0
  s_cbranch_scc1 K_SAFE
  {"s_branch K_QUAD" if not OPT["octo"] else ""}
  s_sub_u32 s{sCnt}, s{sCnt}, s{sCO}
  s_cmp_eq_u32 s{sCO}, 0
  s_cbranch_scc1 K_QUAD""")

    def p(r): return v(r, 2)
    def octet_fast(d, e, t, r, sres):
        ex = [f"  v_exp_f32 v{e+i}, v{d+i}" for i in range(8)]
        L = [f"  v_pk_add_f32 {p(t)}, {p(e)}, 1.0 op_sel_hi:[1,0]",
             f"  v_pk_add_f32 {p(t+2)}, {p(e+4)}, 1.0 op_sel_hi:[1,0]",
             f"  v_pk_fma_f32 {p(t+4)}, {p(d)}, {p(e+2)}, {p(d)}",
             f"  v_pk_fma_f32 {p(t+6)}, {p(d+4)}, {p(e+6)}, {p(d+4)}",
             f"  v_pk_fma_f32 {p(e)}, {p(t)}, {p(e+2)}, {p(t)}",
             f"  v_pk_fma_f32 {p(e+4)}, {p(t+2)}, {p(e+6)}, {p(t+2)}",
             f"  v_pk_fma_f32 {p(t+4)}, {p(d+2)}, {p(t)}, {p(t+4)}",
             f"  v_pk_fma_f32 {p(t+6)}, {p(d+6)}, {p(t+2)}, {p(t+6)}",
             f"  v_pk_mul_f32 {p(t)}, {p(e)}, {p(e+4)}",
             f"  v_pk_mul_f32 {p(t+4)}, {p(t+4)}, {p(e+4)}",
             f"  v_rcp_f32 v{r}, v{t}",
             f"  v_rcp_f32 v{r+1}, v{t+1}",
             f"  v_pk_fma_f32 {p(t+4)}, {p(t+6)}, {p(e)}, {p(t+4)}",
             f"  v_pk_mul_f32 {p(sres)}, {p(t+4)}, {p(r)}"]
        return ex, L
    def octet_safe(d, e, t, r, sres):
        ex = [f"  v_exp_f32 v{e+i}, v{d+i}" for i in range(8)]
        L = [f"  v_pk_add_f32 {p(e+2*i)}, {p(e+2*i)}, 1.0 op_sel_hi:[1,0]" for i in range(4)]
        L += [f"  v_rcp_f32 v{t+i}, v{e+i}" for i in range(8)]
        L += [f"  v_pk_mul_f32 {p(sres)}, {p(d)}, {p(t)}"]
        L += [f"  v_pk_fma_f32 {p(sres)}, {p(d+2*i)}, {p(t+2*i)}, {p(sres)}" for i in range(1, 4)]
        return ex, L
    def zipl(x, y):
        o = []
        for i in range(max(len(x), len(y))):
            if i < len(x): o.append(x[i])
            if i < len(y): o.append(y[i])
        return o
    def adds(t, kind):
        if OPT["noadd"]: return [f"  ds_read_b32 v{DUM}, v{vgq}"] * (2 if kind == "octo" else 4)
        if kind == "octo": return [f"  ds_add_f64 v{AD+2*xy}, {v(CV+2*xy,2)} offset:{256*t}" for xy in range(2)]
        return [f"  ds_add_f64 v{AD+2*xy+o}, {v(CV+2*(2*o+xy),2)} offset:{256*t}" for o in range(2) for xy in range(2)]
    def block_body(kind, u, nun):
        oc = octet_safe if kind == "safe" else octet_fast
        nadd = 2 if kind == "octo" else 4
        B = []
        for t in range(4):
            D = D0 if t % 2 == 0 else D1
            Dn = D1 if t % 2 == 0 else D0
            exa, La = oc(D, EA, TA, RA, SA)
            exb, Lb = oc(D+8, EB, TB, RB, SB)
            ex = exa + exb
            ch = chain((t+1) % 4, Dn)
            late = []
            if kind == "octo":
                keep = lambda L: [x for x in L[:-1] if "v_rcp" not in x]
                dk = DK + 2*(t & 1)
                pk = zipl(keep(La), keep(Lb))
                pk = pk[:-4] + [f"  v_pk_mul_f32 {p(dk)}, {p(TA)}, {p(TB)}"] + pk[-4:-2] + \
                     [f"  v_rcp_f32 v{RA}, v{dk}", f"  v_rcp_f32 v{RA+1}, v{dk+1}"] + pk[-2:] + \
                     [f"  v_pk_mul_f32 {p(TA+4)}, {p(TA+4)}, {p(TB)}"]
                if t & 1: pk.append(f"  v_pk_fma_f32 {p(MAC)}, {p(DK)}, {p(DK+2)}, {p(MAC)}")
                pk += [f"  v_pk_fma_f32 {p(TA+4)}, {p(TB+4)}, {p(TA)}, {p(TA+4)}",
                       f"  v_pk_mul_f32 {p(SA)}, {p(TA+4)}, {p(RA)}"]
                fin = [f"  v_cvt_f64_f32 {v(CV+2*xy,2)}, v{SA+xy}" for xy in range(2)]
                adr = (0, 2)
            else:
                pk = zipl(La, Lb)
                if kind == "quad":
                    idx = max(i for i, x in enumerate(pk) if x.startswith(f"  v_pk_mul_f32 {p(TB)}, {p(EB)}"))
                    pk.insert(idx+1, f"  v_pk_fma_f32 {p(MAC)}, {p(TA)}, {p(TB)}, {p(MAC)}")
                fin = [f"  v_cvt_f64_f32 {v(CV+2*(2*o+xy),2)}, v{S+xy}" for o, S in ((0, SA), (1, SB)) for xy in range(2)]
                adr = range(4)
            fin += adds(t, kind)
            if t == 0:
                pk = pk[:4] + [f"  v_mad_u32_u24 v{AD+i}, v{GN+i}, s{sAS}, v{vacl}" for i in adr] + pk[4:]
            if t == 1:
                pk = pk[:8] + [f"  ds_read_b64 {v(ENT,2)}, v{vent} offset:{4096+2048*u}",
                      f"  ds_read_b32 v{vgn1}, v{vgq} offset:{256+256*u}",
                      f"  ds_read_b32 v{vsrow}, v{vrow} offset:{2048+2048*u}",
                      f"  ds_read_b128 {v(GN,4)}, v{vga} offset:{256+256*u}"] + pk[8:]
            if t == 3:
                B.append(f"  s_waitcnt lgkmcnt({nadd})")
            dma = dma_issue() if t == 3 else []
            per = 16 // len(ch); e = 0
            for i, m in enumerate(ch):
                B.append(m)
                n = per if i < len(ch)-1 else 16 - e
                B += ex[e:e+2]
                if late: B.append(late.pop(0))
                B += ex[e+2:e+n]; e += n
                if OPT["dmapos"] == 0:
                    for _ in range(2):
                        if dma: B += dma.pop(0)
            if t == 2:
                mid = [f"  s_waitcnt vmcnt(0) lgkmcnt({nadd})",
                       f"  v_mad_u32_u24 v{vqa}, v{vgn1}, s{sQS}, v{vqlane}"]
                rd = frag_reads() + bq_reads()
                aq = [f"  v_lshrrev_b64 {v(AQ,2)}, v{vsrow}, {v(PAT,2)}"]
                if OPT["rdgap"] == 0: B += mid + rd + aq + pk
                else:
                    q = []
                    for i, x in enumerate(aq + pk):
                        if rd and i % OPT["rdgap"] == 0: q.append(rd.pop(0))
                        q.append(x)
                    B += mid + q + rd
            elif t == 3:
                inc = []
                if u == nun - 1 and OPT["bench"]:
                    inc = [f"  v_add_u32 v{DUM+i}, {2048*nun}, v{vent}" for i in range(4)]
                elif u == nun - 1:
                    inc = incs(nun)
                pk = pk + inc
                if OPT["dmapos"] == 1:
                    q = []
                    for i, x in enumerate(pk):
                        if dma and i % 3 == 0: q += dma.pop(0)
                        q.append(x)
                    pk = q
                for x in dma: B += x
                B += pk
            else:
                B += pk
            B += fin
        return B
    def incs(n):
        return [f"  v_add_u32 v{vent}, {2048*n}, v{vent}", f"  v_add_u32 v{vrow}, {2048*n}, v{vrow}",
                f"  v_add_u32 v{vgq}, {256*n}, v{vgq}", f"  v_add_u32 v{vga}, {256*n}, v{vga}"]
    def loop(kind):
        lab = {"safe": "K_SAFE", "quad": "K_QUAD", "octo": "K_FAST"}[kind]
        nun = OPT["unroll"] if kind == "octo" else 1
        cnt = sCO if kind == "octo" else sCnt
        L = []
        for u in range(nun):
            L += block_body(kind, u, nun)
            L.append(f"  s_sub_u32 s{cnt}, s{cnt}, 1")
            L.append(f"  s_cmp_lg_u32 s{cnt}, 0")
            L.append(f"  s_cbranch_scc1 {lab}" if u == nun - 1 else f"  s_cbranch_scc0 K_OX{u}")
        ab = OPT["abl"]
        if ab & 1: L = [x for x in L if not ("v_mfma" in x and (f", {v(I0,4)}," in x or f", {v(I1,4)}," in x))]
        if ab & 2: L = [x for x in L if "v_mfma_f32_32x32x8" not in x and "tr_b16" not in x]
        if ab & 4: L = [x.replace("v_exp_f32", "v_mov_b32") for x in L]
        if ab & 8: L = [x for x in L if "v_pk_" not in x]
        if ab & 16: L = [x for x in L if "v_mfma" not in x]
        if ab & 32: L = [x for x in L if "ds_read_b128" not in x]
        if ab & 64: L = [x for x in L if "v_exp" not in x]
        if ab & 128:
            M = []
            for x in L:
                if "v_mfma" in x and f", {v(I1,4)}," in x: continue
                if "v_mfma" in x and f", {v(I0,4)}," in x:
                    m = re.match(r"\s*v_mfma_f32_32x32x16_bf16 (v\[\d+:\d+\]), v\[(\d+):", x)
                    M.append(f"  v_smfmac_f32_32x32x32_bf16 {m.group(1)}, {v(I0,4)}, {v(int(m.group(2)),8)}, v{vone}"); continue
                m = re.match(r"\s*ds_read_b128 v\[(\d+):\d+\], v(\d+) offset:(\d+)", x)
                if m and PF <= int(m.group(1)) < PF + 32:
                    r0 = int(m.group(1))
                    M.append(f"  ds_read_b64_tr_b16 {v(r0,2)}, v{vqa} offset:{m.group(3)}")
                    M.append(f"  ds_read_b64_tr_b16 {v(r0+2,2)}, v{vqa} offset:{int(m.group(3))+128}"); continue
                M.append(x)
            L = M
        if ab & 256:
            M = []
            for x in L:
                if "v_mfma" in x and (f", {v(I1,4)}," in x or f", {v(I0,4)}," in x): continue
                if "v_mfma_f32_32x32x16" in x and x.rstrip().endswith(", 0"): x = x.rstrip()[:-1] + v(PF, 16)
                m = re.match(r"\s*ds_read_b128 v\[(\d+):\d+\], v(\d+) offset:(\d+)", x)
                if m and PF <= int(m.group(1)) < PF + 32:
                    for q in range(8): M.append(f"  ds_read_u16_d16_hi v{PF+(int(m.group(1))+q)%32}, v{vacl} offset:{64*q}")
                    continue
                M.append(x)
            L = M
        if OPT["align"]: L = align8(L)
        a(f".p2align 6\n{lab}:")
        for x in L: a(x)
    loop("octo")
    a(f"""
K_OXE:
  s_cmp_lg_u32 s{sCnt}, 0
  s_cbranch_scc1 K_QUAD""")
    a(f"""
K_LOOPEND:""")
    a(f"""
  s_waitcnt vmcnt(0) lgkmcnt(0)
  s_barrier""")
    stamp(a, 9, 98)
    a(f"""
  s_cmp_lg_u32 s{sKind}, 0
  s_cbranch_scc1 K_NEXT
K_CELLSDONE:
  v_mov_b32 v{t0}, {L_FLG+32}
  ds_read_b128 {v(CV,4)}, v{t0}
K_CONV:
  s_mul_i32 s{sTmp}, s{sW}, {AS}
  s_add_u32 s{sTmp}, s{sTmp}, {L_ACC}
  v_lshlrev_b32 v{t1}, 4, v{vl}
  v_add_u32 v{t1}, s{sTmp}, v{t1}""")
    for k in range(5):
        a(f"  ds_read_b128 {v(D0+4*k,4)}, v{t1} offset:{k*8*AS}")
    a(f"""
  s_mul_i32 s{sTmp}, s{sW}, {XS}
  s_add_u32 s{sTmp}, s{sTmp}, {L_X}
  v_lshlrev_b32 v{t2}, 2, v{vl}
  v_add_u32 v{t2}, s{sTmp}, v{t2}
  s_cmp_ge_u32 s{sKind}, 3
  s_cbranch_scc1 K_CONV2
  s_waitcnt lgkmcnt(5)
  v_or3_b32 v{t0}, v{CV}, v{CV+1}, v{CV+2}
  v_or_b32 v{t0}, v{t0}, v{CV+3}
  v_cmp_ne_u32 vcc, 0, v{t0}
  s_cbranch_vccnz K_STARTOV
K_CONV2:
  s_mov_b32 s{sTmp}, 0x71800000              ; 2^100
  v_cmp_nle_f32 {s(sBad,2)}, v{MAC}, s{sTmp}
  v_cmp_nle_f32 vcc, v{MAC+1}, s{sTmp}
  s_or_b64 {s(sBad,2)}, {s(sBad,2)}, vcc
  s_movk_i32 s{sTmp}, 0x207""")
    for k in range(5):
        a(f"""
  s_waitcnt lgkmcnt({4-k})
  v_cvt_f32_f64 v{EA+2*k}, {v(D0+4*k,2)}
  v_cvt_f32_f64 v{EA+2*k+1}, {v(D0+4*k+2,2)}
  v_cmp_class_f32 vcc, v{EA+2*k}, s{sTmp}
  s_or_b64 {s(sBad,2)}, {s(sBad,2)}, vcc
  v_cmp_class_f32 vcc, v{EA+2*k+1}, s{sTmp}
  s_or_b64 {s(sBad,2)}, {s(sBad,2)}, vcc
  v_cvt_pk_bf16_f32 v{EB+k}, v{EA+2*k}, v{EA+2*k+1}""")
    for k in range(5):
        a(f"  ds_write_b32 v{t2}, v{EB+k} offset:{k*8*XS}")
    a(f"""
  s_cmp_eq_u64 {s(sBad,2)}, 0
  s_cbranch_scc1 K_OKW
  v_mov_b32 v{t0}, {L_FLG}
  ds_write_b32 v{t0}, v{vone}
K_OKW:
  s_waitcnt lgkmcnt(0)
  s_barrier
  v_mov_b32 v{t0}, {L_FLG}
  ds_read_b32 v{t0}, v{t0}""")
    for nt in range(2):
        for st in range(4):
            a(f"  ds_read_b128 {v(XF+16*nt+4*st,4)}, v{vxb} offset:{nt*16*XS + st*64}")
    a(f"""
  s_waitcnt lgkmcnt(8)
  v_readfirstlane_b32 s{sTmp}, v{t0}
  s_cmp_gt_u32 s{sTmp}, s{sMode}
  {"s_cbranch_scc1 K_RESTART" if not EXP else "s_nop 0"}
  s_waitcnt lgkmcnt(4)""")
    for st in range(4):
        c = "0" if st == 0 else v(D0, 4)
        a(f"  v_mfma_f32_16x16x32_bf16 {v(D0,4)}, {v(WUB+4*st,4)}, {v(XF+4*st,4)}, {c}")
    for st in range(4):
        a(f"  ds_read_b128 {v(D1+4*st,4)}, v{vxb} offset:{2*16*XS + st*64}")
    a("  s_waitcnt lgkmcnt(4)")
    for st in range(4):
        c = "0" if st == 0 else v(D0+4, 4)
        a(f"  v_mfma_f32_16x16x32_bf16 {v(D0+4,4)}, {v(WUB+4*st,4)}, {v(XF+16+4*st,4)}, {c}")
    a("  s_waitcnt lgkmcnt(0)")
    for st in range(4):
        c = "0" if st == 0 else v(D0+8, 4)
        a(f"  v_mfma_f32_16x16x32_bf16 {v(D0+8,4)}, {v(WUB+4*st,4)}, {v(D1+4*st,4)}, {c}")
    a(f"""
  s_mov_b32 s{sK}, {NLN2}
  s_mov_b32 s{sK+1}, {NLN2}
  s_mov_b32 s{sTmp}, {NLOG2E}
  s_mov_b32 s{sTmp+1}, {NLOG2E}
  v_and_b32 v{t0}, 15, v{vl}
  v_lshlrev_b32 v{t0}, 8, v{t0}
  v_lshrrev_b32 v{t1}, 4, v{vl}
  v_lshl_add_u32 v{t0}, v{t1}, 3, v{t0}
  s_lshl_b32 s{sTmp+2}, s{sW}, 5
  v_add_u32 v{t0}, s{sTmp+2}, v{t0}
  v_add_u32 v{t1}, 4096, v{t0}
  v_add_u32 v{t2}, 8192, v{t0}""")
    for nt in range(3):
        d = D0 + 4*nt
        a(f"""
  v_pk_fma_f32 {p(d)}, {p(d)}, {s(sK,2)}, {p(U+4*nt)}
  v_pk_fma_f32 {p(d+2)}, {p(d+2)}, {s(sK,2)}, {p(U+4*nt+2)}
  v_pk_mul_f32 {p(EA)}, {p(d)}, {s(sTmp,2)}
  v_pk_mul_f32 {p(EA+2)}, {p(d+2)}, {s(sTmp,2)}""")
        for i in range(4): a(f"  v_exp_f32 v{EA+i}, v{EA+i}")
        a(f"  s_nop 0\n  v_pk_add_f32 {p(EA)}, {p(EA)}, 1.0 op_sel_hi:[1,0]\n  v_pk_add_f32 {p(EA+2)}, {p(EA+2)}, 1.0 op_sel_hi:[1,0]")
        for i in range(4): a(f"  v_rcp_f32 v{EA+i}, v{EA+i}")
        a(f"""
  s_nop 0
  v_pk_mul_f32 {p(d)}, {p(d)}, {p(EA)}
  v_pk_mul_f32 {p(d+2)}, {p(d+2)}, {p(EA+2)}
  v_cvt_pk_bf16_f32 v{EB+2*nt}, v{d}, v{d+1}
  v_cvt_pk_bf16_f32 v{EB+2*nt+1}, v{d+2}, v{d+3}
  buffer_store_dwordx2 {v(EB+2*nt,2)}, v{t0+nt}, {s(SO,4)}, 0 offen""")
    if OPT["stamp"]:
        a(f"""
  s_waitcnt vmcnt(0)
  s_memrealtime s[4:5]
  s_waitcnt lgkmcnt(0)
  s_lshl_b32 s6, s2, 3
  s_add_u32 s6, s6, s{sW}
  s_lshl_b32 s6, s6, 6
  s_add_u32 s6, s6, {WS_STAMP}
  s_add_u32 s6, s{pWS}, s6
  s_addc_u32 s7, s{pWS+1}, 0
  s_mov_b64 exec, 1
  v_mov_b32 v1, 0""")
        for i, r in enumerate([80+2*i for i in range(8)] + [96, 98, 4]):
            pass
        regs = [80, 82, 84, 86, 88, 90, 92, 94, 8, 9, 4, 10, 11, sT]
        for i, r in enumerate(regs):
            a(f"  v_mov_b32 v2, s{r}\n  global_store_dword v1, v2, s[6:7] offset:{4*i}")
    a(f"""
K_END:
  s_endpgm
""")
    a(f"""
K_PREP:
  s_sub_u32 s{sq}, s2, {2*G}
  s_lshl_b32 s{sq}, s{sq}, 14
  s_lshl_b32 s{sq+1}, s{sW}, 12
  s_add_u32 s{sq}, s{sq}, s{sq+1}
  v_lshlrev_b32 v{t0}, 4, v{vl}
  v_mov_b32 v{t7}, s{sTag}
  s_waitcnt vmcnt(10)
  s_barrier""")
    wtr(PF, vqa)
    a("  s_waitcnt lgkmcnt(0)")
    for st in range(4):
        a(f"  buffer_store_dwordx4 {v(PF+4*st,4)}, v{t0}, {s(SW,4)}, s{sq} offen offset:{st*1024} sc1")
    a(f"""
  s_lshr_b32 s{sq}, s{sW}, 2
  s_add_u32 s{sq}, s{sq}, s2
  s_cmp_lg_u32 s{sq}, {2*G}
  s_cbranch_scc1 K_PREPD
  s_mov_b32 s{sq+1}, {NLOG2E}
  s_lshl_b32 s{sq}, s{sW}, 10
  s_waitcnt vmcnt(6)""")
    for jj in range(8):
        a(f"  v_lshlrev_b32 v{D0+jj}, 16, v{D0+jj}\n  v_mul_f32 v{D0+jj}, s{sq+1}, v{D0+jj}")
    for i in range(4):
        a(f"  v_cvt_pk_bf16_f32 v{D0+8+i}, v{D0+2*i}, v{D0+1+2*i}")
    for i in range(4):
        a(f"""
  v_lshlrev_b32 v{t2}, 16, v{D0+8+i}
  v_and_b32 v{t3}, 0xffff0000, v{D0+8+i}
  v_sub_f32 v{t2}, v{D0+2*i}, v{t2}
  v_sub_f32 v{t3}, v{D0+1+2*i}, v{t3}
  v_cvt_pk_bf16_f32 v{D0+12+i}, v{t2}, v{t3}""")
    a(f"""
  s_add_u32 s{sq+1}, s{sq}, {WF_3L}
  s_add_u32 s{sq}, s{sq}, {WF_3H}
  buffer_store_dwordx4 {v(D0+8,4)}, v{t0}, {s(SW,4)}, s{sq} offen sc1
  buffer_store_dwordx4 {v(D0+12,4)}, v{t0}, {s(SW,4)}, s{sq+1} offen sc1
K_PREPD:""")
    own_x(4)
    a(f"""
  s_waitcnt vmcnt(0)
  s_barrier
  s_cmp_eq_u32 s{sW}, 0
  s_cbranch_scc1 K_FLAG
  s_branch K_PST""")
    a(f"""
K_OVF:
  s_waitcnt lgkmcnt(0)
  s_barrier
  s_mul_i32 s{sq+1}, s2, {OVSTR//2}
  s_add_u32 s{sq+1}, s{sq+1}, 64
  v_mov_b32 v{t5}, {L_FLG+8}
  v_mov_b32 v{t6}, -1""")
    for j in range(5):
        a(f"""
  v_cmp_le_u32 vcc, {CAP-1}, v{RK+j}
  s_and_b64 exec, exec, vcc
  s_cbranch_execz K_OV{j}
  v_add_u32 v{t1}, {L_BCNT}, v{B4+j}
  ds_read_b32 v{t1}, v{t1}
  s_waitcnt lgkmcnt(0)
  v_cmp_ne_u32 vcc, {CAP}, v{t1}
  s_nop 1
  v_cndmask_b32 v{t3}, v{SS_+j}, v{t6}, vcc
  ds_write_b32 v{CA+j}, v{t3} offset:{CELLB-8}
  s_and_b64 exec, exec, vcc
  s_cbranch_execz K_OV{j}
  ds_add_rtn_u32 v{t1}, v{t5}, v{vone}
  v_mov_b32 v{CV}, v{SS_+j}
  v_lshrrev_b32 v{CV+1}, 2, v{B4+j}
  s_waitcnt lgkmcnt(0)
  v_lshl_add_u32 v{t1}, v{t1}, 3, s{sq+1}
  buffer_store_dwordx2 {v(CV,2)}, v{t1}, {s(SV,4)}, 0 offen sc1
  s_waitcnt vmcnt(0)
K_OV{j}:
  s_mov_b64 exec, -1""")
    a(f"""
  s_waitcnt lgkmcnt(0)
  s_barrier
  ds_read_b32 v{t1}, v{t5}
  s_sub_u32 s{sq+1}, s{sq+1}, 64
  v_mov_b32 v{t3}, s{sq+1}
  v_mov_b32 v{t2}, 0
  s_waitcnt lgkmcnt(0)
  buffer_store_dword v{t1}, v{t3}, {s(SV,4)}, 0 offen sc1
  s_waitcnt vmcnt(0)
  s_branch K_OVFDONE""")
    for u in range(OPT["unroll"] - 1):
        a(f"K_OX{u}:\n  s_cmp_eq_u32 s{sCnt}, 0\n  s_cbranch_scc1 K_LOOPEND")
        for x in incs(u + 1): a(x)
        a("  s_branch K_QUAD")
    loop("quad")
    a("  s_branch K_LOOPEND")
    loop("safe")
    a("  s_branch K_LOOPEND")
    a(f"""
K_NOGEMM0:
  s_waitcnt vmcnt(0)
  s_branch K_NOGEMM
K_RESTART:
  s_mov_b32 s{sMode}, 1
  s_mov_b32 s{sKind}, 0
  s_waitcnt lgkmcnt(0)
  s_barrier
  v_mov_b32 v{CV}, 0
  v_mov_b32 v{CV+1}, 0
  v_mov_b32 v{CV+2}, 0
  v_mov_b32 v{CV+3}, 0""")
    for j in range(5):
        a(f"  ds_write_b128 v{vt16}, {v(CV,4)} offset:{L_ACC + j*8192}")
    a(f"""
  v_cmp_gt_u32 vcc, {(40*AS-5*8192)//16}, v0
  s_and_saveexec_b64 {s(sEx,2)}, vcc
  ds_write_b128 v{vt16}, {v(CV,4)} offset:{L_ACC + 5*8192}
  s_mov_b64 exec, {s(sEx,2)}
  s_branch K_RELOAD
K_SPLIT:
  s_mov_b32 s{sKind}, 1
  s_waitcnt lgkmcnt(0)
  s_barrier
  s_branch K_RELOAD
K_NEXT:
  s_cmp_eq_u32 s{sKind}, 4
  s_cbranch_scc1 K_NEXTOV
  s_cmp_eq_u32 s{sKind}, 3
  s_cbranch_scc1 K_OVPART1
  s_cmp_eq_u32 s{sKind}, 2
  s_cbranch_scc1 K_CELLSDONE
  s_mov_b32 s{sKind}, 2
K_RELOAD:
  v_lshrrev_b32 v{t1}, 2, v0
  s_mov_b32 s{sq}, {CH*32}
  v_mul_u32_u24 v{vebase}, s{sq}, v{t1}
  s_waitcnt vmcnt(0)""")
    for k in range(2):
        a(f"  buffer_load_dwordx4 {v(REC+4*k,4)}, v{vcell}, {s(SC,4)}, 0 offen offset:{64*k} sc1")
    a(f"""
  s_waitcnt vmcnt(0)
  s_mov_b32 exec_lo, 0xaaaaaaaa
  s_mov_b32 exec_hi, 0xaaaaaaaa
  v_mov_b32 v{REC+3}, 0
  v_mov_b32 v{REC+7}, 0
  s_mov_b64 exec, -1
  s_cmp_eq_u32 s{sKind}, 0
  s_cbranch_scc1 K_ROUND
  s_lshr_b32 s{sq}, s{sW}, 2
  s_add_u32 s{sq}, s{sq}, 1
  s_cmp_eq_u32 s{sq}, s{sKind}
  s_cbranch_scc1 K_ROUND""")
    for k in range(NR): a(f"  v_mov_b32 v{REC+k}, 0")
    a(f"""
K_ROUND:
  v_mov_b32 v{CV}, 0
  v_mov_b32 v{CV+1}, 0
  v_mov_b32 v{CV+2}, 0
  v_mov_b32 v{CV+3}, 0
  v_cmp_gt_u32 vcc, {(L_FLG-L_GN)//16}, v0
  s_and_saveexec_b64 {s(sEx,2)}, vcc
  ds_write_b128 v{vt16}, {v(CV,4)} offset:{L_GN}
  s_mov_b64 exec, {s(sEx,2)}""")
    prefill()
    a(f"""
  v_and_b32 v{vent}, 2047, v{vent}
  v_and_b32 v{vrow}, 2047, v{vrow}
  v_subrev_u32 v{vga}, {L_GN}, v{vga}
  v_and_b32 v{vga}, 255, v{vga}
  v_add_u32 v{vga}, {L_GN}, v{vga}
  v_and_b32 v{t2}, 12, v{vl}
  v_add_u32 v{vgq}, v{vga}, v{t2}
  s_waitcnt lgkmcnt(0)
  s_barrier
  s_branch K_PHASE1
K_STARTOV:""")
    for i in range(4): a(f"  v_readfirstlane_b32 s{sOV+i}, v{CV+i}")
    a(f"""
  s_mov_b32 s{sKind}, 4
  s_waitcnt lgkmcnt(0)
K_NEXTOV:""")
    for i in range(2):
        a(f"""
  s_ff1_i32_b64 s{sP}, {s(sOV+2*i,2)}
  s_cmp_eq_u32 s{sP}, -1
  s_cbranch_scc1 K_OVN{i}
  s_bitset0_b64 {s(sOV+2*i,2)}, s{sP}
  s_add_u32 s{sP}, s{sP}, {64*i}
  s_branch K_OVGO
K_OVN{i}:""")
    a(f"""
  s_branch K_CONV
K_OVGO:
  s_mov_b32 s{sKind}, 3
  v_mov_b32 v{t4}, v0
  s_branch K_OVLD
K_OVPART1:
  s_mov_b32 s{sKind}, 4
  v_add_u32 v{t4}, 2048, v0
K_OVLD:
  s_mul_i32 s{sq}, s{sP}, {OVSTR}
  s_mul_i32 s{sq+1}, s{sP}, {CH*32}
  v_mov_b32 v{vebase}, s{sq+1}
  v_mov_b32 v{t0}, s{sq}
  buffer_load_dword v{t1}, v{t0}, {s(SV,4)}, 0 offen sc1
  v_lshl_add_u32 v{t2}, v{t4}, 3, v{t0}""")
    for k in range(4):
        a(f"  buffer_load_dwordx2 {v(PF+2*k,2)}, v{t2}, {s(SV,4)}, 0 offen offset:64 sc1\n  v_add_u32 v{t2}, 4096, v{t2}")
    a(f"  s_waitcnt vmcnt(0)")
    for k in range(4):
        a(f"""
  v_cmp_lt_u32 vcc, v{t4}, v{t1}
  v_cmp_eq_u32 {s(sEx,2)}, s2, v{PF+2*k+1}
  s_and_b64 vcc, vcc, {s(sEx,2)}
  v_add_u32 v{t4}, 512, v{t4}
  s_nop 1
  v_cndmask_b32 v{REC+k}, 0, v{PF+2*k}, vcc""")
    for k in range(4, NR): a(f"  v_mov_b32 v{REC+k}, 0")
    a("  s_branch K_ROUND")
    return a.text(), nv, NS

def gen_diag(idx):
    a = Asm()
    a(f"""
.globl mpnn_d_kernel
.p2align 8
.type mpnn_d_kernel,@function
mpnn_d_kernel:
  s_cmp_ge_u32 s2, 1
  s_cbranch_scc1 D_END
  s_load_dwordx2 s[4:5], s[0:1], 64
  s_waitcnt lgkmcnt(0)
  s_add_u32 s4, s4, {WS_STAMP + (OPT['wsb'] << 20)}
  s_addc_u32 s5, s5, 0
  s_load_dword s6, s[4:5], 0
  s_waitcnt lgkmcnt(0)
  s_sub_u32 s6, s6, 100000""")
    for q, (ix, ismax) in enumerate(((idx, 1), (0, 0))):
        op = "max" if ismax else "min"
        a(f"  v_lshlrev_b32 v1, {6 if not OPT['dodd'] else 10}, v0\n  v_add_u32 v1, {ix*4 + (512 if OPT['dodd'] else 0)}, v1\n  v_mov_b32 v3, {0 if ismax else -1}")
        nk = 32 if not OPT['dodd'] else 2
        for k in range(nk):
            a(f"  global_load_dword v{8+k}, v1, s[4:5]\n  v_add_u32 v1, {4096 if not OPT['dodd'] else 65536}, v1")
        a("  s_waitcnt vmcnt(0)")
        for k in range(nk):
            a(f"  v_subrev_u32 v2, s6, v{8+k}\n  v_{op}_u32 v3, v3, v2")
        a(f"  s_mov_b32 s{20+q}, {0 if ismax else -1}\n  s_nop 1")
        for l in range(64):
            a(f"  v_readlane_b32 s8, v3, {l}\n  s_nop 0\n  s_{op}_u32 s{20+q}, s{20+q}, s8")
    a(f"""
  s_sub_u32 s20, s20, s21
  s_min_u32 s20, s20, 20000
  s_lshl_b32 s20, s20, 3
  {'s_mov_b32 s20, 0' if OPT['dz'] else ''}
  s_memrealtime s[8:9]
  s_waitcnt lgkmcnt(0)
D_L:
  s_memrealtime s[10:11]
  s_waitcnt lgkmcnt(0)
  s_sub_u32 s12, s10, s8
  s_cmp_lt_u32 s12, s20
  s_cbranch_scc1 D_L
D_END:
  s_endpgm
""")
    return a.text()

HEAD = """; Kernarg layout for this problem (72 bytes, ptrs only, base s[0:1]):
"""
def main():
    k, nv, ns = gen()
    out = HEAD + f"; @launch grid=({NB},1,1) block=(512,1,1) lds={LDS}\n"
    if OPT["diag"] >= 0:
        out = HEAD + f"; @launch kernel={KN} grid=({NB},1,1) block=(512,1,1) lds={LDS}\n; @launch kernel=mpnn_d_kernel grid=(1,1,1) block=(64,1,1) lds=0\n"
        k += gen_diag(OPT["diag"])
    out += '.amdgcn_target "amdgcn-amd-amdhsa--gfx950"\n.text\n' + k
    out += f""".section .rodata,"a"
.p2align 6
.amdhsa_kernel {KN}
  .amdhsa_next_free_vgpr {nv}
  .amdhsa_next_free_sgpr {ns}
  .amdhsa_accum_offset {(nv+3)//4*4}
  .amdhsa_group_segment_fixed_size 0
  .amdhsa_kernarg_size 72
  .amdhsa_user_sgpr_count 2
  .amdhsa_user_sgpr_kernarg_segment_ptr 1
  .amdhsa_system_sgpr_workgroup_id_x 1
.end_amdhsa_kernel
"""
    if OPT["diag"] >= 0:
        out += """.p2align 6
.amdhsa_kernel mpnn_d_kernel
  .amdhsa_next_free_vgpr 48
  .amdhsa_next_free_sgpr 32
  .amdhsa_accum_offset 48
  .amdhsa_group_segment_fixed_size 0
  .amdhsa_kernarg_size 72
  .amdhsa_user_sgpr_count 2
  .amdhsa_user_sgpr_kernarg_segment_ptr 1
  .amdhsa_system_sgpr_workgroup_id_x 1
.end_amdhsa_kernel
"""
    open(sys.argv[1], "w").write(out)
    print("vgprs", nv, "lds", LDS)
main()
```

```python
from common import *

N = 10000; E = 320000
G = 125
CH = 2560
NB = 256
MAGIC = 26843
CAP = 28
CELLB = 128
BSTR = G * CELLB

WS_P = 256
WS_CELL = 0x280000
WS_WF = 0x1280000
WF_W2, WF_UT, WF_UB, WF_3H, WF_3L = 0, 32768, 65536, 98304, 102400
WF_SIZE = 106496
WS_OVF = 0x12A0000
OVSTR = 64 + CH * 8
WS_FLAG = 0x1520000
WS_STAMP = 0x1600000

OPT = dict(lo=0, k8=1, stamp=0, nodma=0, noadd=0, noe=0, hot=0, align=1, unroll=2, dmapos=0, rdpos=0, dsc=1, pf=1, slp=0, stf=1, addpos=0, rdgap=0, prio=0, bench=0, octo=1, frep=8, fln=16, slp0=0, plf=1, flf=1, diag=-1, touch=0, dz=0, abl=0, dodd=0, wsb=0)
for a_ in sys.argv[2:]:
    k_, v_ = a_.split("="); OPT[k_] = int(v_)
EXP = OPT["bench"] or OPT["nodma"] or OPT["noe"] or OPT["noadd"] or OPT["hot"]

FL_ = ['', 'sc1', 'sc0 sc1', 'sc1 nt', 'sc0 sc1 nt']; PLF = FL_[OPT['plf']]; FLF = FL_[OPT['flf']]
STF = ['', 'sc1', 'sc0 sc1', 'sc1 nt'][OPT['stf']]
FREP = OPT['frep']; FLN = OPT['fln']; FSH = (128//FLN).bit_length()-1; FHALF = FREP*FLN*256; FNON = 2*FHALF; FMASK = hex((1<<FREP)-1)
CAPB = 70
L_ENT = 0
L_GN = (CAPB + 1) * 256
L_CNT = L_GN + (CAPB + 17) * 32
L_FLG = L_CNT + 256
L_ACC = L_FLG + 64
AS = 1040
L_Q = L_ACC + 40 * AS
QS = 320
L_X = L_Q + 40 * QS
XS = 288
L_STG = L_X + 40 * XS
STG = 8 * 1040 + 1024
LDS = L_STG + 8 * STG
L_CIMG = L_STG
L_BCNT = L_CIMG + NB * CELLB
WPITCH = 1088
L_GP = L_STG + 1024
L_WS = L_STG + 32 * WPITCH
assert L_BCNT + 1024 <= LDS and L_STG % 16 == 0 and L_ACC % 16 == 0
PADS, PADE = 0x8000003f, 0x80000000
KN = "standalone__mpnn_edge_mlp__graph_kernel"

def stamp(a, i, cyc=None):
    if OPT["stamp"]:
        if cyc is None:
            a(f"  s_memrealtime s[{80+2*i}:{81+2*i}]\n  s_waitcnt lgkmcnt(0)")
        else:
            a(f"  s_memrealtime s[96:97]\n  s_memtime s[98:99]\n  s_waitcnt lgkmcnt(0)\n  s_mov_b32 s{i}, s96\n  s_mov_b32 s{i+2}, s98")

def gen():
    a = Asm()
    R = Regs(1)
    al = R.alloc
    vl = al("lane")
    t0 = al("t", 8, 2); t1, t2, t3, t4, t5, t6, t7 = range(t0+1, t0+8)
    vchunk = al("vchunk"); vechunk = al("vechunk")
    vent = al("vent"); vrow = al("vrow"); vgq = al("vgq"); vga = al("vga")
    vAlo = al("Alo"); vAhi = al("Ahi"); vEF = al("vEF")
    vqlane = al("vqlane"); vacl = al("vacl"); vxb = al("vxb"); vqw = al("vqw")
    vebase = al("vebase"); vone = al("vone"); vt16 = al("vt16"); vcell = al("vcell")
    vqa = al("vqa"); vsrow = al("vsrow"); vgn1 = al("vgn1")
    ENT = al("ENT", 2, 2)
    MAC = al("MAC", 2, 2)
    PAT = al("PAT", 2, 2)
    nq = 2 if OPT["k8"] else 4
    AQ = al("AQ", nq, 2)
    GN = al("GN", 4, 2); AD = al("AD", 4)
    DO = al("DO", 2)
    I0 = al("I0", 4, 2); I1 = al("I1", 4, 2)
    W3 = al("W3", 16, 2)
    W3L = al("W3L", 16, 2) if OPT["lo"] else None
    BQ = al("BQ", 4*nq, 2)
    EF = al("EF", 4, 2)
    PF = al("PF", 32, 2)
    D0 = al("D0", 16, 2); D1 = al("D1", 16, 2)
    EA = al("EA", 8, 2); TA = al("TA", 8, 2); EB = al("EB", 8, 2); TB = al("TB", 8, 2)
    RA = al("RA", 2, 2); RB = al("RB", 2, 2)
    SA = al("SA", 2, 2); SB = al("SB", 2, 2)
    CV = al("CV", 8, 2)
    U = al("U", 12, 2); WUB = al("WUB", 16, 2)
    DUM = al("DUM", 4, 2)
    DK = al("DK", 4, 2)
    nv = R.n
    assert TA == EA + 8 and EB == EA + 16 and TB == EA + 24 and D1 == D0 + 16
    DD = D0; SS_ = D0 + 5; B4 = D0 + 10; RK = D0 + 15; CA = D0 + 20
    CP = PF
    GX = W3
    XL = U
    W1F = WUB
    REC = D0; NOD = D0 + 8; RNK = D1
    W2F = EA; WUT = EB; XF = PF; QD = CV
    sW = 3
    pX, pE, pS, pD, pWM, pWU, pO, pWS = 4, 6, 8, 10, 12, 14, 16, 18
    SP, SE, SC, SW, SO, SV, SF = 20, 24, 28, 32, 36, 40, 44
    T0, T1, T2 = 48, 52, 56
    sStart, sNb, sStg, sCnt, sT, sMode, sKind, sFirst = 60, 61, 62, 63, 64, 65, 66, 67
    sAS, sQS, sTag, sP, sUB, sLo2 = 68, 69, 70, 71, 72, 73
    sCO = 59
    sNp = 79
    sEx, sK, sBad = 74, 76, 78
    sTmp = 4
    sA = 48
    sOV = 48
    sOVT = 74
    sq = 100
    if OPT["stamp"]: NS = 102
    else: NS = 102

    a(f"""
.globl {KN}
.p2align 8
.type {KN},@function
{KN}:
  s_cmp_ge_u32 s2, {NB}
  s_cbranch_scc1 K_END""")
    if OPT["stamp"]: a("  s_memrealtime s[80:81]")
    a(f"""
  s_load_dwordx8 s[4:11], s[0:1], 0
  s_load_dwordx4 s[12:15], s[0:1], 32
  s_load_dwordx2 s[16:17], s[0:1], 48
  s_load_dwordx2 s[18:19], s[0:1], 64
  v_lshrrev_b32 v{t0}, 6, v0
  v_and_b32 v{vl}, 63, v0
  s_and_b32 s{sP}, s2, {FREP-1}
  s_mul_i32 s{sP}, s{sP}, {FLN*256}
  s_and_b32 s{sq}, s2, 7
  s_lshl_b32 s{sq}, s{sq}, 1
  s_bfe_u32 s{sq+1}, s2, 0x10003
  s_and_b32 s2, s2, 0xf0
  s_or_b32 s2, s2, s{sq}
  s_or_b32 s2, s2, s{sq+1}
  s_mul_i32 s{sStart}, s2, 640013
  v_readfirstlane_b32 s{sW}, v{t0}
  s_add_u32 s{sNb}, s{sStart}, {640013+16383}
  s_add_u32 s{sStart}, s{sStart}, 16383
  s_sub_u32 s{sNp}, s{sStart}, 640013
  s_lshr_b32 s{sStart}, s{sStart}, 14
  s_lshr_b32 s{sNb}, s{sNb}, 14
  s_lshr_b32 s{sNp}, s{sNp}, 14
  s_min_u32 s{sNb}, s{sNb}, {N}
  s_sub_u32 s{sCnt}, s{sNb}, s{sNp}
  s_sub_u32 s{sNb}, s{sNb}, s{sStart}
  s_lshl_b32 s{sT}, s{sNp}, 8
  s_sub_u32 s{sNp}, s{sStart}, s{sNp}
  s_mov_b32 s{sMode}, 0
  s_mov_b32 s{sKind}, 0
  s_mov_b32 s{sFirst}, 1
  s_mov_b32 s{sAS}, {AS}
  s_mov_b32 s{sQS}, {QS}
  s_mul_i32 s{sStg}, s{sW}, {STG}
  s_add_u32 s{sStg}, s{sStg}, {L_STG}
  v_lshlrev_b32 v{vt16}, 4, v0
  s_mul_i32 s{sq}, s2, {CH*2}
  v_lshl_add_u32 v{t2}, v0, 2, s{sq}
  v_add_u32 v{t3}, 4096, v{t2}
  v_lshrrev_b32 v{t4}, 4, v{vl}
  v_lshlrev_b32 v{t0}, 1, v{t4}
  v_xor_b32 v{t0}, v{t0}, v{vl}
  v_lshlrev_b32 v{t0}, 4, v{t0}
  s_lshl_b32 s{sq}, s{sW}, 12
  v_add_u32 v{t7}, s{sq}, v{t0}
  s_mul_i32 s{sUB}, s{sW}, {4*WPITCH}
  s_add_u32 s{sUB}, s{sUB}, {L_WS}
  v_add_u32 v{t6}, 8192, v{vt16}
  v_add_u32 v{t5}, 16384, v{vt16}
  s_waitcnt lgkmcnt(0)
  {"s_add_u32 s%d, s%d, %d" % (pWS, pWS, OPT["wsb"] << 20) + chr(10) + "  s_addc_u32 s%d, s%d, 0" % (pWS+1, pWS+1) if OPT["wsb"] else ""}
  s_bitcmp1_b32 s2, 0
  s_cbranch_scc1 K_LDG
  s_cmp_ge_u32 s2, {2*G}
  s_cbranch_scc1 K_LDP""")
    srd(a, T0, pD, E*4)
    srd(a, T1, pS, E*4)
    a(f"  s_movk_i32 s{sq}, 0x2000")
    for r_, T in ((DD, T0), (SS_, T1)):
        a(f"""
  buffer_load_dword v{r_}, v{t2}, {s(T,4)}, 0 offen
  buffer_load_dword v{r_+1}, v{t2}, {s(T,4)}, 0 offen offset:2048
  buffer_load_dword v{r_+2}, v{t3}, {s(T,4)}, 0 offen
  buffer_load_dword v{r_+3}, v{t3}, {s(T,4)}, 0 offen offset:2048
  buffer_load_dword v{r_+4}, v{t2}, {s(T,4)}, s{sq} offen""")
    def wdma(T):
        for q in range(4):
            a(f"  s_add_u32 m0, s{sUB}, {64*q}\n  s_nop 0\n  buffer_load_dwordx4 v{t7}, {s(T,4)}, 0 offen offset:{1024*q} lds")
    a(f"""
K_LDX:
  s_lshl_b32 s{sq}, s{sStart}, 8
  s_lshl_b32 s{sq+1}, s{sNb}, 8""")
    srd(a, T2, pX, f"s{sq+1}", addreg=sq)
    a(f"""
  buffer_load_dwordx4 {v(XL,4)}, v{vt16}, {s(T2,4)}, 0 offen
  buffer_load_dwordx4 {v(XL+4,4)}, v{t6}, {s(T2,4)}, 0 offen
  s_branch K_LD3
K_LDP:
  s_cmp_eq_u32 s2, {2*G}
  s_cselect_b32 s{T1}, s{pWM}, s{pWU}
  s_cselect_b32 s{T1+1}, s{pWM+1}, s{pWU+1}
  s_cmp_eq_u32 s2, {2*G+2}
  s_cselect_b32 s{sq}, 0, 32768
  s_add_u32 s{T1}, s{T1}, s{sq}
  s_addc_u32 s{T1+1}, s{T1+1}, 0
  s_mov_b32 s{T1+2}, 32768
  s_mov_b32 s{T1+3}, 0x20000""")
    wdma(T1)
    srd(a, T0, pWM, 16*256, add=256*256)
    a(f"""
  v_and_b32 v{t0}, 31, v{vl}
  v_lshrrev_b32 v{t1}, 5, v{vl}
  v_lshlrev_b32 v{t1}, 11, v{t1}
  v_lshl_add_u32 v{t1}, v{t0}, 1, v{t1}
  s_and_b32 s{sq}, s{sW}, 3
  s_lshl_b32 s{sq}, s{sq}, 6""")
    for jj in range(8):
        a(f"  buffer_load_ushort v{D0+jj}, v{t1}, {s(T0,4)}, s{sq} offen offset:{jj*256}")
    a(f"""
  s_branch K_LDX
K_LDG:
  s_lshl_b32 s{sCnt}, s{sCnt}, 8""")
    srd(a, T0, pX, f"s{sCnt}", addreg=sT)
    srd(a, T1, pWM, 128*256)
    a(f"""
  buffer_load_dwordx4 {v(GX,4)}, v{vt16}, {s(T0,4)}, 0 offen
  buffer_load_dwordx4 {v(GX+4,4)}, v{t6}, {s(T0,4)}, 0 offen
  buffer_load_dwordx4 {v(GX+8,4)}, v{t5}, {s(T0,4)}, 0 offen""")
    wdma(T1)
    a(f"""
K_LD3:
  s_add_u32 s{SF}, s{pWS}, {WS_FLAG}
  s_addc_u32 s{SF+1}, s{pWS+1}, 0
  s_load_dword s{sTag}, s[{SF}:{SF+1}], {FNON}
  s_mov_b32 s{SF+2}, {FNON+4}
  s_mov_b32 s{SF+3}, 0x20000
  v_lshrrev_b32 v{t1}, 2, v0
  v_and_b32 v{t4}, 3, v0
  v_lshlrev_b32 v{t4}, 4, v{t4}
  v_lshl_add_u32 v{vcell}, v{t1}, 7, v{t4}
  s_mov_b32 s{sq}, {CH*32}
  v_mul_u32_u24 v{vebase}, s{sq}, v{t1}""")
    a(f"""
  v_mov_b32 v{CV}, 0
  v_mov_b32 v{CV+1}, 0
  v_mov_b32 v{CV+2}, 0
  v_mov_b32 v{CV+3}, 0
  v_add_u32 v{t0}, {L_CIMG}, v{vt16}""")
    a(f"  s_bitcmp1_b32 s2, 0\n  s_cbranch_scc1 K_NOZ")
    for j in range(4):
        a(f"  ds_write_b128 v{t0}, {v(CV,4)} offset:{j*8192}")
    a(f"  s_cmp_lg_u32 s{sW}, 0\n  s_cbranch_scc1 K_NOZ\n  ds_write_b128 v{t0}, {v(CV,4)} offset:32768")
    a("K_NOZ:")
    for j in range(5):
        a(f"  ds_write_b128 v{vt16}, {v(CV,4)} offset:{L_GN + j*8192}")
    a(f"""
  v_cmp_gt_u32 vcc, {(L_Q-L_GN-5*8192)//16}, v0
  s_and_saveexec_b64 {s(sEx,2)}, vcc
  ds_write_b128 v{vt16}, {v(CV,4)} offset:{L_GN + 5*8192}
  s_mov_b64 exec, {s(sEx,2)}""")
    def prefill():
        a(f"""
  v_mov_b32 v{CV+4}, {PADS}
  v_mov_b32 v{CV+5}, {PADE}
  v_mov_b32 v{CV+6}, {PADS}
  v_mov_b32 v{CV+7}, {PADE}
  ds_write_b128 v{vt16}, {v(CV+4,4)}
  ds_write_b128 v{vt16}, {v(CV+4,4)} offset:8192
  v_cmp_gt_u32 vcc, {(L_GN-16384)//16}, v0
  s_and_saveexec_b64 {s(sEx,2)}, vcc
  ds_write_b128 v{vt16}, {v(CV+4,4)} offset:16384
  s_mov_b64 exec, {s(sEx,2)}""")
    prefill()
    a(f"  s_mul_i32 s{sq}, s2, {BSTR}\n  s_lshl_b32 s{sq+1}, s{sStart}, 8\n  s_lshl_b32 s{sK}, s{sNb}, 8")
    srd(a, SC, pWS, G*CELLB, add=WS_CELL, addreg=sq)
    srd(a, SP, pWS, (N+1)*256)
    srd(a, SE, pE, E*32)
    srd(a, SW, pWS, WF_SIZE, add=WS_WF)
    srd(a, SO, pO, f"s{sK}", addreg=sq+1)
    srd(a, SV, pWS, G*OVSTR, add=WS_OVF)
    a(f"""
  v_mov_b32 v{vone}, 1
  v_mov_b32 v{MAC}, 0
  v_mov_b32 v{MAC+1}, 0
  v_and_b32 v{t0}, 15, v{vl}                 ; l&15
  v_bfe_u32 v{t1}, v{vl}, 4, 1               ; r4&1
  v_lshlrev_b32 v{t2}, 3, v{t1}
  v_xor_b32 v{t2}, v{t0}, v{t2}
  v_lshlrev_b32 v{vchunk}, 4, v{t2}
  v_and_b32 v{t2}, 1, v{vl}
  v_xor_b32 v{t2}, v{t2}, v{t1}
  v_lshlrev_b32 v{vechunk}, 4, v{t2}
  v_lshrrev_b32 v{t2}, 4, v{vl}
  v_lshlrev_b32 v{t2}, 6, v{t2}
  v_lshrrev_b32 v{t4}, 1, v{t0}
  v_lshl_add_u32 v{t2}, v{t4}, 3, v{t2}
  s_lshl_b32 s{sq}, s{sW}, 8
  v_add_u32 v{vent}, s{sq}, v{t2}
  v_bfe_u32 v{t2}, v{vl}, 2, 1               ; h
  v_and_b32 v{t4}, 1, v{vl}                  ; xy
  v_lshl_add_u32 v{t5}, v{t2}, 1, v{t4}      ; r4
  v_bfe_u32 v{t6}, v{vl}, 3, 2
  v_bfe_u32 v{t7}, v{vl}, 1, 1
  v_lshl_add_u32 v{t6}, v{t6}, 1, v{t7}      ; j
  v_lshl_add_u32 v{t7}, v{t5}, 3, v{t6}      ; q = 8 r4 + j
  v_lshlrev_b32 v{t7}, 3, v{t7}
  v_add_u32 v{vrow}, s{sq}, v{t7}
  v_lshrrev_b32 v{t7}, 5, v{vl}              ; hh
  v_mul_u32_u24 v{vAlo}, 1040, v{t6}
  v_lshl_add_u32 v{vAlo}, v{t5}, 8, v{vAlo}
  v_lshl_add_u32 v{vAlo}, v{t7}, 4, v{vAlo}
  v_add_u32 v{vAlo}, s{sStg}, v{vAlo}
  v_xor_b32 v{vAhi}, 1, v{t4}
  v_lshl_add_u32 v{vAhi}, v{vAhi}, 7, v{vAlo}
  v_lshl_add_u32 v{vAlo}, v{t4}, 7, v{vAlo}
  v_xor_b32 v{vEF}, v{t7}, v{t4}
  v_lshl_add_u32 v{vEF}, v{t6}, 1, v{vEF}
  v_lshl_add_u32 v{vEF}, v{t5}, 4, v{vEF}
  v_lshlrev_b32 v{vEF}, 4, v{vEF}
  s_add_u32 s{sq+1}, s{sStg}, 8320
  v_add_u32 v{vEF}, s{sq+1}, v{vEF}
  v_bfe_u32 v{t5}, v{vl}, 4, 1               ; o
  v_lshlrev_b32 v{t5}, 4, v{t5}
  v_mov_b32 v{t6}, 0x3f80
  v_lshlrev_b32 v{t5}, v{t5}, v{t6}
  v_cmp_eq_u32 vcc, v{t7}, v{t2}
  s_nop 1
  v_cndmask_b32 v{t5}, 0, v{t5}, vcc
  v_cmp_eq_u32 vcc, 0, v{t4}
  s_nop 1
  v_cndmask_b32 v{PAT}, 0, v{t5}, vcc
  v_cndmask_b32 v{PAT+1}, v{t5}, 0, vcc
  s_lshl_b32 s{sq}, s{sW}, 5
  s_add_u32 s{sq+1}, s{sq}, {L_GN}
  v_lshlrev_b32 v{vga}, 4, v{t7}
  v_add_u32 v{vga}, s{sq+1}, v{vga}
  v_and_b32 v{t2}, 12, v{vl}
  v_add_u32 v{vgq}, v{vga}, v{t2}
  v_and_b32 v{t2}, 3, v{vl}
  v_lshlrev_b32 v{t2}, 3, v{t2}
  v_lshl_add_u32 v{t2}, v{t1}, 5, v{t2}
  v_add_u32 v{vqlane}, {L_Q}, v{t2}
  v_and_b32 v{t2}, 31, v{vl}
  v_lshlrev_b32 v{t4}, 3, v{t2}
  v_add_u32 v{vacl}, {L_ACC}, v{t4}
  v_lshrrev_b32 v{t4}, 4, v{vl}              ; g
  v_mul_u32_u24 v{vxb}, {XS}, v{t0}
  v_lshl_add_u32 v{vxb}, v{t4}, 4, v{vxb}
  v_add_u32 v{vxb}, {L_X}, v{vxb}
  v_mul_u32_u24 v{vqw}, {QS}, v{t0}
  v_lshl_add_u32 v{vqw}, v{t4}, 3, v{vqw}
  s_add_u32 s{sq+1}, s{sq}, {L_Q}
  v_add_u32 v{vqw}, s{sq+1}, v{vqw}
  v_mul_u32_u24 v{vqa}, {2*WPITCH}, v{t4}
  v_bfe_u32 v{t5}, v{vl}, 2, 2
  v_lshl_add_u32 v{vqa}, v{t5}, 8, v{vqa}
  v_xor_b32 v{t5}, s{sW}, v{t5}
  v_lshl_add_u32 v{vqa}, v{t5}, 5, v{vqa}
  v_and_b32 v{t5}, 3, v{vl}
  v_lshl_add_u32 v{vqa}, v{t5}, 3, v{vqa}
  v_add_u32 v{vqa}, {L_WS}, v{vqa}
  v_and_b32 v{t4}, 1, v{vl}
  v_lshlrev_b32 v{t4}, 4, v{t4}
  v_lshlrev_b32 v{t4}, v{t4}, v{t6}
  v_bfe_u32 v{t5}, v{vl}, 1, 4
  v_lshlrev_b32 v{t7}, 2, v{t7}
  v_sub_u32 v{t5}, v{t5}, v{t7}""")
    for i in range(4):
        a(f"  v_cmp_eq_u32 vcc, {i}, v{t5}\n  s_nop 1\n  v_cndmask_b32 v{I0+i}, 0, v{t4}, vcc")
        a(f"  v_cmp_eq_u32 vcc, {8+i}, v{t5}\n  s_nop 1\n  v_cndmask_b32 v{I1+i}, 0, v{t4}, vcc")
    if not OPT["k8"]:
        a(f"  v_mov_b32 v{AQ+2}, 0\n  v_mov_b32 v{AQ+3}, 0")
        for t in range(4):
            a(f"  v_mov_b32 v{BQ+4*t+2}, 0\n  v_mov_b32 v{BQ+4*t+3}, 0")
    def prefetch():
        if not OPT["pf"]: return
        a(f"  s_mul_i32 s{sq}, s2, 40000\n  s_sub_u32 s{sq}, s{sq}, 4096\n  v_add_u32 v{t0}, s{sq}, v{vt16}")
        for j in range(10):
            a(f"  buffer_load_dwordx4 {v(DUM,4)}, v{t0}, {s(SE,4)}, 0 offen")
            if j < 9: a(f"  v_add_u32 v{t0}, 4096, v{t0}")
    def wtr(dst, ad):
        for st in range(4):
            for hf in range(2):
                a(f"  ds_read_b64_tr_b16 {v(dst+4*st+2*hf,2)}, v{ad} offset:{(8*st+hf)*WPITCH}")
    def own_x(nyounger):
        a(f"""
  v_lshrrev_b32 v{t0}, 4, v0
  v_lshl_add_u32 v{t0}, v{t0}, 5, v{vt16}
  v_add_u32 v{t0}, {L_X}, v{t0}
  s_waitcnt vmcnt({nyounger})
  ds_write_b128 v{t0}, {v(XL,4)}
  s_mov_b32 exec_lo, s{sLo2}
  s_mov_b32 exec_hi, s{sLo2}
  ds_write_b128 v{t0}, {v(XL+4,4)} offset:{32*XS}
  s_mov_b64 exec, -1""")
    a(f"""
  s_cmp_lt_u32 s{sW}, 2
  s_cselect_b32 s{sLo2}, -1, 0
  s_lshr_b32 s{sq}, s2, {1+FSH}
  s_lshl_b32 s{sq}, s{sq}, 8
  s_bfe_u32 s{sq+1}, s2, {hex((FSH<<16)|1)}
  s_lshl_b32 s{sq+1}, s{sq+1}, 2
  s_add_u32 s{sq}, s{sq}, s{sq+1}
  s_and_b32 s{sq+1}, s2, 1
  s_mul_i32 s{sq+1}, s{sq+1}, {FHALF}
  s_add_u32 s{sq}, s{sq}, s{sq+1}
  v_mul_u32_u24 v{vgn1}, {FLN*256}, v{vl}
  v_add_u32 v{vgn1}, s{sq}, v{vgn1}
  v_lshrrev_b32 v{t2}, {FSH-1}, v{vl}
  v_lshlrev_b32 v{t2}, 8, v{t2}
  v_and_b32 v{t3}, {(1<<(FSH-1))-1}, v{vl}
  v_lshl_add_u32 v{t2}, v{t3}, 3, v{t2}
  v_add_u32 v{vsrow}, s{sP}, v{t2}
  s_mov_b32 s{sK}, {NLOG2E}
  s_mov_b32 s{sK+1}, {NLOG2E}
  s_waitcnt lgkmcnt(0)
  s_add_u32 s{sTag}, s{sTag}, 1
  s_bitcmp1_b32 s2, 0
  s_cbranch_scc1 K_GEMM
  s_cmp_ge_u32 s2, {2*G}
  s_cbranch_scc1 K_PREP
  s_mov_b32 s{sq}, {MAGIC}
  v_lshlrev_b32 v{t7}, 6, v0
  v_add_u32 v{t7}, {1<<18}, v{t7}
  s_barrier
  s_waitcnt vmcnt(7)""")
    stamp(a, 1)
    for j in range(5):
        a(f"""
  v_mul_u32_u24 v{B4+j}, s{sq}, v{DD+j}
  v_lshrrev_b32 v{B4+j}, 18, v{B4+j}
  v_and_b32 v{B4+j}, 0x3fc, v{B4+j}
  v_add_u32 v{t0+j}, {L_BCNT}, v{B4+j}
  ds_add_rtn_u32 v{RK+j}, v{t0+j}, v{vone}""")
    a("  s_waitcnt vmcnt(2)")
    for j in range(5):
        a(f"""
  v_lshl_add_u32 v{SS_+j}, v{SS_+j}, 18, v{t7}
  v_and_or_b32 v{SS_+j}, v{DD+j}, 63, v{SS_+j}
  v_lshlrev_b32 v{CA+j}, 5, v{B4+j}
  v_add_u32 v{CA+j}, {L_CIMG}, v{CA+j}""")
        if j < 4: a(f"  v_add_u32 v{t7}, {512<<6}, v{t7}")
    srd(a, T2, pWS, NB*BSTR, add=WS_CELL)
    a(f"""
  v_lshrrev_b32 v{t4}, 3, v0
  s_mov_b32 s{sq}, {BSTR}
  v_mul_u32_u24 v{t4}, s{sq}, v{t4}
  v_and_b32 v{t5}, 7, v0
  v_lshl_add_u32 v{t4}, v{t5}, 4, v{t4}
  s_lshl_b32 s{sq}, s2, 6
  s_mov_b64 {s(sBad,2)}, 0
  s_waitcnt lgkmcnt(0)""")
    for j in range(5):
        a(f"""
  v_mul_u32_u24 v{t1}, 37, v{RK+j}
  v_lshl_add_u32 v{t0}, v{RK+j}, 2, v{CA+j}
  v_lshrrev_b32 v{t1}, 8, v{t1}
  v_cmp_le_u32 vcc, {CAP-1}, v{RK+j}
  v_lshl_add_u32 v{t0}, v{t1}, 2, v{t0}
  s_or_b64 {s(sBad,2)}, {s(sBad,2)}, vcc
  s_andn2_b64 exec, exec, vcc
  ds_write_b32 v{t0}, v{SS_+j}
  s_mov_b64 exec, -1""")
    a(f"""
  v_add_u32 v{t0}, {L_CIMG}, v{vt16}
  v_mov_b32 v{t2}, {L_FLG+4}
  s_cmp_eq_u64 {s(sBad,2)}, 0
  s_cbranch_scc1 K_NOFULL
  ds_write_b32 v{t2}, v{vone}
K_NOFULL:
  s_waitcnt lgkmcnt(0)
  s_barrier""")
    stamp(a, 2)
    a(f"  ds_read_b32 v{t2}, v{t2}\nK_OVFDONE:")
    for j in range(4):
        a(f"  ds_read_b128 {v(CP+4*j,4)}, v{t0} offset:{8192*j}")
    a(f"""
  s_waitcnt lgkmcnt(4)
  v_cmp_ne_u32 vcc, 0, v{t2}
  s_cbranch_vccnz K_OVF""")
    for j in range(4):
        a(f"""
  s_mov_b32 exec_lo, 0xaaaaaaaa
  s_mov_b32 exec_hi, 0xaaaaaaaa
  s_waitcnt lgkmcnt({3-j})
  v_mov_b32 v{CP+4*j+3}, s{sTag}
  s_mov_b64 exec, -1
  buffer_store_dwordx4 {v(CP+4*j,4)}, v{t4}, {s(T2,4)}, s{sq} offen {STF}
  s_add_u32 s{sq}, s{sq}, {64*BSTR}""")
    own_x(4)
    a(f"""
  s_branch K_PST
K_GEMM:
  ; ---------------- P gemm role: rows of this bucket and the one before ----------------""")
    if OPT["touch"]:
        a(f"""
  s_cmp_lg_u32 s{sW}, 0
  s_cbranch_scc1 K_NOTOUCH
  s_waitcnt vmcnt(0)
  s_mov_b64 exec, {FMASK}
  buffer_load_dword v{DUM}, v{vgn1}, {s(SF,4)}, 0 offen sc1
  s_mov_b64 exec, -1
K_NOTOUCH:""")
    a(f"""
  s_mul_i32 s{sq}, s{sNp}, {XS}
  s_sub_u32 s{sq}, {L_X}, s{sq}
  v_lshrrev_b32 v{t0}, 4, v0
  v_lshl_add_u32 v{t0}, v{t0}, 5, v{vt16}
  v_add_u32 v{t3}, s{sq}, v{t0}
  s_cmp_lt_u32 s{sW}, 4
  s_cselect_b32 s{sq+1}, -1, 0
  v_subrev_u32 v{t1}, {L_X}, v{vxb}
  v_add_u32 v{t1}, s{sq}, v{t1}
  s_waitcnt vmcnt(6)
  ds_write_b128 v{t3}, {v(GX,4)}
  s_waitcnt vmcnt(5)
  ds_write_b128 v{t3}, {v(GX+4,4)} offset:{32*XS}
  s_waitcnt vmcnt(4)
  s_mov_b32 exec_lo, s{sq+1}
  s_mov_b32 exec_hi, s{sq+1}
  ds_write_b128 v{t3}, {v(GX+8,4)} offset:{64*XS}
  s_mov_b64 exec, -1
  v_and_b32 v{t2}, 15, v{vl}
  v_mul_u32_u24 v{t2}, {XS}, v{t2}
  v_lshrrev_b32 v{t3}, 4, v{vl}
  v_lshl_add_u32 v{t2}, v{t3}, 3, v{t2}
  s_lshl_b32 s{sq}, s{sW}, 5
  s_add_u32 s{sq}, s{sq}, {L_GP}
  v_add_u32 v{t2}, s{sq}, v{t2}
  v_add_u32 v{t0}, {L_GP - 16*XS}, v{t0}
  v_subrev_u32 v{t4}, 4096, v{vt16}""")
    srd(a, T0, pWS, f"s{sCnt}", add=WS_P, addreg=sT)
    a("  s_waitcnt vmcnt(0) lgkmcnt(0)\n  s_barrier")
    stamp(a, 1)
    wtr(W1F, vqa)
    XT = [PF, PF+16, EA, EB, PF]
    for nt in range(4):
        for st in range(4):
            a(f"  ds_read_b128 {v(XT[nt]+4*st,4)}, v{t1} offset:{nt*16*XS + st*64}")
    for nt in range(5):
        a(f"  s_waitcnt lgkmcnt({(12, 12, 8, 4, 0)[nt]})")
        for st in range(4):
            c = "0" if st == 0 else v(D0+4*nt, 4)
            a(f"  v_mfma_f32_16x16x32_bf16 {v(D0+4*nt,4)}, {v(W1F+4*st,4)}, {v(XT[nt]+4*st,4)}, {c}")
        if nt == 0:
            for st in range(4):
                a(f"  ds_read_b128 {v(PF+4*st,4)}, v{t1} offset:{4*16*XS + st*64}")
    for nt in range(5):
        d = D0 + 4*nt
        if nt == 4: a("  s_nop 1")
        a(f"""
  v_pk_mul_f32 {v(d,2)}, {v(d,2)}, {s(sK,2)}
  v_pk_mul_f32 {v(d+2,2)}, {v(d+2,2)}, {s(sK,2)}
  v_cvt_pk_bf16_f32 v{W3+2*nt}, v{d}, v{d+1}
  v_cvt_pk_bf16_f32 v{W3+2*nt+1}, v{d+2}, v{d+3}
  ds_write_b64 v{t2}, {v(W3+2*nt,2)} offset:{nt*16*XS}""")
    a("  s_waitcnt lgkmcnt(0)\n  s_barrier")
    stamp(a, 2)
    a(f"""
  s_cmp_lt_u32 s{sW}, 4
  s_cbranch_scc1 K_PST""")
    for j in range(5):
        a(f"  ds_read_b128 {v(PF+4*j,4)}, v{t0} offset:{j*16*XS}")
    for j in range(5):
        a(f"  s_waitcnt lgkmcnt({4-j})\n  buffer_store_dwordx4 {v(PF+4*j,4)}, v{t4}, {s(T0,4)}, 0 offen {STF}")
        if j < 4: a(f"  v_add_u32 v{t4}, 4096, v{t4}")
    a(f"""
  v_mov_b32 v{t0}, {L_FLG+12}
  v_mov_b32 v{t7}, s{sTag}
  s_mov_b64 exec, 1
  s_waitcnt vmcnt(0)""")
    stamp(a, 3)
    a(f"""
  ds_add_rtn_u32 v{t0}, v{t0}, v{vone}
  s_waitcnt lgkmcnt(0)
  v_readfirstlane_b32 s{sq}, v{t0}
  s_mov_b64 exec, -1
  s_cmp_lg_u32 s{sq}, 3
  s_cbranch_scc1 K_PST
K_FLAG:
  s_mov_b64 exec, {FMASK}
  buffer_store_dword v{t7}, v{vgn1}, {s(SF,4)}, 0 offen {FLF}
  s_mov_b64 exec, -1
K_PST:""")
    def node_gemm(WA, WB=None):
        for nt in range(3):
            xf = XF + 16*(nt & 1)
            if nt == 0:
                for n2 in range(2):
                    for st in range(4):
                        a(f"  ds_read_b128 {v(XF+16*n2+4*st,4)}, v{vxb} offset:{n2*16*XS + st*64}")
            a(f"  s_waitcnt lgkmcnt({4 if nt == 0 else 5 if nt == 1 else 1})")
            q = QD if nt != 1 else SA
            for st in range(4):
                c = "0" if st == 0 else v(q, 4)
                a(f"  v_mfma_f32_16x16x32_bf16 {v(q,4)}, {v(WA+4*st,4)}, {v(xf+4*st,4)}, {c}")
            if WB is not None:
                for st in range(4):
                    c = "0" if st == 0 else v(U+4*nt, 4)
                    a(f"  v_mfma_f32_16x16x32_bf16 {v(U+4*nt,4)}, {v(WB+4*st,4)}, {v(xf+4*st,4)}, {c}")
            if nt == 0:
                for st in range(4):
                    a(f"  ds_read_b128 {v(XF+4*st,4)}, v{vxb} offset:{2*16*XS + st*64}")
            a(f"""
  s_nop 7
  v_pk_mul_f32 {v(q,2)}, {v(q,2)}, {s(sK,2)}
  v_pk_mul_f32 {v(q+2,2)}, {v(q+2,2)}, {s(sK,2)}
  v_cvt_pk_bf16_f32 v{QD+4+2*(nt&1)}, v{q}, v{q+1}
  v_cvt_pk_bf16_f32 v{QD+5+2*(nt&1)}, v{q+2}, v{q+3}""")
            if nt == 2:
                a(f"  s_mov_b32 exec_lo, 0x00ff00ff\n  s_mov_b32 exec_hi, 0x00ff00ff")
            a(f"  ds_write_b64 v{vqw}, {v(QD+4+2*(nt&1),2)} offset:{nt*16*QS}")
            if nt == 2:
                a("  s_mov_b64 exec, -1")
    assert SB == SA + 2
    def poll(lab, off):
        a(f"""
  s_cmp_lg_u32 s{sW}, 1
  s_cbranch_scc1 {lab}_D
  s_mov_b32 s{sq}, 0
  s_mov_b32 s{sq+1}, {off}
  {"s_sleep %d" % OPT["slp0"] if OPT["slp0"] and off == 0 else ""}
{lab}:
  buffer_load_dwordx2 {v(DUM,2)}, v{vsrow}, {s(SF,4)}, s{sq+1} offen {PLF}
  s_add_u32 s{sq}, s{sq}, 1
  s_waitcnt vmcnt(0)
  v_cmp_ne_u32 vcc, s{sTag}, v{DUM}
  v_cmp_ne_u32 {s(sBad,2)}, s{sTag}, v{DUM+1}
  s_or_b64 vcc, vcc, {s(sBad,2)}
  s_cbranch_scc0 {lab}_D
  {"s_sleep %d" % OPT["slp"] if OPT["slp"] else ""}
  s_cmp_lt_u32 s{sq}, 0x8000
  s_cbranch_scc1 {lab}
{lab}_D:""")
    stamp(a, 5)
    nld = 16 if OPT["lo"] else 12
    a(f"""
  s_lshl_b32 s{sTmp}, s{sW}, 12
  s_add_u32 s{sTmp+1}, s{sTmp}, {WF_UT}
  s_add_u32 s{sUB}, s{sTmp}, {WF_UB}
  s_mov_b32 s{sTmp+2}, {WF_3H}
  s_mov_b32 s{sTmp+3}, {WF_3L}
  s_mov_b32 s{sOV}, 0xaaaaaaaa
  s_cmp_eq_u32 s{sW}, 7
  s_cselect_b32 s{sOV+1}, 0xaaaaa, s{sOV}
  v_min_u32 v{t4}, 2, v{vl}
  v_lshl_add_u32 v{t4}, v{t4}, 2, s{sP}
  v_mov_b32 v{t5}, s{sTag}
  s_mov_b32 s{sq}, 0
  {"s_sleep %d" % OPT["slp0"] if OPT["slp0"] else ""}
K_CPOLL:
  buffer_load_dwordx4 {v(REC,4)}, v{vcell}, {s(SC,4)}, 0 offen sc1
  buffer_load_dwordx4 {v(REC+4,4)}, v{vcell}, {s(SC,4)}, 0 offen offset:64 sc1
  s_cmp_lg_u32 s{sW}, 1
  s_cbranch_scc1 K_CPOLL1
  buffer_load_dword v{t5}, v{t4}, {s(SF,4)}, 0 offen offset:{(FLN-1)*256 + (125 - (FLN-1)*(128//FLN))*4} sc1
K_CPOLL1:
  s_add_u32 s{sq}, s{sq}, 1
  s_waitcnt vmcnt(0)
  v_cmp_ne_u32 vcc, s{sTag}, v{REC+3}
  v_cmp_ne_u32 {s(sBad,2)}, s{sTag}, v{REC+7}
  s_or_b64 {s(sBad,2)}, vcc, {s(sBad,2)}
  v_cmp_ne_u32 vcc, s{sTag}, v{t5}
  s_and_b64 {s(sBad,2)}, {s(sBad,2)}, {s(sOV,2)}
  s_or_b64 {s(sBad,2)}, {s(sBad,2)}, vcc
  s_cbranch_scc0 K_CPOLLD
  {"s_sleep %d" % OPT["slp"] if OPT["slp"] else ""}
  s_cmp_lt_u32 s{sq}, 0x8000
  s_cbranch_scc1 K_CPOLL
K_CPOLLD:
  s_mov_b32 exec_lo, 0xaaaaaaaa
  s_mov_b32 exec_hi, 0xaaaaaaaa
  v_mov_b32 v{REC+3}, 0
  v_mov_b32 v{REC+7}, 0
  s_mov_b64 exec, -1""")
    stamp(a, 6)
    wl = [f"  buffer_load_dwordx4 {v(W2F+4*st,4)}, v{t0}, {s(SW,4)}, s{sTmp} offen offset:{st*1024} sc1" for st in range(4)]
    wl += [f"  buffer_load_dwordx4 {v(WUT+4*st,4)}, v{t0}, {s(SW,4)}, s{sTmp+1} offen offset:{st*1024} sc1" for st in range(4)]
    wl += [f"  buffer_load_dwordx4 {v(W3+4*st,4)}, v{t0}, {s(SW,4)}, s{sTmp+2} offen offset:{st*1024} sc1" for st in range(4)]
    if OPT["lo"]:
        wl += [f"  buffer_load_dwordx4 {v(W3L+4*st,4)}, v{t0}, {s(SW,4)}, s{sTmp+3} offen offset:{st*1024} sc1" for st in range(4)]
    NR = 8
    a(f"""
K_PHASE1:
  v_cmp_le_u32 vcc, 0xfffc0000, v{REC+NR-2}
  s_cbranch_vccz K_NOMARK
  s_and_saveexec_b64 {s(sEx,2)}, vcc
  v_lshrrev_b32 v{t0}, 2, v0                 ; producer
  v_lshrrev_b32 v{t1}, 5, v{t0}
  v_lshlrev_b32 v{t1}, 2, v{t1}
  v_lshlrev_b32 v{t0}, v{t0}, v{vone}
  ds_or_b32 v{t1}, v{t0} offset:{L_FLG+32}
  v_mov_b32 v{REC+NR-2}, 0
  s_mov_b64 exec, {s(sEx,2)}
K_NOMARK:""")
    for k in range(NR):
        if k == 4:
            a(f"""
  v_or3_b32 v{t3}, v{REC+k}, v{REC+k+1}, v{REC+k+2}
  v_or_b32 v{t3}, v{t3}, v{REC+k+3}
  v_cmp_ne_u32 vcc, 0, v{t3}
  s_cbranch_vccz K_P1E""")
        a(f"""
  v_lshlrev_b32 v{NOD+k}, 2, v{REC+k}
  v_and_b32 v{NOD+k}, 0xfc, v{NOD+k}
  v_cmpx_ne_u32 vcc, 0, v{REC+k}
  ds_add_rtn_u32 v{RNK+k}, v{NOD+k}, v{vone} offset:{L_CNT}
  s_mov_b64 exec, -1""")
    a(f"""
K_P1E:
  v_lshlrev_b32 v{t0}, 2, v{vl}
  v_subrev_u32 v{t4}, s{sStart}, v{vl}
  v_and_b32 v{t4}, 63, v{t4}
  s_waitcnt lgkmcnt(0)
  s_barrier
  ds_read_b32 v{t1}, v{t0} offset:{L_CNT}
  v_lshlrev_b32 v{t0}, 4, v{vl}
  s_cmp_eq_u32 s{sFirst}, 0
  s_cbranch_scc1 K_NOWL""")
    for x in wl: a(x)
    a(f"""
K_NOWL:
  s_waitcnt lgkmcnt(0)
  v_add_u32 v{t1}, 3, v{t1}
  v_bfe_u32 v{t5}, v{t1}, 2, 1               ; left-over quad
  v_lshrrev_b32 v{t6}, 3, v{t1}
  v_lshl_or_b32 v{t1}, v{t5}, 16, v{t6}
  v_mov_b32 v{t2}, v{t1}
  s_nop 1
  v_add_u32_dpp v{t2}, v{t2}, v{t2} row_shr:1 row_mask:0xf bank_mask:0xf
  s_nop 1
  v_add_u32_dpp v{t2}, v{t2}, v{t2} row_shr:2 row_mask:0xf bank_mask:0xf
  s_nop 1
  v_add_u32_dpp v{t2}, v{t2}, v{t2} row_shr:4 row_mask:0xf bank_mask:0xf
  s_nop 1
  v_add_u32_dpp v{t2}, v{t2}, v{t2} row_shr:8 row_mask:0xf bank_mask:0xf
  s_nop 1
  v_add_u32_dpp v{t2}, v{t2}, v{t2} row_bcast:15 row_mask:0xa bank_mask:0xf
  s_nop 1
  v_add_u32_dpp v{t2}, v{t2}, v{t2} row_bcast:31 row_mask:0xc bank_mask:0xf
  s_nop 1
  v_readlane_b32 s{sT}, v{t2}, 63
  v_sub_u32 v{t1}, v{t2}, v{t1}
  s_lshr_b32 s{sq+1}, s{sT}, 16
  s_and_b32 s{sCO}, s{sT}, 0xffff
  s_lshl_b32 s{sq}, s{sCO}, 1                ; quads in the groups of eight
  s_lshr_b32 s{sCO}, s{sCO}, 2
  s_add_u32 s{sT}, s{sq}, s{sq+1}
  s_add_u32 s{sT}, s{sT}, 7
  s_lshr_b32 s{sT}, s{sT}, 3
  v_lshrrev_b32 v{t2}, 16, v{t1}
  v_add_u32 v{t2}, s{sq}, v{t2}              ; quad slot of the left-over quad
  v_and_b32 v{t1}, 0xffff, v{t1}
  v_lshl_or_b32 v{t0}, v{t6}, 16, v{t1}
  v_lshlrev_b32 v{t0}, 3, v{t0}              ; 8*start8 | 8*n8 << 16
  v_lshlrev_b32 v{t7}, 1, v{t6}
  v_sub_u32 v{t7}, v{t2}, v{t7}
  v_lshlrev_b32 v{t7}, 2, v{t7}              ; position base of the left-over quad
  s_cmp_gt_u32 s{sT}, {CAPB}
  s_cbranch_scc1 K_SPLIT""")
    for k0 in (0, 4):
        if k0:
            a(f"""
  v_or3_b32 v{t3}, v{REC+k0}, v{REC+k0+1}, v{REC+k0+2}
  v_or_b32 v{t3}, v{t3}, v{REC+k0+3}
  v_cmp_ne_u32 vcc, 0, v{t3}
  s_cbranch_vccz K_P2E""")
        for k in range(k0, k0+4):
            a(f"  ds_bpermute_b32 v{PF+24+(k&3)}, v{NOD+k}, v{t7}")
            a(f"  ds_bpermute_b32 v{NOD+k}, v{NOD+k}, v{t0}")
        for k in range(k0, k0+4):
            e = PF + 16 + 2*(k & 3)
            a(f"""
  v_lshrrev_b32 v{e}, 10, v{REC+k}
  v_and_b32 v{e}, {hex(0xffffff00 if not OPT['hot'] else 0x1f00)}, v{e}
  v_bfe_u32 v{e+1}, v{REC+k}, 6, 12
  v_lshl_add_u32 v{e+1}, v{e+1}, 5, v{vebase}""")
            if OPT["hot"]: a(f"  v_and_b32 v{e+1}, 0xfe0, v{e+1}")
        a("  s_waitcnt lgkmcnt(0)")
        for k in range(k0, k0+4):
            a(f"  v_cmp_lt_u32_sdwa {s(8+2*(k&3),2)}, v{RNK+k}, v{NOD+k} src0_sel:DWORD src1_sel:WORD_1")
        for k in range(k0, k0+4):
            a(f"  v_and_b32 v{NOD+k}, 0xffff, v{NOD+k}")
        for k in range(k0, k0+4):
            a(f"  v_cndmask_b32 v{NOD+k}, v{PF+24+(k&3)}, v{NOD+k}, {s(8+2*(k&3),2)}")
        for k in range(k0, k0+4):
            e = PF + 16 + 2*(k & 3)
            a(f"""
  v_add_lshl_u32 v{NOD+k}, v{NOD+k}, v{RNK+k}, 3
  v_cmpx_ne_u32 vcc, 0, v{REC+k}
  ds_write_b64 v{NOD+k}, {v(e,2)}
  s_mov_b64 exec, -1""")
    a(f"""
K_P2E:
  v_lshlrev_b32 v{t2}, 2, v{t2}
  v_cmpx_ne_u32 vcc, 0, v{t5}
  ds_write_b32 v{t2}, v{t4} offset:{L_GN}
  s_mov_b64 exec, -1
  v_add_lshl_u32 v{t2}, v{t1}, v{t6}, 3
  v_lshl_add_u32 v{t1}, v{t1}, 1, s{sW}
  v_lshlrev_b32 v{t1}, 2, v{t1}
K_GNL:
  v_cmpx_lt_u32 vcc, v{t1}, v{t2}
  ds_write_b32 v{t1}, v{t4} offset:{L_GN}
  v_add_u32 v{t1}, 32, v{t1}
  v_cmpx_lt_u32 vcc, v{t1}, v{t2}
  ds_write_b32 v{t1}, v{t4} offset:{L_GN}
  v_add_u32 v{t1}, 32, v{t1}
  v_cmpx_lt_u32 vcc, v{t1}, v{t2}
  s_cbranch_execnz K_GNL
  s_mov_b64 exec, -1
  s_add_u32 s{sCnt}, s{sT}, 7
  s_sub_u32 s{sCnt}, s{sCnt}, s{sW}
  s_lshr_b32 s{sCnt}, s{sCnt}, 3
  s_add_u32 s{sCO}, s{sCO}, 7
  s_sub_u32 s{sCO}, s{sCO}, s{sW}
  s_lshr_b32 s{sCO}, s{sCO}, 3
  {("s_mov_b32 s%d, 40" % sCnt + chr(10) + "  s_movk_i32 s%d, 320" % sT + chr(10) + "  s_mov_b32 s%d, 40" % sCO) if OPT["bench"] else ""}
""")
    stamp(a, 4)
    a(f"""
  s_cmp_eq_u32 s{sFirst}, 0
  s_cbranch_scc1 K_POLL2_D""")
    poll("K_POLL2", FHALF)
    a("  s_waitcnt lgkmcnt(0)\n  s_barrier")
    stamp(a, 7)
    dsc = " sc1" if OPT["dsc"] else ""
    def dma_issue():
        L = []
        for j in range(8):
            d = DO + (j & 1)
            L.append([f"  s_add_u32 m0, s{sStg}, {j*1040}",
                      f"  v_add_u32_dpp v{d}, v{ENT}, v{vchunk} row_newbcast:{2*j} row_mask:0xf bank_mask:0xf",
                      f"  buffer_load_dwordx4 v{d}, {s(SP,4)}, 0 offen{dsc} lds" if not OPT["nodma"] else "  s_nop 0"])
        L.append([f"  s_add_u32 m0, s{sStg}, 8320",
                  f"  v_add_u32 v{DO}, v{ENT+1}, v{vechunk}",
                  f"  buffer_load_dwordx4 v{DO}, {s(SE,4)}, 0 offen lds" if not (OPT["nodma"] or OPT["noe"]) else "  s_nop 0"])
        return L
    ndma = 0 if OPT["nodma"] else 8 if OPT["noe"] else 9
    def frag_reads():
        L = []
        for st in range(8):
            L.append(f"  ds_read_b128 {v(PF+4*st,4)}, v{vAlo if st < 4 else vAhi} offset:{32*(st&3)}")
        L.insert(2, f"  ds_read_b128 {v(EF,4)}, v{vEF}")
        return L
    def bq_reads():
        return [f"  ds_read_b64_tr_b16 {v(BQ+nq*t,2)}, v{vqa} offset:{64*t}" for t in range(4)]
    def chain(t, D):
        L = [f"  v_mfma_f32_32x32x16_bf16 {v(D,16)}, {v(EF,4)}, {v(W3+4*t,4)}, 0"]
        if OPT["lo"]:
            L.append(f"  v_mfma_f32_32x32x16_bf16 {v(D,16)}, {v(EF,4)}, {v(W3L+4*t,4)}, {v(D,16)}")
        L.append(f"  v_mfma_f32_32x32x16_bf16 {v(D,16)}, {v(PF+8*t,4)}, {v(I0,4)}, {v(D,16)}")
        L.append(f"  v_mfma_f32_32x32x16_bf16 {v(D,16)}, {v(PF+8*t+4,4)}, {v(I1,4)}, {v(D,16)}")
        if OPT["k8"]:
            L.append(f"  v_mfma_f32_32x32x8bf16_1k {v(D,16)}, {v(AQ,2)}, {v(BQ+2*t,2)}, {v(D,16)}")
        else:
            L.append(f"  v_mfma_f32_32x32x16_bf16 {v(D,16)}, {v(AQ,4)}, {v(BQ+4*t,4)}, {v(D,16)}")
        return L

    a(f"  ds_read_b64 {v(ENT,2)}, v{vent}\n  s_waitcnt lgkmcnt(0)")
    for x in dma_issue(): a("\n".join(x))
    a(f"  ds_read_b64 {v(ENT,2)}, v{vent} offset:2048")
    a(f"""
  s_cmp_eq_u32 s{sFirst}, 0
  s_cbranch_scc1 K_NOGEMM0
  s_mov_b32 s{sFirst}, 0
  s_waitcnt vmcnt({ndma}) lgkmcnt(0)""")
    node_gemm(W2F, WUT)
    a(f"  v_lshlrev_b32 v{t4}, 4, v{vl}")
    for st in range(4):
        a(f"  buffer_load_dwordx4 {v(WUB+4*st,4)}, v{t4}, {s(SW,4)}, s{sUB} offen offset:{st*1024} sc1")
    a(f"""
  s_or_b32 s{sq}, s2, s{sW}
  s_cmp_lg_u32 s{sq}, 0
  s_cbranch_scc1 K_NONONCE
  s_mov_b64 exec, 1
  v_mov_b32 v{t0}, {FNON}
  v_mov_b32 v{t1}, s{sTag}
  buffer_store_dword v{t1}, v{t0}, {s(SF,4)}, 0 offen
  s_mov_b64 exec, -1
  s_waitcnt vmcnt(0)
K_NONONCE:
  s_waitcnt lgkmcnt(0)
  s_barrier
K_NOGEMM:
  ds_read_b32 v{vgn1}, v{vgq}
  ds_read_b32 v{vsrow}, v{vrow}
  ds_read_b128 {v(GN,4)}, v{vga}
  s_waitcnt vmcnt(4)""")
    stamp(a, 8, 96)
    for x in frag_reads(): a(x)
    a(f"""
  s_waitcnt lgkmcnt(9)
  v_mad_u32_u24 v{vqa}, v{vgn1}, s{sQS}, v{vqlane}
  v_lshrrev_b64 {v(AQ,2)}, v{vsrow}, {v(PAT,2)}""")
    for x in bq_reads(): a(x)
    a("  s_waitcnt lgkmcnt(0)")
    for x in dma_issue(): a("\n".join(x))
    for x in chain(0, D0): a(x)
    if OPT["prio"]:
        a(f"  s_cmp_lt_u32 s{sW}, 4\n  s_cbranch_scc1 K_PR\n  s_setprio 1\nK_PR:")
    a(f"""
  s_nop 7
  s_nop 3
  s_cmp_eq_u32 s{sCnt}, 0
  s_cbranch_scc1 K_LOOPEND
  s_cmp_lg_u32 s{sMode}, 0
  s_cbranch_scc1 K_SAFE
  {"s_branch K_QUAD" if not OPT["octo"] else ""}
  s_sub_u32 s{sCnt}, s{sCnt}, s{sCO}
  s_cmp_eq_u32 s{sCO}, 0
  s_cbranch_scc1 K_QUAD""")

    def p(r): return v(r, 2)
    def octet_fast(d, e, t, r, sres):
        ex = [f"  v_exp_f32 v{e+i}, v{d+i}" for i in range(8)]
        L = [f"  v_pk_add_f32 {p(t)}, {p(e)}, 1.0 op_sel_hi:[1,0]",
             f"  v_pk_add_f32 {p(t+2)}, {p(e+4)}, 1.0 op_sel_hi:[1,0]",
             f"  v_pk_fma_f32 {p(t+4)}, {p(d)}, {p(e+2)}, {p(d)}",
             f"  v_pk_fma_f32 {p(t+6)}, {p(d+4)}, {p(e+6)}, {p(d+4)}",
             f"  v_pk_fma_f32 {p(e)}, {p(t)}, {p(e+2)}, {p(t)}",
             f"  v_pk_fma_f32 {p(e+4)}, {p(t+2)}, {p(e+6)}, {p(t+2)}",
             f"  v_pk_fma_f32 {p(t+4)}, {p(d+2)}, {p(t)}, {p(t+4)}",
             f"  v_pk_fma_f32 {p(t+6)}, {p(d+6)}, {p(t+2)}, {p(t+6)}",
             f"  v_pk_mul_f32 {p(t)}, {p(e)}, {p(e+4)}",
             f"  v_pk_mul_f32 {p(t+4)}, {p(t+4)}, {p(e+4)}",
             f"  v_rcp_f32 v{r}, v{t}",
             f"  v_rcp_f32 v{r+1}, v{t+1}",
             f"  v_pk_fma_f32 {p(t+4)}, {p(t+6)}, {p(e)}, {p(t+4)}",
             f"  v_pk_mul_f32 {p(sres)}, {p(t+4)}, {p(r)}"]
        return ex, L
    def octet_safe(d, e, t, r, sres):
        ex = [f"  v_exp_f32 v{e+i}, v{d+i}" for i in range(8)]
        L = [f"  v_pk_add_f32 {p(e+2*i)}, {p(e+2*i)}, 1.0 op_sel_hi:[1,0]" for i in range(4)]
        L += [f"  v_rcp_f32 v{t+i}, v{e+i}" for i in range(8)]
        L += [f"  v_pk_mul_f32 {p(sres)}, {p(d)}, {p(t)}"]
        L += [f"  v_pk_fma_f32 {p(sres)}, {p(d+2*i)}, {p(t+2*i)}, {p(sres)}" for i in range(1, 4)]
        return ex, L
    def zipl(x, y):
        o = []
        for i in range(max(len(x), len(y))):
            if i < len(x): o.append(x[i])
            if i < len(y): o.append(y[i])
        return o
    def adds(t, kind):
        if OPT["noadd"]: return [f"  ds_read_b32 v{DUM}, v{vgq}"] * (2 if kind == "octo" else 4)
        if kind == "octo": return [f"  ds_add_f64 v{AD+2*xy}, {v(CV+2*xy,2)} offset:{256*t}" for xy in range(2)]
        return [f"  ds_add_f64 v{AD+2*xy+o}, {v(CV+2*(2*o+xy),2)} offset:{256*t}" for o in range(2) for xy in range(2)]
    def block_body(kind, u, nun):
        oc = octet_safe if kind == "safe" else octet_fast
        nadd = 2 if kind == "octo" else 4
        B = []
        for t in range(4):
            D = D0 if t % 2 == 0 else D1
            Dn = D1 if t % 2 == 0 else D0
            exa, La = oc(D, EA, TA, RA, SA)
            exb, Lb = oc(D+8, EB, TB, RB, SB)
            ex = exa + exb
            ch = chain((t+1) % 4, Dn)
            late = []
            if kind == "octo":
                keep = lambda L: [x for x in L[:-1] if "v_rcp" not in x]
                dk = DK + 2*(t & 1)
                pk = zipl(keep(La), keep(Lb))
                pk = pk[:-4] + [f"  v_pk_mul_f32 {p(dk)}, {p(TA)}, {p(TB)}"] + pk[-4:-2] + \
                     [f"  v_rcp_f32 v{RA}, v{dk}", f"  v_rcp_f32 v{RA+1}, v{dk+1}"] + pk[-2:] + \
                     [f"  v_pk_mul_f32 {p(TA+4)}, {p(TA+4)}, {p(TB)}"]
                if t & 1: pk.append(f"  v_pk_fma_f32 {p(MAC)}, {p(DK)}, {p(DK+2)}, {p(MAC)}")
                pk += [f"  v_pk_fma_f32 {p(TA+4)}, {p(TB+4)}, {p(TA)}, {p(TA+4)}",
                       f"  v_pk_mul_f32 {p(SA)}, {p(TA+4)}, {p(RA)}"]
                fin = [f"  v_cvt_f64_f32 {v(CV+2*xy,2)}, v{SA+xy}" for xy in range(2)]
                adr = (0, 2)
            else:
                pk = zipl(La, Lb)
                if kind == "quad":
                    idx = max(i for i, x in enumerate(pk) if x.startswith(f"  v_pk_mul_f32 {p(TB)}, {p(EB)}"))
                    pk.insert(idx+1, f"  v_pk_fma_f32 {p(MAC)}, {p(TA)}, {p(TB)}, {p(MAC)}")
                fin = [f"  v_cvt_f64_f32 {v(CV+2*(2*o+xy),2)}, v{S+xy}" for o, S in ((0, SA), (1, SB)) for xy in range(2)]
                adr = range(4)
            fin += adds(t, kind)
            if t == 0:
                pk = pk[:4] + [f"  v_mad_u32_u24 v{AD+i}, v{GN+i}, s{sAS}, v{vacl}" for i in adr] + pk[4:]
            if t == 1:
                pk = pk[:8] + [f"  ds_read_b64 {v(ENT,2)}, v{vent} offset:{4096+2048*u}",
                      f"  ds_read_b32 v{vgn1}, v{vgq} offset:{256+256*u}",
                      f"  ds_read_b32 v{vsrow}, v{vrow} offset:{2048+2048*u}",
                      f"  ds_read_b128 {v(GN,4)}, v{vga} offset:{256+256*u}"] + pk[8:]
            if t == 3:
                B.append(f"  s_waitcnt lgkmcnt({nadd})")
            dma = dma_issue() if t == 3 else []
            per = 16 // len(ch); e = 0
            for i, m in enumerate(ch):
                B.append(m)
                n = per if i < len(ch)-1 else 16 - e
                B += ex[e:e+2]
                if late: B.append(late.pop(0))
                B += ex[e+2:e+n]; e += n
                if OPT["dmapos"] == 0:
                    for _ in range(2):
                        if dma: B += dma.pop(0)
            if t == 2:
                mid = [f"  s_waitcnt vmcnt(0) lgkmcnt({nadd})",
                       f"  v_mad_u32_u24 v{vqa}, v{vgn1}, s{sQS}, v{vqlane}"]
                rd = frag_reads() + bq_reads()
                aq = [f"  v_lshrrev_b64 {v(AQ,2)}, v{vsrow}, {v(PAT,2)}"]
                if OPT["rdgap"] == 0: B += mid + rd + aq + pk
                else:
                    q = []
                    for i, x in enumerate(aq + pk):
                        if rd and i % OPT["rdgap"] == 0: q.append(rd.pop(0))
                        q.append(x)
                    B += mid + q + rd
            elif t == 3:
                inc = []
                if u == nun - 1 and OPT["bench"]:
                    inc = [f"  v_add_u32 v{DUM+i}, {2048*nun}, v{vent}" for i in range(4)]
                elif u == nun - 1:
                    inc = incs(nun)
                pk = pk + inc
                if OPT["dmapos"] == 1:
                    q = []
                    for i, x in enumerate(pk):
                        if dma and i % 3 == 0: q += dma.pop(0)
                        q.append(x)
                    pk = q
                for x in dma: B += x
                B += pk
            else:
                B += pk
            B += fin
        return B
    def incs(n):
        return [f"  v_add_u32 v{vent}, {2048*n}, v{vent}", f"  v_add_u32 v{vrow}, {2048*n}, v{vrow}",
                f"  v_add_u32 v{vgq}, {256*n}, v{vgq}", f"  v_add_u32 v{vga}, {256*n}, v{vga}"]
    def loop(kind):
        lab = {"safe": "K_SAFE", "quad": "K_QUAD", "octo": "K_FAST"}[kind]
        nun = OPT["unroll"] if kind == "octo" else 1
        cnt = sCO if kind == "octo" else sCnt
        L = []
        for u in range(nun):
            L += block_body(kind, u, nun)
            L.append(f"  s_sub_u32 s{cnt}, s{cnt}, 1")
            L.append(f"  s_cmp_lg_u32 s{cnt}, 0")
            L.append(f"  s_cbranch_scc1 {lab}" if u == nun - 1 else f"  s_cbranch_scc0 K_OX{u}")
        ab = OPT["abl"]
        if ab & 1: L = [x for x in L if not ("v_mfma" in x and (f", {v(I0,4)}," in x or f", {v(I1,4)}," in x))]
        if ab & 2: L = [x for x in L if "v_mfma_f32_32x32x8" not in x and "tr_b16" not in x]
        if ab & 4: L = [x.replace("v_exp_f32", "v_mov_b32") for x in L]
        if ab & 8: L = [x for x in L if "v_pk_" not in x]
        if ab & 16: L = [x for x in L if "v_mfma" not in x]
        if ab & 32: L = [x for x in L if "ds_read_b128" not in x]
        if ab & 64: L = [x for x in L if "v_exp" not in x]
        if ab & 128:
            M = []
            for x in L:
                if "v_mfma" in x and f", {v(I1,4)}," in x: continue
                if "v_mfma" in x and f", {v(I0,4)}," in x:
                    m = re.match(r"\s*v_mfma_f32_32x32x16_bf16 (v\[\d+:\d+\]), v\[(\d+):", x)
                    M.append(f"  v_smfmac_f32_32x32x32_bf16 {m.group(1)}, {v(I0,4)}, {v(int(m.group(2)),8)}, v{vone}"); continue
                m = re.match(r"\s*ds_read_b128 v\[(\d+):\d+\], v(\d+) offset:(\d+)", x)
                if m and PF <= int(m.group(1)) < PF + 32:
                    r0 = int(m.group(1))
                    M.append(f"  ds_read_b64_tr_b16 {v(r0,2)}, v{vqa} offset:{m.group(3)}")
                    M.append(f"  ds_read_b64_tr_b16 {v(r0+2,2)}, v{vqa} offset:{int(m.group(3))+128}"); continue
                M.append(x)
            L = M
        if ab & 256:
            M = []
            for x in L:
                if "v_mfma" in x and (f", {v(I1,4)}," in x or f", {v(I0,4)}," in x): continue
                if "v_mfma_f32_32x32x16" in x and x.rstrip().endswith(", 0"): x = x.rstrip()[:-1] + v(PF, 16)
                m = re.match(r"\s*ds_read_b128 v\[(\d+):\d+\], v(\d+) offset:(\d+)", x)
                if m and PF <= int(m.group(1)) < PF + 32:
                    for q in range(8): M.append(f"  ds_read_u16_d16_hi v{PF+(int(m.group(1))+q)%32}, v{vacl} offset:{64*q}")
                    continue
                M.append(x)
            L = M
        if OPT["align"]: L = align8(L)
        a(f".p2align 6\n{lab}:")
        for x in L: a(x)
    loop("octo")
    a(f"""
K_OXE:
  s_cmp_lg_u32 s{sCnt}, 0
  s_cbranch_scc1 K_QUAD""")
    a(f"""
K_LOOPEND:""")
    a(f"""
  s_waitcnt vmcnt(0) lgkmcnt(0)
  s_barrier""")
    stamp(a, 9, 98)
    a(f"""
  s_cmp_lg_u32 s{sKind}, 0
  s_cbranch_scc1 K_NEXT
K_CELLSDONE:
  v_mov_b32 v{t0}, {L_FLG+32}
  ds_read_b128 {v(CV,4)}, v{t0}
K_CONV:
  s_mul_i32 s{sTmp}, s{sW}, {AS}
  s_add_u32 s{sTmp}, s{sTmp}, {L_ACC}
  v_lshlrev_b32 v{t1}, 4, v{vl}
  v_add_u32 v{t1}, s{sTmp}, v{t1}""")
    for k in range(5):
        a(f"  ds_read_b128 {v(D0+4*k,4)}, v{t1} offset:{k*8*AS}")
    a(f"""
  s_mul_i32 s{sTmp}, s{sW}, {XS}
  s_add_u32 s{sTmp}, s{sTmp}, {L_X}
  v_lshlrev_b32 v{t2}, 2, v{vl}
  v_add_u32 v{t2}, s{sTmp}, v{t2}
  s_cmp_ge_u32 s{sKind}, 3
  s_cbranch_scc1 K_CONV2
  s_waitcnt lgkmcnt(5)
  v_or3_b32 v{t0}, v{CV}, v{CV+1}, v{CV+2}
  v_or_b32 v{t0}, v{t0}, v{CV+3}
  v_cmp_ne_u32 vcc, 0, v{t0}
  s_cbranch_vccnz K_STARTOV
K_CONV2:
  s_mov_b32 s{sTmp}, 0x71800000              ; 2^100
  v_cmp_nle_f32 {s(sBad,2)}, v{MAC}, s{sTmp}
  v_cmp_nle_f32 vcc, v{MAC+1}, s{sTmp}
  s_or_b64 {s(sBad,2)}, {s(sBad,2)}, vcc
  s_movk_i32 s{sTmp}, 0x207""")
    for k in range(5):
        a(f"""
  s_waitcnt lgkmcnt({4-k})
  v_cvt_f32_f64 v{EA+2*k}, {v(D0+4*k,2)}
  v_cvt_f32_f64 v{EA+2*k+1}, {v(D0+4*k+2,2)}
  v_cmp_class_f32 vcc, v{EA+2*k}, s{sTmp}
  s_or_b64 {s(sBad,2)}, {s(sBad,2)}, vcc
  v_cmp_class_f32 vcc, v{EA+2*k+1}, s{sTmp}
  s_or_b64 {s(sBad,2)}, {s(sBad,2)}, vcc
  v_cvt_pk_bf16_f32 v{EB+k}, v{EA+2*k}, v{EA+2*k+1}""")
    for k in range(5):
        a(f"  ds_write_b32 v{t2}, v{EB+k} offset:{k*8*XS}")
    a(f"""
  s_cmp_eq_u64 {s(sBad,2)}, 0
  s_cbranch_scc1 K_OKW
  v_mov_b32 v{t0}, {L_FLG}
  ds_write_b32 v{t0}, v{vone}
K_OKW:
  s_waitcnt lgkmcnt(0)
  s_barrier
  v_mov_b32 v{t0}, {L_FLG}
  ds_read_b32 v{t0}, v{t0}""")
    for nt in range(2):
        for st in range(4):
            a(f"  ds_read_b128 {v(XF+16*nt+4*st,4)}, v{vxb} offset:{nt*16*XS + st*64}")
    a(f"""
  s_waitcnt lgkmcnt(8)
  v_readfirstlane_b32 s{sTmp}, v{t0}
  s_cmp_gt_u32 s{sTmp}, s{sMode}
  {"s_cbranch_scc1 K_RESTART" if not EXP else "s_nop 0"}
  s_waitcnt lgkmcnt(4)""")
    for st in range(4):
        c = "0" if st == 0 else v(D0, 4)
        a(f"  v_mfma_f32_16x16x32_bf16 {v(D0,4)}, {v(WUB+4*st,4)}, {v(XF+4*st,4)}, {c}")
    for st in range(4):
        a(f"  ds_read_b128 {v(D1+4*st,4)}, v{vxb} offset:{2*16*XS + st*64}")
    a("  s_waitcnt lgkmcnt(4)")
    for st in range(4):
        c = "0" if st == 0 else v(D0+4, 4)
        a(f"  v_mfma_f32_16x16x32_bf16 {v(D0+4,4)}, {v(WUB+4*st,4)}, {v(XF+16+4*st,4)}, {c}")
    a("  s_waitcnt lgkmcnt(0)")
    for st in range(4):
        c = "0" if st == 0 else v(D0+8, 4)
        a(f"  v_mfma_f32_16x16x32_bf16 {v(D0+8,4)}, {v(WUB+4*st,4)}, {v(D1+4*st,4)}, {c}")
    a(f"""
  s_mov_b32 s{sK}, {NLN2}
  s_mov_b32 s{sK+1}, {NLN2}
  s_mov_b32 s{sTmp}, {NLOG2E}
  s_mov_b32 s{sTmp+1}, {NLOG2E}
  v_and_b32 v{t0}, 15, v{vl}
  v_lshlrev_b32 v{t0}, 8, v{t0}
  v_lshrrev_b32 v{t1}, 4, v{vl}
  v_lshl_add_u32 v{t0}, v{t1}, 3, v{t0}
  s_lshl_b32 s{sTmp+2}, s{sW}, 5
  v_add_u32 v{t0}, s{sTmp+2}, v{t0}
  v_add_u32 v{t1}, 4096, v{t0}
  v_add_u32 v{t2}, 8192, v{t0}""")
    for nt in range(3):
        d = D0 + 4*nt
        a(f"""
  v_pk_fma_f32 {p(d)}, {p(d)}, {s(sK,2)}, {p(U+4*nt)}
  v_pk_fma_f32 {p(d+2)}, {p(d+2)}, {s(sK,2)}, {p(U+4*nt+2)}
  v_pk_mul_f32 {p(EA)}, {p(d)}, {s(sTmp,2)}
  v_pk_mul_f32 {p(EA+2)}, {p(d+2)}, {s(sTmp,2)}""")
        for i in range(4): a(f"  v_exp_f32 v{EA+i}, v{EA+i}")
        a(f"  s_nop 0\n  v_pk_add_f32 {p(EA)}, {p(EA)}, 1.0 op_sel_hi:[1,0]\n  v_pk_add_f32 {p(EA+2)}, {p(EA+2)}, 1.0 op_sel_hi:[1,0]")
        for i in range(4): a(f"  v_rcp_f32 v{EA+i}, v{EA+i}")
        a(f"""
  s_nop 0
  v_pk_mul_f32 {p(d)}, {p(d)}, {p(EA)}
  v_pk_mul_f32 {p(d+2)}, {p(d+2)}, {p(EA+2)}
  v_cvt_pk_bf16_f32 v{EB+2*nt}, v{d}, v{d+1}
  v_cvt_pk_bf16_f32 v{EB+2*nt+1}, v{d+2}, v{d+3}
  buffer_store_dwordx2 {v(EB+2*nt,2)}, v{t0+nt}, {s(SO,4)}, 0 offen""")
    if OPT["stamp"]:
        a(f"""
  s_waitcnt vmcnt(0)
  s_memrealtime s[4:5]
  s_waitcnt lgkmcnt(0)
  s_lshl_b32 s6, s2, 3
  s_add_u32 s6, s6, s{sW}
  s_lshl_b32 s6, s6, 6
  s_add_u32 s6, s6, {WS_STAMP}
  s_add_u32 s6, s{pWS}, s6
  s_addc_u32 s7, s{pWS+1}, 0
  s_mov_b64 exec, 1
  v_mov_b32 v1, 0""")
        for i, r in enumerate([80+2*i for i in range(8)] + [96, 98, 4]):
            pass
        regs = [80, 82, 84, 86, 88, 90, 92, 94, 8, 9, 4, 10, 11, sT]
        for i, r in enumerate(regs):
            a(f"  v_mov_b32 v2, s{r}\n  global_store_dword v1, v2, s[6:7] offset:{4*i}")
    a(f"""
K_END:
  s_endpgm
""")
    a(f"""
K_PREP:
  s_sub_u32 s{sq}, s2, {2*G}
  s_lshl_b32 s{sq}, s{sq}, 14
  s_lshl_b32 s{sq+1}, s{sW}, 12
  s_add_u32 s{sq}, s{sq}, s{sq+1}
  v_lshlrev_b32 v{t0}, 4, v{vl}
  v_mov_b32 v{t7}, s{sTag}
  s_waitcnt vmcnt(10)
  s_barrier""")
    wtr(PF, vqa)
    a("  s_waitcnt lgkmcnt(0)")
    for st in range(4):
        a(f"  buffer_store_dwordx4 {v(PF+4*st,4)}, v{t0}, {s(SW,4)}, s{sq} offen offset:{st*1024} sc1")
    a(f"""
  s_lshr_b32 s{sq}, s{sW}, 2
  s_add_u32 s{sq}, s{sq}, s2
  s_cmp_lg_u32 s{sq}, {2*G}
  s_cbranch_scc1 K_PREPD
  s_mov_b32 s{sq+1}, {NLOG2E}
  s_lshl_b32 s{sq}, s{sW}, 10
  s_waitcnt vmcnt(6)""")
    for jj in range(8):
        a(f"  v_lshlrev_b32 v{D0+jj}, 16, v{D0+jj}\n  v_mul_f32 v{D0+jj}, s{sq+1}, v{D0+jj}")
    for i in range(4):
        a(f"  v_cvt_pk_bf16_f32 v{D0+8+i}, v{D0+2*i}, v{D0+1+2*i}")
    for i in range(4):
        a(f"""
  v_lshlrev_b32 v{t2}, 16, v{D0+8+i}
  v_and_b32 v{t3}, 0xffff0000, v{D0+8+i}
  v_sub_f32 v{t2}, v{D0+2*i}, v{t2}
  v_sub_f32 v{t3}, v{D0+1+2*i}, v{t3}
  v_cvt_pk_bf16_f32 v{D0+12+i}, v{t2}, v{t3}""")
    a(f"""
  s_add_u32 s{sq+1}, s{sq}, {WF_3L}
  s_add_u32 s{sq}, s{sq}, {WF_3H}
  buffer_store_dwordx4 {v(D0+8,4)}, v{t0}, {s(SW,4)}, s{sq} offen sc1
  buffer_store_dwordx4 {v(D0+12,4)}, v{t0}, {s(SW,4)}, s{sq+1} offen sc1
K_PREPD:""")
    own_x(4)
    a(f"""
  s_waitcnt vmcnt(0)
  s_barrier
  s_cmp_eq_u32 s{sW}, 0
  s_cbranch_scc1 K_FLAG
  s_branch K_PST""")
    a(f"""
K_OVF:
  s_waitcnt lgkmcnt(0)
  s_barrier
  s_mul_i32 s{sq+1}, s2, {OVSTR//2}
  s_add_u32 s{sq+1}, s{sq+1}, 64
  v_mov_b32 v{t5}, {L_FLG+8}
  v_mov_b32 v{t6}, -1""")
    for j in range(5):
        a(f"""
  v_cmp_le_u32 vcc, {CAP-1}, v{RK+j}
  s_and_b64 exec, exec, vcc
  s_cbranch_execz K_OV{j}
  v_add_u32 v{t1}, {L_BCNT}, v{B4+j}
  ds_read_b32 v{t1}, v{t1}
  s_waitcnt lgkmcnt(0)
  v_cmp_ne_u32 vcc, {CAP}, v{t1}
  s_nop 1
  v_cndmask_b32 v{t3}, v{SS_+j}, v{t6}, vcc
  ds_write_b32 v{CA+j}, v{t3} offset:{CELLB-8}
  s_and_b64 exec, exec, vcc
  s_cbranch_execz K_OV{j}
  ds_add_rtn_u32 v{t1}, v{t5}, v{vone}
  v_mov_b32 v{CV}, v{SS_+j}
  v_lshrrev_b32 v{CV+1}, 2, v{B4+j}
  s_waitcnt lgkmcnt(0)
  v_lshl_add_u32 v{t1}, v{t1}, 3, s{sq+1}
  buffer_store_dwordx2 {v(CV,2)}, v{t1}, {s(SV,4)}, 0 offen sc1
  s_waitcnt vmcnt(0)
K_OV{j}:
  s_mov_b64 exec, -1""")
    a(f"""
  s_waitcnt lgkmcnt(0)
  s_barrier
  ds_read_b32 v{t1}, v{t5}
  s_sub_u32 s{sq+1}, s{sq+1}, 64
  v_mov_b32 v{t3}, s{sq+1}
  v_mov_b32 v{t2}, 0
  s_waitcnt lgkmcnt(0)
  buffer_store_dword v{t1}, v{t3}, {s(SV,4)}, 0 offen sc1
  s_waitcnt vmcnt(0)
  s_branch K_OVFDONE""")
    for u in range(OPT["unroll"] - 1):
        a(f"K_OX{u}:\n  s_cmp_eq_u32 s{sCnt}, 0\n  s_cbranch_scc1 K_LOOPEND")
        for x in incs(u + 1): a(x)
        a("  s_branch K_QUAD")
    loop("quad")
    a("  s_branch K_LOOPEND")
    loop("safe")
    a("  s_branch K_LOOPEND")
    a(f"""
K_NOGEMM0:
  s_waitcnt vmcnt(0)
  s_branch K_NOGEMM
K_RESTART:
  s_mov_b32 s{sMode}, 1
  s_mov_b32 s{sKind}, 0
  s_waitcnt lgkmcnt(0)
  s_barrier
  v_mov_b32 v{CV}, 0
  v_mov_b32 v{CV+1}, 0
  v_mov_b32 v{CV+2}, 0
  v_mov_b32 v{CV+3}, 0""")
    for j in range(5):
        a(f"  ds_write_b128 v{vt16}, {v(CV,4)} offset:{L_ACC + j*8192}")
    a(f"""
  v_cmp_gt_u32 vcc, {(40*AS-5*8192)//16}, v0
  s_and_saveexec_b64 {s(sEx,2)}, vcc
  ds_write_b128 v{vt16}, {v(CV,4)} offset:{L_ACC + 5*8192}
  s_mov_b64 exec, {s(sEx,2)}
  s_branch K_RELOAD
K_SPLIT:
  s_mov_b32 s{sKind}, 1
  s_waitcnt lgkmcnt(0)
  s_barrier
  s_branch K_RELOAD
K_NEXT:
  s_cmp_eq_u32 s{sKind}, 4
  s_cbranch_scc1 K_NEXTOV
  s_cmp_eq_u32 s{sKind}, 3
  s_cbranch_scc1 K_OVPART1
  s_cmp_eq_u32 s{sKind}, 2
  s_cbranch_scc1 K_CELLSDONE
  s_mov_b32 s{sKind}, 2
K_RELOAD:
  v_lshrrev_b32 v{t1}, 2, v0
  s_mov_b32 s{sq}, {CH*32}
  v_mul_u32_u24 v{vebase}, s{sq}, v{t1}
  s_waitcnt vmcnt(0)""")
    for k in range(2):
        a(f"  buffer_load_dwordx4 {v(REC+4*k,4)}, v{vcell}, {s(SC,4)}, 0 offen offset:{64*k} sc1")
    a(f"""
  s_waitcnt vmcnt(0)
  s_mov_b32 exec_lo, 0xaaaaaaaa
  s_mov_b32 exec_hi, 0xaaaaaaaa
  v_mov_b32 v{REC+3}, 0
  v_mov_b32 v{REC+7}, 0
  s_mov_b64 exec, -1
  s_cmp_eq_u32 s{sKind}, 0
  s_cbranch_scc1 K_ROUND
  s_lshr_b32 s{sq}, s{sW}, 2
  s_add_u32 s{sq}, s{sq}, 1
  s_cmp_eq_u32 s{sq}, s{sKind}
  s_cbranch_scc1 K_ROUND""")
    for k in range(NR): a(f"  v_mov_b32 v{REC+k}, 0")
    a(f"""
K_ROUND:
  v_mov_b32 v{CV}, 0
  v_mov_b32 v{CV+1}, 0
  v_mov_b32 v{CV+2}, 0
  v_mov_b32 v{CV+3}, 0
  v_cmp_gt_u32 vcc, {(L_FLG-L_GN)//16}, v0
  s_and_saveexec_b64 {s(sEx,2)}, vcc
  ds_write_b128 v{vt16}, {v(CV,4)} offset:{L_GN}
  s_mov_b64 exec, {s(sEx,2)}""")
    prefill()
    a(f"""
  v_and_b32 v{vent}, 2047, v{vent}
  v_and_b32 v{vrow}, 2047, v{vrow}
  v_subrev_u32 v{vga}, {L_GN}, v{vga}
  v_and_b32 v{vga}, 255, v{vga}
  v_add_u32 v{vga}, {L_GN}, v{vga}
  v_and_b32 v{t2}, 12, v{vl}
  v_add_u32 v{vgq}, v{vga}, v{t2}
  s_waitcnt lgkmcnt(0)
  s_barrier
  s_branch K_PHASE1
K_STARTOV:""")
    for i in range(4): a(f"  v_readfirstlane_b32 s{sOV+i}, v{CV+i}")
    a(f"""
  s_mov_b32 s{sKind}, 4
  s_waitcnt lgkmcnt(0)
K_NEXTOV:""")
    for i in range(2):
        a(f"""
  s_ff1_i32_b64 s{sP}, {s(sOV+2*i,2)}
  s_cmp_eq_u32 s{sP}, -1
  s_cbranch_scc1 K_OVN{i}
  s_bitset0_b64 {s(sOV+2*i,2)}, s{sP}
  s_add_u32 s{sP}, s{sP}, {64*i}
  s_branch K_OVGO
K_OVN{i}:""")
    a(f"""
  s_branch K_CONV
K_OVGO:
  s_mov_b32 s{sKind}, 3
  v_mov_b32 v{t4}, v0
  s_branch K_OVLD
K_OVPART1:
  s_mov_b32 s{sKind}, 4
  v_add_u32 v{t4}, 2048, v0
K_OVLD:
  s_mul_i32 s{sq}, s{sP}, {OVSTR}
  s_mul_i32 s{sq+1}, s{sP}, {CH*32}
  v_mov_b32 v{vebase}, s{sq+1}
  v_mov_b32 v{t0}, s{sq}
  buffer_load_dword v{t1}, v{t0}, {s(SV,4)}, 0 offen sc1
  v_lshl_add_u32 v{t2}, v{t4}, 3, v{t0}""")
    for k in range(4):
        a(f"  buffer_load_dwordx2 {v(PF+2*k,2)}, v{t2}, {s(SV,4)}, 0 offen offset:64 sc1\n  v_add_u32 v{t2}, 4096, v{t2}")
    a(f"  s_waitcnt vmcnt(0)")
    for k in range(4):
        a(f"""
  v_cmp_lt_u32 vcc, v{t4}, v{t1}
  v_cmp_eq_u32 {s(sEx,2)}, s2, v{PF+2*k+1}
  s_and_b64 vcc, vcc, {s(sEx,2)}
  v_add_u32 v{t4}, 512, v{t4}
  s_nop 1
  v_cndmask_b32 v{REC+k}, 0, v{PF+2*k}, vcc""")
    for k in range(4, NR): a(f"  v_mov_b32 v{REC+k}, 0")
    a("  s_branch K_ROUND")
    return a.text(), nv, NS

def gen_diag(idx):
    a = Asm()
    a(f"""
.globl mpnn_d_kernel
.p2align 8
.type mpnn_d_kernel,@function
mpnn_d_kernel:
  s_cmp_ge_u32 s2, 1
  s_cbranch_scc1 D_END
  s_load_dwordx2 s[4:5], s[0:1], 64
  s_waitcnt lgkmcnt(0)
  s_add_u32 s4, s4, {WS_STAMP + (OPT['wsb'] << 20)}
  s_addc_u32 s5, s5, 0
  s_load_dword s6, s[4:5], 0
  s_waitcnt lgkmcnt(0)
  s_sub_u32 s6, s6, 100000""")
    for q, (ix, ismax) in enumerate(((idx, 1), (0, 0))):
        op = "max" if ismax else "min"
        a(f"  v_lshlrev_b32 v1, {6 if not OPT['dodd'] else 10}, v0\n  v_add_u32 v1, {ix*4 + (512 + 64*(OPT['dodd']-1) if OPT['dodd'] else 0)}, v1\n  v_mov_b32 v3, {0 if ismax else -1}")
        nk = 32 if not OPT['dodd'] else 2
        for k in range(nk):
            a(f"  global_load_dword v{8+k}, v1, s[4:5]\n  v_add_u32 v1, {4096 if not OPT['dodd'] else 65536}, v1")
        a("  s_waitcnt vmcnt(0)")
        for k in range(nk):
            a(f"  v_subrev_u32 v2, s6, v{8+k}\n  v_{op}_u32 v3, v3, v2")
        a(f"  s_mov_b32 s{20+q}, {0 if ismax else -1}\n  s_nop 1")
        for l in range(64):
            a(f"  v_readlane_b32 s8, v3, {l}\n  s_nop 0\n  s_{op}_u32 s{20+q}, s{20+q}, s8")
    a(f"""
  s_sub_u32 s20, s20, s21
  s_min_u32 s20, s20, 20000
  s_lshl_b32 s20, s20, 3
  {'s_mov_b32 s20, 0' if OPT['dz'] else ''}
  s_memrealtime s[8:9]
  s_waitcnt lgkmcnt(0)
D_L:
  s_memrealtime s[10:11]
  s_waitcnt lgkmcnt(0)
  s_sub_u32 s12, s10, s8
  s_cmp_lt_u32 s12, s20
  s_cbranch_scc1 D_L
D_END:
  s_endpgm
""")
    return a.text()

HEAD = """; Kernarg layout for this problem (72 bytes, ptrs only, base s[0:1]):
"""
def main():
    k, nv, ns = gen()
    out = HEAD + f"; @launch grid=({NB},1,1) block=(512,1,1) lds={LDS}\n"
    if OPT["diag"] >= 0:
        out = HEAD + f"; @launch kernel={KN} grid=({NB},1,1) block=(512,1,1) lds={LDS}\n; @launch kernel=mpnn_d_kernel grid=(1,1,1) block=(64,1,1) lds=0\n"
        k += gen_diag(OPT["diag"])
    out += '.amdgcn_target "amdgcn-amd-amdhsa--gfx950"\n.text\n' + k
    out += f""".section .rodata,"a"
.p2align 6
.amdhsa_kernel {KN}
  .amdhsa_next_free_vgpr {nv}
  .amdhsa_next_free_sgpr {ns}
  .amdhsa_accum_offset {(nv+3)//4*4}
  .amdhsa_group_segment_fixed_size 0
  .amdhsa_kernarg_size 72
  .amdhsa_user_sgpr_count 2
  .amdhsa_user_sgpr_kernarg_segment_ptr 1
  .amdhsa_system_sgpr_workgroup_id_x 1
.end_amdhsa_kernel
"""
    if OPT["diag"] >= 0:
        out += """.p2align 6
.amdhsa_kernel mpnn_d_kernel
  .amdhsa_next_free_vgpr 48
  .amdhsa_next_free_sgpr 32
  .amdhsa_accum_offset 48
  .amdhsa_group_segment_fixed_size 0
  .amdhsa_kernarg_size 72
  .amdhsa_user_sgpr_count 2
  .amdhsa_user_sgpr_kernarg_segment_ptr 1
  .amdhsa_system_sgpr_workgroup_id_x 1
.end_amdhsa_kernel
"""
    open(sys.argv[1], "w").write(out)
    print("vgprs", nv, "lds", LDS)
main()
```

```python
from common import *

N = 10000; E = 320000
G = 125
CH = 2560
NB = 256
MAGIC = 26843
CAP = 28
CELLB = 128
BSTR = G * CELLB

WS_P = 256
WS_CELL = 0x280000
WS_WF = 0x1280000
WF_W2, WF_UT, WF_UB, WF_3H, WF_3L = 0, 32768, 65536, 98304, 102400
WF_SIZE = 106496
WS_OVF = 0x12A0000
OVSTR = 64 + CH * 8
WS_FLAG = 0x1520000
WS_STAMP = 0x1600000

OPT = dict(lo=0, k8=1, stamp=0, nodma=0, noadd=0, noe=0, hot=0, align=1, unroll=2, dmapos=0, rdpos=0, dsc=1, pf=1, slp=0, stf=1, addpos=0, rdgap=0, prio=0, bench=0, octo=1, frep=8, fln=16, slp0=0, plf=1, flf=1, diag=-1, touch=0, dz=0, abl=0, dodd=0, wsb=0, claim=0, slpa=0, slpb=0)
for a_ in sys.argv[2:]:
    k_, v_ = a_.split("="); OPT[k_] = int(v_)
EXP = OPT["bench"] or OPT["nodma"] or OPT["noe"] or OPT["noadd"] or OPT["hot"]

FL_ = ['', 'sc1', 'sc0 sc1', 'sc1 nt', 'sc0 sc1 nt']; PLF = FL_[OPT['plf']]; FLF = FL_[OPT['flf']]
STF = ['', 'sc1', 'sc0 sc1', 'sc1 nt'][OPT['stf']]
FREP = OPT['frep']; FLN = OPT['fln']; FSH = (128//FLN).bit_length()-1; FHALF = FREP*FLN*256; FNON = 2*FHALF; FMASK = hex((1<<FREP)-1)
NCL = 3 if OPT['claim'] & 1 else 0
NCC = 4 if OPT['claim'] & 2 else 0
CAPB = 70
L_ENT = 0
L_GN = (CAPB + 1) * 256
L_CNT = L_GN + (CAPB + 17) * 32
L_FLG = L_CNT + 256
L_ACC = L_FLG + 64
AS = 1040
L_Q = L_ACC + 40 * AS
QS = 320
L_X = L_Q + 40 * QS
XS = 288
L_STG = L_X + 40 * XS
STG = 8 * 1040 + 1024
LDS = L_STG + 8 * STG
L_CIMG = L_STG
L_BCNT = L_CIMG + NB * CELLB
WPITCH = 1088
L_GP = L_STG + 1024
L_WS = L_STG + 32 * WPITCH
assert L_BCNT + 1024 <= LDS and L_STG % 16 == 0 and L_ACC % 16 == 0
PADS, PADE = 0x8000003f, 0x80000000
KN = "standalone__mpnn_edge_mlp__graph_kernel"

def stamp(a, i, cyc=None):
    if OPT["stamp"]:
        if cyc is None:
            a(f"  s_memrealtime s[{80+2*i}:{81+2*i}]\n  s_waitcnt lgkmcnt(0)")
        else:
            a(f"  s_memrealtime s[96:97]\n  s_memtime s[98:99]\n  s_waitcnt lgkmcnt(0)\n  s_mov_b32 s{i}, s96\n  s_mov_b32 s{i+2}, s98")

def gen():
    a = Asm()
    R = Regs(1)
    al = R.alloc
    vl = al("lane")
    t0 = al("t", 8, 2); t1, t2, t3, t4, t5, t6, t7 = range(t0+1, t0+8)
    vchunk = al("vchunk"); vechunk = al("vechunk")
    vent = al("vent"); vrow = al("vrow"); vgq = al("vgq"); vga = al("vga")
    vAlo = al("Alo"); vAhi = al("Ahi"); vEF = al("vEF")
    vqlane = al("vqlane"); vacl = al("vacl"); vxb = al("vxb"); vqw = al("vqw")
    vebase = al("vebase"); vone = al("vone"); vt16 = al("vt16"); vcell = al("vcell")
    vqa = al("vqa"); vsrow = al("vsrow"); vgn1 = al("vgn1")
    ENT = al("ENT", 2, 2)
    MAC = al("MAC", 2, 2)
    PAT = al("PAT", 2, 2)
    nq = 2 if OPT["k8"] else 4
    AQ = al("AQ", nq, 2)
    GN = al("GN", 4, 2); AD = al("AD", 4)
    DO = al("DO", 2)
    I0 = al("I0", 4, 2); I1 = al("I1", 4, 2)
    W3 = al("W3", 16, 2)
    W3L = al("W3L", 16, 2) if OPT["lo"] else None
    BQ = al("BQ", 4*nq, 2)
    EF = al("EF", 4, 2)
    PF = al("PF", 32, 2)
    D0 = al("D0", 16, 2); D1 = al("D1", 16, 2)
    EA = al("EA", 8, 2); TA = al("TA", 8, 2); EB = al("EB", 8, 2); TB = al("TB", 8, 2)
    RA = al("RA", 2, 2); RB = al("RB", 2, 2)
    SA = al("SA", 2, 2); SB = al("SB", 2, 2)
    CV = al("CV", 8, 2)
    U = al("U", 12, 2); WUB = al("WUB", 16, 2)
    DUM = al("DUM", 4, 2)
    DK = al("DK", 4, 2)
    nv = R.n
    assert TA == EA + 8 and EB == EA + 16 and TB == EA + 24 and D1 == D0 + 16
    DD = D0; SS_ = D0 + 5; B4 = D0 + 10; RK = D0 + 15; CA = D0 + 20
    CP = PF
    GX = W3
    XL = U
    W1F = WUB
    REC = D0; NOD = D0 + 8; RNK = D1
    W2F = EA; WUT = EB; XF = PF; QD = CV
    sW = 3
    pX, pE, pS, pD, pWM, pWU, pO, pWS = 4, 6, 8, 10, 12, 14, 16, 18
    SP, SE, SC, SW, SO, SV, SF = 20, 24, 28, 32, 36, 40, 44
    T0, T1, T2 = 48, 52, 56
    sStart, sNb, sStg, sCnt, sT, sMode, sKind, sFirst = 60, 61, 62, 63, 64, 65, 66, 67
    sAS, sQS, sTag, sP, sUB, sLo2 = 68, 69, 70, 71, 72, 73
    sCO = 59
    sNp = 79
    sEx, sK, sBad = 74, 76, 78
    sTmp = 4
    sA = 48
    sOV = 48
    sOVT = 74
    sq = 100
    if OPT["stamp"]: NS = 102
    else: NS = 102

    a(f"""
.globl {KN}
.p2align 8
.type {KN},@function
{KN}:
  s_cmp_ge_u32 s2, {NB}
  s_cbranch_scc1 K_END""")
    if OPT["stamp"]: a("  s_memrealtime s[80:81]")
    a(f"""
  s_load_dwordx8 s[4:11], s[0:1], 0
  s_load_dwordx4 s[12:15], s[0:1], 32
  s_load_dwordx2 s[16:17], s[0:1], 48
  s_load_dwordx2 s[18:19], s[0:1], 64
  v_lshrrev_b32 v{t0}, 6, v0
  v_and_b32 v{vl}, 63, v0
  s_and_b32 s{sP}, s2, {FREP-1}
  s_mul_i32 s{sP}, s{sP}, {FLN*256}
  s_and_b32 s{sq}, s2, 7
  s_lshl_b32 s{sq}, s{sq}, 1
  s_bfe_u32 s{sq+1}, s2, 0x10003
  s_and_b32 s2, s2, 0xf0
  s_or_b32 s2, s2, s{sq}
  s_or_b32 s2, s2, s{sq+1}
  s_mul_i32 s{sStart}, s2, 640013
  v_readfirstlane_b32 s{sW}, v{t0}
  s_add_u32 s{sNb}, s{sStart}, {640013+16383}
  s_add_u32 s{sStart}, s{sStart}, 16383
  s_sub_u32 s{sNp}, s{sStart}, 640013
  s_lshr_b32 s{sStart}, s{sStart}, 14
  s_lshr_b32 s{sNb}, s{sNb}, 14
  s_lshr_b32 s{sNp}, s{sNp}, 14
  s_min_u32 s{sNb}, s{sNb}, {N}
  s_sub_u32 s{sCnt}, s{sNb}, s{sNp}
  s_sub_u32 s{sNb}, s{sNb}, s{sStart}
  s_lshl_b32 s{sT}, s{sNp}, 8
  s_sub_u32 s{sNp}, s{sStart}, s{sNp}
  s_mov_b32 s{sMode}, 0
  s_mov_b32 s{sKind}, 0
  s_mov_b32 s{sFirst}, 1
  s_mov_b32 s{sAS}, {AS}
  s_mov_b32 s{sQS}, {QS}
  s_mul_i32 s{sStg}, s{sW}, {STG}
  s_add_u32 s{sStg}, s{sStg}, {L_STG}
  v_lshlrev_b32 v{vt16}, 4, v0
  s_mul_i32 s{sq}, s2, {CH*2}
  v_lshl_add_u32 v{t2}, v0, 2, s{sq}
  v_add_u32 v{t3}, 4096, v{t2}
  v_lshrrev_b32 v{t4}, 4, v{vl}
  v_lshlrev_b32 v{t0}, 1, v{t4}
  v_xor_b32 v{t0}, v{t0}, v{vl}
  v_lshlrev_b32 v{t0}, 4, v{t0}
  s_lshl_b32 s{sq}, s{sW}, 12
  v_add_u32 v{t7}, s{sq}, v{t0}
  s_mul_i32 s{sUB}, s{sW}, {4*WPITCH}
  s_add_u32 s{sUB}, s{sUB}, {L_WS}
  v_add_u32 v{t6}, 8192, v{vt16}
  v_add_u32 v{t5}, 16384, v{vt16}
  s_waitcnt lgkmcnt(0)
  {"s_add_u32 s%d, s%d, %d" % (pWS, pWS, OPT["wsb"] << 20) + chr(10) + "  s_addc_u32 s%d, s%d, 0" % (pWS+1, pWS+1) if OPT["wsb"] else ""}
  s_bitcmp1_b32 s2, 0
  s_cbranch_scc1 K_LDG
  s_cmp_ge_u32 s2, {2*G}
  s_cbranch_scc1 K_LDP""")
    srd(a, T0, pD, E*4)
    srd(a, T1, pS, E*4)
    a(f"  s_movk_i32 s{sq}, 0x2000")
    for r_, T in ((DD, T0), (SS_, T1)):
        a(f"""
  buffer_load_dword v{r_}, v{t2}, {s(T,4)}, 0 offen
  buffer_load_dword v{r_+1}, v{t2}, {s(T,4)}, 0 offen offset:2048
  buffer_load_dword v{r_+2}, v{t3}, {s(T,4)}, 0 offen
  buffer_load_dword v{r_+3}, v{t3}, {s(T,4)}, 0 offen offset:2048
  buffer_load_dword v{r_+4}, v{t2}, {s(T,4)}, s{sq} offen""")
    if OPT["claim"] & 2:
        srd(a, T2, pWS, NB*BSTR, add=WS_CELL)
        a(f"""
  v_lshrrev_b32 v{t4}, 3, v0
  s_mov_b32 s{sq}, {BSTR}
  v_mul_u32_u24 v{t4}, s{sq}, v{t4}
  v_and_b32 v{t0}, 7, v0
  v_lshl_add_u32 v{t4}, v{t0}, 4, v{t4}
  s_lshl_b32 s{sq}, s2, 6
  v_mov_b32 v{PF}, 0
  v_mov_b32 v{PF+1}, 0
  v_mov_b32 v{PF+2}, 0
  v_mov_b32 v{PF+3}, 0""")
        for j in range(4):
            a(f"  buffer_store_dwordx4 {v(PF,4)}, v{t4}, {s(T2,4)}, s{sq} offen sc1\n  s_add_u32 s{sq}, s{sq}, {64*BSTR}")
    def wdma(T):
        for q in range(4):
            a(f"  s_add_u32 m0, s{sUB}, {64*q}\n  s_nop 0\n  buffer_load_dwordx4 v{t7}, {s(T,4)}, 0 offen offset:{1024*q} lds")
    a(f"""
K_LDX:
  s_lshl_b32 s{sq}, s{sStart}, 8
  s_lshl_b32 s{sq+1}, s{sNb}, 8""")
    srd(a, T2, pX, f"s{sq+1}", addreg=sq)
    a(f"""
  buffer_load_dwordx4 {v(XL,4)}, v{vt16}, {s(T2,4)}, 0 offen
  buffer_load_dwordx4 {v(XL+4,4)}, v{t6}, {s(T2,4)}, 0 offen
  s_branch K_LD3
K_LDP:
  s_cmp_eq_u32 s2, {2*G}
  s_cselect_b32 s{T1}, s{pWM}, s{pWU}
  s_cselect_b32 s{T1+1}, s{pWM+1}, s{pWU+1}
  s_cmp_eq_u32 s2, {2*G+2}
  s_cselect_b32 s{sq}, 0, 32768
  s_add_u32 s{T1}, s{T1}, s{sq}
  s_addc_u32 s{T1+1}, s{T1+1}, 0
  s_mov_b32 s{T1+2}, 32768
  s_mov_b32 s{T1+3}, 0x20000""")
    wdma(T1)
    srd(a, T0, pWM, 16*256, add=256*256)
    a(f"""
  v_and_b32 v{t0}, 31, v{vl}
  v_lshrrev_b32 v{t1}, 5, v{vl}
  v_lshlrev_b32 v{t1}, 11, v{t1}
  v_lshl_add_u32 v{t1}, v{t0}, 1, v{t1}
  s_and_b32 s{sq}, s{sW}, 3
  s_lshl_b32 s{sq}, s{sq}, 6""")
    for jj in range(8):
        a(f"  buffer_load_ushort v{D0+jj}, v{t1}, {s(T0,4)}, s{sq} offen offset:{jj*256}")
    a(f"""
  s_branch K_LDX
K_LDG:
  s_lshl_b32 s{sCnt}, s{sCnt}, 8""")
    srd(a, T0, pX, f"s{sCnt}", addreg=sT)
    srd(a, T1, pWM, 128*256)
    a(f"""
  buffer_load_dwordx4 {v(GX,4)}, v{vt16}, {s(T0,4)}, 0 offen
  buffer_load_dwordx4 {v(GX+4,4)}, v{t6}, {s(T0,4)}, 0 offen
  buffer_load_dwordx4 {v(GX+8,4)}, v{t5}, {s(T0,4)}, 0 offen""")
    wdma(T1)
    if OPT["claim"] & 1:
        srd(a, T2, pWS, f"s{sCnt}", add=WS_P, addreg=sT)
        for r_ in (vt16, t6, t5):
            a(f"  buffer_store_dwordx4 {v(PF,4)}, v{r_}, {s(T2,4)}, 0 offen sc1")
    a(f"""
K_LD3:
  s_add_u32 s{SF}, s{pWS}, {WS_FLAG}
  s_addc_u32 s{SF+1}, s{pWS+1}, 0
  s_load_dword s{sTag}, s[{SF}:{SF+1}], {FNON}
  s_mov_b32 s{SF+2}, {FNON+4}
  s_mov_b32 s{SF+3}, 0x20000
  v_lshrrev_b32 v{t1}, 2, v0
  v_and_b32 v{t4}, 3, v0
  v_lshlrev_b32 v{t4}, 4, v{t4}
  v_lshl_add_u32 v{vcell}, v{t1}, 7, v{t4}
  s_mov_b32 s{sq}, {CH*32}
  v_mul_u32_u24 v{vebase}, s{sq}, v{t1}""")
    a(f"""
  v_mov_b32 v{CV}, 0
  v_mov_b32 v{CV+1}, 0
  v_mov_b32 v{CV+2}, 0
  v_mov_b32 v{CV+3}, 0
  v_add_u32 v{t0}, {L_CIMG}, v{vt16}""")
    a(f"  s_bitcmp1_b32 s2, 0\n  s_cbranch_scc1 K_NOZ")
    for j in range(4):
        a(f"  ds_write_b128 v{t0}, {v(CV,4)} offset:{j*8192}")
    a(f"  s_cmp_lg_u32 s{sW}, 0\n  s_cbranch_scc1 K_NOZ\n  ds_write_b128 v{t0}, {v(CV,4)} offset:32768")
    a("K_NOZ:")
    for j in range(5):
        a(f"  ds_write_b128 v{vt16}, {v(CV,4)} offset:{L_GN + j*8192}")
    a(f"""
  v_cmp_gt_u32 vcc, {(L_Q-L_GN-5*8192)//16}, v0
  s_and_saveexec_b64 {s(sEx,2)}, vcc
  ds_write_b128 v{vt16}, {v(CV,4)} offset:{L_GN + 5*8192}
  s_mov_b64 exec, {s(sEx,2)}""")
    def prefill():
        a(f"""
  v_mov_b32 v{CV+4}, {PADS}
  v_mov_b32 v{CV+5}, {PADE}
  v_mov_b32 v{CV+6}, {PADS}
  v_mov_b32 v{CV+7}, {PADE}
  ds_write_b128 v{vt16}, {v(CV+4,4)}
  ds_write_b128 v{vt16}, {v(CV+4,4)} offset:8192
  v_cmp_gt_u32 vcc, {(L_GN-16384)//16}, v0
  s_and_saveexec_b64 {s(sEx,2)}, vcc
  ds_write_b128 v{vt16}, {v(CV+4,4)} offset:16384
  s_mov_b64 exec, {s(sEx,2)}""")
    prefill()
    a(f"  s_mul_i32 s{sq}, s2, {BSTR}\n  s_lshl_b32 s{sq+1}, s{sStart}, 8\n  s_lshl_b32 s{sK}, s{sNb}, 8")
    srd(a, SC, pWS, G*CELLB, add=WS_CELL, addreg=sq)
    srd(a, SP, pWS, (N+1)*256)
    srd(a, SE, pE, E*32)
    srd(a, SW, pWS, WF_SIZE, add=WS_WF)
    srd(a, SO, pO, f"s{sK}", addreg=sq+1)
    srd(a, SV, pWS, G*OVSTR, add=WS_OVF)
    a(f"""
  v_mov_b32 v{vone}, 1
  v_mov_b32 v{MAC}, 0
  v_mov_b32 v{MAC+1}, 0
  v_and_b32 v{t0}, 15, v{vl}                 ; l&15
  v_bfe_u32 v{t1}, v{vl}, 4, 1               ; r4&1
  v_lshlrev_b32 v{t2}, 3, v{t1}
  v_xor_b32 v{t2}, v{t0}, v{t2}
  v_lshlrev_b32 v{vchunk}, 4, v{t2}
  v_and_b32 v{t2}, 1, v{vl}
  v_xor_b32 v{t2}, v{t2}, v{t1}
  v_lshlrev_b32 v{vechunk}, 4, v{t2}
  v_lshrrev_b32 v{t2}, 4, v{vl}
  v_lshlrev_b32 v{t2}, 6, v{t2}
  v_lshrrev_b32 v{t4}, 1, v{t0}
  v_lshl_add_u32 v{t2}, v{t4}, 3, v{t2}
  s_lshl_b32 s{sq}, s{sW}, 8
  v_add_u32 v{vent}, s{sq}, v{t2}
  v_bfe_u32 v{t2}, v{vl}, 2, 1               ; h
  v_and_b32 v{t4}, 1, v{vl}                  ; xy
  v_lshl_add_u32 v{t5}, v{t2}, 1, v{t4}      ; r4
  v_bfe_u32 v{t6}, v{vl}, 3, 2
  v_bfe_u32 v{t7}, v{vl}, 1, 1
  v_lshl_add_u32 v{t6}, v{t6}, 1, v{t7}      ; j
  v_lshl_add_u32 v{t7}, v{t5}, 3, v{t6}      ; q = 8 r4 + j
  v_lshlrev_b32 v{t7}, 3, v{t7}
  v_add_u32 v{vrow}, s{sq}, v{t7}
  v_lshrrev_b32 v{t7}, 5, v{vl}              ; hh
  v_mul_u32_u24 v{vAlo}, 1040, v{t6}
  v_lshl_add_u32 v{vAlo}, v{t5}, 8, v{vAlo}
  v_lshl_add_u32 v{vAlo}, v{t7}, 4, v{vAlo}
  v_add_u32 v{vAlo}, s{sStg}, v{vAlo}
  v_xor_b32 v{vAhi}, 1, v{t4}
  v_lshl_add_u32 v{vAhi}, v{vAhi}, 7, v{vAlo}
  v_lshl_add_u32 v{vAlo}, v{t4}, 7, v{vAlo}
  v_xor_b32 v{vEF}, v{t7}, v{t4}
  v_lshl_add_u32 v{vEF}, v{t6}, 1, v{vEF}
  v_lshl_add_u32 v{vEF}, v{t5}, 4, v{vEF}
  v_lshlrev_b32 v{vEF}, 4, v{vEF}
  s_add_u32 s{sq+1}, s{sStg}, 8320
  v_add_u32 v{vEF}, s{sq+1}, v{vEF}
  v_bfe_u32 v{t5}, v{vl}, 4, 1               ; o
  v_lshlrev_b32 v{t5}, 4, v{t5}
  v_mov_b32 v{t6}, 0x3f80
  v_lshlrev_b32 v{t5}, v{t5}, v{t6}
  v_cmp_eq_u32 vcc, v{t7}, v{t2}
  s_nop 1
  v_cndmask_b32 v{t5}, 0, v{t5}, vcc
  v_cmp_eq_u32 vcc, 0, v{t4}
  s_nop 1
  v_cndmask_b32 v{PAT}, 0, v{t5}, vcc
  v_cndmask_b32 v{PAT+1}, v{t5}, 0, vcc
  s_lshl_b32 s{sq}, s{sW}, 5
  s_add_u32 s{sq+1}, s{sq}, {L_GN}
  v_lshlrev_b32 v{vga}, 4, v{t7}
  v_add_u32 v{vga}, s{sq+1}, v{vga}
  v_and_b32 v{t2}, 12, v{vl}
  v_add_u32 v{vgq}, v{vga}, v{t2}
  v_and_b32 v{t2}, 3, v{vl}
  v_lshlrev_b32 v{t2}, 3, v{t2}
  v_lshl_add_u32 v{t2}, v{t1}, 5, v{t2}
  v_add_u32 v{vqlane}, {L_Q}, v{t2}
  v_and_b32 v{t2}, 31, v{vl}
  v_lshlrev_b32 v{t4}, 3, v{t2}
  v_add_u32 v{vacl}, {L_ACC}, v{t4}
  v_lshrrev_b32 v{t4}, 4, v{vl}              ; g
  v_mul_u32_u24 v{vxb}, {XS}, v{t0}
  v_lshl_add_u32 v{vxb}, v{t4}, 4, v{vxb}
  v_add_u32 v{vxb}, {L_X}, v{vxb}
  v_mul_u32_u24 v{vqw}, {QS}, v{t0}
  v_lshl_add_u32 v{vqw}, v{t4}, 3, v{vqw}
  s_add_u32 s{sq+1}, s{sq}, {L_Q}
  v_add_u32 v{vqw}, s{sq+1}, v{vqw}
  v_mul_u32_u24 v{vqa}, {2*WPITCH}, v{t4}
  v_bfe_u32 v{t5}, v{vl}, 2, 2
  v_lshl_add_u32 v{vqa}, v{t5}, 8, v{vqa}
  v_xor_b32 v{t5}, s{sW}, v{t5}
  v_lshl_add_u32 v{vqa}, v{t5}, 5, v{vqa}
  v_and_b32 v{t5}, 3, v{vl}
  v_lshl_add_u32 v{vqa}, v{t5}, 3, v{vqa}
  v_add_u32 v{vqa}, {L_WS}, v{vqa}
  v_and_b32 v{t4}, 1, v{vl}
  v_lshlrev_b32 v{t4}, 4, v{t4}
  v_lshlrev_b32 v{t4}, v{t4}, v{t6}
  v_bfe_u32 v{t5}, v{vl}, 1, 4
  v_lshlrev_b32 v{t7}, 2, v{t7}
  v_sub_u32 v{t5}, v{t5}, v{t7}""")
    for i in range(4):
        a(f"  v_cmp_eq_u32 vcc, {i}, v{t5}\n  s_nop 1\n  v_cndmask_b32 v{I0+i}, 0, v{t4}, vcc")
        a(f"  v_cmp_eq_u32 vcc, {8+i}, v{t5}\n  s_nop 1\n  v_cndmask_b32 v{I1+i}, 0, v{t4}, vcc")
    if not OPT["k8"]:
        a(f"  v_mov_b32 v{AQ+2}, 0\n  v_mov_b32 v{AQ+3}, 0")
        for t in range(4):
            a(f"  v_mov_b32 v{BQ+4*t+2}, 0\n  v_mov_b32 v{BQ+4*t+3}, 0")
    def prefetch():
        if not OPT["pf"]: return
        a(f"  s_mul_i32 s{sq}, s2, 40000\n  s_sub_u32 s{sq}, s{sq}, 4096\n  v_add_u32 v{t0}, s{sq}, v{vt16}")
        for j in range(10):
            a(f"  buffer_load_dwordx4 {v(DUM,4)}, v{t0}, {s(SE,4)}, 0 offen")
            if j < 9: a(f"  v_add_u32 v{t0}, 4096, v{t0}")
    def wtr(dst, ad):
        for st in range(4):
            for hf in range(2):
                a(f"  ds_read_b64_tr_b16 {v(dst+4*st+2*hf,2)}, v{ad} offset:{(8*st+hf)*WPITCH}")
    def own_x(nyounger):
        a(f"""
  v_lshrrev_b32 v{t0}, 4, v0
  v_lshl_add_u32 v{t0}, v{t0}, 5, v{vt16}
  v_add_u32 v{t0}, {L_X}, v{t0}
  s_waitcnt vmcnt({nyounger})
  ds_write_b128 v{t0}, {v(XL,4)}
  s_mov_b32 exec_lo, s{sLo2}
  s_mov_b32 exec_hi, s{sLo2}
  ds_write_b128 v{t0}, {v(XL+4,4)} offset:{32*XS}
  s_mov_b64 exec, -1""")
    a(f"""
  s_cmp_lt_u32 s{sW}, 2
  s_cselect_b32 s{sLo2}, -1, 0
  s_lshr_b32 s{sq}, s2, {1+FSH}
  s_lshl_b32 s{sq}, s{sq}, 8
  s_bfe_u32 s{sq+1}, s2, {hex((FSH<<16)|1)}
  s_lshl_b32 s{sq+1}, s{sq+1}, 2
  s_add_u32 s{sq}, s{sq}, s{sq+1}
  s_and_b32 s{sq+1}, s2, 1
  s_mul_i32 s{sq+1}, s{sq+1}, {FHALF}
  s_add_u32 s{sq}, s{sq}, s{sq+1}
  v_mul_u32_u24 v{vgn1}, {FLN*256}, v{vl}
  v_add_u32 v{vgn1}, s{sq}, v{vgn1}
  v_lshrrev_b32 v{t2}, {FSH-1}, v{vl}
  v_lshlrev_b32 v{t2}, 8, v{t2}
  v_and_b32 v{t3}, {(1<<(FSH-1))-1}, v{vl}
  v_lshl_add_u32 v{t2}, v{t3}, 3, v{t2}
  v_add_u32 v{vsrow}, s{sP}, v{t2}
  s_mov_b32 s{sK}, {NLOG2E}
  s_mov_b32 s{sK+1}, {NLOG2E}
  s_waitcnt lgkmcnt(0)
  s_add_u32 s{sTag}, s{sTag}, 1
  s_max_u32 s{sTag}, s{sTag}, 1
  s_bitcmp1_b32 s2, 0
  s_cbranch_scc1 K_GEMM
  s_cmp_ge_u32 s2, {2*G}
  s_cbranch_scc1 K_PREP
  s_mov_b32 s{sq}, {MAGIC}
  v_lshlrev_b32 v{t7}, 6, v0
  v_add_u32 v{t7}, {1<<18}, v{t7}
  s_barrier
  s_waitcnt vmcnt({7+NCC})""")
    stamp(a, 1)
    for j in range(5):
        a(f"""
  v_mul_u32_u24 v{B4+j}, s{sq}, v{DD+j}
  v_lshrrev_b32 v{B4+j}, 18, v{B4+j}
  v_and_b32 v{B4+j}, 0x3fc, v{B4+j}
  v_add_u32 v{t0+j}, {L_BCNT}, v{B4+j}
  ds_add_rtn_u32 v{RK+j}, v{t0+j}, v{vone}""")
    a(f"  s_waitcnt vmcnt({2+NCC})")
    for j in range(5):
        a(f"""
  v_lshl_add_u32 v{SS_+j}, v{SS_+j}, 18, v{t7}
  v_and_or_b32 v{SS_+j}, v{DD+j}, 63, v{SS_+j}
  v_lshlrev_b32 v{CA+j}, 5, v{B4+j}
  v_add_u32 v{CA+j}, {L_CIMG}, v{CA+j}""")
        if j < 4: a(f"  v_add_u32 v{t7}, {512<<6}, v{t7}")
    srd(a, T2, pWS, NB*BSTR, add=WS_CELL)
    a(f"""
  v_lshrrev_b32 v{t4}, 3, v0
  s_mov_b32 s{sq}, {BSTR}
  v_mul_u32_u24 v{t4}, s{sq}, v{t4}
  v_and_b32 v{t5}, 7, v0
  v_lshl_add_u32 v{t4}, v{t5}, 4, v{t4}
  s_lshl_b32 s{sq}, s2, 6
  s_mov_b64 {s(sBad,2)}, 0
  s_waitcnt lgkmcnt(0)""")
    for j in range(5):
        a(f"""
  v_mul_u32_u24 v{t1}, 37, v{RK+j}
  v_lshl_add_u32 v{t0}, v{RK+j}, 2, v{CA+j}
  v_lshrrev_b32 v{t1}, 8, v{t1}
  v_cmp_le_u32 vcc, {CAP-1}, v{RK+j}
  v_lshl_add_u32 v{t0}, v{t1}, 2, v{t0}
  s_or_b64 {s(sBad,2)}, {s(sBad,2)}, vcc
  s_andn2_b64 exec, exec, vcc
  ds_write_b32 v{t0}, v{SS_+j}
  s_mov_b64 exec, -1""")
    a(f"""
  v_add_u32 v{t0}, {L_CIMG}, v{vt16}
  v_mov_b32 v{t2}, {L_FLG+4}
  s_cmp_eq_u64 {s(sBad,2)}, 0
  s_cbranch_scc1 K_NOFULL
  ds_write_b32 v{t2}, v{vone}
K_NOFULL:
  s_waitcnt lgkmcnt(0)
  s_barrier""")
    stamp(a, 2)
    a(f"  ds_read_b32 v{t2}, v{t2}\nK_OVFDONE:")
    for j in range(4):
        a(f"  ds_read_b128 {v(CP+4*j,4)}, v{t0} offset:{8192*j}")
    a(f"""
  s_waitcnt vmcnt(2) lgkmcnt(4)
  v_cmp_ne_u32 vcc, 0, v{t2}
  s_cbranch_vccnz K_OVF""")
    for j in range(4):
        a(f"""
  s_mov_b32 exec_lo, 0xaaaaaaaa
  s_mov_b32 exec_hi, 0xaaaaaaaa
  s_waitcnt lgkmcnt({3-j})
  v_mov_b32 v{CP+4*j+3}, s{sTag}
  s_mov_b64 exec, -1
  buffer_store_dwordx4 {v(CP+4*j,4)}, v{t4}, {s(T2,4)}, s{sq} offen {STF}
  s_add_u32 s{sq}, s{sq}, {64*BSTR}""")
    own_x(4)
    a(f"""
  {"s_sleep %d" % OPT["slpa"] if OPT["slpa"] else ""}
  s_branch K_PST
K_GW:
  {"s_sleep %d" % OPT["slpb"] if OPT["slpb"] else ""}
  s_branch K_PST
K_GEMM:
  ; ---------------- P gemm role: rows of this bucket and the one before ----------------""")
    if OPT["touch"]:
        a(f"""
  s_cmp_lg_u32 s{sW}, 0
  s_cbranch_scc1 K_NOTOUCH
  s_waitcnt vmcnt(0)
  s_mov_b64 exec, {FMASK}
  buffer_load_dword v{DUM}, v{vgn1}, {s(SF,4)}, 0 offen sc1
  s_mov_b64 exec, -1
K_NOTOUCH:""")
    a(f"""
  s_mul_i32 s{sq}, s{sNp}, {XS}
  s_sub_u32 s{sq}, {L_X}, s{sq}
  v_lshrrev_b32 v{t0}, 4, v0
  v_lshl_add_u32 v{t0}, v{t0}, 5, v{vt16}
  v_add_u32 v{t3}, s{sq}, v{t0}
  s_cmp_lt_u32 s{sW}, 4
  s_cselect_b32 s{sq+1}, -1, 0
  v_subrev_u32 v{t1}, {L_X}, v{vxb}
  v_add_u32 v{t1}, s{sq}, v{t1}
  s_waitcnt vmcnt({6+NCL})
  ds_write_b128 v{t3}, {v(GX,4)}
  s_waitcnt vmcnt({5+NCL})
  ds_write_b128 v{t3}, {v(GX+4,4)} offset:{32*XS}
  s_waitcnt vmcnt({4+NCL})
  s_mov_b32 exec_lo, s{sq+1}
  s_mov_b32 exec_hi, s{sq+1}
  ds_write_b128 v{t3}, {v(GX+8,4)} offset:{64*XS}
  s_mov_b64 exec, -1
  v_and_b32 v{t2}, 15, v{vl}
  v_mul_u32_u24 v{t2}, {XS}, v{t2}
  v_lshrrev_b32 v{t3}, 4, v{vl}
  v_lshl_add_u32 v{t2}, v{t3}, 3, v{t2}
  s_lshl_b32 s{sq}, s{sW}, 5
  s_add_u32 s{sq}, s{sq}, {L_GP}
  v_add_u32 v{t2}, s{sq}, v{t2}
  v_add_u32 v{t0}, {L_GP - 16*XS}, v{t0}
  v_subrev_u32 v{t4}, 4096, v{vt16}""")
    srd(a, T0, pWS, f"s{sCnt}", add=WS_P, addreg=sT)
    a(f"  s_waitcnt vmcnt({NCL}) lgkmcnt(0)\n  s_barrier")
    stamp(a, 1)
    wtr(W1F, vqa)
    XT = [PF, PF+16, EA, EB, PF]
    for nt in range(4):
        for st in range(4):
            a(f"  ds_read_b128 {v(XT[nt]+4*st,4)}, v{t1} offset:{nt*16*XS + st*64}")
    for nt in range(5):
        a(f"  s_waitcnt lgkmcnt({(12, 12, 8, 4, 0)[nt]})")
        for st in range(4):
            c = "0" if st == 0 else v(D0+4*nt, 4)
            a(f"  v_mfma_f32_16x16x32_bf16 {v(D0+4*nt,4)}, {v(W1F+4*st,4)}, {v(XT[nt]+4*st,4)}, {c}")
        if nt == 0:
            for st in range(4):
                a(f"  ds_read_b128 {v(PF+4*st,4)}, v{t1} offset:{4*16*XS + st*64}")
    for nt in range(5):
        d = D0 + 4*nt
        if nt == 4: a("  s_nop 1")
        a(f"""
  v_pk_mul_f32 {v(d,2)}, {v(d,2)}, {s(sK,2)}
  v_pk_mul_f32 {v(d+2,2)}, {v(d+2,2)}, {s(sK,2)}
  v_cvt_pk_bf16_f32 v{W3+2*nt}, v{d}, v{d+1}
  v_cvt_pk_bf16_f32 v{W3+2*nt+1}, v{d+2}, v{d+3}
  ds_write_b64 v{t2}, {v(W3+2*nt,2)} offset:{nt*16*XS}""")
    a("  s_waitcnt vmcnt(0) lgkmcnt(0)\n  s_barrier")
    stamp(a, 2)
    a(f"""
  s_cmp_lt_u32 s{sW}, 4
  s_cbranch_scc1 K_GW""")
    for j in range(5):
        a(f"  ds_read_b128 {v(PF+4*j,4)}, v{t0} offset:{j*16*XS}")
    for j in range(5):
        a(f"  s_waitcnt lgkmcnt({4-j})\n  buffer_store_dwordx4 {v(PF+4*j,4)}, v{t4}, {s(T0,4)}, 0 offen {STF}")
        if j < 4: a(f"  v_add_u32 v{t4}, 4096, v{t4}")
    a(f"""
  v_mov_b32 v{t0}, {L_FLG+12}
  v_mov_b32 v{t7}, s{sTag}
  s_mov_b64 exec, 1
  s_waitcnt vmcnt(0)""")
    stamp(a, 3)
    a(f"""
  ds_add_rtn_u32 v{t0}, v{t0}, v{vone}
  s_waitcnt lgkmcnt(0)
  v_readfirstlane_b32 s{sq}, v{t0}
  s_mov_b64 exec, -1
  s_cmp_lg_u32 s{sq}, 3
  s_cbranch_scc1 K_PST
K_FLAG:
  s_mov_b64 exec, {FMASK}
  buffer_store_dword v{t7}, v{vgn1}, {s(SF,4)}, 0 offen {FLF}
  s_mov_b64 exec, -1
K_PST:""")
    def node_gemm(WA, WB=None):
        for nt in range(3):
            xf = XF + 16*(nt & 1)
            if nt == 0:
                for n2 in range(2):
                    for st in range(4):
                        a(f"  ds_read_b128 {v(XF+16*n2+4*st,4)}, v{vxb} offset:{n2*16*XS + st*64}")
            a(f"  s_waitcnt lgkmcnt({4 if nt == 0 else 5 if nt == 1 else 1})")
            q = QD if nt != 1 else SA
            for st in range(4):
                c = "0" if st == 0 else v(q, 4)
                a(f"  v_mfma_f32_16x16x32_bf16 {v(q,4)}, {v(WA+4*st,4)}, {v(xf+4*st,4)}, {c}")
            if WB is not None:
                for st in range(4):
                    c = "0" if st == 0 else v(U+4*nt, 4)
                    a(f"  v_mfma_f32_16x16x32_bf16 {v(U+4*nt,4)}, {v(WB+4*st,4)}, {v(xf+4*st,4)}, {c}")
            if nt == 0:
                for st in range(4):
                    a(f"  ds_read_b128 {v(XF+4*st,4)}, v{vxb} offset:{2*16*XS + st*64}")
            a(f"""
  s_nop 7
  v_pk_mul_f32 {v(q,2)}, {v(q,2)}, {s(sK,2)}
  v_pk_mul_f32 {v(q+2,2)}, {v(q+2,2)}, {s(sK,2)}
  v_cvt_pk_bf16_f32 v{QD+4+2*(nt&1)}, v{q}, v{q+1}
  v_cvt_pk_bf16_f32 v{QD+5+2*(nt&1)}, v{q+2}, v{q+3}""")
            if nt == 2:
                a(f"  s_mov_b32 exec_lo, 0x00ff00ff\n  s_mov_b32 exec_hi, 0x00ff00ff")
            a(f"  ds_write_b64 v{vqw}, {v(QD+4+2*(nt&1),2)} offset:{nt*16*QS}")
            if nt == 2:
                a("  s_mov_b64 exec, -1")
    assert SB == SA + 2
    def poll(lab, off):
        a(f"""
  s_cmp_lg_u32 s{sW}, 1
  s_cbranch_scc1 {lab}_D
  s_mov_b32 s{sq}, 0
  s_mov_b32 s{sq+1}, {off}
  {"s_sleep %d" % OPT["slp0"] if OPT["slp0"] and off == 0 else ""}
{lab}:
  buffer_load_dwordx2 {v(DUM,2)}, v{vsrow}, {s(SF,4)}, s{sq+1} offen {PLF}
  s_add_u32 s{sq}, s{sq}, 1
  s_waitcnt vmcnt(0)
  v_cmp_ne_u32 vcc, s{sTag}, v{DUM}
  v_cmp_ne_u32 {s(sBad,2)}, s{sTag}, v{DUM+1}
  s_or_b64 vcc, vcc, {s(sBad,2)}
  s_cbranch_scc0 {lab}_D
  {"s_sleep %d" % OPT["slp"] if OPT["slp"] else ""}
  s_cmp_lt_u32 s{sq}, 0x8000
  s_cbranch_scc1 {lab}
{lab}_D:""")
    stamp(a, 5)
    nld = 16 if OPT["lo"] else 12
    a(f"""
  s_lshl_b32 s{sTmp}, s{sW}, 12
  s_add_u32 s{sTmp+1}, s{sTmp}, {WF_UT}
  s_add_u32 s{sUB}, s{sTmp}, {WF_UB}
  s_mov_b32 s{sTmp+2}, {WF_3H}
  s_mov_b32 s{sTmp+3}, {WF_3L}
  s_mov_b32 s{sOV}, 0xaaaaaaaa
  s_cmp_eq_u32 s{sW}, 7
  s_cselect_b32 s{sOV+1}, 0xaaaaa, s{sOV}
  v_min_u32 v{t4}, 2, v{vl}
  v_lshl_add_u32 v{t4}, v{t4}, 2, s{sP}
  v_mov_b32 v{t5}, s{sTag}
  s_mov_b32 s{sq}, 0
  {"s_sleep %d" % OPT["slp0"] if OPT["slp0"] else ""}
K_CPOLL:
  buffer_load_dwordx4 {v(REC,4)}, v{vcell}, {s(SC,4)}, 0 offen sc1
  buffer_load_dwordx4 {v(REC+4,4)}, v{vcell}, {s(SC,4)}, 0 offen offset:64 sc1
  s_cmp_lg_u32 s{sW}, 1
  s_cbranch_scc1 K_CPOLL1
  buffer_load_dword v{t5}, v{t4}, {s(SF,4)}, 0 offen offset:{(FLN-1)*256 + (125 - (FLN-1)*(128//FLN))*4} sc1
K_CPOLL1:
  s_add_u32 s{sq}, s{sq}, 1
  s_waitcnt vmcnt(0)
  v_cmp_ne_u32 vcc, s{sTag}, v{REC+3}
  v_cmp_ne_u32 {s(sBad,2)}, s{sTag}, v{REC+7}
  s_or_b64 {s(sBad,2)}, vcc, {s(sBad,2)}
  v_cmp_ne_u32 vcc, s{sTag}, v{t5}
  s_and_b64 {s(sBad,2)}, {s(sBad,2)}, {s(sOV,2)}
  s_or_b64 {s(sBad,2)}, {s(sBad,2)}, vcc
  s_cbranch_scc0 K_CPOLLD
  {"s_sleep %d" % OPT["slp"] if OPT["slp"] else ""}
  s_cmp_lt_u32 s{sq}, 0x8000
  s_cbranch_scc1 K_CPOLL
K_CPOLLD:
  s_mov_b32 exec_lo, 0xaaaaaaaa
  s_mov_b32 exec_hi, 0xaaaaaaaa
  v_mov_b32 v{REC+3}, 0
  v_mov_b32 v{REC+7}, 0
  s_mov_b64 exec, -1""")
    stamp(a, 6)
    wl = [f"  buffer_load_dwordx4 {v(W2F+4*st,4)}, v{t0}, {s(SW,4)}, s{sTmp} offen offset:{st*1024} sc1" for st in range(4)]
    wl += [f"  buffer_load_dwordx4 {v(WUT+4*st,4)}, v{t0}, {s(SW,4)}, s{sTmp+1} offen offset:{st*1024} sc1" for st in range(4)]
    wl += [f"  buffer_load_dwordx4 {v(W3+4*st,4)}, v{t0}, {s(SW,4)}, s{sTmp+2} offen offset:{st*1024} sc1" for st in range(4)]
    if OPT["lo"]:
        wl += [f"  buffer_load_dwordx4 {v(W3L+4*st,4)}, v{t0}, {s(SW,4)}, s{sTmp+3} offen offset:{st*1024} sc1" for st in range(4)]
    NR = 8
    a(f"""
K_PHASE1:
  v_cmp_le_u32 vcc, 0xfffc0000, v{REC+NR-2}
  s_cbranch_vccz K_NOMARK
  s_and_saveexec_b64 {s(sEx,2)}, vcc
  v_lshrrev_b32 v{t0}, 2, v0                 ; producer
  v_lshrrev_b32 v{t1}, 5, v{t0}
  v_lshlrev_b32 v{t1}, 2, v{t1}
  v_lshlrev_b32 v{t0}, v{t0}, v{vone}
  ds_or_b32 v{t1}, v{t0} offset:{L_FLG+32}
  v_mov_b32 v{REC+NR-2}, 0
  s_mov_b64 exec, {s(sEx,2)}
K_NOMARK:""")
    for k in range(NR):
        if k == 4:
            a(f"""
  v_or3_b32 v{t3}, v{REC+k}, v{REC+k+1}, v{REC+k+2}
  v_or_b32 v{t3}, v{t3}, v{REC+k+3}
  v_cmp_ne_u32 vcc, 0, v{t3}
  s_cbranch_vccz K_P1E""")
        a(f"""
  v_lshlrev_b32 v{NOD+k}, 2, v{REC+k}
  v_and_b32 v{NOD+k}, 0xfc, v{NOD+k}
  v_cmpx_ne_u32 vcc, 0, v{REC+k}
  ds_add_rtn_u32 v{RNK+k}, v{NOD+k}, v{vone} offset:{L_CNT}
  s_mov_b64 exec, -1""")
    a(f"""
K_P1E:
  v_lshlrev_b32 v{t0}, 2, v{vl}
  v_subrev_u32 v{t4}, s{sStart}, v{vl}
  v_and_b32 v{t4}, 63, v{t4}
  s_waitcnt lgkmcnt(0)
  s_barrier
  ds_read_b32 v{t1}, v{t0} offset:{L_CNT}
  v_lshlrev_b32 v{t0}, 4, v{vl}
  s_cmp_eq_u32 s{sFirst}, 0
  s_cbranch_scc1 K_NOWL""")
    for x in wl: a(x)
    a(f"""
K_NOWL:
  s_waitcnt lgkmcnt(0)
  v_add_u32 v{t1}, 3, v{t1}
  v_bfe_u32 v{t5}, v{t1}, 2, 1               ; left-over quad
  v_lshrrev_b32 v{t6}, 3, v{t1}
  v_lshl_or_b32 v{t1}, v{t5}, 16, v{t6}
  v_mov_b32 v{t2}, v{t1}
  s_nop 1
  v_add_u32_dpp v{t2}, v{t2}, v{t2} row_shr:1 row_mask:0xf bank_mask:0xf
  s_nop 1
  v_add_u32_dpp v{t2}, v{t2}, v{t2} row_shr:2 row_mask:0xf bank_mask:0xf
  s_nop 1
  v_add_u32_dpp v{t2}, v{t2}, v{t2} row_shr:4 row_mask:0xf bank_mask:0xf
  s_nop 1
  v_add_u32_dpp v{t2}, v{t2}, v{t2} row_shr:8 row_mask:0xf bank_mask:0xf
  s_nop 1
  v_add_u32_dpp v{t2}, v{t2}, v{t2} row_bcast:15 row_mask:0xa bank_mask:0xf
  s_nop 1
  v_add_u32_dpp v{t2}, v{t2}, v{t2} row_bcast:31 row_mask:0xc bank_mask:0xf
  s_nop 1
  v_readlane_b32 s{sT}, v{t2}, 63
  v_sub_u32 v{t1}, v{t2}, v{t1}
  s_lshr_b32 s{sq+1}, s{sT}, 16
  s_and_b32 s{sCO}, s{sT}, 0xffff
  s_lshl_b32 s{sq}, s{sCO}, 1                ; quads in the groups of eight
  s_lshr_b32 s{sCO}, s{sCO}, 2
  s_add_u32 s{sT}, s{sq}, s{sq+1}
  s_add_u32 s{sT}, s{sT}, 7
  s_lshr_b32 s{sT}, s{sT}, 3
  v_lshrrev_b32 v{t2}, 16, v{t1}
  v_add_u32 v{t2}, s{sq}, v{t2}              ; quad slot of the left-over quad
  v_and_b32 v{t1}, 0xffff, v{t1}
  v_lshl_or_b32 v{t0}, v{t6}, 16, v{t1}
  v_lshlrev_b32 v{t0}, 3, v{t0}              ; 8*start8 | 8*n8 << 16
  v_lshlrev_b32 v{t7}, 1, v{t6}
  v_sub_u32 v{t7}, v{t2}, v{t7}
  v_lshlrev_b32 v{t7}, 2, v{t7}              ; position base of the left-over quad
  s_cmp_gt_u32 s{sT}, {CAPB}
  s_cbranch_scc1 K_SPLIT""")
    for k0 in (0, 4):
        if k0:
            a(f"""
  v_or3_b32 v{t3}, v{REC+k0}, v{REC+k0+1}, v{REC+k0+2}
  v_or_b32 v{t3}, v{t3}, v{REC+k0+3}
  v_cmp_ne_u32 vcc, 0, v{t3}
  s_cbranch_vccz K_P2E""")
        for k in range(k0, k0+4):
            a(f"  ds_bpermute_b32 v{PF+24+(k&3)}, v{NOD+k}, v{t7}")
            a(f"  ds_bpermute_b32 v{NOD+k}, v{NOD+k}, v{t0}")
        for k in range(k0, k0+4):
            e = PF + 16 + 2*(k & 3)
            a(f"""
  v_lshrrev_b32 v{e}, 10, v{REC+k}
  v_and_b32 v{e}, {hex(0xffffff00 if not OPT['hot'] else 0x1f00)}, v{e}
  v_bfe_u32 v{e+1}, v{REC+k}, 6, 12
  v_lshl_add_u32 v{e+1}, v{e+1}, 5, v{vebase}""")
            if OPT["hot"]: a(f"  v_and_b32 v{e+1}, 0xfe0, v{e+1}")
        a("  s_waitcnt lgkmcnt(0)")
        for k in range(k0, k0+4):
            a(f"  v_cmp_lt_u32_sdwa {s(8+2*(k&3),2)}, v{RNK+k}, v{NOD+k} src0_sel:DWORD src1_sel:WORD_1")
        for k in range(k0, k0+4):
            a(f"  v_and_b32 v{NOD+k}, 0xffff, v{NOD+k}")
        for k in range(k0, k0+4):
            a(f"  v_cndmask_b32 v{NOD+k}, v{PF+24+(k&3)}, v{NOD+k}, {s(8+2*(k&3),2)}")
        for k in range(k0, k0+4):
            e = PF + 16 + 2*(k & 3)
            a(f"""
  v_add_lshl_u32 v{NOD+k}, v{NOD+k}, v{RNK+k}, 3
  v_cmpx_ne_u32 vcc, 0, v{REC+k}
  ds_write_b64 v{NOD+k}, {v(e,2)}
  s_mov_b64 exec, -1""")
    a(f"""
K_P2E:
  v_lshlrev_b32 v{t2}, 2, v{t2}
  v_cmpx_ne_u32 vcc, 0, v{t5}
  ds_write_b32 v{t2}, v{t4} offset:{L_GN}
  s_mov_b64 exec, -1
  v_add_lshl_u32 v{t2}, v{t1}, v{t6}, 3
  v_lshl_add_u32 v{t1}, v{t1}, 1, s{sW}
  v_lshlrev_b32 v{t1}, 2, v{t1}
K_GNL:
  v_cmpx_lt_u32 vcc, v{t1}, v{t2}
  ds_write_b32 v{t1}, v{t4} offset:{L_GN}
  v_add_u32 v{t1}, 32, v{t1}
  v_cmpx_lt_u32 vcc, v{t1}, v{t2}
  ds_write_b32 v{t1}, v{t4} offset:{L_GN}
  v_add_u32 v{t1}, 32, v{t1}
  v_cmpx_lt_u32 vcc, v{t1}, v{t2}
  s_cbranch_execnz K_GNL
  s_mov_b64 exec, -1
  s_add_u32 s{sCnt}, s{sT}, 7
  s_sub_u32 s{sCnt}, s{sCnt}, s{sW}
  s_lshr_b32 s{sCnt}, s{sCnt}, 3
  s_add_u32 s{sCO}, s{sCO}, 7
  s_sub_u32 s{sCO}, s{sCO}, s{sW}
  s_lshr_b32 s{sCO}, s{sCO}, 3
  {("s_mov_b32 s%d, 40" % sCnt + chr(10) + "  s_movk_i32 s%d, 320" % sT + chr(10) + "  s_mov_b32 s%d, 40" % sCO) if OPT["bench"] else ""}
""")
    stamp(a, 4)
    a(f"""
  s_cmp_eq_u32 s{sFirst}, 0
  s_cbranch_scc1 K_POLL2_D""")
    poll("K_POLL2", FHALF)
    a("  s_waitcnt lgkmcnt(0)\n  s_barrier")
    stamp(a, 7)
    dsc = " sc1" if OPT["dsc"] else ""
    def dma_issue():
        L = []
        for j in range(8):
            d = DO + (j & 1)
            L.append([f"  s_add_u32 m0, s{sStg}, {j*1040}",
                      f"  v_add_u32_dpp v{d}, v{ENT}, v{vchunk} row_newbcast:{2*j} row_mask:0xf bank_mask:0xf",
                      f"  buffer_load_dwordx4 v{d}, {s(SP,4)}, 0 offen{dsc} lds" if not OPT["nodma"] else "  s_nop 0"])
        L.append([f"  s_add_u32 m0, s{sStg}, 8320",
                  f"  v_add_u32 v{DO}, v{ENT+1}, v{vechunk}",
                  f"  buffer_load_dwordx4 v{DO}, {s(SE,4)}, 0 offen lds" if not (OPT["nodma"] or OPT["noe"]) else "  s_nop 0"])
        return L
    ndma = 0 if OPT["nodma"] else 8 if OPT["noe"] else 9
    def frag_reads():
        L = []
        for st in range(8):
            L.append(f"  ds_read_b128 {v(PF+4*st,4)}, v{vAlo if st < 4 else vAhi} offset:{32*(st&3)}")
        L.insert(2, f"  ds_read_b128 {v(EF,4)}, v{vEF}")
        return L
    def bq_reads():
        return [f"  ds_read_b64_tr_b16 {v(BQ+nq*t,2)}, v{vqa} offset:{64*t}" for t in range(4)]
    def chain(t, D):
        L = [f"  v_mfma_f32_32x32x16_bf16 {v(D,16)}, {v(EF,4)}, {v(W3+4*t,4)}, 0"]
        if OPT["lo"]:
            L.append(f"  v_mfma_f32_32x32x16_bf16 {v(D,16)}, {v(EF,4)}, {v(W3L+4*t,4)}, {v(D,16)}")
        L.append(f"  v_mfma_f32_32x32x16_bf16 {v(D,16)}, {v(PF+8*t,4)}, {v(I0,4)}, {v(D,16)}")
        L.append(f"  v_mfma_f32_32x32x16_bf16 {v(D,16)}, {v(PF+8*t+4,4)}, {v(I1,4)}, {v(D,16)}")
        if OPT["k8"]:
            L.append(f"  v_mfma_f32_32x32x8bf16_1k {v(D,16)}, {v(AQ,2)}, {v(BQ+2*t,2)}, {v(D,16)}")
        else:
            L.append(f"  v_mfma_f32_32x32x16_bf16 {v(D,16)}, {v(AQ,4)}, {v(BQ+4*t,4)}, {v(D,16)}")
        return L

    a(f"  ds_read_b64 {v(ENT,2)}, v{vent}\n  s_waitcnt lgkmcnt(0)")
    for x in dma_issue(): a("\n".join(x))
    a(f"  ds_read_b64 {v(ENT,2)}, v{vent} offset:2048")
    a(f"""
  s_cmp_eq_u32 s{sFirst}, 0
  s_cbranch_scc1 K_NOGEMM0
  s_mov_b32 s{sFirst}, 0
  s_waitcnt vmcnt({ndma}) lgkmcnt(0)""")
    node_gemm(W2F, WUT)
    a(f"  v_lshlrev_b32 v{t4}, 4, v{vl}")
    for st in range(4):
        a(f"  buffer_load_dwordx4 {v(WUB+4*st,4)}, v{t4}, {s(SW,4)}, s{sUB} offen offset:{st*1024} sc1")
    a(f"""
  s_or_b32 s{sq}, s2, s{sW}
  s_cmp_lg_u32 s{sq}, 0
  s_cbranch_scc1 K_NONONCE
  s_mov_b64 exec, 1
  v_mov_b32 v{t0}, {FNON}
  v_mov_b32 v{t1}, s{sTag}
  buffer_store_dword v{t1}, v{t0}, {s(SF,4)}, 0 offen
  s_mov_b64 exec, -1
  s_waitcnt vmcnt(0)
K_NONONCE:
  s_waitcnt lgkmcnt(0)
  s_barrier
K_NOGEMM:
  ds_read_b32 v{vgn1}, v{vgq}
  ds_read_b32 v{vsrow}, v{vrow}
  ds_read_b128 {v(GN,4)}, v{vga}
  s_waitcnt vmcnt(4)""")
    stamp(a, 8, 96)
    for x in frag_reads(): a(x)
    a(f"""
  s_waitcnt lgkmcnt(9)
  v_mad_u32_u24 v{vqa}, v{vgn1}, s{sQS}, v{vqlane}
  v_lshrrev_b64 {v(AQ,2)}, v{vsrow}, {v(PAT,2)}""")
    for x in bq_reads(): a(x)
    a("  s_waitcnt lgkmcnt(0)")
    for x in dma_issue(): a("\n".join(x))
    for x in chain(0, D0): a(x)
    if OPT["prio"]:
        a(f"  s_cmp_lt_u32 s{sW}, 4\n  s_cbranch_scc1 K_PR\n  s_setprio 1\nK_PR:")
    a(f"""
  s_nop 7
  s_nop 3
  s_cmp_eq_u32 s{sCnt}, 0
  s_cbranch_scc1 K_LOOPEND
  s_cmp_lg_u32 s{sMode}, 0
  s_cbranch_scc1 K_SAFE
  {"s_branch K_QUAD" if not OPT["octo"] else ""}
  s_sub_u32 s{sCnt}, s{sCnt}, s{sCO}
  s_cmp_eq_u32 s{sCO}, 0
  s_cbranch_scc1 K_QUAD""")

    def p(r): return v(r, 2)
    def octet_fast(d, e, t, r, sres):
        ex = [f"  v_exp_f32 v{e+i}, v{d+i}" for i in range(8)]
        L = [f"  v_pk_add_f32 {p(t)}, {p(e)}, 1.0 op_sel_hi:[1,0]",
             f"  v_pk_add_f32 {p(t+2)}, {p(e+4)}, 1.0 op_sel_hi:[1,0]",
             f"  v_pk_fma_f32 {p(t+4)}, {p(d)}, {p(e+2)}, {p(d)}",
             f"  v_pk_fma_f32 {p(t+6)}, {p(d+4)}, {p(e+6)}, {p(d+4)}",
             f"  v_pk_fma_f32 {p(e)}, {p(t)}, {p(e+2)}, {p(t)}",
             f"  v_pk_fma_f32 {p(e+4)}, {p(t+2)}, {p(e+6)}, {p(t+2)}",
             f"  v_pk_fma_f32 {p(t+4)}, {p(d+2)}, {p(t)}, {p(t+4)}",
             f"  v_pk_fma_f32 {p(t+6)}, {p(d+6)}, {p(t+2)}, {p(t+6)}",
             f"  v_pk_mul_f32 {p(t)}, {p(e)}, {p(e+4)}",
             f"  v_pk_mul_f32 {p(t+4)}, {p(t+4)}, {p(e+4)}",
             f"  v_rcp_f32 v{r}, v{t}",
             f"  v_rcp_f32 v{r+1}, v{t+1}",
             f"  v_pk_fma_f32 {p(t+4)}, {p(t+6)}, {p(e)}, {p(t+4)}",
             f"  v_pk_mul_f32 {p(sres)}, {p(t+4)}, {p(r)}"]
        return ex, L
    def octet_safe(d, e, t, r, sres):
        ex = [f"  v_exp_f32 v{e+i}, v{d+i}" for i in range(8)]
        L = [f"  v_pk_add_f32 {p(e+2*i)}, {p(e+2*i)}, 1.0 op_sel_hi:[1,0]" for i in range(4)]
        L += [f"  v_rcp_f32 v{t+i}, v{e+i}" for i in range(8)]
        L += [f"  v_pk_mul_f32 {p(sres)}, {p(d)}, {p(t)}"]
        L += [f"  v_pk_fma_f32 {p(sres)}, {p(d+2*i)}, {p(t+2*i)}, {p(sres)}" for i in range(1, 4)]
        return ex, L
    def zipl(x, y):
        o = []
        for i in range(max(len(x), len(y))):
            if i < len(x): o.append(x[i])
            if i < len(y): o.append(y[i])
        return o
    def adds(t, kind):
        if OPT["noadd"]: return [f"  ds_read_b32 v{DUM}, v{vgq}"] * (2 if kind == "octo" else 4)
        if kind == "octo": return [f"  ds_add_f64 v{AD+2*xy}, {v(CV+2*xy,2)} offset:{256*t}" for xy in range(2)]
        return [f"  ds_add_f64 v{AD+2*xy+o}, {v(CV+2*(2*o+xy),2)} offset:{256*t}" for o in range(2) for xy in range(2)]
    def block_body(kind, u, nun):
        oc = octet_safe if kind == "safe" else octet_fast
        nadd = 2 if kind == "octo" else 4
        B = []
        for t in range(4):
            D = D0 if t % 2 == 0 else D1
            Dn = D1 if t % 2 == 0 else D0
            exa, La = oc(D, EA, TA, RA, SA)
            exb, Lb = oc(D+8, EB, TB, RB, SB)
            ex = exa + exb
            ch = chain((t+1) % 4, Dn)
            late = []
            if kind == "octo":
                keep = lambda L: [x for x in L[:-1] if "v_rcp" not in x]
                dk = DK + 2*(t & 1)
                pk = zipl(keep(La), keep(Lb))
                pk = pk[:-4] + [f"  v_pk_mul_f32 {p(dk)}, {p(TA)}, {p(TB)}"] + pk[-4:-2] + \
                     [f"  v_rcp_f32 v{RA}, v{dk}", f"  v_rcp_f32 v{RA+1}, v{dk+1}"] + pk[-2:] + \
                     [f"  v_pk_mul_f32 {p(TA+4)}, {p(TA+4)}, {p(TB)}"]
                if t & 1: pk.append(f"  v_pk_fma_f32 {p(MAC)}, {p(DK)}, {p(DK+2)}, {p(MAC)}")
                pk += [f"  v_pk_fma_f32 {p(TA+4)}, {p(TB+4)}, {p(TA)}, {p(TA+4)}",
                       f"  v_pk_mul_f32 {p(SA)}, {p(TA+4)}, {p(RA)}"]
                fin = [f"  v_cvt_f64_f32 {v(CV+2*xy,2)}, v{SA+xy}" for xy in range(2)]
                adr = (0, 2)
            else:
                pk = zipl(La, Lb)
                if kind == "quad":
                    idx = max(i for i, x in enumerate(pk) if x.startswith(f"  v_pk_mul_f32 {p(TB)}, {p(EB)}"))
                    pk.insert(idx+1, f"  v_pk_fma_f32 {p(MAC)}, {p(TA)}, {p(TB)}, {p(MAC)}")
                fin = [f"  v_cvt_f64_f32 {v(CV+2*(2*o+xy),2)}, v{S+xy}" for o, S in ((0, SA), (1, SB)) for xy in range(2)]
                adr = range(4)
            fin += adds(t, kind)
            if t == 0:
                pk = pk[:4] + [f"  v_mad_u32_u24 v{AD+i}, v{GN+i}, s{sAS}, v{vacl}" for i in adr] + pk[4:]
            if t == 1:
                pk = pk[:8] + [f"  ds_read_b64 {v(ENT,2)}, v{vent} offset:{4096+2048*u}",
                      f"  ds_read_b32 v{vgn1}, v{vgq} offset:{256+256*u}",
                      f"  ds_read_b32 v{vsrow}, v{vrow} offset:{2048+2048*u}",
                      f"  ds_read_b128 {v(GN,4)}, v{vga} offset:{256+256*u}"] + pk[8:]
            if t == 3:
                B.append(f"  s_waitcnt lgkmcnt({nadd})")
            dma = dma_issue() if t == 3 else []
            per = 16 // len(ch); e = 0
            for i, m in enumerate(ch):
                B.append(m)
                n = per if i < len(ch)-1 else 16 - e
                B += ex[e:e+2]
                if late: B.append(late.pop(0))
                B += ex[e+2:e+n]; e += n
                if OPT["dmapos"] == 0:
                    for _ in range(2):
                        if dma: B += dma.pop(0)
            if t == 2:
                mid = [f"  s_waitcnt vmcnt(0) lgkmcnt({nadd})",
                       f"  v_mad_u32_u24 v{vqa}, v{vgn1}, s{sQS}, v{vqlane}"]
                rd = frag_reads() + bq_reads()
                aq = [f"  v_lshrrev_b64 {v(AQ,2)}, v{vsrow}, {v(PAT,2)}"]
                if OPT["rdgap"] == 0: B += mid + rd + aq + pk
                else:
                    q = []
                    for i, x in enumerate(aq + pk):
                        if rd and i % OPT["rdgap"] == 0: q.append(rd.pop(0))
                        q.append(x)
                    B += mid + q + rd
            elif t == 3:
                inc = []
                if u == nun - 1 and OPT["bench"]:
                    inc = [f"  v_add_u32 v{DUM+i}, {2048*nun}, v{vent}" for i in range(4)]
                elif u == nun - 1:
                    inc = incs(nun)
                pk = pk + inc
                if OPT["dmapos"] == 1:
                    q = []
                    for i, x in enumerate(pk):
                        if dma and i % 3 == 0: q += dma.pop(0)
                        q.append(x)
                    pk = q
                for x in dma: B += x
                B += pk
            else:
                B += pk
            B += fin
        return B
    def incs(n):
        return [f"  v_add_u32 v{vent}, {2048*n}, v{vent}", f"  v_add_u32 v{vrow}, {2048*n}, v{vrow}",
                f"  v_add_u32 v{vgq}, {256*n}, v{vgq}", f"  v_add_u32 v{vga}, {256*n}, v{vga}"]
    def loop(kind):
        lab = {"safe": "K_SAFE", "quad": "K_QUAD", "octo": "K_FAST"}[kind]
        nun = OPT["unroll"] if kind == "octo" else 1
        cnt = sCO if kind == "octo" else sCnt
        L = []
        for u in range(nun):
            L += block_body(kind, u, nun)
            L.append(f"  s_sub_u32 s{cnt}, s{cnt}, 1")
            L.append(f"  s_cmp_lg_u32 s{cnt}, 0")
            L.append(f"  s_cbranch_scc1 {lab}" if u == nun - 1 else f"  s_cbranch_scc0 K_OX{u}")
        ab = OPT["abl"]
        if ab & 1: L = [x for x in L if not ("v_mfma" in x and (f", {v(I0,4)}," in x or f", {v(I1,4)}," in x))]
        if ab & 2: L = [x for x in L if "v_mfma_f32_32x32x8" not in x and "tr_b16" not in x]
        if ab & 4: L = [x.replace("v_exp_f32", "v_mov_b32") for x in L]
        if ab & 8: L = [x for x in L if "v_pk_" not in x]
        if ab & 16: L = [x for x in L if "v_mfma" not in x]
        if ab & 32: L = [x for x in L if "ds_read_b128" not in x]
        if ab & 64: L = [x for x in L if "v_exp" not in x]
        if ab & 128:
            M = []
            for x in L:
                if "v_mfma" in x and f", {v(I1,4)}," in x: continue
                if "v_mfma" in x and f", {v(I0,4)}," in x:
                    m = re.match(r"\s*v_mfma_f32_32x32x16_bf16 (v\[\d+:\d+\]), v\[(\d+):", x)
                    M.append(f"  v_smfmac_f32_32x32x32_bf16 {m.group(1)}, {v(I0,4)}, {v(int(m.group(2)),8)}, v{vone}"); continue
                m = re.match(r"\s*ds_read_b128 v\[(\d+):\d+\], v(\d+) offset:(\d+)", x)
                if m and PF <= int(m.group(1)) < PF + 32:
                    r0 = int(m.group(1))
                    M.append(f"  ds_read_b64_tr_b16 {v(r0,2)}, v{vqa} offset:{m.group(3)}")
                    M.append(f"  ds_read_b64_tr_b16 {v(r0+2,2)}, v{vqa} offset:{int(m.group(3))+128}"); continue
                M.append(x)
            L = M
        if ab & 256:
            M = []
            for x in L:
                if "v_mfma" in x and (f", {v(I1,4)}," in x or f", {v(I0,4)}," in x): continue
                if "v_mfma_f32_32x32x16" in x and x.rstrip().endswith(", 0"): x = x.rstrip()[:-1] + v(PF, 16)
                m = re.match(r"\s*ds_read_b128 v\[(\d+):\d+\], v(\d+) offset:(\d+)", x)
                if m and PF <= int(m.group(1)) < PF + 32:
                    for q in range(8): M.append(f"  ds_read_u16_d16_hi v{PF+(int(m.group(1))+q)%32}, v{vacl} offset:{64*q}")
                    continue
                M.append(x)
            L = M
        if OPT["align"]: L = align8(L)
        a(f".p2align 6\n{lab}:")
        for x in L: a(x)
    loop("octo")
    a(f"""
K_OXE:
  s_cmp_lg_u32 s{sCnt}, 0
  s_cbranch_scc1 K_QUAD""")
    a(f"""
K_LOOPEND:""")
    a(f"""
  s_waitcnt vmcnt(0) lgkmcnt(0)
  s_barrier""")
    stamp(a, 9, 98)
    a(f"""
  s_cmp_lg_u32 s{sKind}, 0
  s_cbranch_scc1 K_NEXT
K_CELLSDONE:
  v_mov_b32 v{t0}, {L_FLG+32}
  ds_read_b128 {v(CV,4)}, v{t0}
K_CONV:
  s_mul_i32 s{sTmp}, s{sW}, {AS}
  s_add_u32 s{sTmp}, s{sTmp}, {L_ACC}
  v_lshlrev_b32 v{t1}, 4, v{vl}
  v_add_u32 v{t1}, s{sTmp}, v{t1}""")
    for k in range(5):
        a(f"  ds_read_b128 {v(D0+4*k,4)}, v{t1} offset:{k*8*AS}")
    a(f"""
  s_mul_i32 s{sTmp}, s{sW}, {XS}
  s_add_u32 s{sTmp}, s{sTmp}, {L_X}
  v_lshlrev_b32 v{t2}, 2, v{vl}
  v_add_u32 v{t2}, s{sTmp}, v{t2}
  s_cmp_ge_u32 s{sKind}, 3
  s_cbranch_scc1 K_CONV2
  s_waitcnt lgkmcnt(5)
  v_or3_b32 v{t0}, v{CV}, v{CV+1}, v{CV+2}
  v_or_b32 v{t0}, v{t0}, v{CV+3}
  v_cmp_ne_u32 vcc, 0, v{t0}
  s_cbranch_vccnz K_STARTOV
K_CONV2:
  s_mov_b32 s{sTmp}, 0x71800000              ; 2^100
  v_cmp_nle_f32 {s(sBad,2)}, v{MAC}, s{sTmp}
  v_cmp_nle_f32 vcc, v{MAC+1}, s{sTmp}
  s_or_b64 {s(sBad,2)}, {s(sBad,2)}, vcc
  s_movk_i32 s{sTmp}, 0x207""")
    for k in range(5):
        a(f"""
  s_waitcnt lgkmcnt({4-k})
  v_cvt_f32_f64 v{EA+2*k}, {v(D0+4*k,2)}
  v_cvt_f32_f64 v{EA+2*k+1}, {v(D0+4*k+2,2)}
  v_cmp_class_f32 vcc, v{EA+2*k}, s{sTmp}
  s_or_b64 {s(sBad,2)}, {s(sBad,2)}, vcc
  v_cmp_class_f32 vcc, v{EA+2*k+1}, s{sTmp}
  s_or_b64 {s(sBad,2)}, {s(sBad,2)}, vcc
  v_cvt_pk_bf16_f32 v{EB+k}, v{EA+2*k}, v{EA+2*k+1}""")
    for k in range(5):
        a(f"  ds_write_b32 v{t2}, v{EB+k} offset:{k*8*XS}")
    a(f"""
  s_cmp_eq_u64 {s(sBad,2)}, 0
  s_cbranch_scc1 K_OKW
  v_mov_b32 v{t0}, {L_FLG}
  ds_write_b32 v{t0}, v{vone}
K_OKW:
  s_waitcnt lgkmcnt(0)
  s_barrier
  v_mov_b32 v{t0}, {L_FLG}
  ds_read_b32 v{t0}, v{t0}""")
    for nt in range(2):
        for st in range(4):
            a(f"  ds_read_b128 {v(XF+16*nt+4*st,4)}, v{vxb} offset:{nt*16*XS + st*64}")
    a(f"""
  s_waitcnt lgkmcnt(8)
  v_readfirstlane_b32 s{sTmp}, v{t0}
  s_cmp_gt_u32 s{sTmp}, s{sMode}
  {"s_cbranch_scc1 K_RESTART" if not EXP else "s_nop 0"}
  s_waitcnt lgkmcnt(4)""")
    for st in range(4):
        c = "0" if st == 0 else v(D0, 4)
        a(f"  v_mfma_f32_16x16x32_bf16 {v(D0,4)}, {v(WUB+4*st,4)}, {v(XF+4*st,4)}, {c}")
    for st in range(4):
        a(f"  ds_read_b128 {v(D1+4*st,4)}, v{vxb} offset:{2*16*XS + st*64}")
    a("  s_waitcnt lgkmcnt(4)")
    for st in range(4):
        c = "0" if st == 0 else v(D0+4, 4)
        a(f"  v_mfma_f32_16x16x32_bf16 {v(D0+4,4)}, {v(WUB+4*st,4)}, {v(XF+16+4*st,4)}, {c}")
    a("  s_waitcnt lgkmcnt(0)")
    for st in range(4):
        c = "0" if st == 0 else v(D0+8, 4)
        a(f"  v_mfma_f32_16x16x32_bf16 {v(D0+8,4)}, {v(WUB+4*st,4)}, {v(D1+4*st,4)}, {c}")
    a(f"""
  s_mov_b32 s{sK}, {NLN2}
  s_mov_b32 s{sK+1}, {NLN2}
  s_mov_b32 s{sTmp}, {NLOG2E}
  s_mov_b32 s{sTmp+1}, {NLOG2E}
  v_and_b32 v{t0}, 15, v{vl}
  v_lshlrev_b32 v{t0}, 8, v{t0}
  v_lshrrev_b32 v{t1}, 4, v{vl}
  v_lshl_add_u32 v{t0}, v{t1}, 3, v{t0}
  s_lshl_b32 s{sTmp+2}, s{sW}, 5
  v_add_u32 v{t0}, s{sTmp+2}, v{t0}
  v_add_u32 v{t1}, 4096, v{t0}
  v_add_u32 v{t2}, 8192, v{t0}""")
    for nt in range(3):
        d = D0 + 4*nt
        a(f"""
  v_pk_fma_f32 {p(d)}, {p(d)}, {s(sK,2)}, {p(U+4*nt)}
  v_pk_fma_f32 {p(d+2)}, {p(d+2)}, {s(sK,2)}, {p(U+4*nt+2)}
  v_pk_mul_f32 {p(EA)}, {p(d)}, {s(sTmp,2)}
  v_pk_mul_f32 {p(EA+2)}, {p(d+2)}, {s(sTmp,2)}""")
        for i in range(4): a(f"  v_exp_f32 v{EA+i}, v{EA+i}")
        a(f"  s_nop 0\n  v_pk_add_f32 {p(EA)}, {p(EA)}, 1.0 op_sel_hi:[1,0]\n  v_pk_add_f32 {p(EA+2)}, {p(EA+2)}, 1.0 op_sel_hi:[1,0]")
        for i in range(4): a(f"  v_rcp_f32 v{EA+i}, v{EA+i}")
        a(f"""
  s_nop 0
  v_pk_mul_f32 {p(d)}, {p(d)}, {p(EA)}
  v_pk_mul_f32 {p(d+2)}, {p(d+2)}, {p(EA+2)}
  v_cvt_pk_bf16_f32 v{EB+2*nt}, v{d}, v{d+1}
  v_cvt_pk_bf16_f32 v{EB+2*nt+1}, v{d+2}, v{d+3}
  buffer_store_dwordx2 {v(EB+2*nt,2)}, v{t0+nt}, {s(SO,4)}, 0 offen""")
    if OPT["stamp"]:
        a(f"""
  s_waitcnt vmcnt(0)
  s_memrealtime s[4:5]
  s_waitcnt lgkmcnt(0)
  s_lshl_b32 s6, s2, 3
  s_add_u32 s6, s6, s{sW}
  s_lshl_b32 s6, s6, 6
  s_add_u32 s6, s6, {WS_STAMP}
  s_add_u32 s6, s{pWS}, s6
  s_addc_u32 s7, s{pWS+1}, 0
  s_mov_b64 exec, 1
  v_mov_b32 v1, 0""")
        for i, r in enumerate([80+2*i for i in range(8)] + [96, 98, 4]):
            pass
        regs = [80, 82, 84, 86, 88, 90, 92, 94, 8, 9, 4, 10, 11, sT]
        for i, r in enumerate(regs):
            a(f"  v_mov_b32 v2, s{r}\n  global_store_dword v1, v2, s[6:7] offset:{4*i}")
    a(f"""
K_END:
  s_endpgm
""")
    a(f"""
K_PREP:
  s_sub_u32 s{sq}, s2, {2*G}
  s_lshl_b32 s{sq}, s{sq}, 14
  s_lshl_b32 s{sq+1}, s{sW}, 12
  s_add_u32 s{sq}, s{sq}, s{sq+1}
  v_lshlrev_b32 v{t0}, 4, v{vl}
  v_mov_b32 v{t7}, s{sTag}
  s_waitcnt vmcnt(10)
  s_barrier""")
    wtr(PF, vqa)
    a("  s_waitcnt lgkmcnt(0)")
    for st in range(4):
        a(f"  buffer_store_dwordx4 {v(PF+4*st,4)}, v{t0}, {s(SW,4)}, s{sq} offen offset:{st*1024} sc1")
    a(f"""
  s_lshr_b32 s{sq}, s{sW}, 2
  s_add_u32 s{sq}, s{sq}, s2
  s_cmp_lg_u32 s{sq}, {2*G}
  s_cbranch_scc1 K_PREPD
  s_mov_b32 s{sq+1}, {NLOG2E}
  s_lshl_b32 s{sq}, s{sW}, 10
  s_waitcnt vmcnt(6)""")
    for jj in range(8):
        a(f"  v_lshlrev_b32 v{D0+jj}, 16, v{D0+jj}\n  v_mul_f32 v{D0+jj}, s{sq+1}, v{D0+jj}")
    for i in range(4):
        a(f"  v_cvt_pk_bf16_f32 v{D0+8+i}, v{D0+2*i}, v{D0+1+2*i}")
    for i in range(4):
        a(f"""
  v_lshlrev_b32 v{t2}, 16, v{D0+8+i}
  v_and_b32 v{t3}, 0xffff0000, v{D0+8+i}
  v_sub_f32 v{t2}, v{D0+2*i}, v{t2}
  v_sub_f32 v{t3}, v{D0+1+2*i}, v{t3}
  v_cvt_pk_bf16_f32 v{D0+12+i}, v{t2}, v{t3}""")
    a(f"""
  s_add_u32 s{sq+1}, s{sq}, {WF_3L}
  s_add_u32 s{sq}, s{sq}, {WF_3H}
  buffer_store_dwordx4 {v(D0+8,4)}, v{t0}, {s(SW,4)}, s{sq} offen sc1
  buffer_store_dwordx4 {v(D0+12,4)}, v{t0}, {s(SW,4)}, s{sq+1} offen sc1
K_PREPD:""")
    own_x(4)
    a(f"""
  s_waitcnt vmcnt(0)
  s_barrier
  s_cmp_eq_u32 s{sW}, 0
  s_cbranch_scc1 K_FLAG
  s_branch K_PST""")
    a(f"""
K_OVF:
  s_waitcnt lgkmcnt(0)
  s_barrier
  s_mul_i32 s{sq+1}, s2, {OVSTR//2}
  s_add_u32 s{sq+1}, s{sq+1}, 64
  v_mov_b32 v{t5}, {L_FLG+8}
  v_mov_b32 v{t6}, -1""")
    for j in range(5):
        a(f"""
  v_cmp_le_u32 vcc, {CAP-1}, v{RK+j}
  s_and_b64 exec, exec, vcc
  s_cbranch_execz K_OV{j}
  v_add_u32 v{t1}, {L_BCNT}, v{B4+j}
  ds_read_b32 v{t1}, v{t1}
  s_waitcnt lgkmcnt(0)
  v_cmp_ne_u32 vcc, {CAP}, v{t1}
  s_nop 1
  v_cndmask_b32 v{t3}, v{SS_+j}, v{t6}, vcc
  ds_write_b32 v{CA+j}, v{t3} offset:{CELLB-8}
  s_and_b64 exec, exec, vcc
  s_cbranch_execz K_OV{j}
  ds_add_rtn_u32 v{t1}, v{t5}, v{vone}
  v_mov_b32 v{CV}, v{SS_+j}
  v_lshrrev_b32 v{CV+1}, 2, v{B4+j}
  s_waitcnt lgkmcnt(0)
  v_lshl_add_u32 v{t1}, v{t1}, 3, s{sq+1}
  buffer_store_dwordx2 {v(CV,2)}, v{t1}, {s(SV,4)}, 0 offen sc1
  s_waitcnt vmcnt(0)
K_OV{j}:
  s_mov_b64 exec, -1""")
    a(f"""
  s_waitcnt lgkmcnt(0)
  s_barrier
  ds_read_b32 v{t1}, v{t5}
  s_sub_u32 s{sq+1}, s{sq+1}, 64
  v_mov_b32 v{t3}, s{sq+1}
  v_mov_b32 v{t2}, 0
  s_waitcnt lgkmcnt(0)
  buffer_store_dword v{t1}, v{t3}, {s(SV,4)}, 0 offen sc1
  s_waitcnt vmcnt(0)
  s_branch K_OVFDONE""")
    for u in range(OPT["unroll"] - 1):
        a(f"K_OX{u}:\n  s_cmp_eq_u32 s{sCnt}, 0\n  s_cbranch_scc1 K_LOOPEND")
        for x in incs(u + 1): a(x)
        a("  s_branch K_QUAD")
    loop("quad")
    a("  s_branch K_LOOPEND")
    loop("safe")
    a("  s_branch K_LOOPEND")
    a(f"""
K_NOGEMM0:
  s_waitcnt vmcnt(0)
  s_branch K_NOGEMM
K_RESTART:
  s_mov_b32 s{sMode}, 1
  s_mov_b32 s{sKind}, 0
  s_waitcnt lgkmcnt(0)
  s_barrier
  v_mov_b32 v{CV}, 0
  v_mov_b32 v{CV+1}, 0
  v_mov_b32 v{CV+2}, 0
  v_mov_b32 v{CV+3}, 0""")
    for j in range(5):
        a(f"  ds_write_b128 v{vt16}, {v(CV,4)} offset:{L_ACC + j*8192}")
    a(f"""
  v_cmp_gt_u32 vcc, {(40*AS-5*8192)//16}, v0
  s_and_saveexec_b64 {s(sEx,2)}, vcc
  ds_write_b128 v{vt16}, {v(CV,4)} offset:{L_ACC + 5*8192}
  s_mov_b64 exec, {s(sEx,2)}
  s_branch K_RELOAD
K_SPLIT:
  s_mov_b32 s{sKind}, 1
  s_waitcnt lgkmcnt(0)
  s_barrier
  s_branch K_RELOAD
K_NEXT:
  s_cmp_eq_u32 s{sKind}, 4
  s_cbranch_scc1 K_NEXTOV
  s_cmp_eq_u32 s{sKind}, 3
  s_cbranch_scc1 K_OVPART1
  s_cmp_eq_u32 s{sKind}, 2
  s_cbranch_scc1 K_CELLSDONE
  s_mov_b32 s{sKind}, 2
K_RELOAD:
  v_lshrrev_b32 v{t1}, 2, v0
  s_mov_b32 s{sq}, {CH*32}
  v_mul_u32_u24 v{vebase}, s{sq}, v{t1}
  s_waitcnt vmcnt(0)""")
    for k in range(2):
        a(f"  buffer_load_dwordx4 {v(REC+4*k,4)}, v{vcell}, {s(SC,4)}, 0 offen offset:{64*k} sc1")
    a(f"""
  s_waitcnt vmcnt(0)
  s_mov_b32 exec_lo, 0xaaaaaaaa
  s_mov_b32 exec_hi, 0xaaaaaaaa
  v_mov_b32 v{REC+3}, 0
  v_mov_b32 v{REC+7}, 0
  s_mov_b64 exec, -1
  s_cmp_eq_u32 s{sKind}, 0
  s_cbranch_scc1 K_ROUND
  s_lshr_b32 s{sq}, s{sW}, 2
  s_add_u32 s{sq}, s{sq}, 1
  s_cmp_eq_u32 s{sq}, s{sKind}
  s_cbranch_scc1 K_ROUND""")
    for k in range(NR): a(f"  v_mov_b32 v{REC+k}, 0")
    a(f"""
K_ROUND:
  v_mov_b32 v{CV}, 0
  v_mov_b32 v{CV+1}, 0
  v_mov_b32 v{CV+2}, 0
  v_mov_b32 v{CV+3}, 0
  v_cmp_gt_u32 vcc, {(L_FLG-L_GN)//16}, v0
  s_and_saveexec_b64 {s(sEx,2)}, vcc
  ds_write_b128 v{vt16}, {v(CV,4)} offset:{L_GN}
  s_mov_b64 exec, {s(sEx,2)}""")
    prefill()
    a(f"""
  v_and_b32 v{vent}, 2047, v{vent}
  v_and_b32 v{vrow}, 2047, v{vrow}
  v_subrev_u32 v{vga}, {L_GN}, v{vga}
  v_and_b32 v{vga}, 255, v{vga}
  v_add_u32 v{vga}, {L_GN}, v{vga}
  v_and_b32 v{t2}, 12, v{vl}
  v_add_u32 v{vgq}, v{vga}, v{t2}
  s_waitcnt lgkmcnt(0)
  s_barrier
  s_branch K_PHASE1
K_STARTOV:""")
    for i in range(4): a(f"  v_readfirstlane_b32 s{sOV+i}, v{CV+i}")
    a(f"""
  s_mov_b32 s{sKind}, 4
  s_waitcnt lgkmcnt(0)
K_NEXTOV:""")
    for i in range(2):
        a(f"""
  s_ff1_i32_b64 s{sP}, {s(sOV+2*i,2)}
  s_cmp_eq_u32 s{sP}, -1
  s_cbranch_scc1 K_OVN{i}
  s_bitset0_b64 {s(sOV+2*i,2)}, s{sP}
  s_add_u32 s{sP}, s{sP}, {64*i}
  s_branch K_OVGO
K_OVN{i}:""")
    a(f"""
  s_branch K_CONV
K_OVGO:
  s_mov_b32 s{sKind}, 3
  v_mov_b32 v{t4}, v0
  s_branch K_OVLD
K_OVPART1:
  s_mov_b32 s{sKind}, 4
  v_add_u32 v{t4}, 2048, v0
K_OVLD:
  s_mul_i32 s{sq}, s{sP}, {OVSTR}
  s_mul_i32 s{sq+1}, s{sP}, {CH*32}
  v_mov_b32 v{vebase}, s{sq+1}
  v_mov_b32 v{t0}, s{sq}
  buffer_load_dword v{t1}, v{t0}, {s(SV,4)}, 0 offen sc1
  v_lshl_add_u32 v{t2}, v{t4}, 3, v{t0}""")
    for k in range(4):
        a(f"  buffer_load_dwordx2 {v(PF+2*k,2)}, v{t2}, {s(SV,4)}, 0 offen offset:64 sc1\n  v_add_u32 v{t2}, 4096, v{t2}")
    a(f"  s_waitcnt vmcnt(0)")
    for k in range(4):
        a(f"""
  v_cmp_lt_u32 vcc, v{t4}, v{t1}
  v_cmp_eq_u32 {s(sEx,2)}, s2, v{PF+2*k+1}
  s_and_b64 vcc, vcc, {s(sEx,2)}
  v_add_u32 v{t4}, 512, v{t4}
  s_nop 1
  v_cndmask_b32 v{REC+k}, 0, v{PF+2*k}, vcc""")
    for k in range(4, NR): a(f"  v_mov_b32 v{REC+k}, 0")
    a("  s_branch K_ROUND")
    return a.text(), nv, NS

def gen_diag(idx):
    a = Asm()
    a(f"""
.globl mpnn_d_kernel
.p2align 8
.type mpnn_d_kernel,@function
mpnn_d_kernel:
  s_cmp_ge_u32 s2, 1
  s_cbranch_scc1 D_END
  s_load_dwordx2 s[4:5], s[0:1], 64
  s_waitcnt lgkmcnt(0)
  s_add_u32 s4, s4, {WS_STAMP + (OPT['wsb'] << 20)}
  s_addc_u32 s5, s5, 0
  s_load_dword s6, s[4:5], 0
  s_waitcnt lgkmcnt(0)
  s_sub_u32 s6, s6, 100000""")
    for q, (ix, ismax) in enumerate(((idx, 1), (0, 0))):
        op = "max" if ismax else "min"
        a(f"  v_lshlrev_b32 v1, {6 if not OPT['dodd'] else 10}, v0\n  v_add_u32 v1, {ix*4 + (512 + 64*(OPT['dodd']-1) if OPT['dodd'] else 0)}, v1\n  v_mov_b32 v3, {0 if ismax else -1}")
        nk = 32 if not OPT['dodd'] else 2
        for k in range(nk):
            a(f"  global_load_dword v{8+k}, v1, s[4:5]\n  v_add_u32 v1, {4096 if not OPT['dodd'] else 65536}, v1")
        a("  s_waitcnt vmcnt(0)")
        for k in range(nk):
            a(f"  v_subrev_u32 v2, s6, v{8+k}\n  v_{op}_u32 v3, v3, v2")
        a(f"  s_mov_b32 s{20+q}, {0 if ismax else -1}\n  s_nop 1")
        for l in range(64):
            a(f"  v_readlane_b32 s8, v3, {l}\n  s_nop 0\n  s_{op}_u32 s{20+q}, s{20+q}, s8")
    a(f"""
  s_sub_u32 s20, s20, s21
  s_min_u32 s20, s20, 20000
  s_lshl_b32 s20, s20, 3
  {'s_mov_b32 s20, 0' if OPT['dz'] else ''}
  s_memrealtime s[8:9]
  s_waitcnt lgkmcnt(0)
D_L:
  s_memrealtime s[10:11]
  s_waitcnt lgkmcnt(0)
  s_sub_u32 s12, s10, s8
  s_cmp_lt_u32 s12, s20
  s_cbranch_scc1 D_L
D_END:
  s_endpgm
""")
    return a.text()

HEAD = """; Kernarg layout for this problem (72 bytes, ptrs only, base s[0:1]):
"""
def main():
    k, nv, ns = gen()
    out = HEAD + f"; @launch grid=({NB},1,1) block=(512,1,1) lds={LDS}\n"
    if OPT["diag"] >= 0:
        out = HEAD + f"; @launch kernel={KN} grid=({NB},1,1) block=(512,1,1) lds={LDS}\n; @launch kernel=mpnn_d_kernel grid=(1,1,1) block=(64,1,1) lds=0\n"
        k += gen_diag(OPT["diag"])
    out += '.amdgcn_target "amdgcn-amd-amdhsa--gfx950"\n.text\n' + k
    out += f""".section .rodata,"a"
.p2align 6
.amdhsa_kernel {KN}
  .amdhsa_next_free_vgpr {nv}
  .amdhsa_next_free_sgpr {ns}
  .amdhsa_accum_offset {(nv+3)//4*4}
  .amdhsa_group_segment_fixed_size 0
  .amdhsa_kernarg_size 72
  .amdhsa_user_sgpr_count 2
  .amdhsa_user_sgpr_kernarg_segment_ptr 1
  .amdhsa_system_sgpr_workgroup_id_x 1
.end_amdhsa_kernel
"""
    if OPT["diag"] >= 0:
        out += """.p2align 6
.amdhsa_kernel mpnn_d_kernel
  .amdhsa_next_free_vgpr 48
  .amdhsa_next_free_sgpr 32
  .amdhsa_accum_offset 48
  .amdhsa_group_segment_fixed_size 0
  .amdhsa_kernarg_size 72
  .amdhsa_user_sgpr_count 2
  .amdhsa_user_sgpr_kernarg_segment_ptr 1
  .amdhsa_system_sgpr_workgroup_id_x 1
.end_amdhsa_kernel
"""
    open(sys.argv[1], "w").write(out)
    print("vgprs", nv, "lds", LDS)
main()
```

```python
from common import *

N = 10000; E = 320000
G = 125
CH = 2560
NB = 256
MAGIC = 26843
CAP = 28
CELLB = 128
BSTR = G * CELLB

WS_P = 256
WS_CELL = 0x280000
WS_WF = 0x1280000
WF_W2, WF_UT, WF_UB, WF_3H, WF_3L = 0, 32768, 65536, 98304, 102400
WF_SIZE = 106496
WS_OVF = 0x12A0000
OVSTR = 64 + CH * 8
WS_FLAG = 0x1520000
WS_STAMP = 0x1600000

OPT = dict(lo=0, k8=1, stamp=0, nodma=0, noadd=0, noe=0, hot=0, align=1, unroll=2, dmapos=0, rdpos=0, dsc=1, pf=1, slp=0, stf=1, addpos=0, rdgap=0, prio=0, bench=0, octo=1, frep=8, fln=16, slp0=0, plf=1, flf=1, diag=-1, touch=0, dz=0, abl=0, dodd=0, wsb=0, claim=0, slpa=0, slpb=0, zt=0)
for a_ in sys.argv[2:]:
    k_, v_ = a_.split("="); OPT[k_] = int(v_)
EXP = OPT["bench"] or OPT["nodma"] or OPT["noe"] or OPT["noadd"] or OPT["hot"]

FL_ = ['', 'sc1', 'sc0 sc1', 'sc1 nt', 'sc0 sc1 nt']; PLF = FL_[OPT['plf']]; FLF = FL_[OPT['flf']]
STF = ['', 'sc1', 'sc0 sc1', 'sc1 nt'][OPT['stf']]
FREP = OPT['frep']; FLN = OPT['fln']; FSH = (128//FLN).bit_length()-1; FHALF = FREP*FLN*256; FNON = 2*FHALF; FMASK = hex((1<<FREP)-1)
NCL = 3 if OPT['claim'] & 1 else 0
NCC = 4 if OPT['claim'] & 2 else 0
CAPB = 70
L_ENT = 0
L_GN = (CAPB + 1) * 256
L_CNT = L_GN + (CAPB + 17) * 32
L_FLG = L_CNT + 256
L_ACC = L_FLG + 64
AS = 1040
L_Q = L_ACC + 40 * AS
QS = 320
L_X = L_Q + 40 * QS
XS = 288
L_STG = L_X + 40 * XS
STG = 8 * 1040 + 1024
LDS = L_STG + 8 * STG
L_CIMG = L_STG
L_BCNT = L_CIMG + NB * CELLB
WPITCH = 1088
L_GP = L_STG + 1024
L_WS = L_STG + 32 * WPITCH
assert L_BCNT + 1024 <= LDS and L_STG % 16 == 0 and L_ACC % 16 == 0
PADS, PADE = 0x8000003f, 0x80000000
KN = "standalone__mpnn_edge_mlp__graph_kernel"

def stamp(a, i, cyc=None):
    if OPT["stamp"]:
        if cyc is None:
            a(f"  s_memrealtime s[{80+2*i}:{81+2*i}]\n  s_waitcnt lgkmcnt(0)")
        else:
            a(f"  s_memrealtime s[96:97]\n  s_memtime s[98:99]\n  s_waitcnt lgkmcnt(0)\n  s_mov_b32 s{i}, s96\n  s_mov_b32 s{i+2}, s98")

def gen():
    a = Asm()
    R = Regs(1)
    al = R.alloc
    vl = al("lane")
    t0 = al("t", 8, 2); t1, t2, t3, t4, t5, t6, t7 = range(t0+1, t0+8)
    vchunk = al("vchunk"); vechunk = al("vechunk")
    vent = al("vent"); vrow = al("vrow"); vgq = al("vgq"); vga = al("vga")
    vAlo = al("Alo"); vAhi = al("Ahi"); vEF = al("vEF")
    vqlane = al("vqlane"); vacl = al("vacl"); vxb = al("vxb"); vqw = al("vqw")
    vebase = al("vebase"); vone = al("vone"); vt16 = al("vt16"); vcell = al("vcell")
    vqa = al("vqa"); vsrow = al("vsrow"); vgn1 = al("vgn1")
    ENT = al("ENT", 2, 2)
    MAC = al("MAC", 2, 2)
    PAT = al("PAT", 2, 2)
    nq = 2 if OPT["k8"] else 4
    AQ = al("AQ", nq, 2)
    GN = al("GN", 4, 2); AD = al("AD", 4)
    DO = al("DO", 2)
    I0 = al("I0", 4, 2); I1 = al("I1", 4, 2)
    W3 = al("W3", 16, 2)
    W3L = al("W3L", 16, 2) if OPT["lo"] else None
    BQ = al("BQ", 4*nq, 2)
    EF = al("EF", 4, 2)
    PF = al("PF", 32, 2)
    D0 = al("D0", 16, 2); D1 = al("D1", 16, 2)
    EA = al("EA", 8, 2); TA = al("TA", 8, 2); EB = al("EB", 8, 2); TB = al("TB", 8, 2)
    RA = al("RA", 2, 2); RB = al("RB", 2, 2)
    SA = al("SA", 2, 2); SB = al("SB", 2, 2)
    CV = al("CV", 8, 2)
    U = al("U", 12, 2); WUB = al("WUB", 16, 2)
    DUM = al("DUM", 4, 2)
    DK = al("DK", 4, 2)
    nv = R.n
    assert TA == EA + 8 and EB == EA + 16 and TB == EA + 24 and D1 == D0 + 16
    DD = D0; SS_ = D0 + 5; B4 = D0 + 10; RK = D0 + 15; CA = D0 + 20
    CP = PF
    GX = W3
    XL = U
    W1F = WUB
    REC = D0; NOD = D0 + 8; RNK = D1
    W2F = EA; WUT = EB; XF = PF; QD = CV
    sW = 3
    pX, pE, pS, pD, pWM, pWU, pO, pWS = 4, 6, 8, 10, 12, 14, 16, 18
    SP, SE, SC, SW, SO, SV, SF = 20, 24, 28, 32, 36, 40, 44
    T0, T1, T2 = 48, 52, 56
    sStart, sNb, sStg, sCnt, sT, sMode, sKind, sFirst = 60, 61, 62, 63, 64, 65, 66, 67
    sAS, sQS, sTag, sP, sUB, sLo2 = 68, 69, 70, 71, 72, 73
    sCO = 59
    sNp = 79
    sEx, sK, sBad = 74, 76, 78
    sTmp = 4
    sA = 48
    sOV = 48
    sOVT = 74
    sq = 100
    if OPT["stamp"]: NS = 102
    else: NS = 102

    a(f"""
.globl {KN}
.p2align 8
.type {KN},@function
{KN}:
  s_cmp_ge_u32 s2, {NB}
  s_cbranch_scc1 K_END""")
    if OPT["stamp"]: a("  s_memrealtime s[80:81]")
    a(f"""
  s_load_dwordx8 s[4:11], s[0:1], 0
  s_load_dwordx4 s[12:15], s[0:1], 32
  s_load_dwordx2 s[16:17], s[0:1], 48
  s_load_dwordx2 s[18:19], s[0:1], 64
  v_lshrrev_b32 v{t0}, 6, v0
  v_and_b32 v{vl}, 63, v0
  s_and_b32 s{sP}, s2, {FREP-1}
  s_mul_i32 s{sP}, s{sP}, {FLN*256}
  s_and_b32 s{sq}, s2, 7
  s_lshl_b32 s{sq}, s{sq}, 1
  s_bfe_u32 s{sq+1}, s2, 0x10003
  s_and_b32 s2, s2, 0xf0
  s_or_b32 s2, s2, s{sq}
  s_or_b32 s2, s2, s{sq+1}
  s_mul_i32 s{sStart}, s2, 640013
  v_readfirstlane_b32 s{sW}, v{t0}
  s_add_u32 s{sNb}, s{sStart}, {640013+16383}
  s_add_u32 s{sStart}, s{sStart}, 16383
  s_sub_u32 s{sNp}, s{sStart}, 640013
  s_lshr_b32 s{sStart}, s{sStart}, 14
  s_lshr_b32 s{sNb}, s{sNb}, 14
  s_lshr_b32 s{sNp}, s{sNp}, 14
  s_min_u32 s{sNb}, s{sNb}, {N}
  s_sub_u32 s{sCnt}, s{sNb}, s{sNp}
  s_sub_u32 s{sNb}, s{sNb}, s{sStart}
  s_lshl_b32 s{sT}, s{sNp}, 8
  s_sub_u32 s{sNp}, s{sStart}, s{sNp}
  s_mov_b32 s{sMode}, 0
  s_mov_b32 s{sKind}, 0
  s_mov_b32 s{sFirst}, 1
  s_mov_b32 s{sAS}, {AS}
  s_mov_b32 s{sQS}, {QS}
  s_mul_i32 s{sStg}, s{sW}, {STG}
  s_add_u32 s{sStg}, s{sStg}, {L_STG}
  v_lshlrev_b32 v{vt16}, 4, v0
  s_mul_i32 s{sq}, s2, {CH*2}
  v_lshl_add_u32 v{t2}, v0, 2, s{sq}
  v_add_u32 v{t3}, 4096, v{t2}
  v_lshrrev_b32 v{t4}, 4, v{vl}
  v_lshlrev_b32 v{t0}, 1, v{t4}
  v_xor_b32 v{t0}, v{t0}, v{vl}
  v_lshlrev_b32 v{t0}, 4, v{t0}
  s_lshl_b32 s{sq}, s{sW}, 12
  v_add_u32 v{t7}, s{sq}, v{t0}
  s_mul_i32 s{sUB}, s{sW}, {4*WPITCH}
  s_add_u32 s{sUB}, s{sUB}, {L_WS}
  v_add_u32 v{t6}, 8192, v{vt16}
  v_add_u32 v{t5}, 16384, v{vt16}
  s_waitcnt lgkmcnt(0)
  {"s_add_u32 s%d, s%d, %d" % (pWS, pWS, OPT["wsb"] << 20) + chr(10) + "  s_addc_u32 s%d, s%d, 0" % (pWS+1, pWS+1) if OPT["wsb"] else ""}
  s_bitcmp1_b32 s2, 0
  s_cbranch_scc1 K_LDG
  s_cmp_ge_u32 s2, {2*G}
  s_cbranch_scc1 K_LDP""")
    srd(a, T0, pD, E*4)
    srd(a, T1, pS, E*4)
    a(f"  s_movk_i32 s{sq}, 0x2000")
    for r_, T in ((DD, T0), (SS_, T1)):
        a(f"""
  buffer_load_dword v{r_}, v{t2}, {s(T,4)}, 0 offen
  buffer_load_dword v{r_+1}, v{t2}, {s(T,4)}, 0 offen offset:2048
  buffer_load_dword v{r_+2}, v{t3}, {s(T,4)}, 0 offen
  buffer_load_dword v{r_+3}, v{t3}, {s(T,4)}, 0 offen offset:2048
  buffer_load_dword v{r_+4}, v{t2}, {s(T,4)}, s{sq} offen""")
    if OPT["claim"] & 2:
        srd(a, T2, pWS, NB*BSTR, add=WS_CELL)
        a(f"""
  v_lshrrev_b32 v{t4}, 3, v0
  s_mov_b32 s{sq}, {BSTR}
  v_mul_u32_u24 v{t4}, s{sq}, v{t4}
  v_and_b32 v{t0}, 7, v0
  v_lshl_add_u32 v{t4}, v{t0}, 4, v{t4}
  s_lshl_b32 s{sq}, s2, 6
  v_mov_b32 v{PF}, 0
  v_mov_b32 v{PF+1}, 0
  v_mov_b32 v{PF+2}, 0
  v_mov_b32 v{PF+3}, 0""")
        for j in range(4):
            a(f"  buffer_store_dwordx4 {v(PF,4)}, v{t4}, {s(T2,4)}, s{sq} offen sc1\n  s_add_u32 s{sq}, s{sq}, {64*BSTR}")
    def wdma(T):
        for q in range(4):
            a(f"  s_add_u32 m0, s{sUB}, {64*q}\n  s_nop 0\n  buffer_load_dwordx4 v{t7}, {s(T,4)}, 0 offen offset:{1024*q} lds")
    a(f"""
K_LDX:
  s_lshl_b32 s{sq}, s{sStart}, 8
  s_lshl_b32 s{sq+1}, s{sNb}, 8""")
    srd(a, T2, pX, f"s{sq+1}", addreg=sq)
    a(f"""
  buffer_load_dwordx4 {v(XL,4)}, v{vt16}, {s(T2,4)}, 0 offen
  buffer_load_dwordx4 {v(XL+4,4)}, v{t6}, {s(T2,4)}, 0 offen
  s_branch K_LD3
K_LDP:
  s_cmp_eq_u32 s2, {2*G}
  s_cselect_b32 s{T1}, s{pWM}, s{pWU}
  s_cselect_b32 s{T1+1}, s{pWM+1}, s{pWU+1}
  s_cmp_eq_u32 s2, {2*G+2}
  s_cselect_b32 s{sq}, 0, 32768
  s_add_u32 s{T1}, s{T1}, s{sq}
  s_addc_u32 s{T1+1}, s{T1+1}, 0
  s_mov_b32 s{T1+2}, 32768
  s_mov_b32 s{T1+3}, 0x20000""")
    wdma(T1)
    srd(a, T0, pWM, 16*256, add=256*256)
    a(f"""
  v_and_b32 v{t0}, 31, v{vl}
  v_lshrrev_b32 v{t1}, 5, v{vl}
  v_lshlrev_b32 v{t1}, 11, v{t1}
  v_lshl_add_u32 v{t1}, v{t0}, 1, v{t1}
  s_and_b32 s{sq}, s{sW}, 3
  s_lshl_b32 s{sq}, s{sq}, 6""")
    for jj in range(8):
        a(f"  buffer_load_ushort v{D0+jj}, v{t1}, {s(T0,4)}, s{sq} offen offset:{jj*256}")
    a(f"""
  s_branch K_LDX
K_LDG:
  s_lshl_b32 s{sCnt}, s{sCnt}, 8""")
    srd(a, T0, pX, f"s{sCnt}", addreg=sT)
    srd(a, T1, pWM, 128*256)
    a(f"""
  buffer_load_dwordx4 {v(GX,4)}, v{vt16}, {s(T0,4)}, 0 offen
  buffer_load_dwordx4 {v(GX+4,4)}, v{t6}, {s(T0,4)}, 0 offen
  buffer_load_dwordx4 {v(GX+8,4)}, v{t5}, {s(T0,4)}, 0 offen""")
    wdma(T1)
    if OPT["claim"] & 1:
        srd(a, T2, pWS, f"s{sCnt}", add=WS_P, addreg=sT)
        for r_ in (vt16, t6, t5):
            a(f"  buffer_store_dwordx4 {v(PF,4)}, v{r_}, {s(T2,4)}, 0 offen sc1")
    a(f"""
K_LD3:
  s_add_u32 s{SF}, s{pWS}, {WS_FLAG}
  s_addc_u32 s{SF+1}, s{pWS+1}, 0
  s_load_dword s{sTag}, s[{SF}:{SF+1}], {FNON}
  s_mov_b32 s{SF+2}, {FNON+4}
  s_mov_b32 s{SF+3}, 0x20000
  v_lshrrev_b32 v{t1}, 2, v0
  v_and_b32 v{t4}, 3, v0
  v_lshlrev_b32 v{t4}, 4, v{t4}
  v_lshl_add_u32 v{vcell}, v{t1}, 7, v{t4}
  s_mov_b32 s{sq}, {CH*32}
  v_mul_u32_u24 v{vebase}, s{sq}, v{t1}""")
    a(f"""
  v_mov_b32 v{CV}, 0
  v_mov_b32 v{CV+1}, 0
  v_mov_b32 v{CV+2}, 0
  v_mov_b32 v{CV+3}, 0
  v_add_u32 v{t0}, {L_CIMG}, v{vt16}""")
    a(f"  s_bitcmp1_b32 s2, 0\n  s_cbranch_scc1 K_NOZ")
    for j in range(4):
        a(f"  ds_write_b128 v{t0}, {v(CV,4)} offset:{j*8192}")
    a(f"  s_cmp_lg_u32 s{sW}, 0\n  s_cbranch_scc1 K_NOZ\n  ds_write_b128 v{t0}, {v(CV,4)} offset:32768")
    a("K_NOZ:")
    for j in range(5):
        a(f"  ds_write_b128 v{vt16}, {v(CV,4)} offset:{L_GN + j*8192}")
    a(f"""
  v_cmp_gt_u32 vcc, {(L_Q-L_GN-5*8192)//16}, v0
  s_and_saveexec_b64 {s(sEx,2)}, vcc
  ds_write_b128 v{vt16}, {v(CV,4)} offset:{L_GN + 5*8192}
  s_mov_b64 exec, {s(sEx,2)}""")
    def prefill():
        a(f"""
  v_mov_b32 v{CV+4}, {PADS}
  v_mov_b32 v{CV+5}, {PADE}
  v_mov_b32 v{CV+6}, {PADS}
  v_mov_b32 v{CV+7}, {PADE}
  ds_write_b128 v{vt16}, {v(CV+4,4)}
  ds_write_b128 v{vt16}, {v(CV+4,4)} offset:8192
  v_cmp_gt_u32 vcc, {(L_GN-16384)//16}, v0
  s_and_saveexec_b64 {s(sEx,2)}, vcc
  ds_write_b128 v{vt16}, {v(CV+4,4)} offset:16384
  s_mov_b64 exec, {s(sEx,2)}""")
    prefill()
    a(f"  s_mul_i32 s{sq}, s2, {BSTR}\n  s_lshl_b32 s{sq+1}, s{sStart}, 8\n  s_lshl_b32 s{sK}, s{sNb}, 8")
    srd(a, SC, pWS, G*CELLB, add=WS_CELL, addreg=sq)
    srd(a, SP, pWS, (N+1)*256)
    srd(a, SE, pE, E*32)
    srd(a, SW, pWS, WF_SIZE, add=WS_WF)
    srd(a, SO, pO, f"s{sK}", addreg=sq+1)
    srd(a, SV, pWS, G*OVSTR, add=WS_OVF)
    a(f"""
  v_mov_b32 v{vone}, 1
  v_mov_b32 v{MAC}, 0
  v_mov_b32 v{MAC+1}, 0
  v_and_b32 v{t0}, 15, v{vl}                 ; l&15
  v_bfe_u32 v{t1}, v{vl}, 4, 1               ; r4&1
  v_lshlrev_b32 v{t2}, 3, v{t1}
  v_xor_b32 v{t2}, v{t0}, v{t2}
  v_lshlrev_b32 v{vchunk}, 4, v{t2}
  v_and_b32 v{t2}, 1, v{vl}
  v_xor_b32 v{t2}, v{t2}, v{t1}
  v_lshlrev_b32 v{vechunk}, 4, v{t2}
  v_lshrrev_b32 v{t2}, 4, v{vl}
  v_lshlrev_b32 v{t2}, 6, v{t2}
  v_lshrrev_b32 v{t4}, 1, v{t0}
  v_lshl_add_u32 v{t2}, v{t4}, 3, v{t2}
  s_lshl_b32 s{sq}, s{sW}, 8
  v_add_u32 v{vent}, s{sq}, v{t2}
  v_bfe_u32 v{t2}, v{vl}, 2, 1               ; h
  v_and_b32 v{t4}, 1, v{vl}                  ; xy
  v_lshl_add_u32 v{t5}, v{t2}, 1, v{t4}      ; r4
  v_bfe_u32 v{t6}, v{vl}, 3, 2
  v_bfe_u32 v{t7}, v{vl}, 1, 1
  v_lshl_add_u32 v{t6}, v{t6}, 1, v{t7}      ; j
  v_lshl_add_u32 v{t7}, v{t5}, 3, v{t6}      ; q = 8 r4 + j
  v_lshlrev_b32 v{t7}, 3, v{t7}
  v_add_u32 v{vrow}, s{sq}, v{t7}
  v_lshrrev_b32 v{t7}, 5, v{vl}              ; hh
  v_mul_u32_u24 v{vAlo}, 1040, v{t6}
  v_lshl_add_u32 v{vAlo}, v{t5}, 8, v{vAlo}
  v_lshl_add_u32 v{vAlo}, v{t7}, 4, v{vAlo}
  v_add_u32 v{vAlo}, s{sStg}, v{vAlo}
  v_xor_b32 v{vAhi}, 1, v{t4}
  v_lshl_add_u32 v{vAhi}, v{vAhi}, 7, v{vAlo}
  v_lshl_add_u32 v{vAlo}, v{t4}, 7, v{vAlo}
  v_xor_b32 v{vEF}, v{t7}, v{t4}
  v_lshl_add_u32 v{vEF}, v{t6}, 1, v{vEF}
  v_lshl_add_u32 v{vEF}, v{t5}, 4, v{vEF}
  v_lshlrev_b32 v{vEF}, 4, v{vEF}
  s_add_u32 s{sq+1}, s{sStg}, 8320
  v_add_u32 v{vEF}, s{sq+1}, v{vEF}
  v_bfe_u32 v{t5}, v{vl}, 4, 1               ; o
  v_lshlrev_b32 v{t5}, 4, v{t5}
  v_mov_b32 v{t6}, 0x3f80
  v_lshlrev_b32 v{t5}, v{t5}, v{t6}
  v_cmp_eq_u32 vcc, v{t7}, v{t2}
  s_nop 1
  v_cndmask_b32 v{t5}, 0, v{t5}, vcc
  v_cmp_eq_u32 vcc, 0, v{t4}
  s_nop 1
  v_cndmask_b32 v{PAT}, 0, v{t5}, vcc
  v_cndmask_b32 v{PAT+1}, v{t5}, 0, vcc
  s_lshl_b32 s{sq}, s{sW}, 5
  s_add_u32 s{sq+1}, s{sq}, {L_GN}
  v_lshlrev_b32 v{vga}, 4, v{t7}
  v_add_u32 v{vga}, s{sq+1}, v{vga}
  v_and_b32 v{t2}, 12, v{vl}
  v_add_u32 v{vgq}, v{vga}, v{t2}
  v_and_b32 v{t2}, 3, v{vl}
  v_lshlrev_b32 v{t2}, 3, v{t2}
  v_lshl_add_u32 v{t2}, v{t1}, 5, v{t2}
  v_add_u32 v{vqlane}, {L_Q}, v{t2}
  v_and_b32 v{t2}, 31, v{vl}
  v_lshlrev_b32 v{t4}, 3, v{t2}
  v_add_u32 v{vacl}, {L_ACC}, v{t4}
  v_lshrrev_b32 v{t4}, 4, v{vl}              ; g
  v_mul_u32_u24 v{vxb}, {XS}, v{t0}
  v_lshl_add_u32 v{vxb}, v{t4}, 4, v{vxb}
  v_add_u32 v{vxb}, {L_X}, v{vxb}
  v_mul_u32_u24 v{vqw}, {QS}, v{t0}
  v_lshl_add_u32 v{vqw}, v{t4}, 3, v{vqw}
  s_add_u32 s{sq+1}, s{sq}, {L_Q}
  v_add_u32 v{vqw}, s{sq+1}, v{vqw}
  v_mul_u32_u24 v{vqa}, {2*WPITCH}, v{t4}
  v_bfe_u32 v{t5}, v{vl}, 2, 2
  v_lshl_add_u32 v{vqa}, v{t5}, 8, v{vqa}
  v_xor_b32 v{t5}, s{sW}, v{t5}
  v_lshl_add_u32 v{vqa}, v{t5}, 5, v{vqa}
  v_and_b32 v{t5}, 3, v{vl}
  v_lshl_add_u32 v{vqa}, v{t5}, 3, v{vqa}
  v_add_u32 v{vqa}, {L_WS}, v{vqa}
  v_and_b32 v{t4}, 1, v{vl}
  v_lshlrev_b32 v{t4}, 4, v{t4}
  v_lshlrev_b32 v{t4}, v{t4}, v{t6}
  v_bfe_u32 v{t5}, v{vl}, 1, 4
  v_lshlrev_b32 v{t7}, 2, v{t7}
  v_sub_u32 v{t5}, v{t5}, v{t7}""")
    for i in range(4):
        a(f"  v_cmp_eq_u32 vcc, {i}, v{t5}\n  s_nop 1\n  v_cndmask_b32 v{I0+i}, 0, v{t4}, vcc")
        a(f"  v_cmp_eq_u32 vcc, {8+i}, v{t5}\n  s_nop 1\n  v_cndmask_b32 v{I1+i}, 0, v{t4}, vcc")
    if not OPT["k8"]:
        a(f"  v_mov_b32 v{AQ+2}, 0\n  v_mov_b32 v{AQ+3}, 0")
        for t in range(4):
            a(f"  v_mov_b32 v{BQ+4*t+2}, 0\n  v_mov_b32 v{BQ+4*t+3}, 0")
    def prefetch():
        if not OPT["pf"]: return
        a(f"  s_mul_i32 s{sq}, s2, 40000\n  s_sub_u32 s{sq}, s{sq}, 4096\n  v_add_u32 v{t0}, s{sq}, v{vt16}")
        for j in range(10):
            a(f"  buffer_load_dwordx4 {v(DUM,4)}, v{t0}, {s(SE,4)}, 0 offen")
            if j < 9: a(f"  v_add_u32 v{t0}, 4096, v{t0}")
    def wtr(dst, ad):
        for st in range(4):
            for hf in range(2):
                a(f"  ds_read_b64_tr_b16 {v(dst+4*st+2*hf,2)}, v{ad} offset:{(8*st+hf)*WPITCH}")
    def own_x(nyounger):
        a(f"""
  v_lshrrev_b32 v{t0}, 4, v0
  v_lshl_add_u32 v{t0}, v{t0}, 5, v{vt16}
  v_add_u32 v{t0}, {L_X}, v{t0}
  s_waitcnt vmcnt({nyounger})
  ds_write_b128 v{t0}, {v(XL,4)}
  s_mov_b32 exec_lo, s{sLo2}
  s_mov_b32 exec_hi, s{sLo2}
  ds_write_b128 v{t0}, {v(XL+4,4)} offset:{32*XS}
  s_mov_b64 exec, -1""")
    a(f"""
  s_cmp_lt_u32 s{sW}, 2
  s_cselect_b32 s{sLo2}, -1, 0
  s_lshr_b32 s{sq}, s2, {1+FSH}
  s_lshl_b32 s{sq}, s{sq}, 8
  s_bfe_u32 s{sq+1}, s2, {hex((FSH<<16)|1)}
  s_lshl_b32 s{sq+1}, s{sq+1}, 2
  s_add_u32 s{sq}, s{sq}, s{sq+1}
  s_and_b32 s{sq+1}, s2, 1
  s_mul_i32 s{sq+1}, s{sq+1}, {FHALF}
  s_add_u32 s{sq}, s{sq}, s{sq+1}
  v_mul_u32_u24 v{vgn1}, {FLN*256}, v{vl}
  v_add_u32 v{vgn1}, s{sq}, v{vgn1}
  v_lshrrev_b32 v{t2}, {FSH-1}, v{vl}
  v_lshlrev_b32 v{t2}, 8, v{t2}
  v_and_b32 v{t3}, {(1<<(FSH-1))-1}, v{vl}
  v_lshl_add_u32 v{t2}, v{t3}, 3, v{t2}
  v_add_u32 v{vsrow}, s{sP}, v{t2}
  s_mov_b32 s{sK}, {NLOG2E}
  s_mov_b32 s{sK+1}, {NLOG2E}
  s_waitcnt lgkmcnt(0)
  s_add_u32 s{sTag}, s{sTag}, 1
  s_max_u32 s{sTag}, s{sTag}, 1
  s_bitcmp1_b32 s2, 0
  s_cbranch_scc1 K_GEMM
  s_cmp_ge_u32 s2, {2*G}
  s_cbranch_scc1 K_PREP
  s_mov_b32 s{sq}, {MAGIC}
  v_lshlrev_b32 v{t7}, 6, v0
  v_add_u32 v{t7}, {1<<18}, v{t7}
  s_barrier
  s_waitcnt vmcnt({7+NCC})""")
    stamp(a, 1)
    for j in range(5):
        a(f"""
  v_mul_u32_u24 v{B4+j}, s{sq}, v{DD+j}
  v_lshrrev_b32 v{B4+j}, 18, v{B4+j}
  v_and_b32 v{B4+j}, 0x3fc, v{B4+j}
  v_add_u32 v{t0+j}, {L_BCNT}, v{B4+j}
  ds_add_rtn_u32 v{RK+j}, v{t0+j}, v{vone}""")
    a(f"  s_waitcnt vmcnt({2+NCC})")
    for j in range(5):
        a(f"""
  v_lshl_add_u32 v{SS_+j}, v{SS_+j}, 18, v{t7}
  v_and_or_b32 v{SS_+j}, v{DD+j}, 63, v{SS_+j}
  v_lshlrev_b32 v{CA+j}, 5, v{B4+j}
  v_add_u32 v{CA+j}, {L_CIMG}, v{CA+j}""")
        if j < 4: a(f"  v_add_u32 v{t7}, {512<<6}, v{t7}")
    srd(a, T2, pWS, NB*BSTR, add=WS_CELL)
    a(f"""
  v_lshrrev_b32 v{t4}, 3, v0
  s_mov_b32 s{sq}, {BSTR}
  v_mul_u32_u24 v{t4}, s{sq}, v{t4}
  v_and_b32 v{t5}, 7, v0
  v_lshl_add_u32 v{t4}, v{t5}, 4, v{t4}
  s_lshl_b32 s{sq}, s2, 6
  s_mov_b64 {s(sBad,2)}, 0
  s_waitcnt lgkmcnt(0)""")
    for j in range(5):
        a(f"""
  v_mul_u32_u24 v{t1}, 37, v{RK+j}
  v_lshl_add_u32 v{t0}, v{RK+j}, 2, v{CA+j}
  v_lshrrev_b32 v{t1}, 8, v{t1}
  v_cmp_le_u32 vcc, {CAP-1}, v{RK+j}
  v_lshl_add_u32 v{t0}, v{t1}, 2, v{t0}
  s_or_b64 {s(sBad,2)}, {s(sBad,2)}, vcc
  s_andn2_b64 exec, exec, vcc
  ds_write_b32 v{t0}, v{SS_+j}
  s_mov_b64 exec, -1""")
    a(f"""
  v_add_u32 v{t0}, {L_CIMG}, v{vt16}
  v_mov_b32 v{t2}, {L_FLG+4}
  s_cmp_eq_u64 {s(sBad,2)}, 0
  s_cbranch_scc1 K_NOFULL
  ds_write_b32 v{t2}, v{vone}
K_NOFULL:
  s_waitcnt lgkmcnt(0)
  s_barrier""")
    stamp(a, 2)
    a(f"  ds_read_b32 v{t2}, v{t2}\nK_OVFDONE:")
    for j in range(4):
        a(f"  ds_read_b128 {v(CP+4*j,4)}, v{t0} offset:{8192*j}")
    a(f"""
  s_waitcnt vmcnt(2) lgkmcnt(4)
  v_cmp_ne_u32 vcc, 0, v{t2}
  s_cbranch_vccnz K_OVF""")
    for j in range(4):
        a(f"""
  s_mov_b32 exec_lo, 0xaaaaaaaa
  s_mov_b32 exec_hi, 0xaaaaaaaa
  s_waitcnt lgkmcnt({3-j})
  v_mov_b32 v{CP+4*j+3}, s{sTag}
  s_mov_b64 exec, -1
  buffer_store_dwordx4 {v(CP+4*j,4)}, v{t4}, {s(T2,4)}, s{sq} offen {STF}
  s_add_u32 s{sq}, s{sq}, {64*BSTR}""")
    own_x(4)
    a(f"""
  {"s_sleep %d" % OPT["slpa"] if OPT["slpa"] else ""}
  s_branch K_PST
K_GW:
  {"s_sleep %d" % OPT["slpb"] if OPT["slpb"] else ""}
  s_branch K_PST
K_GEMM:
  ; ---------------- P gemm role: rows of this bucket and the one before ----------------""")
    if OPT["touch"]:
        a(f"""
  s_cmp_lg_u32 s{sW}, 0
  s_cbranch_scc1 K_NOTOUCH
  s_waitcnt vmcnt(0)
  s_mov_b64 exec, {FMASK}
  buffer_load_dword v{DUM}, v{vgn1}, {s(SF,4)}, 0 offen sc1
  s_mov_b64 exec, -1
K_NOTOUCH:""")
    a(f"""
  s_mul_i32 s{sq}, s{sNp}, {XS}
  s_sub_u32 s{sq}, {L_X}, s{sq}
  v_lshrrev_b32 v{t0}, 4, v0
  v_lshl_add_u32 v{t0}, v{t0}, 5, v{vt16}
  v_add_u32 v{t3}, s{sq}, v{t0}
  s_cmp_lt_u32 s{sW}, 4
  s_cselect_b32 s{sq+1}, -1, 0
  v_subrev_u32 v{t1}, {L_X}, v{vxb}
  v_add_u32 v{t1}, s{sq}, v{t1}
  s_waitcnt vmcnt({6+NCL})
  ds_write_b128 v{t3}, {v(GX,4)}
  s_waitcnt vmcnt({5+NCL})
  ds_write_b128 v{t3}, {v(GX+4,4)} offset:{32*XS}
  s_waitcnt vmcnt({4+NCL})
  s_mov_b32 exec_lo, s{sq+1}
  s_mov_b32 exec_hi, s{sq+1}
  ds_write_b128 v{t3}, {v(GX+8,4)} offset:{64*XS}
  s_mov_b64 exec, -1
  v_and_b32 v{t2}, 15, v{vl}
  v_mul_u32_u24 v{t2}, {XS}, v{t2}
  v_lshrrev_b32 v{t3}, 4, v{vl}
  v_lshl_add_u32 v{t2}, v{t3}, 3, v{t2}
  s_lshl_b32 s{sq}, s{sW}, 5
  s_add_u32 s{sq}, s{sq}, {L_GP}
  v_add_u32 v{t2}, s{sq}, v{t2}
  v_add_u32 v{t0}, {L_GP - 16*XS}, v{t0}
  v_subrev_u32 v{t4}, 4096, v{vt16}""")
    srd(a, T0, pWS, f"s{sCnt}", add=WS_P, addreg=sT)
    a(f"  s_waitcnt vmcnt({NCL}) lgkmcnt(0)\n  s_barrier")
    stamp(a, 1)
    wtr(W1F, vqa)
    XT = [PF, PF+16, EA, EB, PF]
    for nt in range(4):
        for st in range(4):
            a(f"  ds_read_b128 {v(XT[nt]+4*st,4)}, v{t1} offset:{nt*16*XS + st*64}")
    for nt in range(5):
        a(f"  s_waitcnt lgkmcnt({(12, 12, 8, 4, 0)[nt]})")
        for st in range(4):
            c = "0" if st == 0 else v(D0+4*nt, 4)
            a(f"  v_mfma_f32_16x16x32_bf16 {v(D0+4*nt,4)}, {v(W1F+4*st,4)}, {v(XT[nt]+4*st,4)}, {c}")
        if nt == 0:
            for st in range(4):
                a(f"  ds_read_b128 {v(PF+4*st,4)}, v{t1} offset:{4*16*XS + st*64}")
    for nt in range(5):
        d = D0 + 4*nt
        if nt == 4: a("  s_nop 1")
        a(f"""
  v_pk_mul_f32 {v(d,2)}, {v(d,2)}, {s(sK,2)}
  v_pk_mul_f32 {v(d+2,2)}, {v(d+2,2)}, {s(sK,2)}
  v_cvt_pk_bf16_f32 v{W3+2*nt}, v{d}, v{d+1}
  v_cvt_pk_bf16_f32 v{W3+2*nt+1}, v{d+2}, v{d+3}
  ds_write_b64 v{t2}, {v(W3+2*nt,2)} offset:{nt*16*XS}""")
    a("  s_waitcnt vmcnt(0) lgkmcnt(0)\n  s_barrier")
    stamp(a, 2)
    a(f"""
  s_cmp_lt_u32 s{sW}, 4
  s_cbranch_scc1 K_GW""")
    for j in range(5):
        a(f"  ds_read_b128 {v(PF+4*j,4)}, v{t0} offset:{j*16*XS}")
    if OPT["zt"]:
        srd(a, T1, pWS, f"s{sCnt}", add=0x1800000, addreg=sT)
        a(f"  s_waitcnt lgkmcnt(0)\n  v_mov_b32 v{t1}, v{t4}")
        for j in range(5):
            a(f"  buffer_store_dwordx4 {v(PF+4*j,4)}, v{t1}, {s(T1,4)}, 0 offen {STF}\n  v_add_u32 v{t1}, 4096, v{t1}")
        a("  s_waitcnt vmcnt(0)")
        stamp(a, 1)
    for j in range(5):
        a(f"  s_waitcnt lgkmcnt({4-j})\n  buffer_store_dwordx4 {v(PF+4*j,4)}, v{t4}, {s(T0,4)}, 0 offen {STF}")
        if j < 4: a(f"  v_add_u32 v{t4}, 4096, v{t4}")
    a(f"""
  v_mov_b32 v{t0}, {L_FLG+12}
  v_mov_b32 v{t7}, s{sTag}
  s_mov_b64 exec, 1
  s_waitcnt vmcnt(0)""")
    stamp(a, 3)
    a(f"""
  ds_add_rtn_u32 v{t0}, v{t0}, v{vone}
  s_waitcnt lgkmcnt(0)
  v_readfirstlane_b32 s{sq}, v{t0}
  s_mov_b64 exec, -1
  s_cmp_lg_u32 s{sq}, 3
  s_cbranch_scc1 K_PST
K_FLAG:
  s_mov_b64 exec, {FMASK}
  buffer_store_dword v{t7}, v{vgn1}, {s(SF,4)}, 0 offen {FLF}
  s_mov_b64 exec, -1
K_PST:""")
    def node_gemm(WA, WB=None):
        for nt in range(3):
            xf = XF + 16*(nt & 1)
            if nt == 0:
                for n2 in range(2):
                    for st in range(4):
                        a(f"  ds_read_b128 {v(XF+16*n2+4*st,4)}, v{vxb} offset:{n2*16*XS + st*64}")
            a(f"  s_waitcnt lgkmcnt({4 if nt == 0 else 5 if nt == 1 else 1})")
            q = QD if nt != 1 else SA
            for st in range(4):
                c = "0" if st == 0 else v(q, 4)
                a(f"  v_mfma_f32_16x16x32_bf16 {v(q,4)}, {v(WA+4*st,4)}, {v(xf+4*st,4)}, {c}")
            if WB is not None:
                for st in range(4):
                    c = "0" if st == 0 else v(U+4*nt, 4)
                    a(f"  v_mfma_f32_16x16x32_bf16 {v(U+4*nt,4)}, {v(WB+4*st,4)}, {v(xf+4*st,4)}, {c}")
            if nt == 0:
                for st in range(4):
                    a(f"  ds_read_b128 {v(XF+4*st,4)}, v{vxb} offset:{2*16*XS + st*64}")
            a(f"""
  s_nop 7
  v_pk_mul_f32 {v(q,2)}, {v(q,2)}, {s(sK,2)}
  v_pk_mul_f32 {v(q+2,2)}, {v(q+2,2)}, {s(sK,2)}
  v_cvt_pk_bf16_f32 v{QD+4+2*(nt&1)}, v{q}, v{q+1}
  v_cvt_pk_bf16_f32 v{QD+5+2*(nt&1)}, v{q+2}, v{q+3}""")
            if nt == 2:
                a(f"  s_mov_b32 exec_lo, 0x00ff00ff\n  s_mov_b32 exec_hi, 0x00ff00ff")
            a(f"  ds_write_b64 v{vqw}, {v(QD+4+2*(nt&1),2)} offset:{nt*16*QS}")
            if nt == 2:
                a("  s_mov_b64 exec, -1")
    assert SB == SA + 2
    def poll(lab, off):
        a(f"""
  s_cmp_lg_u32 s{sW}, 1
  s_cbranch_scc1 {lab}_D
  s_mov_b32 s{sq}, 0
  s_mov_b32 s{sq+1}, {off}
  {"s_sleep %d" % OPT["slp0"] if OPT["slp0"] and off == 0 else ""}
{lab}:
  buffer_load_dwordx2 {v(DUM,2)}, v{vsrow}, {s(SF,4)}, s{sq+1} offen {PLF}
  s_add_u32 s{sq}, s{sq}, 1
  s_waitcnt vmcnt(0)
  v_cmp_ne_u32 vcc, s{sTag}, v{DUM}
  v_cmp_ne_u32 {s(sBad,2)}, s{sTag}, v{DUM+1}
  s_or_b64 vcc, vcc, {s(sBad,2)}
  s_cbranch_scc0 {lab}_D
  {"s_sleep %d" % OPT["slp"] if OPT["slp"] else ""}
  s_cmp_lt_u32 s{sq}, 0x8000
  s_cbranch_scc1 {lab}
{lab}_D:""")
    stamp(a, 5)
    nld = 16 if OPT["lo"] else 12
    a(f"""
  s_lshl_b32 s{sTmp}, s{sW}, 12
  s_add_u32 s{sTmp+1}, s{sTmp}, {WF_UT}
  s_add_u32 s{sUB}, s{sTmp}, {WF_UB}
  s_mov_b32 s{sTmp+2}, {WF_3H}
  s_mov_b32 s{sTmp+3}, {WF_3L}
  s_mov_b32 s{sOV}, 0xaaaaaaaa
  s_cmp_eq_u32 s{sW}, 7
  s_cselect_b32 s{sOV+1}, 0xaaaaa, s{sOV}
  v_min_u32 v{t4}, 2, v{vl}
  v_lshl_add_u32 v{t4}, v{t4}, 2, s{sP}
  v_mov_b32 v{t5}, s{sTag}
  s_mov_b32 s{sq}, 0
  {"s_sleep %d" % OPT["slp0"] if OPT["slp0"] else ""}
K_CPOLL:
  buffer_load_dwordx4 {v(REC,4)}, v{vcell}, {s(SC,4)}, 0 offen sc1
  buffer_load_dwordx4 {v(REC+4,4)}, v{vcell}, {s(SC,4)}, 0 offen offset:64 sc1
  s_cmp_lg_u32 s{sW}, 1
  s_cbranch_scc1 K_CPOLL1
  buffer_load_dword v{t5}, v{t4}, {s(SF,4)}, 0 offen offset:{(FLN-1)*256 + (125 - (FLN-1)*(128//FLN))*4} sc1
K_CPOLL1:
  s_add_u32 s{sq}, s{sq}, 1
  s_waitcnt vmcnt(0)
  v_cmp_ne_u32 vcc, s{sTag}, v{REC+3}
  v_cmp_ne_u32 {s(sBad,2)}, s{sTag}, v{REC+7}
  s_or_b64 {s(sBad,2)}, vcc, {s(sBad,2)}
  v_cmp_ne_u32 vcc, s{sTag}, v{t5}
  s_and_b64 {s(sBad,2)}, {s(sBad,2)}, {s(sOV,2)}
  s_or_b64 {s(sBad,2)}, {s(sBad,2)}, vcc
  s_cbranch_scc0 K_CPOLLD
  {"s_sleep %d" % OPT["slp"] if OPT["slp"] else ""}
  s_cmp_lt_u32 s{sq}, 0x8000
  s_cbranch_scc1 K_CPOLL
K_CPOLLD:
  s_mov_b32 exec_lo, 0xaaaaaaaa
  s_mov_b32 exec_hi, 0xaaaaaaaa
  v_mov_b32 v{REC+3}, 0
  v_mov_b32 v{REC+7}, 0
  s_mov_b64 exec, -1""")
    stamp(a, 6)
    wl = [f"  buffer_load_dwordx4 {v(W2F+4*st,4)}, v{t0}, {s(SW,4)}, s{sTmp} offen offset:{st*1024} sc1" for st in range(4)]
    wl += [f"  buffer_load_dwordx4 {v(WUT+4*st,4)}, v{t0}, {s(SW,4)}, s{sTmp+1} offen offset:{st*1024} sc1" for st in range(4)]
    wl += [f"  buffer_load_dwordx4 {v(W3+4*st,4)}, v{t0}, {s(SW,4)}, s{sTmp+2} offen offset:{st*1024} sc1" for st in range(4)]
    if OPT["lo"]:
        wl += [f"  buffer_load_dwordx4 {v(W3L+4*st,4)}, v{t0}, {s(SW,4)}, s{sTmp+3} offen offset:{st*1024} sc1" for st in range(4)]
    NR = 8
    a(f"""
K_PHASE1:
  v_cmp_le_u32 vcc, 0xfffc0000, v{REC+NR-2}
  s_cbranch_vccz K_NOMARK
  s_and_saveexec_b64 {s(sEx,2)}, vcc
  v_lshrrev_b32 v{t0}, 2, v0                 ; producer
  v_lshrrev_b32 v{t1}, 5, v{t0}
  v_lshlrev_b32 v{t1}, 2, v{t1}
  v_lshlrev_b32 v{t0}, v{t0}, v{vone}
  ds_or_b32 v{t1}, v{t0} offset:{L_FLG+32}
  v_mov_b32 v{REC+NR-2}, 0
  s_mov_b64 exec, {s(sEx,2)}
K_NOMARK:""")
    for k in range(NR):
        if k == 4:
            a(f"""
  v_or3_b32 v{t3}, v{REC+k}, v{REC+k+1}, v{REC+k+2}
  v_or_b32 v{t3}, v{t3}, v{REC+k+3}
  v_cmp_ne_u32 vcc, 0, v{t3}
  s_cbranch_vccz K_P1E""")
        a(f"""
  v_lshlrev_b32 v{NOD+k}, 2, v{REC+k}
  v_and_b32 v{NOD+k}, 0xfc, v{NOD+k}
  v_cmpx_ne_u32 vcc, 0, v{REC+k}
  ds_add_rtn_u32 v{RNK+k}, v{NOD+k}, v{vone} offset:{L_CNT}
  s_mov_b64 exec, -1""")
    a(f"""
K_P1E:
  v_lshlrev_b32 v{t0}, 2, v{vl}
  v_subrev_u32 v{t4}, s{sStart}, v{vl}
  v_and_b32 v{t4}, 63, v{t4}
  s_waitcnt lgkmcnt(0)
  s_barrier
  ds_read_b32 v{t1}, v{t0} offset:{L_CNT}
  v_lshlrev_b32 v{t0}, 4, v{vl}
  s_cmp_eq_u32 s{sFirst}, 0
  s_cbranch_scc1 K_NOWL""")
    for x in wl: a(x)
    a(f"""
K_NOWL:
  s_waitcnt lgkmcnt(0)
  v_add_u32 v{t1}, 3, v{t1}
  v_bfe_u32 v{t5}, v{t1}, 2, 1               ; left-over quad
  v_lshrrev_b32 v{t6}, 3, v{t1}
  v_lshl_or_b32 v{t1}, v{t5}, 16, v{t6}
  v_mov_b32 v{t2}, v{t1}
  s_nop 1
  v_add_u32_dpp v{t2}, v{t2}, v{t2} row_shr:1 row_mask:0xf bank_mask:0xf
  s_nop 1
  v_add_u32_dpp v{t2}, v{t2}, v{t2} row_shr:2 row_mask:0xf bank_mask:0xf
  s_nop 1
  v_add_u32_dpp v{t2}, v{t2}, v{t2} row_shr:4 row_mask:0xf bank_mask:0xf
  s_nop 1
  v_add_u32_dpp v{t2}, v{t2}, v{t2} row_shr:8 row_mask:0xf bank_mask:0xf
  s_nop 1
  v_add_u32_dpp v{t2}, v{t2}, v{t2} row_bcast:15 row_mask:0xa bank_mask:0xf
  s_nop 1
  v_add_u32_dpp v{t2}, v{t2}, v{t2} row_bcast:31 row_mask:0xc bank_mask:0xf
  s_nop 1
  v_readlane_b32 s{sT}, v{t2}, 63
  v_sub_u32 v{t1}, v{t2}, v{t1}
  s_lshr_b32 s{sq+1}, s{sT}, 16
  s_and_b32 s{sCO}, s{sT}, 0xffff
  s_lshl_b32 s{sq}, s{sCO}, 1                ; quads in the groups of eight
  s_lshr_b32 s{sCO}, s{sCO}, 2
  s_add_u32 s{sT}, s{sq}, s{sq+1}
  s_add_u32 s{sT}, s{sT}, 7
  s_lshr_b32 s{sT}, s{sT}, 3
  v_lshrrev_b32 v{t2}, 16, v{t1}
  v_add_u32 v{t2}, s{sq}, v{t2}              ; quad slot of the left-over quad
  v_and_b32 v{t1}, 0xffff, v{t1}
  v_lshl_or_b32 v{t0}, v{t6}, 16, v{t1}
  v_lshlrev_b32 v{t0}, 3, v{t0}              ; 8*start8 | 8*n8 << 16
  v_lshlrev_b32 v{t7}, 1, v{t6}
  v_sub_u32 v{t7}, v{t2}, v{t7}
  v_lshlrev_b32 v{t7}, 2, v{t7}              ; position base of the left-over quad
  s_cmp_gt_u32 s{sT}, {CAPB}
  s_cbranch_scc1 K_SPLIT""")
    for k0 in (0, 4):
        if k0:
            a(f"""
  v_or3_b32 v{t3}, v{REC+k0}, v{REC+k0+1}, v{REC+k0+2}
  v_or_b32 v{t3}, v{t3}, v{REC+k0+3}
  v_cmp_ne_u32 vcc, 0, v{t3}
  s_cbranch_vccz K_P2E""")
        for k in range(k0, k0+4):
            a(f"  ds_bpermute_b32 v{PF+24+(k&3)}, v{NOD+k}, v{t7}")
            a(f"  ds_bpermute_b32 v{NOD+k}, v{NOD+k}, v{t0}")
        for k in range(k0, k0+4):
            e = PF + 16 + 2*(k & 3)
            a(f"""
  v_lshrrev_b32 v{e}, 10, v{REC+k}
  v_and_b32 v{e}, {hex(0xffffff00 if not OPT['hot'] else 0x1f00)}, v{e}
  v_bfe_u32 v{e+1}, v{REC+k}, 6, 12
  v_lshl_add_u32 v{e+1}, v{e+1}, 5, v{vebase}""")
            if OPT["hot"]: a(f"  v_and_b32 v{e+1}, 0xfe0, v{e+1}")
        a("  s_waitcnt lgkmcnt(0)")
        for k in range(k0, k0+4):
            a(f"  v_cmp_lt_u32_sdwa {s(8+2*(k&3),2)}, v{RNK+k}, v{NOD+k} src0_sel:DWORD src1_sel:WORD_1")
        for k in range(k0, k0+4):
            a(f"  v_and_b32 v{NOD+k}, 0xffff, v{NOD+k}")
        for k in range(k0, k0+4):
            a(f"  v_cndmask_b32 v{NOD+k}, v{PF+24+(k&3)}, v{NOD+k}, {s(8+2*(k&3),2)}")
        for k in range(k0, k0+4):
            e = PF + 16 + 2*(k & 3)
            a(f"""
  v_add_lshl_u32 v{NOD+k}, v{NOD+k}, v{RNK+k}, 3
  v_cmpx_ne_u32 vcc, 0, v{REC+k}
  ds_write_b64 v{NOD+k}, {v(e,2)}
  s_mov_b64 exec, -1""")
    a(f"""
K_P2E:
  v_lshlrev_b32 v{t2}, 2, v{t2}
  v_cmpx_ne_u32 vcc, 0, v{t5}
  ds_write_b32 v{t2}, v{t4} offset:{L_GN}
  s_mov_b64 exec, -1
  v_add_lshl_u32 v{t2}, v{t1}, v{t6}, 3
  v_lshl_add_u32 v{t1}, v{t1}, 1, s{sW}
  v_lshlrev_b32 v{t1}, 2, v{t1}
K_GNL:
  v_cmpx_lt_u32 vcc, v{t1}, v{t2}
  ds_write_b32 v{t1}, v{t4} offset:{L_GN}
  v_add_u32 v{t1}, 32, v{t1}
  v_cmpx_lt_u32 vcc, v{t1}, v{t2}
  ds_write_b32 v{t1}, v{t4} offset:{L_GN}
  v_add_u32 v{t1}, 32, v{t1}
  v_cmpx_lt_u32 vcc, v{t1}, v{t2}
  s_cbranch_execnz K_GNL
  s_mov_b64 exec, -1
  s_add_u32 s{sCnt}, s{sT}, 7
  s_sub_u32 s{sCnt}, s{sCnt}, s{sW}
  s_lshr_b32 s{sCnt}, s{sCnt}, 3
  s_add_u32 s{sCO}, s{sCO}, 7
  s_sub_u32 s{sCO}, s{sCO}, s{sW}
  s_lshr_b32 s{sCO}, s{sCO}, 3
  {("s_mov_b32 s%d, 40" % sCnt + chr(10) + "  s_movk_i32 s%d, 320" % sT + chr(10) + "  s_mov_b32 s%d, 40" % sCO) if OPT["bench"] else ""}
""")
    stamp(a, 4)
    a(f"""
  s_cmp_eq_u32 s{sFirst}, 0
  s_cbranch_scc1 K_POLL2_D""")
    poll("K_POLL2", FHALF)
    a("  s_waitcnt lgkmcnt(0)\n  s_barrier")
    stamp(a, 7)
    dsc = " sc1" if OPT["dsc"] else ""
    def dma_issue():
        L = []
        for j in range(8):
            d = DO + (j & 1)
            L.append([f"  s_add_u32 m0, s{sStg}, {j*1040}",
                      f"  v_add_u32_dpp v{d}, v{ENT}, v{vchunk} row_newbcast:{2*j} row_mask:0xf bank_mask:0xf",
                      f"  buffer_load_dwordx4 v{d}, {s(SP,4)}, 0 offen{dsc} lds" if not OPT["nodma"] else "  s_nop 0"])
        L.append([f"  s_add_u32 m0, s{sStg}, 8320",
                  f"  v_add_u32 v{DO}, v{ENT+1}, v{vechunk}",
                  f"  buffer_load_dwordx4 v{DO}, {s(SE,4)}, 0 offen lds" if not (OPT["nodma"] or OPT["noe"]) else "  s_nop 0"])
        return L
    ndma = 0 if OPT["nodma"] else 8 if OPT["noe"] else 9
    def frag_reads():
        L = []
        for st in range(8):
            L.append(f"  ds_read_b128 {v(PF+4*st,4)}, v{vAlo if st < 4 else vAhi} offset:{32*(st&3)}")
        L.insert(2, f"  ds_read_b128 {v(EF,4)}, v{vEF}")
        return L
    def bq_reads():
        return [f"  ds_read_b64_tr_b16 {v(BQ+nq*t,2)}, v{vqa} offset:{64*t}" for t in range(4)]
    def chain(t, D):
        L = [f"  v_mfma_f32_32x32x16_bf16 {v(D,16)}, {v(EF,4)}, {v(W3+4*t,4)}, 0"]
        if OPT["lo"]:
            L.append(f"  v_mfma_f32_32x32x16_bf16 {v(D,16)}, {v(EF,4)}, {v(W3L+4*t,4)}, {v(D,16)}")
        L.append(f"  v_mfma_f32_32x32x16_bf16 {v(D,16)}, {v(PF+8*t,4)}, {v(I0,4)}, {v(D,16)}")
        L.append(f"  v_mfma_f32_32x32x16_bf16 {v(D,16)}, {v(PF+8*t+4,4)}, {v(I1,4)}, {v(D,16)}")
        if OPT["k8"]:
            L.append(f"  v_mfma_f32_32x32x8bf16_1k {v(D,16)}, {v(AQ,2)}, {v(BQ+2*t,2)}, {v(D,16)}")
        else:
            L.append(f"  v_mfma_f32_32x32x16_bf16 {v(D,16)}, {v(AQ,4)}, {v(BQ+4*t,4)}, {v(D,16)}")
        return L

    a(f"  ds_read_b64 {v(ENT,2)}, v{vent}\n  s_waitcnt lgkmcnt(0)")
    for x in dma_issue(): a("\n".join(x))
    a(f"  ds_read_b64 {v(ENT,2)}, v{vent} offset:2048")
    a(f"""
  s_cmp_eq_u32 s{sFirst}, 0
  s_cbranch_scc1 K_NOGEMM0
  s_mov_b32 s{sFirst}, 0
  s_waitcnt vmcnt({ndma}) lgkmcnt(0)""")
    node_gemm(W2F, WUT)
    a(f"  v_lshlrev_b32 v{t4}, 4, v{vl}")
    for st in range(4):
        a(f"  buffer_load_dwordx4 {v(WUB+4*st,4)}, v{t4}, {s(SW,4)}, s{sUB} offen offset:{st*1024} sc1")
    a(f"""
  s_or_b32 s{sq}, s2, s{sW}
  s_cmp_lg_u32 s{sq}, 0
  s_cbranch_scc1 K_NONONCE
  s_mov_b64 exec, 1
  v_mov_b32 v{t0}, {FNON}
  v_mov_b32 v{t1}, s{sTag}
  buffer_store_dword v{t1}, v{t0}, {s(SF,4)}, 0 offen
  s_mov_b64 exec, -1
  s_waitcnt vmcnt(0)
K_NONONCE:
  s_waitcnt lgkmcnt(0)
  s_barrier
K_NOGEMM:
  ds_read_b32 v{vgn1}, v{vgq}
  ds_read_b32 v{vsrow}, v{vrow}
  ds_read_b128 {v(GN,4)}, v{vga}
  s_waitcnt vmcnt(4)""")
    stamp(a, 8, 96)
    for x in frag_reads(): a(x)
    a(f"""
  s_waitcnt lgkmcnt(9)
  v_mad_u32_u24 v{vqa}, v{vgn1}, s{sQS}, v{vqlane}
  v_lshrrev_b64 {v(AQ,2)}, v{vsrow}, {v(PAT,2)}""")
    for x in bq_reads(): a(x)
    a("  s_waitcnt lgkmcnt(0)")
    for x in dma_issue(): a("\n".join(x))
    for x in chain(0, D0): a(x)
    if OPT["prio"]:
        a(f"  s_cmp_lt_u32 s{sW}, 4\n  s_cbranch_scc1 K_PR\n  s_setprio 1\nK_PR:")
    a(f"""
  s_nop 7
  s_nop 3
  s_cmp_eq_u32 s{sCnt}, 0
  s_cbranch_scc1 K_LOOPEND
  s_cmp_lg_u32 s{sMode}, 0
  s_cbranch_scc1 K_SAFE
  {"s_branch K_QUAD" if not OPT["octo"] else ""}
  s_sub_u32 s{sCnt}, s{sCnt}, s{sCO}
  s_cmp_eq_u32 s{sCO}, 0
  s_cbranch_scc1 K_QUAD""")

    def p(r): return v(r, 2)
    def octet_fast(d, e, t, r, sres):
        ex = [f"  v_exp_f32 v{e+i}, v{d+i}" for i in range(8)]
        L = [f"  v_pk_add_f32 {p(t)}, {p(e)}, 1.0 op_sel_hi:[1,0]",
             f"  v_pk_add_f32 {p(t+2)}, {p(e+4)}, 1.0 op_sel_hi:[1,0]",
             f"  v_pk_fma_f32 {p(t+4)}, {p(d)}, {p(e+2)}, {p(d)}",
             f"  v_pk_fma_f32 {p(t+6)}, {p(d+4)}, {p(e+6)}, {p(d+4)}",
             f"  v_pk_fma_f32 {p(e)}, {p(t)}, {p(e+2)}, {p(t)}",
             f"  v_pk_fma_f32 {p(e+4)}, {p(t+2)}, {p(e+6)}, {p(t+2)}",
             f"  v_pk_fma_f32 {p(t+4)}, {p(d+2)}, {p(t)}, {p(t+4)}",
             f"  v_pk_fma_f32 {p(t+6)}, {p(d+6)}, {p(t+2)}, {p(t+6)}",
             f"  v_pk_mul_f32 {p(t)}, {p(e)}, {p(e+4)}",
             f"  v_pk_mul_f32 {p(t+4)}, {p(t+4)}, {p(e+4)}",
             f"  v_rcp_f32 v{r}, v{t}",
             f"  v_rcp_f32 v{r+1}, v{t+1}",
             f"  v_pk_fma_f32 {p(t+4)}, {p(t+6)}, {p(e)}, {p(t+4)}",
             f"  v_pk_mul_f32 {p(sres)}, {p(t+4)}, {p(r)}"]
        return ex, L
    def octet_safe(d, e, t, r, sres):
        ex = [f"  v_exp_f32 v{e+i}, v{d+i}" for i in range(8)]
        L = [f"  v_pk_add_f32 {p(e+2*i)}, {p(e+2*i)}, 1.0 op_sel_hi:[1,0]" for i in range(4)]
        L += [f"  v_rcp_f32 v{t+i}, v{e+i}" for i in range(8)]
        L += [f"  v_pk_mul_f32 {p(sres)}, {p(d)}, {p(t)}"]
        L += [f"  v_pk_fma_f32 {p(sres)}, {p(d+2*i)}, {p(t+2*i)}, {p(sres)}" for i in range(1, 4)]
        return ex, L
    def zipl(x, y):
        o = []
        for i in range(max(len(x), len(y))):
            if i < len(x): o.append(x[i])
            if i < len(y): o.append(y[i])
        return o
    def adds(t, kind):
        if OPT["noadd"]: return [f"  ds_read_b32 v{DUM}, v{vgq}"] * (2 if kind == "octo" else 4)
        if kind == "octo": return [f"  ds_add_f64 v{AD+2*xy}, {v(CV+2*xy,2)} offset:{256*t}" for xy in range(2)]
        return [f"  ds_add_f64 v{AD+2*xy+o}, {v(CV+2*(2*o+xy),2)} offset:{256*t}" for o in range(2) for xy in range(2)]
    def block_body(kind, u, nun):
        oc = octet_safe if kind == "safe" else octet_fast
        nadd = 2 if kind == "octo" else 4
        B = []
        for t in range(4):
            D = D0 if t % 2 == 0 else D1
            Dn = D1 if t % 2 == 0 else D0
            exa, La = oc(D, EA, TA, RA, SA)
            exb, Lb = oc(D+8, EB, TB, RB, SB)
            ex = exa + exb
            ch = chain((t+1) % 4, Dn)
            late = []
            if kind == "octo":
                keep = lambda L: [x for x in L[:-1] if "v_rcp" not in x]
                dk = DK + 2*(t & 1)
                pk = zipl(keep(La), keep(Lb))
                pk = pk[:-4] + [f"  v_pk_mul_f32 {p(dk)}, {p(TA)}, {p(TB)}"] + pk[-4:-2] + \
                     [f"  v_rcp_f32 v{RA}, v{dk}", f"  v_rcp_f32 v{RA+1}, v{dk+1}"] + pk[-2:] + \
                     [f"  v_pk_mul_f32 {p(TA+4)}, {p(TA+4)}, {p(TB)}"]
                if t & 1: pk.append(f"  v_pk_fma_f32 {p(MAC)}, {p(DK)}, {p(DK+2)}, {p(MAC)}")
                pk += [f"  v_pk_fma_f32 {p(TA+4)}, {p(TB+4)}, {p(TA)}, {p(TA+4)}",
                       f"  v_pk_mul_f32 {p(SA)}, {p(TA+4)}, {p(RA)}"]
                fin = [f"  v_cvt_f64_f32 {v(CV+2*xy,2)}, v{SA+xy}" for xy in range(2)]
                adr = (0, 2)
            else:
                pk = zipl(La, Lb)
                if kind == "quad":
                    idx = max(i for i, x in enumerate(pk) if x.startswith(f"  v_pk_mul_f32 {p(TB)}, {p(EB)}"))
                    pk.insert(idx+1, f"  v_pk_fma_f32 {p(MAC)}, {p(TA)}, {p(TB)}, {p(MAC)}")
                fin = [f"  v_cvt_f64_f32 {v(CV+2*(2*o+xy),2)}, v{S+xy}" for o, S in ((0, SA), (1, SB)) for xy in range(2)]
                adr = range(4)
            fin += adds(t, kind)
            if t == 0:
                pk = pk[:4] + [f"  v_mad_u32_u24 v{AD+i}, v{GN+i}, s{sAS}, v{vacl}" for i in adr] + pk[4:]
            if t == 1:
                pk = pk[:8] + [f"  ds_read_b64 {v(ENT,2)}, v{vent} offset:{4096+2048*u}",
                      f"  ds_read_b32 v{vgn1}, v{vgq} offset:{256+256*u}",
                      f"  ds_read_b32 v{vsrow}, v{vrow} offset:{2048+2048*u}",
                      f"  ds_read_b128 {v(GN,4)}, v{vga} offset:{256+256*u}"] + pk[8:]
            if t == 3:
                B.append(f"  s_waitcnt lgkmcnt({nadd})")
            dma = dma_issue() if t == 3 else []
            per = 16 // len(ch); e = 0
            for i, m in enumerate(ch):
                B.append(m)
                n = per if i < len(ch)-1 else 16 - e
                B += ex[e:e+2]
                if late: B.append(late.pop(0))
                B += ex[e+2:e+n]; e += n
                if OPT["dmapos"] == 0:
                    for _ in range(2):
                        if dma: B += dma.pop(0)
            if t == 2:
                mid = [f"  s_waitcnt vmcnt(0) lgkmcnt({nadd})",
                       f"  v_mad_u32_u24 v{vqa}, v{vgn1}, s{sQS}, v{vqlane}"]
                rd = frag_reads() + bq_reads()
                aq = [f"  v_lshrrev_b64 {v(AQ,2)}, v{vsrow}, {v(PAT,2)}"]
                if OPT["rdgap"] == 0: B += mid + rd + aq + pk
                else:
                    q = []
                    for i, x in enumerate(aq + pk):
                        if rd and i % OPT["rdgap"] == 0: q.append(rd.pop(0))
                        q.append(x)
                    B += mid + q + rd
            elif t == 3:
                inc = []
                if u == nun - 1 and OPT["bench"]:
                    inc = [f"  v_add_u32 v{DUM+i}, {2048*nun}, v{vent}" for i in range(4)]
                elif u == nun - 1:
                    inc = incs(nun)
                pk = pk + inc
                if OPT["dmapos"] == 1:
                    q = []
                    for i, x in enumerate(pk):
                        if dma and i % 3 == 0: q += dma.pop(0)
                        q.append(x)
                    pk = q
                for x in dma: B += x
                B += pk
            else:
                B += pk
            B += fin
        return B
    def incs(n):
        return [f"  v_add_u32 v{vent}, {2048*n}, v{vent}", f"  v_add_u32 v{vrow}, {2048*n}, v{vrow}",
                f"  v_add_u32 v{vgq}, {256*n}, v{vgq}", f"  v_add_u32 v{vga}, {256*n}, v{vga}"]
    def loop(kind):
        lab = {"safe": "K_SAFE", "quad": "K_QUAD", "octo": "K_FAST"}[kind]
        nun = OPT["unroll"] if kind == "octo" else 1
        cnt = sCO if kind == "octo" else sCnt
        L = []
        for u in range(nun):
            L += block_body(kind, u, nun)
            L.append(f"  s_sub_u32 s{cnt}, s{cnt}, 1")
            L.append(f"  s_cmp_lg_u32 s{cnt}, 0")
            L.append(f"  s_cbranch_scc1 {lab}" if u == nun - 1 else f"  s_cbranch_scc0 K_OX{u}")
        ab = OPT["abl"]
        if ab & 1: L = [x for x in L if not ("v_mfma" in x and (f", {v(I0,4)}," in x or f", {v(I1,4)}," in x))]
        if ab & 2: L = [x for x in L if "v_mfma_f32_32x32x8" not in x and "tr_b16" not in x]
        if ab & 4: L = [x.replace("v_exp_f32", "v_mov_b32") for x in L]
        if ab & 8: L = [x for x in L if "v_pk_" not in x]
        if ab & 16: L = [x for x in L if "v_mfma" not in x]
        if ab & 32: L = [x for x in L if "ds_read_b128" not in x]
        if ab & 64: L = [x for x in L if "v_exp" not in x]
        if ab & 128:
            M = []
            for x in L:
                if "v_mfma" in x and f", {v(I1,4)}," in x: continue
                if "v_mfma" in x and f", {v(I0,4)}," in x:
                    m = re.match(r"\s*v_mfma_f32_32x32x16_bf16 (v\[\d+:\d+\]), v\[(\d+):", x)
                    M.append(f"  v_smfmac_f32_32x32x32_bf16 {m.group(1)}, {v(I0,4)}, {v(int(m.group(2)),8)}, v{vone}"); continue
                m = re.match(r"\s*ds_read_b128 v\[(\d+):\d+\], v(\d+) offset:(\d+)", x)
                if m and PF <= int(m.group(1)) < PF + 32:
                    r0 = int(m.group(1))
                    M.append(f"  ds_read_b64_tr_b16 {v(r0,2)}, v{vqa} offset:{m.group(3)}")
                    M.append(f"  ds_read_b64_tr_b16 {v(r0+2,2)}, v{vqa} offset:{int(m.group(3))+128}"); continue
                M.append(x)
            L = M
        if ab & 256:
            M = []
            for x in L:
                if "v_mfma" in x and (f", {v(I1,4)}," in x or f", {v(I0,4)}," in x): continue
                if "v_mfma_f32_32x32x16" in x and x.rstrip().endswith(", 0"): x = x.rstrip()[:-1] + v(PF, 16)
                m = re.match(r"\s*ds_read_b128 v\[(\d+):\d+\], v(\d+) offset:(\d+)", x)
                if m and PF <= int(m.group(1)) < PF + 32:
                    for q in range(8): M.append(f"  ds_read_u16_d16_hi v{PF+(int(m.group(1))+q)%32}, v{vacl} offset:{64*q}")
                    continue
                M.append(x)
            L = M
        if OPT["align"]: L = align8(L)
        a(f".p2align 6\n{lab}:")
        for x in L: a(x)
    loop("octo")
    a(f"""
K_OXE:
  s_cmp_lg_u32 s{sCnt}, 0
  s_cbranch_scc1 K_QUAD""")
    a(f"""
K_LOOPEND:""")
    a(f"""
  s_waitcnt vmcnt(0) lgkmcnt(0)
  s_barrier""")
    stamp(a, 9, 98)
    a(f"""
  s_cmp_lg_u32 s{sKind}, 0
  s_cbranch_scc1 K_NEXT
K_CELLSDONE:
  v_mov_b32 v{t0}, {L_FLG+32}
  ds_read_b128 {v(CV,4)}, v{t0}
K_CONV:
  s_mul_i32 s{sTmp}, s{sW}, {AS}
  s_add_u32 s{sTmp}, s{sTmp}, {L_ACC}
  v_lshlrev_b32 v{t1}, 4, v{vl}
  v_add_u32 v{t1}, s{sTmp}, v{t1}""")
    for k in range(5):
        a(f"  ds_read_b128 {v(D0+4*k,4)}, v{t1} offset:{k*8*AS}")
    a(f"""
  s_mul_i32 s{sTmp}, s{sW}, {XS}
  s_add_u32 s{sTmp}, s{sTmp}, {L_X}
  v_lshlrev_b32 v{t2}, 2, v{vl}
  v_add_u32 v{t2}, s{sTmp}, v{t2}
  s_cmp_ge_u32 s{sKind}, 3
  s_cbranch_scc1 K_CONV2
  s_waitcnt lgkmcnt(5)
  v_or3_b32 v{t0}, v{CV}, v{CV+1}, v{CV+2}
  v_or_b32 v{t0}, v{t0}, v{CV+3}
  v_cmp_ne_u32 vcc, 0, v{t0}
  s_cbranch_vccnz K_STARTOV
K_CONV2:
  s_mov_b32 s{sTmp}, 0x71800000              ; 2^100
  v_cmp_nle_f32 {s(sBad,2)}, v{MAC}, s{sTmp}
  v_cmp_nle_f32 vcc, v{MAC+1}, s{sTmp}
  s_or_b64 {s(sBad,2)}, {s(sBad,2)}, vcc
  s_movk_i32 s{sTmp}, 0x207""")
    for k in range(5):
        a(f"""
  s_waitcnt lgkmcnt({4-k})
  v_cvt_f32_f64 v{EA+2*k}, {v(D0+4*k,2)}
  v_cvt_f32_f64 v{EA+2*k+1}, {v(D0+4*k+2,2)}
  v_cmp_class_f32 vcc, v{EA+2*k}, s{sTmp}
  s_or_b64 {s(sBad,2)}, {s(sBad,2)}, vcc
  v_cmp_class_f32 vcc, v{EA+2*k+1}, s{sTmp}
  s_or_b64 {s(sBad,2)}, {s(sBad,2)}, vcc
  v_cvt_pk_bf16_f32 v{EB+k}, v{EA+2*k}, v{EA+2*k+1}""")
    for k in range(5):
        a(f"  ds_write_b32 v{t2}, v{EB+k} offset:{k*8*XS}")
    a(f"""
  s_cmp_eq_u64 {s(sBad,2)}, 0
  s_cbranch_scc1 K_OKW
  v_mov_b32 v{t0}, {L_FLG}
  ds_write_b32 v{t0}, v{vone}
K_OKW:
  s_waitcnt lgkmcnt(0)
  s_barrier
  v_mov_b32 v{t0}, {L_FLG}
  ds_read_b32 v{t0}, v{t0}""")
    for nt in range(2):
        for st in range(4):
            a(f"  ds_read_b128 {v(XF+16*nt+4*st,4)}, v{vxb} offset:{nt*16*XS + st*64}")
    a(f"""
  s_waitcnt lgkmcnt(8)
  v_readfirstlane_b32 s{sTmp}, v{t0}
  s_cmp_gt_u32 s{sTmp}, s{sMode}
  {"s_cbranch_scc1 K_RESTART" if not EXP else "s_nop 0"}
  s_waitcnt lgkmcnt(4)""")
    for st in range(4):
        c = "0" if st == 0 else v(D0, 4)
        a(f"  v_mfma_f32_16x16x32_bf16 {v(D0,4)}, {v(WUB+4*st,4)}, {v(XF+4*st,4)}, {c}")
    for st in range(4):
        a(f"  ds_read_b128 {v(D1+4*st,4)}, v{vxb} offset:{2*16*XS + st*64}")
    a("  s_waitcnt lgkmcnt(4)")
    for st in range(4):
        c = "0" if st == 0 else v(D0+4, 4)
        a(f"  v_mfma_f32_16x16x32_bf16 {v(D0+4,4)}, {v(WUB+4*st,4)}, {v(XF+16+4*st,4)}, {c}")
    a("  s_waitcnt lgkmcnt(0)")
    for st in range(4):
        c = "0" if st == 0 else v(D0+8, 4)
        a(f"  v_mfma_f32_16x16x32_bf16 {v(D0+8,4)}, {v(WUB+4*st,4)}, {v(D1+4*st,4)}, {c}")
    a(f"""
  s_mov_b32 s{sK}, {NLN2}
  s_mov_b32 s{sK+1}, {NLN2}
  s_mov_b32 s{sTmp}, {NLOG2E}
  s_mov_b32 s{sTmp+1}, {NLOG2E}
  v_and_b32 v{t0}, 15, v{vl}
  v_lshlrev_b32 v{t0}, 8, v{t0}
  v_lshrrev_b32 v{t1}, 4, v{vl}
  v_lshl_add_u32 v{t0}, v{t1}, 3, v{t0}
  s_lshl_b32 s{sTmp+2}, s{sW}, 5
  v_add_u32 v{t0}, s{sTmp+2}, v{t0}
  v_add_u32 v{t1}, 4096, v{t0}
  v_add_u32 v{t2}, 8192, v{t0}""")
    for nt in range(3):
        d = D0 + 4*nt
        a(f"""
  v_pk_fma_f32 {p(d)}, {p(d)}, {s(sK,2)}, {p(U+4*nt)}
  v_pk_fma_f32 {p(d+2)}, {p(d+2)}, {s(sK,2)}, {p(U+4*nt+2)}
  v_pk_mul_f32 {p(EA)}, {p(d)}, {s(sTmp,2)}
  v_pk_mul_f32 {p(EA+2)}, {p(d+2)}, {s(sTmp,2)}""")
        for i in range(4): a(f"  v_exp_f32 v{EA+i}, v{EA+i}")
        a(f"  s_nop 0\n  v_pk_add_f32 {p(EA)}, {p(EA)}, 1.0 op_sel_hi:[1,0]\n  v_pk_add_f32 {p(EA+2)}, {p(EA+2)}, 1.0 op_sel_hi:[1,0]")
        for i in range(4): a(f"  v_rcp_f32 v{EA+i}, v{EA+i}")
        a(f"""
  s_nop 0
  v_pk_mul_f32 {p(d)}, {p(d)}, {p(EA)}
  v_pk_mul_f32 {p(d+2)}, {p(d+2)}, {p(EA+2)}
  v_cvt_pk_bf16_f32 v{EB+2*nt}, v{d}, v{d+1}
  v_cvt_pk_bf16_f32 v{EB+2*nt+1}, v{d+2}, v{d+3}
  buffer_store_dwordx2 {v(EB+2*nt,2)}, v{t0+nt}, {s(SO,4)}, 0 offen""")
    if OPT["stamp"]:
        a(f"""
  s_waitcnt vmcnt(0)
  s_memrealtime s[4:5]
  s_waitcnt lgkmcnt(0)
  s_lshl_b32 s6, s2, 3
  s_add_u32 s6, s6, s{sW}
  s_lshl_b32 s6, s6, 6
  s_add_u32 s6, s6, {WS_STAMP}
  s_add_u32 s6, s{pWS}, s6
  s_addc_u32 s7, s{pWS+1}, 0
  s_mov_b64 exec, 1
  v_mov_b32 v1, 0""")
        for i, r in enumerate([80+2*i for i in range(8)] + [96, 98, 4]):
            pass
        regs = [80, 82, 84, 86, 88, 90, 92, 94, 8, 9, 4, 10, 11, sT]
        for i, r in enumerate(regs):
            a(f"  v_mov_b32 v2, s{r}\n  global_store_dword v1, v2, s[6:7] offset:{4*i}")
    a(f"""
K_END:
  s_endpgm
""")
    a(f"""
K_PREP:
  s_sub_u32 s{sq}, s2, {2*G}
  s_lshl_b32 s{sq}, s{sq}, 14
  s_lshl_b32 s{sq+1}, s{sW}, 12
  s_add_u32 s{sq}, s{sq}, s{sq+1}
  v_lshlrev_b32 v{t0}, 4, v{vl}
  v_mov_b32 v{t7}, s{sTag}
  s_waitcnt vmcnt(10)
  s_barrier""")
    wtr(PF, vqa)
    a("  s_waitcnt lgkmcnt(0)")
    for st in range(4):
        a(f"  buffer_store_dwordx4 {v(PF+4*st,4)}, v{t0}, {s(SW,4)}, s{sq} offen offset:{st*1024} sc1")
    a(f"""
  s_lshr_b32 s{sq}, s{sW}, 2
  s_add_u32 s{sq}, s{sq}, s2
  s_cmp_lg_u32 s{sq}, {2*G}
  s_cbranch_scc1 K_PREPD
  s_mov_b32 s{sq+1}, {NLOG2E}
  s_lshl_b32 s{sq}, s{sW}, 10
  s_waitcnt vmcnt(6)""")
    for jj in range(8):
        a(f"  v_lshlrev_b32 v{D0+jj}, 16, v{D0+jj}\n  v_mul_f32 v{D0+jj}, s{sq+1}, v{D0+jj}")
    for i in range(4):
        a(f"  v_cvt_pk_bf16_f32 v{D0+8+i}, v{D0+2*i}, v{D0+1+2*i}")
    for i in range(4):
        a(f"""
  v_lshlrev_b32 v{t2}, 16, v{D0+8+i}
  v_and_b32 v{t3}, 0xffff0000, v{D0+8+i}
  v_sub_f32 v{t2}, v{D0+2*i}, v{t2}
  v_sub_f32 v{t3}, v{D0+1+2*i}, v{t3}
  v_cvt_pk_bf16_f32 v{D0+12+i}, v{t2}, v{t3}""")
    a(f"""
  s_add_u32 s{sq+1}, s{sq}, {WF_3L}
  s_add_u32 s{sq}, s{sq}, {WF_3H}
  buffer_store_dwordx4 {v(D0+8,4)}, v{t0}, {s(SW,4)}, s{sq} offen sc1
  buffer_store_dwordx4 {v(D0+12,4)}, v{t0}, {s(SW,4)}, s{sq+1} offen sc1
K_PREPD:""")
    own_x(4)
    a(f"""
  s_waitcnt vmcnt(0)
  s_barrier
  s_cmp_eq_u32 s{sW}, 0
  s_cbranch_scc1 K_FLAG
  s_branch K_PST""")
    a(f"""
K_OVF:
  s_waitcnt lgkmcnt(0)
  s_barrier
  s_mul_i32 s{sq+1}, s2, {OVSTR//2}
  s_add_u32 s{sq+1}, s{sq+1}, 64
  v_mov_b32 v{t5}, {L_FLG+8}
  v_mov_b32 v{t6}, -1""")
    for j in range(5):
        a(f"""
  v_cmp_le_u32 vcc, {CAP-1}, v{RK+j}
  s_and_b64 exec, exec, vcc
  s_cbranch_execz K_OV{j}
  v_add_u32 v{t1}, {L_BCNT}, v{B4+j}
  ds_read_b32 v{t1}, v{t1}
  s_waitcnt lgkmcnt(0)
  v_cmp_ne_u32 vcc, {CAP}, v{t1}
  s_nop 1
  v_cndmask_b32 v{t3}, v{SS_+j}, v{t6}, vcc
  ds_write_b32 v{CA+j}, v{t3} offset:{CELLB-8}
  s_and_b64 exec, exec, vcc
  s_cbranch_execz K_OV{j}
  ds_add_rtn_u32 v{t1}, v{t5}, v{vone}
  v_mov_b32 v{CV}, v{SS_+j}
  v_lshrrev_b32 v{CV+1}, 2, v{B4+j}
  s_waitcnt lgkmcnt(0)
  v_lshl_add_u32 v{t1}, v{t1}, 3, s{sq+1}
  buffer_store_dwordx2 {v(CV,2)}, v{t1}, {s(SV,4)}, 0 offen sc1
  s_waitcnt vmcnt(0)
K_OV{j}:
  s_mov_b64 exec, -1""")
    a(f"""
  s_waitcnt lgkmcnt(0)
  s_barrier
  ds_read_b32 v{t1}, v{t5}
  s_sub_u32 s{sq+1}, s{sq+1}, 64
  v_mov_b32 v{t3}, s{sq+1}
  v_mov_b32 v{t2}, 0
  s_waitcnt lgkmcnt(0)
  buffer_store_dword v{t1}, v{t3}, {s(SV,4)}, 0 offen sc1
  s_waitcnt vmcnt(0)
  s_branch K_OVFDONE""")
    for u in range(OPT["unroll"] - 1):
        a(f"K_OX{u}:\n  s_cmp_eq_u32 s{sCnt}, 0\n  s_cbranch_scc1 K_LOOPEND")
        for x in incs(u + 1): a(x)
        a("  s_branch K_QUAD")
    loop("quad")
    a("  s_branch K_LOOPEND")
    loop("safe")
    a("  s_branch K_LOOPEND")
    a(f"""
K_NOGEMM0:
  s_waitcnt vmcnt(0)
  s_branch K_NOGEMM
K_RESTART:
  s_mov_b32 s{sMode}, 1
  s_mov_b32 s{sKind}, 0
  s_waitcnt lgkmcnt(0)
  s_barrier
  v_mov_b32 v{CV}, 0
  v_mov_b32 v{CV+1}, 0
  v_mov_b32 v{CV+2}, 0
  v_mov_b32 v{CV+3}, 0""")
    for j in range(5):
        a(f"  ds_write_b128 v{vt16}, {v(CV,4)} offset:{L_ACC + j*8192}")
    a(f"""
  v_cmp_gt_u32 vcc, {(40*AS-5*8192)//16}, v0
  s_and_saveexec_b64 {s(sEx,2)}, vcc
  ds_write_b128 v{vt16}, {v(CV,4)} offset:{L_ACC + 5*8192}
  s_mov_b64 exec, {s(sEx,2)}
  s_branch K_RELOAD
K_SPLIT:
  s_mov_b32 s{sKind}, 1
  s_waitcnt lgkmcnt(0)
  s_barrier
  s_branch K_RELOAD
K_NEXT:
  s_cmp_eq_u32 s{sKind}, 4
  s_cbranch_scc1 K_NEXTOV
  s_cmp_eq_u32 s{sKind}, 3
  s_cbranch_scc1 K_OVPART1
  s_cmp_eq_u32 s{sKind}, 2
  s_cbranch_scc1 K_CELLSDONE
  s_mov_b32 s{sKind}, 2
K_RELOAD:
  v_lshrrev_b32 v{t1}, 2, v0
  s_mov_b32 s{sq}, {CH*32}
  v_mul_u32_u24 v{vebase}, s{sq}, v{t1}
  s_waitcnt vmcnt(0)""")
    for k in range(2):
        a(f"  buffer_load_dwordx4 {v(REC+4*k,4)}, v{vcell}, {s(SC,4)}, 0 offen offset:{64*k} sc1")
    a(f"""
  s_waitcnt vmcnt(0)
  s_mov_b32 exec_lo, 0xaaaaaaaa
  s_mov_b32 exec_hi, 0xaaaaaaaa
  v_mov_b32 v{REC+3}, 0
  v_mov_b32 v{REC+7}, 0
  s_mov_b64 exec, -1
  s_cmp_eq_u32 s{sKind}, 0
  s_cbranch_scc1 K_ROUND
  s_lshr_b32 s{sq}, s{sW}, 2
  s_add_u32 s{sq}, s{sq}, 1
  s_cmp_eq_u32 s{sq}, s{sKind}
  s_cbranch_scc1 K_ROUND""")
    for k in range(NR): a(f"  v_mov_b32 v{REC+k}, 0")
    a(f"""
K_ROUND:
  v_mov_b32 v{CV}, 0
  v_mov_b32 v{CV+1}, 0
  v_mov_b32 v{CV+2}, 0
  v_mov_b32 v{CV+3}, 0
  v_cmp_gt_u32 vcc, {(L_FLG-L_GN)//16}, v0
  s_and_saveexec_b64 {s(sEx,2)}, vcc
  ds_write_b128 v{vt16}, {v(CV,4)} offset:{L_GN}
  s_mov_b64 exec, {s(sEx,2)}""")
    prefill()
    a(f"""
  v_and_b32 v{vent}, 2047, v{vent}
  v_and_b32 v{vrow}, 2047, v{vrow}
  v_subrev_u32 v{vga}, {L_GN}, v{vga}
  v_and_b32 v{vga}, 255, v{vga}
  v_add_u32 v{vga}, {L_GN}, v{vga}
  v_and_b32 v{t2}, 12, v{vl}
  v_add_u32 v{vgq}, v{vga}, v{t2}
  s_waitcnt lgkmcnt(0)
  s_barrier
  s_branch K_PHASE1
K_STARTOV:""")
    for i in range(4): a(f"  v_readfirstlane_b32 s{sOV+i}, v{CV+i}")
    a(f"""
  s_mov_b32 s{sKind}, 4
  s_waitcnt lgkmcnt(0)
K_NEXTOV:""")
    for i in range(2):
        a(f"""
  s_ff1_i32_b64 s{sP}, {s(sOV+2*i,2)}
  s_cmp_eq_u32 s{sP}, -1
  s_cbranch_scc1 K_OVN{i}
  s_bitset0_b64 {s(sOV+2*i,2)}, s{sP}
  s_add_u32 s{sP}, s{sP}, {64*i}
  s_branch K_OVGO
K_OVN{i}:""")
    a(f"""
  s_branch K_CONV
K_OVGO:
  s_mov_b32 s{sKind}, 3
  v_mov_b32 v{t4}, v0
  s_branch K_OVLD
K_OVPART1:
  s_mov_b32 s{sKind}, 4
  v_add_u32 v{t4}, 2048, v0
K_OVLD:
  s_mul_i32 s{sq}, s{sP}, {OVSTR}
  s_mul_i32 s{sq+1}, s{sP}, {CH*32}
  v_mov_b32 v{vebase}, s{sq+1}
  v_mov_b32 v{t0}, s{sq}
  buffer_load_dword v{t1}, v{t0}, {s(SV,4)}, 0 offen sc1
  v_lshl_add_u32 v{t2}, v{t4}, 3, v{t0}""")
    for k in range(4):
        a(f"  buffer_load_dwordx2 {v(PF+2*k,2)}, v{t2}, {s(SV,4)}, 0 offen offset:64 sc1\n  v_add_u32 v{t2}, 4096, v{t2}")
    a(f"  s_waitcnt vmcnt(0)")
    for k in range(4):
        a(f"""
  v_cmp_lt_u32 vcc, v{t4}, v{t1}
  v_cmp_eq_u32 {s(sEx,2)}, s2, v{PF+2*k+1}
  s_and_b64 vcc, vcc, {s(sEx,2)}
  v_add_u32 v{t4}, 512, v{t4}
  s_nop 1
  v_cndmask_b32 v{REC+k}, 0, v{PF+2*k}, vcc""")
    for k in range(4, NR): a(f"  v_mov_b32 v{REC+k}, 0")
    a("  s_branch K_ROUND")
    return a.text(), nv, NS

def gen_diag(idx):
    a = Asm()
    a(f"""
.globl mpnn_d_kernel
.p2align 8
.type mpnn_d_kernel,@function
mpnn_d_kernel:
  s_cmp_ge_u32 s2, 1
  s_cbranch_scc1 D_END
  s_load_dwordx2 s[4:5], s[0:1], 64
  s_waitcnt lgkmcnt(0)
  s_add_u32 s4, s4, {WS_STAMP + (OPT['wsb'] << 20)}
  s_addc_u32 s5, s5, 0
  s_load_dword s6, s[4:5], 0
  s_waitcnt lgkmcnt(0)
  s_sub_u32 s6, s6, 100000""")
    for q, (ix, ismax) in enumerate(((idx, 1), (0, 0))):
        op = "max" if ismax else "min"
        a(f"  v_lshlrev_b32 v1, {6 if not OPT['dodd'] else 10}, v0\n  v_add_u32 v1, {ix*4 + (512 + 64*(OPT['dodd']-1) if OPT['dodd'] else 0)}, v1\n  v_mov_b32 v3, {0 if ismax else -1}")
        nk = 32 if not OPT['dodd'] else 2
        for k in range(nk):
            a(f"  global_load_dword v{8+k}, v1, s[4:5]\n  v_add_u32 v1, {4096 if not OPT['dodd'] else 65536}, v1")
        a("  s_waitcnt vmcnt(0)")
        for k in range(nk):
            a(f"  v_subrev_u32 v2, s6, v{8+k}\n  v_{op}_u32 v3, v3, v2")
        a(f"  s_mov_b32 s{20+q}, {0 if ismax else -1}\n  s_nop 1")
        for l in range(64):
            a(f"  v_readlane_b32 s8, v3, {l}\n  s_nop 0\n  s_{op}_u32 s{20+q}, s{20+q}, s8")
    a(f"""
  s_sub_u32 s20, s20, s21
  s_min_u32 s20, s20, 20000
  s_lshl_b32 s20, s20, 3
  {'s_mov_b32 s20, 0' if OPT['dz'] else ''}
  s_memrealtime s[8:9]
  s_waitcnt lgkmcnt(0)
D_L:
  s_memrealtime s[10:11]
  s_waitcnt lgkmcnt(0)
  s_sub_u32 s12, s10, s8
  s_cmp_lt_u32 s12, s20
  s_cbranch_scc1 D_L
D_END:
  s_endpgm
""")
    return a.text()

HEAD = """; Kernarg layout for this problem (72 bytes, ptrs only, base s[0:1]):
"""
def main():
    k, nv, ns = gen()
    out = HEAD + f"; @launch grid=({NB},1,1) block=(512,1,1) lds={LDS}\n"
    if OPT["diag"] >= 0:
        out = HEAD + f"; @launch kernel={KN} grid=({NB},1,1) block=(512,1,1) lds={LDS}\n; @launch kernel=mpnn_d_kernel grid=(1,1,1) block=(64,1,1) lds=0\n"
        k += gen_diag(OPT["diag"])
    out += '.amdgcn_target "amdgcn-amd-amdhsa--gfx950"\n.text\n' + k
    out += f""".section .rodata,"a"
.p2align 6
.amdhsa_kernel {KN}
  .amdhsa_next_free_vgpr {nv}
  .amdhsa_next_free_sgpr {ns}
  .amdhsa_accum_offset {(nv+3)//4*4}
  .amdhsa_group_segment_fixed_size 0
  .amdhsa_kernarg_size 72
  .amdhsa_user_sgpr_count 2
  .amdhsa_user_sgpr_kernarg_segment_ptr 1
  .amdhsa_system_sgpr_workgroup_id_x 1
.end_amdhsa_kernel
"""
    if OPT["diag"] >= 0:
        out += """.p2align 6
.amdhsa_kernel mpnn_d_kernel
  .amdhsa_next_free_vgpr 48
  .amdhsa_next_free_sgpr 32
  .amdhsa_accum_offset 48
  .amdhsa_group_segment_fixed_size 0
  .amdhsa_kernarg_size 72
  .amdhsa_user_sgpr_count 2
  .amdhsa_user_sgpr_kernarg_segment_ptr 1
  .amdhsa_system_sgpr_workgroup_id_x 1
.end_amdhsa_kernel
"""
    open(sys.argv[1], "w").write(out)
    print("vgprs", nv, "lds", LDS)
main()
```

```python
from common import *

N = 10000; E = 320000
G = 125
CH = 2560
NB = 256
MAGIC = 26843
CAP = 28
CELLB = 128
BSTR = G * CELLB

WS_P = 256
WS_CELL = 0x280000
WS_WF = 0x1280000
WF_W2, WF_UT, WF_UB, WF_3H, WF_3L = 0, 32768, 65536, 98304, 102400
WF_SIZE = 106496
WS_OVF = 0x12A0000
OVSTR = 64 + CH * 8
WS_FLAG = 0x1520000
WS_STAMP = 0x1600000

OPT = dict(lo=0, k8=1, stamp=0, nodma=0, noadd=0, noe=0, hot=0, align=1, unroll=2, dmapos=0, rdpos=0, dsc=1, pf=1, slp=0, stf=1, addpos=0, rdgap=0, prio=0, bench=0, octo=1, frep=8, fln=16, slp0=0, plf=1, flf=1, diag=-1, touch=0, dz=0, abl=0, dodd=0, wsb=0, claim=0, slpa=0, slpb=0, zt=0, cpf=0)
for a_ in sys.argv[2:]:
    k_, v_ = a_.split("="); OPT[k_] = int(v_)
EXP = OPT["bench"] or OPT["nodma"] or OPT["noe"] or OPT["noadd"] or OPT["hot"]

FL_ = ['', 'sc1', 'sc0 sc1', 'sc1 nt', 'sc0 sc1 nt']; PLF = FL_[OPT['plf']]; FLF = FL_[OPT['flf']]
STF = ['', 'sc1', 'sc0 sc1', 'sc1 nt'][OPT['stf']]
FREP = OPT['frep']; FLN = OPT['fln']; FSH = (128//FLN).bit_length()-1; FHALF = FREP*FLN*256; FNON = 2*FHALF; FMASK = hex((1<<FREP)-1)
NA = 1 if OPT['claim'] & 4 else 0
NCL = (3 if OPT['claim'] & 1 else 0) + NA
NCC = (4 if OPT['claim'] & 2 else 0) + NA
CAPB = 70
L_ENT = 0
L_GN = (CAPB + 1) * 256
L_CNT = L_GN + (CAPB + 17) * 32
L_FLG = L_CNT + 256
L_ACC = L_FLG + 64
AS = 1040
L_Q = L_ACC + 40 * AS
QS = 320
L_X = L_Q + 40 * QS
XS = 288
L_STG = L_X + 40 * XS
STG = 8 * 1040 + 1024
LDS = L_STG + 8 * STG
L_CIMG = L_STG
L_BCNT = L_CIMG + NB * CELLB
WPITCH = 1088
L_GP = L_STG + 1024
L_WS = L_STG + 32 * WPITCH
assert L_BCNT + 1024 <= LDS and L_STG % 16 == 0 and L_ACC % 16 == 0
PADS, PADE = 0x8000003f, 0x80000000
KN = "standalone__mpnn_edge_mlp__graph_kernel"

def stamp(a, i, cyc=None):
    if OPT["stamp"]:
        if cyc is None:
            a(f"  s_memrealtime s[{80+2*i}:{81+2*i}]\n  s_waitcnt lgkmcnt(0)")
        else:
            a(f"  s_memrealtime s[96:97]\n  s_memtime s[98:99]\n  s_waitcnt lgkmcnt(0)\n  s_mov_b32 s{i}, s96\n  s_mov_b32 s{i+2}, s98")

def gen():
    a = Asm()
    R = Regs(1)
    al = R.alloc
    vl = al("lane")
    t0 = al("t", 8, 2); t1, t2, t3, t4, t5, t6, t7 = range(t0+1, t0+8)
    vchunk = al("vchunk"); vechunk = al("vechunk")
    vent = al("vent"); vrow = al("vrow"); vgq = al("vgq"); vga = al("vga")
    vAlo = al("Alo"); vAhi = al("Ahi"); vEF = al("vEF")
    vqlane = al("vqlane"); vacl = al("vacl"); vxb = al("vxb"); vqw = al("vqw")
    vebase = al("vebase"); vone = al("vone"); vt16 = al("vt16"); vcell = al("vcell")
    vqa = al("vqa"); vsrow = al("vsrow"); vgn1 = al("vgn1")
    ENT = al("ENT", 2, 2)
    MAC = al("MAC", 2, 2)
    PAT = al("PAT", 2, 2)
    nq = 2 if OPT["k8"] else 4
    AQ = al("AQ", nq, 2)
    GN = al("GN", 4, 2); AD = al("AD", 4)
    DO = al("DO", 2)
    I0 = al("I0", 4, 2); I1 = al("I1", 4, 2)
    W3 = al("W3", 16, 2)
    W3L = al("W3L", 16, 2) if OPT["lo"] else None
    BQ = al("BQ", 4*nq, 2)
    EF = al("EF", 4, 2)
    PF = al("PF", 32, 2)
    D0 = al("D0", 16, 2); D1 = al("D1", 16, 2)
    EA = al("EA", 8, 2); TA = al("TA", 8, 2); EB = al("EB", 8, 2); TB = al("TB", 8, 2)
    RA = al("RA", 2, 2); RB = al("RB", 2, 2)
    SA = al("SA", 2, 2); SB = al("SB", 2, 2)
    CV = al("CV", 8, 2)
    U = al("U", 12, 2); WUB = al("WUB", 16, 2)
    DUM = al("DUM", 4, 2)
    DK = al("DK", 4, 2)
    nv = R.n
    assert TA == EA + 8 and EB == EA + 16 and TB == EA + 24 and D1 == D0 + 16
    DD = D0; SS_ = D0 + 5; B4 = D0 + 10; RK = D0 + 15; CA = D0 + 20
    CP = PF
    GX = W3
    XL = U
    W1F = WUB
    REC = D0; NOD = D0 + 8; RNK = D1
    W2F = EA; WUT = EB; XF = PF; QD = CV
    sW = 3
    pX, pE, pS, pD, pWM, pWU, pO, pWS = 4, 6, 8, 10, 12, 14, 16, 18
    SP, SE, SC, SW, SO, SV, SF = 20, 24, 28, 32, 36, 40, 44
    T0, T1, T2 = 48, 52, 56
    sStart, sNb, sStg, sCnt, sT, sMode, sKind, sFirst = 60, 61, 62, 63, 64, 65, 66, 67
    sAS, sQS, sTag, sP, sUB, sLo2 = 68, 69, 70, 71, 72, 73
    sCO = 59
    sNp = 79
    sEx, sK, sBad = 74, 76, 78
    sTmp = 4
    sA = 48
    sOV = 48
    sOVT = 74
    sq = 100
    if OPT["stamp"]: NS = 102
    else: NS = 102

    a(f"""
.globl {KN}
.p2align 8
.type {KN},@function
{KN}:
  s_cmp_ge_u32 s2, {NB}
  s_cbranch_scc1 K_END""")
    if OPT["stamp"]: a("  s_memrealtime s[80:81]")
    a(f"""
  s_load_dwordx8 s[4:11], s[0:1], 0
  s_load_dwordx4 s[12:15], s[0:1], 32
  s_load_dwordx2 s[16:17], s[0:1], 48
  s_load_dwordx2 s[18:19], s[0:1], 64""")
    if OPT["cpf"]:
        a(f"""
  s_getpc_b64 s[20:21]
  v_lshlrev_b32 v{t1}, 7, v0
  v_cmp_gt_u32 vcc, (K_TEXTEND - {KN}) / 128, v0
  s_and_saveexec_b64 s[22:23], vcc
  s_cbranch_execz K_NOCPF
  global_load_dword v{DUM}, v{t1}, s[20:21]
K_NOCPF:
  s_mov_b64 exec, s[22:23]""")
    a(f"""
  v_lshrrev_b32 v{t0}, 6, v0
  v_and_b32 v{vl}, 63, v0
  s_and_b32 s{sP}, s2, {FREP-1}
  s_mul_i32 s{sP}, s{sP}, {FLN*256}
  s_and_b32 s{sq}, s2, 7
  s_lshl_b32 s{sq}, s{sq}, 1
  s_bfe_u32 s{sq+1}, s2, 0x10003
  s_and_b32 s2, s2, 0xf0
  s_or_b32 s2, s2, s{sq}
  s_or_b32 s2, s2, s{sq+1}
  s_mul_i32 s{sStart}, s2, 640013
  v_readfirstlane_b32 s{sW}, v{t0}
  s_add_u32 s{sNb}, s{sStart}, {640013+16383}
  s_add_u32 s{sStart}, s{sStart}, 16383
  s_sub_u32 s{sNp}, s{sStart}, 640013
  s_lshr_b32 s{sStart}, s{sStart}, 14
  s_lshr_b32 s{sNb}, s{sNb}, 14
  s_lshr_b32 s{sNp}, s{sNp}, 14
  s_min_u32 s{sNb}, s{sNb}, {N}
  s_sub_u32 s{sCnt}, s{sNb}, s{sNp}
  s_sub_u32 s{sNb}, s{sNb}, s{sStart}
  s_lshl_b32 s{sT}, s{sNp}, 8
  s_sub_u32 s{sNp}, s{sStart}, s{sNp}
  s_mov_b32 s{sMode}, 0
  s_mov_b32 s{sKind}, 0
  s_mov_b32 s{sFirst}, 1
  s_mov_b32 s{sAS}, {AS}
  s_mov_b32 s{sQS}, {QS}
  s_mul_i32 s{sStg}, s{sW}, {STG}
  s_add_u32 s{sStg}, s{sStg}, {L_STG}
  v_lshlrev_b32 v{vt16}, 4, v0
  s_mul_i32 s{sq}, s2, {CH*2}
  v_lshl_add_u32 v{t2}, v0, 2, s{sq}
  v_add_u32 v{t3}, 4096, v{t2}
  v_lshrrev_b32 v{t4}, 4, v{vl}
  v_lshlrev_b32 v{t0}, 1, v{t4}
  v_xor_b32 v{t0}, v{t0}, v{vl}
  v_lshlrev_b32 v{t0}, 4, v{t0}
  s_lshl_b32 s{sq}, s{sW}, 12
  v_add_u32 v{t7}, s{sq}, v{t0}
  s_mul_i32 s{sUB}, s{sW}, {4*WPITCH}
  s_add_u32 s{sUB}, s{sUB}, {L_WS}
  v_add_u32 v{t6}, 8192, v{vt16}
  v_add_u32 v{t5}, 16384, v{vt16}
  s_waitcnt lgkmcnt(0)
  {"s_add_u32 s%d, s%d, %d" % (pWS, pWS, OPT["wsb"] << 20) + chr(10) + "  s_addc_u32 s%d, s%d, 0" % (pWS+1, pWS+1) if OPT["wsb"] else ""}
  s_bitcmp1_b32 s2, 0
  s_cbranch_scc1 K_LDG
  s_cmp_ge_u32 s2, {2*G}
  s_cbranch_scc1 K_LDP""")
    srd(a, T0, pD, E*4)
    srd(a, T1, pS, E*4)
    a(f"  s_movk_i32 s{sq}, 0x2000")
    for r_, T in ((DD, T0), (SS_, T1)):
        a(f"""
  buffer_load_dword v{r_}, v{t2}, {s(T,4)}, 0 offen
  buffer_load_dword v{r_+1}, v{t2}, {s(T,4)}, 0 offen offset:2048
  buffer_load_dword v{r_+2}, v{t3}, {s(T,4)}, 0 offen
  buffer_load_dword v{r_+3}, v{t3}, {s(T,4)}, 0 offen offset:2048
  buffer_load_dword v{r_+4}, v{t2}, {s(T,4)}, s{sq} offen""")
    if OPT["claim"] & 2:
        srd(a, T2, pWS, NB*BSTR, add=WS_CELL)
        a(f"""
  v_lshrrev_b32 v{t4}, 3, v0
  s_mov_b32 s{sq}, {BSTR}
  v_mul_u32_u24 v{t4}, s{sq}, v{t4}
  v_and_b32 v{t0}, 7, v0
  v_lshl_add_u32 v{t4}, v{t0}, 4, v{t4}
  s_lshl_b32 s{sq}, s2, 6
  v_mov_b32 v{PF}, 0
  v_mov_b32 v{PF+1}, 0
  v_mov_b32 v{PF+2}, 0
  v_mov_b32 v{PF+3}, 0""")
        for j in range(4):
            a(f"  buffer_store_dwordx4 {v(PF,4)}, v{t4}, {s(T2,4)}, s{sq} offen sc1\n  s_add_u32 s{sq}, s{sq}, {64*BSTR}")
    a("  s_branch K_LD3")
    def wdma(T):
        for q in range(4):
            a(f"  s_add_u32 m0, s{sUB}, {64*q}\n  s_nop 0\n  buffer_load_dwordx4 v{t7}, {s(T,4)}, 0 offen offset:{1024*q} lds")
    a(f"""
K_LDX:
  s_lshl_b32 s{sq}, s{sStart}, 8
  s_lshl_b32 s{sq+1}, s{sNb}, 8""")
    srd(a, T2, pX, f"s{sq+1}", addreg=sq)
    a(f"""
  buffer_load_dwordx4 {v(XL,4)}, v{vt16}, {s(T2,4)}, 0 offen
  buffer_load_dwordx4 {v(XL+4,4)}, v{t6}, {s(T2,4)}, 0 offen
  s_branch K_LD3
K_LDP:
  s_cmp_eq_u32 s2, {2*G}
  s_cselect_b32 s{T1}, s{pWM}, s{pWU}
  s_cselect_b32 s{T1+1}, s{pWM+1}, s{pWU+1}
  s_cmp_eq_u32 s2, {2*G+2}
  s_cselect_b32 s{sq}, 0, 32768
  s_add_u32 s{T1}, s{T1}, s{sq}
  s_addc_u32 s{T1+1}, s{T1+1}, 0
  s_mov_b32 s{T1+2}, 32768
  s_mov_b32 s{T1+3}, 0x20000""")
    wdma(T1)
    srd(a, T0, pWM, 16*256, add=256*256)
    a(f"""
  v_and_b32 v{t0}, 31, v{vl}
  v_lshrrev_b32 v{t1}, 5, v{vl}
  v_lshlrev_b32 v{t1}, 11, v{t1}
  v_lshl_add_u32 v{t1}, v{t0}, 1, v{t1}
  s_and_b32 s{sq}, s{sW}, 3
  s_lshl_b32 s{sq}, s{sq}, 6""")
    for jj in range(8):
        a(f"  buffer_load_ushort v{D0+jj}, v{t1}, {s(T0,4)}, s{sq} offen offset:{jj*256}")
    a(f"""
  s_branch K_LDX
K_LDG:
  s_lshl_b32 s{sCnt}, s{sCnt}, 8""")
    srd(a, T0, pX, f"s{sCnt}", addreg=sT)
    srd(a, T1, pWM, 128*256)
    a(f"""
  buffer_load_dwordx4 {v(GX,4)}, v{vt16}, {s(T0,4)}, 0 offen
  buffer_load_dwordx4 {v(GX+4,4)}, v{t6}, {s(T0,4)}, 0 offen
  buffer_load_dwordx4 {v(GX+8,4)}, v{t5}, {s(T0,4)}, 0 offen""")
    wdma(T1)
    if OPT["claim"] & 1:
        srd(a, T2, pWS, f"s{sCnt}", add=WS_P, addreg=sT)
        for r_ in (vt16, t6, t5):
            a(f"  buffer_store_dwordx4 {v(PF,4)}, v{r_}, {s(T2,4)}, 0 offen sc1")
    a(f"""
K_LD3:""")
    if OPT["claim"] & 4:
        a(f"  s_lshl_b32 s{sq}, s{sStart}, 8\n  s_lshl_b32 s{sq+1}, s{sNb}, 8")
        srd(a, SO, pWS, f"s{sq+1}", add=WS_P, addreg=sq)
        a(f"""
  s_mul_i32 s{sq}, s{sW}, 1280
  v_lshl_add_u32 v{t1}, v{vl}, 7, s{sq}
  v_mov_b32 v{t0}, 0
  s_mov_b64 exec, 0x3ff
  buffer_atomic_or v{t0}, v{t1}, {s(SO,4)}, 0 offen
  s_mov_b64 exec, -1""")
    a(f"""
  s_add_u32 s{SF}, s{pWS}, {WS_FLAG}
  s_addc_u32 s{SF+1}, s{pWS+1}, 0
  s_load_dword s{sTag}, s[{SF}:{SF+1}], {FNON}
  s_mov_b32 s{SF+2}, {FNON+4}
  s_mov_b32 s{SF+3}, 0x20000
  v_lshrrev_b32 v{t1}, 2, v0
  v_and_b32 v{t4}, 3, v0
  v_lshlrev_b32 v{t4}, 4, v{t4}
  v_lshl_add_u32 v{vcell}, v{t1}, 7, v{t4}
  s_mov_b32 s{sq}, {CH*32}
  v_mul_u32_u24 v{vebase}, s{sq}, v{t1}""")
    a(f"""
  v_mov_b32 v{CV}, 0
  v_mov_b32 v{CV+1}, 0
  v_mov_b32 v{CV+2}, 0
  v_mov_b32 v{CV+3}, 0
  v_add_u32 v{t0}, {L_CIMG}, v{vt16}""")
    a(f"  s_bitcmp1_b32 s2, 0\n  s_cbranch_scc1 K_NOZ")
    for j in range(4):
        a(f"  ds_write_b128 v{t0}, {v(CV,4)} offset:{j*8192}")
    a(f"  s_cmp_lg_u32 s{sW}, 0\n  s_cbranch_scc1 K_NOZ\n  ds_write_b128 v{t0}, {v(CV,4)} offset:32768")
    a("K_NOZ:")
    for j in range(5):
        a(f"  ds_write_b128 v{vt16}, {v(CV,4)} offset:{L_GN + j*8192}")
    a(f"""
  v_cmp_gt_u32 vcc, {(L_Q-L_GN-5*8192)//16}, v0
  s_and_saveexec_b64 {s(sEx,2)}, vcc
  ds_write_b128 v{vt16}, {v(CV,4)} offset:{L_GN + 5*8192}
  s_mov_b64 exec, {s(sEx,2)}""")
    def prefill():
        a(f"""
  v_mov_b32 v{CV+4}, {PADS}
  v_mov_b32 v{CV+5}, {PADE}
  v_mov_b32 v{CV+6}, {PADS}
  v_mov_b32 v{CV+7}, {PADE}
  ds_write_b128 v{vt16}, {v(CV+4,4)}
  ds_write_b128 v{vt16}, {v(CV+4,4)} offset:8192
  v_cmp_gt_u32 vcc, {(L_GN-16384)//16}, v0
  s_and_saveexec_b64 {s(sEx,2)}, vcc
  ds_write_b128 v{vt16}, {v(CV+4,4)} offset:16384
  s_mov_b64 exec, {s(sEx,2)}""")
    prefill()
    a(f"  s_mul_i32 s{sq}, s2, {BSTR}\n  s_lshl_b32 s{sq+1}, s{sStart}, 8\n  s_lshl_b32 s{sK}, s{sNb}, 8")
    srd(a, SC, pWS, G*CELLB, add=WS_CELL, addreg=sq)
    srd(a, SP, pWS, (N+1)*256)
    srd(a, SE, pE, E*32)
    srd(a, SW, pWS, WF_SIZE, add=WS_WF)
    srd(a, SO, pO, f"s{sK}", addreg=sq+1)
    srd(a, SV, pWS, G*OVSTR, add=WS_OVF)
    a(f"""
  v_mov_b32 v{vone}, 1
  v_mov_b32 v{MAC}, 0
  v_mov_b32 v{MAC+1}, 0
  v_and_b32 v{t0}, 15, v{vl}                 ; l&15
  v_bfe_u32 v{t1}, v{vl}, 4, 1               ; r4&1
  v_lshlrev_b32 v{t2}, 3, v{t1}
  v_xor_b32 v{t2}, v{t0}, v{t2}
  v_lshlrev_b32 v{vchunk}, 4, v{t2}
  v_and_b32 v{t2}, 1, v{vl}
  v_xor_b32 v{t2}, v{t2}, v{t1}
  v_lshlrev_b32 v{vechunk}, 4, v{t2}
  v_lshrrev_b32 v{t2}, 4, v{vl}
  v_lshlrev_b32 v{t2}, 6, v{t2}
  v_lshrrev_b32 v{t4}, 1, v{t0}
  v_lshl_add_u32 v{t2}, v{t4}, 3, v{t2}
  s_lshl_b32 s{sq}, s{sW}, 8
  v_add_u32 v{vent}, s{sq}, v{t2}
  v_bfe_u32 v{t2}, v{vl}, 2, 1               ; h
  v_and_b32 v{t4}, 1, v{vl}                  ; xy
  v_lshl_add_u32 v{t5}, v{t2}, 1, v{t4}      ; r4
  v_bfe_u32 v{t6}, v{vl}, 3, 2
  v_bfe_u32 v{t7}, v{vl}, 1, 1
  v_lshl_add_u32 v{t6}, v{t6}, 1, v{t7}      ; j
  v_lshl_add_u32 v{t7}, v{t5}, 3, v{t6}      ; q = 8 r4 + j
  v_lshlrev_b32 v{t7}, 3, v{t7}
  v_add_u32 v{vrow}, s{sq}, v{t7}
  v_lshrrev_b32 v{t7}, 5, v{vl}              ; hh
  v_mul_u32_u24 v{vAlo}, 1040, v{t6}
  v_lshl_add_u32 v{vAlo}, v{t5}, 8, v{vAlo}
  v_lshl_add_u32 v{vAlo}, v{t7}, 4, v{vAlo}
  v_add_u32 v{vAlo}, s{sStg}, v{vAlo}
  v_xor_b32 v{vAhi}, 1, v{t4}
  v_lshl_add_u32 v{vAhi}, v{vAhi}, 7, v{vAlo}
  v_lshl_add_u32 v{vAlo}, v{t4}, 7, v{vAlo}
  v_xor_b32 v{vEF}, v{t7}, v{t4}
  v_lshl_add_u32 v{vEF}, v{t6}, 1, v{vEF}
  v_lshl_add_u32 v{vEF}, v{t5}, 4, v{vEF}
  v_lshlrev_b32 v{vEF}, 4, v{vEF}
  s_add_u32 s{sq+1}, s{sStg}, 8320
  v_add_u32 v{vEF}, s{sq+1}, v{vEF}
  v_bfe_u32 v{t5}, v{vl}, 4, 1               ; o
  v_lshlrev_b32 v{t5}, 4, v{t5}
  v_mov_b32 v{t6}, 0x3f80
  v_lshlrev_b32 v{t5}, v{t5}, v{t6}
  v_cmp_eq_u32 vcc, v{t7}, v{t2}
  s_nop 1
  v_cndmask_b32 v{t5}, 0, v{t5}, vcc
  v_cmp_eq_u32 vcc, 0, v{t4}
  s_nop 1
  v_cndmask_b32 v{PAT}, 0, v{t5}, vcc
  v_cndmask_b32 v{PAT+1}, v{t5}, 0, vcc
  s_lshl_b32 s{sq}, s{sW}, 5
  s_add_u32 s{sq+1}, s{sq}, {L_GN}
  v_lshlrev_b32 v{vga}, 4, v{t7}
  v_add_u32 v{vga}, s{sq+1}, v{vga}
  v_and_b32 v{t2}, 12, v{vl}
  v_add_u32 v{vgq}, v{vga}, v{t2}
  v_and_b32 v{t2}, 3, v{vl}
  v_lshlrev_b32 v{t2}, 3, v{t2}
  v_lshl_add_u32 v{t2}, v{t1}, 5, v{t2}
  v_add_u32 v{vqlane}, {L_Q}, v{t2}
  v_and_b32 v{t2}, 31, v{vl}
  v_lshlrev_b32 v{t4}, 3, v{t2}
  v_add_u32 v{vacl}, {L_ACC}, v{t4}
  v_lshrrev_b32 v{t4}, 4, v{vl}              ; g
  v_mul_u32_u24 v{vxb}, {XS}, v{t0}
  v_lshl_add_u32 v{vxb}, v{t4}, 4, v{vxb}
  v_add_u32 v{vxb}, {L_X}, v{vxb}
  v_mul_u32_u24 v{vqw}, {QS}, v{t0}
  v_lshl_add_u32 v{vqw}, v{t4}, 3, v{vqw}
  s_add_u32 s{sq+1}, s{sq}, {L_Q}
  v_add_u32 v{vqw}, s{sq+1}, v{vqw}
  v_mul_u32_u24 v{vqa}, {2*WPITCH}, v{t4}
  v_bfe_u32 v{t5}, v{vl}, 2, 2
  v_lshl_add_u32 v{vqa}, v{t5}, 8, v{vqa}
  v_xor_b32 v{t5}, s{sW}, v{t5}
  v_lshl_add_u32 v{vqa}, v{t5}, 5, v{vqa}
  v_and_b32 v{t5}, 3, v{vl}
  v_lshl_add_u32 v{vqa}, v{t5}, 3, v{vqa}
  v_add_u32 v{vqa}, {L_WS}, v{vqa}
  v_and_b32 v{t4}, 1, v{vl}
  v_lshlrev_b32 v{t4}, 4, v{t4}
  v_lshlrev_b32 v{t4}, v{t4}, v{t6}
  v_bfe_u32 v{t5}, v{vl}, 1, 4
  v_lshlrev_b32 v{t7}, 2, v{t7}
  v_sub_u32 v{t5}, v{t5}, v{t7}""")
    for i in range(4):
        a(f"  v_cmp_eq_u32 vcc, {i}, v{t5}\n  s_nop 1\n  v_cndmask_b32 v{I0+i}, 0, v{t4}, vcc")
        a(f"  v_cmp_eq_u32 vcc, {8+i}, v{t5}\n  s_nop 1\n  v_cndmask_b32 v{I1+i}, 0, v{t4}, vcc")
    if not OPT["k8"]:
        a(f"  v_mov_b32 v{AQ+2}, 0\n  v_mov_b32 v{AQ+3}, 0")
        for t in range(4):
            a(f"  v_mov_b32 v{BQ+4*t+2}, 0\n  v_mov_b32 v{BQ+4*t+3}, 0")
    def prefetch():
        if not OPT["pf"]: return
        a(f"  s_mul_i32 s{sq}, s2, 40000\n  s_sub_u32 s{sq}, s{sq}, 4096\n  v_add_u32 v{t0}, s{sq}, v{vt16}")
        for j in range(10):
            a(f"  buffer_load_dwordx4 {v(DUM,4)}, v{t0}, {s(SE,4)}, 0 offen")
            if j < 9: a(f"  v_add_u32 v{t0}, 4096, v{t0}")
    def wtr(dst, ad):
        for st in range(4):
            for hf in range(2):
                a(f"  ds_read_b64_tr_b16 {v(dst+4*st+2*hf,2)}, v{ad} offset:{(8*st+hf)*WPITCH}")
    def own_x(nyounger):
        a(f"""
  v_lshrrev_b32 v{t0}, 4, v0
  v_lshl_add_u32 v{t0}, v{t0}, 5, v{vt16}
  v_add_u32 v{t0}, {L_X}, v{t0}
  s_waitcnt vmcnt({nyounger})
  ds_write_b128 v{t0}, {v(XL,4)}
  s_mov_b32 exec_lo, s{sLo2}
  s_mov_b32 exec_hi, s{sLo2}
  ds_write_b128 v{t0}, {v(XL+4,4)} offset:{32*XS}
  s_mov_b64 exec, -1""")
    a(f"""
  s_cmp_lt_u32 s{sW}, 2
  s_cselect_b32 s{sLo2}, -1, 0
  s_lshr_b32 s{sq}, s2, {1+FSH}
  s_lshl_b32 s{sq}, s{sq}, 8
  s_bfe_u32 s{sq+1}, s2, {hex((FSH<<16)|1)}
  s_lshl_b32 s{sq+1}, s{sq+1}, 2
  s_add_u32 s{sq}, s{sq}, s{sq+1}
  s_and_b32 s{sq+1}, s2, 1
  s_mul_i32 s{sq+1}, s{sq+1}, {FHALF}
  s_add_u32 s{sq}, s{sq}, s{sq+1}
  v_mul_u32_u24 v{vgn1}, {FLN*256}, v{vl}
  v_add_u32 v{vgn1}, s{sq}, v{vgn1}
  v_lshrrev_b32 v{t2}, {FSH-1}, v{vl}
  v_lshlrev_b32 v{t2}, 8, v{t2}
  v_and_b32 v{t3}, {(1<<(FSH-1))-1}, v{vl}
  v_lshl_add_u32 v{t2}, v{t3}, 3, v{t2}
  v_add_u32 v{vsrow}, s{sP}, v{t2}
  s_mov_b32 s{sK}, {NLOG2E}
  s_mov_b32 s{sK+1}, {NLOG2E}
  s_waitcnt lgkmcnt(0)
  s_add_u32 s{sTag}, s{sTag}, 1
  s_max_u32 s{sTag}, s{sTag}, 1
  s_bitcmp1_b32 s2, 0
  s_cbranch_scc1 K_GEMM
  s_cmp_ge_u32 s2, {2*G}
  s_cbranch_scc1 K_PREP
  s_mov_b32 s{sq}, {MAGIC}
  v_lshlrev_b32 v{t7}, 6, v0
  v_add_u32 v{t7}, {1<<18}, v{t7}
  s_barrier
  s_waitcnt vmcnt({5+NCC})""")
    stamp(a, 1)
    for j in range(5):
        a(f"""
  v_mul_u32_u24 v{B4+j}, s{sq}, v{DD+j}
  v_lshrrev_b32 v{B4+j}, 18, v{B4+j}
  v_and_b32 v{B4+j}, 0x3fc, v{B4+j}
  v_add_u32 v{t0+j}, {L_BCNT}, v{B4+j}
  ds_add_rtn_u32 v{RK+j}, v{t0+j}, v{vone}""")
    a(f"  s_waitcnt vmcnt({NCC})")
    for j in range(5):
        a(f"""
  v_lshl_add_u32 v{SS_+j}, v{SS_+j}, 18, v{t7}
  v_and_or_b32 v{SS_+j}, v{DD+j}, 63, v{SS_+j}
  v_lshlrev_b32 v{CA+j}, 5, v{B4+j}
  v_add_u32 v{CA+j}, {L_CIMG}, v{CA+j}""")
        if j < 4: a(f"  v_add_u32 v{t7}, {512<<6}, v{t7}")
    srd(a, T2, pWS, NB*BSTR, add=WS_CELL)
    a(f"""
  v_lshrrev_b32 v{t4}, 3, v0
  s_mov_b32 s{sq}, {BSTR}
  v_mul_u32_u24 v{t4}, s{sq}, v{t4}
  v_and_b32 v{t5}, 7, v0
  v_lshl_add_u32 v{t4}, v{t5}, 4, v{t4}
  s_lshl_b32 s{sq}, s2, 6
  s_mov_b64 {s(sBad,2)}, 0
  s_waitcnt lgkmcnt(0)""")
    for j in range(5):
        a(f"""
  v_mul_u32_u24 v{t1}, 37, v{RK+j}
  v_lshl_add_u32 v{t0}, v{RK+j}, 2, v{CA+j}
  v_lshrrev_b32 v{t1}, 8, v{t1}
  v_cmp_le_u32 vcc, {CAP-1}, v{RK+j}
  v_lshl_add_u32 v{t0}, v{t1}, 2, v{t0}
  s_or_b64 {s(sBad,2)}, {s(sBad,2)}, vcc
  s_andn2_b64 exec, exec, vcc
  ds_write_b32 v{t0}, v{SS_+j}
  s_mov_b64 exec, -1""")
    a(f"""
  v_add_u32 v{t0}, {L_CIMG}, v{vt16}
  v_mov_b32 v{t2}, {L_FLG+4}
  s_cmp_eq_u64 {s(sBad,2)}, 0
  s_cbranch_scc1 K_NOFULL
  ds_write_b32 v{t2}, v{vone}
K_NOFULL:
  s_waitcnt lgkmcnt(0)
  s_barrier""")
    stamp(a, 2)
    a(f"  ds_read_b32 v{t2}, v{t2}\nK_OVFDONE:")
    for j in range(4):
        a(f"  ds_read_b128 {v(CP+4*j,4)}, v{t0} offset:{8192*j}")
    a(f"""
  s_waitcnt vmcnt({2 if OPT['claim'] & 2 else 63}) lgkmcnt(4)
  v_cmp_ne_u32 vcc, 0, v{t2}
  s_cbranch_vccnz K_OVF""")
    for j in range(4):
        a(f"""
  s_mov_b32 exec_lo, 0xaaaaaaaa
  s_mov_b32 exec_hi, 0xaaaaaaaa
  s_waitcnt lgkmcnt({3-j})
  v_mov_b32 v{CP+4*j+3}, s{sTag}
  s_mov_b64 exec, -1
  buffer_store_dwordx4 {v(CP+4*j,4)}, v{t4}, {s(T2,4)}, s{sq} offen {STF}
  s_add_u32 s{sq}, s{sq}, {64*BSTR}""")
    a(f"  s_lshl_b32 s{sq}, s{sStart}, 8\n  s_lshl_b32 s{sq+1}, s{sNb}, 8")
    srd(a, T2, pX, f"s{sq+1}", addreg=sq)
    a(f"""
  v_add_u32 v{t6}, 8192, v{vt16}
  buffer_load_dwordx4 {v(XL,4)}, v{vt16}, {s(T2,4)}, 0 offen
  buffer_load_dwordx4 {v(XL+4,4)}, v{t6}, {s(T2,4)}, 0 offen""")
    own_x(0)
    a(f"""
  {"s_sleep %d" % OPT["slpa"] if OPT["slpa"] else ""}
  s_branch K_PST
K_GW:
  {"s_sleep %d" % OPT["slpb"] if OPT["slpb"] else ""}
  s_branch K_PST
K_GEMM:
  ; ---------------- P gemm role: rows of this bucket and the one before ----------------""")
    if OPT["touch"]:
        a(f"""
  s_cmp_lg_u32 s{sW}, 0
  s_cbranch_scc1 K_NOTOUCH
  s_waitcnt vmcnt(0)
  s_mov_b64 exec, {FMASK}
  buffer_load_dword v{DUM}, v{vgn1}, {s(SF,4)}, 0 offen sc1
  s_mov_b64 exec, -1
K_NOTOUCH:""")
    a(f"""
  s_mul_i32 s{sq}, s{sNp}, {XS}
  s_sub_u32 s{sq}, {L_X}, s{sq}
  v_lshrrev_b32 v{t0}, 4, v0
  v_lshl_add_u32 v{t0}, v{t0}, 5, v{vt16}
  v_add_u32 v{t3}, s{sq}, v{t0}
  s_cmp_lt_u32 s{sW}, 4
  s_cselect_b32 s{sq+1}, -1, 0
  v_subrev_u32 v{t1}, {L_X}, v{vxb}
  v_add_u32 v{t1}, s{sq}, v{t1}
  s_waitcnt vmcnt({6+NCL})
  ds_write_b128 v{t3}, {v(GX,4)}
  s_waitcnt vmcnt({5+NCL})
  ds_write_b128 v{t3}, {v(GX+4,4)} offset:{32*XS}
  s_waitcnt vmcnt({4+NCL})
  s_mov_b32 exec_lo, s{sq+1}
  s_mov_b32 exec_hi, s{sq+1}
  ds_write_b128 v{t3}, {v(GX+8,4)} offset:{64*XS}
  s_mov_b64 exec, -1
  v_and_b32 v{t2}, 15, v{vl}
  v_mul_u32_u24 v{t2}, {XS}, v{t2}
  v_lshrrev_b32 v{t3}, 4, v{vl}
  v_lshl_add_u32 v{t2}, v{t3}, 3, v{t2}
  s_lshl_b32 s{sq}, s{sW}, 5
  s_add_u32 s{sq}, s{sq}, {L_GP}
  v_add_u32 v{t2}, s{sq}, v{t2}
  v_add_u32 v{t0}, {L_GP - 16*XS}, v{t0}
  v_subrev_u32 v{t4}, 4096, v{vt16}""")
    srd(a, T0, pWS, f"s{sCnt}", add=WS_P, addreg=sT)
    a(f"  s_waitcnt vmcnt({NCL}) lgkmcnt(0)\n  s_barrier")
    stamp(a, 1)
    wtr(W1F, vqa)
    XT = [PF, PF+16, EA, EB, PF]
    for nt in range(4):
        for st in range(4):
            a(f"  ds_read_b128 {v(XT[nt]+4*st,4)}, v{t1} offset:{nt*16*XS + st*64}")
    for nt in range(5):
        a(f"  s_waitcnt lgkmcnt({(12, 12, 8, 4, 0)[nt]})")
        for st in range(4):
            c = "0" if st == 0 else v(D0+4*nt, 4)
            a(f"  v_mfma_f32_16x16x32_bf16 {v(D0+4*nt,4)}, {v(W1F+4*st,4)}, {v(XT[nt]+4*st,4)}, {c}")
        if nt == 0:
            for st in range(4):
                a(f"  ds_read_b128 {v(PF+4*st,4)}, v{t1} offset:{4*16*XS + st*64}")
    for nt in range(5):
        d = D0 + 4*nt
        if nt == 4: a("  s_nop 1")
        a(f"""
  v_pk_mul_f32 {v(d,2)}, {v(d,2)}, {s(sK,2)}
  v_pk_mul_f32 {v(d+2,2)}, {v(d+2,2)}, {s(sK,2)}
  v_cvt_pk_bf16_f32 v{W3+2*nt}, v{d}, v{d+1}
  v_cvt_pk_bf16_f32 v{W3+2*nt+1}, v{d+2}, v{d+3}
  ds_write_b64 v{t2}, {v(W3+2*nt,2)} offset:{nt*16*XS}""")
    a(f"  s_waitcnt vmcnt({NA}) lgkmcnt(0)\n  s_barrier")
    stamp(a, 2)
    a(f"""
  s_cmp_lt_u32 s{sW}, 4
  s_cbranch_scc1 K_GW""")
    for j in range(5):
        a(f"  ds_read_b128 {v(PF+4*j,4)}, v{t0} offset:{j*16*XS}")
    if OPT["zt"]:
        srd(a, T1, pWS, f"s{sCnt}", add=0x1800000, addreg=sT)
        a(f"  s_waitcnt lgkmcnt(0)\n  v_mov_b32 v{t1}, v{t4}")
        for j in range(5):
            a(f"  buffer_store_dwordx4 {v(PF+4*j,4)}, v{t1}, {s(T1,4)}, 0 offen {STF}\n  v_add_u32 v{t1}, 4096, v{t1}")
        a("  s_waitcnt vmcnt(0)")
        stamp(a, 1)
    for j in range(5):
        a(f"  s_waitcnt lgkmcnt({4-j})\n  buffer_store_dwordx4 {v(PF+4*j,4)}, v{t4}, {s(T0,4)}, 0 offen {STF}")
        if j < 4: a(f"  v_add_u32 v{t4}, 4096, v{t4}")
    a(f"""
  v_mov_b32 v{t0}, {L_FLG+12}
  v_mov_b32 v{t7}, s{sTag}
  s_mov_b64 exec, 1
  s_waitcnt vmcnt(0)""")
    stamp(a, 3)
    a(f"""
  ds_add_rtn_u32 v{t0}, v{t0}, v{vone}
  s_waitcnt lgkmcnt(0)
  v_readfirstlane_b32 s{sq}, v{t0}
  s_mov_b64 exec, -1
  s_cmp_lg_u32 s{sq}, 3
  s_cbranch_scc1 K_PST
K_FLAG:
  s_mov_b64 exec, {FMASK}
  buffer_store_dword v{t7}, v{vgn1}, {s(SF,4)}, 0 offen {FLF}
  s_mov_b64 exec, -1
K_PST:""")
    def node_gemm(WA, WB=None):
        for nt in range(3):
            xf = XF + 16*(nt & 1)
            if nt == 0:
                for n2 in range(2):
                    for st in range(4):
                        a(f"  ds_read_b128 {v(XF+16*n2+4*st,4)}, v{vxb} offset:{n2*16*XS + st*64}")
            a(f"  s_waitcnt lgkmcnt({4 if nt == 0 else 5 if nt == 1 else 1})")
            q = QD if nt != 1 else SA
            for st in range(4):
                c = "0" if st == 0 else v(q, 4)
                a(f"  v_mfma_f32_16x16x32_bf16 {v(q,4)}, {v(WA+4*st,4)}, {v(xf+4*st,4)}, {c}")
            if WB is not None:
                for st in range(4):
                    c = "0" if st == 0 else v(U+4*nt, 4)
                    a(f"  v_mfma_f32_16x16x32_bf16 {v(U+4*nt,4)}, {v(WB+4*st,4)}, {v(xf+4*st,4)}, {c}")
            if nt == 0:
                for st in range(4):
                    a(f"  ds_read_b128 {v(XF+4*st,4)}, v{vxb} offset:{2*16*XS + st*64}")
            a(f"""
  s_nop 7
  v_pk_mul_f32 {v(q,2)}, {v(q,2)}, {s(sK,2)}
  v_pk_mul_f32 {v(q+2,2)}, {v(q+2,2)}, {s(sK,2)}
  v_cvt_pk_bf16_f32 v{QD+4+2*(nt&1)}, v{q}, v{q+1}
  v_cvt_pk_bf16_f32 v{QD+5+2*(nt&1)}, v{q+2}, v{q+3}""")
            if nt == 2:
                a(f"  s_mov_b32 exec_lo, 0x00ff00ff\n  s_mov_b32 exec_hi, 0x00ff00ff")
            a(f"  ds_write_b64 v{vqw}, {v(QD+4+2*(nt&1),2)} offset:{nt*16*QS}")
            if nt == 2:
                a("  s_mov_b64 exec, -1")
    assert SB == SA + 2
    def poll(lab, off):
        a(f"""
  s_cmp_lg_u32 s{sW}, 1
  s_cbranch_scc1 {lab}_D
  s_mov_b32 s{sq}, 0
  s_mov_b32 s{sq+1}, {off}
  {"s_sleep %d" % OPT["slp0"] if OPT["slp0"] and off == 0 else ""}
{lab}:
  buffer_load_dwordx2 {v(DUM,2)}, v{vsrow}, {s(SF,4)}, s{sq+1} offen {PLF}
  s_add_u32 s{sq}, s{sq}, 1
  s_waitcnt vmcnt(0)
  v_cmp_ne_u32 vcc, s{sTag}, v{DUM}
  v_cmp_ne_u32 {s(sBad,2)}, s{sTag}, v{DUM+1}
  s_or_b64 vcc, vcc, {s(sBad,2)}
  s_cbranch_scc0 {lab}_D
  {"s_sleep %d" % OPT["slp"] if OPT["slp"] else ""}
  s_cmp_lt_u32 s{sq}, 0x8000
  s_cbranch_scc1 {lab}
{lab}_D:""")
    stamp(a, 5)
    nld = 16 if OPT["lo"] else 12
    a(f"""
  s_lshl_b32 s{sTmp}, s{sW}, 12
  s_add_u32 s{sTmp+1}, s{sTmp}, {WF_UT}
  s_add_u32 s{sUB}, s{sTmp}, {WF_UB}
  s_mov_b32 s{sTmp+2}, {WF_3H}
  s_mov_b32 s{sTmp+3}, {WF_3L}
  s_mov_b32 s{sOV}, 0xaaaaaaaa
  s_cmp_eq_u32 s{sW}, 7
  s_cselect_b32 s{sOV+1}, 0xaaaaa, s{sOV}
  v_min_u32 v{t4}, 2, v{vl}
  v_lshl_add_u32 v{t4}, v{t4}, 2, s{sP}
  v_mov_b32 v{t5}, s{sTag}
  s_mov_b32 s{sq}, 0
  {"s_sleep %d" % OPT["slp0"] if OPT["slp0"] else ""}
""")
    wl = [f"  buffer_load_dwordx4 {v(W2F+4*st,4)}, v{t6}, {s(SW,4)}, s{sTmp} offen offset:{st*1024} sc1" for st in range(4)]
    wl += [f"  buffer_load_dwordx4 {v(WUT+4*st,4)}, v{t6}, {s(SW,4)}, s{sTmp+1} offen offset:{st*1024} sc1" for st in range(4)]
    wl += [f"  buffer_load_dwordx4 {v(W3+4*st,4)}, v{t6}, {s(SW,4)}, s{sTmp+2} offen offset:{st*1024} sc1" for st in range(4)]
    if OPT["lo"]:
        wl += [f"  buffer_load_dwordx4 {v(W3L+4*st,4)}, v{t6}, {s(SW,4)}, s{sTmp+3} offen offset:{st*1024} sc1" for st in range(4)]
    a(f"""
  v_lshlrev_b32 v{t6}, 4, v{vl}
  s_mov_b32 s{sOV+6}, 0
K_CPOLL:
  buffer_load_dwordx4 {v(REC,4)}, v{vcell}, {s(SC,4)}, 0 offen sc1
  buffer_load_dwordx4 {v(REC+4,4)}, v{vcell}, {s(SC,4)}, 0 offen offset:64 sc1
  s_cmp_lg_u32 s{sOV+6}, 0
  s_cbranch_scc1 K_CPOLL1
  buffer_load_dword v{t5}, v{t4}, {s(SF,4)}, 0 offen offset:{(FLN-1)*256 + (125 - (FLN-1)*(128//FLN))*4} sc1
K_CPOLL1:
  s_add_u32 s{sq}, s{sq}, 1
  s_waitcnt vmcnt(0)
  v_cmp_ne_u32 vcc, s{sTag}, v{REC+3}
  v_cmp_ne_u32 {s(sBad,2)}, s{sTag}, v{REC+7}
  s_or_b64 {s(sBad,2)}, vcc, {s(sBad,2)}
  v_cmp_ne_u32 vcc, s{sTag}, v{t5}
  s_and_b64 {s(sBad,2)}, {s(sBad,2)}, {s(sOV,2)}
  s_or_b64 {s(sEx,2)}, {s(sBad,2)}, vcc
  s_cbranch_scc0 K_CPOLLD
  s_cbranch_vccnz K_CPOLL2
  s_cmp_lg_u32 s{sOV+6}, 0
  s_cbranch_scc1 K_CPOLL2
  s_mov_b32 s{sOV+6}, 1""")
    for x in wl: a(x)
    a(f"""
K_CPOLL2:
  {"s_sleep %d" % OPT["slp"] if OPT["slp"] else ""}
  s_cmp_lt_u32 s{sq}, 0x8000
  s_cbranch_scc1 K_CPOLL
K_CPOLLD:
  s_mov_b32 exec_lo, 0xaaaaaaaa
  s_mov_b32 exec_hi, 0xaaaaaaaa
  v_mov_b32 v{REC+3}, 0
  v_mov_b32 v{REC+7}, 0
  s_mov_b64 exec, -1""")
    stamp(a, 6)
    NR = 8
    a(f"""
K_PHASE1:
  v_cmp_le_u32 vcc, 0xfffc0000, v{REC+NR-2}
  s_cbranch_vccz K_NOMARK
  s_and_saveexec_b64 {s(sEx,2)}, vcc
  v_lshrrev_b32 v{t0}, 2, v0                 ; producer
  v_lshrrev_b32 v{t1}, 5, v{t0}
  v_lshlrev_b32 v{t1}, 2, v{t1}
  v_lshlrev_b32 v{t0}, v{t0}, v{vone}
  ds_or_b32 v{t1}, v{t0} offset:{L_FLG+32}
  v_mov_b32 v{REC+NR-2}, 0
  s_mov_b64 exec, {s(sEx,2)}
K_NOMARK:""")
    for k in range(NR):
        if k == 4:
            a(f"""
  v_or3_b32 v{t3}, v{REC+k}, v{REC+k+1}, v{REC+k+2}
  v_or_b32 v{t3}, v{t3}, v{REC+k+3}
  v_cmp_ne_u32 vcc, 0, v{t3}
  s_cbranch_vccz K_P1E""")
        a(f"""
  v_lshlrev_b32 v{NOD+k}, 2, v{REC+k}
  v_and_b32 v{NOD+k}, 0xfc, v{NOD+k}
  v_cmpx_ne_u32 vcc, 0, v{REC+k}
  ds_add_rtn_u32 v{RNK+k}, v{NOD+k}, v{vone} offset:{L_CNT}
  s_mov_b64 exec, -1""")
    a(f"""
K_P1E:
  s_cmp_lg_u32 s{sOV+6}, 0
  s_cbranch_scc1 K_NOWL
  s_mov_b32 s{sOV+6}, 1""")
    for x in wl: a(x)
    a(f"""
K_NOWL:
  v_lshlrev_b32 v{t0}, 2, v{vl}
  v_subrev_u32 v{t4}, s{sStart}, v{vl}
  v_and_b32 v{t4}, 63, v{t4}
  s_waitcnt lgkmcnt(0)
  s_barrier
  ds_read_b32 v{t1}, v{t0} offset:{L_CNT}
  s_waitcnt lgkmcnt(0)
  v_add_u32 v{t1}, 3, v{t1}
  v_bfe_u32 v{t5}, v{t1}, 2, 1               ; left-over quad
  v_lshrrev_b32 v{t6}, 3, v{t1}
  v_lshl_or_b32 v{t1}, v{t5}, 16, v{t6}
  v_mov_b32 v{t2}, v{t1}
  s_nop 1
  v_add_u32_dpp v{t2}, v{t2}, v{t2} row_shr:1 row_mask:0xf bank_mask:0xf
  s_nop 1
  v_add_u32_dpp v{t2}, v{t2}, v{t2} row_shr:2 row_mask:0xf bank_mask:0xf
  s_nop 1
  v_add_u32_dpp v{t2}, v{t2}, v{t2} row_shr:4 row_mask:0xf bank_mask:0xf
  s_nop 1
  v_add_u32_dpp v{t2}, v{t2}, v{t2} row_shr:8 row_mask:0xf bank_mask:0xf
  s_nop 1
  v_add_u32_dpp v{t2}, v{t2}, v{t2} row_bcast:15 row_mask:0xa bank_mask:0xf
  s_nop 1
  v_add_u32_dpp v{t2}, v{t2}, v{t2} row_bcast:31 row_mask:0xc bank_mask:0xf
  s_nop 1
  v_readlane_b32 s{sT}, v{t2}, 63
  v_sub_u32 v{t1}, v{t2}, v{t1}
  s_lshr_b32 s{sq+1}, s{sT}, 16
  s_and_b32 s{sCO}, s{sT}, 0xffff
  s_lshl_b32 s{sq}, s{sCO}, 1                ; quads in the groups of eight
  s_lshr_b32 s{sCO}, s{sCO}, 2
  s_add_u32 s{sT}, s{sq}, s{sq+1}
  s_add_u32 s{sT}, s{sT}, 7
  s_lshr_b32 s{sT}, s{sT}, 3
  v_lshrrev_b32 v{t2}, 16, v{t1}
  v_add_u32 v{t2}, s{sq}, v{t2}              ; quad slot of the left-over quad
  v_and_b32 v{t1}, 0xffff, v{t1}
  v_lshl_or_b32 v{t0}, v{t6}, 16, v{t1}
  v_lshlrev_b32 v{t0}, 3, v{t0}              ; 8*start8 | 8*n8 << 16
  v_lshlrev_b32 v{t7}, 1, v{t6}
  v_sub_u32 v{t7}, v{t2}, v{t7}
  v_lshlrev_b32 v{t7}, 2, v{t7}              ; position base of the left-over quad
  s_cmp_gt_u32 s{sT}, {CAPB}
  s_cbranch_scc1 K_SPLIT""")
    for k0 in (0, 4):
        if k0:
            a(f"""
  v_or3_b32 v{t3}, v{REC+k0}, v{REC+k0+1}, v{REC+k0+2}
  v_or_b32 v{t3}, v{t3}, v{REC+k0+3}
  v_cmp_ne_u32 vcc, 0, v{t3}
  s_cbranch_vccz K_P2E""")
        for k in range(k0, k0+4):
            a(f"  ds_bpermute_b32 v{PF+24+(k&3)}, v{NOD+k}, v{t7}")
            a(f"  ds_bpermute_b32 v{NOD+k}, v{NOD+k}, v{t0}")
        for k in range(k0, k0+4):
            e = PF + 16 + 2*(k & 3)
            a(f"""
  v_lshrrev_b32 v{e}, 10, v{REC+k}
  v_and_b32 v{e}, {hex(0xffffff00 if not OPT['hot'] else 0x1f00)}, v{e}
  v_bfe_u32 v{e+1}, v{REC+k}, 6, 12
  v_lshl_add_u32 v{e+1}, v{e+1}, 5, v{vebase}""")
            if OPT["hot"]: a(f"  v_and_b32 v{e+1}, 0xfe0, v{e+1}")
        a("  s_waitcnt lgkmcnt(0)")
        for k in range(k0, k0+4):
            a(f"  v_cmp_lt_u32_sdwa {s(8+2*(k&3),2)}, v{RNK+k}, v{NOD+k} src0_sel:DWORD src1_sel:WORD_1")
        for k in range(k0, k0+4):
            a(f"  v_and_b32 v{NOD+k}, 0xffff, v{NOD+k}")
        for k in range(k0, k0+4):
            a(f"  v_cndmask_b32 v{NOD+k}, v{PF+24+(k&3)}, v{NOD+k}, {s(8+2*(k&3),2)}")
        for k in range(k0, k0+4):
            e = PF + 16 + 2*(k & 3)
            a(f"""
  v_add_lshl_u32 v{NOD+k}, v{NOD+k}, v{RNK+k}, 3
  v_cmpx_ne_u32 vcc, 0, v{REC+k}
  ds_write_b64 v{NOD+k}, {v(e,2)}
  s_mov_b64 exec, -1""")
    a(f"""
K_P2E:
  v_lshlrev_b32 v{t2}, 2, v{t2}
  v_cmpx_ne_u32 vcc, 0, v{t5}
  ds_write_b32 v{t2}, v{t4} offset:{L_GN}
  s_mov_b64 exec, -1
  v_add_lshl_u32 v{t2}, v{t1}, v{t6}, 3
  v_lshl_add_u32 v{t1}, v{t1}, 1, s{sW}
  v_lshlrev_b32 v{t1}, 2, v{t1}
K_GNL:
  v_cmpx_lt_u32 vcc, v{t1}, v{t2}
  ds_write_b32 v{t1}, v{t4} offset:{L_GN}
  v_add_u32 v{t1}, 32, v{t1}
  v_cmpx_lt_u32 vcc, v{t1}, v{t2}
  ds_write_b32 v{t1}, v{t4} offset:{L_GN}
  v_add_u32 v{t1}, 32, v{t1}
  v_cmpx_lt_u32 vcc, v{t1}, v{t2}
  s_cbranch_execnz K_GNL
  s_mov_b64 exec, -1
  s_add_u32 s{sCnt}, s{sT}, 7
  s_sub_u32 s{sCnt}, s{sCnt}, s{sW}
  s_lshr_b32 s{sCnt}, s{sCnt}, 3
  s_add_u32 s{sCO}, s{sCO}, 7
  s_sub_u32 s{sCO}, s{sCO}, s{sW}
  s_lshr_b32 s{sCO}, s{sCO}, 3
  {("s_mov_b32 s%d, 40" % sCnt + chr(10) + "  s_movk_i32 s%d, 320" % sT + chr(10) + "  s_mov_b32 s%d, 40" % sCO) if OPT["bench"] else ""}
""")
    stamp(a, 4)
    a(f"""
  s_cmp_eq_u32 s{sFirst}, 0
  s_cbranch_scc1 K_POLL2_D""")
    poll("K_POLL2", FHALF)
    a("  s_waitcnt lgkmcnt(0)\n  s_barrier")
    stamp(a, 7)
    dsc = " sc1" if OPT["dsc"] else ""
    def dma_issue():
        L = []
        for j in range(8):
            d = DO + (j & 1)
            L.append([f"  s_add_u32 m0, s{sStg}, {j*1040}",
                      f"  v_add_u32_dpp v{d}, v{ENT}, v{vchunk} row_newbcast:{2*j} row_mask:0xf bank_mask:0xf",
                      f"  buffer_load_dwordx4 v{d}, {s(SP,4)}, 0 offen{dsc} lds" if not OPT["nodma"] else "  s_nop 0"])
        L.append([f"  s_add_u32 m0, s{sStg}, 8320",
                  f"  v_add_u32 v{DO}, v{ENT+1}, v{vechunk}",
                  f"  buffer_load_dwordx4 v{DO}, {s(SE,4)}, 0 offen lds" if not (OPT["nodma"] or OPT["noe"]) else "  s_nop 0"])
        return L
    ndma = 0 if OPT["nodma"] else 8 if OPT["noe"] else 9
    def frag_reads():
        L = []
        for st in range(8):
            L.append(f"  ds_read_b128 {v(PF+4*st,4)}, v{vAlo if st < 4 else vAhi} offset:{32*(st&3)}")
        L.insert(2, f"  ds_read_b128 {v(EF,4)}, v{vEF}")
        return L
    def bq_reads():
        return [f"  ds_read_b64_tr_b16 {v(BQ+nq*t,2)}, v{vqa} offset:{64*t}" for t in range(4)]
    def chain(t, D):
        L = [f"  v_mfma_f32_32x32x16_bf16 {v(D,16)}, {v(EF,4)}, {v(W3+4*t,4)}, 0"]
        if OPT["lo"]:
            L.append(f"  v_mfma_f32_32x32x16_bf16 {v(D,16)}, {v(EF,4)}, {v(W3L+4*t,4)}, {v(D,16)}")
        L.append(f"  v_mfma_f32_32x32x16_bf16 {v(D,16)}, {v(PF+8*t,4)}, {v(I0,4)}, {v(D,16)}")
        L.append(f"  v_mfma_f32_32x32x16_bf16 {v(D,16)}, {v(PF+8*t+4,4)}, {v(I1,4)}, {v(D,16)}")
        if OPT["k8"]:
            L.append(f"  v_mfma_f32_32x32x8bf16_1k {v(D,16)}, {v(AQ,2)}, {v(BQ+2*t,2)}, {v(D,16)}")
        else:
            L.append(f"  v_mfma_f32_32x32x16_bf16 {v(D,16)}, {v(AQ,4)}, {v(BQ+4*t,4)}, {v(D,16)}")
        return L

    a(f"  ds_read_b64 {v(ENT,2)}, v{vent}\n  s_waitcnt lgkmcnt(0)")
    for x in dma_issue(): a("\n".join(x))
    a(f"  ds_read_b64 {v(ENT,2)}, v{vent} offset:2048")
    a(f"""
  s_cmp_eq_u32 s{sFirst}, 0
  s_cbranch_scc1 K_NOGEMM0
  s_mov_b32 s{sFirst}, 0
  s_waitcnt vmcnt({ndma}) lgkmcnt(0)""")
    node_gemm(W2F, WUT)
    a(f"  v_lshlrev_b32 v{t4}, 4, v{vl}")
    for st in range(4):
        a(f"  buffer_load_dwordx4 {v(WUB+4*st,4)}, v{t4}, {s(SW,4)}, s{sUB} offen offset:{st*1024} sc1")
    a(f"""
  s_or_b32 s{sq}, s2, s{sW}
  s_cmp_lg_u32 s{sq}, 0
  s_cbranch_scc1 K_NONONCE
  s_mov_b64 exec, 1
  v_mov_b32 v{t0}, {FNON}
  v_mov_b32 v{t1}, s{sTag}
  buffer_store_dword v{t1}, v{t0}, {s(SF,4)}, 0 offen
  s_mov_b64 exec, -1
  s_waitcnt vmcnt(0)
K_NONONCE:
  s_waitcnt lgkmcnt(0)
  s_barrier
K_NOGEMM:
  ds_read_b32 v{vgn1}, v{vgq}
  ds_read_b32 v{vsrow}, v{vrow}
  ds_read_b128 {v(GN,4)}, v{vga}
  s_waitcnt vmcnt(4)""")
    stamp(a, 8, 96)
    for x in frag_reads(): a(x)
    a(f"""
  s_waitcnt lgkmcnt(9)
  v_mad_u32_u24 v{vqa}, v{vgn1}, s{sQS}, v{vqlane}
  v_lshrrev_b64 {v(AQ,2)}, v{vsrow}, {v(PAT,2)}""")
    for x in bq_reads(): a(x)
    a("  s_waitcnt lgkmcnt(0)")
    for x in dma_issue(): a("\n".join(x))
    for x in chain(0, D0): a(x)
    if OPT["prio"]:
        a(f"  s_cmp_lt_u32 s{sW}, 4\n  s_cbranch_scc1 K_PR\n  s_setprio 1\nK_PR:")
    a(f"""
  s_nop 7
  s_nop 3
  s_cmp_eq_u32 s{sCnt}, 0
  s_cbranch_scc1 K_LOOPEND
  s_cmp_lg_u32 s{sMode}, 0
  s_cbranch_scc1 K_SAFE
  {"s_branch K_QUAD" if not OPT["octo"] else ""}
  s_sub_u32 s{sCnt}, s{sCnt}, s{sCO}
  s_cmp_eq_u32 s{sCO}, 0
  s_cbranch_scc1 K_QUAD""")

    def p(r): return v(r, 2)
    def octet_fast(d, e, t, r, sres):
        ex = [f"  v_exp_f32 v{e+i}, v{d+i}" for i in range(8)]
        L = [f"  v_pk_add_f32 {p(t)}, {p(e)}, 1.0 op_sel_hi:[1,0]",
             f"  v_pk_add_f32 {p(t+2)}, {p(e+4)}, 1.0 op_sel_hi:[1,0]",
             f"  v_pk_fma_f32 {p(t+4)}, {p(d)}, {p(e+2)}, {p(d)}",
             f"  v_pk_fma_f32 {p(t+6)}, {p(d+4)}, {p(e+6)}, {p(d+4)}",
             f"  v_pk_fma_f32 {p(e)}, {p(t)}, {p(e+2)}, {p(t)}",
             f"  v_pk_fma_f32 {p(e+4)}, {p(t+2)}, {p(e+6)}, {p(t+2)}",
             f"  v_pk_fma_f32 {p(t+4)}, {p(d+2)}, {p(t)}, {p(t+4)}",
             f"  v_pk_fma_f32 {p(t+6)}, {p(d+6)}, {p(t+2)}, {p(t+6)}",
             f"  v_pk_mul_f32 {p(t)}, {p(e)}, {p(e+4)}",
             f"  v_pk_mul_f32 {p(t+4)}, {p(t+4)}, {p(e+4)}",
             f"  v_rcp_f32 v{r}, v{t}",
             f"  v_rcp_f32 v{r+1}, v{t+1}",
             f"  v_pk_fma_f32 {p(t+4)}, {p(t+6)}, {p(e)}, {p(t+4)}",
             f"  v_pk_mul_f32 {p(sres)}, {p(t+4)}, {p(r)}"]
        return ex, L
    def octet_safe(d, e, t, r, sres):
        ex = [f"  v_exp_f32 v{e+i}, v{d+i}" for i in range(8)]
        L = [f"  v_pk_add_f32 {p(e+2*i)}, {p(e+2*i)}, 1.0 op_sel_hi:[1,0]" for i in range(4)]
        L += [f"  v_rcp_f32 v{t+i}, v{e+i}" for i in range(8)]
        L += [f"  v_pk_mul_f32 {p(sres)}, {p(d)}, {p(t)}"]
        L += [f"  v_pk_fma_f32 {p(sres)}, {p(d+2*i)}, {p(t+2*i)}, {p(sres)}" for i in range(1, 4)]
        return ex, L
    def zipl(x, y):
        o = []
        for i in range(max(len(x), len(y))):
            if i < len(x): o.append(x[i])
            if i < len(y): o.append(y[i])
        return o
    def adds(t, kind):
        if OPT["noadd"]: return [f"  ds_read_b32 v{DUM}, v{vgq}"] * (2 if kind == "octo" else 4)
        if kind == "octo": return [f"  ds_add_f64 v{AD+2*xy}, {v(CV+2*xy,2)} offset:{256*t}" for xy in range(2)]
        return [f"  ds_add_f64 v{AD+2*xy+o}, {v(CV+2*(2*o+xy),2)} offset:{256*t}" for o in range(2) for xy in range(2)]
    def block_body(kind, u, nun):
        oc = octet_safe if kind == "safe" else octet_fast
        nadd = 2 if kind == "octo" else 4
        B = []
        for t in range(4):
            D = D0 if t % 2 == 0 else D1
            Dn = D1 if t % 2 == 0 else D0
            exa, La = oc(D, EA, TA, RA, SA)
            exb, Lb = oc(D+8, EB, TB, RB, SB)
            ex = exa + exb
            ch = chain((t+1) % 4, Dn)
            late = []
            if kind == "octo":
                keep = lambda L: [x for x in L[:-1] if "v_rcp" not in x]
                dk = DK + 2*(t & 1)
                pk = zipl(keep(La), keep(Lb))
                pk = pk[:-4] + [f"  v_pk_mul_f32 {p(dk)}, {p(TA)}, {p(TB)}"] + pk[-4:-2] + \
                     [f"  v_rcp_f32 v{RA}, v{dk}", f"  v_rcp_f32 v{RA+1}, v{dk+1}"] + pk[-2:] + \
                     [f"  v_pk_mul_f32 {p(TA+4)}, {p(TA+4)}, {p(TB)}"]
                if t & 1: pk.append(f"  v_pk_fma_f32 {p(MAC)}, {p(DK)}, {p(DK+2)}, {p(MAC)}")
                pk += [f"  v_pk_fma_f32 {p(TA+4)}, {p(TB+4)}, {p(TA)}, {p(TA+4)}",
                       f"  v_pk_mul_f32 {p(SA)}, {p(TA+4)}, {p(RA)}"]
                fin = [f"  v_cvt_f64_f32 {v(CV+2*xy,2)}, v{SA+xy}" for xy in range(2)]
                adr = (0, 2)
            else:
                pk = zipl(La, Lb)
                if kind == "quad":
                    idx = max(i for i, x in enumerate(pk) if x.startswith(f"  v_pk_mul_f32 {p(TB)}, {p(EB)}"))
                    pk.insert(idx+1, f"  v_pk_fma_f32 {p(MAC)}, {p(TA)}, {p(TB)}, {p(MAC)}")
                fin = [f"  v_cvt_f64_f32 {v(CV+2*(2*o+xy),2)}, v{S+xy}" for o, S in ((0, SA), (1, SB)) for xy in range(2)]
                adr = range(4)
            fin += adds(t, kind)
            if t == 0:
                pk = pk[:4] + [f"  v_mad_u32_u24 v{AD+i}, v{GN+i}, s{sAS}, v{vacl}" for i in adr] + pk[4:]
            if t == 1:
                pk = pk[:8] + [f"  ds_read_b64 {v(ENT,2)}, v{vent} offset:{4096+2048*u}",
                      f"  ds_read_b32 v{vgn1}, v{vgq} offset:{256+256*u}",
                      f"  ds_read_b32 v{vsrow}, v{vrow} offset:{2048+2048*u}",
                      f"  ds_read_b128 {v(GN,4)}, v{vga} offset:{256+256*u}"] + pk[8:]
            if t == 3:
                B.append(f"  s_waitcnt lgkmcnt({nadd})")
            dma = dma_issue() if t == 3 else []
            per = 16 // len(ch); e = 0
            for i, m in enumerate(ch):
                B.append(m)
                n = per if i < len(ch)-1 else 16 - e
                B += ex[e:e+2]
                if late: B.append(late.pop(0))
                B += ex[e+2:e+n]; e += n
                if OPT["dmapos"] == 0:
                    for _ in range(2):
                        if dma: B += dma.pop(0)
            if t == 2:
                mid = [f"  s_waitcnt vmcnt(0) lgkmcnt({nadd})",
                       f"  v_mad_u32_u24 v{vqa}, v{vgn1}, s{sQS}, v{vqlane}"]
                rd = frag_reads() + bq_reads()
                aq = [f"  v_lshrrev_b64 {v(AQ,2)}, v{vsrow}, {v(PAT,2)}"]
                if OPT["rdgap"] == 0: B += mid + rd + aq + pk
                else:
                    q = []
                    for i, x in enumerate(aq + pk):
                        if rd and i % OPT["rdgap"] == 0: q.append(rd.pop(0))
                        q.append(x)
                    B += mid + q + rd
            elif t == 3:
                inc = []
                if u == nun - 1 and OPT["bench"]:
                    inc = [f"  v_add_u32 v{DUM+i}, {2048*nun}, v{vent}" for i in range(4)]
                elif u == nun - 1:
                    inc = incs(nun)
                pk = pk + inc
                if OPT["dmapos"] == 1:
                    q = []
                    for i, x in enumerate(pk):
                        if dma and i % 3 == 0: q += dma.pop(0)
                        q.append(x)
                    pk = q
                for x in dma: B += x
                B += pk
            else:
                B += pk
            B += fin
        return B
    def incs(n):
        return [f"  v_add_u32 v{vent}, {2048*n}, v{vent}", f"  v_add_u32 v{vrow}, {2048*n}, v{vrow}",
                f"  v_add_u32 v{vgq}, {256*n}, v{vgq}", f"  v_add_u32 v{vga}, {256*n}, v{vga}"]
    def loop(kind):
        lab = {"safe": "K_SAFE", "quad": "K_QUAD", "octo": "K_FAST"}[kind]
        nun = OPT["unroll"] if kind == "octo" else 1
        cnt = sCO if kind == "octo" else sCnt
        L = []
        for u in range(nun):
            L += block_body(kind, u, nun)
            L.append(f"  s_sub_u32 s{cnt}, s{cnt}, 1")
            L.append(f"  s_cmp_lg_u32 s{cnt}, 0")
            L.append(f"  s_cbranch_scc1 {lab}" if u == nun - 1 else f"  s_cbranch_scc0 K_OX{u}")
        ab = OPT["abl"]
        if ab & 1: L = [x for x in L if not ("v_mfma" in x and (f", {v(I0,4)}," in x or f", {v(I1,4)}," in x))]
        if ab & 2: L = [x for x in L if "v_mfma_f32_32x32x8" not in x and "tr_b16" not in x]
        if ab & 4: L = [x.replace("v_exp_f32", "v_mov_b32") for x in L]
        if ab & 8: L = [x for x in L if "v_pk_" not in x]
        if ab & 16: L = [x for x in L if "v_mfma" not in x]
        if ab & 32: L = [x for x in L if "ds_read_b128" not in x]
        if ab & 64: L = [x for x in L if "v_exp" not in x]
        if ab & 128:
            M = []
            for x in L:
                if "v_mfma" in x and f", {v(I1,4)}," in x: continue
                if "v_mfma" in x and f", {v(I0,4)}," in x:
                    m = re.match(r"\s*v_mfma_f32_32x32x16_bf16 (v\[\d+:\d+\]), v\[(\d+):", x)
                    M.append(f"  v_smfmac_f32_32x32x32_bf16 {m.group(1)}, {v(I0,4)}, {v(int(m.group(2)),8)}, v{vone}"); continue
                m = re.match(r"\s*ds_read_b128 v\[(\d+):\d+\], v(\d+) offset:(\d+)", x)
                if m and PF <= int(m.group(1)) < PF + 32:
                    r0 = int(m.group(1))
                    M.append(f"  ds_read_b64_tr_b16 {v(r0,2)}, v{vqa} offset:{m.group(3)}")
                    M.append(f"  ds_read_b64_tr_b16 {v(r0+2,2)}, v{vqa} offset:{int(m.group(3))+128}"); continue
                M.append(x)
            L = M
        if ab & 256:
            M = []
            for x in L:
                if "v_mfma" in x and (f", {v(I1,4)}," in x or f", {v(I0,4)}," in x): continue
                if "v_mfma_f32_32x32x16" in x and x.rstrip().endswith(", 0"): x = x.rstrip()[:-1] + v(PF, 16)
                m = re.match(r"\s*ds_read_b128 v\[(\d+):\d+\], v(\d+) offset:(\d+)", x)
                if m and PF <= int(m.group(1)) < PF + 32:
                    for q in range(8): M.append(f"  ds_read_u16_d16_hi v{PF+(int(m.group(1))+q)%32}, v{vacl} offset:{64*q}")
                    continue
                M.append(x)
            L = M
        if OPT["align"]: L = align8(L)
        a(f".p2align 6\n{lab}:")
        for x in L: a(x)
    loop("octo")
    a(f"""
K_OXE:
  s_cmp_lg_u32 s{sCnt}, 0
  s_cbranch_scc1 K_QUAD""")
    a(f"""
K_LOOPEND:""")
    a(f"""
  s_waitcnt vmcnt(0) lgkmcnt(0)
  s_barrier""")
    stamp(a, 9, 98)
    a(f"""
  s_cmp_lg_u32 s{sKind}, 0
  s_cbranch_scc1 K_NEXT
K_CELLSDONE:
  v_mov_b32 v{t0}, {L_FLG+32}
  ds_read_b128 {v(CV,4)}, v{t0}
K_CONV:
  s_mul_i32 s{sTmp}, s{sW}, {AS}
  s_add_u32 s{sTmp}, s{sTmp}, {L_ACC}
  v_lshlrev_b32 v{t1}, 4, v{vl}
  v_add_u32 v{t1}, s{sTmp}, v{t1}""")
    for k in range(5):
        a(f"  ds_read_b128 {v(D0+4*k,4)}, v{t1} offset:{k*8*AS}")
    a(f"""
  s_mul_i32 s{sTmp}, s{sW}, {XS}
  s_add_u32 s{sTmp}, s{sTmp}, {L_X}
  v_lshlrev_b32 v{t2}, 2, v{vl}
  v_add_u32 v{t2}, s{sTmp}, v{t2}
  s_cmp_ge_u32 s{sKind}, 3
  s_cbranch_scc1 K_CONV2
  s_waitcnt lgkmcnt(5)
  v_or3_b32 v{t0}, v{CV}, v{CV+1}, v{CV+2}
  v_or_b32 v{t0}, v{t0}, v{CV+3}
  v_cmp_ne_u32 vcc, 0, v{t0}
  s_cbranch_vccnz K_STARTOV
K_CONV2:
  s_mov_b32 s{sTmp}, 0x71800000              ; 2^100
  v_cmp_nle_f32 {s(sBad,2)}, v{MAC}, s{sTmp}
  v_cmp_nle_f32 vcc, v{MAC+1}, s{sTmp}
  s_or_b64 {s(sBad,2)}, {s(sBad,2)}, vcc
  s_movk_i32 s{sTmp}, 0x207""")
    for k in range(5):
        a(f"""
  s_waitcnt lgkmcnt({4-k})
  v_cvt_f32_f64 v{EA+2*k}, {v(D0+4*k,2)}
  v_cvt_f32_f64 v{EA+2*k+1}, {v(D0+4*k+2,2)}
  v_cmp_class_f32 vcc, v{EA+2*k}, s{sTmp}
  s_or_b64 {s(sBad,2)}, {s(sBad,2)}, vcc
  v_cmp_class_f32 vcc, v{EA+2*k+1}, s{sTmp}
  s_or_b64 {s(sBad,2)}, {s(sBad,2)}, vcc
  v_cvt_pk_bf16_f32 v{EB+k}, v{EA+2*k}, v{EA+2*k+1}""")
    for k in range(5):
        a(f"  ds_write_b32 v{t2}, v{EB+k} offset:{k*8*XS}")
    a(f"""
  s_cmp_eq_u64 {s(sBad,2)}, 0
  s_cbranch_scc1 K_OKW
  v_mov_b32 v{t0}, {L_FLG}
  ds_write_b32 v{t0}, v{vone}
K_OKW:
  s_waitcnt lgkmcnt(0)
  s_barrier
  v_mov_b32 v{t0}, {L_FLG}
  ds_read_b32 v{t0}, v{t0}""")
    for nt in range(2):
        for st in range(4):
            a(f"  ds_read_b128 {v(XF+16*nt+4*st,4)}, v{vxb} offset:{nt*16*XS + st*64}")
    a(f"""
  s_waitcnt lgkmcnt(8)
  v_readfirstlane_b32 s{sTmp}, v{t0}
  s_cmp_gt_u32 s{sTmp}, s{sMode}
  {"s_cbranch_scc1 K_RESTART" if not EXP else "s_nop 0"}
  s_waitcnt lgkmcnt(4)""")
    for st in range(4):
        c = "0" if st == 0 else v(D0, 4)
        a(f"  v_mfma_f32_16x16x32_bf16 {v(D0,4)}, {v(WUB+4*st,4)}, {v(XF+4*st,4)}, {c}")
    for st in range(4):
        a(f"  ds_read_b128 {v(D1+4*st,4)}, v{vxb} offset:{2*16*XS + st*64}")
    a("  s_waitcnt lgkmcnt(4)")
    for st in range(4):
        c = "0" if st == 0 else v(D0+4, 4)
        a(f"  v_mfma_f32_16x16x32_bf16 {v(D0+4,4)}, {v(WUB+4*st,4)}, {v(XF+16+4*st,4)}, {c}")
    a("  s_waitcnt lgkmcnt(0)")
    for st in range(4):
        c = "0" if st == 0 else v(D0+8, 4)
        a(f"  v_mfma_f32_16x16x32_bf16 {v(D0+8,4)}, {v(WUB+4*st,4)}, {v(D1+4*st,4)}, {c}")
    a(f"""
  s_mov_b32 s{sK}, {NLN2}
  s_mov_b32 s{sK+1}, {NLN2}
  s_mov_b32 s{sTmp}, {NLOG2E}
  s_mov_b32 s{sTmp+1}, {NLOG2E}
  v_and_b32 v{t0}, 15, v{vl}
  v_lshlrev_b32 v{t0}, 8, v{t0}
  v_lshrrev_b32 v{t1}, 4, v{vl}
  v_lshl_add_u32 v{t0}, v{t1}, 3, v{t0}
  s_lshl_b32 s{sTmp+2}, s{sW}, 5
  v_add_u32 v{t0}, s{sTmp+2}, v{t0}
  v_add_u32 v{t1}, 4096, v{t0}
  v_add_u32 v{t2}, 8192, v{t0}""")
    for nt in range(3):
        d = D0 + 4*nt
        a(f"""
  v_pk_fma_f32 {p(d)}, {p(d)}, {s(sK,2)}, {p(U+4*nt)}
  v_pk_fma_f32 {p(d+2)}, {p(d+2)}, {s(sK,2)}, {p(U+4*nt+2)}
  v_pk_mul_f32 {p(EA)}, {p(d)}, {s(sTmp,2)}
  v_pk_mul_f32 {p(EA+2)}, {p(d+2)}, {s(sTmp,2)}""")
        for i in range(4): a(f"  v_exp_f32 v{EA+i}, v{EA+i}")
        a(f"  s_nop 0\n  v_pk_add_f32 {p(EA)}, {p(EA)}, 1.0 op_sel_hi:[1,0]\n  v_pk_add_f32 {p(EA+2)}, {p(EA+2)}, 1.0 op_sel_hi:[1,0]")
        for i in range(4): a(f"  v_rcp_f32 v{EA+i}, v{EA+i}")
        a(f"""
  s_nop 0
  v_pk_mul_f32 {p(d)}, {p(d)}, {p(EA)}
  v_pk_mul_f32 {p(d+2)}, {p(d+2)}, {p(EA+2)}
  v_cvt_pk_bf16_f32 v{EB+2*nt}, v{d}, v{d+1}
  v_cvt_pk_bf16_f32 v{EB+2*nt+1}, v{d+2}, v{d+3}
  buffer_store_dwordx2 {v(EB+2*nt,2)}, v{t0+nt}, {s(SO,4)}, 0 offen""")
    if OPT["stamp"]:
        a(f"""
  s_waitcnt vmcnt(0)
  s_memrealtime s[4:5]
  s_waitcnt lgkmcnt(0)
  s_lshl_b32 s6, s2, 3
  s_add_u32 s6, s6, s{sW}
  s_lshl_b32 s6, s6, 6
  s_add_u32 s6, s6, {WS_STAMP}
  s_add_u32 s6, s{pWS}, s6
  s_addc_u32 s7, s{pWS+1}, 0
  s_mov_b64 exec, 1
  v_mov_b32 v1, 0""")
        for i, r in enumerate([80+2*i for i in range(8)] + [96, 98, 4]):
            pass
        regs = [80, 82, 84, 86, 88, 90, 92, 94, 8, 9, 4, 10, 11, sT]
        for i, r in enumerate(regs):
            a(f"  v_mov_b32 v2, s{r}\n  global_store_dword v1, v2, s[6:7] offset:{4*i}")
    a(f"""
K_END:
  s_endpgm
""")
    a(f"""
K_PREP:
  s_sub_u32 s{sq}, s2, {2*G}
  s_lshl_b32 s{sq}, s{sq}, 14
  s_lshl_b32 s{sq+1}, s{sW}, 12
  s_add_u32 s{sq}, s{sq}, s{sq+1}
  v_lshlrev_b32 v{t0}, 4, v{vl}
  v_mov_b32 v{t7}, s{sTag}
  s_waitcnt vmcnt({10+NA})
  s_barrier""")
    wtr(PF, vqa)
    a("  s_waitcnt lgkmcnt(0)")
    for st in range(4):
        a(f"  buffer_store_dwordx4 {v(PF+4*st,4)}, v{t0}, {s(SW,4)}, s{sq} offen offset:{st*1024} sc1")
    a(f"""
  s_lshr_b32 s{sq}, s{sW}, 2
  s_add_u32 s{sq}, s{sq}, s2
  s_cmp_lg_u32 s{sq}, {2*G}
  s_cbranch_scc1 K_PREPD
  s_mov_b32 s{sq+1}, {NLOG2E}
  s_lshl_b32 s{sq}, s{sW}, 10
  s_waitcnt vmcnt({6+NA})""")
    for jj in range(8):
        a(f"  v_lshlrev_b32 v{D0+jj}, 16, v{D0+jj}\n  v_mul_f32 v{D0+jj}, s{sq+1}, v{D0+jj}")
    for i in range(4):
        a(f"  v_cvt_pk_bf16_f32 v{D0+8+i}, v{D0+2*i}, v{D0+1+2*i}")
    for i in range(4):
        a(f"""
  v_lshlrev_b32 v{t2}, 16, v{D0+8+i}
  v_and_b32 v{t3}, 0xffff0000, v{D0+8+i}
  v_sub_f32 v{t2}, v{D0+2*i}, v{t2}
  v_sub_f32 v{t3}, v{D0+1+2*i}, v{t3}
  v_cvt_pk_bf16_f32 v{D0+12+i}, v{t2}, v{t3}""")
    a(f"""
  s_add_u32 s{sq+1}, s{sq}, {WF_3L}
  s_add_u32 s{sq}, s{sq}, {WF_3H}
  buffer_store_dwordx4 {v(D0+8,4)}, v{t0}, {s(SW,4)}, s{sq} offen sc1
  buffer_store_dwordx4 {v(D0+12,4)}, v{t0}, {s(SW,4)}, s{sq+1} offen sc1
K_PREPD:""")
    own_x(4+NA)
    a(f"""
  s_waitcnt vmcnt(0)
  s_barrier
  s_cmp_eq_u32 s{sW}, 0
  s_cbranch_scc1 K_FLAG
  s_branch K_PST""")
    a(f"""
K_OVF:
  s_waitcnt lgkmcnt(0)
  s_barrier
  s_mul_i32 s{sq+1}, s2, {OVSTR//2}
  s_add_u32 s{sq+1}, s{sq+1}, 64
  v_mov_b32 v{t5}, {L_FLG+8}
  v_mov_b32 v{t6}, -1""")
    for j in range(5):
        a(f"""
  v_cmp_le_u32 vcc, {CAP-1}, v{RK+j}
  s_and_b64 exec, exec, vcc
  s_cbranch_execz K_OV{j}
  v_add_u32 v{t1}, {L_BCNT}, v{B4+j}
  ds_read_b32 v{t1}, v{t1}
  s_waitcnt lgkmcnt(0)
  v_cmp_ne_u32 vcc, {CAP}, v{t1}
  s_nop 1
  v_cndmask_b32 v{t3}, v{SS_+j}, v{t6}, vcc
  ds_write_b32 v{CA+j}, v{t3} offset:{CELLB-8}
  s_and_b64 exec, exec, vcc
  s_cbranch_execz K_OV{j}
  ds_add_rtn_u32 v{t1}, v{t5}, v{vone}
  v_mov_b32 v{CV}, v{SS_+j}
  v_lshrrev_b32 v{CV+1}, 2, v{B4+j}
  s_waitcnt lgkmcnt(0)
  v_lshl_add_u32 v{t1}, v{t1}, 3, s{sq+1}
  buffer_store_dwordx2 {v(CV,2)}, v{t1}, {s(SV,4)}, 0 offen sc1
  s_waitcnt vmcnt(0)
K_OV{j}:
  s_mov_b64 exec, -1""")
    a(f"""
  s_waitcnt lgkmcnt(0)
  s_barrier
  ds_read_b32 v{t1}, v{t5}
  s_sub_u32 s{sq+1}, s{sq+1}, 64
  v_mov_b32 v{t3}, s{sq+1}
  v_mov_b32 v{t2}, 0
  s_waitcnt lgkmcnt(0)
  buffer_store_dword v{t1}, v{t3}, {s(SV,4)}, 0 offen sc1
  s_waitcnt vmcnt(0)
  s_branch K_OVFDONE""")
    for u in range(OPT["unroll"] - 1):
        a(f"K_OX{u}:\n  s_cmp_eq_u32 s{sCnt}, 0\n  s_cbranch_scc1 K_LOOPEND")
        for x in incs(u + 1): a(x)
        a("  s_branch K_QUAD")
    loop("quad")
    a("  s_branch K_LOOPEND")
    a("K_TEXTEND:")
    loop("safe")
    a("  s_branch K_LOOPEND")
    a(f"""
K_NOGEMM0:
  s_waitcnt vmcnt(0)
  s_branch K_NOGEMM
K_RESTART:
  s_mov_b32 s{sMode}, 1
  s_mov_b32 s{sKind}, 0
  s_waitcnt lgkmcnt(0)
  s_barrier
  v_mov_b32 v{CV}, 0
  v_mov_b32 v{CV+1}, 0
  v_mov_b32 v{CV+2}, 0
  v_mov_b32 v{CV+3}, 0""")
    for j in range(5):
        a(f"  ds_write_b128 v{vt16}, {v(CV,4)} offset:{L_ACC + j*8192}")
    a(f"""
  v_cmp_gt_u32 vcc, {(40*AS-5*8192)//16}, v0
  s_and_saveexec_b64 {s(sEx,2)}, vcc
  ds_write_b128 v{vt16}, {v(CV,4)} offset:{L_ACC + 5*8192}
  s_mov_b64 exec, {s(sEx,2)}
  s_branch K_RELOAD
K_SPLIT:
  s_mov_b32 s{sKind}, 1
  s_waitcnt lgkmcnt(0)
  s_barrier
  s_branch K_RELOAD
K_NEXT:
  s_cmp_eq_u32 s{sKind}, 4
  s_cbranch_scc1 K_NEXTOV
  s_cmp_eq_u32 s{sKind}, 3
  s_cbranch_scc1 K_OVPART1
  s_cmp_eq_u32 s{sKind}, 2
  s_cbranch_scc1 K_CELLSDONE
  s_mov_b32 s{sKind}, 2
K_RELOAD:
  v_lshrrev_b32 v{t1}, 2, v0
  s_mov_b32 s{sq}, {CH*32}
  v_mul_u32_u24 v{vebase}, s{sq}, v{t1}
  s_waitcnt vmcnt(0)""")
    for k in range(2):
        a(f"  buffer_load_dwordx4 {v(REC+4*k,4)}, v{vcell}, {s(SC,4)}, 0 offen offset:{64*k} sc1")
    a(f"""
  s_waitcnt vmcnt(0)
  s_mov_b32 exec_lo, 0xaaaaaaaa
  s_mov_b32 exec_hi, 0xaaaaaaaa
  v_mov_b32 v{REC+3}, 0
  v_mov_b32 v{REC+7}, 0
  s_mov_b64 exec, -1
  s_cmp_eq_u32 s{sKind}, 0
  s_cbranch_scc1 K_ROUND
  s_lshr_b32 s{sq}, s{sW}, 2
  s_add_u32 s{sq}, s{sq}, 1
  s_cmp_eq_u32 s{sq}, s{sKind}
  s_cbranch_scc1 K_ROUND""")
    for k in range(NR): a(f"  v_mov_b32 v{REC+k}, 0")
    a(f"""
K_ROUND:
  v_mov_b32 v{CV}, 0
  v_mov_b32 v{CV+1}, 0
  v_mov_b32 v{CV+2}, 0
  v_mov_b32 v{CV+3}, 0
  v_cmp_gt_u32 vcc, {(L_FLG-L_GN)//16}, v0
  s_and_saveexec_b64 {s(sEx,2)}, vcc
  ds_write_b128 v{vt16}, {v(CV,4)} offset:{L_GN}
  s_mov_b64 exec, {s(sEx,2)}""")
    prefill()
    a(f"""
  v_and_b32 v{vent}, 2047, v{vent}
  v_and_b32 v{vrow}, 2047, v{vrow}
  v_subrev_u32 v{vga}, {L_GN}, v{vga}
  v_and_b32 v{vga}, 255, v{vga}
  v_add_u32 v{vga}, {L_GN}, v{vga}
  v_and_b32 v{t2}, 12, v{vl}
  v_add_u32 v{vgq}, v{vga}, v{t2}
  s_waitcnt lgkmcnt(0)
  s_barrier
  s_branch K_PHASE1
K_STARTOV:""")
    for i in range(4): a(f"  v_readfirstlane_b32 s{sOV+i}, v{CV+i}")
    a(f"""
  s_mov_b32 s{sKind}, 4
  s_waitcnt lgkmcnt(0)
K_NEXTOV:""")
    for i in range(2):
        a(f"""
  s_ff1_i32_b64 s{sP}, {s(sOV+2*i,2)}
  s_cmp_eq_u32 s{sP}, -1
  s_cbranch_scc1 K_OVN{i}
  s_bitset0_b64 {s(sOV+2*i,2)}, s{sP}
  s_add_u32 s{sP}, s{sP}, {64*i}
  s_branch K_OVGO
K_OVN{i}:""")
    a(f"""
  s_branch K_CONV
K_OVGO:
  s_mov_b32 s{sKind}, 3
  v_mov_b32 v{t4}, v0
  s_branch K_OVLD
K_OVPART1:
  s_mov_b32 s{sKind}, 4
  v_add_u32 v{t4}, 2048, v0
K_OVLD:
  s_mul_i32 s{sq}, s{sP}, {OVSTR}
  s_mul_i32 s{sq+1}, s{sP}, {CH*32}
  v_mov_b32 v{vebase}, s{sq+1}
  v_mov_b32 v{t0}, s{sq}
  buffer_load_dword v{t1}, v{t0}, {s(SV,4)}, 0 offen sc1
  v_lshl_add_u32 v{t2}, v{t4}, 3, v{t0}""")
    for k in range(4):
        a(f"  buffer_load_dwordx2 {v(PF+2*k,2)}, v{t2}, {s(SV,4)}, 0 offen offset:64 sc1\n  v_add_u32 v{t2}, 4096, v{t2}")
    a(f"  s_waitcnt vmcnt(0)")
    for k in range(4):
        a(f"""
  v_cmp_lt_u32 vcc, v{t4}, v{t1}
  v_cmp_eq_u32 {s(sEx,2)}, s2, v{PF+2*k+1}
  s_and_b64 vcc, vcc, {s(sEx,2)}
  v_add_u32 v{t4}, 512, v{t4}
  s_nop 1
  v_cndmask_b32 v{REC+k}, 0, v{PF+2*k}, vcc""")
    for k in range(4, NR): a(f"  v_mov_b32 v{REC+k}, 0")
    a("  s_branch K_ROUND")
    return a.text(), nv, NS

def gen_diag(idx):
    a = Asm()
    a(f"""
.globl mpnn_d_kernel
.p2align 8
.type mpnn_d_kernel,@function
mpnn_d_kernel:
  s_cmp_ge_u32 s2, 1
  s_cbranch_scc1 D_END
  s_load_dwordx2 s[4:5], s[0:1], 64
  s_waitcnt lgkmcnt(0)
  s_add_u32 s4, s4, {WS_STAMP + (OPT['wsb'] << 20)}
  s_addc_u32 s5, s5, 0
  s_load_dword s6, s[4:5], 0
  s_waitcnt lgkmcnt(0)
  s_sub_u32 s6, s6, 100000""")
    for q, (ix, ismax) in enumerate(((idx, 1), (0, 0))):
        op = "max" if ismax else "min"
        a(f"  v_lshlrev_b32 v1, {6 if not OPT['dodd'] else 10}, v0\n  v_add_u32 v1, {ix*4 + (512 + 64*(OPT['dodd']-1) if OPT['dodd'] else 0)}, v1\n  v_mov_b32 v3, {0 if ismax else -1}")
        nk = 32 if not OPT['dodd'] else 2
        for k in range(nk):
            a(f"  global_load_dword v{8+k}, v1, s[4:5]\n  v_add_u32 v1, {4096 if not OPT['dodd'] else 65536}, v1")
        a("  s_waitcnt vmcnt(0)")
        for k in range(nk):
            a(f"  v_subrev_u32 v2, s6, v{8+k}\n  v_{op}_u32 v3, v3, v2")
        a(f"  s_mov_b32 s{20+q}, {0 if ismax else -1}\n  s_nop 1")
        for l in range(64):
            a(f"  v_readlane_b32 s8, v3, {l}\n  s_nop 0\n  s_{op}_u32 s{20+q}, s{20+q}, s8")
    a(f"""
  s_sub_u32 s20, s20, s21
  s_min_u32 s20, s20, 20000
  s_lshl_b32 s20, s20, 3
  {'s_mov_b32 s20, 0' if OPT['dz'] else ''}
  s_memrealtime s[8:9]
  s_waitcnt lgkmcnt(0)
D_L:
  s_memrealtime s[10:11]
  s_waitcnt lgkmcnt(0)
  s_sub_u32 s12, s10, s8
  s_cmp_lt_u32 s12, s20
  s_cbranch_scc1 D_L
D_END:
  s_endpgm
""")
    return a.text()

HEAD = """; Kernarg layout for this problem (72 bytes, ptrs only, base s[0:1]):
"""
def main():
    k, nv, ns = gen()
    out = HEAD + f"; @launch grid=({NB},1,1) block=(512,1,1) lds={LDS}\n"
    if OPT["diag"] >= 0:
        out = HEAD + f"; @launch kernel={KN} grid=({NB},1,1) block=(512,1,1) lds={LDS}\n; @launch kernel=mpnn_d_kernel grid=(1,1,1) block=(64,1,1) lds=0\n"
        k += gen_diag(OPT["diag"])
    out += '.amdgcn_target "amdgcn-amd-amdhsa--gfx950"\n.text\n' + k
    out += f""".section .rodata,"a"
.p2align 6
.amdhsa_kernel {KN}
  .amdhsa_next_free_vgpr {nv}
  .amdhsa_next_free_sgpr {ns}
  .amdhsa_accum_offset {(nv+3)//4*4}
  .amdhsa_group_segment_fixed_size 0
  .amdhsa_kernarg_size 72
  .amdhsa_user_sgpr_count 2
  .amdhsa_user_sgpr_kernarg_segment_ptr 1
  .amdhsa_system_sgpr_workgroup_id_x 1
.end_amdhsa_kernel
"""
    if OPT["diag"] >= 0:
        out += """.p2align 6
.amdhsa_kernel mpnn_d_kernel
  .amdhsa_next_free_vgpr 48
  .amdhsa_next_free_sgpr 32
  .amdhsa_accum_offset 48
  .amdhsa_group_segment_fixed_size 0
  .amdhsa_kernarg_size 72
  .amdhsa_user_sgpr_count 2
  .amdhsa_user_sgpr_kernarg_segment_ptr 1
  .amdhsa_system_sgpr_workgroup_id_x 1
.end_amdhsa_kernel
"""
    open(sys.argv[1], "w").write(out)
    print("vgprs", nv, "lds", LDS)
main()
```

```python
from common import *

N = 10000; E = 320000
G = 125
CH = 2560
NB = 256
MAGIC = 26843
CAP = 28
CELLB = 128
BSTR = G * CELLB

WS_P = 256
WS_CELL = 0x280000
WS_WF = 0x1280000
WF_W2, WF_UT, WF_UB, WF_3H, WF_3L = 0, 32768, 65536, 98304, 102400
WF_SIZE = 106496
WS_OVF = 0x12A0000
OVSTR = 64 + CH * 8
WS_FLAG = 0x1520000
WS_STAMP = 0x1600000

OPT = dict(lo=0, k8=1, stamp=0, nodma=0, noadd=0, noe=0, hot=0, align=1, unroll=2, dmapos=0, rdpos=0, dsc=1, pf=1, slp=0, stf=1, addpos=0, rdgap=0, prio=0, bench=0, octo=1, frep=8, fln=16, slp0=0, plf=1, flf=1, diag=-1, touch=0, dz=0, abl=0, dodd=0, wsb=0, claim=0, slpa=0, slpb=0, zt=0, cpf=0, pf2=0, stag=0)
for a_ in sys.argv[2:]:
    k_, v_ = a_.split("="); OPT[k_] = int(v_)
EXP = OPT["bench"] or OPT["nodma"] or OPT["noe"] or OPT["noadd"] or OPT["hot"]

FL_ = ['', 'sc1', 'sc0 sc1', 'sc1 nt', 'sc0 sc1 nt']; PLF = FL_[OPT['plf']]; FLF = FL_[OPT['flf']]
STF = ['', 'sc1', 'sc0 sc1', 'sc1 nt'][OPT['stf']]
FREP = OPT['frep']; FLN = OPT['fln']; FSH = (128//FLN).bit_length()-1; FHALF = FREP*FLN*256; FNON = 2*FHALF; FMASK = hex((1<<FREP)-1)
NA = 1 if OPT['claim'] & 4 else 0
NCL = (3 if OPT['claim'] & 1 else 0) + NA
NCC = (4 if OPT['claim'] & 2 else 0) + NA
CAPB = 70
L_ENT = 0
L_GN = (CAPB + 1) * 256
L_CNT = L_GN + (CAPB + 17) * 32
L_FLG = L_CNT + 256
L_ACC = L_FLG + 64
AS = 1040
L_Q = L_ACC + 40 * AS
QS = 320
L_X = L_Q + 40 * QS
XS = 288
L_STG = L_X + 40 * XS
STG = 8 * 1040 + 1024
LDS = L_STG + 8 * STG
L_CIMG = L_STG
L_BCNT = L_CIMG + NB * CELLB
WPITCH = 1088
L_GP = L_STG + 1024
L_WS = L_STG + 32 * WPITCH
assert L_BCNT + 1024 <= LDS and L_STG % 16 == 0 and L_ACC % 16 == 0
PADS, PADE = 0x8000003f, 0x80000000
KN = "standalone__mpnn_edge_mlp__graph_kernel"

def stamp(a, i, cyc=None):
    if OPT["stamp"]:
        if cyc is None:
            a(f"  s_memrealtime s[{80+2*i}:{81+2*i}]\n  s_waitcnt lgkmcnt(0)")
        else:
            a(f"  s_memrealtime s[96:97]\n  s_memtime s[98:99]\n  s_waitcnt lgkmcnt(0)\n  s_mov_b32 s{i}, s96\n  s_mov_b32 s{i+2}, s98")

def gen():
    a = Asm()
    R = Regs(1)
    al = R.alloc
    vl = al("lane")
    t0 = al("t", 8, 2); t1, t2, t3, t4, t5, t6, t7 = range(t0+1, t0+8)
    vchunk = al("vchunk"); vechunk = al("vechunk")
    vent = al("vent"); vrow = al("vrow"); vgq = al("vgq"); vga = al("vga")
    vAlo = al("Alo"); vAhi = al("Ahi"); vEF = al("vEF")
    vqlane = al("vqlane"); vacl = al("vacl"); vxb = al("vxb"); vqw = al("vqw")
    vebase = al("vebase"); vone = al("vone"); vt16 = al("vt16"); vcell = al("vcell")
    vqa = al("vqa"); vsrow = al("vsrow"); vgn1 = al("vgn1")
    ENT = al("ENT", 2, 2)
    MAC = al("MAC", 2, 2)
    PAT = al("PAT", 2, 2)
    nq = 2 if OPT["k8"] else 4
    AQ = al("AQ", nq, 2)
    GN = al("GN", 4, 2); AD = al("AD", 4)
    DO = al("DO", 2)
    I0 = al("I0", 4, 2); I1 = al("I1", 4, 2)
    W3 = al("W3", 16, 2)
    W3L = al("W3L", 16, 2) if OPT["lo"] else None
    BQ = al("BQ", 4*nq, 2)
    EF = al("EF", 4, 2)
    PF = al("PF", 32, 2)
    D0 = al("D0", 16, 2); D1 = al("D1", 16, 2)
    EA = al("EA", 8, 2); TA = al("TA", 8, 2); EB = al("EB", 8, 2); TB = al("TB", 8, 2)
    RA = al("RA", 2, 2); RB = al("RB", 2, 2)
    SA = al("SA", 2, 2); SB = al("SB", 2, 2)
    CV = al("CV", 8, 2)
    U = al("U", 12, 2); WUB = al("WUB", 16, 2)
    DUM = al("DUM", 4, 2)
    DK = al("DK", 4, 2)
    nv = R.n
    assert TA == EA + 8 and EB == EA + 16 and TB == EA + 24 and D1 == D0 + 16
    DD = D0; SS_ = D0 + 5; B4 = D0 + 10; RK = D0 + 15; CA = D0 + 20
    CP = PF
    GX = W3
    XL = U
    W1F = WUB
    REC = D0; NOD = D0 + 8; RNK = D1
    W2F = EA; WUT = EB; XF = PF; QD = CV
    sW = 3
    pX, pE, pS, pD, pWM, pWU, pO, pWS = 4, 6, 8, 10, 12, 14, 16, 18
    SP, SE, SC, SW, SO, SV, SF = 20, 24, 28, 32, 36, 40, 44
    T0, T1, T2 = 48, 52, 56
    sStart, sNb, sStg, sCnt, sT, sMode, sKind, sFirst = 60, 61, 62, 63, 64, 65, 66, 67
    sAS, sQS, sTag, sP, sUB, sLo2 = 68, 69, 70, 71, 72, 73
    sCO = 59
    sNp = 79
    sEx, sK, sBad = 74, 76, 78
    sTmp = 4
    sA = 48
    sOV = 48
    sOVT = 74
    sq = 100
    if OPT["stamp"]: NS = 102
    else: NS = 102

    a(f"""
.globl {KN}
.p2align 8
.type {KN},@function
{KN}:
  s_cmp_ge_u32 s2, {NB}
  s_cbranch_scc1 K_END""")
    if OPT["stamp"]: a("  s_memrealtime s[80:81]")
    a(f"""
  s_load_dwordx8 s[4:11], s[0:1], 0
  s_load_dwordx4 s[12:15], s[0:1], 32
  s_load_dwordx2 s[16:17], s[0:1], 48
  s_load_dwordx2 s[18:19], s[0:1], 64""")
    if OPT["cpf"]:
        a(f"""
  s_getpc_b64 s[20:21]
  v_lshlrev_b32 v{t1}, 7, v0
  v_cmp_gt_u32 vcc, (K_TEXTEND - {KN}) / 128, v0
  s_and_saveexec_b64 s[22:23], vcc
  s_cbranch_execz K_NOCPF
  global_load_dword v{DUM}, v{t1}, s[20:21]
K_NOCPF:
  s_mov_b64 exec, s[22:23]""")
    a(f"""
  v_lshrrev_b32 v{t0}, 6, v0
  v_and_b32 v{vl}, 63, v0
  s_and_b32 s{sP}, s2, {FREP-1}
  s_mul_i32 s{sP}, s{sP}, {FLN*256}
  s_and_b32 s{sq}, s2, 7
  s_lshl_b32 s{sq}, s{sq}, 1
  s_bfe_u32 s{sq+1}, s2, 0x10003
  s_and_b32 s2, s2, 0xf0
  s_or_b32 s2, s2, s{sq}
  s_or_b32 s2, s2, s{sq+1}
  s_mul_i32 s{sStart}, s2, 640013
  v_readfirstlane_b32 s{sW}, v{t0}
  s_add_u32 s{sNb}, s{sStart}, {640013+16383}
  s_add_u32 s{sStart}, s{sStart}, 16383
  s_sub_u32 s{sNp}, s{sStart}, 640013
  s_lshr_b32 s{sStart}, s{sStart}, 14
  s_lshr_b32 s{sNb}, s{sNb}, 14
  s_lshr_b32 s{sNp}, s{sNp}, 14
  s_min_u32 s{sNb}, s{sNb}, {N}
  s_sub_u32 s{sCnt}, s{sNb}, s{sNp}
  s_sub_u32 s{sNb}, s{sNb}, s{sStart}
  s_lshl_b32 s{sT}, s{sNp}, 8
  s_sub_u32 s{sNp}, s{sStart}, s{sNp}
  s_mov_b32 s{sMode}, 0
  s_mov_b32 s{sKind}, 0
  s_mov_b32 s{sFirst}, 1
  s_mov_b32 s{sAS}, {AS}
  s_mov_b32 s{sQS}, {QS}
  s_mul_i32 s{sStg}, s{sW}, {STG}
  s_add_u32 s{sStg}, s{sStg}, {L_STG}
  v_lshlrev_b32 v{vt16}, 4, v0
  s_mul_i32 s{sq}, s2, {CH*2}
  v_lshl_add_u32 v{t2}, v0, 2, s{sq}
  v_add_u32 v{t3}, 4096, v{t2}
  v_lshrrev_b32 v{t4}, 4, v{vl}
  v_lshlrev_b32 v{t0}, 1, v{t4}
  v_xor_b32 v{t0}, v{t0}, v{vl}
  v_lshlrev_b32 v{t0}, 4, v{t0}
  s_lshl_b32 s{sq}, s{sW}, 12
  v_add_u32 v{t7}, s{sq}, v{t0}
  s_mul_i32 s{sUB}, s{sW}, {4*WPITCH}
  s_add_u32 s{sUB}, s{sUB}, {L_WS}
  v_add_u32 v{t6}, 8192, v{vt16}
  v_add_u32 v{t5}, 16384, v{vt16}
  s_waitcnt lgkmcnt(0)
  {"s_add_u32 s%d, s%d, %d" % (pWS, pWS, OPT["wsb"] << 20) + chr(10) + "  s_addc_u32 s%d, s%d, 0" % (pWS+1, pWS+1) if OPT["wsb"] else ""}
  s_bitcmp1_b32 s2, 0
  s_cbranch_scc1 K_LDG
  s_cmp_ge_u32 s2, {2*G}
  s_cbranch_scc1 K_LDP""")
    srd(a, T0, pD, E*4)
    srd(a, T1, pS, E*4)
    a(f"  s_movk_i32 s{sq}, 0x2000")
    for r_, T in ((DD, T0), (SS_, T1)):
        a(f"""
  buffer_load_dword v{r_}, v{t2}, {s(T,4)}, 0 offen
  buffer_load_dword v{r_+1}, v{t2}, {s(T,4)}, 0 offen offset:2048
  buffer_load_dword v{r_+2}, v{t3}, {s(T,4)}, 0 offen
  buffer_load_dword v{r_+3}, v{t3}, {s(T,4)}, 0 offen offset:2048
  buffer_load_dword v{r_+4}, v{t2}, {s(T,4)}, s{sq} offen""")
    if OPT["claim"] & 2:
        srd(a, T2, pWS, NB*BSTR, add=WS_CELL)
        a(f"""
  v_lshrrev_b32 v{t4}, 3, v0
  s_mov_b32 s{sq}, {BSTR}
  v_mul_u32_u24 v{t4}, s{sq}, v{t4}
  v_and_b32 v{t0}, 7, v0
  v_lshl_add_u32 v{t4}, v{t0}, 4, v{t4}
  s_lshl_b32 s{sq}, s2, 6
  v_mov_b32 v{PF}, 0
  v_mov_b32 v{PF+1}, 0
  v_mov_b32 v{PF+2}, 0
  v_mov_b32 v{PF+3}, 0""")
        for j in range(4):
            a(f"  buffer_store_dwordx4 {v(PF,4)}, v{t4}, {s(T2,4)}, s{sq} offen sc1\n  s_add_u32 s{sq}, s{sq}, {64*BSTR}")
    a("  s_branch K_LD3")
    def wdma(T):
        for q in range(4):
            a(f"  s_add_u32 m0, s{sUB}, {64*q}\n  s_nop 0\n  buffer_load_dwordx4 v{t7}, {s(T,4)}, 0 offen offset:{1024*q} lds")
    a(f"""
K_LDX:
  s_lshl_b32 s{sq}, s{sStart}, 8
  s_lshl_b32 s{sq+1}, s{sNb}, 8""")
    srd(a, T2, pX, f"s{sq+1}", addreg=sq)
    a(f"""
  buffer_load_dwordx4 {v(XL,4)}, v{vt16}, {s(T2,4)}, 0 offen
  buffer_load_dwordx4 {v(XL+4,4)}, v{t6}, {s(T2,4)}, 0 offen
  s_branch K_LD3
K_LDP:
  s_cmp_eq_u32 s2, {2*G}
  s_cselect_b32 s{T1}, s{pWM}, s{pWU}
  s_cselect_b32 s{T1+1}, s{pWM+1}, s{pWU+1}
  s_cmp_eq_u32 s2, {2*G+2}
  s_cselect_b32 s{sq}, 0, 32768
  s_add_u32 s{T1}, s{T1}, s{sq}
  s_addc_u32 s{T1+1}, s{T1+1}, 0
  s_mov_b32 s{T1+2}, 32768
  s_mov_b32 s{T1+3}, 0x20000""")
    wdma(T1)
    srd(a, T0, pWM, 16*256, add=256*256)
    a(f"""
  v_and_b32 v{t0}, 31, v{vl}
  v_lshrrev_b32 v{t1}, 5, v{vl}
  v_lshlrev_b32 v{t1}, 11, v{t1}
  v_lshl_add_u32 v{t1}, v{t0}, 1, v{t1}
  s_and_b32 s{sq}, s{sW}, 3
  s_lshl_b32 s{sq}, s{sq}, 6""")
    for jj in range(8):
        a(f"  buffer_load_ushort v{D0+jj}, v{t1}, {s(T0,4)}, s{sq} offen offset:{jj*256}")
    a(f"""
  s_branch K_LDX
K_LDG:
  s_lshl_b32 s{sCnt}, s{sCnt}, 8""")
    srd(a, T0, pX, f"s{sCnt}", addreg=sT)
    srd(a, T1, pWM, 128*256)
    a(f"""
  buffer_load_dwordx4 {v(GX,4)}, v{vt16}, {s(T0,4)}, 0 offen
  buffer_load_dwordx4 {v(GX+4,4)}, v{t6}, {s(T0,4)}, 0 offen
  buffer_load_dwordx4 {v(GX+8,4)}, v{t5}, {s(T0,4)}, 0 offen""")
    wdma(T1)
    if OPT["claim"] & 1:
        srd(a, T2, pWS, f"s{sCnt}", add=WS_P, addreg=sT)
        for r_ in (vt16, t6, t5):
            a(f"  buffer_store_dwordx4 {v(PF,4)}, v{r_}, {s(T2,4)}, 0 offen sc1")
    a(f"""
K_LD3:""")
    if OPT["claim"] & 4:
        a(f"  s_lshl_b32 s{sq}, s{sStart}, 8\n  s_lshl_b32 s{sq+1}, s{sNb}, 8")
        srd(a, SO, pWS, f"s{sq+1}", add=WS_P, addreg=sq)
        a(f"""
  s_mul_i32 s{sq}, s{sW}, 1280
  v_lshl_add_u32 v{t1}, v{vl}, 7, s{sq}
  v_mov_b32 v{t0}, 0
  s_mov_b64 exec, 0x3ff
  buffer_atomic_or v{t0}, v{t1}, {s(SO,4)}, 0 offen
  s_mov_b64 exec, -1""")
    a(f"""
  s_add_u32 s{SF}, s{pWS}, {WS_FLAG}
  s_addc_u32 s{SF+1}, s{pWS+1}, 0
  s_load_dword s{sTag}, s[{SF}:{SF+1}], {FNON}
  s_mov_b32 s{SF+2}, {FNON+4}
  s_mov_b32 s{SF+3}, 0x20000
  v_lshrrev_b32 v{t1}, 2, v0
  v_and_b32 v{t4}, 3, v0
  v_lshlrev_b32 v{t4}, 4, v{t4}
  v_lshl_add_u32 v{vcell}, v{t1}, 7, v{t4}
  s_mov_b32 s{sq}, {CH*32}
  v_mul_u32_u24 v{vebase}, s{sq}, v{t1}""")
    a(f"""
  v_mov_b32 v{CV}, 0
  v_mov_b32 v{CV+1}, 0
  v_mov_b32 v{CV+2}, 0
  v_mov_b32 v{CV+3}, 0
  v_add_u32 v{t0}, {L_CIMG}, v{vt16}""")
    a(f"  s_bitcmp1_b32 s2, 0\n  s_cbranch_scc1 K_NOZ")
    for j in range(4):
        a(f"  ds_write_b128 v{t0}, {v(CV,4)} offset:{j*8192}")
    a(f"  s_cmp_lg_u32 s{sW}, 0\n  s_cbranch_scc1 K_NOZ\n  ds_write_b128 v{t0}, {v(CV,4)} offset:32768")
    a("K_NOZ:")
    for j in range(5):
        a(f"  ds_write_b128 v{vt16}, {v(CV,4)} offset:{L_GN + j*8192}")
    a(f"""
  v_cmp_gt_u32 vcc, {(L_Q-L_GN-5*8192)//16}, v0
  s_and_saveexec_b64 {s(sEx,2)}, vcc
  ds_write_b128 v{vt16}, {v(CV,4)} offset:{L_GN + 5*8192}
  s_mov_b64 exec, {s(sEx,2)}""")
    def prefill():
        a(f"""
  v_mov_b32 v{CV+4}, {PADS}
  v_mov_b32 v{CV+5}, {PADE}
  v_mov_b32 v{CV+6}, {PADS}
  v_mov_b32 v{CV+7}, {PADE}
  ds_write_b128 v{vt16}, {v(CV+4,4)}
  ds_write_b128 v{vt16}, {v(CV+4,4)} offset:8192
  v_cmp_gt_u32 vcc, {(L_GN-16384)//16}, v0
  s_and_saveexec_b64 {s(sEx,2)}, vcc
  ds_write_b128 v{vt16}, {v(CV+4,4)} offset:16384
  s_mov_b64 exec, {s(sEx,2)}""")
    prefill()
    a(f"  s_mul_i32 s{sq}, s2, {BSTR}\n  s_lshl_b32 s{sq+1}, s{sStart}, 8\n  s_lshl_b32 s{sK}, s{sNb}, 8")
    srd(a, SC, pWS, G*CELLB, add=WS_CELL, addreg=sq)
    srd(a, SP, pWS, (N+1)*256)
    srd(a, SE, pE, E*32)
    srd(a, SW, pWS, WF_SIZE, add=WS_WF)
    srd(a, SO, pO, f"s{sK}", addreg=sq+1)
    srd(a, SV, pWS, G*OVSTR, add=WS_OVF)
    a(f"""
  v_mov_b32 v{vone}, 1
  v_mov_b32 v{MAC}, 0
  v_mov_b32 v{MAC+1}, 0
  v_and_b32 v{t0}, 15, v{vl}                 ; l&15
  v_bfe_u32 v{t1}, v{vl}, 4, 1               ; r4&1
  v_lshlrev_b32 v{t2}, 3, v{t1}
  v_xor_b32 v{t2}, v{t0}, v{t2}
  v_lshlrev_b32 v{vchunk}, 4, v{t2}
  v_and_b32 v{t2}, 1, v{vl}
  v_xor_b32 v{t2}, v{t2}, v{t1}
  v_lshlrev_b32 v{vechunk}, 4, v{t2}
  v_lshrrev_b32 v{t2}, 4, v{vl}
  v_lshlrev_b32 v{t2}, 6, v{t2}
  v_lshrrev_b32 v{t4}, 1, v{t0}
  v_lshl_add_u32 v{t2}, v{t4}, 3, v{t2}
  s_lshl_b32 s{sq}, s{sW}, 8
  v_add_u32 v{vent}, s{sq}, v{t2}
  v_bfe_u32 v{t2}, v{vl}, 2, 1               ; h
  v_and_b32 v{t4}, 1, v{vl}                  ; xy
  v_lshl_add_u32 v{t5}, v{t2}, 1, v{t4}      ; r4
  v_bfe_u32 v{t6}, v{vl}, 3, 2
  v_bfe_u32 v{t7}, v{vl}, 1, 1
  v_lshl_add_u32 v{t6}, v{t6}, 1, v{t7}      ; j
  v_lshl_add_u32 v{t7}, v{t5}, 3, v{t6}      ; q = 8 r4 + j
  v_lshlrev_b32 v{t7}, 3, v{t7}
  v_add_u32 v{vrow}, s{sq}, v{t7}
  v_lshrrev_b32 v{t7}, 5, v{vl}              ; hh
  v_mul_u32_u24 v{vAlo}, 1040, v{t6}
  v_lshl_add_u32 v{vAlo}, v{t5}, 8, v{vAlo}
  v_lshl_add_u32 v{vAlo}, v{t7}, 4, v{vAlo}
  v_add_u32 v{vAlo}, s{sStg}, v{vAlo}
  v_xor_b32 v{vAhi}, 1, v{t4}
  v_lshl_add_u32 v{vAhi}, v{vAhi}, 7, v{vAlo}
  v_lshl_add_u32 v{vAlo}, v{t4}, 7, v{vAlo}
  v_xor_b32 v{vEF}, v{t7}, v{t4}
  v_lshl_add_u32 v{vEF}, v{t6}, 1, v{vEF}
  v_lshl_add_u32 v{vEF}, v{t5}, 4, v{vEF}
  v_lshlrev_b32 v{vEF}, 4, v{vEF}
  s_add_u32 s{sq+1}, s{sStg}, 8320
  v_add_u32 v{vEF}, s{sq+1}, v{vEF}
  v_bfe_u32 v{t5}, v{vl}, 4, 1               ; o
  v_lshlrev_b32 v{t5}, 4, v{t5}
  v_mov_b32 v{t6}, 0x3f80
  v_lshlrev_b32 v{t5}, v{t5}, v{t6}
  v_cmp_eq_u32 vcc, v{t7}, v{t2}
  s_nop 1
  v_cndmask_b32 v{t5}, 0, v{t5}, vcc
  v_cmp_eq_u32 vcc, 0, v{t4}
  s_nop 1
  v_cndmask_b32 v{PAT}, 0, v{t5}, vcc
  v_cndmask_b32 v{PAT+1}, v{t5}, 0, vcc
  s_lshl_b32 s{sq}, s{sW}, 5
  s_add_u32 s{sq+1}, s{sq}, {L_GN}
  v_lshlrev_b32 v{vga}, 4, v{t7}
  v_add_u32 v{vga}, s{sq+1}, v{vga}
  v_and_b32 v{t2}, 12, v{vl}
  v_add_u32 v{vgq}, v{vga}, v{t2}
  v_and_b32 v{t2}, 3, v{vl}
  v_lshlrev_b32 v{t2}, 3, v{t2}
  v_lshl_add_u32 v{t2}, v{t1}, 5, v{t2}
  v_add_u32 v{vqlane}, {L_Q}, v{t2}
  v_and_b32 v{t2}, 31, v{vl}
  v_lshlrev_b32 v{t4}, 3, v{t2}
  v_add_u32 v{vacl}, {L_ACC}, v{t4}
  v_lshrrev_b32 v{t4}, 4, v{vl}              ; g
  v_mul_u32_u24 v{vxb}, {XS}, v{t0}
  v_lshl_add_u32 v{vxb}, v{t4}, 4, v{vxb}
  v_add_u32 v{vxb}, {L_X}, v{vxb}
  v_mul_u32_u24 v{vqw}, {QS}, v{t0}
  v_lshl_add_u32 v{vqw}, v{t4}, 3, v{vqw}
  s_add_u32 s{sq+1}, s{sq}, {L_Q}
  v_add_u32 v{vqw}, s{sq+1}, v{vqw}
  v_mul_u32_u24 v{vqa}, {2*WPITCH}, v{t4}
  v_bfe_u32 v{t5}, v{vl}, 2, 2
  v_lshl_add_u32 v{vqa}, v{t5}, 8, v{vqa}
  v_xor_b32 v{t5}, s{sW}, v{t5}
  v_lshl_add_u32 v{vqa}, v{t5}, 5, v{vqa}
  v_and_b32 v{t5}, 3, v{vl}
  v_lshl_add_u32 v{vqa}, v{t5}, 3, v{vqa}
  v_add_u32 v{vqa}, {L_WS}, v{vqa}
  v_and_b32 v{t4}, 1, v{vl}
  v_lshlrev_b32 v{t4}, 4, v{t4}
  v_lshlrev_b32 v{t4}, v{t4}, v{t6}
  v_bfe_u32 v{t5}, v{vl}, 1, 4
  v_lshlrev_b32 v{t7}, 2, v{t7}
  v_sub_u32 v{t5}, v{t5}, v{t7}""")
    for i in range(4):
        a(f"  v_cmp_eq_u32 vcc, {i}, v{t5}\n  s_nop 1\n  v_cndmask_b32 v{I0+i}, 0, v{t4}, vcc")
        a(f"  v_cmp_eq_u32 vcc, {8+i}, v{t5}\n  s_nop 1\n  v_cndmask_b32 v{I1+i}, 0, v{t4}, vcc")
    if not OPT["k8"]:
        a(f"  v_mov_b32 v{AQ+2}, 0\n  v_mov_b32 v{AQ+3}, 0")
        for t in range(4):
            a(f"  v_mov_b32 v{BQ+4*t+2}, 0\n  v_mov_b32 v{BQ+4*t+3}, 0")
    def prefetch():
        if not OPT["pf"]: return
        a(f"  s_mul_i32 s{sq}, s2, 40000\n  s_sub_u32 s{sq}, s{sq}, 4096\n  v_add_u32 v{t0}, s{sq}, v{vt16}")
        for j in range(10):
            a(f"  buffer_load_dwordx4 {v(DUM,4)}, v{t0}, {s(SE,4)}, 0 offen")
            if j < 9: a(f"  v_add_u32 v{t0}, 4096, v{t0}")
    def wtr(dst, ad):
        for st in range(4):
            for hf in range(2):
                a(f"  ds_read_b64_tr_b16 {v(dst+4*st+2*hf,2)}, v{ad} offset:{(8*st+hf)*WPITCH}")
    def own_x(nyounger):
        a(f"""
  v_lshrrev_b32 v{t0}, 4, v0
  v_lshl_add_u32 v{t0}, v{t0}, 5, v{vt16}
  v_add_u32 v{t0}, {L_X}, v{t0}
  s_waitcnt vmcnt({nyounger})
  ds_write_b128 v{t0}, {v(XL,4)}
  s_mov_b32 exec_lo, s{sLo2}
  s_mov_b32 exec_hi, s{sLo2}
  ds_write_b128 v{t0}, {v(XL+4,4)} offset:{32*XS}
  s_mov_b64 exec, -1""")
    a(f"""
  s_cmp_lt_u32 s{sW}, 2
  s_cselect_b32 s{sLo2}, -1, 0
  s_lshr_b32 s{sq}, s2, {1+FSH}
  s_lshl_b32 s{sq}, s{sq}, 8
  s_bfe_u32 s{sq+1}, s2, {hex((FSH<<16)|1)}
  s_lshl_b32 s{sq+1}, s{sq+1}, 2
  s_add_u32 s{sq}, s{sq}, s{sq+1}
  s_and_b32 s{sq+1}, s2, 1
  s_mul_i32 s{sq+1}, s{sq+1}, {FHALF}
  s_add_u32 s{sq}, s{sq}, s{sq+1}
  v_mul_u32_u24 v{vgn1}, {FLN*256}, v{vl}
  v_add_u32 v{vgn1}, s{sq}, v{vgn1}
  v_lshrrev_b32 v{t2}, {FSH-1}, v{vl}
  v_lshlrev_b32 v{t2}, 8, v{t2}
  v_and_b32 v{t3}, {(1<<(FSH-1))-1}, v{vl}
  v_lshl_add_u32 v{t2}, v{t3}, 3, v{t2}
  v_add_u32 v{vsrow}, s{sP}, v{t2}
  s_mov_b32 s{sK}, {NLOG2E}
  s_mov_b32 s{sK+1}, {NLOG2E}
  s_waitcnt lgkmcnt(0)
  s_add_u32 s{sTag}, s{sTag}, 1
  s_max_u32 s{sTag}, s{sTag}, 1
  s_bitcmp1_b32 s2, 0
  s_cbranch_scc1 K_GEMM
  s_cmp_ge_u32 s2, {2*G}
  s_cbranch_scc1 K_PREP
  s_mov_b32 s{sq}, {MAGIC}
  v_lshlrev_b32 v{t7}, 6, v0
  v_add_u32 v{t7}, {1<<18}, v{t7}
  s_barrier
  s_waitcnt vmcnt({5+NCC})""")
    stamp(a, 1)
    for j in range(5):
        a(f"""
  v_mul_u32_u24 v{B4+j}, s{sq}, v{DD+j}
  v_lshrrev_b32 v{B4+j}, 18, v{B4+j}
  v_and_b32 v{B4+j}, 0x3fc, v{B4+j}
  v_add_u32 v{t0+j}, {L_BCNT}, v{B4+j}
  ds_add_rtn_u32 v{RK+j}, v{t0+j}, v{vone}""")
    a(f"  s_waitcnt vmcnt({NCC})")
    for j in range(5):
        a(f"""
  v_lshl_add_u32 v{SS_+j}, v{SS_+j}, 18, v{t7}
  v_and_or_b32 v{SS_+j}, v{DD+j}, 63, v{SS_+j}
  v_lshlrev_b32 v{CA+j}, 5, v{B4+j}
  v_add_u32 v{CA+j}, {L_CIMG}, v{CA+j}""")
        if j < 4: a(f"  v_add_u32 v{t7}, {512<<6}, v{t7}")
    srd(a, T2, pWS, NB*BSTR, add=WS_CELL)
    a(f"""
  v_lshrrev_b32 v{t4}, 3, v0
  s_mov_b32 s{sq}, {BSTR}
  v_mul_u32_u24 v{t4}, s{sq}, v{t4}
  v_and_b32 v{t5}, 7, v0
  v_lshl_add_u32 v{t4}, v{t5}, 4, v{t4}
  s_lshl_b32 s{sq}, s2, 6
  s_mov_b64 {s(sBad,2)}, 0
  s_waitcnt lgkmcnt(0)""")
    for j in range(5):
        a(f"""
  v_mul_u32_u24 v{t1}, 37, v{RK+j}
  v_lshl_add_u32 v{t0}, v{RK+j}, 2, v{CA+j}
  v_lshrrev_b32 v{t1}, 8, v{t1}
  v_cmp_le_u32 vcc, {CAP-1}, v{RK+j}
  v_lshl_add_u32 v{t0}, v{t1}, 2, v{t0}
  s_or_b64 {s(sBad,2)}, {s(sBad,2)}, vcc
  s_andn2_b64 exec, exec, vcc
  ds_write_b32 v{t0}, v{SS_+j}
  s_mov_b64 exec, -1""")
    a(f"""
  v_add_u32 v{t0}, {L_CIMG}, v{vt16}
  v_mov_b32 v{t2}, {L_FLG+4}
  s_cmp_eq_u64 {s(sBad,2)}, 0
  s_cbranch_scc1 K_NOFULL
  ds_write_b32 v{t2}, v{vone}
K_NOFULL:
  s_waitcnt lgkmcnt(0)
  s_barrier""")
    stamp(a, 2)
    a(f"  ds_read_b32 v{t2}, v{t2}\nK_OVFDONE:")
    for j in range(4):
        a(f"  ds_read_b128 {v(CP+4*j,4)}, v{t0} offset:{8192*j}")
    a(f"""
  s_waitcnt vmcnt({2 if OPT['claim'] & 2 else 63}) lgkmcnt(4)
  v_cmp_ne_u32 vcc, 0, v{t2}
  s_cbranch_vccnz K_OVF""")
    for j in range(4):
        a(f"""
  s_mov_b32 exec_lo, 0xaaaaaaaa
  s_mov_b32 exec_hi, 0xaaaaaaaa
  s_waitcnt lgkmcnt({3-j})
  v_mov_b32 v{CP+4*j+3}, s{sTag}
  s_mov_b64 exec, -1
  buffer_store_dwordx4 {v(CP+4*j,4)}, v{t4}, {s(T2,4)}, s{sq} offen {STF}
  s_add_u32 s{sq}, s{sq}, {64*BSTR}""")
    a(f"  s_lshl_b32 s{sq}, s{sStart}, 8\n  s_lshl_b32 s{sq+1}, s{sNb}, 8")
    srd(a, T2, pX, f"s{sq+1}", addreg=sq)
    a(f"""
  v_add_u32 v{t6}, 8192, v{vt16}
  buffer_load_dwordx4 {v(XL,4)}, v{vt16}, {s(T2,4)}, 0 offen
  buffer_load_dwordx4 {v(XL+4,4)}, v{t6}, {s(T2,4)}, 0 offen""")
    own_x(0)
    a(f"""
  {"s_sleep %d" % OPT["slpa"] if OPT["slpa"] else ""}
  s_branch K_PST
K_GW:
  {"s_sleep %d" % OPT["slpb"] if OPT["slpb"] else ""}
  s_branch K_PST
K_GEMM:
  ; ---------------- P gemm role: rows of this bucket and the one before ----------------""")
    if OPT["touch"]:
        a(f"""
  s_cmp_lg_u32 s{sW}, 0
  s_cbranch_scc1 K_NOTOUCH
  s_waitcnt vmcnt(0)
  s_mov_b64 exec, {FMASK}
  buffer_load_dword v{DUM}, v{vgn1}, {s(SF,4)}, 0 offen sc1
  s_mov_b64 exec, -1
K_NOTOUCH:""")
    a(f"""
  s_mul_i32 s{sq}, s{sNp}, {XS}
  s_sub_u32 s{sq}, {L_X}, s{sq}
  v_lshrrev_b32 v{t0}, 4, v0
  v_lshl_add_u32 v{t0}, v{t0}, 5, v{vt16}
  v_add_u32 v{t3}, s{sq}, v{t0}
  s_cmp_lt_u32 s{sW}, 4
  s_cselect_b32 s{sq+1}, -1, 0
  v_subrev_u32 v{t1}, {L_X}, v{vxb}
  v_add_u32 v{t1}, s{sq}, v{t1}
  s_waitcnt vmcnt({6+NCL})
  ds_write_b128 v{t3}, {v(GX,4)}
  s_waitcnt vmcnt({5+NCL})
  ds_write_b128 v{t3}, {v(GX+4,4)} offset:{32*XS}
  s_waitcnt vmcnt({4+NCL})
  s_mov_b32 exec_lo, s{sq+1}
  s_mov_b32 exec_hi, s{sq+1}
  ds_write_b128 v{t3}, {v(GX+8,4)} offset:{64*XS}
  s_mov_b64 exec, -1
  v_and_b32 v{t2}, 15, v{vl}
  v_mul_u32_u24 v{t2}, {XS}, v{t2}
  v_lshrrev_b32 v{t3}, 4, v{vl}
  v_lshl_add_u32 v{t2}, v{t3}, 3, v{t2}
  s_lshl_b32 s{sq}, s{sW}, 5
  s_add_u32 s{sq}, s{sq}, {L_GP}
  v_add_u32 v{t2}, s{sq}, v{t2}
  v_add_u32 v{t0}, {L_GP - 16*XS}, v{t0}
  v_subrev_u32 v{t4}, 4096, v{vt16}""")
    srd(a, T0, pWS, f"s{sCnt}", add=WS_P, addreg=sT)
    a(f"  s_waitcnt vmcnt({NCL}) lgkmcnt(0)\n  s_barrier")
    stamp(a, 1)
    wtr(W1F, vqa)
    XT = [PF, PF+16, EA, EB, PF]
    for nt in range(4):
        for st in range(4):
            a(f"  ds_read_b128 {v(XT[nt]+4*st,4)}, v{t1} offset:{nt*16*XS + st*64}")
    for nt in range(5):
        a(f"  s_waitcnt lgkmcnt({(12, 12, 8, 4, 0)[nt]})")
        for st in range(4):
            c = "0" if st == 0 else v(D0+4*nt, 4)
            a(f"  v_mfma_f32_16x16x32_bf16 {v(D0+4*nt,4)}, {v(W1F+4*st,4)}, {v(XT[nt]+4*st,4)}, {c}")
        if nt == 0:
            for st in range(4):
                a(f"  ds_read_b128 {v(PF+4*st,4)}, v{t1} offset:{4*16*XS + st*64}")
    for nt in range(5):
        d = D0 + 4*nt
        if nt == 4: a("  s_nop 1")
        a(f"""
  v_pk_mul_f32 {v(d,2)}, {v(d,2)}, {s(sK,2)}
  v_pk_mul_f32 {v(d+2,2)}, {v(d+2,2)}, {s(sK,2)}
  v_cvt_pk_bf16_f32 v{W3+2*nt}, v{d}, v{d+1}
  v_cvt_pk_bf16_f32 v{W3+2*nt+1}, v{d+2}, v{d+3}
  ds_write_b64 v{t2}, {v(W3+2*nt,2)} offset:{nt*16*XS}""")
    a(f"  s_waitcnt vmcnt({NA}) lgkmcnt(0)\n  s_barrier")
    stamp(a, 2)
    a(f"""
  s_cmp_lt_u32 s{sW}, 4
  s_cbranch_scc1 K_GW""")
    for j in range(5):
        a(f"  ds_read_b128 {v(PF+4*j,4)}, v{t0} offset:{j*16*XS}")
    if OPT["zt"]:
        srd(a, T1, pWS, f"s{sCnt}", add=0x1800000, addreg=sT)
        a(f"  s_waitcnt lgkmcnt(0)\n  v_mov_b32 v{t1}, v{t4}")
        for j in range(5):
            a(f"  buffer_store_dwordx4 {v(PF+4*j,4)}, v{t1}, {s(T1,4)}, 0 offen {STF}\n  v_add_u32 v{t1}, 4096, v{t1}")
        a("  s_waitcnt vmcnt(0)")
        stamp(a, 1)
    for j in range(5):
        a(f"  s_waitcnt lgkmcnt({4-j})\n  buffer_store_dwordx4 {v(PF+4*j,4)}, v{t4}, {s(T0,4)}, 0 offen {STF}")
        if j < 4: a(f"  v_add_u32 v{t4}, 4096, v{t4}")
    a(f"""
  v_mov_b32 v{t0}, {L_FLG+12}
  v_mov_b32 v{t7}, s{sTag}
  s_mov_b64 exec, 1
  s_waitcnt vmcnt(0)""")
    stamp(a, 3)
    a(f"""
  ds_add_rtn_u32 v{t0}, v{t0}, v{vone}
  s_waitcnt lgkmcnt(0)
  v_readfirstlane_b32 s{sq}, v{t0}
  s_mov_b64 exec, -1
  s_cmp_lg_u32 s{sq}, 3
  s_cbranch_scc1 K_PST
K_FLAG:
  s_mov_b64 exec, {FMASK}
  buffer_store_dword v{t7}, v{vgn1}, {s(SF,4)}, 0 offen {FLF}
  s_mov_b64 exec, -1
K_PST:""")
    def node_gemm(WA, WB=None):
        for nt in range(3):
            xf = XF + 16*(nt & 1)
            if nt == 0:
                for n2 in range(2):
                    for st in range(4):
                        a(f"  ds_read_b128 {v(XF+16*n2+4*st,4)}, v{vxb} offset:{n2*16*XS + st*64}")
            a(f"  s_waitcnt lgkmcnt({4 if nt == 0 else 5 if nt == 1 else 1})")
            q = QD if nt != 1 else SA
            for st in range(4):
                c = "0" if st == 0 else v(q, 4)
                a(f"  v_mfma_f32_16x16x32_bf16 {v(q,4)}, {v(WA+4*st,4)}, {v(xf+4*st,4)}, {c}")
            if WB is not None:
                for st in range(4):
                    c = "0" if st == 0 else v(U+4*nt, 4)
                    a(f"  v_mfma_f32_16x16x32_bf16 {v(U+4*nt,4)}, {v(WB+4*st,4)}, {v(xf+4*st,4)}, {c}")
            if nt == 0:
                for st in range(4):
                    a(f"  ds_read_b128 {v(XF+4*st,4)}, v{vxb} offset:{2*16*XS + st*64}")
            a(f"""
  s_nop 7
  v_pk_mul_f32 {v(q,2)}, {v(q,2)}, {s(sK,2)}
  v_pk_mul_f32 {v(q+2,2)}, {v(q+2,2)}, {s(sK,2)}
  v_cvt_pk_bf16_f32 v{QD+4+2*(nt&1)}, v{q}, v{q+1}
  v_cvt_pk_bf16_f32 v{QD+5+2*(nt&1)}, v{q+2}, v{q+3}""")
            if nt == 2:
                a(f"  s_mov_b32 exec_lo, 0x00ff00ff\n  s_mov_b32 exec_hi, 0x00ff00ff")
            a(f"  ds_write_b64 v{vqw}, {v(QD+4+2*(nt&1),2)} offset:{nt*16*QS}")
            if nt == 2:
                a("  s_mov_b64 exec, -1")
    assert SB == SA + 2
    def poll(lab, off):
        a(f"""
  s_cmp_lg_u32 s{sW}, 1
  s_cbranch_scc1 {lab}_D
  s_mov_b32 s{sq}, 0
  s_mov_b32 s{sq+1}, {off}
  {"s_sleep %d" % OPT["slp0"] if OPT["slp0"] and off == 0 else ""}
{lab}:
  buffer_load_dwordx2 {v(DUM,2)}, v{vsrow}, {s(SF,4)}, s{sq+1} offen {PLF}
  s_add_u32 s{sq}, s{sq}, 1
  s_waitcnt vmcnt(0)
  v_cmp_ne_u32 vcc, s{sTag}, v{DUM}
  v_cmp_ne_u32 {s(sBad,2)}, s{sTag}, v{DUM+1}
  s_or_b64 vcc, vcc, {s(sBad,2)}
  s_cbranch_scc0 {lab}_D
  {"s_sleep %d" % OPT["slp"] if OPT["slp"] else ""}
  s_cmp_lt_u32 s{sq}, 0x8000
  s_cbranch_scc1 {lab}
{lab}_D:""")
    stamp(a, 5)
    nld = 16 if OPT["lo"] else 12
    a(f"""
  s_lshl_b32 s{sTmp}, s{sW}, 12
  s_add_u32 s{sTmp+1}, s{sTmp}, {WF_UT}
  s_add_u32 s{sUB}, s{sTmp}, {WF_UB}
  s_mov_b32 s{sTmp+2}, {WF_3H}
  s_mov_b32 s{sTmp+3}, {WF_3L}
  s_mov_b32 s{sOV}, 0xaaaaaaaa
  s_cmp_eq_u32 s{sW}, 7
  s_cselect_b32 s{sOV+1}, 0xaaaaa, s{sOV}
  v_min_u32 v{t4}, 2, v{vl}
  v_lshl_add_u32 v{t4}, v{t4}, 2, s{sP}
  v_mov_b32 v{t5}, s{sTag}
  s_mov_b32 s{sq}, 0
  {"s_sleep %d" % OPT["slp0"] if OPT["slp0"] else ""}
""")
    wl = [f"  buffer_load_dwordx4 {v(W2F+4*st,4)}, v{t6}, {s(SW,4)}, s{sTmp} offen offset:{st*1024} sc1" for st in range(4)]
    wl += [f"  buffer_load_dwordx4 {v(WUT+4*st,4)}, v{t6}, {s(SW,4)}, s{sTmp+1} offen offset:{st*1024} sc1" for st in range(4)]
    wl += [f"  buffer_load_dwordx4 {v(W3+4*st,4)}, v{t6}, {s(SW,4)}, s{sTmp+2} offen offset:{st*1024} sc1" for st in range(4)]
    if OPT["lo"]:
        wl += [f"  buffer_load_dwordx4 {v(W3L+4*st,4)}, v{t6}, {s(SW,4)}, s{sTmp+3} offen offset:{st*1024} sc1" for st in range(4)]
    a(f"""
  v_lshlrev_b32 v{t6}, 4, v{vl}
  s_mov_b32 s{sOV+6}, 0
K_CPOLL:
  buffer_load_dwordx4 {v(REC,4)}, v{vcell}, {s(SC,4)}, 0 offen sc1
  buffer_load_dwordx4 {v(REC+4,4)}, v{vcell}, {s(SC,4)}, 0 offen offset:64 sc1
  s_cmp_lg_u32 s{sOV+6}, 0
  s_cbranch_scc1 K_CPOLL1
  buffer_load_dword v{t5}, v{t4}, {s(SF,4)}, 0 offen offset:{(FLN-1)*256 + (125 - (FLN-1)*(128//FLN))*4} sc1
K_CPOLL1:
  s_add_u32 s{sq}, s{sq}, 1
  s_waitcnt vmcnt(0)
  v_cmp_ne_u32 vcc, s{sTag}, v{REC+3}
  v_cmp_ne_u32 {s(sBad,2)}, s{sTag}, v{REC+7}
  s_or_b64 {s(sBad,2)}, vcc, {s(sBad,2)}
  v_cmp_ne_u32 vcc, s{sTag}, v{t5}
  s_and_b64 {s(sBad,2)}, {s(sBad,2)}, {s(sOV,2)}
  s_or_b64 {s(sEx,2)}, {s(sBad,2)}, vcc
  s_cbranch_scc0 K_CPOLLD
  s_cbranch_vccnz K_CPOLL2
  s_cmp_lg_u32 s{sOV+6}, 0
  s_cbranch_scc1 K_CPOLL2
  s_mov_b32 s{sOV+6}, 1""")
    for x in wl: a(x)
    a(f"""
K_CPOLL2:
  {"s_sleep %d" % OPT["slp"] if OPT["slp"] else ""}
  s_cmp_lt_u32 s{sq}, 0x8000
  s_cbranch_scc1 K_CPOLL
K_CPOLLD:
  s_mov_b32 exec_lo, 0xaaaaaaaa
  s_mov_b32 exec_hi, 0xaaaaaaaa
  v_mov_b32 v{REC+3}, 0
  v_mov_b32 v{REC+7}, 0
  s_mov_b64 exec, -1""")
    stamp(a, 6)
    NR = 8
    a(f"""
K_PHASE1:
  v_cmp_le_u32 vcc, 0xfffc0000, v{REC+NR-2}
  s_cbranch_vccz K_NOMARK
  s_and_saveexec_b64 {s(sEx,2)}, vcc
  v_lshrrev_b32 v{t0}, 2, v0                 ; producer
  v_lshrrev_b32 v{t1}, 5, v{t0}
  v_lshlrev_b32 v{t1}, 2, v{t1}
  v_lshlrev_b32 v{t0}, v{t0}, v{vone}
  ds_or_b32 v{t1}, v{t0} offset:{L_FLG+32}
  v_mov_b32 v{REC+NR-2}, 0
  s_mov_b64 exec, {s(sEx,2)}
K_NOMARK:""")
    for k in range(NR):
        if k == 4:
            a(f"""
  v_or3_b32 v{t3}, v{REC+k}, v{REC+k+1}, v{REC+k+2}
  v_or_b32 v{t3}, v{t3}, v{REC+k+3}
  v_cmp_ne_u32 vcc, 0, v{t3}
  s_cbranch_vccz K_P1E""")
        a(f"""
  v_lshlrev_b32 v{NOD+k}, 2, v{REC+k}
  v_and_b32 v{NOD+k}, 0xfc, v{NOD+k}
  v_cmpx_ne_u32 vcc, 0, v{REC+k}
  ds_add_rtn_u32 v{RNK+k}, v{NOD+k}, v{vone} offset:{L_CNT}
  s_mov_b64 exec, -1""")
    a(f"""
K_P1E:
  s_cmp_lg_u32 s{sOV+6}, 0
  s_cbranch_scc1 K_NOWL
  s_mov_b32 s{sOV+6}, 1""")
    for x in wl: a(x)
    a(f"""
K_NOWL:
  v_lshlrev_b32 v{t0}, 2, v{vl}
  v_subrev_u32 v{t4}, s{sStart}, v{vl}
  v_and_b32 v{t4}, 63, v{t4}
  s_waitcnt lgkmcnt(0)
  s_barrier
  ds_read_b32 v{t1}, v{t0} offset:{L_CNT}
  s_waitcnt lgkmcnt(0)
  v_add_u32 v{t1}, 3, v{t1}
  v_bfe_u32 v{t5}, v{t1}, 2, 1               ; left-over quad
  v_lshrrev_b32 v{t6}, 3, v{t1}
  v_lshl_or_b32 v{t1}, v{t5}, 16, v{t6}
  v_mov_b32 v{t2}, v{t1}
  s_nop 1
  v_add_u32_dpp v{t2}, v{t2}, v{t2} row_shr:1 row_mask:0xf bank_mask:0xf
  s_nop 1
  v_add_u32_dpp v{t2}, v{t2}, v{t2} row_shr:2 row_mask:0xf bank_mask:0xf
  s_nop 1
  v_add_u32_dpp v{t2}, v{t2}, v{t2} row_shr:4 row_mask:0xf bank_mask:0xf
  s_nop 1
  v_add_u32_dpp v{t2}, v{t2}, v{t2} row_shr:8 row_mask:0xf bank_mask:0xf
  s_nop 1
  v_add_u32_dpp v{t2}, v{t2}, v{t2} row_bcast:15 row_mask:0xa bank_mask:0xf
  s_nop 1
  v_add_u32_dpp v{t2}, v{t2}, v{t2} row_bcast:31 row_mask:0xc bank_mask:0xf
  s_nop 1
  v_readlane_b32 s{sT}, v{t2}, 63
  v_sub_u32 v{t1}, v{t2}, v{t1}
  s_lshr_b32 s{sq+1}, s{sT}, 16
  s_and_b32 s{sCO}, s{sT}, 0xffff
  s_lshl_b32 s{sq}, s{sCO}, 1                ; quads in the groups of eight
  s_lshr_b32 s{sCO}, s{sCO}, 2
  s_add_u32 s{sT}, s{sq}, s{sq+1}
  s_add_u32 s{sT}, s{sT}, 7
  s_lshr_b32 s{sT}, s{sT}, 3
  v_lshrrev_b32 v{t2}, 16, v{t1}
  v_add_u32 v{t2}, s{sq}, v{t2}              ; quad slot of the left-over quad
  v_and_b32 v{t1}, 0xffff, v{t1}
  v_lshl_or_b32 v{t0}, v{t6}, 16, v{t1}
  v_lshlrev_b32 v{t0}, 3, v{t0}              ; 8*start8 | 8*n8 << 16
  v_lshlrev_b32 v{t7}, 1, v{t6}
  v_sub_u32 v{t7}, v{t2}, v{t7}
  v_lshlrev_b32 v{t7}, 2, v{t7}              ; position base of the left-over quad
  s_cmp_gt_u32 s{sT}, {CAPB}
  s_cbranch_scc1 K_SPLIT""")
    for k0 in (0, 4):
        if k0:
            a(f"""
  v_or3_b32 v{t3}, v{REC+k0}, v{REC+k0+1}, v{REC+k0+2}
  v_or_b32 v{t3}, v{t3}, v{REC+k0+3}
  v_cmp_ne_u32 vcc, 0, v{t3}
  s_cbranch_vccz K_P2E""")
        for k in range(k0, k0+4):
            a(f"  ds_bpermute_b32 v{PF+24+(k&3)}, v{NOD+k}, v{t7}")
            a(f"  ds_bpermute_b32 v{NOD+k}, v{NOD+k}, v{t0}")
        for k in range(k0, k0+4):
            e = PF + 16 + 2*(k & 3)
            a(f"""
  v_lshrrev_b32 v{e}, 10, v{REC+k}
  v_and_b32 v{e}, {hex(0xffffff00 if not OPT['hot'] else 0x1f00)}, v{e}
  v_bfe_u32 v{e+1}, v{REC+k}, 6, 12
  v_lshl_add_u32 v{e+1}, v{e+1}, 5, v{vebase}""")
            if OPT["hot"]: a(f"  v_and_b32 v{e+1}, 0xfe0, v{e+1}")
        a("  s_waitcnt lgkmcnt(0)")
        for k in range(k0, k0+4):
            a(f"  v_cmp_lt_u32_sdwa {s(8+2*(k&3),2)}, v{RNK+k}, v{NOD+k} src0_sel:DWORD src1_sel:WORD_1")
        for k in range(k0, k0+4):
            a(f"  v_and_b32 v{NOD+k}, 0xffff, v{NOD+k}")
        for k in range(k0, k0+4):
            a(f"  v_cndmask_b32 v{NOD+k}, v{PF+24+(k&3)}, v{NOD+k}, {s(8+2*(k&3),2)}")
        for k in range(k0, k0+4):
            e = PF + 16 + 2*(k & 3)
            a(f"""
  v_add_lshl_u32 v{NOD+k}, v{NOD+k}, v{RNK+k}, 3
  v_cmpx_ne_u32 vcc, 0, v{REC+k}
  ds_write_b64 v{NOD+k}, {v(e,2)}
  s_mov_b64 exec, -1""")
    a(f"""
K_P2E:
  v_lshlrev_b32 v{t2}, 2, v{t2}
  v_cmpx_ne_u32 vcc, 0, v{t5}
  ds_write_b32 v{t2}, v{t4} offset:{L_GN}
  s_mov_b64 exec, -1
  v_add_lshl_u32 v{t2}, v{t1}, v{t6}, 3
  v_lshl_add_u32 v{t1}, v{t1}, 1, s{sW}
  v_lshlrev_b32 v{t1}, 2, v{t1}
K_GNL:
  v_cmpx_lt_u32 vcc, v{t1}, v{t2}
  ds_write_b32 v{t1}, v{t4} offset:{L_GN}
  v_add_u32 v{t1}, 32, v{t1}
  v_cmpx_lt_u32 vcc, v{t1}, v{t2}
  ds_write_b32 v{t1}, v{t4} offset:{L_GN}
  v_add_u32 v{t1}, 32, v{t1}
  v_cmpx_lt_u32 vcc, v{t1}, v{t2}
  s_cbranch_execnz K_GNL
  s_mov_b64 exec, -1
  s_add_u32 s{sCnt}, s{sT}, 7
  s_sub_u32 s{sCnt}, s{sCnt}, s{sW}
  s_lshr_b32 s{sCnt}, s{sCnt}, 3
  s_add_u32 s{sCO}, s{sCO}, 7
  s_sub_u32 s{sCO}, s{sCO}, s{sW}
  s_lshr_b32 s{sCO}, s{sCO}, 3
  {("s_mov_b32 s%d, 40" % sCnt + chr(10) + "  s_movk_i32 s%d, 320" % sT + chr(10) + "  s_mov_b32 s%d, 40" % sCO) if OPT["bench"] else ""}
""")
    stamp(a, 4)
    a(f"""
  s_cmp_eq_u32 s{sFirst}, 0
  s_cbranch_scc1 K_POLL2_D""")
    poll("K_POLL2", FHALF)
    a("  s_waitcnt lgkmcnt(0)\n  s_barrier")
    stamp(a, 7)
    dsc = " sc1" if OPT["dsc"] else ""
    def dma_issue():
        L = []
        for j in range(8):
            d = DO + (j & 1)
            L.append([f"  s_add_u32 m0, s{sStg}, {j*1040}",
                      f"  v_add_u32_dpp v{d}, v{ENT}, v{vchunk} row_newbcast:{2*j} row_mask:0xf bank_mask:0xf",
                      f"  buffer_load_dwordx4 v{d}, {s(SP,4)}, 0 offen{dsc} lds" if not OPT["nodma"] else "  s_nop 0"])
        L.append([f"  s_add_u32 m0, s{sStg}, 8320",
                  f"  v_add_u32 v{DO}, v{ENT+1}, v{vechunk}",
                  f"  buffer_load_dwordx4 v{DO}, {s(SE,4)}, 0 offen lds" if not (OPT["nodma"] or OPT["noe"]) else "  s_nop 0"])
        return L
    ndma = 0 if OPT["nodma"] else 8 if OPT["noe"] else 9
    def frag_reads():
        L = []
        for st in range(8):
            L.append(f"  ds_read_b128 {v(PF+4*st,4)}, v{vAlo if st < 4 else vAhi} offset:{32*(st&3)}")
        L.insert(2, f"  ds_read_b128 {v(EF,4)}, v{vEF}")
        return L
    def bq_reads():
        return [f"  ds_read_b64_tr_b16 {v(BQ+nq*t,2)}, v{vqa} offset:{64*t}" for t in range(4)]
    def chain(t, D):
        L = [f"  v_mfma_f32_32x32x16_bf16 {v(D,16)}, {v(EF,4)}, {v(W3+4*t,4)}, 0"]
        if OPT["lo"]:
            L.append(f"  v_mfma_f32_32x32x16_bf16 {v(D,16)}, {v(EF,4)}, {v(W3L+4*t,4)}, {v(D,16)}")
        L.append(f"  v_mfma_f32_32x32x16_bf16 {v(D,16)}, {v(PF+8*t,4)}, {v(I0,4)}, {v(D,16)}")
        L.append(f"  v_mfma_f32_32x32x16_bf16 {v(D,16)}, {v(PF+8*t+4,4)}, {v(I1,4)}, {v(D,16)}")
        if OPT["k8"]:
            L.append(f"  v_mfma_f32_32x32x8bf16_1k {v(D,16)}, {v(AQ,2)}, {v(BQ+2*t,2)}, {v(D,16)}")
        else:
            L.append(f"  v_mfma_f32_32x32x16_bf16 {v(D,16)}, {v(AQ,4)}, {v(BQ+4*t,4)}, {v(D,16)}")
        return L

    if OPT["stag"]:
        a(f"  s_cmp_lt_u32 s{sW}, 4\n  s_cbranch_scc1 K_STG\n  s_sleep {OPT['stag']}\nK_STG:")
    a(f"  ds_read_b64 {v(ENT,2)}, v{vent}\n  s_waitcnt lgkmcnt(0)")
    for x in dma_issue(): a("\n".join(x))
    a(f"  ds_read_b64 {v(ENT,2)}, v{vent} offset:2048")
    a(f"""
  s_cmp_eq_u32 s{sFirst}, 0
  s_cbranch_scc1 K_NOGEMM0
  s_mov_b32 s{sFirst}, 0
  s_waitcnt vmcnt({ndma}) lgkmcnt(0)""")
    node_gemm(W2F, WUT)
    a(f"  v_lshlrev_b32 v{t4}, 4, v{vl}")
    for st in range(4):
        a(f"  buffer_load_dwordx4 {v(WUB+4*st,4)}, v{t4}, {s(SW,4)}, s{sUB} offen offset:{st*1024} sc1")
    def pf5():
        a(f"  s_mul_i32 s{sq}, s2, 40000\n  v_add_u32 v{t0}, s{sq}, v{vt16}")
        for j in range(5):
            a(f"  buffer_load_dwordx4 {v(DUM,4)}, v{t0}, {s(SE,4)}, 0 offen")
            if j < 4: a(f"  v_add_u32 v{t0}, 8192, v{t0}")
    if OPT["pf2"] == 1: pf5()
    a(f"""
  s_or_b32 s{sq}, s2, s{sW}
  s_cmp_lg_u32 s{sq}, 0
  s_cbranch_scc1 K_NONONCE
  s_mov_b64 exec, 1
  v_mov_b32 v{t0}, {FNON}
  v_mov_b32 v{t1}, s{sTag}
  buffer_store_dword v{t1}, v{t0}, {s(SF,4)}, 0 offen
  s_mov_b64 exec, -1
  s_waitcnt vmcnt(0)
K_NONONCE:
  s_waitcnt lgkmcnt(0)
  s_barrier
K_NOGEMM:
  ds_read_b32 v{vgn1}, v{vgq}
  ds_read_b32 v{vsrow}, v{vrow}
  ds_read_b128 {v(GN,4)}, v{vga}
  s_waitcnt vmcnt({9 if OPT["pf2"] == 1 else 4})""")
    stamp(a, 8, 96)
    for x in frag_reads(): a(x)
    a(f"""
  s_waitcnt lgkmcnt(9)
  v_mad_u32_u24 v{vqa}, v{vgn1}, s{sQS}, v{vqlane}
  v_lshrrev_b64 {v(AQ,2)}, v{vsrow}, {v(PAT,2)}""")
    for x in bq_reads(): a(x)
    a("  s_waitcnt lgkmcnt(0)")
    for x in dma_issue(): a("\n".join(x))
    if OPT["pf2"] == 2: pf5()
    for x in chain(0, D0): a(x)
    if OPT["prio"]:
        a(f"  s_cmp_lt_u32 s{sW}, 4\n  s_cbranch_scc1 K_PR\n  s_setprio 1\nK_PR:")
    a(f"""
  s_nop 7
  s_nop 3
  s_cmp_eq_u32 s{sCnt}, 0
  s_cbranch_scc1 K_LOOPEND
  s_cmp_lg_u32 s{sMode}, 0
  s_cbranch_scc1 K_SAFE
  {"s_branch K_QUAD" if not OPT["octo"] else ""}
  s_sub_u32 s{sCnt}, s{sCnt}, s{sCO}
  s_cmp_eq_u32 s{sCO}, 0
  s_cbranch_scc1 K_QUAD""")

    def p(r): return v(r, 2)
    def octet_fast(d, e, t, r, sres):
        ex = [f"  v_exp_f32 v{e+i}, v{d+i}" for i in range(8)]
        L = [f"  v_pk_add_f32 {p(t)}, {p(e)}, 1.0 op_sel_hi:[1,0]",
             f"  v_pk_add_f32 {p(t+2)}, {p(e+4)}, 1.0 op_sel_hi:[1,0]",
             f"  v_pk_fma_f32 {p(t+4)}, {p(d)}, {p(e+2)}, {p(d)}",
             f"  v_pk_fma_f32 {p(t+6)}, {p(d+4)}, {p(e+6)}, {p(d+4)}",
             f"  v_pk_fma_f32 {p(e)}, {p(t)}, {p(e+2)}, {p(t)}",
             f"  v_pk_fma_f32 {p(e+4)}, {p(t+2)}, {p(e+6)}, {p(t+2)}",
             f"  v_pk_fma_f32 {p(t+4)}, {p(d+2)}, {p(t)}, {p(t+4)}",
             f"  v_pk_fma_f32 {p(t+6)}, {p(d+6)}, {p(t+2)}, {p(t+6)}",
             f"  v_pk_mul_f32 {p(t)}, {p(e)}, {p(e+4)}",
             f"  v_pk_mul_f32 {p(t+4)}, {p(t+4)}, {p(e+4)}",
             f"  v_rcp_f32 v{r}, v{t}",
             f"  v_rcp_f32 v{r+1}, v{t+1}",
             f"  v_pk_fma_f32 {p(t+4)}, {p(t+6)}, {p(e)}, {p(t+4)}",
             f"  v_pk_mul_f32 {p(sres)}, {p(t+4)}, {p(r)}"]
        return ex, L
    def octet_safe(d, e, t, r, sres):
        ex = [f"  v_exp_f32 v{e+i}, v{d+i}" for i in range(8)]
        L = [f"  v_pk_add_f32 {p(e+2*i)}, {p(e+2*i)}, 1.0 op_sel_hi:[1,0]" for i in range(4)]
        L += [f"  v_rcp_f32 v{t+i}, v{e+i}" for i in range(8)]
        L += [f"  v_pk_mul_f32 {p(sres)}, {p(d)}, {p(t)}"]
        L += [f"  v_pk_fma_f32 {p(sres)}, {p(d+2*i)}, {p(t+2*i)}, {p(sres)}" for i in range(1, 4)]
        return ex, L
    def zipl(x, y):
        o = []
        for i in range(max(len(x), len(y))):
            if i < len(x): o.append(x[i])
            if i < len(y): o.append(y[i])
        return o
    def adds(t, kind):
        if OPT["noadd"]: return [f"  ds_read_b32 v{DUM}, v{vgq}"] * (2 if kind == "octo" else 4)
        if kind == "octo": return [f"  ds_add_f64 v{AD+2*xy}, {v(CV+2*xy,2)} offset:{256*t}" for xy in range(2)]
        return [f"  ds_add_f64 v{AD+2*xy+o}, {v(CV+2*(2*o+xy),2)} offset:{256*t}" for o in range(2) for xy in range(2)]
    def block_body(kind, u, nun):
        oc = octet_safe if kind == "safe" else octet_fast
        nadd = 2 if kind == "octo" else 4
        B = []
        for t in range(4):
            D = D0 if t % 2 == 0 else D1
            Dn = D1 if t % 2 == 0 else D0
            exa, La = oc(D, EA, TA, RA, SA)
            exb, Lb = oc(D+8, EB, TB, RB, SB)
            ex = exa + exb
            ch = chain((t+1) % 4, Dn)
            late = []
            if kind == "octo":
                keep = lambda L: [x for x in L[:-1] if "v_rcp" not in x]
                dk = DK + 2*(t & 1)
                pk = zipl(keep(La), keep(Lb))
                pk = pk[:-4] + [f"  v_pk_mul_f32 {p(dk)}, {p(TA)}, {p(TB)}"] + pk[-4:-2] + \
                     [f"  v_rcp_f32 v{RA}, v{dk}", f"  v_rcp_f32 v{RA+1}, v{dk+1}"] + pk[-2:] + \
                     [f"  v_pk_mul_f32 {p(TA+4)}, {p(TA+4)}, {p(TB)}"]
                if t & 1: pk.append(f"  v_pk_fma_f32 {p(MAC)}, {p(DK)}, {p(DK+2)}, {p(MAC)}")
                pk += [f"  v_pk_fma_f32 {p(TA+4)}, {p(TB+4)}, {p(TA)}, {p(TA+4)}",
                       f"  v_pk_mul_f32 {p(SA)}, {p(TA+4)}, {p(RA)}"]
                fin = [f"  v_cvt_f64_f32 {v(CV+2*xy,2)}, v{SA+xy}" for xy in range(2)]
                adr = (0, 2)
            else:
                pk = zipl(La, Lb)
                if kind == "quad":
                    idx = max(i for i, x in enumerate(pk) if x.startswith(f"  v_pk_mul_f32 {p(TB)}, {p(EB)}"))
                    pk.insert(idx+1, f"  v_pk_fma_f32 {p(MAC)}, {p(TA)}, {p(TB)}, {p(MAC)}")
                fin = [f"  v_cvt_f64_f32 {v(CV+2*(2*o+xy),2)}, v{S+xy}" for o, S in ((0, SA), (1, SB)) for xy in range(2)]
                adr = range(4)
            fin += adds(t, kind)
            if t == 0:
                pk = pk[:4] + [f"  v_mad_u32_u24 v{AD+i}, v{GN+i}, s{sAS}, v{vacl}" for i in adr] + pk[4:]
            if t == 1:
                pk = pk[:8] + [f"  ds_read_b64 {v(ENT,2)}, v{vent} offset:{4096+2048*u}",
                      f"  ds_read_b32 v{vgn1}, v{vgq} offset:{256+256*u}",
                      f"  ds_read_b32 v{vsrow}, v{vrow} offset:{2048+2048*u}",
                      f"  ds_read_b128 {v(GN,4)}, v{vga} offset:{256+256*u}"] + pk[8:]
            if t == 3:
                B.append(f"  s_waitcnt lgkmcnt({nadd})")
            dma = dma_issue() if t == 3 else []
            per = 16 // len(ch); e = 0
            for i, m in enumerate(ch):
                B.append(m)
                n = per if i < len(ch)-1 else 16 - e
                B += ex[e:e+2]
                if late: B.append(late.pop(0))
                B += ex[e+2:e+n]; e += n
                if OPT["dmapos"] == 0:
                    for _ in range(2):
                        if dma: B += dma.pop(0)
            if t == 2:
                mid = [f"  s_waitcnt vmcnt(0) lgkmcnt({nadd})",
                       f"  v_mad_u32_u24 v{vqa}, v{vgn1}, s{sQS}, v{vqlane}"]
                rd = frag_reads() + bq_reads()
                aq = [f"  v_lshrrev_b64 {v(AQ,2)}, v{vsrow}, {v(PAT,2)}"]
                if OPT["rdgap"] == 0: B += mid + rd + aq + pk
                else:
                    q = []
                    for i, x in enumerate(aq + pk):
                        if rd and i % OPT["rdgap"] == 0: q.append(rd.pop(0))
                        q.append(x)
                    B += mid + q + rd
            elif t == 3:
                inc = []
                if u == nun - 1 and OPT["bench"]:
                    inc = [f"  v_add_u32 v{DUM+i}, {2048*nun}, v{vent}" for i in range(4)]
                elif u == nun - 1:
                    inc = incs(nun)
                pk = pk + inc
                if OPT["dmapos"] == 1:
                    q = []
                    for i, x in enumerate(pk):
                        if dma and i % 3 == 0: q += dma.pop(0)
                        q.append(x)
                    pk = q
                for x in dma: B += x
                B += pk
            else:
                B += pk
            B += fin
        return B
    def incs(n):
        return [f"  v_add_u32 v{vent}, {2048*n}, v{vent}", f"  v_add_u32 v{vrow}, {2048*n}, v{vrow}",
                f"  v_add_u32 v{vgq}, {256*n}, v{vgq}", f"  v_add_u32 v{vga}, {256*n}, v{vga}"]
    def loop(kind):
        lab = {"safe": "K_SAFE", "quad": "K_QUAD", "octo": "K_FAST"}[kind]
        nun = OPT["unroll"] if kind == "octo" else 1
        cnt = sCO if kind == "octo" else sCnt
        L = []
        for u in range(nun):
            L += block_body(kind, u, nun)
            L.append(f"  s_sub_u32 s{cnt}, s{cnt}, 1")
            L.append(f"  s_cmp_lg_u32 s{cnt}, 0")
            L.append(f"  s_cbranch_scc1 {lab}" if u == nun - 1 else f"  s_cbranch_scc0 K_OX{u}")
        ab = OPT["abl"]
        if ab & 1: L = [x for x in L if not ("v_mfma" in x and (f", {v(I0,4)}," in x or f", {v(I1,4)}," in x))]
        if ab & 2: L = [x for x in L if "v_mfma_f32_32x32x8" not in x and "tr_b16" not in x]
        if ab & 4: L = [x.replace("v_exp_f32", "v_mov_b32") for x in L]
        if ab & 8: L = [x for x in L if "v_pk_" not in x]
        if ab & 16: L = [x for x in L if "v_mfma" not in x]
        if ab & 32: L = [x for x in L if "ds_read_b128" not in x]
        if ab & 64: L = [x for x in L if "v_exp" not in x]
        if ab & 128:
            M = []
            for x in L:
                if "v_mfma" in x and f", {v(I1,4)}," in x: continue
                if "v_mfma" in x and f", {v(I0,4)}," in x:
                    m = re.match(r"\s*v_mfma_f32_32x32x16_bf16 (v\[\d+:\d+\]), v\[(\d+):", x)
                    M.append(f"  v_smfmac_f32_32x32x32_bf16 {m.group(1)}, {v(I0,4)}, {v(int(m.group(2)),8)}, v{vone}"); continue
                m = re.match(r"\s*ds_read_b128 v\[(\d+):\d+\], v(\d+) offset:(\d+)", x)
                if m and PF <= int(m.group(1)) < PF + 32:
                    r0 = int(m.group(1))
                    M.append(f"  ds_read_b64_tr_b16 {v(r0,2)}, v{vqa} offset:{m.group(3)}")
                    M.append(f"  ds_read_b64_tr_b16 {v(r0+2,2)}, v{vqa} offset:{int(m.group(3))+128}"); continue
                M.append(x)
            L = M
        if ab & 256:
            M = []
            for x in L:
                if "v_mfma" in x and (f", {v(I1,4)}," in x or f", {v(I0,4)}," in x): continue
                if "v_mfma_f32_32x32x16" in x and x.rstrip().endswith(", 0"): x = x.rstrip()[:-1] + v(PF, 16)
                m = re.match(r"\s*ds_read_b128 v\[(\d+):\d+\], v(\d+) offset:(\d+)", x)
                if m and PF <= int(m.group(1)) < PF + 32:
                    for q in range(8): M.append(f"  ds_read_u16_d16_hi v{PF+(int(m.group(1))+q)%32}, v{vacl} offset:{64*q}")
                    continue
                M.append(x)
            L = M
        if OPT["align"]: L = align8(L)
        a(f".p2align 6\n{lab}:")
        for x in L: a(x)
    loop("octo")
    a(f"""
K_OXE:
  s_cmp_lg_u32 s{sCnt}, 0
  s_cbranch_scc1 K_QUAD""")
    a(f"""
K_LOOPEND:""")
    a(f"""
  s_waitcnt vmcnt(0) lgkmcnt(0)
  s_barrier""")
    stamp(a, 9, 98)
    a(f"""
  s_cmp_lg_u32 s{sKind}, 0
  s_cbranch_scc1 K_NEXT
K_CELLSDONE:
  v_mov_b32 v{t0}, {L_FLG+32}
  ds_read_b128 {v(CV,4)}, v{t0}
K_CONV:
  s_mul_i32 s{sTmp}, s{sW}, {AS}
  s_add_u32 s{sTmp}, s{sTmp}, {L_ACC}
  v_lshlrev_b32 v{t1}, 4, v{vl}
  v_add_u32 v{t1}, s{sTmp}, v{t1}""")
    for k in range(5):
        a(f"  ds_read_b128 {v(D0+4*k,4)}, v{t1} offset:{k*8*AS}")
    a(f"""
  s_mul_i32 s{sTmp}, s{sW}, {XS}
  s_add_u32 s{sTmp}, s{sTmp}, {L_X}
  v_lshlrev_b32 v{t2}, 2, v{vl}
  v_add_u32 v{t2}, s{sTmp}, v{t2}
  s_cmp_ge_u32 s{sKind}, 3
  s_cbranch_scc1 K_CONV2
  s_waitcnt lgkmcnt(5)
  v_or3_b32 v{t0}, v{CV}, v{CV+1}, v{CV+2}
  v_or_b32 v{t0}, v{t0}, v{CV+3}
  v_cmp_ne_u32 vcc, 0, v{t0}
  s_cbranch_vccnz K_STARTOV
K_CONV2:
  s_mov_b32 s{sTmp}, 0x71800000              ; 2^100
  v_cmp_nle_f32 {s(sBad,2)}, v{MAC}, s{sTmp}
  v_cmp_nle_f32 vcc, v{MAC+1}, s{sTmp}
  s_or_b64 {s(sBad,2)}, {s(sBad,2)}, vcc
  s_movk_i32 s{sTmp}, 0x207""")
    for k in range(5):
        a(f"""
  s_waitcnt lgkmcnt({4-k})
  v_cvt_f32_f64 v{EA+2*k}, {v(D0+4*k,2)}
  v_cvt_f32_f64 v{EA+2*k+1}, {v(D0+4*k+2,2)}
  v_cmp_class_f32 vcc, v{EA+2*k}, s{sTmp}
  s_or_b64 {s(sBad,2)}, {s(sBad,2)}, vcc
  v_cmp_class_f32 vcc, v{EA+2*k+1}, s{sTmp}
  s_or_b64 {s(sBad,2)}, {s(sBad,2)}, vcc
  v_cvt_pk_bf16_f32 v{EB+k}, v{EA+2*k}, v{EA+2*k+1}""")
    for k in range(5):
        a(f"  ds_write_b32 v{t2}, v{EB+k} offset:{k*8*XS}")
    a(f"""
  s_cmp_eq_u64 {s(sBad,2)}, 0
  s_cbranch_scc1 K_OKW
  v_mov_b32 v{t0}, {L_FLG}
  ds_write_b32 v{t0}, v{vone}
K_OKW:
  s_waitcnt lgkmcnt(0)
  s_barrier
  v_mov_b32 v{t0}, {L_FLG}
  ds_read_b32 v{t0}, v{t0}""")
    for nt in range(2):
        for st in range(4):
            a(f"  ds_read_b128 {v(XF+16*nt+4*st,4)}, v{vxb} offset:{nt*16*XS + st*64}")
    a(f"""
  s_waitcnt lgkmcnt(8)
  v_readfirstlane_b32 s{sTmp}, v{t0}
  s_cmp_gt_u32 s{sTmp}, s{sMode}
  {"s_cbranch_scc1 K_RESTART" if not EXP else "s_nop 0"}
  s_waitcnt lgkmcnt(4)""")
    for st in range(4):
        c = "0" if st == 0 else v(D0, 4)
        a(f"  v_mfma_f32_16x16x32_bf16 {v(D0,4)}, {v(WUB+4*st,4)}, {v(XF+4*st,4)}, {c}")
    for st in range(4):
        a(f"  ds_read_b128 {v(D1+4*st,4)}, v{vxb} offset:{2*16*XS + st*64}")
    a("  s_waitcnt lgkmcnt(4)")
    for st in range(4):
        c = "0" if st == 0 else v(D0+4, 4)
        a(f"  v_mfma_f32_16x16x32_bf16 {v(D0+4,4)}, {v(WUB+4*st,4)}, {v(XF+16+4*st,4)}, {c}")
    a("  s_waitcnt lgkmcnt(0)")
    for st in range(4):
        c = "0" if st == 0 else v(D0+8, 4)
        a(f"  v_mfma_f32_16x16x32_bf16 {v(D0+8,4)}, {v(WUB+4*st,4)}, {v(D1+4*st,4)}, {c}")
    a(f"""
  s_mov_b32 s{sK}, {NLN2}
  s_mov_b32 s{sK+1}, {NLN2}
  s_mov_b32 s{sTmp}, {NLOG2E}
  s_mov_b32 s{sTmp+1}, {NLOG2E}
  v_and_b32 v{t0}, 15, v{vl}
  v_lshlrev_b32 v{t0}, 8, v{t0}
  v_lshrrev_b32 v{t1}, 4, v{vl}
  v_lshl_add_u32 v{t0}, v{t1}, 3, v{t0}
  s_lshl_b32 s{sTmp+2}, s{sW}, 5
  v_add_u32 v{t0}, s{sTmp+2}, v{t0}
  v_add_u32 v{t1}, 4096, v{t0}
  v_add_u32 v{t2}, 8192, v{t0}""")
    for nt in range(3):
        d = D0 + 4*nt
        a(f"""
  v_pk_fma_f32 {p(d)}, {p(d)}, {s(sK,2)}, {p(U+4*nt)}
  v_pk_fma_f32 {p(d+2)}, {p(d+2)}, {s(sK,2)}, {p(U+4*nt+2)}
  v_pk_mul_f32 {p(EA)}, {p(d)}, {s(sTmp,2)}
  v_pk_mul_f32 {p(EA+2)}, {p(d+2)}, {s(sTmp,2)}""")
        for i in range(4): a(f"  v_exp_f32 v{EA+i}, v{EA+i}")
        a(f"  s_nop 0\n  v_pk_add_f32 {p(EA)}, {p(EA)}, 1.0 op_sel_hi:[1,0]\n  v_pk_add_f32 {p(EA+2)}, {p(EA+2)}, 1.0 op_sel_hi:[1,0]")
        for i in range(4): a(f"  v_rcp_f32 v{EA+i}, v{EA+i}")
        a(f"""
  s_nop 0
  v_pk_mul_f32 {p(d)}, {p(d)}, {p(EA)}
  v_pk_mul_f32 {p(d+2)}, {p(d+2)}, {p(EA+2)}
  v_cvt_pk_bf16_f32 v{EB+2*nt}, v{d}, v{d+1}
  v_cvt_pk_bf16_f32 v{EB+2*nt+1}, v{d+2}, v{d+3}
  buffer_store_dwordx2 {v(EB+2*nt,2)}, v{t0+nt}, {s(SO,4)}, 0 offen""")
    if OPT["stamp"]:
        a(f"""
  s_waitcnt vmcnt(0)
  s_memrealtime s[4:5]
  s_waitcnt lgkmcnt(0)
  s_lshl_b32 s6, s2, 3
  s_add_u32 s6, s6, s{sW}
  s_lshl_b32 s6, s6, 6
  s_add_u32 s6, s6, {WS_STAMP}
  s_add_u32 s6, s{pWS}, s6
  s_addc_u32 s7, s{pWS+1}, 0
  s_mov_b64 exec, 1
  v_mov_b32 v1, 0""")
        for i, r in enumerate([80+2*i for i in range(8)] + [96, 98, 4]):
            pass
        regs = [80, 82, 84, 86, 88, 90, 92, 94, 8, 9, 4, 10, 11, sT]
        for i, r in enumerate(regs):
            a(f"  v_mov_b32 v2, s{r}\n  global_store_dword v1, v2, s[6:7] offset:{4*i}")
    a(f"""
K_END:
  s_endpgm
""")
    a(f"""
K_PREP:
  s_sub_u32 s{sq}, s2, {2*G}
  s_lshl_b32 s{sq}, s{sq}, 14
  s_lshl_b32 s{sq+1}, s{sW}, 12
  s_add_u32 s{sq}, s{sq}, s{sq+1}
  v_lshlrev_b32 v{t0}, 4, v{vl}
  v_mov_b32 v{t7}, s{sTag}
  s_waitcnt vmcnt({10+NA})
  s_barrier""")
    wtr(PF, vqa)
    a("  s_waitcnt lgkmcnt(0)")
    for st in range(4):
        a(f"  buffer_store_dwordx4 {v(PF+4*st,4)}, v{t0}, {s(SW,4)}, s{sq} offen offset:{st*1024} sc1")
    a(f"""
  s_lshr_b32 s{sq}, s{sW}, 2
  s_add_u32 s{sq}, s{sq}, s2
  s_cmp_lg_u32 s{sq}, {2*G}
  s_cbranch_scc1 K_PREPD
  s_mov_b32 s{sq+1}, {NLOG2E}
  s_lshl_b32 s{sq}, s{sW}, 10
  s_waitcnt vmcnt({6+NA})""")
    for jj in range(8):
        a(f"  v_lshlrev_b32 v{D0+jj}, 16, v{D0+jj}\n  v_mul_f32 v{D0+jj}, s{sq+1}, v{D0+jj}")
    for i in range(4):
        a(f"  v_cvt_pk_bf16_f32 v{D0+8+i}, v{D0+2*i}, v{D0+1+2*i}")
    for i in range(4):
        a(f"""
  v_lshlrev_b32 v{t2}, 16, v{D0+8+i}
  v_and_b32 v{t3}, 0xffff0000, v{D0+8+i}
  v_sub_f32 v{t2}, v{D0+2*i}, v{t2}
  v_sub_f32 v{t3}, v{D0+1+2*i}, v{t3}
  v_cvt_pk_bf16_f32 v{D0+12+i}, v{t2}, v{t3}""")
    a(f"""
  s_add_u32 s{sq+1}, s{sq}, {WF_3L}
  s_add_u32 s{sq}, s{sq}, {WF_3H}
  buffer_store_dwordx4 {v(D0+8,4)}, v{t0}, {s(SW,4)}, s{sq} offen sc1
  buffer_store_dwordx4 {v(D0+12,4)}, v{t0}, {s(SW,4)}, s{sq+1} offen sc1
K_PREPD:""")
    own_x(4+NA)
    a(f"""
  s_waitcnt vmcnt(0)
  s_barrier
  s_cmp_eq_u32 s{sW}, 0
  s_cbranch_scc1 K_FLAG
  s_branch K_PST""")
    a(f"""
K_OVF:
  s_waitcnt lgkmcnt(0)
  s_barrier
  s_mul_i32 s{sq+1}, s2, {OVSTR//2}
  s_add_u32 s{sq+1}, s{sq+1}, 64
  v_mov_b32 v{t5}, {L_FLG+8}
  v_mov_b32 v{t6}, -1""")
    for j in range(5):
        a(f"""
  v_cmp_le_u32 vcc, {CAP-1}, v{RK+j}
  s_and_b64 exec, exec, vcc
  s_cbranch_execz K_OV{j}
  v_add_u32 v{t1}, {L_BCNT}, v{B4+j}
  ds_read_b32 v{t1}, v{t1}
  s_waitcnt lgkmcnt(0)
  v_cmp_ne_u32 vcc, {CAP}, v{t1}
  s_nop 1
  v_cndmask_b32 v{t3}, v{SS_+j}, v{t6}, vcc
  ds_write_b32 v{CA+j}, v{t3} offset:{CELLB-8}
  s_and_b64 exec, exec, vcc
  s_cbranch_execz K_OV{j}
  ds_add_rtn_u32 v{t1}, v{t5}, v{vone}
  v_mov_b32 v{CV}, v{SS_+j}
  v_lshrrev_b32 v{CV+1}, 2, v{B4+j}
  s_waitcnt lgkmcnt(0)
  v_lshl_add_u32 v{t1}, v{t1}, 3, s{sq+1}
  buffer_store_dwordx2 {v(CV,2)}, v{t1}, {s(SV,4)}, 0 offen sc1
  s_waitcnt vmcnt(0)
K_OV{j}:
  s_mov_b64 exec, -1""")
    a(f"""
  s_waitcnt lgkmcnt(0)
  s_barrier
  ds_read_b32 v{t1}, v{t5}
  s_sub_u32 s{sq+1}, s{sq+1}, 64
  v_mov_b32 v{t3}, s{sq+1}
  v_mov_b32 v{t2}, 0
  s_waitcnt lgkmcnt(0)
  buffer_store_dword v{t1}, v{t3}, {s(SV,4)}, 0 offen sc1
  s_waitcnt vmcnt(0)
  s_branch K_OVFDONE""")
    for u in range(OPT["unroll"] - 1):
        a(f"K_OX{u}:\n  s_cmp_eq_u32 s{sCnt}, 0\n  s_cbranch_scc1 K_LOOPEND")
        for x in incs(u + 1): a(x)
        a("  s_branch K_QUAD")
    loop("quad")
    a("  s_branch K_LOOPEND")
    a("K_TEXTEND:")
    loop("safe")
    a("  s_branch K_LOOPEND")
    a(f"""
K_NOGEMM0:
  s_waitcnt vmcnt(0)
  s_branch K_NOGEMM
K_RESTART:
  s_mov_b32 s{sMode}, 1
  s_mov_b32 s{sKind}, 0
  s_waitcnt lgkmcnt(0)
  s_barrier
  v_mov_b32 v{CV}, 0
  v_mov_b32 v{CV+1}, 0
  v_mov_b32 v{CV+2}, 0
  v_mov_b32 v{CV+3}, 0""")
    for j in range(5):
        a(f"  ds_write_b128 v{vt16}, {v(CV,4)} offset:{L_ACC + j*8192}")
    a(f"""
  v_cmp_gt_u32 vcc, {(40*AS-5*8192)//16}, v0
  s_and_saveexec_b64 {s(sEx,2)}, vcc
  ds_write_b128 v{vt16}, {v(CV,4)} offset:{L_ACC + 5*8192}
  s_mov_b64 exec, {s(sEx,2)}
  s_branch K_RELOAD
K_SPLIT:
  s_mov_b32 s{sKind}, 1
  s_waitcnt lgkmcnt(0)
  s_barrier
  s_branch K_RELOAD
K_NEXT:
  s_cmp_eq_u32 s{sKind}, 4
  s_cbranch_scc1 K_NEXTOV
  s_cmp_eq_u32 s{sKind}, 3
  s_cbranch_scc1 K_OVPART1
  s_cmp_eq_u32 s{sKind}, 2
  s_cbranch_scc1 K_CELLSDONE
  s_mov_b32 s{sKind}, 2
K_RELOAD:
  v_lshrrev_b32 v{t1}, 2, v0
  s_mov_b32 s{sq}, {CH*32}
  v_mul_u32_u24 v{vebase}, s{sq}, v{t1}
  s_waitcnt vmcnt(0)""")
    for k in range(2):
        a(f"  buffer_load_dwordx4 {v(REC+4*k,4)}, v{vcell}, {s(SC,4)}, 0 offen offset:{64*k} sc1")
    a(f"""
  s_waitcnt vmcnt(0)
  s_mov_b32 exec_lo, 0xaaaaaaaa
  s_mov_b32 exec_hi, 0xaaaaaaaa
  v_mov_b32 v{REC+3}, 0
  v_mov_b32 v{REC+7}, 0
  s_mov_b64 exec, -1
  s_cmp_eq_u32 s{sKind}, 0
  s_cbranch_scc1 K_ROUND
  s_lshr_b32 s{sq}, s{sW}, 2
  s_add_u32 s{sq}, s{sq}, 1
  s_cmp_eq_u32 s{sq}, s{sKind}
  s_cbranch_scc1 K_ROUND""")
    for k in range(NR): a(f"  v_mov_b32 v{REC+k}, 0")
    a(f"""
K_ROUND:
  v_mov_b32 v{CV}, 0
  v_mov_b32 v{CV+1}, 0
  v_mov_b32 v{CV+2}, 0
  v_mov_b32 v{CV+3}, 0
  v_cmp_gt_u32 vcc, {(L_FLG-L_GN)//16}, v0
  s_and_saveexec_b64 {s(sEx,2)}, vcc
  ds_write_b128 v{vt16}, {v(CV,4)} offset:{L_GN}
  s_mov_b64 exec, {s(sEx,2)}""")
    prefill()
    a(f"""
  v_and_b32 v{vent}, 2047, v{vent}
  v_and_b32 v{vrow}, 2047, v{vrow}
  v_subrev_u32 v{vga}, {L_GN}, v{vga}
  v_and_b32 v{vga}, 255, v{vga}
  v_add_u32 v{vga}, {L_GN}, v{vga}
  v_and_b32 v{t2}, 12, v{vl}
  v_add_u32 v{vgq}, v{vga}, v{t2}
  s_waitcnt lgkmcnt(0)
  s_barrier
  s_branch K_PHASE1
K_STARTOV:""")
    for i in range(4): a(f"  v_readfirstlane_b32 s{sOV+i}, v{CV+i}")
    a(f"""
  s_mov_b32 s{sKind}, 4
  s_waitcnt lgkmcnt(0)
K_NEXTOV:""")
    for i in range(2):
        a(f"""
  s_ff1_i32_b64 s{sP}, {s(sOV+2*i,2)}
  s_cmp_eq_u32 s{sP}, -1
  s_cbranch_scc1 K_OVN{i}
  s_bitset0_b64 {s(sOV+2*i,2)}, s{sP}
  s_add_u32 s{sP}, s{sP}, {64*i}
  s_branch K_OVGO
K_OVN{i}:""")
    a(f"""
  s_branch K_CONV
K_OVGO:
  s_mov_b32 s{sKind}, 3
  v_mov_b32 v{t4}, v0
  s_branch K_OVLD
K_OVPART1:
  s_mov_b32 s{sKind}, 4
  v_add_u32 v{t4}, 2048, v0
K_OVLD:
  s_mul_i32 s{sq}, s{sP}, {OVSTR}
  s_mul_i32 s{sq+1}, s{sP}, {CH*32}
  v_mov_b32 v{vebase}, s{sq+1}
  v_mov_b32 v{t0}, s{sq}
  buffer_load_dword v{t1}, v{t0}, {s(SV,4)}, 0 offen sc1
  v_lshl_add_u32 v{t2}, v{t4}, 3, v{t0}""")
    for k in range(4):
        a(f"  buffer_load_dwordx2 {v(PF+2*k,2)}, v{t2}, {s(SV,4)}, 0 offen offset:64 sc1\n  v_add_u32 v{t2}, 4096, v{t2}")
    a(f"  s_waitcnt vmcnt(0)")
    for k in range(4):
        a(f"""
  v_cmp_lt_u32 vcc, v{t4}, v{t1}
  v_cmp_eq_u32 {s(sEx,2)}, s2, v{PF+2*k+1}
  s_and_b64 vcc, vcc, {s(sEx,2)}
  v_add_u32 v{t4}, 512, v{t4}
  s_nop 1
  v_cndmask_b32 v{REC+k}, 0, v{PF+2*k}, vcc""")
    for k in range(4, NR): a(f"  v_mov_b32 v{REC+k}, 0")
    a("  s_branch K_ROUND")
    return a.text(), nv, NS

def gen_diag(idx):
    a = Asm()
    a(f"""
.globl mpnn_d_kernel
.p2align 8
.type mpnn_d_kernel,@function
mpnn_d_kernel:
  s_cmp_ge_u32 s2, 1
  s_cbranch_scc1 D_END
  s_load_dwordx2 s[4:5], s[0:1], 64
  s_waitcnt lgkmcnt(0)
  s_add_u32 s4, s4, {WS_STAMP + (OPT['wsb'] << 20)}
  s_addc_u32 s5, s5, 0
  s_load_dword s6, s[4:5], 0
  s_waitcnt lgkmcnt(0)
  s_sub_u32 s6, s6, 100000""")
    for q, (ix, ismax) in enumerate(((idx, 1), (0, 0))):
        op = "max" if ismax else "min"
        a(f"  v_lshlrev_b32 v1, {6 if not OPT['dodd'] else 10}, v0\n  v_add_u32 v1, {ix*4 + (512 + 64*(OPT['dodd']-1) if OPT['dodd'] else 0)}, v1\n  v_mov_b32 v3, {0 if ismax else -1}")
        nk = 32 if not OPT['dodd'] else 2
        for k in range(nk):
            a(f"  global_load_dword v{8+k}, v1, s[4:5]\n  v_add_u32 v1, {4096 if not OPT['dodd'] else 65536}, v1")
        a("  s_waitcnt vmcnt(0)")
        for k in range(nk):
            a(f"  v_subrev_u32 v2, s6, v{8+k}\n  v_{op}_u32 v3, v3, v2")
        a(f"  s_mov_b32 s{20+q}, {0 if ismax else -1}\n  s_nop 1")
        for l in range(64):
            a(f"  v_readlane_b32 s8, v3, {l}\n  s_nop 0\n  s_{op}_u32 s{20+q}, s{20+q}, s8")
    a(f"""
  s_sub_u32 s20, s20, s21
  s_min_u32 s20, s20, 20000
  s_lshl_b32 s20, s20, 3
  {'s_mov_b32 s20, 0' if OPT['dz'] else ''}
  s_memrealtime s[8:9]
  s_waitcnt lgkmcnt(0)
D_L:
  s_memrealtime s[10:11]
  s_waitcnt lgkmcnt(0)
  s_sub_u32 s12, s10, s8
  s_cmp_lt_u32 s12, s20
  s_cbranch_scc1 D_L
D_END:
  s_endpgm
""")
    return a.text()

HEAD = """; Kernarg layout for this problem (72 bytes, ptrs only, base s[0:1]):
"""
def main():
    k, nv, ns = gen()
    out = HEAD + f"; @launch grid=({NB},1,1) block=(512,1,1) lds={LDS}\n"
    if OPT["diag"] >= 0:
        out = HEAD + f"; @launch kernel={KN} grid=({NB},1,1) block=(512,1,1) lds={LDS}\n; @launch kernel=mpnn_d_kernel grid=(1,1,1) block=(64,1,1) lds=0\n"
        k += gen_diag(OPT["diag"])
    out += '.amdgcn_target "amdgcn-amd-amdhsa--gfx950"\n.text\n' + k
    out += f""".section .rodata,"a"
.p2align 6
.amdhsa_kernel {KN}
  .amdhsa_next_free_vgpr {nv}
  .amdhsa_next_free_sgpr {ns}
  .amdhsa_accum_offset {(nv+3)//4*4}
  .amdhsa_group_segment_fixed_size 0
  .amdhsa_kernarg_size 72
  .amdhsa_user_sgpr_count 2
  .amdhsa_user_sgpr_kernarg_segment_ptr 1
  .amdhsa_system_sgpr_workgroup_id_x 1
.end_amdhsa_kernel
"""
    if OPT["diag"] >= 0:
        out += """.p2align 6
.amdhsa_kernel mpnn_d_kernel
  .amdhsa_next_free_vgpr 48
  .amdhsa_next_free_sgpr 32
  .amdhsa_accum_offset 48
  .amdhsa_group_segment_fixed_size 0
  .amdhsa_kernarg_size 72
  .amdhsa_user_sgpr_count 2
  .amdhsa_user_sgpr_kernarg_segment_ptr 1
  .amdhsa_system_sgpr_workgroup_id_x 1
.end_amdhsa_kernel
"""
    open(sys.argv[1], "w").write(out)
    print("vgprs", nv, "lds", LDS)
main()
```

```python
from common import *

N = 10000; E = 320000
G = 125
CH = 2560
NB = 256
MAGIC = 26843
CAP = 28
CELLB = 128
BSTR = G * CELLB

WS_P = 256
WS_CELL = 0x280000
WS_WF = 0x1280000
WF_W2, WF_UT, WF_UB, WF_3H, WF_3L = 0, 32768, 65536, 98304, 102400
WF_SIZE = 106496
WS_OVF = 0x12A0000
OVSTR = 64 + CH * 8
WS_FLAG = 0x1520000
WS_STAMP = 0x1600000

OPT = dict(lo=0, k8=1, stamp=0, nodma=0, noadd=0, noe=0, hot=0, align=1, unroll=2, dmapos=0, rdpos=0, dsc=1, pf=1, slp=0, stf=1, addpos=0, rdgap=0, prio=0, bench=0, octo=1, frep=8, fln=16, slp0=0, plf=1, flf=1, diag=-1, touch=0, dz=0, abl=0, dodd=0, wsb=0, claim=0, slpa=0, slpb=0, zt=0, cpf=0, pf2=0, stag=0, bdl=0, wfirst=0)
for a_ in sys.argv[2:]:
    k_, v_ = a_.split("="); OPT[k_] = int(v_)
EXP = OPT["bench"] or OPT["nodma"] or OPT["noe"] or OPT["noadd"] or OPT["hot"]

FL_ = ['', 'sc1', 'sc0 sc1', 'sc1 nt', 'sc0 sc1 nt']; PLF = FL_[OPT['plf']]; FLF = FL_[OPT['flf']]
STF = ['', 'sc1', 'sc0 sc1', 'sc1 nt'][OPT['stf']]
FREP = OPT['frep']; FLN = OPT['fln']; FSH = (128//FLN).bit_length()-1; FHALF = FREP*FLN*256; FNON = 2*FHALF; FMASK = hex((1<<FREP)-1)
NA = 1 if OPT['claim'] & 4 else 0
NCL = (3 if OPT['claim'] & 1 else 0) + NA
NCC = (4 if OPT['claim'] & 2 else 0) + NA
CAPB = 70
L_ENT = 0
L_GN = (CAPB + 1) * 256
L_CNT = L_GN + (CAPB + 17) * 32
L_FLG = L_CNT + 256
L_ACC = L_FLG + 64
AS = 1040
L_Q = L_ACC + 40 * AS
QS = 320
L_X = L_Q + 40 * QS
XS = 288
L_STG = L_X + 40 * XS
STG = 8 * 1040 + 1024
LDS = L_STG + 8 * STG
L_CIMG = L_STG
L_BCNT = L_CIMG + NB * CELLB
WPITCH = 1088
L_GP = L_STG + 1024
L_WS = L_STG + 32 * WPITCH
assert L_BCNT + 1024 <= LDS and L_STG % 16 == 0 and L_ACC % 16 == 0
PADS, PADE = 0x8000003f, 0x80000000
KN = "standalone__mpnn_edge_mlp__graph_kernel"

def stamp(a, i, cyc=None):
    if OPT["stamp"]:
        if cyc is None:
            a(f"  s_memrealtime s[{80+2*i}:{81+2*i}]\n  s_waitcnt lgkmcnt(0)")
        else:
            a(f"  s_memrealtime s[96:97]\n  s_memtime s[98:99]\n  s_waitcnt lgkmcnt(0)\n  s_mov_b32 s{i}, s96\n  s_mov_b32 s{i+2}, s98")

def gen():
    a = Asm()
    R = Regs(1)
    al = R.alloc
    vl = al("lane")
    t0 = al("t", 8, 2); t1, t2, t3, t4, t5, t6, t7 = range(t0+1, t0+8)
    vchunk = al("vchunk"); vechunk = al("vechunk")
    vent = al("vent"); vrow = al("vrow"); vgq = al("vgq"); vga = al("vga")
    vAlo = al("Alo"); vAhi = al("Ahi"); vEF = al("vEF")
    vqlane = al("vqlane"); vacl = al("vacl"); vxb = al("vxb"); vqw = al("vqw")
    vebase = al("vebase"); vone = al("vone"); vt16 = al("vt16"); vcell = al("vcell")
    vqa = al("vqa"); vsrow = al("vsrow"); vgn1 = al("vgn1")
    ENT = al("ENT", 2, 2)
    MAC = al("MAC", 2, 2)
    PAT = al("PAT", 2, 2)
    nq = 2 if OPT["k8"] else 4
    AQ = al("AQ", nq, 2)
    GN = al("GN", 4, 2); AD = al("AD", 4)
    DO = al("DO", 2)
    I0 = al("I0", 4, 2); I1 = al("I1", 4, 2)
    W3 = al("W3", 16, 2)
    W3L = al("W3L", 16, 2) if OPT["lo"] else None
    BQ = al("BQ", 4*nq, 2)
    EF = al("EF", 4, 2)
    PF = al("PF", 32, 2)
    D0 = al("D0", 16, 2); D1 = al("D1", 16, 2)
    EA = al("EA", 8, 2); TA = al("TA", 8, 2); EB = al("EB", 8, 2); TB = al("TB", 8, 2)
    RA = al("RA", 2, 2); RB = al("RB", 2, 2)
    SA = al("SA", 2, 2); SB = al("SB", 2, 2)
    CV = al("CV", 8, 2)
    U = al("U", 12, 2); WUB = al("WUB", 16, 2)
    DUM = al("DUM", 4, 2)
    DK = al("DK", 4, 2)
    nv = R.n
    assert TA == EA + 8 and EB == EA + 16 and TB == EA + 24 and D1 == D0 + 16
    DD = D0; SS_ = D0 + 5; B4 = D0 + 10; RK = D0 + 15; CA = D0 + 20
    CP = PF
    GX = W3
    XL = U
    W1F = WUB
    REC = D0; NOD = D0 + 8; RNK = D1
    W2F = EA; WUT = EB; XF = PF; QD = CV
    sW = 3
    pX, pE, pS, pD, pWM, pWU, pO, pWS = 4, 6, 8, 10, 12, 14, 16, 18
    SP, SE, SC, SW, SO, SV, SF = 20, 24, 28, 32, 36, 40, 44
    T0, T1, T2 = 48, 52, 56
    sStart, sNb, sStg, sCnt, sT, sMode, sKind, sFirst = 60, 61, 62, 63, 64, 65, 66, 67
    sAS, sQS, sTag, sP, sUB, sLo2 = 68, 69, 70, 71, 72, 73
    sCO = 59
    sNp = 79
    sEx, sK, sBad = 74, 76, 78
    sTmp = 4
    sA = 48
    sOV = 48
    sOVT = 74
    sq = 100
    if OPT["stamp"]: NS = 102
    else: NS = 102

    a(f"""
.globl {KN}
.p2align 8
.type {KN},@function
{KN}:
  s_cmp_ge_u32 s2, {NB}
  s_cbranch_scc1 K_END""")
    if OPT["stamp"]: a("  s_memrealtime s[80:81]")
    a(f"""
  s_load_dwordx8 s[4:11], s[0:1], 0
  s_load_dwordx4 s[12:15], s[0:1], 32
  s_load_dwordx2 s[16:17], s[0:1], 48
  s_load_dwordx2 s[18:19], s[0:1], 64""")
    if OPT["cpf"]:
        a(f"""
  s_getpc_b64 s[20:21]
  v_lshlrev_b32 v{t1}, 7, v0
  v_cmp_gt_u32 vcc, (K_TEXTEND - {KN}) / 128, v0
  s_and_saveexec_b64 s[22:23], vcc
  s_cbranch_execz K_NOCPF
  global_load_dword v{DUM}, v{t1}, s[20:21]
K_NOCPF:
  s_mov_b64 exec, s[22:23]""")
    a(f"""
  v_lshrrev_b32 v{t0}, 6, v0
  v_and_b32 v{vl}, 63, v0
  s_and_b32 s{sP}, s2, {FREP-1}
  s_mul_i32 s{sP}, s{sP}, {FLN*256}
  s_and_b32 s{sq}, s2, 7
  s_lshl_b32 s{sq}, s{sq}, 1
  s_bfe_u32 s{sq+1}, s2, 0x10003
  s_and_b32 s2, s2, 0xf0
  s_or_b32 s2, s2, s{sq}
  s_or_b32 s2, s2, s{sq+1}
  s_mul_i32 s{sStart}, s2, 640013
  v_readfirstlane_b32 s{sW}, v{t0}
  s_add_u32 s{sNb}, s{sStart}, {640013+16383}
  s_add_u32 s{sStart}, s{sStart}, 16383
  s_sub_u32 s{sNp}, s{sStart}, 640013
  s_lshr_b32 s{sStart}, s{sStart}, 14
  s_lshr_b32 s{sNb}, s{sNb}, 14
  s_lshr_b32 s{sNp}, s{sNp}, 14
  s_min_u32 s{sNb}, s{sNb}, {N}
  s_sub_u32 s{sCnt}, s{sNb}, s{sNp}
  s_sub_u32 s{sNb}, s{sNb}, s{sStart}
  s_lshl_b32 s{sT}, s{sNp}, 8
  s_sub_u32 s{sNp}, s{sStart}, s{sNp}
  s_mov_b32 s{sMode}, 0
  s_mov_b32 s{sKind}, 0
  s_mov_b32 s{sFirst}, 1
  s_mov_b32 s{sAS}, {AS}
  s_mov_b32 s{sQS}, {QS}
  s_mul_i32 s{sStg}, s{sW}, {STG}
  s_add_u32 s{sStg}, s{sStg}, {L_STG}
  v_lshlrev_b32 v{vt16}, 4, v0
  s_mul_i32 s{sq}, s2, {CH*2}
  v_lshl_add_u32 v{t2}, v0, 2, s{sq}
  v_add_u32 v{t3}, 4096, v{t2}
  v_lshrrev_b32 v{t4}, 4, v{vl}
  v_lshlrev_b32 v{t0}, 1, v{t4}
  v_xor_b32 v{t0}, v{t0}, v{vl}
  v_lshlrev_b32 v{t0}, 4, v{t0}
  s_lshl_b32 s{sq}, s{sW}, 12
  v_add_u32 v{t7}, s{sq}, v{t0}
  s_mul_i32 s{sUB}, s{sW}, {4*WPITCH}
  s_add_u32 s{sUB}, s{sUB}, {L_WS}
  v_add_u32 v{t6}, 8192, v{vt16}
  v_add_u32 v{t5}, 16384, v{vt16}
  s_waitcnt lgkmcnt(0)
  {"s_add_u32 s%d, s%d, %d" % (pWS, pWS, OPT["wsb"] << 20) + chr(10) + "  s_addc_u32 s%d, s%d, 0" % (pWS+1, pWS+1) if OPT["wsb"] else ""}
  s_bitcmp1_b32 s2, 0
  s_cbranch_scc1 K_LDG
  s_cmp_ge_u32 s2, {2*G}
  s_cbranch_scc1 K_LDP""")
    if OPT["bdl"]: a(f"  s_sleep {OPT['bdl']}")
    srd(a, T0, pD, E*4)
    srd(a, T1, pS, E*4)
    a(f"  s_movk_i32 s{sq}, 0x2000")
    for r_, T in ((DD, T0), (SS_, T1)):
        a(f"""
  buffer_load_dword v{r_}, v{t2}, {s(T,4)}, 0 offen
  buffer_load_dword v{r_+1}, v{t2}, {s(T,4)}, 0 offen offset:2048
  buffer_load_dword v{r_+2}, v{t3}, {s(T,4)}, 0 offen
  buffer_load_dword v{r_+3}, v{t3}, {s(T,4)}, 0 offen offset:2048
  buffer_load_dword v{r_+4}, v{t2}, {s(T,4)}, s{sq} offen""")
    if OPT["claim"] & 2:
        srd(a, T2, pWS, NB*BSTR, add=WS_CELL)
        a(f"""
  v_lshrrev_b32 v{t4}, 3, v0
  s_mov_b32 s{sq}, {BSTR}
  v_mul_u32_u24 v{t4}, s{sq}, v{t4}
  v_and_b32 v{t0}, 7, v0
  v_lshl_add_u32 v{t4}, v{t0}, 4, v{t4}
  s_lshl_b32 s{sq}, s2, 6
  v_mov_b32 v{PF}, 0
  v_mov_b32 v{PF+1}, 0
  v_mov_b32 v{PF+2}, 0
  v_mov_b32 v{PF+3}, 0""")
        for j in range(4):
            a(f"  buffer_store_dwordx4 {v(PF,4)}, v{t4}, {s(T2,4)}, s{sq} offen sc1\n  s_add_u32 s{sq}, s{sq}, {64*BSTR}")
    a("  s_branch K_LD3")
    def wdma(T):
        for q in range(4):
            a(f"  s_add_u32 m0, s{sUB}, {64*q}\n  s_nop 0\n  buffer_load_dwordx4 v{t7}, {s(T,4)}, 0 offen offset:{1024*q} lds")
    a(f"""
K_LDX:
  s_lshl_b32 s{sq}, s{sStart}, 8
  s_lshl_b32 s{sq+1}, s{sNb}, 8""")
    srd(a, T2, pX, f"s{sq+1}", addreg=sq)
    a(f"""
  buffer_load_dwordx4 {v(XL,4)}, v{vt16}, {s(T2,4)}, 0 offen
  buffer_load_dwordx4 {v(XL+4,4)}, v{t6}, {s(T2,4)}, 0 offen
  s_branch K_LD3
K_LDP:
  s_cmp_eq_u32 s2, {2*G}
  s_cselect_b32 s{T1}, s{pWM}, s{pWU}
  s_cselect_b32 s{T1+1}, s{pWM+1}, s{pWU+1}
  s_cmp_eq_u32 s2, {2*G+2}
  s_cselect_b32 s{sq}, 0, 32768
  s_add_u32 s{T1}, s{T1}, s{sq}
  s_addc_u32 s{T1+1}, s{T1+1}, 0
  s_mov_b32 s{T1+2}, 32768
  s_mov_b32 s{T1+3}, 0x20000""")
    wdma(T1)
    srd(a, T0, pWM, 16*256, add=256*256)
    a(f"""
  v_and_b32 v{t0}, 31, v{vl}
  v_lshrrev_b32 v{t1}, 5, v{vl}
  v_lshlrev_b32 v{t1}, 11, v{t1}
  v_lshl_add_u32 v{t1}, v{t0}, 1, v{t1}
  s_and_b32 s{sq}, s{sW}, 3
  s_lshl_b32 s{sq}, s{sq}, 6""")
    for jj in range(8):
        a(f"  buffer_load_ushort v{D0+jj}, v{t1}, {s(T0,4)}, s{sq} offen offset:{jj*256}")
    a(f"""
  s_branch K_LDX
K_LDG:
  s_lshl_b32 s{sCnt}, s{sCnt}, 8""")
    srd(a, T0, pX, f"s{sCnt}", addreg=sT)
    srd(a, T1, pWM, 128*256)
    if OPT["wfirst"]: wdma(T1)
    a(f"""
  buffer_load_dwordx4 {v(GX,4)}, v{vt16}, {s(T0,4)}, 0 offen
  buffer_load_dwordx4 {v(GX+4,4)}, v{t6}, {s(T0,4)}, 0 offen
  buffer_load_dwordx4 {v(GX+8,4)}, v{t5}, {s(T0,4)}, 0 offen""")
    if not OPT["wfirst"]: wdma(T1)
    if OPT["claim"] & 1:
        srd(a, T2, pWS, f"s{sCnt}", add=WS_P, addreg=sT)
        for r_ in (vt16, t6, t5):
            a(f"  buffer_store_dwordx4 {v(PF,4)}, v{r_}, {s(T2,4)}, 0 offen sc1")
    a(f"""
K_LD3:""")
    if OPT["claim"] & 4:
        a(f"  s_lshl_b32 s{sq}, s{sStart}, 8\n  s_lshl_b32 s{sq+1}, s{sNb}, 8")
        srd(a, SO, pWS, f"s{sq+1}", add=WS_P, addreg=sq)
        a(f"""
  s_mul_i32 s{sq}, s{sW}, 1280
  v_lshl_add_u32 v{t1}, v{vl}, 7, s{sq}
  v_mov_b32 v{t0}, 0
  s_mov_b64 exec, 0x3ff
  buffer_atomic_or v{t0}, v{t1}, {s(SO,4)}, 0 offen
  s_mov_b64 exec, -1""")
    a(f"""
  s_add_u32 s{SF}, s{pWS}, {WS_FLAG}
  s_addc_u32 s{SF+1}, s{pWS+1}, 0
  s_load_dword s{sTag}, s[{SF}:{SF+1}], {FNON}
  s_mov_b32 s{SF+2}, {FNON+4}
  s_mov_b32 s{SF+3}, 0x20000
  v_lshrrev_b32 v{t1}, 2, v0
  v_and_b32 v{t4}, 3, v0
  v_lshlrev_b32 v{t4}, 4, v{t4}
  v_lshl_add_u32 v{vcell}, v{t1}, 7, v{t4}
  s_mov_b32 s{sq}, {CH*32}
  v_mul_u32_u24 v{vebase}, s{sq}, v{t1}""")
    a(f"""
  v_mov_b32 v{CV}, 0
  v_mov_b32 v{CV+1}, 0
  v_mov_b32 v{CV+2}, 0
  v_mov_b32 v{CV+3}, 0
  v_add_u32 v{t0}, {L_CIMG}, v{vt16}""")
    a(f"  s_bitcmp1_b32 s2, 0\n  s_cbranch_scc1 K_NOZ")
    for j in range(4):
        a(f"  ds_write_b128 v{t0}, {v(CV,4)} offset:{j*8192}")
    a(f"  s_cmp_lg_u32 s{sW}, 0\n  s_cbranch_scc1 K_NOZ\n  ds_write_b128 v{t0}, {v(CV,4)} offset:32768")
    a("K_NOZ:")
    for j in range(5):
        a(f"  ds_write_b128 v{vt16}, {v(CV,4)} offset:{L_GN + j*8192}")
    a(f"""
  v_cmp_gt_u32 vcc, {(L_Q-L_GN-5*8192)//16}, v0
  s_and_saveexec_b64 {s(sEx,2)}, vcc
  ds_write_b128 v{vt16}, {v(CV,4)} offset:{L_GN + 5*8192}
  s_mov_b64 exec, {s(sEx,2)}""")
    def prefill():
        a(f"""
  v_mov_b32 v{CV+4}, {PADS}
  v_mov_b32 v{CV+5}, {PADE}
  v_mov_b32 v{CV+6}, {PADS}
  v_mov_b32 v{CV+7}, {PADE}
  ds_write_b128 v{vt16}, {v(CV+4,4)}
  ds_write_b128 v{vt16}, {v(CV+4,4)} offset:8192
  v_cmp_gt_u32 vcc, {(L_GN-16384)//16}, v0
  s_and_saveexec_b64 {s(sEx,2)}, vcc
  ds_write_b128 v{vt16}, {v(CV+4,4)} offset:16384
  s_mov_b64 exec, {s(sEx,2)}""")
    prefill()
    a(f"  s_mul_i32 s{sq}, s2, {BSTR}\n  s_lshl_b32 s{sq+1}, s{sStart}, 8\n  s_lshl_b32 s{sK}, s{sNb}, 8")
    srd(a, SC, pWS, G*CELLB, add=WS_CELL, addreg=sq)
    srd(a, SP, pWS, (N+1)*256)
    srd(a, SE, pE, E*32)
    srd(a, SW, pWS, WF_SIZE, add=WS_WF)
    srd(a, SO, pO, f"s{sK}", addreg=sq+1)
    srd(a, SV, pWS, G*OVSTR, add=WS_OVF)
    a(f"""
  v_mov_b32 v{vone}, 1
  v_mov_b32 v{MAC}, 0
  v_mov_b32 v{MAC+1}, 0
  v_and_b32 v{t0}, 15, v{vl}                 ; l&15
  v_bfe_u32 v{t1}, v{vl}, 4, 1               ; r4&1
  v_lshlrev_b32 v{t2}, 3, v{t1}
  v_xor_b32 v{t2}, v{t0}, v{t2}
  v_lshlrev_b32 v{vchunk}, 4, v{t2}
  v_and_b32 v{t2}, 1, v{vl}
  v_xor_b32 v{t2}, v{t2}, v{t1}
  v_lshlrev_b32 v{vechunk}, 4, v{t2}
  v_lshrrev_b32 v{t2}, 4, v{vl}
  v_lshlrev_b32 v{t2}, 6, v{t2}
  v_lshrrev_b32 v{t4}, 1, v{t0}
  v_lshl_add_u32 v{t2}, v{t4}, 3, v{t2}
  s_lshl_b32 s{sq}, s{sW}, 8
  v_add_u32 v{vent}, s{sq}, v{t2}
  v_bfe_u32 v{t2}, v{vl}, 2, 1               ; h
  v_and_b32 v{t4}, 1, v{vl}                  ; xy
  v_lshl_add_u32 v{t5}, v{t2}, 1, v{t4}      ; r4
  v_bfe_u32 v{t6}, v{vl}, 3, 2
  v_bfe_u32 v{t7}, v{vl}, 1, 1
  v_lshl_add_u32 v{t6}, v{t6}, 1, v{t7}      ; j
  v_lshl_add_u32 v{t7}, v{t5}, 3, v{t6}      ; q = 8 r4 + j
  v_lshlrev_b32 v{t7}, 3, v{t7}
  v_add_u32 v{vrow}, s{sq}, v{t7}
  v_lshrrev_b32 v{t7}, 5, v{vl}              ; hh
  v_mul_u32_u24 v{vAlo}, 1040, v{t6}
  v_lshl_add_u32 v{vAlo}, v{t5}, 8, v{vAlo}
  v_lshl_add_u32 v{vAlo}, v{t7}, 4, v{vAlo}
  v_add_u32 v{vAlo}, s{sStg}, v{vAlo}
  v_xor_b32 v{vAhi}, 1, v{t4}
  v_lshl_add_u32 v{vAhi}, v{vAhi}, 7, v{vAlo}
  v_lshl_add_u32 v{vAlo}, v{t4}, 7, v{vAlo}
  v_xor_b32 v{vEF}, v{t7}, v{t4}
  v_lshl_add_u32 v{vEF}, v{t6}, 1, v{vEF}
  v_lshl_add_u32 v{vEF}, v{t5}, 4, v{vEF}
  v_lshlrev_b32 v{vEF}, 4, v{vEF}
  s_add_u32 s{sq+1}, s{sStg}, 8320
  v_add_u32 v{vEF}, s{sq+1}, v{vEF}
  v_bfe_u32 v{t5}, v{vl}, 4, 1               ; o
  v_lshlrev_b32 v{t5}, 4, v{t5}
  v_mov_b32 v{t6}, 0x3f80
  v_lshlrev_b32 v{t5}, v{t5}, v{t6}
  v_cmp_eq_u32 vcc, v{t7}, v{t2}
  s_nop 1
  v_cndmask_b32 v{t5}, 0, v{t5}, vcc
  v_cmp_eq_u32 vcc, 0, v{t4}
  s_nop 1
  v_cndmask_b32 v{PAT}, 0, v{t5}, vcc
  v_cndmask_b32 v{PAT+1}, v{t5}, 0, vcc
  s_lshl_b32 s{sq}, s{sW}, 5
  s_add_u32 s{sq+1}, s{sq}, {L_GN}
  v_lshlrev_b32 v{vga}, 4, v{t7}
  v_add_u32 v{vga}, s{sq+1}, v{vga}
  v_and_b32 v{t2}, 12, v{vl}
  v_add_u32 v{vgq}, v{vga}, v{t2}
  v_and_b32 v{t2}, 3, v{vl}
  v_lshlrev_b32 v{t2}, 3, v{t2}
  v_lshl_add_u32 v{t2}, v{t1}, 5, v{t2}
  v_add_u32 v{vqlane}, {L_Q}, v{t2}
  v_and_b32 v{t2}, 31, v{vl}
  v_lshlrev_b32 v{t4}, 3, v{t2}
  v_add_u32 v{vacl}, {L_ACC}, v{t4}
  v_lshrrev_b32 v{t4}, 4, v{vl}              ; g
  v_mul_u32_u24 v{vxb}, {XS}, v{t0}
  v_lshl_add_u32 v{vxb}, v{t4}, 4, v{vxb}
  v_add_u32 v{vxb}, {L_X}, v{vxb}
  v_mul_u32_u24 v{vqw}, {QS}, v{t0}
  v_lshl_add_u32 v{vqw}, v{t4}, 3, v{vqw}
  s_add_u32 s{sq+1}, s{sq}, {L_Q}
  v_add_u32 v{vqw}, s{sq+1}, v{vqw}
  v_mul_u32_u24 v{vqa}, {2*WPITCH}, v{t4}
  v_bfe_u32 v{t5}, v{vl}, 2, 2
  v_lshl_add_u32 v{vqa}, v{t5}, 8, v{vqa}
  v_xor_b32 v{t5}, s{sW}, v{t5}
  v_lshl_add_u32 v{vqa}, v{t5}, 5, v{vqa}
  v_and_b32 v{t5}, 3, v{vl}
  v_lshl_add_u32 v{vqa}, v{t5}, 3, v{vqa}
  v_add_u32 v{vqa}, {L_WS}, v{vqa}
  v_and_b32 v{t4}, 1, v{vl}
  v_lshlrev_b32 v{t4}, 4, v{t4}
  v_lshlrev_b32 v{t4}, v{t4}, v{t6}
  v_bfe_u32 v{t5}, v{vl}, 1, 4
  v_lshlrev_b32 v{t7}, 2, v{t7}
  v_sub_u32 v{t5}, v{t5}, v{t7}""")
    for i in range(4):
        a(f"  v_cmp_eq_u32 vcc, {i}, v{t5}\n  s_nop 1\n  v_cndmask_b32 v{I0+i}, 0, v{t4}, vcc")
        a(f"  v_cmp_eq_u32 vcc, {8+i}, v{t5}\n  s_nop 1\n  v_cndmask_b32 v{I1+i}, 0, v{t4}, vcc")
    if not OPT["k8"]:
        a(f"  v_mov_b32 v{AQ+2}, 0\n  v_mov_b32 v{AQ+3}, 0")
        for t in range(4):
            a(f"  v_mov_b32 v{BQ+4*t+2}, 0\n  v_mov_b32 v{BQ+4*t+3}, 0")
    def prefetch():
        if not OPT["pf"]: return
        a(f"  s_mul_i32 s{sq}, s2, 40000\n  s_sub_u32 s{sq}, s{sq}, 4096\n  v_add_u32 v{t0}, s{sq}, v{vt16}")
        for j in range(10):
            a(f"  buffer_load_dwordx4 {v(DUM,4)}, v{t0}, {s(SE,4)}, 0 offen")
            if j < 9: a(f"  v_add_u32 v{t0}, 4096, v{t0}")
    def wtr(dst, ad):
        for st in range(4):
            for hf in range(2):
                a(f"  ds_read_b64_tr_b16 {v(dst+4*st+2*hf,2)}, v{ad} offset:{(8*st+hf)*WPITCH}")
    def own_x(nyounger):
        a(f"""
  v_lshrrev_b32 v{t0}, 4, v0
  v_lshl_add_u32 v{t0}, v{t0}, 5, v{vt16}
  v_add_u32 v{t0}, {L_X}, v{t0}
  s_waitcnt vmcnt({nyounger})
  ds_write_b128 v{t0}, {v(XL,4)}
  s_mov_b32 exec_lo, s{sLo2}
  s_mov_b32 exec_hi, s{sLo2}
  ds_write_b128 v{t0}, {v(XL+4,4)} offset:{32*XS}
  s_mov_b64 exec, -1""")
    a(f"""
  s_cmp_lt_u32 s{sW}, 2
  s_cselect_b32 s{sLo2}, -1, 0
  s_lshr_b32 s{sq}, s2, {1+FSH}
  s_lshl_b32 s{sq}, s{sq}, 8
  s_bfe_u32 s{sq+1}, s2, {hex((FSH<<16)|1)}
  s_lshl_b32 s{sq+1}, s{sq+1}, 2
  s_add_u32 s{sq}, s{sq}, s{sq+1}
  s_and_b32 s{sq+1}, s2, 1
  s_mul_i32 s{sq+1}, s{sq+1}, {FHALF}
  s_add_u32 s{sq}, s{sq}, s{sq+1}
  v_mul_u32_u24 v{vgn1}, {FLN*256}, v{vl}
  v_add_u32 v{vgn1}, s{sq}, v{vgn1}
  v_lshrrev_b32 v{t2}, {FSH-1}, v{vl}
  v_lshlrev_b32 v{t2}, 8, v{t2}
  v_and_b32 v{t3}, {(1<<(FSH-1))-1}, v{vl}
  v_lshl_add_u32 v{t2}, v{t3}, 3, v{t2}
  v_add_u32 v{vsrow}, s{sP}, v{t2}
  s_mov_b32 s{sK}, {NLOG2E}
  s_mov_b32 s{sK+1}, {NLOG2E}
  s_waitcnt lgkmcnt(0)
  s_add_u32 s{sTag}, s{sTag}, 1
  s_max_u32 s{sTag}, s{sTag}, 1
  s_bitcmp1_b32 s2, 0
  s_cbranch_scc1 K_GEMM
  s_cmp_ge_u32 s2, {2*G}
  s_cbranch_scc1 K_PREP
  s_mov_b32 s{sq}, {MAGIC}
  v_lshlrev_b32 v{t7}, 6, v0
  v_add_u32 v{t7}, {1<<18}, v{t7}
  s_barrier
  s_waitcnt vmcnt({5+NCC})""")
    stamp(a, 1)
    for j in range(5):
        a(f"""
  v_mul_u32_u24 v{B4+j}, s{sq}, v{DD+j}
  v_lshrrev_b32 v{B4+j}, 18, v{B4+j}
  v_and_b32 v{B4+j}, 0x3fc, v{B4+j}
  v_add_u32 v{t0+j}, {L_BCNT}, v{B4+j}
  ds_add_rtn_u32 v{RK+j}, v{t0+j}, v{vone}""")
    a(f"  s_waitcnt vmcnt({NCC})")
    for j in range(5):
        a(f"""
  v_lshl_add_u32 v{SS_+j}, v{SS_+j}, 18, v{t7}
  v_and_or_b32 v{SS_+j}, v{DD+j}, 63, v{SS_+j}
  v_lshlrev_b32 v{CA+j}, 5, v{B4+j}
  v_add_u32 v{CA+j}, {L_CIMG}, v{CA+j}""")
        if j < 4: a(f"  v_add_u32 v{t7}, {512<<6}, v{t7}")
    srd(a, T2, pWS, NB*BSTR, add=WS_CELL)
    a(f"""
  v_lshrrev_b32 v{t4}, 3, v0
  s_mov_b32 s{sq}, {BSTR}
  v_mul_u32_u24 v{t4}, s{sq}, v{t4}
  v_and_b32 v{t5}, 7, v0
  v_lshl_add_u32 v{t4}, v{t5}, 4, v{t4}
  s_lshl_b32 s{sq}, s2, 6
  s_mov_b64 {s(sBad,2)}, 0
  s_waitcnt lgkmcnt(0)""")
    for j in range(5):
        a(f"""
  v_mul_u32_u24 v{t1}, 37, v{RK+j}
  v_lshl_add_u32 v{t0}, v{RK+j}, 2, v{CA+j}
  v_lshrrev_b32 v{t1}, 8, v{t1}
  v_cmp_le_u32 vcc, {CAP-1}, v{RK+j}
  v_lshl_add_u32 v{t0}, v{t1}, 2, v{t0}
  s_or_b64 {s(sBad,2)}, {s(sBad,2)}, vcc
  s_andn2_b64 exec, exec, vcc
  ds_write_b32 v{t0}, v{SS_+j}
  s_mov_b64 exec, -1""")
    a(f"""
  v_add_u32 v{t0}, {L_CIMG}, v{vt16}
  v_mov_b32 v{t2}, {L_FLG+4}
  s_cmp_eq_u64 {s(sBad,2)}, 0
  s_cbranch_scc1 K_NOFULL
  ds_write_b32 v{t2}, v{vone}
K_NOFULL:
  s_waitcnt lgkmcnt(0)
  s_barrier""")
    stamp(a, 2)
    a(f"  ds_read_b32 v{t2}, v{t2}\nK_OVFDONE:")
    for j in range(4):
        a(f"  ds_read_b128 {v(CP+4*j,4)}, v{t0} offset:{8192*j}")
    a(f"""
  s_waitcnt vmcnt({2 if OPT['claim'] & 2 else 63}) lgkmcnt(4)
  v_cmp_ne_u32 vcc, 0, v{t2}
  s_cbranch_vccnz K_OVF""")
    for j in range(4):
        a(f"""
  s_mov_b32 exec_lo, 0xaaaaaaaa
  s_mov_b32 exec_hi, 0xaaaaaaaa
  s_waitcnt lgkmcnt({3-j})
  v_mov_b32 v{CP+4*j+3}, s{sTag}
  s_mov_b64 exec, -1
  buffer_store_dwordx4 {v(CP+4*j,4)}, v{t4}, {s(T2,4)}, s{sq} offen {STF}
  s_add_u32 s{sq}, s{sq}, {64*BSTR}""")
    a(f"  s_lshl_b32 s{sq}, s{sStart}, 8\n  s_lshl_b32 s{sq+1}, s{sNb}, 8")
    srd(a, T2, pX, f"s{sq+1}", addreg=sq)
    a(f"""
  v_add_u32 v{t6}, 8192, v{vt16}
  buffer_load_dwordx4 {v(XL,4)}, v{vt16}, {s(T2,4)}, 0 offen
  buffer_load_dwordx4 {v(XL+4,4)}, v{t6}, {s(T2,4)}, 0 offen""")
    own_x(0)
    a(f"""
  {"s_sleep %d" % OPT["slpa"] if OPT["slpa"] else ""}
  s_branch K_PST
K_GW:
  {"s_sleep %d" % OPT["slpb"] if OPT["slpb"] else ""}
  s_branch K_PST
K_GEMM:
  ; ---------------- P gemm role: rows of this bucket and the one before ----------------""")
    if OPT["touch"]:
        a(f"""
  s_cmp_lg_u32 s{sW}, 0
  s_cbranch_scc1 K_NOTOUCH
  s_waitcnt vmcnt(0)
  s_mov_b64 exec, {FMASK}
  buffer_load_dword v{DUM}, v{vgn1}, {s(SF,4)}, 0 offen sc1
  s_mov_b64 exec, -1
K_NOTOUCH:""")
    a(f"""
  s_mul_i32 s{sq}, s{sNp}, {XS}
  s_sub_u32 s{sq}, {L_X}, s{sq}
  v_lshrrev_b32 v{t0}, 4, v0
  v_lshl_add_u32 v{t0}, v{t0}, 5, v{vt16}
  v_add_u32 v{t3}, s{sq}, v{t0}
  s_cmp_lt_u32 s{sW}, 4
  s_cselect_b32 s{sq+1}, -1, 0
  v_subrev_u32 v{t1}, {L_X}, v{vxb}
  v_add_u32 v{t1}, s{sq}, v{t1}
  s_waitcnt vmcnt({(2 if OPT['wfirst'] else 6)+NCL})
  ds_write_b128 v{t3}, {v(GX,4)}
  s_waitcnt vmcnt({(1 if OPT['wfirst'] else 5)+NCL})
  ds_write_b128 v{t3}, {v(GX+4,4)} offset:{32*XS}
  s_waitcnt vmcnt({(0 if OPT['wfirst'] else 4)+NCL})
  s_mov_b32 exec_lo, s{sq+1}
  s_mov_b32 exec_hi, s{sq+1}
  ds_write_b128 v{t3}, {v(GX+8,4)} offset:{64*XS}
  s_mov_b64 exec, -1
  v_and_b32 v{t2}, 15, v{vl}
  v_mul_u32_u24 v{t2}, {XS}, v{t2}
  v_lshrrev_b32 v{t3}, 4, v{vl}
  v_lshl_add_u32 v{t2}, v{t3}, 3, v{t2}
  s_lshl_b32 s{sq}, s{sW}, 5
  s_add_u32 s{sq}, s{sq}, {L_GP}
  v_add_u32 v{t2}, s{sq}, v{t2}
  v_add_u32 v{t0}, {L_GP - 16*XS}, v{t0}
  v_subrev_u32 v{t4}, 4096, v{vt16}""")
    srd(a, T0, pWS, f"s{sCnt}", add=WS_P, addreg=sT)
    a(f"  s_waitcnt vmcnt({NCL}) lgkmcnt(0)\n  s_barrier")
    stamp(a, 1)
    wtr(W1F, vqa)
    XT = [PF, PF+16, EA, EB, PF]
    for nt in range(4):
        for st in range(4):
            a(f"  ds_read_b128 {v(XT[nt]+4*st,4)}, v{t1} offset:{nt*16*XS + st*64}")
    for nt in range(5):
        a(f"  s_waitcnt lgkmcnt({(12, 12, 8, 4, 0)[nt]})")
        for st in range(4):
            c = "0" if st == 0 else v(D0+4*nt, 4)
            a(f"  v_mfma_f32_16x16x32_bf16 {v(D0+4*nt,4)}, {v(W1F+4*st,4)}, {v(XT[nt]+4*st,4)}, {c}")
        if nt == 0:
            for st in range(4):
                a(f"  ds_read_b128 {v(PF+4*st,4)}, v{t1} offset:{4*16*XS + st*64}")
    for nt in range(5):
        d = D0 + 4*nt
        if nt == 4: a("  s_nop 1")
        a(f"""
  v_pk_mul_f32 {v(d,2)}, {v(d,2)}, {s(sK,2)}
  v_pk_mul_f32 {v(d+2,2)}, {v(d+2,2)}, {s(sK,2)}
  v_cvt_pk_bf16_f32 v{W3+2*nt}, v{d}, v{d+1}
  v_cvt_pk_bf16_f32 v{W3+2*nt+1}, v{d+2}, v{d+3}
  ds_write_b64 v{t2}, {v(W3+2*nt,2)} offset:{nt*16*XS}""")
    a(f"  s_waitcnt vmcnt({NA}) lgkmcnt(0)\n  s_barrier")
    stamp(a, 2)
    a(f"""
  s_cmp_lt_u32 s{sW}, 4
  s_cbranch_scc1 K_GW""")
    for j in range(5):
        a(f"  ds_read_b128 {v(PF+4*j,4)}, v{t0} offset:{j*16*XS}")
    if OPT["zt"]:
        srd(a, T1, pWS, f"s{sCnt}", add=0x1800000, addreg=sT)
        a(f"  s_waitcnt lgkmcnt(0)\n  v_mov_b32 v{t1}, v{t4}")
        for j in range(5):
            a(f"  buffer_store_dwordx4 {v(PF+4*j,4)}, v{t1}, {s(T1,4)}, 0 offen {STF}\n  v_add_u32 v{t1}, 4096, v{t1}")
        a("  s_waitcnt vmcnt(0)")
        stamp(a, 1)
    for j in range(5):
        a(f"  s_waitcnt lgkmcnt({4-j})\n  buffer_store_dwordx4 {v(PF+4*j,4)}, v{t4}, {s(T0,4)}, 0 offen {STF}")
        if j < 4: a(f"  v_add_u32 v{t4}, 4096, v{t4}")
    a(f"""
  v_mov_b32 v{t0}, {L_FLG+12}
  v_mov_b32 v{t7}, s{sTag}
  s_mov_b64 exec, 1
  s_waitcnt vmcnt(0)""")
    stamp(a, 3)
    a(f"""
  ds_add_rtn_u32 v{t0}, v{t0}, v{vone}
  s_waitcnt lgkmcnt(0)
  v_readfirstlane_b32 s{sq}, v{t0}
  s_mov_b64 exec, -1
  s_cmp_lg_u32 s{sq}, 3
  s_cbranch_scc1 K_PST
K_FLAG:
  s_mov_b64 exec, {FMASK}
  buffer_store_dword v{t7}, v{vgn1}, {s(SF,4)}, 0 offen {FLF}
  s_mov_b64 exec, -1
K_PST:""")
    def node_gemm(WA, WB=None):
        for nt in range(3):
            xf = XF + 16*(nt & 1)
            if nt == 0:
                for n2 in range(2):
                    for st in range(4):
                        a(f"  ds_read_b128 {v(XF+16*n2+4*st,4)}, v{vxb} offset:{n2*16*XS + st*64}")
            a(f"  s_waitcnt lgkmcnt({4 if nt == 0 else 5 if nt == 1 else 1})")
            q = QD if nt != 1 else SA
            for st in range(4):
                c = "0" if st == 0 else v(q, 4)
                a(f"  v_mfma_f32_16x16x32_bf16 {v(q,4)}, {v(WA+4*st,4)}, {v(xf+4*st,4)}, {c}")
            if WB is not None:
                for st in range(4):
                    c = "0" if st == 0 else v(U+4*nt, 4)
                    a(f"  v_mfma_f32_16x16x32_bf16 {v(U+4*nt,4)}, {v(WB+4*st,4)}, {v(xf+4*st,4)}, {c}")
            if nt == 0:
                for st in range(4):
                    a(f"  ds_read_b128 {v(XF+4*st,4)}, v{vxb} offset:{2*16*XS + st*64}")
            a(f"""
  s_nop 7
  v_pk_mul_f32 {v(q,2)}, {v(q,2)}, {s(sK,2)}
  v_pk_mul_f32 {v(q+2,2)}, {v(q+2,2)}, {s(sK,2)}
  v_cvt_pk_bf16_f32 v{QD+4+2*(nt&1)}, v{q}, v{q+1}
  v_cvt_pk_bf16_f32 v{QD+5+2*(nt&1)}, v{q+2}, v{q+3}""")
            if nt == 2:
                a(f"  s_mov_b32 exec_lo, 0x00ff00ff\n  s_mov_b32 exec_hi, 0x00ff00ff")
            a(f"  ds_write_b64 v{vqw}, {v(QD+4+2*(nt&1),2)} offset:{nt*16*QS}")
            if nt == 2:
                a("  s_mov_b64 exec, -1")
    assert SB == SA + 2
    def poll(lab, off):
        a(f"""
  s_cmp_lg_u32 s{sW}, 1
  s_cbranch_scc1 {lab}_D
  s_mov_b32 s{sq}, 0
  s_mov_b32 s{sq+1}, {off}
  {"s_sleep %d" % OPT["slp0"] if OPT["slp0"] and off == 0 else ""}
{lab}:
  buffer_load_dwordx2 {v(DUM,2)}, v{vsrow}, {s(SF,4)}, s{sq+1} offen {PLF}
  s_add_u32 s{sq}, s{sq}, 1
  s_waitcnt vmcnt(0)
  v_cmp_ne_u32 vcc, s{sTag}, v{DUM}
  v_cmp_ne_u32 {s(sBad,2)}, s{sTag}, v{DUM+1}
  s_or_b64 vcc, vcc, {s(sBad,2)}
  s_cbranch_scc0 {lab}_D
  {"s_sleep %d" % OPT["slp"] if OPT["slp"] else ""}
  s_cmp_lt_u32 s{sq}, 0x8000
  s_cbranch_scc1 {lab}
{lab}_D:""")
    stamp(a, 5)
    nld = 16 if OPT["lo"] else 12
    a(f"""
  s_lshl_b32 s{sTmp}, s{sW}, 12
  s_add_u32 s{sTmp+1}, s{sTmp}, {WF_UT}
  s_add_u32 s{sUB}, s{sTmp}, {WF_UB}
  s_mov_b32 s{sTmp+2}, {WF_3H}
  s_mov_b32 s{sTmp+3}, {WF_3L}
  s_mov_b32 s{sOV}, 0xaaaaaaaa
  s_cmp_eq_u32 s{sW}, 7
  s_cselect_b32 s{sOV+1}, 0xaaaaa, s{sOV}
  v_min_u32 v{t4}, 2, v{vl}
  v_lshl_add_u32 v{t4}, v{t4}, 2, s{sP}
  v_mov_b32 v{t5}, s{sTag}
  s_mov_b32 s{sq}, 0
  {"s_sleep %d" % OPT["slp0"] if OPT["slp0"] else ""}
""")
    wl = [f"  buffer_load_dwordx4 {v(W2F+4*st,4)}, v{t6}, {s(SW,4)}, s{sTmp} offen offset:{st*1024} sc1" for st in range(4)]
    wl += [f"  buffer_load_dwordx4 {v(WUT+4*st,4)}, v{t6}, {s(SW,4)}, s{sTmp+1} offen offset:{st*1024} sc1" for st in range(4)]
    wl += [f"  buffer_load_dwordx4 {v(W3+4*st,4)}, v{t6}, {s(SW,4)}, s{sTmp+2} offen offset:{st*1024} sc1" for st in range(4)]
    if OPT["lo"]:
        wl += [f"  buffer_load_dwordx4 {v(W3L+4*st,4)}, v{t6}, {s(SW,4)}, s{sTmp+3} offen offset:{st*1024} sc1" for st in range(4)]
    a(f"""
  v_lshlrev_b32 v{t6}, 4, v{vl}
  s_mov_b32 s{sOV+6}, 0
K_CPOLL:
  buffer_load_dwordx4 {v(REC,4)}, v{vcell}, {s(SC,4)}, 0 offen sc1
  buffer_load_dwordx4 {v(REC+4,4)}, v{vcell}, {s(SC,4)}, 0 offen offset:64 sc1
  s_cmp_lg_u32 s{sOV+6}, 0
  s_cbranch_scc1 K_CPOLL1
  buffer_load_dword v{t5}, v{t4}, {s(SF,4)}, 0 offen offset:{(FLN-1)*256 + (125 - (FLN-1)*(128//FLN))*4} sc1
K_CPOLL1:
  s_add_u32 s{sq}, s{sq}, 1
  s_waitcnt vmcnt(0)
  v_cmp_ne_u32 vcc, s{sTag}, v{REC+3}
  v_cmp_ne_u32 {s(sBad,2)}, s{sTag}, v{REC+7}
  s_or_b64 {s(sBad,2)}, vcc, {s(sBad,2)}
  v_cmp_ne_u32 vcc, s{sTag}, v{t5}
  s_and_b64 {s(sBad,2)}, {s(sBad,2)}, {s(sOV,2)}
  s_or_b64 {s(sEx,2)}, {s(sBad,2)}, vcc
  s_cbranch_scc0 K_CPOLLD
  s_cbranch_vccnz K_CPOLL2
  s_cmp_lg_u32 s{sOV+6}, 0
  s_cbranch_scc1 K_CPOLL2
  s_mov_b32 s{sOV+6}, 1""")
    for x in wl: a(x)
    a(f"""
K_CPOLL2:
  {"s_sleep %d" % OPT["slp"] if OPT["slp"] else ""}
  s_cmp_lt_u32 s{sq}, 0x8000
  s_cbranch_scc1 K_CPOLL
K_CPOLLD:
  s_mov_b32 exec_lo, 0xaaaaaaaa
  s_mov_b32 exec_hi, 0xaaaaaaaa
  v_mov_b32 v{REC+3}, 0
  v_mov_b32 v{REC+7}, 0
  s_mov_b64 exec, -1""")
    stamp(a, 6)
    NR = 8
    a(f"""
K_PHASE1:
  v_cmp_le_u32 vcc, 0xfffc0000, v{REC+NR-2}
  s_cbranch_vccz K_NOMARK
  s_and_saveexec_b64 {s(sEx,2)}, vcc
  v_lshrrev_b32 v{t0}, 2, v0                 ; producer
  v_lshrrev_b32 v{t1}, 5, v{t0}
  v_lshlrev_b32 v{t1}, 2, v{t1}
  v_lshlrev_b32 v{t0}, v{t0}, v{vone}
  ds_or_b32 v{t1}, v{t0} offset:{L_FLG+32}
  v_mov_b32 v{REC+NR-2}, 0
  s_mov_b64 exec, {s(sEx,2)}
K_NOMARK:""")
    for k in range(NR):
        if k == 4:
            a(f"""
  v_or3_b32 v{t3}, v{REC+k}, v{REC+k+1}, v{REC+k+2}
  v_or_b32 v{t3}, v{t3}, v{REC+k+3}
  v_cmp_ne_u32 vcc, 0, v{t3}
  s_cbranch_vccz K_P1E""")
        a(f"""
  v_lshlrev_b32 v{NOD+k}, 2, v{REC+k}
  v_and_b32 v{NOD+k}, 0xfc, v{NOD+k}
  v_cmpx_ne_u32 vcc, 0, v{REC+k}
  ds_add_rtn_u32 v{RNK+k}, v{NOD+k}, v{vone} offset:{L_CNT}
  s_mov_b64 exec, -1""")
    a(f"""
K_P1E:
  s_cmp_lg_u32 s{sOV+6}, 0
  s_cbranch_scc1 K_NOWL
  s_mov_b32 s{sOV+6}, 1""")
    for x in wl: a(x)
    a(f"""
K_NOWL:
  v_lshlrev_b32 v{t0}, 2, v{vl}
  v_subrev_u32 v{t4}, s{sStart}, v{vl}
  v_and_b32 v{t4}, 63, v{t4}
  s_waitcnt lgkmcnt(0)
  s_barrier
  ds_read_b32 v{t1}, v{t0} offset:{L_CNT}
  s_waitcnt lgkmcnt(0)
  v_add_u32 v{t1}, 3, v{t1}
  v_bfe_u32 v{t5}, v{t1}, 2, 1               ; left-over quad
  v_lshrrev_b32 v{t6}, 3, v{t1}
  v_lshl_or_b32 v{t1}, v{t5}, 16, v{t6}
  v_mov_b32 v{t2}, v{t1}
  s_nop 1
  v_add_u32_dpp v{t2}, v{t2}, v{t2} row_shr:1 row_mask:0xf bank_mask:0xf
  s_nop 1
  v_add_u32_dpp v{t2}, v{t2}, v{t2} row_shr:2 row_mask:0xf bank_mask:0xf
  s_nop 1
  v_add_u32_dpp v{t2}, v{t2}, v{t2} row_shr:4 row_mask:0xf bank_mask:0xf
  s_nop 1
  v_add_u32_dpp v{t2}, v{t2}, v{t2} row_shr:8 row_mask:0xf bank_mask:0xf
  s_nop 1
  v_add_u32_dpp v{t2}, v{t2}, v{t2} row_bcast:15 row_mask:0xa bank_mask:0xf
  s_nop 1
  v_add_u32_dpp v{t2}, v{t2}, v{t2} row_bcast:31 row_mask:0xc bank_mask:0xf
  s_nop 1
  v_readlane_b32 s{sT}, v{t2}, 63
  v_sub_u32 v{t1}, v{t2}, v{t1}
  s_lshr_b32 s{sq+1}, s{sT}, 16
  s_and_b32 s{sCO}, s{sT}, 0xffff
  s_lshl_b32 s{sq}, s{sCO}, 1                ; quads in the groups of eight
  s_lshr_b32 s{sCO}, s{sCO}, 2
  s_add_u32 s{sT}, s{sq}, s{sq+1}
  s_add_u32 s{sT}, s{sT}, 7
  s_lshr_b32 s{sT}, s{sT}, 3
  v_lshrrev_b32 v{t2}, 16, v{t1}
  v_add_u32 v{t2}, s{sq}, v{t2}              ; quad slot of the left-over quad
  v_and_b32 v{t1}, 0xffff, v{t1}
  v_lshl_or_b32 v{t0}, v{t6}, 16, v{t1}
  v_lshlrev_b32 v{t0}, 3, v{t0}              ; 8*start8 | 8*n8 << 16
  v_lshlrev_b32 v{t7}, 1, v{t6}
  v_sub_u32 v{t7}, v{t2}, v{t7}
  v_lshlrev_b32 v{t7}, 2, v{t7}              ; position base of the left-over quad
  s_cmp_gt_u32 s{sT}, {CAPB}
  s_cbranch_scc1 K_SPLIT""")
    for k0 in (0, 4):
        if k0:
            a(f"""
  v_or3_b32 v{t3}, v{REC+k0}, v{REC+k0+1}, v{REC+k0+2}
  v_or_b32 v{t3}, v{t3}, v{REC+k0+3}
  v_cmp_ne_u32 vcc, 0, v{t3}
  s_cbranch_vccz K_P2E""")
        for k in range(k0, k0+4):
            a(f"  ds_bpermute_b32 v{PF+24+(k&3)}, v{NOD+k}, v{t7}")
            a(f"  ds_bpermute_b32 v{NOD+k}, v{NOD+k}, v{t0}")
        for k in range(k0, k0+4):
            e = PF + 16 + 2*(k & 3)
            a(f"""
  v_lshrrev_b32 v{e}, 10, v{REC+k}
  v_and_b32 v{e}, {hex(0xffffff00 if not OPT['hot'] else 0x1f00)}, v{e}
  v_bfe_u32 v{e+1}, v{REC+k}, 6, 12
  v_lshl_add_u32 v{e+1}, v{e+1}, 5, v{vebase}""")
            if OPT["hot"]: a(f"  v_and_b32 v{e+1}, 0xfe0, v{e+1}")
        a("  s_waitcnt lgkmcnt(0)")
        for k in range(k0, k0+4):
            a(f"  v_cmp_lt_u32_sdwa {s(8+2*(k&3),2)}, v{RNK+k}, v{NOD+k} src0_sel:DWORD src1_sel:WORD_1")
        for k in range(k0, k0+4):
            a(f"  v_and_b32 v{NOD+k}, 0xffff, v{NOD+k}")
        for k in range(k0, k0+4):
            a(f"  v_cndmask_b32 v{NOD+k}, v{PF+24+(k&3)}, v{NOD+k}, {s(8+2*(k&3),2)}")
        for k in range(k0, k0+4):
            e = PF + 16 + 2*(k & 3)
            a(f"""
  v_add_lshl_u32 v{NOD+k}, v{NOD+k}, v{RNK+k}, 3
  v_cmpx_ne_u32 vcc, 0, v{REC+k}
  ds_write_b64 v{NOD+k}, {v(e,2)}
  s_mov_b64 exec, -1""")
    a(f"""
K_P2E:
  v_lshlrev_b32 v{t2}, 2, v{t2}
  v_cmpx_ne_u32 vcc, 0, v{t5}
  ds_write_b32 v{t2}, v{t4} offset:{L_GN}
  s_mov_b64 exec, -1
  v_add_lshl_u32 v{t2}, v{t1}, v{t6}, 3
  v_lshl_add_u32 v{t1}, v{t1}, 1, s{sW}
  v_lshlrev_b32 v{t1}, 2, v{t1}
K_GNL:
  v_cmpx_lt_u32 vcc, v{t1}, v{t2}
  ds_write_b32 v{t1}, v{t4} offset:{L_GN}
  v_add_u32 v{t1}, 32, v{t1}
  v_cmpx_lt_u32 vcc, v{t1}, v{t2}
  ds_write_b32 v{t1}, v{t4} offset:{L_GN}
  v_add_u32 v{t1}, 32, v{t1}
  v_cmpx_lt_u32 vcc, v{t1}, v{t2}
  s_cbranch_execnz K_GNL
  s_mov_b64 exec, -1
  s_add_u32 s{sCnt}, s{sT}, 7
  s_sub_u32 s{sCnt}, s{sCnt}, s{sW}
  s_lshr_b32 s{sCnt}, s{sCnt}, 3
  s_add_u32 s{sCO}, s{sCO}, 7
  s_sub_u32 s{sCO}, s{sCO}, s{sW}
  s_lshr_b32 s{sCO}, s{sCO}, 3
  {("s_mov_b32 s%d, 40" % sCnt + chr(10) + "  s_movk_i32 s%d, 320" % sT + chr(10) + "  s_mov_b32 s%d, 40" % sCO) if OPT["bench"] else ""}
""")
    stamp(a, 4)
    a(f"""
  s_cmp_eq_u32 s{sFirst}, 0
  s_cbranch_scc1 K_POLL2_D""")
    poll("K_POLL2", FHALF)
    a("  s_waitcnt lgkmcnt(0)\n  s_barrier")
    stamp(a, 7)
    dsc = " sc1" if OPT["dsc"] else ""
    def dma_issue():
        L = []
        for j in range(8):
            d = DO + (j & 1)
            L.append([f"  s_add_u32 m0, s{sStg}, {j*1040}",
                      f"  v_add_u32_dpp v{d}, v{ENT}, v{vchunk} row_newbcast:{2*j} row_mask:0xf bank_mask:0xf",
                      f"  buffer_load_dwordx4 v{d}, {s(SP,4)}, 0 offen{dsc} lds" if not OPT["nodma"] else "  s_nop 0"])
        L.append([f"  s_add_u32 m0, s{sStg}, 8320",
                  f"  v_add_u32 v{DO}, v{ENT+1}, v{vechunk}",
                  f"  buffer_load_dwordx4 v{DO}, {s(SE,4)}, 0 offen lds" if not (OPT["nodma"] or OPT["noe"]) else "  s_nop 0"])
        return L
    ndma = 0 if OPT["nodma"] else 8 if OPT["noe"] else 9
    def frag_reads():
        L = []
        for st in range(8):
            L.append(f"  ds_read_b128 {v(PF+4*st,4)}, v{vAlo if st < 4 else vAhi} offset:{32*(st&3)}")
        L.insert(2, f"  ds_read_b128 {v(EF,4)}, v{vEF}")
        return L
    def bq_reads():
        return [f"  ds_read_b64_tr_b16 {v(BQ+nq*t,2)}, v{vqa} offset:{64*t}" for t in range(4)]
    def chain(t, D):
        L = [f"  v_mfma_f32_32x32x16_bf16 {v(D,16)}, {v(EF,4)}, {v(W3+4*t,4)}, 0"]
        if OPT["lo"]:
            L.append(f"  v_mfma_f32_32x32x16_bf16 {v(D,16)}, {v(EF,4)}, {v(W3L+4*t,4)}, {v(D,16)}")
        L.append(f"  v_mfma_f32_32x32x16_bf16 {v(D,16)}, {v(PF+8*t,4)}, {v(I0,4)}, {v(D,16)}")
        L.append(f"  v_mfma_f32_32x32x16_bf16 {v(D,16)}, {v(PF+8*t+4,4)}, {v(I1,4)}, {v(D,16)}")
        if OPT["k8"]:
            L.append(f"  v_mfma_f32_32x32x8bf16_1k {v(D,16)}, {v(AQ,2)}, {v(BQ+2*t,2)}, {v(D,16)}")
        else:
            L.append(f"  v_mfma_f32_32x32x16_bf16 {v(D,16)}, {v(AQ,4)}, {v(BQ+4*t,4)}, {v(D,16)}")
        return L

    if OPT["stag"]:
        a(f"  s_cmp_lt_u32 s{sW}, 4\n  s_cbranch_scc1 K_STG\n  s_sleep {OPT['stag']}\nK_STG:")
    a(f"  ds_read_b64 {v(ENT,2)}, v{vent}\n  s_waitcnt lgkmcnt(0)")
    for x in dma_issue(): a("\n".join(x))
    a(f"  ds_read_b64 {v(ENT,2)}, v{vent} offset:2048")
    a(f"""
  s_cmp_eq_u32 s{sFirst}, 0
  s_cbranch_scc1 K_NOGEMM0
  s_mov_b32 s{sFirst}, 0
  s_waitcnt vmcnt({ndma}) lgkmcnt(0)""")
    node_gemm(W2F, WUT)
    a(f"  v_lshlrev_b32 v{t4}, 4, v{vl}")
    for st in range(4):
        a(f"  buffer_load_dwordx4 {v(WUB+4*st,4)}, v{t4}, {s(SW,4)}, s{sUB} offen offset:{st*1024} sc1")
    def pf5():
        a(f"  s_mul_i32 s{sq}, s2, 40000\n  v_add_u32 v{t0}, s{sq}, v{vt16}")
        for j in range(5):
            a(f"  buffer_load_dwordx4 {v(DUM,4)}, v{t0}, {s(SE,4)}, 0 offen")
            if j < 4: a(f"  v_add_u32 v{t0}, 8192, v{t0}")
    if OPT["pf2"] == 1: pf5()
    a(f"""
  s_or_b32 s{sq}, s2, s{sW}
  s_cmp_lg_u32 s{sq}, 0
  s_cbranch_scc1 K_NONONCE
  s_mov_b64 exec, 1
  v_mov_b32 v{t0}, {FNON}
  v_mov_b32 v{t1}, s{sTag}
  buffer_store_dword v{t1}, v{t0}, {s(SF,4)}, 0 offen
  s_mov_b64 exec, -1
  s_waitcnt vmcnt(0)
K_NONONCE:
  s_waitcnt lgkmcnt(0)
  s_barrier
K_NOGEMM:
  ds_read_b32 v{vgn1}, v{vgq}
  ds_read_b32 v{vsrow}, v{vrow}
  ds_read_b128 {v(GN,4)}, v{vga}
  s_waitcnt vmcnt({9 if OPT["pf2"] == 1 else 4})""")
    stamp(a, 8, 96)
    for x in frag_reads(): a(x)
    a(f"""
  s_waitcnt lgkmcnt(9)
  v_mad_u32_u24 v{vqa}, v{vgn1}, s{sQS}, v{vqlane}
  v_lshrrev_b64 {v(AQ,2)}, v{vsrow}, {v(PAT,2)}""")
    for x in bq_reads(): a(x)
    a("  s_waitcnt lgkmcnt(0)")
    for x in dma_issue(): a("\n".join(x))
    if OPT["pf2"] == 2: pf5()
    for x in chain(0, D0): a(x)
    if OPT["prio"]:
        a(f"  s_cmp_lt_u32 s{sW}, 4\n  s_cbranch_scc1 K_PR\n  s_setprio 1\nK_PR:")
    a(f"""
  s_nop 7
  s_nop 3
  s_cmp_eq_u32 s{sCnt}, 0
  s_cbranch_scc1 K_LOOPEND
  s_cmp_lg_u32 s{sMode}, 0
  s_cbranch_scc1 K_SAFE
  {"s_branch K_QUAD" if not OPT["octo"] else ""}
  s_sub_u32 s{sCnt}, s{sCnt}, s{sCO}
  s_cmp_eq_u32 s{sCO}, 0
  s_cbranch_scc1 K_QUAD""")

    def p(r): return v(r, 2)
    def octet_fast(d, e, t, r, sres):
        ex = [f"  v_exp_f32 v{e+i}, v{d+i}" for i in range(8)]
        L = [f"  v_pk_add_f32 {p(t)}, {p(e)}, 1.0 op_sel_hi:[1,0]",
             f"  v_pk_add_f32 {p(t+2)}, {p(e+4)}, 1.0 op_sel_hi:[1,0]",
             f"  v_pk_fma_f32 {p(t+4)}, {p(d)}, {p(e+2)}, {p(d)}",
             f"  v_pk_fma_f32 {p(t+6)}, {p(d+4)}, {p(e+6)}, {p(d+4)}",
             f"  v_pk_fma_f32 {p(e)}, {p(t)}, {p(e+2)}, {p(t)}",
             f"  v_pk_fma_f32 {p(e+4)}, {p(t+2)}, {p(e+6)}, {p(t+2)}",
             f"  v_pk_fma_f32 {p(t+4)}, {p(d+2)}, {p(t)}, {p(t+4)}",
             f"  v_pk_fma_f32 {p(t+6)}, {p(d+6)}, {p(t+2)}, {p(t+6)}",
             f"  v_pk_mul_f32 {p(t)}, {p(e)}, {p(e+4)}",
             f"  v_pk_mul_f32 {p(t+4)}, {p(t+4)}, {p(e+4)}",
             f"  v_rcp_f32 v{r}, v{t}",
             f"  v_rcp_f32 v{r+1}, v{t+1}",
             f"  v_pk_fma_f32 {p(t+4)}, {p(t+6)}, {p(e)}, {p(t+4)}",
             f"  v_pk_mul_f32 {p(sres)}, {p(t+4)}, {p(r)}"]
        return ex, L
    def octet_safe(d, e, t, r, sres):
        ex = [f"  v_exp_f32 v{e+i}, v{d+i}" for i in range(8)]
        L = [f"  v_pk_add_f32 {p(e+2*i)}, {p(e+2*i)}, 1.0 op_sel_hi:[1,0]" for i in range(4)]
        L += [f"  v_rcp_f32 v{t+i}, v{e+i}" for i in range(8)]
        L += [f"  v_pk_mul_f32 {p(sres)}, {p(d)}, {p(t)}"]
        L += [f"  v_pk_fma_f32 {p(sres)}, {p(d+2*i)}, {p(t+2*i)}, {p(sres)}" for i in range(1, 4)]
        return ex, L
    def zipl(x, y):
        o = []
        for i in range(max(len(x), len(y))):
            if i < len(x): o.append(x[i])
            if i < len(y): o.append(y[i])
        return o
    def adds(t, kind):
        if OPT["noadd"]: return [f"  ds_read_b32 v{DUM}, v{vgq}"] * (2 if kind == "octo" else 4)
        if kind == "octo": return [f"  ds_add_f64 v{AD+2*xy}, {v(CV+2*xy,2)} offset:{256*t}" for xy in range(2)]
        return [f"  ds_add_f64 v{AD+2*xy+o}, {v(CV+2*(2*o+xy),2)} offset:{256*t}" for o in range(2) for xy in range(2)]
    def block_body(kind, u, nun):
        oc = octet_safe if kind == "safe" else octet_fast
        nadd = 2 if kind == "octo" else 4
        B = []
        for t in range(4):
            D = D0 if t % 2 == 0 else D1
            Dn = D1 if t % 2 == 0 else D0
            exa, La = oc(D, EA, TA, RA, SA)
            exb, Lb = oc(D+8, EB, TB, RB, SB)
            ex = exa + exb
            ch = chain((t+1) % 4, Dn)
            late = []
            if kind == "octo":
                keep = lambda L: [x for x in L[:-1] if "v_rcp" not in x]
                dk = DK + 2*(t & 1)
                pk = zipl(keep(La), keep(Lb))
                pk = pk[:-4] + [f"  v_pk_mul_f32 {p(dk)}, {p(TA)}, {p(TB)}"] + pk[-4:-2] + \
                     [f"  v_rcp_f32 v{RA}, v{dk}", f"  v_rcp_f32 v{RA+1}, v{dk+1}"] + pk[-2:] + \
                     [f"  v_pk_mul_f32 {p(TA+4)}, {p(TA+4)}, {p(TB)}"]
                if t & 1: pk.append(f"  v_pk_fma_f32 {p(MAC)}, {p(DK)}, {p(DK+2)}, {p(MAC)}")
                pk += [f"  v_pk_fma_f32 {p(TA+4)}, {p(TB+4)}, {p(TA)}, {p(TA+4)}",
                       f"  v_pk_mul_f32 {p(SA)}, {p(TA+4)}, {p(RA)}"]
                fin = [f"  v_cvt_f64_f32 {v(CV+2*xy,2)}, v{SA+xy}" for xy in range(2)]
                adr = (0, 2)
            else:
                pk = zipl(La, Lb)
                if kind == "quad":
                    idx = max(i for i, x in enumerate(pk) if x.startswith(f"  v_pk_mul_f32 {p(TB)}, {p(EB)}"))
                    pk.insert(idx+1, f"  v_pk_fma_f32 {p(MAC)}, {p(TA)}, {p(TB)}, {p(MAC)}")
                fin = [f"  v_cvt_f64_f32 {v(CV+2*(2*o+xy),2)}, v{S+xy}" for o, S in ((0, SA), (1, SB)) for xy in range(2)]
                adr = range(4)
            fin += adds(t, kind)
            if t == 0:
                pk = pk[:4] + [f"  v_mad_u32_u24 v{AD+i}, v{GN+i}, s{sAS}, v{vacl}" for i in adr] + pk[4:]
            if t == 1:
                pk = pk[:8] + [f"  ds_read_b64 {v(ENT,2)}, v{vent} offset:{4096+2048*u}",
                      f"  ds_read_b32 v{vgn1}, v{vgq} offset:{256+256*u}",
                      f"  ds_read_b32 v{vsrow}, v{vrow} offset:{2048+2048*u}",
                      f"  ds_read_b128 {v(GN,4)}, v{vga} offset:{256+256*u}"] + pk[8:]
            if t == 3:
                B.append(f"  s_waitcnt lgkmcnt({nadd})")
            dma = dma_issue() if t == 3 else []
            per = 16 // len(ch); e = 0
            for i, m in enumerate(ch):
                B.append(m)
                n = per if i < len(ch)-1 else 16 - e
                B += ex[e:e+2]
                if late: B.append(late.pop(0))
                B += ex[e+2:e+n]; e += n
                if OPT["dmapos"] == 0:
                    for _ in range(2):
                        if dma: B += dma.pop(0)
            if t == 2:
                mid = [f"  s_waitcnt vmcnt(0) lgkmcnt({nadd})",
                       f"  v_mad_u32_u24 v{vqa}, v{vgn1}, s{sQS}, v{vqlane}"]
                rd = frag_reads() + bq_reads()
                aq = [f"  v_lshrrev_b64 {v(AQ,2)}, v{vsrow}, {v(PAT,2)}"]
                if OPT["rdgap"] == 0: B += mid + rd + aq + pk
                else:
                    q = []
                    for i, x in enumerate(aq + pk):
                        if rd and i % OPT["rdgap"] == 0: q.append(rd.pop(0))
                        q.append(x)
                    B += mid + q + rd
            elif t == 3:
                inc = []
                if u == nun - 1 and OPT["bench"]:
                    inc = [f"  v_add_u32 v{DUM+i}, {2048*nun}, v{vent}" for i in range(4)]
                elif u == nun - 1:
                    inc = incs(nun)
                pk = pk + inc
                if OPT["dmapos"] == 1:
                    q = []
                    for i, x in enumerate(pk):
                        if dma and i % 3 == 0: q += dma.pop(0)
                        q.append(x)
                    pk = q
                for x in dma: B += x
                B += pk
            else:
                B += pk
            B += fin
        return B
    def incs(n):
        return [f"  v_add_u32 v{vent}, {2048*n}, v{vent}", f"  v_add_u32 v{vrow}, {2048*n}, v{vrow}",
                f"  v_add_u32 v{vgq}, {256*n}, v{vgq}", f"  v_add_u32 v{vga}, {256*n}, v{vga}"]
    def loop(kind):
        lab = {"safe": "K_SAFE", "quad": "K_QUAD", "octo": "K_FAST"}[kind]
        nun = OPT["unroll"] if kind == "octo" else 1
        cnt = sCO if kind == "octo" else sCnt
        L = []
        for u in range(nun):
            L += block_body(kind, u, nun)
            L.append(f"  s_sub_u32 s{cnt}, s{cnt}, 1")
            L.append(f"  s_cmp_lg_u32 s{cnt}, 0")
            L.append(f"  s_cbranch_scc1 {lab}" if u == nun - 1 else f"  s_cbranch_scc0 K_OX{u}")
        ab = OPT["abl"]
        if ab & 1: L = [x for x in L if not ("v_mfma" in x and (f", {v(I0,4)}," in x or f", {v(I1,4)}," in x))]
        if ab & 2: L = [x for x in L if "v_mfma_f32_32x32x8" not in x and "tr_b16" not in x]
        if ab & 4: L = [x.replace("v_exp_f32", "v_mov_b32") for x in L]
        if ab & 8: L = [x for x in L if "v_pk_" not in x]
        if ab & 16: L = [x for x in L if "v_mfma" not in x]
        if ab & 32: L = [x for x in L if "ds_read_b128" not in x]
        if ab & 64: L = [x for x in L if "v_exp" not in x]
        if ab & 128:
            M = []
            for x in L:
                if "v_mfma" in x and f", {v(I1,4)}," in x: continue
                if "v_mfma" in x and f", {v(I0,4)}," in x:
                    m = re.match(r"\s*v_mfma_f32_32x32x16_bf16 (v\[\d+:\d+\]), v\[(\d+):", x)
                    M.append(f"  v_smfmac_f32_32x32x32_bf16 {m.group(1)}, {v(I0,4)}, {v(int(m.group(2)),8)}, v{vone}"); continue
                m = re.match(r"\s*ds_read_b128 v\[(\d+):\d+\], v(\d+) offset:(\d+)", x)
                if m and PF <= int(m.group(1)) < PF + 32:
                    r0 = int(m.group(1))
                    M.append(f"  ds_read_b64_tr_b16 {v(r0,2)}, v{vqa} offset:{m.group(3)}")
                    M.append(f"  ds_read_b64_tr_b16 {v(r0+2,2)}, v{vqa} offset:{int(m.group(3))+128}"); continue
                M.append(x)
            L = M
        if ab & 256:
            M = []
            for x in L:
                if "v_mfma" in x and (f", {v(I1,4)}," in x or f", {v(I0,4)}," in x): continue
                if "v_mfma_f32_32x32x16" in x and x.rstrip().endswith(", 0"): x = x.rstrip()[:-1] + v(PF, 16)
                m = re.match(r"\s*ds_read_b128 v\[(\d+):\d+\], v(\d+) offset:(\d+)", x)
                if m and PF <= int(m.group(1)) < PF + 32:
                    for q in range(8): M.append(f"  ds_read_u16_d16_hi v{PF+(int(m.group(1))+q)%32}, v{vacl} offset:{64*q}")
                    continue
                M.append(x)
            L = M
        if OPT["align"]: L = align8(L)
        a(f".p2align 6\n{lab}:")
        for x in L: a(x)
    loop("octo")
    a(f"""
K_OXE:
  s_cmp_lg_u32 s{sCnt}, 0
  s_cbranch_scc1 K_QUAD""")
    a(f"""
K_LOOPEND:""")
    a(f"""
  s_waitcnt vmcnt(0) lgkmcnt(0)
  s_barrier""")
    stamp(a, 9, 98)
    a(f"""
  s_cmp_lg_u32 s{sKind}, 0
  s_cbranch_scc1 K_NEXT
K_CELLSDONE:
  v_mov_b32 v{t0}, {L_FLG+32}
  ds_read_b128 {v(CV,4)}, v{t0}
K_CONV:
  s_mul_i32 s{sTmp}, s{sW}, {AS}
  s_add_u32 s{sTmp}, s{sTmp}, {L_ACC}
  v_lshlrev_b32 v{t1}, 4, v{vl}
  v_add_u32 v{t1}, s{sTmp}, v{t1}""")
    for k in range(5):
        a(f"  ds_read_b128 {v(D0+4*k,4)}, v{t1} offset:{k*8*AS}")
    a(f"""
  s_mul_i32 s{sTmp}, s{sW}, {XS}
  s_add_u32 s{sTmp}, s{sTmp}, {L_X}
  v_lshlrev_b32 v{t2}, 2, v{vl}
  v_add_u32 v{t2}, s{sTmp}, v{t2}
  s_cmp_ge_u32 s{sKind}, 3
  s_cbranch_scc1 K_CONV2
  s_waitcnt lgkmcnt(5)
  v_or3_b32 v{t0}, v{CV}, v{CV+1}, v{CV+2}
  v_or_b32 v{t0}, v{t0}, v{CV+3}
  v_cmp_ne_u32 vcc, 0, v{t0}
  s_cbranch_vccnz K_STARTOV
K_CONV2:
  s_mov_b32 s{sTmp}, 0x71800000              ; 2^100
  v_cmp_nle_f32 {s(sBad,2)}, v{MAC}, s{sTmp}
  v_cmp_nle_f32 vcc, v{MAC+1}, s{sTmp}
  s_or_b64 {s(sBad,2)}, {s(sBad,2)}, vcc
  s_movk_i32 s{sTmp}, 0x207""")
    for k in range(5):
        a(f"""
  s_waitcnt lgkmcnt({4-k})
  v_cvt_f32_f64 v{EA+2*k}, {v(D0+4*k,2)}
  v_cvt_f32_f64 v{EA+2*k+1}, {v(D0+4*k+2,2)}
  v_cmp_class_f32 vcc, v{EA+2*k}, s{sTmp}
  s_or_b64 {s(sBad,2)}, {s(sBad,2)}, vcc
  v_cmp_class_f32 vcc, v{EA+2*k+1}, s{sTmp}
  s_or_b64 {s(sBad,2)}, {s(sBad,2)}, vcc
  v_cvt_pk_bf16_f32 v{EB+k}, v{EA+2*k}, v{EA+2*k+1}""")
    for k in range(5):
        a(f"  ds_write_b32 v{t2}, v{EB+k} offset:{k*8*XS}")
    a(f"""
  s_cmp_eq_u64 {s(sBad,2)}, 0
  s_cbranch_scc1 K_OKW
  v_mov_b32 v{t0}, {L_FLG}
  ds_write_b32 v{t0}, v{vone}
K_OKW:
  s_waitcnt lgkmcnt(0)
  s_barrier
  v_mov_b32 v{t0}, {L_FLG}
  ds_read_b32 v{t0}, v{t0}""")
    for nt in range(2):
        for st in range(4):
            a(f"  ds_read_b128 {v(XF+16*nt+4*st,4)}, v{vxb} offset:{nt*16*XS + st*64}")
    a(f"""
  s_waitcnt lgkmcnt(8)
  v_readfirstlane_b32 s{sTmp}, v{t0}
  s_cmp_gt_u32 s{sTmp}, s{sMode}
  {"s_cbranch_scc1 K_RESTART" if not EXP else "s_nop 0"}
  s_waitcnt lgkmcnt(4)""")
    for st in range(4):
        c = "0" if st == 0 else v(D0, 4)
        a(f"  v_mfma_f32_16x16x32_bf16 {v(D0,4)}, {v(WUB+4*st,4)}, {v(XF+4*st,4)}, {c}")
    for st in range(4):
        a(f"  ds_read_b128 {v(D1+4*st,4)}, v{vxb} offset:{2*16*XS + st*64}")
    a("  s_waitcnt lgkmcnt(4)")
    for st in range(4):
        c = "0" if st == 0 else v(D0+4, 4)
        a(f"  v_mfma_f32_16x16x32_bf16 {v(D0+4,4)}, {v(WUB+4*st,4)}, {v(XF+16+4*st,4)}, {c}")
    a("  s_waitcnt lgkmcnt(0)")
    for st in range(4):
        c = "0" if st == 0 else v(D0+8, 4)
        a(f"  v_mfma_f32_16x16x32_bf16 {v(D0+8,4)}, {v(WUB+4*st,4)}, {v(D1+4*st,4)}, {c}")
    a(f"""
  s_mov_b32 s{sK}, {NLN2}
  s_mov_b32 s{sK+1}, {NLN2}
  s_mov_b32 s{sTmp}, {NLOG2E}
  s_mov_b32 s{sTmp+1}, {NLOG2E}
  v_and_b32 v{t0}, 15, v{vl}
  v_lshlrev_b32 v{t0}, 8, v{t0}
  v_lshrrev_b32 v{t1}, 4, v{vl}
  v_lshl_add_u32 v{t0}, v{t1}, 3, v{t0}
  s_lshl_b32 s{sTmp+2}, s{sW}, 5
  v_add_u32 v{t0}, s{sTmp+2}, v{t0}
  v_add_u32 v{t1}, 4096, v{t0}
  v_add_u32 v{t2}, 8192, v{t0}""")
    for nt in range(3):
        d = D0 + 4*nt
        a(f"""
  v_pk_fma_f32 {p(d)}, {p(d)}, {s(sK,2)}, {p(U+4*nt)}
  v_pk_fma_f32 {p(d+2)}, {p(d+2)}, {s(sK,2)}, {p(U+4*nt+2)}
  v_pk_mul_f32 {p(EA)}, {p(d)}, {s(sTmp,2)}
  v_pk_mul_f32 {p(EA+2)}, {p(d+2)}, {s(sTmp,2)}""")
        for i in range(4): a(f"  v_exp_f32 v{EA+i}, v{EA+i}")
        a(f"  s_nop 0\n  v_pk_add_f32 {p(EA)}, {p(EA)}, 1.0 op_sel_hi:[1,0]\n  v_pk_add_f32 {p(EA+2)}, {p(EA+2)}, 1.0 op_sel_hi:[1,0]")
        for i in range(4): a(f"  v_rcp_f32 v{EA+i}, v{EA+i}")
        a(f"""
  s_nop 0
  v_pk_mul_f32 {p(d)}, {p(d)}, {p(EA)}
  v_pk_mul_f32 {p(d+2)}, {p(d+2)}, {p(EA+2)}
  v_cvt_pk_bf16_f32 v{EB+2*nt}, v{d}, v{d+1}
  v_cvt_pk_bf16_f32 v{EB+2*nt+1}, v{d+2}, v{d+3}
  buffer_store_dwordx2 {v(EB+2*nt,2)}, v{t0+nt}, {s(SO,4)}, 0 offen""")
    if OPT["stamp"]:
        a(f"""
  s_waitcnt vmcnt(0)
  s_memrealtime s[4:5]
  s_waitcnt lgkmcnt(0)
  s_lshl_b32 s6, s2, 3
  s_add_u32 s6, s6, s{sW}
  s_lshl_b32 s6, s6, 6
  s_add_u32 s6, s6, {WS_STAMP}
  s_add_u32 s6, s{pWS}, s6
  s_addc_u32 s7, s{pWS+1}, 0
  s_mov_b64 exec, 1
  v_mov_b32 v1, 0""")
        for i, r in enumerate([80+2*i for i in range(8)] + [96, 98, 4]):
            pass
        regs = [80, 82, 84, 86, 88, 90, 92, 94, 8, 9, 4, 10, 11, sT]
        for i, r in enumerate(regs):
            a(f"  v_mov_b32 v2, s{r}\n  global_store_dword v1, v2, s[6:7] offset:{4*i}")
    a(f"""
K_END:
  s_endpgm
""")
    a(f"""
K_PREP:
  s_sub_u32 s{sq}, s2, {2*G}
  s_lshl_b32 s{sq}, s{sq}, 14
  s_lshl_b32 s{sq+1}, s{sW}, 12
  s_add_u32 s{sq}, s{sq}, s{sq+1}
  v_lshlrev_b32 v{t0}, 4, v{vl}
  v_mov_b32 v{t7}, s{sTag}
  s_waitcnt vmcnt({10+NA})
  s_barrier""")
    wtr(PF, vqa)
    a("  s_waitcnt lgkmcnt(0)")
    for st in range(4):
        a(f"  buffer_store_dwordx4 {v(PF+4*st,4)}, v{t0}, {s(SW,4)}, s{sq} offen offset:{st*1024} sc1")
    a(f"""
  s_lshr_b32 s{sq}, s{sW}, 2
  s_add_u32 s{sq}, s{sq}, s2
  s_cmp_lg_u32 s{sq}, {2*G}
  s_cbranch_scc1 K_PREPD
  s_mov_b32 s{sq+1}, {NLOG2E}
  s_lshl_b32 s{sq}, s{sW}, 10
  s_waitcnt vmcnt({6+NA})""")
    for jj in range(8):
        a(f"  v_lshlrev_b32 v{D0+jj}, 16, v{D0+jj}\n  v_mul_f32 v{D0+jj}, s{sq+1}, v{D0+jj}")
    for i in range(4):
        a(f"  v_cvt_pk_bf16_f32 v{D0+8+i}, v{D0+2*i}, v{D0+1+2*i}")
    for i in range(4):
        a(f"""
  v_lshlrev_b32 v{t2}, 16, v{D0+8+i}
  v_and_b32 v{t3}, 0xffff0000, v{D0+8+i}
  v_sub_f32 v{t2}, v{D0+2*i}, v{t2}
  v_sub_f32 v{t3}, v{D0+1+2*i}, v{t3}
  v_cvt_pk_bf16_f32 v{D0+12+i}, v{t2}, v{t3}""")
    a(f"""
  s_add_u32 s{sq+1}, s{sq}, {WF_3L}
  s_add_u32 s{sq}, s{sq}, {WF_3H}
  buffer_store_dwordx4 {v(D0+8,4)}, v{t0}, {s(SW,4)}, s{sq} offen sc1
  buffer_store_dwordx4 {v(D0+12,4)}, v{t0}, {s(SW,4)}, s{sq+1} offen sc1
K_PREPD:""")
    own_x(4+NA)
    a(f"""
  s_waitcnt vmcnt(0)
  s_barrier
  s_cmp_eq_u32 s{sW}, 0
  s_cbranch_scc1 K_FLAG
  s_branch K_PST""")
    a(f"""
K_OVF:
  s_waitcnt lgkmcnt(0)
  s_barrier
  s_mul_i32 s{sq+1}, s2, {OVSTR//2}
  s_add_u32 s{sq+1}, s{sq+1}, 64
  v_mov_b32 v{t5}, {L_FLG+8}
  v_mov_b32 v{t6}, -1""")
    for j in range(5):
        a(f"""
  v_cmp_le_u32 vcc, {CAP-1}, v{RK+j}
  s_and_b64 exec, exec, vcc
  s_cbranch_execz K_OV{j}
  v_add_u32 v{t1}, {L_BCNT}, v{B4+j}
  ds_read_b32 v{t1}, v{t1}
  s_waitcnt lgkmcnt(0)
  v_cmp_ne_u32 vcc, {CAP}, v{t1}
  s_nop 1
  v_cndmask_b32 v{t3}, v{SS_+j}, v{t6}, vcc
  ds_write_b32 v{CA+j}, v{t3} offset:{CELLB-8}
  s_and_b64 exec, exec, vcc
  s_cbranch_execz K_OV{j}
  ds_add_rtn_u32 v{t1}, v{t5}, v{vone}
  v_mov_b32 v{CV}, v{SS_+j}
  v_lshrrev_b32 v{CV+1}, 2, v{B4+j}
  s_waitcnt lgkmcnt(0)
  v_lshl_add_u32 v{t1}, v{t1}, 3, s{sq+1}
  buffer_store_dwordx2 {v(CV,2)}, v{t1}, {s(SV,4)}, 0 offen sc1
  s_waitcnt vmcnt(0)
K_OV{j}:
  s_mov_b64 exec, -1""")
    a(f"""
  s_waitcnt lgkmcnt(0)
  s_barrier
  ds_read_b32 v{t1}, v{t5}
  s_sub_u32 s{sq+1}, s{sq+1}, 64
  v_mov_b32 v{t3}, s{sq+1}
  v_mov_b32 v{t2}, 0
  s_waitcnt lgkmcnt(0)
  buffer_store_dword v{t1}, v{t3}, {s(SV,4)}, 0 offen sc1
  s_waitcnt vmcnt(0)
  s_branch K_OVFDONE""")
    for u in range(OPT["unroll"] - 1):
        a(f"K_OX{u}:\n  s_cmp_eq_u32 s{sCnt}, 0\n  s_cbranch_scc1 K_LOOPEND")
        for x in incs(u + 1): a(x)
        a("  s_branch K_QUAD")
    loop("quad")
    a("  s_branch K_LOOPEND")
    a("K_TEXTEND:")
    loop("safe")
    a("  s_branch K_LOOPEND")
    a(f"""
K_NOGEMM0:
  s_waitcnt vmcnt(0)
  s_branch K_NOGEMM
K_RESTART:
  s_mov_b32 s{sMode}, 1
  s_mov_b32 s{sKind}, 0
  s_waitcnt lgkmcnt(0)
  s_barrier
  v_mov_b32 v{CV}, 0
  v_mov_b32 v{CV+1}, 0
  v_mov_b32 v{CV+2}, 0
  v_mov_b32 v{CV+3}, 0""")
    for j in range(5):
        a(f"  ds_write_b128 v{vt16}, {v(CV,4)} offset:{L_ACC + j*8192}")
    a(f"""
  v_cmp_gt_u32 vcc, {(40*AS-5*8192)//16}, v0
  s_and_saveexec_b64 {s(sEx,2)}, vcc
  ds_write_b128 v{vt16}, {v(CV,4)} offset:{L_ACC + 5*8192}
  s_mov_b64 exec, {s(sEx,2)}
  s_branch K_RELOAD
K_SPLIT:
  s_mov_b32 s{sKind}, 1
  s_waitcnt lgkmcnt(0)
  s_barrier
  s_branch K_RELOAD
K_NEXT:
  s_cmp_eq_u32 s{sKind}, 4
  s_cbranch_scc1 K_NEXTOV
  s_cmp_eq_u32 s{sKind}, 3
  s_cbranch_scc1 K_OVPART1
  s_cmp_eq_u32 s{sKind}, 2
  s_cbranch_scc1 K_CELLSDONE
  s_mov_b32 s{sKind}, 2
K_RELOAD:
  v_lshrrev_b32 v{t1}, 2, v0
  s_mov_b32 s{sq}, {CH*32}
  v_mul_u32_u24 v{vebase}, s{sq}, v{t1}
  s_waitcnt vmcnt(0)""")
    for k in range(2):
        a(f"  buffer_load_dwordx4 {v(REC+4*k,4)}, v{vcell}, {s(SC,4)}, 0 offen offset:{64*k} sc1")
    a(f"""
  s_waitcnt vmcnt(0)
  s_mov_b32 exec_lo, 0xaaaaaaaa
  s_mov_b32 exec_hi, 0xaaaaaaaa
  v_mov_b32 v{REC+3}, 0
  v_mov_b32 v{REC+7}, 0
  s_mov_b64 exec, -1
  s_cmp_eq_u32 s{sKind}, 0
  s_cbranch_scc1 K_ROUND
  s_lshr_b32 s{sq}, s{sW}, 2
  s_add_u32 s{sq}, s{sq}, 1
  s_cmp_eq_u32 s{sq}, s{sKind}
  s_cbranch_scc1 K_ROUND""")
    for k in range(NR): a(f"  v_mov_b32 v{REC+k}, 0")
    a(f"""
K_ROUND:
  v_mov_b32 v{CV}, 0
  v_mov_b32 v{CV+1}, 0
  v_mov_b32 v{CV+2}, 0
  v_mov_b32 v{CV+3}, 0
  v_cmp_gt_u32 vcc, {(L_FLG-L_GN)//16}, v0
  s_and_saveexec_b64 {s(sEx,2)}, vcc
  ds_write_b128 v{vt16}, {v(CV,4)} offset:{L_GN}
  s_mov_b64 exec, {s(sEx,2)}""")
    prefill()
    a(f"""
  v_and_b32 v{vent}, 2047, v{vent}
  v_and_b32 v{vrow}, 2047, v{vrow}
  v_subrev_u32 v{vga}, {L_GN}, v{vga}
  v_and_b32 v{vga}, 255, v{vga}
  v_add_u32 v{vga}, {L_GN}, v{vga}
  v_and_b32 v{t2}, 12, v{vl}
  v_add_u32 v{vgq}, v{vga}, v{t2}
  s_waitcnt lgkmcnt(0)
  s_barrier
  s_branch K_PHASE1
K_STARTOV:""")
    for i in range(4): a(f"  v_readfirstlane_b32 s{sOV+i}, v{CV+i}")
    a(f"""
  s_mov_b32 s{sKind}, 4
  s_waitcnt lgkmcnt(0)
K_NEXTOV:""")
    for i in range(2):
        a(f"""
  s_ff1_i32_b64 s{sP}, {s(sOV+2*i,2)}
  s_cmp_eq_u32 s{sP}, -1
  s_cbranch_scc1 K_OVN{i}
  s_bitset0_b64 {s(sOV+2*i,2)}, s{sP}
  s_add_u32 s{sP}, s{sP}, {64*i}
  s_branch K_OVGO
K_OVN{i}:""")
    a(f"""
  s_branch K_CONV
K_OVGO:
  s_mov_b32 s{sKind}, 3
  v_mov_b32 v{t4}, v0
  s_branch K_OVLD
K_OVPART1:
  s_mov_b32 s{sKind}, 4
  v_add_u32 v{t4}, 2048, v0
K_OVLD:
  s_mul_i32 s{sq}, s{sP}, {OVSTR}
  s_mul_i32 s{sq+1}, s{sP}, {CH*32}
  v_mov_b32 v{vebase}, s{sq+1}
  v_mov_b32 v{t0}, s{sq}
  buffer_load_dword v{t1}, v{t0}, {s(SV,4)}, 0 offen sc1
  v_lshl_add_u32 v{t2}, v{t4}, 3, v{t0}""")
    for k in range(4):
        a(f"  buffer_load_dwordx2 {v(PF+2*k,2)}, v{t2}, {s(SV,4)}, 0 offen offset:64 sc1\n  v_add_u32 v{t2}, 4096, v{t2}")
    a(f"  s_waitcnt vmcnt(0)")
    for k in range(4):
        a(f"""
  v_cmp_lt_u32 vcc, v{t4}, v{t1}
  v_cmp_eq_u32 {s(sEx,2)}, s2, v{PF+2*k+1}
  s_and_b64 vcc, vcc, {s(sEx,2)}
  v_add_u32 v{t4}, 512, v{t4}
  s_nop 1
  v_cndmask_b32 v{REC+k}, 0, v{PF+2*k}, vcc""")
    for k in range(4, NR): a(f"  v_mov_b32 v{REC+k}, 0")
    a("  s_branch K_ROUND")
    return a.text(), nv, NS

def gen_diag(idx):
    a = Asm()
    a(f"""
.globl mpnn_d_kernel
.p2align 8
.type mpnn_d_kernel,@function
mpnn_d_kernel:
  s_cmp_ge_u32 s2, 1
  s_cbranch_scc1 D_END
  s_load_dwordx2 s[4:5], s[0:1], 64
  s_waitcnt lgkmcnt(0)
  s_add_u32 s4, s4, {WS_STAMP + (OPT['wsb'] << 20)}
  s_addc_u32 s5, s5, 0
  s_load_dword s6, s[4:5], 0
  s_waitcnt lgkmcnt(0)
  s_sub_u32 s6, s6, 100000""")
    for q, (ix, ismax) in enumerate(((idx, 1), (0, 0))):
        op = "max" if ismax else "min"
        a(f"  v_lshlrev_b32 v1, {6 if not OPT['dodd'] else 10}, v0\n  v_add_u32 v1, {ix*4 + (512 + 64*(OPT['dodd']-1) if OPT['dodd'] else 0)}, v1\n  v_mov_b32 v3, {0 if ismax else -1}")
        nk = 32 if not OPT['dodd'] else 2
        for k in range(nk):
            a(f"  global_load_dword v{8+k}, v1, s[4:5]\n  v_add_u32 v1, {4096 if not OPT['dodd'] else 65536}, v1")
        a("  s_waitcnt vmcnt(0)")
        for k in range(nk):
            a(f"  v_subrev_u32 v2, s6, v{8+k}\n  v_{op}_u32 v3, v3, v2")
        a(f"  s_mov_b32 s{20+q}, {0 if ismax else -1}\n  s_nop 1")
        for l in range(64):
            a(f"  v_readlane_b32 s8, v3, {l}\n  s_nop 0\n  s_{op}_u32 s{20+q}, s{20+q}, s8")
    a(f"""
  s_sub_u32 s20, s20, s21
  s_min_u32 s20, s20, 20000
  s_lshl_b32 s20, s20, 3
  {'s_mov_b32 s20, 0' if OPT['dz'] else ''}
  s_memrealtime s[8:9]
  s_waitcnt lgkmcnt(0)
D_L:
  s_memrealtime s[10:11]
  s_waitcnt lgkmcnt(0)
  s_sub_u32 s12, s10, s8
  s_cmp_lt_u32 s12, s20
  s_cbranch_scc1 D_L
D_END:
  s_endpgm
""")
    return a.text()

HEAD = """; Kernarg layout for this problem (72 bytes, ptrs only, base s[0:1]):
"""
def main():
    k, nv, ns = gen()
    out = HEAD + f"; @launch grid=({NB},1,1) block=(512,1,1) lds={LDS}\n"
    if OPT["diag"] >= 0:
        out = HEAD + f"; @launch kernel={KN} grid=({NB},1,1) block=(512,1,1) lds={LDS}\n; @launch kernel=mpnn_d_kernel grid=(1,1,1) block=(64,1,1) lds=0\n"
        k += gen_diag(OPT["diag"])
    out += '.amdgcn_target "amdgcn-amd-amdhsa--gfx950"\n.text\n' + k
    out += f""".section .rodata,"a"
.p2align 6
.amdhsa_kernel {KN}
  .amdhsa_next_free_vgpr {nv}
  .amdhsa_next_free_sgpr {ns}
  .amdhsa_accum_offset {(nv+3)//4*4}
  .amdhsa_group_segment_fixed_size 0
  .amdhsa_kernarg_size 72
  .amdhsa_user_sgpr_count 2
  .amdhsa_user_sgpr_kernarg_segment_ptr 1
  .amdhsa_system_sgpr_workgroup_id_x 1
.end_amdhsa_kernel
"""
    if OPT["diag"] >= 0:
        out += """.p2align 6
.amdhsa_kernel mpnn_d_kernel
  .amdhsa_next_free_vgpr 48
  .amdhsa_next_free_sgpr 32
  .amdhsa_accum_offset 48
  .amdhsa_group_segment_fixed_size 0
  .amdhsa_kernarg_size 72
  .amdhsa_user_sgpr_count 2
  .amdhsa_user_sgpr_kernarg_segment_ptr 1
  .amdhsa_system_sgpr_workgroup_id_x 1
.end_amdhsa_kernel
"""
    open(sys.argv[1], "w").write(out)
    print("vgprs", nv, "lds", LDS)
main()
```

```python
from common import *

N = 10000; E = 320000
G = 125
CH = 2560
NB = 256
MAGIC = 26843
CAP = 28
CELLB = 128
BSTR = G * CELLB

WS_P = 256
WS_CELL = 0x280000
WS_WF = 0x1280000
WF_W2, WF_UT, WF_UB, WF_3H, WF_3L = 0, 32768, 65536, 98304, 102400
WF_SIZE = 106496
WS_OVF = 0x12A0000
OVSTR = 64 + CH * 8
WS_FLAG = 0x1520000
WS_STAMP = 0x1600000

OPT = dict(lo=0, k8=1, stamp=0, nodma=0, noadd=0, noe=0, hot=0, align=1, unroll=2, dmapos=0, rdpos=0, dsc=1, pf=1, slp=0, stf=1, addpos=0, rdgap=0, prio=0, bench=0, octo=1, frep=8, fln=16, slp0=0, plf=1, flf=1, diag=-1, touch=0, dz=0, abl=0, dodd=0, wsb=0, claim=0, slpa=0, slpb=0, zt=0, cpf=0, pf2=0, stag=0, bdl=0, wfirst=0, fine=0, half=0)
for a_ in sys.argv[2:]:
    k_, v_ = a_.split("="); OPT[k_] = int(v_)
EXP = OPT["half"] or OPT["bench"] or OPT["nodma"] or OPT["noe"] or OPT["noadd"] or OPT["hot"]

FL_ = ['', 'sc1', 'sc0 sc1', 'sc1 nt', 'sc0 sc1 nt']; PLF = FL_[OPT['plf']]; FLF = FL_[OPT['flf']]
STF = ['', 'sc1', 'sc0 sc1', 'sc1 nt'][OPT['stf']]
FREP = OPT['frep']; FLN = OPT['fln']; FSH = (128//FLN).bit_length()-1; FHALF = FREP*FLN*256; FNON = 2*FHALF; FMASK = hex((1<<FREP)-1)
NA = 1 if OPT['claim'] & 4 else 0
NCL = (3 if OPT['claim'] & 1 else 0) + NA
NCC = (4 if OPT['claim'] & 2 else 0) + NA
CAPB = 70
L_ENT = 0
L_GN = (CAPB + 1) * 256
L_CNT = L_GN + (CAPB + 17) * 32
L_FLG = L_CNT + 256
L_ACC = L_FLG + 64
AS = 1040
L_Q = L_ACC + 40 * AS
QS = 320
L_X = L_Q + 40 * QS
XS = 288
L_STG = L_X + 40 * XS
STG = 8 * 1040 + 1024
LDS = L_STG + 8 * STG
L_CIMG = L_STG
L_BCNT = L_CIMG + NB * CELLB
WPITCH = 1088
L_GP = L_STG + 1024
L_WS = L_STG + 32 * WPITCH
assert L_BCNT + 1024 <= LDS and L_STG % 16 == 0 and L_ACC % 16 == 0
PADS, PADE = 0x8000003f, 0x80000000
KN = "standalone__mpnn_edge_mlp__graph_kernel"

def fstamp(a, i):
    if OPT["fine"]: a(f"  s_memrealtime s[{80+2*i}:{81+2*i}]")
def stamp(a, i, cyc=None):
    if OPT["fine"] and i in (1, 2, 3, 5): return
    if OPT["stamp"]:
        if cyc is None:
            a(f"  s_memrealtime s[{80+2*i}:{81+2*i}]\n  s_waitcnt lgkmcnt(0)")
        else:
            a(f"  s_memrealtime s[96:97]\n  s_memtime s[98:99]\n  s_waitcnt lgkmcnt(0)\n  s_mov_b32 s{i}, s96\n  s_mov_b32 s{i+2}, s98")

def gen():
    a = Asm()
    R = Regs(1)
    al = R.alloc
    vl = al("lane")
    t0 = al("t", 8, 2); t1, t2, t3, t4, t5, t6, t7 = range(t0+1, t0+8)
    vchunk = al("vchunk"); vechunk = al("vechunk")
    vent = al("vent"); vrow = al("vrow"); vgq = al("vgq"); vga = al("vga")
    vAlo = al("Alo"); vAhi = al("Ahi"); vEF = al("vEF")
    vqlane = al("vqlane"); vacl = al("vacl"); vxb = al("vxb"); vqw = al("vqw")
    vebase = al("vebase"); vone = al("vone"); vt16 = al("vt16"); vcell = al("vcell")
    vqa = al("vqa"); vsrow = al("vsrow"); vgn1 = al("vgn1")
    ENT = al("ENT", 2, 2)
    MAC = al("MAC", 2, 2)
    PAT = al("PAT", 2, 2)
    nq = 2 if OPT["k8"] else 4
    AQ = al("AQ", nq, 2)
    GN = al("GN", 4, 2); AD = al("AD", 4)
    DO = al("DO", 2)
    I0 = al("I0", 4, 2); I1 = al("I1", 4, 2)
    W3 = al("W3", 16, 2)
    W3L = al("W3L", 16, 2) if OPT["lo"] else None
    BQ = al("BQ", 4*nq, 2)
    EF = al("EF", 4, 2)
    PF = al("PF", 32, 2)
    D0 = al("D0", 16, 2); D1 = al("D1", 16, 2)
    EA = al("EA", 8, 2); TA = al("TA", 8, 2); EB = al("EB", 8, 2); TB = al("TB", 8, 2)
    RA = al("RA", 2, 2); RB = al("RB", 2, 2)
    SA = al("SA", 2, 2); SB = al("SB", 2, 2)
    CV = al("CV", 8, 2)
    U = al("U", 12, 2); WUB = al("WUB", 16, 2)
    DUM = al("DUM", 4, 2)
    DK = al("DK", 4, 2)
    nv = R.n
    assert TA == EA + 8 and EB == EA + 16 and TB == EA + 24 and D1 == D0 + 16
    DD = D0; SS_ = D0 + 5; B4 = D0 + 10; RK = D0 + 15; CA = D0 + 20
    CP = PF
    GX = W3
    XL = U
    W1F = WUB
    REC = D0; NOD = D0 + 8; RNK = D1
    W2F = EA; WUT = EB; XF = PF; QD = CV
    sW = 3
    pX, pE, pS, pD, pWM, pWU, pO, pWS = 4, 6, 8, 10, 12, 14, 16, 18
    SP, SE, SC, SW, SO, SV, SF = 20, 24, 28, 32, 36, 40, 44
    T0, T1, T2 = 48, 52, 56
    sStart, sNb, sStg, sCnt, sT, sMode, sKind, sFirst = 60, 61, 62, 63, 64, 65, 66, 67
    sAS, sQS, sTag, sP, sUB, sLo2 = 68, 69, 70, 71, 72, 73
    sCO = 59
    sNp = 79
    sEx, sK, sBad = 74, 76, 78
    sTmp = 4
    sA = 48
    sOV = 48
    sOVT = 74
    sq = 100
    if OPT["stamp"]: NS = 102
    else: NS = 102

    a(f"""
.globl {KN}
.p2align 8
.type {KN},@function
{KN}:
  s_cmp_ge_u32 s2, {NB}
  s_cbranch_scc1 K_END""")
    if OPT["stamp"]: a("  s_memrealtime s[80:81]")
    a(f"""
  s_load_dwordx8 s[4:11], s[0:1], 0
  s_load_dwordx4 s[12:15], s[0:1], 32
  s_load_dwordx2 s[16:17], s[0:1], 48
  s_load_dwordx2 s[18:19], s[0:1], 64""")
    if OPT["cpf"]:
        a(f"""
  s_getpc_b64 s[20:21]
  v_lshlrev_b32 v{t1}, 7, v0
  v_cmp_gt_u32 vcc, (K_TEXTEND - {KN}) / 128, v0
  s_and_saveexec_b64 s[22:23], vcc
  s_cbranch_execz K_NOCPF
  global_load_dword v{DUM}, v{t1}, s[20:21]
K_NOCPF:
  s_mov_b64 exec, s[22:23]""")
    a(f"""
  v_lshrrev_b32 v{t0}, 6, v0
  v_and_b32 v{vl}, 63, v0
  s_and_b32 s{sP}, s2, {FREP-1}
  s_mul_i32 s{sP}, s{sP}, {FLN*256}
  s_and_b32 s{sq}, s2, 7
  s_lshl_b32 s{sq}, s{sq}, 1
  s_bfe_u32 s{sq+1}, s2, 0x10003
  s_and_b32 s2, s2, 0xf0
  s_or_b32 s2, s2, s{sq}
  s_or_b32 s2, s2, s{sq+1}
  s_mul_i32 s{sStart}, s2, 640013
  v_readfirstlane_b32 s{sW}, v{t0}
  s_add_u32 s{sNb}, s{sStart}, {640013+16383}
  s_add_u32 s{sStart}, s{sStart}, 16383
  s_sub_u32 s{sNp}, s{sStart}, 640013
  s_lshr_b32 s{sStart}, s{sStart}, 14
  s_lshr_b32 s{sNb}, s{sNb}, 14
  s_lshr_b32 s{sNp}, s{sNp}, 14
  s_min_u32 s{sNb}, s{sNb}, {N}
  s_sub_u32 s{sCnt}, s{sNb}, s{sNp}
  s_sub_u32 s{sNb}, s{sNb}, s{sStart}
  s_lshl_b32 s{sT}, s{sNp}, 8
  s_sub_u32 s{sNp}, s{sStart}, s{sNp}
  s_mov_b32 s{sMode}, 0
  s_mov_b32 s{sKind}, 0
  s_mov_b32 s{sFirst}, 1
  s_mov_b32 s{sAS}, {AS}
  s_mov_b32 s{sQS}, {QS}
  s_mul_i32 s{sStg}, s{sW}, {STG}
  s_add_u32 s{sStg}, s{sStg}, {L_STG}
  v_lshlrev_b32 v{vt16}, 4, v0
  s_mul_i32 s{sq}, s2, {CH*2}
  v_lshl_add_u32 v{t2}, v0, 2, s{sq}
  v_add_u32 v{t3}, 4096, v{t2}
  v_lshrrev_b32 v{t4}, 4, v{vl}
  v_lshlrev_b32 v{t0}, 1, v{t4}
  v_xor_b32 v{t0}, v{t0}, v{vl}
  v_lshlrev_b32 v{t0}, 4, v{t0}
  s_lshl_b32 s{sq}, s{sW}, 12
  v_add_u32 v{t7}, s{sq}, v{t0}
  s_mul_i32 s{sUB}, s{sW}, {4*WPITCH}
  s_add_u32 s{sUB}, s{sUB}, {L_WS}
  v_add_u32 v{t6}, 8192, v{vt16}
  v_add_u32 v{t5}, 16384, v{vt16}
  s_waitcnt lgkmcnt(0)
  {"s_add_u32 s%d, s%d, %d" % (pWS, pWS, OPT["wsb"] << 20) + chr(10) + "  s_addc_u32 s%d, s%d, 0" % (pWS+1, pWS+1) if OPT["wsb"] else ""}
  s_bitcmp1_b32 s2, 0
  s_cbranch_scc1 K_LDG
  s_cmp_ge_u32 s2, {2*G}
  s_cbranch_scc1 K_LDP""")
    if OPT["bdl"]: a(f"  s_sleep {OPT['bdl']}")
    srd(a, T0, pD, E*4)
    srd(a, T1, pS, E*4)
    a(f"  s_movk_i32 s{sq}, 0x2000")
    for r_, T in ((DD, T0), (SS_, T1)):
        a(f"""
  buffer_load_dword v{r_}, v{t2}, {s(T,4)}, 0 offen
  buffer_load_dword v{r_+1}, v{t2}, {s(T,4)}, 0 offen offset:2048
  buffer_load_dword v{r_+2}, v{t3}, {s(T,4)}, 0 offen
  buffer_load_dword v{r_+3}, v{t3}, {s(T,4)}, 0 offen offset:2048
  buffer_load_dword v{r_+4}, v{t2}, {s(T,4)}, s{sq} offen""")
    if OPT["claim"] & 2:
        srd(a, T2, pWS, NB*BSTR, add=WS_CELL)
        a(f"""
  v_lshrrev_b32 v{t4}, 3, v0
  s_mov_b32 s{sq}, {BSTR}
  v_mul_u32_u24 v{t4}, s{sq}, v{t4}
  v_and_b32 v{t0}, 7, v0
  v_lshl_add_u32 v{t4}, v{t0}, 4, v{t4}
  s_lshl_b32 s{sq}, s2, 6
  v_mov_b32 v{PF}, 0
  v_mov_b32 v{PF+1}, 0
  v_mov_b32 v{PF+2}, 0
  v_mov_b32 v{PF+3}, 0""")
        for j in range(4):
            a(f"  buffer_store_dwordx4 {v(PF,4)}, v{t4}, {s(T2,4)}, s{sq} offen sc1\n  s_add_u32 s{sq}, s{sq}, {64*BSTR}")
    a("  s_branch K_LD3")
    def wdma(T):
        for q in range(4):
            a(f"  s_add_u32 m0, s{sUB}, {64*q}\n  s_nop 0\n  buffer_load_dwordx4 v{t7}, {s(T,4)}, 0 offen offset:{1024*q} lds")
    a(f"""
K_LDX:
  s_lshl_b32 s{sq}, s{sStart}, 8
  s_lshl_b32 s{sq+1}, s{sNb}, 8""")
    srd(a, T2, pX, f"s{sq+1}", addreg=sq)
    a(f"""
  buffer_load_dwordx4 {v(XL,4)}, v{vt16}, {s(T2,4)}, 0 offen
  buffer_load_dwordx4 {v(XL+4,4)}, v{t6}, {s(T2,4)}, 0 offen
  s_branch K_LD3
K_LDP:
  s_cmp_eq_u32 s2, {2*G}
  s_cselect_b32 s{T1}, s{pWM}, s{pWU}
  s_cselect_b32 s{T1+1}, s{pWM+1}, s{pWU+1}
  s_cmp_eq_u32 s2, {2*G+2}
  s_cselect_b32 s{sq}, 0, 32768
  s_add_u32 s{T1}, s{T1}, s{sq}
  s_addc_u32 s{T1+1}, s{T1+1}, 0
  s_mov_b32 s{T1+2}, 32768
  s_mov_b32 s{T1+3}, 0x20000""")
    wdma(T1)
    srd(a, T0, pWM, 16*256, add=256*256)
    a(f"""
  v_and_b32 v{t0}, 31, v{vl}
  v_lshrrev_b32 v{t1}, 5, v{vl}
  v_lshlrev_b32 v{t1}, 11, v{t1}
  v_lshl_add_u32 v{t1}, v{t0}, 1, v{t1}
  s_and_b32 s{sq}, s{sW}, 3
  s_lshl_b32 s{sq}, s{sq}, 6""")
    for jj in range(8):
        a(f"  buffer_load_ushort v{D0+jj}, v{t1}, {s(T0,4)}, s{sq} offen offset:{jj*256}")
    a(f"""
  s_branch K_LDX
K_LDG:
  s_lshl_b32 s{sCnt}, s{sCnt}, 8""")
    srd(a, T0, pX, f"s{sCnt}", addreg=sT)
    srd(a, T1, pWM, 128*256)
    if OPT["wfirst"]: wdma(T1)
    a(f"""
  buffer_load_dwordx4 {v(GX,4)}, v{vt16}, {s(T0,4)}, 0 offen
  buffer_load_dwordx4 {v(GX+4,4)}, v{t6}, {s(T0,4)}, 0 offen
  buffer_load_dwordx4 {v(GX+8,4)}, v{t5}, {s(T0,4)}, 0 offen""")
    if not OPT["wfirst"]: wdma(T1)
    if OPT["claim"] & 1:
        srd(a, T2, pWS, f"s{sCnt}", add=WS_P, addreg=sT)
        for r_ in (vt16, t6, t5):
            a(f"  buffer_store_dwordx4 {v(PF,4)}, v{r_}, {s(T2,4)}, 0 offen sc1")
    a(f"""
K_LD3:""")
    if OPT["claim"] & 4:
        a(f"  s_lshl_b32 s{sq}, s{sStart}, 8\n  s_lshl_b32 s{sq+1}, s{sNb}, 8")
        srd(a, SO, pWS, f"s{sq+1}", add=WS_P, addreg=sq)
        a(f"""
  s_mul_i32 s{sq}, s{sW}, 1280
  v_lshl_add_u32 v{t1}, v{vl}, 7, s{sq}
  v_mov_b32 v{t0}, 0
  s_mov_b64 exec, 0x3ff
  buffer_atomic_or v{t0}, v{t1}, {s(SO,4)}, 0 offen
  s_mov_b64 exec, -1""")
    a(f"""
  s_add_u32 s{SF}, s{pWS}, {WS_FLAG}
  s_addc_u32 s{SF+1}, s{pWS+1}, 0
  s_load_dword s{sTag}, s[{SF}:{SF+1}], {FNON}
  s_mov_b32 s{SF+2}, {FNON+4}
  s_mov_b32 s{SF+3}, 0x20000
  v_lshrrev_b32 v{t1}, 2, v0
  v_and_b32 v{t4}, 3, v0
  v_lshlrev_b32 v{t4}, 4, v{t4}
  v_lshl_add_u32 v{vcell}, v{t1}, {6 if OPT['half'] == 2 else 7}, v{t4}
  s_mov_b32 s{sq}, {CH*32}
  v_mul_u32_u24 v{vebase}, s{sq}, v{t1}""")
    a(f"""
  v_mov_b32 v{CV}, 0
  v_mov_b32 v{CV+1}, 0
  v_mov_b32 v{CV+2}, 0
  v_mov_b32 v{CV+3}, 0
  v_add_u32 v{t0}, {L_CIMG}, v{vt16}""")
    a(f"  s_bitcmp1_b32 s2, 0\n  s_cbranch_scc1 K_NOZ")
    for j in range(4):
        a(f"  ds_write_b128 v{t0}, {v(CV,4)} offset:{j*8192}")
    a(f"  s_cmp_lg_u32 s{sW}, 0\n  s_cbranch_scc1 K_NOZ\n  ds_write_b128 v{t0}, {v(CV,4)} offset:32768")
    a("K_NOZ:")
    for j in range(5):
        a(f"  ds_write_b128 v{vt16}, {v(CV,4)} offset:{L_GN + j*8192}")
    a(f"""
  v_cmp_gt_u32 vcc, {(L_Q-L_GN-5*8192)//16}, v0
  s_and_saveexec_b64 {s(sEx,2)}, vcc
  ds_write_b128 v{vt16}, {v(CV,4)} offset:{L_GN + 5*8192}
  s_mov_b64 exec, {s(sEx,2)}""")
    def prefill():
        a(f"""
  v_mov_b32 v{CV+4}, {PADS}
  v_mov_b32 v{CV+5}, {PADE}
  v_mov_b32 v{CV+6}, {PADS}
  v_mov_b32 v{CV+7}, {PADE}
  ds_write_b128 v{vt16}, {v(CV+4,4)}
  ds_write_b128 v{vt16}, {v(CV+4,4)} offset:8192
  v_cmp_gt_u32 vcc, {(L_GN-16384)//16}, v0
  s_and_saveexec_b64 {s(sEx,2)}, vcc
  ds_write_b128 v{vt16}, {v(CV+4,4)} offset:16384
  s_mov_b64 exec, {s(sEx,2)}""")
    prefill()
    a(f"  s_mul_i32 s{sq}, s2, {BSTR}\n  s_lshl_b32 s{sq+1}, s{sStart}, 8\n  s_lshl_b32 s{sK}, s{sNb}, 8")
    srd(a, SC, pWS, G*CELLB // (2 if OPT['half'] == 2 else 1), add=WS_CELL, addreg=sq)
    srd(a, SP, pWS, (N+1)*256)
    srd(a, SE, pE, E*32)
    srd(a, SW, pWS, WF_SIZE, add=WS_WF)
    srd(a, SO, pO, f"s{sK}", addreg=sq+1)
    srd(a, SV, pWS, G*OVSTR, add=WS_OVF)
    a(f"""
  v_mov_b32 v{vone}, 1
  v_mov_b32 v{MAC}, 0
  v_mov_b32 v{MAC+1}, 0
  v_and_b32 v{t0}, 15, v{vl}                 ; l&15
  v_bfe_u32 v{t1}, v{vl}, 4, 1               ; r4&1
  v_lshlrev_b32 v{t2}, 3, v{t1}
  v_xor_b32 v{t2}, v{t0}, v{t2}
  v_lshlrev_b32 v{vchunk}, 4, v{t2}
  v_and_b32 v{t2}, 1, v{vl}
  v_xor_b32 v{t2}, v{t2}, v{t1}
  v_lshlrev_b32 v{vechunk}, 4, v{t2}
  v_lshrrev_b32 v{t2}, 4, v{vl}
  v_lshlrev_b32 v{t2}, 6, v{t2}
  v_lshrrev_b32 v{t4}, 1, v{t0}
  v_lshl_add_u32 v{t2}, v{t4}, 3, v{t2}
  s_lshl_b32 s{sq}, s{sW}, 8
  v_add_u32 v{vent}, s{sq}, v{t2}
  v_bfe_u32 v{t2}, v{vl}, 2, 1               ; h
  v_and_b32 v{t4}, 1, v{vl}                  ; xy
  v_lshl_add_u32 v{t5}, v{t2}, 1, v{t4}      ; r4
  v_bfe_u32 v{t6}, v{vl}, 3, 2
  v_bfe_u32 v{t7}, v{vl}, 1, 1
  v_lshl_add_u32 v{t6}, v{t6}, 1, v{t7}      ; j
  v_lshl_add_u32 v{t7}, v{t5}, 3, v{t6}      ; q = 8 r4 + j
  v_lshlrev_b32 v{t7}, 3, v{t7}
  v_add_u32 v{vrow}, s{sq}, v{t7}
  v_lshrrev_b32 v{t7}, 5, v{vl}              ; hh
  v_mul_u32_u24 v{vAlo}, 1040, v{t6}
  v_lshl_add_u32 v{vAlo}, v{t5}, 8, v{vAlo}
  v_lshl_add_u32 v{vAlo}, v{t7}, 4, v{vAlo}
  v_add_u32 v{vAlo}, s{sStg}, v{vAlo}
  v_xor_b32 v{vAhi}, 1, v{t4}
  v_lshl_add_u32 v{vAhi}, v{vAhi}, 7, v{vAlo}
  v_lshl_add_u32 v{vAlo}, v{t4}, 7, v{vAlo}
  v_xor_b32 v{vEF}, v{t7}, v{t4}
  v_lshl_add_u32 v{vEF}, v{t6}, 1, v{vEF}
  v_lshl_add_u32 v{vEF}, v{t5}, 4, v{vEF}
  v_lshlrev_b32 v{vEF}, 4, v{vEF}
  s_add_u32 s{sq+1}, s{sStg}, 8320
  v_add_u32 v{vEF}, s{sq+1}, v{vEF}
  v_bfe_u32 v{t5}, v{vl}, 4, 1               ; o
  v_lshlrev_b32 v{t5}, 4, v{t5}
  v_mov_b32 v{t6}, 0x3f80
  v_lshlrev_b32 v{t5}, v{t5}, v{t6}
  v_cmp_eq_u32 vcc, v{t7}, v{t2}
  s_nop 1
  v_cndmask_b32 v{t5}, 0, v{t5}, vcc
  v_cmp_eq_u32 vcc, 0, v{t4}
  s_nop 1
  v_cndmask_b32 v{PAT}, 0, v{t5}, vcc
  v_cndmask_b32 v{PAT+1}, v{t5}, 0, vcc
  s_lshl_b32 s{sq}, s{sW}, 5
  s_add_u32 s{sq+1}, s{sq}, {L_GN}
  v_lshlrev_b32 v{vga}, 4, v{t7}
  v_add_u32 v{vga}, s{sq+1}, v{vga}
  v_and_b32 v{t2}, 12, v{vl}
  v_add_u32 v{vgq}, v{vga}, v{t2}
  v_and_b32 v{t2}, 3, v{vl}
  v_lshlrev_b32 v{t2}, 3, v{t2}
  v_lshl_add_u32 v{t2}, v{t1}, 5, v{t2}
  v_add_u32 v{vqlane}, {L_Q}, v{t2}
  v_and_b32 v{t2}, 31, v{vl}
  v_lshlrev_b32 v{t4}, 3, v{t2}
  v_add_u32 v{vacl}, {L_ACC}, v{t4}
  v_lshrrev_b32 v{t4}, 4, v{vl}              ; g
  v_mul_u32_u24 v{vxb}, {XS}, v{t0}
  v_lshl_add_u32 v{vxb}, v{t4}, 4, v{vxb}
  v_add_u32 v{vxb}, {L_X}, v{vxb}
  v_mul_u32_u24 v{vqw}, {QS}, v{t0}
  v_lshl_add_u32 v{vqw}, v{t4}, 3, v{vqw}
  s_add_u32 s{sq+1}, s{sq}, {L_Q}
  v_add_u32 v{vqw}, s{sq+1}, v{vqw}
  v_mul_u32_u24 v{vqa}, {2*WPITCH}, v{t4}
  v_bfe_u32 v{t5}, v{vl}, 2, 2
  v_lshl_add_u32 v{vqa}, v{t5}, 8, v{vqa}
  v_xor_b32 v{t5}, s{sW}, v{t5}
  v_lshl_add_u32 v{vqa}, v{t5}, 5, v{vqa}
  v_and_b32 v{t5}, 3, v{vl}
  v_lshl_add_u32 v{vqa}, v{t5}, 3, v{vqa}
  v_add_u32 v{vqa}, {L_WS}, v{vqa}
  v_and_b32 v{t4}, 1, v{vl}
  v_lshlrev_b32 v{t4}, 4, v{t4}
  v_lshlrev_b32 v{t4}, v{t4}, v{t6}
  v_bfe_u32 v{t5}, v{vl}, 1, 4
  v_lshlrev_b32 v{t7}, 2, v{t7}
  v_sub_u32 v{t5}, v{t5}, v{t7}""")
    for i in range(4):
        a(f"  v_cmp_eq_u32 vcc, {i}, v{t5}\n  s_nop 1\n  v_cndmask_b32 v{I0+i}, 0, v{t4}, vcc")
        a(f"  v_cmp_eq_u32 vcc, {8+i}, v{t5}\n  s_nop 1\n  v_cndmask_b32 v{I1+i}, 0, v{t4}, vcc")
    if not OPT["k8"]:
        a(f"  v_mov_b32 v{AQ+2}, 0\n  v_mov_b32 v{AQ+3}, 0")
        for t in range(4):
            a(f"  v_mov_b32 v{BQ+4*t+2}, 0\n  v_mov_b32 v{BQ+4*t+3}, 0")
    def prefetch():
        if not OPT["pf"]: return
        a(f"  s_mul_i32 s{sq}, s2, 40000\n  s_sub_u32 s{sq}, s{sq}, 4096\n  v_add_u32 v{t0}, s{sq}, v{vt16}")
        for j in range(10):
            a(f"  buffer_load_dwordx4 {v(DUM,4)}, v{t0}, {s(SE,4)}, 0 offen")
            if j < 9: a(f"  v_add_u32 v{t0}, 4096, v{t0}")
    def wtr(dst, ad):
        for st in range(4):
            for hf in range(2):
                a(f"  ds_read_b64_tr_b16 {v(dst+4*st+2*hf,2)}, v{ad} offset:{(8*st+hf)*WPITCH}")
    def own_x(nyounger):
        a(f"""
  v_lshrrev_b32 v{t0}, 4, v0
  v_lshl_add_u32 v{t0}, v{t0}, 5, v{vt16}
  v_add_u32 v{t0}, {L_X}, v{t0}
  s_waitcnt vmcnt({nyounger})
  ds_write_b128 v{t0}, {v(XL,4)}
  s_mov_b32 exec_lo, s{sLo2}
  s_mov_b32 exec_hi, s{sLo2}
  ds_write_b128 v{t0}, {v(XL+4,4)} offset:{32*XS}
  s_mov_b64 exec, -1""")
    a(f"""
  s_cmp_lt_u32 s{sW}, 2
  s_cselect_b32 s{sLo2}, -1, 0
  s_lshr_b32 s{sq}, s2, {1+FSH}
  s_lshl_b32 s{sq}, s{sq}, 8
  s_bfe_u32 s{sq+1}, s2, {hex((FSH<<16)|1)}
  s_lshl_b32 s{sq+1}, s{sq+1}, 2
  s_add_u32 s{sq}, s{sq}, s{sq+1}
  s_and_b32 s{sq+1}, s2, 1
  s_mul_i32 s{sq+1}, s{sq+1}, {FHALF}
  s_add_u32 s{sq}, s{sq}, s{sq+1}
  v_mul_u32_u24 v{vgn1}, {FLN*256}, v{vl}
  v_add_u32 v{vgn1}, s{sq}, v{vgn1}
  v_lshrrev_b32 v{t2}, {FSH-1}, v{vl}
  v_lshlrev_b32 v{t2}, 8, v{t2}
  v_and_b32 v{t3}, {(1<<(FSH-1))-1}, v{vl}
  v_lshl_add_u32 v{t2}, v{t3}, 3, v{t2}
  v_add_u32 v{vsrow}, s{sP}, v{t2}
  s_mov_b32 s{sK}, {NLOG2E}
  s_mov_b32 s{sK+1}, {NLOG2E}
  s_waitcnt lgkmcnt(0)
  s_add_u32 s{sTag}, s{sTag}, 1
  s_max_u32 s{sTag}, s{sTag}, 1
  s_bitcmp1_b32 s2, 0
  s_cbranch_scc1 K_GEMM
  s_cmp_ge_u32 s2, {2*G}
  s_cbranch_scc1 K_PREP
  s_mov_b32 s{sq}, {MAGIC}
  v_lshlrev_b32 v{t7}, 6, v0
  v_add_u32 v{t7}, {1<<18}, v{t7}
  s_barrier
  s_waitcnt vmcnt({5+NCC})""")
    stamp(a, 1)
    for j in range(5):
        a(f"""
  v_mul_u32_u24 v{B4+j}, s{sq}, v{DD+j}
  v_lshrrev_b32 v{B4+j}, 18, v{B4+j}
  v_and_b32 v{B4+j}, 0x3fc, v{B4+j}
  v_add_u32 v{t0+j}, {L_BCNT}, v{B4+j}
  ds_add_rtn_u32 v{RK+j}, v{t0+j}, v{vone}""")
    a(f"  s_waitcnt vmcnt({NCC})")
    for j in range(5):
        a(f"""
  v_lshl_add_u32 v{SS_+j}, v{SS_+j}, 18, v{t7}
  v_and_or_b32 v{SS_+j}, v{DD+j}, 63, v{SS_+j}
  v_lshlrev_b32 v{CA+j}, 5, v{B4+j}
  v_add_u32 v{CA+j}, {L_CIMG}, v{CA+j}""")
        if j < 4: a(f"  v_add_u32 v{t7}, {512<<6}, v{t7}")
    srd(a, T2, pWS, NB*BSTR, add=WS_CELL)
    a(f"""
  v_lshrrev_b32 v{t4}, 3, v0
  s_mov_b32 s{sq}, {BSTR}
  v_mul_u32_u24 v{t4}, s{sq}, v{t4}
  v_and_b32 v{t5}, 7, v0
  v_lshl_add_u32 v{t4}, v{t5}, 4, v{t4}
  s_lshl_b32 s{sq}, s2, {5 if OPT['half'] == 2 else 6}
  s_mov_b64 {s(sBad,2)}, 0
  s_waitcnt lgkmcnt(0)""")
    for j in range(5):
        a(f"""
  v_mul_u32_u24 v{t1}, 37, v{RK+j}
  v_lshl_add_u32 v{t0}, v{RK+j}, 2, v{CA+j}
  v_lshrrev_b32 v{t1}, 8, v{t1}
  v_cmp_le_u32 vcc, {CAP-1}, v{RK+j}
  v_lshl_add_u32 v{t0}, v{t1}, 2, v{t0}
  s_or_b64 {s(sBad,2)}, {s(sBad,2)}, vcc
  s_andn2_b64 exec, exec, vcc
  ds_write_b32 v{t0}, v{SS_+j}
  s_mov_b64 exec, -1""")
    a(f"""
  v_add_u32 v{t0}, {L_CIMG}, v{vt16}
  v_mov_b32 v{t2}, {L_FLG+4}
  s_cmp_eq_u64 {s(sBad,2)}, 0
  s_cbranch_scc1 K_NOFULL
  ds_write_b32 v{t2}, v{vone}
K_NOFULL:
  s_waitcnt lgkmcnt(0)
  s_barrier""")
    stamp(a, 2)
    a(f"  ds_read_b32 v{t2}, v{t2}\nK_OVFDONE:")
    for j in range(4):
        a(f"  ds_read_b128 {v(CP+4*j,4)}, v{t0} offset:{8192*j}")
    a(f"""
  s_waitcnt vmcnt({2 if OPT['claim'] & 2 else 63}) lgkmcnt(4)
  v_cmp_ne_u32 vcc, 0, v{t2}
  s_cbranch_vccnz K_OVF""")
    for j in range(4):
        a(f"""
  s_mov_b32 exec_lo, 0xaaaaaaaa
  s_mov_b32 exec_hi, 0xaaaaaaaa
  s_waitcnt lgkmcnt({3-j})
  v_mov_b32 v{CP+4*j+3}, s{sTag}
  s_mov_b64 exec, -1
  {"s_mov_b32 exec_lo, 0x0f0f0f0f" + chr(10) + "  s_mov_b32 exec_hi, 0x0f0f0f0f" if OPT["half"] else ""}
  buffer_store_dwordx4 {v(CP+4*j,4)}, v{t4}, {s(T2,4)}, s{sq} offen {STF}
  s_mov_b64 exec, -1
  s_add_u32 s{sq}, s{sq}, {64*BSTR}""")
    a(f"  s_lshl_b32 s{sq}, s{sStart}, 8\n  s_lshl_b32 s{sq+1}, s{sNb}, 8")
    srd(a, T2, pX, f"s{sq+1}", addreg=sq)
    a(f"""
  v_add_u32 v{t6}, 8192, v{vt16}
  buffer_load_dwordx4 {v(XL,4)}, v{vt16}, {s(T2,4)}, 0 offen
  buffer_load_dwordx4 {v(XL+4,4)}, v{t6}, {s(T2,4)}, 0 offen""")
    own_x(0)
    a(f"""
  {"s_sleep %d" % OPT["slpa"] if OPT["slpa"] else ""}
  s_branch K_PST
K_GW:
  {"s_sleep %d" % OPT["slpb"] if OPT["slpb"] else ""}
  s_branch K_PST
K_GEMM:
  ; ---------------- P gemm role: rows of this bucket and the one before ----------------""")
    if OPT["touch"]:
        a(f"""
  s_cmp_lg_u32 s{sW}, 0
  s_cbranch_scc1 K_NOTOUCH
  s_waitcnt vmcnt(0)
  s_mov_b64 exec, {FMASK}
  buffer_load_dword v{DUM}, v{vgn1}, {s(SF,4)}, 0 offen sc1
  s_mov_b64 exec, -1
K_NOTOUCH:""")
    a(f"""
  s_mul_i32 s{sq}, s{sNp}, {XS}
  s_sub_u32 s{sq}, {L_X}, s{sq}
  v_lshrrev_b32 v{t0}, 4, v0
  v_lshl_add_u32 v{t0}, v{t0}, 5, v{vt16}
  v_add_u32 v{t3}, s{sq}, v{t0}
  s_cmp_lt_u32 s{sW}, 4
  s_cselect_b32 s{sq+1}, -1, 0
  v_subrev_u32 v{t1}, {L_X}, v{vxb}
  v_add_u32 v{t1}, s{sq}, v{t1}
  s_waitcnt vmcnt({(2 if OPT['wfirst'] else 6)+NCL})
  ds_write_b128 v{t3}, {v(GX,4)}
  s_waitcnt vmcnt({(1 if OPT['wfirst'] else 5)+NCL})
  ds_write_b128 v{t3}, {v(GX+4,4)} offset:{32*XS}
  s_waitcnt vmcnt({(0 if OPT['wfirst'] else 4)+NCL})
  s_mov_b32 exec_lo, s{sq+1}
  s_mov_b32 exec_hi, s{sq+1}
  ds_write_b128 v{t3}, {v(GX+8,4)} offset:{64*XS}
  s_mov_b64 exec, -1
  v_and_b32 v{t2}, 15, v{vl}
  v_mul_u32_u24 v{t2}, {XS}, v{t2}
  v_lshrrev_b32 v{t3}, 4, v{vl}
  v_lshl_add_u32 v{t2}, v{t3}, 3, v{t2}
  s_lshl_b32 s{sq}, s{sW}, 5
  s_add_u32 s{sq}, s{sq}, {L_GP}
  v_add_u32 v{t2}, s{sq}, v{t2}
  v_add_u32 v{t0}, {L_GP - 16*XS}, v{t0}
  v_subrev_u32 v{t4}, 4096, v{vt16}""")
    srd(a, T0, pWS, f"s{sCnt}", add=WS_P, addreg=sT)
    a(f"  s_waitcnt vmcnt({NCL}) lgkmcnt(0)\n  s_barrier")
    stamp(a, 1)
    wtr(W1F, vqa)
    XT = [PF, PF+16, EA, EB, PF]
    for nt in range(4):
        for st in range(4):
            a(f"  ds_read_b128 {v(XT[nt]+4*st,4)}, v{t1} offset:{nt*16*XS + st*64}")
    for nt in range(5):
        a(f"  s_waitcnt lgkmcnt({(12, 12, 8, 4, 0)[nt]})")
        for st in range(4):
            c = "0" if st == 0 else v(D0+4*nt, 4)
            a(f"  v_mfma_f32_16x16x32_bf16 {v(D0+4*nt,4)}, {v(W1F+4*st,4)}, {v(XT[nt]+4*st,4)}, {c}")
        if nt == 0:
            for st in range(4):
                a(f"  ds_read_b128 {v(PF+4*st,4)}, v{t1} offset:{4*16*XS + st*64}")
    for nt in range(5):
        d = D0 + 4*nt
        if nt == 4: a("  s_nop 1")
        a(f"""
  v_pk_mul_f32 {v(d,2)}, {v(d,2)}, {s(sK,2)}
  v_pk_mul_f32 {v(d+2,2)}, {v(d+2,2)}, {s(sK,2)}
  v_cvt_pk_bf16_f32 v{W3+2*nt}, v{d}, v{d+1}
  v_cvt_pk_bf16_f32 v{W3+2*nt+1}, v{d+2}, v{d+3}
  ds_write_b64 v{t2}, {v(W3+2*nt,2)} offset:{nt*16*XS}""")
    a(f"  s_waitcnt vmcnt({NA}) lgkmcnt(0)\n  s_barrier")
    stamp(a, 2)
    a(f"""
  s_cmp_lt_u32 s{sW}, 4
  s_cbranch_scc1 K_GW""")
    for j in range(5):
        a(f"  ds_read_b128 {v(PF+4*j,4)}, v{t0} offset:{j*16*XS}")
    if OPT["zt"]:
        srd(a, T1, pWS, f"s{sCnt}", add=0x1800000, addreg=sT)
        a(f"  s_waitcnt lgkmcnt(0)\n  v_mov_b32 v{t1}, v{t4}")
        for j in range(5):
            a(f"  buffer_store_dwordx4 {v(PF+4*j,4)}, v{t1}, {s(T1,4)}, 0 offen {STF}\n  v_add_u32 v{t1}, 4096, v{t1}")
        a("  s_waitcnt vmcnt(0)")
        stamp(a, 1)
    for j in range(5):
        a(f"  s_waitcnt lgkmcnt({4-j})\n  buffer_store_dwordx4 {v(PF+4*j,4)}, v{t4}, {s(T0,4)}, 0 offen {STF}")
        if j < 4: a(f"  v_add_u32 v{t4}, 4096, v{t4}")
    a(f"""
  v_mov_b32 v{t0}, {L_FLG+12}
  v_mov_b32 v{t7}, s{sTag}
  s_mov_b64 exec, 1
  s_waitcnt vmcnt(0)""")
    stamp(a, 3)
    a(f"""
  ds_add_rtn_u32 v{t0}, v{t0}, v{vone}
  s_waitcnt lgkmcnt(0)
  v_readfirstlane_b32 s{sq}, v{t0}
  s_mov_b64 exec, -1
  s_cmp_lg_u32 s{sq}, 3
  s_cbranch_scc1 K_PST
K_FLAG:
  s_mov_b64 exec, {FMASK}
  buffer_store_dword v{t7}, v{vgn1}, {s(SF,4)}, 0 offen {FLF}
  s_mov_b64 exec, -1
K_PST:""")
    def node_gemm(WA, WB=None):
        for nt in range(3):
            xf = XF + 16*(nt & 1)
            if nt == 0:
                for n2 in range(2):
                    for st in range(4):
                        a(f"  ds_read_b128 {v(XF+16*n2+4*st,4)}, v{vxb} offset:{n2*16*XS + st*64}")
            a(f"  s_waitcnt lgkmcnt({4 if nt == 0 else 5 if nt == 1 else 1})")
            q = QD if nt != 1 else SA
            for st in range(4):
                c = "0" if st == 0 else v(q, 4)
                a(f"  v_mfma_f32_16x16x32_bf16 {v(q,4)}, {v(WA+4*st,4)}, {v(xf+4*st,4)}, {c}")
            if WB is not None:
                for st in range(4):
                    c = "0" if st == 0 else v(U+4*nt, 4)
                    a(f"  v_mfma_f32_16x16x32_bf16 {v(U+4*nt,4)}, {v(WB+4*st,4)}, {v(xf+4*st,4)}, {c}")
            if nt == 0:
                for st in range(4):
                    a(f"  ds_read_b128 {v(XF+4*st,4)}, v{vxb} offset:{2*16*XS + st*64}")
            a(f"""
  s_nop 7
  v_pk_mul_f32 {v(q,2)}, {v(q,2)}, {s(sK,2)}
  v_pk_mul_f32 {v(q+2,2)}, {v(q+2,2)}, {s(sK,2)}
  v_cvt_pk_bf16_f32 v{QD+4+2*(nt&1)}, v{q}, v{q+1}
  v_cvt_pk_bf16_f32 v{QD+5+2*(nt&1)}, v{q+2}, v{q+3}""")
            if nt == 2:
                a(f"  s_mov_b32 exec_lo, 0x00ff00ff\n  s_mov_b32 exec_hi, 0x00ff00ff")
            a(f"  ds_write_b64 v{vqw}, {v(QD+4+2*(nt&1),2)} offset:{nt*16*QS}")
            if nt == 2:
                a("  s_mov_b64 exec, -1")
    assert SB == SA + 2
    def poll(lab, off):
        a(f"""
  s_cmp_lg_u32 s{sW}, 1
  s_cbranch_scc1 {lab}_D
  s_mov_b32 s{sq}, 0
  s_mov_b32 s{sq+1}, {off}
  {"s_sleep %d" % OPT["slp0"] if OPT["slp0"] and off == 0 else ""}
{lab}:
  buffer_load_dwordx2 {v(DUM,2)}, v{vsrow}, {s(SF,4)}, s{sq+1} offen {PLF}
  s_add_u32 s{sq}, s{sq}, 1
  s_waitcnt vmcnt(0)
  v_cmp_ne_u32 vcc, s{sTag}, v{DUM}
  v_cmp_ne_u32 {s(sBad,2)}, s{sTag}, v{DUM+1}
  s_or_b64 vcc, vcc, {s(sBad,2)}
  s_cbranch_scc0 {lab}_D
  {"s_sleep %d" % OPT["slp"] if OPT["slp"] else ""}
  s_cmp_lt_u32 s{sq}, 0x8000
  s_cbranch_scc1 {lab}
{lab}_D:""")
    stamp(a, 5)
    nld = 16 if OPT["lo"] else 12
    a(f"""
  s_lshl_b32 s{sTmp}, s{sW}, 12
  s_add_u32 s{sTmp+1}, s{sTmp}, {WF_UT}
  s_add_u32 s{sUB}, s{sTmp}, {WF_UB}
  s_mov_b32 s{sTmp+2}, {WF_3H}
  s_mov_b32 s{sTmp+3}, {WF_3L}
  s_mov_b32 s{sOV}, 0xaaaaaaaa
  s_cmp_eq_u32 s{sW}, 7
  s_cselect_b32 s{sOV+1}, 0xaaaaa, s{sOV}
  v_min_u32 v{t4}, 2, v{vl}
  v_lshl_add_u32 v{t4}, v{t4}, 2, s{sP}
  v_mov_b32 v{t5}, s{sTag}
  s_mov_b32 s{sq}, 0
  {"s_sleep %d" % OPT["slp0"] if OPT["slp0"] else ""}
""")
    wl = [f"  buffer_load_dwordx4 {v(W2F+4*st,4)}, v{t6}, {s(SW,4)}, s{sTmp} offen offset:{st*1024} sc1" for st in range(4)]
    wl += [f"  buffer_load_dwordx4 {v(WUT+4*st,4)}, v{t6}, {s(SW,4)}, s{sTmp+1} offen offset:{st*1024} sc1" for st in range(4)]
    wl += [f"  buffer_load_dwordx4 {v(W3+4*st,4)}, v{t6}, {s(SW,4)}, s{sTmp+2} offen offset:{st*1024} sc1" for st in range(4)]
    if OPT["lo"]:
        wl += [f"  buffer_load_dwordx4 {v(W3L+4*st,4)}, v{t6}, {s(SW,4)}, s{sTmp+3} offen offset:{st*1024} sc1" for st in range(4)]
    a(f"""
  v_lshlrev_b32 v{t6}, 4, v{vl}
  s_mov_b32 s{sOV+6}, 0
K_CPOLL:
  buffer_load_dwordx4 {v(REC,4)}, v{vcell}, {s(SC,4)}, 0 offen sc1
  {"buffer_load_dwordx4 %s, v%d, %s, 0 offen offset:64 sc1" % (v(REC+4,4), vcell, s(SC,4)) if not OPT["half"] else chr(10).join(["v_mov_b32 v%d, 0" % (REC+4+i) for i in range(3)] + ["v_mov_b32 v%d, s%d" % (REC+7, sTag)])}
  s_cmp_lg_u32 s{sOV+6}, 0
  s_cbranch_scc1 K_CPOLL1
  buffer_load_dword v{t5}, v{t4}, {s(SF,4)}, 0 offen offset:{(FLN-1)*256 + (125 - (FLN-1)*(128//FLN))*4} sc1
K_CPOLL1:
  s_add_u32 s{sq}, s{sq}, 1
  s_waitcnt vmcnt(0)
  v_cmp_ne_u32 vcc, s{sTag}, v{REC+3}
  v_cmp_ne_u32 {s(sBad,2)}, s{sTag}, v{REC+7}
  s_or_b64 {s(sBad,2)}, vcc, {s(sBad,2)}
  v_cmp_ne_u32 vcc, s{sTag}, v{t5}
  s_and_b64 {s(sBad,2)}, {s(sBad,2)}, {s(sOV,2)}
  s_or_b64 {s(sEx,2)}, {s(sBad,2)}, vcc
  s_cbranch_scc0 K_CPOLLD
  s_cbranch_vccnz K_CPOLL2
  s_cmp_lg_u32 s{sOV+6}, 0
  s_cbranch_scc1 K_CPOLL2
  s_mov_b32 s{sOV+6}, 1""")
    for x in wl: a(x)
    a(f"""
K_CPOLL2:
  {"s_sleep %d" % OPT["slp"] if OPT["slp"] else ""}
  s_cmp_lt_u32 s{sq}, 0x8000
  s_cbranch_scc1 K_CPOLL
K_CPOLLD:
  s_mov_b32 exec_lo, 0xaaaaaaaa
  s_mov_b32 exec_hi, 0xaaaaaaaa
  v_mov_b32 v{REC+3}, 0
  v_mov_b32 v{REC+7}, 0
  s_mov_b64 exec, -1""")
    stamp(a, 6)
    NR = 8
    a(f"""
K_PHASE1:
  v_cmp_le_u32 vcc, 0xfffc0000, v{REC+NR-2}
  s_cbranch_vccz K_NOMARK
  s_and_saveexec_b64 {s(sEx,2)}, vcc
  v_lshrrev_b32 v{t0}, 2, v0                 ; producer
  v_lshrrev_b32 v{t1}, 5, v{t0}
  v_lshlrev_b32 v{t1}, 2, v{t1}
  v_lshlrev_b32 v{t0}, v{t0}, v{vone}
  ds_or_b32 v{t1}, v{t0} offset:{L_FLG+32}
  v_mov_b32 v{REC+NR-2}, 0
  s_mov_b64 exec, {s(sEx,2)}
K_NOMARK:""")
    for k in range(NR):
        if k == 4:
            a(f"""
  v_or3_b32 v{t3}, v{REC+k}, v{REC+k+1}, v{REC+k+2}
  v_or_b32 v{t3}, v{t3}, v{REC+k+3}
  v_cmp_ne_u32 vcc, 0, v{t3}
  s_cbranch_vccz K_P1E""")
        a(f"""
  v_lshlrev_b32 v{NOD+k}, 2, v{REC+k}
  v_and_b32 v{NOD+k}, 0xfc, v{NOD+k}
  v_cmpx_ne_u32 vcc, 0, v{REC+k}
  ds_add_rtn_u32 v{RNK+k}, v{NOD+k}, v{vone} offset:{L_CNT}
  s_mov_b64 exec, -1""")
    a(f"""
K_P1E:
  s_cmp_lg_u32 s{sOV+6}, 0
  s_cbranch_scc1 K_NOWL
  s_mov_b32 s{sOV+6}, 1""")
    for x in wl: a(x)
    a(f"""
K_NOWL:
  v_lshlrev_b32 v{t0}, 2, v{vl}
  v_subrev_u32 v{t4}, s{sStart}, v{vl}
  v_and_b32 v{t4}, 63, v{t4}
  s_waitcnt lgkmcnt(0)""")
    fstamp(a, 1)
    a(f"""
  s_barrier""")
    fstamp(a, 2)
    a(f"""
  ds_read_b32 v{t1}, v{t0} offset:{L_CNT}
  s_waitcnt lgkmcnt(0)
  v_add_u32 v{t1}, 3, v{t1}
  v_bfe_u32 v{t5}, v{t1}, 2, 1               ; left-over quad
  v_lshrrev_b32 v{t6}, 3, v{t1}
  v_lshl_or_b32 v{t1}, v{t5}, 16, v{t6}
  v_mov_b32 v{t2}, v{t1}
  s_nop 1
  v_add_u32_dpp v{t2}, v{t2}, v{t2} row_shr:1 row_mask:0xf bank_mask:0xf
  s_nop 1
  v_add_u32_dpp v{t2}, v{t2}, v{t2} row_shr:2 row_mask:0xf bank_mask:0xf
  s_nop 1
  v_add_u32_dpp v{t2}, v{t2}, v{t2} row_shr:4 row_mask:0xf bank_mask:0xf
  s_nop 1
  v_add_u32_dpp v{t2}, v{t2}, v{t2} row_shr:8 row_mask:0xf bank_mask:0xf
  s_nop 1
  v_add_u32_dpp v{t2}, v{t2}, v{t2} row_bcast:15 row_mask:0xa bank_mask:0xf
  s_nop 1
  v_add_u32_dpp v{t2}, v{t2}, v{t2} row_bcast:31 row_mask:0xc bank_mask:0xf
  s_nop 1
  v_readlane_b32 s{sT}, v{t2}, 63
  v_sub_u32 v{t1}, v{t2}, v{t1}
  s_lshr_b32 s{sq+1}, s{sT}, 16
  s_and_b32 s{sCO}, s{sT}, 0xffff
  s_lshl_b32 s{sq}, s{sCO}, 1                ; quads in the groups of eight
  s_lshr_b32 s{sCO}, s{sCO}, 2
  s_add_u32 s{sT}, s{sq}, s{sq+1}
  s_add_u32 s{sT}, s{sT}, 7
  s_lshr_b32 s{sT}, s{sT}, 3
  v_lshrrev_b32 v{t2}, 16, v{t1}
  v_add_u32 v{t2}, s{sq}, v{t2}              ; quad slot of the left-over quad
  v_and_b32 v{t1}, 0xffff, v{t1}
  v_lshl_or_b32 v{t0}, v{t6}, 16, v{t1}
  v_lshlrev_b32 v{t0}, 3, v{t0}              ; 8*start8 | 8*n8 << 16
  v_lshlrev_b32 v{t7}, 1, v{t6}
  v_sub_u32 v{t7}, v{t2}, v{t7}
  v_lshlrev_b32 v{t7}, 2, v{t7}              ; position base of the left-over quad
  s_cmp_gt_u32 s{sT}, {CAPB}
  s_cbranch_scc1 K_SPLIT""")
    fstamp(a, 3)
    for k0 in (0, 4):
        if k0:
            a(f"""
  v_or3_b32 v{t3}, v{REC+k0}, v{REC+k0+1}, v{REC+k0+2}
  v_or_b32 v{t3}, v{t3}, v{REC+k0+3}
  v_cmp_ne_u32 vcc, 0, v{t3}
  s_cbranch_vccz K_P2E""")
        for k in range(k0, k0+4):
            a(f"  ds_bpermute_b32 v{PF+24+(k&3)}, v{NOD+k}, v{t7}")
            a(f"  ds_bpermute_b32 v{NOD+k}, v{NOD+k}, v{t0}")
        for k in range(k0, k0+4):
            e = PF + 16 + 2*(k & 3)
            a(f"""
  v_lshrrev_b32 v{e}, 10, v{REC+k}
  v_and_b32 v{e}, {hex(0xffffff00 if not OPT['hot'] else 0x1f00)}, v{e}
  v_bfe_u32 v{e+1}, v{REC+k}, 6, 12
  v_lshl_add_u32 v{e+1}, v{e+1}, 5, v{vebase}""")
            if OPT["hot"]: a(f"  v_and_b32 v{e+1}, 0xfe0, v{e+1}")
        a("  s_waitcnt lgkmcnt(0)")
        for k in range(k0, k0+4):
            a(f"  v_cmp_lt_u32_sdwa {s(8+2*(k&3),2)}, v{RNK+k}, v{NOD+k} src0_sel:DWORD src1_sel:WORD_1")
        for k in range(k0, k0+4):
            a(f"  v_and_b32 v{NOD+k}, 0xffff, v{NOD+k}")
        for k in range(k0, k0+4):
            a(f"  v_cndmask_b32 v{NOD+k}, v{PF+24+(k&3)}, v{NOD+k}, {s(8+2*(k&3),2)}")
        for k in range(k0, k0+4):
            e = PF + 16 + 2*(k & 3)
            a(f"""
  v_add_lshl_u32 v{NOD+k}, v{NOD+k}, v{RNK+k}, 3
  v_cmpx_ne_u32 vcc, 0, v{REC+k}
  ds_write_b64 v{NOD+k}, {v(e,2)}
  s_mov_b64 exec, -1""")
    a(f"""
K_P2E:""")
    fstamp(a, 5)
    a(f"""
  v_lshlrev_b32 v{t2}, 2, v{t2}
  v_cmpx_ne_u32 vcc, 0, v{t5}
  ds_write_b32 v{t2}, v{t4} offset:{L_GN}
  s_mov_b64 exec, -1
  v_add_lshl_u32 v{t2}, v{t1}, v{t6}, 3
  v_lshl_add_u32 v{t1}, v{t1}, 1, s{sW}
  v_lshlrev_b32 v{t1}, 2, v{t1}
K_GNL:
  v_cmpx_lt_u32 vcc, v{t1}, v{t2}
  ds_write_b32 v{t1}, v{t4} offset:{L_GN}
  v_add_u32 v{t1}, 32, v{t1}
  v_cmpx_lt_u32 vcc, v{t1}, v{t2}
  ds_write_b32 v{t1}, v{t4} offset:{L_GN}
  v_add_u32 v{t1}, 32, v{t1}
  v_cmpx_lt_u32 vcc, v{t1}, v{t2}
  s_cbranch_execnz K_GNL
  s_mov_b64 exec, -1
  s_add_u32 s{sCnt}, s{sT}, 7
  s_sub_u32 s{sCnt}, s{sCnt}, s{sW}
  s_lshr_b32 s{sCnt}, s{sCnt}, 3
  s_add_u32 s{sCO}, s{sCO}, 7
  s_sub_u32 s{sCO}, s{sCO}, s{sW}
  s_lshr_b32 s{sCO}, s{sCO}, 3
  {("s_mov_b32 s%d, 40" % sCnt + chr(10) + "  s_movk_i32 s%d, 320" % sT + chr(10) + "  s_mov_b32 s%d, 40" % sCO) if OPT["bench"] else ""}
""")
    stamp(a, 4)
    a(f"""
  s_cmp_eq_u32 s{sFirst}, 0
  s_cbranch_scc1 K_POLL2_D""")
    poll("K_POLL2", FHALF)
    a("  s_waitcnt lgkmcnt(0)\n  s_barrier")
    stamp(a, 7)
    dsc = " sc1" if OPT["dsc"] else ""
    def dma_issue():
        L = []
        for j in range(8):
            d = DO + (j & 1)
            L.append([f"  s_add_u32 m0, s{sStg}, {j*1040}",
                      f"  v_add_u32_dpp v{d}, v{ENT}, v{vchunk} row_newbcast:{2*j} row_mask:0xf bank_mask:0xf",
                      f"  buffer_load_dwordx4 v{d}, {s(SP,4)}, 0 offen{dsc} lds" if not OPT["nodma"] else "  s_nop 0"])
        L.append([f"  s_add_u32 m0, s{sStg}, 8320",
                  f"  v_add_u32 v{DO}, v{ENT+1}, v{vechunk}",
                  f"  buffer_load_dwordx4 v{DO}, {s(SE,4)}, 0 offen lds" if not (OPT["nodma"] or OPT["noe"]) else "  s_nop 0"])
        return L
    ndma = 0 if OPT["nodma"] else 8 if OPT["noe"] else 9
    def frag_reads():
        L = []
        for st in range(8):
            L.append(f"  ds_read_b128 {v(PF+4*st,4)}, v{vAlo if st < 4 else vAhi} offset:{32*(st&3)}")
        L.insert(2, f"  ds_read_b128 {v(EF,4)}, v{vEF}")
        return L
    def bq_reads():
        return [f"  ds_read_b64_tr_b16 {v(BQ+nq*t,2)}, v{vqa} offset:{64*t}" for t in range(4)]
    def chain(t, D):
        L = [f"  v_mfma_f32_32x32x16_bf16 {v(D,16)}, {v(EF,4)}, {v(W3+4*t,4)}, 0"]
        if OPT["lo"]:
            L.append(f"  v_mfma_f32_32x32x16_bf16 {v(D,16)}, {v(EF,4)}, {v(W3L+4*t,4)}, {v(D,16)}")
        L.append(f"  v_mfma_f32_32x32x16_bf16 {v(D,16)}, {v(PF+8*t,4)}, {v(I0,4)}, {v(D,16)}")
        L.append(f"  v_mfma_f32_32x32x16_bf16 {v(D,16)}, {v(PF+8*t+4,4)}, {v(I1,4)}, {v(D,16)}")
        if OPT["k8"]:
            L.append(f"  v_mfma_f32_32x32x8bf16_1k {v(D,16)}, {v(AQ,2)}, {v(BQ+2*t,2)}, {v(D,16)}")
        else:
            L.append(f"  v_mfma_f32_32x32x16_bf16 {v(D,16)}, {v(AQ,4)}, {v(BQ+4*t,4)}, {v(D,16)}")
        return L

    if OPT["stag"]:
        a(f"  s_cmp_lt_u32 s{sW}, 4\n  s_cbranch_scc1 K_STG\n  s_sleep {OPT['stag']}\nK_STG:")
    a(f"  ds_read_b64 {v(ENT,2)}, v{vent}\n  s_waitcnt lgkmcnt(0)")
    for x in dma_issue(): a("\n".join(x))
    a(f"  ds_read_b64 {v(ENT,2)}, v{vent} offset:2048")
    a(f"""
  s_cmp_eq_u32 s{sFirst}, 0
  s_cbranch_scc1 K_NOGEMM0
  s_mov_b32 s{sFirst}, 0
  s_waitcnt vmcnt({ndma}) lgkmcnt(0)""")
    node_gemm(W2F, WUT)
    a(f"  v_lshlrev_b32 v{t4}, 4, v{vl}")
    for st in range(4):
        a(f"  buffer_load_dwordx4 {v(WUB+4*st,4)}, v{t4}, {s(SW,4)}, s{sUB} offen offset:{st*1024} sc1")
    def pf5():
        a(f"  s_mul_i32 s{sq}, s2, 40000\n  v_add_u32 v{t0}, s{sq}, v{vt16}")
        for j in range(5):
            a(f"  buffer_load_dwordx4 {v(DUM,4)}, v{t0}, {s(SE,4)}, 0 offen")
            if j < 4: a(f"  v_add_u32 v{t0}, 8192, v{t0}")
    if OPT["pf2"] == 1: pf5()
    a(f"""
  s_or_b32 s{sq}, s2, s{sW}
  s_cmp_lg_u32 s{sq}, 0
  s_cbranch_scc1 K_NONONCE
  s_mov_b64 exec, 1
  v_mov_b32 v{t0}, {FNON}
  v_mov_b32 v{t1}, s{sTag}
  buffer_store_dword v{t1}, v{t0}, {s(SF,4)}, 0 offen
  s_mov_b64 exec, -1
  s_waitcnt vmcnt(0)
K_NONONCE:
  s_waitcnt lgkmcnt(0)
  s_barrier
K_NOGEMM:
  ds_read_b32 v{vgn1}, v{vgq}
  ds_read_b32 v{vsrow}, v{vrow}
  ds_read_b128 {v(GN,4)}, v{vga}
  s_waitcnt vmcnt({9 if OPT["pf2"] == 1 else 4})""")
    stamp(a, 8, 96)
    for x in frag_reads(): a(x)
    a(f"""
  s_waitcnt lgkmcnt(9)
  v_mad_u32_u24 v{vqa}, v{vgn1}, s{sQS}, v{vqlane}
  v_lshrrev_b64 {v(AQ,2)}, v{vsrow}, {v(PAT,2)}""")
    for x in bq_reads(): a(x)
    a("  s_waitcnt lgkmcnt(0)")
    for x in dma_issue(): a("\n".join(x))
    if OPT["pf2"] == 2: pf5()
    for x in chain(0, D0): a(x)
    if OPT["prio"]:
        a(f"  s_cmp_lt_u32 s{sW}, 4\n  s_cbranch_scc1 K_PR\n  s_setprio 1\nK_PR:")
    a(f"""
  s_nop 7
  s_nop 3
  s_cmp_eq_u32 s{sCnt}, 0
  s_cbranch_scc1 K_LOOPEND
  s_cmp_lg_u32 s{sMode}, 0
  s_cbranch_scc1 K_SAFE
  {"s_branch K_QUAD" if not OPT["octo"] else ""}
  s_sub_u32 s{sCnt}, s{sCnt}, s{sCO}
  s_cmp_eq_u32 s{sCO}, 0
  s_cbranch_scc1 K_QUAD""")

    def p(r): return v(r, 2)
    def octet_fast(d, e, t, r, sres):
        ex = [f"  v_exp_f32 v{e+i}, v{d+i}" for i in range(8)]
        L = [f"  v_pk_add_f32 {p(t)}, {p(e)}, 1.0 op_sel_hi:[1,0]",
             f"  v_pk_add_f32 {p(t+2)}, {p(e+4)}, 1.0 op_sel_hi:[1,0]",
             f"  v_pk_fma_f32 {p(t+4)}, {p(d)}, {p(e+2)}, {p(d)}",
             f"  v_pk_fma_f32 {p(t+6)}, {p(d+4)}, {p(e+6)}, {p(d+4)}",
             f"  v_pk_fma_f32 {p(e)}, {p(t)}, {p(e+2)}, {p(t)}",
             f"  v_pk_fma_f32 {p(e+4)}, {p(t+2)}, {p(e+6)}, {p(t+2)}",
             f"  v_pk_fma_f32 {p(t+4)}, {p(d+2)}, {p(t)}, {p(t+4)}",
             f"  v_pk_fma_f32 {p(t+6)}, {p(d+6)}, {p(t+2)}, {p(t+6)}",
             f"  v_pk_mul_f32 {p(t)}, {p(e)}, {p(e+4)}",
             f"  v_pk_mul_f32 {p(t+4)}, {p(t+4)}, {p(e+4)}",
             f"  v_rcp_f32 v{r}, v{t}",
             f"  v_rcp_f32 v{r+1}, v{t+1}",
             f"  v_pk_fma_f32 {p(t+4)}, {p(t+6)}, {p(e)}, {p(t+4)}",
             f"  v_pk_mul_f32 {p(sres)}, {p(t+4)}, {p(r)}"]
        return ex, L
    def octet_safe(d, e, t, r, sres):
        ex = [f"  v_exp_f32 v{e+i}, v{d+i}" for i in range(8)]
        L = [f"  v_pk_add_f32 {p(e+2*i)}, {p(e+2*i)}, 1.0 op_sel_hi:[1,0]" for i in range(4)]
        L += [f"  v_rcp_f32 v{t+i}, v{e+i}" for i in range(8)]
        L += [f"  v_pk_mul_f32 {p(sres)}, {p(d)}, {p(t)}"]
        L += [f"  v_pk_fma_f32 {p(sres)}, {p(d+2*i)}, {p(t+2*i)}, {p(sres)}" for i in range(1, 4)]
        return ex, L
    def zipl(x, y):
        o = []
        for i in range(max(len(x), len(y))):
            if i < len(x): o.append(x[i])
            if i < len(y): o.append(y[i])
        return o
    def adds(t, kind):
        if OPT["noadd"]: return [f"  ds_read_b32 v{DUM}, v{vgq}"] * (2 if kind == "octo" else 4)
        if kind == "octo": return [f"  ds_add_f64 v{AD+2*xy}, {v(CV+2*xy,2)} offset:{256*t}" for xy in range(2)]
        return [f"  ds_add_f64 v{AD+2*xy+o}, {v(CV+2*(2*o+xy),2)} offset:{256*t}" for o in range(2) for xy in range(2)]
    def block_body(kind, u, nun):
        oc = octet_safe if kind == "safe" else octet_fast
        nadd = 2 if kind == "octo" else 4
        B = []
        for t in range(4):
            D = D0 if t % 2 == 0 else D1
            Dn = D1 if t % 2 == 0 else D0
            exa, La = oc(D, EA, TA, RA, SA)
            exb, Lb = oc(D+8, EB, TB, RB, SB)
            ex = exa + exb
            ch = chain((t+1) % 4, Dn)
            late = []
            if kind == "octo":
                keep = lambda L: [x for x in L[:-1] if "v_rcp" not in x]
                dk = DK + 2*(t & 1)
                pk = zipl(keep(La), keep(Lb))
                pk = pk[:-4] + [f"  v_pk_mul_f32 {p(dk)}, {p(TA)}, {p(TB)}"] + pk[-4:-2] + \
                     [f"  v_rcp_f32 v{RA}, v{dk}", f"  v_rcp_f32 v{RA+1}, v{dk+1}"] + pk[-2:] + \
                     [f"  v_pk_mul_f32 {p(TA+4)}, {p(TA+4)}, {p(TB)}"]
                if t & 1: pk.append(f"  v_pk_fma_f32 {p(MAC)}, {p(DK)}, {p(DK+2)}, {p(MAC)}")
                pk += [f"  v_pk_fma_f32 {p(TA+4)}, {p(TB+4)}, {p(TA)}, {p(TA+4)}",
                       f"  v_pk_mul_f32 {p(SA)}, {p(TA+4)}, {p(RA)}"]
                fin = [f"  v_cvt_f64_f32 {v(CV+2*xy,2)}, v{SA+xy}" for xy in range(2)]
                adr = (0, 2)
            else:
                pk = zipl(La, Lb)
                if kind == "quad":
                    idx = max(i for i, x in enumerate(pk) if x.startswith(f"  v_pk_mul_f32 {p(TB)}, {p(EB)}"))
                    pk.insert(idx+1, f"  v_pk_fma_f32 {p(MAC)}, {p(TA)}, {p(TB)}, {p(MAC)}")
                fin = [f"  v_cvt_f64_f32 {v(CV+2*(2*o+xy),2)}, v{S+xy}" for o, S in ((0, SA), (1, SB)) for xy in range(2)]
                adr = range(4)
            fin += adds(t, kind)
            if t == 0:
                pk = pk[:4] + [f"  v_mad_u32_u24 v{AD+i}, v{GN+i}, s{sAS}, v{vacl}" for i in adr] + pk[4:]
            if t == 1:
                pk = pk[:8] + [f"  ds_read_b64 {v(ENT,2)}, v{vent} offset:{4096+2048*u}",
                      f"  ds_read_b32 v{vgn1}, v{vgq} offset:{256+256*u}",
                      f"  ds_read_b32 v{vsrow}, v{vrow} offset:{2048+2048*u}",
                      f"  ds_read_b128 {v(GN,4)}, v{vga} offset:{256+256*u}"] + pk[8:]
            if t == 3:
                B.append(f"  s_waitcnt lgkmcnt({nadd})")
            dma = dma_issue() if t == 3 else []
            per = 16 // len(ch); e = 0
            for i, m in enumerate(ch):
                B.append(m)
                n = per if i < len(ch)-1 else 16 - e
                B += ex[e:e+2]
                if late: B.append(late.pop(0))
                B += ex[e+2:e+n]; e += n
                if OPT["dmapos"] == 0:
                    for _ in range(2):
                        if dma: B += dma.pop(0)
            if t == 2:
                mid = [f"  s_waitcnt vmcnt(0) lgkmcnt({nadd})",
                       f"  v_mad_u32_u24 v{vqa}, v{vgn1}, s{sQS}, v{vqlane}"]
                rd = frag_reads() + bq_reads()
                aq = [f"  v_lshrrev_b64 {v(AQ,2)}, v{vsrow}, {v(PAT,2)}"]
                if OPT["rdgap"] == 0: B += mid + rd + aq + pk
                else:
                    q = []
                    for i, x in enumerate(aq + pk):
                        if rd and i % OPT["rdgap"] == 0: q.append(rd.pop(0))
                        q.append(x)
                    B += mid + q + rd
            elif t == 3:
                inc = []
                if u == nun - 1 and OPT["bench"]:
                    inc = [f"  v_add_u32 v{DUM+i}, {2048*nun}, v{vent}" for i in range(4)]
                elif u == nun - 1:
                    inc = incs(nun)
                pk = pk + inc
                if OPT["dmapos"] == 1:
                    q = []
                    for i, x in enumerate(pk):
                        if dma and i % 3 == 0: q += dma.pop(0)
                        q.append(x)
                    pk = q
                for x in dma: B += x
                B += pk
            else:
                B += pk
            B += fin
        return B
    def incs(n):
        return [f"  v_add_u32 v{vent}, {2048*n}, v{vent}", f"  v_add_u32 v{vrow}, {2048*n}, v{vrow}",
                f"  v_add_u32 v{vgq}, {256*n}, v{vgq}", f"  v_add_u32 v{vga}, {256*n}, v{vga}"]
    def loop(kind):
        lab = {"safe": "K_SAFE", "quad": "K_QUAD", "octo": "K_FAST"}[kind]
        nun = OPT["unroll"] if kind == "octo" else 1
        cnt = sCO if kind == "octo" else sCnt
        L = []
        for u in range(nun):
            L += block_body(kind, u, nun)
            L.append(f"  s_sub_u32 s{cnt}, s{cnt}, 1")
            L.append(f"  s_cmp_lg_u32 s{cnt}, 0")
            L.append(f"  s_cbranch_scc1 {lab}" if u == nun - 1 else f"  s_cbranch_scc0 K_OX{u}")
        ab = OPT["abl"]
        if ab & 1: L = [x for x in L if not ("v_mfma" in x and (f", {v(I0,4)}," in x or f", {v(I1,4)}," in x))]
        if ab & 2: L = [x for x in L if "v_mfma_f32_32x32x8" not in x and "tr_b16" not in x]
        if ab & 4: L = [x.replace("v_exp_f32", "v_mov_b32") for x in L]
        if ab & 8: L = [x for x in L if "v_pk_" not in x]
        if ab & 16: L = [x for x in L if "v_mfma" not in x]
        if ab & 32: L = [x for x in L if "ds_read_b128" not in x]
        if ab & 64: L = [x for x in L if "v_exp" not in x]
        if ab & 128:
            M = []
            for x in L:
                if "v_mfma" in x and f", {v(I1,4)}," in x: continue
                if "v_mfma" in x and f", {v(I0,4)}," in x:
                    m = re.match(r"\s*v_mfma_f32_32x32x16_bf16 (v\[\d+:\d+\]), v\[(\d+):", x)
                    M.append(f"  v_smfmac_f32_32x32x32_bf16 {m.group(1)}, {v(I0,4)}, {v(int(m.group(2)),8)}, v{vone}"); continue
                m = re.match(r"\s*ds_read_b128 v\[(\d+):\d+\], v(\d+) offset:(\d+)", x)
                if m and PF <= int(m.group(1)) < PF + 32:
                    r0 = int(m.group(1))
                    M.append(f"  ds_read_b64_tr_b16 {v(r0,2)}, v{vqa} offset:{m.group(3)}")
                    M.append(f"  ds_read_b64_tr_b16 {v(r0+2,2)}, v{vqa} offset:{int(m.group(3))+128}"); continue
                M.append(x)
            L = M
        if ab & 256:
            M = []
            for x in L:
                if "v_mfma" in x and (f", {v(I1,4)}," in x or f", {v(I0,4)}," in x): continue
                if "v_mfma_f32_32x32x16" in x and x.rstrip().endswith(", 0"): x = x.rstrip()[:-1] + v(PF, 16)
                m = re.match(r"\s*ds_read_b128 v\[(\d+):\d+\], v(\d+) offset:(\d+)", x)
                if m and PF <= int(m.group(1)) < PF + 32:
                    for q in range(8): M.append(f"  ds_read_u16_d16_hi v{PF+(int(m.group(1))+q)%32}, v{vacl} offset:{64*q}")
                    continue
                M.append(x)
            L = M
        if OPT["align"]: L = align8(L)
        a(f".p2align 6\n{lab}:")
        for x in L: a(x)
    loop("octo")
    a(f"""
K_OXE:
  s_cmp_lg_u32 s{sCnt}, 0
  s_cbranch_scc1 K_QUAD""")
    a(f"""
K_LOOPEND:""")
    a(f"""
  s_waitcnt vmcnt(0) lgkmcnt(0)
  s_barrier""")
    stamp(a, 9, 98)
    a(f"""
  s_cmp_lg_u32 s{sKind}, 0
  s_cbranch_scc1 K_NEXT
K_CELLSDONE:
  v_mov_b32 v{t0}, {L_FLG+32}
  ds_read_b128 {v(CV,4)}, v{t0}
K_CONV:
  s_mul_i32 s{sTmp}, s{sW}, {AS}
  s_add_u32 s{sTmp}, s{sTmp}, {L_ACC}
  v_lshlrev_b32 v{t1}, 4, v{vl}
  v_add_u32 v{t1}, s{sTmp}, v{t1}""")
    for k in range(5):
        a(f"  ds_read_b128 {v(D0+4*k,4)}, v{t1} offset:{k*8*AS}")
    a(f"""
  s_mul_i32 s{sTmp}, s{sW}, {XS}
  s_add_u32 s{sTmp}, s{sTmp}, {L_X}
  v_lshlrev_b32 v{t2}, 2, v{vl}
  v_add_u32 v{t2}, s{sTmp}, v{t2}
  s_cmp_ge_u32 s{sKind}, 3
  s_cbranch_scc1 K_CONV2
  s_waitcnt lgkmcnt(5)
  v_or3_b32 v{t0}, v{CV}, v{CV+1}, v{CV+2}
  v_or_b32 v{t0}, v{t0}, v{CV+3}
  v_cmp_ne_u32 vcc, 0, v{t0}
  s_cbranch_vccnz K_STARTOV
K_CONV2:
  s_mov_b32 s{sTmp}, 0x71800000              ; 2^100
  v_cmp_nle_f32 {s(sBad,2)}, v{MAC}, s{sTmp}
  v_cmp_nle_f32 vcc, v{MAC+1}, s{sTmp}
  s_or_b64 {s(sBad,2)}, {s(sBad,2)}, vcc
  s_movk_i32 s{sTmp}, 0x207""")
    for k in range(5):
        a(f"""
  s_waitcnt lgkmcnt({4-k})
  v_cvt_f32_f64 v{EA+2*k}, {v(D0+4*k,2)}
  v_cvt_f32_f64 v{EA+2*k+1}, {v(D0+4*k+2,2)}
  v_cmp_class_f32 vcc, v{EA+2*k}, s{sTmp}
  s_or_b64 {s(sBad,2)}, {s(sBad,2)}, vcc
  v_cmp_class_f32 vcc, v{EA+2*k+1}, s{sTmp}
  s_or_b64 {s(sBad,2)}, {s(sBad,2)}, vcc
  v_cvt_pk_bf16_f32 v{EB+k}, v{EA+2*k}, v{EA+2*k+1}""")
    for k in range(5):
        a(f"  ds_write_b32 v{t2}, v{EB+k} offset:{k*8*XS}")
    a(f"""
  s_cmp_eq_u64 {s(sBad,2)}, 0
  s_cbranch_scc1 K_OKW
  v_mov_b32 v{t0}, {L_FLG}
  ds_write_b32 v{t0}, v{vone}
K_OKW:
  s_waitcnt lgkmcnt(0)
  s_barrier
  v_mov_b32 v{t0}, {L_FLG}
  ds_read_b32 v{t0}, v{t0}""")
    for nt in range(2):
        for st in range(4):
            a(f"  ds_read_b128 {v(XF+16*nt+4*st,4)}, v{vxb} offset:{nt*16*XS + st*64}")
    a(f"""
  s_waitcnt lgkmcnt(8)
  v_readfirstlane_b32 s{sTmp}, v{t0}
  s_cmp_gt_u32 s{sTmp}, s{sMode}
  {"s_cbranch_scc1 K_RESTART" if not EXP else "s_nop 0"}
  s_waitcnt lgkmcnt(4)""")
    for st in range(4):
        c = "0" if st == 0 else v(D0, 4)
        a(f"  v_mfma_f32_16x16x32_bf16 {v(D0,4)}, {v(WUB+4*st,4)}, {v(XF+4*st,4)}, {c}")
    for st in range(4):
        a(f"  ds_read_b128 {v(D1+4*st,4)}, v{vxb} offset:{2*16*XS + st*64}")
    a("  s_waitcnt lgkmcnt(4)")
    for st in range(4):
        c = "0" if st == 0 else v(D0+4, 4)
        a(f"  v_mfma_f32_16x16x32_bf16 {v(D0+4,4)}, {v(WUB+4*st,4)}, {v(XF+16+4*st,4)}, {c}")
    a("  s_waitcnt lgkmcnt(0)")
    for st in range(4):
        c = "0" if st == 0 else v(D0+8, 4)
        a(f"  v_mfma_f32_16x16x32_bf16 {v(D0+8,4)}, {v(WUB+4*st,4)}, {v(D1+4*st,4)}, {c}")
    a(f"""
  s_mov_b32 s{sK}, {NLN2}
  s_mov_b32 s{sK+1}, {NLN2}
  s_mov_b32 s{sTmp}, {NLOG2E}
  s_mov_b32 s{sTmp+1}, {NLOG2E}
  v_and_b32 v{t0}, 15, v{vl}
  v_lshlrev_b32 v{t0}, 8, v{t0}
  v_lshrrev_b32 v{t1}, 4, v{vl}
  v_lshl_add_u32 v{t0}, v{t1}, 3, v{t0}
  s_lshl_b32 s{sTmp+2}, s{sW}, 5
  v_add_u32 v{t0}, s{sTmp+2}, v{t0}
  v_add_u32 v{t1}, 4096, v{t0}
  v_add_u32 v{t2}, 8192, v{t0}""")
    for nt in range(3):
        d = D0 + 4*nt
        a(f"""
  v_pk_fma_f32 {p(d)}, {p(d)}, {s(sK,2)}, {p(U+4*nt)}
  v_pk_fma_f32 {p(d+2)}, {p(d+2)}, {s(sK,2)}, {p(U+4*nt+2)}
  v_pk_mul_f32 {p(EA)}, {p(d)}, {s(sTmp,2)}
  v_pk_mul_f32 {p(EA+2)}, {p(d+2)}, {s(sTmp,2)}""")
        for i in range(4): a(f"  v_exp_f32 v{EA+i}, v{EA+i}")
        a(f"  s_nop 0\n  v_pk_add_f32 {p(EA)}, {p(EA)}, 1.0 op_sel_hi:[1,0]\n  v_pk_add_f32 {p(EA+2)}, {p(EA+2)}, 1.0 op_sel_hi:[1,0]")
        for i in range(4): a(f"  v_rcp_f32 v{EA+i}, v{EA+i}")
        a(f"""
  s_nop 0
  v_pk_mul_f32 {p(d)}, {p(d)}, {p(EA)}
  v_pk_mul_f32 {p(d+2)}, {p(d+2)}, {p(EA+2)}
  v_cvt_pk_bf16_f32 v{EB+2*nt}, v{d}, v{d+1}
  v_cvt_pk_bf16_f32 v{EB+2*nt+1}, v{d+2}, v{d+3}
  buffer_store_dwordx2 {v(EB+2*nt,2)}, v{t0+nt}, {s(SO,4)}, 0 offen""")
    if OPT["stamp"]:
        a(f"""
  s_waitcnt vmcnt(0)
  s_memrealtime s[4:5]
  s_waitcnt lgkmcnt(0)
  s_lshl_b32 s6, s2, 3
  s_add_u32 s6, s6, s{sW}
  s_lshl_b32 s6, s6, 6
  s_add_u32 s6, s6, {WS_STAMP}
  s_add_u32 s6, s{pWS}, s6
  s_addc_u32 s7, s{pWS+1}, 0
  s_mov_b64 exec, 1
  v_mov_b32 v1, 0""")
        for i, r in enumerate([80+2*i for i in range(8)] + [96, 98, 4]):
            pass
        regs = [80, 82, 84, 86, 88, 90, 92, 94, 8, 9, 4, 10, 11, sT]
        for i, r in enumerate(regs):
            a(f"  v_mov_b32 v2, s{r}\n  global_store_dword v1, v2, s[6:7] offset:{4*i}")
    a(f"""
K_END:
  s_endpgm
""")
    a(f"""
K_PREP:
  s_sub_u32 s{sq}, s2, {2*G}
  s_lshl_b32 s{sq}, s{sq}, 14
  s_lshl_b32 s{sq+1}, s{sW}, 12
  s_add_u32 s{sq}, s{sq}, s{sq+1}
  v_lshlrev_b32 v{t0}, 4, v{vl}
  v_mov_b32 v{t7}, s{sTag}
  s_waitcnt vmcnt({10+NA})
  s_barrier""")
    wtr(PF, vqa)
    a("  s_waitcnt lgkmcnt(0)")
    for st in range(4):
        a(f"  buffer_store_dwordx4 {v(PF+4*st,4)}, v{t0}, {s(SW,4)}, s{sq} offen offset:{st*1024} sc1")
    a(f"""
  s_lshr_b32 s{sq}, s{sW}, 2
  s_add_u32 s{sq}, s{sq}, s2
  s_cmp_lg_u32 s{sq}, {2*G}
  s_cbranch_scc1 K_PREPD
  s_mov_b32 s{sq+1}, {NLOG2E}
  s_lshl_b32 s{sq}, s{sW}, 10
  s_waitcnt vmcnt({6+NA})""")
    for jj in range(8):
        a(f"  v_lshlrev_b32 v{D0+jj}, 16, v{D0+jj}\n  v_mul_f32 v{D0+jj}, s{sq+1}, v{D0+jj}")
    for i in range(4):
        a(f"  v_cvt_pk_bf16_f32 v{D0+8+i}, v{D0+2*i}, v{D0+1+2*i}")
    for i in range(4):
        a(f"""
  v_lshlrev_b32 v{t2}, 16, v{D0+8+i}
  v_and_b32 v{t3}, 0xffff0000, v{D0+8+i}
  v_sub_f32 v{t2}, v{D0+2*i}, v{t2}
  v_sub_f32 v{t3}, v{D0+1+2*i}, v{t3}
  v_cvt_pk_bf16_f32 v{D0+12+i}, v{t2}, v{t3}""")
    a(f"""
  s_add_u32 s{sq+1}, s{sq}, {WF_3L}
  s_add_u32 s{sq}, s{sq}, {WF_3H}
  buffer_store_dwordx4 {v(D0+8,4)}, v{t0}, {s(SW,4)}, s{sq} offen sc1
  buffer_store_dwordx4 {v(D0+12,4)}, v{t0}, {s(SW,4)}, s{sq+1} offen sc1
K_PREPD:""")
    own_x(4+NA)
    a(f"""
  s_waitcnt vmcnt(0)
  s_barrier
  s_cmp_eq_u32 s{sW}, 0
  s_cbranch_scc1 K_FLAG
  s_branch K_PST""")
    a(f"""
K_OVF:
  s_waitcnt lgkmcnt(0)
  s_barrier
  s_mul_i32 s{sq+1}, s2, {OVSTR//2}
  s_add_u32 s{sq+1}, s{sq+1}, 64
  v_mov_b32 v{t5}, {L_FLG+8}
  v_mov_b32 v{t6}, -1""")
    for j in range(5):
        a(f"""
  v_cmp_le_u32 vcc, {CAP-1}, v{RK+j}
  s_and_b64 exec, exec, vcc
  s_cbranch_execz K_OV{j}
  v_add_u32 v{t1}, {L_BCNT}, v{B4+j}
  ds_read_b32 v{t1}, v{t1}
  s_waitcnt lgkmcnt(0)
  v_cmp_ne_u32 vcc, {CAP}, v{t1}
  s_nop 1
  v_cndmask_b32 v{t3}, v{SS_+j}, v{t6}, vcc
  ds_write_b32 v{CA+j}, v{t3} offset:{CELLB-8}
  s_and_b64 exec, exec, vcc
  s_cbranch_execz K_OV{j}
  ds_add_rtn_u32 v{t1}, v{t5}, v{vone}
  v_mov_b32 v{CV}, v{SS_+j}
  v_lshrrev_b32 v{CV+1}, 2, v{B4+j}
  s_waitcnt lgkmcnt(0)
  v_lshl_add_u32 v{t1}, v{t1}, 3, s{sq+1}
  buffer_store_dwordx2 {v(CV,2)}, v{t1}, {s(SV,4)}, 0 offen sc1
  s_waitcnt vmcnt(0)
K_OV{j}:
  s_mov_b64 exec, -1""")
    a(f"""
  s_waitcnt lgkmcnt(0)
  s_barrier
  ds_read_b32 v{t1}, v{t5}
  s_sub_u32 s{sq+1}, s{sq+1}, 64
  v_mov_b32 v{t3}, s{sq+1}
  v_mov_b32 v{t2}, 0
  s_waitcnt lgkmcnt(0)
  buffer_store_dword v{t1}, v{t3}, {s(SV,4)}, 0 offen sc1
  s_waitcnt vmcnt(0)
  s_branch K_OVFDONE""")
    for u in range(OPT["unroll"] - 1):
        a(f"K_OX{u}:\n  s_cmp_eq_u32 s{sCnt}, 0\n  s_cbranch_scc1 K_LOOPEND")
        for x in incs(u + 1): a(x)
        a("  s_branch K_QUAD")
    loop("quad")
    a("  s_branch K_LOOPEND")
    a("K_TEXTEND:")
    loop("safe")
    a("  s_branch K_LOOPEND")
    a(f"""
K_NOGEMM0:
  s_waitcnt vmcnt(0)
  s_branch K_NOGEMM
K_RESTART:
  s_mov_b32 s{sMode}, 1
  s_mov_b32 s{sKind}, 0
  s_waitcnt lgkmcnt(0)
  s_barrier
  v_mov_b32 v{CV}, 0
  v_mov_b32 v{CV+1}, 0
  v_mov_b32 v{CV+2}, 0
  v_mov_b32 v{CV+3}, 0""")
    for j in range(5):
        a(f"  ds_write_b128 v{vt16}, {v(CV,4)} offset:{L_ACC + j*8192}")
    a(f"""
  v_cmp_gt_u32 vcc, {(40*AS-5*8192)//16}, v0
  s_and_saveexec_b64 {s(sEx,2)}, vcc
  ds_write_b128 v{vt16}, {v(CV,4)} offset:{L_ACC + 5*8192}
  s_mov_b64 exec, {s(sEx,2)}
  s_branch K_RELOAD
K_SPLIT:
  s_mov_b32 s{sKind}, 1
  s_waitcnt lgkmcnt(0)
  s_barrier
  s_branch K_RELOAD
K_NEXT:
  s_cmp_eq_u32 s{sKind}, 4
  s_cbranch_scc1 K_NEXTOV
  s_cmp_eq_u32 s{sKind}, 3
  s_cbranch_scc1 K_OVPART1
  s_cmp_eq_u32 s{sKind}, 2
  s_cbranch_scc1 K_CELLSDONE
  s_mov_b32 s{sKind}, 2
K_RELOAD:
  v_lshrrev_b32 v{t1}, 2, v0
  s_mov_b32 s{sq}, {CH*32}
  v_mul_u32_u24 v{vebase}, s{sq}, v{t1}
  s_waitcnt vmcnt(0)""")
    for k in range(2):
        a(f"  buffer_load_dwordx4 {v(REC+4*k,4)}, v{vcell}, {s(SC,4)}, 0 offen offset:{64*k} sc1")
    a(f"""
  s_waitcnt vmcnt(0)
  s_mov_b32 exec_lo, 0xaaaaaaaa
  s_mov_b32 exec_hi, 0xaaaaaaaa
  v_mov_b32 v{REC+3}, 0
  v_mov_b32 v{REC+7}, 0
  s_mov_b64 exec, -1
  s_cmp_eq_u32 s{sKind}, 0
  s_cbranch_scc1 K_ROUND
  s_lshr_b32 s{sq}, s{sW}, 2
  s_add_u32 s{sq}, s{sq}, 1
  s_cmp_eq_u32 s{sq}, s{sKind}
  s_cbranch_scc1 K_ROUND""")
    for k in range(NR): a(f"  v_mov_b32 v{REC+k}, 0")
    a(f"""
K_ROUND:
  v_mov_b32 v{CV}, 0
  v_mov_b32 v{CV+1}, 0
  v_mov_b32 v{CV+2}, 0
  v_mov_b32 v{CV+3}, 0
  v_cmp_gt_u32 vcc, {(L_FLG-L_GN)//16}, v0
  s_and_saveexec_b64 {s(sEx,2)}, vcc
  ds_write_b128 v{vt16}, {v(CV,4)} offset:{L_GN}
  s_mov_b64 exec, {s(sEx,2)}""")
    prefill()
    a(f"""
  v_and_b32 v{vent}, 2047, v{vent}
  v_and_b32 v{vrow}, 2047, v{vrow}
  v_subrev_u32 v{vga}, {L_GN}, v{vga}
  v_and_b32 v{vga}, 255, v{vga}
  v_add_u32 v{vga}, {L_GN}, v{vga}
  v_and_b32 v{t2}, 12, v{vl}
  v_add_u32 v{vgq}, v{vga}, v{t2}
  s_waitcnt lgkmcnt(0)
  s_barrier
  s_branch K_PHASE1
K_STARTOV:""")
    for i in range(4): a(f"  v_readfirstlane_b32 s{sOV+i}, v{CV+i}")
    a(f"""
  s_mov_b32 s{sKind}, 4
  s_waitcnt lgkmcnt(0)
K_NEXTOV:""")
    for i in range(2):
        a(f"""
  s_ff1_i32_b64 s{sP}, {s(sOV+2*i,2)}
  s_cmp_eq_u32 s{sP}, -1
  s_cbranch_scc1 K_OVN{i}
  s_bitset0_b64 {s(sOV+2*i,2)}, s{sP}
  s_add_u32 s{sP}, s{sP}, {64*i}
  s_branch K_OVGO
K_OVN{i}:""")
    a(f"""
  s_branch K_CONV
K_OVGO:
  s_mov_b32 s{sKind}, 3
  v_mov_b32 v{t4}, v0
  s_branch K_OVLD
K_OVPART1:
  s_mov_b32 s{sKind}, 4
  v_add_u32 v{t4}, 2048, v0
K_OVLD:
  s_mul_i32 s{sq}, s{sP}, {OVSTR}
  s_mul_i32 s{sq+1}, s{sP}, {CH*32}
  v_mov_b32 v{vebase}, s{sq+1}
  v_mov_b32 v{t0}, s{sq}
  buffer_load_dword v{t1}, v{t0}, {s(SV,4)}, 0 offen sc1
  v_lshl_add_u32 v{t2}, v{t4}, 3, v{t0}""")
    for k in range(4):
        a(f"  buffer_load_dwordx2 {v(PF+2*k,2)}, v{t2}, {s(SV,4)}, 0 offen offset:64 sc1\n  v_add_u32 v{t2}, 4096, v{t2}")
    a(f"  s_waitcnt vmcnt(0)")
    for k in range(4):
        a(f"""
  v_cmp_lt_u32 vcc, v{t4}, v{t1}
  v_cmp_eq_u32 {s(sEx,2)}, s2, v{PF+2*k+1}
  s_and_b64 vcc, vcc, {s(sEx,2)}
  v_add_u32 v{t4}, 512, v{t4}
  s_nop 1
  v_cndmask_b32 v{REC+k}, 0, v{PF+2*k}, vcc""")
    for k in range(4, NR): a(f"  v_mov_b32 v{REC+k}, 0")
    a("  s_branch K_ROUND")
    return a.text(), nv, NS

def gen_diag(idx):
    a = Asm()
    a(f"""
.globl mpnn_d_kernel
.p2align 8
.type mpnn_d_kernel,@function
mpnn_d_kernel:
  s_cmp_ge_u32 s2, 1
  s_cbranch_scc1 D_END
  s_load_dwordx2 s[4:5], s[0:1], 64
  s_waitcnt lgkmcnt(0)
  s_add_u32 s4, s4, {WS_STAMP + (OPT['wsb'] << 20)}
  s_addc_u32 s5, s5, 0
  s_load_dword s6, s[4:5], 0
  s_waitcnt lgkmcnt(0)
  s_sub_u32 s6, s6, 100000""")
    for q, (ix, ismax) in enumerate(((idx, 1), (0, 0))):
        op = "max" if ismax else "min"
        a(f"  v_lshlrev_b32 v1, {6 if not OPT['dodd'] else 10}, v0\n  v_add_u32 v1, {ix*4 + (512 + 64*(OPT['dodd']-1) if OPT['dodd'] else 0)}, v1\n  v_mov_b32 v3, {0 if ismax else -1}")
        nk = 32 if not OPT['dodd'] else 2
        for k in range(nk):
            a(f"  global_load_dword v{8+k}, v1, s[4:5]\n  v_add_u32 v1, {4096 if not OPT['dodd'] else 65536}, v1")
        a("  s_waitcnt vmcnt(0)")
        for k in range(nk):
            a(f"  v_subrev_u32 v2, s6, v{8+k}\n  v_{op}_u32 v3, v3, v2")
        a(f"  s_mov_b32 s{20+q}, {0 if ismax else -1}\n  s_nop 1")
        for l in range(64):
            a(f"  v_readlane_b32 s8, v3, {l}\n  s_nop 0\n  s_{op}_u32 s{20+q}, s{20+q}, s8")
    a(f"""
  s_sub_u32 s20, s20, s21
  s_min_u32 s20, s20, 20000
  s_lshl_b32 s20, s20, 3
  {'s_mov_b32 s20, 0' if OPT['dz'] else ''}
  s_memrealtime s[8:9]
  s_waitcnt lgkmcnt(0)
D_L:
  s_memrealtime s[10:11]
  s_waitcnt lgkmcnt(0)
  s_sub_u32 s12, s10, s8
  s_cmp_lt_u32 s12, s20
  s_cbranch_scc1 D_L
D_END:
  s_endpgm
""")
    return a.text()

HEAD = """; Kernarg layout for this problem (72 bytes, ptrs only, base s[0:1]):
"""
def main():
    k, nv, ns = gen()
    out = HEAD + f"; @launch grid=({NB},1,1) block=(512,1,1) lds={LDS}\n"
    if OPT["diag"] >= 0:
        out = HEAD + f"; @launch kernel={KN} grid=({NB},1,1) block=(512,1,1) lds={LDS}\n; @launch kernel=mpnn_d_kernel grid=(1,1,1) block=(64,1,1) lds=0\n"
        k += gen_diag(OPT["diag"])
    out += '.amdgcn_target "amdgcn-amd-amdhsa--gfx950"\n.text\n' + k
    out += f""".section .rodata,"a"
.p2align 6
.amdhsa_kernel {KN}
  .amdhsa_next_free_vgpr {nv}
  .amdhsa_next_free_sgpr {ns}
  .amdhsa_accum_offset {(nv+3)//4*4}
  .amdhsa_group_segment_fixed_size 0
  .amdhsa_kernarg_size 72
  .amdhsa_user_sgpr_count 2
  .amdhsa_user_sgpr_kernarg_segment_ptr 1
  .amdhsa_system_sgpr_workgroup_id_x 1
.end_amdhsa_kernel
"""
    if OPT["diag"] >= 0:
        out += """.p2align 6
.amdhsa_kernel mpnn_d_kernel
  .amdhsa_next_free_vgpr 48
  .amdhsa_next_free_sgpr 32
  .amdhsa_accum_offset 48
  .amdhsa_group_segment_fixed_size 0
  .amdhsa_kernarg_size 72
  .amdhsa_user_sgpr_count 2
  .amdhsa_user_sgpr_kernarg_segment_ptr 1
  .amdhsa_system_sgpr_workgroup_id_x 1
.end_amdhsa_kernel
"""
    open(sys.argv[1], "w").write(out)
    print("vgprs", nv, "lds", LDS)
main()
```

```python
from common import *

N = 10000; E = 320000
G = 125
CH = 2560
NB = 256
MAGIC = 26843
CAP = 28
CELLB = 128
BSTR = G * CELLB

WS_P = 256
WS_CELL = 0x280000
WS_WF = 0x1280000
WF_W2, WF_UT, WF_UB, WF_3H, WF_3L = 0, 32768, 65536, 98304, 102400
WF_SIZE = 106496
WS_OVF = 0x12A0000
OVSTR = 64 + CH * 8
WS_FLAG = 0x1520000
WS_STAMP = 0x1600000

OPT = dict(lo=0, k8=1, stamp=0, nodma=0, noadd=0, noe=0, hot=0, align=1, unroll=2, dmapos=0, rdpos=0, dsc=1, pf=1, slp=0, stf=1, addpos=0, rdgap=0, prio=0, bench=0, octo=1, frep=8, fln=16, slp0=0, plf=1, flf=1, diag=-1, touch=0, dz=0, abl=0, dodd=0, wsb=0, claim=0, slpa=0, slpb=0, zt=0, cpf=0, pf2=0, stag=0, bdl=0, wfirst=0, fine=0, half=0, dbg=0, s0st=0)
for a_ in sys.argv[2:]:
    k_, v_ = a_.split("="); OPT[k_] = int(v_)
EXP = OPT["dbg"] or OPT["half"] or OPT["bench"] or OPT["nodma"] or OPT["noe"] or OPT["noadd"] or OPT["hot"]

FL_ = ['', 'sc1', 'sc0 sc1', 'sc1 nt', 'sc0 sc1 nt']; PLF = FL_[OPT['plf']]; FLF = FL_[OPT['flf']]
STF = ['', 'sc1', 'sc0 sc1', 'sc1 nt'][OPT['stf']]
FREP = OPT['frep']; FLN = OPT['fln']; FSH = (128//FLN).bit_length()-1; FHALF = FREP*FLN*256; FNON = 2*FHALF; FMASK = hex((1<<FREP)-1)
NA = 1 if OPT['claim'] & 4 else 0
NCL = (3 if OPT['claim'] & 1 else 0) + NA
NCC = (4 if OPT['claim'] & 2 else 0) + NA
CAPB = 70
L_ENT = 0
L_GN = (CAPB + 1) * 256
L_CNT = L_GN + (CAPB + 17) * 32
L_FLG = L_CNT + 256
L_ACC = L_FLG + 64
AS = 1040
L_Q = L_ACC + 40 * AS
QS = 320
L_X = L_Q + 40 * QS
XS = 288
L_STG = L_X + 40 * XS
STG = 8 * 1040 + 1024
LDS = L_STG + 8 * STG
L_CIMG = L_STG
L_BCNT = L_CIMG + NB * CELLB
WPITCH = 1088
L_GP = L_STG + 1024
L_WS = L_STG + 32 * WPITCH
assert L_BCNT + 1024 <= LDS and L_STG % 16 == 0 and L_ACC % 16 == 0
PADS, PADE = 0x8000003f, 0x80000000
KN = "standalone__mpnn_edge_mlp__graph_kernel"

def fstamp(a, i):
    if OPT["fine"]: a(f"  s_memrealtime s[{80+2*i}:{81+2*i}]")
def stamp(a, i, cyc=None):
    if OPT["fine"] and i in (1, 2, 3, 5): return
    if OPT["stamp"]:
        if cyc is None:
            a(f"  s_memrealtime s[{80+2*i}:{81+2*i}]\n  s_waitcnt lgkmcnt(0)")
        else:
            a(f"  s_memrealtime s[96:97]\n  s_memtime s[98:99]\n  s_waitcnt lgkmcnt(0)\n  s_mov_b32 s{i}, s96\n  s_mov_b32 s{i+2}, s98")

def gen():
    a = Asm()
    R = Regs(1)
    al = R.alloc
    vl = al("lane")
    t0 = al("t", 8, 2); t1, t2, t3, t4, t5, t6, t7 = range(t0+1, t0+8)
    vchunk = al("vchunk"); vechunk = al("vechunk")
    vent = al("vent"); vrow = al("vrow"); vgq = al("vgq"); vga = al("vga")
    vAlo = al("Alo"); vAhi = al("Ahi"); vEF = al("vEF")
    vqlane = al("vqlane"); vacl = al("vacl"); vxb = al("vxb"); vqw = al("vqw")
    vebase = al("vebase"); vone = al("vone"); vt16 = al("vt16"); vcell = al("vcell")
    vqa = al("vqa"); vsrow = al("vsrow"); vgn1 = al("vgn1")
    ENT = al("ENT", 2, 2)
    MAC = al("MAC", 2, 2)
    PAT = al("PAT", 2, 2)
    nq = 2 if OPT["k8"] else 4
    AQ = al("AQ", nq, 2)
    GN = al("GN", 4, 2); AD = al("AD", 4)
    DO = al("DO", 2)
    I0 = al("I0", 4, 2); I1 = al("I1", 4, 2)
    W3 = al("W3", 16, 2)
    W3L = al("W3L", 16, 2) if OPT["lo"] else None
    BQ = al("BQ", 4*nq, 2)
    EF = al("EF", 4, 2)
    PF = al("PF", 32, 2)
    D0 = al("D0", 16, 2); D1 = al("D1", 16, 2)
    EA = al("EA", 8, 2); TA = al("TA", 8, 2); EB = al("EB", 8, 2); TB = al("TB", 8, 2)
    RA = al("RA", 2, 2); RB = al("RB", 2, 2)
    SA = al("SA", 2, 2); SB = al("SB", 2, 2)
    CV = al("CV", 8, 2)
    U = al("U", 12, 2); WUB = al("WUB", 16, 2)
    DUM = al("DUM", 4, 2)
    DK = al("DK", 4, 2)
    nv = R.n
    assert TA == EA + 8 and EB == EA + 16 and TB == EA + 24 and D1 == D0 + 16
    DD = D0; SS_ = D0 + 5; B4 = D0 + 10; RK = D0 + 15; CA = D0 + 20
    CP = PF
    GX = W3
    XL = U
    W1F = WUB
    REC = D0; NOD = D0 + 8; RNK = D1
    W2F = EA; WUT = EB; XF = PF; QD = CV
    sW = 3
    pX, pE, pS, pD, pWM, pWU, pO, pWS = 4, 6, 8, 10, 12, 14, 16, 18
    SP, SE, SC, SW, SO, SV, SF = 20, 24, 28, 32, 36, 40, 44
    T0, T1, T2 = 48, 52, 56
    sStart, sNb, sStg, sCnt, sT, sMode, sKind, sFirst = 60, 61, 62, 63, 64, 65, 66, 67
    sAS, sQS, sTag, sP, sUB, sLo2 = 68, 69, 70, 71, 72, 73
    sCO = 59
    sNp = 79
    sEx, sK, sBad = 74, 76, 78
    sTmp = 4
    sA = 48
    sOV = 48
    sOVT = 74
    sq = 100
    if OPT["stamp"]: NS = 102
    else: NS = 102

    a(f"""
.globl {KN}
.p2align 8
.type {KN},@function
{KN}:
  s_cmp_ge_u32 s2, {NB}
  s_cbranch_scc1 K_END""")
    if OPT["stamp"]: a("  s_memrealtime s[80:81]")
    a(f"""
  s_load_dwordx8 s[4:11], s[0:1], 0
  s_load_dwordx4 s[12:15], s[0:1], 32
  s_load_dwordx2 s[16:17], s[0:1], 48
  s_load_dwordx2 s[18:19], s[0:1], 64""")
    if OPT["cpf"]:
        a(f"""
  s_getpc_b64 s[20:21]
  v_lshlrev_b32 v{t1}, 7, v0
  v_cmp_gt_u32 vcc, (K_TEXTEND - {KN}) / 128, v0
  s_and_saveexec_b64 s[22:23], vcc
  s_cbranch_execz K_NOCPF
  global_load_dword v{DUM}, v{t1}, s[20:21]
K_NOCPF:
  s_mov_b64 exec, s[22:23]""")
    a(f"""
  v_lshrrev_b32 v{t0}, 6, v0
  v_and_b32 v{vl}, 63, v0
  s_and_b32 s{sP}, s2, {FREP-1}
  s_mul_i32 s{sP}, s{sP}, {FLN*256}
  s_and_b32 s{sq}, s2, 7
  s_lshl_b32 s{sq}, s{sq}, 1
  s_bfe_u32 s{sq+1}, s2, 0x10003
  s_and_b32 s2, s2, 0xf0
  s_or_b32 s2, s2, s{sq}
  s_or_b32 s2, s2, s{sq+1}
  s_mul_i32 s{sStart}, s2, 640013
  v_readfirstlane_b32 s{sW}, v{t0}
  s_add_u32 s{sNb}, s{sStart}, {640013+16383}
  s_add_u32 s{sStart}, s{sStart}, 16383
  s_sub_u32 s{sNp}, s{sStart}, 640013
  s_lshr_b32 s{sStart}, s{sStart}, 14
  s_lshr_b32 s{sNb}, s{sNb}, 14
  s_lshr_b32 s{sNp}, s{sNp}, 14
  s_min_u32 s{sNb}, s{sNb}, {N}
  s_sub_u32 s{sCnt}, s{sNb}, s{sNp}
  s_sub_u32 s{sNb}, s{sNb}, s{sStart}
  s_lshl_b32 s{sT}, s{sNp}, 8
  s_sub_u32 s{sNp}, s{sStart}, s{sNp}
  s_mov_b32 s{sMode}, 0
  s_mov_b32 s{sKind}, 0
  s_mov_b32 s{sFirst}, 1
  s_mov_b32 s{sAS}, {AS}
  s_mov_b32 s{sQS}, {QS}
  s_mul_i32 s{sStg}, s{sW}, {STG}
  s_add_u32 s{sStg}, s{sStg}, {L_STG}
  v_lshlrev_b32 v{vt16}, 4, v0
  s_mul_i32 s{sq}, s2, {CH*2}
  v_lshl_add_u32 v{t2}, v0, 2, s{sq}
  v_add_u32 v{t3}, 4096, v{t2}
  v_lshrrev_b32 v{t4}, 4, v{vl}
  v_lshlrev_b32 v{t0}, 1, v{t4}
  v_xor_b32 v{t0}, v{t0}, v{vl}
  v_lshlrev_b32 v{t0}, 4, v{t0}
  s_lshl_b32 s{sq}, s{sW}, 12
  v_add_u32 v{t7}, s{sq}, v{t0}
  s_mul_i32 s{sUB}, s{sW}, {4*WPITCH}
  s_add_u32 s{sUB}, s{sUB}, {L_WS}
  v_add_u32 v{t6}, 8192, v{vt16}
  v_add_u32 v{t5}, 16384, v{vt16}
  s_waitcnt lgkmcnt(0)
  {"s_add_u32 s%d, s%d, %d" % (pWS, pWS, OPT["wsb"] << 20) + chr(10) + "  s_addc_u32 s%d, s%d, 0" % (pWS+1, pWS+1) if OPT["wsb"] else ""}
  s_bitcmp1_b32 s2, 0
  s_cbranch_scc1 K_LDG
  s_cmp_ge_u32 s2, {2*G}
  s_cbranch_scc1 K_LDP""")
    if OPT["bdl"]: a(f"  s_sleep {OPT['bdl']}")
    srd(a, T0, pD, E*4)
    srd(a, T1, pS, E*4)
    a(f"  s_movk_i32 s{sq}, 0x2000")
    for r_, T in ((DD, T0), (SS_, T1)):
        a(f"""
  buffer_load_dword v{r_}, v{t2}, {s(T,4)}, 0 offen
  buffer_load_dword v{r_+1}, v{t2}, {s(T,4)}, 0 offen offset:2048
  buffer_load_dword v{r_+2}, v{t3}, {s(T,4)}, 0 offen
  buffer_load_dword v{r_+3}, v{t3}, {s(T,4)}, 0 offen offset:2048
  buffer_load_dword v{r_+4}, v{t2}, {s(T,4)}, s{sq} offen""")
    if OPT["claim"] & 2:
        srd(a, T2, pWS, NB*BSTR, add=WS_CELL)
        a(f"""
  v_lshrrev_b32 v{t4}, 3, v0
  s_mov_b32 s{sq}, {BSTR}
  v_mul_u32_u24 v{t4}, s{sq}, v{t4}
  v_and_b32 v{t0}, 7, v0
  v_lshl_add_u32 v{t4}, v{t0}, 4, v{t4}
  s_lshl_b32 s{sq}, s2, 6
  v_mov_b32 v{PF}, 0
  v_mov_b32 v{PF+1}, 0
  v_mov_b32 v{PF+2}, 0
  v_mov_b32 v{PF+3}, 0""")
        for j in range(4):
            a(f"  buffer_store_dwordx4 {v(PF,4)}, v{t4}, {s(T2,4)}, s{sq} offen sc1\n  s_add_u32 s{sq}, s{sq}, {64*BSTR}")
    a("  s_branch K_LD3")
    def wdma(T):
        for q in range(4):
            a(f"  s_add_u32 m0, s{sUB}, {64*q}\n  s_nop 0\n  buffer_load_dwordx4 v{t7}, {s(T,4)}, 0 offen offset:{1024*q} lds")
    a(f"""
K_LDX:
  s_lshl_b32 s{sq}, s{sStart}, 8
  s_lshl_b32 s{sq+1}, s{sNb}, 8""")
    srd(a, T2, pX, f"s{sq+1}", addreg=sq)
    a(f"""
  buffer_load_dwordx4 {v(XL,4)}, v{vt16}, {s(T2,4)}, 0 offen
  buffer_load_dwordx4 {v(XL+4,4)}, v{t6}, {s(T2,4)}, 0 offen
  s_branch K_LD3
K_LDP:
  s_cmp_eq_u32 s2, {2*G}
  s_cselect_b32 s{T1}, s{pWM}, s{pWU}
  s_cselect_b32 s{T1+1}, s{pWM+1}, s{pWU+1}
  s_cmp_eq_u32 s2, {2*G+2}
  s_cselect_b32 s{sq}, 0, 32768
  s_add_u32 s{T1}, s{T1}, s{sq}
  s_addc_u32 s{T1+1}, s{T1+1}, 0
  s_mov_b32 s{T1+2}, 32768
  s_mov_b32 s{T1+3}, 0x20000""")
    wdma(T1)
    srd(a, T0, pWM, 16*256, add=256*256)
    a(f"""
  v_and_b32 v{t0}, 31, v{vl}
  v_lshrrev_b32 v{t1}, 5, v{vl}
  v_lshlrev_b32 v{t1}, 11, v{t1}
  v_lshl_add_u32 v{t1}, v{t0}, 1, v{t1}
  s_and_b32 s{sq}, s{sW}, 3
  s_lshl_b32 s{sq}, s{sq}, 6""")
    for jj in range(8):
        a(f"  buffer_load_ushort v{D0+jj}, v{t1}, {s(T0,4)}, s{sq} offen offset:{jj*256}")
    a(f"""
  s_branch K_LDX
K_LDG:
  s_lshl_b32 s{sCnt}, s{sCnt}, 8""")
    srd(a, T0, pX, f"s{sCnt}", addreg=sT)
    srd(a, T1, pWM, 128*256)
    if OPT["wfirst"]: wdma(T1)
    a(f"""
  buffer_load_dwordx4 {v(GX,4)}, v{vt16}, {s(T0,4)}, 0 offen
  buffer_load_dwordx4 {v(GX+4,4)}, v{t6}, {s(T0,4)}, 0 offen
  buffer_load_dwordx4 {v(GX+8,4)}, v{t5}, {s(T0,4)}, 0 offen""")
    if not OPT["wfirst"]: wdma(T1)
    if OPT["claim"] & 1:
        srd(a, T2, pWS, f"s{sCnt}", add=WS_P, addreg=sT)
        for r_ in (vt16, t6, t5):
            a(f"  buffer_store_dwordx4 {v(PF,4)}, v{r_}, {s(T2,4)}, 0 offen sc1")
    a(f"""
K_LD3:""")
    if OPT["claim"] & 4:
        a(f"  s_lshl_b32 s{sq}, s{sStart}, 8\n  s_lshl_b32 s{sq+1}, s{sNb}, 8")
        srd(a, SO, pWS, f"s{sq+1}", add=WS_P, addreg=sq)
        a(f"""
  s_mul_i32 s{sq}, s{sW}, 1280
  v_lshl_add_u32 v{t1}, v{vl}, 7, s{sq}
  v_mov_b32 v{t0}, 0
  s_mov_b64 exec, 0x3ff
  buffer_atomic_or v{t0}, v{t1}, {s(SO,4)}, 0 offen
  s_mov_b64 exec, -1""")
    a(f"""
  s_add_u32 s{SF}, s{pWS}, {WS_FLAG}
  s_addc_u32 s{SF+1}, s{pWS+1}, 0
  s_load_dword s{sTag}, s[{SF}:{SF+1}], {FNON}
  s_mov_b32 s{SF+2}, {FNON+4}
  s_mov_b32 s{SF+3}, 0x20000
  v_lshrrev_b32 v{t1}, 2, v0
  v_and_b32 v{t4}, 3, v0
  v_lshlrev_b32 v{t4}, 4, v{t4}
  v_lshl_add_u32 v{vcell}, v{t1}, {6 if OPT['half'] == 2 else 7}, v{t4}
  s_mov_b32 s{sq}, {CH*32}
  v_mul_u32_u24 v{vebase}, s{sq}, v{t1}""")
    a(f"""
  v_mov_b32 v{CV}, 0
  v_mov_b32 v{CV+1}, 0
  v_mov_b32 v{CV+2}, 0
  v_mov_b32 v{CV+3}, 0
  v_add_u32 v{t0}, {L_CIMG}, v{vt16}""")
    a(f"  s_bitcmp1_b32 s2, 0\n  s_cbranch_scc1 K_NOZ")
    for j in range(4):
        a(f"  ds_write_b128 v{t0}, {v(CV,4)} offset:{j*8192}")
    a(f"  s_cmp_lg_u32 s{sW}, 0\n  s_cbranch_scc1 K_NOZ\n  ds_write_b128 v{t0}, {v(CV,4)} offset:32768")
    a("K_NOZ:")
    for j in range(5):
        a(f"  ds_write_b128 v{vt16}, {v(CV,4)} offset:{L_GN + j*8192}")
    a(f"""
  v_cmp_gt_u32 vcc, {(L_Q-L_GN-5*8192)//16}, v0
  s_and_saveexec_b64 {s(sEx,2)}, vcc
  ds_write_b128 v{vt16}, {v(CV,4)} offset:{L_GN + 5*8192}
  s_mov_b64 exec, {s(sEx,2)}""")
    def prefill():
        a(f"""
  v_mov_b32 v{CV+4}, {PADS}
  v_mov_b32 v{CV+5}, {PADE}
  v_mov_b32 v{CV+6}, {PADS}
  v_mov_b32 v{CV+7}, {PADE}
  ds_write_b128 v{vt16}, {v(CV+4,4)}
  ds_write_b128 v{vt16}, {v(CV+4,4)} offset:8192
  v_cmp_gt_u32 vcc, {(L_GN-16384)//16}, v0
  s_and_saveexec_b64 {s(sEx,2)}, vcc
  ds_write_b128 v{vt16}, {v(CV+4,4)} offset:16384
  s_mov_b64 exec, {s(sEx,2)}""")
    prefill()
    a(f"  s_mul_i32 s{sq}, s2, {BSTR}\n  s_lshl_b32 s{sq+1}, s{sStart}, 8\n  s_lshl_b32 s{sK}, s{sNb}, 8")
    srd(a, SC, pWS, G*CELLB // (2 if OPT['half'] == 2 else 1), add=WS_CELL, addreg=sq)
    srd(a, SP, pWS, (N+1)*256)
    srd(a, SE, pE, E*32)
    srd(a, SW, pWS, WF_SIZE, add=WS_WF)
    srd(a, SO, pO, f"s{sK}", addreg=sq+1)
    srd(a, SV, pWS, G*OVSTR, add=WS_OVF)
    a(f"""
  v_mov_b32 v{vone}, 1
  v_mov_b32 v{MAC}, 0
  v_mov_b32 v{MAC+1}, 0
  v_and_b32 v{t0}, 15, v{vl}                 ; l&15
  v_bfe_u32 v{t1}, v{vl}, 4, 1               ; r4&1
  v_lshlrev_b32 v{t2}, 3, v{t1}
  v_xor_b32 v{t2}, v{t0}, v{t2}
  v_lshlrev_b32 v{vchunk}, 4, v{t2}
  v_and_b32 v{t2}, 1, v{vl}
  v_xor_b32 v{t2}, v{t2}, v{t1}
  v_lshlrev_b32 v{vechunk}, 4, v{t2}
  v_lshrrev_b32 v{t2}, 4, v{vl}
  v_lshlrev_b32 v{t2}, 6, v{t2}
  v_lshrrev_b32 v{t4}, 1, v{t0}
  v_lshl_add_u32 v{t2}, v{t4}, 3, v{t2}
  s_lshl_b32 s{sq}, s{sW}, 8
  v_add_u32 v{vent}, s{sq}, v{t2}
  v_bfe_u32 v{t2}, v{vl}, 2, 1               ; h
  v_and_b32 v{t4}, 1, v{vl}                  ; xy
  v_lshl_add_u32 v{t5}, v{t2}, 1, v{t4}      ; r4
  v_bfe_u32 v{t6}, v{vl}, 3, 2
  v_bfe_u32 v{t7}, v{vl}, 1, 1
  v_lshl_add_u32 v{t6}, v{t6}, 1, v{t7}      ; j
  v_lshl_add_u32 v{t7}, v{t5}, 3, v{t6}      ; q = 8 r4 + j
  v_lshlrev_b32 v{t7}, 3, v{t7}
  v_add_u32 v{vrow}, s{sq}, v{t7}
  v_lshrrev_b32 v{t7}, 5, v{vl}              ; hh
  v_mul_u32_u24 v{vAlo}, 1040, v{t6}
  v_lshl_add_u32 v{vAlo}, v{t5}, 8, v{vAlo}
  v_lshl_add_u32 v{vAlo}, v{t7}, 4, v{vAlo}
  v_add_u32 v{vAlo}, s{sStg}, v{vAlo}
  v_xor_b32 v{vAhi}, 1, v{t4}
  v_lshl_add_u32 v{vAhi}, v{vAhi}, 7, v{vAlo}
  v_lshl_add_u32 v{vAlo}, v{t4}, 7, v{vAlo}
  v_xor_b32 v{vEF}, v{t7}, v{t4}
  v_lshl_add_u32 v{vEF}, v{t6}, 1, v{vEF}
  v_lshl_add_u32 v{vEF}, v{t5}, 4, v{vEF}
  v_lshlrev_b32 v{vEF}, 4, v{vEF}
  s_add_u32 s{sq+1}, s{sStg}, 8320
  v_add_u32 v{vEF}, s{sq+1}, v{vEF}
  v_bfe_u32 v{t5}, v{vl}, 4, 1               ; o
  v_lshlrev_b32 v{t5}, 4, v{t5}
  v_mov_b32 v{t6}, 0x3f80
  v_lshlrev_b32 v{t5}, v{t5}, v{t6}
  v_cmp_eq_u32 vcc, v{t7}, v{t2}
  s_nop 1
  v_cndmask_b32 v{t5}, 0, v{t5}, vcc
  v_cmp_eq_u32 vcc, 0, v{t4}
  s_nop 1
  v_cndmask_b32 v{PAT}, 0, v{t5}, vcc
  v_cndmask_b32 v{PAT+1}, v{t5}, 0, vcc
  s_lshl_b32 s{sq}, s{sW}, 5
  s_add_u32 s{sq+1}, s{sq}, {L_GN}
  v_lshlrev_b32 v{vga}, 4, v{t7}
  v_add_u32 v{vga}, s{sq+1}, v{vga}
  v_and_b32 v{t2}, 12, v{vl}
  v_add_u32 v{vgq}, v{vga}, v{t2}
  v_and_b32 v{t2}, 3, v{vl}
  v_lshlrev_b32 v{t2}, 3, v{t2}
  v_lshl_add_u32 v{t2}, v{t1}, 5, v{t2}
  v_add_u32 v{vqlane}, {L_Q}, v{t2}
  v_and_b32 v{t2}, 31, v{vl}
  v_lshlrev_b32 v{t4}, 3, v{t2}
  v_add_u32 v{vacl}, {L_ACC}, v{t4}
  v_lshrrev_b32 v{t4}, 4, v{vl}              ; g
  v_mul_u32_u24 v{vxb}, {XS}, v{t0}
  v_lshl_add_u32 v{vxb}, v{t4}, 4, v{vxb}
  v_add_u32 v{vxb}, {L_X}, v{vxb}
  v_mul_u32_u24 v{vqw}, {QS}, v{t0}
  v_lshl_add_u32 v{vqw}, v{t4}, 3, v{vqw}
  s_add_u32 s{sq+1}, s{sq}, {L_Q}
  v_add_u32 v{vqw}, s{sq+1}, v{vqw}
  v_mul_u32_u24 v{vqa}, {2*WPITCH}, v{t4}
  v_bfe_u32 v{t5}, v{vl}, 2, 2
  v_lshl_add_u32 v{vqa}, v{t5}, 8, v{vqa}
  v_xor_b32 v{t5}, s{sW}, v{t5}
  v_lshl_add_u32 v{vqa}, v{t5}, 5, v{vqa}
  v_and_b32 v{t5}, 3, v{vl}
  v_lshl_add_u32 v{vqa}, v{t5}, 3, v{vqa}
  v_add_u32 v{vqa}, {L_WS}, v{vqa}
  v_and_b32 v{t4}, 1, v{vl}
  v_lshlrev_b32 v{t4}, 4, v{t4}
  v_lshlrev_b32 v{t4}, v{t4}, v{t6}
  v_bfe_u32 v{t5}, v{vl}, 1, 4
  v_lshlrev_b32 v{t7}, 2, v{t7}
  v_sub_u32 v{t5}, v{t5}, v{t7}""")
    for i in range(4):
        a(f"  v_cmp_eq_u32 vcc, {i}, v{t5}\n  s_nop 1\n  v_cndmask_b32 v{I0+i}, 0, v{t4}, vcc")
        a(f"  v_cmp_eq_u32 vcc, {8+i}, v{t5}\n  s_nop 1\n  v_cndmask_b32 v{I1+i}, 0, v{t4}, vcc")
    if not OPT["k8"]:
        a(f"  v_mov_b32 v{AQ+2}, 0\n  v_mov_b32 v{AQ+3}, 0")
        for t in range(4):
            a(f"  v_mov_b32 v{BQ+4*t+2}, 0\n  v_mov_b32 v{BQ+4*t+3}, 0")
    def prefetch():
        if not OPT["pf"]: return
        a(f"  s_mul_i32 s{sq}, s2, 40000\n  s_sub_u32 s{sq}, s{sq}, 4096\n  v_add_u32 v{t0}, s{sq}, v{vt16}")
        for j in range(10):
            a(f"  buffer_load_dwordx4 {v(DUM,4)}, v{t0}, {s(SE,4)}, 0 offen")
            if j < 9: a(f"  v_add_u32 v{t0}, 4096, v{t0}")
    def wtr(dst, ad):
        for st in range(4):
            for hf in range(2):
                a(f"  ds_read_b64_tr_b16 {v(dst+4*st+2*hf,2)}, v{ad} offset:{(8*st+hf)*WPITCH}")
    def own_x(nyounger):
        a(f"""
  v_lshrrev_b32 v{t0}, 4, v0
  v_lshl_add_u32 v{t0}, v{t0}, 5, v{vt16}
  v_add_u32 v{t0}, {L_X}, v{t0}
  s_waitcnt vmcnt({nyounger})
  ds_write_b128 v{t0}, {v(XL,4)}
  s_mov_b32 exec_lo, s{sLo2}
  s_mov_b32 exec_hi, s{sLo2}
  ds_write_b128 v{t0}, {v(XL+4,4)} offset:{32*XS}
  s_mov_b64 exec, -1""")
    a(f"""
  s_cmp_lt_u32 s{sW}, 2
  s_cselect_b32 s{sLo2}, -1, 0
  s_lshr_b32 s{sq}, s2, {1+FSH}
  s_lshl_b32 s{sq}, s{sq}, 8
  s_bfe_u32 s{sq+1}, s2, {hex((FSH<<16)|1)}
  s_lshl_b32 s{sq+1}, s{sq+1}, 2
  s_add_u32 s{sq}, s{sq}, s{sq+1}
  s_and_b32 s{sq+1}, s2, 1
  s_mul_i32 s{sq+1}, s{sq+1}, {FHALF}
  s_add_u32 s{sq}, s{sq}, s{sq+1}
  v_mul_u32_u24 v{vgn1}, {FLN*256}, v{vl}
  v_add_u32 v{vgn1}, s{sq}, v{vgn1}
  v_lshrrev_b32 v{t2}, {FSH-1}, v{vl}
  v_lshlrev_b32 v{t2}, 8, v{t2}
  v_and_b32 v{t3}, {(1<<(FSH-1))-1}, v{vl}
  v_lshl_add_u32 v{t2}, v{t3}, 3, v{t2}
  v_add_u32 v{vsrow}, s{sP}, v{t2}
  s_mov_b32 s{sK}, {NLOG2E}
  s_mov_b32 s{sK+1}, {NLOG2E}
  s_waitcnt lgkmcnt(0)
  s_add_u32 s{sTag}, s{sTag}, 1
  s_max_u32 s{sTag}, s{sTag}, 1
  s_bitcmp1_b32 s2, 0
  s_cbranch_scc1 K_GEMM
  s_cmp_ge_u32 s2, {2*G}
  s_cbranch_scc1 K_PREP
  s_mov_b32 s{sq}, {MAGIC}
  v_lshlrev_b32 v{t7}, 6, v0
  v_add_u32 v{t7}, {1<<18}, v{t7}
  s_barrier
  s_waitcnt vmcnt({5+NCC})""")
    stamp(a, 1)
    for j in range(5):
        a(f"""
  v_mul_u32_u24 v{B4+j}, s{sq}, v{DD+j}
  v_lshrrev_b32 v{B4+j}, 18, v{B4+j}
  v_and_b32 v{B4+j}, 0x3fc, v{B4+j}
  v_add_u32 v{t0+j}, {L_BCNT}, v{B4+j}
  ds_add_rtn_u32 v{RK+j}, v{t0+j}, v{vone}""")
    def claim_pair():
        a(f"  s_lshl_b32 s{sT}, s{sStart}, 8\n  s_sub_u32 s{sCnt}, {N*256}, s{sT}")
        srd(a, T1, pWS, f"s{sCnt}", add=WS_P, addreg=sT)
        a(f"""
  s_mul_i32 s{sT}, s{sW}, 2560
  v_lshl_add_u32 v{DO}, v{vl}, 7, s{sT}
  v_mov_b32 v{DO+1}, 0
  s_mov_b64 exec, 0xfffff
  buffer_atomic_or v{DO+1}, v{DO}, {s(T1,4)}, 0 offen
  s_mov_b64 exec, -1""")
    if OPT["claim"] & 16: claim_pair()
    a(f"  s_waitcnt vmcnt({NCC + (1 if OPT['claim'] & 16 else 0)})")
    if OPT["claim"] & 8: claim_pair()
    for j in range(5):
        a(f"""
  v_lshl_add_u32 v{SS_+j}, v{SS_+j}, 18, v{t7}
  v_and_or_b32 v{SS_+j}, v{DD+j}, 63, v{SS_+j}
  v_lshlrev_b32 v{CA+j}, 5, v{B4+j}
  v_add_u32 v{CA+j}, {L_CIMG}, v{CA+j}""")
        if j < 4: a(f"  v_add_u32 v{t7}, {512<<6}, v{t7}")
    srd(a, T2, pWS, NB*BSTR if not OPT["dbg"] & 4 else 0, add=WS_CELL + (0x2000000 if OPT["dbg"] & 1 else 0))
    a(f"""
  v_lshrrev_b32 v{t4}, 3, v0
  s_mov_b32 s{sq}, {BSTR}
  v_mul_u32_u24 v{t4}, s{sq}, v{t4}
  v_and_b32 v{t5}, 7, v0
  v_lshl_add_u32 v{t4}, v{t5}, 4, v{t4}
  s_lshl_b32 s{sq}, s2, {5 if OPT['half'] == 2 else 6}
  s_mov_b64 {s(sBad,2)}, 0
  s_waitcnt lgkmcnt(0)""")
    for j in range(5):
        a(f"""
  v_mul_u32_u24 v{t1}, 37, v{RK+j}
  v_lshl_add_u32 v{t0}, v{RK+j}, 2, v{CA+j}
  v_lshrrev_b32 v{t1}, 8, v{t1}
  v_cmp_le_u32 vcc, {CAP-1}, v{RK+j}
  v_lshl_add_u32 v{t0}, v{t1}, 2, v{t0}
  s_or_b64 {s(sBad,2)}, {s(sBad,2)}, vcc
  s_andn2_b64 exec, exec, vcc
  ds_write_b32 v{t0}, v{SS_+j}
  s_mov_b64 exec, -1""")
    a(f"""
  v_add_u32 v{t0}, {L_CIMG}, v{vt16}
  v_mov_b32 v{t2}, {L_FLG+4}
  s_cmp_eq_u64 {s(sBad,2)}, 0
  s_cbranch_scc1 K_NOFULL
  ds_write_b32 v{t2}, v{vone}
K_NOFULL:
  s_waitcnt lgkmcnt(0)
  s_barrier""")
    stamp(a, 2)
    a(f"  ds_read_b32 v{t2}, v{t2}\nK_OVFDONE:")
    for j in range(4):
        a(f"  ds_read_b128 {v(CP+4*j,4)}, v{t0} offset:{8192*j}")
    a(f"""
  s_waitcnt vmcnt({2 if OPT['claim'] & 2 else 63}) lgkmcnt(4)
  v_cmp_ne_u32 vcc, 0, v{t2}
  s_cbranch_vccnz K_OVF""")
    for j in range(4):
        a(f"""
  s_mov_b32 exec_lo, 0xaaaaaaaa
  s_mov_b32 exec_hi, 0xaaaaaaaa
  s_waitcnt lgkmcnt({3-j})
  v_mov_b32 v{CP+4*j+3}, s{sTag}
  s_mov_b64 exec, -1
  {"s_mov_b32 exec_lo, 0x0f0f0f0f" + chr(10) + "  s_mov_b32 exec_hi, 0x0f0f0f0f" if OPT["half"] else ""}
  buffer_store_dwordx4 {v(CP+4*j,4)}, v{t4}, {s(T2,4)}, s{sq} offen {STF}
  s_mov_b64 exec, -1
  s_add_u32 s{sq}, s{sq}, {64*BSTR}""")
    a(f"  s_lshl_b32 s{sq}, s{sStart}, 8\n  s_lshl_b32 s{sq+1}, s{sNb}, 8")
    srd(a, T2, pX, f"s{sq+1}", addreg=sq)
    a(f"""
  v_add_u32 v{t6}, 8192, v{vt16}
  buffer_load_dwordx4 {v(XL,4)}, v{vt16}, {s(T2,4)}, 0 offen
  buffer_load_dwordx4 {v(XL+4,4)}, v{t6}, {s(T2,4)}, 0 offen""")
    own_x(0)
    a(f"""
  {"s_sleep %d" % OPT["slpa"] if OPT["slpa"] else ""}
  s_branch K_PST
K_GW:
  {"s_sleep %d" % OPT["slpb"] if OPT["slpb"] else ""}
  s_branch K_PST
K_GEMM:
  ; ---------------- P gemm role: rows of this bucket and the one before ----------------""")
    if OPT["touch"]:
        a(f"""
  s_cmp_lg_u32 s{sW}, 0
  s_cbranch_scc1 K_NOTOUCH
  s_waitcnt vmcnt(0)
  s_mov_b64 exec, {FMASK}
  buffer_load_dword v{DUM}, v{vgn1}, {s(SF,4)}, 0 offen sc1
  s_mov_b64 exec, -1
K_NOTOUCH:""")
    a(f"""
  s_mul_i32 s{sq}, s{sNp}, {XS}
  s_sub_u32 s{sq}, {L_X}, s{sq}
  v_lshrrev_b32 v{t0}, 4, v0
  v_lshl_add_u32 v{t0}, v{t0}, 5, v{vt16}
  v_add_u32 v{t3}, s{sq}, v{t0}
  s_cmp_lt_u32 s{sW}, 4
  s_cselect_b32 s{sq+1}, -1, 0
  v_subrev_u32 v{t1}, {L_X}, v{vxb}
  v_add_u32 v{t1}, s{sq}, v{t1}
  s_waitcnt vmcnt({(2 if OPT['wfirst'] else 6)+NCL})
  ds_write_b128 v{t3}, {v(GX,4)}
  s_waitcnt vmcnt({(1 if OPT['wfirst'] else 5)+NCL})
  ds_write_b128 v{t3}, {v(GX+4,4)} offset:{32*XS}
  s_waitcnt vmcnt({(0 if OPT['wfirst'] else 4)+NCL})
  s_mov_b32 exec_lo, s{sq+1}
  s_mov_b32 exec_hi, s{sq+1}
  ds_write_b128 v{t3}, {v(GX+8,4)} offset:{64*XS}
  s_mov_b64 exec, -1
  v_and_b32 v{t2}, 15, v{vl}
  v_mul_u32_u24 v{t2}, {XS}, v{t2}
  v_lshrrev_b32 v{t3}, 4, v{vl}
  v_lshl_add_u32 v{t2}, v{t3}, 3, v{t2}
  s_lshl_b32 s{sq}, s{sW}, 5
  s_add_u32 s{sq}, s{sq}, {L_GP}
  v_add_u32 v{t2}, s{sq}, v{t2}
  v_add_u32 v{t0}, {L_GP - 16*XS}, v{t0}
  v_subrev_u32 v{t4}, 4096, v{vt16}""")
    srd(a, T0, pWS, f"s{sCnt}", add=WS_P + (0x2800000 if OPT["dbg"] & 2 else 0), addreg=sT)
    a(f"  s_waitcnt vmcnt({NCL}) lgkmcnt(0)\n  s_barrier")
    stamp(a, 1)
    wtr(W1F, vqa)
    XT = [PF, PF+16, EA, EB, PF]
    for nt in range(4):
        for st in range(4):
            a(f"  ds_read_b128 {v(XT[nt]+4*st,4)}, v{t1} offset:{nt*16*XS + st*64}")
    for nt in range(5):
        a(f"  s_waitcnt lgkmcnt({(12, 12, 8, 4, 0)[nt]})")
        for st in range(4):
            c = "0" if st == 0 else v(D0+4*nt, 4)
            a(f"  v_mfma_f32_16x16x32_bf16 {v(D0+4*nt,4)}, {v(W1F+4*st,4)}, {v(XT[nt]+4*st,4)}, {c}")
        if nt == 0:
            for st in range(4):
                a(f"  ds_read_b128 {v(PF+4*st,4)}, v{t1} offset:{4*16*XS + st*64}")
    for nt in range(5):
        d = D0 + 4*nt
        if nt == 4: a("  s_nop 1")
        a(f"""
  v_pk_mul_f32 {v(d,2)}, {v(d,2)}, {s(sK,2)}
  v_pk_mul_f32 {v(d+2,2)}, {v(d+2,2)}, {s(sK,2)}
  v_cvt_pk_bf16_f32 v{W3+2*nt}, v{d}, v{d+1}
  v_cvt_pk_bf16_f32 v{W3+2*nt+1}, v{d+2}, v{d+3}
  ds_write_b64 v{t2}, {v(W3+2*nt,2)} offset:{nt*16*XS}""")
    a(f"  s_waitcnt vmcnt({NA}) lgkmcnt(0)\n  s_barrier")
    stamp(a, 2)
    a(f"""
  s_cmp_lt_u32 s{sW}, 4
  s_cbranch_scc1 K_GW""")
    for j in range(5):
        a(f"  ds_read_b128 {v(PF+4*j,4)}, v{t0} offset:{j*16*XS}")
    if OPT["zt"]:
        srd(a, T1, pWS, f"s{sCnt}", add=0x1800000, addreg=sT)
        a(f"  s_waitcnt lgkmcnt(0)\n  v_mov_b32 v{t1}, v{t4}")
        for j in range(5):
            a(f"  buffer_store_dwordx4 {v(PF+4*j,4)}, v{t1}, {s(T1,4)}, 0 offen {STF}\n  v_add_u32 v{t1}, 4096, v{t1}")
        a("  s_waitcnt vmcnt(0)")
        stamp(a, 1)
    for j in range(5):
        a(f"  s_waitcnt lgkmcnt({4-j})\n  buffer_store_dwordx4 {v(PF+4*j,4)}, v{t4}, {s(T0,4)}, 0 offen {STF}")
        if j < 4: a(f"  v_add_u32 v{t4}, 4096, v{t4}")
    a(f"""
  v_mov_b32 v{t0}, {L_FLG+12}
  v_mov_b32 v{t7}, s{sTag}
  s_mov_b64 exec, 1
  s_waitcnt vmcnt(0)""")
    stamp(a, 3)
    a(f"""
  ds_add_rtn_u32 v{t0}, v{t0}, v{vone}
  s_waitcnt lgkmcnt(0)
  v_readfirstlane_b32 s{sq}, v{t0}
  s_mov_b64 exec, -1
  s_cmp_lg_u32 s{sq}, 3
  s_cbranch_scc1 K_PST
K_FLAG:
  s_mov_b64 exec, {FMASK}
  buffer_store_dword v{t7}, v{vgn1}, {s(SF,4)}, 0 offen {FLF}
  s_mov_b64 exec, -1
K_PST:""")
    def node_gemm(WA, WB=None):
        for nt in range(3):
            xf = XF + 16*(nt & 1)
            if nt == 0:
                for n2 in range(2):
                    for st in range(4):
                        a(f"  ds_read_b128 {v(XF+16*n2+4*st,4)}, v{vxb} offset:{n2*16*XS + st*64}")
            a(f"  s_waitcnt lgkmcnt({4 if nt == 0 else 5 if nt == 1 else 1})")
            q = QD if nt != 1 else SA
            for st in range(4):
                c = "0" if st == 0 else v(q, 4)
                a(f"  v_mfma_f32_16x16x32_bf16 {v(q,4)}, {v(WA+4*st,4)}, {v(xf+4*st,4)}, {c}")
            if WB is not None:
                for st in range(4):
                    c = "0" if st == 0 else v(U+4*nt, 4)
                    a(f"  v_mfma_f32_16x16x32_bf16 {v(U+4*nt,4)}, {v(WB+4*st,4)}, {v(xf+4*st,4)}, {c}")
            if nt == 0:
                for st in range(4):
                    a(f"  ds_read_b128 {v(XF+4*st,4)}, v{vxb} offset:{2*16*XS + st*64}")
            a(f"""
  s_nop 7
  v_pk_mul_f32 {v(q,2)}, {v(q,2)}, {s(sK,2)}
  v_pk_mul_f32 {v(q+2,2)}, {v(q+2,2)}, {s(sK,2)}
  v_cvt_pk_bf16_f32 v{QD+4+2*(nt&1)}, v{q}, v{q+1}
  v_cvt_pk_bf16_f32 v{QD+5+2*(nt&1)}, v{q+2}, v{q+3}""")
            if nt == 2:
                a(f"  s_mov_b32 exec_lo, 0x00ff00ff\n  s_mov_b32 exec_hi, 0x00ff00ff")
            a(f"  ds_write_b64 v{vqw}, {v(QD+4+2*(nt&1),2)} offset:{nt*16*QS}")
            if nt == 2:
                a("  s_mov_b64 exec, -1")
    assert SB == SA + 2
    def poll(lab, off):
        a(f"""
  s_cmp_lg_u32 s{sW}, 1
  s_cbranch_scc1 {lab}_D
  s_mov_b32 s{sq}, 0
  s_mov_b32 s{sq+1}, {off}
  {"s_sleep %d" % OPT["slp0"] if OPT["slp0"] and off == 0 else ""}
{lab}:
  buffer_load_dwordx2 {v(DUM,2)}, v{vsrow}, {s(SF,4)}, s{sq+1} offen {PLF}
  s_add_u32 s{sq}, s{sq}, 1
  s_waitcnt vmcnt(0)
  v_cmp_ne_u32 vcc, s{sTag}, v{DUM}
  v_cmp_ne_u32 {s(sBad,2)}, s{sTag}, v{DUM+1}
  s_or_b64 vcc, vcc, {s(sBad,2)}
  s_cbranch_scc0 {lab}_D
  {"s_sleep %d" % OPT["slp"] if OPT["slp"] else ""}
  s_cmp_lt_u32 s{sq}, 0x8000
  s_cbranch_scc1 {lab}
{lab}_D:""")
    stamp(a, 5)
    nld = 16 if OPT["lo"] else 12
    a(f"""
  s_lshl_b32 s{sTmp}, s{sW}, 12
  s_add_u32 s{sTmp+1}, s{sTmp}, {WF_UT}
  s_add_u32 s{sUB}, s{sTmp}, {WF_UB}
  s_mov_b32 s{sTmp+2}, {WF_3H}
  s_mov_b32 s{sTmp+3}, {WF_3L}
  s_mov_b32 s{sOV}, {0xaaaaaaaa if not OPT["dbg"] & 5 else 0}
  s_cmp_eq_u32 s{sW}, 7
  s_cselect_b32 s{sOV+1}, {0xaaaaa if not OPT["dbg"] & 5 else 0}, s{sOV}
  v_min_u32 v{t4}, 2, v{vl}
  s_lshl_b32 s{sq}, s2, 7
  v_lshl_add_u32 v{t4}, v{t4}, 2, s{sq}
  v_mov_b32 v{t5}, s{sTag}
  s_mov_b32 s{sq}, 0
  {"s_sleep %d" % OPT["slp0"] if OPT["slp0"] else ""}
""")
    wl = [f"  buffer_load_dwordx4 {v(W2F+4*st,4)}, v{t6}, {s(SW,4)}, s{sTmp} offen offset:{st*1024} sc1" for st in range(4)]
    wl += [f"  buffer_load_dwordx4 {v(WUT+4*st,4)}, v{t6}, {s(SW,4)}, s{sTmp+1} offen offset:{st*1024} sc1" for st in range(4)]
    wl += [f"  buffer_load_dwordx4 {v(W3+4*st,4)}, v{t6}, {s(SW,4)}, s{sTmp+2} offen offset:{st*1024} sc1" for st in range(4)]
    if OPT["lo"]:
        wl += [f"  buffer_load_dwordx4 {v(W3L+4*st,4)}, v{t6}, {s(SW,4)}, s{sTmp+3} offen offset:{st*1024} sc1" for st in range(4)]
    a(f"""
  v_lshlrev_b32 v{t6}, 4, v{vl}
  s_mov_b32 s{sOV+6}, 0
K_CPOLL:
  buffer_load_dwordx4 {v(REC,4)}, v{vcell}, {s(SC,4)}, 0 offen sc1
  {"buffer_load_dwordx4 %s, v%d, %s, 0 offen offset:64 sc1" % (v(REC+4,4), vcell, s(SC,4)) if not OPT["half"] else chr(10).join(["v_mov_b32 v%d, 0" % (REC+4+i) for i in range(3)] + ["v_mov_b32 v%d, s%d" % (REC+7, sTag)])}
  s_cmp_lg_u32 s{sOV+6}, 0
  s_cbranch_scc1 K_CPOLL1
  buffer_load_dword v{t5}, v{t4}, {s(SF,4)}, 0 offen sc1
K_CPOLL1:
  s_add_u32 s{sq}, s{sq}, 1
  s_waitcnt vmcnt(0)
  v_cmp_ne_u32 vcc, s{sTag}, v{REC+3}
  v_cmp_ne_u32 {s(sBad,2)}, s{sTag}, v{REC+7}
  s_or_b64 {s(sBad,2)}, vcc, {s(sBad,2)}
  v_cmp_ne_u32 vcc, s{sTag}, v{t5}
  s_and_b64 {s(sBad,2)}, {s(sBad,2)}, {s(sOV,2)}
  s_or_b64 {s(sEx,2)}, {s(sBad,2)}, vcc
  s_cbranch_scc0 K_CPOLLD
  s_cbranch_vccnz K_CPOLL2
  s_cmp_lg_u32 s{sOV+6}, 0
  s_cbranch_scc1 K_CPOLL2
  s_mov_b32 s{sOV+6}, 1""")
    if OPT["stamp"] and OPT["s0st"]: a("  s_memrealtime s[86:87]")
    for x in wl: a(x)
    a(f"""
K_CPOLL2:
  {"s_sleep %d" % OPT["slp"] if OPT["slp"] else ""}
  s_cmp_lt_u32 s{sq}, 0x8000
  s_cbranch_scc1 K_CPOLL
K_CPOLLD:
  s_mov_b32 exec_lo, 0xaaaaaaaa
  s_mov_b32 exec_hi, 0xaaaaaaaa
  v_mov_b32 v{REC+3}, 0
  v_mov_b32 v{REC+7}, 0
  s_mov_b64 exec, -1""")
    stamp(a, 6)
    NR = 8
    a(f"""
K_PHASE1:
  v_cmp_le_u32 vcc, 0xfffc0000, v{REC+NR-2}
  s_cbranch_vccz K_NOMARK
  s_and_saveexec_b64 {s(sEx,2)}, vcc
  v_lshrrev_b32 v{t0}, 2, v0                 ; producer
  v_lshrrev_b32 v{t1}, 5, v{t0}
  v_lshlrev_b32 v{t1}, 2, v{t1}
  v_lshlrev_b32 v{t0}, v{t0}, v{vone}
  ds_or_b32 v{t1}, v{t0} offset:{L_FLG+32}
  v_mov_b32 v{REC+NR-2}, 0
  s_mov_b64 exec, {s(sEx,2)}
K_NOMARK:""")
    for k in range(NR):
        if k == 4:
            a(f"""
  v_or3_b32 v{t3}, v{REC+k}, v{REC+k+1}, v{REC+k+2}
  v_or_b32 v{t3}, v{t3}, v{REC+k+3}
  v_cmp_ne_u32 vcc, 0, v{t3}
  s_cbranch_vccz K_P1E""")
        a(f"""
  v_lshlrev_b32 v{NOD+k}, 2, v{REC+k}
  v_and_b32 v{NOD+k}, 0xfc, v{NOD+k}
  v_cmpx_ne_u32 vcc, 0, v{REC+k}
  ds_add_rtn_u32 v{RNK+k}, v{NOD+k}, v{vone} offset:{L_CNT}
  s_mov_b64 exec, -1""")
    a(f"""
K_P1E:
  s_cmp_lg_u32 s{sOV+6}, 0
  s_cbranch_scc1 K_NOWL
  s_mov_b32 s{sOV+6}, 1""")
    if OPT["stamp"] and OPT["s0st"]: a("  s_memrealtime s[86:87]")
    for x in wl: a(x)
    a(f"""
K_NOWL:
  v_lshlrev_b32 v{t0}, 2, v{vl}
  v_subrev_u32 v{t4}, s{sStart}, v{vl}
  v_and_b32 v{t4}, 63, v{t4}
  s_waitcnt lgkmcnt(0)""")
    fstamp(a, 1)
    a(f"""
  s_barrier""")
    fstamp(a, 2)
    a(f"""
  ds_read_b32 v{t1}, v{t0} offset:{L_CNT}
  s_waitcnt lgkmcnt(0)
  v_add_u32 v{t1}, 3, v{t1}
  v_bfe_u32 v{t5}, v{t1}, 2, 1               ; left-over quad
  v_lshrrev_b32 v{t6}, 3, v{t1}
  v_lshl_or_b32 v{t1}, v{t5}, 16, v{t6}
  v_mov_b32 v{t2}, v{t1}
  s_nop 1
  v_add_u32_dpp v{t2}, v{t2}, v{t2} row_shr:1 row_mask:0xf bank_mask:0xf
  s_nop 1
  v_add_u32_dpp v{t2}, v{t2}, v{t2} row_shr:2 row_mask:0xf bank_mask:0xf
  s_nop 1
  v_add_u32_dpp v{t2}, v{t2}, v{t2} row_shr:4 row_mask:0xf bank_mask:0xf
  s_nop 1
  v_add_u32_dpp v{t2}, v{t2}, v{t2} row_shr:8 row_mask:0xf bank_mask:0xf
  s_nop 1
  v_add_u32_dpp v{t2}, v{t2}, v{t2} row_bcast:15 row_mask:0xa bank_mask:0xf
  s_nop 1
  v_add_u32_dpp v{t2}, v{t2}, v{t2} row_bcast:31 row_mask:0xc bank_mask:0xf
  s_nop 1
  v_readlane_b32 s{sT}, v{t2}, 63
  v_sub_u32 v{t1}, v{t2}, v{t1}
  s_lshr_b32 s{sq+1}, s{sT}, 16
  s_and_b32 s{sCO}, s{sT}, 0xffff
  s_lshl_b32 s{sq}, s{sCO}, 1                ; quads in the groups of eight
  s_lshr_b32 s{sCO}, s{sCO}, 2
  s_add_u32 s{sT}, s{sq}, s{sq+1}
  s_add_u32 s{sT}, s{sT}, 7
  s_lshr_b32 s{sT}, s{sT}, 3
  v_lshrrev_b32 v{t2}, 16, v{t1}
  v_add_u32 v{t2}, s{sq}, v{t2}              ; quad slot of the left-over quad
  v_and_b32 v{t1}, 0xffff, v{t1}
  v_lshl_or_b32 v{t0}, v{t6}, 16, v{t1}
  v_lshlrev_b32 v{t0}, 3, v{t0}              ; 8*start8 | 8*n8 << 16
  v_lshlrev_b32 v{t7}, 1, v{t6}
  v_sub_u32 v{t7}, v{t2}, v{t7}
  v_lshlrev_b32 v{t7}, 2, v{t7}              ; position base of the left-over quad
  s_cmp_gt_u32 s{sT}, {CAPB}
  s_cbranch_scc1 K_SPLIT""")
    fstamp(a, 3)
    for k0 in (0, 4):
        if k0:
            a(f"""
  v_or3_b32 v{t3}, v{REC+k0}, v{REC+k0+1}, v{REC+k0+2}
  v_or_b32 v{t3}, v{t3}, v{REC+k0+3}
  v_cmp_ne_u32 vcc, 0, v{t3}
  s_cbranch_vccz K_P2E""")
        for k in range(k0, k0+4):
            a(f"  ds_bpermute_b32 v{PF+24+(k&3)}, v{NOD+k}, v{t7}")
            a(f"  ds_bpermute_b32 v{NOD+k}, v{NOD+k}, v{t0}")
        for k in range(k0, k0+4):
            e = PF + 16 + 2*(k & 3)
            a(f"""
  v_lshrrev_b32 v{e}, 10, v{REC+k}
  v_and_b32 v{e}, {hex(0xffffff00 if not OPT['hot'] else 0x1f00)}, v{e}
  v_bfe_u32 v{e+1}, v{REC+k}, 6, 12
  v_lshl_add_u32 v{e+1}, v{e+1}, 5, v{vebase}""")
            if OPT["hot"]: a(f"  v_and_b32 v{e+1}, 0xfe0, v{e+1}")
        a("  s_waitcnt lgkmcnt(0)")
        for k in range(k0, k0+4):
            a(f"  v_cmp_lt_u32_sdwa {s(8+2*(k&3),2)}, v{RNK+k}, v{NOD+k} src0_sel:DWORD src1_sel:WORD_1")
        for k in range(k0, k0+4):
            a(f"  v_and_b32 v{NOD+k}, 0xffff, v{NOD+k}")
        for k in range(k0, k0+4):
            a(f"  v_cndmask_b32 v{NOD+k}, v{PF+24+(k&3)}, v{NOD+k}, {s(8+2*(k&3),2)}")
        for k in range(k0, k0+4):
            e = PF + 16 + 2*(k & 3)
            a(f"""
  v_add_lshl_u32 v{NOD+k}, v{NOD+k}, v{RNK+k}, 3
  v_cmpx_ne_u32 vcc, 0, v{REC+k}
  ds_write_b64 v{NOD+k}, {v(e,2)}
  s_mov_b64 exec, -1""")
    a(f"""
K_P2E:""")
    fstamp(a, 5)
    a(f"""
  v_lshlrev_b32 v{t2}, 2, v{t2}
  v_cmpx_ne_u32 vcc, 0, v{t5}
  ds_write_b32 v{t2}, v{t4} offset:{L_GN}
  s_mov_b64 exec, -1
  v_add_lshl_u32 v{t2}, v{t1}, v{t6}, 3
  v_lshl_add_u32 v{t1}, v{t1}, 1, s{sW}
  v_lshlrev_b32 v{t1}, 2, v{t1}
K_GNL:
  v_cmpx_lt_u32 vcc, v{t1}, v{t2}
  ds_write_b32 v{t1}, v{t4} offset:{L_GN}
  v_add_u32 v{t1}, 32, v{t1}
  v_cmpx_lt_u32 vcc, v{t1}, v{t2}
  ds_write_b32 v{t1}, v{t4} offset:{L_GN}
  v_add_u32 v{t1}, 32, v{t1}
  v_cmpx_lt_u32 vcc, v{t1}, v{t2}
  s_cbranch_execnz K_GNL
  s_mov_b64 exec, -1
  s_add_u32 s{sCnt}, s{sT}, 7
  s_sub_u32 s{sCnt}, s{sCnt}, s{sW}
  s_lshr_b32 s{sCnt}, s{sCnt}, 3
  s_add_u32 s{sCO}, s{sCO}, 7
  s_sub_u32 s{sCO}, s{sCO}, s{sW}
  s_lshr_b32 s{sCO}, s{sCO}, 3
  {("s_mov_b32 s%d, 40" % sCnt + chr(10) + "  s_movk_i32 s%d, 320" % sT + chr(10) + "  s_mov_b32 s%d, 40" % sCO) if OPT["bench"] else ""}
""")
    stamp(a, 4)
    a(f"""
  s_cmp_eq_u32 s{sFirst}, 0
  s_cbranch_scc1 K_POLL2_D""")
    poll("K_POLL2", FHALF)
    a("  s_waitcnt lgkmcnt(0)\n  s_barrier")
    stamp(a, 7)
    dsc = " sc1" if OPT["dsc"] else ""
    def dma_issue():
        L = []
        for j in range(8):
            d = DO + (j & 1)
            L.append([f"  s_add_u32 m0, s{sStg}, {j*1040}",
                      f"  v_add_u32_dpp v{d}, v{ENT}, v{vchunk} row_newbcast:{2*j} row_mask:0xf bank_mask:0xf",
                      f"  buffer_load_dwordx4 v{d}, {s(SP,4)}, 0 offen{dsc} lds" if not OPT["nodma"] else "  s_nop 0"])
        L.append([f"  s_add_u32 m0, s{sStg}, 8320",
                  f"  v_add_u32 v{DO}, v{ENT+1}, v{vechunk}",
                  f"  buffer_load_dwordx4 v{DO}, {s(SE,4)}, 0 offen lds" if not (OPT["nodma"] or OPT["noe"]) else "  s_nop 0"])
        return L
    ndma = 0 if OPT["nodma"] else 8 if OPT["noe"] else 9
    def frag_reads():
        L = []
        for st in range(8):
            L.append(f"  ds_read_b128 {v(PF+4*st,4)}, v{vAlo if st < 4 else vAhi} offset:{32*(st&3)}")
        L.insert(2, f"  ds_read_b128 {v(EF,4)}, v{vEF}")
        return L
    def bq_reads():
        return [f"  ds_read_b64_tr_b16 {v(BQ+nq*t,2)}, v{vqa} offset:{64*t}" for t in range(4)]
    def chain(t, D):
        L = [f"  v_mfma_f32_32x32x16_bf16 {v(D,16)}, {v(EF,4)}, {v(W3+4*t,4)}, 0"]
        if OPT["lo"]:
            L.append(f"  v_mfma_f32_32x32x16_bf16 {v(D,16)}, {v(EF,4)}, {v(W3L+4*t,4)}, {v(D,16)}")
        L.append(f"  v_mfma_f32_32x32x16_bf16 {v(D,16)}, {v(PF+8*t,4)}, {v(I0,4)}, {v(D,16)}")
        L.append(f"  v_mfma_f32_32x32x16_bf16 {v(D,16)}, {v(PF+8*t+4,4)}, {v(I1,4)}, {v(D,16)}")
        if OPT["k8"]:
            L.append(f"  v_mfma_f32_32x32x8bf16_1k {v(D,16)}, {v(AQ,2)}, {v(BQ+2*t,2)}, {v(D,16)}")
        else:
            L.append(f"  v_mfma_f32_32x32x16_bf16 {v(D,16)}, {v(AQ,4)}, {v(BQ+4*t,4)}, {v(D,16)}")
        return L

    if OPT["stag"]:
        a(f"  s_cmp_lt_u32 s{sW}, 4\n  s_cbranch_scc1 K_STG\n  s_sleep {OPT['stag']}\nK_STG:")
    a(f"  ds_read_b64 {v(ENT,2)}, v{vent}\n  s_waitcnt lgkmcnt(0)")
    for x in dma_issue(): a("\n".join(x))
    a(f"  ds_read_b64 {v(ENT,2)}, v{vent} offset:2048")
    a(f"""
  s_cmp_eq_u32 s{sFirst}, 0
  s_cbranch_scc1 K_NOGEMM0
  s_mov_b32 s{sFirst}, 0
  s_waitcnt vmcnt({ndma}) lgkmcnt(0)""")
    node_gemm(W2F, WUT)
    a(f"  v_lshlrev_b32 v{t4}, 4, v{vl}")
    for st in range(4):
        a(f"  buffer_load_dwordx4 {v(WUB+4*st,4)}, v{t4}, {s(SW,4)}, s{sUB} offen offset:{st*1024} sc1")
    def pf5():
        a(f"  s_mul_i32 s{sq}, s2, 40000\n  v_add_u32 v{t0}, s{sq}, v{vt16}")
        for j in range(5):
            a(f"  buffer_load_dwordx4 {v(DUM,4)}, v{t0}, {s(SE,4)}, 0 offen")
            if j < 4: a(f"  v_add_u32 v{t0}, 8192, v{t0}")
    if OPT["pf2"] == 1: pf5()
    a(f"""
  s_or_b32 s{sq}, s2, s{sW}
  s_cmp_lg_u32 s{sq}, 0
  s_cbranch_scc1 K_NONONCE
  s_mov_b64 exec, 1
  v_mov_b32 v{t0}, {FNON}
  v_mov_b32 v{t1}, s{sTag}
  buffer_store_dword v{t1}, v{t0}, {s(SF,4)}, 0 offen
  s_mov_b64 exec, -1
  s_waitcnt vmcnt(0)
K_NONONCE:
  s_waitcnt lgkmcnt(0)
  s_barrier
K_NOGEMM:
  ds_read_b32 v{vgn1}, v{vgq}
  ds_read_b32 v{vsrow}, v{vrow}
  ds_read_b128 {v(GN,4)}, v{vga}
  s_waitcnt vmcnt({9 if OPT["pf2"] == 1 else 4})""")
    stamp(a, 8, 96)
    for x in frag_reads(): a(x)
    a(f"""
  s_waitcnt lgkmcnt(9)
  v_mad_u32_u24 v{vqa}, v{vgn1}, s{sQS}, v{vqlane}
  v_lshrrev_b64 {v(AQ,2)}, v{vsrow}, {v(PAT,2)}""")
    for x in bq_reads(): a(x)
    a("  s_waitcnt lgkmcnt(0)")
    for x in dma_issue(): a("\n".join(x))
    if OPT["pf2"] == 2: pf5()
    for x in chain(0, D0): a(x)
    if OPT["prio"]:
        a(f"  s_cmp_lt_u32 s{sW}, 4\n  s_cbranch_scc1 K_PR\n  s_setprio 1\nK_PR:")
    a(f"""
  s_nop 7
  s_nop 3
  s_cmp_eq_u32 s{sCnt}, 0
  s_cbranch_scc1 K_LOOPEND
  s_cmp_lg_u32 s{sMode}, 0
  s_cbranch_scc1 K_SAFE
  {"s_branch K_QUAD" if not OPT["octo"] else ""}
  s_sub_u32 s{sCnt}, s{sCnt}, s{sCO}
  s_cmp_eq_u32 s{sCO}, 0
  s_cbranch_scc1 K_QUAD""")

    def p(r): return v(r, 2)
    def octet_fast(d, e, t, r, sres):
        ex = [f"  v_exp_f32 v{e+i}, v{d+i}" for i in range(8)]
        L = [f"  v_pk_add_f32 {p(t)}, {p(e)}, 1.0 op_sel_hi:[1,0]",
             f"  v_pk_add_f32 {p(t+2)}, {p(e+4)}, 1.0 op_sel_hi:[1,0]",
             f"  v_pk_fma_f32 {p(t+4)}, {p(d)}, {p(e+2)}, {p(d)}",
             f"  v_pk_fma_f32 {p(t+6)}, {p(d+4)}, {p(e+6)}, {p(d+4)}",
             f"  v_pk_fma_f32 {p(e)}, {p(t)}, {p(e+2)}, {p(t)}",
             f"  v_pk_fma_f32 {p(e+4)}, {p(t+2)}, {p(e+6)}, {p(t+2)}",
             f"  v_pk_fma_f32 {p(t+4)}, {p(d+2)}, {p(t)}, {p(t+4)}",
             f"  v_pk_fma_f32 {p(t+6)}, {p(d+6)}, {p(t+2)}, {p(t+6)}",
             f"  v_pk_mul_f32 {p(t)}, {p(e)}, {p(e+4)}",
             f"  v_pk_mul_f32 {p(t+4)}, {p(t+4)}, {p(e+4)}",
             f"  v_rcp_f32 v{r}, v{t}",
             f"  v_rcp_f32 v{r+1}, v{t+1}",
             f"  v_pk_fma_f32 {p(t+4)}, {p(t+6)}, {p(e)}, {p(t+4)}",
             f"  v_pk_mul_f32 {p(sres)}, {p(t+4)}, {p(r)}"]
        return ex, L
    def octet_safe(d, e, t, r, sres):
        ex = [f"  v_exp_f32 v{e+i}, v{d+i}" for i in range(8)]
        L = [f"  v_pk_add_f32 {p(e+2*i)}, {p(e+2*i)}, 1.0 op_sel_hi:[1,0]" for i in range(4)]
        L += [f"  v_rcp_f32 v{t+i}, v{e+i}" for i in range(8)]
        L += [f"  v_pk_mul_f32 {p(sres)}, {p(d)}, {p(t)}"]
        L += [f"  v_pk_fma_f32 {p(sres)}, {p(d+2*i)}, {p(t+2*i)}, {p(sres)}" for i in range(1, 4)]
        return ex, L
    def zipl(x, y):
        o = []
        for i in range(max(len(x), len(y))):
            if i < len(x): o.append(x[i])
            if i < len(y): o.append(y[i])
        return o
    def adds(t, kind):
        if OPT["noadd"]: return [f"  ds_read_b32 v{DUM}, v{vgq}"] * (2 if kind == "octo" else 4)
        if kind == "octo": return [f"  ds_add_f64 v{AD+2*xy}, {v(CV+2*xy,2)} offset:{256*t}" for xy in range(2)]
        return [f"  ds_add_f64 v{AD+2*xy+o}, {v(CV+2*(2*o+xy),2)} offset:{256*t}" for o in range(2) for xy in range(2)]
    def block_body(kind, u, nun):
        oc = octet_safe if kind == "safe" else octet_fast
        nadd = 2 if kind == "octo" else 4
        B = []
        for t in range(4):
            D = D0 if t % 2 == 0 else D1
            Dn = D1 if t % 2 == 0 else D0
            exa, La = oc(D, EA, TA, RA, SA)
            exb, Lb = oc(D+8, EB, TB, RB, SB)
            ex = exa + exb
            ch = chain((t+1) % 4, Dn)
            late = []
            if kind == "octo":
                keep = lambda L: [x for x in L[:-1] if "v_rcp" not in x]
                dk = DK + 2*(t & 1)
                pk = zipl(keep(La), keep(Lb))
                pk = pk[:-4] + [f"  v_pk_mul_f32 {p(dk)}, {p(TA)}, {p(TB)}"] + pk[-4:-2] + \
                     [f"  v_rcp_f32 v{RA}, v{dk}", f"  v_rcp_f32 v{RA+1}, v{dk+1}"] + pk[-2:] + \
                     [f"  v_pk_mul_f32 {p(TA+4)}, {p(TA+4)}, {p(TB)}"]
                if t & 1: pk.append(f"  v_pk_fma_f32 {p(MAC)}, {p(DK)}, {p(DK+2)}, {p(MAC)}")
                pk += [f"  v_pk_fma_f32 {p(TA+4)}, {p(TB+4)}, {p(TA)}, {p(TA+4)}",
                       f"  v_pk_mul_f32 {p(SA)}, {p(TA+4)}, {p(RA)}"]
                fin = [f"  v_cvt_f64_f32 {v(CV+2*xy,2)}, v{SA+xy}" for xy in range(2)]
                adr = (0, 2)
            else:
                pk = zipl(La, Lb)
                if kind == "quad":
                    idx = max(i for i, x in enumerate(pk) if x.startswith(f"  v_pk_mul_f32 {p(TB)}, {p(EB)}"))
                    pk.insert(idx+1, f"  v_pk_fma_f32 {p(MAC)}, {p(TA)}, {p(TB)}, {p(MAC)}")
                fin = [f"  v_cvt_f64_f32 {v(CV+2*(2*o+xy),2)}, v{S+xy}" for o, S in ((0, SA), (1, SB)) for xy in range(2)]
                adr = range(4)
            fin += adds(t, kind)
            if t == 0:
                pk = pk[:4] + [f"  v_mad_u32_u24 v{AD+i}, v{GN+i}, s{sAS}, v{vacl}" for i in adr] + pk[4:]
            if t == 1:
                pk = pk[:8] + [f"  ds_read_b64 {v(ENT,2)}, v{vent} offset:{4096+2048*u}",
                      f"  ds_read_b32 v{vgn1}, v{vgq} offset:{256+256*u}",
                      f"  ds_read_b32 v{vsrow}, v{vrow} offset:{2048+2048*u}",
                      f"  ds_read_b128 {v(GN,4)}, v{vga} offset:{256+256*u}"] + pk[8:]
            if t == 3:
                B.append(f"  s_waitcnt lgkmcnt({nadd})")
            dma = dma_issue() if t == 3 else []
            per = 16 // len(ch); e = 0
            for i, m in enumerate(ch):
                B.append(m)
                n = per if i < len(ch)-1 else 16 - e
                B += ex[e:e+2]
                if late: B.append(late.pop(0))
                B += ex[e+2:e+n]; e += n
                if OPT["dmapos"] == 0:
                    for _ in range(2):
                        if dma: B += dma.pop(0)
            if t == 2:
                mid = [f"  s_waitcnt vmcnt(0) lgkmcnt({nadd})",
                       f"  v_mad_u32_u24 v{vqa}, v{vgn1}, s{sQS}, v{vqlane}"]
                rd = frag_reads() + bq_reads()
                aq = [f"  v_lshrrev_b64 {v(AQ,2)}, v{vsrow}, {v(PAT,2)}"]
                if OPT["rdgap"] == 0: B += mid + rd + aq + pk
                else:
                    q = []
                    for i, x in enumerate(aq + pk):
                        if rd and i % OPT["rdgap"] == 0: q.append(rd.pop(0))
                        q.append(x)
                    B += mid + q + rd
            elif t == 3:
                inc = []
                if u == nun - 1 and OPT["bench"]:
                    inc = [f"  v_add_u32 v{DUM+i}, {2048*nun}, v{vent}" for i in range(4)]
                elif u == nun - 1:
                    inc = incs(nun)
                pk = pk + inc
                if OPT["dmapos"] == 1:
                    q = []
                    for i, x in enumerate(pk):
                        if dma and i % 3 == 0: q += dma.pop(0)
                        q.append(x)
                    pk = q
                for x in dma: B += x
                B += pk
            else:
                B += pk
            B += fin
        return B
    def incs(n):
        return [f"  v_add_u32 v{vent}, {2048*n}, v{vent}", f"  v_add_u32 v{vrow}, {2048*n}, v{vrow}",
                f"  v_add_u32 v{vgq}, {256*n}, v{vgq}", f"  v_add_u32 v{vga}, {256*n}, v{vga}"]
    def loop(kind):
        lab = {"safe": "K_SAFE", "quad": "K_QUAD", "octo": "K_FAST"}[kind]
        nun = OPT["unroll"] if kind == "octo" else 1
        cnt = sCO if kind == "octo" else sCnt
        L = []
        for u in range(nun):
            L += block_body(kind, u, nun)
            L.append(f"  s_sub_u32 s{cnt}, s{cnt}, 1")
            L.append(f"  s_cmp_lg_u32 s{cnt}, 0")
            L.append(f"  s_cbranch_scc1 {lab}" if u == nun - 1 else f"  s_cbranch_scc0 K_OX{u}")
        ab = OPT["abl"]
        if ab & 1: L = [x for x in L if not ("v_mfma" in x and (f", {v(I0,4)}," in x or f", {v(I1,4)}," in x))]
        if ab & 2: L = [x for x in L if "v_mfma_f32_32x32x8" not in x and "tr_b16" not in x]
        if ab & 4: L = [x.replace("v_exp_f32", "v_mov_b32") for x in L]
        if ab & 8: L = [x for x in L if "v_pk_" not in x]
        if ab & 16: L = [x for x in L if "v_mfma" not in x]
        if ab & 32: L = [x for x in L if "ds_read_b128" not in x]
        if ab & 64: L = [x for x in L if "v_exp" not in x]
        if ab & 128:
            M = []
            for x in L:
                if "v_mfma" in x and f", {v(I1,4)}," in x: continue
                if "v_mfma" in x and f", {v(I0,4)}," in x:
                    m = re.match(r"\s*v_mfma_f32_32x32x16_bf16 (v\[\d+:\d+\]), v\[(\d+):", x)
                    M.append(f"  v_smfmac_f32_32x32x32_bf16 {m.group(1)}, {v(I0,4)}, {v(int(m.group(2)),8)}, v{vone}"); continue
                m = re.match(r"\s*ds_read_b128 v\[(\d+):\d+\], v(\d+) offset:(\d+)", x)
                if m and PF <= int(m.group(1)) < PF + 32:
                    r0 = int(m.group(1))
                    M.append(f"  ds_read_b64_tr_b16 {v(r0,2)}, v{vqa} offset:{m.group(3)}")
                    M.append(f"  ds_read_b64_tr_b16 {v(r0+2,2)}, v{vqa} offset:{int(m.group(3))+128}"); continue
                M.append(x)
            L = M
        if ab & 256:
            M = []
            for x in L:
                if "v_mfma" in x and (f", {v(I1,4)}," in x or f", {v(I0,4)}," in x): continue
                if "v_mfma_f32_32x32x16" in x and x.rstrip().endswith(", 0"): x = x.rstrip()[:-1] + v(PF, 16)
                m = re.match(r"\s*ds_read_b128 v\[(\d+):\d+\], v(\d+) offset:(\d+)", x)
                if m and PF <= int(m.group(1)) < PF + 32:
                    for q in range(8): M.append(f"  ds_read_u16_d16_hi v{PF+(int(m.group(1))+q)%32}, v{vacl} offset:{64*q}")
                    continue
                M.append(x)
            L = M
        if OPT["align"]: L = align8(L)
        a(f".p2align 6\n{lab}:")
        for x in L: a(x)
    loop("octo")
    a(f"""
K_OXE:
  s_cmp_lg_u32 s{sCnt}, 0
  s_cbranch_scc1 K_QUAD""")
    a(f"""
K_LOOPEND:""")
    a(f"""
  s_waitcnt vmcnt(0) lgkmcnt(0)
  s_barrier""")
    stamp(a, 9, 98)
    a(f"""
  s_cmp_lg_u32 s{sKind}, 0
  s_cbranch_scc1 K_NEXT
K_CELLSDONE:
  v_mov_b32 v{t0}, {L_FLG+32}
  ds_read_b128 {v(CV,4)}, v{t0}
K_CONV:
  s_mul_i32 s{sTmp}, s{sW}, {AS}
  s_add_u32 s{sTmp}, s{sTmp}, {L_ACC}
  v_lshlrev_b32 v{t1}, 4, v{vl}
  v_add_u32 v{t1}, s{sTmp}, v{t1}""")
    for k in range(5):
        a(f"  ds_read_b128 {v(D0+4*k,4)}, v{t1} offset:{k*8*AS}")
    a(f"""
  s_mul_i32 s{sTmp}, s{sW}, {XS}
  s_add_u32 s{sTmp}, s{sTmp}, {L_X}
  v_lshlrev_b32 v{t2}, 2, v{vl}
  v_add_u32 v{t2}, s{sTmp}, v{t2}
  s_cmp_ge_u32 s{sKind}, 3
  s_cbranch_scc1 K_CONV2
  s_waitcnt lgkmcnt(5)
  v_or3_b32 v{t0}, v{CV}, v{CV+1}, v{CV+2}
  v_or_b32 v{t0}, v{t0}, v{CV+3}
  v_cmp_ne_u32 vcc, 0, v{t0}
  s_cbranch_vccnz K_STARTOV
K_CONV2:
  s_mov_b32 s{sTmp}, 0x71800000              ; 2^100
  v_cmp_nle_f32 {s(sBad,2)}, v{MAC}, s{sTmp}
  v_cmp_nle_f32 vcc, v{MAC+1}, s{sTmp}
  s_or_b64 {s(sBad,2)}, {s(sBad,2)}, vcc
  s_movk_i32 s{sTmp}, 0x207""")
    for k in range(5):
        a(f"""
  s_waitcnt lgkmcnt({4-k})
  v_cvt_f32_f64 v{EA+2*k}, {v(D0+4*k,2)}
  v_cvt_f32_f64 v{EA+2*k+1}, {v(D0+4*k+2,2)}
  v_cmp_class_f32 vcc, v{EA+2*k}, s{sTmp}
  s_or_b64 {s(sBad,2)}, {s(sBad,2)}, vcc
  v_cmp_class_f32 vcc, v{EA+2*k+1}, s{sTmp}
  s_or_b64 {s(sBad,2)}, {s(sBad,2)}, vcc
  v_cvt_pk_bf16_f32 v{EB+k}, v{EA+2*k}, v{EA+2*k+1}""")
    for k in range(5):
        a(f"  ds_write_b32 v{t2}, v{EB+k} offset:{k*8*XS}")
    a(f"""
  s_cmp_eq_u64 {s(sBad,2)}, 0
  s_cbranch_scc1 K_OKW
  v_mov_b32 v{t0}, {L_FLG}
  ds_write_b32 v{t0}, v{vone}
K_OKW:
  s_waitcnt lgkmcnt(0)
  s_barrier
  v_mov_b32 v{t0}, {L_FLG}
  ds_read_b32 v{t0}, v{t0}""")
    for nt in range(2):
        for st in range(4):
            a(f"  ds_read_b128 {v(XF+16*nt+4*st,4)}, v{vxb} offset:{nt*16*XS + st*64}")
    a(f"""
  s_waitcnt lgkmcnt(8)
  v_readfirstlane_b32 s{sTmp}, v{t0}
  s_cmp_gt_u32 s{sTmp}, s{sMode}
  {"s_cbranch_scc1 K_RESTART" if not EXP else "s_nop 0"}
  s_waitcnt lgkmcnt(4)""")
    for st in range(4):
        c = "0" if st == 0 else v(D0, 4)
        a(f"  v_mfma_f32_16x16x32_bf16 {v(D0,4)}, {v(WUB+4*st,4)}, {v(XF+4*st,4)}, {c}")
    for st in range(4):
        a(f"  ds_read_b128 {v(D1+4*st,4)}, v{vxb} offset:{2*16*XS + st*64}")
    a("  s_waitcnt lgkmcnt(4)")
    for st in range(4):
        c = "0" if st == 0 else v(D0+4, 4)
        a(f"  v_mfma_f32_16x16x32_bf16 {v(D0+4,4)}, {v(WUB+4*st,4)}, {v(XF+16+4*st,4)}, {c}")
    a("  s_waitcnt lgkmcnt(0)")
    for st in range(4):
        c = "0" if st == 0 else v(D0+8, 4)
        a(f"  v_mfma_f32_16x16x32_bf16 {v(D0+8,4)}, {v(WUB+4*st,4)}, {v(D1+4*st,4)}, {c}")
    a(f"""
  s_mov_b32 s{sK}, {NLN2}
  s_mov_b32 s{sK+1}, {NLN2}
  s_mov_b32 s{sTmp}, {NLOG2E}
  s_mov_b32 s{sTmp+1}, {NLOG2E}
  v_and_b32 v{t0}, 15, v{vl}
  v_lshlrev_b32 v{t0}, 8, v{t0}
  v_lshrrev_b32 v{t1}, 4, v{vl}
  v_lshl_add_u32 v{t0}, v{t1}, 3, v{t0}
  s_lshl_b32 s{sTmp+2}, s{sW}, 5
  v_add_u32 v{t0}, s{sTmp+2}, v{t0}
  v_add_u32 v{t1}, 4096, v{t0}
  v_add_u32 v{t2}, 8192, v{t0}""")
    for nt in range(3):
        d = D0 + 4*nt
        a(f"""
  v_pk_fma_f32 {p(d)}, {p(d)}, {s(sK,2)}, {p(U+4*nt)}
  v_pk_fma_f32 {p(d+2)}, {p(d+2)}, {s(sK,2)}, {p(U+4*nt+2)}
  v_pk_mul_f32 {p(EA)}, {p(d)}, {s(sTmp,2)}
  v_pk_mul_f32 {p(EA+2)}, {p(d+2)}, {s(sTmp,2)}""")
        for i in range(4): a(f"  v_exp_f32 v{EA+i}, v{EA+i}")
        a(f"  s_nop 0\n  v_pk_add_f32 {p(EA)}, {p(EA)}, 1.0 op_sel_hi:[1,0]\n  v_pk_add_f32 {p(EA+2)}, {p(EA+2)}, 1.0 op_sel_hi:[1,0]")
        for i in range(4): a(f"  v_rcp_f32 v{EA+i}, v{EA+i}")
        a(f"""
  s_nop 0
  v_pk_mul_f32 {p(d)}, {p(d)}, {p(EA)}
  v_pk_mul_f32 {p(d+2)}, {p(d+2)}, {p(EA+2)}
  v_cvt_pk_bf16_f32 v{EB+2*nt}, v{d}, v{d+1}
  v_cvt_pk_bf16_f32 v{EB+2*nt+1}, v{d+2}, v{d+3}
  buffer_store_dwordx2 {v(EB+2*nt,2)}, v{t0+nt}, {s(SO,4)}, 0 offen""")
    if OPT["stamp"]:
        a(f"""
  s_waitcnt vmcnt(0)
  s_memrealtime s[4:5]
  s_waitcnt lgkmcnt(0)
  s_lshl_b32 s6, s2, 3
  s_add_u32 s6, s6, s{sW}
  s_lshl_b32 s6, s6, 6
  s_add_u32 s6, s6, {WS_STAMP}
  s_add_u32 s6, s{pWS}, s6
  s_addc_u32 s7, s{pWS+1}, 0
  s_mov_b64 exec, 1
  v_mov_b32 v1, 0""")
        for i, r in enumerate([80+2*i for i in range(8)] + [96, 98, 4]):
            pass
        regs = [80, 82, 84, 86, 88, 90, 92, 94, 8, 9, 4, 10, 11, sT]
        for i, r in enumerate(regs):
            a(f"  v_mov_b32 v2, s{r}\n  global_store_dword v1, v2, s[6:7] offset:{4*i}")
    a(f"""
K_END:
  s_endpgm
""")
    a(f"""
K_PREP:
  s_sub_u32 s{sq}, s2, {2*G}
  s_lshl_b32 s{sq}, s{sq}, 14
  s_lshl_b32 s{sq+1}, s{sW}, 12
  s_add_u32 s{sq}, s{sq}, s{sq+1}
  v_lshlrev_b32 v{t0}, 4, v{vl}
  v_mov_b32 v{t7}, s{sTag}
  s_waitcnt vmcnt({10+NA})
  s_barrier""")
    wtr(PF, vqa)
    a("  s_waitcnt lgkmcnt(0)")
    for st in range(4):
        a(f"  buffer_store_dwordx4 {v(PF+4*st,4)}, v{t0}, {s(SW,4)}, s{sq} offen offset:{st*1024} sc1")
    a(f"""
  s_lshr_b32 s{sq}, s{sW}, 2
  s_add_u32 s{sq}, s{sq}, s2
  s_cmp_lg_u32 s{sq}, {2*G}
  s_cbranch_scc1 K_PREPD
  s_mov_b32 s{sq+1}, {NLOG2E}
  s_lshl_b32 s{sq}, s{sW}, 10
  s_waitcnt vmcnt({6+NA})""")
    for jj in range(8):
        a(f"  v_lshlrev_b32 v{D0+jj}, 16, v{D0+jj}\n  v_mul_f32 v{D0+jj}, s{sq+1}, v{D0+jj}")
    for i in range(4):
        a(f"  v_cvt_pk_bf16_f32 v{D0+8+i}, v{D0+2*i}, v{D0+1+2*i}")
    for i in range(4):
        a(f"""
  v_lshlrev_b32 v{t2}, 16, v{D0+8+i}
  v_and_b32 v{t3}, 0xffff0000, v{D0+8+i}
  v_sub_f32 v{t2}, v{D0+2*i}, v{t2}
  v_sub_f32 v{t3}, v{D0+1+2*i}, v{t3}
  v_cvt_pk_bf16_f32 v{D0+12+i}, v{t2}, v{t3}""")
    a(f"""
  s_add_u32 s{sq+1}, s{sq}, {WF_3L}
  s_add_u32 s{sq}, s{sq}, {WF_3H}
  buffer_store_dwordx4 {v(D0+8,4)}, v{t0}, {s(SW,4)}, s{sq} offen sc1
  buffer_store_dwordx4 {v(D0+12,4)}, v{t0}, {s(SW,4)}, s{sq+1} offen sc1
K_PREPD:""")
    own_x(4+NA)
    a(f"""
  s_sub_u32 s{sq}, s2, {2*G}
  s_lshl_b32 s{sq}, s{sq}, 1
  v_lshl_add_u32 v{t0}, v0, 7, s{sq}
  s_waitcnt vmcnt(0)
  s_barrier
  s_cmp_ge_u32 s{sW}, 4
  s_cbranch_scc1 K_PST
  buffer_store_dword v{t7}, v{t0}, {s(SF,4)}, 0 offen {FLF}
  s_branch K_PST""")
    a(f"""
K_OVF:
  s_waitcnt lgkmcnt(0)
  s_barrier
  s_mul_i32 s{sq+1}, s2, {OVSTR//2}
  s_add_u32 s{sq+1}, s{sq+1}, 64
  v_mov_b32 v{t5}, {L_FLG+8}
  v_mov_b32 v{t6}, -1""")
    for j in range(5):
        a(f"""
  v_cmp_le_u32 vcc, {CAP-1}, v{RK+j}
  s_and_b64 exec, exec, vcc
  s_cbranch_execz K_OV{j}
  v_add_u32 v{t1}, {L_BCNT}, v{B4+j}
  ds_read_b32 v{t1}, v{t1}
  s_waitcnt lgkmcnt(0)
  v_cmp_ne_u32 vcc, {CAP}, v{t1}
  s_nop 1
  v_cndmask_b32 v{t3}, v{SS_+j}, v{t6}, vcc
  ds_write_b32 v{CA+j}, v{t3} offset:{CELLB-8}
  s_and_b64 exec, exec, vcc
  s_cbranch_execz K_OV{j}
  ds_add_rtn_u32 v{t1}, v{t5}, v{vone}
  v_mov_b32 v{CV}, v{SS_+j}
  v_lshrrev_b32 v{CV+1}, 2, v{B4+j}
  s_waitcnt lgkmcnt(0)
  v_lshl_add_u32 v{t1}, v{t1}, 3, s{sq+1}
  buffer_store_dwordx2 {v(CV,2)}, v{t1}, {s(SV,4)}, 0 offen sc1
  s_waitcnt vmcnt(0)
K_OV{j}:
  s_mov_b64 exec, -1""")
    a(f"""
  s_waitcnt lgkmcnt(0)
  s_barrier
  ds_read_b32 v{t1}, v{t5}
  s_sub_u32 s{sq+1}, s{sq+1}, 64
  v_mov_b32 v{t3}, s{sq+1}
  v_mov_b32 v{t2}, 0
  s_waitcnt lgkmcnt(0)
  buffer_store_dword v{t1}, v{t3}, {s(SV,4)}, 0 offen sc1
  s_waitcnt vmcnt(0)
  s_branch K_OVFDONE""")
    for u in range(OPT["unroll"] - 1):
        a(f"K_OX{u}:\n  s_cmp_eq_u32 s{sCnt}, 0\n  s_cbranch_scc1 K_LOOPEND")
        for x in incs(u + 1): a(x)
        a("  s_branch K_QUAD")
    loop("quad")
    a("  s_branch K_LOOPEND")
    a("K_TEXTEND:")
    loop("safe")
    a("  s_branch K_LOOPEND")
    a(f"""
K_NOGEMM0:
  s_waitcnt vmcnt(0)
  s_branch K_NOGEMM
K_RESTART:
  s_mov_b32 s{sMode}, 1
  s_mov_b32 s{sKind}, 0
  s_waitcnt lgkmcnt(0)
  s_barrier
  v_mov_b32 v{CV}, 0
  v_mov_b32 v{CV+1}, 0
  v_mov_b32 v{CV+2}, 0
  v_mov_b32 v{CV+3}, 0""")
    for j in range(5):
        a(f"  ds_write_b128 v{vt16}, {v(CV,4)} offset:{L_ACC + j*8192}")
    a(f"""
  v_cmp_gt_u32 vcc, {(40*AS-5*8192)//16}, v0
  s_and_saveexec_b64 {s(sEx,2)}, vcc
  ds_write_b128 v{vt16}, {v(CV,4)} offset:{L_ACC + 5*8192}
  s_mov_b64 exec, {s(sEx,2)}
  s_branch K_RELOAD
K_SPLIT:
  s_mov_b32 s{sKind}, 1
  s_waitcnt lgkmcnt(0)
  s_barrier
  s_branch K_RELOAD
K_NEXT:
  s_cmp_eq_u32 s{sKind}, 4
  s_cbranch_scc1 K_NEXTOV
  s_cmp_eq_u32 s{sKind}, 3
  s_cbranch_scc1 K_OVPART1
  s_cmp_eq_u32 s{sKind}, 2
  s_cbranch_scc1 K_CELLSDONE
  s_mov_b32 s{sKind}, 2
K_RELOAD:
  v_lshrrev_b32 v{t1}, 2, v0
  s_mov_b32 s{sq}, {CH*32}
  v_mul_u32_u24 v{vebase}, s{sq}, v{t1}
  s_waitcnt vmcnt(0)""")
    for k in range(2):
        a(f"  buffer_load_dwordx4 {v(REC+4*k,4)}, v{vcell}, {s(SC,4)}, 0 offen offset:{64*k} sc1")
    a(f"""
  s_waitcnt vmcnt(0)
  s_mov_b32 exec_lo, 0xaaaaaaaa
  s_mov_b32 exec_hi, 0xaaaaaaaa
  v_mov_b32 v{REC+3}, 0
  v_mov_b32 v{REC+7}, 0
  s_mov_b64 exec, -1
  s_cmp_eq_u32 s{sKind}, 0
  s_cbranch_scc1 K_ROUND
  s_lshr_b32 s{sq}, s{sW}, 2
  s_add_u32 s{sq}, s{sq}, 1
  s_cmp_eq_u32 s{sq}, s{sKind}
  s_cbranch_scc1 K_ROUND""")
    for k in range(NR): a(f"  v_mov_b32 v{REC+k}, 0")
    a(f"""
K_ROUND:
  v_mov_b32 v{CV}, 0
  v_mov_b32 v{CV+1}, 0
  v_mov_b32 v{CV+2}, 0
  v_mov_b32 v{CV+3}, 0
  v_cmp_gt_u32 vcc, {(L_FLG-L_GN)//16}, v0
  s_and_saveexec_b64 {s(sEx,2)}, vcc
  ds_write_b128 v{vt16}, {v(CV,4)} offset:{L_GN}
  s_mov_b64 exec, {s(sEx,2)}""")
    prefill()
    a(f"""
  v_and_b32 v{vent}, 2047, v{vent}
  v_and_b32 v{vrow}, 2047, v{vrow}
  v_subrev_u32 v{vga}, {L_GN}, v{vga}
  v_and_b32 v{vga}, 255, v{vga}
  v_add_u32 v{vga}, {L_GN}, v{vga}
  v_and_b32 v{t2}, 12, v{vl}
  v_add_u32 v{vgq}, v{vga}, v{t2}
  s_waitcnt lgkmcnt(0)
  s_barrier
  s_branch K_PHASE1
K_STARTOV:""")
    for i in range(4): a(f"  v_readfirstlane_b32 s{sOV+i}, v{CV+i}")
    a(f"""
  s_mov_b32 s{sKind}, 4
  s_waitcnt lgkmcnt(0)
K_NEXTOV:""")
    for i in range(2):
        a(f"""
  s_ff1_i32_b64 s{sP}, {s(sOV+2*i,2)}
  s_cmp_eq_u32 s{sP}, -1
  s_cbranch_scc1 K_OVN{i}
  s_bitset0_b64 {s(sOV+2*i,2)}, s{sP}
  s_add_u32 s{sP}, s{sP}, {64*i}
  s_branch K_OVGO
K_OVN{i}:""")
    a(f"""
  s_branch K_CONV
K_OVGO:
  s_mov_b32 s{sKind}, 3
  v_mov_b32 v{t4}, v0
  s_branch K_OVLD
K_OVPART1:
  s_mov_b32 s{sKind}, 4
  v_add_u32 v{t4}, 2048, v0
K_OVLD:
  s_mul_i32 s{sq}, s{sP}, {OVSTR}
  s_mul_i32 s{sq+1}, s{sP}, {CH*32}
  v_mov_b32 v{vebase}, s{sq+1}
  v_mov_b32 v{t0}, s{sq}
  buffer_load_dword v{t1}, v{t0}, {s(SV,4)}, 0 offen sc1
  v_lshl_add_u32 v{t2}, v{t4}, 3, v{t0}""")
    for k in range(4):
        a(f"  buffer_load_dwordx2 {v(PF+2*k,2)}, v{t2}, {s(SV,4)}, 0 offen offset:64 sc1\n  v_add_u32 v{t2}, 4096, v{t2}")
    a(f"  s_waitcnt vmcnt(0)")
    for k in range(4):
        a(f"""
  v_cmp_lt_u32 vcc, v{t4}, v{t1}
  v_cmp_eq_u32 {s(sEx,2)}, s2, v{PF+2*k+1}
  s_and_b64 vcc, vcc, {s(sEx,2)}
  v_add_u32 v{t4}, 512, v{t4}
  s_nop 1
  v_cndmask_b32 v{REC+k}, 0, v{PF+2*k}, vcc""")
    for k in range(4, NR): a(f"  v_mov_b32 v{REC+k}, 0")
    a("  s_branch K_ROUND")
    return a.text(), nv, NS

def gen_diag(idx):
    a = Asm()
    a(f"""
.globl mpnn_d_kernel
.p2align 8
.type mpnn_d_kernel,@function
mpnn_d_kernel:
  s_cmp_ge_u32 s2, 1
  s_cbranch_scc1 D_END
  s_load_dwordx2 s[4:5], s[0:1], 64
  s_waitcnt lgkmcnt(0)
  s_add_u32 s4, s4, {WS_STAMP + (OPT['wsb'] << 20)}
  s_addc_u32 s5, s5, 0
  s_load_dword s6, s[4:5], 0
  s_waitcnt lgkmcnt(0)
  s_sub_u32 s6, s6, 100000""")
    for q, (ix, ismax) in enumerate(((idx, 1), (0, 0))):
        op = "max" if ismax else "min"
        a(f"  v_lshlrev_b32 v1, {6 if not OPT['dodd'] else 10}, v0\n  v_add_u32 v1, {ix*4 + (512 + 64*(OPT['dodd']-1) if OPT['dodd'] else 0)}, v1\n  v_mov_b32 v3, {0 if ismax else -1}")
        nk = 32 if not OPT['dodd'] else 2
        for k in range(nk):
            a(f"  global_load_dword v{8+k}, v1, s[4:5]\n  v_add_u32 v1, {4096 if not OPT['dodd'] else 65536}, v1")
        a("  s_waitcnt vmcnt(0)")
        for k in range(nk):
            a(f"  v_subrev_u32 v2, s6, v{8+k}\n  v_{op}_u32 v3, v3, v2")
        a(f"  s_mov_b32 s{20+q}, {0 if ismax else -1}\n  s_nop 1")
        for l in range(64):
            a(f"  v_readlane_b32 s8, v3, {l}\n  s_nop 0\n  s_{op}_u32 s{20+q}, s{20+q}, s8")
    a(f"""
  s_sub_u32 s20, s20, s21
  s_min_u32 s20, s20, 20000
  s_lshl_b32 s20, s20, 3
  {'s_mov_b32 s20, 0' if OPT['dz'] else ''}
  s_memrealtime s[8:9]
  s_waitcnt lgkmcnt(0)
D_L:
  s_memrealtime s[10:11]
  s_waitcnt lgkmcnt(0)
  s_sub_u32 s12, s10, s8
  s_cmp_lt_u32 s12, s20
  s_cbranch_scc1 D_L
D_END:
  s_endpgm
""")
    return a.text()

HEAD = """; Kernarg layout for this problem (72 bytes, ptrs only, base s[0:1]):
"""
def main():
    k, nv, ns = gen()
    out = HEAD + f"; @launch grid=({NB},1,1) block=(512,1,1) lds={LDS}\n"
    if OPT["diag"] >= 0:
        out = HEAD + f"; @launch kernel={KN} grid=({NB},1,1) block=(512,1,1) lds={LDS}\n; @launch kernel=mpnn_d_kernel grid=(1,1,1) block=(64,1,1) lds=0\n"
        k += gen_diag(OPT["diag"])
    out += '.amdgcn_target "amdgcn-amd-amdhsa--gfx950"\n.text\n' + k
    out += f""".section .rodata,"a"
.p2align 6
.amdhsa_kernel {KN}
  .amdhsa_next_free_vgpr {nv}
  .amdhsa_next_free_sgpr {ns}
  .amdhsa_accum_offset {(nv+3)//4*4}
  .amdhsa_group_segment_fixed_size 0
  .amdhsa_kernarg_size 72
  .amdhsa_user_sgpr_count 2
  .amdhsa_user_sgpr_kernarg_segment_ptr 1
  .amdhsa_system_sgpr_workgroup_id_x 1
.end_amdhsa_kernel
"""
    if OPT["diag"] >= 0:
        out += """.p2align 6
.amdhsa_kernel mpnn_d_kernel
  .amdhsa_next_free_vgpr 48
  .amdhsa_next_free_sgpr 32
  .amdhsa_accum_offset 48
  .amdhsa_group_segment_fixed_size 0
  .amdhsa_kernarg_size 72
  .amdhsa_user_sgpr_count 2
  .amdhsa_user_sgpr_kernarg_segment_ptr 1
  .amdhsa_system_sgpr_workgroup_id_x 1
.end_amdhsa_kernel
"""
    open(sys.argv[1], "w").write(out)
    print("vgprs", nv, "lds", LDS)
main()
```

```python
from common import *

N = 10000; E = 320000
G = 125
CH = 2560
NB = 256
MAGIC = 26843
CAP = 28
CELLB = 128
BSTR = G * CELLB

WS_P = 256
WS_CELL = 0x280000
WS_WF = 0x1280000
WF_W2, WF_UT, WF_UB, WF_3H, WF_3L = 0, 32768, 65536, 98304, 102400
WF_SIZE = 106496
WS_OVF = 0x12A0000
OVSTR = 64 + CH * 8
WS_FLAG = 0x1520000
WS_STAMP = 0x1600000

OPT = dict(lo=0, k8=1, stamp=0, nodma=0, noadd=0, noe=0, hot=0, align=1, unroll=2, dmapos=0, rdpos=0, dsc=1, pf=1, slp=0, stf=1, addpos=0, rdgap=0, prio=0, bench=0, octo=1, frep=8, fln=16, slp0=0, plf=1, flf=1, diag=-1, touch=0, dz=0, abl=0, dodd=0, wsb=0, claim=0, slpa=0, slpb=0, zt=0)
for a_ in sys.argv[2:]:
    k_, v_ = a_.split("="); OPT[k_] = int(v_)
EXP = OPT["bench"] or OPT["nodma"] or OPT["noe"] or OPT["noadd"] or OPT["hot"]

FL_ = ['', 'sc1', 'sc0 sc1', 'sc1 nt', 'sc0 sc1 nt']; PLF = FL_[OPT['plf']]; FLF = FL_[OPT['flf']]
STF = ['', 'sc1', 'sc0 sc1', 'sc1 nt'][OPT['stf']]
FREP = OPT['frep']; FLN = OPT['fln']; FSH = (128//FLN).bit_length()-1; FHALF = FREP*FLN*256; FNON = 2*FHALF; FMASK = hex((1<<FREP)-1)
NA = 1 if OPT['claim'] & 4 else 0
NCL = (3 if OPT['claim'] & 1 else 0) + NA
NCC = (4 if OPT['claim'] & 2 else 0) + NA
CAPB = 70
L_ENT = 0
L_GN = (CAPB + 1) * 256
L_CNT = L_GN + (CAPB + 17) * 32
L_FLG = L_CNT + 256
L_ACC = L_FLG + 64
AS = 1040
L_Q = L_ACC + 40 * AS
QS = 320
L_X = L_Q + 40 * QS
XS = 288
L_STG = L_X + 40 * XS
STG = 8 * 1040 + 1024
LDS = L_STG + 8 * STG
L_CIMG = L_STG
L_BCNT = L_CIMG + NB * CELLB
WPITCH = 1088
L_GP = L_STG + 1024
L_WS = L_STG + 32 * WPITCH
assert L_BCNT + 1024 <= LDS and L_STG % 16 == 0 and L_ACC % 16 == 0
PADS, PADE = 0x8000003f, 0x80000000
KN = "standalone__mpnn_edge_mlp__graph_kernel"

def stamp(a, i, cyc=None):
    if OPT["stamp"]:
        if cyc is None:
            a(f"  s_memrealtime s[{80+2*i}:{81+2*i}]\n  s_waitcnt lgkmcnt(0)")
        else:
            a(f"  s_memrealtime s[96:97]\n  s_memtime s[98:99]\n  s_waitcnt lgkmcnt(0)\n  s_mov_b32 s{i}, s96\n  s_mov_b32 s{i+2}, s98")

def gen():
    a = Asm()
    R = Regs(1)
    al = R.alloc
    vl = al("lane")
    t0 = al("t", 8, 2); t1, t2, t3, t4, t5, t6, t7 = range(t0+1, t0+8)
    vchunk = al("vchunk"); vechunk = al("vechunk")
    vent = al("vent"); vrow = al("vrow"); vgq = al("vgq"); vga = al("vga")
    vAlo = al("Alo"); vAhi = al("Ahi"); vEF = al("vEF")
    vqlane = al("vqlane"); vacl = al("vacl"); vxb = al("vxb"); vqw = al("vqw")
    vebase = al("vebase"); vone = al("vone"); vt16 = al("vt16"); vcell = al("vcell")
    vqa = al("vqa"); vsrow = al("vsrow"); vgn1 = al("vgn1")
    ENT = al("ENT", 2, 2)
    MAC = al("MAC", 2, 2)
    PAT = al("PAT", 2, 2)
    nq = 2 if OPT["k8"] else 4
    AQ = al("AQ", nq, 2)
    GN = al("GN", 4, 2); AD = al("AD", 4)
    DO = al("DO", 2)
    I0 = al("I0", 4, 2); I1 = al("I1", 4, 2)
    W3 = al("W3", 16, 2)
    W3L = al("W3L", 16, 2) if OPT["lo"] else None
    BQ = al("BQ", 4*nq, 2)
    EF = al("EF", 4, 2)
    PF = al("PF", 32, 2)
    D0 = al("D0", 16, 2); D1 = al("D1", 16, 2)
    EA = al("EA", 8, 2); TA = al("TA", 8, 2); EB = al("EB", 8, 2); TB = al("TB", 8, 2)
    RA = al("RA", 2, 2); RB = al("RB", 2, 2)
    SA = al("SA", 2, 2); SB = al("SB", 2, 2)
    CV = al("CV", 8, 2)
    U = al("U", 12, 2); WUB = al("WUB", 16, 2)
    DUM = al("DUM", 4, 2)
    DK = al("DK", 4, 2)
    nv = R.n
    assert TA == EA + 8 and EB == EA + 16 and TB == EA + 24 and D1 == D0 + 16
    DD = D0; SS_ = D0 + 5; B4 = D0 + 10; RK = D0 + 15; CA = D0 + 20
    CP = PF
    GX = W3
    XL = U
    W1F = WUB
    REC = D0; NOD = D0 + 8; RNK = D1
    W2F = EA; WUT = EB; XF = PF; QD = CV
    sW = 3
    pX, pE, pS, pD, pWM, pWU, pO, pWS = 4, 6, 8, 10, 12, 14, 16, 18
    SP, SE, SC, SW, SO, SV, SF = 20, 24, 28, 32, 36, 40, 44
    T0, T1, T2 = 48, 52, 56
    sStart, sNb, sStg, sCnt, sT, sMode, sKind, sFirst = 60, 61, 62, 63, 64, 65, 66, 67
    sAS, sQS, sTag, sP, sUB, sLo2 = 68, 69, 70, 71, 72, 73
    sCO = 59
    sNp = 79
    sEx, sK, sBad = 74, 76, 78
    sTmp = 4
    sA = 48
    sOV = 48
    sOVT = 74
    sq = 100
    if OPT["stamp"]: NS = 102
    else: NS = 102

    a(f"""
.globl {KN}
.p2align 8
.type {KN},@function
{KN}:
  s_cmp_ge_u32 s2, {NB}
  s_cbranch_scc1 K_END""")
    if OPT["stamp"]: a("  s_memrealtime s[80:81]")
    a(f"""
  s_load_dwordx8 s[4:11], s[0:1], 0
  s_load_dwordx4 s[12:15], s[0:1], 32
  s_load_dwordx2 s[16:17], s[0:1], 48
  s_load_dwordx2 s[18:19], s[0:1], 64
  v_lshrrev_b32 v{t0}, 6, v0
  v_and_b32 v{vl}, 63, v0
  s_and_b32 s{sP}, s2, {FREP-1}
  s_mul_i32 s{sP}, s{sP}, {FLN*256}
  s_and_b32 s{sq}, s2, 7
  s_lshl_b32 s{sq}, s{sq}, 1
  s_bfe_u32 s{sq+1}, s2, 0x10003
  s_and_b32 s2, s2, 0xf0
  s_or_b32 s2, s2, s{sq}
  s_or_b32 s2, s2, s{sq+1}
  s_mul_i32 s{sStart}, s2, 640013
  v_readfirstlane_b32 s{sW}, v{t0}
  s_add_u32 s{sNb}, s{sStart}, {640013+16383}
  s_add_u32 s{sStart}, s{sStart}, 16383
  s_sub_u32 s{sNp}, s{sStart}, 640013
  s_lshr_b32 s{sStart}, s{sStart}, 14
  s_lshr_b32 s{sNb}, s{sNb}, 14
  s_lshr_b32 s{sNp}, s{sNp}, 14
  s_min_u32 s{sNb}, s{sNb}, {N}
  s_sub_u32 s{sCnt}, s{sNb}, s{sNp}
  s_sub_u32 s{sNb}, s{sNb}, s{sStart}
  s_lshl_b32 s{sT}, s{sNp}, 8
  s_sub_u32 s{sNp}, s{sStart}, s{sNp}
  s_mov_b32 s{sMode}, 0
  s_mov_b32 s{sKind}, 0
  s_mov_b32 s{sFirst}, 1
  s_mov_b32 s{sAS}, {AS}
  s_mov_b32 s{sQS}, {QS}
  s_mul_i32 s{sStg}, s{sW}, {STG}
  s_add_u32 s{sStg}, s{sStg}, {L_STG}
  v_lshlrev_b32 v{vt16}, 4, v0
  s_mul_i32 s{sq}, s2, {CH*2}
  v_lshl_add_u32 v{t2}, v0, 2, s{sq}
  v_add_u32 v{t3}, 4096, v{t2}
  v_lshrrev_b32 v{t4}, 4, v{vl}
  v_lshlrev_b32 v{t0}, 1, v{t4}
  v_xor_b32 v{t0}, v{t0}, v{vl}
  v_lshlrev_b32 v{t0}, 4, v{t0}
  s_lshl_b32 s{sq}, s{sW}, 12
  v_add_u32 v{t7}, s{sq}, v{t0}
  s_mul_i32 s{sUB}, s{sW}, {4*WPITCH}
  s_add_u32 s{sUB}, s{sUB}, {L_WS}
  v_add_u32 v{t6}, 8192, v{vt16}
  v_add_u32 v{t5}, 16384, v{vt16}
  s_waitcnt lgkmcnt(0)
  {"s_add_u32 s%d, s%d, %d" % (pWS, pWS, OPT["wsb"] << 20) + chr(10) + "  s_addc_u32 s%d, s%d, 0" % (pWS+1, pWS+1) if OPT["wsb"] else ""}
  s_bitcmp1_b32 s2, 0
  s_cbranch_scc1 K_LDG
  s_cmp_ge_u32 s2, {2*G}
  s_cbranch_scc1 K_LDP""")
    srd(a, T0, pD, E*4)
    srd(a, T1, pS, E*4)
    a(f"  s_movk_i32 s{sq}, 0x2000")
    for r_, T in ((DD, T0), (SS_, T1)):
        a(f"""
  buffer_load_dword v{r_}, v{t2}, {s(T,4)}, 0 offen
  buffer_load_dword v{r_+1}, v{t2}, {s(T,4)}, 0 offen offset:2048
  buffer_load_dword v{r_+2}, v{t3}, {s(T,4)}, 0 offen
  buffer_load_dword v{r_+3}, v{t3}, {s(T,4)}, 0 offen offset:2048
  buffer_load_dword v{r_+4}, v{t2}, {s(T,4)}, s{sq} offen""")
    if OPT["claim"] & 2:
        srd(a, T2, pWS, NB*BSTR, add=WS_CELL)
        a(f"""
  v_lshrrev_b32 v{t4}, 3, v0
  s_mov_b32 s{sq}, {BSTR}
  v_mul_u32_u24 v{t4}, s{sq}, v{t4}
  v_and_b32 v{t0}, 7, v0
  v_lshl_add_u32 v{t4}, v{t0}, 4, v{t4}
  s_lshl_b32 s{sq}, s2, 6
  v_mov_b32 v{PF}, 0
  v_mov_b32 v{PF+1}, 0
  v_mov_b32 v{PF+2}, 0
  v_mov_b32 v{PF+3}, 0""")
        for j in range(4):
            a(f"  buffer_store_dwordx4 {v(PF,4)}, v{t4}, {s(T2,4)}, s{sq} offen sc1\n  s_add_u32 s{sq}, s{sq}, {64*BSTR}")
    def wdma(T):
        for q in range(4):
            a(f"  s_add_u32 m0, s{sUB}, {64*q}\n  s_nop 0\n  buffer_load_dwordx4 v{t7}, {s(T,4)}, 0 offen offset:{1024*q} lds")
    a(f"""
K_LDX:
  s_lshl_b32 s{sq}, s{sStart}, 8
  s_lshl_b32 s{sq+1}, s{sNb}, 8""")
    srd(a, T2, pX, f"s{sq+1}", addreg=sq)
    a(f"""
  buffer_load_dwordx4 {v(XL,4)}, v{vt16}, {s(T2,4)}, 0 offen
  buffer_load_dwordx4 {v(XL+4,4)}, v{t6}, {s(T2,4)}, 0 offen
  s_branch K_LD3
K_LDP:
  s_cmp_eq_u32 s2, {2*G}
  s_cselect_b32 s{T1}, s{pWM}, s{pWU}
  s_cselect_b32 s{T1+1}, s{pWM+1}, s{pWU+1}
  s_cmp_eq_u32 s2, {2*G+2}
  s_cselect_b32 s{sq}, 0, 32768
  s_add_u32 s{T1}, s{T1}, s{sq}
  s_addc_u32 s{T1+1}, s{T1+1}, 0
  s_mov_b32 s{T1+2}, 32768
  s_mov_b32 s{T1+3}, 0x20000""")
    wdma(T1)
    srd(a, T0, pWM, 16*256, add=256*256)
    a(f"""
  v_and_b32 v{t0}, 31, v{vl}
  v_lshrrev_b32 v{t1}, 5, v{vl}
  v_lshlrev_b32 v{t1}, 11, v{t1}
  v_lshl_add_u32 v{t1}, v{t0}, 1, v{t1}
  s_and_b32 s{sq}, s{sW}, 3
  s_lshl_b32 s{sq}, s{sq}, 6""")
    for jj in range(8):
        a(f"  buffer_load_ushort v{D0+jj}, v{t1}, {s(T0,4)}, s{sq} offen offset:{jj*256}")
    a(f"""
  s_branch K_LDX
K_LDG:
  s_lshl_b32 s{sCnt}, s{sCnt}, 8""")
    srd(a, T0, pX, f"s{sCnt}", addreg=sT)
    srd(a, T1, pWM, 128*256)
    a(f"""
  buffer_load_dwordx4 {v(GX,4)}, v{vt16}, {s(T0,4)}, 0 offen
  buffer_load_dwordx4 {v(GX+4,4)}, v{t6}, {s(T0,4)}, 0 offen
  buffer_load_dwordx4 {v(GX+8,4)}, v{t5}, {s(T0,4)}, 0 offen""")
    wdma(T1)
    if OPT["claim"] & 1:
        srd(a, T2, pWS, f"s{sCnt}", add=WS_P, addreg=sT)
        for r_ in (vt16, t6, t5):
            a(f"  buffer_store_dwordx4 {v(PF,4)}, v{r_}, {s(T2,4)}, 0 offen sc1")
    a(f"""
K_LD3:""")
    if OPT["claim"] & 4:
        a(f"  s_lshl_b32 s{sq}, s{sStart}, 8\n  s_lshl_b32 s{sq+1}, s{sNb}, 8")
        srd(a, SO, pWS, f"s{sq+1}", add=WS_P, addreg=sq)
        a(f"""
  s_mul_i32 s{sq}, s{sW}, 1280
  v_lshl_add_u32 v{t1}, v{vl}, 7, s{sq}
  v_mov_b32 v{t0}, 0
  s_mov_b64 exec, 0x3ff
  buffer_atomic_or v{t0}, v{t1}, {s(SO,4)}, 0 offen
  s_mov_b64 exec, -1""")
    a(f"""
  s_add_u32 s{SF}, s{pWS}, {WS_FLAG}
  s_addc_u32 s{SF+1}, s{pWS+1}, 0
  s_load_dword s{sTag}, s[{SF}:{SF+1}], {FNON}
  s_mov_b32 s{SF+2}, {FNON+4}
  s_mov_b32 s{SF+3}, 0x20000
  v_lshrrev_b32 v{t1}, 2, v0
  v_and_b32 v{t4}, 3, v0
  v_lshlrev_b32 v{t4}, 4, v{t4}
  v_lshl_add_u32 v{vcell}, v{t1}, 7, v{t4}
  s_mov_b32 s{sq}, {CH*32}
  v_mul_u32_u24 v{vebase}, s{sq}, v{t1}""")
    a(f"""
  v_mov_b32 v{CV}, 0
  v_mov_b32 v{CV+1}, 0
  v_mov_b32 v{CV+2}, 0
  v_mov_b32 v{CV+3}, 0
  v_add_u32 v{t0}, {L_CIMG}, v{vt16}""")
    a(f"  s_bitcmp1_b32 s2, 0\n  s_cbranch_scc1 K_NOZ")
    for j in range(4):
        a(f"  ds_write_b128 v{t0}, {v(CV,4)} offset:{j*8192}")
    a(f"  s_cmp_lg_u32 s{sW}, 0\n  s_cbranch_scc1 K_NOZ\n  ds_write_b128 v{t0}, {v(CV,4)} offset:32768")
    a("K_NOZ:")
    for j in range(5):
        a(f"  ds_write_b128 v{vt16}, {v(CV,4)} offset:{L_GN + j*8192}")
    a(f"""
  v_cmp_gt_u32 vcc, {(L_Q-L_GN-5*8192)//16}, v0
  s_and_saveexec_b64 {s(sEx,2)}, vcc
  ds_write_b128 v{vt16}, {v(CV,4)} offset:{L_GN + 5*8192}
  s_mov_b64 exec, {s(sEx,2)}""")
    def prefill():
        a(f"""
  v_mov_b32 v{CV+4}, {PADS}
  v_mov_b32 v{CV+5}, {PADE}
  v_mov_b32 v{CV+6}, {PADS}
  v_mov_b32 v{CV+7}, {PADE}
  ds_write_b128 v{vt16}, {v(CV+4,4)}
  ds_write_b128 v{vt16}, {v(CV+4,4)} offset:8192
  v_cmp_gt_u32 vcc, {(L_GN-16384)//16}, v0
  s_and_saveexec_b64 {s(sEx,2)}, vcc
  ds_write_b128 v{vt16}, {v(CV+4,4)} offset:16384
  s_mov_b64 exec, {s(sEx,2)}""")
    prefill()
    a(f"  s_mul_i32 s{sq}, s2, {BSTR}\n  s_lshl_b32 s{sq+1}, s{sStart}, 8\n  s_lshl_b32 s{sK}, s{sNb}, 8")
    srd(a, SC, pWS, G*CELLB, add=WS_CELL, addreg=sq)
    srd(a, SP, pWS, (N+1)*256)
    srd(a, SE, pE, E*32)
    srd(a, SW, pWS, WF_SIZE, add=WS_WF)
    srd(a, SO, pO, f"s{sK}", addreg=sq+1)
    srd(a, SV, pWS, G*OVSTR, add=WS_OVF)
    a(f"""
  v_mov_b32 v{vone}, 1
  v_mov_b32 v{MAC}, 0
  v_mov_b32 v{MAC+1}, 0
  v_and_b32 v{t0}, 15, v{vl}                 ; l&15
  v_bfe_u32 v{t1}, v{vl}, 4, 1               ; r4&1
  v_lshlrev_b32 v{t2}, 3, v{t1}
  v_xor_b32 v{t2}, v{t0}, v{t2}
  v_lshlrev_b32 v{vchunk}, 4, v{t2}
  v_and_b32 v{t2}, 1, v{vl}
  v_xor_b32 v{t2}, v{t2}, v{t1}
  v_lshlrev_b32 v{vechunk}, 4, v{t2}
  v_lshrrev_b32 v{t2}, 4, v{vl}
  v_lshlrev_b32 v{t2}, 6, v{t2}
  v_lshrrev_b32 v{t4}, 1, v{t0}
  v_lshl_add_u32 v{t2}, v{t4}, 3, v{t2}
  s_lshl_b32 s{sq}, s{sW}, 8
  v_add_u32 v{vent}, s{sq}, v{t2}
  v_bfe_u32 v{t2}, v{vl}, 2, 1               ; h
  v_and_b32 v{t4}, 1, v{vl}                  ; xy
  v_lshl_add_u32 v{t5}, v{t2}, 1, v{t4}      ; r4
  v_bfe_u32 v{t6}, v{vl}, 3, 2
  v_bfe_u32 v{t7}, v{vl}, 1, 1
  v_lshl_add_u32 v{t6}, v{t6}, 1, v{t7}      ; j
  v_lshl_add_u32 v{t7}, v{t5}, 3, v{t6}      ; q = 8 r4 + j
  v_lshlrev_b32 v{t7}, 3, v{t7}
  v_add_u32 v{vrow}, s{sq}, v{t7}
  v_lshrrev_b32 v{t7}, 5, v{vl}              ; hh
  v_mul_u32_u24 v{vAlo}, 1040, v{t6}
  v_lshl_add_u32 v{vAlo}, v{t5}, 8, v{vAlo}
  v_lshl_add_u32 v{vAlo}, v{t7}, 4, v{vAlo}
  v_add_u32 v{vAlo}, s{sStg}, v{vAlo}
  v_xor_b32 v{vAhi}, 1, v{t4}
  v_lshl_add_u32 v{vAhi}, v{vAhi}, 7, v{vAlo}
  v_lshl_add_u32 v{vAlo}, v{t4}, 7, v{vAlo}
  v_xor_b32 v{vEF}, v{t7}, v{t4}
  v_lshl_add_u32 v{vEF}, v{t6}, 1, v{vEF}
  v_lshl_add_u32 v{vEF}, v{t5}, 4, v{vEF}
  v_lshlrev_b32 v{vEF}, 4, v{vEF}
  s_add_u32 s{sq+1}, s{sStg}, 8320
  v_add_u32 v{vEF}, s{sq+1}, v{vEF}
  v_bfe_u32 v{t5}, v{vl}, 4, 1               ; o
  v_lshlrev_b32 v{t5}, 4, v{t5}
  v_mov_b32 v{t6}, 0x3f80
  v_lshlrev_b32 v{t5}, v{t5}, v{t6}
  v_cmp_eq_u32 vcc, v{t7}, v{t2}
  s_nop 1
  v_cndmask_b32 v{t5}, 0, v{t5}, vcc
  v_cmp_eq_u32 vcc, 0, v{t4}
  s_nop 1
  v_cndmask_b32 v{PAT}, 0, v{t5}, vcc
  v_cndmask_b32 v{PAT+1}, v{t5}, 0, vcc
  s_lshl_b32 s{sq}, s{sW}, 5
  s_add_u32 s{sq+1}, s{sq}, {L_GN}
  v_lshlrev_b32 v{vga}, 4, v{t7}
  v_add_u32 v{vga}, s{sq+1}, v{vga}
  v_and_b32 v{t2}, 12, v{vl}
  v_add_u32 v{vgq}, v{vga}, v{t2}
  v_and_b32 v{t2}, 3, v{vl}
  v_lshlrev_b32 v{t2}, 3, v{t2}
  v_lshl_add_u32 v{t2}, v{t1}, 5, v{t2}
  v_add_u32 v{vqlane}, {L_Q}, v{t2}
  v_and_b32 v{t2}, 31, v{vl}
  v_lshlrev_b32 v{t4}, 3, v{t2}
  v_add_u32 v{vacl}, {L_ACC}, v{t4}
  v_lshrrev_b32 v{t4}, 4, v{vl}              ; g
  v_mul_u32_u24 v{vxb}, {XS}, v{t0}
  v_lshl_add_u32 v{vxb}, v{t4}, 4, v{vxb}
  v_add_u32 v{vxb}, {L_X}, v{vxb}
  v_mul_u32_u24 v{vqw}, {QS}, v{t0}
  v_lshl_add_u32 v{vqw}, v{t4}, 3, v{vqw}
  s_add_u32 s{sq+1}, s{sq}, {L_Q}
  v_add_u32 v{vqw}, s{sq+1}, v{vqw}
  v_mul_u32_u24 v{vqa}, {2*WPITCH}, v{t4}
  v_bfe_u32 v{t5}, v{vl}, 2, 2
  v_lshl_add_u32 v{vqa}, v{t5}, 8, v{vqa}
  v_xor_b32 v{t5}, s{sW}, v{t5}
  v_lshl_add_u32 v{vqa}, v{t5}, 5, v{vqa}
  v_and_b32 v{t5}, 3, v{vl}
  v_lshl_add_u32 v{vqa}, v{t5}, 3, v{vqa}
  v_add_u32 v{vqa}, {L_WS}, v{vqa}
  v_and_b32 v{t4}, 1, v{vl}
  v_lshlrev_b32 v{t4}, 4, v{t4}
  v_lshlrev_b32 v{t4}, v{t4}, v{t6}
  v_bfe_u32 v{t5}, v{vl}, 1, 4
  v_lshlrev_b32 v{t7}, 2, v{t7}
  v_sub_u32 v{t5}, v{t5}, v{t7}""")
    for i in range(4):
        a(f"  v_cmp_eq_u32 vcc, {i}, v{t5}\n  s_nop 1\n  v_cndmask_b32 v{I0+i}, 0, v{t4}, vcc")
        a(f"  v_cmp_eq_u32 vcc, {8+i}, v{t5}\n  s_nop 1\n  v_cndmask_b32 v{I1+i}, 0, v{t4}, vcc")
    if not OPT["k8"]:
        a(f"  v_mov_b32 v{AQ+2}, 0\n  v_mov_b32 v{AQ+3}, 0")
        for t in range(4):
            a(f"  v_mov_b32 v{BQ+4*t+2}, 0\n  v_mov_b32 v{BQ+4*t+3}, 0")
    def prefetch():
        if not OPT["pf"]: return
        a(f"  s_mul_i32 s{sq}, s2, 40000\n  s_sub_u32 s{sq}, s{sq}, 4096\n  v_add_u32 v{t0}, s{sq}, v{vt16}")
        for j in range(10):
            a(f"  buffer_load_dwordx4 {v(DUM,4)}, v{t0}, {s(SE,4)}, 0 offen")
            if j < 9: a(f"  v_add_u32 v{t0}, 4096, v{t0}")
    def wtr(dst, ad):
        for st in range(4):
            for hf in range(2):
                a(f"  ds_read_b64_tr_b16 {v(dst+4*st+2*hf,2)}, v{ad} offset:{(8*st+hf)*WPITCH}")
    def own_x(nyounger):
        a(f"""
  v_lshrrev_b32 v{t0}, 4, v0
  v_lshl_add_u32 v{t0}, v{t0}, 5, v{vt16}
  v_add_u32 v{t0}, {L_X}, v{t0}
  s_waitcnt vmcnt({nyounger})
  ds_write_b128 v{t0}, {v(XL,4)}
  s_mov_b32 exec_lo, s{sLo2}
  s_mov_b32 exec_hi, s{sLo2}
  ds_write_b128 v{t0}, {v(XL+4,4)} offset:{32*XS}
  s_mov_b64 exec, -1""")
    a(f"""
  s_cmp_lt_u32 s{sW}, 2
  s_cselect_b32 s{sLo2}, -1, 0
  s_lshr_b32 s{sq}, s2, {1+FSH}
  s_lshl_b32 s{sq}, s{sq}, 8
  s_bfe_u32 s{sq+1}, s2, {hex((FSH<<16)|1)}
  s_lshl_b32 s{sq+1}, s{sq+1}, 2
  s_add_u32 s{sq}, s{sq}, s{sq+1}
  s_and_b32 s{sq+1}, s2, 1
  s_mul_i32 s{sq+1}, s{sq+1}, {FHALF}
  s_add_u32 s{sq}, s{sq}, s{sq+1}
  v_mul_u32_u24 v{vgn1}, {FLN*256}, v{vl}
  v_add_u32 v{vgn1}, s{sq}, v{vgn1}
  v_lshrrev_b32 v{t2}, {FSH-1}, v{vl}
  v_lshlrev_b32 v{t2}, 8, v{t2}
  v_and_b32 v{t3}, {(1<<(FSH-1))-1}, v{vl}
  v_lshl_add_u32 v{t2}, v{t3}, 3, v{t2}
  v_add_u32 v{vsrow}, s{sP}, v{t2}
  s_mov_b32 s{sK}, {NLOG2E}
  s_mov_b32 s{sK+1}, {NLOG2E}
  s_waitcnt lgkmcnt(0)
  s_add_u32 s{sTag}, s{sTag}, 1
  s_max_u32 s{sTag}, s{sTag}, 1
  s_bitcmp1_b32 s2, 0
  s_cbranch_scc1 K_GEMM
  s_cmp_ge_u32 s2, {2*G}
  s_cbranch_scc1 K_PREP
  s_mov_b32 s{sq}, {MAGIC}
  v_lshlrev_b32 v{t7}, 6, v0
  v_add_u32 v{t7}, {1<<18}, v{t7}
  s_barrier
  s_waitcnt vmcnt({7+NCC})""")
    stamp(a, 1)
    for j in range(5):
        a(f"""
  v_mul_u32_u24 v{B4+j}, s{sq}, v{DD+j}
  v_lshrrev_b32 v{B4+j}, 18, v{B4+j}
  v_and_b32 v{B4+j}, 0x3fc, v{B4+j}
  v_add_u32 v{t0+j}, {L_BCNT}, v{B4+j}
  ds_add_rtn_u32 v{RK+j}, v{t0+j}, v{vone}""")
    a(f"  s_waitcnt vmcnt({2+NCC})")
    for j in range(5):
        a(f"""
  v_lshl_add_u32 v{SS_+j}, v{SS_+j}, 18, v{t7}
  v_and_or_b32 v{SS_+j}, v{DD+j}, 63, v{SS_+j}
  v_lshlrev_b32 v{CA+j}, 5, v{B4+j}
  v_add_u32 v{CA+j}, {L_CIMG}, v{CA+j}""")
        if j < 4: a(f"  v_add_u32 v{t7}, {512<<6}, v{t7}")
    srd(a, T2, pWS, NB*BSTR, add=WS_CELL)
    a(f"""
  v_lshrrev_b32 v{t4}, 3, v0
  s_mov_b32 s{sq}, {BSTR}
  v_mul_u32_u24 v{t4}, s{sq}, v{t4}
  v_and_b32 v{t5}, 7, v0
  v_lshl_add_u32 v{t4}, v{t5}, 4, v{t4}
  s_lshl_b32 s{sq}, s2, 6
  s_mov_b64 {s(sBad,2)}, 0
  s_waitcnt lgkmcnt(0)""")
    for j in range(5):
        a(f"""
  v_mul_u32_u24 v{t1}, 37, v{RK+j}
  v_lshl_add_u32 v{t0}, v{RK+j}, 2, v{CA+j}
  v_lshrrev_b32 v{t1}, 8, v{t1}
  v_cmp_le_u32 vcc, {CAP-1}, v{RK+j}
  v_lshl_add_u32 v{t0}, v{t1}, 2, v{t0}
  s_or_b64 {s(sBad,2)}, {s(sBad,2)}, vcc
  s_andn2_b64 exec, exec, vcc
  ds_write_b32 v{t0}, v{SS_+j}
  s_mov_b64 exec, -1""")
    a(f"""
  v_add_u32 v{t0}, {L_CIMG}, v{vt16}
  v_mov_b32 v{t2}, {L_FLG+4}
  s_cmp_eq_u64 {s(sBad,2)}, 0
  s_cbranch_scc1 K_NOFULL
  ds_write_b32 v{t2}, v{vone}
K_NOFULL:
  s_waitcnt lgkmcnt(0)
  s_barrier""")
    stamp(a, 2)
    a(f"  ds_read_b32 v{t2}, v{t2}\nK_OVFDONE:")
    for j in range(4):
        a(f"  ds_read_b128 {v(CP+4*j,4)}, v{t0} offset:{8192*j}")
    a(f"""
  s_waitcnt vmcnt({2 if OPT['claim'] & 2 else 63}) lgkmcnt(4)
  v_cmp_ne_u32 vcc, 0, v{t2}
  s_cbranch_vccnz K_OVF""")
    for j in range(4):
        a(f"""
  s_mov_b32 exec_lo, 0xaaaaaaaa
  s_mov_b32 exec_hi, 0xaaaaaaaa
  s_waitcnt lgkmcnt({3-j})
  v_mov_b32 v{CP+4*j+3}, s{sTag}
  s_mov_b64 exec, -1
  buffer_store_dwordx4 {v(CP+4*j,4)}, v{t4}, {s(T2,4)}, s{sq} offen {STF}
  s_add_u32 s{sq}, s{sq}, {64*BSTR}""")
    own_x(4+NA)
    a(f"""
  {"s_sleep %d" % OPT["slpa"] if OPT["slpa"] else ""}
  s_branch K_PST
K_GW:
  {"s_sleep %d" % OPT["slpb"] if OPT["slpb"] else ""}
  s_branch K_PST
K_GEMM:
  ; ---------------- P gemm role: rows of this bucket and the one before ----------------""")
    if OPT["touch"]:
        a(f"""
  s_cmp_lg_u32 s{sW}, 0
  s_cbranch_scc1 K_NOTOUCH
  s_waitcnt vmcnt(0)
  s_mov_b64 exec, {FMASK}
  buffer_load_dword v{DUM}, v{vgn1}, {s(SF,4)}, 0 offen sc1
  s_mov_b64 exec, -1
K_NOTOUCH:""")
    a(f"""
  s_mul_i32 s{sq}, s{sNp}, {XS}
  s_sub_u32 s{sq}, {L_X}, s{sq}
  v_lshrrev_b32 v{t0}, 4, v0
  v_lshl_add_u32 v{t0}, v{t0}, 5, v{vt16}
  v_add_u32 v{t3}, s{sq}, v{t0}
  s_cmp_lt_u32 s{sW}, 4
  s_cselect_b32 s{sq+1}, -1, 0
  v_subrev_u32 v{t1}, {L_X}, v{vxb}
  v_add_u32 v{t1}, s{sq}, v{t1}
  s_waitcnt vmcnt({6+NCL})
  ds_write_b128 v{t3}, {v(GX,4)}
  s_waitcnt vmcnt({5+NCL})
  ds_write_b128 v{t3}, {v(GX+4,4)} offset:{32*XS}
  s_waitcnt vmcnt({4+NCL})
  s_mov_b32 exec_lo, s{sq+1}
  s_mov_b32 exec_hi, s{sq+1}
  ds_write_b128 v{t3}, {v(GX+8,4)} offset:{64*XS}
  s_mov_b64 exec, -1
  v_and_b32 v{t2}, 15, v{vl}
  v_mul_u32_u24 v{t2}, {XS}, v{t2}
  v_lshrrev_b32 v{t3}, 4, v{vl}
  v_lshl_add_u32 v{t2}, v{t3}, 3, v{t2}
  s_lshl_b32 s{sq}, s{sW}, 5
  s_add_u32 s{sq}, s{sq}, {L_GP}
  v_add_u32 v{t2}, s{sq}, v{t2}
  v_add_u32 v{t0}, {L_GP - 16*XS}, v{t0}
  v_subrev_u32 v{t4}, 4096, v{vt16}""")
    srd(a, T0, pWS, f"s{sCnt}", add=WS_P, addreg=sT)
    a(f"  s_waitcnt vmcnt({NCL}) lgkmcnt(0)\n  s_barrier")
    stamp(a, 1)
    wtr(W1F, vqa)
    XT = [PF, PF+16, EA, EB, PF]
    for nt in range(4):
        for st in range(4):
            a(f"  ds_read_b128 {v(XT[nt]+4*st,4)}, v{t1} offset:{nt*16*XS + st*64}")
    for nt in range(5):
        a(f"  s_waitcnt lgkmcnt({(12, 12, 8, 4, 0)[nt]})")
        for st in range(4):
            c = "0" if st == 0 else v(D0+4*nt, 4)
            a(f"  v_mfma_f32_16x16x32_bf16 {v(D0+4*nt,4)}, {v(W1F+4*st,4)}, {v(XT[nt]+4*st,4)}, {c}")
        if nt == 0:
            for st in range(4):
                a(f"  ds_read_b128 {v(PF+4*st,4)}, v{t1} offset:{4*16*XS + st*64}")
    for nt in range(5):
        d = D0 + 4*nt
        if nt == 4: a("  s_nop 1")
        a(f"""
  v_pk_mul_f32 {v(d,2)}, {v(d,2)}, {s(sK,2)}
  v_pk_mul_f32 {v(d+2,2)}, {v(d+2,2)}, {s(sK,2)}
  v_cvt_pk_bf16_f32 v{W3+2*nt}, v{d}, v{d+1}
  v_cvt_pk_bf16_f32 v{W3+2*nt+1}, v{d+2}, v{d+3}
  ds_write_b64 v{t2}, {v(W3+2*nt,2)} offset:{nt*16*XS}""")
    a(f"  s_waitcnt vmcnt({NA}) lgkmcnt(0)\n  s_barrier")
    stamp(a, 2)
    a(f"""
  s_cmp_lt_u32 s{sW}, 4
  s_cbranch_scc1 K_GW""")
    for j in range(5):
        a(f"  ds_read_b128 {v(PF+4*j,4)}, v{t0} offset:{j*16*XS}")
    if OPT["zt"]:
        srd(a, T1, pWS, f"s{sCnt}", add=0x1800000, addreg=sT)
        a(f"  s_waitcnt lgkmcnt(0)\n  v_mov_b32 v{t1}, v{t4}")
        for j in range(5):
            a(f"  buffer_store_dwordx4 {v(PF+4*j,4)}, v{t1}, {s(T1,4)}, 0 offen {STF}\n  v_add_u32 v{t1}, 4096, v{t1}")
        a("  s_waitcnt vmcnt(0)")
        stamp(a, 1)
    for j in range(5):
        a(f"  s_waitcnt lgkmcnt({4-j})\n  buffer_store_dwordx4 {v(PF+4*j,4)}, v{t4}, {s(T0,4)}, 0 offen {STF}")
        if j < 4: a(f"  v_add_u32 v{t4}, 4096, v{t4}")
    a(f"""
  v_mov_b32 v{t0}, {L_FLG+12}
  v_mov_b32 v{t7}, s{sTag}
  s_mov_b64 exec, 1
  s_waitcnt vmcnt(0)""")
    stamp(a, 3)
    a(f"""
  ds_add_rtn_u32 v{t0}, v{t0}, v{vone}
  s_waitcnt lgkmcnt(0)
  v_readfirstlane_b32 s{sq}, v{t0}
  s_mov_b64 exec, -1
  s_cmp_lg_u32 s{sq}, 3
  s_cbranch_scc1 K_PST
K_FLAG:
  s_mov_b64 exec, {FMASK}
  buffer_store_dword v{t7}, v{vgn1}, {s(SF,4)}, 0 offen {FLF}
  s_mov_b64 exec, -1
K_PST:""")
    def node_gemm(WA, WB=None):
        for nt in range(3):
            xf = XF + 16*(nt & 1)
            if nt == 0:
                for n2 in range(2):
                    for st in range(4):
                        a(f"  ds_read_b128 {v(XF+16*n2+4*st,4)}, v{vxb} offset:{n2*16*XS + st*64}")
            a(f"  s_waitcnt lgkmcnt({4 if nt == 0 else 5 if nt == 1 else 1})")
            q = QD if nt != 1 else SA
            for st in range(4):
                c = "0" if st == 0 else v(q, 4)
                a(f"  v_mfma_f32_16x16x32_bf16 {v(q,4)}, {v(WA+4*st,4)}, {v(xf+4*st,4)}, {c}")
            if WB is not None:
                for st in range(4):
                    c = "0" if st == 0 else v(U+4*nt, 4)
                    a(f"  v_mfma_f32_16x16x32_bf16 {v(U+4*nt,4)}, {v(WB+4*st,4)}, {v(xf+4*st,4)}, {c}")
            if nt == 0:
                for st in range(4):
                    a(f"  ds_read_b128 {v(XF+4*st,4)}, v{vxb} offset:{2*16*XS + st*64}")
            a(f"""
  s_nop 7
  v_pk_mul_f32 {v(q,2)}, {v(q,2)}, {s(sK,2)}
  v_pk_mul_f32 {v(q+2,2)}, {v(q+2,2)}, {s(sK,2)}
  v_cvt_pk_bf16_f32 v{QD+4+2*(nt&1)}, v{q}, v{q+1}
  v_cvt_pk_bf16_f32 v{QD+5+2*(nt&1)}, v{q+2}, v{q+3}""")
            if nt == 2:
                a(f"  s_mov_b32 exec_lo, 0x00ff00ff\n  s_mov_b32 exec_hi, 0x00ff00ff")
            a(f"  ds_write_b64 v{vqw}, {v(QD+4+2*(nt&1),2)} offset:{nt*16*QS}")
            if nt == 2:
                a("  s_mov_b64 exec, -1")
    assert SB == SA + 2
    def poll(lab, off):
        a(f"""
  s_cmp_lg_u32 s{sW}, 1
  s_cbranch_scc1 {lab}_D
  s_mov_b32 s{sq}, 0
  s_mov_b32 s{sq+1}, {off}
  {"s_sleep %d" % OPT["slp0"] if OPT["slp0"] and off == 0 else ""}
{lab}:
  buffer_load_dwordx2 {v(DUM,2)}, v{vsrow}, {s(SF,4)}, s{sq+1} offen {PLF}
  s_add_u32 s{sq}, s{sq}, 1
  s_waitcnt vmcnt(0)
  v_cmp_ne_u32 vcc, s{sTag}, v{DUM}
  v_cmp_ne_u32 {s(sBad,2)}, s{sTag}, v{DUM+1}
  s_or_b64 vcc, vcc, {s(sBad,2)}
  s_cbranch_scc0 {lab}_D
  {"s_sleep %d" % OPT["slp"] if OPT["slp"] else ""}
  s_cmp_lt_u32 s{sq}, 0x8000
  s_cbranch_scc1 {lab}
{lab}_D:""")
    stamp(a, 5)
    nld = 16 if OPT["lo"] else 12
    a(f"""
  s_lshl_b32 s{sTmp}, s{sW}, 12
  s_add_u32 s{sTmp+1}, s{sTmp}, {WF_UT}
  s_add_u32 s{sUB}, s{sTmp}, {WF_UB}
  s_mov_b32 s{sTmp+2}, {WF_3H}
  s_mov_b32 s{sTmp+3}, {WF_3L}
  s_mov_b32 s{sOV}, 0xaaaaaaaa
  s_cmp_eq_u32 s{sW}, 7
  s_cselect_b32 s{sOV+1}, 0xaaaaa, s{sOV}
  v_min_u32 v{t4}, 2, v{vl}
  v_lshl_add_u32 v{t4}, v{t4}, 2, s{sP}
  v_mov_b32 v{t5}, s{sTag}
  s_mov_b32 s{sq}, 0
  {"s_sleep %d" % OPT["slp0"] if OPT["slp0"] else ""}
K_CPOLL:
  buffer_load_dwordx4 {v(REC,4)}, v{vcell}, {s(SC,4)}, 0 offen sc1
  buffer_load_dwordx4 {v(REC+4,4)}, v{vcell}, {s(SC,4)}, 0 offen offset:64 sc1
  s_cmp_lg_u32 s{sW}, 1
  s_cbranch_scc1 K_CPOLL1
  buffer_load_dword v{t5}, v{t4}, {s(SF,4)}, 0 offen offset:{(FLN-1)*256 + (125 - (FLN-1)*(128//FLN))*4} sc1
K_CPOLL1:
  s_add_u32 s{sq}, s{sq}, 1
  s_waitcnt vmcnt(0)
  v_cmp_ne_u32 vcc, s{sTag}, v{REC+3}
  v_cmp_ne_u32 {s(sBad,2)}, s{sTag}, v{REC+7}
  s_or_b64 {s(sBad,2)}, vcc, {s(sBad,2)}
  v_cmp_ne_u32 vcc, s{sTag}, v{t5}
  s_and_b64 {s(sBad,2)}, {s(sBad,2)}, {s(sOV,2)}
  s_or_b64 {s(sBad,2)}, {s(sBad,2)}, vcc
  s_cbranch_scc0 K_CPOLLD
  {"s_sleep %d" % OPT["slp"] if OPT["slp"] else ""}
  s_cmp_lt_u32 s{sq}, 0x8000
  s_cbranch_scc1 K_CPOLL
K_CPOLLD:
  s_mov_b32 exec_lo, 0xaaaaaaaa
  s_mov_b32 exec_hi, 0xaaaaaaaa
  v_mov_b32 v{REC+3}, 0
  v_mov_b32 v{REC+7}, 0
  s_mov_b64 exec, -1""")
    stamp(a, 6)
    wl = [f"  buffer_load_dwordx4 {v(W2F+4*st,4)}, v{t0}, {s(SW,4)}, s{sTmp} offen offset:{st*1024} sc1" for st in range(4)]
    wl += [f"  buffer_load_dwordx4 {v(WUT+4*st,4)}, v{t0}, {s(SW,4)}, s{sTmp+1} offen offset:{st*1024} sc1" for st in range(4)]
    wl += [f"  buffer_load_dwordx4 {v(W3+4*st,4)}, v{t0}, {s(SW,4)}, s{sTmp+2} offen offset:{st*1024} sc1" for st in range(4)]
    if OPT["lo"]:
        wl += [f"  buffer_load_dwordx4 {v(W3L+4*st,4)}, v{t0}, {s(SW,4)}, s{sTmp+3} offen offset:{st*1024} sc1" for st in range(4)]
    NR = 8
    a(f"""
K_PHASE1:
  v_cmp_le_u32 vcc, 0xfffc0000, v{REC+NR-2}
  s_cbranch_vccz K_NOMARK
  s_and_saveexec_b64 {s(sEx,2)}, vcc
  v_lshrrev_b32 v{t0}, 2, v0                 ; producer
  v_lshrrev_b32 v{t1}, 5, v{t0}
  v_lshlrev_b32 v{t1}, 2, v{t1}
  v_lshlrev_b32 v{t0}, v{t0}, v{vone}
  ds_or_b32 v{t1}, v{t0} offset:{L_FLG+32}
  v_mov_b32 v{REC+NR-2}, 0
  s_mov_b64 exec, {s(sEx,2)}
K_NOMARK:""")
    for k in range(NR):
        if k == 4:
            a(f"""
  v_or3_b32 v{t3}, v{REC+k}, v{REC+k+1}, v{REC+k+2}
  v_or_b32 v{t3}, v{t3}, v{REC+k+3}
  v_cmp_ne_u32 vcc, 0, v{t3}
  s_cbranch_vccz K_P1E""")
        a(f"""
  v_lshlrev_b32 v{NOD+k}, 2, v{REC+k}
  v_and_b32 v{NOD+k}, 0xfc, v{NOD+k}
  v_cmpx_ne_u32 vcc, 0, v{REC+k}
  ds_add_rtn_u32 v{RNK+k}, v{NOD+k}, v{vone} offset:{L_CNT}
  s_mov_b64 exec, -1""")
    a(f"""
K_P1E:
  v_lshlrev_b32 v{t0}, 2, v{vl}
  v_subrev_u32 v{t4}, s{sStart}, v{vl}
  v_and_b32 v{t4}, 63, v{t4}
  s_waitcnt lgkmcnt(0)
  s_barrier
  ds_read_b32 v{t1}, v{t0} offset:{L_CNT}
  v_lshlrev_b32 v{t0}, 4, v{vl}
  s_cmp_eq_u32 s{sFirst}, 0
  s_cbranch_scc1 K_NOWL""")
    for x in wl: a(x)
    a(f"""
K_NOWL:
  s_waitcnt lgkmcnt(0)
  v_add_u32 v{t1}, 3, v{t1}
  v_bfe_u32 v{t5}, v{t1}, 2, 1               ; left-over quad
  v_lshrrev_b32 v{t6}, 3, v{t1}
  v_lshl_or_b32 v{t1}, v{t5}, 16, v{t6}
  v_mov_b32 v{t2}, v{t1}
  s_nop 1
  v_add_u32_dpp v{t2}, v{t2}, v{t2} row_shr:1 row_mask:0xf bank_mask:0xf
  s_nop 1
  v_add_u32_dpp v{t2}, v{t2}, v{t2} row_shr:2 row_mask:0xf bank_mask:0xf
  s_nop 1
  v_add_u32_dpp v{t2}, v{t2}, v{t2} row_shr:4 row_mask:0xf bank_mask:0xf
  s_nop 1
  v_add_u32_dpp v{t2}, v{t2}, v{t2} row_shr:8 row_mask:0xf bank_mask:0xf
  s_nop 1
  v_add_u32_dpp v{t2}, v{t2}, v{t2} row_bcast:15 row_mask:0xa bank_mask:0xf
  s_nop 1
  v_add_u32_dpp v{t2}, v{t2}, v{t2} row_bcast:31 row_mask:0xc bank_mask:0xf
  s_nop 1
  v_readlane_b32 s{sT}, v{t2}, 63
  v_sub_u32 v{t1}, v{t2}, v{t1}
  s_lshr_b32 s{sq+1}, s{sT}, 16
  s_and_b32 s{sCO}, s{sT}, 0xffff
  s_lshl_b32 s{sq}, s{sCO}, 1                ; quads in the groups of eight
  s_lshr_b32 s{sCO}, s{sCO}, 2
  s_add_u32 s{sT}, s{sq}, s{sq+1}
  s_add_u32 s{sT}, s{sT}, 7
  s_lshr_b32 s{sT}, s{sT}, 3
  v_lshrrev_b32 v{t2}, 16, v{t1}
  v_add_u32 v{t2}, s{sq}, v{t2}              ; quad slot of the left-over quad
  v_and_b32 v{t1}, 0xffff, v{t1}
  v_lshl_or_b32 v{t0}, v{t6}, 16, v{t1}
  v_lshlrev_b32 v{t0}, 3, v{t0}              ; 8*start8 | 8*n8 << 16
  v_lshlrev_b32 v{t7}, 1, v{t6}
  v_sub_u32 v{t7}, v{t2}, v{t7}
  v_lshlrev_b32 v{t7}, 2, v{t7}              ; position base of the left-over quad
  s_cmp_gt_u32 s{sT}, {CAPB}
  s_cbranch_scc1 K_SPLIT""")
    for k0 in (0, 4):
        if k0:
            a(f"""
  v_or3_b32 v{t3}, v{REC+k0}, v{REC+k0+1}, v{REC+k0+2}
  v_or_b32 v{t3}, v{t3}, v{REC+k0+3}
  v_cmp_ne_u32 vcc, 0, v{t3}
  s_cbranch_vccz K_P2E""")
        for k in range(k0, k0+4):
            a(f"  ds_bpermute_b32 v{PF+24+(k&3)}, v{NOD+k}, v{t7}")
            a(f"  ds_bpermute_b32 v{NOD+k}, v{NOD+k}, v{t0}")
        for k in range(k0, k0+4):
            e = PF + 16 + 2*(k & 3)
            a(f"""
  v_lshrrev_b32 v{e}, 10, v{REC+k}
  v_and_b32 v{e}, {hex(0xffffff00 if not OPT['hot'] else 0x1f00)}, v{e}
  v_bfe_u32 v{e+1}, v{REC+k}, 6, 12
  v_lshl_add_u32 v{e+1}, v{e+1}, 5, v{vebase}""")
            if OPT["hot"]: a(f"  v_and_b32 v{e+1}, 0xfe0, v{e+1}")
        a("  s_waitcnt lgkmcnt(0)")
        for k in range(k0, k0+4):
            a(f"  v_cmp_lt_u32_sdwa {s(8+2*(k&3),2)}, v{RNK+k}, v{NOD+k} src0_sel:DWORD src1_sel:WORD_1")
        for k in range(k0, k0+4):
            a(f"  v_and_b32 v{NOD+k}, 0xffff, v{NOD+k}")
        for k in range(k0, k0+4):
            a(f"  v_cndmask_b32 v{NOD+k}, v{PF+24+(k&3)}, v{NOD+k}, {s(8+2*(k&3),2)}")
        for k in range(k0, k0+4):
            e = PF + 16 + 2*(k & 3)
            a(f"""
  v_add_lshl_u32 v{NOD+k}, v{NOD+k}, v{RNK+k}, 3
  v_cmpx_ne_u32 vcc, 0, v{REC+k}
  ds_write_b64 v{NOD+k}, {v(e,2)}
  s_mov_b64 exec, -1""")
    a(f"""
K_P2E:
  v_lshlrev_b32 v{t2}, 2, v{t2}
  v_cmpx_ne_u32 vcc, 0, v{t5}
  ds_write_b32 v{t2}, v{t4} offset:{L_GN}
  s_mov_b64 exec, -1
  v_add_lshl_u32 v{t2}, v{t1}, v{t6}, 3
  v_lshl_add_u32 v{t1}, v{t1}, 1, s{sW}
  v_lshlrev_b32 v{t1}, 2, v{t1}
K_GNL:
  v_cmpx_lt_u32 vcc, v{t1}, v{t2}
  ds_write_b32 v{t1}, v{t4} offset:{L_GN}
  v_add_u32 v{t1}, 32, v{t1}
  v_cmpx_lt_u32 vcc, v{t1}, v{t2}
  ds_write_b32 v{t1}, v{t4} offset:{L_GN}
  v_add_u32 v{t1}, 32, v{t1}
  v_cmpx_lt_u32 vcc, v{t1}, v{t2}
  s_cbranch_execnz K_GNL
  s_mov_b64 exec, -1
  s_add_u32 s{sCnt}, s{sT}, 7
  s_sub_u32 s{sCnt}, s{sCnt}, s{sW}
  s_lshr_b32 s{sCnt}, s{sCnt}, 3
  s_add_u32 s{sCO}, s{sCO}, 7
  s_sub_u32 s{sCO}, s{sCO}, s{sW}
  s_lshr_b32 s{sCO}, s{sCO}, 3
  {("s_mov_b32 s%d, 40" % sCnt + chr(10) + "  s_movk_i32 s%d, 320" % sT + chr(10) + "  s_mov_b32 s%d, 40" % sCO) if OPT["bench"] else ""}
""")
    stamp(a, 4)
    a(f"""
  s_cmp_eq_u32 s{sFirst}, 0
  s_cbranch_scc1 K_POLL2_D""")
    poll("K_POLL2", FHALF)
    a("  s_waitcnt lgkmcnt(0)\n  s_barrier")
    stamp(a, 7)
    dsc = " sc1" if OPT["dsc"] else ""
    def dma_issue():
        L = []
        for j in range(8):
            d = DO + (j & 1)
            L.append([f"  s_add_u32 m0, s{sStg}, {j*1040}",
                      f"  v_add_u32_dpp v{d}, v{ENT}, v{vchunk} row_newbcast:{2*j} row_mask:0xf bank_mask:0xf",
                      f"  buffer_load_dwordx4 v{d}, {s(SP,4)}, 0 offen{dsc} lds" if not OPT["nodma"] else "  s_nop 0"])
        L.append([f"  s_add_u32 m0, s{sStg}, 8320",
                  f"  v_add_u32 v{DO}, v{ENT+1}, v{vechunk}",
                  f"  buffer_load_dwordx4 v{DO}, {s(SE,4)}, 0 offen lds" if not (OPT["nodma"] or OPT["noe"]) else "  s_nop 0"])
        return L
    ndma = 0 if OPT["nodma"] else 8 if OPT["noe"] else 9
    def frag_reads():
        L = []
        for st in range(8):
            L.append(f"  ds_read_b128 {v(PF+4*st,4)}, v{vAlo if st < 4 else vAhi} offset:{32*(st&3)}")
        L.insert(2, f"  ds_read_b128 {v(EF,4)}, v{vEF}")
        return L
    def bq_reads():
        return [f"  ds_read_b64_tr_b16 {v(BQ+nq*t,2)}, v{vqa} offset:{64*t}" for t in range(4)]
    def chain(t, D):
        L = [f"  v_mfma_f32_32x32x16_bf16 {v(D,16)}, {v(EF,4)}, {v(W3+4*t,4)}, 0"]
        if OPT["lo"]:
            L.append(f"  v_mfma_f32_32x32x16_bf16 {v(D,16)}, {v(EF,4)}, {v(W3L+4*t,4)}, {v(D,16)}")
        L.append(f"  v_mfma_f32_32x32x16_bf16 {v(D,16)}, {v(PF+8*t,4)}, {v(I0,4)}, {v(D,16)}")
        L.append(f"  v_mfma_f32_32x32x16_bf16 {v(D,16)}, {v(PF+8*t+4,4)}, {v(I1,4)}, {v(D,16)}")
        if OPT["k8"]:
            L.append(f"  v_mfma_f32_32x32x8bf16_1k {v(D,16)}, {v(AQ,2)}, {v(BQ+2*t,2)}, {v(D,16)}")
        else:
            L.append(f"  v_mfma_f32_32x32x16_bf16 {v(D,16)}, {v(AQ,4)}, {v(BQ+4*t,4)}, {v(D,16)}")
        return L

    a(f"  ds_read_b64 {v(ENT,2)}, v{vent}\n  s_waitcnt lgkmcnt(0)")
    for x in dma_issue(): a("\n".join(x))
    a(f"  ds_read_b64 {v(ENT,2)}, v{vent} offset:2048")
    a(f"""
  s_cmp_eq_u32 s{sFirst}, 0
  s_cbranch_scc1 K_NOGEMM0
  s_mov_b32 s{sFirst}, 0
  s_waitcnt vmcnt({ndma}) lgkmcnt(0)""")
    node_gemm(W2F, WUT)
    a(f"  v_lshlrev_b32 v{t4}, 4, v{vl}")
    for st in range(4):
        a(f"  buffer_load_dwordx4 {v(WUB+4*st,4)}, v{t4}, {s(SW,4)}, s{sUB} offen offset:{st*1024} sc1")
    a(f"""
  s_or_b32 s{sq}, s2, s{sW}
  s_cmp_lg_u32 s{sq}, 0
  s_cbranch_scc1 K_NONONCE
  s_mov_b64 exec, 1
  v_mov_b32 v{t0}, {FNON}
  v_mov_b32 v{t1}, s{sTag}
  buffer_store_dword v{t1}, v{t0}, {s(SF,4)}, 0 offen
  s_mov_b64 exec, -1
  s_waitcnt vmcnt(0)
K_NONONCE:
  s_waitcnt lgkmcnt(0)
  s_barrier
K_NOGEMM:
  ds_read_b32 v{vgn1}, v{vgq}
  ds_read_b32 v{vsrow}, v{vrow}
  ds_read_b128 {v(GN,4)}, v{vga}
  s_waitcnt vmcnt(4)""")
    stamp(a, 8, 96)
    for x in frag_reads(): a(x)
    a(f"""
  s_waitcnt lgkmcnt(9)
  v_mad_u32_u24 v{vqa}, v{vgn1}, s{sQS}, v{vqlane}
  v_lshrrev_b64 {v(AQ,2)}, v{vsrow}, {v(PAT,2)}""")
    for x in bq_reads(): a(x)
    a("  s_waitcnt lgkmcnt(0)")
    for x in dma_issue(): a("\n".join(x))
    for x in chain(0, D0): a(x)
    if OPT["prio"]:
        a(f"  s_cmp_lt_u32 s{sW}, 4\n  s_cbranch_scc1 K_PR\n  s_setprio 1\nK_PR:")
    a(f"""
  s_nop 7
  s_nop 3
  s_cmp_eq_u32 s{sCnt}, 0
  s_cbranch_scc1 K_LOOPEND
  s_cmp_lg_u32 s{sMode}, 0
  s_cbranch_scc1 K_SAFE
  {"s_branch K_QUAD" if not OPT["octo"] else ""}
  s_sub_u32 s{sCnt}, s{sCnt}, s{sCO}
  s_cmp_eq_u32 s{sCO}, 0
  s_cbranch_scc1 K_QUAD""")

    def p(r): return v(r, 2)
    def octet_fast(d, e, t, r, sres):
        ex = [f"  v_exp_f32 v{e+i}, v{d+i}" for i in range(8)]
        L = [f"  v_pk_add_f32 {p(t)}, {p(e)}, 1.0 op_sel_hi:[1,0]",
             f"  v_pk_add_f32 {p(t+2)}, {p(e+4)}, 1.0 op_sel_hi:[1,0]",
             f"  v_pk_fma_f32 {p(t+4)}, {p(d)}, {p(e+2)}, {p(d)}",
             f"  v_pk_fma_f32 {p(t+6)}, {p(d+4)}, {p(e+6)}, {p(d+4)}",
             f"  v_pk_fma_f32 {p(e)}, {p(t)}, {p(e+2)}, {p(t)}",
             f"  v_pk_fma_f32 {p(e+4)}, {p(t+2)}, {p(e+6)}, {p(t+2)}",
             f"  v_pk_fma_f32 {p(t+4)}, {p(d+2)}, {p(t)}, {p(t+4)}",
             f"  v_pk_fma_f32 {p(t+6)}, {p(d+6)}, {p(t+2)}, {p(t+6)}",
             f"  v_pk_mul_f32 {p(t)}, {p(e)}, {p(e+4)}",
             f"  v_pk_mul_f32 {p(t+4)}, {p(t+4)}, {p(e+4)}",
             f"  v_rcp_f32 v{r}, v{t}",
             f"  v_rcp_f32 v{r+1}, v{t+1}",
             f"  v_pk_fma_f32 {p(t+4)}, {p(t+6)}, {p(e)}, {p(t+4)}",
             f"  v_pk_mul_f32 {p(sres)}, {p(t+4)}, {p(r)}"]
        return ex, L
    def octet_safe(d, e, t, r, sres):
        ex = [f"  v_exp_f32 v{e+i}, v{d+i}" for i in range(8)]
        L = [f"  v_pk_add_f32 {p(e+2*i)}, {p(e+2*i)}, 1.0 op_sel_hi:[1,0]" for i in range(4)]
        L += [f"  v_rcp_f32 v{t+i}, v{e+i}" for i in range(8)]
        L += [f"  v_pk_mul_f32 {p(sres)}, {p(d)}, {p(t)}"]
        L += [f"  v_pk_fma_f32 {p(sres)}, {p(d+2*i)}, {p(t+2*i)}, {p(sres)}" for i in range(1, 4)]
        return ex, L
    def zipl(x, y):
        o = []
        for i in range(max(len(x), len(y))):
            if i < len(x): o.append(x[i])
            if i < len(y): o.append(y[i])
        return o
    def adds(t, kind):
        if OPT["noadd"]: return [f"  ds_read_b32 v{DUM}, v{vgq}"] * (2 if kind == "octo" else 4)
        if kind == "octo": return [f"  ds_add_f64 v{AD+2*xy}, {v(CV+2*xy,2)} offset:{256*t}" for xy in range(2)]
        return [f"  ds_add_f64 v{AD+2*xy+o}, {v(CV+2*(2*o+xy),2)} offset:{256*t}" for o in range(2) for xy in range(2)]
    def block_body(kind, u, nun):
        oc = octet_safe if kind == "safe" else octet_fast
        nadd = 2 if kind == "octo" else 4
        B = []
        for t in range(4):
            D = D0 if t % 2 == 0 else D1
            Dn = D1 if t % 2 == 0 else D0
            exa, La = oc(D, EA, TA, RA, SA)
            exb, Lb = oc(D+8, EB, TB, RB, SB)
            ex = exa + exb
            ch = chain((t+1) % 4, Dn)
            late = []
            if kind == "octo":
                keep = lambda L: [x for x in L[:-1] if "v_rcp" not in x]
                dk = DK + 2*(t & 1)
                pk = zipl(keep(La), keep(Lb))
                pk = pk[:-4] + [f"  v_pk_mul_f32 {p(dk)}, {p(TA)}, {p(TB)}"] + pk[-4:-2] + \
                     [f"  v_rcp_f32 v{RA}, v{dk}", f"  v_rcp_f32 v{RA+1}, v{dk+1}"] + pk[-2:] + \
                     [f"  v_pk_mul_f32 {p(TA+4)}, {p(TA+4)}, {p(TB)}"]
                if t & 1: pk.append(f"  v_pk_fma_f32 {p(MAC)}, {p(DK)}, {p(DK+2)}, {p(MAC)}")
                pk += [f"  v_pk_fma_f32 {p(TA+4)}, {p(TB+4)}, {p(TA)}, {p(TA+4)}",
                       f"  v_pk_mul_f32 {p(SA)}, {p(TA+4)}, {p(RA)}"]
                fin = [f"  v_cvt_f64_f32 {v(CV+2*xy,2)}, v{SA+xy}" for xy in range(2)]
                adr = (0, 2)
            else:
                pk = zipl(La, Lb)
                if kind == "quad":
                    idx = max(i for i, x in enumerate(pk) if x.startswith(f"  v_pk_mul_f32 {p(TB)}, {p(EB)}"))
                    pk.insert(idx+1, f"  v_pk_fma_f32 {p(MAC)}, {p(TA)}, {p(TB)}, {p(MAC)}")
                fin = [f"  v_cvt_f64_f32 {v(CV+2*(2*o+xy),2)}, v{S+xy}" for o, S in ((0, SA), (1, SB)) for xy in range(2)]
                adr = range(4)
            fin += adds(t, kind)
            if t == 0:
                pk = pk[:4] + [f"  v_mad_u32_u24 v{AD+i}, v{GN+i}, s{sAS}, v{vacl}" for i in adr] + pk[4:]
            if t == 1:
                pk = pk[:8] + [f"  ds_read_b64 {v(ENT,2)}, v{vent} offset:{4096+2048*u}",
                      f"  ds_read_b32 v{vgn1}, v{vgq} offset:{256+256*u}",
                      f"  ds_read_b32 v{vsrow}, v{vrow} offset:{2048+2048*u}",
                      f"  ds_read_b128 {v(GN,4)}, v{vga} offset:{256+256*u}"] + pk[8:]
            if t == 3:
                B.append(f"  s_waitcnt lgkmcnt({nadd})")
            dma = dma_issue() if t == 3 else []
            per = 16 // len(ch); e = 0
            for i, m in enumerate(ch):
                B.append(m)
                n = per if i < len(ch)-1 else 16 - e
                B += ex[e:e+2]
                if late: B.append(late.pop(0))
                B += ex[e+2:e+n]; e += n
                if OPT["dmapos"] == 0:
                    for _ in range(2):
                        if dma: B += dma.pop(0)
            if t == 2:
                mid = [f"  s_waitcnt vmcnt(0) lgkmcnt({nadd})",
                       f"  v_mad_u32_u24 v{vqa}, v{vgn1}, s{sQS}, v{vqlane}"]
                rd = frag_reads() + bq_reads()
                aq = [f"  v_lshrrev_b64 {v(AQ,2)}, v{vsrow}, {v(PAT,2)}"]
                if OPT["rdgap"] == 0: B += mid + rd + aq + pk
                else:
                    q = []
                    for i, x in enumerate(aq + pk):
                        if rd and i % OPT["rdgap"] == 0: q.append(rd.pop(0))
                        q.append(x)
                    B += mid + q + rd
            elif t == 3:
                inc = []
                if u == nun - 1 and OPT["bench"]:
                    inc = [f"  v_add_u32 v{DUM+i}, {2048*nun}, v{vent}" for i in range(4)]
                elif u == nun - 1:
                    inc = incs(nun)
                pk = pk + inc
                if OPT["dmapos"] == 1:
                    q = []
                    for i, x in enumerate(pk):
                        if dma and i % 3 == 0: q += dma.pop(0)
                        q.append(x)
                    pk = q
                for x in dma: B += x
                B += pk
            else:
                B += pk
            B += fin
        return B
    def incs(n):
        return [f"  v_add_u32 v{vent}, {2048*n}, v{vent}", f"  v_add_u32 v{vrow}, {2048*n}, v{vrow}",
                f"  v_add_u32 v{vgq}, {256*n}, v{vgq}", f"  v_add_u32 v{vga}, {256*n}, v{vga}"]
    def loop(kind):
        lab = {"safe": "K_SAFE", "quad": "K_QUAD", "octo": "K_FAST"}[kind]
        nun = OPT["unroll"] if kind == "octo" else 1
        cnt = sCO if kind == "octo" else sCnt
        L = []
        for u in range(nun):
            L += block_body(kind, u, nun)
            L.append(f"  s_sub_u32 s{cnt}, s{cnt}, 1")
            L.append(f"  s_cmp_lg_u32 s{cnt}, 0")
            L.append(f"  s_cbranch_scc1 {lab}" if u == nun - 1 else f"  s_cbranch_scc0 K_OX{u}")
        ab = OPT["abl"]
        if ab & 1: L = [x for x in L if not ("v_mfma" in x and (f", {v(I0,4)}," in x or f", {v(I1,4)}," in x))]
        if ab & 2: L = [x for x in L if "v_mfma_f32_32x32x8" not in x and "tr_b16" not in x]
        if ab & 4: L = [x.replace("v_exp_f32", "v_mov_b32") for x in L]
        if ab & 8: L = [x for x in L if "v_pk_" not in x]
        if ab & 16: L = [x for x in L if "v_mfma" not in x]
        if ab & 32: L = [x for x in L if "ds_read_b128" not in x]
        if ab & 64: L = [x for x in L if "v_exp" not in x]
        if ab & 128:
            M = []
            for x in L:
                if "v_mfma" in x and f", {v(I1,4)}," in x: continue
                if "v_mfma" in x and f", {v(I0,4)}," in x:
                    m = re.match(r"\s*v_mfma_f32_32x32x16_bf16 (v\[\d+:\d+\]), v\[(\d+):", x)
                    M.append(f"  v_smfmac_f32_32x32x32_bf16 {m.group(1)}, {v(I0,4)}, {v(int(m.group(2)),8)}, v{vone}"); continue
                m = re.match(r"\s*ds_read_b128 v\[(\d+):\d+\], v(\d+) offset:(\d+)", x)
                if m and PF <= int(m.group(1)) < PF + 32:
                    r0 = int(m.group(1))
                    M.append(f"  ds_read_b64_tr_b16 {v(r0,2)}, v{vqa} offset:{m.group(3)}")
                    M.append(f"  ds_read_b64_tr_b16 {v(r0+2,2)}, v{vqa} offset:{int(m.group(3))+128}"); continue
                M.append(x)
            L = M
        if ab & 256:
            M = []
            for x in L:
                if "v_mfma" in x and (f", {v(I1,4)}," in x or f", {v(I0,4)}," in x): continue
                if "v_mfma_f32_32x32x16" in x and x.rstrip().endswith(", 0"): x = x.rstrip()[:-1] + v(PF, 16)
                m = re.match(r"\s*ds_read_b128 v\[(\d+):\d+\], v(\d+) offset:(\d+)", x)
                if m and PF <= int(m.group(1)) < PF + 32:
                    for q in range(8): M.append(f"  ds_read_u16_d16_hi v{PF+(int(m.group(1))+q)%32}, v{vacl} offset:{64*q}")
                    continue
                M.append(x)
            L = M
        if OPT["align"]: L = align8(L)
        a(f".p2align 6\n{lab}:")
        for x in L: a(x)
    loop("octo")
    a(f"""
K_OXE:
  s_cmp_lg_u32 s{sCnt}, 0
  s_cbranch_scc1 K_QUAD""")
    a(f"""
K_LOOPEND:""")
    a(f"""
  s_waitcnt vmcnt(0) lgkmcnt(0)
  s_barrier""")
    stamp(a, 9, 98)
    a(f"""
  s_cmp_lg_u32 s{sKind}, 0
  s_cbranch_scc1 K_NEXT
K_CELLSDONE:
  v_mov_b32 v{t0}, {L_FLG+32}
  ds_read_b128 {v(CV,4)}, v{t0}
K_CONV:
  s_mul_i32 s{sTmp}, s{sW}, {AS}
  s_add_u32 s{sTmp}, s{sTmp}, {L_ACC}
  v_lshlrev_b32 v{t1}, 4, v{vl}
  v_add_u32 v{t1}, s{sTmp}, v{t1}""")
    for k in range(5):
        a(f"  ds_read_b128 {v(D0+4*k,4)}, v{t1} offset:{k*8*AS}")
    a(f"""
  s_mul_i32 s{sTmp}, s{sW}, {XS}
  s_add_u32 s{sTmp}, s{sTmp}, {L_X}
  v_lshlrev_b32 v{t2}, 2, v{vl}
  v_add_u32 v{t2}, s{sTmp}, v{t2}
  s_cmp_ge_u32 s{sKind}, 3
  s_cbranch_scc1 K_CONV2
  s_waitcnt lgkmcnt(5)
  v_or3_b32 v{t0}, v{CV}, v{CV+1}, v{CV+2}
  v_or_b32 v{t0}, v{t0}, v{CV+3}
  v_cmp_ne_u32 vcc, 0, v{t0}
  s_cbranch_vccnz K_STARTOV
K_CONV2:
  s_mov_b32 s{sTmp}, 0x71800000              ; 2^100
  v_cmp_nle_f32 {s(sBad,2)}, v{MAC}, s{sTmp}
  v_cmp_nle_f32 vcc, v{MAC+1}, s{sTmp}
  s_or_b64 {s(sBad,2)}, {s(sBad,2)}, vcc
  s_movk_i32 s{sTmp}, 0x207""")
    for k in range(5):
        a(f"""
  s_waitcnt lgkmcnt({4-k})
  v_cvt_f32_f64 v{EA+2*k}, {v(D0+4*k,2)}
  v_cvt_f32_f64 v{EA+2*k+1}, {v(D0+4*k+2,2)}
  v_cmp_class_f32 vcc, v{EA+2*k}, s{sTmp}
  s_or_b64 {s(sBad,2)}, {s(sBad,2)}, vcc
  v_cmp_class_f32 vcc, v{EA+2*k+1}, s{sTmp}
  s_or_b64 {s(sBad,2)}, {s(sBad,2)}, vcc
  v_cvt_pk_bf16_f32 v{EB+k}, v{EA+2*k}, v{EA+2*k+1}""")
    for k in range(5):
        a(f"  ds_write_b32 v{t2}, v{EB+k} offset:{k*8*XS}")
    a(f"""
  s_cmp_eq_u64 {s(sBad,2)}, 0
  s_cbranch_scc1 K_OKW
  v_mov_b32 v{t0}, {L_FLG}
  ds_write_b32 v{t0}, v{vone}
K_OKW:
  s_waitcnt lgkmcnt(0)
  s_barrier
  v_mov_b32 v{t0}, {L_FLG}
  ds_read_b32 v{t0}, v{t0}""")
    for nt in range(2):
        for st in range(4):
            a(f"  ds_read_b128 {v(XF+16*nt+4*st,4)}, v{vxb} offset:{nt*16*XS + st*64}")
    a(f"""
  s_waitcnt lgkmcnt(8)
  v_readfirstlane_b32 s{sTmp}, v{t0}
  s_cmp_gt_u32 s{sTmp}, s{sMode}
  {"s_cbranch_scc1 K_RESTART" if not EXP else "s_nop 0"}
  s_waitcnt lgkmcnt(4)""")
    for st in range(4):
        c = "0" if st == 0 else v(D0, 4)
        a(f"  v_mfma_f32_16x16x32_bf16 {v(D0,4)}, {v(WUB+4*st,4)}, {v(XF+4*st,4)}, {c}")
    for st in range(4):
        a(f"  ds_read_b128 {v(D1+4*st,4)}, v{vxb} offset:{2*16*XS + st*64}")
    a("  s_waitcnt lgkmcnt(4)")
    for st in range(4):
        c = "0" if st == 0 else v(D0+4, 4)
        a(f"  v_mfma_f32_16x16x32_bf16 {v(D0+4,4)}, {v(WUB+4*st,4)}, {v(XF+16+4*st,4)}, {c}")
    a("  s_waitcnt lgkmcnt(0)")
    for st in range(4):
        c = "0" if st == 0 else v(D0+8, 4)
        a(f"  v_mfma_f32_16x16x32_bf16 {v(D0+8,4)}, {v(WUB+4*st,4)}, {v(D1+4*st,4)}, {c}")
    a(f"""
  s_mov_b32 s{sK}, {NLN2}
  s_mov_b32 s{sK+1}, {NLN2}
  s_mov_b32 s{sTmp}, {NLOG2E}
  s_mov_b32 s{sTmp+1}, {NLOG2E}
  v_and_b32 v{t0}, 15, v{vl}
  v_lshlrev_b32 v{t0}, 8, v{t0}
  v_lshrrev_b32 v{t1}, 4, v{vl}
  v_lshl_add_u32 v{t0}, v{t1}, 3, v{t0}
  s_lshl_b32 s{sTmp+2}, s{sW}, 5
  v_add_u32 v{t0}, s{sTmp+2}, v{t0}
  v_add_u32 v{t1}, 4096, v{t0}
  v_add_u32 v{t2}, 8192, v{t0}""")
    for nt in range(3):
        d = D0 + 4*nt
        a(f"""
  v_pk_fma_f32 {p(d)}, {p(d)}, {s(sK,2)}, {p(U+4*nt)}
  v_pk_fma_f32 {p(d+2)}, {p(d+2)}, {s(sK,2)}, {p(U+4*nt+2)}
  v_pk_mul_f32 {p(EA)}, {p(d)}, {s(sTmp,2)}
  v_pk_mul_f32 {p(EA+2)}, {p(d+2)}, {s(sTmp,2)}""")
        for i in range(4): a(f"  v_exp_f32 v{EA+i}, v{EA+i}")
        a(f"  s_nop 0\n  v_pk_add_f32 {p(EA)}, {p(EA)}, 1.0 op_sel_hi:[1,0]\n  v_pk_add_f32 {p(EA+2)}, {p(EA+2)}, 1.0 op_sel_hi:[1,0]")
        for i in range(4): a(f"  v_rcp_f32 v{EA+i}, v{EA+i}")
        a(f"""
  s_nop 0
  v_pk_mul_f32 {p(d)}, {p(d)}, {p(EA)}
  v_pk_mul_f32 {p(d+2)}, {p(d+2)}, {p(EA+2)}
  v_cvt_pk_bf16_f32 v{EB+2*nt}, v{d}, v{d+1}
  v_cvt_pk_bf16_f32 v{EB+2*nt+1}, v{d+2}, v{d+3}
  buffer_store_dwordx2 {v(EB+2*nt,2)}, v{t0+nt}, {s(SO,4)}, 0 offen""")
    if OPT["stamp"]:
        a(f"""
  s_waitcnt vmcnt(0)
  s_memrealtime s[4:5]
  s_waitcnt lgkmcnt(0)
  s_lshl_b32 s6, s2, 3
  s_add_u32 s6, s6, s{sW}
  s_lshl_b32 s6, s6, 6
  s_add_u32 s6, s6, {WS_STAMP}
  s_add_u32 s6, s{pWS}, s6
  s_addc_u32 s7, s{pWS+1}, 0
  s_mov_b64 exec, 1
  v_mov_b32 v1, 0""")
        for i, r in enumerate([80+2*i for i in range(8)] + [96, 98, 4]):
            pass
        regs = [80, 82, 84, 86, 88, 90, 92, 94, 8, 9, 4, 10, 11, sT]
        for i, r in enumerate(regs):
            a(f"  v_mov_b32 v2, s{r}\n  global_store_dword v1, v2, s[6:7] offset:{4*i}")
    a(f"""
K_END:
  s_endpgm
""")
    a(f"""
K_PREP:
  s_sub_u32 s{sq}, s2, {2*G}
  s_lshl_b32 s{sq}, s{sq}, 14
  s_lshl_b32 s{sq+1}, s{sW}, 12
  s_add_u32 s{sq}, s{sq}, s{sq+1}
  v_lshlrev_b32 v{t0}, 4, v{vl}
  v_mov_b32 v{t7}, s{sTag}
  s_waitcnt vmcnt({10+NA})
  s_barrier""")
    wtr(PF, vqa)
    a("  s_waitcnt lgkmcnt(0)")
    for st in range(4):
        a(f"  buffer_store_dwordx4 {v(PF+4*st,4)}, v{t0}, {s(SW,4)}, s{sq} offen offset:{st*1024} sc1")
    a(f"""
  s_lshr_b32 s{sq}, s{sW}, 2
  s_add_u32 s{sq}, s{sq}, s2
  s_cmp_lg_u32 s{sq}, {2*G}
  s_cbranch_scc1 K_PREPD
  s_mov_b32 s{sq+1}, {NLOG2E}
  s_lshl_b32 s{sq}, s{sW}, 10
  s_waitcnt vmcnt({6+NA})""")
    for jj in range(8):
        a(f"  v_lshlrev_b32 v{D0+jj}, 16, v{D0+jj}\n  v_mul_f32 v{D0+jj}, s{sq+1}, v{D0+jj}")
    for i in range(4):
        a(f"  v_cvt_pk_bf16_f32 v{D0+8+i}, v{D0+2*i}, v{D0+1+2*i}")
    for i in range(4):
        a(f"""
  v_lshlrev_b32 v{t2}, 16, v{D0+8+i}
  v_and_b32 v{t3}, 0xffff0000, v{D0+8+i}
  v_sub_f32 v{t2}, v{D0+2*i}, v{t2}
  v_sub_f32 v{t3}, v{D0+1+2*i}, v{t3}
  v_cvt_pk_bf16_f32 v{D0+12+i}, v{t2}, v{t3}""")
    a(f"""
  s_add_u32 s{sq+1}, s{sq}, {WF_3L}
  s_add_u32 s{sq}, s{sq}, {WF_3H}
  buffer_store_dwordx4 {v(D0+8,4)}, v{t0}, {s(SW,4)}, s{sq} offen sc1
  buffer_store_dwordx4 {v(D0+12,4)}, v{t0}, {s(SW,4)}, s{sq+1} offen sc1
K_PREPD:""")
    own_x(4+NA)
    a(f"""
  s_waitcnt vmcnt(0)
  s_barrier
  s_cmp_eq_u32 s{sW}, 0
  s_cbranch_scc1 K_FLAG
  s_branch K_PST""")
    a(f"""
K_OVF:
  s_waitcnt lgkmcnt(0)
  s_barrier
  s_mul_i32 s{sq+1}, s2, {OVSTR//2}
  s_add_u32 s{sq+1}, s{sq+1}, 64
  v_mov_b32 v{t5}, {L_FLG+8}
  v_mov_b32 v{t6}, -1""")
    for j in range(5):
        a(f"""
  v_cmp_le_u32 vcc, {CAP-1}, v{RK+j}
  s_and_b64 exec, exec, vcc
  s_cbranch_execz K_OV{j}
  v_add_u32 v{t1}, {L_BCNT}, v{B4+j}
  ds_read_b32 v{t1}, v{t1}
  s_waitcnt lgkmcnt(0)
  v_cmp_ne_u32 vcc, {CAP}, v{t1}
  s_nop 1
  v_cndmask_b32 v{t3}, v{SS_+j}, v{t6}, vcc
  ds_write_b32 v{CA+j}, v{t3} offset:{CELLB-8}
  s_and_b64 exec, exec, vcc
  s_cbranch_execz K_OV{j}
  ds_add_rtn_u32 v{t1}, v{t5}, v{vone}
  v_mov_b32 v{CV}, v{SS_+j}
  v_lshrrev_b32 v{CV+1}, 2, v{B4+j}
  s_waitcnt lgkmcnt(0)
  v_lshl_add_u32 v{t1}, v{t1}, 3, s{sq+1}
  buffer_store_dwordx2 {v(CV,2)}, v{t1}, {s(SV,4)}, 0 offen sc1
  s_waitcnt vmcnt(0)
K_OV{j}:
  s_mov_b64 exec, -1""")
    a(f"""
  s_waitcnt lgkmcnt(0)
  s_barrier
  ds_read_b32 v{t1}, v{t5}
  s_sub_u32 s{sq+1}, s{sq+1}, 64
  v_mov_b32 v{t3}, s{sq+1}
  v_mov_b32 v{t2}, 0
  s_waitcnt lgkmcnt(0)
  buffer_store_dword v{t1}, v{t3}, {s(SV,4)}, 0 offen sc1
  s_waitcnt vmcnt(0)
  s_branch K_OVFDONE""")
    for u in range(OPT["unroll"] - 1):
        a(f"K_OX{u}:\n  s_cmp_eq_u32 s{sCnt}, 0\n  s_cbranch_scc1 K_LOOPEND")
        for x in incs(u + 1): a(x)
        a("  s_branch K_QUAD")
    loop("quad")
    a("  s_branch K_LOOPEND")
    loop("safe")
    a("  s_branch K_LOOPEND")
    a(f"""
K_NOGEMM0:
  s_waitcnt vmcnt(0)
  s_branch K_NOGEMM
K_RESTART:
  s_mov_b32 s{sMode}, 1
  s_mov_b32 s{sKind}, 0
  s_waitcnt lgkmcnt(0)
  s_barrier
  v_mov_b32 v{CV}, 0
  v_mov_b32 v{CV+1}, 0
  v_mov_b32 v{CV+2}, 0
  v_mov_b32 v{CV+3}, 0""")
    for j in range(5):
        a(f"  ds_write_b128 v{vt16}, {v(CV,4)} offset:{L_ACC + j*8192}")
    a(f"""
  v_cmp_gt_u32 vcc, {(40*AS-5*8192)//16}, v0
  s_and_saveexec_b64 {s(sEx,2)}, vcc
  ds_write_b128 v{vt16}, {v(CV,4)} offset:{L_ACC + 5*8192}
  s_mov_b64 exec, {s(sEx,2)}
  s_branch K_RELOAD
K_SPLIT:
  s_mov_b32 s{sKind}, 1
  s_waitcnt lgkmcnt(0)
  s_barrier
  s_branch K_RELOAD
K_NEXT:
  s_cmp_eq_u32 s{sKind}, 4
  s_cbranch_scc1 K_NEXTOV
  s_cmp_eq_u32 s{sKind}, 3
  s_cbranch_scc1 K_OVPART1
  s_cmp_eq_u32 s{sKind}, 2
  s_cbranch_scc1 K_CELLSDONE
  s_mov_b32 s{sKind}, 2
K_RELOAD:
  v_lshrrev_b32 v{t1}, 2, v0
  s_mov_b32 s{sq}, {CH*32}
  v_mul_u32_u24 v{vebase}, s{sq}, v{t1}
  s_waitcnt vmcnt(0)""")
    for k in range(2):
        a(f"  buffer_load_dwordx4 {v(REC+4*k,4)}, v{vcell}, {s(SC,4)}, 0 offen offset:{64*k} sc1")
    a(f"""
  s_waitcnt vmcnt(0)
  s_mov_b32 exec_lo, 0xaaaaaaaa
  s_mov_b32 exec_hi, 0xaaaaaaaa
  v_mov_b32 v{REC+3}, 0
  v_mov_b32 v{REC+7}, 0
  s_mov_b64 exec, -1
  s_cmp_eq_u32 s{sKind}, 0
  s_cbranch_scc1 K_ROUND
  s_lshr_b32 s{sq}, s{sW}, 2
  s_add_u32 s{sq}, s{sq}, 1
  s_cmp_eq_u32 s{sq}, s{sKind}
  s_cbranch_scc1 K_ROUND""")
    for k in range(NR): a(f"  v_mov_b32 v{REC+k}, 0")
    a(f"""
K_ROUND:
  v_mov_b32 v{CV}, 0
  v_mov_b32 v{CV+1}, 0
  v_mov_b32 v{CV+2}, 0
  v_mov_b32 v{CV+3}, 0
  v_cmp_gt_u32 vcc, {(L_FLG-L_GN)//16}, v0
  s_and_saveexec_b64 {s(sEx,2)}, vcc
  ds_write_b128 v{vt16}, {v(CV,4)} offset:{L_GN}
  s_mov_b64 exec, {s(sEx,2)}""")
    prefill()
    a(f"""
  v_and_b32 v{vent}, 2047, v{vent}
  v_and_b32 v{vrow}, 2047, v{vrow}
  v_subrev_u32 v{vga}, {L_GN}, v{vga}
  v_and_b32 v{vga}, 255, v{vga}
  v_add_u32 v{vga}, {L_GN}, v{vga}
  v_and_b32 v{t2}, 12, v{vl}
  v_add_u32 v{vgq}, v{vga}, v{t2}
  s_waitcnt lgkmcnt(0)
  s_barrier
  s_branch K_PHASE1
K_STARTOV:""")
    for i in range(4): a(f"  v_readfirstlane_b32 s{sOV+i}, v{CV+i}")
    a(f"""
  s_mov_b32 s{sKind}, 4
  s_waitcnt lgkmcnt(0)
K_NEXTOV:""")
    for i in range(2):
        a(f"""
  s_ff1_i32_b64 s{sP}, {s(sOV+2*i,2)}
  s_cmp_eq_u32 s{sP}, -1
  s_cbranch_scc1 K_OVN{i}
  s_bitset0_b64 {s(sOV+2*i,2)}, s{sP}
  s_add_u32 s{sP}, s{sP}, {64*i}
  s_branch K_OVGO
K_OVN{i}:""")
    a(f"""
  s_branch K_CONV
K_OVGO:
  s_mov_b32 s{sKind}, 3
  v_mov_b32 v{t4}, v0
  s_branch K_OVLD
K_OVPART1:
  s_mov_b32 s{sKind}, 4
  v_add_u32 v{t4}, 2048, v0
K_OVLD:
  s_mul_i32 s{sq}, s{sP}, {OVSTR}
  s_mul_i32 s{sq+1}, s{sP}, {CH*32}
  v_mov_b32 v{vebase}, s{sq+1}
  v_mov_b32 v{t0}, s{sq}
  buffer_load_dword v{t1}, v{t0}, {s(SV,4)}, 0 offen sc1
  v_lshl_add_u32 v{t2}, v{t4}, 3, v{t0}""")
    for k in range(4):
        a(f"  buffer_load_dwordx2 {v(PF+2*k,2)}, v{t2}, {s(SV,4)}, 0 offen offset:64 sc1\n  v_add_u32 v{t2}, 4096, v{t2}")
    a(f"  s_waitcnt vmcnt(0)")
    for k in range(4):
        a(f"""
  v_cmp_lt_u32 vcc, v{t4}, v{t1}
  v_cmp_eq_u32 {s(sEx,2)}, s2, v{PF+2*k+1}
  s_and_b64 vcc, vcc, {s(sEx,2)}
  v_add_u32 v{t4}, 512, v{t4}
  s_nop 1
  v_cndmask_b32 v{REC+k}, 0, v{PF+2*k}, vcc""")
    for k in range(4, NR): a(f"  v_mov_b32 v{REC+k}, 0")
    a("  s_branch K_ROUND")
    return a.text(), nv, NS

def gen_diag(idx):
    a = Asm()
    a(f"""
.globl mpnn_d_kernel
.p2align 8
.type mpnn_d_kernel,@function
mpnn_d_kernel:
  s_cmp_ge_u32 s2, 1
  s_cbranch_scc1 D_END
  s_load_dwordx2 s[4:5], s[0:1], 64
  s_waitcnt lgkmcnt(0)
  s_add_u32 s4, s4, {WS_STAMP + (OPT['wsb'] << 20)}
  s_addc_u32 s5, s5, 0
  s_load_dword s6, s[4:5], 0
  s_waitcnt lgkmcnt(0)
  s_sub_u32 s6, s6, 100000""")
    for q, (ix, ismax) in enumerate(((idx, 1), (0, 0))):
        op = "max" if ismax else "min"
        a(f"  v_lshlrev_b32 v1, {6 if not OPT['dodd'] else 10}, v0\n  v_add_u32 v1, {ix*4 + (512 + 64*(OPT['dodd']-1) if OPT['dodd'] else 0)}, v1\n  v_mov_b32 v3, {0 if ismax else -1}")
        nk = 32 if not OPT['dodd'] else 2
        for k in range(nk):
            a(f"  global_load_dword v{8+k}, v1, s[4:5]\n  v_add_u32 v1, {4096 if not OPT['dodd'] else 65536}, v1")
        a("  s_waitcnt vmcnt(0)")
        for k in range(nk):
            a(f"  v_subrev_u32 v2, s6, v{8+k}\n  v_{op}_u32 v3, v3, v2")
        a(f"  s_mov_b32 s{20+q}, {0 if ismax else -1}\n  s_nop 1")
        for l in range(64):
            a(f"  v_readlane_b32 s8, v3, {l}\n  s_nop 0\n  s_{op}_u32 s{20+q}, s{20+q}, s8")
    a(f"""
  s_sub_u32 s20, s20, s21
  s_min_u32 s20, s20, 20000
  s_lshl_b32 s20, s20, 3
  {'s_mov_b32 s20, 0' if OPT['dz'] else ''}
  s_memrealtime s[8:9]
  s_waitcnt lgkmcnt(0)
D_L:
  s_memrealtime s[10:11]
  s_waitcnt lgkmcnt(0)
  s_sub_u32 s12, s10, s8
  s_cmp_lt_u32 s12, s20
  s_cbranch_scc1 D_L
D_END:
  s_endpgm
""")
    return a.text()

HEAD = """; Kernarg layout for this problem (72 bytes, ptrs only, base s[0:1]):
"""
def main():
    k, nv, ns = gen()
    out = HEAD + f"; @launch grid=({NB},1,1) block=(512,1,1) lds={LDS}\n"
    if OPT["diag"] >= 0:
        out = HEAD + f"; @launch kernel={KN} grid=({NB},1,1) block=(512,1,1) lds={LDS}\n; @launch kernel=mpnn_d_kernel grid=(1,1,1) block=(64,1,1) lds=0\n"
        k += gen_diag(OPT["diag"])
    out += '.amdgcn_target "amdgcn-amd-amdhsa--gfx950"\n.text\n' + k
    out += f""".section .rodata,"a"
.p2align 6
.amdhsa_kernel {KN}
  .amdhsa_next_free_vgpr {nv}
  .amdhsa_next_free_sgpr {ns}
  .amdhsa_accum_offset {(nv+3)//4*4}
  .amdhsa_group_segment_fixed_size 0
  .amdhsa_kernarg_size 72
  .amdhsa_user_sgpr_count 2
  .amdhsa_user_sgpr_kernarg_segment_ptr 1
  .amdhsa_system_sgpr_workgroup_id_x 1
.end_amdhsa_kernel
"""
    if OPT["diag"] >= 0:
        out += """.p2align 6
.amdhsa_kernel mpnn_d_kernel
  .amdhsa_next_free_vgpr 48
  .amdhsa_next_free_sgpr 32
  .amdhsa_accum_offset 48
  .amdhsa_group_segment_fixed_size 0
  .amdhsa_kernarg_size 72
  .amdhsa_user_sgpr_count 2
  .amdhsa_user_sgpr_kernarg_segment_ptr 1
  .amdhsa_system_sgpr_workgroup_id_x 1
.end_amdhsa_kernel
"""
    open(sys.argv[1], "w").write(out)
    print("vgprs", nv, "lds", LDS)
main()
```

```python
from common import *

N = 10000; E = 320000
G = 125
CH = 2560
NB = 256
MAGIC = 26843
CAP = 28
CELLB = 128
BSTR = G * CELLB

WS_P = 256
WS_CELL = 0x280000
WS_WF = 0x1280000
WF_W2, WF_UT, WF_UB, WF_3H, WF_3L = 0, 32768, 65536, 98304, 102400
WF_SIZE = 106496
WS_OVF = 0x12A0000
OVSTR = 64 + CH * 8
WS_FLAG = 0x1520000
WS_STAMP = 0x1600000

OPT = dict(lo=0, k8=1, stamp=0, nodma=0, noadd=0, noe=0, hot=0, align=1, unroll=2, dmapos=0, rdpos=0, dsc=1, pf=1, slp=0, stf=1, addpos=0, rdgap=0, prio=0, bench=0, octo=1, frep=8, fln=16, slp0=0, plf=1, flf=1, diag=-1, touch=0, dz=0, abl=0, dodd=0, wsb=0, claim=0, slpa=0, slpb=0, zt=0, cpf=0, pf2=0, stag=0, bdl=0, wfirst=0, fine=0, half=0, dbg=0, s0st=0, spf=0, spfb=0)
for a_ in sys.argv[2:]:
    k_, v_ = a_.split("="); OPT[k_] = int(v_)
EXP = OPT["dbg"] or OPT["half"] or OPT["bench"] or OPT["nodma"] or OPT["noe"] or OPT["noadd"] or OPT["hot"]

FL_ = ['', 'sc1', 'sc0 sc1', 'sc1 nt', 'sc0 sc1 nt']; PLF = FL_[OPT['plf']]; FLF = FL_[OPT['flf']]
STF = ['', 'sc1', 'sc0 sc1', 'sc1 nt'][OPT['stf']]
FREP = OPT['frep']; FLN = OPT['fln']; FSH = (128//FLN).bit_length()-1; FHALF = FREP*FLN*256; FNON = 2*FHALF; FMASK = hex((1<<FREP)-1)
NA = 1 if OPT['claim'] & 4 else 0
NCL = (3 if OPT['claim'] & 1 else 0) + NA
NCC = (4 if OPT['claim'] & 2 else 0) + NA
CAPB = 70
L_ENT = 0
L_GN = (CAPB + 1) * 256
L_CNT = L_GN + (CAPB + 17) * 32
L_FLG = L_CNT + 256
L_ACC = L_FLG + 64
AS = 1040
L_Q = L_ACC + 40 * AS
QS = 320
L_X = L_Q + 40 * QS
XS = 288
L_STG = L_X + 40 * XS
STG = 8 * 1040 + 1024
LDS = L_STG + 8 * STG
L_CIMG = L_STG
L_BCNT = L_CIMG + NB * CELLB
WPITCH = 1088
L_GP = L_STG + 1024
L_WS = L_STG + 32 * WPITCH
assert L_BCNT + 1024 <= LDS and L_STG % 16 == 0 and L_ACC % 16 == 0
PADS, PADE = 0x8000003f, 0x80000000
KN = "standalone__mpnn_edge_mlp__graph_kernel"

def fstamp(a, i):
    if OPT["fine"]: a(f"  s_memrealtime s[{80+2*i}:{81+2*i}]")
def stamp(a, i, cyc=None):
    if OPT["fine"] and i in (1, 2, 3, 5): return
    if OPT["stamp"]:
        if cyc is None:
            a(f"  s_memrealtime s[{80+2*i}:{81+2*i}]\n  s_waitcnt lgkmcnt(0)")
        else:
            a(f"  s_memrealtime s[96:97]\n  s_memtime s[98:99]\n  s_waitcnt lgkmcnt(0)\n  s_mov_b32 s{i}, s96\n  s_mov_b32 s{i+2}, s98")

def gen():
    a = Asm()
    R = Regs(1)
    al = R.alloc
    vl = al("lane")
    t0 = al("t", 8, 2); t1, t2, t3, t4, t5, t6, t7 = range(t0+1, t0+8)
    vchunk = al("vchunk"); vechunk = al("vechunk")
    vent = al("vent"); vrow = al("vrow"); vgq = al("vgq"); vga = al("vga")
    vAlo = al("Alo"); vAhi = al("Ahi"); vEF = al("vEF")
    vqlane = al("vqlane"); vacl = al("vacl"); vxb = al("vxb"); vqw = al("vqw")
    vebase = al("vebase"); vone = al("vone"); vt16 = al("vt16"); vcell = al("vcell")
    vqa = al("vqa"); vsrow = al("vsrow"); vgn1 = al("vgn1")
    ENT = al("ENT", 2, 2)
    MAC = al("MAC", 2, 2)
    PAT = al("PAT", 2, 2)
    nq = 2 if OPT["k8"] else 4
    AQ = al("AQ", nq, 2)
    GN = al("GN", 4, 2); AD = al("AD", 4)
    DO = al("DO", 2)
    I0 = al("I0", 4, 2); I1 = al("I1", 4, 2)
    W3 = al("W3", 16, 2)
    W3L = al("W3L", 16, 2) if OPT["lo"] else None
    BQ = al("BQ", 4*nq, 2)
    EF = al("EF", 4, 2)
    PF = al("PF", 32, 2)
    D0 = al("D0", 16, 2); D1 = al("D1", 16, 2)
    EA = al("EA", 8, 2); TA = al("TA", 8, 2); EB = al("EB", 8, 2); TB = al("TB", 8, 2)
    RA = al("RA", 2, 2); RB = al("RB", 2, 2)
    SA = al("SA", 2, 2); SB = al("SB", 2, 2)
    CV = al("CV", 8, 2)
    U = al("U", 12, 2); WUB = al("WUB", 16, 2)
    DUM = al("DUM", 4, 2)
    DK = al("DK", 4, 2)
    nv = R.n
    assert TA == EA + 8 and EB == EA + 16 and TB == EA + 24 and D1 == D0 + 16
    DD = D0; SS_ = D0 + 5; B4 = D0 + 10; RK = D0 + 15; CA = D0 + 20
    CP = PF
    GX = W3
    XL = U
    W1F = WUB
    REC = D0; NOD = D0 + 8; RNK = D1
    W2F = EA; WUT = EB; XF = PF; QD = CV
    sW = 3
    pX, pE, pS, pD, pWM, pWU, pO, pWS = 4, 6, 8, 10, 12, 14, 16, 18
    SP, SE, SC, SW, SO, SV, SF = 20, 24, 28, 32, 36, 40, 44
    T0, T1, T2 = 48, 52, 56
    sStart, sNb, sStg, sCnt, sT, sMode, sKind, sFirst = 60, 61, 62, 63, 64, 65, 66, 67
    sAS, sQS, sTag, sP, sUB, sLo2 = 68, 69, 70, 71, 72, 73
    sCO = 59
    sNp = 79
    sEx, sK, sBad = 74, 76, 78
    sTmp = 4
    sA = 48
    sOV = 48
    sOVT = 74
    sq = 100
    if OPT["stamp"]: NS = 102
    else: NS = 102

    a(f"""
.globl {KN}
.p2align 8
.type {KN},@function
{KN}:
  s_cmp_ge_u32 s2, {NB}
  s_cbranch_scc1 K_END""")
    if OPT["stamp"]: a("  s_memrealtime s[80:81]")
    a(f"""
  s_load_dwordx8 s[4:11], s[0:1], 0
  s_load_dwordx4 s[12:15], s[0:1], 32
  s_load_dwordx2 s[16:17], s[0:1], 48
  s_load_dwordx2 s[18:19], s[0:1], 64""")
    if OPT["cpf"]:
        a(f"""
  s_getpc_b64 s[20:21]
  v_lshlrev_b32 v{t1}, 7, v0
  v_cmp_gt_u32 vcc, (K_TEXTEND - {KN}) / 128, v0
  s_and_saveexec_b64 s[22:23], vcc
  s_cbranch_execz K_NOCPF
  global_load_dword v{DUM}, v{t1}, s[20:21]
K_NOCPF:
  s_mov_b64 exec, s[22:23]""")
    a(f"""
  v_lshrrev_b32 v{t0}, 6, v0
  v_and_b32 v{vl}, 63, v0
  s_and_b32 s{sP}, s2, {FREP-1}
  s_mul_i32 s{sP}, s{sP}, {FLN*256}
  s_and_b32 s{sq}, s2, 7
  s_lshl_b32 s{sq}, s{sq}, 1
  s_bfe_u32 s{sq+1}, s2, 0x10003
  s_and_b32 s2, s2, 0xf0
  s_or_b32 s2, s2, s{sq}
  s_or_b32 s2, s2, s{sq+1}
  s_mul_i32 s{sStart}, s2, 640013
  v_readfirstlane_b32 s{sW}, v{t0}
  s_add_u32 s{sNb}, s{sStart}, {640013+16383}
  s_add_u32 s{sStart}, s{sStart}, 16383
  s_sub_u32 s{sNp}, s{sStart}, 640013
  s_lshr_b32 s{sStart}, s{sStart}, 14
  s_lshr_b32 s{sNb}, s{sNb}, 14
  s_lshr_b32 s{sNp}, s{sNp}, 14
  s_min_u32 s{sNb}, s{sNb}, {N}
  s_sub_u32 s{sCnt}, s{sNb}, s{sNp}
  s_sub_u32 s{sNb}, s{sNb}, s{sStart}
  s_lshl_b32 s{sT}, s{sNp}, 8
  s_sub_u32 s{sNp}, s{sStart}, s{sNp}
  s_mov_b32 s{sMode}, 0
  s_mov_b32 s{sKind}, 0
  s_mov_b32 s{sFirst}, 1
  s_mov_b32 s{sAS}, {AS}
  s_mov_b32 s{sQS}, {QS}
  s_mul_i32 s{sStg}, s{sW}, {STG}
  s_add_u32 s{sStg}, s{sStg}, {L_STG}
  v_lshlrev_b32 v{vt16}, 4, v0
  s_mul_i32 s{sq}, s2, {CH*2}
  v_lshl_add_u32 v{t2}, v0, 2, s{sq}
  v_add_u32 v{t3}, 4096, v{t2}
  v_lshrrev_b32 v{t4}, 4, v{vl}
  v_lshlrev_b32 v{t0}, 1, v{t4}
  v_xor_b32 v{t0}, v{t0}, v{vl}
  v_lshlrev_b32 v{t0}, 4, v{t0}
  s_lshl_b32 s{sq}, s{sW}, 12
  v_add_u32 v{t7}, s{sq}, v{t0}
  s_mul_i32 s{sUB}, s{sW}, {4*WPITCH}
  s_add_u32 s{sUB}, s{sUB}, {L_WS}
  v_add_u32 v{t6}, 8192, v{vt16}
  v_add_u32 v{t5}, 16384, v{vt16}
  s_waitcnt lgkmcnt(0)
  {"s_add_u32 s%d, s%d, %d" % (pWS, pWS, OPT["wsb"] << 20) + chr(10) + "  s_addc_u32 s%d, s%d, 0" % (pWS+1, pWS+1) if OPT["wsb"] else ""}
  s_bitcmp1_b32 s2, 0
  s_cbranch_scc1 K_LDG
  s_cmp_ge_u32 s2, {2*G}
  s_cbranch_scc1 K_LDP""")
    if OPT["bdl"]: a(f"  s_sleep {OPT['bdl']}")
    srd(a, T0, pD, E*4)
    srd(a, T1, pS, E*4)
    a(f"  s_movk_i32 s{sq}, 0x2000")
    for r_, T in ((DD, T0), (SS_, T1)):
        a(f"""
  buffer_load_dword v{r_}, v{t2}, {s(T,4)}, 0 offen
  buffer_load_dword v{r_+1}, v{t2}, {s(T,4)}, 0 offen offset:2048
  buffer_load_dword v{r_+2}, v{t3}, {s(T,4)}, 0 offen
  buffer_load_dword v{r_+3}, v{t3}, {s(T,4)}, 0 offen offset:2048
  buffer_load_dword v{r_+4}, v{t2}, {s(T,4)}, s{sq} offen""")
    if OPT["claim"] & 2:
        srd(a, T2, pWS, NB*BSTR, add=WS_CELL)
        a(f"""
  v_lshrrev_b32 v{t4}, 3, v0
  s_mov_b32 s{sq}, {BSTR}
  v_mul_u32_u24 v{t4}, s{sq}, v{t4}
  v_and_b32 v{t0}, 7, v0
  v_lshl_add_u32 v{t4}, v{t0}, 4, v{t4}
  s_lshl_b32 s{sq}, s2, 6
  v_mov_b32 v{PF}, 0
  v_mov_b32 v{PF+1}, 0
  v_mov_b32 v{PF+2}, 0
  v_mov_b32 v{PF+3}, 0""")
        for j in range(4):
            a(f"  buffer_store_dwordx4 {v(PF,4)}, v{t4}, {s(T2,4)}, s{sq} offen sc1\n  s_add_u32 s{sq}, s{sq}, {64*BSTR}")
    a("  s_branch K_LD3")
    def wdma(T):
        for q in range(4):
            a(f"  s_add_u32 m0, s{sUB}, {64*q}\n  s_nop 0\n  buffer_load_dwordx4 v{t7}, {s(T,4)}, 0 offen offset:{1024*q} lds")
    a(f"""
K_LDX:
  s_lshl_b32 s{sq}, s{sStart}, 8
  s_lshl_b32 s{sq+1}, s{sNb}, 8""")
    srd(a, T2, pX, f"s{sq+1}", addreg=sq)
    a(f"""
  buffer_load_dwordx4 {v(XL,4)}, v{vt16}, {s(T2,4)}, 0 offen
  buffer_load_dwordx4 {v(XL+4,4)}, v{t6}, {s(T2,4)}, 0 offen
  s_branch K_LD3
K_LDP:
  s_cmp_eq_u32 s2, {2*G}
  s_cselect_b32 s{T1}, s{pWM}, s{pWU}
  s_cselect_b32 s{T1+1}, s{pWM+1}, s{pWU+1}
  s_cmp_eq_u32 s2, {2*G+2}
  s_cselect_b32 s{sq}, 0, 32768
  s_add_u32 s{T1}, s{T1}, s{sq}
  s_addc_u32 s{T1+1}, s{T1+1}, 0
  s_mov_b32 s{T1+2}, 32768
  s_mov_b32 s{T1+3}, 0x20000""")
    wdma(T1)
    srd(a, T0, pWM, 16*256, add=256*256)
    a(f"""
  v_and_b32 v{t0}, 31, v{vl}
  v_lshrrev_b32 v{t1}, 5, v{vl}
  v_lshlrev_b32 v{t1}, 11, v{t1}
  v_lshl_add_u32 v{t1}, v{t0}, 1, v{t1}
  s_and_b32 s{sq}, s{sW}, 3
  s_lshl_b32 s{sq}, s{sq}, 6""")
    for jj in range(8):
        a(f"  buffer_load_ushort v{D0+jj}, v{t1}, {s(T0,4)}, s{sq} offen offset:{jj*256}")
    a(f"""
  s_branch K_LDX
K_LDG:
  s_lshl_b32 s{sCnt}, s{sCnt}, 8""")
    srd(a, T0, pX, f"s{sCnt}", addreg=sT)
    srd(a, T1, pWM, 128*256)
    if OPT["wfirst"]: wdma(T1)
    a(f"""
  buffer_load_dwordx4 {v(GX,4)}, v{vt16}, {s(T0,4)}, 0 offen
  buffer_load_dwordx4 {v(GX+4,4)}, v{t6}, {s(T0,4)}, 0 offen
  buffer_load_dwordx4 {v(GX+8,4)}, v{t5}, {s(T0,4)}, 0 offen""")
    if not OPT["wfirst"]: wdma(T1)
    if OPT["claim"] & 1:
        srd(a, T2, pWS, f"s{sCnt}", add=WS_P, addreg=sT)
        for r_ in (vt16, t6, t5):
            a(f"  buffer_store_dwordx4 {v(PF,4)}, v{r_}, {s(T2,4)}, 0 offen sc1")
    a(f"""
K_LD3:""")
    if OPT["claim"] & 4:
        a(f"  s_lshl_b32 s{sq}, s{sStart}, 8\n  s_lshl_b32 s{sq+1}, s{sNb}, 8")
        srd(a, SO, pWS, f"s{sq+1}", add=WS_P, addreg=sq)
        a(f"""
  s_mul_i32 s{sq}, s{sW}, 1280
  v_lshl_add_u32 v{t1}, v{vl}, 7, s{sq}
  v_mov_b32 v{t0}, 0
  s_mov_b64 exec, 0x3ff
  buffer_atomic_or v{t0}, v{t1}, {s(SO,4)}, 0 offen
  s_mov_b64 exec, -1""")
    a(f"""
  s_add_u32 s{SF}, s{pWS}, {WS_FLAG}
  s_addc_u32 s{SF+1}, s{pWS+1}, 0
  s_load_dword s{sTag}, s[{SF}:{SF+1}], {FNON}
  s_mov_b32 s{SF+2}, {FNON+4}
  s_mov_b32 s{SF+3}, 0x20000
  v_lshrrev_b32 v{t1}, 2, v0
  v_and_b32 v{t4}, 3, v0
  v_lshlrev_b32 v{t4}, 4, v{t4}
  v_lshl_add_u32 v{vcell}, v{t1}, {6 if OPT['half'] == 2 else 7}, v{t4}
  s_mov_b32 s{sq}, {CH*32}
  v_mul_u32_u24 v{vebase}, s{sq}, v{t1}""")
    a(f"""
  v_mov_b32 v{CV}, 0
  v_mov_b32 v{CV+1}, 0
  v_mov_b32 v{CV+2}, 0
  v_mov_b32 v{CV+3}, 0
  v_add_u32 v{t0}, {L_CIMG}, v{vt16}""")
    a(f"  s_bitcmp1_b32 s2, 0\n  s_cbranch_scc1 K_NOZ")
    for j in range(4):
        a(f"  ds_write_b128 v{t0}, {v(CV,4)} offset:{j*8192}")
    a(f"  s_cmp_lg_u32 s{sW}, 0\n  s_cbranch_scc1 K_NOZ\n  ds_write_b128 v{t0}, {v(CV,4)} offset:32768")
    a("K_NOZ:")
    for j in range(5):
        a(f"  ds_write_b128 v{vt16}, {v(CV,4)} offset:{L_GN + j*8192}")
    a(f"""
  v_cmp_gt_u32 vcc, {(L_Q-L_GN-5*8192)//16}, v0
  s_and_saveexec_b64 {s(sEx,2)}, vcc
  ds_write_b128 v{vt16}, {v(CV,4)} offset:{L_GN + 5*8192}
  s_mov_b64 exec, {s(sEx,2)}""")
    def prefill():
        a(f"""
  v_mov_b32 v{CV+4}, {PADS}
  v_mov_b32 v{CV+5}, {PADE}
  v_mov_b32 v{CV+6}, {PADS}
  v_mov_b32 v{CV+7}, {PADE}
  ds_write_b128 v{vt16}, {v(CV+4,4)}
  ds_write_b128 v{vt16}, {v(CV+4,4)} offset:8192
  v_cmp_gt_u32 vcc, {(L_GN-16384)//16}, v0
  s_and_saveexec_b64 {s(sEx,2)}, vcc
  ds_write_b128 v{vt16}, {v(CV+4,4)} offset:16384
  s_mov_b64 exec, {s(sEx,2)}""")
    prefill()
    a(f"  s_mul_i32 s{sq}, s2, {BSTR}\n  s_lshl_b32 s{sq+1}, s{sStart}, 8\n  s_lshl_b32 s{sK}, s{sNb}, 8")
    srd(a, SC, pWS, G*CELLB // (2 if OPT['half'] == 2 else 1), add=WS_CELL, addreg=sq)
    srd(a, SP, pWS, (N+1)*256)
    srd(a, SE, pE, E*32)
    srd(a, SW, pWS, WF_SIZE, add=WS_WF)
    srd(a, SO, pO, f"s{sK}", addreg=sq+1)
    srd(a, SV, pWS, G*OVSTR, add=WS_OVF)
    a(f"""
  v_mov_b32 v{vone}, 1
  v_mov_b32 v{MAC}, 0
  v_mov_b32 v{MAC+1}, 0
  v_and_b32 v{t0}, 15, v{vl}                 ; l&15
  v_bfe_u32 v{t1}, v{vl}, 4, 1               ; r4&1
  v_lshlrev_b32 v{t2}, 3, v{t1}
  v_xor_b32 v{t2}, v{t0}, v{t2}
  v_lshlrev_b32 v{vchunk}, 4, v{t2}
  v_and_b32 v{t2}, 1, v{vl}
  v_xor_b32 v{t2}, v{t2}, v{t1}
  v_lshlrev_b32 v{vechunk}, 4, v{t2}
  v_lshrrev_b32 v{t2}, 4, v{vl}
  v_lshlrev_b32 v{t2}, 6, v{t2}
  v_lshrrev_b32 v{t4}, 1, v{t0}
  v_lshl_add_u32 v{t2}, v{t4}, 3, v{t2}
  s_lshl_b32 s{sq}, s{sW}, 8
  v_add_u32 v{vent}, s{sq}, v{t2}
  v_bfe_u32 v{t2}, v{vl}, 2, 1               ; h
  v_and_b32 v{t4}, 1, v{vl}                  ; xy
  v_lshl_add_u32 v{t5}, v{t2}, 1, v{t4}      ; r4
  v_bfe_u32 v{t6}, v{vl}, 3, 2
  v_bfe_u32 v{t7}, v{vl}, 1, 1
  v_lshl_add_u32 v{t6}, v{t6}, 1, v{t7}      ; j
  v_lshl_add_u32 v{t7}, v{t5}, 3, v{t6}      ; q = 8 r4 + j
  v_lshlrev_b32 v{t7}, 3, v{t7}
  v_add_u32 v{vrow}, s{sq}, v{t7}
  v_lshrrev_b32 v{t7}, 5, v{vl}              ; hh
  v_mul_u32_u24 v{vAlo}, 1040, v{t6}
  v_lshl_add_u32 v{vAlo}, v{t5}, 8, v{vAlo}
  v_lshl_add_u32 v{vAlo}, v{t7}, 4, v{vAlo}
  v_add_u32 v{vAlo}, s{sStg}, v{vAlo}
  v_xor_b32 v{vAhi}, 1, v{t4}
  v_lshl_add_u32 v{vAhi}, v{vAhi}, 7, v{vAlo}
  v_lshl_add_u32 v{vAlo}, v{t4}, 7, v{vAlo}
  v_xor_b32 v{vEF}, v{t7}, v{t4}
  v_lshl_add_u32 v{vEF}, v{t6}, 1, v{vEF}
  v_lshl_add_u32 v{vEF}, v{t5}, 4, v{vEF}
  v_lshlrev_b32 v{vEF}, 4, v{vEF}
  s_add_u32 s{sq+1}, s{sStg}, 8320
  v_add_u32 v{vEF}, s{sq+1}, v{vEF}
  v_bfe_u32 v{t5}, v{vl}, 4, 1               ; o
  v_lshlrev_b32 v{t5}, 4, v{t5}
  v_mov_b32 v{t6}, 0x3f80
  v_lshlrev_b32 v{t5}, v{t5}, v{t6}
  v_cmp_eq_u32 vcc, v{t7}, v{t2}
  s_nop 1
  v_cndmask_b32 v{t5}, 0, v{t5}, vcc
  v_cmp_eq_u32 vcc, 0, v{t4}
  s_nop 1
  v_cndmask_b32 v{PAT}, 0, v{t5}, vcc
  v_cndmask_b32 v{PAT+1}, v{t5}, 0, vcc
  s_lshl_b32 s{sq}, s{sW}, 5
  s_add_u32 s{sq+1}, s{sq}, {L_GN}
  v_lshlrev_b32 v{vga}, 4, v{t7}
  v_add_u32 v{vga}, s{sq+1}, v{vga}
  v_and_b32 v{t2}, 12, v{vl}
  v_add_u32 v{vgq}, v{vga}, v{t2}
  v_and_b32 v{t2}, 3, v{vl}
  v_lshlrev_b32 v{t2}, 3, v{t2}
  v_lshl_add_u32 v{t2}, v{t1}, 5, v{t2}
  v_add_u32 v{vqlane}, {L_Q}, v{t2}
  v_and_b32 v{t2}, 31, v{vl}
  v_lshlrev_b32 v{t4}, 3, v{t2}
  v_add_u32 v{vacl}, {L_ACC}, v{t4}
  v_lshrrev_b32 v{t4}, 4, v{vl}              ; g
  v_mul_u32_u24 v{vxb}, {XS}, v{t0}
  v_lshl_add_u32 v{vxb}, v{t4}, 4, v{vxb}
  v_add_u32 v{vxb}, {L_X}, v{vxb}
  v_mul_u32_u24 v{vqw}, {QS}, v{t0}
  v_lshl_add_u32 v{vqw}, v{t4}, 3, v{vqw}
  s_add_u32 s{sq+1}, s{sq}, {L_Q}
  v_add_u32 v{vqw}, s{sq+1}, v{vqw}
  v_mul_u32_u24 v{vqa}, {2*WPITCH}, v{t4}
  v_bfe_u32 v{t5}, v{vl}, 2, 2
  v_lshl_add_u32 v{vqa}, v{t5}, 8, v{vqa}
  v_xor_b32 v{t5}, s{sW}, v{t5}
  v_lshl_add_u32 v{vqa}, v{t5}, 5, v{vqa}
  v_and_b32 v{t5}, 3, v{vl}
  v_lshl_add_u32 v{vqa}, v{t5}, 3, v{vqa}
  v_add_u32 v{vqa}, {L_WS}, v{vqa}
  v_and_b32 v{t4}, 1, v{vl}
  v_lshlrev_b32 v{t4}, 4, v{t4}
  v_lshlrev_b32 v{t4}, v{t4}, v{t6}
  v_bfe_u32 v{t5}, v{vl}, 1, 4
  v_lshlrev_b32 v{t7}, 2, v{t7}
  v_sub_u32 v{t5}, v{t5}, v{t7}""")
    for i in range(4):
        a(f"  v_cmp_eq_u32 vcc, {i}, v{t5}\n  s_nop 1\n  v_cndmask_b32 v{I0+i}, 0, v{t4}, vcc")
        a(f"  v_cmp_eq_u32 vcc, {8+i}, v{t5}\n  s_nop 1\n  v_cndmask_b32 v{I1+i}, 0, v{t4}, vcc")
    if not OPT["k8"]:
        a(f"  v_mov_b32 v{AQ+2}, 0\n  v_mov_b32 v{AQ+3}, 0")
        for t in range(4):
            a(f"  v_mov_b32 v{BQ+4*t+2}, 0\n  v_mov_b32 v{BQ+4*t+3}, 0")
    def prefetch():
        if not OPT["pf"]: return
        a(f"  s_mul_i32 s{sq}, s2, 40000\n  s_sub_u32 s{sq}, s{sq}, 4096\n  v_add_u32 v{t0}, s{sq}, v{vt16}")
        for j in range(10):
            a(f"  buffer_load_dwordx4 {v(DUM,4)}, v{t0}, {s(SE,4)}, 0 offen")
            if j < 9: a(f"  v_add_u32 v{t0}, 4096, v{t0}")
    def wtr(dst, ad):
        for st in range(4):
            for hf in range(2):
                a(f"  ds_read_b64_tr_b16 {v(dst+4*st+2*hf,2)}, v{ad} offset:{(8*st+hf)*WPITCH}")
    def own_x(nyounger):
        a(f"""
  v_lshrrev_b32 v{t0}, 4, v0
  v_lshl_add_u32 v{t0}, v{t0}, 5, v{vt16}
  v_add_u32 v{t0}, {L_X}, v{t0}
  s_waitcnt vmcnt({nyounger})
  ds_write_b128 v{t0}, {v(XL,4)}
  s_mov_b32 exec_lo, s{sLo2}
  s_mov_b32 exec_hi, s{sLo2}
  ds_write_b128 v{t0}, {v(XL+4,4)} offset:{32*XS}
  s_mov_b64 exec, -1""")
    a(f"""
  s_cmp_lt_u32 s{sW}, 2
  s_cselect_b32 s{sLo2}, -1, 0
  s_lshr_b32 s{sq}, s2, {1+FSH}
  s_lshl_b32 s{sq}, s{sq}, 8
  s_bfe_u32 s{sq+1}, s2, {hex((FSH<<16)|1)}
  s_lshl_b32 s{sq+1}, s{sq+1}, 2
  s_add_u32 s{sq}, s{sq}, s{sq+1}
  s_and_b32 s{sq+1}, s2, 1
  s_mul_i32 s{sq+1}, s{sq+1}, {FHALF}
  s_add_u32 s{sq}, s{sq}, s{sq+1}
  v_mul_u32_u24 v{vgn1}, {FLN*256}, v{vl}
  v_add_u32 v{vgn1}, s{sq}, v{vgn1}
  v_lshrrev_b32 v{t2}, {FSH-1}, v{vl}
  v_lshlrev_b32 v{t2}, 8, v{t2}
  v_and_b32 v{t3}, {(1<<(FSH-1))-1}, v{vl}
  v_lshl_add_u32 v{t2}, v{t3}, 3, v{t2}
  v_add_u32 v{vsrow}, s{sP}, v{t2}
  s_mov_b32 s{sK}, {NLOG2E}
  s_mov_b32 s{sK+1}, {NLOG2E}
  s_waitcnt lgkmcnt(0)
  s_add_u32 s{sTag}, s{sTag}, 1
  s_max_u32 s{sTag}, s{sTag}, 1
  s_bitcmp1_b32 s2, 0
  s_cbranch_scc1 K_GEMM
  s_cmp_ge_u32 s2, {2*G}
  s_cbranch_scc1 K_PREP
  s_mov_b32 s{sq}, {MAGIC}
  v_lshlrev_b32 v{t7}, 6, v0
  v_add_u32 v{t7}, {1<<18}, v{t7}
  s_barrier
  s_waitcnt vmcnt({5+NCC})""")
    stamp(a, 1)
    for j in range(5):
        a(f"""
  v_mul_u32_u24 v{B4+j}, s{sq}, v{DD+j}
  v_lshrrev_b32 v{B4+j}, 18, v{B4+j}
  v_and_b32 v{B4+j}, 0x3fc, v{B4+j}
  v_add_u32 v{t0+j}, {L_BCNT}, v{B4+j}
  ds_add_rtn_u32 v{RK+j}, v{t0+j}, v{vone}""")
    def claim_pair():
        a(f"  s_lshl_b32 s{sT}, s{sStart}, 8\n  s_sub_u32 s{sCnt}, {N*256}, s{sT}")
        srd(a, T1, pWS, f"s{sCnt}", add=WS_P, addreg=sT)
        a(f"""
  s_mul_i32 s{sT}, s{sW}, 2560
  v_lshl_add_u32 v{DO}, v{vl}, 7, s{sT}
  v_mov_b32 v{DO+1}, 0
  s_mov_b64 exec, 0xfffff
  buffer_atomic_or v{DO+1}, v{DO}, {s(T1,4)}, 0 offen
  s_mov_b64 exec, -1""")
    if OPT["claim"] & 16: claim_pair()
    a(f"  s_waitcnt vmcnt({NCC + (1 if OPT['claim'] & 16 else 0)})")
    if OPT["claim"] & 8: claim_pair()
    for j in range(5):
        a(f"""
  v_lshl_add_u32 v{SS_+j}, v{SS_+j}, 18, v{t7}
  v_and_or_b32 v{SS_+j}, v{DD+j}, 63, v{SS_+j}
  v_lshlrev_b32 v{CA+j}, 5, v{B4+j}
  v_add_u32 v{CA+j}, {L_CIMG}, v{CA+j}""")
        if j < 4: a(f"  v_add_u32 v{t7}, {512<<6}, v{t7}")
    srd(a, T2, pWS, NB*BSTR if not OPT["dbg"] & 4 else 0, add=WS_CELL + (0x2000000 if OPT["dbg"] & 1 else 0))
    a(f"""
  v_lshrrev_b32 v{t4}, 3, v0
  s_mov_b32 s{sq}, {BSTR}
  v_mul_u32_u24 v{t4}, s{sq}, v{t4}
  v_and_b32 v{t5}, 7, v0
  v_lshl_add_u32 v{t4}, v{t5}, 4, v{t4}
  s_lshl_b32 s{sq}, s2, {5 if OPT['half'] == 2 else 6}
  s_mov_b64 {s(sBad,2)}, 0
  s_waitcnt lgkmcnt(0)""")
    for j in range(5):
        a(f"""
  v_mul_u32_u24 v{t1}, 37, v{RK+j}
  v_lshl_add_u32 v{t0}, v{RK+j}, 2, v{CA+j}
  v_lshrrev_b32 v{t1}, 8, v{t1}
  v_cmp_le_u32 vcc, {CAP-1}, v{RK+j}
  v_lshl_add_u32 v{t0}, v{t1}, 2, v{t0}
  s_or_b64 {s(sBad,2)}, {s(sBad,2)}, vcc
  s_andn2_b64 exec, exec, vcc
  ds_write_b32 v{t0}, v{SS_+j}
  s_mov_b64 exec, -1""")
    a(f"""
  v_add_u32 v{t0}, {L_CIMG}, v{vt16}
  v_mov_b32 v{t2}, {L_FLG+4}
  s_cmp_eq_u64 {s(sBad,2)}, 0
  s_cbranch_scc1 K_NOFULL
  ds_write_b32 v{t2}, v{vone}
K_NOFULL:
  s_waitcnt lgkmcnt(0)
  s_barrier""")
    stamp(a, 2)
    a(f"  ds_read_b32 v{t2}, v{t2}\nK_OVFDONE:")
    for j in range(4):
        a(f"  ds_read_b128 {v(CP+4*j,4)}, v{t0} offset:{8192*j}")
    a(f"""
  s_waitcnt vmcnt({2 if OPT['claim'] & 2 else 63}) lgkmcnt(4)
  v_cmp_ne_u32 vcc, 0, v{t2}
  s_cbranch_vccnz K_OVF""")
    for j in range(4):
        a(f"""
  s_mov_b32 exec_lo, 0xaaaaaaaa
  s_mov_b32 exec_hi, 0xaaaaaaaa
  s_waitcnt lgkmcnt({3-j})
  v_mov_b32 v{CP+4*j+3}, s{sTag}
  s_mov_b64 exec, -1
  {"s_mov_b32 exec_lo, 0x0f0f0f0f" + chr(10) + "  s_mov_b32 exec_hi, 0x0f0f0f0f" if OPT["half"] else ""}
  buffer_store_dwordx4 {v(CP+4*j,4)}, v{t4}, {s(T2,4)}, s{sq} offen {STF}
  s_mov_b64 exec, -1
  s_add_u32 s{sq}, s{sq}, {64*BSTR}""")
    a(f"  s_lshl_b32 s{sq}, s{sStart}, 8\n  s_lshl_b32 s{sq+1}, s{sNb}, 8")
    srd(a, T2, pX, f"s{sq+1}", addreg=sq)
    a(f"""
  v_add_u32 v{t6}, 8192, v{vt16}
  buffer_load_dwordx4 {v(XL,4)}, v{vt16}, {s(T2,4)}, 0 offen
  buffer_load_dwordx4 {v(XL+4,4)}, v{t6}, {s(T2,4)}, 0 offen""")
    own_x(0)
    a(f"""
  {"s_sleep %d" % OPT["slpa"] if OPT["slpa"] else ""}""")
    def spf(n, per_wave, base):
        if not n: return
        assert 8*OPT['spf'] + 4*OPT['spfb'] <= 640
        a(f"""
  s_lshr_b32 s{sq}, s2, 1
  s_min_u32 s{sq}, s{sq}, {G-1}
  s_mul_i32 s{sq}, s{sq}, {CH*32}
  s_mul_i32 s{sq+1}, s{sW}, {per_wave}
  s_add_u32 s{sq}, s{sq}, s{sq+1}
  s_add_u32 s{sq}, s{sq}, {base}
  s_add_u32 s{T0}, s{pE}, s{sq}
  s_addc_u32 s{T0+1}, s{pE+1}, 0""")
        for i in range(n):
            a(f"  s_load_dword s{T0+2}, s[{T0}:{T0+1}], {128*i}")
    spf(OPT["spf"], OPT["spf"]*128, 0)
    a(f"""
  s_branch K_PST
K_GW:
  {"s_sleep %d" % OPT["slpb"] if OPT["slpb"] else ""}""")
    spf(OPT["spfb"], OPT["spfb"]*128, OPT["spf"]*1024)
    a(f"""
  s_branch K_PST
K_GEMM:
  ; ---------------- P gemm role: rows of this bucket and the one before ----------------""")
    if OPT["touch"]:
        a(f"""
  s_cmp_lg_u32 s{sW}, 0
  s_cbranch_scc1 K_NOTOUCH
  s_waitcnt vmcnt(0)
  s_mov_b64 exec, {FMASK}
  buffer_load_dword v{DUM}, v{vgn1}, {s(SF,4)}, 0 offen sc1
  s_mov_b64 exec, -1
K_NOTOUCH:""")
    a(f"""
  s_mul_i32 s{sq}, s{sNp}, {XS}
  s_sub_u32 s{sq}, {L_X}, s{sq}
  v_lshrrev_b32 v{t0}, 4, v0
  v_lshl_add_u32 v{t0}, v{t0}, 5, v{vt16}
  v_add_u32 v{t3}, s{sq}, v{t0}
  s_cmp_lt_u32 s{sW}, 4
  s_cselect_b32 s{sq+1}, -1, 0
  v_subrev_u32 v{t1}, {L_X}, v{vxb}
  v_add_u32 v{t1}, s{sq}, v{t1}
  s_waitcnt vmcnt({(2 if OPT['wfirst'] else 6)+NCL})
  ds_write_b128 v{t3}, {v(GX,4)}
  s_waitcnt vmcnt({(1 if OPT['wfirst'] else 5)+NCL})
  ds_write_b128 v{t3}, {v(GX+4,4)} offset:{32*XS}
  s_waitcnt vmcnt({(0 if OPT['wfirst'] else 4)+NCL})
  s_mov_b32 exec_lo, s{sq+1}
  s_mov_b32 exec_hi, s{sq+1}
  ds_write_b128 v{t3}, {v(GX+8,4)} offset:{64*XS}
  s_mov_b64 exec, -1
  v_and_b32 v{t2}, 15, v{vl}
  v_mul_u32_u24 v{t2}, {XS}, v{t2}
  v_lshrrev_b32 v{t3}, 4, v{vl}
  v_lshl_add_u32 v{t2}, v{t3}, 3, v{t2}
  s_lshl_b32 s{sq}, s{sW}, 5
  s_add_u32 s{sq}, s{sq}, {L_GP}
  v_add_u32 v{t2}, s{sq}, v{t2}
  v_add_u32 v{t0}, {L_GP - 16*XS}, v{t0}
  v_subrev_u32 v{t4}, 4096, v{vt16}""")
    srd(a, T0, pWS, f"s{sCnt}", add=WS_P + (0x2800000 if OPT["dbg"] & 2 else 0), addreg=sT)
    a(f"  s_waitcnt vmcnt({NCL}) lgkmcnt(0)\n  s_barrier")
    stamp(a, 1)
    wtr(W1F, vqa)
    XT = [PF, PF+16, EA, EB, PF]
    for nt in range(4):
        for st in range(4):
            a(f"  ds_read_b128 {v(XT[nt]+4*st,4)}, v{t1} offset:{nt*16*XS + st*64}")
    for nt in range(5):
        a(f"  s_waitcnt lgkmcnt({(12, 12, 8, 4, 0)[nt]})")
        for st in range(4):
            c = "0" if st == 0 else v(D0+4*nt, 4)
            a(f"  v_mfma_f32_16x16x32_bf16 {v(D0+4*nt,4)}, {v(W1F+4*st,4)}, {v(XT[nt]+4*st,4)}, {c}")
        if nt == 0:
            for st in range(4):
                a(f"  ds_read_b128 {v(PF+4*st,4)}, v{t1} offset:{4*16*XS + st*64}")
    for nt in range(5):
        d = D0 + 4*nt
        if nt == 4: a("  s_nop 1")
        a(f"""
  v_pk_mul_f32 {v(d,2)}, {v(d,2)}, {s(sK,2)}
  v_pk_mul_f32 {v(d+2,2)}, {v(d+2,2)}, {s(sK,2)}
  v_cvt_pk_bf16_f32 v{W3+2*nt}, v{d}, v{d+1}
  v_cvt_pk_bf16_f32 v{W3+2*nt+1}, v{d+2}, v{d+3}
  ds_write_b64 v{t2}, {v(W3+2*nt,2)} offset:{nt*16*XS}""")
    a(f"  s_waitcnt vmcnt({NA}) lgkmcnt(0)\n  s_barrier")
    stamp(a, 2)
    a(f"""
  s_cmp_lt_u32 s{sW}, 4
  s_cbranch_scc1 K_GW""")
    for j in range(5):
        a(f"  ds_read_b128 {v(PF+4*j,4)}, v{t0} offset:{j*16*XS}")
    if OPT["zt"]:
        srd(a, T1, pWS, f"s{sCnt}", add=0x1800000, addreg=sT)
        a(f"  s_waitcnt lgkmcnt(0)\n  v_mov_b32 v{t1}, v{t4}")
        for j in range(5):
            a(f"  buffer_store_dwordx4 {v(PF+4*j,4)}, v{t1}, {s(T1,4)}, 0 offen {STF}\n  v_add_u32 v{t1}, 4096, v{t1}")
        a("  s_waitcnt vmcnt(0)")
        stamp(a, 1)
    for j in range(5):
        a(f"  s_waitcnt lgkmcnt({4-j})\n  buffer_store_dwordx4 {v(PF+4*j,4)}, v{t4}, {s(T0,4)}, 0 offen {STF}")
        if j < 4: a(f"  v_add_u32 v{t4}, 4096, v{t4}")
    a(f"""
  v_mov_b32 v{t0}, {L_FLG+12}
  v_mov_b32 v{t7}, s{sTag}
  s_mov_b64 exec, 1
  s_waitcnt vmcnt(0)""")
    stamp(a, 3)
    a(f"""
  ds_add_rtn_u32 v{t0}, v{t0}, v{vone}
  s_waitcnt lgkmcnt(0)
  v_readfirstlane_b32 s{sq}, v{t0}
  s_mov_b64 exec, -1
  s_cmp_lg_u32 s{sq}, 3
  s_cbranch_scc1 K_PST
K_FLAG:
  s_mov_b64 exec, {FMASK}
  buffer_store_dword v{t7}, v{vgn1}, {s(SF,4)}, 0 offen {FLF}
  s_mov_b64 exec, -1
K_PST:""")
    def node_gemm(WA, WB=None):
        for nt in range(3):
            xf = XF + 16*(nt & 1)
            if nt == 0:
                for n2 in range(2):
                    for st in range(4):
                        a(f"  ds_read_b128 {v(XF+16*n2+4*st,4)}, v{vxb} offset:{n2*16*XS + st*64}")
            a(f"  s_waitcnt lgkmcnt({4 if nt == 0 else 5 if nt == 1 else 1})")
            q = QD if nt != 1 else SA
            for st in range(4):
                c = "0" if st == 0 else v(q, 4)
                a(f"  v_mfma_f32_16x16x32_bf16 {v(q,4)}, {v(WA+4*st,4)}, {v(xf+4*st,4)}, {c}")
            if WB is not None:
                for st in range(4):
                    c = "0" if st == 0 else v(U+4*nt, 4)
                    a(f"  v_mfma_f32_16x16x32_bf16 {v(U+4*nt,4)}, {v(WB+4*st,4)}, {v(xf+4*st,4)}, {c}")
            if nt == 0:
                for st in range(4):
                    a(f"  ds_read_b128 {v(XF+4*st,4)}, v{vxb} offset:{2*16*XS + st*64}")
            a(f"""
  s_nop 7
  v_pk_mul_f32 {v(q,2)}, {v(q,2)}, {s(sK,2)}
  v_pk_mul_f32 {v(q+2,2)}, {v(q+2,2)}, {s(sK,2)}
  v_cvt_pk_bf16_f32 v{QD+4+2*(nt&1)}, v{q}, v{q+1}
  v_cvt_pk_bf16_f32 v{QD+5+2*(nt&1)}, v{q+2}, v{q+3}""")
            if nt == 2:
                a(f"  s_mov_b32 exec_lo, 0x00ff00ff\n  s_mov_b32 exec_hi, 0x00ff00ff")
            a(f"  ds_write_b64 v{vqw}, {v(QD+4+2*(nt&1),2)} offset:{nt*16*QS}")
            if nt == 2:
                a("  s_mov_b64 exec, -1")
    assert SB == SA + 2
    def poll(lab, off):
        a(f"""
  s_cmp_lg_u32 s{sW}, 1
  s_cbranch_scc1 {lab}_D
  s_mov_b32 s{sq}, 0
  s_mov_b32 s{sq+1}, {off}
  {"s_sleep %d" % OPT["slp0"] if OPT["slp0"] and off == 0 else ""}
{lab}:
  buffer_load_dwordx2 {v(DUM,2)}, v{vsrow}, {s(SF,4)}, s{sq+1} offen {PLF}
  s_add_u32 s{sq}, s{sq}, 1
  s_waitcnt vmcnt(0)
  v_cmp_ne_u32 vcc, s{sTag}, v{DUM}
  v_cmp_ne_u32 {s(sBad,2)}, s{sTag}, v{DUM+1}
  s_or_b64 vcc, vcc, {s(sBad,2)}
  s_cbranch_scc0 {lab}_D
  {"s_sleep %d" % OPT["slp"] if OPT["slp"] else ""}
  s_cmp_lt_u32 s{sq}, 0x8000
  s_cbranch_scc1 {lab}
{lab}_D:""")
    stamp(a, 5)
    nld = 16 if OPT["lo"] else 12
    a(f"""
  s_lshl_b32 s{sTmp}, s{sW}, 12
  s_add_u32 s{sTmp+1}, s{sTmp}, {WF_UT}
  s_add_u32 s{sUB}, s{sTmp}, {WF_UB}
  s_mov_b32 s{sTmp+2}, {WF_3H}
  s_mov_b32 s{sTmp+3}, {WF_3L}
  s_mov_b32 s{sOV}, {0xaaaaaaaa if not OPT["dbg"] & 5 else 0}
  s_cmp_eq_u32 s{sW}, 7
  s_cselect_b32 s{sOV+1}, {0xaaaaa if not OPT["dbg"] & 5 else 0}, s{sOV}
  v_min_u32 v{t4}, 2, v{vl}
  s_lshl_b32 s{sq}, s2, 7
  v_lshl_add_u32 v{t4}, v{t4}, 2, s{sq}
  v_mov_b32 v{t5}, s{sTag}
  s_mov_b32 s{sq}, 0
  {"s_sleep %d" % OPT["slp0"] if OPT["slp0"] else ""}
""")
    wl = [f"  buffer_load_dwordx4 {v(W2F+4*st,4)}, v{t6}, {s(SW,4)}, s{sTmp} offen offset:{st*1024} sc1" for st in range(4)]
    wl += [f"  buffer_load_dwordx4 {v(WUT+4*st,4)}, v{t6}, {s(SW,4)}, s{sTmp+1} offen offset:{st*1024} sc1" for st in range(4)]
    wl += [f"  buffer_load_dwordx4 {v(W3+4*st,4)}, v{t6}, {s(SW,4)}, s{sTmp+2} offen offset:{st*1024} sc1" for st in range(4)]
    if OPT["lo"]:
        wl += [f"  buffer_load_dwordx4 {v(W3L+4*st,4)}, v{t6}, {s(SW,4)}, s{sTmp+3} offen offset:{st*1024} sc1" for st in range(4)]
    a(f"""
  v_lshlrev_b32 v{t6}, 4, v{vl}
  s_mov_b32 s{sOV+6}, 0
K_CPOLL:
  buffer_load_dwordx4 {v(REC,4)}, v{vcell}, {s(SC,4)}, 0 offen sc1
  {"buffer_load_dwordx4 %s, v%d, %s, 0 offen offset:64 sc1" % (v(REC+4,4), vcell, s(SC,4)) if not OPT["half"] else chr(10).join(["v_mov_b32 v%d, 0" % (REC+4+i) for i in range(3)] + ["v_mov_b32 v%d, s%d" % (REC+7, sTag)])}
  s_cmp_lg_u32 s{sOV+6}, 0
  s_cbranch_scc1 K_CPOLL1
  buffer_load_dword v{t5}, v{t4}, {s(SF,4)}, 0 offen sc1
K_CPOLL1:
  s_add_u32 s{sq}, s{sq}, 1
  s_waitcnt vmcnt(0)
  v_cmp_ne_u32 vcc, s{sTag}, v{REC+3}
  v_cmp_ne_u32 {s(sBad,2)}, s{sTag}, v{REC+7}
  s_or_b64 {s(sBad,2)}, vcc, {s(sBad,2)}
  v_cmp_ne_u32 vcc, s{sTag}, v{t5}
  s_and_b64 {s(sBad,2)}, {s(sBad,2)}, {s(sOV,2)}
  s_or_b64 {s(sEx,2)}, {s(sBad,2)}, vcc
  s_cbranch_scc0 K_CPOLLD
  s_cbranch_vccnz K_CPOLL2
  s_cmp_lg_u32 s{sOV+6}, 0
  s_cbranch_scc1 K_CPOLL2
  s_mov_b32 s{sOV+6}, 1""")
    if OPT["stamp"] and OPT["s0st"]: a("  s_memrealtime s[86:87]")
    for x in wl: a(x)
    a(f"""
K_CPOLL2:
  {"s_sleep %d" % OPT["slp"] if OPT["slp"] else ""}
  s_cmp_lt_u32 s{sq}, 0x8000
  s_cbranch_scc1 K_CPOLL
K_CPOLLD:
  s_mov_b32 exec_lo, 0xaaaaaaaa
  s_mov_b32 exec_hi, 0xaaaaaaaa
  v_mov_b32 v{REC+3}, 0
  v_mov_b32 v{REC+7}, 0
  s_mov_b64 exec, -1""")
    stamp(a, 6)
    NR = 8
    a(f"""
K_PHASE1:
  v_cmp_le_u32 vcc, 0xfffc0000, v{REC+NR-2}
  s_cbranch_vccz K_NOMARK
  s_and_saveexec_b64 {s(sEx,2)}, vcc
  v_lshrrev_b32 v{t0}, 2, v0                 ; producer
  v_lshrrev_b32 v{t1}, 5, v{t0}
  v_lshlrev_b32 v{t1}, 2, v{t1}
  v_lshlrev_b32 v{t0}, v{t0}, v{vone}
  ds_or_b32 v{t1}, v{t0} offset:{L_FLG+32}
  v_mov_b32 v{REC+NR-2}, 0
  s_mov_b64 exec, {s(sEx,2)}
K_NOMARK:""")
    for k in range(NR):
        if k == 4:
            a(f"""
  v_or3_b32 v{t3}, v{REC+k}, v{REC+k+1}, v{REC+k+2}
  v_or_b32 v{t3}, v{t3}, v{REC+k+3}
  v_cmp_ne_u32 vcc, 0, v{t3}
  s_cbranch_vccz K_P1E""")
        a(f"""
  v_lshlrev_b32 v{NOD+k}, 2, v{REC+k}
  v_and_b32 v{NOD+k}, 0xfc, v{NOD+k}
  v_cmpx_ne_u32 vcc, 0, v{REC+k}
  ds_add_rtn_u32 v{RNK+k}, v{NOD+k}, v{vone} offset:{L_CNT}
  s_mov_b64 exec, -1""")
    a(f"""
K_P1E:
  s_cmp_lg_u32 s{sOV+6}, 0
  s_cbranch_scc1 K_NOWL
  s_mov_b32 s{sOV+6}, 1""")
    if OPT["stamp"] and OPT["s0st"]: a("  s_memrealtime s[86:87]")
    for x in wl: a(x)
    a(f"""
K_NOWL:
  v_lshlrev_b32 v{t0}, 2, v{vl}
  v_subrev_u32 v{t4}, s{sStart}, v{vl}
  v_and_b32 v{t4}, 63, v{t4}
  s_waitcnt lgkmcnt(0)""")
    fstamp(a, 1)
    a(f"""
  s_barrier""")
    fstamp(a, 2)
    a(f"""
  ds_read_b32 v{t1}, v{t0} offset:{L_CNT}
  s_waitcnt lgkmcnt(0)
  v_add_u32 v{t1}, 3, v{t1}
  v_bfe_u32 v{t5}, v{t1}, 2, 1               ; left-over quad
  v_lshrrev_b32 v{t6}, 3, v{t1}
  v_lshl_or_b32 v{t1}, v{t5}, 16, v{t6}
  v_mov_b32 v{t2}, v{t1}
  s_nop 1
  v_add_u32_dpp v{t2}, v{t2}, v{t2} row_shr:1 row_mask:0xf bank_mask:0xf
  s_nop 1
  v_add_u32_dpp v{t2}, v{t2}, v{t2} row_shr:2 row_mask:0xf bank_mask:0xf
  s_nop 1
  v_add_u32_dpp v{t2}, v{t2}, v{t2} row_shr:4 row_mask:0xf bank_mask:0xf
  s_nop 1
  v_add_u32_dpp v{t2}, v{t2}, v{t2} row_shr:8 row_mask:0xf bank_mask:0xf
  s_nop 1
  v_add_u32_dpp v{t2}, v{t2}, v{t2} row_bcast:15 row_mask:0xa bank_mask:0xf
  s_nop 1
  v_add_u32_dpp v{t2}, v{t2}, v{t2} row_bcast:31 row_mask:0xc bank_mask:0xf
  s_nop 1
  v_readlane_b32 s{sT}, v{t2}, 63
  v_sub_u32 v{t1}, v{t2}, v{t1}
  s_lshr_b32 s{sq+1}, s{sT}, 16
  s_and_b32 s{sCO}, s{sT}, 0xffff
  s_lshl_b32 s{sq}, s{sCO}, 1                ; quads in the groups of eight
  s_lshr_b32 s{sCO}, s{sCO}, 2
  s_add_u32 s{sT}, s{sq}, s{sq+1}
  s_add_u32 s{sT}, s{sT}, 7
  s_lshr_b32 s{sT}, s{sT}, 3
  v_lshrrev_b32 v{t2}, 16, v{t1}
  v_add_u32 v{t2}, s{sq}, v{t2}              ; quad slot of the left-over quad
  v_and_b32 v{t1}, 0xffff, v{t1}
  v_lshl_or_b32 v{t0}, v{t6}, 16, v{t1}
  v_lshlrev_b32 v{t0}, 3, v{t0}              ; 8*start8 | 8*n8 << 16
  v_lshlrev_b32 v{t7}, 1, v{t6}
  v_sub_u32 v{t7}, v{t2}, v{t7}
  v_lshlrev_b32 v{t7}, 2, v{t7}              ; position base of the left-over quad
  s_cmp_gt_u32 s{sT}, {CAPB}
  s_cbranch_scc1 K_SPLIT""")
    fstamp(a, 3)
    for k0 in (0, 4):
        if k0:
            a(f"""
  v_or3_b32 v{t3}, v{REC+k0}, v{REC+k0+1}, v{REC+k0+2}
  v_or_b32 v{t3}, v{t3}, v{REC+k0+3}
  v_cmp_ne_u32 vcc, 0, v{t3}
  s_cbranch_vccz K_P2E""")
        for k in range(k0, k0+4):
            a(f"  ds_bpermute_b32 v{PF+24+(k&3)}, v{NOD+k}, v{t7}")
            a(f"  ds_bpermute_b32 v{NOD+k}, v{NOD+k}, v{t0}")
        for k in range(k0, k0+4):
            e = PF + 16 + 2*(k & 3)
            a(f"""
  v_lshrrev_b32 v{e}, 10, v{REC+k}
  v_and_b32 v{e}, {hex(0xffffff00 if not OPT['hot'] else 0x1f00)}, v{e}
  v_bfe_u32 v{e+1}, v{REC+k}, 6, 12
  v_lshl_add_u32 v{e+1}, v{e+1}, 5, v{vebase}""")
            if OPT["hot"]: a(f"  v_and_b32 v{e+1}, 0xfe0, v{e+1}")
        a("  s_waitcnt lgkmcnt(0)")
        for k in range(k0, k0+4):
            a(f"  v_cmp_lt_u32_sdwa {s(8+2*(k&3),2)}, v{RNK+k}, v{NOD+k} src0_sel:DWORD src1_sel:WORD_1")
        for k in range(k0, k0+4):
            a(f"  v_and_b32 v{NOD+k}, 0xffff, v{NOD+k}")
        for k in range(k0, k0+4):
            a(f"  v_cndmask_b32 v{NOD+k}, v{PF+24+(k&3)}, v{NOD+k}, {s(8+2*(k&3),2)}")
        for k in range(k0, k0+4):
            e = PF + 16 + 2*(k & 3)
            a(f"""
  v_add_lshl_u32 v{NOD+k}, v{NOD+k}, v{RNK+k}, 3
  v_cmpx_ne_u32 vcc, 0, v{REC+k}
  ds_write_b64 v{NOD+k}, {v(e,2)}
  s_mov_b64 exec, -1""")
    a(f"""
K_P2E:""")
    fstamp(a, 5)
    a(f"""
  v_lshlrev_b32 v{t2}, 2, v{t2}
  v_cmpx_ne_u32 vcc, 0, v{t5}
  ds_write_b32 v{t2}, v{t4} offset:{L_GN}
  s_mov_b64 exec, -1
  v_add_lshl_u32 v{t2}, v{t1}, v{t6}, 3
  v_lshl_add_u32 v{t1}, v{t1}, 1, s{sW}
  v_lshlrev_b32 v{t1}, 2, v{t1}
K_GNL:
  v_cmpx_lt_u32 vcc, v{t1}, v{t2}
  ds_write_b32 v{t1}, v{t4} offset:{L_GN}
  v_add_u32 v{t1}, 32, v{t1}
  v_cmpx_lt_u32 vcc, v{t1}, v{t2}
  ds_write_b32 v{t1}, v{t4} offset:{L_GN}
  v_add_u32 v{t1}, 32, v{t1}
  v_cmpx_lt_u32 vcc, v{t1}, v{t2}
  s_cbranch_execnz K_GNL
  s_mov_b64 exec, -1
  s_add_u32 s{sCnt}, s{sT}, 7
  s_sub_u32 s{sCnt}, s{sCnt}, s{sW}
  s_lshr_b32 s{sCnt}, s{sCnt}, 3
  s_add_u32 s{sCO}, s{sCO}, 7
  s_sub_u32 s{sCO}, s{sCO}, s{sW}
  s_lshr_b32 s{sCO}, s{sCO}, 3
  {("s_mov_b32 s%d, 40" % sCnt + chr(10) + "  s_movk_i32 s%d, 320" % sT + chr(10) + "  s_mov_b32 s%d, 40" % sCO) if OPT["bench"] else ""}
""")
    stamp(a, 4)
    a(f"""
  s_cmp_eq_u32 s{sFirst}, 0
  s_cbranch_scc1 K_POLL2_D""")
    poll("K_POLL2", FHALF)
    a("  s_waitcnt lgkmcnt(0)\n  s_barrier")
    stamp(a, 7)
    dsc = " sc1" if OPT["dsc"] else ""
    def dma_issue():
        L = []
        for j in range(8):
            d = DO + (j & 1)
            L.append([f"  s_add_u32 m0, s{sStg}, {j*1040}",
                      f"  v_add_u32_dpp v{d}, v{ENT}, v{vchunk} row_newbcast:{2*j} row_mask:0xf bank_mask:0xf",
                      f"  buffer_load_dwordx4 v{d}, {s(SP,4)}, 0 offen{dsc} lds" if not OPT["nodma"] else "  s_nop 0"])
        L.append([f"  s_add_u32 m0, s{sStg}, 8320",
                  f"  v_add_u32 v{DO}, v{ENT+1}, v{vechunk}",
                  f"  buffer_load_dwordx4 v{DO}, {s(SE,4)}, 0 offen lds" if not (OPT["nodma"] or OPT["noe"]) else "  s_nop 0"])
        return L
    ndma = 0 if OPT["nodma"] else 8 if OPT["noe"] else 9
    def frag_reads():
        L = []
        for st in range(8):
            L.append(f"  ds_read_b128 {v(PF+4*st,4)}, v{vAlo if st < 4 else vAhi} offset:{32*(st&3)}")
        L.insert(2, f"  ds_read_b128 {v(EF,4)}, v{vEF}")
        return L
    def bq_reads():
        return [f"  ds_read_b64_tr_b16 {v(BQ+nq*t,2)}, v{vqa} offset:{64*t}" for t in range(4)]
    def chain(t, D):
        L = [f"  v_mfma_f32_32x32x16_bf16 {v(D,16)}, {v(EF,4)}, {v(W3+4*t,4)}, 0"]
        if OPT["lo"]:
            L.append(f"  v_mfma_f32_32x32x16_bf16 {v(D,16)}, {v(EF,4)}, {v(W3L+4*t,4)}, {v(D,16)}")
        L.append(f"  v_mfma_f32_32x32x16_bf16 {v(D,16)}, {v(PF+8*t,4)}, {v(I0,4)}, {v(D,16)}")
        L.append(f"  v_mfma_f32_32x32x16_bf16 {v(D,16)}, {v(PF+8*t+4,4)}, {v(I1,4)}, {v(D,16)}")
        if OPT["k8"]:
            L.append(f"  v_mfma_f32_32x32x8bf16_1k {v(D,16)}, {v(AQ,2)}, {v(BQ+2*t,2)}, {v(D,16)}")
        else:
            L.append(f"  v_mfma_f32_32x32x16_bf16 {v(D,16)}, {v(AQ,4)}, {v(BQ+4*t,4)}, {v(D,16)}")
        return L

    if OPT["stag"]:
        a(f"  s_cmp_lt_u32 s{sW}, 4\n  s_cbranch_scc1 K_STG\n  s_sleep {OPT['stag']}\nK_STG:")
    a(f"  ds_read_b64 {v(ENT,2)}, v{vent}\n  s_waitcnt lgkmcnt(0)")
    for x in dma_issue(): a("\n".join(x))
    a(f"  ds_read_b64 {v(ENT,2)}, v{vent} offset:2048")
    a(f"""
  s_cmp_eq_u32 s{sFirst}, 0
  s_cbranch_scc1 K_NOGEMM0
  s_mov_b32 s{sFirst}, 0
  s_waitcnt vmcnt({ndma}) lgkmcnt(0)""")
    node_gemm(W2F, WUT)
    a(f"  v_lshlrev_b32 v{t4}, 4, v{vl}")
    for st in range(4):
        a(f"  buffer_load_dwordx4 {v(WUB+4*st,4)}, v{t4}, {s(SW,4)}, s{sUB} offen offset:{st*1024} sc1")
    def pf5():
        a(f"  s_mul_i32 s{sq}, s2, 40000\n  v_add_u32 v{t0}, s{sq}, v{vt16}")
        for j in range(5):
            a(f"  buffer_load_dwordx4 {v(DUM,4)}, v{t0}, {s(SE,4)}, 0 offen")
            if j < 4: a(f"  v_add_u32 v{t0}, 8192, v{t0}")
    if OPT["pf2"] == 1: pf5()
    a(f"""
  s_or_b32 s{sq}, s2, s{sW}
  s_cmp_lg_u32 s{sq}, 0
  s_cbranch_scc1 K_NONONCE
  s_mov_b64 exec, 1
  v_mov_b32 v{t0}, {FNON}
  v_mov_b32 v{t1}, s{sTag}
  buffer_store_dword v{t1}, v{t0}, {s(SF,4)}, 0 offen
  s_mov_b64 exec, -1
  s_waitcnt vmcnt(0)
K_NONONCE:
  s_waitcnt lgkmcnt(0)
  s_barrier
K_NOGEMM:
  ds_read_b32 v{vgn1}, v{vgq}
  ds_read_b32 v{vsrow}, v{vrow}
  ds_read_b128 {v(GN,4)}, v{vga}
  s_waitcnt vmcnt({9 if OPT["pf2"] == 1 else 4})""")
    stamp(a, 8, 96)
    for x in frag_reads(): a(x)
    a(f"""
  s_waitcnt lgkmcnt(9)
  v_mad_u32_u24 v{vqa}, v{vgn1}, s{sQS}, v{vqlane}
  v_lshrrev_b64 {v(AQ,2)}, v{vsrow}, {v(PAT,2)}""")
    for x in bq_reads(): a(x)
    a("  s_waitcnt lgkmcnt(0)")
    for x in dma_issue(): a("\n".join(x))
    if OPT["pf2"] == 2: pf5()
    for x in chain(0, D0): a(x)
    if OPT["prio"]:
        a(f"  s_cmp_lt_u32 s{sW}, 4\n  s_cbranch_scc1 K_PR\n  s_setprio 1\nK_PR:")
    a(f"""
  s_nop 7
  s_nop 3
  s_cmp_eq_u32 s{sCnt}, 0
  s_cbranch_scc1 K_LOOPEND
  s_cmp_lg_u32 s{sMode}, 0
  s_cbranch_scc1 K_SAFE
  {"s_branch K_QUAD" if not OPT["octo"] else ""}
  s_sub_u32 s{sCnt}, s{sCnt}, s{sCO}
  s_cmp_eq_u32 s{sCO}, 0
  s_cbranch_scc1 K_QUAD""")

    def p(r): return v(r, 2)
    def octet_fast(d, e, t, r, sres):
        ex = [f"  v_exp_f32 v{e+i}, v{d+i}" for i in range(8)]
        L = [f"  v_pk_add_f32 {p(t)}, {p(e)}, 1.0 op_sel_hi:[1,0]",
             f"  v_pk_add_f32 {p(t+2)}, {p(e+4)}, 1.0 op_sel_hi:[1,0]",
             f"  v_pk_fma_f32 {p(t+4)}, {p(d)}, {p(e+2)}, {p(d)}",
             f"  v_pk_fma_f32 {p(t+6)}, {p(d+4)}, {p(e+6)}, {p(d+4)}",
             f"  v_pk_fma_f32 {p(e)}, {p(t)}, {p(e+2)}, {p(t)}",
             f"  v_pk_fma_f32 {p(e+4)}, {p(t+2)}, {p(e+6)}, {p(t+2)}",
             f"  v_pk_fma_f32 {p(t+4)}, {p(d+2)}, {p(t)}, {p(t+4)}",
             f"  v_pk_fma_f32 {p(t+6)}, {p(d+6)}, {p(t+2)}, {p(t+6)}",
             f"  v_pk_mul_f32 {p(t)}, {p(e)}, {p(e+4)}",
             f"  v_pk_mul_f32 {p(t+4)}, {p(t+4)}, {p(e+4)}",
             f"  v_rcp_f32 v{r}, v{t}",
             f"  v_rcp_f32 v{r+1}, v{t+1}",
             f"  v_pk_fma_f32 {p(t+4)}, {p(t+6)}, {p(e)}, {p(t+4)}",
             f"  v_pk_mul_f32 {p(sres)}, {p(t+4)}, {p(r)}"]
        return ex, L
    def octet_safe(d, e, t, r, sres):
        ex = [f"  v_exp_f32 v{e+i}, v{d+i}" for i in range(8)]
        L = [f"  v_pk_add_f32 {p(e+2*i)}, {p(e+2*i)}, 1.0 op_sel_hi:[1,0]" for i in range(4)]
        L += [f"  v_rcp_f32 v{t+i}, v{e+i}" for i in range(8)]
        L += [f"  v_pk_mul_f32 {p(sres)}, {p(d)}, {p(t)}"]
        L += [f"  v_pk_fma_f32 {p(sres)}, {p(d+2*i)}, {p(t+2*i)}, {p(sres)}" for i in range(1, 4)]
        return ex, L
    def zipl(x, y):
        o = []
        for i in range(max(len(x), len(y))):
            if i < len(x): o.append(x[i])
            if i < len(y): o.append(y[i])
        return o
    def adds(t, kind):
        if OPT["noadd"]: return [f"  ds_read_b32 v{DUM}, v{vgq}"] * (2 if kind == "octo" else 4)
        if kind == "octo": return [f"  ds_add_f64 v{AD+2*xy}, {v(CV+2*xy,2)} offset:{256*t}" for xy in range(2)]
        return [f"  ds_add_f64 v{AD+2*xy+o}, {v(CV+2*(2*o+xy),2)} offset:{256*t}" for o in range(2) for xy in range(2)]
    def block_body(kind, u, nun):
        oc = octet_safe if kind == "safe" else octet_fast
        nadd = 2 if kind == "octo" else 4
        B = []
        for t in range(4):
            D = D0 if t % 2 == 0 else D1
            Dn = D1 if t % 2 == 0 else D0
            exa, La = oc(D, EA, TA, RA, SA)
            exb, Lb = oc(D+8, EB, TB, RB, SB)
            ex = exa + exb
            ch = chain((t+1) % 4, Dn)
            late = []
            if kind == "octo":
                keep = lambda L: [x for x in L[:-1] if "v_rcp" not in x]
                dk = DK + 2*(t & 1)
                pk = zipl(keep(La), keep(Lb))
                pk = pk[:-4] + [f"  v_pk_mul_f32 {p(dk)}, {p(TA)}, {p(TB)}"] + pk[-4:-2] + \
                     [f"  v_rcp_f32 v{RA}, v{dk}", f"  v_rcp_f32 v{RA+1}, v{dk+1}"] + pk[-2:] + \
                     [f"  v_pk_mul_f32 {p(TA+4)}, {p(TA+4)}, {p(TB)}"]
                if t & 1: pk.append(f"  v_pk_fma_f32 {p(MAC)}, {p(DK)}, {p(DK+2)}, {p(MAC)}")
                pk += [f"  v_pk_fma_f32 {p(TA+4)}, {p(TB+4)}, {p(TA)}, {p(TA+4)}",
                       f"  v_pk_mul_f32 {p(SA)}, {p(TA+4)}, {p(RA)}"]
                fin = [f"  v_cvt_f64_f32 {v(CV+2*xy,2)}, v{SA+xy}" for xy in range(2)]
                adr = (0, 2)
            else:
                pk = zipl(La, Lb)
                if kind == "quad":
                    idx = max(i for i, x in enumerate(pk) if x.startswith(f"  v_pk_mul_f32 {p(TB)}, {p(EB)}"))
                    pk.insert(idx+1, f"  v_pk_fma_f32 {p(MAC)}, {p(TA)}, {p(TB)}, {p(MAC)}")
                fin = [f"  v_cvt_f64_f32 {v(CV+2*(2*o+xy),2)}, v{S+xy}" for o, S in ((0, SA), (1, SB)) for xy in range(2)]
                adr = range(4)
            fin += adds(t, kind)
            if t == 0:
                pk = pk[:4] + [f"  v_mad_u32_u24 v{AD+i}, v{GN+i}, s{sAS}, v{vacl}" for i in adr] + pk[4:]
            if t == 1:
                pk = pk[:8] + [f"  ds_read_b64 {v(ENT,2)}, v{vent} offset:{4096+2048*u}",
                      f"  ds_read_b32 v{vgn1}, v{vgq} offset:{256+256*u}",
                      f"  ds_read_b32 v{vsrow}, v{vrow} offset:{2048+2048*u}",
                      f"  ds_read_b128 {v(GN,4)}, v{vga} offset:{256+256*u}"] + pk[8:]
            if t == 3:
                B.append(f"  s_waitcnt lgkmcnt({nadd})")
            dma = dma_issue() if t == 3 else []
            per = 16 // len(ch); e = 0
            for i, m in enumerate(ch):
                B.append(m)
                n = per if i < len(ch)-1 else 16 - e
                B += ex[e:e+2]
                if late: B.append(late.pop(0))
                B += ex[e+2:e+n]; e += n
                if OPT["dmapos"] == 0:
                    for _ in range(2):
                        if dma: B += dma.pop(0)
            if t == 2:
                mid = [f"  s_waitcnt vmcnt(0) lgkmcnt({nadd})",
                       f"  v_mad_u32_u24 v{vqa}, v{vgn1}, s{sQS}, v{vqlane}"]
                rd = frag_reads() + bq_reads()
                aq = [f"  v_lshrrev_b64 {v(AQ,2)}, v{vsrow}, {v(PAT,2)}"]
                if OPT["rdgap"] == 0: B += mid + rd + aq + pk
                else:
                    q = []
                    for i, x in enumerate(aq + pk):
                        if rd and i % OPT["rdgap"] == 0: q.append(rd.pop(0))
                        q.append(x)
                    B += mid + q + rd
            elif t == 3:
                inc = []
                if u == nun - 1 and OPT["bench"]:
                    inc = [f"  v_add_u32 v{DUM+i}, {2048*nun}, v{vent}" for i in range(4)]
                elif u == nun - 1:
                    inc = incs(nun)
                pk = pk + inc
                if OPT["dmapos"] == 1:
                    q = []
                    for i, x in enumerate(pk):
                        if dma and i % 3 == 0: q += dma.pop(0)
                        q.append(x)
                    pk = q
                for x in dma: B += x
                B += pk
            else:
                B += pk
            B += fin
        return B
    def incs(n):
        return [f"  v_add_u32 v{vent}, {2048*n}, v{vent}", f"  v_add_u32 v{vrow}, {2048*n}, v{vrow}",
                f"  v_add_u32 v{vgq}, {256*n}, v{vgq}", f"  v_add_u32 v{vga}, {256*n}, v{vga}"]
    def loop(kind):
        lab = {"safe": "K_SAFE", "quad": "K_QUAD", "octo": "K_FAST"}[kind]
        nun = OPT["unroll"] if kind == "octo" else 1
        cnt = sCO if kind == "octo" else sCnt
        L = []
        for u in range(nun):
            L += block_body(kind, u, nun)
            L.append(f"  s_sub_u32 s{cnt}, s{cnt}, 1")
            L.append(f"  s_cmp_lg_u32 s{cnt}, 0")
            L.append(f"  s_cbranch_scc1 {lab}" if u == nun - 1 else f"  s_cbranch_scc0 K_OX{u}")
        ab = OPT["abl"]
        if ab & 1: L = [x for x in L if not ("v_mfma" in x and (f", {v(I0,4)}," in x or f", {v(I1,4)}," in x))]
        if ab & 2: L = [x for x in L if "v_mfma_f32_32x32x8" not in x and "tr_b16" not in x]
        if ab & 4: L = [x.replace("v_exp_f32", "v_mov_b32") for x in L]
        if ab & 8: L = [x for x in L if "v_pk_" not in x]
        if ab & 16: L = [x for x in L if "v_mfma" not in x]
        if ab & 32: L = [x for x in L if "ds_read_b128" not in x]
        if ab & 64: L = [x for x in L if "v_exp" not in x]
        if ab & 128:
            M = []
            for x in L:
                if "v_mfma" in x and f", {v(I1,4)}," in x: continue
                if "v_mfma" in x and f", {v(I0,4)}," in x:
                    m = re.match(r"\s*v_mfma_f32_32x32x16_bf16 (v\[\d+:\d+\]), v\[(\d+):", x)
                    M.append(f"  v_smfmac_f32_32x32x32_bf16 {m.group(1)}, {v(I0,4)}, {v(int(m.group(2)),8)}, v{vone}"); continue
                m = re.match(r"\s*ds_read_b128 v\[(\d+):\d+\], v(\d+) offset:(\d+)", x)
                if m and PF <= int(m.group(1)) < PF + 32:
                    r0 = int(m.group(1))
                    M.append(f"  ds_read_b64_tr_b16 {v(r0,2)}, v{vqa} offset:{m.group(3)}")
                    M.append(f"  ds_read_b64_tr_b16 {v(r0+2,2)}, v{vqa} offset:{int(m.group(3))+128}"); continue
                M.append(x)
            L = M
        if ab & 256:
            M = []
            for x in L:
                if "v_mfma" in x and (f", {v(I1,4)}," in x or f", {v(I0,4)}," in x): continue
                if "v_mfma_f32_32x32x16" in x and x.rstrip().endswith(", 0"): x = x.rstrip()[:-1] + v(PF, 16)
                m = re.match(r"\s*ds_read_b128 v\[(\d+):\d+\], v(\d+) offset:(\d+)", x)
                if m and PF <= int(m.group(1)) < PF + 32:
                    for q in range(8): M.append(f"  ds_read_u16_d16_hi v{PF+(int(m.group(1))+q)%32}, v{vacl} offset:{64*q}")
                    continue
                M.append(x)
            L = M
        if OPT["align"]: L = align8(L)
        a(f".p2align 6\n{lab}:")
        for x in L: a(x)
    loop("octo")
    a(f"""
K_OXE:
  s_cmp_lg_u32 s{sCnt}, 0
  s_cbranch_scc1 K_QUAD""")
    a(f"""
K_LOOPEND:""")
    a(f"""
  s_waitcnt vmcnt(0) lgkmcnt(0)
  s_barrier""")
    stamp(a, 9, 98)
    a(f"""
  s_cmp_lg_u32 s{sKind}, 0
  s_cbranch_scc1 K_NEXT
K_CELLSDONE:
  v_mov_b32 v{t0}, {L_FLG+32}
  ds_read_b128 {v(CV,4)}, v{t0}
K_CONV:
  s_mul_i32 s{sTmp}, s{sW}, {AS}
  s_add_u32 s{sTmp}, s{sTmp}, {L_ACC}
  v_lshlrev_b32 v{t1}, 4, v{vl}
  v_add_u32 v{t1}, s{sTmp}, v{t1}""")
    for k in range(5):
        a(f"  ds_read_b128 {v(D0+4*k,4)}, v{t1} offset:{k*8*AS}")
    a(f"""
  s_mul_i32 s{sTmp}, s{sW}, {XS}
  s_add_u32 s{sTmp}, s{sTmp}, {L_X}
  v_lshlrev_b32 v{t2}, 2, v{vl}
  v_add_u32 v{t2}, s{sTmp}, v{t2}
  s_cmp_ge_u32 s{sKind}, 3
  s_cbranch_scc1 K_CONV2
  s_waitcnt lgkmcnt(5)
  v_or3_b32 v{t0}, v{CV}, v{CV+1}, v{CV+2}
  v_or_b32 v{t0}, v{t0}, v{CV+3}
  v_cmp_ne_u32 vcc, 0, v{t0}
  s_cbranch_vccnz K_STARTOV
K_CONV2:
  s_mov_b32 s{sTmp}, 0x71800000              ; 2^100
  v_cmp_nle_f32 {s(sBad,2)}, v{MAC}, s{sTmp}
  v_cmp_nle_f32 vcc, v{MAC+1}, s{sTmp}
  s_or_b64 {s(sBad,2)}, {s(sBad,2)}, vcc
  s_movk_i32 s{sTmp}, 0x207""")
    for k in range(5):
        a(f"""
  s_waitcnt lgkmcnt({4-k})
  v_cvt_f32_f64 v{EA+2*k}, {v(D0+4*k,2)}
  v_cvt_f32_f64 v{EA+2*k+1}, {v(D0+4*k+2,2)}
  v_cmp_class_f32 vcc, v{EA+2*k}, s{sTmp}
  s_or_b64 {s(sBad,2)}, {s(sBad,2)}, vcc
  v_cmp_class_f32 vcc, v{EA+2*k+1}, s{sTmp}
  s_or_b64 {s(sBad,2)}, {s(sBad,2)}, vcc
  v_cvt_pk_bf16_f32 v{EB+k}, v{EA+2*k}, v{EA+2*k+1}""")
    for k in range(5):
        a(f"  ds_write_b32 v{t2}, v{EB+k} offset:{k*8*XS}")
    a(f"""
  s_cmp_eq_u64 {s(sBad,2)}, 0
  s_cbranch_scc1 K_OKW
  v_mov_b32 v{t0}, {L_FLG}
  ds_write_b32 v{t0}, v{vone}
K_OKW:
  s_waitcnt lgkmcnt(0)
  s_barrier
  v_mov_b32 v{t0}, {L_FLG}
  ds_read_b32 v{t0}, v{t0}""")
    for nt in range(2):
        for st in range(4):
            a(f"  ds_read_b128 {v(XF+16*nt+4*st,4)}, v{vxb} offset:{nt*16*XS + st*64}")
    a(f"""
  s_waitcnt lgkmcnt(8)
  v_readfirstlane_b32 s{sTmp}, v{t0}
  s_cmp_gt_u32 s{sTmp}, s{sMode}
  {"s_cbranch_scc1 K_RESTART" if not EXP else "s_nop 0"}
  s_waitcnt lgkmcnt(4)""")
    for st in range(4):
        c = "0" if st == 0 else v(D0, 4)
        a(f"  v_mfma_f32_16x16x32_bf16 {v(D0,4)}, {v(WUB+4*st,4)}, {v(XF+4*st,4)}, {c}")
    for st in range(4):
        a(f"  ds_read_b128 {v(D1+4*st,4)}, v{vxb} offset:{2*16*XS + st*64}")
    a("  s_waitcnt lgkmcnt(4)")
    for st in range(4):
        c = "0" if st == 0 else v(D0+4, 4)
        a(f"  v_mfma_f32_16x16x32_bf16 {v(D0+4,4)}, {v(WUB+4*st,4)}, {v(XF+16+4*st,4)}, {c}")
    a("  s_waitcnt lgkmcnt(0)")
    for st in range(4):
        c = "0" if st == 0 else v(D0+8, 4)
        a(f"  v_mfma_f32_16x16x32_bf16 {v(D0+8,4)}, {v(WUB+4*st,4)}, {v(D1+4*st,4)}, {c}")
    a(f"""
  s_mov_b32 s{sK}, {NLN2}
  s_mov_b32 s{sK+1}, {NLN2}
  s_mov_b32 s{sTmp}, {NLOG2E}
  s_mov_b32 s{sTmp+1}, {NLOG2E}
  v_and_b32 v{t0}, 15, v{vl}
  v_lshlrev_b32 v{t0}, 8, v{t0}
  v_lshrrev_b32 v{t1}, 4, v{vl}
  v_lshl_add_u32 v{t0}, v{t1}, 3, v{t0}
  s_lshl_b32 s{sTmp+2}, s{sW}, 5
  v_add_u32 v{t0}, s{sTmp+2}, v{t0}
  v_add_u32 v{t1}, 4096, v{t0}
  v_add_u32 v{t2}, 8192, v{t0}""")
    for nt in range(3):
        d = D0 + 4*nt
        a(f"""
  v_pk_fma_f32 {p(d)}, {p(d)}, {s(sK,2)}, {p(U+4*nt)}
  v_pk_fma_f32 {p(d+2)}, {p(d+2)}, {s(sK,2)}, {p(U+4*nt+2)}
  v_pk_mul_f32 {p(EA)}, {p(d)}, {s(sTmp,2)}
  v_pk_mul_f32 {p(EA+2)}, {p(d+2)}, {s(sTmp,2)}""")
        for i in range(4): a(f"  v_exp_f32 v{EA+i}, v{EA+i}")
        a(f"  s_nop 0\n  v_pk_add_f32 {p(EA)}, {p(EA)}, 1.0 op_sel_hi:[1,0]\n  v_pk_add_f32 {p(EA+2)}, {p(EA+2)}, 1.0 op_sel_hi:[1,0]")
        for i in range(4): a(f"  v_rcp_f32 v{EA+i}, v{EA+i}")
        a(f"""
  s_nop 0
  v_pk_mul_f32 {p(d)}, {p(d)}, {p(EA)}
  v_pk_mul_f32 {p(d+2)}, {p(d+2)}, {p(EA+2)}
  v_cvt_pk_bf16_f32 v{EB+2*nt}, v{d}, v{d+1}
  v_cvt_pk_bf16_f32 v{EB+2*nt+1}, v{d+2}, v{d+3}
  buffer_store_dwordx2 {v(EB+2*nt,2)}, v{t0+nt}, {s(SO,4)}, 0 offen""")
    if OPT["stamp"]:
        a(f"""
  s_waitcnt vmcnt(0)
  s_memrealtime s[4:5]
  s_waitcnt lgkmcnt(0)
  s_lshl_b32 s6, s2, 3
  s_add_u32 s6, s6, s{sW}
  s_lshl_b32 s6, s6, 6
  s_add_u32 s6, s6, {WS_STAMP}
  s_add_u32 s6, s{pWS}, s6
  s_addc_u32 s7, s{pWS+1}, 0
  s_mov_b64 exec, 1
  v_mov_b32 v1, 0""")
        for i, r in enumerate([80+2*i for i in range(8)] + [96, 98, 4]):
            pass
        regs = [80, 82, 84, 86, 88, 90, 92, 94, 8, 9, 4, 10, 11, sT]
        for i, r in enumerate(regs):
            a(f"  v_mov_b32 v2, s{r}\n  global_store_dword v1, v2, s[6:7] offset:{4*i}")
    a(f"""
K_END:
  s_endpgm
""")
    a(f"""
K_PREP:
  s_sub_u32 s{sq}, s2, {2*G}
  s_lshl_b32 s{sq}, s{sq}, 14
  s_lshl_b32 s{sq+1}, s{sW}, 12
  s_add_u32 s{sq}, s{sq}, s{sq+1}
  v_lshlrev_b32 v{t0}, 4, v{vl}
  v_mov_b32 v{t7}, s{sTag}
  s_waitcnt vmcnt({10+NA})
  s_barrier""")
    wtr(PF, vqa)
    a("  s_waitcnt lgkmcnt(0)")
    for st in range(4):
        a(f"  buffer_store_dwordx4 {v(PF+4*st,4)}, v{t0}, {s(SW,4)}, s{sq} offen offset:{st*1024} sc1")
    a(f"""
  s_lshr_b32 s{sq}, s{sW}, 2
  s_add_u32 s{sq}, s{sq}, s2
  s_cmp_lg_u32 s{sq}, {2*G}
  s_cbranch_scc1 K_PREPD
  s_mov_b32 s{sq+1}, {NLOG2E}
  s_lshl_b32 s{sq}, s{sW}, 10
  s_waitcnt vmcnt({6+NA})""")
    for jj in range(8):
        a(f"  v_lshlrev_b32 v{D0+jj}, 16, v{D0+jj}\n  v_mul_f32 v{D0+jj}, s{sq+1}, v{D0+jj}")
    for i in range(4):
        a(f"  v_cvt_pk_bf16_f32 v{D0+8+i}, v{D0+2*i}, v{D0+1+2*i}")
    for i in range(4):
        a(f"""
  v_lshlrev_b32 v{t2}, 16, v{D0+8+i}
  v_and_b32 v{t3}, 0xffff0000, v{D0+8+i}
  v_sub_f32 v{t2}, v{D0+2*i}, v{t2}
  v_sub_f32 v{t3}, v{D0+1+2*i}, v{t3}
  v_cvt_pk_bf16_f32 v{D0+12+i}, v{t2}, v{t3}""")
    a(f"""
  s_add_u32 s{sq+1}, s{sq}, {WF_3L}
  s_add_u32 s{sq}, s{sq}, {WF_3H}
  buffer_store_dwordx4 {v(D0+8,4)}, v{t0}, {s(SW,4)}, s{sq} offen sc1
  buffer_store_dwordx4 {v(D0+12,4)}, v{t0}, {s(SW,4)}, s{sq+1} offen sc1
K_PREPD:""")
    own_x(4+NA)
    a(f"""
  s_sub_u32 s{sq}, s2, {2*G}
  s_lshl_b32 s{sq}, s{sq}, 1
  v_lshl_add_u32 v{t0}, v0, 7, s{sq}
  s_waitcnt vmcnt(0)
  s_barrier
  s_cmp_ge_u32 s{sW}, 4
  s_cbranch_scc1 K_PST
  buffer_store_dword v{t7}, v{t0}, {s(SF,4)}, 0 offen {FLF}
  s_branch K_PST""")
    a(f"""
K_OVF:
  s_waitcnt lgkmcnt(0)
  s_barrier
  s_mul_i32 s{sq+1}, s2, {OVSTR//2}
  s_add_u32 s{sq+1}, s{sq+1}, 64
  v_mov_b32 v{t5}, {L_FLG+8}
  v_mov_b32 v{t6}, -1""")
    for j in range(5):
        a(f"""
  v_cmp_le_u32 vcc, {CAP-1}, v{RK+j}
  s_and_b64 exec, exec, vcc
  s_cbranch_execz K_OV{j}
  v_add_u32 v{t1}, {L_BCNT}, v{B4+j}
  ds_read_b32 v{t1}, v{t1}
  s_waitcnt lgkmcnt(0)
  v_cmp_ne_u32 vcc, {CAP}, v{t1}
  s_nop 1
  v_cndmask_b32 v{t3}, v{SS_+j}, v{t6}, vcc
  ds_write_b32 v{CA+j}, v{t3} offset:{CELLB-8}
  s_and_b64 exec, exec, vcc
  s_cbranch_execz K_OV{j}
  ds_add_rtn_u32 v{t1}, v{t5}, v{vone}
  v_mov_b32 v{CV}, v{SS_+j}
  v_lshrrev_b32 v{CV+1}, 2, v{B4+j}
  s_waitcnt lgkmcnt(0)
  v_lshl_add_u32 v{t1}, v{t1}, 3, s{sq+1}
  buffer_store_dwordx2 {v(CV,2)}, v{t1}, {s(SV,4)}, 0 offen sc1
  s_waitcnt vmcnt(0)
K_OV{j}:
  s_mov_b64 exec, -1""")
    a(f"""
  s_waitcnt lgkmcnt(0)
  s_barrier
  ds_read_b32 v{t1}, v{t5}
  s_sub_u32 s{sq+1}, s{sq+1}, 64
  v_mov_b32 v{t3}, s{sq+1}
  v_mov_b32 v{t2}, 0
  s_waitcnt lgkmcnt(0)
  buffer_store_dword v{t1}, v{t3}, {s(SV,4)}, 0 offen sc1
  s_waitcnt vmcnt(0)
  s_branch K_OVFDONE""")
    for u in range(OPT["unroll"] - 1):
        a(f"K_OX{u}:\n  s_cmp_eq_u32 s{sCnt}, 0\n  s_cbranch_scc1 K_LOOPEND")
        for x in incs(u + 1): a(x)
        a("  s_branch K_QUAD")
    loop("quad")
    a("  s_branch K_LOOPEND")
    a("K_TEXTEND:")
    loop("safe")
    a("  s_branch K_LOOPEND")
    a(f"""
K_NOGEMM0:
  s_waitcnt vmcnt(0)
  s_branch K_NOGEMM
K_RESTART:
  s_mov_b32 s{sMode}, 1
  s_mov_b32 s{sKind}, 0
  s_waitcnt lgkmcnt(0)
  s_barrier
  v_mov_b32 v{CV}, 0
  v_mov_b32 v{CV+1}, 0
  v_mov_b32 v{CV+2}, 0
  v_mov_b32 v{CV+3}, 0""")
    for j in range(5):
        a(f"  ds_write_b128 v{vt16}, {v(CV,4)} offset:{L_ACC + j*8192}")
    a(f"""
  v_cmp_gt_u32 vcc, {(40*AS-5*8192)//16}, v0
  s_and_saveexec_b64 {s(sEx,2)}, vcc
  ds_write_b128 v{vt16}, {v(CV,4)} offset:{L_ACC + 5*8192}
  s_mov_b64 exec, {s(sEx,2)}
  s_branch K_RELOAD
K_SPLIT:
  s_mov_b32 s{sKind}, 1
  s_waitcnt lgkmcnt(0)
  s_barrier
  s_branch K_RELOAD
K_NEXT:
  s_cmp_eq_u32 s{sKind}, 4
  s_cbranch_scc1 K_NEXTOV
  s_cmp_eq_u32 s{sKind}, 3
  s_cbranch_scc1 K_OVPART1
  s_cmp_eq_u32 s{sKind}, 2
  s_cbranch_scc1 K_CELLSDONE
  s_mov_b32 s{sKind}, 2
K_RELOAD:
  v_lshrrev_b32 v{t1}, 2, v0
  s_mov_b32 s{sq}, {CH*32}
  v_mul_u32_u24 v{vebase}, s{sq}, v{t1}
  s_waitcnt vmcnt(0)""")
    for k in range(2):
        a(f"  buffer_load_dwordx4 {v(REC+4*k,4)}, v{vcell}, {s(SC,4)}, 0 offen offset:{64*k} sc1")
    a(f"""
  s_waitcnt vmcnt(0)
  s_mov_b32 exec_lo, 0xaaaaaaaa
  s_mov_b32 exec_hi, 0xaaaaaaaa
  v_mov_b32 v{REC+3}, 0
  v_mov_b32 v{REC+7}, 0
  s_mov_b64 exec, -1
  s_cmp_eq_u32 s{sKind}, 0
  s_cbranch_scc1 K_ROUND
  s_lshr_b32 s{sq}, s{sW}, 2
  s_add_u32 s{sq}, s{sq}, 1
  s_cmp_eq_u32 s{sq}, s{sKind}
  s_cbranch_scc1 K_ROUND""")
    for k in range(NR): a(f"  v_mov_b32 v{REC+k}, 0")
    a(f"""
K_ROUND:
  v_mov_b32 v{CV}, 0
  v_mov_b32 v{CV+1}, 0
  v_mov_b32 v{CV+2}, 0
  v_mov_b32 v{CV+3}, 0
  v_cmp_gt_u32 vcc, {(L_FLG-L_GN)//16}, v0
  s_and_saveexec_b64 {s(sEx,2)}, vcc
  ds_write_b128 v{vt16}, {v(CV,4)} offset:{L_GN}
  s_mov_b64 exec, {s(sEx,2)}""")
    prefill()
    a(f"""
  v_and_b32 v{vent}, 2047, v{vent}
  v_and_b32 v{vrow}, 2047, v{vrow}
  v_subrev_u32 v{vga}, {L_GN}, v{vga}
  v_and_b32 v{vga}, 255, v{vga}
  v_add_u32 v{vga}, {L_GN}, v{vga}
  v_and_b32 v{t2}, 12, v{vl}
  v_add_u32 v{vgq}, v{vga}, v{t2}
  s_waitcnt lgkmcnt(0)
  s_barrier
  s_branch K_PHASE1
K_STARTOV:""")
    for i in range(4): a(f"  v_readfirstlane_b32 s{sOV+i}, v{CV+i}")
    a(f"""
  s_mov_b32 s{sKind}, 4
  s_waitcnt lgkmcnt(0)
K_NEXTOV:""")
    for i in range(2):
        a(f"""
  s_ff1_i32_b64 s{sP}, {s(sOV+2*i,2)}
  s_cmp_eq_u32 s{sP}, -1
  s_cbranch_scc1 K_OVN{i}
  s_bitset0_b64 {s(sOV+2*i,2)}, s{sP}
  s_add_u32 s{sP}, s{sP}, {64*i}
  s_branch K_OVGO
K_OVN{i}:""")
    a(f"""
  s_branch K_CONV
K_OVGO:
  s_mov_b32 s{sKind}, 3
  v_mov_b32 v{t4}, v0
  s_branch K_OVLD
K_OVPART1:
  s_mov_b32 s{sKind}, 4
  v_add_u32 v{t4}, 2048, v0
K_OVLD:
  s_mul_i32 s{sq}, s{sP}, {OVSTR}
  s_mul_i32 s{sq+1}, s{sP}, {CH*32}
  v_mov_b32 v{vebase}, s{sq+1}
  v_mov_b32 v{t0}, s{sq}
  buffer_load_dword v{t1}, v{t0}, {s(SV,4)}, 0 offen sc1
  v_lshl_add_u32 v{t2}, v{t4}, 3, v{t0}""")
    for k in range(4):
        a(f"  buffer_load_dwordx2 {v(PF+2*k,2)}, v{t2}, {s(SV,4)}, 0 offen offset:64 sc1\n  v_add_u32 v{t2}, 4096, v{t2}")
    a(f"  s_waitcnt vmcnt(0)")
    for k in range(4):
        a(f"""
  v_cmp_lt_u32 vcc, v{t4}, v{t1}
  v_cmp_eq_u32 {s(sEx,2)}, s2, v{PF+2*k+1}
  s_and_b64 vcc, vcc, {s(sEx,2)}
  v_add_u32 v{t4}, 512, v{t4}
  s_nop 1
  v_cndmask_b32 v{REC+k}, 0, v{PF+2*k}, vcc""")
    for k in range(4, NR): a(f"  v_mov_b32 v{REC+k}, 0")
    a("  s_branch K_ROUND")
    return a.text(), nv, NS

def gen_diag(idx):
    a = Asm()
    a(f"""
.globl mpnn_d_kernel
.p2align 8
.type mpnn_d_kernel,@function
mpnn_d_kernel:
  s_cmp_ge_u32 s2, 1
  s_cbranch_scc1 D_END
  s_load_dwordx2 s[4:5], s[0:1], 64
  s_waitcnt lgkmcnt(0)
  s_add_u32 s4, s4, {WS_STAMP + (OPT['wsb'] << 20)}
  s_addc_u32 s5, s5, 0
  s_load_dword s6, s[4:5], 0
  s_waitcnt lgkmcnt(0)
  s_sub_u32 s6, s6, 100000""")
    for q, (ix, ismax) in enumerate(((idx, 1), (0, 0))):
        op = "max" if ismax else "min"
        a(f"  v_lshlrev_b32 v1, {6 if not OPT['dodd'] else 10}, v0\n  v_add_u32 v1, {ix*4 + (512 + 64*(OPT['dodd']-1) if OPT['dodd'] else 0)}, v1\n  v_mov_b32 v3, {0 if ismax else -1}")
        nk = 32 if not OPT['dodd'] else 2
        for k in range(nk):
            a(f"  global_load_dword v{8+k}, v1, s[4:5]\n  v_add_u32 v1, {4096 if not OPT['dodd'] else 65536}, v1")
        a("  s_waitcnt vmcnt(0)")
        for k in range(nk):
            a(f"  v_subrev_u32 v2, s6, v{8+k}\n  v_{op}_u32 v3, v3, v2")
        a(f"  s_mov_b32 s{20+q}, {0 if ismax else -1}\n  s_nop 1")
        for l in range(64):
            a(f"  v_readlane_b32 s8, v3, {l}\n  s_nop 0\n  s_{op}_u32 s{20+q}, s{20+q}, s8")
    a(f"""
  s_sub_u32 s20, s20, s21
  s_min_u32 s20, s20, 20000
  s_lshl_b32 s20, s20, 3
  {'s_mov_b32 s20, 0' if OPT['dz'] else ''}
  s_memrealtime s[8:9]
  s_waitcnt lgkmcnt(0)
D_L:
  s_memrealtime s[10:11]
  s_waitcnt lgkmcnt(0)
  s_sub_u32 s12, s10, s8
  s_cmp_lt_u32 s12, s20
  s_cbranch_scc1 D_L
D_END:
  s_endpgm
""")
    return a.text()

HEAD = """; Kernarg layout for this problem (72 bytes, ptrs only, base s[0:1]):
"""
def main():
    k, nv, ns = gen()
    out = HEAD + f"; @launch grid=({NB},1,1) block=(512,1,1) lds={LDS}\n"
    if OPT["diag"] >= 0:
        out = HEAD + f"; @launch kernel={KN} grid=({NB},1,1) block=(512,1,1) lds={LDS}\n; @launch kernel=mpnn_d_kernel grid=(1,1,1) block=(64,1,1) lds=0\n"
        k += gen_diag(OPT["diag"])
    out += '.amdgcn_target "amdgcn-amd-amdhsa--gfx950"\n.text\n' + k
    out += f""".section .rodata,"a"
.p2align 6
.amdhsa_kernel {KN}
  .amdhsa_next_free_vgpr {nv}
  .amdhsa_next_free_sgpr {ns}
  .amdhsa_accum_offset {(nv+3)//4*4}
  .amdhsa_group_segment_fixed_size 0
  .amdhsa_kernarg_size 72
  .amdhsa_user_sgpr_count 2
  .amdhsa_user_sgpr_kernarg_segment_ptr 1
  .amdhsa_system_sgpr_workgroup_id_x 1
.end_amdhsa_kernel
"""
    if OPT["diag"] >= 0:
        out += """.p2align 6
.amdhsa_kernel mpnn_d_kernel
  .amdhsa_next_free_vgpr 48
  .amdhsa_next_free_sgpr 32
  .amdhsa_accum_offset 48
  .amdhsa_group_segment_fixed_size 0
  .amdhsa_kernarg_size 72
  .amdhsa_user_sgpr_count 2
  .amdhsa_user_sgpr_kernarg_segment_ptr 1
  .amdhsa_system_sgpr_workgroup_id_x 1
.end_amdhsa_kernel
"""
    open(sys.argv[1], "w").write(out)
    print("vgprs", nv, "lds", LDS)
main()
```

```python
from common import *

N = 10000; E = 320000
G = 125
CH = 2560
NB = 256
MAGIC = 26843
CAP = 28
CELLB = 128
BSTR = G * CELLB

WS_P = 256
WS_CELL = 0x280000
WS_WF = 0x1280000
WF_W2, WF_UT, WF_UB, WF_3H, WF_3L = 0, 32768, 65536, 98304, 102400
WF_SIZE = 106496
WS_OVF = 0x12A0000
OVSTR = 64 + CH * 8
WS_FLAG = 0x1520000
WS_STAMP = 0x1600000

OPT = dict(lo=0, k8=1, stamp=0, nodma=0, noadd=0, noe=0, hot=0, align=1, unroll=2, dmapos=0, rdpos=0, dsc=1, pf=1, slp=0, stf=1, addpos=0, rdgap=0, prio=0, bench=0, octo=1, frep=8, fln=16, slp0=0, plf=1, flf=1, diag=-1, touch=0, dz=0, abl=0, dodd=0, wsb=0, claim=0, slpa=0, slpb=0, zt=0, cpf=0, pf2=0, stag=0, bdl=0, wfirst=0, fine=0, half=0, dbg=0, s0st=0, spf=0, spfb=0, early=0, gate=0, ord=0, s0m=0, idle=0, idle2=0)
for a_ in sys.argv[2:]:
    k_, v_ = a_.split("="); OPT[k_] = int(v_)
EXP = OPT["dbg"] or OPT["half"] or OPT["bench"] or OPT["nodma"] or OPT["noe"] or OPT["noadd"] or OPT["hot"]

FL_ = ['', 'sc1', 'sc0 sc1', 'sc1 nt', 'sc0 sc1 nt']; PLF = FL_[OPT['plf']]; FLF = FL_[OPT['flf']]
STF = ['', 'sc1', 'sc0 sc1', 'sc1 nt'][OPT['stf']]
FREP = OPT['frep']; FLN = OPT['fln']; FSH = (128//FLN).bit_length()-1; FHALF = FREP*FLN*256; FNON = 2*FHALF; FMASK = hex((1<<FREP)-1)
NA = 1 if OPT['claim'] & 4 else 0
NCL = (3 if OPT['claim'] & 1 else 0) + NA
NCC = (4 if OPT['claim'] & 2 else 0) + NA
CAPB = 70
L_ENT = 0
L_GN = (CAPB + 1) * 256
L_CNT = L_GN + (CAPB + 17) * 32
L_FLG = L_CNT + 256
L_ACC = L_FLG + 64
AS = 1040
L_Q = L_ACC + 40 * AS
QS = 320
L_X = L_Q + 40 * QS
XS = 288
L_STG = L_X + 40 * XS
STG = 8 * 1040 + 1024
LDS = L_STG + 8 * STG
L_CIMG = L_STG
L_BCNT = L_CIMG + NB * CELLB
WPITCH = 1088
L_GP = L_STG + 1024
L_WS = L_STG + 32 * WPITCH
assert L_BCNT + 1024 <= LDS and L_STG % 16 == 0 and L_ACC % 16 == 0
PADS, PADE = 0x8000003f, 0x80000000
KN = "standalone__mpnn_edge_mlp__graph_kernel"

def fstamp(a, i):
    if OPT["fine"]: a(f"  s_memrealtime s[{80+2*i}:{81+2*i}]")
def stamp(a, i, cyc=None):
    if OPT["fine"] and i in (1, 2, 3, 5): return
    if OPT["stamp"]:
        if cyc is None:
            a(f"  s_memrealtime s[{80+2*i}:{81+2*i}]\n  s_waitcnt lgkmcnt(0)")
        else:
            a(f"  s_memrealtime s[96:97]\n  s_memtime s[98:99]\n  s_waitcnt lgkmcnt(0)\n  s_mov_b32 s{i}, s96\n  s_mov_b32 s{i+2}, s98")

def gen():
    a = Asm()
    rare = []
    R = Regs(1)
    al = R.alloc
    vl = al("lane")
    t0 = al("t", 8, 2); t1, t2, t3, t4, t5, t6, t7 = range(t0+1, t0+8)
    vchunk = al("vchunk"); vechunk = al("vechunk")
    vent = al("vent"); vrow = al("vrow"); vgq = al("vgq"); vga = al("vga")
    vAlo = al("Alo"); vAhi = al("Ahi"); vEF = al("vEF")
    vqlane = al("vqlane"); vacl = al("vacl"); vxb = al("vxb"); vqw = al("vqw")
    vebase = al("vebase"); vone = al("vone"); vt16 = al("vt16"); vcell = al("vcell")
    vgl = al("vgl")
    vqa = al("vqa"); vsrow = al("vsrow"); vgn1 = al("vgn1")
    ENT = al("ENT", 2, 2)
    MAC = al("MAC", 2, 2)
    PAT = al("PAT", 2, 2)
    nq = 2 if OPT["k8"] else 4
    AQ = al("AQ", nq, 2)
    GN = al("GN", 4, 2); AD = al("AD", 4)
    DO = al("DO", 2)
    I0 = al("I0", 4, 2); I1 = al("I1", 4, 2)
    W3 = al("W3", 16, 2)
    W3L = al("W3L", 16, 2) if OPT["lo"] else None
    BQ = al("BQ", 4*nq, 2)
    EF = al("EF", 4, 2)
    PF = al("PF", 32, 2)
    D0 = al("D0", 16, 2); D1 = al("D1", 16, 2)
    EA = al("EA", 8, 2); TA = al("TA", 8, 2); EB = al("EB", 8, 2); TB = al("TB", 8, 2)
    RA = al("RA", 2, 2); RB = al("RB", 2, 2)
    SA = al("SA", 2, 2); SB = al("SB", 2, 2)
    CV = al("CV", 8, 2)
    U = al("U", 12, 2); WUB = al("WUB", 16, 2)
    DUM = al("DUM", 4, 2)
    DK = al("DK", 4, 2)
    nv = R.n
    assert TA == EA + 8 and EB == EA + 16 and TB == EA + 24 and D1 == D0 + 16
    DD = D0; SS_ = D0 + 5; B4 = D0 + 10; RK = D0 + 15; CA = D0 + 20
    CP = PF
    GX = W3
    XL = U
    W1F = WUB
    REC = D0; NOD = D0 + 8; RNK = D1
    W2F = EA; WUT = EB; XF = PF; QD = CV
    sW = 3
    pX, pE, pS, pD, pWM, pWU, pO, pWS = 4, 6, 8, 10, 12, 14, 16, 18
    SP, SE, SC, SW, SO, SV, SF = 20, 24, 28, 32, 36, 40, 44
    T0, T1, T2 = 48, 52, 56
    sStart, sNb, sStg, sCnt, sT, sMode, sKind, sFirst = 60, 61, 62, 63, 64, 65, 66, 67
    sAS, sQS, sTag, sP, sUB, sLo2 = 68, 69, 70, 71, 72, 73
    sCO = 59
    sK2 = 56
    sNp = 79
    sEx, sK, sBad = 74, 76, 78
    sTmp = 4
    sA = 48
    sOV = 48
    sOVT = 74
    sq = 100
    if OPT["stamp"]: NS = 102
    else: NS = 102

    a(f"""
.globl {KN}
.p2align 8
.type {KN},@function
{KN}:
  s_cmp_ge_u32 s2, {NB}
  s_cbranch_scc1 K_END""")
    if OPT["stamp"]: a("  s_memrealtime s[80:81]")
    a(f"""
  s_load_dwordx8 s[4:11], s[0:1], 0
  s_load_dwordx4 s[12:15], s[0:1], 32
  s_load_dwordx2 s[16:17], s[0:1], 48
  s_load_dwordx2 s[18:19], s[0:1], 64""")
    if OPT["cpf"]:
        a(f"""
  s_getpc_b64 s[20:21]
  v_lshlrev_b32 v{t1}, 7, v0
  v_cmp_gt_u32 vcc, (K_TEXTEND - {KN}) / 128, v0
  s_and_saveexec_b64 s[22:23], vcc
  s_cbranch_execz K_NOCPF
  global_load_dword v{DUM}, v{t1}, s[20:21]
K_NOCPF:
  s_mov_b64 exec, s[22:23]""")
    a(f"""
  v_lshrrev_b32 v{t0}, 6, v0
  v_and_b32 v{vl}, 63, v0
  s_and_b32 s{sP}, s2, {FREP-1}
  s_mul_i32 s{sP}, s{sP}, {FLN*256}
  s_and_b32 s{sq}, s2, 7
  s_lshl_b32 s{sq}, s{sq}, 1
  s_bfe_u32 s{sq+1}, s2, 0x10003
  s_and_b32 s2, s2, 0xf0
  s_or_b32 s2, s2, s{sq}
  s_or_b32 s2, s2, s{sq+1}
  s_mul_i32 s{sStart}, s2, 640013
  v_readfirstlane_b32 s{sW}, v{t0}
  s_add_u32 s{sNb}, s{sStart}, {640013+16383}
  s_add_u32 s{sStart}, s{sStart}, 16383
  s_sub_u32 s{sNp}, s{sStart}, 640013
  s_lshr_b32 s{sStart}, s{sStart}, 14
  s_lshr_b32 s{sNb}, s{sNb}, 14
  s_lshr_b32 s{sNp}, s{sNp}, 14
  s_min_u32 s{sNb}, s{sNb}, {N}
  s_sub_u32 s{sCnt}, s{sNb}, s{sNp}
  s_sub_u32 s{sNb}, s{sNb}, s{sStart}
  s_lshl_b32 s{sT}, s{sNp}, 8
  s_sub_u32 s{sNp}, s{sStart}, s{sNp}
  s_mov_b32 s{sMode}, 0
  s_mov_b32 s{sKind}, 0
  s_mov_b32 s{sFirst}, 1
  s_mov_b32 s{sAS}, {AS}
  s_mov_b32 s{sQS}, {QS}
  s_mul_i32 s{sStg}, s{sW}, {STG}
  s_add_u32 s{sStg}, s{sStg}, {L_STG}
  v_lshlrev_b32 v{vt16}, 4, v0
  s_mul_i32 s{sq}, s2, {CH*2}
  v_lshl_add_u32 v{t2}, v0, 2, s{sq}
  v_add_u32 v{t3}, 4096, v{t2}
  v_lshrrev_b32 v{t4}, 4, v{vl}
  v_lshlrev_b32 v{t0}, 1, v{t4}
  v_xor_b32 v{t0}, v{t0}, v{vl}
  v_lshlrev_b32 v{t0}, 4, v{t0}
  s_lshl_b32 s{sq}, s{sW}, 12
  v_add_u32 v{t7}, s{sq}, v{t0}
  s_mul_i32 s{sUB}, s{sW}, {4*WPITCH}
  s_add_u32 s{sUB}, s{sUB}, {L_WS}
  v_add_u32 v{t6}, 8192, v{vt16}
  v_add_u32 v{t5}, 16384, v{vt16}
  s_waitcnt lgkmcnt(0)
  {"s_add_u32 s%d, s%d, %d" % (pWS, pWS, OPT["wsb"] << 20) + chr(10) + "  s_addc_u32 s%d, s%d, 0" % (pWS+1, pWS+1) if OPT["wsb"] else ""}
  s_bitcmp1_b32 s2, 0
  s_cbranch_scc1 K_LDG
  s_cmp_ge_u32 s2, {2*G}
  s_cbranch_scc1 K_LDP""")
    if OPT["bdl"]: a(f"  s_sleep {OPT['bdl']}")
    srd(a, T0, pD, E*4)
    srd(a, T1, pS, E*4)
    a(f"  s_movk_i32 s{sq}, 0x2000")
    for r_, T in ((DD, T0), (SS_, T1)):
        a(f"""
  buffer_load_dword v{r_}, v{t2}, {s(T,4)}, 0 offen
  buffer_load_dword v{r_+1}, v{t2}, {s(T,4)}, 0 offen offset:2048
  buffer_load_dword v{r_+2}, v{t3}, {s(T,4)}, 0 offen
  buffer_load_dword v{r_+3}, v{t3}, {s(T,4)}, 0 offen offset:2048
  buffer_load_dword v{r_+4}, v{t2}, {s(T,4)}, s{sq} offen""")
    if OPT["claim"] & 2:
        srd(a, T2, pWS, NB*BSTR, add=WS_CELL)
        a(f"""
  v_lshrrev_b32 v{t4}, 3, v0
  s_mov_b32 s{sq}, {BSTR}
  v_mul_u32_u24 v{t4}, s{sq}, v{t4}
  v_and_b32 v{t0}, 7, v0
  v_lshl_add_u32 v{t4}, v{t0}, 4, v{t4}
  s_lshl_b32 s{sq}, s2, 6
  v_mov_b32 v{PF}, 0
  v_mov_b32 v{PF+1}, 0
  v_mov_b32 v{PF+2}, 0
  v_mov_b32 v{PF+3}, 0""")
        for j in range(4):
            a(f"  buffer_store_dwordx4 {v(PF,4)}, v{t4}, {s(T2,4)}, s{sq} offen sc1\n  s_add_u32 s{sq}, s{sq}, {64*BSTR}")
    a("  s_branch K_LD3")
    def wdma(T):
        for q in range(4):
            a(f"  s_add_u32 m0, s{sUB}, {64*q}\n  s_nop 0\n  buffer_load_dwordx4 v{t7}, {s(T,4)}, 0 offen offset:{1024*q} lds")
    a(f"""
K_LDX:
  s_lshl_b32 s{sq}, s{sStart}, 8
  s_lshl_b32 s{sq+1}, s{sNb}, 8""")
    srd(a, T2, pX, f"s{sq+1}", addreg=sq)
    a(f"""
  buffer_load_dwordx4 {v(XL,4)}, v{vt16}, {s(T2,4)}, 0 offen
  buffer_load_dwordx4 {v(XL+4,4)}, v{t6}, {s(T2,4)}, 0 offen
  s_branch K_LD3
K_LDP:
  s_cmp_eq_u32 s2, {2*G}
  s_cselect_b32 s{T1}, s{pWM}, s{pWU}
  s_cselect_b32 s{T1+1}, s{pWM+1}, s{pWU+1}
  s_cmp_eq_u32 s2, {2*G+2}
  s_cselect_b32 s{sq}, 0, 32768
  s_add_u32 s{T1}, s{T1}, s{sq}
  s_addc_u32 s{T1+1}, s{T1+1}, 0
  s_mov_b32 s{T1+2}, 32768
  s_mov_b32 s{T1+3}, 0x20000""")
    wdma(T1)
    srd(a, T0, pWM, 16*256, add=256*256)
    a(f"""
  v_and_b32 v{t0}, 31, v{vl}
  v_lshrrev_b32 v{t1}, 5, v{vl}
  v_lshlrev_b32 v{t1}, 11, v{t1}
  v_lshl_add_u32 v{t1}, v{t0}, 1, v{t1}
  s_and_b32 s{sq}, s{sW}, 3
  s_lshl_b32 s{sq}, s{sq}, 6""")
    for jj in range(8):
        a(f"  buffer_load_ushort v{D0+jj}, v{t1}, {s(T0,4)}, s{sq} offen offset:{jj*256}")
    a(f"""
  s_branch K_LDX
K_LDG:
  s_lshl_b32 s{sCnt}, s{sCnt}, 8""")
    srd(a, T0, pX, f"s{sCnt}", addreg=sT)
    srd(a, T1, pWM, 128*256)
    if OPT["wfirst"]: wdma(T1)
    a(f"""
  buffer_load_dwordx4 {v(GX,4)}, v{vt16}, {s(T0,4)}, 0 offen
  buffer_load_dwordx4 {v(GX+4,4)}, v{t6}, {s(T0,4)}, 0 offen
  buffer_load_dwordx4 {v(GX+8,4)}, v{t5}, {s(T0,4)}, 0 offen""")
    if not OPT["wfirst"]: wdma(T1)
    if OPT["claim"] & 1:
        srd(a, T2, pWS, f"s{sCnt}", add=WS_P, addreg=sT)
        for r_ in (vt16, t6, t5):
            a(f"  buffer_store_dwordx4 {v(PF,4)}, v{r_}, {s(T2,4)}, 0 offen sc1")
    a(f"""
K_LD3:""")
    if OPT["claim"] & 4:
        a(f"  s_lshl_b32 s{sq}, s{sStart}, 8\n  s_lshl_b32 s{sq+1}, s{sNb}, 8")
        srd(a, SO, pWS, f"s{sq+1}", add=WS_P, addreg=sq)
        a(f"""
  s_mul_i32 s{sq}, s{sW}, 1280
  v_lshl_add_u32 v{t1}, v{vl}, 7, s{sq}
  v_mov_b32 v{t0}, 0
  s_mov_b64 exec, 0x3ff
  buffer_atomic_or v{t0}, v{t1}, {s(SO,4)}, 0 offen
  s_mov_b64 exec, -1""")
    a(f"""
  s_add_u32 s{SF}, s{pWS}, {WS_FLAG}
  s_addc_u32 s{SF+1}, s{pWS+1}, 0
  s_load_dword s{sTag}, s[{SF}:{SF+1}], {FNON}
  s_mov_b32 s{SF+2}, {FNON+4}
  s_mov_b32 s{SF+3}, 0x20000
  v_lshrrev_b32 v{t1}, 2, v0
  v_and_b32 v{t4}, 3, v0
  v_lshlrev_b32 v{t4}, 4, v{t4}
  v_lshl_add_u32 v{vcell}, v{t1}, {6 if OPT['half'] == 2 else 7}, v{t4}
  s_mov_b32 s{sq}, {CH*32}
  v_mul_u32_u24 v{vebase}, s{sq}, v{t1}""")
    a(f"""
  v_mov_b32 v{CV}, 0
  v_mov_b32 v{CV+1}, 0
  v_mov_b32 v{CV+2}, 0
  v_mov_b32 v{CV+3}, 0
  v_add_u32 v{t0}, {L_CIMG}, v{vt16}""")
    a(f"  s_bitcmp1_b32 s2, 0\n  s_cbranch_scc1 K_NOZ")
    for j in range(4):
        a(f"  ds_write_b128 v{t0}, {v(CV,4)} offset:{j*8192}")
    a(f"  s_cmp_lg_u32 s{sW}, 0\n  s_cbranch_scc1 K_NOZ\n  ds_write_b128 v{t0}, {v(CV,4)} offset:32768")
    a("K_NOZ:")
    for j in range(5):
        a(f"  ds_write_b128 v{vt16}, {v(CV,4)} offset:{L_GN + j*8192}")
    a(f"""
  v_cmp_gt_u32 vcc, {(L_Q-L_GN-5*8192)//16}, v0
  s_and_saveexec_b64 {s(sEx,2)}, vcc
  ds_write_b128 v{vt16}, {v(CV,4)} offset:{L_GN + 5*8192}
  s_mov_b64 exec, {s(sEx,2)}""")
    def prefill():
        a(f"""
  v_mov_b32 v{CV+4}, {PADS}
  v_mov_b32 v{CV+5}, {PADE}
  v_mov_b32 v{CV+6}, {PADS}
  v_mov_b32 v{CV+7}, {PADE}
  ds_write_b128 v{vt16}, {v(CV+4,4)}
  ds_write_b128 v{vt16}, {v(CV+4,4)} offset:8192
  v_cmp_gt_u32 vcc, {(L_GN-16384)//16}, v0
  s_and_saveexec_b64 {s(sEx,2)}, vcc
  ds_write_b128 v{vt16}, {v(CV+4,4)} offset:16384
  s_mov_b64 exec, {s(sEx,2)}""")
    prefill()
    a(f"  s_mul_i32 s{sq}, s2, {BSTR}\n  s_lshl_b32 s{sq+1}, s{sStart}, 8\n  s_lshl_b32 s{sK}, s{sNb}, 8")
    srd(a, SC, pWS, G*CELLB // (2 if OPT['half'] == 2 else 1), add=WS_CELL, addreg=sq)
    srd(a, SP, pWS, (N+1)*256)
    srd(a, SE, pE, E*32)
    srd(a, SW, pWS, WF_SIZE, add=WS_WF)
    srd(a, SO, pO, f"s{sK}", addreg=sq+1)
    srd(a, SV, pWS, G*OVSTR, add=WS_OVF)
    a(f"""
  v_mov_b32 v{vone}, 1
  v_mov_b32 v{MAC}, 0
  v_mov_b32 v{MAC+1}, 0
  v_and_b32 v{t0}, 15, v{vl}                 ; l&15
  v_bfe_u32 v{t1}, v{vl}, 4, 1               ; r4&1
  v_lshlrev_b32 v{t2}, 3, v{t1}
  v_xor_b32 v{t2}, v{t0}, v{t2}
  v_lshlrev_b32 v{vchunk}, 4, v{t2}
  v_and_b32 v{t2}, 1, v{vl}
  v_xor_b32 v{t2}, v{t2}, v{t1}
  v_lshlrev_b32 v{vechunk}, 4, v{t2}
  v_lshrrev_b32 v{t2}, 4, v{vl}
  v_lshlrev_b32 v{t2}, 6, v{t2}
  v_lshrrev_b32 v{t4}, 1, v{t0}
  v_lshl_add_u32 v{t2}, v{t4}, 3, v{t2}
  s_lshl_b32 s{sq}, s{sW}, 8
  v_add_u32 v{vent}, s{sq}, v{t2}
  v_bfe_u32 v{t2}, v{vl}, 2, 1               ; h
  v_and_b32 v{t4}, 1, v{vl}                  ; xy
  v_lshl_add_u32 v{t5}, v{t2}, 1, v{t4}      ; r4
  v_bfe_u32 v{t6}, v{vl}, 3, 2
  v_bfe_u32 v{t7}, v{vl}, 1, 1
  v_lshl_add_u32 v{t6}, v{t6}, 1, v{t7}      ; j
  v_lshl_add_u32 v{t7}, v{t5}, 3, v{t6}      ; q = 8 r4 + j
  v_lshlrev_b32 v{t7}, 3, v{t7}
  v_add_u32 v{vrow}, s{sq}, v{t7}
  v_lshrrev_b32 v{t7}, 5, v{vl}              ; hh
  v_mul_u32_u24 v{vAlo}, 1040, v{t6}
  v_lshl_add_u32 v{vAlo}, v{t5}, 8, v{vAlo}
  v_lshl_add_u32 v{vAlo}, v{t7}, 4, v{vAlo}
  v_add_u32 v{vAlo}, s{sStg}, v{vAlo}
  v_xor_b32 v{vAhi}, 1, v{t4}
  v_lshl_add_u32 v{vAhi}, v{vAhi}, 7, v{vAlo}
  v_lshl_add_u32 v{vAlo}, v{t4}, 7, v{vAlo}
  v_xor_b32 v{vEF}, v{t7}, v{t4}
  v_lshl_add_u32 v{vEF}, v{t6}, 1, v{vEF}
  v_lshl_add_u32 v{vEF}, v{t5}, 4, v{vEF}
  v_lshlrev_b32 v{vEF}, 4, v{vEF}
  s_add_u32 s{sq+1}, s{sStg}, 8320
  v_add_u32 v{vEF}, s{sq+1}, v{vEF}
  v_bfe_u32 v{t5}, v{vl}, 4, 1               ; o
  v_lshlrev_b32 v{t5}, 4, v{t5}
  v_mov_b32 v{t6}, 0x3f80
  v_lshlrev_b32 v{t5}, v{t5}, v{t6}
  v_cmp_eq_u32 vcc, v{t7}, v{t2}
  s_nop 1
  v_cndmask_b32 v{t5}, 0, v{t5}, vcc
  v_cmp_eq_u32 vcc, 0, v{t4}
  s_nop 1
  v_cndmask_b32 v{PAT}, 0, v{t5}, vcc
  v_cndmask_b32 v{PAT+1}, v{t5}, 0, vcc
  s_lshl_b32 s{sq}, s{sW}, 5
  s_add_u32 s{sq+1}, s{sq}, {L_GN}
  v_lshlrev_b32 v{vga}, 4, v{t7}
  v_add_u32 v{vga}, s{sq+1}, v{vga}
  v_and_b32 v{t2}, 12, v{vl}
  v_add_u32 v{vgq}, v{vga}, v{t2}
  v_and_b32 v{t2}, 3, v{vl}
  v_lshlrev_b32 v{t2}, 3, v{t2}
  v_lshl_add_u32 v{t2}, v{t1}, 5, v{t2}
  v_add_u32 v{vqlane}, {L_Q}, v{t2}
  v_and_b32 v{t2}, 31, v{vl}
  v_lshlrev_b32 v{t4}, 3, v{t2}
  v_add_u32 v{vacl}, {L_ACC}, v{t4}
  v_lshrrev_b32 v{t4}, 4, v{vl}              ; g
  v_mul_u32_u24 v{vxb}, {XS}, v{t0}
  v_lshl_add_u32 v{vxb}, v{t4}, 4, v{vxb}
  v_add_u32 v{vxb}, {L_X}, v{vxb}
  v_mul_u32_u24 v{vqw}, {QS}, v{t0}
  v_lshl_add_u32 v{vqw}, v{t4}, 3, v{vqw}
  s_add_u32 s{sq+1}, s{sq}, {L_Q}
  v_add_u32 v{vqw}, s{sq+1}, v{vqw}
  v_mul_u32_u24 v{vqa}, {2*WPITCH}, v{t4}
  v_bfe_u32 v{t5}, v{vl}, 2, 2
  v_lshl_add_u32 v{vqa}, v{t5}, 8, v{vqa}
  v_xor_b32 v{t5}, s{sW}, v{t5}
  v_lshl_add_u32 v{vqa}, v{t5}, 5, v{vqa}
  v_and_b32 v{t5}, 3, v{vl}
  v_lshl_add_u32 v{vqa}, v{t5}, 3, v{vqa}
  v_add_u32 v{vqa}, {L_WS}, v{vqa}
  v_and_b32 v{t4}, 1, v{vl}
  v_lshlrev_b32 v{t4}, 4, v{t4}
  v_lshlrev_b32 v{t4}, v{t4}, v{t6}
  v_bfe_u32 v{t5}, v{vl}, 1, 4
  v_lshlrev_b32 v{t7}, 2, v{t7}
  v_sub_u32 v{t5}, v{t5}, v{t7}""")
    for i in range(4):
        a(f"  v_cmp_eq_u32 vcc, {i}, v{t5}\n  s_nop 1\n  v_cndmask_b32 v{I0+i}, 0, v{t4}, vcc")
        a(f"  v_cmp_eq_u32 vcc, {8+i}, v{t5}\n  s_nop 1\n  v_cndmask_b32 v{I1+i}, 0, v{t4}, vcc")
    if not OPT["k8"]:
        a(f"  v_mov_b32 v{AQ+2}, 0\n  v_mov_b32 v{AQ+3}, 0")
        for t in range(4):
            a(f"  v_mov_b32 v{BQ+4*t+2}, 0\n  v_mov_b32 v{BQ+4*t+3}, 0")
    def prefetch():
        if not OPT["pf"]: return
        a(f"  s_mul_i32 s{sq}, s2, 40000\n  s_sub_u32 s{sq}, s{sq}, 4096\n  v_add_u32 v{t0}, s{sq}, v{vt16}")
        for j in range(10):
            a(f"  buffer_load_dwordx4 {v(DUM,4)}, v{t0}, {s(SE,4)}, 0 offen")
            if j < 9: a(f"  v_add_u32 v{t0}, 4096, v{t0}")
    def wtr(dst, ad):
        for st in range(4):
            for hf in range(2):
                a(f"  ds_read_b64_tr_b16 {v(dst+4*st+2*hf,2)}, v{ad} offset:{(8*st+hf)*WPITCH}")
    def own_x(nyounger):
        a(f"""
  v_lshrrev_b32 v{t0}, 4, v0
  v_lshl_add_u32 v{t0}, v{t0}, 5, v{vt16}
  v_add_u32 v{t0}, {L_X}, v{t0}
  s_waitcnt vmcnt({nyounger})
  ds_write_b128 v{t0}, {v(XL,4)}
  s_mov_b32 exec_lo, s{sLo2}
  s_mov_b32 exec_hi, s{sLo2}
  ds_write_b128 v{t0}, {v(XL+4,4)} offset:{32*XS}
  s_mov_b64 exec, -1""")
    a(f"""
  s_cmp_lt_u32 s{sW}, 2
  s_cselect_b32 s{sLo2}, -1, 0
  s_lshr_b32 s{sq}, s2, {1+FSH}
  s_lshl_b32 s{sq}, s{sq}, 8
  s_bfe_u32 s{sq+1}, s2, {hex((FSH<<16)|1)}
  s_lshl_b32 s{sq+1}, s{sq+1}, 2
  s_add_u32 s{sq}, s{sq}, s{sq+1}
  s_and_b32 s{sq+1}, s2, 1
  s_mul_i32 s{sq+1}, s{sq+1}, {FHALF}
  s_add_u32 s{sq}, s{sq}, s{sq+1}
  v_mul_u32_u24 v{vgn1}, {FLN*256}, v{vl}
  v_add_u32 v{vgn1}, s{sq}, v{vgn1}
  v_lshrrev_b32 v{t2}, {FSH-1}, v{vl}
  v_lshlrev_b32 v{t2}, 8, v{t2}
  v_and_b32 v{t3}, {(1<<(FSH-1))-1}, v{vl}
  v_lshl_add_u32 v{t2}, v{t3}, 3, v{t2}
  v_add_u32 v{vsrow}, s{sP}, v{t2}
  s_mov_b32 s{sK}, {NLOG2E}
  s_mov_b32 s{sK+1}, {NLOG2E}
  s_waitcnt lgkmcnt(0)
  s_add_u32 s{sTag}, s{sTag}, 1
  s_max_u32 s{sTag}, s{sTag}, 1
  s_bitcmp1_b32 s2, 0
  s_cbranch_scc1 K_GEMM
  s_cmp_ge_u32 s2, {2*G}
  s_cbranch_scc1 K_PREP
  s_mov_b32 s{sq}, {MAGIC}
  v_lshlrev_b32 v{t7}, 6, v0
  v_add_u32 v{t7}, {1<<18}, v{t7}
  s_barrier
  s_waitcnt vmcnt({5+NCC})""")
    stamp(a, 1)
    for j in range(5):
        a(f"""
  v_mul_u32_u24 v{B4+j}, s{sq}, v{DD+j}
  v_lshrrev_b32 v{B4+j}, 18, v{B4+j}
  v_and_b32 v{B4+j}, 0x3fc, v{B4+j}
  v_add_u32 v{t0+j}, {L_BCNT}, v{B4+j}
  ds_add_rtn_u32 v{RK+j}, v{t0+j}, v{vone}""")
    def claim_pair():
        a(f"  s_lshl_b32 s{sT}, s{sStart}, 8\n  s_sub_u32 s{sCnt}, {N*256}, s{sT}")
        srd(a, T1, pWS, f"s{sCnt}", add=WS_P, addreg=sT)
        a(f"""
  s_mul_i32 s{sT}, s{sW}, 2560
  v_lshl_add_u32 v{DO}, v{vl}, 7, s{sT}
  v_mov_b32 v{DO+1}, 0
  s_mov_b64 exec, 0xfffff
  buffer_atomic_or v{DO+1}, v{DO}, {s(T1,4)}, 0 offen
  s_mov_b64 exec, -1""")
    if OPT["claim"] & 16: claim_pair()
    a(f"  s_waitcnt vmcnt({NCC + (1 if OPT['claim'] & 16 else 0)})")
    if OPT["claim"] & 8: claim_pair()
    for j in range(5):
        a(f"""
  v_lshl_add_u32 v{SS_+j}, v{SS_+j}, 18, v{t7}
  v_and_or_b32 v{SS_+j}, v{DD+j}, 63, v{SS_+j}
  v_lshlrev_b32 v{CA+j}, 5, v{B4+j}
  v_add_u32 v{CA+j}, {L_CIMG}, v{CA+j}""")
        if j < 4: a(f"  v_add_u32 v{t7}, {512<<6}, v{t7}")
    srd(a, T2, pWS, NB*BSTR if not OPT["dbg"] & 4 else 0, add=WS_CELL + (0x2000000 if OPT["dbg"] & 1 else 0))
    a(f"""
  v_lshrrev_b32 v{t4}, 3, v0
  s_mov_b32 s{sq}, {BSTR}
  v_mul_u32_u24 v{t4}, s{sq}, v{t4}
  v_and_b32 v{t5}, 7, v0
  v_lshl_add_u32 v{t4}, v{t5}, 4, v{t4}
  s_lshl_b32 s{sq}, s2, {5 if OPT['half'] == 2 else 6}
  s_mov_b64 {s(sBad,2)}, 0
  s_waitcnt lgkmcnt(0)""")
    for j in range(5):
        a(f"""
  v_mul_u32_u24 v{t1}, 37, v{RK+j}
  v_lshl_add_u32 v{t0}, v{RK+j}, 2, v{CA+j}
  v_lshrrev_b32 v{t1}, 8, v{t1}
  v_cmp_le_u32 vcc, {CAP-1}, v{RK+j}
  v_lshl_add_u32 v{t0}, v{t1}, 2, v{t0}
  s_or_b64 {s(sBad,2)}, {s(sBad,2)}, vcc
  s_andn2_b64 exec, exec, vcc
  ds_write_b32 v{t0}, v{SS_+j}
  s_mov_b64 exec, -1""")
    a(f"""
  v_add_u32 v{t0}, {L_CIMG}, v{vt16}
  v_mov_b32 v{t2}, {L_FLG+4}
  s_cmp_eq_u64 {s(sBad,2)}, 0
  s_cbranch_scc1 K_NOFULL
  ds_write_b32 v{t2}, v{vone}
K_NOFULL:
  s_waitcnt lgkmcnt(0)
  s_barrier""")
    stamp(a, 2)
    a(f"  ds_read_b32 v{t2}, v{t2}\nK_OVFDONE:")
    for j in range(4):
        a(f"  ds_read_b128 {v(CP+4*j,4)}, v{t0} offset:{8192*j}")
    a(f"""
  s_waitcnt vmcnt({2 if OPT['claim'] & 2 else 63}) lgkmcnt(4)
  v_cmp_ne_u32 vcc, 0, v{t2}
  s_cbranch_vccnz K_OVF""")
    for j in range(4):
        a(f"""
  s_mov_b32 exec_lo, 0xaaaaaaaa
  s_mov_b32 exec_hi, 0xaaaaaaaa
  s_waitcnt lgkmcnt({3-j})
  v_mov_b32 v{CP+4*j+3}, s{sTag}
  s_mov_b64 exec, -1
  {"s_mov_b32 exec_lo, 0x0f0f0f0f" + chr(10) + "  s_mov_b32 exec_hi, 0x0f0f0f0f" if OPT["half"] else ""}
  buffer_store_dwordx4 {v(CP+4*j,4)}, v{t4}, {s(T2,4)}, s{sq} offen {STF}
  s_mov_b64 exec, -1
  s_add_u32 s{sq}, s{sq}, {64*BSTR}""")
    a(f"  s_lshl_b32 s{sq}, s{sStart}, 8\n  s_lshl_b32 s{sq+1}, s{sNb}, 8")
    srd(a, T2, pX, f"s{sq+1}", addreg=sq)
    a(f"""
  v_add_u32 v{t6}, 8192, v{vt16}
  buffer_load_dwordx4 {v(XL,4)}, v{vt16}, {s(T2,4)}, 0 offen
  buffer_load_dwordx4 {v(XL+4,4)}, v{t6}, {s(T2,4)}, 0 offen""")
    own_x(0)
    a(f"""
  {"s_sleep %d" % OPT["slpa"] if OPT["slpa"] else ""}""")
    def spf(n, per_wave, base):
        if not n: return
        assert 8*OPT['spf'] + 4*OPT['spfb'] <= 640
        a(f"""
  s_lshr_b32 s{sq}, s2, 1
  s_min_u32 s{sq}, s{sq}, {G-1}
  s_mul_i32 s{sq}, s{sq}, {CH*32}
  s_mul_i32 s{sq+1}, s{sW}, {per_wave}
  s_add_u32 s{sq}, s{sq}, s{sq+1}
  s_add_u32 s{sq}, s{sq}, {base}
  s_add_u32 s{T0}, s{pE}, s{sq}
  s_addc_u32 s{T0+1}, s{pE+1}, 0""")
        for i in range(n):
            a(f"  s_load_dword s{T0+2}, s[{T0}:{T0+1}], {128*i}")
    spf(OPT["spf"], OPT["spf"]*128, 0)
    a(f"""
  s_branch K_PST
K_GW:
  {"s_sleep %d" % OPT["slpb"] if OPT["slpb"] else ""}""")
    spf(OPT["spfb"], OPT["spfb"]*128, OPT["spf"]*1024)
    a(f"""
  s_branch K_PST
K_GEMM:
  ; ---------------- P gemm role: rows of this bucket and the one before ----------------""")
    if OPT["touch"]:
        a(f"""
  s_cmp_lg_u32 s{sW}, 0
  s_cbranch_scc1 K_NOTOUCH
  s_waitcnt vmcnt(0)
  s_mov_b64 exec, {FMASK}
  buffer_load_dword v{DUM}, v{vgn1}, {s(SF,4)}, 0 offen sc1
  s_mov_b64 exec, -1
K_NOTOUCH:""")
    a(f"""
  s_mul_i32 s{sq}, s{sNp}, {XS}
  s_sub_u32 s{sq}, {L_X}, s{sq}
  v_lshrrev_b32 v{t0}, 4, v0
  v_lshl_add_u32 v{t0}, v{t0}, 5, v{vt16}
  v_add_u32 v{t3}, s{sq}, v{t0}
  s_cmp_lt_u32 s{sW}, 4
  s_cselect_b32 s{sq+1}, -1, 0
  v_subrev_u32 v{t1}, {L_X}, v{vxb}
  v_add_u32 v{t1}, s{sq}, v{t1}
  s_waitcnt vmcnt({(2 if OPT['wfirst'] else 6)+NCL})
  ds_write_b128 v{t3}, {v(GX,4)}
  s_waitcnt vmcnt({(1 if OPT['wfirst'] else 5)+NCL})
  ds_write_b128 v{t3}, {v(GX+4,4)} offset:{32*XS}
  s_waitcnt vmcnt({(0 if OPT['wfirst'] else 4)+NCL})
  s_mov_b32 exec_lo, s{sq+1}
  s_mov_b32 exec_hi, s{sq+1}
  ds_write_b128 v{t3}, {v(GX+8,4)} offset:{64*XS}
  s_mov_b64 exec, -1
  v_and_b32 v{t2}, 15, v{vl}
  v_mul_u32_u24 v{t2}, {XS}, v{t2}
  v_lshrrev_b32 v{t3}, 4, v{vl}
  v_lshl_add_u32 v{t2}, v{t3}, 3, v{t2}
  s_lshl_b32 s{sq}, s{sW}, 5
  s_add_u32 s{sq}, s{sq}, {L_GP}
  v_add_u32 v{t2}, s{sq}, v{t2}
  v_add_u32 v{t0}, {L_GP - 16*XS}, v{t0}
  v_subrev_u32 v{t4}, 4096, v{vt16}""")
    srd(a, T0, pWS, f"s{sCnt}", add=WS_P + (0x2800000 if OPT["dbg"] & 2 else 0), addreg=sT)
    a(f"  s_waitcnt vmcnt({NCL}) lgkmcnt(0)\n  s_barrier")
    stamp(a, 1)
    wtr(W1F, vqa)
    XT = [PF, PF+16, EA, EB, PF]
    for nt in range(4):
        for st in range(4):
            a(f"  ds_read_b128 {v(XT[nt]+4*st,4)}, v{t1} offset:{nt*16*XS + st*64}")
    for nt in range(5):
        a(f"  s_waitcnt lgkmcnt({(12, 12, 8, 4, 0)[nt]})")
        for st in range(4):
            c = "0" if st == 0 else v(D0+4*nt, 4)
            a(f"  v_mfma_f32_16x16x32_bf16 {v(D0+4*nt,4)}, {v(W1F+4*st,4)}, {v(XT[nt]+4*st,4)}, {c}")
        if nt == 0:
            for st in range(4):
                a(f"  ds_read_b128 {v(PF+4*st,4)}, v{t1} offset:{4*16*XS + st*64}")
    for nt in range(5):
        d = D0 + 4*nt
        if nt == 4: a("  s_nop 1")
        a(f"""
  v_pk_mul_f32 {v(d,2)}, {v(d,2)}, {s(sK,2)}
  v_pk_mul_f32 {v(d+2,2)}, {v(d+2,2)}, {s(sK,2)}
  v_cvt_pk_bf16_f32 v{W3+2*nt}, v{d}, v{d+1}
  v_cvt_pk_bf16_f32 v{W3+2*nt+1}, v{d+2}, v{d+3}
  ds_write_b64 v{t2}, {v(W3+2*nt,2)} offset:{nt*16*XS}""")
    a(f"  s_waitcnt vmcnt({NA}) lgkmcnt(0)\n  s_barrier")
    stamp(a, 2)
    a(f"""
  s_cmp_lt_u32 s{sW}, 4
  s_cbranch_scc1 K_GW""")
    for j in range(5):
        a(f"  ds_read_b128 {v(PF+4*j,4)}, v{t0} offset:{j*16*XS}")
    if OPT["zt"]:
        srd(a, T1, pWS, f"s{sCnt}", add=0x1800000, addreg=sT)
        a(f"  s_waitcnt lgkmcnt(0)\n  v_mov_b32 v{t1}, v{t4}")
        for j in range(5):
            a(f"  buffer_store_dwordx4 {v(PF+4*j,4)}, v{t1}, {s(T1,4)}, 0 offen {STF}\n  v_add_u32 v{t1}, 4096, v{t1}")
        a("  s_waitcnt vmcnt(0)")
        stamp(a, 1)
    for j in range(5):
        a(f"  s_waitcnt lgkmcnt({4-j})\n  buffer_store_dwordx4 {v(PF+4*j,4)}, v{t4}, {s(T0,4)}, 0 offen {STF}")
        if j < 4: a(f"  v_add_u32 v{t4}, 4096, v{t4}")
    a(f"""
  v_mov_b32 v{t0}, {L_FLG+12}
  v_mov_b32 v{t7}, s{sTag}
""")
    if OPT["early"]:
        a(f"""
  s_sleep {OPT["early"]}
  v_min_u32 v{t4}, 2, v{vl}
  s_lshl_b32 s{sq}, s2, 7
  v_lshl_add_u32 v{t4}, v{t4}, 2, s{sq}
  buffer_load_dwordx4 {v(REC,4)}, v{vcell}, {s(SC,4)}, 0 offen sc1
  buffer_load_dwordx4 {v(REC+4,4)}, v{vcell}, {s(SC,4)}, 0 offen offset:64 sc1
  {"buffer_load_dword v%d, v%d, %s, 0 offen sc1" % (t5, t4, s(SF,4)) if not OPT["s0m"] else ""}
  s_mov_b32 s{sKind}, 9""")
    a(f"""
  s_mov_b64 exec, 1
  s_waitcnt vmcnt({(2 if OPT["s0m"] else 3) if OPT["early"] else 0})""")
    stamp(a, 3)
    a(f"""
  ds_add_rtn_u32 v{t0}, v{t0}, v{vone}
  s_waitcnt lgkmcnt(0)
  v_readfirstlane_b32 s{sOV+5}, v{t0}
  s_mov_b64 exec, -1
  s_cmp_lg_u32 s{sOV+5}, 3
  s_cbranch_scc1 K_PST
K_FLAG:
  s_mov_b64 exec, {FMASK}
  buffer_store_dword v{t7}, v{vgn1}, {s(SF,4)}, 0 offen {FLF}
  s_mov_b64 exec, -1
K_PST:""")
    def node_gemm(WA, WB=None):
        for nt in range(3):
            xf = XF + 16*(nt & 1)
            if nt == 0:
                for n2 in range(2):
                    for st in range(4):
                        a(f"  ds_read_b128 {v(XF+16*n2+4*st,4)}, v{vxb} offset:{n2*16*XS + st*64}")
            a(f"  s_waitcnt lgkmcnt({4 if nt == 0 else 5 if nt == 1 else 1})")
            q = QD if nt != 1 else SA
            for st in range(4):
                c = "0" if st == 0 else v(q, 4)
                a(f"  v_mfma_f32_16x16x32_bf16 {v(q,4)}, {v(WA+4*st,4)}, {v(xf+4*st,4)}, {c}")
            if WB is not None:
                for st in range(4):
                    c = "0" if st == 0 else v(U+4*nt, 4)
                    a(f"  v_mfma_f32_16x16x32_bf16 {v(U+4*nt,4)}, {v(WB+4*st,4)}, {v(xf+4*st,4)}, {c}")
            if nt == 0:
                for st in range(4):
                    a(f"  ds_read_b128 {v(XF+4*st,4)}, v{vxb} offset:{2*16*XS + st*64}")
            a(f"""
  s_nop 7
  v_pk_mul_f32 {v(q,2)}, {v(q,2)}, {s(sK,2)}
  v_pk_mul_f32 {v(q+2,2)}, {v(q+2,2)}, {s(sK,2)}
  v_cvt_pk_bf16_f32 v{QD+4+2*(nt&1)}, v{q}, v{q+1}
  v_cvt_pk_bf16_f32 v{QD+5+2*(nt&1)}, v{q+2}, v{q+3}""")
            if nt == 2:
                a(f"  s_mov_b32 exec_lo, 0x00ff00ff\n  s_mov_b32 exec_hi, 0x00ff00ff")
            a(f"  ds_write_b64 v{vqw}, {v(QD+4+2*(nt&1),2)} offset:{nt*16*QS}")
            if nt == 2:
                a("  s_mov_b64 exec, -1")
    assert SB == SA + 2
    def poll(lab, off):
        a(f"""
  s_cmp_lg_u32 s{sW}, 1
  s_cbranch_scc1 {lab}_D
  s_mov_b32 s{sq}, 0
  s_mov_b32 s{sq+1}, {off}
  v_min_u32 v{t0}, 2, v{vl}
  s_lshl_b32 s{sBad}, s2, 7
  v_lshl_add_u32 v{t0}, v{t0}, 2, s{sBad}
{lab}:
  buffer_load_dwordx2 {v(DUM,2)}, v{vsrow}, {s(SF,4)}, s{sq+1} offen {PLF}
  buffer_load_dword v{DUM+2}, v{t0}, {s(SF,4)}, 0 offen {PLF}
  s_add_u32 s{sq}, s{sq}, 1
  s_waitcnt vmcnt(0)
  v_cmp_ne_u32 vcc, s{sTag}, v{DUM}
  v_cmp_ne_u32 {s(sBad,2)}, s{sTag}, v{DUM+1}
  s_or_b64 vcc, vcc, {s(sBad,2)}
  v_cmp_ne_u32 {s(sBad,2)}, s{sTag}, v{DUM+2}
  s_or_b64 vcc, vcc, {s(sBad,2)}
  s_cbranch_scc0 {lab}_D
  {"s_sleep %d" % OPT["slp"] if OPT["slp"] else ""}
  s_cmp_lt_u32 s{sq}, 0x8000
  s_cbranch_scc1 {lab}
{lab}_D:""")
    stamp(a, 5)
    nld = 16 if OPT["lo"] else 12
    a(f"""
  s_lshl_b32 s{sTmp}, s{sW}, 12
  s_add_u32 s{sTmp+1}, s{sTmp}, {WF_UT}
  s_add_u32 s{sUB}, s{sTmp}, {WF_UB}
  s_mov_b32 s{sTmp+2}, {WF_3H}
  s_mov_b32 s{sTmp+3}, {WF_3L}
  s_mov_b32 s{sOV}, {0xaaaaaaaa if not OPT["dbg"] & 5 else 0}
  s_cmp_eq_u32 s{sW}, 7
  s_cselect_b32 s{sOV+1}, {0xaaaaa if not OPT["dbg"] & 5 else 0}, s{sOV}
  v_min_u32 v{t4}, 2, v{vl}
  s_lshl_b32 s{sq}, s2, 7
  v_lshl_add_u32 v{t4}, v{t4}, 2, s{sq}
  s_mov_b32 s{sq}, 0
  {"s_sleep %d" % OPT["slp0"] if OPT["slp0"] else ""}
""")
    wl = [f"  buffer_load_dwordx4 {v(W2F+4*st,4)}, v{vgl}, {s(SW,4)}, s{sTmp} offen offset:{st*1024} sc1" for st in range(4)]
    wl += [f"  buffer_load_dwordx4 {v(WUT+4*st,4)}, v{vgl}, {s(SW,4)}, s{sTmp+1} offen offset:{st*1024} sc1" for st in range(4)]
    wl += [f"  buffer_load_dwordx4 {v(W3+4*st,4)}, v{vgl}, {s(SW,4)}, s{sTmp+2} offen offset:{st*1024} sc1" for st in range(4)]
    if OPT["lo"]:
        wl += [f"  buffer_load_dwordx4 {v(W3L+4*st,4)}, v{vgl}, {s(SW,4)}, s{sTmp+3} offen offset:{st*1024} sc1" for st in range(4)]
    a(f"""
  v_lshlrev_b32 v{vgl}, 4, v{vl}
  s_mov_b32 s{sOV+6}, 0
  {"s_cmp_eq_u32 s%d, 9" % sKind + chr(10) + "  s_mov_b32 s%d, 0" % sKind + chr(10) + "  s_cbranch_scc1 K_CPOLLW" if OPT["early"] else ""}
K_CPOLL:
  buffer_load_dwordx4 {v(REC,4)}, v{vcell}, {s(SC,4)}, 0 offen sc1
  buffer_load_dwordx4 {v(REC+4,4)}, v{vcell}, {s(SC,4)}, 0 offen offset:64 sc1
  {"buffer_load_dword v%d, v%d, %s, 0 offen sc1" % (t5, t4, s(SF,4)) if not OPT["s0m"] else ""}
  s_add_u32 s{sq}, s{sq}, 1
  s_waitcnt vmcnt(0)
K_CPOLLC:
  v_cmp_ne_u32 vcc, s{sTag}, v{REC+3}
  v_cmp_ne_u32 {s(sBad,2)}, s{sTag}, v{REC+7}
  s_or_b64 {s(sBad,2)}, vcc, {s(sBad,2)}
  {"v_cmp_ne_u32 %s, s%d, v%d" % (s(sOV+2,2), sTag, t5) if not OPT["s0m"] else "s_mov_b64 %s, -1" % s(sOV+2,2)}
  s_and_b64 {s(sBad,2)}, {s(sBad,2)}, {s(sOV,2)}
  {"s_or_b64 %s, %s, %s" % (s(sBad,2), s(sBad,2), s(sOV+2,2)) if OPT["gate"] else ""}
  s_cbranch_scc1 K_CAGAIN""")
    rare.append(f"""
K_CPOLLW:
  s_waitcnt vmcnt(1)
  s_cmp_eq_u32 s{sOV+5}, 3
  s_cbranch_scc1 K_CPOLLC
  s_waitcnt vmcnt(0)
  s_branch K_CPOLLC
K_CAGAIN:
  s_cmp_lg_u64 {s(sOV+2,2)}, 0
  s_cbranch_scc1 K_CA2
  s_cmp_lg_u32 s{sOV+6}, 0
  s_cbranch_scc1 K_CA2
  s_mov_b32 s{sOV+6}, 1
""" + "\n".join(wl) + f"""
K_CA2:
  {"s_sleep %d" % OPT["slp"] if OPT["slp"] else ""}
  s_cmp_lt_u32 s{sq}, 0x8000
  s_cbranch_scc1 K_CPOLL
  s_branch K_CPOLLD""")
    a(f"""
K_CPOLLD:
  {"v_mov_b32 v%d, v%d" % (DK+2, t4) + chr(10) + "  buffer_load_dword v%d, v%d, %s, 0 offen sc1" % (DK+1, t4, s(SF,4)) if OPT["s0m"] else ""}
  s_mov_b32 exec_lo, 0xaaaaaaaa
  s_mov_b32 exec_hi, 0xaaaaaaaa
  v_mov_b32 v{REC+3}, 0
  v_mov_b32 v{REC+7}, 0
  s_mov_b64 exec, -1""")
    stamp(a, 6)
    NR = 8
    a(f"""
K_PHASE1:
  v_cmp_le_u32 vcc, 0xfffc0000, v{REC+NR-2}
  s_cbranch_vccnz K_MARK
K_NOMARK:""")
    rare.append(f"""
K_MARK:
  s_and_saveexec_b64 {s(sEx,2)}, vcc
  v_lshrrev_b32 v{t0}, 2, v0                 ; producer
  v_lshrrev_b32 v{t1}, 5, v{t0}
  v_lshlrev_b32 v{t1}, 2, v{t1}
  v_lshlrev_b32 v{t0}, v{t0}, v{vone}
  ds_or_b32 v{t1}, v{t0} offset:{L_FLG+32}
  v_mov_b32 v{REC+NR-2}, 0
  s_mov_b64 exec, {s(sEx,2)}
  s_branch K_NOMARK""")
    for k in range(NR):
        if k == 4:
            a(f"""
  v_or3_b32 v{t3}, v{REC+k}, v{REC+k+1}, v{REC+k+2}
  v_or_b32 v{t3}, v{t3}, v{REC+k+3}
  v_cmp_ne_u32 vcc, 0, v{t3}
  s_cbranch_vccz K_P1E""")
        a(f"""
  v_lshlrev_b32 v{NOD+k}, 2, v{REC+k}
  v_and_b32 v{NOD+k}, 0xfc, v{NOD+k}
  v_cmpx_ne_u32 vcc, 0, v{REC+k}
  ds_add_rtn_u32 v{RNK+k}, v{NOD+k}, v{vone} offset:{L_CNT}
  s_mov_b64 exec, -1""")
    a(f"""
K_P1E:
  s_cmp_lg_u32 s{sOV+6}, 0
  s_cbranch_scc1 K_NOWL
  s_cmp_lg_u64 {s(sOV+2,2)}, 0
  s_cbranch_scc1 K_NOWL
  s_mov_b32 s{sOV+6}, 1""")
    if OPT["stamp"] and OPT["s0st"]: a("  s_memrealtime s[86:87]")
    for x in wl: a(x)
    a(f"""
K_NOWL:
  v_lshlrev_b32 v{t0}, 2, v{vl}
  v_subrev_u32 v{t4}, s{sStart}, v{vl}
  v_and_b32 v{t4}, 63, v{t4}
  s_waitcnt lgkmcnt(0)""")
    fstamp(a, 1)
    a(f"""
  s_barrier""")
    fstamp(a, 2)
    a(f"""
  ds_read_b32 v{t1}, v{t0} offset:{L_CNT}
  s_waitcnt lgkmcnt(0)
  v_add_u32 v{t1}, 3, v{t1}
  v_bfe_u32 v{t5}, v{t1}, 2, 1               ; left-over quad
  v_lshrrev_b32 v{t6}, 3, v{t1}
  v_lshl_or_b32 v{t1}, v{t5}, 16, v{t6}
  v_mov_b32 v{t2}, v{t1}
  s_nop 1
  v_add_u32_dpp v{t2}, v{t2}, v{t2} row_shr:1 row_mask:0xf bank_mask:0xf
  s_nop 1
  v_add_u32_dpp v{t2}, v{t2}, v{t2} row_shr:2 row_mask:0xf bank_mask:0xf
  s_nop 1
  v_add_u32_dpp v{t2}, v{t2}, v{t2} row_shr:4 row_mask:0xf bank_mask:0xf
  s_nop 1
  v_add_u32_dpp v{t2}, v{t2}, v{t2} row_shr:8 row_mask:0xf bank_mask:0xf
  s_nop 1
  v_add_u32_dpp v{t2}, v{t2}, v{t2} row_bcast:15 row_mask:0xa bank_mask:0xf
  s_nop 1
  v_add_u32_dpp v{t2}, v{t2}, v{t2} row_bcast:31 row_mask:0xc bank_mask:0xf
  s_nop 1
  v_readlane_b32 s{sT}, v{t2}, 63
  v_sub_u32 v{t1}, v{t2}, v{t1}
  s_lshr_b32 s{sq+1}, s{sT}, 16
  s_and_b32 s{sCO}, s{sT}, 0xffff
  s_lshl_b32 s{sq}, s{sCO}, 1                ; quads in the groups of eight
  s_lshr_b32 s{sCO}, s{sCO}, 2
  s_add_u32 s{sT}, s{sq}, s{sq+1}
  s_add_u32 s{sT}, s{sT}, 7
  s_lshr_b32 s{sT}, s{sT}, 3
  v_lshrrev_b32 v{t2}, 16, v{t1}
  v_add_u32 v{t2}, s{sq}, v{t2}              ; quad slot of the left-over quad
  v_and_b32 v{t1}, 0xffff, v{t1}
  v_lshl_or_b32 v{t0}, v{t6}, 16, v{t1}
  v_lshlrev_b32 v{t0}, 3, v{t0}              ; 8*start8 | 8*n8 << 16
  v_lshlrev_b32 v{t7}, 1, v{t6}
  v_sub_u32 v{t7}, v{t2}, v{t7}
  v_lshlrev_b32 v{t7}, 2, v{t7}              ; position base of the left-over quad
  s_cmp_gt_u32 s{sT}, {CAPB}
  s_cbranch_scc1 K_SPLIT""")
    fstamp(a, 3)
    def bp(ks):
        for k in ks:
            a(f"  ds_bpermute_b32 v{PF+16+k}, v{NOD+k}, v{t7}")
            a(f"  ds_bpermute_b32 v{NOD+k}, v{NOD+k}, v{t0}")
    def ent(ks):
        for k in ks:
            e = PF + 2*k
            a(f"""
  v_lshrrev_b32 v{e}, 10, v{REC+k}
  v_and_b32 v{e}, {hex(0xffffff00 if not OPT['hot'] else 0x1f00)}, v{e}
  v_bfe_u32 v{e+1}, v{REC+k}, 6, 12
  v_lshl_add_u32 v{e+1}, v{e+1}, 5, v{vebase}""")
    def put(ks):
        for k in ks:
            a(f"  v_cmp_lt_u32_sdwa {s(8+2*(k&3),2)}, v{RNK+k}, v{NOD+k} src0_sel:DWORD src1_sel:WORD_1")
        for k in ks:
            a(f"  v_and_b32 v{NOD+k}, 0xffff, v{NOD+k}")
        for k in ks:
            a(f"  v_cndmask_b32 v{NOD+k}, v{PF+16+k}, v{NOD+k}, {s(8+2*(k&3),2)}")
        for k in ks:
            a(f"""
  v_add_lshl_u32 v{NOD+k}, v{NOD+k}, v{RNK+k}, 3
  v_cmpx_ne_u32 vcc, 0, v{REC+k}
  ds_write_b64 v{NOD+k}, {v(PF+2*k,2)}
  s_mov_b64 exec, -1""")
    bp(range(4))
    a(f"""
  v_or3_b32 v{t3}, v{REC+4}, v{REC+5}, v{REC+6}
  v_or_b32 v{t3}, v{t3}, v{REC+7}
  v_cmp_ne_u32 {s(sK2,2)}, 0, v{t3}
  s_cmp_eq_u64 {s(sK2,2)}, 0
  s_cbranch_scc1 K_P2A""")
    bp(range(4, 8))
    ent(range(4, 8))
    a("K_P2A:")
    if OPT["s0m"]:
        a(f"""
  s_cmp_lg_u32 s{sOV+6}, 0
  s_cbranch_scc1 K_S0A
  s_waitcnt vmcnt(0)
  v_cmp_ne_u32 vcc, s{sTag}, v{DK+1}
  s_cbranch_vccnz K_S0AX
  s_mov_b32 s{sOV+6}, 1""")
        for x in wl: a(x)
        a("K_S0A:")
        rare.append(f"K_S0AX:\n  buffer_load_dword v{DK+1}, v{DK+2}, {s(SF,4)}, 0 offen sc1\n  s_branch K_S0A")
    ent(range(4))
    a(f"""
  v_lshlrev_b32 v{t2}, 2, v{t2}
  v_add_lshl_u32 v{t3}, v{t1}, v{t6}, 3
  v_lshl_add_u32 v{t1}, v{t1}, 1, s{sW}
  v_lshlrev_b32 v{t1}, 2, v{t1}
  s_waitcnt lgkmcnt(0)""")
    put(range(4))
    a(f"  s_cmp_eq_u64 {s(sK2,2)}, 0\n  s_cbranch_scc1 K_P2E")
    put(range(4, 8))
    a("K_P2E:")
    fstamp(a, 5)
    a(f"""
  v_cmpx_ne_u32 vcc, 0, v{t5}
  ds_write_b32 v{t2}, v{t4} offset:{L_GN}
  s_mov_b64 exec, -1
K_GNL:
  v_cmpx_lt_u32 vcc, v{t1}, v{t3}
  ds_write_b32 v{t1}, v{t4} offset:{L_GN}
  v_add_u32 v{t1}, 32, v{t1}
  v_cmpx_lt_u32 vcc, v{t1}, v{t3}
  ds_write_b32 v{t1}, v{t4} offset:{L_GN}
  v_add_u32 v{t1}, 32, v{t1}
  v_cmpx_lt_u32 vcc, v{t1}, v{t3}
  s_cbranch_execnz K_GNL
  s_mov_b64 exec, -1
  s_add_u32 s{sCnt}, s{sT}, 7
  s_sub_u32 s{sCnt}, s{sCnt}, s{sW}
  s_lshr_b32 s{sCnt}, s{sCnt}, 3
  s_add_u32 s{sCO}, s{sCO}, 7
  s_sub_u32 s{sCO}, s{sCO}, s{sW}
  s_lshr_b32 s{sCO}, s{sCO}, 3
  {("s_mov_b32 s%d, 40" % sCnt + chr(10) + "  s_movk_i32 s%d, 320" % sT + chr(10) + "  s_mov_b32 s%d, 40" % sCO) if OPT["bench"] else ""}
""")
    stamp(a, 4)
    if OPT["s0m"]:
        a(f"""
  s_cmp_lg_u32 s{sOV+6}, 0
  s_cbranch_scc1 K_S0B
  s_waitcnt vmcnt(0)
  v_cmp_ne_u32 vcc, s{sTag}, v{DK+1}
  s_cbranch_vccnz K_S0BX
  s_mov_b32 s{sOV+6}, 1""")
        for x in wl: a(x)
        a("K_S0B:")
        rare.append(f"K_S0BX:\n  s_nop 0\n  s_branch K_S0B")
    a(f"""
  s_cmp_eq_u32 s{sFirst}, 0
  s_cbranch_scc1 K_POLL2_D""")
    poll("K_POLL2", FHALF)
    a("  s_waitcnt lgkmcnt(0)\n  s_barrier")
    stamp(a, 7)
    dsc = " sc1" if OPT["dsc"] else ""
    def dma_issue():
        L = []
        for j in range(8):
            d = DO + (j & 1)
            L.append([f"  s_add_u32 m0, s{sStg}, {j*1040}",
                      f"  v_add_u32_dpp v{d}, v{ENT}, v{vchunk} row_newbcast:{2*j} row_mask:0xf bank_mask:0xf",
                      f"  buffer_load_dwordx4 v{d}, {s(SP,4)}, 0 offen{dsc} lds" if not OPT["nodma"] else "  s_nop 0"])
        L.append([f"  s_add_u32 m0, s{sStg}, 8320",
                  f"  v_add_u32 v{DO}, v{ENT+1}, v{vechunk}",
                  f"  buffer_load_dwordx4 v{DO}, {s(SE,4)}, 0 offen lds" if not (OPT["nodma"] or OPT["noe"]) else "  s_nop 0"])
        return L
    ndma = 0 if OPT["nodma"] else 8 if OPT["noe"] else 9
    def frag_reads():
        L = []
        for st in range(8):
            L.append(f"  ds_read_b128 {v(PF+4*st,4)}, v{vAlo if st < 4 else vAhi} offset:{32*(st&3)}")
        L.insert(2, f"  ds_read_b128 {v(EF,4)}, v{vEF}")
        return L
    def bq_reads():
        return [f"  ds_read_b64_tr_b16 {v(BQ+nq*t,2)}, v{vqa} offset:{64*t}" for t in range(4)]
    def chain(t, D):
        L = [f"  v_mfma_f32_32x32x16_bf16 {v(D,16)}, {v(EF,4)}, {v(W3+4*t,4)}, 0"]
        if OPT["lo"]:
            L.append(f"  v_mfma_f32_32x32x16_bf16 {v(D,16)}, {v(EF,4)}, {v(W3L+4*t,4)}, {v(D,16)}")
        L.append(f"  v_mfma_f32_32x32x16_bf16 {v(D,16)}, {v(PF+8*t,4)}, {v(I0,4)}, {v(D,16)}")
        L.append(f"  v_mfma_f32_32x32x16_bf16 {v(D,16)}, {v(PF+8*t+4,4)}, {v(I1,4)}, {v(D,16)}")
        if OPT["k8"]:
            L.append(f"  v_mfma_f32_32x32x8bf16_1k {v(D,16)}, {v(AQ,2)}, {v(BQ+2*t,2)}, {v(D,16)}")
        else:
            L.append(f"  v_mfma_f32_32x32x16_bf16 {v(D,16)}, {v(AQ,4)}, {v(BQ+4*t,4)}, {v(D,16)}")
        return L

    if OPT["stag"]:
        a(f"  s_cmp_lt_u32 s{sW}, 4\n  s_cbranch_scc1 K_STG\n  s_sleep {OPT['stag']}\nK_STG:")
    if OPT["idle"]: a(f"  s_sleep {OPT['idle']}")
    a(f"  ds_read_b64 {v(ENT,2)}, v{vent}")
    if OPT["ord"]:
        a(f"  s_lshr_b32 s{sq}, s{sW}, 2\n  s_and_b32 s{sK2}, s{sq}, s{sFirst}\n  s_cbranch_scc1 K_DLATER")
    a("  s_waitcnt lgkmcnt(0)")
    for x in dma_issue(): a("\n".join(x))
    a(f"""
  ds_read_b64 {v(ENT,2)}, v{vent} offset:2048
  s_cmp_eq_u32 s{sFirst}, 0
  s_cbranch_scc1 K_NOGEMM0
  s_cmp_eq_u32 s{sOV+6}, 0
  s_cbranch_scc1 K_WLATE
  s_waitcnt vmcnt({ndma}) lgkmcnt(0)
K_WOK:
  s_mov_b32 s{sFirst}, 0""")
    rare.append(f"K_WLATE:\n  s_mov_b32 s{sOV+6}, 1\n" + "\n".join(wl) + "\n  s_waitcnt vmcnt(0) lgkmcnt(0)\n  s_branch K_WOK")
    rare.append(f"K_DLATER:\n  s_cmp_eq_u32 s{sOV+6}, 0\n  s_cbranch_scc1 K_WLATE\n  s_waitcnt vmcnt(0) lgkmcnt(0)\n  s_branch K_WOK")
    node_gemm(W2F, WUT)
    if OPT["ord"]:
        a(f"  s_cmp_eq_u32 s{sK2}, 0\n  s_cbranch_scc1 K_DDONE")
        for x in dma_issue(): a("\n".join(x))
        a(f"  ds_read_b64 {v(ENT,2)}, v{vent} offset:2048\nK_DDONE:")
    for st in range(4):
        a(f"  buffer_load_dwordx4 {v(WUB+4*st,4)}, v{vgl}, {s(SW,4)}, s{sUB} offen offset:{st*1024} sc1")
    def pf5():
        a(f"  s_mul_i32 s{sq}, s2, 40000\n  v_add_u32 v{t0}, s{sq}, v{vt16}")
        for j in range(5):
            a(f"  buffer_load_dwordx4 {v(DUM,4)}, v{t0}, {s(SE,4)}, 0 offen")
            if j < 4: a(f"  v_add_u32 v{t0}, 8192, v{t0}")
    if OPT["pf2"] == 1: pf5()
    a(f"""
  s_or_b32 s{sq}, s2, s{sW}
  s_cmp_lg_u32 s{sq}, 0
  s_cbranch_scc1 K_NONONCE
  s_mov_b64 exec, 1
  v_mov_b32 v{t0}, {FNON}
  v_mov_b32 v{t1}, s{sTag}
  buffer_store_dword v{t1}, v{t0}, {s(SF,4)}, 0 offen
  s_mov_b64 exec, -1
  s_waitcnt vmcnt(0)
K_NONONCE:
  s_waitcnt lgkmcnt(0)
  s_barrier
K_NOGEMM:
  ds_read_b32 v{vgn1}, v{vgq}
  ds_read_b32 v{vsrow}, v{vrow}
  ds_read_b128 {v(GN,4)}, v{vga}
  s_waitcnt vmcnt({9 if OPT["pf2"] == 1 else 4})""")
    stamp(a, 8, 96)
    for x in frag_reads(): a(x)
    a(f"""
  s_waitcnt lgkmcnt(9)
  v_mad_u32_u24 v{vqa}, v{vgn1}, s{sQS}, v{vqlane}
  v_lshrrev_b64 {v(AQ,2)}, v{vsrow}, {v(PAT,2)}""")
    for x in bq_reads(): a(x)
    a("  s_waitcnt lgkmcnt(0)")
    for x in dma_issue(): a("\n".join(x))
    if OPT["pf2"] == 2: pf5()
    if OPT["idle2"]: a(f"  s_sleep {OPT['idle2']}")
    for x in chain(0, D0): a(x)
    if OPT["prio"]:
        a(f"  s_cmp_lt_u32 s{sW}, 4\n  s_cbranch_scc1 K_PR\n  s_setprio 1\nK_PR:")
    a(f"""
  s_nop 7
  s_nop 3
  s_cmp_eq_u32 s{sCnt}, 0
  s_cbranch_scc1 K_LOOPEND
  s_cmp_lg_u32 s{sMode}, 0
  s_cbranch_scc1 K_SAFE
  {"s_branch K_QUAD" if not OPT["octo"] else ""}
  s_sub_u32 s{sCnt}, s{sCnt}, s{sCO}
  s_cmp_eq_u32 s{sCO}, 0
  s_cbranch_scc1 K_QUAD""")

    def p(r): return v(r, 2)
    def octet_fast(d, e, t, r, sres):
        ex = [f"  v_exp_f32 v{e+i}, v{d+i}" for i in range(8)]
        L = [f"  v_pk_add_f32 {p(t)}, {p(e)}, 1.0 op_sel_hi:[1,0]",
             f"  v_pk_add_f32 {p(t+2)}, {p(e+4)}, 1.0 op_sel_hi:[1,0]",
             f"  v_pk_fma_f32 {p(t+4)}, {p(d)}, {p(e+2)}, {p(d)}",
             f"  v_pk_fma_f32 {p(t+6)}, {p(d+4)}, {p(e+6)}, {p(d+4)}",
             f"  v_pk_fma_f32 {p(e)}, {p(t)}, {p(e+2)}, {p(t)}",
             f"  v_pk_fma_f32 {p(e+4)}, {p(t+2)}, {p(e+6)}, {p(t+2)}",
             f"  v_pk_fma_f32 {p(t+4)}, {p(d+2)}, {p(t)}, {p(t+4)}",
             f"  v_pk_fma_f32 {p(t+6)}, {p(d+6)}, {p(t+2)}, {p(t+6)}",
             f"  v_pk_mul_f32 {p(t)}, {p(e)}, {p(e+4)}",
             f"  v_pk_mul_f32 {p(t+4)}, {p(t+4)}, {p(e+4)}",
             f"  v_rcp_f32 v{r}, v{t}",
             f"  v_rcp_f32 v{r+1}, v{t+1}",
             f"  v_pk_fma_f32 {p(t+4)}, {p(t+6)}, {p(e)}, {p(t+4)}",
             f"  v_pk_mul_f32 {p(sres)}, {p(t+4)}, {p(r)}"]
        return ex, L
    def octet_safe(d, e, t, r, sres):
        ex = [f"  v_exp_f32 v{e+i}, v{d+i}" for i in range(8)]
        L = [f"  v_pk_add_f32 {p(e+2*i)}, {p(e+2*i)}, 1.0 op_sel_hi:[1,0]" for i in range(4)]
        L += [f"  v_rcp_f32 v{t+i}, v{e+i}" for i in range(8)]
        L += [f"  v_pk_mul_f32 {p(sres)}, {p(d)}, {p(t)}"]
        L += [f"  v_pk_fma_f32 {p(sres)}, {p(d+2*i)}, {p(t+2*i)}, {p(sres)}" for i in range(1, 4)]
        return ex, L
    def zipl(x, y):
        o = []
        for i in range(max(len(x), len(y))):
            if i < len(x): o.append(x[i])
            if i < len(y): o.append(y[i])
        return o
    def adds(t, kind):
        if OPT["noadd"]: return [f"  ds_read_b32 v{DUM}, v{vgq}"] * (2 if kind == "octo" else 4)
        if kind == "octo": return [f"  ds_add_f64 v{AD+2*xy}, {v(CV+2*xy,2)} offset:{256*t}" for xy in range(2)]
        return [f"  ds_add_f64 v{AD+2*xy+o}, {v(CV+2*(2*o+xy),2)} offset:{256*t}" for o in range(2) for xy in range(2)]
    def block_body(kind, u, nun):
        oc = octet_safe if kind == "safe" else octet_fast
        nadd = 2 if kind == "octo" else 4
        B = []
        for t in range(4):
            D = D0 if t % 2 == 0 else D1
            Dn = D1 if t % 2 == 0 else D0
            exa, La = oc(D, EA, TA, RA, SA)
            exb, Lb = oc(D+8, EB, TB, RB, SB)
            ex = exa + exb
            ch = chain((t+1) % 4, Dn)
            late = []
            if kind == "octo":
                keep = lambda L: [x for x in L[:-1] if "v_rcp" not in x]
                dk = DK + 2*(t & 1)
                pk = zipl(keep(La), keep(Lb))
                pk = pk[:-4] + [f"  v_pk_mul_f32 {p(dk)}, {p(TA)}, {p(TB)}"] + pk[-4:-2] + \
                     [f"  v_rcp_f32 v{RA}, v{dk}", f"  v_rcp_f32 v{RA+1}, v{dk+1}"] + pk[-2:] + \
                     [f"  v_pk_mul_f32 {p(TA+4)}, {p(TA+4)}, {p(TB)}"]
                if t & 1: pk.append(f"  v_pk_fma_f32 {p(MAC)}, {p(DK)}, {p(DK+2)}, {p(MAC)}")
                pk += [f"  v_pk_fma_f32 {p(TA+4)}, {p(TB+4)}, {p(TA)}, {p(TA+4)}",
                       f"  v_pk_mul_f32 {p(SA)}, {p(TA+4)}, {p(RA)}"]
                fin = [f"  v_cvt_f64_f32 {v(CV+2*xy,2)}, v{SA+xy}" for xy in range(2)]
                adr = (0, 2)
            else:
                pk = zipl(La, Lb)
                if kind == "quad":
                    idx = max(i for i, x in enumerate(pk) if x.startswith(f"  v_pk_mul_f32 {p(TB)}, {p(EB)}"))
                    pk.insert(idx+1, f"  v_pk_fma_f32 {p(MAC)}, {p(TA)}, {p(TB)}, {p(MAC)}")
                fin = [f"  v_cvt_f64_f32 {v(CV+2*(2*o+xy),2)}, v{S+xy}" for o, S in ((0, SA), (1, SB)) for xy in range(2)]
                adr = range(4)
            fin += adds(t, kind)
            if t == 0:
                pk = pk[:4] + [f"  v_mad_u32_u24 v{AD+i}, v{GN+i}, s{sAS}, v{vacl}" for i in adr] + pk[4:]
            if t == 1:
                pk = pk[:8] + [f"  ds_read_b64 {v(ENT,2)}, v{vent} offset:{4096+2048*u}",
                      f"  ds_read_b32 v{vgn1}, v{vgq} offset:{256+256*u}",
                      f"  ds_read_b32 v{vsrow}, v{vrow} offset:{2048+2048*u}",
                      f"  ds_read_b128 {v(GN,4)}, v{vga} offset:{256+256*u}"] + pk[8:]
            if t == 3:
                B.append(f"  s_waitcnt lgkmcnt({nadd})")
            dma = dma_issue() if t == 3 else []
            per = 16 // len(ch); e = 0
            for i, m in enumerate(ch):
                B.append(m)
                n = per if i < len(ch)-1 else 16 - e
                B += ex[e:e+2]
                if late: B.append(late.pop(0))
                B += ex[e+2:e+n]; e += n
                if OPT["dmapos"] == 0:
                    for _ in range(2):
                        if dma: B += dma.pop(0)
            if t == 2:
                mid = [f"  s_waitcnt vmcnt(0) lgkmcnt({nadd})",
                       f"  v_mad_u32_u24 v{vqa}, v{vgn1}, s{sQS}, v{vqlane}"]
                rd = frag_reads() + bq_reads()
                aq = [f"  v_lshrrev_b64 {v(AQ,2)}, v{vsrow}, {v(PAT,2)}"]
                if OPT["rdgap"] == 0: B += mid + rd + aq + pk
                else:
                    q = []
                    for i, x in enumerate(aq + pk):
                        if rd and i % OPT["rdgap"] == 0: q.append(rd.pop(0))
                        q.append(x)
                    B += mid + q + rd
            elif t == 3:
                inc = []
                if u == nun - 1 and OPT["bench"]:
                    inc = [f"  v_add_u32 v{DUM+i}, {2048*nun}, v{vent}" for i in range(4)]
                elif u == nun - 1:
                    inc = incs(nun)
                pk = pk + inc
                if OPT["dmapos"] == 1:
                    q = []
                    for i, x in enumerate(pk):
                        if dma and i % 3 == 0: q += dma.pop(0)
                        q.append(x)
                    pk = q
                for x in dma: B += x
                B += pk
            else:
                B += pk
            B += fin
        return B
    def incs(n):
        return [f"  v_add_u32 v{vent}, {2048*n}, v{vent}", f"  v_add_u32 v{vrow}, {2048*n}, v{vrow}",
                f"  v_add_u32 v{vgq}, {256*n}, v{vgq}", f"  v_add_u32 v{vga}, {256*n}, v{vga}"]
    def loop(kind):
        lab = {"safe": "K_SAFE", "quad": "K_QUAD", "octo": "K_FAST"}[kind]
        nun = OPT["unroll"] if kind == "octo" else 1
        cnt = sCO if kind == "octo" else sCnt
        L = []
        for u in range(nun):
            L += block_body(kind, u, nun)
            L.append(f"  s_sub_u32 s{cnt}, s{cnt}, 1")
            L.append(f"  s_cmp_lg_u32 s{cnt}, 0")
            L.append(f"  s_cbranch_scc1 {lab}" if u == nun - 1 else f"  s_cbranch_scc0 K_OX{u}")
        ab = OPT["abl"]
        if ab & 1: L = [x for x in L if not ("v_mfma" in x and (f", {v(I0,4)}," in x or f", {v(I1,4)}," in x))]
        if ab & 2: L = [x for x in L if "v_mfma_f32_32x32x8" not in x and "tr_b16" not in x]
        if ab & 4: L = [x.replace("v_exp_f32", "v_mov_b32") for x in L]
        if ab & 8: L = [x for x in L if "v_pk_" not in x]
        if ab & 16: L = [x for x in L if "v_mfma" not in x]
        if ab & 32: L = [x for x in L if "ds_read_b128" not in x]
        if ab & 64: L = [x for x in L if "v_exp" not in x]
        if ab & 128:
            M = []
            for x in L:
                if "v_mfma" in x and f", {v(I1,4)}," in x: continue
                if "v_mfma" in x and f", {v(I0,4)}," in x:
                    m = re.match(r"\s*v_mfma_f32_32x32x16_bf16 (v\[\d+:\d+\]), v\[(\d+):", x)
                    M.append(f"  v_smfmac_f32_32x32x32_bf16 {m.group(1)}, {v(I0,4)}, {v(int(m.group(2)),8)}, v{vone}"); continue
                m = re.match(r"\s*ds_read_b128 v\[(\d+):\d+\], v(\d+) offset:(\d+)", x)
                if m and PF <= int(m.group(1)) < PF + 32:
                    r0 = int(m.group(1))
                    M.append(f"  ds_read_b64_tr_b16 {v(r0,2)}, v{vqa} offset:{m.group(3)}")
                    M.append(f"  ds_read_b64_tr_b16 {v(r0+2,2)}, v{vqa} offset:{int(m.group(3))+128}"); continue
                M.append(x)
            L = M
        if ab & 256:
            M = []
            for x in L:
                if "v_mfma" in x and (f", {v(I1,4)}," in x or f", {v(I0,4)}," in x): continue
                if "v_mfma_f32_32x32x16" in x and x.rstrip().endswith(", 0"): x = x.rstrip()[:-1] + v(PF, 16)
                m = re.match(r"\s*ds_read_b128 v\[(\d+):\d+\], v(\d+) offset:(\d+)", x)
                if m and PF <= int(m.group(1)) < PF + 32:
                    for q in range(8): M.append(f"  ds_read_u16_d16_hi v{PF+(int(m.group(1))+q)%32}, v{vacl} offset:{64*q}")
                    continue
                M.append(x)
            L = M
        if OPT["align"]: L = align8(L)
        a(f".p2align 6\n{lab}:")
        for x in L: a(x)
    loop("octo")
    a(f"""
K_OXE:
  s_cmp_lg_u32 s{sCnt}, 0
  s_cbranch_scc1 K_QUAD""")
    a(f"""
K_LOOPEND:""")
    a(f"""
  s_waitcnt vmcnt(0) lgkmcnt(0)
  s_barrier""")
    stamp(a, 9, 98)
    a(f"""
  s_cmp_lg_u32 s{sKind}, 0
  s_cbranch_scc1 K_NEXT
K_CELLSDONE:
  v_mov_b32 v{t0}, {L_FLG+32}
  ds_read_b128 {v(CV,4)}, v{t0}
K_CONV:
  s_mul_i32 s{sTmp}, s{sW}, {AS}
  s_add_u32 s{sTmp}, s{sTmp}, {L_ACC}
  v_lshlrev_b32 v{t1}, 4, v{vl}
  v_add_u32 v{t1}, s{sTmp}, v{t1}""")
    for k in range(5):
        a(f"  ds_read_b128 {v(D0+4*k,4)}, v{t1} offset:{k*8*AS}")
    a(f"""
  s_mul_i32 s{sTmp}, s{sW}, {XS}
  s_add_u32 s{sTmp}, s{sTmp}, {L_X}
  v_lshlrev_b32 v{t2}, 2, v{vl}
  v_add_u32 v{t2}, s{sTmp}, v{t2}
  s_cmp_ge_u32 s{sKind}, 3
  s_cbranch_scc1 K_CONV2
  s_waitcnt lgkmcnt(5)
  v_or3_b32 v{t0}, v{CV}, v{CV+1}, v{CV+2}
  v_or_b32 v{t0}, v{t0}, v{CV+3}
  v_cmp_ne_u32 vcc, 0, v{t0}
  s_cbranch_vccnz K_STARTOV
K_CONV2:
  s_mov_b32 s{sTmp}, 0x71800000              ; 2^100
  v_cmp_nle_f32 {s(sBad,2)}, v{MAC}, s{sTmp}
  v_cmp_nle_f32 vcc, v{MAC+1}, s{sTmp}
  s_or_b64 {s(sBad,2)}, {s(sBad,2)}, vcc
  s_movk_i32 s{sTmp}, 0x207""")
    for k in range(5):
        a(f"""
  s_waitcnt lgkmcnt(4)
  v_cvt_f32_f64 v{EA+2*k}, {v(D0+4*k,2)}
  v_cvt_f32_f64 v{EA+2*k+1}, {v(D0+4*k+2,2)}
  v_cvt_pk_bf16_f32 v{EB+k}, v{EA+2*k}, v{EA+2*k+1}
  ds_write_b32 v{t2}, v{EB+k} offset:{k*8*XS}""")
    a(f"  v_pk_mul_f32 {p(RA)}, {p(EA)}, 0 op_sel_hi:[1,0]")
    for k in range(1, 5):
        a(f"  v_pk_fma_f32 {p(RA)}, {p(EA+2*k)}, 0, {p(RA)} op_sel_hi:[1,0,1]")
    a(f"""
  v_add_f32 v{RA}, v{RA}, v{RA+1}
  v_cmp_class_f32 vcc, v{RA}, s{sTmp}
  s_or_b64 {s(sBad,2)}, {s(sBad,2)}, vcc""")
    a(f"""
  s_cmp_eq_u64 {s(sBad,2)}, 0
  s_cbranch_scc1 K_OKW
  v_mov_b32 v{t0}, {L_FLG}
  ds_write_b32 v{t0}, v{vone}
K_OKW:
  s_waitcnt lgkmcnt(0)
  s_barrier
  v_mov_b32 v{t0}, {L_FLG}
  ds_read_b32 v{t0}, v{t0}""")
    for nt in range(2):
        for st in range(4):
            a(f"  ds_read_b128 {v(XF+16*nt+4*st,4)}, v{vxb} offset:{nt*16*XS + st*64}")
    a(f"""
  s_waitcnt lgkmcnt(8)
  v_readfirstlane_b32 s{sTmp}, v{t0}
  s_cmp_gt_u32 s{sTmp}, s{sMode}
  {"s_cbranch_scc1 K_RESTART" if not EXP else "s_nop 0"}
  s_waitcnt lgkmcnt(4)""")
    for st in range(4):
        c = "0" if st == 0 else v(D0, 4)
        a(f"  v_mfma_f32_16x16x32_bf16 {v(D0,4)}, {v(WUB+4*st,4)}, {v(XF+4*st,4)}, {c}")
    for st in range(4):
        a(f"  ds_read_b128 {v(D1+4*st,4)}, v{vxb} offset:{2*16*XS + st*64}")
    a("  s_waitcnt lgkmcnt(4)")
    for st in range(4):
        c = "0" if st == 0 else v(D0+4, 4)
        a(f"  v_mfma_f32_16x16x32_bf16 {v(D0+4,4)}, {v(WUB+4*st,4)}, {v(XF+16+4*st,4)}, {c}")
    a("  s_waitcnt lgkmcnt(0)")
    for st in range(4):
        c = "0" if st == 0 else v(D0+8, 4)
        a(f"  v_mfma_f32_16x16x32_bf16 {v(D0+8,4)}, {v(WUB+4*st,4)}, {v(D1+4*st,4)}, {c}")
    a(f"""
  s_mov_b32 s{sK}, {NLN2}
  s_mov_b32 s{sK+1}, {NLN2}
  s_mov_b32 s{sTmp}, {NLOG2E}
  s_mov_b32 s{sTmp+1}, {NLOG2E}
  v_and_b32 v{t0}, 15, v{vl}
  v_lshlrev_b32 v{t0}, 8, v{t0}
  v_lshrrev_b32 v{t1}, 4, v{vl}
  v_lshl_add_u32 v{t0}, v{t1}, 3, v{t0}
  s_lshl_b32 s{sTmp+2}, s{sW}, 5
  v_add_u32 v{t0}, s{sTmp+2}, v{t0}
  v_add_u32 v{t1}, 4096, v{t0}
  v_add_u32 v{t2}, 8192, v{t0}""")
    for nt in range(3):
        d = D0 + 4*nt
        a(f"""
  v_pk_fma_f32 {p(d)}, {p(d)}, {s(sK,2)}, {p(U+4*nt)}
  v_pk_fma_f32 {p(d+2)}, {p(d+2)}, {s(sK,2)}, {p(U+4*nt+2)}
  v_pk_mul_f32 {p(EA)}, {p(d)}, {s(sTmp,2)}
  v_pk_mul_f32 {p(EA+2)}, {p(d+2)}, {s(sTmp,2)}""")
        for i in range(4): a(f"  v_exp_f32 v{EA+i}, v{EA+i}")
        a(f"  s_nop 0\n  v_pk_add_f32 {p(EA)}, {p(EA)}, 1.0 op_sel_hi:[1,0]\n  v_pk_add_f32 {p(EA+2)}, {p(EA+2)}, 1.0 op_sel_hi:[1,0]")
        for i in range(4): a(f"  v_rcp_f32 v{EA+i}, v{EA+i}")
        a(f"""
  s_nop 0
  v_pk_mul_f32 {p(d)}, {p(d)}, {p(EA)}
  v_pk_mul_f32 {p(d+2)}, {p(d+2)}, {p(EA+2)}
  v_cvt_pk_bf16_f32 v{EB+2*nt}, v{d}, v{d+1}
  v_cvt_pk_bf16_f32 v{EB+2*nt+1}, v{d+2}, v{d+3}
  buffer_store_dwordx2 {v(EB+2*nt,2)}, v{t0+nt}, {s(SO,4)}, 0 offen""")
    if OPT["stamp"]:
        a(f"""
  s_waitcnt vmcnt(0)
  s_memrealtime s[4:5]
  s_waitcnt lgkmcnt(0)
  s_lshl_b32 s6, s2, 3
  s_add_u32 s6, s6, s{sW}
  s_lshl_b32 s6, s6, 6
  s_add_u32 s6, s6, {WS_STAMP}
  s_add_u32 s6, s{pWS}, s6
  s_addc_u32 s7, s{pWS+1}, 0
  s_mov_b64 exec, 1
  v_mov_b32 v1, 0""")
        for i, r in enumerate([80+2*i for i in range(8)] + [96, 98, 4]):
            pass
        regs = [80, 82, 84, 86, 88, 90, 92, 94, 8, 9, 4, 10, 11, sT]
        for i, r in enumerate(regs):
            a(f"  v_mov_b32 v2, s{r}\n  global_store_dword v1, v2, s[6:7] offset:{4*i}")
    a(f"""
K_END:
  s_endpgm
""")
    a(f"""
K_PREP:
  s_sub_u32 s{sq}, s2, {2*G}
  s_lshl_b32 s{sq}, s{sq}, 14
  s_lshl_b32 s{sq+1}, s{sW}, 12
  s_add_u32 s{sq}, s{sq}, s{sq+1}
  v_lshlrev_b32 v{t0}, 4, v{vl}
  v_mov_b32 v{t7}, s{sTag}
  s_waitcnt vmcnt({10+NA})
  s_barrier""")
    wtr(PF, vqa)
    a("  s_waitcnt lgkmcnt(0)")
    for st in range(4):
        a(f"  buffer_store_dwordx4 {v(PF+4*st,4)}, v{t0}, {s(SW,4)}, s{sq} offen offset:{st*1024} sc1")
    a(f"""
  s_lshr_b32 s{sq}, s{sW}, 2
  s_add_u32 s{sq}, s{sq}, s2
  s_cmp_lg_u32 s{sq}, {2*G}
  s_cbranch_scc1 K_PREPD
  s_mov_b32 s{sq+1}, {NLOG2E}
  s_lshl_b32 s{sq}, s{sW}, 10
  s_waitcnt vmcnt({6+NA})""")
    for jj in range(8):
        a(f"  v_lshlrev_b32 v{D0+jj}, 16, v{D0+jj}\n  v_mul_f32 v{D0+jj}, s{sq+1}, v{D0+jj}")
    for i in range(4):
        a(f"  v_cvt_pk_bf16_f32 v{D0+8+i}, v{D0+2*i}, v{D0+1+2*i}")
    for i in range(4):
        a(f"""
  v_lshlrev_b32 v{t2}, 16, v{D0+8+i}
  v_and_b32 v{t3}, 0xffff0000, v{D0+8+i}
  v_sub_f32 v{t2}, v{D0+2*i}, v{t2}
  v_sub_f32 v{t3}, v{D0+1+2*i}, v{t3}
  v_cvt_pk_bf16_f32 v{D0+12+i}, v{t2}, v{t3}""")
    a(f"""
  s_add_u32 s{sq+1}, s{sq}, {WF_3L}
  s_add_u32 s{sq}, s{sq}, {WF_3H}
  buffer_store_dwordx4 {v(D0+8,4)}, v{t0}, {s(SW,4)}, s{sq} offen sc1
  buffer_store_dwordx4 {v(D0+12,4)}, v{t0}, {s(SW,4)}, s{sq+1} offen sc1
K_PREPD:""")
    own_x(4+NA)
    a(f"""
  s_sub_u32 s{sq}, s2, {2*G}
  s_lshl_b32 s{sq}, s{sq}, 1
  v_lshl_add_u32 v{t0}, v0, 7, s{sq}
  s_waitcnt vmcnt(0)
  s_barrier
  s_cmp_ge_u32 s{sW}, 4
  s_cbranch_scc1 K_PST
  buffer_store_dword v{t7}, v{t0}, {s(SF,4)}, 0 offen {FLF}
  s_branch K_PST""")
    a(f"""
K_OVF:
  s_waitcnt lgkmcnt(0)
  s_barrier
  s_mul_i32 s{sq+1}, s2, {OVSTR//2}
  s_add_u32 s{sq+1}, s{sq+1}, 64
  v_mov_b32 v{t5}, {L_FLG+8}
  v_mov_b32 v{t6}, -1""")
    for j in range(5):
        a(f"""
  v_cmp_le_u32 vcc, {CAP-1}, v{RK+j}
  s_and_b64 exec, exec, vcc
  s_cbranch_execz K_OV{j}
  v_add_u32 v{t1}, {L_BCNT}, v{B4+j}
  ds_read_b32 v{t1}, v{t1}
  s_waitcnt lgkmcnt(0)
  v_cmp_ne_u32 vcc, {CAP}, v{t1}
  s_nop 1
  v_cndmask_b32 v{t3}, v{SS_+j}, v{t6}, vcc
  ds_write_b32 v{CA+j}, v{t3} offset:{CELLB-8}
  s_and_b64 exec, exec, vcc
  s_cbranch_execz K_OV{j}
  ds_add_rtn_u32 v{t1}, v{t5}, v{vone}
  v_mov_b32 v{CV}, v{SS_+j}
  v_lshrrev_b32 v{CV+1}, 2, v{B4+j}
  s_waitcnt lgkmcnt(0)
  v_lshl_add_u32 v{t1}, v{t1}, 3, s{sq+1}
  buffer_store_dwordx2 {v(CV,2)}, v{t1}, {s(SV,4)}, 0 offen sc1
  s_waitcnt vmcnt(0)
K_OV{j}:
  s_mov_b64 exec, -1""")
    a(f"""
  s_waitcnt lgkmcnt(0)
  s_barrier
  ds_read_b32 v{t1}, v{t5}
  s_sub_u32 s{sq+1}, s{sq+1}, 64
  v_mov_b32 v{t3}, s{sq+1}
  v_mov_b32 v{t2}, 0
  s_waitcnt lgkmcnt(0)
  buffer_store_dword v{t1}, v{t3}, {s(SV,4)}, 0 offen sc1
  s_waitcnt vmcnt(0)
  s_branch K_OVFDONE""")
    for u in range(OPT["unroll"] - 1):
        a(f"K_OX{u}:\n  s_cmp_eq_u32 s{sCnt}, 0\n  s_cbranch_scc1 K_LOOPEND")
        for x in incs(u + 1): a(x)
        a("  s_branch K_QUAD")
    loop("quad")
    a("  s_branch K_LOOPEND")
    a("K_TEXTEND:")
    loop("safe")
    a("  s_branch K_LOOPEND")
    a(f"""
""")
    for x in rare: a(x)
    a(f"""
K_NOGEMM0:
  s_waitcnt vmcnt(0)
  s_branch K_NOGEMM
K_RESTART:
  s_mov_b32 s{sMode}, 1
  s_mov_b32 s{sKind}, 0
  s_waitcnt lgkmcnt(0)
  s_barrier
  v_mov_b32 v{CV}, 0
  v_mov_b32 v{CV+1}, 0
  v_mov_b32 v{CV+2}, 0
  v_mov_b32 v{CV+3}, 0""")
    for j in range(5):
        a(f"  ds_write_b128 v{vt16}, {v(CV,4)} offset:{L_ACC + j*8192}")
    a(f"""
  v_cmp_gt_u32 vcc, {(40*AS-5*8192)//16}, v0
  s_and_saveexec_b64 {s(sEx,2)}, vcc
  ds_write_b128 v{vt16}, {v(CV,4)} offset:{L_ACC + 5*8192}
  s_mov_b64 exec, {s(sEx,2)}
  s_branch K_RELOAD
K_SPLIT:
  s_mov_b32 s{sKind}, 1
  s_waitcnt lgkmcnt(0)
  s_barrier
  s_branch K_RELOAD
K_NEXT:
  s_cmp_eq_u32 s{sKind}, 4
  s_cbranch_scc1 K_NEXTOV
  s_cmp_eq_u32 s{sKind}, 3
  s_cbranch_scc1 K_OVPART1
  s_cmp_eq_u32 s{sKind}, 2
  s_cbranch_scc1 K_CELLSDONE
  s_mov_b32 s{sKind}, 2
K_RELOAD:
  v_lshrrev_b32 v{t1}, 2, v0
  s_mov_b32 s{sq}, {CH*32}
  v_mul_u32_u24 v{vebase}, s{sq}, v{t1}
  s_waitcnt vmcnt(0)""")
    for k in range(2):
        a(f"  buffer_load_dwordx4 {v(REC+4*k,4)}, v{vcell}, {s(SC,4)}, 0 offen offset:{64*k} sc1")
    a(f"""
  s_waitcnt vmcnt(0)
  s_mov_b32 exec_lo, 0xaaaaaaaa
  s_mov_b32 exec_hi, 0xaaaaaaaa
  v_mov_b32 v{REC+3}, 0
  v_mov_b32 v{REC+7}, 0
  s_mov_b64 exec, -1
  s_cmp_eq_u32 s{sKind}, 0
  s_cbranch_scc1 K_ROUND
  s_lshr_b32 s{sq}, s{sW}, 2
  s_add_u32 s{sq}, s{sq}, 1
  s_cmp_eq_u32 s{sq}, s{sKind}
  s_cbranch_scc1 K_ROUND""")
    for k in range(NR): a(f"  v_mov_b32 v{REC+k}, 0")
    a(f"""
K_ROUND:
  v_mov_b32 v{CV}, 0
  v_mov_b32 v{CV+1}, 0
  v_mov_b32 v{CV+2}, 0
  v_mov_b32 v{CV+3}, 0
  v_cmp_gt_u32 vcc, {(L_FLG-L_GN)//16}, v0
  s_and_saveexec_b64 {s(sEx,2)}, vcc
  ds_write_b128 v{vt16}, {v(CV,4)} offset:{L_GN}
  s_mov_b64 exec, {s(sEx,2)}""")
    prefill()
    a(f"""
  v_and_b32 v{vent}, 2047, v{vent}
  v_and_b32 v{vrow}, 2047, v{vrow}
  v_subrev_u32 v{vga}, {L_GN}, v{vga}
  v_and_b32 v{vga}, 255, v{vga}
  v_add_u32 v{vga}, {L_GN}, v{vga}
  v_and_b32 v{t2}, 12, v{vl}
  v_add_u32 v{vgq}, v{vga}, v{t2}
  s_waitcnt lgkmcnt(0)
  s_barrier
  s_branch K_PHASE1
K_STARTOV:""")
    for i in range(4): a(f"  v_readfirstlane_b32 s{sOV+i}, v{CV+i}")
    a(f"""
  s_mov_b32 s{sKind}, 4
  s_waitcnt lgkmcnt(0)
K_NEXTOV:""")
    for i in range(2):
        a(f"""
  s_ff1_i32_b64 s{sP}, {s(sOV+2*i,2)}
  s_cmp_eq_u32 s{sP}, -1
  s_cbranch_scc1 K_OVN{i}
  s_bitset0_b64 {s(sOV+2*i,2)}, s{sP}
  s_add_u32 s{sP}, s{sP}, {64*i}
  s_branch K_OVGO
K_OVN{i}:""")
    a(f"""
  s_branch K_CONV
K_OVGO:
  s_mov_b32 s{sKind}, 3
  v_mov_b32 v{t4}, v0
  s_branch K_OVLD
K_OVPART1:
  s_mov_b32 s{sKind}, 4
  v_add_u32 v{t4}, 2048, v0
K_OVLD:
  s_mul_i32 s{sq}, s{sP}, {OVSTR}
  s_mul_i32 s{sq+1}, s{sP}, {CH*32}
  v_mov_b32 v{vebase}, s{sq+1}
  v_mov_b32 v{t0}, s{sq}
  buffer_load_dword v{t1}, v{t0}, {s(SV,4)}, 0 offen sc1
  v_lshl_add_u32 v{t2}, v{t4}, 3, v{t0}""")
    for k in range(4):
        a(f"  buffer_load_dwordx2 {v(PF+2*k,2)}, v{t2}, {s(SV,4)}, 0 offen offset:64 sc1\n  v_add_u32 v{t2}, 4096, v{t2}")
    a(f"  s_waitcnt vmcnt(0)")
    for k in range(4):
        a(f"""
  v_cmp_lt_u32 vcc, v{t4}, v{t1}
  v_cmp_eq_u32 {s(sEx,2)}, s2, v{PF+2*k+1}
  s_and_b64 vcc, vcc, {s(sEx,2)}
  v_add_u32 v{t4}, 512, v{t4}
  s_nop 1
  v_cndmask_b32 v{REC+k}, 0, v{PF+2*k}, vcc""")
    for k in range(4, NR): a(f"  v_mov_b32 v{REC+k}, 0")
    a("  s_branch K_ROUND")
    return a.text(), nv, NS

def gen_diag(idx):
    a = Asm()
    a(f"""
.globl mpnn_d_kernel
.p2align 8
.type mpnn_d_kernel,@function
mpnn_d_kernel:
  s_cmp_ge_u32 s2, 1
  s_cbranch_scc1 D_END
  s_load_dwordx2 s[4:5], s[0:1], 64
  s_waitcnt lgkmcnt(0)
  s_add_u32 s4, s4, {WS_STAMP + (OPT['wsb'] << 20)}
  s_addc_u32 s5, s5, 0
  s_load_dword s6, s[4:5], 0
  s_waitcnt lgkmcnt(0)
  s_sub_u32 s6, s6, 100000""")
    for q, (ix, ismax) in enumerate(((idx, 1), (0, 0))):
        op = "max" if ismax else "min"
        a(f"  v_lshlrev_b32 v1, {6 if not OPT['dodd'] else 10}, v0\n  v_add_u32 v1, {ix*4 + (512 + 64*(OPT['dodd']-1) if OPT['dodd'] else 0)}, v1\n  v_mov_b32 v3, {0 if ismax else -1}")
        nk = 32 if not OPT['dodd'] else 2
        for k in range(nk):
            a(f"  global_load_dword v{8+k}, v1, s[4:5]\n  v_add_u32 v1, {4096 if not OPT['dodd'] else 65536}, v1")
        a("  s_waitcnt vmcnt(0)")
        for k in range(nk):
            a(f"  v_subrev_u32 v2, s6, v{8+k}\n  v_{op}_u32 v3, v3, v2")
        a(f"  s_mov_b32 s{20+q}, {0 if ismax else -1}\n  s_nop 1")
        for l in range(64):
            a(f"  v_readlane_b32 s8, v3, {l}\n  s_nop 0\n  s_{op}_u32 s{20+q}, s{20+q}, s8")
    a(f"""
  s_sub_u32 s20, s20, s21
  s_min_u32 s20, s20, 20000
  s_lshl_b32 s20, s20, 3
  {'s_mov_b32 s20, 0' if OPT['dz'] else ''}
  s_memrealtime s[8:9]
  s_waitcnt lgkmcnt(0)
D_L:
  s_memrealtime s[10:11]
  s_waitcnt lgkmcnt(0)
  s_sub_u32 s12, s10, s8
  s_cmp_lt_u32 s12, s20
  s_cbranch_scc1 D_L
D_END:
  s_endpgm
""")
    return a.text()

HEAD = """; Kernarg layout for this problem (72 bytes, ptrs only, base s[0:1]):
"""
def main():
    k, nv, ns = gen()
    out = HEAD + f"; @launch grid=({NB},1,1) block=(512,1,1) lds={LDS}\n"
    if OPT["diag"] >= 0:
        out = HEAD + f"; @launch kernel={KN} grid=({NB},1,1) block=(512,1,1) lds={LDS}\n; @launch kernel=mpnn_d_kernel grid=(1,1,1) block=(64,1,1) lds=0\n"
        k += gen_diag(OPT["diag"])
    out += '.amdgcn_target "amdgcn-amd-amdhsa--gfx950"\n.text\n' + k
    out += f""".section .rodata,"a"
.p2align 6
.amdhsa_kernel {KN}
  .amdhsa_next_free_vgpr {nv}
  .amdhsa_next_free_sgpr {ns}
  .amdhsa_accum_offset {(nv+3)//4*4}
  .amdhsa_group_segment_fixed_size 0
  .amdhsa_kernarg_size 72
  .amdhsa_user_sgpr_count 2
  .amdhsa_user_sgpr_kernarg_segment_ptr 1
  .amdhsa_system_sgpr_workgroup_id_x 1
.end_amdhsa_kernel
"""
    if OPT["diag"] >= 0:
        out += """.p2align 6
.amdhsa_kernel mpnn_d_kernel
  .amdhsa_next_free_vgpr 48
  .amdhsa_next_free_sgpr 32
  .amdhsa_accum_offset 48
  .amdhsa_group_segment_fixed_size 0
  .amdhsa_kernarg_size 72
  .amdhsa_user_sgpr_count 2
  .amdhsa_user_sgpr_kernarg_segment_ptr 1
  .amdhsa_system_sgpr_workgroup_id_x 1
.end_amdhsa_kernel
"""
    open(sys.argv[1], "w").write(out)
    print("vgprs", nv, "lds", LDS)
main()
```

```python
from common import *

N = 10000; E = 320000
G = 125
CH = 2560
NB = 256
MAGIC = 26843
CAP = 28
CELLB = 128
BSTR = G * CELLB

WS_P = 256
WS_CELL = 0x280000
WS_WF = 0x1280000
WF_W2, WF_UT, WF_UB, WF_3H, WF_3L = 0, 32768, 65536, 98304, 102400
WF_SIZE = 106496
WS_OVF = 0x12A0000
OVSTR = 64 + CH * 8
WS_FLAG = 0x1520000
WS_STAMP = 0x1600000

OPT = dict(lo=0, k8=1, stamp=0, nodma=0, noadd=0, noe=0, hot=0, align=1, unroll=2, dmapos=0, rdpos=0, dsc=1, pf=1, slp=0, stf=1, addpos=0, rdgap=0, prio=0, bench=0, octo=1, frep=8, fln=16, slp0=0, plf=1, flf=1, diag=-1, touch=0, dz=0, abl=0, dodd=0, wsb=0, claim=0, slpa=0, slpb=0, zt=0, cpf=0, pf2=0, stag=0, bdl=0, wfirst=0, fine=0, half=0, dbg=0, s0st=0, spf=0, spfb=0, early=0, gate=0, ord=0, s0m=0, idle=0, idle2=0, seq=0, smf=0)
for a_ in sys.argv[2:]:
    k_, v_ = a_.split("="); OPT[k_] = int(v_)
EXP = OPT["dbg"] or OPT["half"] or OPT["bench"] or OPT["nodma"] or OPT["noe"] or OPT["noadd"] or OPT["hot"]

FL_ = ['', 'sc1', 'sc0 sc1', 'sc1 nt', 'sc0 sc1 nt']; PLF = FL_[OPT['plf']]; FLF = FL_[OPT['flf']]
STF = ['', 'sc1', 'sc0 sc1', 'sc1 nt'][OPT['stf']]
FREP = OPT['frep']; FLN = OPT['fln']; FSH = (128//FLN).bit_length()-1; FHALF = FREP*FLN*256; FNON = 2*FHALF; FMASK = hex((1<<FREP)-1)
NA = 1 if OPT['claim'] & 4 else 0
NCL = (3 if OPT['claim'] & 1 else 0) + NA
NCC = (4 if OPT['claim'] & 2 else 0) + NA
CAPB = 70
L_ENT = 0
L_GN = (CAPB + 1) * 256
L_CNT = L_GN + (CAPB + 17) * 32
L_FLG = L_CNT + 256
L_ACC = L_FLG + 64
AS = 1040
L_Q = L_ACC + 40 * AS
QS = 320
L_X = L_Q + 40 * QS
XS = 288
L_STG = L_X + 40 * XS
STG = 8 * 1040 + 1024
LDS = L_STG + 8 * STG
L_CIMG = L_STG
L_BCNT = L_CIMG + NB * CELLB
WPITCH = 1088
L_GP = L_STG + 1024
L_WS = L_STG + 32 * WPITCH
assert L_BCNT + 1024 <= LDS and L_STG % 16 == 0 and L_ACC % 16 == 0
PADS, PADE = 0x8000003f, 0x80000000
KN = "standalone__mpnn_edge_mlp__graph_kernel"

def fstamp(a, i):
    if OPT["fine"]: a(f"  s_memrealtime s[{80+2*i}:{81+2*i}]")
def stamp(a, i, cyc=None):
    if OPT["fine"] and i in (1, 2, 3, 5): return
    if OPT["stamp"]:
        if cyc is None:
            a(f"  s_memrealtime s[{80+2*i}:{81+2*i}]\n  s_waitcnt lgkmcnt(0)")
        else:
            a(f"  s_memrealtime s[96:97]\n  s_memtime s[98:99]\n  s_waitcnt lgkmcnt(0)\n  s_mov_b32 s{i}, s96\n  s_mov_b32 s{i+2}, s98")

def gen():
    a = Asm()
    rare = []
    R = Regs(1)
    al = R.alloc
    vl = al("lane")
    t0 = al("t", 8, 2); t1, t2, t3, t4, t5, t6, t7 = range(t0+1, t0+8)
    vchunk = al("vchunk"); vechunk = al("vechunk")
    vent = al("vent"); vrow = al("vrow"); vgq = al("vgq"); vga = al("vga")
    vAlo = al("Alo"); vAhi = al("Ahi"); vEF = al("vEF")
    vAT = al("vAT", 4) if OPT["smf"] else None
    vqlane = al("vqlane"); vacl = al("vacl"); vxb = al("vxb"); vqw = al("vqw")
    vebase = al("vebase"); vone = al("vone"); vt16 = al("vt16"); vcell = al("vcell")
    vgl = al("vgl")
    vqa = al("vqa"); vsrow = al("vsrow"); vgn1 = al("vgn1")
    ENT = al("ENT", 2, 2)
    MAC = al("MAC", 2, 2)
    PAT = al("PAT", 2, 2)
    nq = 2 if OPT["k8"] else 4
    AQ = al("AQ", nq, 2)
    GN = al("GN", 4, 2); AD = al("AD", 4)
    DO = al("DO", 2)
    I0 = al("I0", 4, 2); I1 = al("I1", 4, 2)
    W3 = al("W3", 16, 2)
    W3L = al("W3L", 16, 2) if OPT["lo"] else None
    BQ = al("BQ", 4*nq, 2)
    EF = al("EF", 4, 2)
    PF = al("PF", 32, 2)
    D0 = al("D0", 16, 2); D1 = al("D1", 16, 2)
    EA = al("EA", 8, 4); TA = al("TA", 8, 4); EB = al("EB", 8, 4); TB = al("TB", 8, 4)
    RA = al("RA", 2, 2); RB = al("RB", 2, 2)
    SA = al("SA", 2, 2); SB = al("SB", 2, 2)
    CV = al("CV", 8, 2)
    U = al("U", 12, 2); WUB = al("WUB", 16, 2)
    DUM = al("DUM", 4, 2)
    DK = al("DK", 4, 2)
    nv = R.n
    assert TA == EA + 8 and EB == EA + 16 and TB == EA + 24 and D1 == D0 + 16
    DD = D0; SS_ = D0 + 5; B4 = D0 + 10; RK = D0 + 15; CA = D0 + 20
    CP = PF
    GX = W3
    XL = U
    W1F = WUB
    REC = D0; NOD = D0 + 8; RNK = D1
    W2F = EA; WUT = EB; XF = PF; QD = CV
    sW = 3
    pX, pE, pS, pD, pWM, pWU, pO, pWS = 4, 6, 8, 10, 12, 14, 16, 18
    SP, SE, SC, SW, SO, SV, SF = 20, 24, 28, 32, 36, 40, 44
    T0, T1, T2 = 48, 52, 56
    sStart, sNb, sStg, sCnt, sT, sMode, sKind, sFirst = 60, 61, 62, 63, 64, 65, 66, 67
    sAS, sQS, sTag, sP, sUB, sLo2 = 68, 69, 70, 71, 72, 73
    sCO = 59
    sK2 = 56
    sNp = 79
    sEx, sK, sBad = 74, 76, 78
    sTmp = 4
    sA = 48
    sOV = 48
    sOVT = 74
    sq = 100
    if OPT["stamp"]: NS = 102
    else: NS = 102

    a(f"""
.globl {KN}
.p2align 8
.type {KN},@function
{KN}:
  s_cmp_ge_u32 s2, {NB}
  s_cbranch_scc1 K_END""")
    if OPT["stamp"]: a("  s_memrealtime s[80:81]")
    a(f"""
  s_load_dwordx8 s[4:11], s[0:1], 0
  s_load_dwordx4 s[12:15], s[0:1], 32
  s_load_dwordx2 s[16:17], s[0:1], 48
  s_load_dwordx2 s[18:19], s[0:1], 64""")
    if OPT["cpf"]:
        a(f"""
  s_getpc_b64 s[20:21]
  v_lshlrev_b32 v{t1}, 7, v0
  v_cmp_gt_u32 vcc, (K_TEXTEND - {KN}) / 128, v0
  s_and_saveexec_b64 s[22:23], vcc
  s_cbranch_execz K_NOCPF
  global_load_dword v{DUM}, v{t1}, s[20:21]
K_NOCPF:
  s_mov_b64 exec, s[22:23]""")
    a(f"""
  v_lshrrev_b32 v{t0}, 6, v0
  v_and_b32 v{vl}, 63, v0
  s_and_b32 s{sP}, s2, {FREP-1}
  s_mul_i32 s{sP}, s{sP}, {FLN*256}
  s_and_b32 s{sq}, s2, 7
  s_lshl_b32 s{sq}, s{sq}, 1
  s_bfe_u32 s{sq+1}, s2, 0x10003
  s_and_b32 s2, s2, 0xf0
  s_or_b32 s2, s2, s{sq}
  s_or_b32 s2, s2, s{sq+1}
  s_mul_i32 s{sStart}, s2, 640013
  v_readfirstlane_b32 s{sW}, v{t0}
  s_add_u32 s{sNb}, s{sStart}, {640013+16383}
  s_add_u32 s{sStart}, s{sStart}, 16383
  s_sub_u32 s{sNp}, s{sStart}, 640013
  s_lshr_b32 s{sStart}, s{sStart}, 14
  s_lshr_b32 s{sNb}, s{sNb}, 14
  s_lshr_b32 s{sNp}, s{sNp}, 14
  s_min_u32 s{sNb}, s{sNb}, {N}
  s_sub_u32 s{sCnt}, s{sNb}, s{sNp}
  s_sub_u32 s{sNb}, s{sNb}, s{sStart}
  s_lshl_b32 s{sT}, s{sNp}, 8
  s_sub_u32 s{sNp}, s{sStart}, s{sNp}
  s_mov_b32 s{sMode}, 0
  s_mov_b32 s{sKind}, 0
  s_mov_b32 s{sFirst}, 1
  s_mov_b32 s{sAS}, {AS}
  s_mov_b32 s{sQS}, {QS}
  s_mul_i32 s{sStg}, s{sW}, {STG}
  s_add_u32 s{sStg}, s{sStg}, {L_STG}
  v_lshlrev_b32 v{vt16}, 4, v0
  s_mul_i32 s{sq}, s2, {CH*2}
  v_lshl_add_u32 v{t2}, v0, 2, s{sq}
  v_add_u32 v{t3}, 4096, v{t2}
  v_lshrrev_b32 v{t4}, 4, v{vl}
  v_lshlrev_b32 v{t0}, 1, v{t4}
  v_xor_b32 v{t0}, v{t0}, v{vl}
  v_lshlrev_b32 v{t0}, 4, v{t0}
  s_lshl_b32 s{sq}, s{sW}, 12
  v_add_u32 v{t7}, s{sq}, v{t0}
  s_mul_i32 s{sUB}, s{sW}, {4*WPITCH}
  s_add_u32 s{sUB}, s{sUB}, {L_WS}
  v_add_u32 v{t6}, 8192, v{vt16}
  v_add_u32 v{t5}, 16384, v{vt16}
  s_waitcnt lgkmcnt(0)
  {"s_add_u32 s%d, s%d, %d" % (pWS, pWS, OPT["wsb"] << 20) + chr(10) + "  s_addc_u32 s%d, s%d, 0" % (pWS+1, pWS+1) if OPT["wsb"] else ""}
  s_bitcmp1_b32 s2, 0
  s_cbranch_scc1 K_LDG
  s_cmp_ge_u32 s2, {2*G}
  s_cbranch_scc1 K_LDP""")
    if OPT["bdl"]: a(f"  s_sleep {OPT['bdl']}")
    srd(a, T0, pD, E*4)
    srd(a, T1, pS, E*4)
    a(f"  s_movk_i32 s{sq}, 0x2000")
    for r_, T in ((DD, T0), (SS_, T1)):
        a(f"""
  buffer_load_dword v{r_}, v{t2}, {s(T,4)}, 0 offen
  buffer_load_dword v{r_+1}, v{t2}, {s(T,4)}, 0 offen offset:2048
  buffer_load_dword v{r_+2}, v{t3}, {s(T,4)}, 0 offen
  buffer_load_dword v{r_+3}, v{t3}, {s(T,4)}, 0 offen offset:2048
  buffer_load_dword v{r_+4}, v{t2}, {s(T,4)}, s{sq} offen""")
    if OPT["claim"] & 2:
        srd(a, T2, pWS, NB*BSTR, add=WS_CELL)
        a(f"""
  v_lshrrev_b32 v{t4}, 3, v0
  s_mov_b32 s{sq}, {BSTR}
  v_mul_u32_u24 v{t4}, s{sq}, v{t4}
  v_and_b32 v{t0}, 7, v0
  v_lshl_add_u32 v{t4}, v{t0}, 4, v{t4}
  s_lshl_b32 s{sq}, s2, 6
  v_mov_b32 v{PF}, 0
  v_mov_b32 v{PF+1}, 0
  v_mov_b32 v{PF+2}, 0
  v_mov_b32 v{PF+3}, 0""")
        for j in range(4):
            a(f"  buffer_store_dwordx4 {v(PF,4)}, v{t4}, {s(T2,4)}, s{sq} offen sc1\n  s_add_u32 s{sq}, s{sq}, {64*BSTR}")
    a("  s_branch K_LD3")
    def wdma(T):
        for q in range(4):
            a(f"  s_add_u32 m0, s{sUB}, {64*q}\n  s_nop 0\n  buffer_load_dwordx4 v{t7}, {s(T,4)}, 0 offen offset:{1024*q} lds")
    a(f"""
K_LDX:
  s_lshl_b32 s{sq}, s{sStart}, 8
  s_lshl_b32 s{sq+1}, s{sNb}, 8""")
    srd(a, T2, pX, f"s{sq+1}", addreg=sq)
    a(f"""
  buffer_load_dwordx4 {v(XL,4)}, v{vt16}, {s(T2,4)}, 0 offen
  buffer_load_dwordx4 {v(XL+4,4)}, v{t6}, {s(T2,4)}, 0 offen
  s_branch K_LD3
K_LDP:
  s_cmp_eq_u32 s2, {2*G}
  s_cselect_b32 s{T1}, s{pWM}, s{pWU}
  s_cselect_b32 s{T1+1}, s{pWM+1}, s{pWU+1}
  s_cmp_eq_u32 s2, {2*G+2}
  s_cselect_b32 s{sq}, 0, 32768
  s_add_u32 s{T1}, s{T1}, s{sq}
  s_addc_u32 s{T1+1}, s{T1+1}, 0
  s_mov_b32 s{T1+2}, 32768
  s_mov_b32 s{T1+3}, 0x20000""")
    wdma(T1)
    srd(a, T0, pWM, 16*256, add=256*256)
    a(f"""
  v_and_b32 v{t0}, 31, v{vl}
  v_lshrrev_b32 v{t1}, 5, v{vl}
  v_lshlrev_b32 v{t1}, 11, v{t1}
  v_lshl_add_u32 v{t1}, v{t0}, 1, v{t1}
  s_and_b32 s{sq}, s{sW}, 3
  s_lshl_b32 s{sq}, s{sq}, 6""")
    for jj in range(8):
        a(f"  buffer_load_ushort v{D0+jj}, v{t1}, {s(T0,4)}, s{sq} offen offset:{jj*256}")
    a(f"""
  s_branch K_LDX
K_LDG:
  s_lshl_b32 s{sCnt}, s{sCnt}, 8""")
    srd(a, T0, pX, f"s{sCnt}", addreg=sT)
    srd(a, T1, pWM, 128*256)
    if OPT["wfirst"]: wdma(T1)
    a(f"""
  buffer_load_dwordx4 {v(GX,4)}, v{vt16}, {s(T0,4)}, 0 offen
  buffer_load_dwordx4 {v(GX+4,4)}, v{t6}, {s(T0,4)}, 0 offen
  buffer_load_dwordx4 {v(GX+8,4)}, v{t5}, {s(T0,4)}, 0 offen""")
    if not OPT["wfirst"]: wdma(T1)
    if OPT["claim"] & 1:
        srd(a, T2, pWS, f"s{sCnt}", add=WS_P, addreg=sT)
        for r_ in (vt16, t6, t5):
            a(f"  buffer_store_dwordx4 {v(PF,4)}, v{r_}, {s(T2,4)}, 0 offen sc1")
    a(f"""
K_LD3:""")
    if OPT["claim"] & 4:
        a(f"  s_lshl_b32 s{sq}, s{sStart}, 8\n  s_lshl_b32 s{sq+1}, s{sNb}, 8")
        srd(a, SO, pWS, f"s{sq+1}", add=WS_P, addreg=sq)
        a(f"""
  s_mul_i32 s{sq}, s{sW}, 1280
  v_lshl_add_u32 v{t1}, v{vl}, 7, s{sq}
  v_mov_b32 v{t0}, 0
  s_mov_b64 exec, 0x3ff
  buffer_atomic_or v{t0}, v{t1}, {s(SO,4)}, 0 offen
  s_mov_b64 exec, -1""")
    a(f"""
  s_add_u32 s{SF}, s{pWS}, {WS_FLAG}
  s_addc_u32 s{SF+1}, s{pWS+1}, 0
  s_load_dword s{sTag}, s[{SF}:{SF+1}], {FNON}
  s_mov_b32 s{SF+2}, {FNON+4}
  s_mov_b32 s{SF+3}, 0x20000
  v_lshrrev_b32 v{t1}, 2, v0
  v_and_b32 v{t4}, 3, v0
  v_lshlrev_b32 v{t4}, 4, v{t4}
  v_lshl_add_u32 v{vcell}, v{t1}, {6 if OPT['half'] == 2 else 7}, v{t4}
  s_mov_b32 s{sq}, {CH*32}
  v_mul_u32_u24 v{vebase}, s{sq}, v{t1}""")
    a(f"""
  v_mov_b32 v{CV}, 0
  v_mov_b32 v{CV+1}, 0
  v_mov_b32 v{CV+2}, 0
  v_mov_b32 v{CV+3}, 0
  v_add_u32 v{t0}, {L_CIMG}, v{vt16}""")
    a(f"  s_bitcmp1_b32 s2, 0\n  s_cbranch_scc1 K_NOZ")
    for j in range(4):
        a(f"  ds_write_b128 v{t0}, {v(CV,4)} offset:{j*8192}")
    a(f"  s_cmp_lg_u32 s{sW}, 0\n  s_cbranch_scc1 K_NOZ\n  ds_write_b128 v{t0}, {v(CV,4)} offset:32768")
    a("K_NOZ:")
    for j in range(5):
        a(f"  ds_write_b128 v{vt16}, {v(CV,4)} offset:{L_GN + j*8192}")
    a(f"""
  v_cmp_gt_u32 vcc, {(L_Q-L_GN-5*8192)//16}, v0
  s_and_saveexec_b64 {s(sEx,2)}, vcc
  ds_write_b128 v{vt16}, {v(CV,4)} offset:{L_GN + 5*8192}
  s_mov_b64 exec, {s(sEx,2)}""")
    def prefill():
        a(f"""
  v_mov_b32 v{CV+4}, {PADS}
  v_mov_b32 v{CV+5}, {PADE}
  v_mov_b32 v{CV+6}, {PADS}
  v_mov_b32 v{CV+7}, {PADE}
  ds_write_b128 v{vt16}, {v(CV+4,4)}
  ds_write_b128 v{vt16}, {v(CV+4,4)} offset:8192
  v_cmp_gt_u32 vcc, {(L_GN-16384)//16}, v0
  s_and_saveexec_b64 {s(sEx,2)}, vcc
  ds_write_b128 v{vt16}, {v(CV+4,4)} offset:16384
  s_mov_b64 exec, {s(sEx,2)}""")
    prefill()
    a(f"  s_mul_i32 s{sq}, s2, {BSTR}\n  s_lshl_b32 s{sq+1}, s{sStart}, 8\n  s_lshl_b32 s{sK}, s{sNb}, 8")
    srd(a, SC, pWS, G*CELLB // (2 if OPT['half'] == 2 else 1), add=WS_CELL, addreg=sq)
    srd(a, SP, pWS, (N+1)*256)
    srd(a, SE, pE, E*32)
    srd(a, SW, pWS, WF_SIZE, add=WS_WF)
    srd(a, SO, pO, f"s{sK}", addreg=sq+1)
    srd(a, SV, pWS, G*OVSTR, add=WS_OVF)
    a(f"""
  v_mov_b32 v{vone}, 1
  v_mov_b32 v{MAC}, 0
  v_mov_b32 v{MAC+1}, 0
  v_and_b32 v{t0}, 15, v{vl}                 ; l&15
  v_bfe_u32 v{t1}, v{vl}, 4, 1               ; r4&1
  {"v_lshlrev_b32 v%d, 3, v%d" % (t2, t1) if not OPT["smf"] else "v_lshrrev_b32 v%d, 4, v%d" % (t2, vl) + chr(10) + "  v_lshlrev_b32 v%d, 2, v%d" % (t2, t2)}
  v_xor_b32 v{t2}, v{t0}, v{t2}
  v_lshlrev_b32 v{vchunk}, 4, v{t2}
  v_and_b32 v{t2}, 1, v{vl}
  v_xor_b32 v{t2}, v{t2}, v{t1}
  v_lshlrev_b32 v{vechunk}, 4, v{t2}
  v_lshrrev_b32 v{t2}, 4, v{vl}
  v_lshlrev_b32 v{t2}, 6, v{t2}
  v_lshrrev_b32 v{t4}, 1, v{t0}
  v_lshl_add_u32 v{t2}, v{t4}, 3, v{t2}
  s_lshl_b32 s{sq}, s{sW}, 8
  v_add_u32 v{vent}, s{sq}, v{t2}
  v_bfe_u32 v{t2}, v{vl}, 2, 1               ; h
  v_and_b32 v{t4}, 1, v{vl}                  ; xy
  v_lshl_add_u32 v{t5}, v{t2}, 1, v{t4}      ; r4
  v_bfe_u32 v{t6}, v{vl}, 3, 2
  v_bfe_u32 v{t7}, v{vl}, 1, 1
  v_lshl_add_u32 v{t6}, v{t6}, 1, v{t7}      ; j
  v_lshl_add_u32 v{t7}, v{t5}, 3, v{t6}      ; q = 8 r4 + j
  v_lshlrev_b32 v{t7}, 3, v{t7}
  v_add_u32 v{vrow}, s{sq}, v{t7}
  v_lshrrev_b32 v{t7}, 5, v{vl}              ; hh
  v_mul_u32_u24 v{vAlo}, 1040, v{t6}
  v_lshl_add_u32 v{vAlo}, v{t5}, 8, v{vAlo}
  v_lshl_add_u32 v{vAlo}, v{t7}, 4, v{vAlo}
  v_add_u32 v{vAlo}, s{sStg}, v{vAlo}
  v_xor_b32 v{vAhi}, 1, v{t4}
  v_lshl_add_u32 v{vAhi}, v{vAhi}, 7, v{vAlo}
  v_lshl_add_u32 v{vAlo}, v{t4}, 7, v{vAlo}
  v_xor_b32 v{vEF}, v{t7}, v{t4}
  v_lshl_add_u32 v{vEF}, v{t6}, 1, v{vEF}
  v_lshl_add_u32 v{vEF}, v{t5}, 4, v{vEF}
  v_lshlrev_b32 v{vEF}, 4, v{vEF}
  s_add_u32 s{sq+1}, s{sStg}, 8320
  v_add_u32 v{vEF}, s{sq+1}, v{vEF}
  v_bfe_u32 v{t5}, v{vl}, 4, 1               ; o
  v_lshlrev_b32 v{t5}, 4, v{t5}
  v_mov_b32 v{t6}, 0x3f80
  v_lshlrev_b32 v{t5}, v{t5}, v{t6}
  v_cmp_eq_u32 vcc, v{t7}, v{t2}
  s_nop 1
  v_cndmask_b32 v{t5}, 0, v{t5}, vcc
  v_cmp_eq_u32 vcc, 0, v{t4}
  s_nop 1
  v_cndmask_b32 v{PAT}, 0, v{t5}, vcc
  v_cndmask_b32 v{PAT+1}, v{t5}, 0, vcc
  s_lshl_b32 s{sq}, s{sW}, 5
  s_add_u32 s{sq+1}, s{sq}, {L_GN}
  v_lshlrev_b32 v{vga}, 4, v{t7}
  v_add_u32 v{vga}, s{sq+1}, v{vga}
  v_and_b32 v{t2}, 12, v{vl}
  v_add_u32 v{vgq}, v{vga}, v{t2}
  v_and_b32 v{t2}, 3, v{vl}
  v_lshlrev_b32 v{t2}, 3, v{t2}
  v_lshl_add_u32 v{t2}, v{t1}, 5, v{t2}
  v_add_u32 v{vqlane}, {L_Q}, v{t2}
  v_and_b32 v{t2}, 31, v{vl}
  v_lshlrev_b32 v{t4}, 3, v{t2}
  v_add_u32 v{vacl}, {L_ACC}, v{t4}
  v_lshrrev_b32 v{t4}, 4, v{vl}              ; g
  v_mul_u32_u24 v{vxb}, {XS}, v{t0}
  v_lshl_add_u32 v{vxb}, v{t4}, 4, v{vxb}
  v_add_u32 v{vxb}, {L_X}, v{vxb}
  v_mul_u32_u24 v{vqw}, {QS}, v{t0}
  v_lshl_add_u32 v{vqw}, v{t4}, 3, v{vqw}
  s_add_u32 s{sq+1}, s{sq}, {L_Q}
  v_add_u32 v{vqw}, s{sq+1}, v{vqw}
  v_mul_u32_u24 v{vqa}, {2*WPITCH}, v{t4}
  v_bfe_u32 v{t5}, v{vl}, 2, 2
  v_lshl_add_u32 v{vqa}, v{t5}, 8, v{vqa}
  v_xor_b32 v{t5}, s{sW}, v{t5}
  v_lshl_add_u32 v{vqa}, v{t5}, 5, v{vqa}
  v_and_b32 v{t5}, 3, v{vl}
  v_lshl_add_u32 v{vqa}, v{t5}, 3, v{vqa}
  v_add_u32 v{vqa}, {L_WS}, v{vqa}
  v_and_b32 v{t4}, 1, v{vl}
  v_lshlrev_b32 v{t4}, 4, v{t4}
  v_lshlrev_b32 v{t4}, v{t4}, v{t6}
  v_bfe_u32 v{t5}, v{vl}, 1, 4
  v_lshlrev_b32 v{t7}, 2, v{t7}
  v_sub_u32 v{t5}, v{t5}, v{t7}""")
    if OPT["smf"]:
        a(f"""
  v_bfe_u32 v{t4}, v{vl}, 4, 1
  v_bfe_u32 v{t5}, v{vl}, 1, 1
  v_lshl_add_u32 v{t4}, v{t4}, 1, v{t5}
  v_bfe_u32 v{t5}, v{vl}, 3, 1
  v_lshrrev_b32 v{t7}, 5, v{vl}
  v_xor_b32 v{t5}, v{t5}, v{t7}
  v_lshl_add_u32 v{t4}, v{t5}, 2, v{t4}""")
        for i in range(4):
            a(f"  v_cmp_eq_u32 vcc, {i}, v{t4}\n  s_nop 1\n  v_cndmask_b32 v{I0+i}, 0, v{t6}, vcc")
        a(f"""
  v_bfe_u32 v{t4}, v{vl}, 2, 1
  v_and_b32 v{t5}, 1, v{vl}
  v_lshl_add_u32 v{t4}, v{t4}, 1, v{t5}
  v_mul_u32_u24 v{I1}, 0x5555, v{t4}
  v_bfe_u32 v{t4}, v{vl}, 2, 2
  v_mul_u32_u24 v{t5}, {4*1040}, v{t7}
  v_lshl_add_u32 v{t5}, v{t4}, 8, v{t5}
  v_subrev_u32 v{t7}, {L_Q}, v{vqlane}
  v_add3_u32 v{t5}, v{t5}, v{t7}, s{sStg}""")
        for t in range(4):
            a(f"  v_xor_b32 v{t7}, {t}, v{t4}\n  v_lshl_add_u32 v{vAT+t}, v{t7}, 6, v{t5}")
    else:
        for i in range(4):
            a(f"  v_cmp_eq_u32 vcc, {i}, v{t5}\n  s_nop 1\n  v_cndmask_b32 v{I0+i}, 0, v{t4}, vcc")
            a(f"  v_cmp_eq_u32 vcc, {8+i}, v{t5}\n  s_nop 1\n  v_cndmask_b32 v{I1+i}, 0, v{t4}, vcc")
    if not OPT["k8"]:
        a(f"  v_mov_b32 v{AQ+2}, 0\n  v_mov_b32 v{AQ+3}, 0")
        for t in range(4):
            a(f"  v_mov_b32 v{BQ+4*t+2}, 0\n  v_mov_b32 v{BQ+4*t+3}, 0")
    def prefetch():
        if not OPT["pf"]: return
        a(f"  s_mul_i32 s{sq}, s2, 40000\n  s_sub_u32 s{sq}, s{sq}, 4096\n  v_add_u32 v{t0}, s{sq}, v{vt16}")
        for j in range(10):
            a(f"  buffer_load_dwordx4 {v(DUM,4)}, v{t0}, {s(SE,4)}, 0 offen")
            if j < 9: a(f"  v_add_u32 v{t0}, 4096, v{t0}")
    def wtr(dst, ad):
        for st in range(4):
            for hf in range(2):
                a(f"  ds_read_b64_tr_b16 {v(dst+4*st+2*hf,2)}, v{ad} offset:{(8*st+hf)*WPITCH}")
    def own_x(nyounger):
        a(f"""
  v_lshrrev_b32 v{t0}, 4, v0
  v_lshl_add_u32 v{t0}, v{t0}, 5, v{vt16}
  v_add_u32 v{t0}, {L_X}, v{t0}
  s_waitcnt vmcnt({nyounger})
  ds_write_b128 v{t0}, {v(XL,4)}
  s_mov_b32 exec_lo, s{sLo2}
  s_mov_b32 exec_hi, s{sLo2}
  ds_write_b128 v{t0}, {v(XL+4,4)} offset:{32*XS}
  s_mov_b64 exec, -1""")
    a(f"""
  s_cmp_lt_u32 s{sW}, 2
  s_cselect_b32 s{sLo2}, -1, 0
  s_lshr_b32 s{sq}, s2, {1+FSH}
  s_lshl_b32 s{sq}, s{sq}, 8
  s_bfe_u32 s{sq+1}, s2, {hex((FSH<<16)|1)}
  s_lshl_b32 s{sq+1}, s{sq+1}, 2
  s_add_u32 s{sq}, s{sq}, s{sq+1}
  s_and_b32 s{sq+1}, s2, 1
  s_mul_i32 s{sq+1}, s{sq+1}, {FHALF}
  s_add_u32 s{sq}, s{sq}, s{sq+1}
  v_mul_u32_u24 v{vgn1}, {FLN*256}, v{vl}
  v_add_u32 v{vgn1}, s{sq}, v{vgn1}
  v_lshrrev_b32 v{t2}, {FSH-1}, v{vl}
  v_lshlrev_b32 v{t2}, 8, v{t2}
  v_and_b32 v{t3}, {(1<<(FSH-1))-1}, v{vl}
  v_lshl_add_u32 v{t2}, v{t3}, 3, v{t2}
  v_add_u32 v{vsrow}, s{sP}, v{t2}
  s_mov_b32 s{sK}, {NLOG2E}
  s_mov_b32 s{sK+1}, {NLOG2E}
  s_waitcnt lgkmcnt(0)
  s_add_u32 s{sTag}, s{sTag}, 1
  s_max_u32 s{sTag}, s{sTag}, 1
  s_bitcmp1_b32 s2, 0
  s_cbranch_scc1 K_GEMM
  s_cmp_ge_u32 s2, {2*G}
  s_cbranch_scc1 K_PREP
  s_mov_b32 s{sq}, {MAGIC}
  v_lshlrev_b32 v{t7}, 6, v0
  v_add_u32 v{t7}, {1<<18}, v{t7}
  s_barrier
  s_waitcnt vmcnt({5+NCC})""")
    stamp(a, 1)
    for j in range(5):
        a(f"""
  v_mul_u32_u24 v{B4+j}, s{sq}, v{DD+j}
  v_lshrrev_b32 v{B4+j}, 18, v{B4+j}
  v_and_b32 v{B4+j}, 0x3fc, v{B4+j}
  v_add_u32 v{t0+j}, {L_BCNT}, v{B4+j}
  ds_add_rtn_u32 v{RK+j}, v{t0+j}, v{vone}""")
    def claim_pair():
        a(f"  s_lshl_b32 s{sT}, s{sStart}, 8\n  s_sub_u32 s{sCnt}, {N*256}, s{sT}")
        srd(a, T1, pWS, f"s{sCnt}", add=WS_P, addreg=sT)
        a(f"""
  s_mul_i32 s{sT}, s{sW}, 2560
  v_lshl_add_u32 v{DO}, v{vl}, 7, s{sT}
  v_mov_b32 v{DO+1}, 0
  s_mov_b64 exec, 0xfffff
  buffer_atomic_or v{DO+1}, v{DO}, {s(T1,4)}, 0 offen
  s_mov_b64 exec, -1""")
    if OPT["claim"] & 16: claim_pair()
    a(f"  s_waitcnt vmcnt({NCC + (1 if OPT['claim'] & 16 else 0)})")
    if OPT["claim"] & 8: claim_pair()
    for j in range(5):
        a(f"""
  v_lshl_add_u32 v{SS_+j}, v{SS_+j}, 18, v{t7}
  v_and_or_b32 v{SS_+j}, v{DD+j}, 63, v{SS_+j}
  v_lshlrev_b32 v{CA+j}, 5, v{B4+j}
  v_add_u32 v{CA+j}, {L_CIMG}, v{CA+j}""")
        if j < 4: a(f"  v_add_u32 v{t7}, {512<<6}, v{t7}")
    srd(a, T2, pWS, NB*BSTR if not OPT["dbg"] & 4 else 0, add=WS_CELL + (0x2000000 if OPT["dbg"] & 1 else 0))
    a(f"""
  v_lshrrev_b32 v{t4}, 3, v0
  s_mov_b32 s{sq}, {BSTR}
  v_mul_u32_u24 v{t4}, s{sq}, v{t4}
  v_and_b32 v{t5}, 7, v0
  v_lshl_add_u32 v{t4}, v{t5}, 4, v{t4}
  s_lshl_b32 s{sq}, s2, {5 if OPT['half'] == 2 else 6}
  s_mov_b64 {s(sBad,2)}, 0
  s_waitcnt lgkmcnt(0)""")
    for j in range(5):
        a(f"""
  v_mul_u32_u24 v{t1}, 37, v{RK+j}
  v_lshl_add_u32 v{t0}, v{RK+j}, 2, v{CA+j}
  v_lshrrev_b32 v{t1}, 8, v{t1}
  v_cmp_le_u32 vcc, {CAP-1}, v{RK+j}
  v_lshl_add_u32 v{t0}, v{t1}, 2, v{t0}
  s_or_b64 {s(sBad,2)}, {s(sBad,2)}, vcc
  s_andn2_b64 exec, exec, vcc
  ds_write_b32 v{t0}, v{SS_+j}
  s_mov_b64 exec, -1""")
    a(f"""
  v_add_u32 v{t0}, {L_CIMG}, v{vt16}
  v_mov_b32 v{t2}, {L_FLG+4}
  s_cmp_eq_u64 {s(sBad,2)}, 0
  s_cbranch_scc1 K_NOFULL
  ds_write_b32 v{t2}, v{vone}
K_NOFULL:
  s_waitcnt lgkmcnt(0)
  s_barrier""")
    stamp(a, 2)
    a(f"  ds_read_b32 v{t2}, v{t2}\nK_OVFDONE:")
    for j in range(4):
        a(f"  ds_read_b128 {v(CP+4*j,4)}, v{t0} offset:{8192*j}")
    a(f"""
  s_waitcnt vmcnt({2 if OPT['claim'] & 2 else 63}) lgkmcnt(4)
  v_cmp_ne_u32 vcc, 0, v{t2}
  s_cbranch_vccnz K_OVF""")
    for j in range(4):
        a(f"""
  s_mov_b32 exec_lo, 0xaaaaaaaa
  s_mov_b32 exec_hi, 0xaaaaaaaa
  s_waitcnt lgkmcnt({3-j})
  v_mov_b32 v{CP+4*j+3}, s{sTag}
  s_mov_b64 exec, -1
  {"s_mov_b32 exec_lo, 0x0f0f0f0f" + chr(10) + "  s_mov_b32 exec_hi, 0x0f0f0f0f" if OPT["half"] else ""}
  buffer_store_dwordx4 {v(CP+4*j,4)}, v{t4}, {s(T2,4)}, s{sq} offen {STF}
  s_mov_b64 exec, -1
  s_add_u32 s{sq}, s{sq}, {64*BSTR}""")
    a(f"  s_lshl_b32 s{sq}, s{sStart}, 8\n  s_lshl_b32 s{sq+1}, s{sNb}, 8")
    srd(a, T2, pX, f"s{sq+1}", addreg=sq)
    a(f"""
  v_add_u32 v{t6}, 8192, v{vt16}
  buffer_load_dwordx4 {v(XL,4)}, v{vt16}, {s(T2,4)}, 0 offen
  buffer_load_dwordx4 {v(XL+4,4)}, v{t6}, {s(T2,4)}, 0 offen""")
    own_x(0)
    a(f"""
  {"s_sleep %d" % OPT["slpa"] if OPT["slpa"] else ""}""")
    def spf(n, per_wave, base):
        if not n: return
        assert 8*OPT['spf'] + 4*OPT['spfb'] <= 640
        a(f"""
  s_lshr_b32 s{sq}, s2, 1
  s_min_u32 s{sq}, s{sq}, {G-1}
  s_mul_i32 s{sq}, s{sq}, {CH*32}
  s_mul_i32 s{sq+1}, s{sW}, {per_wave}
  s_add_u32 s{sq}, s{sq}, s{sq+1}
  s_add_u32 s{sq}, s{sq}, {base}
  s_add_u32 s{T0}, s{pE}, s{sq}
  s_addc_u32 s{T0+1}, s{pE+1}, 0""")
        for i in range(n):
            a(f"  s_load_dword s{T0+2}, s[{T0}:{T0+1}], {128*i}")
    spf(OPT["spf"], OPT["spf"]*128, 0)
    a(f"""
  s_branch K_PST
K_GW:
  {"s_sleep %d" % OPT["slpb"] if OPT["slpb"] else ""}""")
    spf(OPT["spfb"], OPT["spfb"]*128, OPT["spf"]*1024)
    a(f"""
  s_branch K_PST
K_GEMM:
  ; ---------------- P gemm role: rows of this bucket and the one before ----------------""")
    if OPT["touch"]:
        a(f"""
  s_cmp_lg_u32 s{sW}, 0
  s_cbranch_scc1 K_NOTOUCH
  s_waitcnt vmcnt(0)
  s_mov_b64 exec, {FMASK}
  buffer_load_dword v{DUM}, v{vgn1}, {s(SF,4)}, 0 offen sc1
  s_mov_b64 exec, -1
K_NOTOUCH:""")
    a(f"""
  s_mul_i32 s{sq}, s{sNp}, {XS}
  s_sub_u32 s{sq}, {L_X}, s{sq}
  v_lshrrev_b32 v{t0}, 4, v0
  v_lshl_add_u32 v{t0}, v{t0}, 5, v{vt16}
  v_add_u32 v{t3}, s{sq}, v{t0}
  s_cmp_lt_u32 s{sW}, 4
  s_cselect_b32 s{sq+1}, -1, 0
  v_subrev_u32 v{t1}, {L_X}, v{vxb}
  v_add_u32 v{t1}, s{sq}, v{t1}
  s_waitcnt vmcnt({(2 if OPT['wfirst'] else 6)+NCL})
  ds_write_b128 v{t3}, {v(GX,4)}
  s_waitcnt vmcnt({(1 if OPT['wfirst'] else 5)+NCL})
  ds_write_b128 v{t3}, {v(GX+4,4)} offset:{32*XS}
  s_waitcnt vmcnt({(0 if OPT['wfirst'] else 4)+NCL})
  s_mov_b32 exec_lo, s{sq+1}
  s_mov_b32 exec_hi, s{sq+1}
  ds_write_b128 v{t3}, {v(GX+8,4)} offset:{64*XS}
  s_mov_b64 exec, -1
  v_and_b32 v{t2}, 15, v{vl}
  v_mul_u32_u24 v{t2}, {XS}, v{t2}
  v_lshrrev_b32 v{t3}, 4, v{vl}
  v_lshl_add_u32 v{t2}, v{t3}, 3, v{t2}
  s_lshl_b32 s{sq}, s{sW}, 5
  s_add_u32 s{sq}, s{sq}, {L_GP}
  v_add_u32 v{t2}, s{sq}, v{t2}
  v_add_u32 v{t0}, {L_GP - 16*XS}, v{t0}
  v_subrev_u32 v{t4}, 4096, v{vt16}""")
    srd(a, T0, pWS, f"s{sCnt}", add=WS_P + (0x2800000 if OPT["dbg"] & 2 else 0), addreg=sT)
    a(f"  s_waitcnt vmcnt({NCL}) lgkmcnt(0)\n  s_barrier")
    stamp(a, 1)
    wtr(W1F, vqa)
    XT = [PF, PF+16, EA, EB, PF]
    for nt in range(4):
        for st in range(4):
            a(f"  ds_read_b128 {v(XT[nt]+4*st,4)}, v{t1} offset:{nt*16*XS + st*64}")
    for nt in range(5):
        a(f"  s_waitcnt lgkmcnt({(12, 12, 8, 4, 0)[nt]})")
        for st in range(4):
            c = "0" if st == 0 else v(D0+4*nt, 4)
            a(f"  v_mfma_f32_16x16x32_bf16 {v(D0+4*nt,4)}, {v(W1F+4*st,4)}, {v(XT[nt]+4*st,4)}, {c}")
        if nt == 0:
            for st in range(4):
                a(f"  ds_read_b128 {v(PF+4*st,4)}, v{t1} offset:{4*16*XS + st*64}")
    for nt in range(5):
        d = D0 + 4*nt
        if nt == 4: a("  s_nop 1")
        a(f"""
  v_pk_mul_f32 {v(d,2)}, {v(d,2)}, {s(sK,2)}
  v_pk_mul_f32 {v(d+2,2)}, {v(d+2,2)}, {s(sK,2)}
  v_cvt_pk_bf16_f32 v{W3+2*nt}, v{d}, v{d+1}
  v_cvt_pk_bf16_f32 v{W3+2*nt+1}, v{d+2}, v{d+3}
  ds_write_b64 v{t2}, {v(W3+2*nt,2)} offset:{nt*16*XS}""")
    a(f"  s_waitcnt vmcnt({NA}) lgkmcnt(0)\n  s_barrier")
    stamp(a, 2)
    a(f"""
  s_cmp_lt_u32 s{sW}, 4
  s_cbranch_scc1 K_GW""")
    for j in range(5):
        a(f"  ds_read_b128 {v(PF+4*j,4)}, v{t0} offset:{j*16*XS}")
    if OPT["zt"]:
        srd(a, T1, pWS, f"s{sCnt}", add=0x1800000, addreg=sT)
        a(f"  s_waitcnt lgkmcnt(0)\n  v_mov_b32 v{t1}, v{t4}")
        for j in range(5):
            a(f"  buffer_store_dwordx4 {v(PF+4*j,4)}, v{t1}, {s(T1,4)}, 0 offen {STF}\n  v_add_u32 v{t1}, 4096, v{t1}")
        a("  s_waitcnt vmcnt(0)")
        stamp(a, 1)
    for j in range(5):
        a(f"  s_waitcnt lgkmcnt({4-j})\n  buffer_store_dwordx4 {v(PF+4*j,4)}, v{t4}, {s(T0,4)}, 0 offen {STF}")
        if j < 4: a(f"  v_add_u32 v{t4}, 4096, v{t4}")
    a(f"""
  v_mov_b32 v{t0}, {L_FLG+12}
  v_mov_b32 v{t7}, s{sTag}
""")
    if OPT["early"]:
        a(f"""
  s_sleep {OPT["early"]}
  v_min_u32 v{t4}, 2, v{vl}
  s_lshl_b32 s{sq}, s2, 7
  v_lshl_add_u32 v{t4}, v{t4}, 2, s{sq}
  buffer_load_dwordx4 {v(REC,4)}, v{vcell}, {s(SC,4)}, 0 offen sc1
  buffer_load_dwordx4 {v(REC+4,4)}, v{vcell}, {s(SC,4)}, 0 offen offset:64 sc1
  {"buffer_load_dword v%d, v%d, %s, 0 offen sc1" % (t5, t4, s(SF,4)) if not OPT["s0m"] else ""}
  s_mov_b32 s{sKind}, 9""")
    a(f"""
  s_mov_b64 exec, 1
  s_waitcnt vmcnt({(2 if OPT["s0m"] else 3) if OPT["early"] else 0})""")
    stamp(a, 3)
    a(f"""
  ds_add_rtn_u32 v{t0}, v{t0}, v{vone}
  s_waitcnt lgkmcnt(0)
  v_readfirstlane_b32 s{sOV+5}, v{t0}
  s_mov_b64 exec, -1
  s_cmp_lg_u32 s{sOV+5}, 3
  s_cbranch_scc1 K_PST
K_FLAG:
  s_mov_b64 exec, {FMASK}
  buffer_store_dword v{t7}, v{vgn1}, {s(SF,4)}, 0 offen {FLF}
  s_mov_b64 exec, -1
K_PST:""")
    def node_gemm(WA, WB=None):
        for nt in range(3):
            xf = XF + 16*(nt & 1)
            if nt == 0:
                for n2 in range(2):
                    for st in range(4):
                        a(f"  ds_read_b128 {v(XF+16*n2+4*st,4)}, v{vxb} offset:{n2*16*XS + st*64}")
            a(f"  s_waitcnt lgkmcnt({4 if nt == 0 else 5 if nt == 1 else 1})")
            q = QD if nt != 1 else SA
            for st in range(4):
                c = "0" if st == 0 else v(q, 4)
                a(f"  v_mfma_f32_16x16x32_bf16 {v(q,4)}, {v(WA+4*st,4)}, {v(xf+4*st,4)}, {c}")
            if WB is not None:
                for st in range(4):
                    c = "0" if st == 0 else v(U+4*nt, 4)
                    a(f"  v_mfma_f32_16x16x32_bf16 {v(U+4*nt,4)}, {v(WB+4*st,4)}, {v(xf+4*st,4)}, {c}")
            if nt == 0:
                for st in range(4):
                    a(f"  ds_read_b128 {v(XF+4*st,4)}, v{vxb} offset:{2*16*XS + st*64}")
            a(f"""
  s_nop 7
  v_pk_mul_f32 {v(q,2)}, {v(q,2)}, {s(sK,2)}
  v_pk_mul_f32 {v(q+2,2)}, {v(q+2,2)}, {s(sK,2)}
  v_cvt_pk_bf16_f32 v{QD+4+2*(nt&1)}, v{q}, v{q+1}
  v_cvt_pk_bf16_f32 v{QD+5+2*(nt&1)}, v{q+2}, v{q+3}""")
            if nt == 2:
                a(f"  s_mov_b32 exec_lo, 0x00ff00ff\n  s_mov_b32 exec_hi, 0x00ff00ff")
            a(f"  ds_write_b64 v{vqw}, {v(QD+4+2*(nt&1),2)} offset:{nt*16*QS}")
            if nt == 2:
                a("  s_mov_b64 exec, -1")
    assert SB == SA + 2
    def poll(lab, off):
        a(f"""
  s_cmp_lg_u32 s{sW}, 1
  s_cbranch_scc1 {lab}_D
  s_mov_b32 s{sq}, 0
  s_mov_b32 s{sq+1}, {off}
  v_min_u32 v{t0}, 2, v{vl}
  s_lshl_b32 s{sBad}, s2, 7
  v_lshl_add_u32 v{t0}, v{t0}, 2, s{sBad}
{lab}:
  buffer_load_dwordx2 {v(DUM,2)}, v{vsrow}, {s(SF,4)}, s{sq+1} offen {PLF}
  buffer_load_dword v{DUM+2}, v{t0}, {s(SF,4)}, 0 offen {PLF}
  s_add_u32 s{sq}, s{sq}, 1
  s_waitcnt vmcnt(0)
  v_cmp_ne_u32 vcc, s{sTag}, v{DUM}
  v_cmp_ne_u32 {s(sBad,2)}, s{sTag}, v{DUM+1}
  s_or_b64 vcc, vcc, {s(sBad,2)}
  v_cmp_ne_u32 {s(sBad,2)}, s{sTag}, v{DUM+2}
  s_or_b64 vcc, vcc, {s(sBad,2)}
  s_cbranch_scc0 {lab}_D
  {"s_sleep %d" % OPT["slp"] if OPT["slp"] else ""}
  s_cmp_lt_u32 s{sq}, 0x8000
  s_cbranch_scc1 {lab}
{lab}_D:""")
    stamp(a, 5)
    nld = 16 if OPT["lo"] else 12
    a(f"""
  s_lshl_b32 s{sTmp}, s{sW}, 12
  s_add_u32 s{sTmp+1}, s{sTmp}, {WF_UT}
  s_add_u32 s{sUB}, s{sTmp}, {WF_UB}
  s_mov_b32 s{sTmp+2}, {WF_3H}
  s_mov_b32 s{sTmp+3}, {WF_3L}
  s_mov_b32 s{sOV}, {0xaaaaaaaa if not OPT["dbg"] & 5 else 0}
  s_cmp_eq_u32 s{sW}, 7
  s_cselect_b32 s{sOV+1}, {0xaaaaa if not OPT["dbg"] & 5 else 0}, s{sOV}
  v_min_u32 v{t4}, 2, v{vl}
  s_lshl_b32 s{sq}, s2, 7
  v_lshl_add_u32 v{t4}, v{t4}, 2, s{sq}
  s_mov_b32 s{sq}, 0
  {"s_sleep %d" % OPT["slp0"] if OPT["slp0"] else ""}
""")
    wl = [f"  buffer_load_dwordx4 {v(W2F+4*st,4)}, v{vgl}, {s(SW,4)}, s{sTmp} offen offset:{st*1024} sc1" for st in range(4)]
    wl += [f"  buffer_load_dwordx4 {v(WUT+4*st,4)}, v{vgl}, {s(SW,4)}, s{sTmp+1} offen offset:{st*1024} sc1" for st in range(4)]
    wl += [f"  buffer_load_dwordx4 {v(W3+4*st,4)}, v{vgl}, {s(SW,4)}, s{sTmp+2} offen offset:{st*1024} sc1" for st in range(4)]
    if OPT["lo"]:
        wl += [f"  buffer_load_dwordx4 {v(W3L+4*st,4)}, v{vgl}, {s(SW,4)}, s{sTmp+3} offen offset:{st*1024} sc1" for st in range(4)]
    a(f"""
  v_lshlrev_b32 v{vgl}, 4, v{vl}
  s_mov_b32 s{sOV+6}, 0
  {"s_cmp_eq_u32 s%d, 9" % sKind + chr(10) + "  s_mov_b32 s%d, 0" % sKind + chr(10) + "  s_cbranch_scc1 K_CPOLLW" if OPT["early"] else ""}
K_CPOLL:
  buffer_load_dwordx4 {v(REC,4)}, v{vcell}, {s(SC,4)}, 0 offen sc1
  buffer_load_dwordx4 {v(REC+4,4)}, v{vcell}, {s(SC,4)}, 0 offen offset:64 sc1
  {"buffer_load_dword v%d, v%d, %s, 0 offen sc1" % (t5, t4, s(SF,4)) if not OPT["s0m"] else ""}
  s_add_u32 s{sq}, s{sq}, 1
  s_waitcnt vmcnt(0)
K_CPOLLC:
  v_cmp_ne_u32 vcc, s{sTag}, v{REC+3}
  v_cmp_ne_u32 {s(sBad,2)}, s{sTag}, v{REC+7}
  s_or_b64 {s(sBad,2)}, vcc, {s(sBad,2)}
  {"v_cmp_ne_u32 %s, s%d, v%d" % (s(sOV+2,2), sTag, t5) if not OPT["s0m"] else "s_mov_b64 %s, -1" % s(sOV+2,2)}
  s_and_b64 {s(sBad,2)}, {s(sBad,2)}, {s(sOV,2)}
  {"s_or_b64 %s, %s, %s" % (s(sBad,2), s(sBad,2), s(sOV+2,2)) if OPT["gate"] else ""}
  s_cbranch_scc1 K_CAGAIN""")
    rare.append(f"""
K_CPOLLW:
  s_waitcnt vmcnt(1)
  s_cmp_eq_u32 s{sOV+5}, 3
  s_cbranch_scc1 K_CPOLLC
  s_waitcnt vmcnt(0)
  s_branch K_CPOLLC
K_CAGAIN:
  s_cmp_lg_u64 {s(sOV+2,2)}, 0
  s_cbranch_scc1 K_CA2
  s_cmp_lg_u32 s{sOV+6}, 0
  s_cbranch_scc1 K_CA2
  s_mov_b32 s{sOV+6}, 1
""" + "\n".join(wl) + f"""
K_CA2:
  {"s_sleep %d" % OPT["slp"] if OPT["slp"] else ""}
  s_cmp_lt_u32 s{sq}, 0x8000
  s_cbranch_scc1 K_CPOLL
  s_branch K_CPOLLD""")
    a(f"""
K_CPOLLD:
  {"v_mov_b32 v%d, v%d" % (DK+2, t4) + chr(10) + "  buffer_load_dword v%d, v%d, %s, 0 offen sc1" % (DK+1, t4, s(SF,4)) if OPT["s0m"] else ""}
  s_mov_b32 exec_lo, 0xaaaaaaaa
  s_mov_b32 exec_hi, 0xaaaaaaaa
  v_mov_b32 v{REC+3}, 0
  v_mov_b32 v{REC+7}, 0
  s_mov_b64 exec, -1""")
    stamp(a, 6)
    NR = 8
    a(f"""
K_PHASE1:
  v_cmp_le_u32 vcc, 0xfffc0000, v{REC+NR-2}
  s_cbranch_vccnz K_MARK
K_NOMARK:""")
    rare.append(f"""
K_MARK:
  s_and_saveexec_b64 {s(sEx,2)}, vcc
  v_lshrrev_b32 v{t0}, 2, v0                 ; producer
  v_lshrrev_b32 v{t1}, 5, v{t0}
  v_lshlrev_b32 v{t1}, 2, v{t1}
  v_lshlrev_b32 v{t0}, v{t0}, v{vone}
  ds_or_b32 v{t1}, v{t0} offset:{L_FLG+32}
  v_mov_b32 v{REC+NR-2}, 0
  s_mov_b64 exec, {s(sEx,2)}
  s_branch K_NOMARK""")
    for k in range(NR):
        if k == 4:
            a(f"""
  v_or3_b32 v{t3}, v{REC+k}, v{REC+k+1}, v{REC+k+2}
  v_or_b32 v{t3}, v{t3}, v{REC+k+3}
  v_cmp_ne_u32 vcc, 0, v{t3}
  s_cbranch_vccz K_P1E""")
        a(f"""
  v_lshlrev_b32 v{NOD+k}, 2, v{REC+k}
  v_and_b32 v{NOD+k}, 0xfc, v{NOD+k}
  v_cmpx_ne_u32 vcc, 0, v{REC+k}
  ds_add_rtn_u32 v{RNK+k}, v{NOD+k}, v{vone} offset:{L_CNT}
  s_mov_b64 exec, -1""")
    a(f"""
K_P1E:
  s_cmp_lg_u32 s{sOV+6}, 0
  s_cbranch_scc1 K_NOWL
  s_cmp_lg_u64 {s(sOV+2,2)}, 0
  s_cbranch_scc1 K_NOWL
  s_mov_b32 s{sOV+6}, 1""")
    if OPT["stamp"] and OPT["s0st"]: a("  s_memrealtime s[86:87]")
    for x in wl: a(x)
    a(f"""
K_NOWL:
  v_lshlrev_b32 v{t0}, 2, v{vl}
  v_subrev_u32 v{t4}, s{sStart}, v{vl}
  v_and_b32 v{t4}, 63, v{t4}
  s_waitcnt lgkmcnt(0)""")
    fstamp(a, 1)
    a(f"""
  s_barrier""")
    fstamp(a, 2)
    a(f"""
  ds_read_b32 v{t1}, v{t0} offset:{L_CNT}
  s_waitcnt lgkmcnt(0)
  v_add_u32 v{t1}, 3, v{t1}
  v_bfe_u32 v{t5}, v{t1}, 2, 1               ; left-over quad
  v_lshrrev_b32 v{t6}, 3, v{t1}
  v_lshl_or_b32 v{t1}, v{t5}, 16, v{t6}
  v_mov_b32 v{t2}, v{t1}
  s_nop 1
  v_add_u32_dpp v{t2}, v{t2}, v{t2} row_shr:1 row_mask:0xf bank_mask:0xf
  s_nop 1
  v_add_u32_dpp v{t2}, v{t2}, v{t2} row_shr:2 row_mask:0xf bank_mask:0xf
  s_nop 1
  v_add_u32_dpp v{t2}, v{t2}, v{t2} row_shr:4 row_mask:0xf bank_mask:0xf
  s_nop 1
  v_add_u32_dpp v{t2}, v{t2}, v{t2} row_shr:8 row_mask:0xf bank_mask:0xf
  s_nop 1
  v_add_u32_dpp v{t2}, v{t2}, v{t2} row_bcast:15 row_mask:0xa bank_mask:0xf
  s_nop 1
  v_add_u32_dpp v{t2}, v{t2}, v{t2} row_bcast:31 row_mask:0xc bank_mask:0xf
  s_nop 1
  v_readlane_b32 s{sT}, v{t2}, 63
  v_sub_u32 v{t1}, v{t2}, v{t1}
  s_lshr_b32 s{sq+1}, s{sT}, 16
  s_and_b32 s{sCO}, s{sT}, 0xffff
  s_lshl_b32 s{sq}, s{sCO}, 1                ; quads in the groups of eight
  s_lshr_b32 s{sCO}, s{sCO}, 2
  s_add_u32 s{sT}, s{sq}, s{sq+1}
  s_add_u32 s{sT}, s{sT}, 7
  s_lshr_b32 s{sT}, s{sT}, 3
  v_lshrrev_b32 v{t2}, 16, v{t1}
  v_add_u32 v{t2}, s{sq}, v{t2}              ; quad slot of the left-over quad
  v_and_b32 v{t1}, 0xffff, v{t1}
  v_lshl_or_b32 v{t0}, v{t6}, 16, v{t1}
  v_lshlrev_b32 v{t0}, 3, v{t0}              ; 8*start8 | 8*n8 << 16
  v_lshlrev_b32 v{t7}, 1, v{t6}
  v_sub_u32 v{t7}, v{t2}, v{t7}
  v_lshlrev_b32 v{t7}, 2, v{t7}              ; position base of the left-over quad
  s_cmp_gt_u32 s{sT}, {CAPB}
  s_cbranch_scc1 K_SPLIT""")
    fstamp(a, 3)
    def bp(ks):
        for k in ks:
            a(f"  ds_bpermute_b32 v{PF+16+k}, v{NOD+k}, v{t7}")
            a(f"  ds_bpermute_b32 v{NOD+k}, v{NOD+k}, v{t0}")
    def ent(ks):
        for k in ks:
            e = PF + 2*k
            a(f"""
  v_lshrrev_b32 v{e}, 10, v{REC+k}
  v_and_b32 v{e}, {hex(0xffffff00 if not OPT['hot'] else 0x1f00)}, v{e}
  v_bfe_u32 v{e+1}, v{REC+k}, 6, 12
  v_lshl_add_u32 v{e+1}, v{e+1}, 5, v{vebase}""")
    def put(ks):
        for k in ks:
            a(f"  v_cmp_lt_u32_sdwa {s(8+2*(k&3),2)}, v{RNK+k}, v{NOD+k} src0_sel:DWORD src1_sel:WORD_1")
        for k in ks:
            a(f"  v_and_b32 v{NOD+k}, 0xffff, v{NOD+k}")
        for k in ks:
            a(f"  v_cndmask_b32 v{NOD+k}, v{PF+16+k}, v{NOD+k}, {s(8+2*(k&3),2)}")
        for k in ks:
            a(f"""
  v_add_lshl_u32 v{NOD+k}, v{NOD+k}, v{RNK+k}, 3
  v_cmpx_ne_u32 vcc, 0, v{REC+k}
  ds_write_b64 v{NOD+k}, {v(PF+2*k,2)}
  s_mov_b64 exec, -1""")
    bp(range(4))
    a(f"""
  v_or3_b32 v{t3}, v{REC+4}, v{REC+5}, v{REC+6}
  v_or_b32 v{t3}, v{t3}, v{REC+7}
  v_cmp_ne_u32 {s(sK2,2)}, 0, v{t3}
  s_cmp_eq_u64 {s(sK2,2)}, 0
  s_cbranch_scc1 K_P2A""")
    bp(range(4, 8))
    ent(range(4, 8))
    a("K_P2A:")
    if OPT["s0m"]:
        a(f"""
  s_cmp_lg_u32 s{sOV+6}, 0
  s_cbranch_scc1 K_S0A
  s_waitcnt vmcnt(0)
  v_cmp_ne_u32 vcc, s{sTag}, v{DK+1}
  s_cbranch_vccnz K_S0AX
  s_mov_b32 s{sOV+6}, 1""")
        for x in wl: a(x)
        a("K_S0A:")
        rare.append(f"K_S0AX:\n  buffer_load_dword v{DK+1}, v{DK+2}, {s(SF,4)}, 0 offen sc1\n  s_branch K_S0A")
    ent(range(4))
    a(f"""
  v_lshlrev_b32 v{t2}, 2, v{t2}
  v_add_lshl_u32 v{t3}, v{t1}, v{t6}, 3
  v_lshl_add_u32 v{t1}, v{t1}, 1, s{sW}
  v_lshlrev_b32 v{t1}, 2, v{t1}
  s_waitcnt lgkmcnt(0)""")
    put(range(4))
    a(f"  s_cmp_eq_u64 {s(sK2,2)}, 0\n  s_cbranch_scc1 K_P2E")
    put(range(4, 8))
    a("K_P2E:")
    fstamp(a, 5)
    a(f"""
  v_cmpx_ne_u32 vcc, 0, v{t5}
  ds_write_b32 v{t2}, v{t4} offset:{L_GN}
  s_mov_b64 exec, -1
K_GNL:
  v_cmpx_lt_u32 vcc, v{t1}, v{t3}
  ds_write_b32 v{t1}, v{t4} offset:{L_GN}
  v_add_u32 v{t1}, 32, v{t1}
  v_cmpx_lt_u32 vcc, v{t1}, v{t3}
  ds_write_b32 v{t1}, v{t4} offset:{L_GN}
  v_add_u32 v{t1}, 32, v{t1}
  v_cmpx_lt_u32 vcc, v{t1}, v{t3}
  s_cbranch_execnz K_GNL
  s_mov_b64 exec, -1
  s_add_u32 s{sCnt}, s{sT}, 7
  s_sub_u32 s{sCnt}, s{sCnt}, s{sW}
  s_lshr_b32 s{sCnt}, s{sCnt}, 3
  s_add_u32 s{sCO}, s{sCO}, 7
  s_sub_u32 s{sCO}, s{sCO}, s{sW}
  s_lshr_b32 s{sCO}, s{sCO}, 3
  {("s_mov_b32 s%d, 40" % sCnt + chr(10) + "  s_movk_i32 s%d, 320" % sT + chr(10) + "  s_mov_b32 s%d, 40" % sCO) if OPT["bench"] else ""}
""")
    stamp(a, 4)
    if OPT["s0m"]:
        a(f"""
  s_cmp_lg_u32 s{sOV+6}, 0
  s_cbranch_scc1 K_S0B
  s_waitcnt vmcnt(0)
  v_cmp_ne_u32 vcc, s{sTag}, v{DK+1}
  s_cbranch_vccnz K_S0BX
  s_mov_b32 s{sOV+6}, 1""")
        for x in wl: a(x)
        a("K_S0B:")
        rare.append(f"K_S0BX:\n  s_nop 0\n  s_branch K_S0B")
    a(f"""
  s_cmp_eq_u32 s{sFirst}, 0
  s_cbranch_scc1 K_POLL2_D""")
    poll("K_POLL2", FHALF)
    a("  s_waitcnt lgkmcnt(0)\n  s_barrier")
    stamp(a, 7)
    dsc = " sc1" if OPT["dsc"] else ""
    def dma_issue():
        L = []
        for j in range(8):
            d = DO + (j & 1)
            L.append([f"  s_add_u32 m0, s{sStg}, {j*1040}",
                      f"  v_add_u32_dpp v{d}, v{ENT}, v{vchunk} row_newbcast:{2*j} row_mask:0xf bank_mask:0xf",
                      f"  buffer_load_dwordx4 v{d}, {s(SP,4)}, 0 offen{dsc} lds" if not OPT["nodma"] else "  s_nop 0"])
        L.append([f"  s_add_u32 m0, s{sStg}, 8320",
                  f"  v_add_u32 v{DO}, v{ENT+1}, v{vechunk}",
                  f"  buffer_load_dwordx4 v{DO}, {s(SE,4)}, 0 offen lds" if not (OPT["nodma"] or OPT["noe"]) else "  s_nop 0"])
        return L
    ndma = 0 if OPT["nodma"] else 8 if OPT["noe"] else 9
    def frag_reads():
        if OPT["smf"]:
            L = [f"  ds_read_b64_tr_b16 {v(PF+8*t+2*q,2)}, v{vAT+t} offset:{1040*q}" for t in range(4) for q in range(4)]
            L.insert(4, f"  ds_read_b128 {v(EF,4)}, v{vEF}")
            return L
        L = []
        for st in range(8):
            L.append(f"  ds_read_b128 {v(PF+4*st,4)}, v{vAlo if st < 4 else vAhi} offset:{32*(st&3)}")
        L.insert(2, f"  ds_read_b128 {v(EF,4)}, v{vEF}")
        return L
    def bq_reads():
        return [f"  ds_read_b64_tr_b16 {v(BQ+nq*t,2)}, v{vqa} offset:{64*t}" for t in range(4)]
    def chain(t, D):
        L = [f"  v_mfma_f32_32x32x16_bf16 {v(D,16)}, {v(EF,4)}, {v(W3+4*t,4)}, 0"]
        if OPT["lo"]:
            L.append(f"  v_mfma_f32_32x32x16_bf16 {v(D,16)}, {v(EF,4)}, {v(W3L+4*t,4)}, {v(D,16)}")
        if OPT["smf"]:
            L.append(f"  v_smfmac_f32_32x32x32_bf16 {v(D,16)}, {v(I0,4)}, {v(PF+8*t,8)}, v{I1}")
        else:
            L.append(f"  v_mfma_f32_32x32x16_bf16 {v(D,16)}, {v(PF+8*t,4)}, {v(I0,4)}, {v(D,16)}")
            L.append(f"  v_mfma_f32_32x32x16_bf16 {v(D,16)}, {v(PF+8*t+4,4)}, {v(I1,4)}, {v(D,16)}")
        if OPT["k8"]:
            L.append(f"  v_mfma_f32_32x32x8bf16_1k {v(D,16)}, {v(AQ,2)}, {v(BQ+2*t,2)}, {v(D,16)}")
        else:
            L.append(f"  v_mfma_f32_32x32x16_bf16 {v(D,16)}, {v(AQ,4)}, {v(BQ+4*t,4)}, {v(D,16)}")
        return L

    if OPT["stag"]:
        a(f"  s_cmp_lt_u32 s{sW}, 4\n  s_cbranch_scc1 K_STG\n  s_sleep {OPT['stag']}\nK_STG:")
    if OPT["idle"]: a(f"  s_sleep {OPT['idle']}")
    a(f"  ds_read_b64 {v(ENT,2)}, v{vent}")
    if OPT["ord"]:
        a(f"  s_lshr_b32 s{sq}, s{sW}, 2\n  s_and_b32 s{sK2}, s{sq}, s{sFirst}\n  s_cbranch_scc1 K_DLATER")
    a("  s_waitcnt lgkmcnt(0)")
    for x in dma_issue(): a("\n".join(x))
    a(f"""
  ds_read_b64 {v(ENT,2)}, v{vent} offset:2048
  s_cmp_eq_u32 s{sFirst}, 0
  s_cbranch_scc1 K_NOGEMM0
  s_cmp_eq_u32 s{sOV+6}, 0
  s_cbranch_scc1 K_WLATE
  s_waitcnt vmcnt({ndma}) lgkmcnt(0)
K_WOK:
  s_mov_b32 s{sFirst}, 0""")
    rare.append(f"K_WLATE:\n  s_mov_b32 s{sOV+6}, 1\n" + "\n".join(wl) + "\n  s_waitcnt vmcnt(0) lgkmcnt(0)\n  s_branch K_WOK")
    rare.append(f"K_DLATER:\n  s_cmp_eq_u32 s{sOV+6}, 0\n  s_cbranch_scc1 K_WLATE\n  s_waitcnt vmcnt(0) lgkmcnt(0)\n  s_branch K_WOK")
    node_gemm(W2F, WUT)
    if OPT["ord"]:
        a(f"  s_cmp_eq_u32 s{sK2}, 0\n  s_cbranch_scc1 K_DDONE")
        for x in dma_issue(): a("\n".join(x))
        a(f"  ds_read_b64 {v(ENT,2)}, v{vent} offset:2048\nK_DDONE:")
    for st in range(4):
        a(f"  buffer_load_dwordx4 {v(WUB+4*st,4)}, v{vgl}, {s(SW,4)}, s{sUB} offen offset:{st*1024} sc1")
    def pf5():
        a(f"  s_mul_i32 s{sq}, s2, 40000\n  v_add_u32 v{t0}, s{sq}, v{vt16}")
        for j in range(5):
            a(f"  buffer_load_dwordx4 {v(DUM,4)}, v{t0}, {s(SE,4)}, 0 offen")
            if j < 4: a(f"  v_add_u32 v{t0}, 8192, v{t0}")
    if OPT["pf2"] == 1: pf5()
    a(f"""
  s_or_b32 s{sq}, s2, s{sW}
  s_cmp_lg_u32 s{sq}, 0
  s_cbranch_scc1 K_NONONCE
  s_mov_b64 exec, 1
  v_mov_b32 v{t0}, {FNON}
  v_mov_b32 v{t1}, s{sTag}
  buffer_store_dword v{t1}, v{t0}, {s(SF,4)}, 0 offen
  s_mov_b64 exec, -1
  s_waitcnt vmcnt(0)
K_NONONCE:
  s_waitcnt lgkmcnt(0)
  s_barrier
K_NOGEMM:
  ds_read_b32 v{vgn1}, v{vgq}
  ds_read_b32 v{vsrow}, v{vrow}
  ds_read_b128 {v(GN,4)}, v{vga}
  s_waitcnt vmcnt({9 if OPT["pf2"] == 1 else 4})""")
    stamp(a, 8, 96)
    for x in frag_reads(): a(x)
    a(f"""
  s_waitcnt lgkmcnt({9 if not OPT['smf'] else 15})
  v_mad_u32_u24 v{vqa}, v{vgn1}, s{sQS}, v{vqlane}
  v_lshrrev_b64 {v(AQ,2)}, v{vsrow}, {v(PAT,2)}""")
    for x in bq_reads(): a(x)
    a("  s_waitcnt lgkmcnt(0)")
    for x in dma_issue(): a("\n".join(x))
    if OPT["pf2"] == 2: pf5()
    if OPT["idle2"]: a(f"  s_sleep {OPT['idle2']}")
    for x in chain(0, D0): a(x)
    if OPT["prio"]:
        a(f"  s_cmp_lt_u32 s{sW}, 4\n  s_cbranch_scc1 K_PR\n  s_setprio 1\nK_PR:")
    a(f"""
  s_nop 7
  s_nop 3
  s_cmp_eq_u32 s{sCnt}, 0
  s_cbranch_scc1 K_LOOPEND
  s_cmp_lg_u32 s{sMode}, 0
  s_cbranch_scc1 K_SAFE
  {"s_branch K_QUAD" if not OPT["octo"] else ""}
  s_sub_u32 s{sCnt}, s{sCnt}, s{sCO}
  s_cmp_eq_u32 s{sCO}, 0
  s_cbranch_scc1 K_QUAD""")

    def p(r): return v(r, 2)
    def octet_fast(d, e, t, r, sres):
        ex = [f"  v_exp_f32 v{e+i}, v{d+i}" for i in range(8)]
        L = [f"  v_pk_add_f32 {p(t)}, {p(e)}, 1.0 op_sel_hi:[1,0]",
             f"  v_pk_add_f32 {p(t+2)}, {p(e+4)}, 1.0 op_sel_hi:[1,0]",
             f"  v_pk_fma_f32 {p(t+4)}, {p(d)}, {p(e+2)}, {p(d)}",
             f"  v_pk_fma_f32 {p(t+6)}, {p(d+4)}, {p(e+6)}, {p(d+4)}",
             f"  v_pk_fma_f32 {p(e)}, {p(t)}, {p(e+2)}, {p(t)}",
             f"  v_pk_fma_f32 {p(e+4)}, {p(t+2)}, {p(e+6)}, {p(t+2)}",
             f"  v_pk_fma_f32 {p(t+4)}, {p(d+2)}, {p(t)}, {p(t+4)}",
             f"  v_pk_fma_f32 {p(t+6)}, {p(d+6)}, {p(t+2)}, {p(t+6)}",
             f"  v_pk_mul_f32 {p(t)}, {p(e)}, {p(e+4)}",
             f"  v_pk_mul_f32 {p(t+4)}, {p(t+4)}, {p(e+4)}",
             f"  v_rcp_f32 v{r}, v{t}",
             f"  v_rcp_f32 v{r+1}, v{t+1}",
             f"  v_pk_fma_f32 {p(t+4)}, {p(t+6)}, {p(e)}, {p(t+4)}",
             f"  v_pk_mul_f32 {p(sres)}, {p(t+4)}, {p(r)}"]
        return ex, L
    def octet_safe(d, e, t, r, sres):
        ex = [f"  v_exp_f32 v{e+i}, v{d+i}" for i in range(8)]
        L = [f"  v_pk_add_f32 {p(e+2*i)}, {p(e+2*i)}, 1.0 op_sel_hi:[1,0]" for i in range(4)]
        L += [f"  v_rcp_f32 v{t+i}, v{e+i}" for i in range(8)]
        L += [f"  v_pk_mul_f32 {p(sres)}, {p(d)}, {p(t)}"]
        L += [f"  v_pk_fma_f32 {p(sres)}, {p(d+2*i)}, {p(t+2*i)}, {p(sres)}" for i in range(1, 4)]
        return ex, L
    def zipl(x, y):
        o = []
        for i in range(max(len(x), len(y))):
            if i < len(x): o.append(x[i])
            if i < len(y): o.append(y[i])
        return o
    def adds(t, kind):
        if OPT["noadd"]: return [f"  ds_read_b32 v{DUM}, v{vgq}"] * (2 if kind == "octo" else 4)
        if kind == "octo": return [f"  ds_add_f64 v{AD+2*xy}, {v(CV+2*xy,2)} offset:{256*t}" for xy in range(2)]
        return [f"  ds_add_f64 v{AD+2*xy+o}, {v(CV+2*(2*o+xy),2)} offset:{256*t}" for o in range(2) for xy in range(2)]
    def block_body(kind, u, nun):
        oc = octet_safe if kind == "safe" else octet_fast
        nadd = 2 if kind == "octo" else 4
        B = []
        for t in range(4):
            D = D0 if t % 2 == 0 else D1
            Dn = D1 if t % 2 == 0 else D0
            exa, La = oc(D, EA, TA, RA, SA)
            exb, Lb = oc(D+8, EB, TB, RB, SB)
            ex = exa + exb
            ch = chain((t+1) % 4, Dn)
            late = []
            if kind == "octo" and OPT["seq"]:
                dk = DK + 2*(t & 1)
                E_ = lambda i: p(EA+2*i) if i < 4 else p(EB+2*(i-4))
                def run(i0, n, Dr, Nr, Tr, Dlast):
                    L = [f"  v_pk_add_f32 {p(Dr)}, {E_(i0)}, 1.0 op_sel_hi:[1,0]"]
                    cur = p(D+2*i0)
                    for i in range(i0+1, i0+n):
                        L.append(f"  v_pk_fma_f32 {p(Tr)}, {cur}, {E_(i)}, {cur}")
                        nd = Dlast if i == i0+n-1 else (Dr ^ 2)
                        L.append(f"  v_pk_fma_f32 {p(nd)}, {p(Dr)}, {E_(i)}, {p(Dr)}")
                        L.append(f"  v_pk_fma_f32 {p(Nr)}, {p(D+2*i)}, {p(Dr)}, {p(Tr)}")
                        Dr = nd; cur = p(Nr)
                    return L
                assert TA % 4 == 0 and TB % 4 == 0
                if OPT["seq"] == 1:
                    pk = run(0, 8, TA, TA+4, TA+6, dk)
                    pk = pk[:-1] + [f"  v_rcp_f32 v{RA}, v{dk}", f"  v_rcp_f32 v{RA+1}, v{dk+1}"] + pk[-1:]
                    if t & 1: pk.append(f"  v_pk_fma_f32 {p(MAC)}, {p(DK)}, {p(DK+2)}, {p(MAC)}")
                    else: pk.append("  s_nop 0")
                    pk.append(f"  v_pk_mul_f32 {p(SA)}, {p(TA+4)}, {p(RA)}")
                else:
                    pk = zipl(run(0, 4, TA, TA+4, TA+6, RB), run(4, 4, TB, TB+4, TB+6, SB))
                    pk = pk[:-2] + [f"  v_pk_mul_f32 {p(dk)}, {p(RB)}, {p(SB)}"] + pk[-2:] + \
                         [f"  v_rcp_f32 v{RA}, v{dk}", f"  v_rcp_f32 v{RA+1}, v{dk+1}",
                          f"  v_pk_mul_f32 {p(TA+4)}, {p(TA+4)}, {p(SB)}"]
                    if t & 1: pk.append(f"  v_pk_fma_f32 {p(MAC)}, {p(DK)}, {p(DK+2)}, {p(MAC)}")
                    pk += [f"  v_pk_fma_f32 {p(TA+4)}, {p(TB+4)}, {p(RB)}, {p(TA+4)}",
                           f"  v_pk_mul_f32 {p(SA)}, {p(TA+4)}, {p(RA)}"]
                fin = [f"  v_cvt_f64_f32 {v(CV+2*xy,2)}, v{SA+xy}" for xy in range(2)]
                adr = (0, 2)
            elif kind == "octo":
                keep = lambda L: [x for x in L[:-1] if "v_rcp" not in x]
                dk = DK + 2*(t & 1)
                pk = zipl(keep(La), keep(Lb))
                pk = pk[:-4] + [f"  v_pk_mul_f32 {p(dk)}, {p(TA)}, {p(TB)}"] + pk[-4:-2] + \
                     [f"  v_rcp_f32 v{RA}, v{dk}", f"  v_rcp_f32 v{RA+1}, v{dk+1}"] + pk[-2:] + \
                     [f"  v_pk_mul_f32 {p(TA+4)}, {p(TA+4)}, {p(TB)}"]
                if t & 1: pk.append(f"  v_pk_fma_f32 {p(MAC)}, {p(DK)}, {p(DK+2)}, {p(MAC)}")
                pk += [f"  v_pk_fma_f32 {p(TA+4)}, {p(TB+4)}, {p(TA)}, {p(TA+4)}",
                       f"  v_pk_mul_f32 {p(SA)}, {p(TA+4)}, {p(RA)}"]
                fin = [f"  v_cvt_f64_f32 {v(CV+2*xy,2)}, v{SA+xy}" for xy in range(2)]
                adr = (0, 2)
            else:
                pk = zipl(La, Lb)
                if kind == "quad":
                    idx = max(i for i, x in enumerate(pk) if x.startswith(f"  v_pk_mul_f32 {p(TB)}, {p(EB)}"))
                    pk.insert(idx+1, f"  v_pk_fma_f32 {p(MAC)}, {p(TA)}, {p(TB)}, {p(MAC)}")
                fin = [f"  v_cvt_f64_f32 {v(CV+2*(2*o+xy),2)}, v{S+xy}" for o, S in ((0, SA), (1, SB)) for xy in range(2)]
                adr = range(4)
            fin += adds(t, kind)
            if t == 0:
                pk = pk[:4] + [f"  v_mad_u32_u24 v{AD+i}, v{GN+i}, s{sAS}, v{vacl}" for i in adr] + pk[4:]
            if t == 1:
                pk = pk[:8] + [f"  ds_read_b64 {v(ENT,2)}, v{vent} offset:{4096+2048*u}",
                      f"  ds_read_b32 v{vgn1}, v{vgq} offset:{256+256*u}",
                      f"  ds_read_b32 v{vsrow}, v{vrow} offset:{2048+2048*u}",
                      f"  ds_read_b128 {v(GN,4)}, v{vga} offset:{256+256*u}"] + pk[8:]
            if t == 3:
                B.append(f"  s_waitcnt lgkmcnt({nadd})")
            dma = dma_issue() if t == 3 else []
            per = 16 // len(ch); e = 0
            for i, m in enumerate(ch):
                B.append(m)
                n = per if i < len(ch)-1 else 16 - e
                B += ex[e:e+2]
                if late: B.append(late.pop(0))
                B += ex[e+2:e+n]; e += n
                if OPT["dmapos"] == 0:
                    for _ in range(2):
                        if dma: B += dma.pop(0)
            if t == 2:
                mid = [f"  s_waitcnt vmcnt(0) lgkmcnt({nadd})",
                       f"  v_mad_u32_u24 v{vqa}, v{vgn1}, s{sQS}, v{vqlane}"]
                rd = frag_reads() + bq_reads()
                aq = [f"  v_lshrrev_b64 {v(AQ,2)}, v{vsrow}, {v(PAT,2)}"]
                if OPT["rdgap"] == 0: B += mid + rd + aq + pk
                else:
                    q = []
                    for i, x in enumerate(aq + pk):
                        if rd and i % OPT["rdgap"] == 0: q.append(rd.pop(0))
                        q.append(x)
                    B += mid + q + rd
            elif t == 3:
                inc = []
                if u == nun - 1 and OPT["bench"]:
                    inc = [f"  v_add_u32 v{DUM+i}, {2048*nun}, v{vent}" for i in range(4)]
                elif u == nun - 1:
                    inc = incs(nun)
                pk = pk + inc
                if OPT["dmapos"] == 1:
                    q = []
                    for i, x in enumerate(pk):
                        if dma and i % 3 == 0: q += dma.pop(0)
                        q.append(x)
                    pk = q
                for x in dma: B += x
                B += pk
            else:
                B += pk
            B += fin
        return B
    def incs(n):
        return [f"  v_add_u32 v{vent}, {2048*n}, v{vent}", f"  v_add_u32 v{vrow}, {2048*n}, v{vrow}",
                f"  v_add_u32 v{vgq}, {256*n}, v{vgq}", f"  v_add_u32 v{vga}, {256*n}, v{vga}"]
    def loop(kind):
        lab = {"safe": "K_SAFE", "quad": "K_QUAD", "octo": "K_FAST"}[kind]
        nun = OPT["unroll"] if kind == "octo" else 1
        cnt = sCO if kind == "octo" else sCnt
        L = []
        for u in range(nun):
            L += block_body(kind, u, nun)
            L.append(f"  s_sub_u32 s{cnt}, s{cnt}, 1")
            L.append(f"  s_cmp_lg_u32 s{cnt}, 0")
            L.append(f"  s_cbranch_scc1 {lab}" if u == nun - 1 else f"  s_cbranch_scc0 K_OX{u}")
        ab = OPT["abl"]
        if ab & 1: L = [x for x in L if not ("v_mfma" in x and (f", {v(I0,4)}," in x or f", {v(I1,4)}," in x))]
        if ab & 2: L = [x for x in L if "v_mfma_f32_32x32x8" not in x and "tr_b16" not in x]
        if ab & 4: L = [x.replace("v_exp_f32", "v_mov_b32") for x in L]
        if ab & 8: L = [x for x in L if "v_pk_" not in x]
        if ab & 16: L = [x for x in L if "v_mfma" not in x]
        if ab & 32: L = [x for x in L if "ds_read_b128" not in x]
        if ab & 64: L = [x for x in L if "v_exp" not in x]
        if ab & 128:
            M = []
            for x in L:
                if "v_mfma" in x and f", {v(I1,4)}," in x: continue
                if "v_mfma" in x and f", {v(I0,4)}," in x:
                    m = re.match(r"\s*v_mfma_f32_32x32x16_bf16 (v\[\d+:\d+\]), v\[(\d+):", x)
                    M.append(f"  v_smfmac_f32_32x32x32_bf16 {m.group(1)}, {v(I0,4)}, {v(int(m.group(2)),8)}, v{vone}"); continue
                m = re.match(r"\s*ds_read_b128 v\[(\d+):\d+\], v(\d+) offset:(\d+)", x)
                if m and PF <= int(m.group(1)) < PF + 32:
                    r0 = int(m.group(1))
                    M.append(f"  ds_read_b64_tr_b16 {v(r0,2)}, v{vqa} offset:{m.group(3)}")
                    M.append(f"  ds_read_b64_tr_b16 {v(r0+2,2)}, v{vqa} offset:{int(m.group(3))+128}"); continue
                M.append(x)
            L = M
        if ab & 256:
            M = []
            for x in L:
                if "v_mfma" in x and (f", {v(I1,4)}," in x or f", {v(I0,4)}," in x): continue
                if "v_mfma_f32_32x32x16" in x and x.rstrip().endswith(", 0"): x = x.rstrip()[:-1] + v(PF, 16)
                m = re.match(r"\s*ds_read_b128 v\[(\d+):\d+\], v(\d+) offset:(\d+)", x)
                if m and PF <= int(m.group(1)) < PF + 32:
                    for q in range(8): M.append(f"  ds_read_u16_d16_hi v{PF+(int(m.group(1))+q)%32}, v{vacl} offset:{64*q}")
                    continue
                M.append(x)
            L = M
        if OPT["align"]: L = align8(L)
        a(f".p2align 6\n{lab}:")
        for x in L: a(x)
    loop("octo")
    a(f"""
K_OXE:
  s_cmp_lg_u32 s{sCnt}, 0
  s_cbranch_scc1 K_QUAD""")
    a(f"""
K_LOOPEND:""")
    a(f"""
  s_waitcnt vmcnt(0) lgkmcnt(0)
  s_barrier""")
    stamp(a, 9, 98)
    a(f"""
  s_cmp_lg_u32 s{sKind}, 0
  s_cbranch_scc1 K_NEXT
K_CELLSDONE:
  v_mov_b32 v{t0}, {L_FLG+32}
  ds_read_b128 {v(CV,4)}, v{t0}
K_CONV:
  s_mul_i32 s{sTmp}, s{sW}, {AS}
  s_add_u32 s{sTmp}, s{sTmp}, {L_ACC}
  v_lshlrev_b32 v{t1}, 4, v{vl}
  v_add_u32 v{t1}, s{sTmp}, v{t1}""")
    for k in range(5):
        a(f"  ds_read_b128 {v(D0+4*k,4)}, v{t1} offset:{k*8*AS}")
    a(f"""
  s_mul_i32 s{sTmp}, s{sW}, {XS}
  s_add_u32 s{sTmp}, s{sTmp}, {L_X}
  v_lshlrev_b32 v{t2}, 2, v{vl}
  v_add_u32 v{t2}, s{sTmp}, v{t2}
  s_cmp_ge_u32 s{sKind}, 3
  s_cbranch_scc1 K_CONV2
  s_waitcnt lgkmcnt(5)
  v_or3_b32 v{t0}, v{CV}, v{CV+1}, v{CV+2}
  v_or_b32 v{t0}, v{t0}, v{CV+3}
  v_cmp_ne_u32 vcc, 0, v{t0}
  s_cbranch_vccnz K_STARTOV
K_CONV2:
  s_mov_b32 s{sTmp}, 0x71800000              ; 2^100
  v_cmp_nle_f32 {s(sBad,2)}, v{MAC}, s{sTmp}
  v_cmp_nle_f32 vcc, v{MAC+1}, s{sTmp}
  s_or_b64 {s(sBad,2)}, {s(sBad,2)}, vcc
  s_movk_i32 s{sTmp}, 0x207""")
    for k in range(5):
        a(f"""
  s_waitcnt lgkmcnt(4)
  v_cvt_f32_f64 v{EA+2*k}, {v(D0+4*k,2)}
  v_cvt_f32_f64 v{EA+2*k+1}, {v(D0+4*k+2,2)}
  v_cvt_pk_bf16_f32 v{EB+k}, v{EA+2*k}, v{EA+2*k+1}
  ds_write_b32 v{t2}, v{EB+k} offset:{k*8*XS}""")
    a(f"  v_pk_mul_f32 {p(RA)}, {p(EA)}, 0 op_sel_hi:[1,0]")
    for k in range(1, 5):
        a(f"  v_pk_fma_f32 {p(RA)}, {p(EA+2*k)}, 0, {p(RA)} op_sel_hi:[1,0,1]")
    a(f"""
  v_add_f32 v{RA}, v{RA}, v{RA+1}
  v_cmp_class_f32 vcc, v{RA}, s{sTmp}
  s_or_b64 {s(sBad,2)}, {s(sBad,2)}, vcc""")
    a(f"""
  s_cmp_eq_u64 {s(sBad,2)}, 0
  s_cbranch_scc1 K_OKW
  v_mov_b32 v{t0}, {L_FLG}
  ds_write_b32 v{t0}, v{vone}
K_OKW:
  s_waitcnt lgkmcnt(0)
  s_barrier
  v_mov_b32 v{t0}, {L_FLG}
  ds_read_b32 v{t0}, v{t0}""")
    for nt in range(2):
        for st in range(4):
            a(f"  ds_read_b128 {v(XF+16*nt+4*st,4)}, v{vxb} offset:{nt*16*XS + st*64}")
    a(f"""
  s_waitcnt lgkmcnt(8)
  v_readfirstlane_b32 s{sTmp}, v{t0}
  s_cmp_gt_u32 s{sTmp}, s{sMode}
  {"s_cbranch_scc1 K_RESTART" if not EXP else "s_nop 0"}
  s_waitcnt lgkmcnt(4)""")
    for st in range(4):
        c = "0" if st == 0 else v(D0, 4)
        a(f"  v_mfma_f32_16x16x32_bf16 {v(D0,4)}, {v(WUB+4*st,4)}, {v(XF+4*st,4)}, {c}")
    for st in range(4):
        a(f"  ds_read_b128 {v(D1+4*st,4)}, v{vxb} offset:{2*16*XS + st*64}")
    a("  s_waitcnt lgkmcnt(4)")
    for st in range(4):
        c = "0" if st == 0 else v(D0+4, 4)
        a(f"  v_mfma_f32_16x16x32_bf16 {v(D0+4,4)}, {v(WUB+4*st,4)}, {v(XF+16+4*st,4)}, {c}")
    a("  s_waitcnt lgkmcnt(0)")
    for st in range(4):
        c = "0" if st == 0 else v(D0+8, 4)
        a(f"  v_mfma_f32_16x16x32_bf16 {v(D0+8,4)}, {v(WUB+4*st,4)}, {v(D1+4*st,4)}, {c}")
    a(f"""
  s_mov_b32 s{sK}, {NLN2}
  s_mov_b32 s{sK+1}, {NLN2}
  s_mov_b32 s{sTmp}, {NLOG2E}
  s_mov_b32 s{sTmp+1}, {NLOG2E}
  v_and_b32 v{t0}, 15, v{vl}
  v_lshlrev_b32 v{t0}, 8, v{t0}
  v_lshrrev_b32 v{t1}, 4, v{vl}
  v_lshl_add_u32 v{t0}, v{t1}, 3, v{t0}
  s_lshl_b32 s{sTmp+2}, s{sW}, 5
  v_add_u32 v{t0}, s{sTmp+2}, v{t0}
  v_add_u32 v{t1}, 4096, v{t0}
  v_add_u32 v{t2}, 8192, v{t0}""")
    for nt in range(3):
        d = D0 + 4*nt
        a(f"""
  v_pk_fma_f32 {p(d)}, {p(d)}, {s(sK,2)}, {p(U+4*nt)}
  v_pk_fma_f32 {p(d+2)}, {p(d+2)}, {s(sK,2)}, {p(U+4*nt+2)}
  v_pk_mul_f32 {p(EA)}, {p(d)}, {s(sTmp,2)}
  v_pk_mul_f32 {p(EA+2)}, {p(d+2)}, {s(sTmp,2)}""")
        for i in range(4): a(f"  v_exp_f32 v{EA+i}, v{EA+i}")
        a(f"  s_nop 0\n  v_pk_add_f32 {p(EA)}, {p(EA)}, 1.0 op_sel_hi:[1,0]\n  v_pk_add_f32 {p(EA+2)}, {p(EA+2)}, 1.0 op_sel_hi:[1,0]")
        for i in range(4): a(f"  v_rcp_f32 v{EA+i}, v{EA+i}")
        a(f"""
  s_nop 0
  v_pk_mul_f32 {p(d)}, {p(d)}, {p(EA)}
  v_pk_mul_f32 {p(d+2)}, {p(d+2)}, {p(EA+2)}
  v_cvt_pk_bf16_f32 v{EB+2*nt}, v{d}, v{d+1}
  v_cvt_pk_bf16_f32 v{EB+2*nt+1}, v{d+2}, v{d+3}
  buffer_store_dwordx2 {v(EB+2*nt,2)}, v{t0+nt}, {s(SO,4)}, 0 offen""")
    if OPT["stamp"]:
        a(f"""
  s_waitcnt vmcnt(0)
  s_memrealtime s[4:5]
  s_waitcnt lgkmcnt(0)
  s_lshl_b32 s6, s2, 3
  s_add_u32 s6, s6, s{sW}
  s_lshl_b32 s6, s6, 6
  s_add_u32 s6, s6, {WS_STAMP}
  s_add_u32 s6, s{pWS}, s6
  s_addc_u32 s7, s{pWS+1}, 0
  s_mov_b64 exec, 1
  v_mov_b32 v1, 0""")
        for i, r in enumerate([80+2*i for i in range(8)] + [96, 98, 4]):
            pass
        regs = [80, 82, 84, 86, 88, 90, 92, 94, 8, 9, 4, 10, 11, sT]
        for i, r in enumerate(regs):
            a(f"  v_mov_b32 v2, s{r}\n  global_store_dword v1, v2, s[6:7] offset:{4*i}")
    a(f"""
K_END:
  s_endpgm
""")
    a(f"""
K_PREP:
  s_sub_u32 s{sq}, s2, {2*G}
  s_lshl_b32 s{sq}, s{sq}, 14
  s_lshl_b32 s{sq+1}, s{sW}, 12
  s_add_u32 s{sq}, s{sq}, s{sq+1}
  v_lshlrev_b32 v{t0}, 4, v{vl}
  v_mov_b32 v{t7}, s{sTag}
  s_waitcnt vmcnt({10+NA})
  s_barrier""")
    wtr(PF, vqa)
    a("  s_waitcnt lgkmcnt(0)")
    for st in range(4):
        a(f"  buffer_store_dwordx4 {v(PF+4*st,4)}, v{t0}, {s(SW,4)}, s{sq} offen offset:{st*1024} sc1")
    a(f"""
  s_lshr_b32 s{sq}, s{sW}, 2
  s_add_u32 s{sq}, s{sq}, s2
  s_cmp_lg_u32 s{sq}, {2*G}
  s_cbranch_scc1 K_PREPD
  s_mov_b32 s{sq+1}, {NLOG2E}
  s_lshl_b32 s{sq}, s{sW}, 10
  s_waitcnt vmcnt({6+NA})""")
    for jj in range(8):
        a(f"  v_lshlrev_b32 v{D0+jj}, 16, v{D0+jj}\n  v_mul_f32 v{D0+jj}, s{sq+1}, v{D0+jj}")
    for i in range(4):
        a(f"  v_cvt_pk_bf16_f32 v{D0+8+i}, v{D0+2*i}, v{D0+1+2*i}")
    for i in range(4):
        a(f"""
  v_lshlrev_b32 v{t2}, 16, v{D0+8+i}
  v_and_b32 v{t3}, 0xffff0000, v{D0+8+i}
  v_sub_f32 v{t2}, v{D0+2*i}, v{t2}
  v_sub_f32 v{t3}, v{D0+1+2*i}, v{t3}
  v_cvt_pk_bf16_f32 v{D0+12+i}, v{t2}, v{t3}""")
    a(f"""
  s_add_u32 s{sq+1}, s{sq}, {WF_3L}
  s_add_u32 s{sq}, s{sq}, {WF_3H}
  buffer_store_dwordx4 {v(D0+8,4)}, v{t0}, {s(SW,4)}, s{sq} offen sc1
  buffer_store_dwordx4 {v(D0+12,4)}, v{t0}, {s(SW,4)}, s{sq+1} offen sc1
K_PREPD:""")
    own_x(4+NA)
    a(f"""
  s_sub_u32 s{sq}, s2, {2*G}
  s_lshl_b32 s{sq}, s{sq}, 1
  v_lshl_add_u32 v{t0}, v0, 7, s{sq}
  s_waitcnt vmcnt(0)
  s_barrier
  s_cmp_ge_u32 s{sW}, 4
  s_cbranch_scc1 K_PST
  buffer_store_dword v{t7}, v{t0}, {s(SF,4)}, 0 offen {FLF}
  s_branch K_PST""")
    a(f"""
K_OVF:
  s_waitcnt lgkmcnt(0)
  s_barrier
  s_mul_i32 s{sq+1}, s2, {OVSTR//2}
  s_add_u32 s{sq+1}, s{sq+1}, 64
  v_mov_b32 v{t5}, {L_FLG+8}
  v_mov_b32 v{t6}, -1""")
    for j in range(5):
        a(f"""
  v_cmp_le_u32 vcc, {CAP-1}, v{RK+j}
  s_and_b64 exec, exec, vcc
  s_cbranch_execz K_OV{j}
  v_add_u32 v{t1}, {L_BCNT}, v{B4+j}
  ds_read_b32 v{t1}, v{t1}
  s_waitcnt lgkmcnt(0)
  v_cmp_ne_u32 vcc, {CAP}, v{t1}
  s_nop 1
  v_cndmask_b32 v{t3}, v{SS_+j}, v{t6}, vcc
  ds_write_b32 v{CA+j}, v{t3} offset:{CELLB-8}
  s_and_b64 exec, exec, vcc
  s_cbranch_execz K_OV{j}
  ds_add_rtn_u32 v{t1}, v{t5}, v{vone}
  v_mov_b32 v{CV}, v{SS_+j}
  v_lshrrev_b32 v{CV+1}, 2, v{B4+j}
  s_waitcnt lgkmcnt(0)
  v_lshl_add_u32 v{t1}, v{t1}, 3, s{sq+1}
  buffer_store_dwordx2 {v(CV,2)}, v{t1}, {s(SV,4)}, 0 offen sc1
  s_waitcnt vmcnt(0)
K_OV{j}:
  s_mov_b64 exec, -1""")
    a(f"""
  s_waitcnt lgkmcnt(0)
  s_barrier
  ds_read_b32 v{t1}, v{t5}
  s_sub_u32 s{sq+1}, s{sq+1}, 64
  v_mov_b32 v{t3}, s{sq+1}
  v_mov_b32 v{t2}, 0
  s_waitcnt lgkmcnt(0)
  buffer_store_dword v{t1}, v{t3}, {s(SV,4)}, 0 offen sc1
  s_waitcnt vmcnt(0)
  s_branch K_OVFDONE""")
    for u in range(OPT["unroll"] - 1):
        a(f"K_OX{u}:\n  s_cmp_eq_u32 s{sCnt}, 0\n  s_cbranch_scc1 K_LOOPEND")
        for x in incs(u + 1): a(x)
        a("  s_branch K_QUAD")
    loop("quad")
    a("  s_branch K_LOOPEND")
    a("K_TEXTEND:")
    loop("safe")
    a("  s_branch K_LOOPEND")
    a(f"""
""")
    for x in rare: a(x)
    a(f"""
K_NOGEMM0:
  s_waitcnt vmcnt(0)
  s_branch K_NOGEMM
K_RESTART:
  s_mov_b32 s{sMode}, 1
  s_mov_b32 s{sKind}, 0
  s_waitcnt lgkmcnt(0)
  s_barrier
  v_mov_b32 v{CV}, 0
  v_mov_b32 v{CV+1}, 0
  v_mov_b32 v{CV+2}, 0
  v_mov_b32 v{CV+3}, 0""")
    for j in range(5):
        a(f"  ds_write_b128 v{vt16}, {v(CV,4)} offset:{L_ACC + j*8192}")
    a(f"""
  v_cmp_gt_u32 vcc, {(40*AS-5*8192)//16}, v0
  s_and_saveexec_b64 {s(sEx,2)}, vcc
  ds_write_b128 v{vt16}, {v(CV,4)} offset:{L_ACC + 5*8192}
  s_mov_b64 exec, {s(sEx,2)}
  s_branch K_RELOAD
K_SPLIT:
  s_mov_b32 s{sKind}, 1
  s_waitcnt lgkmcnt(0)
  s_barrier
  s_branch K_RELOAD
K_NEXT:
  s_cmp_eq_u32 s{sKind}, 4
  s_cbranch_scc1 K_NEXTOV
  s_cmp_eq_u32 s{sKind}, 3
  s_cbranch_scc1 K_OVPART1
  s_cmp_eq_u32 s{sKind}, 2
  s_cbranch_scc1 K_CELLSDONE
  s_mov_b32 s{sKind}, 2
K_RELOAD:
  v_lshrrev_b32 v{t1}, 2, v0
  s_mov_b32 s{sq}, {CH*32}
  v_mul_u32_u24 v{vebase}, s{sq}, v{t1}
  s_waitcnt vmcnt(0)""")
    for k in range(2):
        a(f"  buffer_load_dwordx4 {v(REC+4*k,4)}, v{vcell}, {s(SC,4)}, 0 offen offset:{64*k} sc1")
    a(f"""
  s_waitcnt vmcnt(0)
  s_mov_b32 exec_lo, 0xaaaaaaaa
  s_mov_b32 exec_hi, 0xaaaaaaaa
  v_mov_b32 v{REC+3}, 0
  v_mov_b32 v{REC+7}, 0
  s_mov_b64 exec, -1
  s_cmp_eq_u32 s{sKind}, 0
  s_cbranch_scc1 K_ROUND
  s_lshr_b32 s{sq}, s{sW}, 2
  s_add_u32 s{sq}, s{sq}, 1
  s_cmp_eq_u32 s{sq}, s{sKind}
  s_cbranch_scc1 K_ROUND""")
    for k in range(NR): a(f"  v_mov_b32 v{REC+k}, 0")
    a(f"""
K_ROUND:
  v_mov_b32 v{CV}, 0
  v_mov_b32 v{CV+1}, 0
  v_mov_b32 v{CV+2}, 0
  v_mov_b32 v{CV+3}, 0
  v_cmp_gt_u32 vcc, {(L_FLG-L_GN)//16}, v0
  s_and_saveexec_b64 {s(sEx,2)}, vcc
  ds_write_b128 v{vt16}, {v(CV,4)} offset:{L_GN}
  s_mov_b64 exec, {s(sEx,2)}""")
    prefill()
    a(f"""
  v_and_b32 v{vent}, 2047, v{vent}
  v_and_b32 v{vrow}, 2047, v{vrow}
  v_subrev_u32 v{vga}, {L_GN}, v{vga}
  v_and_b32 v{vga}, 255, v{vga}
  v_add_u32 v{vga}, {L_GN}, v{vga}
  v_and_b32 v{t2}, 12, v{vl}
  v_add_u32 v{vgq}, v{vga}, v{t2}
  s_waitcnt lgkmcnt(0)
  s_barrier
  s_branch K_PHASE1
K_STARTOV:""")
    for i in range(4): a(f"  v_readfirstlane_b32 s{sOV+i}, v{CV+i}")
    a(f"""
  s_mov_b32 s{sKind}, 4
  s_waitcnt lgkmcnt(0)
K_NEXTOV:""")
    for i in range(2):
        a(f"""
  s_ff1_i32_b64 s{sP}, {s(sOV+2*i,2)}
  s_cmp_eq_u32 s{sP}, -1
  s_cbranch_scc1 K_OVN{i}
  s_bitset0_b64 {s(sOV+2*i,2)}, s{sP}
  s_add_u32 s{sP}, s{sP}, {64*i}
  s_branch K_OVGO
K_OVN{i}:""")
    a(f"""
  s_branch K_CONV
K_OVGO:
  s_mov_b32 s{sKind}, 3
  v_mov_b32 v{t4}, v0
  s_branch K_OVLD
K_OVPART1:
  s_mov_b32 s{sKind}, 4
  v_add_u32 v{t4}, 2048, v0
K_OVLD:
  s_mul_i32 s{sq}, s{sP}, {OVSTR}
  s_mul_i32 s{sq+1}, s{sP}, {CH*32}
  v_mov_b32 v{vebase}, s{sq+1}
  v_mov_b32 v{t0}, s{sq}
  buffer_load_dword v{t1}, v{t0}, {s(SV,4)}, 0 offen sc1
  v_lshl_add_u32 v{t2}, v{t4}, 3, v{t0}""")
    for k in range(4):
        a(f"  buffer_load_dwordx2 {v(PF+2*k,2)}, v{t2}, {s(SV,4)}, 0 offen offset:64 sc1\n  v_add_u32 v{t2}, 4096, v{t2}")
    a(f"  s_waitcnt vmcnt(0)")
    for k in range(4):
        a(f"""
  v_cmp_lt_u32 vcc, v{t4}, v{t1}
  v_cmp_eq_u32 {s(sEx,2)}, s2, v{PF+2*k+1}
  s_and_b64 vcc, vcc, {s(sEx,2)}
  v_add_u32 v{t4}, 512, v{t4}
  s_nop 1
  v_cndmask_b32 v{REC+k}, 0, v{PF+2*k}, vcc""")
    for k in range(4, NR): a(f"  v_mov_b32 v{REC+k}, 0")
    a("  s_branch K_ROUND")
    return a.text(), nv, NS

def gen_diag(idx):
    a = Asm()
    a(f"""
.globl mpnn_d_kernel
.p2align 8
.type mpnn_d_kernel,@function
mpnn_d_kernel:
  s_cmp_ge_u32 s2, 1
  s_cbranch_scc1 D_END
  s_load_dwordx2 s[4:5], s[0:1], 64
  s_waitcnt lgkmcnt(0)
  s_add_u32 s4, s4, {WS_STAMP + (OPT['wsb'] << 20)}
  s_addc_u32 s5, s5, 0
  s_load_dword s6, s[4:5], 0
  s_waitcnt lgkmcnt(0)
  s_sub_u32 s6, s6, 100000""")
    for q, (ix, ismax) in enumerate(((idx, 1), (0, 0))):
        op = "max" if ismax else "min"
        a(f"  v_lshlrev_b32 v1, {6 if not OPT['dodd'] else 10}, v0\n  v_add_u32 v1, {ix*4 + (512 + 64*(OPT['dodd']-1) if OPT['dodd'] else 0)}, v1\n  v_mov_b32 v3, {0 if ismax else -1}")
        nk = 32 if not OPT['dodd'] else 2
        for k in range(nk):
            a(f"  global_load_dword v{8+k}, v1, s[4:5]\n  v_add_u32 v1, {4096 if not OPT['dodd'] else 65536}, v1")
        a("  s_waitcnt vmcnt(0)")
        for k in range(nk):
            a(f"  v_subrev_u32 v2, s6, v{8+k}\n  v_{op}_u32 v3, v3, v2")
        a(f"  s_mov_b32 s{20+q}, {0 if ismax else -1}\n  s_nop 1")
        for l in range(64):
            a(f"  v_readlane_b32 s8, v3, {l}\n  s_nop 0\n  s_{op}_u32 s{20+q}, s{20+q}, s8")
    a(f"""
  s_sub_u32 s20, s20, s21
  s_min_u32 s20, s20, 20000
  s_lshl_b32 s20, s20, 3
  {'s_mov_b32 s20, 0' if OPT['dz'] else ''}
  s_memrealtime s[8:9]
  s_waitcnt lgkmcnt(0)
D_L:
  s_memrealtime s[10:11]
  s_waitcnt lgkmcnt(0)
  s_sub_u32 s12, s10, s8
  s_cmp_lt_u32 s12, s20
  s_cbranch_scc1 D_L
D_END:
  s_endpgm
""")
    return a.text()

HEAD = """; Kernarg layout for this problem (72 bytes, ptrs only, base s[0:1]):
"""
def main():
    k, nv, ns = gen()
    out = HEAD + f"; @launch grid=({NB},1,1) block=(512,1,1) lds={LDS}\n"
    if OPT["diag"] >= 0:
        out = HEAD + f"; @launch kernel={KN} grid=({NB},1,1) block=(512,1,1) lds={LDS}\n; @launch kernel=mpnn_d_kernel grid=(1,1,1) block=(64,1,1) lds=0\n"
        k += gen_diag(OPT["diag"])
    out += '.amdgcn_target "amdgcn-amd-amdhsa--gfx950"\n.text\n' + k
    out += f""".section .rodata,"a"
.p2align 6
.amdhsa_kernel {KN}
  .amdhsa_next_free_vgpr {nv}
  .amdhsa_next_free_sgpr {ns}
  .amdhsa_accum_offset {(nv+3)//4*4}
  .amdhsa_group_segment_fixed_size 0
  .amdhsa_kernarg_size 72
  .amdhsa_user_sgpr_count 2
  .amdhsa_user_sgpr_kernarg_segment_ptr 1
  .amdhsa_system_sgpr_workgroup_id_x 1
.end_amdhsa_kernel
"""
    if OPT["diag"] >= 0:
        out += """.p2align 6
.amdhsa_kernel mpnn_d_kernel
  .amdhsa_next_free_vgpr 48
  .amdhsa_next_free_sgpr 32
  .amdhsa_accum_offset 48
  .amdhsa_group_segment_fixed_size 0
  .amdhsa_kernarg_size 72
  .amdhsa_user_sgpr_count 2
  .amdhsa_user_sgpr_kernarg_segment_ptr 1
  .amdhsa_system_sgpr_workgroup_id_x 1
.end_amdhsa_kernel
"""
    open(sys.argv[1], "w").write(out)
    print("vgprs", nv, "lds", LDS)
main()
```

```python
from common import *

N = 10000; E = 320000
G = 125
CH = 2560
NB = 256
MAGIC = 26843
CAP = 28
CELLB = 128
BSTR = G * CELLB

WS_P = 256
WS_CELL = 0x280000
WS_WF = 0x1280000
WF_W2, WF_UT, WF_UB, WF_3H, WF_3L = 0, 32768, 65536, 98304, 102400
WF_SIZE = 106496
WS_OVF = 0x12A0000
OVSTR = 64 + CH * 8
WS_FLAG = 0x1520000
WS_STAMP = 0x1600000

OPT = dict(lo=0, k8=1, stamp=0, nodma=0, noadd=0, noe=0, hot=0, align=1, unroll=2, dmapos=0, rdpos=0, dsc=1, pf=1, slp=0, stf=1, addpos=0, rdgap=0, prio=0, bench=0, octo=1, frep=8, fln=16, slp0=0, plf=1, flf=1, diag=-1, touch=0, dz=0, abl=0, dodd=0, wsb=0, claim=0, slpa=0, slpb=0, zt=0, cpf=0, pf2=0, stag=0, bdl=0, wfirst=0, fine=0, half=0, dbg=0, s0st=0, spf=0, spfb=0, early=0, gate=0, ord=0, s0m=0, idle=0, idle2=0, seq=0, smf=0, of=0, oc=0)
for a_ in sys.argv[2:]:
    k_, v_ = a_.split("="); OPT[k_] = int(v_)
EXP = OPT["dbg"] or OPT["half"] or OPT["bench"] or OPT["nodma"] or OPT["noe"] or OPT["noadd"] or OPT["hot"]

FL_ = ['', 'sc1', 'sc0 sc1', 'sc1 nt', 'sc0 sc1 nt']; PLF = FL_[OPT['plf']]; FLF = FL_[OPT['flf']]
OFL = ['', 'sc1', 'nt', 'sc0 sc1', 'sc1 nt'][OPT['of']]
STF = ['', 'sc1', 'sc0 sc1', 'sc1 nt'][OPT['stf']]
FREP = OPT['frep']; FLN = OPT['fln']; FSH = (128//FLN).bit_length()-1; FHALF = FREP*FLN*256; FNON = 2*FHALF; FMASK = hex((1<<FREP)-1)
NA = 1 if OPT['claim'] & 4 else 0
NCL = (3 if OPT['claim'] & 1 else 0) + NA
NCC = (4 if OPT['claim'] & 2 else 0) + NA
CAPB = 70
L_ENT = 0
L_GN = (CAPB + 1) * 256
L_CNT = L_GN + (CAPB + 17) * 32
L_FLG = L_CNT + 256
L_ACC = L_FLG + 64
AS = 1040
L_Q = L_ACC + 40 * AS
QS = 320
L_X = L_Q + 40 * QS
XS = 288
L_STG = L_X + 40 * XS
STG = 8 * 1040 + 1024
LDS = L_STG + 8 * STG
L_CIMG = L_STG
L_BCNT = L_CIMG + NB * CELLB
WPITCH = 1088
L_GP = L_STG + 1024
L_WS = L_STG + 32 * WPITCH
assert L_BCNT + 1024 <= LDS and L_STG % 16 == 0 and L_ACC % 16 == 0
PADS, PADE = 0x8000003f, 0x80000000
KN = "standalone__mpnn_edge_mlp__graph_kernel"

def fstamp(a, i):
    if OPT["fine"]: a(f"  s_memrealtime s[{80+2*i}:{81+2*i}]")
def stamp(a, i, cyc=None):
    if OPT["fine"] and i in (1, 2, 3, 5): return
    if OPT["stamp"]:
        if cyc is None:
            a(f"  s_memrealtime s[{80+2*i}:{81+2*i}]\n  s_waitcnt lgkmcnt(0)")
        else:
            a(f"  s_memrealtime s[96:97]\n  s_memtime s[98:99]\n  s_waitcnt lgkmcnt(0)\n  s_mov_b32 s{i}, s96\n  s_mov_b32 s{i+2}, s98")

def gen():
    a = Asm()
    rare = []
    R = Regs(1)
    al = R.alloc
    vl = al("lane")
    t0 = al("t", 8, 2); t1, t2, t3, t4, t5, t6, t7 = range(t0+1, t0+8)
    vchunk = al("vchunk"); vechunk = al("vechunk")
    vent = al("vent"); vrow = al("vrow"); vgq = al("vgq"); vga = al("vga")
    vAlo = al("Alo"); vAhi = al("Ahi"); vEF = al("vEF")
    vAT = al("vAT", 4) if OPT["smf"] else None
    vqlane = al("vqlane"); vacl = al("vacl"); vxb = al("vxb"); vqw = al("vqw")
    vebase = al("vebase"); vone = al("vone"); vt16 = al("vt16"); vcell = al("vcell")
    vgl = al("vgl")
    vqa = al("vqa"); vsrow = al("vsrow"); vgn1 = al("vgn1")
    ENT = al("ENT", 2, 2)
    MAC = al("MAC", 2, 2)
    PAT = al("PAT", 2, 2)
    nq = 2 if OPT["k8"] else 4
    AQ = al("AQ", nq, 2)
    GN = al("GN", 4, 2); AD = al("AD", 4)
    DO = al("DO", 2)
    I0 = al("I0", 4, 2); I1 = al("I1", 4, 2)
    W3 = al("W3", 16, 2)
    W3L = al("W3L", 16, 2) if OPT["lo"] else None
    BQ = al("BQ", 4*nq, 2)
    EF = al("EF", 4, 2)
    PF = al("PF", 32, 2)
    D0 = al("D0", 16, 2); D1 = al("D1", 16, 2)
    EA = al("EA", 8, 4); TA = al("TA", 8, 4); EB = al("EB", 8, 4); TB = al("TB", 8, 4)
    RA = al("RA", 2, 2); RB = al("RB", 2, 2)
    SA = al("SA", 2, 2); SB = al("SB", 2, 2)
    CV = al("CV", 8, 2)
    U = al("U", 12, 2); WUB = al("WUB", 16, 2)
    DUM = al("DUM", 4, 2)
    DK = al("DK", 4, 2)
    nv = R.n
    assert TA == EA + 8 and EB == EA + 16 and TB == EA + 24 and D1 == D0 + 16
    DD = D0; SS_ = D0 + 5; B4 = D0 + 10; RK = D0 + 15; CA = D0 + 20
    CP = PF
    GX = W3
    XL = U
    W1F = WUB
    REC = D0; NOD = D0 + 8; RNK = D1
    W2F = EA; WUT = EB; XF = PF; QD = CV
    sW = 3
    pX, pE, pS, pD, pWM, pWU, pO, pWS = 4, 6, 8, 10, 12, 14, 16, 18
    SP, SE, SC, SW, SO, SV, SF = 20, 24, 28, 32, 36, 40, 44
    T0, T1, T2 = 48, 52, 56
    sStart, sNb, sStg, sCnt, sT, sMode, sKind, sFirst = 60, 61, 62, 63, 64, 65, 66, 67
    sAS, sQS, sTag, sP, sUB, sLo2 = 68, 69, 70, 71, 72, 73
    sCO = 59
    sK2 = 56
    sNp = 79
    sEx, sK, sBad = 74, 76, 78
    sTmp = 4
    sA = 48
    sOV = 48
    sOVT = 74
    sq = 100
    if OPT["stamp"]: NS = 102
    else: NS = 102

    a(f"""
.globl {KN}
.p2align 8
.type {KN},@function
{KN}:
  s_cmp_ge_u32 s2, {NB}
  s_cbranch_scc1 K_END""")
    if OPT["stamp"]: a("  s_memrealtime s[80:81]")
    a(f"""
  s_load_dwordx8 s[4:11], s[0:1], 0
  s_load_dwordx4 s[12:15], s[0:1], 32
  s_load_dwordx2 s[16:17], s[0:1], 48
  s_load_dwordx2 s[18:19], s[0:1], 64""")
    if OPT["cpf"]:
        a(f"""
  s_getpc_b64 s[20:21]
  v_lshlrev_b32 v{t1}, 7, v0
  v_cmp_gt_u32 vcc, (K_TEXTEND - {KN}) / 128, v0
  s_and_saveexec_b64 s[22:23], vcc
  s_cbranch_execz K_NOCPF
  global_load_dword v{DUM}, v{t1}, s[20:21]
K_NOCPF:
  s_mov_b64 exec, s[22:23]""")
    a(f"""
  v_lshrrev_b32 v{t0}, 6, v0
  v_and_b32 v{vl}, 63, v0
  s_and_b32 s{sP}, s2, {FREP-1}
  s_mul_i32 s{sP}, s{sP}, {FLN*256}
  s_and_b32 s{sq}, s2, 7
  s_lshl_b32 s{sq}, s{sq}, 1
  s_bfe_u32 s{sq+1}, s2, 0x10003
  s_and_b32 s2, s2, 0xf0
  s_or_b32 s2, s2, s{sq}
  s_or_b32 s2, s2, s{sq+1}
  s_mul_i32 s{sStart}, s2, 640013
  v_readfirstlane_b32 s{sW}, v{t0}
  s_add_u32 s{sNb}, s{sStart}, {640013+16383}
  s_add_u32 s{sStart}, s{sStart}, 16383
  s_sub_u32 s{sNp}, s{sStart}, 640013
  s_lshr_b32 s{sStart}, s{sStart}, 14
  s_lshr_b32 s{sNb}, s{sNb}, 14
  s_lshr_b32 s{sNp}, s{sNp}, 14
  s_min_u32 s{sNb}, s{sNb}, {N}
  s_sub_u32 s{sCnt}, s{sNb}, s{sNp}
  s_sub_u32 s{sNb}, s{sNb}, s{sStart}
  s_lshl_b32 s{sT}, s{sNp}, 8
  s_sub_u32 s{sNp}, s{sStart}, s{sNp}
  s_mov_b32 s{sMode}, 0
  s_mov_b32 s{sKind}, 0
  s_mov_b32 s{sFirst}, 1
  s_mov_b32 s{sAS}, {AS}
  s_mov_b32 s{sQS}, {QS}
  s_mul_i32 s{sStg}, s{sW}, {STG}
  s_add_u32 s{sStg}, s{sStg}, {L_STG}
  v_lshlrev_b32 v{vt16}, 4, v0
  s_mul_i32 s{sq}, s2, {CH*2}
  v_lshl_add_u32 v{t2}, v0, 2, s{sq}
  v_add_u32 v{t3}, 4096, v{t2}
  v_lshrrev_b32 v{t4}, 4, v{vl}
  v_lshlrev_b32 v{t0}, 1, v{t4}
  v_xor_b32 v{t0}, v{t0}, v{vl}
  v_lshlrev_b32 v{t0}, 4, v{t0}
  s_lshl_b32 s{sq}, s{sW}, 12
  v_add_u32 v{t7}, s{sq}, v{t0}
  s_mul_i32 s{sUB}, s{sW}, {4*WPITCH}
  s_add_u32 s{sUB}, s{sUB}, {L_WS}
  v_add_u32 v{t6}, 8192, v{vt16}
  v_add_u32 v{t5}, 16384, v{vt16}
  s_waitcnt lgkmcnt(0)
  {"s_add_u32 s%d, s%d, %d" % (pWS, pWS, OPT["wsb"] << 20) + chr(10) + "  s_addc_u32 s%d, s%d, 0" % (pWS+1, pWS+1) if OPT["wsb"] else ""}
  s_bitcmp1_b32 s2, 0
  s_cbranch_scc1 K_LDG
  s_cmp_ge_u32 s2, {2*G}
  s_cbranch_scc1 K_LDP""")
    if OPT["bdl"]: a(f"  s_sleep {OPT['bdl']}")
    srd(a, T0, pD, E*4)
    srd(a, T1, pS, E*4)
    a(f"  s_movk_i32 s{sq}, 0x2000")
    for r_, T in ((DD, T0), (SS_, T1)):
        a(f"""
  buffer_load_dword v{r_}, v{t2}, {s(T,4)}, 0 offen
  buffer_load_dword v{r_+1}, v{t2}, {s(T,4)}, 0 offen offset:2048
  buffer_load_dword v{r_+2}, v{t3}, {s(T,4)}, 0 offen
  buffer_load_dword v{r_+3}, v{t3}, {s(T,4)}, 0 offen offset:2048
  buffer_load_dword v{r_+4}, v{t2}, {s(T,4)}, s{sq} offen""")
    if OPT["claim"] & 2:
        srd(a, T2, pWS, NB*BSTR, add=WS_CELL)
        a(f"""
  v_lshrrev_b32 v{t4}, 3, v0
  s_mov_b32 s{sq}, {BSTR}
  v_mul_u32_u24 v{t4}, s{sq}, v{t4}
  v_and_b32 v{t0}, 7, v0
  v_lshl_add_u32 v{t4}, v{t0}, 4, v{t4}
  s_lshl_b32 s{sq}, s2, 6
  v_mov_b32 v{PF}, 0
  v_mov_b32 v{PF+1}, 0
  v_mov_b32 v{PF+2}, 0
  v_mov_b32 v{PF+3}, 0""")
        for j in range(4):
            a(f"  buffer_store_dwordx4 {v(PF,4)}, v{t4}, {s(T2,4)}, s{sq} offen sc1\n  s_add_u32 s{sq}, s{sq}, {64*BSTR}")
    a("  s_branch K_LD3")
    def wdma(T):
        for q in range(4):
            a(f"  s_add_u32 m0, s{sUB}, {64*q}\n  s_nop 0\n  buffer_load_dwordx4 v{t7}, {s(T,4)}, 0 offen offset:{1024*q} lds")
    a(f"""
K_LDX:
  s_lshl_b32 s{sq}, s{sStart}, 8
  s_lshl_b32 s{sq+1}, s{sNb}, 8""")
    srd(a, T2, pX, f"s{sq+1}", addreg=sq)
    a(f"""
  buffer_load_dwordx4 {v(XL,4)}, v{vt16}, {s(T2,4)}, 0 offen
  buffer_load_dwordx4 {v(XL+4,4)}, v{t6}, {s(T2,4)}, 0 offen
  s_branch K_LD3
K_LDP:
  s_cmp_eq_u32 s2, {2*G}
  s_cselect_b32 s{T1}, s{pWM}, s{pWU}
  s_cselect_b32 s{T1+1}, s{pWM+1}, s{pWU+1}
  s_cmp_eq_u32 s2, {2*G+2}
  s_cselect_b32 s{sq}, 0, 32768
  s_add_u32 s{T1}, s{T1}, s{sq}
  s_addc_u32 s{T1+1}, s{T1+1}, 0
  s_mov_b32 s{T1+2}, 32768
  s_mov_b32 s{T1+3}, 0x20000""")
    wdma(T1)
    srd(a, T0, pWM, 16*256, add=256*256)
    a(f"""
  v_and_b32 v{t0}, 31, v{vl}
  v_lshrrev_b32 v{t1}, 5, v{vl}
  v_lshlrev_b32 v{t1}, 11, v{t1}
  v_lshl_add_u32 v{t1}, v{t0}, 1, v{t1}
  s_and_b32 s{sq}, s{sW}, 3
  s_lshl_b32 s{sq}, s{sq}, 6""")
    for jj in range(8):
        a(f"  buffer_load_ushort v{D0+jj}, v{t1}, {s(T0,4)}, s{sq} offen offset:{jj*256}")
    a(f"""
  s_branch K_LDX
K_LDG:
  s_lshl_b32 s{sCnt}, s{sCnt}, 8""")
    srd(a, T0, pX, f"s{sCnt}", addreg=sT)
    srd(a, T1, pWM, 128*256)
    if OPT["wfirst"]: wdma(T1)
    a(f"""
  buffer_load_dwordx4 {v(GX,4)}, v{vt16}, {s(T0,4)}, 0 offen
  buffer_load_dwordx4 {v(GX+4,4)}, v{t6}, {s(T0,4)}, 0 offen
  buffer_load_dwordx4 {v(GX+8,4)}, v{t5}, {s(T0,4)}, 0 offen""")
    if not OPT["wfirst"]: wdma(T1)
    if OPT["claim"] & 1:
        srd(a, T2, pWS, f"s{sCnt}", add=WS_P, addreg=sT)
        for r_ in (vt16, t6, t5):
            a(f"  buffer_store_dwordx4 {v(PF,4)}, v{r_}, {s(T2,4)}, 0 offen sc1")
    a(f"""
K_LD3:""")
    if OPT["claim"] & 4:
        a(f"  s_lshl_b32 s{sq}, s{sStart}, 8\n  s_lshl_b32 s{sq+1}, s{sNb}, 8")
        srd(a, SO, pWS, f"s{sq+1}", add=WS_P, addreg=sq)
        a(f"""
  s_mul_i32 s{sq}, s{sW}, 1280
  v_lshl_add_u32 v{t1}, v{vl}, 7, s{sq}
  v_mov_b32 v{t0}, 0
  s_mov_b64 exec, 0x3ff
  buffer_atomic_or v{t0}, v{t1}, {s(SO,4)}, 0 offen
  s_mov_b64 exec, -1""")
    a(f"""
  s_add_u32 s{SF}, s{pWS}, {WS_FLAG}
  s_addc_u32 s{SF+1}, s{pWS+1}, 0
  s_load_dword s{sTag}, s[{SF}:{SF+1}], {FNON}
  s_mov_b32 s{SF+2}, {FNON+4}
  s_mov_b32 s{SF+3}, 0x20000
  v_lshrrev_b32 v{t1}, 2, v0
  v_and_b32 v{t4}, 3, v0
  v_lshlrev_b32 v{t4}, 4, v{t4}
  v_lshl_add_u32 v{vcell}, v{t1}, {6 if OPT['half'] == 2 else 7}, v{t4}
  s_mov_b32 s{sq}, {CH*32}
  v_mul_u32_u24 v{vebase}, s{sq}, v{t1}""")
    a(f"""
  v_mov_b32 v{CV}, 0
  v_mov_b32 v{CV+1}, 0
  v_mov_b32 v{CV+2}, 0
  v_mov_b32 v{CV+3}, 0
  v_add_u32 v{t0}, {L_CIMG}, v{vt16}""")
    a(f"  s_bitcmp1_b32 s2, 0\n  s_cbranch_scc1 K_NOZ")
    for j in range(4):
        a(f"  ds_write_b128 v{t0}, {v(CV,4)} offset:{j*8192}")
    a(f"  s_cmp_lg_u32 s{sW}, 0\n  s_cbranch_scc1 K_NOZ\n  ds_write_b128 v{t0}, {v(CV,4)} offset:32768")
    a("K_NOZ:")
    for j in range(5):
        a(f"  ds_write_b128 v{vt16}, {v(CV,4)} offset:{L_GN + j*8192}")
    a(f"""
  v_cmp_gt_u32 vcc, {(L_Q-L_GN-5*8192)//16}, v0
  s_and_saveexec_b64 {s(sEx,2)}, vcc
  ds_write_b128 v{vt16}, {v(CV,4)} offset:{L_GN + 5*8192}
  s_mov_b64 exec, {s(sEx,2)}""")
    def prefill():
        a(f"""
  v_mov_b32 v{CV+4}, {PADS}
  v_mov_b32 v{CV+5}, {PADE}
  v_mov_b32 v{CV+6}, {PADS}
  v_mov_b32 v{CV+7}, {PADE}
  ds_write_b128 v{vt16}, {v(CV+4,4)}
  ds_write_b128 v{vt16}, {v(CV+4,4)} offset:8192
  v_cmp_gt_u32 vcc, {(L_GN-16384)//16}, v0
  s_and_saveexec_b64 {s(sEx,2)}, vcc
  ds_write_b128 v{vt16}, {v(CV+4,4)} offset:16384
  s_mov_b64 exec, {s(sEx,2)}""")
    prefill()
    a(f"  s_mul_i32 s{sq}, s2, {BSTR}\n  s_lshl_b32 s{sq+1}, s{sStart}, 8\n  s_lshl_b32 s{sK}, s{sNb}, 8")
    srd(a, SC, pWS, G*CELLB // (2 if OPT['half'] == 2 else 1), add=WS_CELL, addreg=sq)
    srd(a, SP, pWS, (N+1)*256)
    srd(a, SE, pE, E*32)
    srd(a, SW, pWS, WF_SIZE, add=WS_WF)
    srd(a, SO, pO, f"s{sK}", addreg=sq+1)
    srd(a, SV, pWS, G*OVSTR, add=WS_OVF)
    a(f"""
  v_mov_b32 v{vone}, 1
  v_mov_b32 v{MAC}, 0
  v_mov_b32 v{MAC+1}, 0
  v_and_b32 v{t0}, 15, v{vl}                 ; l&15
  v_bfe_u32 v{t1}, v{vl}, 4, 1               ; r4&1
  {"v_lshlrev_b32 v%d, 3, v%d" % (t2, t1) if not OPT["smf"] else "v_lshrrev_b32 v%d, 4, v%d" % (t2, vl) + chr(10) + "  v_lshlrev_b32 v%d, 2, v%d" % (t2, t2)}
  v_xor_b32 v{t2}, v{t0}, v{t2}
  v_lshlrev_b32 v{vchunk}, 4, v{t2}
  v_and_b32 v{t2}, 1, v{vl}
  v_xor_b32 v{t2}, v{t2}, v{t1}
  v_lshlrev_b32 v{vechunk}, 4, v{t2}
  v_lshrrev_b32 v{t2}, 4, v{vl}
  v_lshlrev_b32 v{t2}, 6, v{t2}
  v_lshrrev_b32 v{t4}, 1, v{t0}
  v_lshl_add_u32 v{t2}, v{t4}, 3, v{t2}
  s_lshl_b32 s{sq}, s{sW}, 8
  v_add_u32 v{vent}, s{sq}, v{t2}
  v_bfe_u32 v{t2}, v{vl}, 2, 1               ; h
  v_and_b32 v{t4}, 1, v{vl}                  ; xy
  v_lshl_add_u32 v{t5}, v{t2}, 1, v{t4}      ; r4
  v_bfe_u32 v{t6}, v{vl}, 3, 2
  v_bfe_u32 v{t7}, v{vl}, 1, 1
  v_lshl_add_u32 v{t6}, v{t6}, 1, v{t7}      ; j
  v_lshl_add_u32 v{t7}, v{t5}, 3, v{t6}      ; q = 8 r4 + j
  v_lshlrev_b32 v{t7}, 3, v{t7}
  v_add_u32 v{vrow}, s{sq}, v{t7}
  v_lshrrev_b32 v{t7}, 5, v{vl}              ; hh
  v_mul_u32_u24 v{vAlo}, 1040, v{t6}
  v_lshl_add_u32 v{vAlo}, v{t5}, 8, v{vAlo}
  v_lshl_add_u32 v{vAlo}, v{t7}, 4, v{vAlo}
  v_add_u32 v{vAlo}, s{sStg}, v{vAlo}
  v_xor_b32 v{vAhi}, 1, v{t4}
  v_lshl_add_u32 v{vAhi}, v{vAhi}, 7, v{vAlo}
  v_lshl_add_u32 v{vAlo}, v{t4}, 7, v{vAlo}
  v_xor_b32 v{vEF}, v{t7}, v{t4}
  v_lshl_add_u32 v{vEF}, v{t6}, 1, v{vEF}
  v_lshl_add_u32 v{vEF}, v{t5}, 4, v{vEF}
  v_lshlrev_b32 v{vEF}, 4, v{vEF}
  s_add_u32 s{sq+1}, s{sStg}, 8320
  v_add_u32 v{vEF}, s{sq+1}, v{vEF}
  v_bfe_u32 v{t5}, v{vl}, 4, 1               ; o
  v_lshlrev_b32 v{t5}, 4, v{t5}
  v_mov_b32 v{t6}, 0x3f80
  v_lshlrev_b32 v{t5}, v{t5}, v{t6}
  v_cmp_eq_u32 vcc, v{t7}, v{t2}
  s_nop 1
  v_cndmask_b32 v{t5}, 0, v{t5}, vcc
  v_cmp_eq_u32 vcc, 0, v{t4}
  s_nop 1
  v_cndmask_b32 v{PAT}, 0, v{t5}, vcc
  v_cndmask_b32 v{PAT+1}, v{t5}, 0, vcc
  s_lshl_b32 s{sq}, s{sW}, 5
  s_add_u32 s{sq+1}, s{sq}, {L_GN}
  v_lshlrev_b32 v{vga}, 4, v{t7}
  v_add_u32 v{vga}, s{sq+1}, v{vga}
  v_and_b32 v{t2}, 12, v{vl}
  v_add_u32 v{vgq}, v{vga}, v{t2}
  v_and_b32 v{t2}, 3, v{vl}
  v_lshlrev_b32 v{t2}, 3, v{t2}
  v_lshl_add_u32 v{t2}, v{t1}, 5, v{t2}
  v_add_u32 v{vqlane}, {L_Q}, v{t2}
  v_and_b32 v{t2}, 31, v{vl}
  v_lshlrev_b32 v{t4}, 3, v{t2}
  v_add_u32 v{vacl}, {L_ACC}, v{t4}
  v_lshrrev_b32 v{t4}, 4, v{vl}              ; g
  v_mul_u32_u24 v{vxb}, {XS}, v{t0}
  v_lshl_add_u32 v{vxb}, v{t4}, 4, v{vxb}
  v_add_u32 v{vxb}, {L_X}, v{vxb}
  v_mul_u32_u24 v{vqw}, {QS}, v{t0}
  v_lshl_add_u32 v{vqw}, v{t4}, 3, v{vqw}
  s_add_u32 s{sq+1}, s{sq}, {L_Q}
  v_add_u32 v{vqw}, s{sq+1}, v{vqw}
  v_mul_u32_u24 v{vqa}, {2*WPITCH}, v{t4}
  v_bfe_u32 v{t5}, v{vl}, 2, 2
  v_lshl_add_u32 v{vqa}, v{t5}, 8, v{vqa}
  v_xor_b32 v{t5}, s{sW}, v{t5}
  v_lshl_add_u32 v{vqa}, v{t5}, 5, v{vqa}
  v_and_b32 v{t5}, 3, v{vl}
  v_lshl_add_u32 v{vqa}, v{t5}, 3, v{vqa}
  v_add_u32 v{vqa}, {L_WS}, v{vqa}
  v_and_b32 v{t4}, 1, v{vl}
  v_lshlrev_b32 v{t4}, 4, v{t4}
  v_lshlrev_b32 v{t4}, v{t4}, v{t6}
  v_bfe_u32 v{t5}, v{vl}, 1, 4
  v_lshlrev_b32 v{t7}, 2, v{t7}
  v_sub_u32 v{t5}, v{t5}, v{t7}""")
    if OPT["smf"]:
        a(f"""
  v_bfe_u32 v{t4}, v{vl}, 4, 1
  v_bfe_u32 v{t5}, v{vl}, 1, 1
  v_lshl_add_u32 v{t4}, v{t4}, 1, v{t5}
  v_bfe_u32 v{t5}, v{vl}, 3, 1
  v_lshrrev_b32 v{t7}, 5, v{vl}
  v_xor_b32 v{t5}, v{t5}, v{t7}
  v_lshl_add_u32 v{t4}, v{t5}, 2, v{t4}""")
        for i in range(4):
            a(f"  v_cmp_eq_u32 vcc, {i}, v{t4}\n  s_nop 1\n  v_cndmask_b32 v{I0+i}, 0, v{t6}, vcc")
        a(f"""
  v_bfe_u32 v{t4}, v{vl}, 2, 1
  v_and_b32 v{t5}, 1, v{vl}
  v_lshl_add_u32 v{t4}, v{t4}, 1, v{t5}
  v_mul_u32_u24 v{I1}, 0x5555, v{t4}
  v_bfe_u32 v{t4}, v{vl}, 2, 2
  v_mul_u32_u24 v{t5}, {4*1040}, v{t7}
  v_lshl_add_u32 v{t5}, v{t4}, 8, v{t5}
  v_subrev_u32 v{t7}, {L_Q}, v{vqlane}
  v_add3_u32 v{t5}, v{t5}, v{t7}, s{sStg}""")
        for t in range(4):
            a(f"  v_xor_b32 v{t7}, {t}, v{t4}\n  v_lshl_add_u32 v{vAT+t}, v{t7}, 6, v{t5}")
    else:
        for i in range(4):
            a(f"  v_cmp_eq_u32 vcc, {i}, v{t5}\n  s_nop 1\n  v_cndmask_b32 v{I0+i}, 0, v{t4}, vcc")
            a(f"  v_cmp_eq_u32 vcc, {8+i}, v{t5}\n  s_nop 1\n  v_cndmask_b32 v{I1+i}, 0, v{t4}, vcc")
    if not OPT["k8"]:
        a(f"  v_mov_b32 v{AQ+2}, 0\n  v_mov_b32 v{AQ+3}, 0")
        for t in range(4):
            a(f"  v_mov_b32 v{BQ+4*t+2}, 0\n  v_mov_b32 v{BQ+4*t+3}, 0")
    def prefetch():
        if not OPT["pf"]: return
        a(f"  s_mul_i32 s{sq}, s2, 40000\n  s_sub_u32 s{sq}, s{sq}, 4096\n  v_add_u32 v{t0}, s{sq}, v{vt16}")
        for j in range(10):
            a(f"  buffer_load_dwordx4 {v(DUM,4)}, v{t0}, {s(SE,4)}, 0 offen")
            if j < 9: a(f"  v_add_u32 v{t0}, 4096, v{t0}")
    def wtr(dst, ad):
        for st in range(4):
            for hf in range(2):
                a(f"  ds_read_b64_tr_b16 {v(dst+4*st+2*hf,2)}, v{ad} offset:{(8*st+hf)*WPITCH}")
    def own_x(nyounger):
        a(f"""
  v_lshrrev_b32 v{t0}, 4, v0
  v_lshl_add_u32 v{t0}, v{t0}, 5, v{vt16}
  v_add_u32 v{t0}, {L_X}, v{t0}
  s_waitcnt vmcnt({nyounger})
  ds_write_b128 v{t0}, {v(XL,4)}
  s_mov_b32 exec_lo, s{sLo2}
  s_mov_b32 exec_hi, s{sLo2}
  ds_write_b128 v{t0}, {v(XL+4,4)} offset:{32*XS}
  s_mov_b64 exec, -1""")
    a(f"""
  s_cmp_lt_u32 s{sW}, 2
  s_cselect_b32 s{sLo2}, -1, 0
  s_lshr_b32 s{sq}, s2, {1+FSH}
  s_lshl_b32 s{sq}, s{sq}, 8
  s_bfe_u32 s{sq+1}, s2, {hex((FSH<<16)|1)}
  s_lshl_b32 s{sq+1}, s{sq+1}, 2
  s_add_u32 s{sq}, s{sq}, s{sq+1}
  s_and_b32 s{sq+1}, s2, 1
  s_mul_i32 s{sq+1}, s{sq+1}, {FHALF}
  s_add_u32 s{sq}, s{sq}, s{sq+1}
  v_mul_u32_u24 v{vgn1}, {FLN*256}, v{vl}
  v_add_u32 v{vgn1}, s{sq}, v{vgn1}
  v_lshrrev_b32 v{t2}, {FSH-1}, v{vl}
  v_lshlrev_b32 v{t2}, 8, v{t2}
  v_and_b32 v{t3}, {(1<<(FSH-1))-1}, v{vl}
  v_lshl_add_u32 v{t2}, v{t3}, 3, v{t2}
  v_add_u32 v{vsrow}, s{sP}, v{t2}
  s_mov_b32 s{sK}, {NLOG2E}
  s_mov_b32 s{sK+1}, {NLOG2E}
  s_waitcnt lgkmcnt(0)
  s_add_u32 s{sTag}, s{sTag}, 1
  s_max_u32 s{sTag}, s{sTag}, 1
  s_bitcmp1_b32 s2, 0
  s_cbranch_scc1 K_GEMM
  s_cmp_ge_u32 s2, {2*G}
  s_cbranch_scc1 K_PREP
  s_mov_b32 s{sq}, {MAGIC}
  v_lshlrev_b32 v{t7}, 6, v0
  v_add_u32 v{t7}, {1<<18}, v{t7}
  s_barrier
  s_waitcnt vmcnt({5+NCC})""")
    stamp(a, 1)
    for j in range(5):
        a(f"""
  v_mul_u32_u24 v{B4+j}, s{sq}, v{DD+j}
  v_lshrrev_b32 v{B4+j}, 18, v{B4+j}
  v_and_b32 v{B4+j}, 0x3fc, v{B4+j}
  v_add_u32 v{t0+j}, {L_BCNT}, v{B4+j}
  ds_add_rtn_u32 v{RK+j}, v{t0+j}, v{vone}""")
    def claim_pair():
        a(f"  s_lshl_b32 s{sT}, s{sStart}, 8\n  s_sub_u32 s{sCnt}, {N*256}, s{sT}")
        srd(a, T1, pWS, f"s{sCnt}", add=WS_P, addreg=sT)
        a(f"""
  s_mul_i32 s{sT}, s{sW}, 2560
  v_lshl_add_u32 v{DO}, v{vl}, 7, s{sT}
  v_mov_b32 v{DO+1}, 0
  s_mov_b64 exec, 0xfffff
  buffer_atomic_or v{DO+1}, v{DO}, {s(T1,4)}, 0 offen
  s_mov_b64 exec, -1""")
    if OPT["claim"] & 16: claim_pair()
    a(f"  s_waitcnt vmcnt({NCC + (1 if OPT['claim'] & 16 else 0)})")
    if OPT["claim"] & 8: claim_pair()
    for j in range(5):
        a(f"""
  v_lshl_add_u32 v{SS_+j}, v{SS_+j}, 18, v{t7}
  v_and_or_b32 v{SS_+j}, v{DD+j}, 63, v{SS_+j}
  v_lshlrev_b32 v{CA+j}, 5, v{B4+j}
  v_add_u32 v{CA+j}, {L_CIMG}, v{CA+j}""")
        if j < 4: a(f"  v_add_u32 v{t7}, {512<<6}, v{t7}")
    srd(a, T2, pWS, NB*BSTR if not OPT["dbg"] & 4 else 0, add=WS_CELL + (0x2000000 if OPT["dbg"] & 1 else 0))
    a(f"""
  v_lshrrev_b32 v{t4}, 3, v0
  s_mov_b32 s{sq}, {BSTR}
  v_mul_u32_u24 v{t4}, s{sq}, v{t4}
  v_and_b32 v{t5}, 7, v0
  v_lshl_add_u32 v{t4}, v{t5}, 4, v{t4}
  s_lshl_b32 s{sq}, s2, {5 if OPT['half'] == 2 else 6}
  s_mov_b64 {s(sBad,2)}, 0
  s_waitcnt lgkmcnt(0)""")
    for j in range(5):
        a(f"""
  v_mul_u32_u24 v{t1}, 37, v{RK+j}
  v_lshl_add_u32 v{t0}, v{RK+j}, 2, v{CA+j}
  v_lshrrev_b32 v{t1}, 8, v{t1}
  v_cmp_le_u32 vcc, {CAP-1}, v{RK+j}
  v_lshl_add_u32 v{t0}, v{t1}, 2, v{t0}
  s_or_b64 {s(sBad,2)}, {s(sBad,2)}, vcc
  s_andn2_b64 exec, exec, vcc
  ds_write_b32 v{t0}, v{SS_+j}
  s_mov_b64 exec, -1""")
    a(f"""
  v_add_u32 v{t0}, {L_CIMG}, v{vt16}
  v_mov_b32 v{t2}, {L_FLG+4}
  s_cmp_eq_u64 {s(sBad,2)}, 0
  s_cbranch_scc1 K_NOFULL
  ds_write_b32 v{t2}, v{vone}
K_NOFULL:
  s_waitcnt lgkmcnt(0)
  s_barrier""")
    stamp(a, 2)
    a(f"  ds_read_b32 v{t2}, v{t2}\nK_OVFDONE:")
    for j in range(4):
        a(f"  ds_read_b128 {v(CP+4*j,4)}, v{t0} offset:{8192*j}")
    a(f"""
  s_waitcnt vmcnt({2 if OPT['claim'] & 2 else 63}) lgkmcnt(4)
  v_cmp_ne_u32 vcc, 0, v{t2}
  s_cbranch_vccnz K_OVF""")
    for j in range(4):
        a(f"""
  s_mov_b32 exec_lo, 0xaaaaaaaa
  s_mov_b32 exec_hi, 0xaaaaaaaa
  s_waitcnt lgkmcnt({3-j})
  v_mov_b32 v{CP+4*j+3}, s{sTag}
  s_mov_b64 exec, -1
  {"s_mov_b32 exec_lo, 0x0f0f0f0f" + chr(10) + "  s_mov_b32 exec_hi, 0x0f0f0f0f" if OPT["half"] else ""}
  buffer_store_dwordx4 {v(CP+4*j,4)}, v{t4}, {s(T2,4)}, s{sq} offen {STF}
  s_mov_b64 exec, -1
  s_add_u32 s{sq}, s{sq}, {64*BSTR}""")
    a(f"  s_lshl_b32 s{sq}, s{sStart}, 8\n  s_lshl_b32 s{sq+1}, s{sNb}, 8")
    srd(a, T2, pX, f"s{sq+1}", addreg=sq)
    a(f"""
  v_add_u32 v{t6}, 8192, v{vt16}
  buffer_load_dwordx4 {v(XL,4)}, v{vt16}, {s(T2,4)}, 0 offen
  buffer_load_dwordx4 {v(XL+4,4)}, v{t6}, {s(T2,4)}, 0 offen""")
    own_x(0)
    a(f"""
  {"s_sleep %d" % OPT["slpa"] if OPT["slpa"] else ""}""")
    def spf(n, per_wave, base):
        if not n: return
        assert 8*OPT['spf'] + 4*OPT['spfb'] <= 640
        a(f"""
  s_lshr_b32 s{sq}, s2, 1
  s_min_u32 s{sq}, s{sq}, {G-1}
  s_mul_i32 s{sq}, s{sq}, {CH*32}
  s_mul_i32 s{sq+1}, s{sW}, {per_wave}
  s_add_u32 s{sq}, s{sq}, s{sq+1}
  s_add_u32 s{sq}, s{sq}, {base}
  s_add_u32 s{T0}, s{pE}, s{sq}
  s_addc_u32 s{T0+1}, s{pE+1}, 0""")
        for i in range(n):
            a(f"  s_load_dword s{T0+2}, s[{T0}:{T0+1}], {128*i}")
    spf(OPT["spf"], OPT["spf"]*128, 0)
    a(f"""
  s_branch K_PST
K_GW:
  {"s_sleep %d" % OPT["slpb"] if OPT["slpb"] else ""}""")
    spf(OPT["spfb"], OPT["spfb"]*128, OPT["spf"]*1024)
    a(f"""
  s_branch K_PST
K_GEMM:
  ; ---------------- P gemm role: rows of this bucket and the one before ----------------""")
    if OPT["touch"]:
        a(f"""
  s_cmp_lg_u32 s{sW}, 0
  s_cbranch_scc1 K_NOTOUCH
  s_waitcnt vmcnt(0)
  s_mov_b64 exec, {FMASK}
  buffer_load_dword v{DUM}, v{vgn1}, {s(SF,4)}, 0 offen sc1
  s_mov_b64 exec, -1
K_NOTOUCH:""")
    a(f"""
  s_mul_i32 s{sq}, s{sNp}, {XS}
  s_sub_u32 s{sq}, {L_X}, s{sq}
  v_lshrrev_b32 v{t0}, 4, v0
  v_lshl_add_u32 v{t0}, v{t0}, 5, v{vt16}
  v_add_u32 v{t3}, s{sq}, v{t0}
  s_cmp_lt_u32 s{sW}, 4
  s_cselect_b32 s{sq+1}, -1, 0
  v_subrev_u32 v{t1}, {L_X}, v{vxb}
  v_add_u32 v{t1}, s{sq}, v{t1}
  s_waitcnt vmcnt({(2 if OPT['wfirst'] else 6)+NCL})
  ds_write_b128 v{t3}, {v(GX,4)}
  s_waitcnt vmcnt({(1 if OPT['wfirst'] else 5)+NCL})
  ds_write_b128 v{t3}, {v(GX+4,4)} offset:{32*XS}
  s_waitcnt vmcnt({(0 if OPT['wfirst'] else 4)+NCL})
  s_mov_b32 exec_lo, s{sq+1}
  s_mov_b32 exec_hi, s{sq+1}
  ds_write_b128 v{t3}, {v(GX+8,4)} offset:{64*XS}
  s_mov_b64 exec, -1
  v_and_b32 v{t2}, 15, v{vl}
  v_mul_u32_u24 v{t2}, {XS}, v{t2}
  v_lshrrev_b32 v{t3}, 4, v{vl}
  v_lshl_add_u32 v{t2}, v{t3}, 3, v{t2}
  s_lshl_b32 s{sq}, s{sW}, 5
  s_add_u32 s{sq}, s{sq}, {L_GP}
  v_add_u32 v{t2}, s{sq}, v{t2}
  v_add_u32 v{t0}, {L_GP - 16*XS}, v{t0}
  v_subrev_u32 v{t4}, 4096, v{vt16}""")
    srd(a, T0, pWS, f"s{sCnt}", add=WS_P + (0x2800000 if OPT["dbg"] & 2 else 0), addreg=sT)
    a(f"  s_waitcnt vmcnt({NCL}) lgkmcnt(0)\n  s_barrier")
    stamp(a, 1)
    wtr(W1F, vqa)
    XT = [PF, PF+16, EA, EB, PF]
    for nt in range(4):
        for st in range(4):
            a(f"  ds_read_b128 {v(XT[nt]+4*st,4)}, v{t1} offset:{nt*16*XS + st*64}")
    for nt in range(5):
        a(f"  s_waitcnt lgkmcnt({(12, 12, 8, 4, 0)[nt]})")
        for st in range(4):
            c = "0" if st == 0 else v(D0+4*nt, 4)
            a(f"  v_mfma_f32_16x16x32_bf16 {v(D0+4*nt,4)}, {v(W1F+4*st,4)}, {v(XT[nt]+4*st,4)}, {c}")
        if nt == 0:
            for st in range(4):
                a(f"  ds_read_b128 {v(PF+4*st,4)}, v{t1} offset:{4*16*XS + st*64}")
    for nt in range(5):
        d = D0 + 4*nt
        if nt == 4: a("  s_nop 1")
        a(f"""
  v_pk_mul_f32 {v(d,2)}, {v(d,2)}, {s(sK,2)}
  v_pk_mul_f32 {v(d+2,2)}, {v(d+2,2)}, {s(sK,2)}
  v_cvt_pk_bf16_f32 v{W3+2*nt}, v{d}, v{d+1}
  v_cvt_pk_bf16_f32 v{W3+2*nt+1}, v{d+2}, v{d+3}
  ds_write_b64 v{t2}, {v(W3+2*nt,2)} offset:{nt*16*XS}""")
    a(f"  s_waitcnt vmcnt({NA}) lgkmcnt(0)\n  s_barrier")
    stamp(a, 2)
    a(f"""
  s_cmp_lt_u32 s{sW}, 4
  s_cbranch_scc1 K_GW""")
    for j in range(5):
        a(f"  ds_read_b128 {v(PF+4*j,4)}, v{t0} offset:{j*16*XS}")
    if OPT["zt"]:
        srd(a, T1, pWS, f"s{sCnt}", add=0x1800000, addreg=sT)
        a(f"  s_waitcnt lgkmcnt(0)\n  v_mov_b32 v{t1}, v{t4}")
        for j in range(5):
            a(f"  buffer_store_dwordx4 {v(PF+4*j,4)}, v{t1}, {s(T1,4)}, 0 offen {STF}\n  v_add_u32 v{t1}, 4096, v{t1}")
        a("  s_waitcnt vmcnt(0)")
        stamp(a, 1)
    for j in range(5):
        a(f"  s_waitcnt lgkmcnt({4-j})\n  buffer_store_dwordx4 {v(PF+4*j,4)}, v{t4}, {s(T0,4)}, 0 offen {STF}")
        if j < 4: a(f"  v_add_u32 v{t4}, 4096, v{t4}")
    a(f"""
  v_mov_b32 v{t0}, {L_FLG+12}
  v_mov_b32 v{t7}, s{sTag}
""")
    if OPT["early"]:
        a(f"""
  s_sleep {OPT["early"]}
  v_min_u32 v{t4}, 2, v{vl}
  s_lshl_b32 s{sq}, s2, 7
  v_lshl_add_u32 v{t4}, v{t4}, 2, s{sq}
  buffer_load_dwordx4 {v(REC,4)}, v{vcell}, {s(SC,4)}, 0 offen sc1
  buffer_load_dwordx4 {v(REC+4,4)}, v{vcell}, {s(SC,4)}, 0 offen offset:64 sc1
  {"buffer_load_dword v%d, v%d, %s, 0 offen sc1" % (t5, t4, s(SF,4)) if not OPT["s0m"] else ""}
  s_mov_b32 s{sKind}, 9""")
    a(f"""
  s_mov_b64 exec, 1
  s_waitcnt vmcnt({(2 if OPT["s0m"] else 3) if OPT["early"] else 0})""")
    stamp(a, 3)
    a(f"""
  ds_add_rtn_u32 v{t0}, v{t0}, v{vone}
  s_waitcnt lgkmcnt(0)
  v_readfirstlane_b32 s{sOV+5}, v{t0}
  s_mov_b64 exec, -1
  s_cmp_lg_u32 s{sOV+5}, 3
  s_cbranch_scc1 K_PST
K_FLAG:
  s_mov_b64 exec, {FMASK}
  buffer_store_dword v{t7}, v{vgn1}, {s(SF,4)}, 0 offen {FLF}
  s_mov_b64 exec, -1
K_PST:""")
    def node_gemm(WA, WB=None):
        for nt in range(3):
            xf = XF + 16*(nt & 1)
            if nt == 0:
                for n2 in range(2):
                    for st in range(4):
                        a(f"  ds_read_b128 {v(XF+16*n2+4*st,4)}, v{vxb} offset:{n2*16*XS + st*64}")
            a(f"  s_waitcnt lgkmcnt({4 if nt == 0 else 5 if nt == 1 else 1})")
            q = QD if nt != 1 else SA
            for st in range(4):
                c = "0" if st == 0 else v(q, 4)
                a(f"  v_mfma_f32_16x16x32_bf16 {v(q,4)}, {v(WA+4*st,4)}, {v(xf+4*st,4)}, {c}")
            if WB is not None:
                for st in range(4):
                    c = "0" if st == 0 else v(U+4*nt, 4)
                    a(f"  v_mfma_f32_16x16x32_bf16 {v(U+4*nt,4)}, {v(WB+4*st,4)}, {v(xf+4*st,4)}, {c}")
            if nt == 0:
                for st in range(4):
                    a(f"  ds_read_b128 {v(XF+4*st,4)}, v{vxb} offset:{2*16*XS + st*64}")
            a(f"""
  s_nop 7
  v_pk_mul_f32 {v(q,2)}, {v(q,2)}, {s(sK,2)}
  v_pk_mul_f32 {v(q+2,2)}, {v(q+2,2)}, {s(sK,2)}
  v_cvt_pk_bf16_f32 v{QD+4+2*(nt&1)}, v{q}, v{q+1}
  v_cvt_pk_bf16_f32 v{QD+5+2*(nt&1)}, v{q+2}, v{q+3}""")
            if nt == 2:
                a(f"  s_mov_b32 exec_lo, 0x00ff00ff\n  s_mov_b32 exec_hi, 0x00ff00ff")
            a(f"  ds_write_b64 v{vqw}, {v(QD+4+2*(nt&1),2)} offset:{nt*16*QS}")
            if nt == 2:
                a("  s_mov_b64 exec, -1")
    assert SB == SA + 2
    def poll(lab, off):
        a(f"""
  s_cmp_lg_u32 s{sW}, 1
  s_cbranch_scc1 {lab}_D
  s_mov_b32 s{sq}, 0
  s_mov_b32 s{sq+1}, {off}
  v_min_u32 v{t0}, 2, v{vl}
  s_lshl_b32 s{sBad}, s2, 7
  v_lshl_add_u32 v{t0}, v{t0}, 2, s{sBad}
{lab}:
  buffer_load_dwordx2 {v(DUM,2)}, v{vsrow}, {s(SF,4)}, s{sq+1} offen {PLF}
  buffer_load_dword v{DUM+2}, v{t0}, {s(SF,4)}, 0 offen {PLF}
  s_add_u32 s{sq}, s{sq}, 1
  s_waitcnt vmcnt(0)
  v_cmp_ne_u32 vcc, s{sTag}, v{DUM}
  v_cmp_ne_u32 {s(sBad,2)}, s{sTag}, v{DUM+1}
  s_or_b64 vcc, vcc, {s(sBad,2)}
  v_cmp_ne_u32 {s(sBad,2)}, s{sTag}, v{DUM+2}
  s_or_b64 vcc, vcc, {s(sBad,2)}
  s_cbranch_scc0 {lab}_D
  {"s_sleep %d" % OPT["slp"] if OPT["slp"] else ""}
  s_cmp_lt_u32 s{sq}, 0x8000
  s_cbranch_scc1 {lab}
{lab}_D:""")
    stamp(a, 5)
    nld = 16 if OPT["lo"] else 12
    a(f"""
  s_lshl_b32 s{sTmp}, s{sW}, 12
  s_add_u32 s{sTmp+1}, s{sTmp}, {WF_UT}
  s_add_u32 s{sUB}, s{sTmp}, {WF_UB}
  s_mov_b32 s{sTmp+2}, {WF_3H}
  s_mov_b32 s{sTmp+3}, {WF_3L}
  s_mov_b32 s{sOV}, {0xaaaaaaaa if not OPT["dbg"] & 5 else 0}
  s_cmp_eq_u32 s{sW}, 7
  s_cselect_b32 s{sOV+1}, {0xaaaaa if not OPT["dbg"] & 5 else 0}, s{sOV}
  v_min_u32 v{t4}, 2, v{vl}
  s_lshl_b32 s{sq}, s2, 7
  v_lshl_add_u32 v{t4}, v{t4}, 2, s{sq}
  s_mov_b32 s{sq}, 0
  {"s_sleep %d" % OPT["slp0"] if OPT["slp0"] else ""}
""")
    wl = [f"  buffer_load_dwordx4 {v(W2F+4*st,4)}, v{vgl}, {s(SW,4)}, s{sTmp} offen offset:{st*1024} sc1" for st in range(4)]
    wl += [f"  buffer_load_dwordx4 {v(WUT+4*st,4)}, v{vgl}, {s(SW,4)}, s{sTmp+1} offen offset:{st*1024} sc1" for st in range(4)]
    wl += [f"  buffer_load_dwordx4 {v(W3+4*st,4)}, v{vgl}, {s(SW,4)}, s{sTmp+2} offen offset:{st*1024} sc1" for st in range(4)]
    if OPT["lo"]:
        wl += [f"  buffer_load_dwordx4 {v(W3L+4*st,4)}, v{vgl}, {s(SW,4)}, s{sTmp+3} offen offset:{st*1024} sc1" for st in range(4)]
    a(f"""
  v_lshlrev_b32 v{vgl}, 4, v{vl}
  s_mov_b32 s{sOV+6}, 0
  {"s_cmp_eq_u32 s%d, 9" % sKind + chr(10) + "  s_mov_b32 s%d, 0" % sKind + chr(10) + "  s_cbranch_scc1 K_CPOLLW" if OPT["early"] else ""}
K_CPOLL:
  buffer_load_dwordx4 {v(REC,4)}, v{vcell}, {s(SC,4)}, 0 offen sc1
  buffer_load_dwordx4 {v(REC+4,4)}, v{vcell}, {s(SC,4)}, 0 offen offset:64 sc1
  {"buffer_load_dword v%d, v%d, %s, 0 offen sc1" % (t5, t4, s(SF,4)) if not OPT["s0m"] else ""}
  s_add_u32 s{sq}, s{sq}, 1
  s_waitcnt vmcnt(0)
K_CPOLLC:
  v_cmp_ne_u32 vcc, s{sTag}, v{REC+3}
  v_cmp_ne_u32 {s(sBad,2)}, s{sTag}, v{REC+7}
  s_or_b64 {s(sBad,2)}, vcc, {s(sBad,2)}
  {"v_cmp_ne_u32 %s, s%d, v%d" % (s(sOV+2,2), sTag, t5) if not OPT["s0m"] else "s_mov_b64 %s, -1" % s(sOV+2,2)}
  s_and_b64 {s(sBad,2)}, {s(sBad,2)}, {s(sOV,2)}
  {"s_or_b64 %s, %s, %s" % (s(sBad,2), s(sBad,2), s(sOV+2,2)) if OPT["gate"] else ""}
  s_cbranch_scc1 K_CAGAIN""")
    rare.append(f"""
K_CPOLLW:
  s_waitcnt vmcnt(1)
  s_cmp_eq_u32 s{sOV+5}, 3
  s_cbranch_scc1 K_CPOLLC
  s_waitcnt vmcnt(0)
  s_branch K_CPOLLC
K_CAGAIN:
  s_cmp_lg_u64 {s(sOV+2,2)}, 0
  s_cbranch_scc1 K_CA2
  s_cmp_lg_u32 s{sOV+6}, 0
  s_cbranch_scc1 K_CA2
  s_mov_b32 s{sOV+6}, 1
""" + "\n".join(wl) + f"""
K_CA2:
  {"s_sleep %d" % OPT["slp"] if OPT["slp"] else ""}
  s_cmp_lt_u32 s{sq}, 0x8000
  s_cbranch_scc1 K_CPOLL
  s_branch K_CPOLLD""")
    a(f"""
K_CPOLLD:
  {"v_mov_b32 v%d, v%d" % (DK+2, t4) + chr(10) + "  buffer_load_dword v%d, v%d, %s, 0 offen sc1" % (DK+1, t4, s(SF,4)) if OPT["s0m"] else ""}
  s_mov_b32 exec_lo, 0xaaaaaaaa
  s_mov_b32 exec_hi, 0xaaaaaaaa
  v_mov_b32 v{REC+3}, 0
  v_mov_b32 v{REC+7}, 0
  s_mov_b64 exec, -1""")
    stamp(a, 6)
    NR = 8
    a(f"""
K_PHASE1:
  v_cmp_le_u32 vcc, 0xfffc0000, v{REC+NR-2}
  s_cbranch_vccnz K_MARK
K_NOMARK:""")
    rare.append(f"""
K_MARK:
  s_and_saveexec_b64 {s(sEx,2)}, vcc
  v_lshrrev_b32 v{t0}, 2, v0                 ; producer
  v_lshrrev_b32 v{t1}, 5, v{t0}
  v_lshlrev_b32 v{t1}, 2, v{t1}
  v_lshlrev_b32 v{t0}, v{t0}, v{vone}
  ds_or_b32 v{t1}, v{t0} offset:{L_FLG+32}
  v_mov_b32 v{REC+NR-2}, 0
  s_mov_b64 exec, {s(sEx,2)}
  s_branch K_NOMARK""")
    for k in range(NR):
        if k == 4:
            a(f"""
  v_or3_b32 v{t3}, v{REC+k}, v{REC+k+1}, v{REC+k+2}
  v_or_b32 v{t3}, v{t3}, v{REC+k+3}
  v_cmp_ne_u32 vcc, 0, v{t3}
  s_cbranch_vccz K_P1E""")
        a(f"""
  v_lshlrev_b32 v{NOD+k}, 2, v{REC+k}
  v_and_b32 v{NOD+k}, 0xfc, v{NOD+k}
  v_cmpx_ne_u32 vcc, 0, v{REC+k}
  ds_add_rtn_u32 v{RNK+k}, v{NOD+k}, v{vone} offset:{L_CNT}
  s_mov_b64 exec, -1""")
    a(f"""
K_P1E:
  s_cmp_lg_u32 s{sOV+6}, 0
  s_cbranch_scc1 K_NOWL
  s_cmp_lg_u64 {s(sOV+2,2)}, 0
  s_cbranch_scc1 K_NOWL
  s_mov_b32 s{sOV+6}, 1""")
    if OPT["stamp"] and OPT["s0st"]: a("  s_memrealtime s[86:87]")
    for x in wl: a(x)
    a(f"""
K_NOWL:
  v_lshlrev_b32 v{t0}, 2, v{vl}
  v_subrev_u32 v{t4}, s{sStart}, v{vl}
  v_and_b32 v{t4}, 63, v{t4}
  s_waitcnt lgkmcnt(0)""")
    fstamp(a, 1)
    a(f"""
  s_barrier""")
    fstamp(a, 2)
    a(f"""
  ds_read_b32 v{t1}, v{t0} offset:{L_CNT}
  s_waitcnt lgkmcnt(0)
  v_add_u32 v{t1}, 3, v{t1}
  v_bfe_u32 v{t5}, v{t1}, 2, 1               ; left-over quad
  v_lshrrev_b32 v{t6}, 3, v{t1}
  v_lshl_or_b32 v{t1}, v{t5}, 16, v{t6}
  v_mov_b32 v{t2}, v{t1}
  s_nop 1
  v_add_u32_dpp v{t2}, v{t2}, v{t2} row_shr:1 row_mask:0xf bank_mask:0xf
  s_nop 1
  v_add_u32_dpp v{t2}, v{t2}, v{t2} row_shr:2 row_mask:0xf bank_mask:0xf
  s_nop 1
  v_add_u32_dpp v{t2}, v{t2}, v{t2} row_shr:4 row_mask:0xf bank_mask:0xf
  s_nop 1
  v_add_u32_dpp v{t2}, v{t2}, v{t2} row_shr:8 row_mask:0xf bank_mask:0xf
  s_nop 1
  v_add_u32_dpp v{t2}, v{t2}, v{t2} row_bcast:15 row_mask:0xa bank_mask:0xf
  s_nop 1
  v_add_u32_dpp v{t2}, v{t2}, v{t2} row_bcast:31 row_mask:0xc bank_mask:0xf
  s_nop 1
  v_readlane_b32 s{sT}, v{t2}, 63
  v_sub_u32 v{t1}, v{t2}, v{t1}
  s_lshr_b32 s{sq+1}, s{sT}, 16
  s_and_b32 s{sCO}, s{sT}, 0xffff
  s_lshl_b32 s{sq}, s{sCO}, 1                ; quads in the groups of eight
  s_lshr_b32 s{sCO}, s{sCO}, 2
  s_add_u32 s{sT}, s{sq}, s{sq+1}
  s_add_u32 s{sT}, s{sT}, 7
  s_lshr_b32 s{sT}, s{sT}, 3
  v_lshrrev_b32 v{t2}, 16, v{t1}
  v_add_u32 v{t2}, s{sq}, v{t2}              ; quad slot of the left-over quad
  v_and_b32 v{t1}, 0xffff, v{t1}
  v_lshl_or_b32 v{t0}, v{t6}, 16, v{t1}
  v_lshlrev_b32 v{t0}, 3, v{t0}              ; 8*start8 | 8*n8 << 16
  v_lshlrev_b32 v{t7}, 1, v{t6}
  v_sub_u32 v{t7}, v{t2}, v{t7}
  v_lshlrev_b32 v{t7}, 2, v{t7}              ; position base of the left-over quad
  s_cmp_gt_u32 s{sT}, {CAPB}
  s_cbranch_scc1 K_SPLIT""")
    fstamp(a, 3)
    def bp(ks):
        for k in ks:
            a(f"  ds_bpermute_b32 v{PF+16+k}, v{NOD+k}, v{t7}")
            a(f"  ds_bpermute_b32 v{NOD+k}, v{NOD+k}, v{t0}")
    def ent(ks):
        for k in ks:
            e = PF + 2*k
            a(f"""
  v_lshrrev_b32 v{e}, 10, v{REC+k}
  v_and_b32 v{e}, {hex(0xffffff00 if not OPT['hot'] else 0x1f00)}, v{e}
  v_bfe_u32 v{e+1}, v{REC+k}, 6, 12
  v_lshl_add_u32 v{e+1}, v{e+1}, 5, v{vebase}""")
    def put(ks):
        for k in ks:
            a(f"  v_cmp_lt_u32_sdwa {s(8+2*(k&3),2)}, v{RNK+k}, v{NOD+k} src0_sel:DWORD src1_sel:WORD_1")
        for k in ks:
            a(f"  v_and_b32 v{NOD+k}, 0xffff, v{NOD+k}")
        for k in ks:
            a(f"  v_cndmask_b32 v{NOD+k}, v{PF+16+k}, v{NOD+k}, {s(8+2*(k&3),2)}")
        for k in ks:
            a(f"""
  v_add_lshl_u32 v{NOD+k}, v{NOD+k}, v{RNK+k}, 3
  v_cmpx_ne_u32 vcc, 0, v{REC+k}
  ds_write_b64 v{NOD+k}, {v(PF+2*k,2)}
  s_mov_b64 exec, -1""")
    bp(range(4))
    a(f"""
  v_or3_b32 v{t3}, v{REC+4}, v{REC+5}, v{REC+6}
  v_or_b32 v{t3}, v{t3}, v{REC+7}
  v_cmp_ne_u32 {s(sK2,2)}, 0, v{t3}
  s_cmp_eq_u64 {s(sK2,2)}, 0
  s_cbranch_scc1 K_P2A""")
    bp(range(4, 8))
    ent(range(4, 8))
    a("K_P2A:")
    if OPT["s0m"]:
        a(f"""
  s_cmp_lg_u32 s{sOV+6}, 0
  s_cbranch_scc1 K_S0A
  s_waitcnt vmcnt(0)
  v_cmp_ne_u32 vcc, s{sTag}, v{DK+1}
  s_cbranch_vccnz K_S0AX
  s_mov_b32 s{sOV+6}, 1""")
        for x in wl: a(x)
        a("K_S0A:")
        rare.append(f"K_S0AX:\n  buffer_load_dword v{DK+1}, v{DK+2}, {s(SF,4)}, 0 offen sc1\n  s_branch K_S0A")
    ent(range(4))
    a(f"""
  v_lshlrev_b32 v{t2}, 2, v{t2}
  v_add_lshl_u32 v{t3}, v{t1}, v{t6}, 3
  v_lshl_add_u32 v{t1}, v{t1}, 1, s{sW}
  v_lshlrev_b32 v{t1}, 2, v{t1}
  s_waitcnt lgkmcnt(0)""")
    put(range(4))
    a(f"  s_cmp_eq_u64 {s(sK2,2)}, 0\n  s_cbranch_scc1 K_P2E")
    put(range(4, 8))
    a("K_P2E:")
    fstamp(a, 5)
    a(f"""
  v_cmpx_ne_u32 vcc, 0, v{t5}
  ds_write_b32 v{t2}, v{t4} offset:{L_GN}
  s_mov_b64 exec, -1
K_GNL:
  v_cmpx_lt_u32 vcc, v{t1}, v{t3}
  ds_write_b32 v{t1}, v{t4} offset:{L_GN}
  v_add_u32 v{t1}, 32, v{t1}
  v_cmpx_lt_u32 vcc, v{t1}, v{t3}
  ds_write_b32 v{t1}, v{t4} offset:{L_GN}
  v_add_u32 v{t1}, 32, v{t1}
  v_cmpx_lt_u32 vcc, v{t1}, v{t3}
  s_cbranch_execnz K_GNL
  s_mov_b64 exec, -1
  s_add_u32 s{sCnt}, s{sT}, 7
  s_sub_u32 s{sCnt}, s{sCnt}, s{sW}
  s_lshr_b32 s{sCnt}, s{sCnt}, 3
  s_add_u32 s{sCO}, s{sCO}, 7
  s_sub_u32 s{sCO}, s{sCO}, s{sW}
  s_lshr_b32 s{sCO}, s{sCO}, 3
  {("s_mov_b32 s%d, 40" % sCnt + chr(10) + "  s_movk_i32 s%d, 320" % sT + chr(10) + "  s_mov_b32 s%d, 40" % sCO) if OPT["bench"] else ""}
""")
    stamp(a, 4)
    if OPT["s0m"]:
        a(f"""
  s_cmp_lg_u32 s{sOV+6}, 0
  s_cbranch_scc1 K_S0B
  s_waitcnt vmcnt(0)
  v_cmp_ne_u32 vcc, s{sTag}, v{DK+1}
  s_cbranch_vccnz K_S0BX
  s_mov_b32 s{sOV+6}, 1""")
        for x in wl: a(x)
        a("K_S0B:")
        rare.append(f"K_S0BX:\n  s_nop 0\n  s_branch K_S0B")
    a(f"""
  s_cmp_eq_u32 s{sFirst}, 0
  s_cbranch_scc1 K_POLL2_D""")
    poll("K_POLL2", FHALF)
    a("  s_waitcnt lgkmcnt(0)\n  s_barrier")
    stamp(a, 7)
    dsc = " sc1" if OPT["dsc"] else ""
    def dma_issue():
        L = []
        for j in range(8):
            d = DO + (j & 1)
            L.append([f"  s_add_u32 m0, s{sStg}, {j*1040}",
                      f"  v_add_u32_dpp v{d}, v{ENT}, v{vchunk} row_newbcast:{2*j} row_mask:0xf bank_mask:0xf",
                      f"  buffer_load_dwordx4 v{d}, {s(SP,4)}, 0 offen{dsc} lds" if not OPT["nodma"] else "  s_nop 0"])
        L.append([f"  s_add_u32 m0, s{sStg}, 8320",
                  f"  v_add_u32 v{DO}, v{ENT+1}, v{vechunk}",
                  f"  buffer_load_dwordx4 v{DO}, {s(SE,4)}, 0 offen lds" if not (OPT["nodma"] or OPT["noe"]) else "  s_nop 0"])
        return L
    ndma = 0 if OPT["nodma"] else 8 if OPT["noe"] else 9
    def frag_reads():
        if OPT["smf"]:
            L = [f"  ds_read_b64_tr_b16 {v(PF+8*t+2*q,2)}, v{vAT+t} offset:{1040*q}" for t in range(4) for q in range(4)]
            L.insert(4, f"  ds_read_b128 {v(EF,4)}, v{vEF}")
            return L
        L = []
        for st in range(8):
            L.append(f"  ds_read_b128 {v(PF+4*st,4)}, v{vAlo if st < 4 else vAhi} offset:{32*(st&3)}")
        L.insert(2, f"  ds_read_b128 {v(EF,4)}, v{vEF}")
        return L
    def bq_reads():
        return [f"  ds_read_b64_tr_b16 {v(BQ+nq*t,2)}, v{vqa} offset:{64*t}" for t in range(4)]
    def chain(t, D):
        L = [f"  v_mfma_f32_32x32x16_bf16 {v(D,16)}, {v(EF,4)}, {v(W3+4*t,4)}, 0"]
        if OPT["lo"]:
            L.append(f"  v_mfma_f32_32x32x16_bf16 {v(D,16)}, {v(EF,4)}, {v(W3L+4*t,4)}, {v(D,16)}")
        if OPT["smf"]:
            L.append(f"  v_smfmac_f32_32x32x32_bf16 {v(D,16)}, {v(I0,4)}, {v(PF+8*t,8)}, v{I1}")
        else:
            L.append(f"  v_mfma_f32_32x32x16_bf16 {v(D,16)}, {v(PF+8*t,4)}, {v(I0,4)}, {v(D,16)}")
            L.append(f"  v_mfma_f32_32x32x16_bf16 {v(D,16)}, {v(PF+8*t+4,4)}, {v(I1,4)}, {v(D,16)}")
        if OPT["k8"]:
            L.append(f"  v_mfma_f32_32x32x8bf16_1k {v(D,16)}, {v(AQ,2)}, {v(BQ+2*t,2)}, {v(D,16)}")
        else:
            L.append(f"  v_mfma_f32_32x32x16_bf16 {v(D,16)}, {v(AQ,4)}, {v(BQ+4*t,4)}, {v(D,16)}")
        return L

    if OPT["stag"]:
        a(f"  s_cmp_lt_u32 s{sW}, 4\n  s_cbranch_scc1 K_STG\n  s_sleep {OPT['stag']}\nK_STG:")
    if OPT["idle"]: a(f"  s_sleep {OPT['idle']}")
    a(f"  ds_read_b64 {v(ENT,2)}, v{vent}")
    if OPT["ord"]:
        a(f"  s_lshr_b32 s{sq}, s{sW}, 2\n  s_and_b32 s{sK2}, s{sq}, s{sFirst}\n  s_cbranch_scc1 K_DLATER")
    a("  s_waitcnt lgkmcnt(0)")
    for x in dma_issue(): a("\n".join(x))
    a(f"""
  ds_read_b64 {v(ENT,2)}, v{vent} offset:2048
  s_cmp_eq_u32 s{sFirst}, 0
  s_cbranch_scc1 K_NOGEMM0
  s_cmp_eq_u32 s{sOV+6}, 0
  s_cbranch_scc1 K_WLATE
  s_waitcnt vmcnt({ndma}) lgkmcnt(0)
K_WOK:
  s_mov_b32 s{sFirst}, 0""")
    rare.append(f"K_WLATE:\n  s_mov_b32 s{sOV+6}, 1\n" + "\n".join(wl) + "\n  s_waitcnt vmcnt(0) lgkmcnt(0)\n  s_branch K_WOK")
    rare.append(f"K_DLATER:\n  s_cmp_eq_u32 s{sOV+6}, 0\n  s_cbranch_scc1 K_WLATE\n  s_waitcnt vmcnt(0) lgkmcnt(0)\n  s_branch K_WOK")
    node_gemm(W2F, WUT)
    if OPT["ord"]:
        a(f"  s_cmp_eq_u32 s{sK2}, 0\n  s_cbranch_scc1 K_DDONE")
        for x in dma_issue(): a("\n".join(x))
        a(f"  ds_read_b64 {v(ENT,2)}, v{vent} offset:2048\nK_DDONE:")
    for st in range(4):
        a(f"  buffer_load_dwordx4 {v(WUB+4*st,4)}, v{vgl}, {s(SW,4)}, s{sUB} offen offset:{st*1024} sc1")
    def pf5():
        a(f"  s_mul_i32 s{sq}, s2, 40000\n  v_add_u32 v{t0}, s{sq}, v{vt16}")
        for j in range(5):
            a(f"  buffer_load_dwordx4 {v(DUM,4)}, v{t0}, {s(SE,4)}, 0 offen")
            if j < 4: a(f"  v_add_u32 v{t0}, 8192, v{t0}")
    if OPT["pf2"] == 1: pf5()
    a(f"""
  s_or_b32 s{sq}, s2, s{sW}
  s_cmp_lg_u32 s{sq}, 0
  s_cbranch_scc1 K_NONONCE
  s_mov_b64 exec, 1
  v_mov_b32 v{t0}, {FNON}
  v_mov_b32 v{t1}, s{sTag}
  buffer_store_dword v{t1}, v{t0}, {s(SF,4)}, 0 offen
  s_mov_b64 exec, -1
  s_waitcnt vmcnt(0)
K_NONONCE:
  s_waitcnt lgkmcnt(0)
  s_barrier
K_NOGEMM:
  ds_read_b32 v{vgn1}, v{vgq}
  ds_read_b32 v{vsrow}, v{vrow}
  ds_read_b128 {v(GN,4)}, v{vga}
  s_waitcnt vmcnt({9 if OPT["pf2"] == 1 else 4})""")
    stamp(a, 8, 96)
    for x in frag_reads(): a(x)
    a(f"""
  s_waitcnt lgkmcnt({9 if not OPT['smf'] else 15})
  v_mad_u32_u24 v{vqa}, v{vgn1}, s{sQS}, v{vqlane}
  v_lshrrev_b64 {v(AQ,2)}, v{vsrow}, {v(PAT,2)}""")
    for x in bq_reads(): a(x)
    a("  s_waitcnt lgkmcnt(0)")
    for x in dma_issue(): a("\n".join(x))
    if OPT["pf2"] == 2: pf5()
    if OPT["idle2"]: a(f"  s_sleep {OPT['idle2']}")
    for x in chain(0, D0): a(x)
    if OPT["prio"]:
        a(f"  s_cmp_lt_u32 s{sW}, 4\n  s_cbranch_scc1 K_PR\n  s_setprio 1\nK_PR:")
    a(f"""
  s_nop 7
  s_nop 3
  s_cmp_eq_u32 s{sCnt}, 0
  s_cbranch_scc1 K_LOOPEND
  s_cmp_lg_u32 s{sMode}, 0
  s_cbranch_scc1 K_SAFE
  {"s_branch K_QUAD" if not OPT["octo"] else ""}
  s_sub_u32 s{sCnt}, s{sCnt}, s{sCO}
  s_cmp_eq_u32 s{sCO}, 0
  s_cbranch_scc1 K_QUAD""")

    def p(r): return v(r, 2)
    def octet_fast(d, e, t, r, sres):
        ex = [f"  v_exp_f32 v{e+i}, v{d+i}" for i in range(8)]
        L = [f"  v_pk_add_f32 {p(t)}, {p(e)}, 1.0 op_sel_hi:[1,0]",
             f"  v_pk_add_f32 {p(t+2)}, {p(e+4)}, 1.0 op_sel_hi:[1,0]",
             f"  v_pk_fma_f32 {p(t+4)}, {p(d)}, {p(e+2)}, {p(d)}",
             f"  v_pk_fma_f32 {p(t+6)}, {p(d+4)}, {p(e+6)}, {p(d+4)}",
             f"  v_pk_fma_f32 {p(e)}, {p(t)}, {p(e+2)}, {p(t)}",
             f"  v_pk_fma_f32 {p(e+4)}, {p(t+2)}, {p(e+6)}, {p(t+2)}",
             f"  v_pk_fma_f32 {p(t+4)}, {p(d+2)}, {p(t)}, {p(t+4)}",
             f"  v_pk_fma_f32 {p(t+6)}, {p(d+6)}, {p(t+2)}, {p(t+6)}",
             f"  v_pk_mul_f32 {p(t)}, {p(e)}, {p(e+4)}",
             f"  v_pk_mul_f32 {p(t+4)}, {p(t+4)}, {p(e+4)}",
             f"  v_rcp_f32 v{r}, v{t}",
             f"  v_rcp_f32 v{r+1}, v{t+1}",
             f"  v_pk_fma_f32 {p(t+4)}, {p(t+6)}, {p(e)}, {p(t+4)}",
             f"  v_pk_mul_f32 {p(sres)}, {p(t+4)}, {p(r)}"]
        return ex, L
    def octet_safe(d, e, t, r, sres):
        ex = [f"  v_exp_f32 v{e+i}, v{d+i}" for i in range(8)]
        L = [f"  v_pk_add_f32 {p(e+2*i)}, {p(e+2*i)}, 1.0 op_sel_hi:[1,0]" for i in range(4)]
        L += [f"  v_rcp_f32 v{t+i}, v{e+i}" for i in range(8)]
        L += [f"  v_pk_mul_f32 {p(sres)}, {p(d)}, {p(t)}"]
        L += [f"  v_pk_fma_f32 {p(sres)}, {p(d+2*i)}, {p(t+2*i)}, {p(sres)}" for i in range(1, 4)]
        return ex, L
    def zipl(x, y):
        o = []
        for i in range(max(len(x), len(y))):
            if i < len(x): o.append(x[i])
            if i < len(y): o.append(y[i])
        return o
    def adds(t, kind):
        if OPT["noadd"]: return [f"  ds_read_b32 v{DUM}, v{vgq}"] * (2 if kind == "octo" else 4)
        if kind == "octo": return [f"  ds_add_f64 v{AD+2*xy}, {v(CV+2*xy,2)} offset:{256*t}" for xy in range(2)]
        return [f"  ds_add_f64 v{AD+2*xy+o}, {v(CV+2*(2*o+xy),2)} offset:{256*t}" for o in range(2) for xy in range(2)]
    def block_body(kind, u, nun):
        oc = octet_safe if kind == "safe" else octet_fast
        nadd = 2 if kind == "octo" else 4
        B = []
        for t in range(4):
            D = D0 if t % 2 == 0 else D1
            Dn = D1 if t % 2 == 0 else D0
            exa, La = oc(D, EA, TA, RA, SA)
            exb, Lb = oc(D+8, EB, TB, RB, SB)
            ex = exa + exb
            ch = chain((t+1) % 4, Dn)
            late = []
            if kind == "octo" and OPT["seq"]:
                dk = DK + 2*(t & 1)
                E_ = lambda i: p(EA+2*i) if i < 4 else p(EB+2*(i-4))
                def run(i0, n, Dr, Nr, Tr, Dlast):
                    L = [f"  v_pk_add_f32 {p(Dr)}, {E_(i0)}, 1.0 op_sel_hi:[1,0]"]
                    cur = p(D+2*i0)
                    for i in range(i0+1, i0+n):
                        L.append(f"  v_pk_fma_f32 {p(Tr)}, {cur}, {E_(i)}, {cur}")
                        nd = Dlast if i == i0+n-1 else (Dr ^ 2)
                        L.append(f"  v_pk_fma_f32 {p(nd)}, {p(Dr)}, {E_(i)}, {p(Dr)}")
                        L.append(f"  v_pk_fma_f32 {p(Nr)}, {p(D+2*i)}, {p(Dr)}, {p(Tr)}")
                        Dr = nd; cur = p(Nr)
                    return L
                assert TA % 4 == 0 and TB % 4 == 0
                if OPT["seq"] == 1:
                    pk = run(0, 8, TA, TA+4, TA+6, dk)
                    pk = pk[:-1] + [f"  v_rcp_f32 v{RA}, v{dk}", f"  v_rcp_f32 v{RA+1}, v{dk+1}"] + pk[-1:]
                    if t & 1: pk.append(f"  v_pk_fma_f32 {p(MAC)}, {p(DK)}, {p(DK+2)}, {p(MAC)}")
                    else: pk.append("  s_nop 0")
                    pk.append(f"  v_pk_mul_f32 {p(SA)}, {p(TA+4)}, {p(RA)}")
                else:
                    pk = zipl(run(0, 4, TA, TA+4, TA+6, RB), run(4, 4, TB, TB+4, TB+6, SB))
                    pk = pk[:-2] + [f"  v_pk_mul_f32 {p(dk)}, {p(RB)}, {p(SB)}"] + pk[-2:] + \
                         [f"  v_rcp_f32 v{RA}, v{dk}", f"  v_rcp_f32 v{RA+1}, v{dk+1}",
                          f"  v_pk_mul_f32 {p(TA+4)}, {p(TA+4)}, {p(SB)}"]
                    if t & 1: pk.append(f"  v_pk_fma_f32 {p(MAC)}, {p(DK)}, {p(DK+2)}, {p(MAC)}")
                    pk += [f"  v_pk_fma_f32 {p(TA+4)}, {p(TB+4)}, {p(RB)}, {p(TA+4)}",
                           f"  v_pk_mul_f32 {p(SA)}, {p(TA+4)}, {p(RA)}"]
                fin = [f"  v_cvt_f64_f32 {v(CV+2*xy,2)}, v{SA+xy}" for xy in range(2)]
                adr = (0, 2)
            elif kind == "octo":
                keep = lambda L: [x for x in L[:-1] if "v_rcp" not in x]
                dk = DK + 2*(t & 1)
                pk = zipl(keep(La), keep(Lb))
                pk = pk[:-4] + [f"  v_pk_mul_f32 {p(dk)}, {p(TA)}, {p(TB)}"] + pk[-4:-2] + \
                     [f"  v_rcp_f32 v{RA}, v{dk}", f"  v_rcp_f32 v{RA+1}, v{dk+1}"] + pk[-2:] + \
                     [f"  v_pk_mul_f32 {p(TA+4)}, {p(TA+4)}, {p(TB)}"]
                if t & 1: pk.append(f"  v_pk_fma_f32 {p(MAC)}, {p(DK)}, {p(DK+2)}, {p(MAC)}")
                pk += [f"  v_pk_fma_f32 {p(TA+4)}, {p(TB+4)}, {p(TA)}, {p(TA+4)}",
                       f"  v_pk_mul_f32 {p(SA)}, {p(TA+4)}, {p(RA)}"]
                fin = [f"  v_cvt_f64_f32 {v(CV+2*xy,2)}, v{SA+xy}" for xy in range(2)]
                adr = (0, 2)
            else:
                pk = zipl(La, Lb)
                if kind == "quad":
                    idx = max(i for i, x in enumerate(pk) if x.startswith(f"  v_pk_mul_f32 {p(TB)}, {p(EB)}"))
                    pk.insert(idx+1, f"  v_pk_fma_f32 {p(MAC)}, {p(TA)}, {p(TB)}, {p(MAC)}")
                fin = [f"  v_cvt_f64_f32 {v(CV+2*(2*o+xy),2)}, v{S+xy}" for o, S in ((0, SA), (1, SB)) for xy in range(2)]
                adr = range(4)
            fin += adds(t, kind)
            if t == 0:
                pk = pk[:4] + [f"  v_mad_u32_u24 v{AD+i}, v{GN+i}, s{sAS}, v{vacl}" for i in adr] + pk[4:]
            if t == 1:
                pk = pk[:8] + [f"  ds_read_b64 {v(ENT,2)}, v{vent} offset:{4096+2048*u}",
                      f"  ds_read_b32 v{vgn1}, v{vgq} offset:{256+256*u}",
                      f"  ds_read_b32 v{vsrow}, v{vrow} offset:{2048+2048*u}",
                      f"  ds_read_b128 {v(GN,4)}, v{vga} offset:{256+256*u}"] + pk[8:]
            if t == 3:
                B.append(f"  s_waitcnt lgkmcnt({nadd})")
            dma = dma_issue() if t == 3 else []
            per = 16 // len(ch); e = 0
            for i, m in enumerate(ch):
                B.append(m)
                n = per if i < len(ch)-1 else 16 - e
                B += ex[e:e+2]
                if late: B.append(late.pop(0))
                B += ex[e+2:e+n]; e += n
                if OPT["dmapos"] == 0:
                    for _ in range(2):
                        if dma: B += dma.pop(0)
            if t == 2:
                mid = [f"  s_waitcnt vmcnt(0) lgkmcnt({nadd})",
                       f"  v_mad_u32_u24 v{vqa}, v{vgn1}, s{sQS}, v{vqlane}"]
                rd = frag_reads() + bq_reads()
                aq = [f"  v_lshrrev_b64 {v(AQ,2)}, v{vsrow}, {v(PAT,2)}"]
                if OPT["rdgap"] == 0: B += mid + rd + aq + pk
                else:
                    q = []
                    for i, x in enumerate(aq + pk):
                        if rd and i % OPT["rdgap"] == 0: q.append(rd.pop(0))
                        q.append(x)
                    B += mid + q + rd
            elif t == 3:
                inc = []
                if u == nun - 1 and OPT["bench"]:
                    inc = [f"  v_add_u32 v{DUM+i}, {2048*nun}, v{vent}" for i in range(4)]
                elif u == nun - 1:
                    inc = incs(nun)
                pk = pk + inc
                if OPT["dmapos"] == 1:
                    q = []
                    for i, x in enumerate(pk):
                        if dma and i % 3 == 0: q += dma.pop(0)
                        q.append(x)
                    pk = q
                for x in dma: B += x
                B += pk
            else:
                B += pk
            B += fin
        return B
    def incs(n):
        return [f"  v_add_u32 v{vent}, {2048*n}, v{vent}", f"  v_add_u32 v{vrow}, {2048*n}, v{vrow}",
                f"  v_add_u32 v{vgq}, {256*n}, v{vgq}", f"  v_add_u32 v{vga}, {256*n}, v{vga}"]
    def loop(kind):
        lab = {"safe": "K_SAFE", "quad": "K_QUAD", "octo": "K_FAST"}[kind]
        nun = OPT["unroll"] if kind == "octo" else 1
        cnt = sCO if kind == "octo" else sCnt
        L = []
        for u in range(nun):
            L += block_body(kind, u, nun)
            L.append(f"  s_sub_u32 s{cnt}, s{cnt}, 1")
            L.append(f"  s_cmp_lg_u32 s{cnt}, 0")
            L.append(f"  s_cbranch_scc1 {lab}" if u == nun - 1 else f"  s_cbranch_scc0 K_OX{u}")
        ab = OPT["abl"]
        if ab & 1: L = [x for x in L if not ("v_mfma" in x and (f", {v(I0,4)}," in x or f", {v(I1,4)}," in x))]
        if ab & 2: L = [x for x in L if "v_mfma_f32_32x32x8" not in x and "tr_b16" not in x]
        if ab & 4: L = [x.replace("v_exp_f32", "v_mov_b32") for x in L]
        if ab & 8: L = [x for x in L if "v_pk_" not in x]
        if ab & 16: L = [x for x in L if "v_mfma" not in x]
        if ab & 32: L = [x for x in L if "ds_read_b128" not in x]
        if ab & 64: L = [x for x in L if "v_exp" not in x]
        if ab & 128:
            M = []
            for x in L:
                if "v_mfma" in x and f", {v(I1,4)}," in x: continue
                if "v_mfma" in x and f", {v(I0,4)}," in x:
                    m = re.match(r"\s*v_mfma_f32_32x32x16_bf16 (v\[\d+:\d+\]), v\[(\d+):", x)
                    M.append(f"  v_smfmac_f32_32x32x32_bf16 {m.group(1)}, {v(I0,4)}, {v(int(m.group(2)),8)}, v{vone}"); continue
                m = re.match(r"\s*ds_read_b128 v\[(\d+):\d+\], v(\d+) offset:(\d+)", x)
                if m and PF <= int(m.group(1)) < PF + 32:
                    r0 = int(m.group(1))
                    M.append(f"  ds_read_b64_tr_b16 {v(r0,2)}, v{vqa} offset:{m.group(3)}")
                    M.append(f"  ds_read_b64_tr_b16 {v(r0+2,2)}, v{vqa} offset:{int(m.group(3))+128}"); continue
                M.append(x)
            L = M
        if ab & 256:
            M = []
            for x in L:
                if "v_mfma" in x and (f", {v(I1,4)}," in x or f", {v(I0,4)}," in x): continue
                if "v_mfma_f32_32x32x16" in x and x.rstrip().endswith(", 0"): x = x.rstrip()[:-1] + v(PF, 16)
                m = re.match(r"\s*ds_read_b128 v\[(\d+):\d+\], v(\d+) offset:(\d+)", x)
                if m and PF <= int(m.group(1)) < PF + 32:
                    for q in range(8): M.append(f"  ds_read_u16_d16_hi v{PF+(int(m.group(1))+q)%32}, v{vacl} offset:{64*q}")
                    continue
                M.append(x)
            L = M
        if OPT["align"]: L = align8(L)
        a(f".p2align 6\n{lab}:")
        for x in L: a(x)
    loop("octo")
    a(f"""
K_OXE:
  s_cmp_lg_u32 s{sCnt}, 0
  s_cbranch_scc1 K_QUAD""")
    a(f"""
K_LOOPEND:""")
    a(f"""
  s_waitcnt vmcnt(0) lgkmcnt(0)
  s_barrier""")
    stamp(a, 9, 98)
    a(f"""
  s_cmp_lg_u32 s{sKind}, 0
  s_cbranch_scc1 K_NEXT
K_CELLSDONE:
  v_mov_b32 v{t0}, {L_FLG+32}
  ds_read_b128 {v(CV,4)}, v{t0}
K_CONV:
  s_mul_i32 s{sTmp}, s{sW}, {AS}
  s_add_u32 s{sTmp}, s{sTmp}, {L_ACC}
  v_lshlrev_b32 v{t1}, 4, v{vl}
  v_add_u32 v{t1}, s{sTmp}, v{t1}""")
    for k in range(5):
        a(f"  ds_read_b128 {v(D0+4*k,4)}, v{t1} offset:{k*8*AS}")
    a(f"""
  s_mul_i32 s{sTmp}, s{sW}, {XS}
  s_add_u32 s{sTmp}, s{sTmp}, {L_X}
  v_lshlrev_b32 v{t2}, 2, v{vl}
  v_add_u32 v{t2}, s{sTmp}, v{t2}
  s_cmp_ge_u32 s{sKind}, 3
  s_cbranch_scc1 K_CONV2
  s_waitcnt lgkmcnt(5)
  v_or3_b32 v{t0}, v{CV}, v{CV+1}, v{CV+2}
  v_or_b32 v{t0}, v{t0}, v{CV+3}
  v_cmp_ne_u32 vcc, 0, v{t0}
  s_cbranch_vccnz K_STARTOV
K_CONV2:
  s_mov_b32 s{sTmp}, 0x71800000              ; 2^100
  v_cmp_nle_f32 {s(sBad,2)}, v{MAC}, s{sTmp}
  v_cmp_nle_f32 vcc, v{MAC+1}, s{sTmp}
  s_or_b64 {s(sBad,2)}, {s(sBad,2)}, vcc
  s_movk_i32 s{sTmp}, 0x207""")
    for k in range(5):
        a(f"""
  s_waitcnt lgkmcnt(4)
  v_cvt_f32_f64 v{EA+2*k}, {v(D0+4*k,2)}
  v_cvt_f32_f64 v{EA+2*k+1}, {v(D0+4*k+2,2)}
  v_cvt_pk_bf16_f32 v{EB+k}, v{EA+2*k}, v{EA+2*k+1}
  ds_write_b32 v{t2}, v{EB+k} offset:{k*8*XS}""")
    a(f"  v_pk_mul_f32 {p(RA)}, {p(EA)}, 0 op_sel_hi:[1,0]")
    for k in range(1, 5):
        a(f"  v_pk_fma_f32 {p(RA)}, {p(EA+2*k)}, 0, {p(RA)} op_sel_hi:[1,0,1]")
    a(f"""
  v_add_f32 v{RA}, v{RA}, v{RA+1}
  v_cmp_class_f32 vcc, v{RA}, s{sTmp}
  s_or_b64 {s(sBad,2)}, {s(sBad,2)}, vcc""")
    a(f"""
  s_cmp_eq_u64 {s(sBad,2)}, 0
  s_cbranch_scc1 K_OKW
  v_mov_b32 v{t0}, {L_FLG}
  ds_write_b32 v{t0}, v{vone}
K_OKW:
  s_waitcnt lgkmcnt(0)
  s_barrier
  v_mov_b32 v{t0}, {L_FLG}
  ds_read_b32 v{t0}, v{t0}""")
    for nt in range(2):
        for st in range(4):
            a(f"  ds_read_b128 {v(XF+16*nt+4*st,4)}, v{vxb} offset:{nt*16*XS + st*64}")
    a(f"""
  s_waitcnt lgkmcnt(8)
  v_readfirstlane_b32 s{sTmp}, v{t0}
  s_cmp_gt_u32 s{sTmp}, s{sMode}
  {"s_cbranch_scc1 K_RESTART" if not EXP else "s_nop 0"}
  s_waitcnt lgkmcnt(4)""")
    for st in range(4):
        c = "0" if st == 0 else v(D0, 4)
        a(f"  v_mfma_f32_16x16x32_bf16 {v(D0,4)}, {v(WUB+4*st,4)}, {v(XF+4*st,4)}, {c}")
    for st in range(4):
        a(f"  ds_read_b128 {v(D1+4*st,4)}, v{vxb} offset:{2*16*XS + st*64}")
    a("  s_waitcnt lgkmcnt(4)")
    for st in range(4):
        c = "0" if st == 0 else v(D0+4, 4)
        a(f"  v_mfma_f32_16x16x32_bf16 {v(D0+4,4)}, {v(WUB+4*st,4)}, {v(XF+16+4*st,4)}, {c}")
    a("  s_waitcnt lgkmcnt(0)")
    for st in range(4):
        c = "0" if st == 0 else v(D0+8, 4)
        a(f"  v_mfma_f32_16x16x32_bf16 {v(D0+8,4)}, {v(WUB+4*st,4)}, {v(D1+4*st,4)}, {c}")
    a(f"""
  s_mov_b32 s{sK}, {NLN2}
  s_mov_b32 s{sK+1}, {NLN2}
  s_mov_b32 s{sTmp}, {NLOG2E}
  s_mov_b32 s{sTmp+1}, {NLOG2E}
  v_and_b32 v{t0}, 15, v{vl}
  v_lshlrev_b32 v{t0}, 8, v{t0}
  v_lshrrev_b32 v{t1}, 4, v{vl}
  v_lshl_add_u32 v{t0}, v{t1}, 3, v{t0}
  s_lshl_b32 s{sTmp+2}, s{sW}, 5
  v_add_u32 v{t0}, s{sTmp+2}, v{t0}
  v_add_u32 v{t1}, 4096, v{t0}
  v_add_u32 v{t2}, 8192, v{t0}""")
    for nt in range(3):
        d = D0 + 4*nt
        a(f"""
  v_pk_fma_f32 {p(d)}, {p(d)}, {s(sK,2)}, {p(U+4*nt)}
  v_pk_fma_f32 {p(d+2)}, {p(d+2)}, {s(sK,2)}, {p(U+4*nt+2)}
  v_pk_mul_f32 {p(EA)}, {p(d)}, {s(sTmp,2)}
  v_pk_mul_f32 {p(EA+2)}, {p(d+2)}, {s(sTmp,2)}""")
        for i in range(4): a(f"  v_exp_f32 v{EA+i}, v{EA+i}")
        a(f"  s_nop 0\n  v_pk_add_f32 {p(EA)}, {p(EA)}, 1.0 op_sel_hi:[1,0]\n  v_pk_add_f32 {p(EA+2)}, {p(EA+2)}, 1.0 op_sel_hi:[1,0]")
        for i in range(4): a(f"  v_rcp_f32 v{EA+i}, v{EA+i}")
        a(f"""
  s_nop 0
  v_pk_mul_f32 {p(d)}, {p(d)}, {p(EA)}
  v_pk_mul_f32 {p(d+2)}, {p(d+2)}, {p(EA+2)}
  v_cvt_pk_bf16_f32 v{EB+2*nt}, v{d}, v{d+1}
  v_cvt_pk_bf16_f32 v{EB+2*nt+1}, v{d+2}, v{d+3}
  {"buffer_store_dwordx2 %s, v%d, %s, 0 offen %s" % (v(EB+2*nt,2), t0+nt, s(SO,4), OFL) if not OPT["oc"] else ("s_mov_b32 exec_lo, 0x00ff00ff" + chr(10) + "  s_mov_b32 exec_hi, 0x00ff00ff" + chr(10) if nt == 2 else "") + "  ds_write_b64 v%d, %s offset:%d" % (vqw, v(EB+2*nt,2), nt*16*QS)}""")
    if OPT["oc"]:
        a(f"""
  s_mov_b64 exec, -1
  v_lshrrev_b32 v{t0}, 4, v0
  v_lshl_add_u32 v{t0}, v{t0}, 6, v{vt16}
  v_add_u32 v{t0}, {L_Q}, v{t0}
  v_add_u32 v{t1}, 8192, v{vt16}
  s_waitcnt lgkmcnt(0)
  s_barrier
  ds_read_b128 {v(PF,4)}, v{t0}
  ds_read_b128 {v(PF+4,4)}, v{t0} offset:{32*QS}
  s_waitcnt lgkmcnt(1)
  buffer_store_dwordx4 {v(PF,4)}, v{vt16}, {s(SO,4)}, 0 offen {OFL}
  s_waitcnt lgkmcnt(0)
  buffer_store_dwordx4 {v(PF+4,4)}, v{t1}, {s(SO,4)}, 0 offen {OFL}""")
    if OPT["stamp"]:
        a(f"""
  s_waitcnt vmcnt(0)
  s_memrealtime s[4:5]
  s_waitcnt lgkmcnt(0)
  s_lshl_b32 s6, s2, 3
  s_add_u32 s6, s6, s{sW}
  s_lshl_b32 s6, s6, 6
  s_add_u32 s6, s6, {WS_STAMP}
  s_add_u32 s6, s{pWS}, s6
  s_addc_u32 s7, s{pWS+1}, 0
  s_mov_b64 exec, 1
  v_mov_b32 v1, 0""")
        for i, r in enumerate([80+2*i for i in range(8)] + [96, 98, 4]):
            pass
        regs = [80, 82, 84, 86, 88, 90, 92, 94, 8, 9, 4, 10, 11, sT]
        for i, r in enumerate(regs):
            a(f"  v_mov_b32 v2, s{r}\n  global_store_dword v1, v2, s[6:7] offset:{4*i}")
    a(f"""
K_END:
  s_endpgm
""")
    a(f"""
K_PREP:
  s_sub_u32 s{sq}, s2, {2*G}
  s_lshl_b32 s{sq}, s{sq}, 14
  s_lshl_b32 s{sq+1}, s{sW}, 12
  s_add_u32 s{sq}, s{sq}, s{sq+1}
  v_lshlrev_b32 v{t0}, 4, v{vl}
  v_mov_b32 v{t7}, s{sTag}
  s_waitcnt vmcnt({10+NA})
  s_barrier""")
    wtr(PF, vqa)
    a("  s_waitcnt lgkmcnt(0)")
    for st in range(4):
        a(f"  buffer_store_dwordx4 {v(PF+4*st,4)}, v{t0}, {s(SW,4)}, s{sq} offen offset:{st*1024} sc1")
    a(f"""
  s_lshr_b32 s{sq}, s{sW}, 2
  s_add_u32 s{sq}, s{sq}, s2
  s_cmp_lg_u32 s{sq}, {2*G}
  s_cbranch_scc1 K_PREPD
  s_mov_b32 s{sq+1}, {NLOG2E}
  s_lshl_b32 s{sq}, s{sW}, 10
  s_waitcnt vmcnt({6+NA})""")
    for jj in range(8):
        a(f"  v_lshlrev_b32 v{D0+jj}, 16, v{D0+jj}\n  v_mul_f32 v{D0+jj}, s{sq+1}, v{D0+jj}")
    for i in range(4):
        a(f"  v_cvt_pk_bf16_f32 v{D0+8+i}, v{D0+2*i}, v{D0+1+2*i}")
    for i in range(4):
        a(f"""
  v_lshlrev_b32 v{t2}, 16, v{D0+8+i}
  v_and_b32 v{t3}, 0xffff0000, v{D0+8+i}
  v_sub_f32 v{t2}, v{D0+2*i}, v{t2}
  v_sub_f32 v{t3}, v{D0+1+2*i}, v{t3}
  v_cvt_pk_bf16_f32 v{D0+12+i}, v{t2}, v{t3}""")
    a(f"""
  s_add_u32 s{sq+1}, s{sq}, {WF_3L}
  s_add_u32 s{sq}, s{sq}, {WF_3H}
  buffer_store_dwordx4 {v(D0+8,4)}, v{t0}, {s(SW,4)}, s{sq} offen sc1
  buffer_store_dwordx4 {v(D0+12,4)}, v{t0}, {s(SW,4)}, s{sq+1} offen sc1
K_PREPD:""")
    own_x(4+NA)
    a(f"""
  s_sub_u32 s{sq}, s2, {2*G}
  s_lshl_b32 s{sq}, s{sq}, 1
  v_lshl_add_u32 v{t0}, v0, 7, s{sq}
  s_waitcnt vmcnt(0)
  s_barrier
  s_cmp_ge_u32 s{sW}, 4
  s_cbranch_scc1 K_PST
  buffer_store_dword v{t7}, v{t0}, {s(SF,4)}, 0 offen {FLF}
  s_branch K_PST""")
    a(f"""
K_OVF:
  s_waitcnt lgkmcnt(0)
  s_barrier
  s_mul_i32 s{sq+1}, s2, {OVSTR//2}
  s_add_u32 s{sq+1}, s{sq+1}, 64
  v_mov_b32 v{t5}, {L_FLG+8}
  v_mov_b32 v{t6}, -1""")
    for j in range(5):
        a(f"""
  v_cmp_le_u32 vcc, {CAP-1}, v{RK+j}
  s_and_b64 exec, exec, vcc
  s_cbranch_execz K_OV{j}
  v_add_u32 v{t1}, {L_BCNT}, v{B4+j}
  ds_read_b32 v{t1}, v{t1}
  s_waitcnt lgkmcnt(0)
  v_cmp_ne_u32 vcc, {CAP}, v{t1}
  s_nop 1
  v_cndmask_b32 v{t3}, v{SS_+j}, v{t6}, vcc
  ds_write_b32 v{CA+j}, v{t3} offset:{CELLB-8}
  s_and_b64 exec, exec, vcc
  s_cbranch_execz K_OV{j}
  ds_add_rtn_u32 v{t1}, v{t5}, v{vone}
  v_mov_b32 v{CV}, v{SS_+j}
  v_lshrrev_b32 v{CV+1}, 2, v{B4+j}
  s_waitcnt lgkmcnt(0)
  v_lshl_add_u32 v{t1}, v{t1}, 3, s{sq+1}
  buffer_store_dwordx2 {v(CV,2)}, v{t1}, {s(SV,4)}, 0 offen sc1
  s_waitcnt vmcnt(0)
K_OV{j}:
  s_mov_b64 exec, -1""")
    a(f"""
  s_waitcnt lgkmcnt(0)
  s_barrier
  ds_read_b32 v{t1}, v{t5}
  s_sub_u32 s{sq+1}, s{sq+1}, 64
  v_mov_b32 v{t3}, s{sq+1}
  v_mov_b32 v{t2}, 0
  s_waitcnt lgkmcnt(0)
  buffer_store_dword v{t1}, v{t3}, {s(SV,4)}, 0 offen sc1
  s_waitcnt vmcnt(0)
  s_branch K_OVFDONE""")
    for u in range(OPT["unroll"] - 1):
        a(f"K_OX{u}:\n  s_cmp_eq_u32 s{sCnt}, 0\n  s_cbranch_scc1 K_LOOPEND")
        for x in incs(u + 1): a(x)
        a("  s_branch K_QUAD")
    loop("quad")
    a("  s_branch K_LOOPEND")
    a("K_TEXTEND:")
    loop("safe")
    a("  s_branch K_LOOPEND")
    a(f"""
""")
    for x in rare: a(x)
    a(f"""
K_NOGEMM0:
  s_waitcnt vmcnt(0)
  s_branch K_NOGEMM
K_RESTART:
  s_mov_b32 s{sMode}, 1
  s_mov_b32 s{sKind}, 0
  s_waitcnt lgkmcnt(0)
  s_barrier
  v_mov_b32 v{CV}, 0
  v_mov_b32 v{CV+1}, 0
  v_mov_b32 v{CV+2}, 0
  v_mov_b32 v{CV+3}, 0""")
    for j in range(5):
        a(f"  ds_write_b128 v{vt16}, {v(CV,4)} offset:{L_ACC + j*8192}")
    a(f"""
  v_cmp_gt_u32 vcc, {(40*AS-5*8192)//16}, v0
  s_and_saveexec_b64 {s(sEx,2)}, vcc
  ds_write_b128 v{vt16}, {v(CV,4)} offset:{L_ACC + 5*8192}
  s_mov_b64 exec, {s(sEx,2)}
  s_branch K_RELOAD
K_SPLIT:
  s_mov_b32 s{sKind}, 1
  s_waitcnt lgkmcnt(0)
  s_barrier
  s_branch K_RELOAD
K_NEXT:
  s_cmp_eq_u32 s{sKind}, 4
  s_cbranch_scc1 K_NEXTOV
  s_cmp_eq_u32 s{sKind}, 3
  s_cbranch_scc1 K_OVPART1
  s_cmp_eq_u32 s{sKind}, 2
  s_cbranch_scc1 K_CELLSDONE
  s_mov_b32 s{sKind}, 2
K_RELOAD:
  v_lshrrev_b32 v{t1}, 2, v0
  s_mov_b32 s{sq}, {CH*32}
  v_mul_u32_u24 v{vebase}, s{sq}, v{t1}
  s_waitcnt vmcnt(0)""")
    for k in range(2):
        a(f"  buffer_load_dwordx4 {v(REC+4*k,4)}, v{vcell}, {s(SC,4)}, 0 offen offset:{64*k} sc1")
    a(f"""
  s_waitcnt vmcnt(0)
  s_mov_b32 exec_lo, 0xaaaaaaaa
  s_mov_b32 exec_hi, 0xaaaaaaaa
  v_mov_b32 v{REC+3}, 0
  v_mov_b32 v{REC+7}, 0
  s_mov_b64 exec, -1
  s_cmp_eq_u32 s{sKind}, 0
  s_cbranch_scc1 K_ROUND
  s_lshr_b32 s{sq}, s{sW}, 2
  s_add_u32 s{sq}, s{sq}, 1
  s_cmp_eq_u32 s{sq}, s{sKind}
  s_cbranch_scc1 K_ROUND""")
    for k in range(NR): a(f"  v_mov_b32 v{REC+k}, 0")
    a(f"""
K_ROUND:
  v_mov_b32 v{CV}, 0
  v_mov_b32 v{CV+1}, 0
  v_mov_b32 v{CV+2}, 0
  v_mov_b32 v{CV+3}, 0
  v_cmp_gt_u32 vcc, {(L_FLG-L_GN)//16}, v0
  s_and_saveexec_b64 {s(sEx,2)}, vcc
  ds_write_b128 v{vt16}, {v(CV,4)} offset:{L_GN}
  s_mov_b64 exec, {s(sEx,2)}""")
    prefill()
    a(f"""
  v_and_b32 v{vent}, 2047, v{vent}
  v_and_b32 v{vrow}, 2047, v{vrow}
  v_subrev_u32 v{vga}, {L_GN}, v{vga}
  v_and_b32 v{vga}, 255, v{vga}
  v_add_u32 v{vga}, {L_GN}, v{vga}
  v_and_b32 v{t2}, 12, v{vl}
  v_add_u32 v{vgq}, v{vga}, v{t2}
  s_waitcnt lgkmcnt(0)
  s_barrier
  s_branch K_PHASE1
K_STARTOV:""")
    for i in range(4): a(f"  v_readfirstlane_b32 s{sOV+i}, v{CV+i}")
    a(f"""
  s_mov_b32 s{sKind}, 4
  s_waitcnt lgkmcnt(0)
K_NEXTOV:""")
    for i in range(2):
        a(f"""
  s_ff1_i32_b64 s{sP}, {s(sOV+2*i,2)}
  s_cmp_eq_u32 s{sP}, -1
  s_cbranch_scc1 K_OVN{i}
  s_bitset0_b64 {s(sOV+2*i,2)}, s{sP}
  s_add_u32 s{sP}, s{sP}, {64*i}
  s_branch K_OVGO
K_OVN{i}:""")
    a(f"""
  s_branch K_CONV
K_OVGO:
  s_mov_b32 s{sKind}, 3
  v_mov_b32 v{t4}, v0
  s_branch K_OVLD
K_OVPART1:
  s_mov_b32 s{sKind}, 4
  v_add_u32 v{t4}, 2048, v0
K_OVLD:
  s_mul_i32 s{sq}, s{sP}, {OVSTR}
  s_mul_i32 s{sq+1}, s{sP}, {CH*32}
  v_mov_b32 v{vebase}, s{sq+1}
  v_mov_b32 v{t0}, s{sq}
  buffer_load_dword v{t1}, v{t0}, {s(SV,4)}, 0 offen sc1
  v_lshl_add_u32 v{t2}, v{t4}, 3, v{t0}""")
    for k in range(4):
        a(f"  buffer_load_dwordx2 {v(PF+2*k,2)}, v{t2}, {s(SV,4)}, 0 offen offset:64 sc1\n  v_add_u32 v{t2}, 4096, v{t2}")
    a(f"  s_waitcnt vmcnt(0)")
    for k in range(4):
        a(f"""
  v_cmp_lt_u32 vcc, v{t4}, v{t1}
  v_cmp_eq_u32 {s(sEx,2)}, s2, v{PF+2*k+1}
  s_and_b64 vcc, vcc, {s(sEx,2)}
  v_add_u32 v{t4}, 512, v{t4}
  s_nop 1
  v_cndmask_b32 v{REC+k}, 0, v{PF+2*k}, vcc""")
    for k in range(4, NR): a(f"  v_mov_b32 v{REC+k}, 0")
    a("  s_branch K_ROUND")
    return a.text(), nv, NS

def gen_diag(idx):
    a = Asm()
    a(f"""
.globl mpnn_d_kernel
.p2align 8
.type mpnn_d_kernel,@function
mpnn_d_kernel:
  s_cmp_ge_u32 s2, 1
  s_cbranch_scc1 D_END
  s_load_dwordx2 s[4:5], s[0:1], 64
  s_waitcnt lgkmcnt(0)
  s_add_u32 s4, s4, {WS_STAMP + (OPT['wsb'] << 20)}
  s_addc_u32 s5, s5, 0
  s_load_dword s6, s[4:5], 0
  s_waitcnt lgkmcnt(0)
  s_sub_u32 s6, s6, 100000""")
    for q, (ix, ismax) in enumerate(((idx, 1), (0, 0))):
        op = "max" if ismax else "min"
        a(f"  v_lshlrev_b32 v1, {6 if not OPT['dodd'] else 10}, v0\n  v_add_u32 v1, {ix*4 + (512 + 64*(OPT['dodd']-1) if OPT['dodd'] else 0)}, v1\n  v_mov_b32 v3, {0 if ismax else -1}")
        nk = 32 if not OPT['dodd'] else 2
        for k in range(nk):
            a(f"  global_load_dword v{8+k}, v1, s[4:5]\n  v_add_u32 v1, {4096 if not OPT['dodd'] else 65536}, v1")
        a("  s_waitcnt vmcnt(0)")
        for k in range(nk):
            a(f"  v_subrev_u32 v2, s6, v{8+k}\n  v_{op}_u32 v3, v3, v2")
        a(f"  s_mov_b32 s{20+q}, {0 if ismax else -1}\n  s_nop 1")
        for l in range(64):
            a(f"  v_readlane_b32 s8, v3, {l}\n  s_nop 0\n  s_{op}_u32 s{20+q}, s{20+q}, s8")
    a(f"""
  s_sub_u32 s20, s20, s21
  s_min_u32 s20, s20, 20000
  s_lshl_b32 s20, s20, 3
  {'s_mov_b32 s20, 0' if OPT['dz'] else ''}
  s_memrealtime s[8:9]
  s_waitcnt lgkmcnt(0)
D_L:
  s_memrealtime s[10:11]
  s_waitcnt lgkmcnt(0)
  s_sub_u32 s12, s10, s8
  s_cmp_lt_u32 s12, s20
  s_cbranch_scc1 D_L
D_END:
  s_endpgm
""")
    return a.text()

HEAD = """; Kernarg layout for this problem (72 bytes, ptrs only, base s[0:1]):
"""
def main():
    k, nv, ns = gen()
    out = HEAD + f"; @launch grid=({NB},1,1) block=(512,1,1) lds={LDS}\n"
    if OPT["diag"] >= 0:
        out = HEAD + f"; @launch kernel={KN} grid=({NB},1,1) block=(512,1,1) lds={LDS}\n; @launch kernel=mpnn_d_kernel grid=(1,1,1) block=(64,1,1) lds=0\n"
        k += gen_diag(OPT["diag"])
    out += '.amdgcn_target "amdgcn-amd-amdhsa--gfx950"\n.text\n' + k
    out += f""".section .rodata,"a"
.p2align 6
.amdhsa_kernel {KN}
  .amdhsa_next_free_vgpr {nv}
  .amdhsa_next_free_sgpr {ns}
  .amdhsa_accum_offset {(nv+3)//4*4}
  .amdhsa_group_segment_fixed_size 0
  .amdhsa_kernarg_size 72
  .amdhsa_user_sgpr_count 2
  .amdhsa_user_sgpr_kernarg_segment_ptr 1
  .amdhsa_system_sgpr_workgroup_id_x 1
.end_amdhsa_kernel
"""
    if OPT["diag"] >= 0:
        out += """.p2align 6
.amdhsa_kernel mpnn_d_kernel
  .amdhsa_next_free_vgpr 48
  .amdhsa_next_free_sgpr 32
  .amdhsa_accum_offset 48
  .amdhsa_group_segment_fixed_size 0
  .amdhsa_kernarg_size 72
  .amdhsa_user_sgpr_count 2
  .amdhsa_user_sgpr_kernarg_segment_ptr 1
  .amdhsa_system_sgpr_workgroup_id_x 1
.end_amdhsa_kernel
"""
    open(sys.argv[1], "w").write(out)
    print("vgprs", nv, "lds", LDS)
main()
```

```python
from common import *

N = 10000; E = 320000
G = 125
CH = 2560
NB = 256
MAGIC = 26843
CAP = 28
CELLB = 128
BSTR = G * CELLB

WS_P = 256
WS_CELL = 0x280000
WS_WF = 0x1280000
WF_W2, WF_UT, WF_UB, WF_3H, WF_3L = 0, 32768, 65536, 98304, 102400
WF_SIZE = 106496
WS_OVF = 0x12A0000
OVSTR = 64 + CH * 8
WS_FLAG = 0x1520000
WS_STAMP = 0x1600000

OPT = dict(lo=0, k8=1, stamp=0, nodma=0, noadd=0, noe=0, hot=0, align=1, unroll=2, dmapos=0, rdpos=0, dsc=1, pf=1, slp=0, stf=1, addpos=0, rdgap=0, prio=0, bench=0, octo=1, frep=8, fln=16, slp0=0, plf=1, flf=1, diag=-1, touch=0, dz=0, abl=0, dodd=0, wsb=0, claim=0, slpa=0, slpb=0, zt=0, cpf=0, pf2=0, stag=0, bdl=0, wfirst=0, fine=0, half=0, dbg=0, s0st=0, spf=0, spfb=0, early=0, gate=0, ord=0, s0m=0, idle=0, idle2=0, seq=0, smf=0, of=0, oc=0, pert=0)
for a_ in sys.argv[2:]:
    k_, v_ = a_.split("="); OPT[k_] = int(v_)
EXP = OPT["dbg"] or OPT["half"] or OPT["bench"] or OPT["nodma"] or OPT["noe"] or OPT["noadd"] or OPT["hot"]

FL_ = ['', 'sc1', 'sc0 sc1', 'sc1 nt', 'sc0 sc1 nt']; PLF = FL_[OPT['plf']]; FLF = FL_[OPT['flf']]
OFL = ['', 'sc1', 'nt', 'sc0 sc1', 'sc1 nt'][OPT['of']]
STF = ['', 'sc1', 'sc0 sc1', 'sc1 nt'][OPT['stf']]
FREP = OPT['frep']; FLN = OPT['fln']; FSH = (128//FLN).bit_length()-1; FHALF = FREP*FLN*256; FNON = 2*FHALF; FMASK = hex((1<<FREP)-1)
NA = 1 if OPT['claim'] & 4 else 0
NCL = (3 if OPT['claim'] & 1 else 0) + NA
NCC = (4 if OPT['claim'] & 2 else 0) + NA
CAPB = 70
L_ENT = 0
L_GN = (CAPB + 1) * 256
L_CNT = L_GN + (CAPB + 17) * 32
L_FLG = L_CNT + 256
L_ACC = L_FLG + 64
AS = 1040
L_Q = L_ACC + 40 * AS
QS = 320
L_X = L_Q + 40 * QS
XS = 288
L_STG = L_X + 40 * XS
STG = 8 * 1040 + 1024
LDS = L_STG + 8 * STG
L_CIMG = L_STG
L_BCNT = L_CIMG + NB * CELLB
WPITCH = 1088
L_GP = L_STG + 1024
L_WS = L_STG + 32 * WPITCH
assert L_BCNT + 1024 <= LDS and L_STG % 16 == 0 and L_ACC % 16 == 0
PADS, PADE = 0x8000003f, 0x80000000
KN = "standalone__mpnn_edge_mlp__graph_kernel"

def fstamp(a, i):
    if OPT["fine"]: a(f"  s_memrealtime s[{80+2*i}:{81+2*i}]")
def stamp(a, i, cyc=None):
    if OPT["fine"] and i in (1, 2, 3, 5): return
    if OPT["stamp"]:
        if cyc is None:
            a(f"  s_memrealtime s[{80+2*i}:{81+2*i}]\n  s_waitcnt lgkmcnt(0)")
        else:
            a(f"  s_memrealtime s[96:97]\n  s_memtime s[98:99]\n  s_waitcnt lgkmcnt(0)\n  s_mov_b32 s{i}, s96\n  s_mov_b32 s{i+2}, s98")

def gen():
    a = Asm()
    rare = []
    R = Regs(1)
    al = R.alloc
    vl = al("lane")
    t0 = al("t", 8, 2); t1, t2, t3, t4, t5, t6, t7 = range(t0+1, t0+8)
    vchunk = al("vchunk"); vechunk = al("vechunk")
    vent = al("vent"); vrow = al("vrow"); vgq = al("vgq"); vga = al("vga")
    vAlo = al("Alo"); vAhi = al("Ahi"); vEF = al("vEF")
    vAT = al("vAT", 4) if OPT["smf"] else None
    vqlane = al("vqlane"); vacl = al("vacl"); vxb = al("vxb"); vqw = al("vqw")
    vebase = al("vebase"); vone = al("vone"); vt16 = al("vt16"); vcell = al("vcell")
    vgl = al("vgl")
    vqa = al("vqa"); vsrow = al("vsrow"); vgn1 = al("vgn1")
    ENT = al("ENT", 2, 2)
    MAC = al("MAC", 2, 2)
    PAT = al("PAT", 2, 2)
    nq = 2 if OPT["k8"] else 4
    AQ = al("AQ", nq, 2)
    GN = al("GN", 4, 2); AD = al("AD", 4)
    DO = al("DO", 2)
    I0 = al("I0", 4, 2); I1 = al("I1", 4, 2)
    W3 = al("W3", 16, 2)
    W3L = al("W3L", 16, 2) if OPT["lo"] else None
    BQ = al("BQ", 4*nq, 2)
    EF = al("EF", 4, 2)
    PF = al("PF", 32, 2)
    D0 = al("D0", 16, 2); D1 = al("D1", 16, 2)
    EA = al("EA", 8, 4); TA = al("TA", 8, 4); EB = al("EB", 8, 4); TB = al("TB", 8, 4)
    RA = al("RA", 2, 2); RB = al("RB", 2, 2)
    SA = al("SA", 2, 2); SB = al("SB", 2, 2)
    CV = al("CV", 8, 2)
    U = al("U", 12, 2); WUB = al("WUB", 16, 2)
    DUM = al("DUM", 4, 2)
    DK = al("DK", 4, 2)
    nv = R.n
    assert TA == EA + 8 and EB == EA + 16 and TB == EA + 24 and D1 == D0 + 16
    DD = D0; SS_ = D0 + 5; B4 = D0 + 10; RK = D0 + 15; CA = D0 + 20
    CP = PF
    GX = W3
    XL = U
    W1F = WUB
    REC = D0; NOD = D0 + 8; RNK = D1
    W2F = EA; WUT = EB; XF = PF; QD = CV
    sW = 3
    pX, pE, pS, pD, pWM, pWU, pO, pWS = 4, 6, 8, 10, 12, 14, 16, 18
    SP, SE, SC, SW, SO, SV, SF = 20, 24, 28, 32, 36, 40, 44
    T0, T1, T2 = 48, 52, 56
    sStart, sNb, sStg, sCnt, sT, sMode, sKind, sFirst = 60, 61, 62, 63, 64, 65, 66, 67
    sAS, sQS, sTag, sP, sUB, sLo2 = 68, 69, 70, 71, 72, 73
    sCO = 59
    sK2 = 56
    sNp = 79
    sEx, sK, sBad = 74, 76, 78
    sTmp = 4
    sA = 48
    sOV = 48
    sOVT = 74
    sq = 100
    if OPT["stamp"]: NS = 102
    else: NS = 102

    a(f"""
.globl {KN}
.p2align 8
.type {KN},@function
{KN}:
  s_cmp_ge_u32 s2, {NB}
  s_cbranch_scc1 K_END""")
    if OPT["stamp"]: a("  s_memrealtime s[80:81]")
    a(f"""
  s_load_dwordx8 s[4:11], s[0:1], 0
  s_load_dwordx4 s[12:15], s[0:1], 32
  s_load_dwordx2 s[16:17], s[0:1], 48
  s_load_dwordx2 s[18:19], s[0:1], 64""")
    if OPT["cpf"]:
        a(f"""
  s_getpc_b64 s[20:21]
  v_lshlrev_b32 v{t1}, 7, v0
  v_cmp_gt_u32 vcc, (K_TEXTEND - {KN}) / 128, v0
  s_and_saveexec_b64 s[22:23], vcc
  s_cbranch_execz K_NOCPF
  global_load_dword v{DUM}, v{t1}, s[20:21]
K_NOCPF:
  s_mov_b64 exec, s[22:23]""")
    a(f"""
  v_lshrrev_b32 v{t0}, 6, v0
  v_and_b32 v{vl}, 63, v0
  s_and_b32 s{sP}, s2, {FREP-1}
  s_mul_i32 s{sP}, s{sP}, {FLN*256}
  s_and_b32 s{sq}, s2, 7
  s_lshl_b32 s{sq}, s{sq}, 1
  s_bfe_u32 s{sq+1}, s2, 0x10003
  s_and_b32 s2, s2, 0xf0
  s_or_b32 s2, s2, s{sq}
  s_or_b32 s2, s2, s{sq+1}
  s_mul_i32 s{sStart}, s2, 640013
  v_readfirstlane_b32 s{sW}, v{t0}
  s_add_u32 s{sNb}, s{sStart}, {640013+16383}
  s_add_u32 s{sStart}, s{sStart}, 16383
  s_sub_u32 s{sNp}, s{sStart}, 640013
  s_lshr_b32 s{sStart}, s{sStart}, 14
  s_lshr_b32 s{sNb}, s{sNb}, 14
  s_lshr_b32 s{sNp}, s{sNp}, 14
  s_min_u32 s{sNb}, s{sNb}, {N}
  s_sub_u32 s{sCnt}, s{sNb}, s{sNp}
  s_sub_u32 s{sNb}, s{sNb}, s{sStart}
  s_lshl_b32 s{sT}, s{sNp}, 8
  s_sub_u32 s{sNp}, s{sStart}, s{sNp}
  s_mov_b32 s{sMode}, 0
  s_mov_b32 s{sKind}, 0
  s_mov_b32 s{sFirst}, 1
  s_mov_b32 s{sAS}, {AS}
  s_mov_b32 s{sQS}, {QS}
  s_mul_i32 s{sStg}, s{sW}, {STG}
  s_add_u32 s{sStg}, s{sStg}, {L_STG}
  v_lshlrev_b32 v{vt16}, 4, v0
  s_mul_i32 s{sq}, s2, {CH*2}
  v_lshl_add_u32 v{t2}, v0, 2, s{sq}
  v_add_u32 v{t3}, 4096, v{t2}
  v_lshrrev_b32 v{t4}, 4, v{vl}
  v_lshlrev_b32 v{t0}, 1, v{t4}
  v_xor_b32 v{t0}, v{t0}, v{vl}
  v_lshlrev_b32 v{t0}, 4, v{t0}
  s_lshl_b32 s{sq}, s{sW}, 12
  v_add_u32 v{t7}, s{sq}, v{t0}
  s_mul_i32 s{sUB}, s{sW}, {4*WPITCH}
  s_add_u32 s{sUB}, s{sUB}, {L_WS}
  v_add_u32 v{t6}, 8192, v{vt16}
  v_add_u32 v{t5}, 16384, v{vt16}
  s_waitcnt lgkmcnt(0)
  {"s_add_u32 s%d, s%d, %d" % (pWS, pWS, OPT["wsb"] << 20) + chr(10) + "  s_addc_u32 s%d, s%d, 0" % (pWS+1, pWS+1) if OPT["wsb"] else ""}
  s_bitcmp1_b32 s2, 0
  s_cbranch_scc1 K_LDG
  s_cmp_ge_u32 s2, {2*G}
  s_cbranch_scc1 K_LDP""")
    if OPT["bdl"]: a(f"  s_sleep {OPT['bdl']}")
    srd(a, T0, pD, E*4)
    srd(a, T1, pS, E*4)
    a(f"  s_movk_i32 s{sq}, 0x2000")
    for r_, T in ((DD, T0), (SS_, T1)):
        a(f"""
  buffer_load_dword v{r_}, v{t2}, {s(T,4)}, 0 offen
  buffer_load_dword v{r_+1}, v{t2}, {s(T,4)}, 0 offen offset:2048
  buffer_load_dword v{r_+2}, v{t3}, {s(T,4)}, 0 offen
  buffer_load_dword v{r_+3}, v{t3}, {s(T,4)}, 0 offen offset:2048
  buffer_load_dword v{r_+4}, v{t2}, {s(T,4)}, s{sq} offen""")
    if OPT["claim"] & 2:
        srd(a, T2, pWS, NB*BSTR, add=WS_CELL)
        a(f"""
  v_lshrrev_b32 v{t4}, 3, v0
  s_mov_b32 s{sq}, {BSTR}
  v_mul_u32_u24 v{t4}, s{sq}, v{t4}
  v_and_b32 v{t0}, 7, v0
  v_lshl_add_u32 v{t4}, v{t0}, 4, v{t4}
  s_lshl_b32 s{sq}, s2, 6
  v_mov_b32 v{PF}, 0
  v_mov_b32 v{PF+1}, 0
  v_mov_b32 v{PF+2}, 0
  v_mov_b32 v{PF+3}, 0""")
        for j in range(4):
            a(f"  buffer_store_dwordx4 {v(PF,4)}, v{t4}, {s(T2,4)}, s{sq} offen sc1\n  s_add_u32 s{sq}, s{sq}, {64*BSTR}")
    a("  s_branch K_LD3")
    def wdma(T):
        for q in range(4):
            a(f"  s_add_u32 m0, s{sUB}, {64*q}\n  s_nop 0\n  buffer_load_dwordx4 v{t7}, {s(T,4)}, 0 offen offset:{1024*q} lds")
    a(f"""
K_LDX:
  s_lshl_b32 s{sq}, s{sStart}, 8
  s_lshl_b32 s{sq+1}, s{sNb}, 8""")
    srd(a, T2, pX, f"s{sq+1}", addreg=sq)
    a(f"""
  buffer_load_dwordx4 {v(XL,4)}, v{vt16}, {s(T2,4)}, 0 offen
  buffer_load_dwordx4 {v(XL+4,4)}, v{t6}, {s(T2,4)}, 0 offen
  s_branch K_LD3
K_LDP:
  s_cmp_eq_u32 s2, {2*G}
  s_cselect_b32 s{T1}, s{pWM}, s{pWU}
  s_cselect_b32 s{T1+1}, s{pWM+1}, s{pWU+1}
  s_cmp_eq_u32 s2, {2*G+2}
  s_cselect_b32 s{sq}, 0, 32768
  s_add_u32 s{T1}, s{T1}, s{sq}
  s_addc_u32 s{T1+1}, s{T1+1}, 0
  s_mov_b32 s{T1+2}, 32768
  s_mov_b32 s{T1+3}, 0x20000""")
    wdma(T1)
    srd(a, T0, pWM, 16*256, add=256*256)
    a(f"""
  v_and_b32 v{t0}, 31, v{vl}
  v_lshrrev_b32 v{t1}, 5, v{vl}
  v_lshlrev_b32 v{t1}, 11, v{t1}
  v_lshl_add_u32 v{t1}, v{t0}, 1, v{t1}
  s_and_b32 s{sq}, s{sW}, 3
  s_lshl_b32 s{sq}, s{sq}, 6""")
    for jj in range(8):
        a(f"  buffer_load_ushort v{D0+jj}, v{t1}, {s(T0,4)}, s{sq} offen offset:{jj*256}")
    a(f"""
  s_branch K_LDX
K_LDG:
  s_lshl_b32 s{sCnt}, s{sCnt}, 8""")
    srd(a, T0, pX, f"s{sCnt}", addreg=sT)
    srd(a, T1, pWM, 128*256)
    if OPT["wfirst"]: wdma(T1)
    a(f"""
  buffer_load_dwordx4 {v(GX,4)}, v{vt16}, {s(T0,4)}, 0 offen
  buffer_load_dwordx4 {v(GX+4,4)}, v{t6}, {s(T0,4)}, 0 offen
  buffer_load_dwordx4 {v(GX+8,4)}, v{t5}, {s(T0,4)}, 0 offen""")
    if not OPT["wfirst"]: wdma(T1)
    if OPT["claim"] & 1:
        srd(a, T2, pWS, f"s{sCnt}", add=WS_P, addreg=sT)
        for r_ in (vt16, t6, t5):
            a(f"  buffer_store_dwordx4 {v(PF,4)}, v{r_}, {s(T2,4)}, 0 offen sc1")
    a(f"""
K_LD3:""")
    if OPT["claim"] & 4:
        a(f"  s_lshl_b32 s{sq}, s{sStart}, 8\n  s_lshl_b32 s{sq+1}, s{sNb}, 8")
        srd(a, SO, pWS, f"s{sq+1}", add=WS_P, addreg=sq)
        a(f"""
  s_mul_i32 s{sq}, s{sW}, 1280
  v_lshl_add_u32 v{t1}, v{vl}, 7, s{sq}
  v_mov_b32 v{t0}, 0
  s_mov_b64 exec, 0x3ff
  buffer_atomic_or v{t0}, v{t1}, {s(SO,4)}, 0 offen
  s_mov_b64 exec, -1""")
    a(f"""
  s_add_u32 s{SF}, s{pWS}, {WS_FLAG}
  s_addc_u32 s{SF+1}, s{pWS+1}, 0
  s_load_dword s{sTag}, s[{SF}:{SF+1}], {FNON}
  s_mov_b32 s{SF+2}, {FNON+4}
  s_mov_b32 s{SF+3}, 0x20000
  v_lshrrev_b32 v{t1}, 2, v0
  v_and_b32 v{t4}, 3, v0
  v_lshlrev_b32 v{t4}, 4, v{t4}
  v_lshl_add_u32 v{vcell}, v{t1}, {6 if OPT['half'] == 2 else 7}, v{t4}
  s_mov_b32 s{sq}, {CH*32}
  v_mul_u32_u24 v{vebase}, s{sq}, v{t1}""")
    a(f"""
  v_mov_b32 v{CV}, 0
  v_mov_b32 v{CV+1}, 0
  v_mov_b32 v{CV+2}, 0
  v_mov_b32 v{CV+3}, 0
  v_add_u32 v{t0}, {L_CIMG}, v{vt16}""")
    a(f"  s_bitcmp1_b32 s2, 0\n  s_cbranch_scc1 K_NOZ")
    for j in range(4):
        a(f"  ds_write_b128 v{t0}, {v(CV,4)} offset:{j*8192}")
    a(f"  s_cmp_lg_u32 s{sW}, 0\n  s_cbranch_scc1 K_NOZ\n  ds_write_b128 v{t0}, {v(CV,4)} offset:32768")
    a("K_NOZ:")
    for j in range(5):
        a(f"  ds_write_b128 v{vt16}, {v(CV,4)} offset:{L_GN + j*8192}")
    a(f"""
  v_cmp_gt_u32 vcc, {(L_Q-L_GN-5*8192)//16}, v0
  s_and_saveexec_b64 {s(sEx,2)}, vcc
  ds_write_b128 v{vt16}, {v(CV,4)} offset:{L_GN + 5*8192}
  s_mov_b64 exec, {s(sEx,2)}""")
    def prefill():
        a(f"""
  v_mov_b32 v{CV+4}, {PADS}
  v_mov_b32 v{CV+5}, {PADE}
  v_mov_b32 v{CV+6}, {PADS}
  v_mov_b32 v{CV+7}, {PADE}
  ds_write_b128 v{vt16}, {v(CV+4,4)}
  ds_write_b128 v{vt16}, {v(CV+4,4)} offset:8192
  v_cmp_gt_u32 vcc, {(L_GN-16384)//16}, v0
  s_and_saveexec_b64 {s(sEx,2)}, vcc
  ds_write_b128 v{vt16}, {v(CV+4,4)} offset:16384
  s_mov_b64 exec, {s(sEx,2)}""")
    prefill()
    a(f"  s_mul_i32 s{sq}, s2, {BSTR}\n  s_lshl_b32 s{sq+1}, s{sStart}, 8\n  s_lshl_b32 s{sK}, s{sNb}, 8")
    srd(a, SC, pWS, G*CELLB // (2 if OPT['half'] == 2 else 1), add=WS_CELL, addreg=sq)
    srd(a, SP, pWS, (N+1)*256)
    srd(a, SE, pE, E*32)
    srd(a, SW, pWS, WF_SIZE, add=WS_WF)
    srd(a, SO, pO, f"s{sK}", addreg=sq+1)
    srd(a, SV, pWS, G*OVSTR, add=WS_OVF)
    a(f"""
  v_mov_b32 v{vone}, 1
  v_mov_b32 v{MAC}, 0
  v_mov_b32 v{MAC+1}, 0
  v_and_b32 v{t0}, 15, v{vl}                 ; l&15
  v_bfe_u32 v{t1}, v{vl}, 4, 1               ; r4&1
  {"v_lshlrev_b32 v%d, 3, v%d" % (t2, t1) if not OPT["smf"] else "v_lshrrev_b32 v%d, 4, v%d" % (t2, vl) + chr(10) + "  v_lshlrev_b32 v%d, 2, v%d" % (t2, t2)}
  v_xor_b32 v{t2}, v{t0}, v{t2}
  v_lshlrev_b32 v{vchunk}, 4, v{t2}
  v_and_b32 v{t2}, 1, v{vl}
  v_xor_b32 v{t2}, v{t2}, v{t1}
  v_lshlrev_b32 v{vechunk}, 4, v{t2}
  v_lshrrev_b32 v{t2}, 4, v{vl}
  v_lshlrev_b32 v{t2}, 6, v{t2}
  v_lshrrev_b32 v{t4}, 1, v{t0}
  v_lshl_add_u32 v{t2}, v{t4}, 3, v{t2}
  s_lshl_b32 s{sq}, s{sW}, 8
  v_add_u32 v{vent}, s{sq}, v{t2}
  v_bfe_u32 v{t2}, v{vl}, 2, 1               ; h
  v_and_b32 v{t4}, 1, v{vl}                  ; xy
  v_lshl_add_u32 v{t5}, v{t2}, 1, v{t4}      ; r4
  v_bfe_u32 v{t6}, v{vl}, 3, 2
  v_bfe_u32 v{t7}, v{vl}, 1, 1
  v_lshl_add_u32 v{t6}, v{t6}, 1, v{t7}      ; j
  v_lshl_add_u32 v{t7}, v{t5}, 3, v{t6}      ; q = 8 r4 + j
  v_lshlrev_b32 v{t7}, 3, v{t7}
  v_add_u32 v{vrow}, s{sq}, v{t7}
  v_lshrrev_b32 v{t7}, 5, v{vl}              ; hh
  v_mul_u32_u24 v{vAlo}, 1040, v{t6}
  v_lshl_add_u32 v{vAlo}, v{t5}, 8, v{vAlo}
  v_lshl_add_u32 v{vAlo}, v{t7}, 4, v{vAlo}
  v_add_u32 v{vAlo}, s{sStg}, v{vAlo}
  v_xor_b32 v{vAhi}, 1, v{t4}
  v_lshl_add_u32 v{vAhi}, v{vAhi}, 7, v{vAlo}
  v_lshl_add_u32 v{vAlo}, v{t4}, 7, v{vAlo}
  v_xor_b32 v{vEF}, v{t7}, v{t4}
  v_lshl_add_u32 v{vEF}, v{t6}, 1, v{vEF}
  v_lshl_add_u32 v{vEF}, v{t5}, 4, v{vEF}
  v_lshlrev_b32 v{vEF}, 4, v{vEF}
  s_add_u32 s{sq+1}, s{sStg}, 8320
  v_add_u32 v{vEF}, s{sq+1}, v{vEF}
  v_bfe_u32 v{t5}, v{vl}, 4, 1               ; o
  v_lshlrev_b32 v{t5}, 4, v{t5}
  v_mov_b32 v{t6}, 0x3f80
  v_lshlrev_b32 v{t5}, v{t5}, v{t6}
  v_cmp_eq_u32 vcc, v{t7}, v{t2}
  s_nop 1
  v_cndmask_b32 v{t5}, 0, v{t5}, vcc
  v_cmp_eq_u32 vcc, 0, v{t4}
  s_nop 1
  v_cndmask_b32 v{PAT}, 0, v{t5}, vcc
  v_cndmask_b32 v{PAT+1}, v{t5}, 0, vcc
  s_lshl_b32 s{sq}, s{sW}, 5
  s_add_u32 s{sq+1}, s{sq}, {L_GN}
  v_lshlrev_b32 v{vga}, 4, v{t7}
  v_add_u32 v{vga}, s{sq+1}, v{vga}
  v_and_b32 v{t2}, 12, v{vl}
  v_add_u32 v{vgq}, v{vga}, v{t2}
  v_and_b32 v{t2}, 3, v{vl}
  v_lshlrev_b32 v{t2}, 3, v{t2}
  v_lshl_add_u32 v{t2}, v{t1}, 5, v{t2}
  v_add_u32 v{vqlane}, {L_Q}, v{t2}
  v_and_b32 v{t2}, 31, v{vl}
  v_lshlrev_b32 v{t4}, 3, v{t2}
  v_add_u32 v{vacl}, {L_ACC}, v{t4}
  v_lshrrev_b32 v{t4}, 4, v{vl}              ; g
  v_mul_u32_u24 v{vxb}, {XS}, v{t0}
  v_lshl_add_u32 v{vxb}, v{t4}, 4, v{vxb}
  v_add_u32 v{vxb}, {L_X}, v{vxb}
  v_mul_u32_u24 v{vqw}, {QS}, v{t0}
  v_lshl_add_u32 v{vqw}, v{t4}, 3, v{vqw}
  s_add_u32 s{sq+1}, s{sq}, {L_Q}
  v_add_u32 v{vqw}, s{sq+1}, v{vqw}
  v_mul_u32_u24 v{vqa}, {2*WPITCH}, v{t4}
  v_bfe_u32 v{t5}, v{vl}, 2, 2
  v_lshl_add_u32 v{vqa}, v{t5}, 8, v{vqa}
  v_xor_b32 v{t5}, s{sW}, v{t5}
  v_lshl_add_u32 v{vqa}, v{t5}, 5, v{vqa}
  v_and_b32 v{t5}, 3, v{vl}
  v_lshl_add_u32 v{vqa}, v{t5}, 3, v{vqa}
  v_add_u32 v{vqa}, {L_WS}, v{vqa}
  v_and_b32 v{t4}, 1, v{vl}
  v_lshlrev_b32 v{t4}, 4, v{t4}
  v_lshlrev_b32 v{t4}, v{t4}, v{t6}
  v_bfe_u32 v{t5}, v{vl}, 1, 4
  v_lshlrev_b32 v{t7}, 2, v{t7}
  v_sub_u32 v{t5}, v{t5}, v{t7}""")
    if OPT["smf"]:
        a(f"""
  v_bfe_u32 v{t4}, v{vl}, 4, 1
  v_bfe_u32 v{t5}, v{vl}, 1, 1
  v_lshl_add_u32 v{t4}, v{t4}, 1, v{t5}
  v_bfe_u32 v{t5}, v{vl}, 3, 1
  v_lshrrev_b32 v{t7}, 5, v{vl}
  v_xor_b32 v{t5}, v{t5}, v{t7}
  v_lshl_add_u32 v{t4}, v{t5}, 2, v{t4}""")
        for i in range(4):
            a(f"  v_cmp_eq_u32 vcc, {i}, v{t4}\n  s_nop 1\n  v_cndmask_b32 v{I0+i}, 0, v{t6}, vcc")
        a(f"""
  v_bfe_u32 v{t4}, v{vl}, 2, 1
  v_and_b32 v{t5}, 1, v{vl}
  v_lshl_add_u32 v{t4}, v{t4}, 1, v{t5}
  v_mul_u32_u24 v{I1}, 0x5555, v{t4}
  v_bfe_u32 v{t4}, v{vl}, 2, 2
  v_mul_u32_u24 v{t5}, {4*1040}, v{t7}
  v_lshl_add_u32 v{t5}, v{t4}, 8, v{t5}
  v_subrev_u32 v{t7}, {L_Q}, v{vqlane}
  v_add3_u32 v{t5}, v{t5}, v{t7}, s{sStg}""")
        for t in range(4):
            a(f"  v_xor_b32 v{t7}, {t}, v{t4}\n  v_lshl_add_u32 v{vAT+t}, v{t7}, 6, v{t5}")
    else:
        for i in range(4):
            a(f"  v_cmp_eq_u32 vcc, {i}, v{t5}\n  s_nop 1\n  v_cndmask_b32 v{I0+i}, 0, v{t4}, vcc")
            a(f"  v_cmp_eq_u32 vcc, {8+i}, v{t5}\n  s_nop 1\n  v_cndmask_b32 v{I1+i}, 0, v{t4}, vcc")
    if not OPT["k8"]:
        a(f"  v_mov_b32 v{AQ+2}, 0\n  v_mov_b32 v{AQ+3}, 0")
        for t in range(4):
            a(f"  v_mov_b32 v{BQ+4*t+2}, 0\n  v_mov_b32 v{BQ+4*t+3}, 0")
    def prefetch():
        if not OPT["pf"]: return
        a(f"  s_mul_i32 s{sq}, s2, 40000\n  s_sub_u32 s{sq}, s{sq}, 4096\n  v_add_u32 v{t0}, s{sq}, v{vt16}")
        for j in range(10):
            a(f"  buffer_load_dwordx4 {v(DUM,4)}, v{t0}, {s(SE,4)}, 0 offen")
            if j < 9: a(f"  v_add_u32 v{t0}, 4096, v{t0}")
    def wtr(dst, ad):
        for st in range(4):
            for hf in range(2):
                a(f"  ds_read_b64_tr_b16 {v(dst+4*st+2*hf,2)}, v{ad} offset:{(8*st+hf)*WPITCH}")
    def own_x(nyounger):
        a(f"""
  v_lshrrev_b32 v{t0}, 4, v0
  v_lshl_add_u32 v{t0}, v{t0}, 5, v{vt16}
  v_add_u32 v{t0}, {L_X}, v{t0}
  s_waitcnt vmcnt({nyounger})
  ds_write_b128 v{t0}, {v(XL,4)}
  s_mov_b32 exec_lo, s{sLo2}
  s_mov_b32 exec_hi, s{sLo2}
  ds_write_b128 v{t0}, {v(XL+4,4)} offset:{32*XS}
  s_mov_b64 exec, -1""")
    a(f"""
  s_cmp_lt_u32 s{sW}, 2
  s_cselect_b32 s{sLo2}, -1, 0
  s_lshr_b32 s{sq}, s2, {1+FSH}
  s_lshl_b32 s{sq}, s{sq}, 8
  s_bfe_u32 s{sq+1}, s2, {hex((FSH<<16)|1)}
  s_lshl_b32 s{sq+1}, s{sq+1}, 2
  s_add_u32 s{sq}, s{sq}, s{sq+1}
  s_and_b32 s{sq+1}, s2, 1
  s_mul_i32 s{sq+1}, s{sq+1}, {FHALF}
  s_add_u32 s{sq}, s{sq}, s{sq+1}
  v_mul_u32_u24 v{vgn1}, {FLN*256}, v{vl}
  v_add_u32 v{vgn1}, s{sq}, v{vgn1}
  v_lshrrev_b32 v{t2}, {FSH-1}, v{vl}
  v_lshlrev_b32 v{t2}, 8, v{t2}
  v_and_b32 v{t3}, {(1<<(FSH-1))-1}, v{vl}
  v_lshl_add_u32 v{t2}, v{t3}, 3, v{t2}
  v_add_u32 v{vsrow}, s{sP}, v{t2}
  s_mov_b32 s{sK}, {NLOG2E}
  s_mov_b32 s{sK+1}, {NLOG2E}
  s_waitcnt lgkmcnt(0)
  s_add_u32 s{sTag}, s{sTag}, 1
  s_max_u32 s{sTag}, s{sTag}, 1
  s_bitcmp1_b32 s2, 0
  s_cbranch_scc1 K_GEMM
  s_cmp_ge_u32 s2, {2*G}
  s_cbranch_scc1 K_PREP
  s_mov_b32 s{sq}, {MAGIC}
  v_lshlrev_b32 v{t7}, 6, v0
  v_add_u32 v{t7}, {1<<18}, v{t7}
  s_barrier
  s_waitcnt vmcnt({5+NCC})""")
    stamp(a, 1)
    for j in range(5):
        a(f"""
  v_mul_u32_u24 v{B4+j}, s{sq}, v{DD+j}
  v_lshrrev_b32 v{B4+j}, 18, v{B4+j}
  v_and_b32 v{B4+j}, 0x3fc, v{B4+j}
  v_add_u32 v{t0+j}, {L_BCNT}, v{B4+j}
  ds_add_rtn_u32 v{RK+j}, v{t0+j}, v{vone}""")
    def claim_pair():
        a(f"  s_lshl_b32 s{sT}, s{sStart}, 8\n  s_sub_u32 s{sCnt}, {N*256}, s{sT}")
        srd(a, T1, pWS, f"s{sCnt}", add=WS_P, addreg=sT)
        a(f"""
  s_mul_i32 s{sT}, s{sW}, 2560
  v_lshl_add_u32 v{DO}, v{vl}, 7, s{sT}
  v_mov_b32 v{DO+1}, 0
  s_mov_b64 exec, 0xfffff
  buffer_atomic_or v{DO+1}, v{DO}, {s(T1,4)}, 0 offen
  s_mov_b64 exec, -1""")
    if OPT["claim"] & 16: claim_pair()
    a(f"  s_waitcnt vmcnt({NCC + (1 if OPT['claim'] & 16 else 0)})")
    if OPT["claim"] & 8: claim_pair()
    for j in range(5):
        a(f"""
  v_lshl_add_u32 v{SS_+j}, v{SS_+j}, 18, v{t7}
  v_and_or_b32 v{SS_+j}, v{DD+j}, 63, v{SS_+j}
  v_lshlrev_b32 v{CA+j}, 5, v{B4+j}
  v_add_u32 v{CA+j}, {L_CIMG}, v{CA+j}""")
        if j < 4: a(f"  v_add_u32 v{t7}, {512<<6}, v{t7}")
    srd(a, T2, pWS, NB*BSTR if not OPT["dbg"] & 4 else 0, add=WS_CELL + (0x2000000 if OPT["dbg"] & 1 else 0))
    a(f"""
  v_lshrrev_b32 v{t4}, 3, v0
  s_mov_b32 s{sq}, {BSTR}
  v_mul_u32_u24 v{t4}, s{sq}, v{t4}
  v_and_b32 v{t5}, 7, v0
  v_lshl_add_u32 v{t4}, v{t5}, 4, v{t4}
  s_lshl_b32 s{sq}, s2, {5 if OPT['half'] == 2 else 6}
  s_mov_b64 {s(sBad,2)}, 0
  s_waitcnt lgkmcnt(0)""")
    for j in range(5):
        a(f"""
  v_mul_u32_u24 v{t1}, 37, v{RK+j}
  v_lshl_add_u32 v{t0}, v{RK+j}, 2, v{CA+j}
  v_lshrrev_b32 v{t1}, 8, v{t1}
  v_cmp_le_u32 vcc, {CAP-1}, v{RK+j}
  v_lshl_add_u32 v{t0}, v{t1}, 2, v{t0}
  s_or_b64 {s(sBad,2)}, {s(sBad,2)}, vcc
  s_andn2_b64 exec, exec, vcc
  ds_write_b32 v{t0}, v{SS_+j}
  s_mov_b64 exec, -1""")
    a(f"""
  v_add_u32 v{t0}, {L_CIMG}, v{vt16}
  v_mov_b32 v{t2}, {L_FLG+4}
  s_cmp_eq_u64 {s(sBad,2)}, 0
  s_cbranch_scc1 K_NOFULL
  ds_write_b32 v{t2}, v{vone}
K_NOFULL:
  s_waitcnt lgkmcnt(0)
  s_barrier""")
    stamp(a, 2)
    a(f"  ds_read_b32 v{t2}, v{t2}\nK_OVFDONE:")
    for j in range(4):
        a(f"  ds_read_b128 {v(CP+4*j,4)}, v{t0} offset:{8192*j}")
    a(f"""
  s_waitcnt vmcnt({2 if OPT['claim'] & 2 else 63}) lgkmcnt(4)
  v_cmp_ne_u32 vcc, 0, v{t2}
  s_cbranch_vccnz K_OVF""")
    for j in range(4):
        a(f"""
  s_mov_b32 exec_lo, 0xaaaaaaaa
  s_mov_b32 exec_hi, 0xaaaaaaaa
  s_waitcnt lgkmcnt({3-j})
  v_mov_b32 v{CP+4*j+3}, s{sTag}
  s_mov_b64 exec, -1
  {"s_mov_b32 exec_lo, 0x0f0f0f0f" + chr(10) + "  s_mov_b32 exec_hi, 0x0f0f0f0f" if OPT["half"] else ""}
  buffer_store_dwordx4 {v(CP+4*j,4)}, v{t4}, {s(T2,4)}, s{sq} offen {STF}
  s_mov_b64 exec, -1
  s_add_u32 s{sq}, s{sq}, {64*BSTR}""")
    a(f"  s_lshl_b32 s{sq}, s{sStart}, 8\n  s_lshl_b32 s{sq+1}, s{sNb}, 8")
    srd(a, T2, pX, f"s{sq+1}", addreg=sq)
    a(f"""
  v_add_u32 v{t6}, 8192, v{vt16}
  buffer_load_dwordx4 {v(XL,4)}, v{vt16}, {s(T2,4)}, 0 offen
  buffer_load_dwordx4 {v(XL+4,4)}, v{t6}, {s(T2,4)}, 0 offen""")
    own_x(0)
    a(f"""
  {"s_sleep %d" % OPT["slpa"] if OPT["slpa"] else ""}""")
    def spf(n, per_wave, base):
        if not n: return
        assert 8*OPT['spf'] + 4*OPT['spfb'] <= 640
        a(f"""
  s_lshr_b32 s{sq}, s2, 1
  s_min_u32 s{sq}, s{sq}, {G-1}
  s_mul_i32 s{sq}, s{sq}, {CH*32}
  s_mul_i32 s{sq+1}, s{sW}, {per_wave}
  s_add_u32 s{sq}, s{sq}, s{sq+1}
  s_add_u32 s{sq}, s{sq}, {base}
  s_add_u32 s{T0}, s{pE}, s{sq}
  s_addc_u32 s{T0+1}, s{pE+1}, 0""")
        for i in range(n):
            a(f"  s_load_dword s{T0+2}, s[{T0}:{T0+1}], {128*i}")
    spf(OPT["spf"], OPT["spf"]*128, 0)
    a(f"""
  s_branch K_PST
K_GW:
  {"s_sleep %d" % OPT["slpb"] if OPT["slpb"] else ""}""")
    spf(OPT["spfb"], OPT["spfb"]*128, OPT["spf"]*1024)
    a(f"""
  s_branch K_PST
K_GEMM:
  ; ---------------- P gemm role: rows of this bucket and the one before ----------------""")
    if OPT["touch"]:
        a(f"""
  s_cmp_lg_u32 s{sW}, 0
  s_cbranch_scc1 K_NOTOUCH
  s_waitcnt vmcnt(0)
  s_mov_b64 exec, {FMASK}
  buffer_load_dword v{DUM}, v{vgn1}, {s(SF,4)}, 0 offen sc1
  s_mov_b64 exec, -1
K_NOTOUCH:""")
    a(f"""
  s_mul_i32 s{sq}, s{sNp}, {XS}
  s_sub_u32 s{sq}, {L_X}, s{sq}
  v_lshrrev_b32 v{t0}, 4, v0
  v_lshl_add_u32 v{t0}, v{t0}, 5, v{vt16}
  v_add_u32 v{t3}, s{sq}, v{t0}
  s_cmp_lt_u32 s{sW}, 4
  s_cselect_b32 s{sq+1}, -1, 0
  v_subrev_u32 v{t1}, {L_X}, v{vxb}
  v_add_u32 v{t1}, s{sq}, v{t1}
  s_waitcnt vmcnt({(2 if OPT['wfirst'] else 6)+NCL})
  ds_write_b128 v{t3}, {v(GX,4)}
  s_waitcnt vmcnt({(1 if OPT['wfirst'] else 5)+NCL})
  ds_write_b128 v{t3}, {v(GX+4,4)} offset:{32*XS}
  s_waitcnt vmcnt({(0 if OPT['wfirst'] else 4)+NCL})
  s_mov_b32 exec_lo, s{sq+1}
  s_mov_b32 exec_hi, s{sq+1}
  ds_write_b128 v{t3}, {v(GX+8,4)} offset:{64*XS}
  s_mov_b64 exec, -1
  v_and_b32 v{t2}, 15, v{vl}
  v_mul_u32_u24 v{t2}, {XS}, v{t2}
  v_lshrrev_b32 v{t3}, 4, v{vl}
  v_lshl_add_u32 v{t2}, v{t3}, 3, v{t2}
  s_lshl_b32 s{sq}, s{sW}, 5
  s_add_u32 s{sq}, s{sq}, {L_GP}
  v_add_u32 v{t2}, s{sq}, v{t2}
  v_add_u32 v{t0}, {L_GP - 16*XS}, v{t0}
  v_subrev_u32 v{t4}, 4096, v{vt16}""")
    srd(a, T0, pWS, f"s{sCnt}", add=WS_P + (0x2800000 if OPT["dbg"] & 2 else 0), addreg=sT)
    a(f"  s_waitcnt vmcnt({NCL}) lgkmcnt(0)\n  s_barrier")
    stamp(a, 1)
    wtr(W1F, vqa)
    XT = [PF, PF+16, EA, EB, PF]
    for nt in range(4):
        for st in range(4):
            a(f"  ds_read_b128 {v(XT[nt]+4*st,4)}, v{t1} offset:{nt*16*XS + st*64}")
    for nt in range(5):
        a(f"  s_waitcnt lgkmcnt({(12, 12, 8, 4, 0)[nt]})")
        for st in range(4):
            c = "0" if st == 0 else v(D0+4*nt, 4)
            a(f"  v_mfma_f32_16x16x32_bf16 {v(D0+4*nt,4)}, {v(W1F+4*st,4)}, {v(XT[nt]+4*st,4)}, {c}")
        if nt == 0:
            for st in range(4):
                a(f"  ds_read_b128 {v(PF+4*st,4)}, v{t1} offset:{4*16*XS + st*64}")
    for nt in range(5):
        d = D0 + 4*nt
        if nt == 4: a("  s_nop 1")
        a(f"""
  v_pk_mul_f32 {v(d,2)}, {v(d,2)}, {s(sK,2)}
  v_pk_mul_f32 {v(d+2,2)}, {v(d+2,2)}, {s(sK,2)}
  v_cvt_pk_bf16_f32 v{W3+2*nt}, v{d}, v{d+1}
  v_cvt_pk_bf16_f32 v{W3+2*nt+1}, v{d+2}, v{d+3}
  ds_write_b64 v{t2}, {v(W3+2*nt,2)} offset:{nt*16*XS}""")
    a(f"  s_waitcnt vmcnt({NA}) lgkmcnt(0)\n  s_barrier")
    stamp(a, 2)
    a(f"""
  s_cmp_lt_u32 s{sW}, 4
  s_cbranch_scc1 K_GW""")
    for j in range(5):
        a(f"  ds_read_b128 {v(PF+4*j,4)}, v{t0} offset:{j*16*XS}")
    if OPT["zt"]:
        srd(a, T1, pWS, f"s{sCnt}", add=0x1800000, addreg=sT)
        a(f"  s_waitcnt lgkmcnt(0)\n  v_mov_b32 v{t1}, v{t4}")
        for j in range(5):
            a(f"  buffer_store_dwordx4 {v(PF+4*j,4)}, v{t1}, {s(T1,4)}, 0 offen {STF}\n  v_add_u32 v{t1}, 4096, v{t1}")
        a("  s_waitcnt vmcnt(0)")
        stamp(a, 1)
    for j in range(5):
        a(f"  s_waitcnt lgkmcnt({4-j})\n  buffer_store_dwordx4 {v(PF+4*j,4)}, v{t4}, {s(T0,4)}, 0 offen {STF}")
        if j < 4: a(f"  v_add_u32 v{t4}, 4096, v{t4}")
    a(f"""
  v_mov_b32 v{t0}, {L_FLG+12}
  v_mov_b32 v{t7}, s{sTag}
""")
    if OPT["early"]:
        a(f"""
  s_sleep {OPT["early"]}
  v_min_u32 v{t4}, 2, v{vl}
  s_lshl_b32 s{sq}, s2, 7
  v_lshl_add_u32 v{t4}, v{t4}, 2, s{sq}
  buffer_load_dwordx4 {v(REC,4)}, v{vcell}, {s(SC,4)}, 0 offen sc1
  buffer_load_dwordx4 {v(REC+4,4)}, v{vcell}, {s(SC,4)}, 0 offen offset:64 sc1
  {"buffer_load_dword v%d, v%d, %s, 0 offen sc1" % (t5, t4, s(SF,4)) if not OPT["s0m"] else ""}
  s_mov_b32 s{sKind}, 9""")
    a(f"""
  s_mov_b64 exec, 1
  s_waitcnt vmcnt({(2 if OPT["s0m"] else 3) if OPT["early"] else 0})""")
    stamp(a, 3)
    a(f"""
  ds_add_rtn_u32 v{t0}, v{t0}, v{vone}
  s_waitcnt lgkmcnt(0)
  v_readfirstlane_b32 s{sOV+5}, v{t0}
  s_mov_b64 exec, -1
  s_cmp_lg_u32 s{sOV+5}, 3
  s_cbranch_scc1 K_PST
K_FLAG:
  s_mov_b64 exec, {FMASK}
  buffer_store_dword v{t7}, v{vgn1}, {s(SF,4)}, 0 offen {FLF}
  s_mov_b64 exec, -1
K_PST:""")
    def node_gemm(WA, WB=None):
        for nt in range(3):
            xf = XF + 16*(nt & 1)
            if nt == 0:
                for n2 in range(2):
                    for st in range(4):
                        a(f"  ds_read_b128 {v(XF+16*n2+4*st,4)}, v{vxb} offset:{n2*16*XS + st*64}")
            a(f"  s_waitcnt lgkmcnt({4 if nt == 0 else 5 if nt == 1 else 1})")
            q = QD if nt != 1 else SA
            for st in range(4):
                c = "0" if st == 0 else v(q, 4)
                a(f"  v_mfma_f32_16x16x32_bf16 {v(q,4)}, {v(WA+4*st,4)}, {v(xf+4*st,4)}, {c}")
            if WB is not None:
                for st in range(4):
                    c = "0" if st == 0 else v(U+4*nt, 4)
                    a(f"  v_mfma_f32_16x16x32_bf16 {v(U+4*nt,4)}, {v(WB+4*st,4)}, {v(xf+4*st,4)}, {c}")
            if nt == 0:
                for st in range(4):
                    a(f"  ds_read_b128 {v(XF+4*st,4)}, v{vxb} offset:{2*16*XS + st*64}")
            a(f"""
  s_nop 7
  v_pk_mul_f32 {v(q,2)}, {v(q,2)}, {s(sK,2)}
  v_pk_mul_f32 {v(q+2,2)}, {v(q+2,2)}, {s(sK,2)}
  v_cvt_pk_bf16_f32 v{QD+4+2*(nt&1)}, v{q}, v{q+1}
  v_cvt_pk_bf16_f32 v{QD+5+2*(nt&1)}, v{q+2}, v{q+3}""")
            if nt == 2:
                a(f"  s_mov_b32 exec_lo, 0x00ff00ff\n  s_mov_b32 exec_hi, 0x00ff00ff")
            a(f"  ds_write_b64 v{vqw}, {v(QD+4+2*(nt&1),2)} offset:{nt*16*QS}")
            if nt == 2:
                a("  s_mov_b64 exec, -1")
    assert SB == SA + 2
    def poll(lab, off):
        a(f"""
  s_cmp_lg_u32 s{sW}, 1
  s_cbranch_scc1 {lab}_D
  s_mov_b32 s{sq}, 0
  s_mov_b32 s{sq+1}, {off}
  v_min_u32 v{t0}, 2, v{vl}
  s_lshl_b32 s{sBad}, s2, 7
  v_lshl_add_u32 v{t0}, v{t0}, 2, s{sBad}
{lab}:
  buffer_load_dwordx2 {v(DUM,2)}, v{vsrow}, {s(SF,4)}, s{sq+1} offen {PLF}
  buffer_load_dword v{DUM+2}, v{t0}, {s(SF,4)}, 0 offen {PLF}
  s_add_u32 s{sq}, s{sq}, 1
  s_waitcnt vmcnt(0)
  v_cmp_ne_u32 vcc, s{sTag}, v{DUM}
  v_cmp_ne_u32 {s(sBad,2)}, s{sTag}, v{DUM+1}
  s_or_b64 vcc, vcc, {s(sBad,2)}
  v_cmp_ne_u32 {s(sBad,2)}, s{sTag}, v{DUM+2}
  s_or_b64 vcc, vcc, {s(sBad,2)}
  s_cbranch_scc0 {lab}_D
  {"s_sleep %d" % OPT["slp"] if OPT["slp"] else ""}
  s_cmp_lt_u32 s{sq}, 0x8000
  s_cbranch_scc1 {lab}
{lab}_D:""")
    stamp(a, 5)
    nld = 16 if OPT["lo"] else 12
    a(f"""
  s_lshl_b32 s{sTmp}, s{sW}, 12
  s_add_u32 s{sTmp+1}, s{sTmp}, {WF_UT}
  s_add_u32 s{sUB}, s{sTmp}, {WF_UB}
  s_mov_b32 s{sTmp+2}, {WF_3H}
  s_mov_b32 s{sTmp+3}, {WF_3L}
  s_mov_b32 s{sOV}, {0xaaaaaaaa if not OPT["dbg"] & 5 else 0}
  s_cmp_eq_u32 s{sW}, 7
  s_cselect_b32 s{sOV+1}, {0xaaaaa if not OPT["dbg"] & 5 else 0}, s{sOV}
  v_min_u32 v{t4}, 2, v{vl}
  s_lshl_b32 s{sq}, s2, 7
  v_lshl_add_u32 v{t4}, v{t4}, 2, s{sq}
  s_mov_b32 s{sq}, 0
  {"s_sleep %d" % OPT["slp0"] if OPT["slp0"] else ""}
""")
    wl = [f"  buffer_load_dwordx4 {v(W2F+4*st,4)}, v{vgl}, {s(SW,4)}, s{sTmp} offen offset:{st*1024} sc1" for st in range(4)]
    wl += [f"  buffer_load_dwordx4 {v(WUT+4*st,4)}, v{vgl}, {s(SW,4)}, s{sTmp+1} offen offset:{st*1024} sc1" for st in range(4)]
    wl += [f"  buffer_load_dwordx4 {v(W3+4*st,4)}, v{vgl}, {s(SW,4)}, s{sTmp+2} offen offset:{st*1024} sc1" for st in range(4)]
    if OPT["lo"]:
        wl += [f"  buffer_load_dwordx4 {v(W3L+4*st,4)}, v{vgl}, {s(SW,4)}, s{sTmp+3} offen offset:{st*1024} sc1" for st in range(4)]
    a(f"""
  v_lshlrev_b32 v{vgl}, 4, v{vl}
  s_mov_b32 s{sOV+6}, 0
  {"s_cmp_eq_u32 s%d, 9" % sKind + chr(10) + "  s_mov_b32 s%d, 0" % sKind + chr(10) + "  s_cbranch_scc1 K_CPOLLW" if OPT["early"] else ""}
K_CPOLL:
  buffer_load_dwordx4 {v(REC,4)}, v{vcell}, {s(SC,4)}, 0 offen sc1
  buffer_load_dwordx4 {v(REC+4,4)}, v{vcell}, {s(SC,4)}, 0 offen offset:64 sc1
  {"buffer_load_dword v%d, v%d, %s, 0 offen sc1" % (t5, t4, s(SF,4)) if not OPT["s0m"] else ""}
  s_add_u32 s{sq}, s{sq}, 1
  s_waitcnt vmcnt(0)
K_CPOLLC:
  v_cmp_ne_u32 vcc, s{sTag}, v{REC+3}
  v_cmp_ne_u32 {s(sBad,2)}, s{sTag}, v{REC+7}
  s_or_b64 {s(sBad,2)}, vcc, {s(sBad,2)}
  {"v_cmp_ne_u32 %s, s%d, v%d" % (s(sOV+2,2), sTag, t5) if not OPT["s0m"] else "s_mov_b64 %s, -1" % s(sOV+2,2)}
  s_and_b64 {s(sBad,2)}, {s(sBad,2)}, {s(sOV,2)}
  {"s_or_b64 %s, %s, %s" % (s(sBad,2), s(sBad,2), s(sOV+2,2)) if OPT["gate"] else ""}
  s_cbranch_scc1 K_CAGAIN""")
    rare.append(f"""
K_CPOLLW:
  s_waitcnt vmcnt(1)
  s_cmp_eq_u32 s{sOV+5}, 3
  s_cbranch_scc1 K_CPOLLC
  s_waitcnt vmcnt(0)
  s_branch K_CPOLLC
K_CAGAIN:
  s_cmp_lg_u64 {s(sOV+2,2)}, 0
  s_cbranch_scc1 K_CA2
  s_cmp_lg_u32 s{sOV+6}, 0
  s_cbranch_scc1 K_CA2
  s_mov_b32 s{sOV+6}, 1
""" + "\n".join(wl) + f"""
K_CA2:
  {"s_sleep %d" % OPT["slp"] if OPT["slp"] else ""}
  s_cmp_lt_u32 s{sq}, 0x8000
  s_cbranch_scc1 K_CPOLL
  s_branch K_CPOLLD""")
    a(f"""
K_CPOLLD:
  {"v_mov_b32 v%d, v%d" % (DK+2, t4) + chr(10) + "  buffer_load_dword v%d, v%d, %s, 0 offen sc1" % (DK+1, t4, s(SF,4)) if OPT["s0m"] else ""}
  s_mov_b32 exec_lo, 0xaaaaaaaa
  s_mov_b32 exec_hi, 0xaaaaaaaa
  v_mov_b32 v{REC+3}, 0
  v_mov_b32 v{REC+7}, 0
  s_mov_b64 exec, -1""")
    stamp(a, 6)
    NR = 8
    a(f"""
K_PHASE1:
  v_cmp_le_u32 vcc, 0xfffc0000, v{REC+NR-2}
  s_cbranch_vccnz K_MARK
K_NOMARK:""")
    rare.append(f"""
K_MARK:
  s_and_saveexec_b64 {s(sEx,2)}, vcc
  v_lshrrev_b32 v{t0}, 2, v0                 ; producer
  v_lshrrev_b32 v{t1}, 5, v{t0}
  v_lshlrev_b32 v{t1}, 2, v{t1}
  v_lshlrev_b32 v{t0}, v{t0}, v{vone}
  ds_or_b32 v{t1}, v{t0} offset:{L_FLG+32}
  v_mov_b32 v{REC+NR-2}, 0
  s_mov_b64 exec, {s(sEx,2)}
  s_branch K_NOMARK""")
    for k in range(NR):
        if k == 4:
            a(f"""
  v_or3_b32 v{t3}, v{REC+k}, v{REC+k+1}, v{REC+k+2}
  v_or_b32 v{t3}, v{t3}, v{REC+k+3}
  v_cmp_ne_u32 vcc, 0, v{t3}
  s_cbranch_vccz K_P1E""")
        a(f"""
  v_lshlrev_b32 v{NOD+k}, 2, v{REC+k}
  v_and_b32 v{NOD+k}, 0xfc, v{NOD+k}
  v_cmpx_ne_u32 vcc, 0, v{REC+k}
  ds_add_rtn_u32 v{RNK+k}, v{NOD+k}, v{vone} offset:{L_CNT}
  s_mov_b64 exec, -1""")
    a(f"""
K_P1E:
  s_cmp_lg_u32 s{sOV+6}, 0
  s_cbranch_scc1 K_NOWL
  s_cmp_lg_u64 {s(sOV+2,2)}, 0
  s_cbranch_scc1 K_NOWL
  s_mov_b32 s{sOV+6}, 1""")
    if OPT["stamp"] and OPT["s0st"]: a("  s_memrealtime s[86:87]")
    for x in wl: a(x)
    a(f"""
K_NOWL:
  v_lshlrev_b32 v{t0}, 2, v{vl}
  v_subrev_u32 v{t4}, s{sStart}, v{vl}
  v_and_b32 v{t4}, 63, v{t4}
  s_waitcnt lgkmcnt(0)""")
    fstamp(a, 1)
    a(f"""
  s_barrier""")
    fstamp(a, 2)
    a(f"""
  ds_read_b32 v{t1}, v{t0} offset:{L_CNT}
  s_waitcnt lgkmcnt(0)
  v_add_u32 v{t1}, 3, v{t1}
  v_bfe_u32 v{t5}, v{t1}, 2, 1               ; left-over quad
  v_lshrrev_b32 v{t6}, 3, v{t1}
  v_lshl_or_b32 v{t1}, v{t5}, 16, v{t6}
  v_mov_b32 v{t2}, v{t1}
  s_nop 1
  v_add_u32_dpp v{t2}, v{t2}, v{t2} row_shr:1 row_mask:0xf bank_mask:0xf
  s_nop 1
  v_add_u32_dpp v{t2}, v{t2}, v{t2} row_shr:2 row_mask:0xf bank_mask:0xf
  s_nop 1
  v_add_u32_dpp v{t2}, v{t2}, v{t2} row_shr:4 row_mask:0xf bank_mask:0xf
  s_nop 1
  v_add_u32_dpp v{t2}, v{t2}, v{t2} row_shr:8 row_mask:0xf bank_mask:0xf
  s_nop 1
  v_add_u32_dpp v{t2}, v{t2}, v{t2} row_bcast:15 row_mask:0xa bank_mask:0xf
  s_nop 1
  v_add_u32_dpp v{t2}, v{t2}, v{t2} row_bcast:31 row_mask:0xc bank_mask:0xf
  s_nop 1
  v_readlane_b32 s{sT}, v{t2}, 63
  v_sub_u32 v{t1}, v{t2}, v{t1}
  s_lshr_b32 s{sq+1}, s{sT}, 16
  s_and_b32 s{sCO}, s{sT}, 0xffff
  s_lshl_b32 s{sq}, s{sCO}, 1                ; quads in the groups of eight
  s_lshr_b32 s{sCO}, s{sCO}, 2
  s_add_u32 s{sT}, s{sq}, s{sq+1}
  s_add_u32 s{sT}, s{sT}, 7
  s_lshr_b32 s{sT}, s{sT}, 3
  v_lshrrev_b32 v{t2}, 16, v{t1}
  v_add_u32 v{t2}, s{sq}, v{t2}              ; quad slot of the left-over quad
  v_and_b32 v{t1}, 0xffff, v{t1}
  v_lshl_or_b32 v{t0}, v{t6}, 16, v{t1}
  v_lshlrev_b32 v{t0}, 3, v{t0}              ; 8*start8 | 8*n8 << 16
  v_lshlrev_b32 v{t7}, 1, v{t6}
  v_sub_u32 v{t7}, v{t2}, v{t7}
  v_lshlrev_b32 v{t7}, 2, v{t7}              ; position base of the left-over quad
  s_cmp_gt_u32 s{sT}, {CAPB}
  s_cbranch_scc1 K_SPLIT""")
    fstamp(a, 3)
    def bp(ks):
        for k in ks:
            a(f"  ds_bpermute_b32 v{PF+16+k}, v{NOD+k}, v{t7}")
            a(f"  ds_bpermute_b32 v{NOD+k}, v{NOD+k}, v{t0}")
    def ent(ks):
        for k in ks:
            e = PF + 2*k
            a(f"""
  v_lshrrev_b32 v{e}, 10, v{REC+k}
  v_and_b32 v{e}, {hex(0xffffff00 if not OPT['hot'] else 0x1f00)}, v{e}
  v_bfe_u32 v{e+1}, v{REC+k}, 6, 12
  v_lshl_add_u32 v{e+1}, v{e+1}, 5, v{vebase}""")
    def put(ks):
        for k in ks:
            a(f"  v_cmp_lt_u32_sdwa {s(8+2*(k&3),2)}, v{RNK+k}, v{NOD+k} src0_sel:DWORD src1_sel:WORD_1")
        for k in ks:
            a(f"  v_and_b32 v{NOD+k}, 0xffff, v{NOD+k}")
        for k in ks:
            a(f"  v_cndmask_b32 v{NOD+k}, v{PF+16+k}, v{NOD+k}, {s(8+2*(k&3),2)}")
        for k in ks:
            a(f"""
  v_add_lshl_u32 v{NOD+k}, v{NOD+k}, v{RNK+k}, 3
  v_cmpx_ne_u32 vcc, 0, v{REC+k}
  ds_write_b64 v{NOD+k}, {v(PF+2*k,2)}
  s_mov_b64 exec, -1""")
    bp(range(4))
    a(f"""
  v_or3_b32 v{t3}, v{REC+4}, v{REC+5}, v{REC+6}
  v_or_b32 v{t3}, v{t3}, v{REC+7}
  v_cmp_ne_u32 {s(sK2,2)}, 0, v{t3}
  s_cmp_eq_u64 {s(sK2,2)}, 0
  s_cbranch_scc1 K_P2A""")
    bp(range(4, 8))
    ent(range(4, 8))
    a("K_P2A:")
    if OPT["s0m"]:
        a(f"""
  s_cmp_lg_u32 s{sOV+6}, 0
  s_cbranch_scc1 K_S0A
  s_waitcnt vmcnt(0)
  v_cmp_ne_u32 vcc, s{sTag}, v{DK+1}
  s_cbranch_vccnz K_S0AX
  s_mov_b32 s{sOV+6}, 1""")
        for x in wl: a(x)
        a("K_S0A:")
        rare.append(f"K_S0AX:\n  buffer_load_dword v{DK+1}, v{DK+2}, {s(SF,4)}, 0 offen sc1\n  s_branch K_S0A")
    ent(range(4))
    a(f"""
  v_lshlrev_b32 v{t2}, 2, v{t2}
  v_add_lshl_u32 v{t3}, v{t1}, v{t6}, 3
  v_lshl_add_u32 v{t1}, v{t1}, 1, s{sW}
  v_lshlrev_b32 v{t1}, 2, v{t1}
  s_waitcnt lgkmcnt(0)""")
    put(range(4))
    a(f"  s_cmp_eq_u64 {s(sK2,2)}, 0\n  s_cbranch_scc1 K_P2E")
    put(range(4, 8))
    a("K_P2E:")
    fstamp(a, 5)
    a(f"""
  v_cmpx_ne_u32 vcc, 0, v{t5}
  ds_write_b32 v{t2}, v{t4} offset:{L_GN}
  s_mov_b64 exec, -1
K_GNL:
  v_cmpx_lt_u32 vcc, v{t1}, v{t3}
  ds_write_b32 v{t1}, v{t4} offset:{L_GN}
  v_add_u32 v{t1}, 32, v{t1}
  v_cmpx_lt_u32 vcc, v{t1}, v{t3}
  ds_write_b32 v{t1}, v{t4} offset:{L_GN}
  v_add_u32 v{t1}, 32, v{t1}
  v_cmpx_lt_u32 vcc, v{t1}, v{t3}
  s_cbranch_execnz K_GNL
  s_mov_b64 exec, -1
  s_add_u32 s{sCnt}, s{sT}, 7
  s_sub_u32 s{sCnt}, s{sCnt}, s{sW}
  s_lshr_b32 s{sCnt}, s{sCnt}, 3
  s_add_u32 s{sCO}, s{sCO}, 7
  s_sub_u32 s{sCO}, s{sCO}, s{sW}
  s_lshr_b32 s{sCO}, s{sCO}, 3
  {("s_mov_b32 s%d, 40" % sCnt + chr(10) + "  s_movk_i32 s%d, 320" % sT + chr(10) + "  s_mov_b32 s%d, 40" % sCO) if OPT["bench"] else ""}
""")
    stamp(a, 4)
    if OPT["s0m"]:
        a(f"""
  s_cmp_lg_u32 s{sOV+6}, 0
  s_cbranch_scc1 K_S0B
  s_waitcnt vmcnt(0)
  v_cmp_ne_u32 vcc, s{sTag}, v{DK+1}
  s_cbranch_vccnz K_S0BX
  s_mov_b32 s{sOV+6}, 1""")
        for x in wl: a(x)
        a("K_S0B:")
        rare.append(f"K_S0BX:\n  s_nop 0\n  s_branch K_S0B")
    a(f"""
  s_cmp_eq_u32 s{sFirst}, 0
  s_cbranch_scc1 K_POLL2_D""")
    poll("K_POLL2", FHALF)
    a("  s_waitcnt lgkmcnt(0)\n  s_barrier")
    stamp(a, 7)
    dsc = " sc1" if OPT["dsc"] else ""
    def dma_issue():
        L = []
        for j in range(8):
            d = DO + (j & 1)
            L.append([f"  s_add_u32 m0, s{sStg}, {j*1040}",
                      f"  v_add_u32_dpp v{d}, v{ENT}, v{vchunk} row_newbcast:{2*j} row_mask:0xf bank_mask:0xf",
                      f"  buffer_load_dwordx4 v{d}, {s(SP,4)}, 0 offen{dsc} lds" if not OPT["nodma"] else "  s_nop 0"])
        L.append([f"  s_add_u32 m0, s{sStg}, 8320",
                  f"  v_add_u32 v{DO}, v{ENT+1}, v{vechunk}",
                  f"  buffer_load_dwordx4 v{DO}, {s(SE,4)}, 0 offen lds" if not (OPT["nodma"] or OPT["noe"]) else "  s_nop 0"])
        return L
    ndma = 0 if OPT["nodma"] else 8 if OPT["noe"] else 9
    def frag_reads():
        if OPT["smf"]:
            L = [f"  ds_read_b64_tr_b16 {v(PF+8*t+2*q,2)}, v{vAT+t} offset:{1040*q}" for t in range(4) for q in range(4)]
            L.insert(4, f"  ds_read_b128 {v(EF,4)}, v{vEF}")
            return L
        L = []
        for st in range(8):
            L.append(f"  ds_read_b128 {v(PF+4*st,4)}, v{vAlo if st < 4 else vAhi} offset:{32*(st&3)}")
        L.insert(2, f"  ds_read_b128 {v(EF,4)}, v{vEF}")
        return L
    def bq_reads():
        return [f"  ds_read_b64_tr_b16 {v(BQ+nq*t,2)}, v{vqa} offset:{64*t}" for t in range(4)]
    def chain(t, D):
        L = [f"  v_mfma_f32_32x32x16_bf16 {v(D,16)}, {v(EF,4)}, {v(W3+4*t,4)}, 0"]
        if OPT["lo"]:
            L.append(f"  v_mfma_f32_32x32x16_bf16 {v(D,16)}, {v(EF,4)}, {v(W3L+4*t,4)}, {v(D,16)}")
        if OPT["smf"]:
            L.append(f"  v_smfmac_f32_32x32x32_bf16 {v(D,16)}, {v(I0,4)}, {v(PF+8*t,8)}, v{I1}")
        else:
            L.append(f"  v_mfma_f32_32x32x16_bf16 {v(D,16)}, {v(PF+8*t,4)}, {v(I0,4)}, {v(D,16)}")
            L.append(f"  v_mfma_f32_32x32x16_bf16 {v(D,16)}, {v(PF+8*t+4,4)}, {v(I1,4)}, {v(D,16)}")
        if OPT["k8"]:
            L.append(f"  v_mfma_f32_32x32x8bf16_1k {v(D,16)}, {v(AQ,2)}, {v(BQ+2*t,2)}, {v(D,16)}")
        else:
            L.append(f"  v_mfma_f32_32x32x16_bf16 {v(D,16)}, {v(AQ,4)}, {v(BQ+4*t,4)}, {v(D,16)}")
        return L

    if OPT["stag"]:
        a(f"  s_cmp_lt_u32 s{sW}, 4\n  s_cbranch_scc1 K_STG\n  s_sleep {OPT['stag']}\nK_STG:")
    if OPT["idle"]: a(f"  s_sleep {OPT['idle']}")
    a(f"  ds_read_b64 {v(ENT,2)}, v{vent}")
    if OPT["ord"]:
        a(f"  s_lshr_b32 s{sq}, s{sW}, 2\n  s_and_b32 s{sK2}, s{sq}, s{sFirst}\n  s_cbranch_scc1 K_DLATER")
    a("  s_waitcnt lgkmcnt(0)")
    for x in dma_issue(): a("\n".join(x))
    a(f"""
  ds_read_b64 {v(ENT,2)}, v{vent} offset:2048
  s_cmp_eq_u32 s{sFirst}, 0
  s_cbranch_scc1 K_NOGEMM0
  s_cmp_eq_u32 s{sOV+6}, 0
  s_cbranch_scc1 K_WLATE
  s_waitcnt vmcnt({ndma}) lgkmcnt(0)
K_WOK:
  s_mov_b32 s{sFirst}, 0""")
    rare.append(f"K_WLATE:\n  s_mov_b32 s{sOV+6}, 1\n" + "\n".join(wl) + "\n  s_waitcnt vmcnt(0) lgkmcnt(0)\n  s_branch K_WOK")
    rare.append(f"K_DLATER:\n  s_cmp_eq_u32 s{sOV+6}, 0\n  s_cbranch_scc1 K_WLATE\n  s_waitcnt vmcnt(0) lgkmcnt(0)\n  s_branch K_WOK")
    node_gemm(W2F, WUT)
    if OPT["ord"]:
        a(f"  s_cmp_eq_u32 s{sK2}, 0\n  s_cbranch_scc1 K_DDONE")
        for x in dma_issue(): a("\n".join(x))
        a(f"  ds_read_b64 {v(ENT,2)}, v{vent} offset:2048\nK_DDONE:")
    for st in range(4):
        a(f"  buffer_load_dwordx4 {v(WUB+4*st,4)}, v{vgl}, {s(SW,4)}, s{sUB} offen offset:{st*1024} sc1")
    def pf5():
        a(f"  s_mul_i32 s{sq}, s2, 40000\n  v_add_u32 v{t0}, s{sq}, v{vt16}")
        for j in range(5):
            a(f"  buffer_load_dwordx4 {v(DUM,4)}, v{t0}, {s(SE,4)}, 0 offen")
            if j < 4: a(f"  v_add_u32 v{t0}, 8192, v{t0}")
    if OPT["pf2"] == 1: pf5()
    a(f"""
  s_or_b32 s{sq}, s2, s{sW}
  s_cmp_lg_u32 s{sq}, 0
  s_cbranch_scc1 K_NONONCE
  s_mov_b64 exec, 1
  v_mov_b32 v{t0}, {FNON}
  v_mov_b32 v{t1}, s{sTag}
  buffer_store_dword v{t1}, v{t0}, {s(SF,4)}, 0 offen
  s_mov_b64 exec, -1
  s_waitcnt vmcnt(0)
K_NONONCE:
  s_waitcnt lgkmcnt(0)
  s_barrier
K_NOGEMM:
  ds_read_b32 v{vgn1}, v{vgq}
  ds_read_b32 v{vsrow}, v{vrow}
  ds_read_b128 {v(GN,4)}, v{vga}
  s_waitcnt vmcnt({9 if OPT["pf2"] == 1 else 4})""")
    stamp(a, 8, 96)
    for x in frag_reads(): a(x)
    a(f"""
  s_waitcnt lgkmcnt({9 if not OPT['smf'] else 15})
  v_mad_u32_u24 v{vqa}, v{vgn1}, s{sQS}, v{vqlane}
  v_lshrrev_b64 {v(AQ,2)}, v{vsrow}, {v(PAT,2)}""")
    for x in bq_reads(): a(x)
    a("  s_waitcnt lgkmcnt(0)")
    for x in dma_issue(): a("\n".join(x))
    if OPT["pf2"] == 2: pf5()
    if OPT["idle2"]: a(f"  s_sleep {OPT['idle2']}")
    for x in chain(0, D0): a(x)
    if OPT["prio"]:
        a(f"  s_cmp_lt_u32 s{sW}, 4\n  s_cbranch_scc1 K_PR\n  s_setprio 1\nK_PR:")
    a(f"""
  s_nop 7
  s_nop 3
  s_cmp_eq_u32 s{sCnt}, 0
  s_cbranch_scc1 K_LOOPEND
  s_cmp_lg_u32 s{sMode}, 0
  s_cbranch_scc1 K_SAFE
  {"s_branch K_QUAD" if not OPT["octo"] else ""}
  s_sub_u32 s{sCnt}, s{sCnt}, s{sCO}
  s_cmp_eq_u32 s{sCO}, 0
  s_cbranch_scc1 K_QUAD""")

    def p(r): return v(r, 2)
    def octet_fast(d, e, t, r, sres):
        ex = [f"  v_exp_f32 v{e+i}, v{d+i}" for i in range(8)]
        L = [f"  v_pk_add_f32 {p(t)}, {p(e)}, 1.0 op_sel_hi:[1,0]",
             f"  v_pk_add_f32 {p(t+2)}, {p(e+4)}, 1.0 op_sel_hi:[1,0]",
             f"  v_pk_fma_f32 {p(t+4)}, {p(d)}, {p(e+2)}, {p(d)}",
             f"  v_pk_fma_f32 {p(t+6)}, {p(d+4)}, {p(e+6)}, {p(d+4)}",
             f"  v_pk_fma_f32 {p(e)}, {p(t)}, {p(e+2)}, {p(t)}",
             f"  v_pk_fma_f32 {p(e+4)}, {p(t+2)}, {p(e+6)}, {p(t+2)}",
             f"  v_pk_fma_f32 {p(t+4)}, {p(d+2)}, {p(t)}, {p(t+4)}",
             f"  v_pk_fma_f32 {p(t+6)}, {p(d+6)}, {p(t+2)}, {p(t+6)}",
             f"  v_pk_mul_f32 {p(t)}, {p(e)}, {p(e+4)}",
             f"  v_pk_mul_f32 {p(t+4)}, {p(t+4)}, {p(e+4)}",
             f"  v_rcp_f32 v{r}, v{t}",
             f"  v_rcp_f32 v{r+1}, v{t+1}",
             f"  v_pk_fma_f32 {p(t+4)}, {p(t+6)}, {p(e)}, {p(t+4)}",
             f"  v_pk_mul_f32 {p(sres)}, {p(t+4)}, {p(r)}"]
        return ex, L
    def octet_safe(d, e, t, r, sres):
        ex = [f"  v_exp_f32 v{e+i}, v{d+i}" for i in range(8)]
        L = [f"  v_pk_add_f32 {p(e+2*i)}, {p(e+2*i)}, 1.0 op_sel_hi:[1,0]" for i in range(4)]
        L += [f"  v_rcp_f32 v{t+i}, v{e+i}" for i in range(8)]
        L += [f"  v_pk_mul_f32 {p(sres)}, {p(d)}, {p(t)}"]
        L += [f"  v_pk_fma_f32 {p(sres)}, {p(d+2*i)}, {p(t+2*i)}, {p(sres)}" for i in range(1, 4)]
        return ex, L
    def zipl(x, y):
        o = []
        for i in range(max(len(x), len(y))):
            if i < len(x): o.append(x[i])
            if i < len(y): o.append(y[i])
        return o
    def adds(t, kind):
        if OPT["noadd"]: return [f"  ds_read_b32 v{DUM}, v{vgq}"] * (2 if kind == "octo" else 4)
        if kind == "octo": return [f"  ds_add_f64 v{AD+2*xy}, {v(CV+2*xy,2)} offset:{256*t}" for xy in range(2)]
        return [f"  ds_add_f64 v{AD+2*xy+o}, {v(CV+2*(2*o+xy),2)} offset:{256*t}" for o in range(2) for xy in range(2)]
    def block_body(kind, u, nun):
        oc = octet_safe if kind == "safe" else octet_fast
        nadd = 2 if kind == "octo" else 4
        B = []
        for t in range(4):
            D = D0 if t % 2 == 0 else D1
            Dn = D1 if t % 2 == 0 else D0
            exa, La = oc(D, EA, TA, RA, SA)
            exb, Lb = oc(D+8, EB, TB, RB, SB)
            ex = exa + exb
            ch = chain((t+1) % 4, Dn)
            late = []
            if kind == "octo" and OPT["seq"]:
                dk = DK + 2*(t & 1)
                E_ = lambda i: p(EA+2*i) if i < 4 else p(EB+2*(i-4))
                def run(i0, n, Dr, Nr, Tr, Dlast):
                    L = [f"  v_pk_add_f32 {p(Dr)}, {E_(i0)}, 1.0 op_sel_hi:[1,0]"]
                    cur = p(D+2*i0)
                    for i in range(i0+1, i0+n):
                        L.append(f"  v_pk_fma_f32 {p(Tr)}, {cur}, {E_(i)}, {cur}")
                        nd = Dlast if i == i0+n-1 else (Dr ^ 2)
                        L.append(f"  v_pk_fma_f32 {p(nd)}, {p(Dr)}, {E_(i)}, {p(Dr)}")
                        L.append(f"  v_pk_fma_f32 {p(Nr)}, {p(D+2*i)}, {p(Dr)}, {p(Tr)}")
                        Dr = nd; cur = p(Nr)
                    return L
                assert TA % 4 == 0 and TB % 4 == 0
                if OPT["seq"] == 1:
                    pk = run(0, 8, TA, TA+4, TA+6, dk)
                    pk = pk[:-1] + [f"  v_rcp_f32 v{RA}, v{dk}", f"  v_rcp_f32 v{RA+1}, v{dk+1}"] + pk[-1:]
                    if t & 1: pk.append(f"  v_pk_fma_f32 {p(MAC)}, {p(DK)}, {p(DK+2)}, {p(MAC)}")
                    else: pk.append("  s_nop 0")
                    pk.append(f"  v_pk_mul_f32 {p(SA)}, {p(TA+4)}, {p(RA)}")
                else:
                    pk = zipl(run(0, 4, TA, TA+4, TA+6, RB), run(4, 4, TB, TB+4, TB+6, SB))
                    pk = pk[:-2] + [f"  v_pk_mul_f32 {p(dk)}, {p(RB)}, {p(SB)}"] + pk[-2:] + \
                         [f"  v_rcp_f32 v{RA}, v{dk}", f"  v_rcp_f32 v{RA+1}, v{dk+1}",
                          f"  v_pk_mul_f32 {p(TA+4)}, {p(TA+4)}, {p(SB)}"]
                    if t & 1: pk.append(f"  v_pk_fma_f32 {p(MAC)}, {p(DK)}, {p(DK+2)}, {p(MAC)}")
                    pk += [f"  v_pk_fma_f32 {p(TA+4)}, {p(TB+4)}, {p(RB)}, {p(TA+4)}",
                           f"  v_pk_mul_f32 {p(SA)}, {p(TA+4)}, {p(RA)}"]
                fin = [f"  v_cvt_f64_f32 {v(CV+2*xy,2)}, v{SA+xy}" for xy in range(2)]
                adr = (0, 2)
            elif kind == "octo":
                keep = lambda L: [x for x in L[:-1] if "v_rcp" not in x]
                dk = DK + 2*(t & 1)
                pk = zipl(keep(La), keep(Lb))
                pk = pk[:-4] + [f"  v_pk_mul_f32 {p(dk)}, {p(TA)}, {p(TB)}"] + pk[-4:-2] + \
                     [f"  v_rcp_f32 v{RA}, v{dk}", f"  v_rcp_f32 v{RA+1}, v{dk+1}"] + pk[-2:] + \
                     [f"  v_pk_mul_f32 {p(TA+4)}, {p(TA+4)}, {p(TB)}"]
                if t & 1: pk.append(f"  v_pk_fma_f32 {p(MAC)}, {p(DK)}, {p(DK+2)}, {p(MAC)}")
                pk += [f"  v_pk_fma_f32 {p(TA+4)}, {p(TB+4)}, {p(TA)}, {p(TA+4)}",
                       f"  v_pk_mul_f32 {p(SA)}, {p(TA+4)}, {p(RA)}"]
                fin = [f"  v_cvt_f64_f32 {v(CV+2*xy,2)}, v{SA+xy}" for xy in range(2)]
                adr = (0, 2)
            else:
                pk = zipl(La, Lb)
                if kind == "quad":
                    idx = max(i for i, x in enumerate(pk) if x.startswith(f"  v_pk_mul_f32 {p(TB)}, {p(EB)}"))
                    pk.insert(idx+1, f"  v_pk_fma_f32 {p(MAC)}, {p(TA)}, {p(TB)}, {p(MAC)}")
                fin = [f"  v_cvt_f64_f32 {v(CV+2*(2*o+xy),2)}, v{S+xy}" for o, S in ((0, SA), (1, SB)) for xy in range(2)]
                adr = range(4)
            fin += adds(t, kind)
            if t == 0:
                pk = pk[:4] + [f"  v_mad_u32_u24 v{AD+i}, v{GN+i}, s{sAS}, v{vacl}" for i in adr] + pk[4:]
            if t == 1:
                pk = pk[:8] + [f"  ds_read_b64 {v(ENT,2)}, v{vent} offset:{4096+2048*u}",
                      f"  ds_read_b32 v{vgn1}, v{vgq} offset:{256+256*u}",
                      f"  ds_read_b32 v{vsrow}, v{vrow} offset:{2048+2048*u}",
                      f"  ds_read_b128 {v(GN,4)}, v{vga} offset:{256+256*u}"] + pk[8:]
            if t == 3:
                B.append(f"  s_waitcnt lgkmcnt({nadd})")
            dma = dma_issue() if t == 3 else []
            per = 16 // len(ch); e = 0
            for i, m in enumerate(ch):
                B.append(m)
                n = per if i < len(ch)-1 else 16 - e
                B += ex[e:e+2]
                if late: B.append(late.pop(0))
                B += ex[e+2:e+n]; e += n
                if OPT["dmapos"] == 0:
                    for _ in range(2):
                        if dma: B += dma.pop(0)
            if t == 2:
                mid = [f"  s_waitcnt vmcnt(0) lgkmcnt({nadd})",
                       f"  v_mad_u32_u24 v{vqa}, v{vgn1}, s{sQS}, v{vqlane}"]
                rd = frag_reads() + bq_reads()
                aq = [f"  v_lshrrev_b64 {v(AQ,2)}, v{vsrow}, {v(PAT,2)}"]
                if OPT["rdgap"] == 0: B += mid + rd + aq + pk
                else:
                    q = []
                    for i, x in enumerate(aq + pk):
                        if rd and i % OPT["rdgap"] == 0: q.append(rd.pop(0))
                        q.append(x)
                    B += mid + q + rd
            elif t == 3:
                inc = []
                if u == nun - 1 and OPT["bench"]:
                    inc = [f"  v_add_u32 v{DUM+i}, {2048*nun}, v{vent}" for i in range(4)]
                elif u == nun - 1:
                    inc = incs(nun)
                pk = pk + inc
                if OPT["dmapos"] == 1:
                    q = []
                    for i, x in enumerate(pk):
                        if dma and i % 3 == 0: q += dma.pop(0)
                        q.append(x)
                    pk = q
                for x in dma: B += x
                B += pk
            else:
                B += pk
            B += fin
        return B
    def incs(n):
        return [f"  v_add_u32 v{vent}, {2048*n}, v{vent}", f"  v_add_u32 v{vrow}, {2048*n}, v{vrow}",
                f"  v_add_u32 v{vgq}, {256*n}, v{vgq}", f"  v_add_u32 v{vga}, {256*n}, v{vga}"]
    def loop(kind):
        lab = {"safe": "K_SAFE", "quad": "K_QUAD", "octo": "K_FAST"}[kind]
        nun = OPT["unroll"] if kind == "octo" else 1
        cnt = sCO if kind == "octo" else sCnt
        L = []
        for u in range(nun):
            L += block_body(kind, u, nun)
            L.append(f"  s_sub_u32 s{cnt}, s{cnt}, 1")
            L.append(f"  s_cmp_lg_u32 s{cnt}, 0")
            L.append(f"  s_cbranch_scc1 {lab}" if u == nun - 1 else f"  s_cbranch_scc0 K_OX{u}")
        ab = OPT["abl"]
        if ab & 1: L = [x for x in L if not ("v_mfma" in x and (f", {v(I0,4)}," in x or f", {v(I1,4)}," in x))]
        if ab & 2: L = [x for x in L if "v_mfma_f32_32x32x8" not in x and "tr_b16" not in x]
        if ab & 4: L = [x.replace("v_exp_f32", "v_mov_b32") for x in L]
        if ab & 8: L = [x for x in L if "v_pk_" not in x]
        if ab & 16: L = [x for x in L if "v_mfma" not in x]
        if ab & 32: L = [x for x in L if "ds_read_b128" not in x]
        if ab & 64: L = [x for x in L if "v_exp" not in x]
        if ab & 128:
            M = []
            for x in L:
                if "v_mfma" in x and f", {v(I1,4)}," in x: continue
                if "v_mfma" in x and f", {v(I0,4)}," in x:
                    m = re.match(r"\s*v_mfma_f32_32x32x16_bf16 (v\[\d+:\d+\]), v\[(\d+):", x)
                    M.append(f"  v_smfmac_f32_32x32x32_bf16 {m.group(1)}, {v(I0,4)}, {v(int(m.group(2)),8)}, v{vone}"); continue
                m = re.match(r"\s*ds_read_b128 v\[(\d+):\d+\], v(\d+) offset:(\d+)", x)
                if m and PF <= int(m.group(1)) < PF + 32:
                    r0 = int(m.group(1))
                    M.append(f"  ds_read_b64_tr_b16 {v(r0,2)}, v{vqa} offset:{m.group(3)}")
                    M.append(f"  ds_read_b64_tr_b16 {v(r0+2,2)}, v{vqa} offset:{int(m.group(3))+128}"); continue
                M.append(x)
            L = M
        if ab & 256:
            M = []
            for x in L:
                if "v_mfma" in x and (f", {v(I1,4)}," in x or f", {v(I0,4)}," in x): continue
                if "v_mfma_f32_32x32x16" in x and x.rstrip().endswith(", 0"): x = x.rstrip()[:-1] + v(PF, 16)
                m = re.match(r"\s*ds_read_b128 v\[(\d+):\d+\], v(\d+) offset:(\d+)", x)
                if m and PF <= int(m.group(1)) < PF + 32:
                    for q in range(8): M.append(f"  ds_read_u16_d16_hi v{PF+(int(m.group(1))+q)%32}, v{vacl} offset:{64*q}")
                    continue
                M.append(x)
            L = M
        if OPT["align"]: L = align8(L)
        a(f".p2align 6\n{lab}:")
        for x in L: a(x)
    loop("octo")
    a(f"""
K_OXE:
  s_cmp_lg_u32 s{sCnt}, 0
  s_cbranch_scc1 K_QUAD""")
    a(f"""
K_LOOPEND:""")
    a(f"""
  s_waitcnt vmcnt(0) lgkmcnt(0)
  s_barrier""")
    stamp(a, 9, 98)
    a(f"""
  s_cmp_lg_u32 s{sKind}, 0
  s_cbranch_scc1 K_NEXT
K_CELLSDONE:
  v_mov_b32 v{t0}, {L_FLG+32}
  ds_read_b128 {v(CV,4)}, v{t0}
K_CONV:
  s_mul_i32 s{sTmp}, s{sW}, {AS}
  s_add_u32 s{sTmp}, s{sTmp}, {L_ACC}
  v_lshlrev_b32 v{t1}, 4, v{vl}
  v_add_u32 v{t1}, s{sTmp}, v{t1}""")
    for k in range(5):
        a(f"  ds_read_b128 {v(D0+4*k,4)}, v{t1} offset:{k*8*AS}")
    a(f"""
  s_mul_i32 s{sTmp}, s{sW}, {XS}
  s_add_u32 s{sTmp}, s{sTmp}, {L_X}
  v_lshlrev_b32 v{t2}, 2, v{vl}
  v_add_u32 v{t2}, s{sTmp}, v{t2}
  s_cmp_ge_u32 s{sKind}, 3
  s_cbranch_scc1 K_CONV2
  s_waitcnt lgkmcnt(5)
  v_or3_b32 v{t0}, v{CV}, v{CV+1}, v{CV+2}
  v_or_b32 v{t0}, v{t0}, v{CV+3}
  v_cmp_ne_u32 vcc, 0, v{t0}
  s_cbranch_vccnz K_STARTOV
K_CONV2:
  s_mov_b32 s{sTmp}, 0x71800000              ; 2^100
  v_cmp_nle_f32 {s(sBad,2)}, v{MAC}, s{sTmp}
  v_cmp_nle_f32 vcc, v{MAC+1}, s{sTmp}
  s_or_b64 {s(sBad,2)}, {s(sBad,2)}, vcc
  s_movk_i32 s{sTmp}, 0x207""")
    for k in range(5):
        a(f"""
  s_waitcnt lgkmcnt(4)
  v_cvt_f32_f64 v{EA+2*k}, {v(D0+4*k,2)}
  v_cvt_f32_f64 v{EA+2*k+1}, {v(D0+4*k+2,2)}
  v_cvt_pk_bf16_f32 v{EB+k}, v{EA+2*k}, v{EA+2*k+1}
  ds_write_b32 v{t2}, v{EB+k} offset:{k*8*XS}""")
    a(f"  v_pk_mul_f32 {p(RA)}, {p(EA)}, 0 op_sel_hi:[1,0]")
    for k in range(1, 5):
        a(f"  v_pk_fma_f32 {p(RA)}, {p(EA+2*k)}, 0, {p(RA)} op_sel_hi:[1,0,1]")
    a(f"""
  v_add_f32 v{RA}, v{RA}, v{RA+1}
  v_cmp_class_f32 vcc, v{RA}, s{sTmp}
  s_or_b64 {s(sBad,2)}, {s(sBad,2)}, vcc""")
    a(f"""
  s_cmp_eq_u64 {s(sBad,2)}, 0
  s_cbranch_scc1 K_OKW
  v_mov_b32 v{t0}, {L_FLG}
  ds_write_b32 v{t0}, v{vone}
K_OKW:
  s_mov_b32 s{sK}, {NLN2}
  s_mov_b32 s{sK+1}, {NLN2}
  s_mov_b32 s{sTmp}, {NLOG2E}
  s_mov_b32 s{sTmp+1}, {NLOG2E}
  v_and_b32 v{t5}, 15, v{vl}
  v_lshlrev_b32 v{t5}, 8, v{t5}
  v_lshrrev_b32 v{t6}, 4, v{vl}
  v_lshl_add_u32 v{t5}, v{t6}, 3, v{t5}
  s_lshl_b32 s{sTmp+2}, s{sW}, 5
  v_add_u32 v{t5}, s{sTmp+2}, v{t5}
  v_add_u32 v{t6}, 4096, v{t5}
  v_add_u32 v{t7}, 8192, v{t5}
  v_mov_b32 v{t0}, {L_FLG}
  s_waitcnt lgkmcnt(0)
  s_barrier
  ds_read_b32 v{t0}, v{t0}""")
    AGF = [XF, XF+16, D1]
    for nt in range(3):
        for st in range(4):
            a(f"  ds_read_b128 {v(AGF[nt]+4*st,4)}, v{vxb} offset:{nt*16*XS + st*64}")
    a(f"""
  s_waitcnt lgkmcnt(8)
  v_readfirstlane_b32 s{sTmp+2}, v{t0}""")
    for nt in range(3):
        if nt: a(f"  s_waitcnt lgkmcnt({8-4*nt})")
        for st in range(4):
            c = "0" if st == 0 else v(D0+4*nt, 4)
            a(f"  v_mfma_f32_16x16x32_bf16 {v(D0+4*nt,4)}, {v(WUB+4*st,4)}, {v(AGF[nt]+4*st,4)}, {c}")
    a(f"""
  s_cmp_gt_u32 s{sTmp+2}, s{sMode}
  {"s_cbranch_scc1 K_RESTART" if not EXP else "s_nop 0"}""")
    def fin_store(nt):
        d = D0 + 4*nt
        a(f"""
  v_pk_mul_f32 {p(d)}, {p(d)}, {p(EA+4*nt)}
  v_pk_mul_f32 {p(d+2)}, {p(d+2)}, {p(EA+4*nt+2)}
  {chr(10).join("  v_mul_f32 v%d, %s, v%d" % (d+i, hex(f32(1+OPT["pert"]/1000.0)), d+i) for i in range(4)) if OPT["pert"] else ""}
  v_cvt_pk_bf16_f32 v{EB+2*nt}, v{d}, v{d+1}
  v_cvt_pk_bf16_f32 v{EB+2*nt+1}, v{d+2}, v{d+3}
  {"buffer_store_dwordx2 %s, v%d, %s, 0 offen %s" % (v(EB+2*nt,2), t5+nt, s(SO,4), OFL) if not OPT["oc"] else ("s_mov_b32 exec_lo, 0x00ff00ff" + chr(10) + "  s_mov_b32 exec_hi, 0x00ff00ff" + chr(10) if nt == 2 else "") + "  ds_write_b64 v%d, %s offset:%d" % (vqw, v(EB+2*nt,2), nt*16*QS)}""")
    for i in range(6):
        if i == 2: a("  s_nop 0")
        a(f"  v_pk_fma_f32 {p(D0+2*i)}, {p(D0+2*i)}, {s(sK,2)}, {p(U+2*i)}\n  v_pk_mul_f32 {p(EA+2*i)}, {p(D0+2*i)}, {s(sTmp,2)}")
    for i in range(12): a(f"  v_exp_f32 v{EA+i}, v{EA+i}")
    for i in range(6): a(f"  v_pk_add_f32 {p(EA+2*i)}, {p(EA+2*i)}, 1.0 op_sel_hi:[1,0]")
    for nt in range(3):
        for i in range(4): a(f"  v_rcp_f32 v{EA+4*nt+i}, v{EA+4*nt+i}")
        if nt:
            d = D0 + 4*(nt-1)
            fin_store(nt-1)
    a("  s_nop 0")
    fin_store(2)
    if OPT["oc"]:
        a(f"""
  s_mov_b64 exec, -1
  v_lshrrev_b32 v{t0}, 4, v0
  v_lshl_add_u32 v{t0}, v{t0}, 6, v{vt16}
  v_add_u32 v{t0}, {L_Q}, v{t0}
  v_add_u32 v{t1}, 8192, v{vt16}
  s_waitcnt lgkmcnt(0)
  s_barrier
  ds_read_b128 {v(PF,4)}, v{t0}
  ds_read_b128 {v(PF+4,4)}, v{t0} offset:{32*QS}
  s_waitcnt lgkmcnt(1)
  buffer_store_dwordx4 {v(PF,4)}, v{vt16}, {s(SO,4)}, 0 offen {OFL}
  s_waitcnt lgkmcnt(0)
  buffer_store_dwordx4 {v(PF+4,4)}, v{t1}, {s(SO,4)}, 0 offen {OFL}""")
    if OPT["stamp"]:
        a(f"""
  s_waitcnt vmcnt(0)
  s_memrealtime s[4:5]
  s_waitcnt lgkmcnt(0)
  s_lshl_b32 s6, s2, 3
  s_add_u32 s6, s6, s{sW}
  s_lshl_b32 s6, s6, 6
  s_add_u32 s6, s6, {WS_STAMP}
  s_add_u32 s6, s{pWS}, s6
  s_addc_u32 s7, s{pWS+1}, 0
  s_mov_b64 exec, 1
  v_mov_b32 v1, 0""")
        for i, r in enumerate([80+2*i for i in range(8)] + [96, 98, 4]):
            pass
        regs = [80, 82, 84, 86, 88, 90, 92, 94, 8, 9, 4, 10, 11, sT]
        for i, r in enumerate(regs):
            a(f"  v_mov_b32 v2, s{r}\n  global_store_dword v1, v2, s[6:7] offset:{4*i}")
    a(f"""
K_END:
  s_endpgm
""")
    a(f"""
K_PREP:
  s_sub_u32 s{sq}, s2, {2*G}
  s_lshl_b32 s{sq}, s{sq}, 14
  s_lshl_b32 s{sq+1}, s{sW}, 12
  s_add_u32 s{sq}, s{sq}, s{sq+1}
  v_lshlrev_b32 v{t0}, 4, v{vl}
  v_mov_b32 v{t7}, s{sTag}
  s_waitcnt vmcnt({10+NA})
  s_barrier""")
    wtr(PF, vqa)
    a("  s_waitcnt lgkmcnt(0)")
    for st in range(4):
        a(f"  buffer_store_dwordx4 {v(PF+4*st,4)}, v{t0}, {s(SW,4)}, s{sq} offen offset:{st*1024} sc1")
    a(f"""
  s_lshr_b32 s{sq}, s{sW}, 2
  s_add_u32 s{sq}, s{sq}, s2
  s_cmp_lg_u32 s{sq}, {2*G}
  s_cbranch_scc1 K_PREPD
  s_mov_b32 s{sq+1}, {NLOG2E}
  s_lshl_b32 s{sq}, s{sW}, 10
  s_waitcnt vmcnt({6+NA})""")
    for jj in range(8):
        a(f"  v_lshlrev_b32 v{D0+jj}, 16, v{D0+jj}\n  v_mul_f32 v{D0+jj}, s{sq+1}, v{D0+jj}")
    for i in range(4):
        a(f"  v_cvt_pk_bf16_f32 v{D0+8+i}, v{D0+2*i}, v{D0+1+2*i}")
    for i in range(4):
        a(f"""
  v_lshlrev_b32 v{t2}, 16, v{D0+8+i}
  v_and_b32 v{t3}, 0xffff0000, v{D0+8+i}
  v_sub_f32 v{t2}, v{D0+2*i}, v{t2}
  v_sub_f32 v{t3}, v{D0+1+2*i}, v{t3}
  v_cvt_pk_bf16_f32 v{D0+12+i}, v{t2}, v{t3}""")
    a(f"""
  s_add_u32 s{sq+1}, s{sq}, {WF_3L}
  s_add_u32 s{sq}, s{sq}, {WF_3H}
  buffer_store_dwordx4 {v(D0+8,4)}, v{t0}, {s(SW,4)}, s{sq} offen sc1
  buffer_store_dwordx4 {v(D0+12,4)}, v{t0}, {s(SW,4)}, s{sq+1} offen sc1
K_PREPD:""")
    own_x(4+NA)
    a(f"""
  s_sub_u32 s{sq}, s2, {2*G}
  s_lshl_b32 s{sq}, s{sq}, 1
  v_lshl_add_u32 v{t0}, v0, 7, s{sq}
  s_waitcnt vmcnt(0)
  s_barrier
  s_cmp_ge_u32 s{sW}, 4
  s_cbranch_scc1 K_PST
  buffer_store_dword v{t7}, v{t0}, {s(SF,4)}, 0 offen {FLF}
  s_branch K_PST""")
    a(f"""
K_OVF:
  s_waitcnt lgkmcnt(0)
  s_barrier
  s_mul_i32 s{sq+1}, s2, {OVSTR//2}
  s_add_u32 s{sq+1}, s{sq+1}, 64
  v_mov_b32 v{t5}, {L_FLG+8}
  v_mov_b32 v{t6}, -1""")
    for j in range(5):
        a(f"""
  v_cmp_le_u32 vcc, {CAP-1}, v{RK+j}
  s_and_b64 exec, exec, vcc
  s_cbranch_execz K_OV{j}
  v_add_u32 v{t1}, {L_BCNT}, v{B4+j}
  ds_read_b32 v{t1}, v{t1}
  s_waitcnt lgkmcnt(0)
  v_cmp_ne_u32 vcc, {CAP}, v{t1}
  s_nop 1
  v_cndmask_b32 v{t3}, v{SS_+j}, v{t6}, vcc
  ds_write_b32 v{CA+j}, v{t3} offset:{CELLB-8}
  s_and_b64 exec, exec, vcc
  s_cbranch_execz K_OV{j}
  ds_add_rtn_u32 v{t1}, v{t5}, v{vone}
  v_mov_b32 v{CV}, v{SS_+j}
  v_lshrrev_b32 v{CV+1}, 2, v{B4+j}
  s_waitcnt lgkmcnt(0)
  v_lshl_add_u32 v{t1}, v{t1}, 3, s{sq+1}
  buffer_store_dwordx2 {v(CV,2)}, v{t1}, {s(SV,4)}, 0 offen sc1
  s_waitcnt vmcnt(0)
K_OV{j}:
  s_mov_b64 exec, -1""")
    a(f"""
  s_waitcnt lgkmcnt(0)
  s_barrier
  ds_read_b32 v{t1}, v{t5}
  s_sub_u32 s{sq+1}, s{sq+1}, 64
  v_mov_b32 v{t3}, s{sq+1}
  v_mov_b32 v{t2}, 0
  s_waitcnt lgkmcnt(0)
  buffer_store_dword v{t1}, v{t3}, {s(SV,4)}, 0 offen sc1
  s_waitcnt vmcnt(0)
  s_branch K_OVFDONE""")
    for u in range(OPT["unroll"] - 1):
        a(f"K_OX{u}:\n  s_cmp_eq_u32 s{sCnt}, 0\n  s_cbranch_scc1 K_LOOPEND")
        for x in incs(u + 1): a(x)
        a("  s_branch K_QUAD")
    loop("quad")
    a("  s_branch K_LOOPEND")
    a("K_TEXTEND:")
    loop("safe")
    a("  s_branch K_LOOPEND")
    a(f"""
""")
    for x in rare: a(x)
    a(f"""
K_NOGEMM0:
  s_waitcnt vmcnt(0)
  s_branch K_NOGEMM
K_RESTART:
  s_mov_b32 s{sMode}, 1
  s_mov_b32 s{sKind}, 0
  s_waitcnt lgkmcnt(0)
  s_barrier
  v_mov_b32 v{CV}, 0
  v_mov_b32 v{CV+1}, 0
  v_mov_b32 v{CV+2}, 0
  v_mov_b32 v{CV+3}, 0""")
    for j in range(5):
        a(f"  ds_write_b128 v{vt16}, {v(CV,4)} offset:{L_ACC + j*8192}")
    a(f"""
  v_cmp_gt_u32 vcc, {(40*AS-5*8192)//16}, v0
  s_and_saveexec_b64 {s(sEx,2)}, vcc
  ds_write_b128 v{vt16}, {v(CV,4)} offset:{L_ACC + 5*8192}
  s_mov_b64 exec, {s(sEx,2)}
  s_branch K_RELOAD
K_SPLIT:
  s_mov_b32 s{sKind}, 1
  s_waitcnt lgkmcnt(0)
  s_barrier
  s_branch K_RELOAD
K_NEXT:
  s_cmp_eq_u32 s{sKind}, 4
  s_cbranch_scc1 K_NEXTOV
  s_cmp_eq_u32 s{sKind}, 3
  s_cbranch_scc1 K_OVPART1
  s_cmp_eq_u32 s{sKind}, 2
  s_cbranch_scc1 K_CELLSDONE
  s_mov_b32 s{sKind}, 2
K_RELOAD:
  v_lshrrev_b32 v{t1}, 2, v0
  s_mov_b32 s{sq}, {CH*32}
  v_mul_u32_u24 v{vebase}, s{sq}, v{t1}
  s_waitcnt vmcnt(0)""")
    for k in range(2):
        a(f"  buffer_load_dwordx4 {v(REC+4*k,4)}, v{vcell}, {s(SC,4)}, 0 offen offset:{64*k} sc1")
    a(f"""
  s_waitcnt vmcnt(0)
  s_mov_b32 exec_lo, 0xaaaaaaaa
  s_mov_b32 exec_hi, 0xaaaaaaaa
  v_mov_b32 v{REC+3}, 0
  v_mov_b32 v{REC+7}, 0
  s_mov_b64 exec, -1
  s_cmp_eq_u32 s{sKind}, 0
  s_cbranch_scc1 K_ROUND
  s_lshr_b32 s{sq}, s{sW}, 2
  s_add_u32 s{sq}, s{sq}, 1
  s_cmp_eq_u32 s{sq}, s{sKind}
  s_cbranch_scc1 K_ROUND""")
    for k in range(NR): a(f"  v_mov_b32 v{REC+k}, 0")
    a(f"""
K_ROUND:
  v_mov_b32 v{CV}, 0
  v_mov_b32 v{CV+1}, 0
  v_mov_b32 v{CV+2}, 0
  v_mov_b32 v{CV+3}, 0
  v_cmp_gt_u32 vcc, {(L_FLG-L_GN)//16}, v0
  s_and_saveexec_b64 {s(sEx,2)}, vcc
  ds_write_b128 v{vt16}, {v(CV,4)} offset:{L_GN}
  s_mov_b64 exec, {s(sEx,2)}""")
    prefill()
    a(f"""
  v_and_b32 v{vent}, 2047, v{vent}
  v_and_b32 v{vrow}, 2047, v{vrow}
  v_subrev_u32 v{vga}, {L_GN}, v{vga}
  v_and_b32 v{vga}, 255, v{vga}
  v_add_u32 v{vga}, {L_GN}, v{vga}
  v_and_b32 v{t2}, 12, v{vl}
  v_add_u32 v{vgq}, v{vga}, v{t2}
  s_waitcnt lgkmcnt(0)
  s_barrier
  s_branch K_PHASE1
K_STARTOV:""")
    for i in range(4): a(f"  v_readfirstlane_b32 s{sOV+i}, v{CV+i}")
    a(f"""
  s_mov_b32 s{sKind}, 4
  s_waitcnt lgkmcnt(0)
K_NEXTOV:""")
    for i in range(2):
        a(f"""
  s_ff1_i32_b64 s{sP}, {s(sOV+2*i,2)}
  s_cmp_eq_u32 s{sP}, -1
  s_cbranch_scc1 K_OVN{i}
  s_bitset0_b64 {s(sOV+2*i,2)}, s{sP}
  s_add_u32 s{sP}, s{sP}, {64*i}
  s_branch K_OVGO
K_OVN{i}:""")
    a(f"""
  s_branch K_CONV
K_OVGO:
  s_mov_b32 s{sKind}, 3
  v_mov_b32 v{t4}, v0
  s_branch K_OVLD
K_OVPART1:
  s_mov_b32 s{sKind}, 4
  v_add_u32 v{t4}, 2048, v0
K_OVLD:
  s_mul_i32 s{sq}, s{sP}, {OVSTR}
  s_mul_i32 s{sq+1}, s{sP}, {CH*32}
  v_mov_b32 v{vebase}, s{sq+1}
  v_mov_b32 v{t0}, s{sq}
  buffer_load_dword v{t1}, v{t0}, {s(SV,4)}, 0 offen sc1
  v_lshl_add_u32 v{t2}, v{t4}, 3, v{t0}""")
    for k in range(4):
        a(f"  buffer_load_dwordx2 {v(PF+2*k,2)}, v{t2}, {s(SV,4)}, 0 offen offset:64 sc1\n  v_add_u32 v{t2}, 4096, v{t2}")
    a(f"  s_waitcnt vmcnt(0)")
    for k in range(4):
        a(f"""
  v_cmp_lt_u32 vcc, v{t4}, v{t1}
  v_cmp_eq_u32 {s(sEx,2)}, s2, v{PF+2*k+1}
  s_and_b64 vcc, vcc, {s(sEx,2)}
  v_add_u32 v{t4}, 512, v{t4}
  s_nop 1
  v_cndmask_b32 v{REC+k}, 0, v{PF+2*k}, vcc""")
    for k in range(4, NR): a(f"  v_mov_b32 v{REC+k}, 0")
    a("  s_branch K_ROUND")
    return a.text(), nv, NS

def gen_diag(idx):
    a = Asm()
    a(f"""
.globl mpnn_d_kernel
.p2align 8
.type mpnn_d_kernel,@function
mpnn_d_kernel:
  s_cmp_ge_u32 s2, 1
  s_cbranch_scc1 D_END
  s_load_dwordx2 s[4:5], s[0:1], 64
  s_waitcnt lgkmcnt(0)
  s_add_u32 s4, s4, {WS_STAMP + (OPT['wsb'] << 20)}
  s_addc_u32 s5, s5, 0
  s_load_dword s6, s[4:5], 0
  s_waitcnt lgkmcnt(0)
  s_sub_u32 s6, s6, 100000""")
    for q, (ix, ismax) in enumerate(((idx, 1), (0, 0))):
        op = "max" if ismax else "min"
        a(f"  v_lshlrev_b32 v1, {6 if not OPT['dodd'] else 10}, v0\n  v_add_u32 v1, {ix*4 + (512 + 64*(OPT['dodd']-1) if OPT['dodd'] else 0)}, v1\n  v_mov_b32 v3, {0 if ismax else -1}")
        nk = 32 if not OPT['dodd'] else 2
        for k in range(nk):
            a(f"  global_load_dword v{8+k}, v1, s[4:5]\n  v_add_u32 v1, {4096 if not OPT['dodd'] else 65536}, v1")
        a("  s_waitcnt vmcnt(0)")
        for k in range(nk):
            a(f"  v_subrev_u32 v2, s6, v{8+k}\n  v_{op}_u32 v3, v3, v2")
        a(f"  s_mov_b32 s{20+q}, {0 if ismax else -1}\n  s_nop 1")
        for l in range(64):
            a(f"  v_readlane_b32 s8, v3, {l}\n  s_nop 0\n  s_{op}_u32 s{20+q}, s{20+q}, s8")
    a(f"""
  s_sub_u32 s20, s20, s21
  s_min_u32 s20, s20, 20000
  s_lshl_b32 s20, s20, 3
  {'s_mov_b32 s20, 0' if OPT['dz'] else ''}
  s_memrealtime s[8:9]
  s_waitcnt lgkmcnt(0)
D_L:
  s_memrealtime s[10:11]
  s_waitcnt lgkmcnt(0)
  s_sub_u32 s12, s10, s8
  s_cmp_lt_u32 s12, s20
  s_cbranch_scc1 D_L
D_END:
  s_endpgm
""")
    return a.text()

HEAD = """; Kernarg layout for this problem (72 bytes, ptrs only, base s[0:1]):
"""
def main():
    k, nv, ns = gen()
    out = HEAD + f"; @launch grid=({NB},1,1) block=(512,1,1) lds={LDS}\n"
    if OPT["diag"] >= 0:
        out = HEAD + f"; @launch kernel={KN} grid=({NB},1,1) block=(512,1,1) lds={LDS}\n; @launch kernel=mpnn_d_kernel grid=(1,1,1) block=(64,1,1) lds=0\n"
        k += gen_diag(OPT["diag"])
    out += '.amdgcn_target "amdgcn-amd-amdhsa--gfx950"\n.text\n' + k
    out += f""".section .rodata,"a"
.p2align 6
.amdhsa_kernel {KN}
  .amdhsa_next_free_vgpr {nv}
  .amdhsa_next_free_sgpr {ns}
  .amdhsa_accum_offset {(nv+3)//4*4}
  .amdhsa_group_segment_fixed_size 0
  .amdhsa_kernarg_size 72
  .amdhsa_user_sgpr_count 2
  .amdhsa_user_sgpr_kernarg_segment_ptr 1
  .amdhsa_system_sgpr_workgroup_id_x 1
.end_amdhsa_kernel
"""
    if OPT["diag"] >= 0:
        out += """.p2align 6
.amdhsa_kernel mpnn_d_kernel
  .amdhsa_next_free_vgpr 48
  .amdhsa_next_free_sgpr 32
  .amdhsa_accum_offset 48
  .amdhsa_group_segment_fixed_size 0
  .amdhsa_kernarg_size 72
  .amdhsa_user_sgpr_count 2
  .amdhsa_user_sgpr_kernarg_segment_ptr 1
  .amdhsa_system_sgpr_workgroup_id_x 1
.end_amdhsa_kernel
"""
    open(sys.argv[1], "w").write(out)
    print("vgprs", nv, "lds", LDS)
main()
```

```python
from common import *

N = 10000; E = 320000
G = 125
CH = 2560
NB = 256
MAGIC = 26843
CAP = 28
CELLB = 128
BSTR = G * CELLB

WS_P = 256
WS_CELL = 0x280000
WS_WF = 0x1280000
WF_W2, WF_UT, WF_UB, WF_3H, WF_3L = 0, 32768, 65536, 98304, 102400
WF_SIZE = 106496
WS_OVF = 0x12A0000
OVSTR = 64 + CH * 8
WS_FLAG = 0x1520000
WS_STAMP = 0x1600000

OPT = dict(lo=0, k8=1, stamp=0, nodma=0, noadd=0, noe=0, hot=0, align=1, unroll=2, dmapos=0, rdpos=0, dsc=1, pf=1, slp=0, stf=1, addpos=0, rdgap=0, prio=0, bench=0, octo=1, frep=8, fln=16, slp0=0, plf=1, flf=1, diag=-1, touch=0, dz=0, abl=0, dodd=0, wsb=0, claim=0, slpa=0, slpb=0, zt=0, cpf=0, pf2=0, stag=0, bdl=0, wfirst=0, fine=0, half=0, dbg=0, s0st=0, spf=0, spfb=0, early=0, gate=0, ord=0, s0m=0, idle=0, idle2=0, seq=0, smf=0, of=0, oc=0, pert=0, efirst=0, wpos=0, dgap=12, efl=0, pfl=0)
for a_ in sys.argv[2:]:
    k_, v_ = a_.split("="); OPT[k_] = int(v_)
EXP = OPT["dbg"] or OPT["half"] or OPT["bench"] or OPT["nodma"] or OPT["noe"] or OPT["noadd"] or OPT["hot"]

FL_ = ['', 'sc1', 'sc0 sc1', 'sc1 nt', 'sc0 sc1 nt']; PLF = FL_[OPT['plf']]; FLF = FL_[OPT['flf']]
OFL = ['', 'sc1', 'nt', 'sc0 sc1', 'sc1 nt'][OPT['of']]
STF = ['', 'sc1', 'sc0 sc1', 'sc1 nt'][OPT['stf']]
FREP = OPT['frep']; FLN = OPT['fln']; FSH = (128//FLN).bit_length()-1; FHALF = FREP*FLN*256; FNON = 2*FHALF; FMASK = hex((1<<FREP)-1)
NA = 1 if OPT['claim'] & 4 else 0
NCL = (3 if OPT['claim'] & 1 else 0) + NA
NCC = (4 if OPT['claim'] & 2 else 0) + NA
CAPB = 70
L_ENT = 0
L_GN = (CAPB + 1) * 256
L_CNT = L_GN + (CAPB + 17) * 32
L_FLG = L_CNT + 256
L_ACC = L_FLG + 64
AS = 1040
L_Q = L_ACC + 40 * AS
QS = 320
L_X = L_Q + 40 * QS
XS = 288
L_STG = L_X + 40 * XS
STG = 8 * 1040 + 1024
LDS = L_STG + 8 * STG
L_CIMG = L_STG
L_BCNT = L_CIMG + NB * CELLB
WPITCH = 1088
L_GP = L_STG + 1024
L_WS = L_STG + 32 * WPITCH
assert L_BCNT + 1024 <= LDS and L_STG % 16 == 0 and L_ACC % 16 == 0
PADS, PADE = 0x8000003f, 0x80000000
KN = "standalone__mpnn_edge_mlp__graph_kernel"

def fstamp(a, i):
    if OPT["fine"]: a(f"  s_memrealtime s[{80+2*i}:{81+2*i}]")
def stamp(a, i, cyc=None):
    if OPT["fine"] and i in (1, 2, 3, 5): return
    if OPT["stamp"]:
        if cyc is None:
            a(f"  s_memrealtime s[{80+2*i}:{81+2*i}]\n  s_waitcnt lgkmcnt(0)")
        else:
            a(f"  s_memrealtime s[96:97]\n  s_memtime s[98:99]\n  s_waitcnt lgkmcnt(0)\n  s_mov_b32 s{i}, s96\n  s_mov_b32 s{i+2}, s98")

def gen():
    a = Asm()
    rare = []
    R = Regs(1)
    al = R.alloc
    vl = al("lane")
    t0 = al("t", 8, 2); t1, t2, t3, t4, t5, t6, t7 = range(t0+1, t0+8)
    vchunk = al("vchunk"); vechunk = al("vechunk")
    vent = al("vent"); vrow = al("vrow"); vgq = al("vgq"); vga = al("vga")
    vAlo = al("Alo"); vAhi = al("Ahi"); vEF = al("vEF")
    vAT = al("vAT", 4) if OPT["smf"] else None
    vqlane = al("vqlane"); vacl = al("vacl"); vxb = al("vxb"); vqw = al("vqw")
    vebase = al("vebase"); vone = al("vone"); vt16 = al("vt16"); vcell = al("vcell")
    vgl = al("vgl")
    vqa = al("vqa"); vsrow = al("vsrow"); vgn1 = al("vgn1")
    ENT = al("ENT", 2, 2)
    MAC = al("MAC", 2, 2)
    PAT = al("PAT", 2, 2)
    nq = 2 if OPT["k8"] else 4
    AQ = al("AQ", nq, 2)
    GN = al("GN", 4, 2); AD = al("AD", 4)
    DO = al("DO", 2)
    I0 = al("I0", 4, 2); I1 = al("I1", 4, 2)
    W3 = al("W3", 16, 2)
    W3L = al("W3L", 16, 2) if OPT["lo"] else None
    BQ = al("BQ", 4*nq, 2)
    EF = al("EF", 4, 2)
    PF = al("PF", 32, 2)
    D0 = al("D0", 16, 2); D1 = al("D1", 16, 2)
    EA = al("EA", 8, 4); TA = al("TA", 8, 4); EB = al("EB", 8, 4); TB = al("TB", 8, 4)
    RA = al("RA", 2, 2); RB = al("RB", 2, 2)
    SA = al("SA", 2, 2); SB = al("SB", 2, 2)
    CV = al("CV", 8, 2)
    U = al("U", 12, 2); WUB = al("WUB", 16, 2)
    DUM = al("DUM", 4, 2)
    DK = al("DK", 4, 2)
    nv = R.n
    assert TA == EA + 8 and EB == EA + 16 and TB == EA + 24 and D1 == D0 + 16
    DD = D0; SS_ = D0 + 5; B4 = D0 + 10; RK = D0 + 15; CA = D0 + 20
    CP = PF
    GX = W3
    XL = U
    W1F = WUB
    REC = D0; NOD = D0 + 8; RNK = D1
    W2F = EA; WUT = EB; XF = PF; QD = CV
    sW = 3
    pX, pE, pS, pD, pWM, pWU, pO, pWS = 4, 6, 8, 10, 12, 14, 16, 18
    SP, SE, SC, SW, SO, SV, SF = 20, 24, 28, 32, 36, 40, 44
    T0, T1, T2 = 48, 52, 56
    sStart, sNb, sStg, sCnt, sT, sMode, sKind, sFirst = 60, 61, 62, 63, 64, 65, 66, 67
    sAS, sQS, sTag, sP, sUB, sLo2 = 68, 69, 70, 71, 72, 73
    sCO = 59
    sK2 = 56
    sNp = 79
    sEx, sK, sBad = 74, 76, 78
    sTmp = 4
    sA = 48
    sOV = 48
    sOVT = 74
    sq = 100
    if OPT["stamp"]: NS = 102
    else: NS = 102

    a(f"""
.globl {KN}
.p2align 8
.type {KN},@function
{KN}:
  s_cmp_ge_u32 s2, {NB}
  s_cbranch_scc1 K_END""")
    if OPT["stamp"]: a("  s_memrealtime s[80:81]")
    a(f"""
  s_load_dwordx8 s[4:11], s[0:1], 0
  s_load_dwordx4 s[12:15], s[0:1], 32
  s_load_dwordx2 s[16:17], s[0:1], 48
  s_load_dwordx2 s[18:19], s[0:1], 64""")
    if OPT["cpf"]:
        a(f"""
  s_getpc_b64 s[20:21]
  v_lshlrev_b32 v{t1}, 7, v0
  v_cmp_gt_u32 vcc, (K_TEXTEND - {KN}) / 128, v0
  s_and_saveexec_b64 s[22:23], vcc
  s_cbranch_execz K_NOCPF
  global_load_dword v{DUM}, v{t1}, s[20:21]
K_NOCPF:
  s_mov_b64 exec, s[22:23]""")
    a(f"""
  v_lshrrev_b32 v{t0}, 6, v0
  v_and_b32 v{vl}, 63, v0
  s_and_b32 s{sP}, s2, {FREP-1}
  s_mul_i32 s{sP}, s{sP}, {FLN*256}
  s_and_b32 s{sq}, s2, 7
  s_lshl_b32 s{sq}, s{sq}, 1
  s_bfe_u32 s{sq+1}, s2, 0x10003
  s_and_b32 s2, s2, 0xf0
  s_or_b32 s2, s2, s{sq}
  s_or_b32 s2, s2, s{sq+1}
  s_mul_i32 s{sStart}, s2, 640013
  v_readfirstlane_b32 s{sW}, v{t0}
  s_add_u32 s{sNb}, s{sStart}, {640013+16383}
  s_add_u32 s{sStart}, s{sStart}, 16383
  s_sub_u32 s{sNp}, s{sStart}, 640013
  s_lshr_b32 s{sStart}, s{sStart}, 14
  s_lshr_b32 s{sNb}, s{sNb}, 14
  s_lshr_b32 s{sNp}, s{sNp}, 14
  s_min_u32 s{sNb}, s{sNb}, {N}
  s_sub_u32 s{sCnt}, s{sNb}, s{sNp}
  s_sub_u32 s{sNb}, s{sNb}, s{sStart}
  s_lshl_b32 s{sT}, s{sNp}, 8
  s_sub_u32 s{sNp}, s{sStart}, s{sNp}
  s_mov_b32 s{sMode}, 0
  s_mov_b32 s{sKind}, 0
  s_mov_b32 s{sFirst}, 1
  s_mov_b32 s{sAS}, {AS}
  s_mov_b32 s{sQS}, {QS}
  s_mul_i32 s{sStg}, s{sW}, {STG}
  s_add_u32 s{sStg}, s{sStg}, {L_STG}
  v_lshlrev_b32 v{vt16}, 4, v0
  s_mul_i32 s{sq}, s2, {CH*2}
  v_lshl_add_u32 v{t2}, v0, 2, s{sq}
  v_add_u32 v{t3}, 4096, v{t2}
  v_lshrrev_b32 v{t4}, 4, v{vl}
  v_lshlrev_b32 v{t0}, 1, v{t4}
  v_xor_b32 v{t0}, v{t0}, v{vl}
  v_lshlrev_b32 v{t0}, 4, v{t0}
  s_lshl_b32 s{sq}, s{sW}, 12
  v_add_u32 v{t7}, s{sq}, v{t0}
  s_mul_i32 s{sUB}, s{sW}, {4*WPITCH}
  s_add_u32 s{sUB}, s{sUB}, {L_WS}
  v_add_u32 v{t6}, 8192, v{vt16}
  v_add_u32 v{t5}, 16384, v{vt16}
  s_waitcnt lgkmcnt(0)
  {"s_add_u32 s%d, s%d, %d" % (pWS, pWS, OPT["wsb"] << 20) + chr(10) + "  s_addc_u32 s%d, s%d, 0" % (pWS+1, pWS+1) if OPT["wsb"] else ""}
  s_bitcmp1_b32 s2, 0
  s_cbranch_scc1 K_LDG
  s_cmp_ge_u32 s2, {2*G}
  s_cbranch_scc1 K_LDP""")
    if OPT["bdl"]: a(f"  s_sleep {OPT['bdl']}")
    srd(a, T0, pD, E*4)
    srd(a, T1, pS, E*4)
    a(f"  s_movk_i32 s{sq}, 0x2000")
    for r_, T in ((DD, T0), (SS_, T1)):
        a(f"""
  buffer_load_dword v{r_}, v{t2}, {s(T,4)}, 0 offen
  buffer_load_dword v{r_+1}, v{t2}, {s(T,4)}, 0 offen offset:2048
  buffer_load_dword v{r_+2}, v{t3}, {s(T,4)}, 0 offen
  buffer_load_dword v{r_+3}, v{t3}, {s(T,4)}, 0 offen offset:2048
  buffer_load_dword v{r_+4}, v{t2}, {s(T,4)}, s{sq} offen""")
    if OPT["claim"] & 2:
        srd(a, T2, pWS, NB*BSTR, add=WS_CELL)
        a(f"""
  v_lshrrev_b32 v{t4}, 3, v0
  s_mov_b32 s{sq}, {BSTR}
  v_mul_u32_u24 v{t4}, s{sq}, v{t4}
  v_and_b32 v{t0}, 7, v0
  v_lshl_add_u32 v{t4}, v{t0}, 4, v{t4}
  s_lshl_b32 s{sq}, s2, 6
  v_mov_b32 v{PF}, 0
  v_mov_b32 v{PF+1}, 0
  v_mov_b32 v{PF+2}, 0
  v_mov_b32 v{PF+3}, 0""")
        for j in range(4):
            a(f"  buffer_store_dwordx4 {v(PF,4)}, v{t4}, {s(T2,4)}, s{sq} offen sc1\n  s_add_u32 s{sq}, s{sq}, {64*BSTR}")
    a("  s_branch K_LD3")
    def wdma(T):
        for q in range(4):
            a(f"  s_add_u32 m0, s{sUB}, {64*q}\n  s_nop 0\n  buffer_load_dwordx4 v{t7}, {s(T,4)}, 0 offen offset:{1024*q} lds")
    a(f"""
K_LDX:
  s_lshl_b32 s{sq}, s{sStart}, 8
  s_lshl_b32 s{sq+1}, s{sNb}, 8""")
    srd(a, T2, pX, f"s{sq+1}", addreg=sq)
    a(f"""
  buffer_load_dwordx4 {v(XL,4)}, v{vt16}, {s(T2,4)}, 0 offen
  buffer_load_dwordx4 {v(XL+4,4)}, v{t6}, {s(T2,4)}, 0 offen
  s_branch K_LD3
K_LDP:
  s_cmp_eq_u32 s2, {2*G}
  s_cselect_b32 s{T1}, s{pWM}, s{pWU}
  s_cselect_b32 s{T1+1}, s{pWM+1}, s{pWU+1}
  s_cmp_eq_u32 s2, {2*G+2}
  s_cselect_b32 s{sq}, 0, 32768
  s_add_u32 s{T1}, s{T1}, s{sq}
  s_addc_u32 s{T1+1}, s{T1+1}, 0
  s_mov_b32 s{T1+2}, 32768
  s_mov_b32 s{T1+3}, 0x20000""")
    wdma(T1)
    srd(a, T0, pWM, 16*256, add=256*256)
    a(f"""
  v_and_b32 v{t0}, 31, v{vl}
  v_lshrrev_b32 v{t1}, 5, v{vl}
  v_lshlrev_b32 v{t1}, 11, v{t1}
  v_lshl_add_u32 v{t1}, v{t0}, 1, v{t1}
  s_and_b32 s{sq}, s{sW}, 3
  s_lshl_b32 s{sq}, s{sq}, 6""")
    for jj in range(8):
        a(f"  buffer_load_ushort v{D0+jj}, v{t1}, {s(T0,4)}, s{sq} offen offset:{jj*256}")
    a(f"""
  s_branch K_LDX
K_LDG:
  s_lshl_b32 s{sCnt}, s{sCnt}, 8""")
    srd(a, T0, pX, f"s{sCnt}", addreg=sT)
    srd(a, T1, pWM, 128*256)
    if OPT["wfirst"]: wdma(T1)
    a(f"""
  buffer_load_dwordx4 {v(GX,4)}, v{vt16}, {s(T0,4)}, 0 offen
  buffer_load_dwordx4 {v(GX+4,4)}, v{t6}, {s(T0,4)}, 0 offen
  buffer_load_dwordx4 {v(GX+8,4)}, v{t5}, {s(T0,4)}, 0 offen""")
    if not OPT["wfirst"]: wdma(T1)
    if OPT["claim"] & 1:
        srd(a, T2, pWS, f"s{sCnt}", add=WS_P, addreg=sT)
        for r_ in (vt16, t6, t5):
            a(f"  buffer_store_dwordx4 {v(PF,4)}, v{r_}, {s(T2,4)}, 0 offen sc1")
    a(f"""
K_LD3:""")
    if OPT["claim"] & 4:
        a(f"  s_lshl_b32 s{sq}, s{sStart}, 8\n  s_lshl_b32 s{sq+1}, s{sNb}, 8")
        srd(a, SO, pWS, f"s{sq+1}", add=WS_P, addreg=sq)
        a(f"""
  s_mul_i32 s{sq}, s{sW}, 1280
  v_lshl_add_u32 v{t1}, v{vl}, 7, s{sq}
  v_mov_b32 v{t0}, 0
  s_mov_b64 exec, 0x3ff
  buffer_atomic_or v{t0}, v{t1}, {s(SO,4)}, 0 offen
  s_mov_b64 exec, -1""")
    a(f"""
  s_add_u32 s{SF}, s{pWS}, {WS_FLAG}
  s_addc_u32 s{SF+1}, s{pWS+1}, 0
  s_load_dword s{sTag}, s[{SF}:{SF+1}], {FNON}
  s_mov_b32 s{SF+2}, {FNON+4}
  s_mov_b32 s{SF+3}, 0x20000
  v_lshrrev_b32 v{t1}, 2, v0
  v_and_b32 v{t4}, 3, v0
  v_lshlrev_b32 v{t4}, 4, v{t4}
  v_lshl_add_u32 v{vcell}, v{t1}, {6 if OPT['half'] == 2 else 7}, v{t4}
  s_mov_b32 s{sq}, {CH*32}
  v_mul_u32_u24 v{vebase}, s{sq}, v{t1}""")
    a(f"""
  v_mov_b32 v{CV}, 0
  v_mov_b32 v{CV+1}, 0
  v_mov_b32 v{CV+2}, 0
  v_mov_b32 v{CV+3}, 0
  v_add_u32 v{t0}, {L_CIMG}, v{vt16}""")
    a(f"  s_bitcmp1_b32 s2, 0\n  s_cbranch_scc1 K_NOZ")
    for j in range(4):
        a(f"  ds_write_b128 v{t0}, {v(CV,4)} offset:{j*8192}")
    a(f"  s_cmp_lg_u32 s{sW}, 0\n  s_cbranch_scc1 K_NOZ\n  ds_write_b128 v{t0}, {v(CV,4)} offset:32768")
    a("K_NOZ:")
    for j in range(5):
        a(f"  ds_write_b128 v{vt16}, {v(CV,4)} offset:{L_GN + j*8192}")
    a(f"""
  v_cmp_gt_u32 vcc, {(L_Q-L_GN-5*8192)//16}, v0
  s_and_saveexec_b64 {s(sEx,2)}, vcc
  ds_write_b128 v{vt16}, {v(CV,4)} offset:{L_GN + 5*8192}
  s_mov_b64 exec, {s(sEx,2)}""")
    def prefill():
        a(f"""
  v_mov_b32 v{CV+4}, {PADS}
  v_mov_b32 v{CV+5}, {PADE}
  v_mov_b32 v{CV+6}, {PADS}
  v_mov_b32 v{CV+7}, {PADE}
  ds_write_b128 v{vt16}, {v(CV+4,4)}
  ds_write_b128 v{vt16}, {v(CV+4,4)} offset:8192
  v_cmp_gt_u32 vcc, {(L_GN-16384)//16}, v0
  s_and_saveexec_b64 {s(sEx,2)}, vcc
  ds_write_b128 v{vt16}, {v(CV+4,4)} offset:16384
  s_mov_b64 exec, {s(sEx,2)}""")
    prefill()
    a(f"  s_mul_i32 s{sq}, s2, {BSTR}\n  s_lshl_b32 s{sq+1}, s{sStart}, 8\n  s_lshl_b32 s{sK}, s{sNb}, 8")
    srd(a, SC, pWS, G*CELLB // (2 if OPT['half'] == 2 else 1), add=WS_CELL, addreg=sq)
    srd(a, SP, pWS, (N+1)*256)
    srd(a, SE, pE, E*32)
    srd(a, SW, pWS, WF_SIZE, add=WS_WF)
    srd(a, SO, pO, f"s{sK}", addreg=sq+1)
    srd(a, SV, pWS, G*OVSTR, add=WS_OVF)
    a(f"""
  v_mov_b32 v{vone}, 1
  v_mov_b32 v{MAC}, 0
  v_mov_b32 v{MAC+1}, 0
  v_and_b32 v{t0}, 15, v{vl}                 ; l&15
  v_bfe_u32 v{t1}, v{vl}, 4, 1               ; r4&1
  {"v_lshlrev_b32 v%d, 3, v%d" % (t2, t1) if not OPT["smf"] else "v_lshrrev_b32 v%d, 4, v%d" % (t2, vl) + chr(10) + "  v_lshlrev_b32 v%d, 2, v%d" % (t2, t2)}
  v_xor_b32 v{t2}, v{t0}, v{t2}
  v_lshlrev_b32 v{vchunk}, 4, v{t2}
  v_and_b32 v{t2}, 1, v{vl}
  v_xor_b32 v{t2}, v{t2}, v{t1}
  v_lshlrev_b32 v{vechunk}, 4, v{t2}
  v_lshrrev_b32 v{t2}, 4, v{vl}
  v_lshlrev_b32 v{t2}, 6, v{t2}
  v_lshrrev_b32 v{t4}, 1, v{t0}
  v_lshl_add_u32 v{t2}, v{t4}, 3, v{t2}
  s_lshl_b32 s{sq}, s{sW}, 8
  v_add_u32 v{vent}, s{sq}, v{t2}
  v_bfe_u32 v{t2}, v{vl}, 2, 1               ; h
  v_and_b32 v{t4}, 1, v{vl}                  ; xy
  v_lshl_add_u32 v{t5}, v{t2}, 1, v{t4}      ; r4
  v_bfe_u32 v{t6}, v{vl}, 3, 2
  v_bfe_u32 v{t7}, v{vl}, 1, 1
  v_lshl_add_u32 v{t6}, v{t6}, 1, v{t7}      ; j
  v_lshl_add_u32 v{t7}, v{t5}, 3, v{t6}      ; q = 8 r4 + j
  v_lshlrev_b32 v{t7}, 3, v{t7}
  v_add_u32 v{vrow}, s{sq}, v{t7}
  v_lshrrev_b32 v{t7}, 5, v{vl}              ; hh
  v_mul_u32_u24 v{vAlo}, 1040, v{t6}
  v_lshl_add_u32 v{vAlo}, v{t5}, 8, v{vAlo}
  v_lshl_add_u32 v{vAlo}, v{t7}, 4, v{vAlo}
  v_add_u32 v{vAlo}, s{sStg}, v{vAlo}
  v_xor_b32 v{vAhi}, 1, v{t4}
  v_lshl_add_u32 v{vAhi}, v{vAhi}, 7, v{vAlo}
  v_lshl_add_u32 v{vAlo}, v{t4}, 7, v{vAlo}
  v_xor_b32 v{vEF}, v{t7}, v{t4}
  v_lshl_add_u32 v{vEF}, v{t6}, 1, v{vEF}
  v_lshl_add_u32 v{vEF}, v{t5}, 4, v{vEF}
  v_lshlrev_b32 v{vEF}, 4, v{vEF}
  s_add_u32 s{sq+1}, s{sStg}, 8320
  v_add_u32 v{vEF}, s{sq+1}, v{vEF}
  v_bfe_u32 v{t5}, v{vl}, 4, 1               ; o
  v_lshlrev_b32 v{t5}, 4, v{t5}
  v_mov_b32 v{t6}, 0x3f80
  v_lshlrev_b32 v{t5}, v{t5}, v{t6}
  v_cmp_eq_u32 vcc, v{t7}, v{t2}
  s_nop 1
  v_cndmask_b32 v{t5}, 0, v{t5}, vcc
  v_cmp_eq_u32 vcc, 0, v{t4}
  s_nop 1
  v_cndmask_b32 v{PAT}, 0, v{t5}, vcc
  v_cndmask_b32 v{PAT+1}, v{t5}, 0, vcc
  s_lshl_b32 s{sq}, s{sW}, 5
  s_add_u32 s{sq+1}, s{sq}, {L_GN}
  v_lshlrev_b32 v{vga}, 4, v{t7}
  v_add_u32 v{vga}, s{sq+1}, v{vga}
  v_and_b32 v{t2}, 12, v{vl}
  v_add_u32 v{vgq}, v{vga}, v{t2}
  v_and_b32 v{t2}, 3, v{vl}
  v_lshlrev_b32 v{t2}, 3, v{t2}
  v_lshl_add_u32 v{t2}, v{t1}, 5, v{t2}
  v_add_u32 v{vqlane}, {L_Q}, v{t2}
  v_and_b32 v{t2}, 31, v{vl}
  v_lshlrev_b32 v{t4}, 3, v{t2}
  v_add_u32 v{vacl}, {L_ACC}, v{t4}
  v_lshrrev_b32 v{t4}, 4, v{vl}              ; g
  v_mul_u32_u24 v{vxb}, {XS}, v{t0}
  v_lshl_add_u32 v{vxb}, v{t4}, 4, v{vxb}
  v_add_u32 v{vxb}, {L_X}, v{vxb}
  v_mul_u32_u24 v{vqw}, {QS}, v{t0}
  v_lshl_add_u32 v{vqw}, v{t4}, 3, v{vqw}
  s_add_u32 s{sq+1}, s{sq}, {L_Q}
  v_add_u32 v{vqw}, s{sq+1}, v{vqw}
  v_mul_u32_u24 v{vqa}, {2*WPITCH}, v{t4}
  v_bfe_u32 v{t5}, v{vl}, 2, 2
  v_lshl_add_u32 v{vqa}, v{t5}, 8, v{vqa}
  v_xor_b32 v{t5}, s{sW}, v{t5}
  v_lshl_add_u32 v{vqa}, v{t5}, 5, v{vqa}
  v_and_b32 v{t5}, 3, v{vl}
  v_lshl_add_u32 v{vqa}, v{t5}, 3, v{vqa}
  v_add_u32 v{vqa}, {L_WS}, v{vqa}
  v_and_b32 v{t4}, 1, v{vl}
  v_lshlrev_b32 v{t4}, 4, v{t4}
  v_lshlrev_b32 v{t4}, v{t4}, v{t6}
  v_bfe_u32 v{t5}, v{vl}, 1, 4
  v_lshlrev_b32 v{t7}, 2, v{t7}
  v_sub_u32 v{t5}, v{t5}, v{t7}""")
    if OPT["smf"]:
        a(f"""
  v_bfe_u32 v{t4}, v{vl}, 4, 1
  v_bfe_u32 v{t5}, v{vl}, 1, 1
  v_lshl_add_u32 v{t4}, v{t4}, 1, v{t5}
  v_bfe_u32 v{t5}, v{vl}, 3, 1
  v_lshrrev_b32 v{t7}, 5, v{vl}
  v_xor_b32 v{t5}, v{t5}, v{t7}
  v_lshl_add_u32 v{t4}, v{t5}, 2, v{t4}""")
        for i in range(4):
            a(f"  v_cmp_eq_u32 vcc, {i}, v{t4}\n  s_nop 1\n  v_cndmask_b32 v{I0+i}, 0, v{t6}, vcc")
        a(f"""
  v_bfe_u32 v{t4}, v{vl}, 2, 1
  v_and_b32 v{t5}, 1, v{vl}
  v_lshl_add_u32 v{t4}, v{t4}, 1, v{t5}
  v_mul_u32_u24 v{I1}, 0x5555, v{t4}
  v_bfe_u32 v{t4}, v{vl}, 2, 2
  v_mul_u32_u24 v{t5}, {4*1040}, v{t7}
  v_lshl_add_u32 v{t5}, v{t4}, 8, v{t5}
  v_subrev_u32 v{t7}, {L_Q}, v{vqlane}
  v_add3_u32 v{t5}, v{t5}, v{t7}, s{sStg}""")
        for t in range(4):
            a(f"  v_xor_b32 v{t7}, {t}, v{t4}\n  v_lshl_add_u32 v{vAT+t}, v{t7}, 6, v{t5}")
    else:
        for i in range(4):
            a(f"  v_cmp_eq_u32 vcc, {i}, v{t5}\n  s_nop 1\n  v_cndmask_b32 v{I0+i}, 0, v{t4}, vcc")
            a(f"  v_cmp_eq_u32 vcc, {8+i}, v{t5}\n  s_nop 1\n  v_cndmask_b32 v{I1+i}, 0, v{t4}, vcc")
    if not OPT["k8"]:
        a(f"  v_mov_b32 v{AQ+2}, 0\n  v_mov_b32 v{AQ+3}, 0")
        for t in range(4):
            a(f"  v_mov_b32 v{BQ+4*t+2}, 0\n  v_mov_b32 v{BQ+4*t+3}, 0")
    def prefetch():
        if not OPT["pf"]: return
        a(f"  s_mul_i32 s{sq}, s2, 40000\n  s_sub_u32 s{sq}, s{sq}, 4096\n  v_add_u32 v{t0}, s{sq}, v{vt16}")
        for j in range(10):
            a(f"  buffer_load_dwordx4 {v(DUM,4)}, v{t0}, {s(SE,4)}, 0 offen")
            if j < 9: a(f"  v_add_u32 v{t0}, 4096, v{t0}")
    def wtr(dst, ad):
        for st in range(4):
            for hf in range(2):
                a(f"  ds_read_b64_tr_b16 {v(dst+4*st+2*hf,2)}, v{ad} offset:{(8*st+hf)*WPITCH}")
    def own_x(nyounger):
        a(f"""
  v_lshrrev_b32 v{t0}, 4, v0
  v_lshl_add_u32 v{t0}, v{t0}, 5, v{vt16}
  v_add_u32 v{t0}, {L_X}, v{t0}
  s_waitcnt vmcnt({nyounger})
  ds_write_b128 v{t0}, {v(XL,4)}
  s_mov_b32 exec_lo, s{sLo2}
  s_mov_b32 exec_hi, s{sLo2}
  ds_write_b128 v{t0}, {v(XL+4,4)} offset:{32*XS}
  s_mov_b64 exec, -1""")
    a(f"""
  s_cmp_lt_u32 s{sW}, 2
  s_cselect_b32 s{sLo2}, -1, 0
  s_lshr_b32 s{sq}, s2, {1+FSH}
  s_lshl_b32 s{sq}, s{sq}, 8
  s_bfe_u32 s{sq+1}, s2, {hex((FSH<<16)|1)}
  s_lshl_b32 s{sq+1}, s{sq+1}, 2
  s_add_u32 s{sq}, s{sq}, s{sq+1}
  s_and_b32 s{sq+1}, s2, 1
  s_mul_i32 s{sq+1}, s{sq+1}, {FHALF}
  s_add_u32 s{sq}, s{sq}, s{sq+1}
  v_mul_u32_u24 v{vgn1}, {FLN*256}, v{vl}
  v_add_u32 v{vgn1}, s{sq}, v{vgn1}
  v_lshrrev_b32 v{t2}, {FSH-1}, v{vl}
  v_lshlrev_b32 v{t2}, 8, v{t2}
  v_and_b32 v{t3}, {(1<<(FSH-1))-1}, v{vl}
  v_lshl_add_u32 v{t2}, v{t3}, 3, v{t2}
  v_add_u32 v{vsrow}, s{sP}, v{t2}
  s_mov_b32 s{sK}, {NLOG2E}
  s_mov_b32 s{sK+1}, {NLOG2E}
  s_waitcnt lgkmcnt(0)
  s_add_u32 s{sTag}, s{sTag}, 1
  s_max_u32 s{sTag}, s{sTag}, 1
  s_bitcmp1_b32 s2, 0
  s_cbranch_scc1 K_GEMM
  s_cmp_ge_u32 s2, {2*G}
  s_cbranch_scc1 K_PREP
  s_mov_b32 s{sq}, {MAGIC}
  v_lshlrev_b32 v{t7}, 6, v0
  v_add_u32 v{t7}, {1<<18}, v{t7}
  s_barrier
  s_waitcnt vmcnt({5+NCC})""")
    stamp(a, 1)
    for j in range(5):
        a(f"""
  v_mul_u32_u24 v{B4+j}, s{sq}, v{DD+j}
  v_lshrrev_b32 v{B4+j}, 18, v{B4+j}
  v_and_b32 v{B4+j}, 0x3fc, v{B4+j}
  v_add_u32 v{t0+j}, {L_BCNT}, v{B4+j}
  ds_add_rtn_u32 v{RK+j}, v{t0+j}, v{vone}""")
    def claim_pair():
        a(f"  s_lshl_b32 s{sT}, s{sStart}, 8\n  s_sub_u32 s{sCnt}, {N*256}, s{sT}")
        srd(a, T1, pWS, f"s{sCnt}", add=WS_P, addreg=sT)
        a(f"""
  s_mul_i32 s{sT}, s{sW}, 2560
  v_lshl_add_u32 v{DO}, v{vl}, 7, s{sT}
  v_mov_b32 v{DO+1}, 0
  s_mov_b64 exec, 0xfffff
  buffer_atomic_or v{DO+1}, v{DO}, {s(T1,4)}, 0 offen
  s_mov_b64 exec, -1""")
    if OPT["claim"] & 16: claim_pair()
    a(f"  s_waitcnt vmcnt({NCC + (1 if OPT['claim'] & 16 else 0)})")
    if OPT["claim"] & 8: claim_pair()
    for j in range(5):
        a(f"""
  v_lshl_add_u32 v{SS_+j}, v{SS_+j}, 18, v{t7}
  v_and_or_b32 v{SS_+j}, v{DD+j}, 63, v{SS_+j}
  v_lshlrev_b32 v{CA+j}, 5, v{B4+j}
  v_add_u32 v{CA+j}, {L_CIMG}, v{CA+j}""")
        if j < 4: a(f"  v_add_u32 v{t7}, {512<<6}, v{t7}")
    srd(a, T2, pWS, NB*BSTR if not OPT["dbg"] & 4 else 0, add=WS_CELL + (0x2000000 if OPT["dbg"] & 1 else 0))
    a(f"""
  v_lshrrev_b32 v{t4}, 3, v0
  s_mov_b32 s{sq}, {BSTR}
  v_mul_u32_u24 v{t4}, s{sq}, v{t4}
  v_and_b32 v{t5}, 7, v0
  v_lshl_add_u32 v{t4}, v{t5}, 4, v{t4}
  s_lshl_b32 s{sq}, s2, {5 if OPT['half'] == 2 else 6}
  s_mov_b64 {s(sBad,2)}, 0
  s_waitcnt lgkmcnt(0)""")
    for j in range(5):
        a(f"""
  v_mul_u32_u24 v{t1}, 37, v{RK+j}
  v_lshl_add_u32 v{t0}, v{RK+j}, 2, v{CA+j}
  v_lshrrev_b32 v{t1}, 8, v{t1}
  v_cmp_le_u32 vcc, {CAP}, v{RK+j}
  v_lshl_add_u32 v{t0}, v{t1}, 2, v{t0}
  s_or_b64 {s(sBad,2)}, {s(sBad,2)}, vcc
  s_andn2_b64 exec, exec, vcc
  ds_write_b32 v{t0}, v{SS_+j}
  s_mov_b64 exec, -1""")
    a(f"""
  v_add_u32 v{t0}, {L_CIMG}, v{vt16}
  v_mov_b32 v{t2}, {L_FLG+4}
  s_cmp_eq_u64 {s(sBad,2)}, 0
  s_cbranch_scc1 K_NOFULL
  ds_write_b32 v{t2}, v{vone}
K_NOFULL:
  s_waitcnt lgkmcnt(0)
  s_barrier""")
    stamp(a, 2)
    a(f"  ds_read_b32 v{t2}, v{t2}\nK_OVFDONE:")
    for j in range(4):
        a(f"  ds_read_b128 {v(CP+4*j,4)}, v{t0} offset:{8192*j}")
    a(f"""
  s_waitcnt vmcnt({2 if OPT['claim'] & 2 else 63}) lgkmcnt(4)
  v_cmp_ne_u32 vcc, 0, v{t2}
  s_cbranch_vccnz K_OVF""")
    for j in range(4):
        a(f"""
  s_mov_b32 exec_lo, 0xaaaaaaaa
  s_mov_b32 exec_hi, 0xaaaaaaaa
  s_waitcnt lgkmcnt({3-j})
  v_mov_b32 v{CP+4*j+3}, s{sTag}
  s_mov_b64 exec, -1
  {"s_mov_b32 exec_lo, 0x0f0f0f0f" + chr(10) + "  s_mov_b32 exec_hi, 0x0f0f0f0f" if OPT["half"] else ""}
  buffer_store_dwordx4 {v(CP+4*j,4)}, v{t4}, {s(T2,4)}, s{sq} offen {STF}
  s_mov_b64 exec, -1
  s_add_u32 s{sq}, s{sq}, {64*BSTR}""")
    a(f"  s_lshl_b32 s{sq}, s{sStart}, 8\n  s_lshl_b32 s{sq+1}, s{sNb}, 8")
    srd(a, T2, pX, f"s{sq+1}", addreg=sq)
    a(f"""
  v_add_u32 v{t6}, 8192, v{vt16}
  buffer_load_dwordx4 {v(XL,4)}, v{vt16}, {s(T2,4)}, 0 offen
  buffer_load_dwordx4 {v(XL+4,4)}, v{t6}, {s(T2,4)}, 0 offen""")
    own_x(0)
    a(f"""
  {"s_sleep %d" % OPT["slpa"] if OPT["slpa"] else ""}""")
    def spf(n, per_wave, base):
        if not n: return
        assert 8*OPT['spf'] + 4*OPT['spfb'] <= 640
        a(f"""
  s_lshr_b32 s{sq}, s2, 1
  s_min_u32 s{sq}, s{sq}, {G-1}
  s_mul_i32 s{sq}, s{sq}, {CH*32}
  s_mul_i32 s{sq+1}, s{sW}, {per_wave}
  s_add_u32 s{sq}, s{sq}, s{sq+1}
  s_add_u32 s{sq}, s{sq}, {base}
  s_add_u32 s{T0}, s{pE}, s{sq}
  s_addc_u32 s{T0+1}, s{pE+1}, 0""")
        for i in range(n):
            a(f"  s_load_dword s{T0+2}, s[{T0}:{T0+1}], {128*i}")
    spf(OPT["spf"], OPT["spf"]*128, 0)
    a(f"""
  s_branch K_PST
K_GW:
  {"s_sleep %d" % OPT["slpb"] if OPT["slpb"] else ""}""")
    spf(OPT["spfb"], OPT["spfb"]*128, OPT["spf"]*1024)
    a(f"""
  s_branch K_PST
K_GEMM:
  ; ---------------- P gemm role: rows of this bucket and the one before ----------------""")
    if OPT["touch"]:
        a(f"""
  s_cmp_lg_u32 s{sW}, 0
  s_cbranch_scc1 K_NOTOUCH
  s_waitcnt vmcnt(0)
  s_mov_b64 exec, {FMASK}
  buffer_load_dword v{DUM}, v{vgn1}, {s(SF,4)}, 0 offen sc1
  s_mov_b64 exec, -1
K_NOTOUCH:""")
    a(f"""
  s_mul_i32 s{sq}, s{sNp}, {XS}
  s_sub_u32 s{sq}, {L_X}, s{sq}
  v_lshrrev_b32 v{t0}, 4, v0
  v_lshl_add_u32 v{t0}, v{t0}, 5, v{vt16}
  v_add_u32 v{t3}, s{sq}, v{t0}
  s_cmp_lt_u32 s{sW}, 4
  s_cselect_b32 s{sq+1}, -1, 0
  v_subrev_u32 v{t1}, {L_X}, v{vxb}
  v_add_u32 v{t1}, s{sq}, v{t1}
  s_waitcnt vmcnt({(2 if OPT['wfirst'] else 6)+NCL})
  ds_write_b128 v{t3}, {v(GX,4)}
  s_waitcnt vmcnt({(1 if OPT['wfirst'] else 5)+NCL})
  ds_write_b128 v{t3}, {v(GX+4,4)} offset:{32*XS}
  s_waitcnt vmcnt({(0 if OPT['wfirst'] else 4)+NCL})
  s_mov_b32 exec_lo, s{sq+1}
  s_mov_b32 exec_hi, s{sq+1}
  ds_write_b128 v{t3}, {v(GX+8,4)} offset:{64*XS}
  s_mov_b64 exec, -1
  v_and_b32 v{t2}, 15, v{vl}
  v_mul_u32_u24 v{t2}, {XS}, v{t2}
  v_lshrrev_b32 v{t3}, 4, v{vl}
  v_lshl_add_u32 v{t2}, v{t3}, 3, v{t2}
  s_lshl_b32 s{sq}, s{sW}, 5
  s_add_u32 s{sq}, s{sq}, {L_GP}
  v_add_u32 v{t2}, s{sq}, v{t2}
  v_add_u32 v{t0}, {L_GP - 16*XS}, v{t0}
  v_subrev_u32 v{t4}, 4096, v{vt16}""")
    srd(a, T0, pWS, f"s{sCnt}", add=WS_P + (0x2800000 if OPT["dbg"] & 2 else 0), addreg=sT)
    a(f"  s_waitcnt vmcnt({NCL}) lgkmcnt(0)\n  s_barrier")
    stamp(a, 1)
    wtr(W1F, vqa)
    XT = [PF, PF+16, EA, EB, PF]
    for nt in range(4):
        for st in range(4):
            a(f"  ds_read_b128 {v(XT[nt]+4*st,4)}, v{t1} offset:{nt*16*XS + st*64}")
    for nt in range(5):
        a(f"  s_waitcnt lgkmcnt({(12, 12, 8, 4, 0)[nt]})")
        for st in range(4):
            c = "0" if st == 0 else v(D0+4*nt, 4)
            a(f"  v_mfma_f32_16x16x32_bf16 {v(D0+4*nt,4)}, {v(W1F+4*st,4)}, {v(XT[nt]+4*st,4)}, {c}")
        if nt == 0:
            for st in range(4):
                a(f"  ds_read_b128 {v(PF+4*st,4)}, v{t1} offset:{4*16*XS + st*64}")
    for nt in range(5):
        d = D0 + 4*nt
        if nt == 4: a("  s_nop 1")
        a(f"""
  v_pk_mul_f32 {v(d,2)}, {v(d,2)}, {s(sK,2)}
  v_pk_mul_f32 {v(d+2,2)}, {v(d+2,2)}, {s(sK,2)}
  v_cvt_pk_bf16_f32 v{W3+2*nt}, v{d}, v{d+1}
  v_cvt_pk_bf16_f32 v{W3+2*nt+1}, v{d+2}, v{d+3}
  ds_write_b64 v{t2}, {v(W3+2*nt,2)} offset:{nt*16*XS}""")
    a(f"  s_waitcnt vmcnt({NA}) lgkmcnt(0)\n  s_barrier")
    stamp(a, 2)
    a(f"""
  s_cmp_lt_u32 s{sW}, 4
  s_cbranch_scc1 K_GW""")
    for j in range(5):
        a(f"  ds_read_b128 {v(PF+4*j,4)}, v{t0} offset:{j*16*XS}")
    if OPT["zt"]:
        srd(a, T1, pWS, f"s{sCnt}", add=0x1800000, addreg=sT)
        a(f"  s_waitcnt lgkmcnt(0)\n  v_mov_b32 v{t1}, v{t4}")
        for j in range(5):
            a(f"  buffer_store_dwordx4 {v(PF+4*j,4)}, v{t1}, {s(T1,4)}, 0 offen {STF}\n  v_add_u32 v{t1}, 4096, v{t1}")
        a("  s_waitcnt vmcnt(0)")
        stamp(a, 1)
    for j in range(5):
        a(f"  s_waitcnt lgkmcnt({4-j})\n  buffer_store_dwordx4 {v(PF+4*j,4)}, v{t4}, {s(T0,4)}, 0 offen {STF}")
        if j < 4: a(f"  v_add_u32 v{t4}, 4096, v{t4}")
    a(f"""
  v_mov_b32 v{t0}, {L_FLG+12}
  v_mov_b32 v{t7}, s{sTag}
""")
    if OPT["early"]:
        a(f"""
  s_sleep {OPT["early"]}
  v_min_u32 v{t4}, 2, v{vl}
  s_lshl_b32 s{sq}, s2, 7
  v_lshl_add_u32 v{t4}, v{t4}, 2, s{sq}
  buffer_load_dwordx4 {v(REC,4)}, v{vcell}, {s(SC,4)}, 0 offen sc1
  buffer_load_dwordx4 {v(REC+4,4)}, v{vcell}, {s(SC,4)}, 0 offen offset:64 sc1
  {"buffer_load_dword v%d, v%d, %s, 0 offen sc1" % (t5, t4, s(SF,4)) if not OPT["s0m"] else ""}
  s_mov_b32 s{sKind}, 9""")
    a(f"""
  s_mov_b64 exec, 1
  s_waitcnt vmcnt({(2 if OPT["s0m"] else 3) if OPT["early"] else 0})""")
    stamp(a, 3)
    a(f"""
  ds_add_rtn_u32 v{t0}, v{t0}, v{vone}
  s_waitcnt lgkmcnt(0)
  v_readfirstlane_b32 s{sOV+5}, v{t0}
  s_mov_b64 exec, -1
  s_cmp_lg_u32 s{sOV+5}, 3
  s_cbranch_scc1 K_PST
K_FLAG:
  s_mov_b64 exec, {FMASK}
  buffer_store_dword v{t7}, v{vgn1}, {s(SF,4)}, 0 offen {FLF}
  s_mov_b64 exec, -1
K_PST:""")
    def node_gemm(WA, WB=None):
        for nt in range(3):
            xf = XF + 16*(nt & 1)
            if nt == 0:
                for n2 in range(2):
                    for st in range(4):
                        a(f"  ds_read_b128 {v(XF+16*n2+4*st,4)}, v{vxb} offset:{n2*16*XS + st*64}")
            a(f"  s_waitcnt lgkmcnt({4 if nt == 0 else 5 if nt == 1 else 1})")
            q = QD if nt != 1 else SA
            for st in range(4):
                c = "0" if st == 0 else v(q, 4)
                a(f"  v_mfma_f32_16x16x32_bf16 {v(q,4)}, {v(WA+4*st,4)}, {v(xf+4*st,4)}, {c}")
            if WB is not None:
                for st in range(4):
                    c = "0" if st == 0 else v(U+4*nt, 4)
                    a(f"  v_mfma_f32_16x16x32_bf16 {v(U+4*nt,4)}, {v(WB+4*st,4)}, {v(xf+4*st,4)}, {c}")
            if nt == 0:
                for st in range(4):
                    a(f"  ds_read_b128 {v(XF+4*st,4)}, v{vxb} offset:{2*16*XS + st*64}")
            a(f"""
  s_nop 7
  v_pk_mul_f32 {v(q,2)}, {v(q,2)}, {s(sK,2)}
  v_pk_mul_f32 {v(q+2,2)}, {v(q+2,2)}, {s(sK,2)}
  v_cvt_pk_bf16_f32 v{QD+4+2*(nt&1)}, v{q}, v{q+1}
  v_cvt_pk_bf16_f32 v{QD+5+2*(nt&1)}, v{q+2}, v{q+3}""")
            if nt == 2:
                a(f"  s_mov_b32 exec_lo, 0x00ff00ff\n  s_mov_b32 exec_hi, 0x00ff00ff")
            a(f"  ds_write_b64 v{vqw}, {v(QD+4+2*(nt&1),2)} offset:{nt*16*QS}")
            if nt == 2:
                a("  s_mov_b64 exec, -1")
    assert SB == SA + 2
    def poll(lab, off):
        a(f"""
  s_cmp_lg_u32 s{sW}, 1
  s_cbranch_scc1 {lab}_D
  s_mov_b32 s{sq}, 0
  s_mov_b32 s{sq+1}, {off}
  v_min_u32 v{t0}, 2, v{vl}
  s_lshl_b32 s{sBad}, s2, 7
  v_lshl_add_u32 v{t0}, v{t0}, 2, s{sBad}
{lab}:
  buffer_load_dwordx2 {v(DUM,2)}, v{vsrow}, {s(SF,4)}, s{sq+1} offen {PLF}
  buffer_load_dword v{DUM+2}, v{t0}, {s(SF,4)}, 0 offen {PLF}
  s_add_u32 s{sq}, s{sq}, 1
  s_waitcnt vmcnt(0)
  v_cmp_ne_u32 vcc, s{sTag}, v{DUM}
  v_cmp_ne_u32 {s(sBad,2)}, s{sTag}, v{DUM+1}
  s_or_b64 vcc, vcc, {s(sBad,2)}
  v_cmp_ne_u32 {s(sBad,2)}, s{sTag}, v{DUM+2}
  s_or_b64 vcc, vcc, {s(sBad,2)}
  s_cbranch_scc0 {lab}_D
  {"s_sleep %d" % OPT["slp"] if OPT["slp"] else ""}
  s_cmp_lt_u32 s{sq}, 0x8000
  s_cbranch_scc1 {lab}
{lab}_D:""")
    stamp(a, 5)
    nld = 16 if OPT["lo"] else 12
    a(f"""
  s_lshl_b32 s{sTmp}, s{sW}, 12
  s_add_u32 s{sTmp+1}, s{sTmp}, {WF_UT}
  s_add_u32 s{sUB}, s{sTmp}, {WF_UB}
  s_mov_b32 s{sTmp+2}, {WF_3H}
  s_mov_b32 s{sTmp+3}, {WF_3L}
  s_mov_b32 s{sOV}, {0xaaaaaaaa if not OPT["dbg"] & 5 else 0}
  s_cmp_eq_u32 s{sW}, 7
  s_cselect_b32 s{sOV+1}, {0xaaaaa if not OPT["dbg"] & 5 else 0}, s{sOV}
  v_min_u32 v{t4}, 2, v{vl}
  s_lshl_b32 s{sq}, s2, 7
  v_lshl_add_u32 v{t4}, v{t4}, 2, s{sq}
  s_mov_b32 s{sq}, 0
  {"s_sleep %d" % OPT["slp0"] if OPT["slp0"] else ""}
""")
    wl = [f"  buffer_load_dwordx4 {v(W2F+4*st,4)}, v{vgl}, {s(SW,4)}, s{sTmp} offen offset:{st*1024} sc1" for st in range(4)]
    wl += [f"  buffer_load_dwordx4 {v(WUT+4*st,4)}, v{vgl}, {s(SW,4)}, s{sTmp+1} offen offset:{st*1024} sc1" for st in range(4)]
    wl += [f"  buffer_load_dwordx4 {v(W3+4*st,4)}, v{vgl}, {s(SW,4)}, s{sTmp+2} offen offset:{st*1024} sc1" for st in range(4)]
    if OPT["lo"]:
        wl += [f"  buffer_load_dwordx4 {v(W3L+4*st,4)}, v{vgl}, {s(SW,4)}, s{sTmp+3} offen offset:{st*1024} sc1" for st in range(4)]
    a(f"""
  v_lshlrev_b32 v{vgl}, 4, v{vl}
  s_mov_b32 s{sOV+6}, 0
  {"s_cmp_eq_u32 s%d, 9" % sKind + chr(10) + "  s_mov_b32 s%d, 0" % sKind + chr(10) + "  s_cbranch_scc1 K_CPOLLW" if OPT["early"] else ""}
K_CPOLL:
  buffer_load_dwordx4 {v(REC,4)}, v{vcell}, {s(SC,4)}, 0 offen sc1
  buffer_load_dwordx4 {v(REC+4,4)}, v{vcell}, {s(SC,4)}, 0 offen offset:64 sc1
  {"buffer_load_dword v%d, v%d, %s, 0 offen sc1" % (t5, t4, s(SF,4)) if not OPT["s0m"] else ""}
  s_add_u32 s{sq}, s{sq}, 1
  s_waitcnt vmcnt(0)
K_CPOLLC:
  v_cmp_ne_u32 vcc, s{sTag}, v{REC+3}
  v_cmp_ne_u32 {s(sBad,2)}, s{sTag}, v{REC+7}
  s_or_b64 {s(sBad,2)}, vcc, {s(sBad,2)}
  {"v_cmp_ne_u32 %s, s%d, v%d" % (s(sOV+2,2), sTag, t5) if not OPT["s0m"] else "s_mov_b64 %s, -1" % s(sOV+2,2)}
  s_and_b64 {s(sBad,2)}, {s(sBad,2)}, {s(sOV,2)}
  {"s_or_b64 %s, %s, %s" % (s(sBad,2), s(sBad,2), s(sOV+2,2)) if OPT["gate"] else ""}
  s_cbranch_scc1 K_CAGAIN""")
    rare.append(f"""
K_CPOLLW:
  s_waitcnt vmcnt(1)
  s_cmp_eq_u32 s{sOV+5}, 3
  s_cbranch_scc1 K_CPOLLC
  s_waitcnt vmcnt(0)
  s_branch K_CPOLLC
K_CAGAIN:
  s_cmp_lg_u64 {s(sOV+2,2)}, 0
  s_cbranch_scc1 K_CA2
  s_cmp_lg_u32 s{sOV+6}, 0
  s_cbranch_scc1 K_CA2
  s_mov_b32 s{sOV+6}, 1
""" + "\n".join(wl) + f"""
K_CA2:
  {"s_sleep %d" % OPT["slp"] if OPT["slp"] else ""}
  s_cmp_lt_u32 s{sq}, 0x8000
  s_cbranch_scc1 K_CPOLL
  s_branch K_CPOLLD""")
    a(f"""
K_CPOLLD:
  {"v_mov_b32 v%d, v%d" % (DK+2, t4) + chr(10) + "  buffer_load_dword v%d, v%d, %s, 0 offen sc1" % (DK+1, t4, s(SF,4)) if OPT["s0m"] else ""}
  s_mov_b32 exec_lo, 0xaaaaaaaa
  s_mov_b32 exec_hi, 0xaaaaaaaa
  v_mov_b32 v{REC+3}, 0
  v_mov_b32 v{REC+7}, 0
  s_mov_b64 exec, -1""")
    stamp(a, 6)
    NR = 8
    a(f"""
K_PHASE1:
  v_cmp_le_u32 vcc, 0xfffc0000, v{REC+NR-2}
  s_cbranch_vccnz K_MARK
K_NOMARK:""")
    rare.append(f"""
K_MARK:
  s_and_saveexec_b64 {s(sEx,2)}, vcc
  v_lshrrev_b32 v{t0}, 2, v0                 ; producer
  v_lshrrev_b32 v{t1}, 5, v{t0}
  v_lshlrev_b32 v{t1}, 2, v{t1}
  v_lshlrev_b32 v{t0}, v{t0}, v{vone}
  ds_or_b32 v{t1}, v{t0} offset:{L_FLG+32}
  v_mov_b32 v{REC+NR-2}, 0
  s_mov_b64 exec, {s(sEx,2)}
  s_branch K_NOMARK""")
    for k in range(NR):
        if k == 4:
            a(f"""
  v_or3_b32 v{t3}, v{REC+k}, v{REC+k+1}, v{REC+k+2}
  v_or_b32 v{t3}, v{t3}, v{REC+k+3}
  v_cmp_ne_u32 vcc, 0, v{t3}
  s_cbranch_vccz K_P1E""")
        a(f"""
  v_lshlrev_b32 v{NOD+k}, 2, v{REC+k}
  v_and_b32 v{NOD+k}, 0xfc, v{NOD+k}
  v_cmpx_ne_u32 vcc, 0, v{REC+k}
  ds_add_rtn_u32 v{RNK+k}, v{NOD+k}, v{vone} offset:{L_CNT}
  s_mov_b64 exec, -1""")
    a(f"""
K_P1E:
  s_cmp_lg_u32 s{sOV+6}, 0
  s_cbranch_scc1 K_NOWL
  s_cmp_lg_u64 {s(sOV+2,2)}, 0
  s_cbranch_scc1 K_NOWL
  s_mov_b32 s{sOV+6}, 1""")
    if OPT["stamp"] and OPT["s0st"]: a("  s_memrealtime s[86:87]")
    for x in wl: a(x)
    a(f"""
K_NOWL:
  v_lshlrev_b32 v{t0}, 2, v{vl}
  v_subrev_u32 v{t4}, s{sStart}, v{vl}
  v_and_b32 v{t4}, 63, v{t4}
  s_waitcnt lgkmcnt(0)""")
    fstamp(a, 1)
    a(f"""
  s_barrier""")
    fstamp(a, 2)
    a(f"""
  ds_read_b32 v{t1}, v{t0} offset:{L_CNT}
  s_waitcnt lgkmcnt(0)
  v_add_u32 v{t1}, 3, v{t1}
  v_bfe_u32 v{t5}, v{t1}, 2, 1               ; left-over quad
  v_lshrrev_b32 v{t6}, 3, v{t1}
  v_lshl_or_b32 v{t1}, v{t5}, 16, v{t6}
  v_mov_b32 v{t2}, v{t1}
  s_nop 1
  v_add_u32_dpp v{t2}, v{t2}, v{t2} row_shr:1 row_mask:0xf bank_mask:0xf
  s_nop 1
  v_add_u32_dpp v{t2}, v{t2}, v{t2} row_shr:2 row_mask:0xf bank_mask:0xf
  s_nop 1
  v_add_u32_dpp v{t2}, v{t2}, v{t2} row_shr:4 row_mask:0xf bank_mask:0xf
  s_nop 1
  v_add_u32_dpp v{t2}, v{t2}, v{t2} row_shr:8 row_mask:0xf bank_mask:0xf
  s_nop 1
  v_add_u32_dpp v{t2}, v{t2}, v{t2} row_bcast:15 row_mask:0xa bank_mask:0xf
  s_nop 1
  v_add_u32_dpp v{t2}, v{t2}, v{t2} row_bcast:31 row_mask:0xc bank_mask:0xf
  s_nop 1
  v_readlane_b32 s{sT}, v{t2}, 63
  v_sub_u32 v{t1}, v{t2}, v{t1}
  s_lshr_b32 s{sq+1}, s{sT}, 16
  s_and_b32 s{sCO}, s{sT}, 0xffff
  s_lshl_b32 s{sq}, s{sCO}, 1                ; quads in the groups of eight
  s_lshr_b32 s{sCO}, s{sCO}, 2
  s_add_u32 s{sT}, s{sq}, s{sq+1}
  s_add_u32 s{sT}, s{sT}, 7
  s_lshr_b32 s{sT}, s{sT}, 3
  v_lshrrev_b32 v{t2}, 16, v{t1}
  v_add_u32 v{t2}, s{sq}, v{t2}              ; quad slot of the left-over quad
  v_and_b32 v{t1}, 0xffff, v{t1}
  v_lshl_or_b32 v{t0}, v{t6}, 16, v{t1}
  v_lshlrev_b32 v{t0}, 3, v{t0}              ; 8*start8 | 8*n8 << 16
  v_lshlrev_b32 v{t7}, 1, v{t6}
  v_sub_u32 v{t7}, v{t2}, v{t7}
  v_lshlrev_b32 v{t7}, 2, v{t7}              ; position base of the left-over quad
  s_cmp_gt_u32 s{sT}, {CAPB}
  s_cbranch_scc1 K_SPLIT""")
    fstamp(a, 3)
    def bp(ks):
        for k in ks:
            a(f"  ds_bpermute_b32 v{PF+16+k}, v{NOD+k}, v{t7}")
            a(f"  ds_bpermute_b32 v{NOD+k}, v{NOD+k}, v{t0}")
    def ent(ks):
        for k in ks:
            e = PF + 2*k
            a(f"""
  v_lshrrev_b32 v{e}, 10, v{REC+k}
  v_and_b32 v{e}, {hex(0xffffff00 if not OPT['hot'] else 0x1f00)}, v{e}
  v_bfe_u32 v{e+1}, v{REC+k}, 6, 12
  v_lshl_add_u32 v{e+1}, v{e+1}, 5, v{vebase}""")
    def put(ks):
        for k in ks:
            a(f"  v_cmp_lt_u32_sdwa {s(8+2*(k&3),2)}, v{RNK+k}, v{NOD+k} src0_sel:DWORD src1_sel:WORD_1")
        for k in ks:
            a(f"  v_and_b32 v{NOD+k}, 0xffff, v{NOD+k}")
        for k in ks:
            a(f"  v_cndmask_b32 v{NOD+k}, v{PF+16+k}, v{NOD+k}, {s(8+2*(k&3),2)}")
        for k in ks:
            a(f"""
  v_add_lshl_u32 v{NOD+k}, v{NOD+k}, v{RNK+k}, 3
  v_cmpx_ne_u32 vcc, 0, v{REC+k}
  ds_write_b64 v{NOD+k}, {v(PF+2*k,2)}
  s_mov_b64 exec, -1""")
    bp(range(4))
    a(f"""
  v_or3_b32 v{t3}, v{REC+4}, v{REC+5}, v{REC+6}
  v_or_b32 v{t3}, v{t3}, v{REC+7}
  v_cmp_ne_u32 {s(sK2,2)}, 0, v{t3}
  s_cmp_eq_u64 {s(sK2,2)}, 0
  s_cbranch_scc1 K_P2A""")
    bp(range(4, 8))
    ent(range(4, 8))
    a("K_P2A:")
    if OPT["s0m"]:
        a(f"""
  s_cmp_lg_u32 s{sOV+6}, 0
  s_cbranch_scc1 K_S0A
  s_waitcnt vmcnt(0)
  v_cmp_ne_u32 vcc, s{sTag}, v{DK+1}
  s_cbranch_vccnz K_S0AX
  s_mov_b32 s{sOV+6}, 1""")
        for x in wl: a(x)
        a("K_S0A:")
        rare.append(f"K_S0AX:\n  buffer_load_dword v{DK+1}, v{DK+2}, {s(SF,4)}, 0 offen sc1\n  s_branch K_S0A")
    ent(range(4))
    a(f"""
  v_lshlrev_b32 v{t2}, 2, v{t2}
  v_add_lshl_u32 v{t3}, v{t1}, v{t6}, 3
  v_lshl_add_u32 v{t1}, v{t1}, 1, s{sW}
  v_lshlrev_b32 v{t1}, 2, v{t1}
  s_waitcnt lgkmcnt(0)""")
    put(range(4))
    a(f"  s_cmp_eq_u64 {s(sK2,2)}, 0\n  s_cbranch_scc1 K_P2E")
    put(range(4, 8))
    a("K_P2E:")
    fstamp(a, 5)
    a(f"""
  v_cmpx_ne_u32 vcc, 0, v{t5}
  ds_write_b32 v{t2}, v{t4} offset:{L_GN}
  s_mov_b64 exec, -1
K_GNL:
  v_cmpx_lt_u32 vcc, v{t1}, v{t3}
  ds_write_b32 v{t1}, v{t4} offset:{L_GN}
  v_add_u32 v{t1}, 32, v{t1}
  v_cmpx_lt_u32 vcc, v{t1}, v{t3}
  ds_write_b32 v{t1}, v{t4} offset:{L_GN}
  v_add_u32 v{t1}, 32, v{t1}
  v_cmpx_lt_u32 vcc, v{t1}, v{t3}
  s_cbranch_execnz K_GNL
  s_mov_b64 exec, -1
  s_add_u32 s{sCnt}, s{sT}, 7
  s_sub_u32 s{sCnt}, s{sCnt}, s{sW}
  s_lshr_b32 s{sCnt}, s{sCnt}, 3
  s_add_u32 s{sCO}, s{sCO}, 7
  s_sub_u32 s{sCO}, s{sCO}, s{sW}
  s_lshr_b32 s{sCO}, s{sCO}, 3
  {("s_mov_b32 s%d, 40" % sCnt + chr(10) + "  s_movk_i32 s%d, 320" % sT + chr(10) + "  s_mov_b32 s%d, 40" % sCO) if OPT["bench"] else ""}
""")
    stamp(a, 4)
    if OPT["s0m"]:
        a(f"""
  s_cmp_lg_u32 s{sOV+6}, 0
  s_cbranch_scc1 K_S0B
  s_waitcnt vmcnt(0)
  v_cmp_ne_u32 vcc, s{sTag}, v{DK+1}
  s_cbranch_vccnz K_S0BX
  s_mov_b32 s{sOV+6}, 1""")
        for x in wl: a(x)
        a("K_S0B:")
        rare.append(f"K_S0BX:\n  s_nop 0\n  s_branch K_S0B")
    a(f"""
  s_cmp_eq_u32 s{sFirst}, 0
  s_cbranch_scc1 K_POLL2_D""")
    poll("K_POLL2", FHALF)
    a("  s_waitcnt lgkmcnt(0)\n  s_barrier")
    stamp(a, 7)
    dsc = [" sc1", " sc0 sc1", " sc1 nt"][OPT["pfl"]] if OPT["dsc"] else ""
    def dma_issue():
        L = []
        for j in range(8):
            d = DO + (j & 1)
            L.append([f"  s_add_u32 m0, s{sStg}, {j*1040}",
                      f"  v_add_u32_dpp v{d}, v{ENT}, v{vchunk} row_newbcast:{2*j} row_mask:0xf bank_mask:0xf",
                      f"  buffer_load_dwordx4 v{d}, {s(SP,4)}, 0 offen{dsc} lds" if not OPT["nodma"] else "  s_nop 0"])
        L.append([f"  s_add_u32 m0, s{sStg}, 8320",
                  f"  v_add_u32 v{DO}, v{ENT+1}, v{vechunk}",
                  f"  buffer_load_dwordx4 v{DO}, {s(SE,4)}, 0 offen {['', 'nt', 'sc1', 'sc0', 'sc0 sc1', 'sc1 nt'][OPT['efl']]} lds" if not (OPT["nodma"] or OPT["noe"]) else "  s_nop 0"])
        if OPT["efirst"]: L = L[8:] + L[:8]
        return L
    ndma = 0 if OPT["nodma"] else 8 if OPT["noe"] else 9
    def frag_reads():
        if OPT["smf"]:
            L = [f"  ds_read_b64_tr_b16 {v(PF+8*t+2*q,2)}, v{vAT+t} offset:{1040*q}" for t in range(4) for q in range(4)]
            L.insert(4, f"  ds_read_b128 {v(EF,4)}, v{vEF}")
            return L
        L = []
        for st in range(8):
            L.append(f"  ds_read_b128 {v(PF+4*st,4)}, v{vAlo if st < 4 else vAhi} offset:{32*(st&3)}")
        L.insert(2, f"  ds_read_b128 {v(EF,4)}, v{vEF}")
        return L
    def bq_reads():
        return [f"  ds_read_b64_tr_b16 {v(BQ+nq*t,2)}, v{vqa} offset:{64*t}" for t in range(4)]
    def chain(t, D):
        L = [f"  v_mfma_f32_32x32x16_bf16 {v(D,16)}, {v(EF,4)}, {v(W3+4*t,4)}, 0"]
        if OPT["lo"]:
            L.append(f"  v_mfma_f32_32x32x16_bf16 {v(D,16)}, {v(EF,4)}, {v(W3L+4*t,4)}, {v(D,16)}")
        if OPT["smf"]:
            L.append(f"  v_smfmac_f32_32x32x32_bf16 {v(D,16)}, {v(I0,4)}, {v(PF+8*t,8)}, v{I1}")
        else:
            L.append(f"  v_mfma_f32_32x32x16_bf16 {v(D,16)}, {v(PF+8*t,4)}, {v(I0,4)}, {v(D,16)}")
            L.append(f"  v_mfma_f32_32x32x16_bf16 {v(D,16)}, {v(PF+8*t+4,4)}, {v(I1,4)}, {v(D,16)}")
        if OPT["k8"]:
            L.append(f"  v_mfma_f32_32x32x8bf16_1k {v(D,16)}, {v(AQ,2)}, {v(BQ+2*t,2)}, {v(D,16)}")
        else:
            L.append(f"  v_mfma_f32_32x32x16_bf16 {v(D,16)}, {v(AQ,4)}, {v(BQ+4*t,4)}, {v(D,16)}")
        return L

    if OPT["stag"]:
        a(f"  s_cmp_lt_u32 s{sW}, 4\n  s_cbranch_scc1 K_STG\n  s_sleep {OPT['stag']}\nK_STG:")
    if OPT["idle"]: a(f"  s_sleep {OPT['idle']}")
    a(f"  ds_read_b64 {v(ENT,2)}, v{vent}")
    if OPT["ord"]:
        a(f"  s_lshr_b32 s{sq}, s{sW}, 2\n  s_and_b32 s{sK2}, s{sq}, s{sFirst}\n  s_cbranch_scc1 K_DLATER")
    a("  s_waitcnt lgkmcnt(0)")
    for x in dma_issue(): a("\n".join(x))
    a(f"""
  ds_read_b64 {v(ENT,2)}, v{vent} offset:2048
  s_cmp_eq_u32 s{sFirst}, 0
  s_cbranch_scc1 K_NOGEMM0
  s_cmp_eq_u32 s{sOV+6}, 0
  s_cbranch_scc1 K_WLATE
  s_waitcnt vmcnt({ndma}) lgkmcnt(0)
K_WOK:
  s_mov_b32 s{sFirst}, 0""")
    rare.append(f"K_WLATE:\n  s_mov_b32 s{sOV+6}, 1\n" + "\n".join(wl) + "\n  s_waitcnt vmcnt(0) lgkmcnt(0)\n  s_branch K_WOK")
    rare.append(f"K_DLATER:\n  s_cmp_eq_u32 s{sOV+6}, 0\n  s_cbranch_scc1 K_WLATE\n  s_waitcnt vmcnt(0) lgkmcnt(0)\n  s_branch K_WOK")
    node_gemm(W2F, WUT)
    if OPT["ord"]:
        a(f"  s_cmp_eq_u32 s{sK2}, 0\n  s_cbranch_scc1 K_DDONE")
        for x in dma_issue(): a("\n".join(x))
        a(f"  ds_read_b64 {v(ENT,2)}, v{vent} offset:2048\nK_DDONE:")
    for st in range(4):
        a(f"  buffer_load_dwordx4 {v(WUB+4*st,4)}, v{vgl}, {s(SW,4)}, s{sUB} offen offset:{st*1024} sc1")
    def pf5():
        a(f"  s_mul_i32 s{sq}, s2, 40000\n  v_add_u32 v{t0}, s{sq}, v{vt16}")
        for j in range(5):
            a(f"  buffer_load_dwordx4 {v(DUM,4)}, v{t0}, {s(SE,4)}, 0 offen")
            if j < 4: a(f"  v_add_u32 v{t0}, 8192, v{t0}")
    if OPT["pf2"] == 1: pf5()
    a(f"""
  s_or_b32 s{sq}, s2, s{sW}
  s_cmp_lg_u32 s{sq}, 0
  s_cbranch_scc1 K_NONONCE
  s_mov_b64 exec, 1
  v_mov_b32 v{t0}, {FNON}
  v_mov_b32 v{t1}, s{sTag}
  buffer_store_dword v{t1}, v{t0}, {s(SF,4)}, 0 offen
  s_mov_b64 exec, -1
  s_waitcnt vmcnt(0)
K_NONONCE:
  s_waitcnt lgkmcnt(0)
  s_barrier
K_NOGEMM:
  ds_read_b32 v{vgn1}, v{vgq}
  ds_read_b32 v{vsrow}, v{vrow}
  ds_read_b128 {v(GN,4)}, v{vga}
  s_waitcnt vmcnt({9 if OPT["pf2"] == 1 else 4})""")
    stamp(a, 8, 96)
    for x in frag_reads(): a(x)
    a(f"""
  s_waitcnt lgkmcnt({9 if not OPT['smf'] else 15})
  v_mad_u32_u24 v{vqa}, v{vgn1}, s{sQS}, v{vqlane}
  v_lshrrev_b64 {v(AQ,2)}, v{vsrow}, {v(PAT,2)}""")
    for x in bq_reads(): a(x)
    a("  s_waitcnt lgkmcnt(0)")
    for x in dma_issue(): a("\n".join(x))
    if OPT["pf2"] == 2: pf5()
    if OPT["idle2"]: a(f"  s_sleep {OPT['idle2']}")
    for x in chain(0, D0): a(x)
    if OPT["prio"]:
        a(f"  s_cmp_lt_u32 s{sW}, 4\n  s_cbranch_scc1 K_PR\n  s_setprio 1\nK_PR:")
    a(f"""
  s_nop 7
  s_nop 3
  s_cmp_eq_u32 s{sCnt}, 0
  s_cbranch_scc1 K_LOOPEND
  s_cmp_lg_u32 s{sMode}, 0
  s_cbranch_scc1 K_SAFE
  {"s_branch K_QUAD" if not OPT["octo"] else ""}
  s_sub_u32 s{sCnt}, s{sCnt}, s{sCO}
  s_cmp_eq_u32 s{sCO}, 0
  s_cbranch_scc1 K_QUAD""")

    def p(r): return v(r, 2)
    def octet_fast(d, e, t, r, sres):
        ex = [f"  v_exp_f32 v{e+i}, v{d+i}" for i in range(8)]
        L = [f"  v_pk_add_f32 {p(t)}, {p(e)}, 1.0 op_sel_hi:[1,0]",
             f"  v_pk_add_f32 {p(t+2)}, {p(e+4)}, 1.0 op_sel_hi:[1,0]",
             f"  v_pk_fma_f32 {p(t+4)}, {p(d)}, {p(e+2)}, {p(d)}",
             f"  v_pk_fma_f32 {p(t+6)}, {p(d+4)}, {p(e+6)}, {p(d+4)}",
             f"  v_pk_fma_f32 {p(e)}, {p(t)}, {p(e+2)}, {p(t)}",
             f"  v_pk_fma_f32 {p(e+4)}, {p(t+2)}, {p(e+6)}, {p(t+2)}",
             f"  v_pk_fma_f32 {p(t+4)}, {p(d+2)}, {p(t)}, {p(t+4)}",
             f"  v_pk_fma_f32 {p(t+6)}, {p(d+6)}, {p(t+2)}, {p(t+6)}",
             f"  v_pk_mul_f32 {p(t)}, {p(e)}, {p(e+4)}",
             f"  v_pk_mul_f32 {p(t+4)}, {p(t+4)}, {p(e+4)}",
             f"  v_rcp_f32 v{r}, v{t}",
             f"  v_rcp_f32 v{r+1}, v{t+1}",
             f"  v_pk_fma_f32 {p(t+4)}, {p(t+6)}, {p(e)}, {p(t+4)}",
             f"  v_pk_mul_f32 {p(sres)}, {p(t+4)}, {p(r)}"]
        return ex, L
    def octet_safe(d, e, t, r, sres):
        ex = [f"  v_exp_f32 v{e+i}, v{d+i}" for i in range(8)]
        L = [f"  v_pk_add_f32 {p(e+2*i)}, {p(e+2*i)}, 1.0 op_sel_hi:[1,0]" for i in range(4)]
        L += [f"  v_rcp_f32 v{t+i}, v{e+i}" for i in range(8)]
        L += [f"  v_pk_mul_f32 {p(sres)}, {p(d)}, {p(t)}"]
        L += [f"  v_pk_fma_f32 {p(sres)}, {p(d+2*i)}, {p(t+2*i)}, {p(sres)}" for i in range(1, 4)]
        return ex, L
    def zipl(x, y):
        o = []
        for i in range(max(len(x), len(y))):
            if i < len(x): o.append(x[i])
            if i < len(y): o.append(y[i])
        return o
    def adds(t, kind):
        if OPT["noadd"]: return [f"  ds_read_b32 v{DUM}, v{vgq}"] * (2 if kind == "octo" else 4)
        if kind == "octo": return [f"  ds_add_f64 v{AD+2*xy}, {v(CV+2*xy,2)} offset:{256*t}" for xy in range(2)]
        return [f"  ds_add_f64 v{AD+2*xy+o}, {v(CV+2*(2*o+xy),2)} offset:{256*t}" for o in range(2) for xy in range(2)]
    def block_body(kind, u, nun):
        oc = octet_safe if kind == "safe" else octet_fast
        nadd = 2 if kind == "octo" else 4
        B = []
        for t in range(4):
            D = D0 if t % 2 == 0 else D1
            Dn = D1 if t % 2 == 0 else D0
            exa, La = oc(D, EA, TA, RA, SA)
            exb, Lb = oc(D+8, EB, TB, RB, SB)
            ex = exa + exb
            ch = chain((t+1) % 4, Dn)
            late = []
            if kind == "octo" and OPT["seq"]:
                dk = DK + 2*(t & 1)
                E_ = lambda i: p(EA+2*i) if i < 4 else p(EB+2*(i-4))
                def run(i0, n, Dr, Nr, Tr, Dlast):
                    L = [f"  v_pk_add_f32 {p(Dr)}, {E_(i0)}, 1.0 op_sel_hi:[1,0]"]
                    cur = p(D+2*i0)
                    for i in range(i0+1, i0+n):
                        L.append(f"  v_pk_fma_f32 {p(Tr)}, {cur}, {E_(i)}, {cur}")
                        nd = Dlast if i == i0+n-1 else (Dr ^ 2)
                        L.append(f"  v_pk_fma_f32 {p(nd)}, {p(Dr)}, {E_(i)}, {p(Dr)}")
                        L.append(f"  v_pk_fma_f32 {p(Nr)}, {p(D+2*i)}, {p(Dr)}, {p(Tr)}")
                        Dr = nd; cur = p(Nr)
                    return L
                assert TA % 4 == 0 and TB % 4 == 0
                if OPT["seq"] == 1:
                    pk = run(0, 8, TA, TA+4, TA+6, dk)
                    pk = pk[:-1] + [f"  v_rcp_f32 v{RA}, v{dk}", f"  v_rcp_f32 v{RA+1}, v{dk+1}"] + pk[-1:]
                    if t & 1: pk.append(f"  v_pk_fma_f32 {p(MAC)}, {p(DK)}, {p(DK+2)}, {p(MAC)}")
                    else: pk.append("  s_nop 0")
                    pk.append(f"  v_pk_mul_f32 {p(SA)}, {p(TA+4)}, {p(RA)}")
                else:
                    pk = zipl(run(0, 4, TA, TA+4, TA+6, RB), run(4, 4, TB, TB+4, TB+6, SB))
                    pk = pk[:-2] + [f"  v_pk_mul_f32 {p(dk)}, {p(RB)}, {p(SB)}"] + pk[-2:] + \
                         [f"  v_rcp_f32 v{RA}, v{dk}", f"  v_rcp_f32 v{RA+1}, v{dk+1}",
                          f"  v_pk_mul_f32 {p(TA+4)}, {p(TA+4)}, {p(SB)}"]
                    if t & 1: pk.append(f"  v_pk_fma_f32 {p(MAC)}, {p(DK)}, {p(DK+2)}, {p(MAC)}")
                    pk += [f"  v_pk_fma_f32 {p(TA+4)}, {p(TB+4)}, {p(RB)}, {p(TA+4)}",
                           f"  v_pk_mul_f32 {p(SA)}, {p(TA+4)}, {p(RA)}"]
                fin = [f"  v_cvt_f64_f32 {v(CV+2*xy,2)}, v{SA+xy}" for xy in range(2)]
                adr = (0, 2)
            elif kind == "octo":
                keep = lambda L: [x for x in L[:-1] if "v_rcp" not in x]
                dk = DK + 2*(t & 1)
                pk = zipl(keep(La), keep(Lb))
                pk = pk[:-4] + [f"  v_pk_mul_f32 {p(dk)}, {p(TA)}, {p(TB)}"] + pk[-4:-2] + \
                     [f"  v_rcp_f32 v{RA}, v{dk}", f"  v_rcp_f32 v{RA+1}, v{dk+1}"] + pk[-2:] + \
                     [f"  v_pk_mul_f32 {p(TA+4)}, {p(TA+4)}, {p(TB)}"]
                if t & 1: pk.append(f"  v_pk_fma_f32 {p(MAC)}, {p(DK)}, {p(DK+2)}, {p(MAC)}")
                pk += [f"  v_pk_fma_f32 {p(TA+4)}, {p(TB+4)}, {p(TA)}, {p(TA+4)}",
                       f"  v_pk_mul_f32 {p(SA)}, {p(TA+4)}, {p(RA)}"]
                fin = [f"  v_cvt_f64_f32 {v(CV+2*xy,2)}, v{SA+xy}" for xy in range(2)]
                adr = (0, 2)
            else:
                pk = zipl(La, Lb)
                if kind == "quad":
                    idx = max(i for i, x in enumerate(pk) if x.startswith(f"  v_pk_mul_f32 {p(TB)}, {p(EB)}"))
                    pk.insert(idx+1, f"  v_pk_fma_f32 {p(MAC)}, {p(TA)}, {p(TB)}, {p(MAC)}")
                fin = [f"  v_cvt_f64_f32 {v(CV+2*(2*o+xy),2)}, v{S+xy}" for o, S in ((0, SA), (1, SB)) for xy in range(2)]
                adr = range(4)
            fin += adds(t, kind)
            if t == 0:
                pk = pk[:4] + [f"  v_mad_u32_u24 v{AD+i}, v{GN+i}, s{sAS}, v{vacl}" for i in adr] + pk[4:]
            if t == 1:
                pk = pk[:8] + [f"  ds_read_b64 {v(ENT,2)}, v{vent} offset:{4096+2048*u}",
                      f"  ds_read_b32 v{vgn1}, v{vgq} offset:{256+256*u}",
                      f"  ds_read_b32 v{vsrow}, v{vrow} offset:{2048+2048*u}",
                      f"  ds_read_b128 {v(GN,4)}, v{vga} offset:{256+256*u}"] + pk[8:]
            if t == 3:
                B.append(f"  s_waitcnt lgkmcnt({nadd})")
            dma = dma_issue() if t == 3 and OPT["dmapos"] != 2 else []
            per = 16 // len(ch); e = 0
            for i, m in enumerate(ch):
                B.append(m)
                n = per if i < len(ch)-1 else 16 - e
                B += ex[e:e+2]
                if late: B.append(late.pop(0))
                B += ex[e+2:e+n]; e += n
                if OPT["dmapos"] == 0:
                    for _ in range(2):
                        if dma: B += dma.pop(0)
            if t == 2:
                mid = [f"  s_waitcnt vmcnt(0) lgkmcnt({nadd})",
                       f"  v_mad_u32_u24 v{vqa}, v{vgn1}, s{sQS}, v{vqlane}"]
                rd = frag_reads() + bq_reads()
                aq = [f"  v_lshrrev_b64 {v(AQ,2)}, v{vsrow}, {v(PAT,2)}"]
                if OPT["dmapos"] == 2:
                    rest = pk[OPT["wpos"]:]
                    B += pk[:OPT["wpos"]] + mid + rd + aq + rest[:OPT["dgap"]] + ["  s_waitcnt lgkmcnt(4)"] + [y for x in dma_issue() for y in x] + rest[OPT["dgap"]:]
                elif OPT["rdgap"] == 0: B += pk[:OPT["wpos"]] + mid + rd + aq + pk[OPT["wpos"]:]
                else:
                    q = []
                    for i, x in enumerate(aq + pk):
                        if rd and i % OPT["rdgap"] == 0: q.append(rd.pop(0))
                        q.append(x)
                    B += mid + q + rd
            elif t == 3:
                inc = []
                if u == nun - 1 and OPT["bench"]:
                    inc = [f"  v_add_u32 v{DUM+i}, {2048*nun}, v{vent}" for i in range(4)]
                elif u == nun - 1:
                    inc = incs(nun)
                pk = pk + inc
                if OPT["dmapos"] == 1:
                    q = []
                    for i, x in enumerate(pk):
                        if dma and i % 3 == 0: q += dma.pop(0)
                        q.append(x)
                    pk = q
                for x in dma: B += x
                B += pk
            else:
                B += pk
            B += fin
        return B
    def incs(n):
        return [f"  v_add_u32 v{vent}, {2048*n}, v{vent}", f"  v_add_u32 v{vrow}, {2048*n}, v{vrow}",
                f"  v_add_u32 v{vgq}, {256*n}, v{vgq}", f"  v_add_u32 v{vga}, {256*n}, v{vga}"]
    def loop(kind):
        lab = {"safe": "K_SAFE", "quad": "K_QUAD", "octo": "K_FAST"}[kind]
        nun = OPT["unroll"] if kind == "octo" else 1
        cnt = sCO if kind == "octo" else sCnt
        L = []
        for u in range(nun):
            L += block_body(kind, u, nun)
            L.append(f"  s_sub_u32 s{cnt}, s{cnt}, 1")
            L.append(f"  s_cmp_lg_u32 s{cnt}, 0")
            L.append(f"  s_cbranch_scc1 {lab}" if u == nun - 1 else f"  s_cbranch_scc0 K_OX{u}")
        ab = OPT["abl"]
        if ab & 1: L = [x for x in L if not ("v_mfma" in x and (f", {v(I0,4)}," in x or f", {v(I1,4)}," in x))]
        if ab & 2: L = [x for x in L if "v_mfma_f32_32x32x8" not in x and "tr_b16" not in x]
        if ab & 4: L = [x.replace("v_exp_f32", "v_mov_b32") for x in L]
        if ab & 8: L = [x for x in L if "v_pk_" not in x]
        if ab & 16: L = [x for x in L if "v_mfma" not in x]
        if ab & 32: L = [x for x in L if "ds_read_b128" not in x]
        if ab & 64: L = [x for x in L if "v_exp" not in x]
        if ab & 128:
            M = []
            for x in L:
                if "v_mfma" in x and f", {v(I1,4)}," in x: continue
                if "v_mfma" in x and f", {v(I0,4)}," in x:
                    m = re.match(r"\s*v_mfma_f32_32x32x16_bf16 (v\[\d+:\d+\]), v\[(\d+):", x)
                    M.append(f"  v_smfmac_f32_32x32x32_bf16 {m.group(1)}, {v(I0,4)}, {v(int(m.group(2)),8)}, v{vone}"); continue
                m = re.match(r"\s*ds_read_b128 v\[(\d+):\d+\], v(\d+) offset:(\d+)", x)
                if m and PF <= int(m.group(1)) < PF + 32:
                    r0 = int(m.group(1))
                    M.append(f"  ds_read_b64_tr_b16 {v(r0,2)}, v{vqa} offset:{m.group(3)}")
                    M.append(f"  ds_read_b64_tr_b16 {v(r0+2,2)}, v{vqa} offset:{int(m.group(3))+128}"); continue
                M.append(x)
            L = M
        if ab & 256:
            M = []
            for x in L:
                if "v_mfma" in x and (f", {v(I1,4)}," in x or f", {v(I0,4)}," in x): continue
                if "v_mfma_f32_32x32x16" in x and x.rstrip().endswith(", 0"): x = x.rstrip()[:-1] + v(PF, 16)
                m = re.match(r"\s*ds_read_b128 v\[(\d+):\d+\], v(\d+) offset:(\d+)", x)
                if m and PF <= int(m.group(1)) < PF + 32:
                    for q in range(8): M.append(f"  ds_read_u16_d16_hi v{PF+(int(m.group(1))+q)%32}, v{vacl} offset:{64*q}")
                    continue
                M.append(x)
            L = M
        if OPT["align"]: L = align8(L)
        a(f".p2align 6\n{lab}:")
        for x in L: a(x)
    loop("octo")
    a(f"""
K_OXE:
  s_cmp_lg_u32 s{sCnt}, 0
  s_cbranch_scc1 K_QUAD""")
    a(f"""
K_LOOPEND:""")
    a(f"""
  s_waitcnt vmcnt(0) lgkmcnt(0)
  s_barrier""")
    stamp(a, 9, 98)
    a(f"""
  s_cmp_lg_u32 s{sKind}, 0
  s_cbranch_scc1 K_NEXT
K_CELLSDONE:
  v_mov_b32 v{t0}, {L_FLG+32}
  ds_read_b128 {v(CV,4)}, v{t0}
K_CONV:
  s_mul_i32 s{sTmp}, s{sW}, {AS}
  s_add_u32 s{sTmp}, s{sTmp}, {L_ACC}
  v_lshlrev_b32 v{t1}, 4, v{vl}
  v_add_u32 v{t1}, s{sTmp}, v{t1}""")
    for k in range(5):
        a(f"  ds_read_b128 {v(D0+4*k,4)}, v{t1} offset:{k*8*AS}")
    a(f"""
  s_mul_i32 s{sTmp}, s{sW}, {XS}
  s_add_u32 s{sTmp}, s{sTmp}, {L_X}
  v_lshlrev_b32 v{t2}, 2, v{vl}
  v_add_u32 v{t2}, s{sTmp}, v{t2}
  s_cmp_ge_u32 s{sKind}, 3
  s_cbranch_scc1 K_CONV2
  s_waitcnt lgkmcnt(5)
  v_or3_b32 v{t0}, v{CV}, v{CV+1}, v{CV+2}
  v_or_b32 v{t0}, v{t0}, v{CV+3}
  v_cmp_ne_u32 vcc, 0, v{t0}
  s_cbranch_vccnz K_STARTOV
K_CONV2:
  s_mov_b32 s{sTmp}, 0x71800000              ; 2^100
  v_cmp_nle_f32 {s(sBad,2)}, v{MAC}, s{sTmp}
  v_cmp_nle_f32 vcc, v{MAC+1}, s{sTmp}
  s_or_b64 {s(sBad,2)}, {s(sBad,2)}, vcc
  s_movk_i32 s{sTmp}, 0x207""")
    for k in range(5):
        a(f"""
  s_waitcnt lgkmcnt(4)
  v_cvt_f32_f64 v{EA+2*k}, {v(D0+4*k,2)}
  v_cvt_f32_f64 v{EA+2*k+1}, {v(D0+4*k+2,2)}
  v_cvt_pk_bf16_f32 v{EB+k}, v{EA+2*k}, v{EA+2*k+1}
  ds_write_b32 v{t2}, v{EB+k} offset:{k*8*XS}""")
    a(f"  v_pk_mul_f32 {p(RA)}, {p(EA)}, 0 op_sel_hi:[1,0]")
    for k in range(1, 5):
        a(f"  v_pk_fma_f32 {p(RA)}, {p(EA+2*k)}, 0, {p(RA)} op_sel_hi:[1,0,1]")
    a(f"""
  v_add_f32 v{RA}, v{RA}, v{RA+1}
  v_cmp_class_f32 vcc, v{RA}, s{sTmp}
  s_or_b64 {s(sBad,2)}, {s(sBad,2)}, vcc""")
    a(f"""
  s_cmp_eq_u64 {s(sBad,2)}, 0
  s_cbranch_scc1 K_OKW
  v_mov_b32 v{t0}, {L_FLG}
  ds_write_b32 v{t0}, v{vone}
K_OKW:
  s_mov_b32 s{sK}, {NLN2}
  s_mov_b32 s{sK+1}, {NLN2}
  s_mov_b32 s{sTmp}, {NLOG2E}
  s_mov_b32 s{sTmp+1}, {NLOG2E}
  v_and_b32 v{t5}, 15, v{vl}
  v_lshlrev_b32 v{t5}, 8, v{t5}
  v_lshrrev_b32 v{t6}, 4, v{vl}
  v_lshl_add_u32 v{t5}, v{t6}, 3, v{t5}
  s_lshl_b32 s{sTmp+2}, s{sW}, 5
  v_add_u32 v{t5}, s{sTmp+2}, v{t5}
  v_add_u32 v{t6}, 4096, v{t5}
  v_add_u32 v{t7}, 8192, v{t5}
  v_mov_b32 v{t0}, {L_FLG}
  s_waitcnt lgkmcnt(0)
  s_barrier
  ds_read_b32 v{t0}, v{t0}""")
    AGF = [XF, XF+16, D1]
    for nt in range(3):
        for st in range(4):
            a(f"  ds_read_b128 {v(AGF[nt]+4*st,4)}, v{vxb} offset:{nt*16*XS + st*64}")
    a(f"""
  s_waitcnt lgkmcnt(8)
  v_readfirstlane_b32 s{sTmp+2}, v{t0}""")
    for nt in range(3):
        if nt: a(f"  s_waitcnt lgkmcnt({8-4*nt})")
        for st in range(4):
            c = "0" if st == 0 else v(D0+4*nt, 4)
            a(f"  v_mfma_f32_16x16x32_bf16 {v(D0+4*nt,4)}, {v(WUB+4*st,4)}, {v(AGF[nt]+4*st,4)}, {c}")
    a(f"""
  s_cmp_gt_u32 s{sTmp+2}, s{sMode}
  {"s_cbranch_scc1 K_RESTART" if not EXP else "s_nop 0"}""")
    def fin_store(nt):
        d = D0 + 4*nt
        a(f"""
  v_pk_mul_f32 {p(d)}, {p(d)}, {p(EA+4*nt)}
  v_pk_mul_f32 {p(d+2)}, {p(d+2)}, {p(EA+4*nt+2)}
  {chr(10).join("  v_mul_f32 v%d, %s, v%d" % (d+i, hex(f32(1+OPT["pert"]/1000.0)), d+i) for i in range(4)) if OPT["pert"] else ""}
  v_cvt_pk_bf16_f32 v{EB+2*nt}, v{d}, v{d+1}
  v_cvt_pk_bf16_f32 v{EB+2*nt+1}, v{d+2}, v{d+3}
  {"buffer_store_dwordx2 %s, v%d, %s, 0 offen %s" % (v(EB+2*nt,2), t5+nt, s(SO,4), OFL) if not OPT["oc"] else ("s_mov_b32 exec_lo, 0x00ff00ff" + chr(10) + "  s_mov_b32 exec_hi, 0x00ff00ff" + chr(10) if nt == 2 else "") + "  ds_write_b64 v%d, %s offset:%d" % (vqw, v(EB+2*nt,2), nt*16*QS)}""")
    for i in range(6):
        if i == 2: a("  s_nop 0")
        a(f"  v_pk_fma_f32 {p(D0+2*i)}, {p(D0+2*i)}, {s(sK,2)}, {p(U+2*i)}\n  v_pk_mul_f32 {p(EA+2*i)}, {p(D0+2*i)}, {s(sTmp,2)}")
    for i in range(12): a(f"  v_exp_f32 v{EA+i}, v{EA+i}")
    for i in range(6): a(f"  v_pk_add_f32 {p(EA+2*i)}, {p(EA+2*i)}, 1.0 op_sel_hi:[1,0]")
    for nt in range(3):
        for i in range(4): a(f"  v_rcp_f32 v{EA+4*nt+i}, v{EA+4*nt+i}")
        if nt:
            d = D0 + 4*(nt-1)
            fin_store(nt-1)
    a("  s_nop 0")
    fin_store(2)
    if OPT["oc"]:
        a(f"""
  s_mov_b64 exec, -1
  v_lshrrev_b32 v{t0}, 4, v0
  v_lshl_add_u32 v{t0}, v{t0}, 6, v{vt16}
  v_add_u32 v{t0}, {L_Q}, v{t0}
  v_add_u32 v{t1}, 8192, v{vt16}
  s_waitcnt lgkmcnt(0)
  s_barrier
  ds_read_b128 {v(PF,4)}, v{t0}
  ds_read_b128 {v(PF+4,4)}, v{t0} offset:{32*QS}
  s_waitcnt lgkmcnt(1)
  buffer_store_dwordx4 {v(PF,4)}, v{vt16}, {s(SO,4)}, 0 offen {OFL}
  s_waitcnt lgkmcnt(0)
  buffer_store_dwordx4 {v(PF+4,4)}, v{t1}, {s(SO,4)}, 0 offen {OFL}""")
    if OPT["stamp"]:
        a(f"""
  s_waitcnt vmcnt(0)
  s_memrealtime s[4:5]
  s_waitcnt lgkmcnt(0)
  s_lshl_b32 s6, s2, 3
  s_add_u32 s6, s6, s{sW}
  s_lshl_b32 s6, s6, 6
  s_add_u32 s6, s6, {WS_STAMP}
  s_add_u32 s6, s{pWS}, s6
  s_addc_u32 s7, s{pWS+1}, 0
  s_mov_b64 exec, 1
  v_mov_b32 v1, 0""")
        for i, r in enumerate([80+2*i for i in range(8)] + [96, 98, 4]):
            pass
        regs = [80, 82, 84, 86, 88, 90, 92, 94, 8, 9, 4, 10, 11, sT]
        for i, r in enumerate(regs):
            a(f"  v_mov_b32 v2, s{r}\n  global_store_dword v1, v2, s[6:7] offset:{4*i}")
    a(f"""
K_END:
  s_endpgm
""")
    a(f"""
K_PREP:
  s_sub_u32 s{sq}, s2, {2*G}
  s_lshl_b32 s{sq}, s{sq}, 14
  s_lshl_b32 s{sq+1}, s{sW}, 12
  s_add_u32 s{sq}, s{sq}, s{sq+1}
  v_lshlrev_b32 v{t0}, 4, v{vl}
  v_mov_b32 v{t7}, s{sTag}
  s_waitcnt vmcnt({10+NA})
  s_barrier""")
    wtr(PF, vqa)
    a("  s_waitcnt lgkmcnt(0)")
    for st in range(4):
        a(f"  buffer_store_dwordx4 {v(PF+4*st,4)}, v{t0}, {s(SW,4)}, s{sq} offen offset:{st*1024} sc1")
    a(f"""
  s_lshr_b32 s{sq}, s{sW}, 2
  s_add_u32 s{sq}, s{sq}, s2
  s_cmp_lg_u32 s{sq}, {2*G}
  s_cbranch_scc1 K_PREPD
  s_mov_b32 s{sq+1}, {NLOG2E}
  s_lshl_b32 s{sq}, s{sW}, 10
  s_waitcnt vmcnt({6+NA})""")
    for jj in range(8):
        a(f"  v_lshlrev_b32 v{D0+jj}, 16, v{D0+jj}\n  v_mul_f32 v{D0+jj}, s{sq+1}, v{D0+jj}")
    for i in range(4):
        a(f"  v_cvt_pk_bf16_f32 v{D0+8+i}, v{D0+2*i}, v{D0+1+2*i}")
    for i in range(4):
        a(f"""
  v_lshlrev_b32 v{t2}, 16, v{D0+8+i}
  v_and_b32 v{t3}, 0xffff0000, v{D0+8+i}
  v_sub_f32 v{t2}, v{D0+2*i}, v{t2}
  v_sub_f32 v{t3}, v{D0+1+2*i}, v{t3}
  v_cvt_pk_bf16_f32 v{D0+12+i}, v{t2}, v{t3}""")
    a(f"""
  s_add_u32 s{sq+1}, s{sq}, {WF_3L}
  s_add_u32 s{sq}, s{sq}, {WF_3H}
  buffer_store_dwordx4 {v(D0+8,4)}, v{t0}, {s(SW,4)}, s{sq} offen sc1
  buffer_store_dwordx4 {v(D0+12,4)}, v{t0}, {s(SW,4)}, s{sq+1} offen sc1
K_PREPD:""")
    own_x(4+NA)
    a(f"""
  s_sub_u32 s{sq}, s2, {2*G}
  s_lshl_b32 s{sq}, s{sq}, 1
  v_lshl_add_u32 v{t0}, v0, 7, s{sq}
  s_waitcnt vmcnt(0)
  s_barrier
  s_cmp_ge_u32 s{sW}, 4
  s_cbranch_scc1 K_PST
  buffer_store_dword v{t7}, v{t0}, {s(SF,4)}, 0 offen {FLF}
  s_branch K_PST""")
    a(f"""
K_OVF:
  s_waitcnt lgkmcnt(0)
  s_barrier
  s_mul_i32 s{sq+1}, s2, {OVSTR//2}
  s_add_u32 s{sq+1}, s{sq+1}, 64
  v_mov_b32 v{t5}, {L_FLG+8}
  v_mov_b32 v{t6}, -1""")
    for j in range(5):
        a(f"""
  v_cmp_le_u32 vcc, {CAP-1}, v{RK+j}
  s_and_b64 exec, exec, vcc
  s_cbranch_execz K_OV{j}
  v_add_u32 v{t1}, {L_BCNT}, v{B4+j}
  ds_read_b32 v{t1}, v{t1}
  s_waitcnt lgkmcnt(0)
  v_cmp_ne_u32 vcc, {CAP}, v{t1}
  s_nop 1
  v_cndmask_b32 v{t3}, v{SS_+j}, v{t6}, vcc
  ds_write_b32 v{CA+j}, v{t3} offset:{CELLB-8}
  s_and_b64 exec, exec, vcc
  s_cbranch_execz K_OV{j}
  ds_add_rtn_u32 v{t1}, v{t5}, v{vone}
  v_mov_b32 v{CV}, v{SS_+j}
  v_lshrrev_b32 v{CV+1}, 2, v{B4+j}
  s_waitcnt lgkmcnt(0)
  v_lshl_add_u32 v{t1}, v{t1}, 3, s{sq+1}
  buffer_store_dwordx2 {v(CV,2)}, v{t1}, {s(SV,4)}, 0 offen sc1
  s_waitcnt vmcnt(0)
K_OV{j}:
  s_mov_b64 exec, -1""")
    a(f"""
  s_waitcnt lgkmcnt(0)
  s_barrier
  ds_read_b32 v{t1}, v{t5}
  s_sub_u32 s{sq+1}, s{sq+1}, 64
  v_mov_b32 v{t3}, s{sq+1}
  v_mov_b32 v{t2}, 0
  s_waitcnt lgkmcnt(0)
  buffer_store_dword v{t1}, v{t3}, {s(SV,4)}, 0 offen sc1
  s_waitcnt vmcnt(0)
  s_branch K_OVFDONE""")
    for u in range(OPT["unroll"] - 1):
        a(f"K_OX{u}:\n  s_cmp_eq_u32 s{sCnt}, 0\n  s_cbranch_scc1 K_LOOPEND")
        for x in incs(u + 1): a(x)
        a("  s_branch K_QUAD")
    loop("quad")
    a("  s_branch K_LOOPEND")
    a("K_TEXTEND:")
    loop("safe")
    a("  s_branch K_LOOPEND")
    a(f"""
""")
    for x in rare: a(x)
    a(f"""
K_NOGEMM0:
  s_waitcnt vmcnt(0)
  s_branch K_NOGEMM
K_RESTART:
  s_mov_b32 s{sMode}, 1
  s_mov_b32 s{sKind}, 0
  s_waitcnt lgkmcnt(0)
  s_barrier
  v_mov_b32 v{CV}, 0
  v_mov_b32 v{CV+1}, 0
  v_mov_b32 v{CV+2}, 0
  v_mov_b32 v{CV+3}, 0""")
    for j in range(5):
        a(f"  ds_write_b128 v{vt16}, {v(CV,4)} offset:{L_ACC + j*8192}")
    a(f"""
  v_cmp_gt_u32 vcc, {(40*AS-5*8192)//16}, v0
  s_and_saveexec_b64 {s(sEx,2)}, vcc
  ds_write_b128 v{vt16}, {v(CV,4)} offset:{L_ACC + 5*8192}
  s_mov_b64 exec, {s(sEx,2)}
  s_branch K_RELOAD
K_SPLIT:
  s_mov_b32 s{sKind}, 1
  s_waitcnt lgkmcnt(0)
  s_barrier
  s_branch K_RELOAD
K_NEXT:
  s_cmp_eq_u32 s{sKind}, 4
  s_cbranch_scc1 K_NEXTOV
  s_cmp_eq_u32 s{sKind}, 3
  s_cbranch_scc1 K_OVPART1
  s_cmp_eq_u32 s{sKind}, 2
  s_cbranch_scc1 K_CELLSDONE
  s_mov_b32 s{sKind}, 2
K_RELOAD:
  v_lshrrev_b32 v{t1}, 2, v0
  s_mov_b32 s{sq}, {CH*32}
  v_mul_u32_u24 v{vebase}, s{sq}, v{t1}
  s_waitcnt vmcnt(0)""")
    for k in range(2):
        a(f"  buffer_load_dwordx4 {v(REC+4*k,4)}, v{vcell}, {s(SC,4)}, 0 offen offset:{64*k} sc1")
    a(f"""
  s_waitcnt vmcnt(0)
  s_mov_b32 exec_lo, 0xaaaaaaaa
  s_mov_b32 exec_hi, 0xaaaaaaaa
  v_mov_b32 v{REC+3}, 0
  v_mov_b32 v{REC+7}, 0
  s_mov_b64 exec, -1
  s_cmp_eq_u32 s{sKind}, 0
  s_cbranch_scc1 K_ROUND
  s_lshr_b32 s{sq}, s{sW}, 2
  s_add_u32 s{sq}, s{sq}, 1
  s_cmp_eq_u32 s{sq}, s{sKind}
  s_cbranch_scc1 K_ROUND""")
    for k in range(NR): a(f"  v_mov_b32 v{REC+k}, 0")
    a(f"""
K_ROUND:
  v_mov_b32 v{CV}, 0
  v_mov_b32 v{CV+1}, 0
  v_mov_b32 v{CV+2}, 0
  v_mov_b32 v{CV+3}, 0
  v_cmp_gt_u32 vcc, {(L_FLG-L_GN)//16}, v0
  s_and_saveexec_b64 {s(sEx,2)}, vcc
  ds_write_b128 v{vt16}, {v(CV,4)} offset:{L_GN}
  s_mov_b64 exec, {s(sEx,2)}""")
    prefill()
    a(f"""
  v_and_b32 v{vent}, 2047, v{vent}
  v_and_b32 v{vrow}, 2047, v{vrow}
  v_subrev_u32 v{vga}, {L_GN}, v{vga}
  v_and_b32 v{vga}, 255, v{vga}
  v_add_u32 v{vga}, {L_GN}, v{vga}
  v_and_b32 v{t2}, 12, v{vl}
  v_add_u32 v{vgq}, v{vga}, v{t2}
  s_waitcnt lgkmcnt(0)
  s_barrier
  s_branch K_PHASE1
K_STARTOV:""")
    for i in range(4): a(f"  v_readfirstlane_b32 s{sOV+i}, v{CV+i}")
    a(f"""
  s_mov_b32 s{sKind}, 4
  s_waitcnt lgkmcnt(0)
K_NEXTOV:""")
    for i in range(2):
        a(f"""
  s_ff1_i32_b64 s{sP}, {s(sOV+2*i,2)}
  s_cmp_eq_u32 s{sP}, -1
  s_cbranch_scc1 K_OVN{i}
  s_bitset0_b64 {s(sOV+2*i,2)}, s{sP}
  s_add_u32 s{sP}, s{sP}, {64*i}
  s_branch K_OVGO
K_OVN{i}:""")
    a(f"""
  s_branch K_CONV
K_OVGO:
  s_mov_b32 s{sKind}, 3
  v_mov_b32 v{t4}, v0
  s_branch K_OVLD
K_OVPART1:
  s_mov_b32 s{sKind}, 4
  v_add_u32 v{t4}, 2048, v0
K_OVLD:
  s_mul_i32 s{sq}, s{sP}, {OVSTR}
  s_mul_i32 s{sq+1}, s{sP}, {CH*32}
  v_mov_b32 v{vebase}, s{sq+1}
  v_mov_b32 v{t0}, s{sq}
  buffer_load_dword v{t1}, v{t0}, {s(SV,4)}, 0 offen sc1
  v_lshl_add_u32 v{t2}, v{t4}, 3, v{t0}""")
    for k in range(4):
        a(f"  buffer_load_dwordx2 {v(PF+2*k,2)}, v{t2}, {s(SV,4)}, 0 offen offset:64 sc1\n  v_add_u32 v{t2}, 4096, v{t2}")
    a(f"""
  s_waitcnt vmcnt(0)
  v_readfirstlane_b32 s{sq}, v{t1}
  s_cmp_le_u32 s{sq}, 2048
  s_cselect_b32 s{sKind}, 4, s{sKind}""")
    for k in range(4):
        a(f"""
  v_cmp_lt_u32 vcc, v{t4}, v{t1}
  v_cmp_eq_u32 {s(sEx,2)}, s2, v{PF+2*k+1}
  s_and_b64 vcc, vcc, {s(sEx,2)}
  v_add_u32 v{t4}, 512, v{t4}
  s_nop 1
  v_cndmask_b32 v{REC+k}, 0, v{PF+2*k}, vcc""")
    for k in range(4, NR): a(f"  v_mov_b32 v{REC+k}, 0")
    a("  s_branch K_ROUND")
    return a.text(), nv, NS

def gen_diag(idx):
    a = Asm()
    a(f"""
.globl mpnn_d_kernel
.p2align 8
.type mpnn_d_kernel,@function
mpnn_d_kernel:
  s_cmp_ge_u32 s2, 1
  s_cbranch_scc1 D_END
  s_load_dwordx2 s[4:5], s[0:1], 64
  s_waitcnt lgkmcnt(0)
  s_add_u32 s4, s4, {WS_STAMP + (OPT['wsb'] << 20)}
  s_addc_u32 s5, s5, 0
  s_load_dword s6, s[4:5], 0
  s_waitcnt lgkmcnt(0)
  s_sub_u32 s6, s6, 100000""")
    for q, (ix, ismax) in enumerate(((idx, 1), (0, 0))):
        op = "max" if ismax else "min"
        a(f"  v_lshlrev_b32 v1, {6 if not OPT['dodd'] else 10}, v0\n  v_add_u32 v1, {ix*4 + (512 + 64*(OPT['dodd']-1) if OPT['dodd'] else 0)}, v1\n  v_mov_b32 v3, {0 if ismax else -1}")
        nk = 32 if not OPT['dodd'] else 2
        for k in range(nk):
            a(f"  global_load_dword v{8+k}, v1, s[4:5]\n  v_add_u32 v1, {4096 if not OPT['dodd'] else 65536}, v1")
        a("  s_waitcnt vmcnt(0)")
        for k in range(nk):
            a(f"  v_subrev_u32 v2, s6, v{8+k}\n  v_{op}_u32 v3, v3, v2")
        a(f"  s_mov_b32 s{20+q}, {0 if ismax else -1}\n  s_nop 1")
        for l in range(64):
            a(f"  v_readlane_b32 s8, v3, {l}\n  s_nop 0\n  s_{op}_u32 s{20+q}, s{20+q}, s8")
    a(f"""
  s_sub_u32 s20, s20, s21
  s_min_u32 s20, s20, 20000
  s_lshl_b32 s20, s20, 3
  {'s_mov_b32 s20, 0' if OPT['dz'] else ''}
  s_memrealtime s[8:9]
  s_waitcnt lgkmcnt(0)
D_L:
  s_memrealtime s[10:11]
  s_waitcnt lgkmcnt(0)
  s_sub_u32 s12, s10, s8
  s_cmp_lt_u32 s12, s20
  s_cbranch_scc1 D_L
D_END:
  s_endpgm
""")
    return a.text()

HEAD = """; Kernarg layout for this problem (72 bytes, ptrs only, base s[0:1]):
;
"""
def main():
    k, nv, ns = gen()
    out = HEAD + f"; @launch grid=({NB},1,1) block=(512,1,1) lds={LDS}\n"
    if OPT["diag"] >= 0:
        out = HEAD + f"; @launch kernel={KN} grid=({NB},1,1) block=(512,1,1) lds={LDS}\n; @launch kernel=mpnn_d_kernel grid=(1,1,1) block=(64,1,1) lds=0\n"
        k += gen_diag(OPT["diag"])
    out += '.amdgcn_target "amdgcn-amd-amdhsa--gfx950"\n.text\n' + k
    out += f""".section .rodata,"a"
.p2align 6
.amdhsa_kernel {KN}
  .amdhsa_next_free_vgpr {nv}
  .amdhsa_next_free_sgpr {ns}
  .amdhsa_accum_offset {(nv+3)//4*4}
  .amdhsa_group_segment_fixed_size 0
  .amdhsa_kernarg_size 72
  .amdhsa_user_sgpr_count 2
  .amdhsa_user_sgpr_kernarg_segment_ptr 1
  .amdhsa_system_sgpr_workgroup_id_x 1
.end_amdhsa_kernel
"""
    if OPT["diag"] >= 0:
        out += """.p2align 6
.amdhsa_kernel mpnn_d_kernel
  .amdhsa_next_free_vgpr 48
  .amdhsa_next_free_sgpr 32
  .amdhsa_accum_offset 48
  .amdhsa_group_segment_fixed_size 0
  .amdhsa_kernarg_size 72
  .amdhsa_user_sgpr_count 2
  .amdhsa_user_sgpr_kernarg_segment_ptr 1
  .amdhsa_system_sgpr_workgroup_id_x 1
.end_amdhsa_kernel
"""
    out = "\n".join(l.rstrip() for l in out.split("\n") if l.strip()) + "\n"
    open(sys.argv[1], "w").write(out)
    print("vgprs", nv, "lds", LDS)
main()
```

```python
from common import *

N = 10000; E = 320000
G = 125
CH = 2560
NB = 256
MAGIC = 26843
CAP = 28
CELLB = 128
BSTR = G * CELLB

WS_P = 256
WS_CELL = 0x280000
WS_WF = 0x1280000
WF_W2, WF_UT, WF_UB, WF_3H, WF_3L = 0, 32768, 65536, 98304, 102400
WF_SIZE = 106496
WS_OVF = 0x12A0000
OVSTR = 64 + CH * 8
WS_FLAG = 0x1520000
WS_STAMP = 0x1600000

OPT = dict(lo=0, k8=1, stamp=0, nodma=0, noadd=0, noe=0, hot=0, align=1, unroll=2, dmapos=0, rdpos=0, dsc=1, pf=1, slp=0, stf=1, addpos=0, rdgap=0, prio=0, bench=0, octo=1, frep=8, fln=16, slp0=0, plf=1, flf=1, diag=-1, touch=0, dz=0, abl=0, dodd=0, wsb=0, claim=0, slpa=0, slpb=0, zt=0, cpf=0, pf2=0, stag=0, bdl=0, wfirst=0, fine=0, half=0, dbg=0, s0st=0, spf=0, spfb=0, early=0, gate=0, ord=0, s0m=0, idle=0, idle2=0, seq=0, smf=0, of=0, oc=0, pert=0, efirst=0, wpos=0, dgap=12, efl=0, pfl=0, idm=0, pdl=0, ocl=0)
for a_ in sys.argv[2:]:
    k_, v_ = a_.split("="); OPT[k_] = int(v_)
EXP = OPT["dbg"] or OPT["half"] or OPT["bench"] or OPT["nodma"] or OPT["noe"] or OPT["noadd"] or OPT["hot"]

FL_ = ['', 'sc1', 'sc0 sc1', 'sc1 nt', 'sc0 sc1 nt']; PLF = FL_[OPT['plf']]; FLF = FL_[OPT['flf']]
OFL = ['', 'sc1', 'nt', 'sc0 sc1', 'sc1 nt'][OPT['of']]
STF = ['', 'sc1', 'sc0 sc1', 'sc1 nt'][OPT['stf']]
FREP = OPT['frep']; FLN = OPT['fln']; FSH = (128//FLN).bit_length()-1; FHALF = FREP*FLN*256; FNON = 2*FHALF; FMASK = hex((1<<FREP)-1)
NA = 1 if OPT['claim'] & 4 else 0
NCL = (3 if OPT['claim'] & 1 else 0) + NA
NCC = (4 if OPT['claim'] & 2 else 0) + NA
CAPB = 70
L_ENT = 0
L_GN = (CAPB + 1) * 256
L_CNT = L_GN + (CAPB + 17) * 32
L_FLG = L_CNT + 256
L_ACC = L_FLG + 64
AS = 1040
L_Q = L_ACC + 40 * AS
QS = 320
L_X = L_Q + 40 * QS
XS = 288
L_STG = L_X + 40 * XS
STG = 8 * 1040 + 1024
LDS = L_STG + 8 * STG
L_CIMG = L_STG
L_BCNT = L_CIMG + NB * CELLB
WPITCH = 1088
L_GP = L_STG + 1024
L_WS = L_STG + 32 * WPITCH
assert L_BCNT + 1024 <= LDS and L_STG % 16 == 0 and L_ACC % 16 == 0
PADS, PADE = 0x8000003f, 0x80000000
KN = "standalone__mpnn_edge_mlp__graph_kernel"

IDMAP = ["""s_and_b32 s100, s2, 7
  s_lshl_b32 s100, s100, 1
  s_bfe_u32 s101, s2, 0x10003
  s_and_b32 s2, s2, 0xf0
  s_or_b32 s2, s2, s100
  s_or_b32 s2, s2, s101""",
"""s_lshr_b32 s100, s2, 7
  s_xor_b32 s100, s100, 1
  s_and_b32 s2, s2, 127
  s_lshl_b32 s2, s2, 1
  s_or_b32 s2, s2, s100""",
"""s_lshr_b32 s100, s2, 7
  s_and_b32 s2, s2, 127
  s_lshl_b32 s2, s2, 1
  s_or_b32 s2, s2, s100"""][OPT["idm"]]
def fstamp(a, i):
    if OPT["fine"]: a(f"  s_memrealtime s[{80+2*i}:{81+2*i}]")
def stamp(a, i, cyc=None):
    if OPT["fine"] and i in (1, 2, 3, 5): return
    if OPT["stamp"]:
        if cyc is None:
            a(f"  s_memrealtime s[{80+2*i}:{81+2*i}]\n  s_waitcnt lgkmcnt(0)")
        else:
            a(f"  s_memrealtime s[96:97]\n  s_memtime s[98:99]\n  s_waitcnt lgkmcnt(0)\n  s_mov_b32 s{i}, s96\n  s_mov_b32 s{i+2}, s98")

def gen():
    a = Asm()
    rare = []
    R = Regs(1)
    al = R.alloc
    vl = al("lane")
    t0 = al("t", 8, 2); t1, t2, t3, t4, t5, t6, t7 = range(t0+1, t0+8)
    vchunk = al("vchunk"); vechunk = al("vechunk")
    vent = al("vent"); vrow = al("vrow"); vgq = al("vgq"); vga = al("vga")
    vAlo = al("Alo"); vAhi = al("Ahi"); vEF = al("vEF")
    vAT = al("vAT", 4) if OPT["smf"] else None
    vqlane = al("vqlane"); vacl = al("vacl"); vxb = al("vxb"); vqw = al("vqw")
    vebase = al("vebase"); vone = al("vone"); vt16 = al("vt16"); vcell = al("vcell")
    vgl = al("vgl")
    vqa = al("vqa"); vsrow = al("vsrow"); vgn1 = al("vgn1")
    ENT = al("ENT", 2, 2)
    MAC = al("MAC", 2, 2)
    PAT = al("PAT", 2, 2)
    nq = 2 if OPT["k8"] else 4
    AQ = al("AQ", nq, 2)
    GN = al("GN", 4, 2); AD = al("AD", 4)
    DO = al("DO", 2)
    I0 = al("I0", 4, 2); I1 = al("I1", 4, 2)
    W3 = al("W3", 16, 2)
    W3L = al("W3L", 16, 2) if OPT["lo"] else None
    BQ = al("BQ", 4*nq, 2)
    EF = al("EF", 4, 2)
    PF = al("PF", 32, 2)
    D0 = al("D0", 16, 2); D1 = al("D1", 16, 2)
    EA = al("EA", 8, 4); TA = al("TA", 8, 4); EB = al("EB", 8, 4); TB = al("TB", 8, 4)
    RA = al("RA", 2, 2); RB = al("RB", 2, 2)
    SA = al("SA", 2, 2); SB = al("SB", 2, 2)
    CV = al("CV", 8, 2)
    U = al("U", 12, 2); WUB = al("WUB", 16, 2)
    DUM = al("DUM", 4, 2)
    DK = al("DK", 4, 2)
    nv = R.n
    assert TA == EA + 8 and EB == EA + 16 and TB == EA + 24 and D1 == D0 + 16
    DD = D0; SS_ = D0 + 5; B4 = D0 + 10; RK = D0 + 15; CA = D0 + 20
    CP = PF
    GX = W3
    XL = U
    W1F = WUB
    REC = D0; NOD = D0 + 8; RNK = D1
    W2F = EA; WUT = EB; XF = PF; QD = CV
    sW = 3
    pX, pE, pS, pD, pWM, pWU, pO, pWS = 4, 6, 8, 10, 12, 14, 16, 18
    SP, SE, SC, SW, SO, SV, SF = 20, 24, 28, 32, 36, 40, 44
    T0, T1, T2 = 48, 52, 56
    sStart, sNb, sStg, sCnt, sT, sMode, sKind, sFirst = 60, 61, 62, 63, 64, 65, 66, 67
    sAS, sQS, sTag, sP, sUB, sLo2 = 68, 69, 70, 71, 72, 73
    sCO = 59
    sK2 = 56
    sNp = 79
    sEx, sK, sBad = 74, 76, 78
    sTmp = 4
    sA = 48
    sOV = 48
    sOVT = 74
    sq = 100
    if OPT["stamp"]: NS = 102
    else: NS = 102

    a(f"""
.globl {KN}
.p2align 8
.type {KN},@function
{KN}:
  s_cmp_ge_u32 s2, {NB}
  s_cbranch_scc1 K_END""")
    if OPT["stamp"]: a("  s_memrealtime s[80:81]")
    a(f"""
  s_load_dwordx8 s[4:11], s[0:1], 0
  s_load_dwordx4 s[12:15], s[0:1], 32
  s_load_dwordx2 s[16:17], s[0:1], 48
  s_load_dwordx2 s[18:19], s[0:1], 64""")
    if OPT["cpf"]:
        a(f"""
  s_getpc_b64 s[20:21]
  v_lshlrev_b32 v{t1}, 7, v0
  v_cmp_gt_u32 vcc, (K_TEXTEND - {KN}) / 128, v0
  s_and_saveexec_b64 s[22:23], vcc
  s_cbranch_execz K_NOCPF
  global_load_dword v{DUM}, v{t1}, s[20:21]
K_NOCPF:
  s_mov_b64 exec, s[22:23]""")
    a(f"""
  v_lshrrev_b32 v{t0}, 6, v0
  v_and_b32 v{vl}, 63, v0
  s_and_b32 s{sP}, s2, {FREP-1}
  s_mul_i32 s{sP}, s{sP}, {FLN*256}
  {IDMAP}
  s_mul_i32 s{sStart}, s2, 640013
  v_readfirstlane_b32 s{sW}, v{t0}
  s_add_u32 s{sNb}, s{sStart}, {640013+16383}
  s_add_u32 s{sStart}, s{sStart}, 16383
  s_sub_u32 s{sNp}, s{sStart}, 640013
  s_lshr_b32 s{sStart}, s{sStart}, 14
  s_lshr_b32 s{sNb}, s{sNb}, 14
  s_lshr_b32 s{sNp}, s{sNp}, 14
  s_min_u32 s{sNb}, s{sNb}, {N}
  s_sub_u32 s{sCnt}, s{sNb}, s{sNp}
  s_sub_u32 s{sNb}, s{sNb}, s{sStart}
  s_lshl_b32 s{sT}, s{sNp}, 8
  s_sub_u32 s{sNp}, s{sStart}, s{sNp}
  s_mov_b32 s{sMode}, 0
  s_mov_b32 s{sKind}, 0
  s_mov_b32 s{sFirst}, 1
  s_mov_b32 s{sAS}, {AS}
  s_mov_b32 s{sQS}, {QS}
  s_mul_i32 s{sStg}, s{sW}, {STG}
  s_add_u32 s{sStg}, s{sStg}, {L_STG}
  v_lshlrev_b32 v{vt16}, 4, v0
  s_mul_i32 s{sq}, s2, {CH*2}
  v_lshl_add_u32 v{t2}, v0, 2, s{sq}
  v_add_u32 v{t3}, 4096, v{t2}
  v_lshrrev_b32 v{t4}, 4, v{vl}
  v_lshlrev_b32 v{t0}, 1, v{t4}
  v_xor_b32 v{t0}, v{t0}, v{vl}
  v_lshlrev_b32 v{t0}, 4, v{t0}
  s_lshl_b32 s{sq}, s{sW}, 12
  v_add_u32 v{t7}, s{sq}, v{t0}
  s_mul_i32 s{sUB}, s{sW}, {4*WPITCH}
  s_add_u32 s{sUB}, s{sUB}, {L_WS}
  v_add_u32 v{t6}, 8192, v{vt16}
  v_add_u32 v{t5}, 16384, v{vt16}
  s_waitcnt lgkmcnt(0)
  {"s_add_u32 s%d, s%d, %d" % (pWS, pWS, OPT["wsb"] << 20) + chr(10) + "  s_addc_u32 s%d, s%d, 0" % (pWS+1, pWS+1) if OPT["wsb"] else ""}
  s_bitcmp1_b32 s2, 0
  s_cbranch_scc1 K_LDG
  s_cmp_ge_u32 s2, {2*G}
  s_cbranch_scc1 K_LDP""")
    if OPT["bdl"]: a(f"  s_sleep {OPT['bdl']}")
    srd(a, T0, pD, E*4)
    srd(a, T1, pS, E*4)
    a(f"  s_movk_i32 s{sq}, 0x2000")
    for r_, T in ((DD, T0), (SS_, T1)):
        a(f"""
  buffer_load_dword v{r_}, v{t2}, {s(T,4)}, 0 offen
  buffer_load_dword v{r_+1}, v{t2}, {s(T,4)}, 0 offen offset:2048
  buffer_load_dword v{r_+2}, v{t3}, {s(T,4)}, 0 offen
  buffer_load_dword v{r_+3}, v{t3}, {s(T,4)}, 0 offen offset:2048
  buffer_load_dword v{r_+4}, v{t2}, {s(T,4)}, s{sq} offen""")
    if OPT["claim"] & 2:
        srd(a, T2, pWS, NB*BSTR, add=WS_CELL)
        a(f"""
  v_lshrrev_b32 v{t4}, 3, v0
  s_mov_b32 s{sq}, {BSTR}
  v_mul_u32_u24 v{t4}, s{sq}, v{t4}
  v_and_b32 v{t0}, 7, v0
  v_lshl_add_u32 v{t4}, v{t0}, 4, v{t4}
  s_lshl_b32 s{sq}, s2, 6
  v_mov_b32 v{PF}, 0
  v_mov_b32 v{PF+1}, 0
  v_mov_b32 v{PF+2}, 0
  v_mov_b32 v{PF+3}, 0""")
        for j in range(4):
            a(f"  buffer_store_dwordx4 {v(PF,4)}, v{t4}, {s(T2,4)}, s{sq} offen sc1\n  s_add_u32 s{sq}, s{sq}, {64*BSTR}")
    a("  s_branch K_LD3")
    def wdma(T):
        for q in range(4):
            a(f"  s_add_u32 m0, s{sUB}, {64*q}\n  s_nop 0\n  buffer_load_dwordx4 v{t7}, {s(T,4)}, 0 offen offset:{1024*q} lds")
    a(f"""
K_LDX:
  s_lshl_b32 s{sq}, s{sStart}, 8
  s_lshl_b32 s{sq+1}, s{sNb}, 8""")
    srd(a, T2, pX, f"s{sq+1}", addreg=sq)
    a(f"""
  buffer_load_dwordx4 {v(XL,4)}, v{vt16}, {s(T2,4)}, 0 offen
  buffer_load_dwordx4 {v(XL+4,4)}, v{t6}, {s(T2,4)}, 0 offen
  s_branch K_LD3
K_LDP:
  s_cmp_eq_u32 s2, {2*G}
  s_cselect_b32 s{T1}, s{pWM}, s{pWU}
  s_cselect_b32 s{T1+1}, s{pWM+1}, s{pWU+1}
  s_cmp_eq_u32 s2, {2*G+2}
  s_cselect_b32 s{sq}, 0, 32768
  s_add_u32 s{T1}, s{T1}, s{sq}
  s_addc_u32 s{T1+1}, s{T1+1}, 0
  s_mov_b32 s{T1+2}, 32768
  s_mov_b32 s{T1+3}, 0x20000""")
    wdma(T1)
    srd(a, T0, pWM, 16*256, add=256*256)
    a(f"""
  v_and_b32 v{t0}, 31, v{vl}
  v_lshrrev_b32 v{t1}, 5, v{vl}
  v_lshlrev_b32 v{t1}, 11, v{t1}
  v_lshl_add_u32 v{t1}, v{t0}, 1, v{t1}
  s_and_b32 s{sq}, s{sW}, 3
  s_lshl_b32 s{sq}, s{sq}, 6""")
    for jj in range(8):
        a(f"  buffer_load_ushort v{D0+jj}, v{t1}, {s(T0,4)}, s{sq} offen offset:{jj*256}")
    a(f"""
  s_branch K_LDX
K_LDG:
  s_lshl_b32 s{sCnt}, s{sCnt}, 8""")
    srd(a, T0, pX, f"s{sCnt}", addreg=sT)
    srd(a, T1, pWM, 128*256)
    if OPT["wfirst"]: wdma(T1)
    a(f"""
  buffer_load_dwordx4 {v(GX,4)}, v{vt16}, {s(T0,4)}, 0 offen
  buffer_load_dwordx4 {v(GX+4,4)}, v{t6}, {s(T0,4)}, 0 offen
  buffer_load_dwordx4 {v(GX+8,4)}, v{t5}, {s(T0,4)}, 0 offen""")
    if not OPT["wfirst"]: wdma(T1)
    if OPT["claim"] & 1:
        srd(a, T2, pWS, f"s{sCnt}", add=WS_P, addreg=sT)
        for r_ in (vt16, t6, t5):
            a(f"  buffer_store_dwordx4 {v(PF,4)}, v{r_}, {s(T2,4)}, 0 offen sc1")
    a(f"""
K_LD3:""")
    if OPT["claim"] & 4:
        a(f"  s_lshl_b32 s{sq}, s{sStart}, 8\n  s_lshl_b32 s{sq+1}, s{sNb}, 8")
        srd(a, SO, pWS, f"s{sq+1}", add=WS_P, addreg=sq)
        a(f"""
  s_mul_i32 s{sq}, s{sW}, 1280
  v_lshl_add_u32 v{t1}, v{vl}, 7, s{sq}
  v_mov_b32 v{t0}, 0
  s_mov_b64 exec, 0x3ff
  buffer_atomic_or v{t0}, v{t1}, {s(SO,4)}, 0 offen
  s_mov_b64 exec, -1""")
    a(f"""
  s_add_u32 s{SF}, s{pWS}, {WS_FLAG}
  s_addc_u32 s{SF+1}, s{pWS+1}, 0
  s_load_dword s{sTag}, s[{SF}:{SF+1}], {FNON}
  s_mov_b32 s{SF+2}, {FNON+4}
  s_mov_b32 s{SF+3}, 0x20000
  v_lshrrev_b32 v{t1}, 2, v0
  v_and_b32 v{t4}, 3, v0
  v_lshlrev_b32 v{t4}, 4, v{t4}
  v_lshl_add_u32 v{vcell}, v{t1}, {6 if OPT['half'] == 2 else 7}, v{t4}
  s_mov_b32 s{sq}, {CH*32}
  v_mul_u32_u24 v{vebase}, s{sq}, v{t1}""")
    a(f"""
  v_mov_b32 v{CV}, 0
  v_mov_b32 v{CV+1}, 0
  v_mov_b32 v{CV+2}, 0
  v_mov_b32 v{CV+3}, 0
  v_add_u32 v{t0}, {L_CIMG}, v{vt16}""")
    a(f"  s_bitcmp1_b32 s2, 0\n  s_cbranch_scc1 K_NOZ")
    for j in range(4):
        a(f"  ds_write_b128 v{t0}, {v(CV,4)} offset:{j*8192}")
    a(f"  s_cmp_lg_u32 s{sW}, 0\n  s_cbranch_scc1 K_NOZ\n  ds_write_b128 v{t0}, {v(CV,4)} offset:32768")
    a("K_NOZ:")
    for j in range(5):
        a(f"  ds_write_b128 v{vt16}, {v(CV,4)} offset:{L_GN + j*8192}")
    a(f"""
  v_cmp_gt_u32 vcc, {(L_Q-L_GN-5*8192)//16}, v0
  s_and_saveexec_b64 {s(sEx,2)}, vcc
  ds_write_b128 v{vt16}, {v(CV,4)} offset:{L_GN + 5*8192}
  s_mov_b64 exec, {s(sEx,2)}""")
    def prefill():
        a(f"""
  v_mov_b32 v{CV+4}, {PADS}
  v_mov_b32 v{CV+5}, {PADE}
  v_mov_b32 v{CV+6}, {PADS}
  v_mov_b32 v{CV+7}, {PADE}
  ds_write_b128 v{vt16}, {v(CV+4,4)}
  ds_write_b128 v{vt16}, {v(CV+4,4)} offset:8192
  v_cmp_gt_u32 vcc, {(L_GN-16384)//16}, v0
  s_and_saveexec_b64 {s(sEx,2)}, vcc
  ds_write_b128 v{vt16}, {v(CV+4,4)} offset:16384
  s_mov_b64 exec, {s(sEx,2)}""")
    prefill()
    a(f"  s_mul_i32 s{sq}, s2, {BSTR}\n  s_lshl_b32 s{sq+1}, s{sStart}, 8\n  s_lshl_b32 s{sK}, s{sNb}, 8")
    srd(a, SC, pWS, G*CELLB // (2 if OPT['half'] == 2 else 1), add=WS_CELL, addreg=sq)
    srd(a, SP, pWS, (N+1)*256)
    srd(a, SE, pE, E*32)
    srd(a, SW, pWS, WF_SIZE, add=WS_WF)
    srd(a, SO, pO, f"s{sK}", addreg=sq+1)
    srd(a, SV, pWS, G*OVSTR, add=WS_OVF)
    a(f"""
  v_mov_b32 v{vone}, 1
  v_mov_b32 v{MAC}, 0
  v_mov_b32 v{MAC+1}, 0
  v_and_b32 v{t0}, 15, v{vl}                 ; l&15
  v_bfe_u32 v{t1}, v{vl}, 4, 1               ; r4&1
  {"v_lshlrev_b32 v%d, 3, v%d" % (t2, t1) if not OPT["smf"] else "v_lshrrev_b32 v%d, 4, v%d" % (t2, vl) + chr(10) + "  v_lshlrev_b32 v%d, 2, v%d" % (t2, t2)}
  v_xor_b32 v{t2}, v{t0}, v{t2}
  v_lshlrev_b32 v{vchunk}, 4, v{t2}
  v_and_b32 v{t2}, 1, v{vl}
  v_xor_b32 v{t2}, v{t2}, v{t1}
  v_lshlrev_b32 v{vechunk}, 4, v{t2}
  v_lshrrev_b32 v{t2}, 4, v{vl}
  v_lshlrev_b32 v{t2}, 6, v{t2}
  v_lshrrev_b32 v{t4}, 1, v{t0}
  v_lshl_add_u32 v{t2}, v{t4}, 3, v{t2}
  s_lshl_b32 s{sq}, s{sW}, 8
  v_add_u32 v{vent}, s{sq}, v{t2}
  v_bfe_u32 v{t2}, v{vl}, 2, 1               ; h
  v_and_b32 v{t4}, 1, v{vl}                  ; xy
  v_lshl_add_u32 v{t5}, v{t2}, 1, v{t4}      ; r4
  v_bfe_u32 v{t6}, v{vl}, 3, 2
  v_bfe_u32 v{t7}, v{vl}, 1, 1
  v_lshl_add_u32 v{t6}, v{t6}, 1, v{t7}      ; j
  v_lshl_add_u32 v{t7}, v{t5}, 3, v{t6}      ; q = 8 r4 + j
  v_lshlrev_b32 v{t7}, 3, v{t7}
  v_add_u32 v{vrow}, s{sq}, v{t7}
  v_lshrrev_b32 v{t7}, 5, v{vl}              ; hh
  v_mul_u32_u24 v{vAlo}, 1040, v{t6}
  v_lshl_add_u32 v{vAlo}, v{t5}, 8, v{vAlo}
  v_lshl_add_u32 v{vAlo}, v{t7}, 4, v{vAlo}
  v_add_u32 v{vAlo}, s{sStg}, v{vAlo}
  v_xor_b32 v{vAhi}, 1, v{t4}
  v_lshl_add_u32 v{vAhi}, v{vAhi}, 7, v{vAlo}
  v_lshl_add_u32 v{vAlo}, v{t4}, 7, v{vAlo}
  v_xor_b32 v{vEF}, v{t7}, v{t4}
  v_lshl_add_u32 v{vEF}, v{t6}, 1, v{vEF}
  v_lshl_add_u32 v{vEF}, v{t5}, 4, v{vEF}
  v_lshlrev_b32 v{vEF}, 4, v{vEF}
  s_add_u32 s{sq+1}, s{sStg}, 8320
  v_add_u32 v{vEF}, s{sq+1}, v{vEF}
  v_bfe_u32 v{t5}, v{vl}, 4, 1               ; o
  v_lshlrev_b32 v{t5}, 4, v{t5}
  v_mov_b32 v{t6}, 0x3f80
  v_lshlrev_b32 v{t5}, v{t5}, v{t6}
  v_cmp_eq_u32 vcc, v{t7}, v{t2}
  s_nop 1
  v_cndmask_b32 v{t5}, 0, v{t5}, vcc
  v_cmp_eq_u32 vcc, 0, v{t4}
  s_nop 1
  v_cndmask_b32 v{PAT}, 0, v{t5}, vcc
  v_cndmask_b32 v{PAT+1}, v{t5}, 0, vcc
  s_lshl_b32 s{sq}, s{sW}, 5
  s_add_u32 s{sq+1}, s{sq}, {L_GN}
  v_lshlrev_b32 v{vga}, 4, v{t7}
  v_add_u32 v{vga}, s{sq+1}, v{vga}
  v_and_b32 v{t2}, 12, v{vl}
  v_add_u32 v{vgq}, v{vga}, v{t2}
  v_and_b32 v{t2}, 3, v{vl}
  v_lshlrev_b32 v{t2}, 3, v{t2}
  v_lshl_add_u32 v{t2}, v{t1}, 5, v{t2}
  v_add_u32 v{vqlane}, {L_Q}, v{t2}
  v_and_b32 v{t2}, 31, v{vl}
  v_lshlrev_b32 v{t4}, 3, v{t2}
  v_add_u32 v{vacl}, {L_ACC}, v{t4}
  v_lshrrev_b32 v{t4}, 4, v{vl}              ; g
  v_mul_u32_u24 v{vxb}, {XS}, v{t0}
  v_lshl_add_u32 v{vxb}, v{t4}, 4, v{vxb}
  v_add_u32 v{vxb}, {L_X}, v{vxb}
  v_mul_u32_u24 v{vqw}, {QS}, v{t0}
  v_lshl_add_u32 v{vqw}, v{t4}, 3, v{vqw}
  s_add_u32 s{sq+1}, s{sq}, {L_Q}
  v_add_u32 v{vqw}, s{sq+1}, v{vqw}
  v_mul_u32_u24 v{vqa}, {2*WPITCH}, v{t4}
  v_bfe_u32 v{t5}, v{vl}, 2, 2
  v_lshl_add_u32 v{vqa}, v{t5}, 8, v{vqa}
  v_xor_b32 v{t5}, s{sW}, v{t5}
  v_lshl_add_u32 v{vqa}, v{t5}, 5, v{vqa}
  v_and_b32 v{t5}, 3, v{vl}
  v_lshl_add_u32 v{vqa}, v{t5}, 3, v{vqa}
  v_add_u32 v{vqa}, {L_WS}, v{vqa}
  v_and_b32 v{t4}, 1, v{vl}
  v_lshlrev_b32 v{t4}, 4, v{t4}
  v_lshlrev_b32 v{t4}, v{t4}, v{t6}
  v_bfe_u32 v{t5}, v{vl}, 1, 4
  v_lshlrev_b32 v{t7}, 2, v{t7}
  v_sub_u32 v{t5}, v{t5}, v{t7}""")
    if OPT["smf"]:
        a(f"""
  v_bfe_u32 v{t4}, v{vl}, 4, 1
  v_bfe_u32 v{t5}, v{vl}, 1, 1
  v_lshl_add_u32 v{t4}, v{t4}, 1, v{t5}
  v_bfe_u32 v{t5}, v{vl}, 3, 1
  v_lshrrev_b32 v{t7}, 5, v{vl}
  v_xor_b32 v{t5}, v{t5}, v{t7}
  v_lshl_add_u32 v{t4}, v{t5}, 2, v{t4}""")
        for i in range(4):
            a(f"  v_cmp_eq_u32 vcc, {i}, v{t4}\n  s_nop 1\n  v_cndmask_b32 v{I0+i}, 0, v{t6}, vcc")
        a(f"""
  v_bfe_u32 v{t4}, v{vl}, 2, 1
  v_and_b32 v{t5}, 1, v{vl}
  v_lshl_add_u32 v{t4}, v{t4}, 1, v{t5}
  v_mul_u32_u24 v{I1}, 0x5555, v{t4}
  v_bfe_u32 v{t4}, v{vl}, 2, 2
  v_mul_u32_u24 v{t5}, {4*1040}, v{t7}
  v_lshl_add_u32 v{t5}, v{t4}, 8, v{t5}
  v_subrev_u32 v{t7}, {L_Q}, v{vqlane}
  v_add3_u32 v{t5}, v{t5}, v{t7}, s{sStg}""")
        for t in range(4):
            a(f"  v_xor_b32 v{t7}, {t}, v{t4}\n  v_lshl_add_u32 v{vAT+t}, v{t7}, 6, v{t5}")
    else:
        for i in range(4):
            a(f"  v_cmp_eq_u32 vcc, {i}, v{t5}\n  s_nop 1\n  v_cndmask_b32 v{I0+i}, 0, v{t4}, vcc")
            a(f"  v_cmp_eq_u32 vcc, {8+i}, v{t5}\n  s_nop 1\n  v_cndmask_b32 v{I1+i}, 0, v{t4}, vcc")
    if not OPT["k8"]:
        a(f"  v_mov_b32 v{AQ+2}, 0\n  v_mov_b32 v{AQ+3}, 0")
        for t in range(4):
            a(f"  v_mov_b32 v{BQ+4*t+2}, 0\n  v_mov_b32 v{BQ+4*t+3}, 0")
    def prefetch():
        if not OPT["pf"]: return
        a(f"  s_mul_i32 s{sq}, s2, 40000\n  s_sub_u32 s{sq}, s{sq}, 4096\n  v_add_u32 v{t0}, s{sq}, v{vt16}")
        for j in range(10):
            a(f"  buffer_load_dwordx4 {v(DUM,4)}, v{t0}, {s(SE,4)}, 0 offen")
            if j < 9: a(f"  v_add_u32 v{t0}, 4096, v{t0}")
    def wtr(dst, ad):
        for st in range(4):
            for hf in range(2):
                a(f"  ds_read_b64_tr_b16 {v(dst+4*st+2*hf,2)}, v{ad} offset:{(8*st+hf)*WPITCH}")
    def own_x(nyounger):
        a(f"""
  v_lshrrev_b32 v{t0}, 4, v0
  v_lshl_add_u32 v{t0}, v{t0}, 5, v{vt16}
  v_add_u32 v{t0}, {L_X}, v{t0}
  s_waitcnt vmcnt({nyounger})
  ds_write_b128 v{t0}, {v(XL,4)}
  s_mov_b32 exec_lo, s{sLo2}
  s_mov_b32 exec_hi, s{sLo2}
  ds_write_b128 v{t0}, {v(XL+4,4)} offset:{32*XS}
  s_mov_b64 exec, -1""")
    a(f"""
  s_cmp_lt_u32 s{sW}, 2
  s_cselect_b32 s{sLo2}, -1, 0
  s_lshr_b32 s{sq}, s2, {1+FSH}
  s_lshl_b32 s{sq}, s{sq}, 8
  s_bfe_u32 s{sq+1}, s2, {hex((FSH<<16)|1)}
  s_lshl_b32 s{sq+1}, s{sq+1}, 2
  s_add_u32 s{sq}, s{sq}, s{sq+1}
  s_and_b32 s{sq+1}, s2, 1
  s_mul_i32 s{sq+1}, s{sq+1}, {FHALF}
  s_add_u32 s{sq}, s{sq}, s{sq+1}
  v_mul_u32_u24 v{vgn1}, {FLN*256}, v{vl}
  v_add_u32 v{vgn1}, s{sq}, v{vgn1}
  v_lshrrev_b32 v{t2}, {FSH-1}, v{vl}
  v_lshlrev_b32 v{t2}, 8, v{t2}
  v_and_b32 v{t3}, {(1<<(FSH-1))-1}, v{vl}
  v_lshl_add_u32 v{t2}, v{t3}, 3, v{t2}
  v_add_u32 v{vsrow}, s{sP}, v{t2}
  s_mov_b32 s{sK}, {NLOG2E}
  s_mov_b32 s{sK+1}, {NLOG2E}
  s_waitcnt lgkmcnt(0)
  s_add_u32 s{sTag}, s{sTag}, 1
  s_max_u32 s{sTag}, s{sTag}, 1
  s_bitcmp1_b32 s2, 0
  s_cbranch_scc1 K_GEMM
  s_cmp_ge_u32 s2, {2*G}
  s_cbranch_scc1 K_PREP
  s_mov_b32 s{sq}, {MAGIC}
  v_lshlrev_b32 v{t7}, 6, v0
  v_add_u32 v{t7}, {1<<18}, v{t7}
  s_barrier
  s_waitcnt vmcnt({5+NCC})""")
    stamp(a, 1)
    for j in range(5):
        a(f"""
  v_mul_u32_u24 v{B4+j}, s{sq}, v{DD+j}
  v_lshrrev_b32 v{B4+j}, 18, v{B4+j}
  v_and_b32 v{B4+j}, 0x3fc, v{B4+j}
  v_add_u32 v{t0+j}, {L_BCNT}, v{B4+j}
  ds_add_rtn_u32 v{RK+j}, v{t0+j}, v{vone}""")
    def claim_pair():
        a(f"  s_lshl_b32 s{sT}, s{sStart}, 8\n  s_sub_u32 s{sCnt}, {N*256}, s{sT}")
        srd(a, T1, pWS, f"s{sCnt}", add=WS_P, addreg=sT)
        a(f"""
  s_mul_i32 s{sT}, s{sW}, 2560
  v_lshl_add_u32 v{DO}, v{vl}, 7, s{sT}
  v_mov_b32 v{DO+1}, 0
  s_mov_b64 exec, 0xfffff
  buffer_atomic_or v{DO+1}, v{DO}, {s(T1,4)}, 0 offen
  s_mov_b64 exec, -1""")
    if OPT["claim"] & 16: claim_pair()
    a(f"  s_waitcnt vmcnt({NCC + (1 if OPT['claim'] & 16 else 0)})")
    if OPT["claim"] & 8: claim_pair()
    for j in range(5):
        a(f"""
  v_lshl_add_u32 v{SS_+j}, v{SS_+j}, 18, v{t7}
  v_and_or_b32 v{SS_+j}, v{DD+j}, 63, v{SS_+j}
  v_lshlrev_b32 v{CA+j}, 5, v{B4+j}
  v_add_u32 v{CA+j}, {L_CIMG}, v{CA+j}""")
        if j < 4: a(f"  v_add_u32 v{t7}, {512<<6}, v{t7}")
    srd(a, T2, pWS, NB*BSTR if not OPT["dbg"] & 4 else 0, add=WS_CELL + (0x2000000 if OPT["dbg"] & 1 else 0))
    a(f"""
  v_lshrrev_b32 v{t4}, 3, v0
  s_mov_b32 s{sq}, {BSTR}
  v_mul_u32_u24 v{t4}, s{sq}, v{t4}
  v_and_b32 v{t5}, 7, v0
  v_lshl_add_u32 v{t4}, v{t5}, 4, v{t4}
  s_lshl_b32 s{sq}, s2, {5 if OPT['half'] == 2 else 6}
  s_mov_b64 {s(sBad,2)}, 0
  s_waitcnt lgkmcnt(0)""")
    for j in range(5):
        a(f"""
  v_mul_u32_u24 v{t1}, 37, v{RK+j}
  v_lshl_add_u32 v{t0}, v{RK+j}, 2, v{CA+j}
  v_lshrrev_b32 v{t1}, 8, v{t1}
  v_cmp_le_u32 vcc, {CAP}, v{RK+j}
  v_lshl_add_u32 v{t0}, v{t1}, 2, v{t0}
  s_or_b64 {s(sBad,2)}, {s(sBad,2)}, vcc
  s_andn2_b64 exec, exec, vcc
  ds_write_b32 v{t0}, v{SS_+j}
  s_mov_b64 exec, -1""")
    a(f"""
  v_add_u32 v{t0}, {L_CIMG}, v{vt16}
  v_mov_b32 v{t2}, {L_FLG+4}
  s_cmp_eq_u64 {s(sBad,2)}, 0
  s_cbranch_scc1 K_NOFULL
  ds_write_b32 v{t2}, v{vone}
K_NOFULL:
  s_waitcnt lgkmcnt(0)
  s_barrier""")
    stamp(a, 2)
    a(f"  ds_read_b32 v{t2}, v{t2}\nK_OVFDONE:")
    for j in range(4):
        a(f"  ds_read_b128 {v(CP+4*j,4)}, v{t0} offset:{8192*j}")
    a(f"""
  s_waitcnt vmcnt({2 if OPT['claim'] & 2 else 63}) lgkmcnt(4)
  v_cmp_ne_u32 vcc, 0, v{t2}
  s_cbranch_vccnz K_OVF""")
    for j in range(4):
        a(f"""
  s_mov_b32 exec_lo, 0xaaaaaaaa
  s_mov_b32 exec_hi, 0xaaaaaaaa
  s_waitcnt lgkmcnt({3-j})
  v_mov_b32 v{CP+4*j+3}, s{sTag}
  s_mov_b64 exec, -1
  {"s_mov_b32 exec_lo, 0x0f0f0f0f" + chr(10) + "  s_mov_b32 exec_hi, 0x0f0f0f0f" if OPT["half"] else ""}
  buffer_store_dwordx4 {v(CP+4*j,4)}, v{t4}, {s(T2,4)}, s{sq} offen {STF}
  s_mov_b64 exec, -1
  s_add_u32 s{sq}, s{sq}, {64*BSTR}""")
    a(f"  s_lshl_b32 s{sq}, s{sStart}, 8\n  s_lshl_b32 s{sq+1}, s{sNb}, 8")
    srd(a, T2, pX, f"s{sq+1}", addreg=sq)
    a(f"""
  v_add_u32 v{t6}, 8192, v{vt16}
  buffer_load_dwordx4 {v(XL,4)}, v{vt16}, {s(T2,4)}, 0 offen
  buffer_load_dwordx4 {v(XL+4,4)}, v{t6}, {s(T2,4)}, 0 offen""")
    own_x(0)
    a(f"""
  {"s_sleep %d" % OPT["slpa"] if OPT["slpa"] else ""}""")
    def spf(n, per_wave, base):
        if not n: return
        assert 8*OPT['spf'] + 4*OPT['spfb'] <= 640
        a(f"""
  s_lshr_b32 s{sq}, s2, 1
  s_min_u32 s{sq}, s{sq}, {G-1}
  s_mul_i32 s{sq}, s{sq}, {CH*32}
  s_mul_i32 s{sq+1}, s{sW}, {per_wave}
  s_add_u32 s{sq}, s{sq}, s{sq+1}
  s_add_u32 s{sq}, s{sq}, {base}
  s_add_u32 s{T0}, s{pE}, s{sq}
  s_addc_u32 s{T0+1}, s{pE+1}, 0""")
        for i in range(n):
            a(f"  s_load_dword s{T0+2}, s[{T0}:{T0+1}], {128*i}")
    spf(OPT["spf"], OPT["spf"]*128, 0)
    a(f"""
  s_branch K_PST
K_GW:
  {"s_sleep %d" % OPT["slpb"] if OPT["slpb"] else ""}""")
    spf(OPT["spfb"], OPT["spfb"]*128, OPT["spf"]*1024)
    a(f"""
  s_branch K_PST
K_GEMM:
  ; ---------------- P gemm role: rows of this bucket and the one before ----------------""")
    if OPT["touch"]:
        a(f"""
  s_cmp_lg_u32 s{sW}, 0
  s_cbranch_scc1 K_NOTOUCH
  s_waitcnt vmcnt(0)
  s_mov_b64 exec, {FMASK}
  buffer_load_dword v{DUM}, v{vgn1}, {s(SF,4)}, 0 offen sc1
  s_mov_b64 exec, -1
K_NOTOUCH:""")
    a(f"""
  s_mul_i32 s{sq}, s{sNp}, {XS}
  s_sub_u32 s{sq}, {L_X}, s{sq}
  v_lshrrev_b32 v{t0}, 4, v0
  v_lshl_add_u32 v{t0}, v{t0}, 5, v{vt16}
  v_add_u32 v{t3}, s{sq}, v{t0}
  s_cmp_lt_u32 s{sW}, 4
  s_cselect_b32 s{sq+1}, -1, 0
  v_subrev_u32 v{t1}, {L_X}, v{vxb}
  v_add_u32 v{t1}, s{sq}, v{t1}
  s_waitcnt vmcnt({(2 if OPT['wfirst'] else 6)+NCL})
  ds_write_b128 v{t3}, {v(GX,4)}
  s_waitcnt vmcnt({(1 if OPT['wfirst'] else 5)+NCL})
  ds_write_b128 v{t3}, {v(GX+4,4)} offset:{32*XS}
  s_waitcnt vmcnt({(0 if OPT['wfirst'] else 4)+NCL})
  s_mov_b32 exec_lo, s{sq+1}
  s_mov_b32 exec_hi, s{sq+1}
  ds_write_b128 v{t3}, {v(GX+8,4)} offset:{64*XS}
  s_mov_b64 exec, -1
  v_and_b32 v{t2}, 15, v{vl}
  v_mul_u32_u24 v{t2}, {XS}, v{t2}
  v_lshrrev_b32 v{t3}, 4, v{vl}
  v_lshl_add_u32 v{t2}, v{t3}, 3, v{t2}
  s_lshl_b32 s{sq}, s{sW}, 5
  s_add_u32 s{sq}, s{sq}, {L_GP}
  v_add_u32 v{t2}, s{sq}, v{t2}
  v_add_u32 v{t0}, {L_GP - 16*XS}, v{t0}
  v_subrev_u32 v{t4}, 4096, v{vt16}""")
    srd(a, T0, pWS, f"s{sCnt}", add=WS_P + (0x2800000 if OPT["dbg"] & 2 else 0), addreg=sT)
    a(f"  s_waitcnt vmcnt({NCL}) lgkmcnt(0)\n  s_barrier")
    stamp(a, 1)
    wtr(W1F, vqa)
    XT = [PF, PF+16, EA, EB, PF]
    for nt in range(4):
        for st in range(4):
            a(f"  ds_read_b128 {v(XT[nt]+4*st,4)}, v{t1} offset:{nt*16*XS + st*64}")
    for nt in range(5):
        a(f"  s_waitcnt lgkmcnt({(12, 12, 8, 4, 0)[nt]})")
        for st in range(4):
            c = "0" if st == 0 else v(D0+4*nt, 4)
            a(f"  v_mfma_f32_16x16x32_bf16 {v(D0+4*nt,4)}, {v(W1F+4*st,4)}, {v(XT[nt]+4*st,4)}, {c}")
        if nt == 0:
            for st in range(4):
                a(f"  ds_read_b128 {v(PF+4*st,4)}, v{t1} offset:{4*16*XS + st*64}")
    for nt in range(5):
        d = D0 + 4*nt
        if nt == 4: a("  s_nop 1")
        a(f"""
  v_pk_mul_f32 {v(d,2)}, {v(d,2)}, {s(sK,2)}
  v_pk_mul_f32 {v(d+2,2)}, {v(d+2,2)}, {s(sK,2)}
  v_cvt_pk_bf16_f32 v{W3+2*nt}, v{d}, v{d+1}
  v_cvt_pk_bf16_f32 v{W3+2*nt+1}, v{d+2}, v{d+3}
  ds_write_b64 v{t2}, {v(W3+2*nt,2)} offset:{nt*16*XS}""")
    a(f"  s_waitcnt vmcnt({NA}) lgkmcnt(0)\n  s_barrier")
    stamp(a, 2)
    a(f"""
  s_cmp_lt_u32 s{sW}, 4
  s_cbranch_scc1 K_GW""")
    if OPT["pdl"]: a(f"  s_sleep {OPT['pdl']}")
    for j in range(5):
        a(f"  ds_read_b128 {v(PF+4*j,4)}, v{t0} offset:{j*16*XS}")
    if OPT["zt"]:
        srd(a, T1, pWS, f"s{sCnt}", add=0x1800000, addreg=sT)
        a(f"  s_waitcnt lgkmcnt(0)\n  v_mov_b32 v{t1}, v{t4}")
        for j in range(5):
            a(f"  buffer_store_dwordx4 {v(PF+4*j,4)}, v{t1}, {s(T1,4)}, 0 offen {STF}\n  v_add_u32 v{t1}, 4096, v{t1}")
        a("  s_waitcnt vmcnt(0)")
        stamp(a, 1)
    for j in range(5):
        a(f"  s_waitcnt lgkmcnt({4-j})\n  buffer_store_dwordx4 {v(PF+4*j,4)}, v{t4}, {s(T0,4)}, 0 offen {STF}")
        if j < 4: a(f"  v_add_u32 v{t4}, 4096, v{t4}")
    a(f"""
  v_mov_b32 v{t0}, {L_FLG+12}
  v_mov_b32 v{t7}, s{sTag}
""")
    if OPT["early"]:
        a(f"""
  s_sleep {OPT["early"]}
  v_min_u32 v{t4}, 2, v{vl}
  s_lshl_b32 s{sq}, s2, 7
  v_lshl_add_u32 v{t4}, v{t4}, 2, s{sq}
  buffer_load_dwordx4 {v(REC,4)}, v{vcell}, {s(SC,4)}, 0 offen sc1
  buffer_load_dwordx4 {v(REC+4,4)}, v{vcell}, {s(SC,4)}, 0 offen offset:64 sc1
  {"buffer_load_dword v%d, v%d, %s, 0 offen sc1" % (t5, t4, s(SF,4)) if not OPT["s0m"] else ""}
  s_mov_b32 s{sKind}, 9""")
    a(f"""
  s_mov_b64 exec, 1
  s_waitcnt vmcnt({(2 if OPT["s0m"] else 3) if OPT["early"] else 0})""")
    stamp(a, 3)
    a(f"""
  ds_add_rtn_u32 v{t0}, v{t0}, v{vone}
  s_waitcnt lgkmcnt(0)
  v_readfirstlane_b32 s{sOV+5}, v{t0}
  s_mov_b64 exec, -1
  s_cmp_lg_u32 s{sOV+5}, 3
  s_cbranch_scc1 K_PST
K_FLAG:
  s_mov_b64 exec, {FMASK}
  buffer_store_dword v{t7}, v{vgn1}, {s(SF,4)}, 0 offen {FLF}
  s_mov_b64 exec, -1
K_PST:""")
    def node_gemm(WA, WB=None):
        for nt in range(3):
            xf = XF + 16*(nt & 1)
            if nt == 0:
                for n2 in range(2):
                    for st in range(4):
                        a(f"  ds_read_b128 {v(XF+16*n2+4*st,4)}, v{vxb} offset:{n2*16*XS + st*64}")
            a(f"  s_waitcnt lgkmcnt({4 if nt == 0 else 5 if nt == 1 else 1})")
            q = QD if nt != 1 else SA
            for st in range(4):
                c = "0" if st == 0 else v(q, 4)
                a(f"  v_mfma_f32_16x16x32_bf16 {v(q,4)}, {v(WA+4*st,4)}, {v(xf+4*st,4)}, {c}")
            if WB is not None:
                for st in range(4):
                    c = "0" if st == 0 else v(U+4*nt, 4)
                    a(f"  v_mfma_f32_16x16x32_bf16 {v(U+4*nt,4)}, {v(WB+4*st,4)}, {v(xf+4*st,4)}, {c}")
            if nt == 0:
                for st in range(4):
                    a(f"  ds_read_b128 {v(XF+4*st,4)}, v{vxb} offset:{2*16*XS + st*64}")
            a(f"""
  s_nop 7
  v_pk_mul_f32 {v(q,2)}, {v(q,2)}, {s(sK,2)}
  v_pk_mul_f32 {v(q+2,2)}, {v(q+2,2)}, {s(sK,2)}
  v_cvt_pk_bf16_f32 v{QD+4+2*(nt&1)}, v{q}, v{q+1}
  v_cvt_pk_bf16_f32 v{QD+5+2*(nt&1)}, v{q+2}, v{q+3}""")
            if nt == 2:
                a(f"  s_mov_b32 exec_lo, 0x00ff00ff\n  s_mov_b32 exec_hi, 0x00ff00ff")
            a(f"  ds_write_b64 v{vqw}, {v(QD+4+2*(nt&1),2)} offset:{nt*16*QS}")
            if nt == 2:
                a("  s_mov_b64 exec, -1")
    assert SB == SA + 2
    def poll(lab, off):
        a(f"""
  s_cmp_lg_u32 s{sW}, 1
  s_cbranch_scc1 {lab}_D
  s_mov_b32 s{sq}, 0
  s_mov_b32 s{sq+1}, {off}
  v_min_u32 v{t0}, 2, v{vl}
  s_lshl_b32 s{sBad}, s2, 7
  v_lshl_add_u32 v{t0}, v{t0}, 2, s{sBad}
{lab}:
  buffer_load_dwordx2 {v(DUM,2)}, v{vsrow}, {s(SF,4)}, s{sq+1} offen {PLF}
  buffer_load_dword v{DUM+2}, v{t0}, {s(SF,4)}, 0 offen {PLF}
  s_add_u32 s{sq}, s{sq}, 1
  s_waitcnt vmcnt(0)
  v_cmp_ne_u32 vcc, s{sTag}, v{DUM}
  v_cmp_ne_u32 {s(sBad,2)}, s{sTag}, v{DUM+1}
  s_or_b64 vcc, vcc, {s(sBad,2)}
  v_cmp_ne_u32 {s(sBad,2)}, s{sTag}, v{DUM+2}
  s_or_b64 vcc, vcc, {s(sBad,2)}
  s_cbranch_scc0 {lab}_D
  {"s_sleep %d" % OPT["slp"] if OPT["slp"] else ""}
  s_cmp_lt_u32 s{sq}, 0x8000
  s_cbranch_scc1 {lab}
{lab}_D:""")
    stamp(a, 5)
    nld = 16 if OPT["lo"] else 12
    a(f"""
  s_lshl_b32 s{sTmp}, s{sW}, 12
  s_add_u32 s{sTmp+1}, s{sTmp}, {WF_UT}
  s_add_u32 s{sUB}, s{sTmp}, {WF_UB}
  s_mov_b32 s{sTmp+2}, {WF_3H}
  s_mov_b32 s{sTmp+3}, {WF_3L}
  s_mov_b32 s{sOV}, {0xaaaaaaaa if not OPT["dbg"] & 5 else 0}
  s_cmp_eq_u32 s{sW}, 7
  s_cselect_b32 s{sOV+1}, {0xaaaaa if not OPT["dbg"] & 5 else 0}, s{sOV}
  v_min_u32 v{t4}, 2, v{vl}
  s_lshl_b32 s{sq}, s2, 7
  v_lshl_add_u32 v{t4}, v{t4}, 2, s{sq}
  s_mov_b32 s{sq}, 0
  {"s_sleep %d" % OPT["slp0"] if OPT["slp0"] else ""}
""")
    wl = [f"  buffer_load_dwordx4 {v(W2F+4*st,4)}, v{vgl}, {s(SW,4)}, s{sTmp} offen offset:{st*1024} sc1" for st in range(4)]
    wl += [f"  buffer_load_dwordx4 {v(WUT+4*st,4)}, v{vgl}, {s(SW,4)}, s{sTmp+1} offen offset:{st*1024} sc1" for st in range(4)]
    wl += [f"  buffer_load_dwordx4 {v(W3+4*st,4)}, v{vgl}, {s(SW,4)}, s{sTmp+2} offen offset:{st*1024} sc1" for st in range(4)]
    if OPT["lo"]:
        wl += [f"  buffer_load_dwordx4 {v(W3L+4*st,4)}, v{vgl}, {s(SW,4)}, s{sTmp+3} offen offset:{st*1024} sc1" for st in range(4)]
    a(f"""
  v_lshlrev_b32 v{vgl}, 4, v{vl}
  s_mov_b32 s{sOV+6}, 0
  {"s_cmp_eq_u32 s%d, 9" % sKind + chr(10) + "  s_mov_b32 s%d, 0" % sKind + chr(10) + "  s_cbranch_scc1 K_CPOLLW" if OPT["early"] else ""}
K_CPOLL:
  buffer_load_dwordx4 {v(REC,4)}, v{vcell}, {s(SC,4)}, 0 offen sc1
  {"buffer_load_dwordx4 %s, v%d, %s, 0 offen offset:64 sc1" % (v(REC+4,4), vcell, s(SC,4)) if not OPT["half"] else chr(10).join(["v_mov_b32 v%d, 0" % (REC+4+i) for i in range(3)] + ["v_mov_b32 v%d, s%d" % (REC+7, sTag)])}
  {"buffer_load_dword v%d, v%d, %s, 0 offen sc1" % (t5, t4, s(SF,4)) if not OPT["s0m"] else ""}
  s_add_u32 s{sq}, s{sq}, 1
  s_waitcnt vmcnt(0)
K_CPOLLC:
  v_cmp_ne_u32 vcc, s{sTag}, v{REC+3}
  v_cmp_ne_u32 {s(sBad,2)}, s{sTag}, v{REC+7}
  s_or_b64 {s(sBad,2)}, vcc, {s(sBad,2)}
  {"v_cmp_ne_u32 %s, s%d, v%d" % (s(sOV+2,2), sTag, t5) if not OPT["s0m"] else "s_mov_b64 %s, -1" % s(sOV+2,2)}
  s_and_b64 {s(sBad,2)}, {s(sBad,2)}, {s(sOV,2)}
  {"s_or_b64 %s, %s, %s" % (s(sBad,2), s(sBad,2), s(sOV+2,2)) if OPT["gate"] else ""}
  s_cbranch_scc1 K_CAGAIN""")
    rare.append(f"""
K_CPOLLW:
  s_waitcnt vmcnt(1)
  s_cmp_eq_u32 s{sOV+5}, 3
  s_cbranch_scc1 K_CPOLLC
  s_waitcnt vmcnt(0)
  s_branch K_CPOLLC
K_CAGAIN:
  s_cmp_lg_u64 {s(sOV+2,2)}, 0
  s_cbranch_scc1 K_CA2
  s_cmp_lg_u32 s{sOV+6}, 0
  s_cbranch_scc1 K_CA2
  s_mov_b32 s{sOV+6}, 1
""" + "\n".join(wl) + f"""
K_CA2:
  {"s_sleep %d" % OPT["slp"] if OPT["slp"] else ""}
  s_cmp_lt_u32 s{sq}, 0x8000
  s_cbranch_scc1 K_CPOLL
  s_branch K_CPOLLD""")
    a(f"""
K_CPOLLD:
  {"v_mov_b32 v%d, v%d" % (DK+2, t4) + chr(10) + "  buffer_load_dword v%d, v%d, %s, 0 offen sc1" % (DK+1, t4, s(SF,4)) if OPT["s0m"] else ""}
  s_mov_b32 exec_lo, 0xaaaaaaaa
  s_mov_b32 exec_hi, 0xaaaaaaaa
  v_mov_b32 v{REC+3}, 0
  v_mov_b32 v{REC+7}, 0
  s_mov_b64 exec, -1
  {"v_mov_b32 v%d, 0" % (REC+7) if OPT["half"] else ""}""")
    stamp(a, 6)
    NR = 8
    a(f"""
K_PHASE1:
  v_cmp_le_u32 vcc, 0xfffc0000, v{REC+NR-2}
  s_cbranch_vccnz K_MARK
K_NOMARK:""")
    rare.append(f"""
K_MARK:
  s_and_saveexec_b64 {s(sEx,2)}, vcc
  v_lshrrev_b32 v{t0}, 2, v0                 ; producer
  v_lshrrev_b32 v{t1}, 5, v{t0}
  v_lshlrev_b32 v{t1}, 2, v{t1}
  v_lshlrev_b32 v{t0}, v{t0}, v{vone}
  ds_or_b32 v{t1}, v{t0} offset:{L_FLG+32}
  v_mov_b32 v{REC+NR-2}, 0
  s_mov_b64 exec, {s(sEx,2)}
  s_branch K_NOMARK""")
    for k in range(NR):
        if k == 4:
            a(f"""
  v_or3_b32 v{t3}, v{REC+k}, v{REC+k+1}, v{REC+k+2}
  v_or_b32 v{t3}, v{t3}, v{REC+k+3}
  v_cmp_ne_u32 vcc, 0, v{t3}
  s_cbranch_vccz K_P1E""")
        a(f"""
  v_lshlrev_b32 v{NOD+k}, 2, v{REC+k}
  v_and_b32 v{NOD+k}, 0xfc, v{NOD+k}
  v_cmpx_ne_u32 vcc, 0, v{REC+k}
  ds_add_rtn_u32 v{RNK+k}, v{NOD+k}, v{vone} offset:{L_CNT}
  s_mov_b64 exec, -1""")
    a(f"""
K_P1E:
  s_cmp_lg_u32 s{sOV+6}, 0
  s_cbranch_scc1 K_NOWL
  s_cmp_lg_u64 {s(sOV+2,2)}, 0
  s_cbranch_scc1 K_NOWL
  s_mov_b32 s{sOV+6}, 1""")
    if OPT["stamp"] and OPT["s0st"]: a("  s_memrealtime s[86:87]")
    for x in wl: a(x)
    a(f"""
K_NOWL:
  v_lshlrev_b32 v{t0}, 2, v{vl}
  v_subrev_u32 v{t4}, s{sStart}, v{vl}
  v_and_b32 v{t4}, 63, v{t4}
  s_waitcnt lgkmcnt(0)""")
    fstamp(a, 1)
    a(f"""
  s_barrier""")
    fstamp(a, 2)
    a(f"""
  ds_read_b32 v{t1}, v{t0} offset:{L_CNT}
  s_waitcnt lgkmcnt(0)
  v_add_u32 v{t1}, 3, v{t1}
  v_bfe_u32 v{t5}, v{t1}, 2, 1               ; left-over quad
  v_lshrrev_b32 v{t6}, 3, v{t1}
  v_lshl_or_b32 v{t1}, v{t5}, 16, v{t6}
  v_mov_b32 v{t2}, v{t1}
  s_nop 1
  v_add_u32_dpp v{t2}, v{t2}, v{t2} row_shr:1 row_mask:0xf bank_mask:0xf
  s_nop 1
  v_add_u32_dpp v{t2}, v{t2}, v{t2} row_shr:2 row_mask:0xf bank_mask:0xf
  s_nop 1
  v_add_u32_dpp v{t2}, v{t2}, v{t2} row_shr:4 row_mask:0xf bank_mask:0xf
  s_nop 1
  v_add_u32_dpp v{t2}, v{t2}, v{t2} row_shr:8 row_mask:0xf bank_mask:0xf
  s_nop 1
  v_add_u32_dpp v{t2}, v{t2}, v{t2} row_bcast:15 row_mask:0xa bank_mask:0xf
  s_nop 1
  v_add_u32_dpp v{t2}, v{t2}, v{t2} row_bcast:31 row_mask:0xc bank_mask:0xf
  s_nop 1
  v_readlane_b32 s{sT}, v{t2}, 63
  v_sub_u32 v{t1}, v{t2}, v{t1}
  s_lshr_b32 s{sq+1}, s{sT}, 16
  s_and_b32 s{sCO}, s{sT}, 0xffff
  s_lshl_b32 s{sq}, s{sCO}, 1                ; quads in the groups of eight
  s_lshr_b32 s{sCO}, s{sCO}, 2
  s_add_u32 s{sT}, s{sq}, s{sq+1}
  s_add_u32 s{sT}, s{sT}, 7
  s_lshr_b32 s{sT}, s{sT}, 3
  v_lshrrev_b32 v{t2}, 16, v{t1}
  v_add_u32 v{t2}, s{sq}, v{t2}              ; quad slot of the left-over quad
  v_and_b32 v{t1}, 0xffff, v{t1}
  v_lshl_or_b32 v{t0}, v{t6}, 16, v{t1}
  v_lshlrev_b32 v{t0}, 3, v{t0}              ; 8*start8 | 8*n8 << 16
  v_lshlrev_b32 v{t7}, 1, v{t6}
  v_sub_u32 v{t7}, v{t2}, v{t7}
  v_lshlrev_b32 v{t7}, 2, v{t7}              ; position base of the left-over quad
  s_cmp_gt_u32 s{sT}, {CAPB}
  s_cbranch_scc1 K_SPLIT""")
    fstamp(a, 3)
    def bp(ks):
        for k in ks:
            a(f"  ds_bpermute_b32 v{PF+16+k}, v{NOD+k}, v{t7}")
            a(f"  ds_bpermute_b32 v{NOD+k}, v{NOD+k}, v{t0}")
    def ent(ks):
        for k in ks:
            e = PF + 2*k
            a(f"""
  v_lshrrev_b32 v{e}, 10, v{REC+k}
  v_and_b32 v{e}, {hex(0xffffff00 if not OPT['hot'] else 0x1f00)}, v{e}
  v_bfe_u32 v{e+1}, v{REC+k}, 6, 12
  v_lshl_add_u32 v{e+1}, v{e+1}, 5, v{vebase}""")
    def put(ks):
        for k in ks:
            a(f"  v_cmp_lt_u32_sdwa {s(8+2*(k&3),2)}, v{RNK+k}, v{NOD+k} src0_sel:DWORD src1_sel:WORD_1")
        for k in ks:
            a(f"  v_and_b32 v{NOD+k}, 0xffff, v{NOD+k}")
        for k in ks:
            a(f"  v_cndmask_b32 v{NOD+k}, v{PF+16+k}, v{NOD+k}, {s(8+2*(k&3),2)}")
        for k in ks:
            a(f"""
  v_add_lshl_u32 v{NOD+k}, v{NOD+k}, v{RNK+k}, 3
  v_cmpx_ne_u32 vcc, 0, v{REC+k}
  ds_write_b64 v{NOD+k}, {v(PF+2*k,2)}
  s_mov_b64 exec, -1""")
    bp(range(4))
    a(f"""
  v_or3_b32 v{t3}, v{REC+4}, v{REC+5}, v{REC+6}
  v_or_b32 v{t3}, v{t3}, v{REC+7}
  v_cmp_ne_u32 {s(sK2,2)}, 0, v{t3}
  s_cmp_eq_u64 {s(sK2,2)}, 0
  s_cbranch_scc1 K_P2A""")
    bp(range(4, 8))
    ent(range(4, 8))
    a("K_P2A:")
    if OPT["s0m"]:
        a(f"""
  s_cmp_lg_u32 s{sOV+6}, 0
  s_cbranch_scc1 K_S0A
  s_waitcnt vmcnt(0)
  v_cmp_ne_u32 vcc, s{sTag}, v{DK+1}
  s_cbranch_vccnz K_S0AX
  s_mov_b32 s{sOV+6}, 1""")
        for x in wl: a(x)
        a("K_S0A:")
        rare.append(f"K_S0AX:\n  buffer_load_dword v{DK+1}, v{DK+2}, {s(SF,4)}, 0 offen sc1\n  s_branch K_S0A")
    ent(range(4))
    a(f"""
  v_lshlrev_b32 v{t2}, 2, v{t2}
  v_add_lshl_u32 v{t3}, v{t1}, v{t6}, 3
  v_lshl_add_u32 v{t1}, v{t1}, 1, s{sW}
  v_lshlrev_b32 v{t1}, 2, v{t1}
  s_waitcnt lgkmcnt(0)""")
    put(range(4))
    a(f"  s_cmp_eq_u64 {s(sK2,2)}, 0\n  s_cbranch_scc1 K_P2E")
    put(range(4, 8))
    a("K_P2E:")
    fstamp(a, 5)
    a(f"""
  v_cmpx_ne_u32 vcc, 0, v{t5}
  ds_write_b32 v{t2}, v{t4} offset:{L_GN}
  s_mov_b64 exec, -1
K_GNL:
  v_cmpx_lt_u32 vcc, v{t1}, v{t3}
  ds_write_b32 v{t1}, v{t4} offset:{L_GN}
  v_add_u32 v{t1}, 32, v{t1}
  v_cmpx_lt_u32 vcc, v{t1}, v{t3}
  ds_write_b32 v{t1}, v{t4} offset:{L_GN}
  v_add_u32 v{t1}, 32, v{t1}
  v_cmpx_lt_u32 vcc, v{t1}, v{t3}
  s_cbranch_execnz K_GNL
  s_mov_b64 exec, -1
  s_add_u32 s{sCnt}, s{sT}, 7
  s_sub_u32 s{sCnt}, s{sCnt}, s{sW}
  s_lshr_b32 s{sCnt}, s{sCnt}, 3
  s_add_u32 s{sCO}, s{sCO}, 7
  s_sub_u32 s{sCO}, s{sCO}, s{sW}
  s_lshr_b32 s{sCO}, s{sCO}, 3
  {("s_mov_b32 s%d, 40" % sCnt + chr(10) + "  s_movk_i32 s%d, 320" % sT + chr(10) + "  s_mov_b32 s%d, 40" % sCO) if OPT["bench"] else ""}
""")
    stamp(a, 4)
    if OPT["s0m"]:
        a(f"""
  s_cmp_lg_u32 s{sOV+6}, 0
  s_cbranch_scc1 K_S0B
  s_waitcnt vmcnt(0)
  v_cmp_ne_u32 vcc, s{sTag}, v{DK+1}
  s_cbranch_vccnz K_S0BX
  s_mov_b32 s{sOV+6}, 1""")
        for x in wl: a(x)
        a("K_S0B:")
        rare.append(f"K_S0BX:\n  s_nop 0\n  s_branch K_S0B")
    a(f"""
  s_cmp_eq_u32 s{sFirst}, 0
  s_cbranch_scc1 K_POLL2_D""")
    poll("K_POLL2", FHALF)
    a("  s_waitcnt lgkmcnt(0)\n  s_barrier")
    stamp(a, 7)
    dsc = [" sc1", " sc0 sc1", " sc1 nt"][OPT["pfl"]] if OPT["dsc"] else ""
    def dma_issue():
        L = []
        for j in range(8):
            d = DO + (j & 1)
            L.append([f"  s_add_u32 m0, s{sStg}, {j*1040}",
                      f"  v_add_u32_dpp v{d}, v{ENT}, v{vchunk} row_newbcast:{2*j} row_mask:0xf bank_mask:0xf",
                      f"  buffer_load_dwordx4 v{d}, {s(SP,4)}, 0 offen{dsc} lds" if not OPT["nodma"] else "  s_nop 0"])
        L.append([f"  s_add_u32 m0, s{sStg}, 8320",
                  f"  v_add_u32 v{DO}, v{ENT+1}, v{vechunk}",
                  f"  buffer_load_dwordx4 v{DO}, {s(SE,4)}, 0 offen {['', 'nt', 'sc1', 'sc0', 'sc0 sc1', 'sc1 nt'][OPT['efl']]} lds" if not (OPT["nodma"] or OPT["noe"]) else "  s_nop 0"])
        if OPT["efirst"]: L = L[8:] + L[:8]
        return L
    ndma = 0 if OPT["nodma"] else 8 if OPT["noe"] else 9
    def frag_reads():
        if OPT["smf"]:
            L = [f"  ds_read_b64_tr_b16 {v(PF+8*t+2*q,2)}, v{vAT+t} offset:{1040*q}" for t in range(4) for q in range(4)]
            L.insert(4, f"  ds_read_b128 {v(EF,4)}, v{vEF}")
            return L
        L = []
        for st in range(8):
            L.append(f"  ds_read_b128 {v(PF+4*st,4)}, v{vAlo if st < 4 else vAhi} offset:{32*(st&3)}")
        L.insert(2, f"  ds_read_b128 {v(EF,4)}, v{vEF}")
        return L
    def bq_reads():
        return [f"  ds_read_b64_tr_b16 {v(BQ+nq*t,2)}, v{vqa} offset:{64*t}" for t in range(4)]
    def chain(t, D):
        L = [f"  v_mfma_f32_32x32x16_bf16 {v(D,16)}, {v(EF,4)}, {v(W3+4*t,4)}, 0"]
        if OPT["lo"]:
            L.append(f"  v_mfma_f32_32x32x16_bf16 {v(D,16)}, {v(EF,4)}, {v(W3L+4*t,4)}, {v(D,16)}")
        if OPT["smf"]:
            L.append(f"  v_smfmac_f32_32x32x32_bf16 {v(D,16)}, {v(I0,4)}, {v(PF+8*t,8)}, v{I1}")
        else:
            L.append(f"  v_mfma_f32_32x32x16_bf16 {v(D,16)}, {v(PF+8*t,4)}, {v(I0,4)}, {v(D,16)}")
            L.append(f"  v_mfma_f32_32x32x16_bf16 {v(D,16)}, {v(PF+8*t+4,4)}, {v(I1,4)}, {v(D,16)}")
        if OPT["k8"]:
            L.append(f"  v_mfma_f32_32x32x8bf16_1k {v(D,16)}, {v(AQ,2)}, {v(BQ+2*t,2)}, {v(D,16)}")
        else:
            L.append(f"  v_mfma_f32_32x32x16_bf16 {v(D,16)}, {v(AQ,4)}, {v(BQ+4*t,4)}, {v(D,16)}")
        return L

    if OPT["stag"]:
        a(f"  s_cmp_lt_u32 s{sW}, 4\n  s_cbranch_scc1 K_STG\n  s_sleep {OPT['stag']}\nK_STG:")
    if OPT["idle"]: a(f"  s_sleep {OPT['idle']}")
    a(f"  ds_read_b64 {v(ENT,2)}, v{vent}")
    if OPT["ord"]:
        a(f"  s_lshr_b32 s{sq}, s{sW}, 2\n  s_and_b32 s{sK2}, s{sq}, s{sFirst}\n  s_cbranch_scc1 K_DLATER")
    a("  s_waitcnt lgkmcnt(0)")
    for x in dma_issue(): a("\n".join(x))
    a(f"""
  ds_read_b64 {v(ENT,2)}, v{vent} offset:2048
  s_cmp_eq_u32 s{sFirst}, 0
  s_cbranch_scc1 K_NOGEMM0
  s_cmp_eq_u32 s{sOV+6}, 0
  s_cbranch_scc1 K_WLATE
  s_waitcnt vmcnt({ndma}) lgkmcnt(0)
K_WOK:
  s_mov_b32 s{sFirst}, 0""")
    rare.append(f"K_WLATE:\n  s_mov_b32 s{sOV+6}, 1\n" + "\n".join(wl) + "\n  s_waitcnt vmcnt(0) lgkmcnt(0)\n  s_branch K_WOK")
    rare.append(f"K_DLATER:\n  s_cmp_eq_u32 s{sOV+6}, 0\n  s_cbranch_scc1 K_WLATE\n  s_waitcnt vmcnt(0) lgkmcnt(0)\n  s_branch K_WOK")
    node_gemm(W2F, WUT)
    if OPT["ord"]:
        a(f"  s_cmp_eq_u32 s{sK2}, 0\n  s_cbranch_scc1 K_DDONE")
        for x in dma_issue(): a("\n".join(x))
        a(f"  ds_read_b64 {v(ENT,2)}, v{vent} offset:2048\nK_DDONE:")
    for st in range(4):
        a(f"  buffer_load_dwordx4 {v(WUB+4*st,4)}, v{vgl}, {s(SW,4)}, s{sUB} offen offset:{st*1024} sc1")
    if OPT["ocl"]:
        a(f"  v_add_u32 v{t0}, 8192, v{vt16}\n  buffer_store_dwordx4 {v(I0,4)}, v{vt16}, {s(SO,4)}, 0 offen {['','','sc1','nt'][OPT['ocl']]}\n  buffer_store_dwordx4 {v(I0,4)}, v{t0}, {s(SO,4)}, 0 offen {['','','sc1','nt'][OPT['ocl']]}")
    def pf5():
        a(f"  s_mul_i32 s{sq}, s2, 40000\n  v_add_u32 v{t0}, s{sq}, v{vt16}")
        for j in range(5):
            a(f"  buffer_load_dwordx4 {v(DUM,4)}, v{t0}, {s(SE,4)}, 0 offen")
            if j < 4: a(f"  v_add_u32 v{t0}, 8192, v{t0}")
    if OPT["pf2"] == 1: pf5()
    a(f"""
  s_or_b32 s{sq}, s2, s{sW}
  s_cmp_lg_u32 s{sq}, 0
  s_cbranch_scc1 K_NONONCE
  s_mov_b64 exec, 1
  v_mov_b32 v{t0}, {FNON}
  v_mov_b32 v{t1}, s{sTag}
  buffer_store_dword v{t1}, v{t0}, {s(SF,4)}, 0 offen
  s_mov_b64 exec, -1
  s_waitcnt vmcnt(0)
K_NONONCE:
  s_waitcnt lgkmcnt(0)
  s_barrier
K_NOGEMM:
  ds_read_b32 v{vgn1}, v{vgq}
  ds_read_b32 v{vsrow}, v{vrow}
  ds_read_b128 {v(GN,4)}, v{vga}
  s_waitcnt vmcnt({6 if OPT["ocl"] else 4})""")
    stamp(a, 8, 96)
    for x in frag_reads(): a(x)
    a(f"""
  s_waitcnt lgkmcnt({9 if not OPT['smf'] else 15})
  v_mad_u32_u24 v{vqa}, v{vgn1}, s{sQS}, v{vqlane}
  v_lshrrev_b64 {v(AQ,2)}, v{vsrow}, {v(PAT,2)}""")
    for x in bq_reads(): a(x)
    a("  s_waitcnt lgkmcnt(0)")
    for x in dma_issue(): a("\n".join(x))
    if OPT["pf2"] == 2: pf5()
    if OPT["idle2"]: a(f"  s_sleep {OPT['idle2']}")
    for x in chain(0, D0): a(x)
    if OPT["prio"]:
        a(f"  s_cmp_lt_u32 s{sW}, 4\n  s_cbranch_scc1 K_PR\n  s_setprio 1\nK_PR:")
    a(f"""
  s_nop 7
  s_nop 3
  s_cmp_eq_u32 s{sCnt}, 0
  s_cbranch_scc1 K_LOOPEND
  s_cmp_lg_u32 s{sMode}, 0
  s_cbranch_scc1 K_SAFE
  {"s_branch K_QUAD" if not OPT["octo"] else ""}
  s_sub_u32 s{sCnt}, s{sCnt}, s{sCO}
  s_cmp_eq_u32 s{sCO}, 0
  s_cbranch_scc1 K_QUAD""")

    def p(r): return v(r, 2)
    def octet_fast(d, e, t, r, sres):
        ex = [f"  v_exp_f32 v{e+i}, v{d+i}" for i in range(8)]
        L = [f"  v_pk_add_f32 {p(t)}, {p(e)}, 1.0 op_sel_hi:[1,0]",
             f"  v_pk_add_f32 {p(t+2)}, {p(e+4)}, 1.0 op_sel_hi:[1,0]",
             f"  v_pk_fma_f32 {p(t+4)}, {p(d)}, {p(e+2)}, {p(d)}",
             f"  v_pk_fma_f32 {p(t+6)}, {p(d+4)}, {p(e+6)}, {p(d+4)}",
             f"  v_pk_fma_f32 {p(e)}, {p(t)}, {p(e+2)}, {p(t)}",
             f"  v_pk_fma_f32 {p(e+4)}, {p(t+2)}, {p(e+6)}, {p(t+2)}",
             f"  v_pk_fma_f32 {p(t+4)}, {p(d+2)}, {p(t)}, {p(t+4)}",
             f"  v_pk_fma_f32 {p(t+6)}, {p(d+6)}, {p(t+2)}, {p(t+6)}",
             f"  v_pk_mul_f32 {p(t)}, {p(e)}, {p(e+4)}",
             f"  v_pk_mul_f32 {p(t+4)}, {p(t+4)}, {p(e+4)}",
             f"  v_rcp_f32 v{r}, v{t}",
             f"  v_rcp_f32 v{r+1}, v{t+1}",
             f"  v_pk_fma_f32 {p(t+4)}, {p(t+6)}, {p(e)}, {p(t+4)}",
             f"  v_pk_mul_f32 {p(sres)}, {p(t+4)}, {p(r)}"]
        return ex, L
    def octet_safe(d, e, t, r, sres):
        ex = [f"  v_exp_f32 v{e+i}, v{d+i}" for i in range(8)]
        L = [f"  v_pk_add_f32 {p(e+2*i)}, {p(e+2*i)}, 1.0 op_sel_hi:[1,0]" for i in range(4)]
        L += [f"  v_rcp_f32 v{t+i}, v{e+i}" for i in range(8)]
        L += [f"  v_pk_mul_f32 {p(sres)}, {p(d)}, {p(t)}"]
        L += [f"  v_pk_fma_f32 {p(sres)}, {p(d+2*i)}, {p(t+2*i)}, {p(sres)}" for i in range(1, 4)]
        return ex, L
    def zipl(x, y):
        o = []
        for i in range(max(len(x), len(y))):
            if i < len(x): o.append(x[i])
            if i < len(y): o.append(y[i])
        return o
    def adds(t, kind):
        if OPT["noadd"]: return [f"  ds_read_b32 v{DUM}, v{vgq}"] * (2 if kind == "octo" else 4)
        if kind == "octo": return [f"  ds_add_f64 v{AD+2*xy}, {v(CV+2*xy,2)} offset:{256*t}" for xy in range(2)]
        return [f"  ds_add_f64 v{AD+2*xy+o}, {v(CV+2*(2*o+xy),2)} offset:{256*t}" for o in range(2) for xy in range(2)]
    def block_body(kind, u, nun):
        oc = octet_safe if kind == "safe" else octet_fast
        nadd = 2 if kind == "octo" else 4
        B = []
        for t in range(4):
            D = D0 if t % 2 == 0 else D1
            Dn = D1 if t % 2 == 0 else D0
            exa, La = oc(D, EA, TA, RA, SA)
            exb, Lb = oc(D+8, EB, TB, RB, SB)
            ex = exa + exb
            ch = chain((t+1) % 4, Dn)
            late = []
            if kind == "octo" and OPT["seq"]:
                dk = DK + 2*(t & 1)
                E_ = lambda i: p(EA+2*i) if i < 4 else p(EB+2*(i-4))
                def run(i0, n, Dr, Nr, Tr, Dlast):
                    L = [f"  v_pk_add_f32 {p(Dr)}, {E_(i0)}, 1.0 op_sel_hi:[1,0]"]
                    cur = p(D+2*i0)
                    for i in range(i0+1, i0+n):
                        L.append(f"  v_pk_fma_f32 {p(Tr)}, {cur}, {E_(i)}, {cur}")
                        nd = Dlast if i == i0+n-1 else (Dr ^ 2)
                        L.append(f"  v_pk_fma_f32 {p(nd)}, {p(Dr)}, {E_(i)}, {p(Dr)}")
                        L.append(f"  v_pk_fma_f32 {p(Nr)}, {p(D+2*i)}, {p(Dr)}, {p(Tr)}")
                        Dr = nd; cur = p(Nr)
                    return L
                assert TA % 4 == 0 and TB % 4 == 0
                if OPT["seq"] == 1:
                    pk = run(0, 8, TA, TA+4, TA+6, dk)
                    pk = pk[:-1] + [f"  v_rcp_f32 v{RA}, v{dk}", f"  v_rcp_f32 v{RA+1}, v{dk+1}"] + pk[-1:]
                    if t & 1: pk.append(f"  v_pk_fma_f32 {p(MAC)}, {p(DK)}, {p(DK+2)}, {p(MAC)}")
                    else: pk.append("  s_nop 0")
                    pk.append(f"  v_pk_mul_f32 {p(SA)}, {p(TA+4)}, {p(RA)}")
                else:
                    pk = zipl(run(0, 4, TA, TA+4, TA+6, RB), run(4, 4, TB, TB+4, TB+6, SB))
                    pk = pk[:-2] + [f"  v_pk_mul_f32 {p(dk)}, {p(RB)}, {p(SB)}"] + pk[-2:] + \
                         [f"  v_rcp_f32 v{RA}, v{dk}", f"  v_rcp_f32 v{RA+1}, v{dk+1}",
                          f"  v_pk_mul_f32 {p(TA+4)}, {p(TA+4)}, {p(SB)}"]
                    if t & 1: pk.append(f"  v_pk_fma_f32 {p(MAC)}, {p(DK)}, {p(DK+2)}, {p(MAC)}")
                    pk += [f"  v_pk_fma_f32 {p(TA+4)}, {p(TB+4)}, {p(RB)}, {p(TA+4)}",
                           f"  v_pk_mul_f32 {p(SA)}, {p(TA+4)}, {p(RA)}"]
                fin = [f"  v_cvt_f64_f32 {v(CV+2*xy,2)}, v{SA+xy}" for xy in range(2)]
                adr = (0, 2)
            elif kind == "octo":
                keep = lambda L: [x for x in L[:-1] if "v_rcp" not in x]
                dk = DK + 2*(t & 1)
                pk = zipl(keep(La), keep(Lb))
                pk = pk[:-4] + [f"  v_pk_mul_f32 {p(dk)}, {p(TA)}, {p(TB)}"] + pk[-4:-2] + \
                     [f"  v_rcp_f32 v{RA}, v{dk}", f"  v_rcp_f32 v{RA+1}, v{dk+1}"] + pk[-2:] + \
                     [f"  v_pk_mul_f32 {p(TA+4)}, {p(TA+4)}, {p(TB)}"]
                if t & 1: pk.append(f"  v_pk_fma_f32 {p(MAC)}, {p(DK)}, {p(DK+2)}, {p(MAC)}")
                pk += [f"  v_pk_fma_f32 {p(TA+4)}, {p(TB+4)}, {p(TA)}, {p(TA+4)}",
                       f"  v_pk_mul_f32 {p(SA)}, {p(TA+4)}, {p(RA)}"]
                fin = [f"  v_cvt_f64_f32 {v(CV+2*xy,2)}, v{SA+xy}" for xy in range(2)]
                adr = (0, 2)
            else:
                pk = zipl(La, Lb)
                if kind == "quad":
                    idx = max(i for i, x in enumerate(pk) if x.startswith(f"  v_pk_mul_f32 {p(TB)}, {p(EB)}"))
                    pk.insert(idx+1, f"  v_pk_fma_f32 {p(MAC)}, {p(TA)}, {p(TB)}, {p(MAC)}")
                fin = [f"  v_cvt_f64_f32 {v(CV+2*(2*o+xy),2)}, v{S+xy}" for o, S in ((0, SA), (1, SB)) for xy in range(2)]
                adr = range(4)
            fin += adds(t, kind)
            if t == 0:
                pk = pk[:4] + [f"  v_mad_u32_u24 v{AD+i}, v{GN+i}, s{sAS}, v{vacl}" for i in adr] + pk[4:]
            if t == 1:
                pk = pk[:8] + [f"  ds_read_b64 {v(ENT,2)}, v{vent} offset:{4096+2048*u}",
                      f"  ds_read_b32 v{vgn1}, v{vgq} offset:{256+256*u}",
                      f"  ds_read_b32 v{vsrow}, v{vrow} offset:{2048+2048*u}",
                      f"  ds_read_b128 {v(GN,4)}, v{vga} offset:{256+256*u}"] + pk[8:]
            if t == 3:
                B.append(f"  s_waitcnt lgkmcnt({nadd})")
            dma = dma_issue() if t == 3 and OPT["dmapos"] != 2 else []
            per = 16 // len(ch); e = 0
            for i, m in enumerate(ch):
                B.append(m)
                n = per if i < len(ch)-1 else 16 - e
                B += ex[e:e+2]
                if late: B.append(late.pop(0))
                B += ex[e+2:e+n]; e += n
                if OPT["dmapos"] == 0:
                    for _ in range(2):
                        if dma: B += dma.pop(0)
            if t == 2:
                mid = [f"  s_waitcnt vmcnt(0) lgkmcnt({nadd})",
                       f"  v_mad_u32_u24 v{vqa}, v{vgn1}, s{sQS}, v{vqlane}"]
                rd = frag_reads() + bq_reads()
                aq = [f"  v_lshrrev_b64 {v(AQ,2)}, v{vsrow}, {v(PAT,2)}"]
                if OPT["dmapos"] == 2:
                    rest = pk[OPT["wpos"]:]
                    B += pk[:OPT["wpos"]] + mid + rd + aq + rest[:OPT["dgap"]] + ["  s_waitcnt lgkmcnt(4)"] + [y for x in dma_issue() for y in x] + rest[OPT["dgap"]:]
                elif OPT["rdgap"] == 0: B += pk[:OPT["wpos"]] + mid + rd + aq + pk[OPT["wpos"]:]
                else:
                    q = []
                    for i, x in enumerate(aq + pk):
                        if rd and i % OPT["rdgap"] == 0: q.append(rd.pop(0))
                        q.append(x)
                    B += mid + q + rd
            elif t == 3:
                inc = []
                if u == nun - 1 and OPT["bench"]:
                    inc = [f"  v_add_u32 v{DUM+i}, {2048*nun}, v{vent}" for i in range(4)]
                elif u == nun - 1:
                    inc = incs(nun)
                pk = pk + inc
                if OPT["dmapos"] == 1:
                    q = []
                    for i, x in enumerate(pk):
                        if dma and i % 3 == 0: q += dma.pop(0)
                        q.append(x)
                    pk = q
                for x in dma: B += x
                B += pk
            else:
                B += pk
            B += fin
        return B
    def incs(n):
        return [f"  v_add_u32 v{vent}, {2048*n}, v{vent}", f"  v_add_u32 v{vrow}, {2048*n}, v{vrow}",
                f"  v_add_u32 v{vgq}, {256*n}, v{vgq}", f"  v_add_u32 v{vga}, {256*n}, v{vga}"]
    def loop(kind):
        lab = {"safe": "K_SAFE", "quad": "K_QUAD", "octo": "K_FAST"}[kind]
        nun = OPT["unroll"] if kind == "octo" else 1
        cnt = sCO if kind == "octo" else sCnt
        L = []
        for u in range(nun):
            L += block_body(kind, u, nun)
            L.append(f"  s_sub_u32 s{cnt}, s{cnt}, 1")
            L.append(f"  s_cmp_lg_u32 s{cnt}, 0")
            L.append(f"  s_cbranch_scc1 {lab}" if u == nun - 1 else f"  s_cbranch_scc0 K_OX{u}")
        ab = OPT["abl"]
        if ab & 1: L = [x for x in L if not ("v_mfma" in x and (f", {v(I0,4)}," in x or f", {v(I1,4)}," in x))]
        if ab & 2: L = [x for x in L if "v_mfma_f32_32x32x8" not in x and "tr_b16" not in x]
        if ab & 4: L = [x.replace("v_exp_f32", "v_mov_b32") for x in L]
        if ab & 8: L = [x for x in L if "v_pk_" not in x]
        if ab & 16: L = [x for x in L if "v_mfma" not in x]
        if ab & 32: L = [x for x in L if "ds_read_b128" not in x]
        if ab & 64: L = [x for x in L if "v_exp" not in x]
        if ab & 128:
            M = []
            for x in L:
                if "v_mfma" in x and f", {v(I1,4)}," in x: continue
                if "v_mfma" in x and f", {v(I0,4)}," in x:
                    m = re.match(r"\s*v_mfma_f32_32x32x16_bf16 (v\[\d+:\d+\]), v\[(\d+):", x)
                    M.append(f"  v_smfmac_f32_32x32x32_bf16 {m.group(1)}, {v(I0,4)}, {v(int(m.group(2)),8)}, v{vone}"); continue
                m = re.match(r"\s*ds_read_b128 v\[(\d+):\d+\], v(\d+) offset:(\d+)", x)
                if m and PF <= int(m.group(1)) < PF + 32:
                    r0 = int(m.group(1))
                    M.append(f"  ds_read_b64_tr_b16 {v(r0,2)}, v{vqa} offset:{m.group(3)}")
                    M.append(f"  ds_read_b64_tr_b16 {v(r0+2,2)}, v{vqa} offset:{int(m.group(3))+128}"); continue
                M.append(x)
            L = M
        if ab & 256:
            M = []
            for x in L:
                if "v_mfma" in x and (f", {v(I1,4)}," in x or f", {v(I0,4)}," in x): continue
                if "v_mfma_f32_32x32x16" in x and x.rstrip().endswith(", 0"): x = x.rstrip()[:-1] + v(PF, 16)
                m = re.match(r"\s*ds_read_b128 v\[(\d+):\d+\], v(\d+) offset:(\d+)", x)
                if m and PF <= int(m.group(1)) < PF + 32:
                    for q in range(8): M.append(f"  ds_read_u16_d16_hi v{PF+(int(m.group(1))+q)%32}, v{vacl} offset:{64*q}")
                    continue
                M.append(x)
            L = M
        if OPT["align"]: L = align8(L)
        a(f".p2align 6\n{lab}:")
        for x in L: a(x)
    loop("octo")
    a(f"""
K_OXE:
  s_cmp_lg_u32 s{sCnt}, 0
  s_cbranch_scc1 K_QUAD""")
    a(f"""
K_LOOPEND:""")
    a(f"""
  s_waitcnt vmcnt(0) lgkmcnt(0)
  s_barrier""")
    stamp(a, 9, 98)
    a(f"""
  s_cmp_lg_u32 s{sKind}, 0
  s_cbranch_scc1 K_NEXT
K_CELLSDONE:
  v_mov_b32 v{t0}, {L_FLG+32}
  ds_read_b128 {v(CV,4)}, v{t0}
K_CONV:
  s_mul_i32 s{sTmp}, s{sW}, {AS}
  s_add_u32 s{sTmp}, s{sTmp}, {L_ACC}
  v_lshlrev_b32 v{t1}, 4, v{vl}
  v_add_u32 v{t1}, s{sTmp}, v{t1}""")
    for k in range(5):
        a(f"  ds_read_b128 {v(D0+4*k,4)}, v{t1} offset:{k*8*AS}")
    a(f"""
  s_mul_i32 s{sTmp}, s{sW}, {XS}
  s_add_u32 s{sTmp}, s{sTmp}, {L_X}
  v_lshlrev_b32 v{t2}, 2, v{vl}
  v_add_u32 v{t2}, s{sTmp}, v{t2}
  s_cmp_ge_u32 s{sKind}, 3
  s_cbranch_scc1 K_CONV2
  s_waitcnt lgkmcnt(5)
  v_or3_b32 v{t0}, v{CV}, v{CV+1}, v{CV+2}
  v_or_b32 v{t0}, v{t0}, v{CV+3}
  v_cmp_ne_u32 vcc, 0, v{t0}
  s_cbranch_vccnz K_STARTOV
K_CONV2:
  s_mov_b32 s{sTmp}, 0x71800000              ; 2^100
  v_cmp_nle_f32 {s(sBad,2)}, v{MAC}, s{sTmp}
  v_cmp_nle_f32 vcc, v{MAC+1}, s{sTmp}
  s_or_b64 {s(sBad,2)}, {s(sBad,2)}, vcc
  s_movk_i32 s{sTmp}, 0x207""")
    for k in range(5):
        a(f"""
  s_waitcnt lgkmcnt(4)
  v_cvt_f32_f64 v{EA+2*k}, {v(D0+4*k,2)}
  v_cvt_f32_f64 v{EA+2*k+1}, {v(D0+4*k+2,2)}
  v_cvt_pk_bf16_f32 v{EB+k}, v{EA+2*k}, v{EA+2*k+1}
  ds_write_b32 v{t2}, v{EB+k} offset:{k*8*XS}""")
    a(f"  v_pk_mul_f32 {p(RA)}, {p(EA)}, 0 op_sel_hi:[1,0]")
    for k in range(1, 5):
        a(f"  v_pk_fma_f32 {p(RA)}, {p(EA+2*k)}, 0, {p(RA)} op_sel_hi:[1,0,1]")
    a(f"""
  v_add_f32 v{RA}, v{RA}, v{RA+1}
  v_cmp_class_f32 vcc, v{RA}, s{sTmp}
  s_or_b64 {s(sBad,2)}, {s(sBad,2)}, vcc""")
    a(f"""
  s_cmp_eq_u64 {s(sBad,2)}, 0
  s_cbranch_scc1 K_OKW
  v_mov_b32 v{t0}, {L_FLG}
  ds_write_b32 v{t0}, v{vone}
K_OKW:
  s_mov_b32 s{sK}, {NLN2}
  s_mov_b32 s{sK+1}, {NLN2}
  s_mov_b32 s{sTmp}, {NLOG2E}
  s_mov_b32 s{sTmp+1}, {NLOG2E}
  v_and_b32 v{t5}, 15, v{vl}
  v_lshlrev_b32 v{t5}, 8, v{t5}
  v_lshrrev_b32 v{t6}, 4, v{vl}
  v_lshl_add_u32 v{t5}, v{t6}, 3, v{t5}
  s_lshl_b32 s{sTmp+2}, s{sW}, 5
  v_add_u32 v{t5}, s{sTmp+2}, v{t5}
  v_add_u32 v{t6}, 4096, v{t5}
  v_add_u32 v{t7}, 8192, v{t5}
  v_mov_b32 v{t0}, {L_FLG}
  s_waitcnt lgkmcnt(0)
  s_barrier
  ds_read_b32 v{t0}, v{t0}""")
    AGF = [XF, XF+16, D1]
    for nt in range(3):
        for st in range(4):
            a(f"  ds_read_b128 {v(AGF[nt]+4*st,4)}, v{vxb} offset:{nt*16*XS + st*64}")
    a(f"""
  s_waitcnt lgkmcnt(8)
  v_readfirstlane_b32 s{sTmp+2}, v{t0}""")
    for nt in range(3):
        if nt: a(f"  s_waitcnt lgkmcnt({8-4*nt})")
        for st in range(4):
            c = "0" if st == 0 else v(D0+4*nt, 4)
            a(f"  v_mfma_f32_16x16x32_bf16 {v(D0+4*nt,4)}, {v(WUB+4*st,4)}, {v(AGF[nt]+4*st,4)}, {c}")
    a(f"""
  s_cmp_gt_u32 s{sTmp+2}, s{sMode}
  {"s_cbranch_scc1 K_RESTART" if not EXP else "s_nop 0"}""")
    def fin_store(nt):
        d = D0 + 4*nt
        a(f"""
  v_pk_mul_f32 {p(d)}, {p(d)}, {p(EA+4*nt)}
  v_pk_mul_f32 {p(d+2)}, {p(d+2)}, {p(EA+4*nt+2)}
  {chr(10).join("  v_mul_f32 v%d, %s, v%d" % (d+i, hex(f32(1+OPT["pert"]/1000.0)), d+i) for i in range(4)) if OPT["pert"] else ""}
  v_cvt_pk_bf16_f32 v{EB+2*nt}, v{d}, v{d+1}
  v_cvt_pk_bf16_f32 v{EB+2*nt+1}, v{d+2}, v{d+3}
  {"buffer_store_dwordx2 %s, v%d, %s, 0 offen %s" % (v(EB+2*nt,2), t5+nt, s(SO,4), OFL) if not OPT["oc"] else ("s_mov_b32 exec_lo, 0x00ff00ff" + chr(10) + "  s_mov_b32 exec_hi, 0x00ff00ff" + chr(10) if nt == 2 else "") + "  ds_write_b64 v%d, %s offset:%d" % (vqw, v(EB+2*nt,2), nt*16*QS)}""")
    for i in range(6):
        if i == 2: a("  s_nop 0")
        a(f"  v_pk_fma_f32 {p(D0+2*i)}, {p(D0+2*i)}, {s(sK,2)}, {p(U+2*i)}\n  v_pk_mul_f32 {p(EA+2*i)}, {p(D0+2*i)}, {s(sTmp,2)}")
    for i in range(12): a(f"  v_exp_f32 v{EA+i}, v{EA+i}")
    for i in range(6): a(f"  v_pk_add_f32 {p(EA+2*i)}, {p(EA+2*i)}, 1.0 op_sel_hi:[1,0]")
    for nt in range(3):
        for i in range(4): a(f"  v_rcp_f32 v{EA+4*nt+i}, v{EA+4*nt+i}")
        if nt:
            d = D0 + 4*(nt-1)
            fin_store(nt-1)
    a("  s_nop 0")
    fin_store(2)
    if OPT["oc"]:
        a(f"""
  s_mov_b64 exec, -1
  v_lshrrev_b32 v{t0}, 4, v0
  v_lshl_add_u32 v{t0}, v{t0}, 6, v{vt16}
  v_add_u32 v{t0}, {L_Q}, v{t0}
  v_add_u32 v{t1}, 8192, v{vt16}
  s_waitcnt lgkmcnt(0)
  s_barrier
  ds_read_b128 {v(PF,4)}, v{t0}
  ds_read_b128 {v(PF+4,4)}, v{t0} offset:{32*QS}
  s_waitcnt lgkmcnt(1)
  buffer_store_dwordx4 {v(PF,4)}, v{vt16}, {s(SO,4)}, 0 offen {OFL}
  s_waitcnt lgkmcnt(0)
  buffer_store_dwordx4 {v(PF+4,4)}, v{t1}, {s(SO,4)}, 0 offen {OFL}""")
    if OPT["stamp"]:
        a(f"""
  s_waitcnt vmcnt(0)
  s_memrealtime s[4:5]
  s_waitcnt lgkmcnt(0)
  s_lshl_b32 s6, s2, 3
  s_add_u32 s6, s6, s{sW}
  s_lshl_b32 s6, s6, 6
  s_add_u32 s6, s6, {WS_STAMP}
  s_add_u32 s6, s{pWS}, s6
  s_addc_u32 s7, s{pWS+1}, 0
  s_mov_b64 exec, 1
  v_mov_b32 v1, 0""")
        for i, r in enumerate([80+2*i for i in range(8)] + [96, 98, 4]):
            pass
        regs = [80, 82, 84, 86, 88, 90, 92, 94, 8, 9, 4, 10, 11, sT]
        for i, r in enumerate(regs):
            a(f"  v_mov_b32 v2, s{r}\n  global_store_dword v1, v2, s[6:7] offset:{4*i}")
    a(f"""
K_END:
  s_endpgm
""")
    a(f"""
K_PREP:
  s_sub_u32 s{sq}, s2, {2*G}
  s_lshl_b32 s{sq}, s{sq}, 14
  s_lshl_b32 s{sq+1}, s{sW}, 12
  s_add_u32 s{sq}, s{sq}, s{sq+1}
  v_lshlrev_b32 v{t0}, 4, v{vl}
  v_mov_b32 v{t7}, s{sTag}
  s_waitcnt vmcnt({10+NA})
  s_barrier""")
    wtr(PF, vqa)
    a("  s_waitcnt lgkmcnt(0)")
    for st in range(4):
        a(f"  buffer_store_dwordx4 {v(PF+4*st,4)}, v{t0}, {s(SW,4)}, s{sq} offen offset:{st*1024} sc1")
    a(f"""
  s_lshr_b32 s{sq}, s{sW}, 2
  s_add_u32 s{sq}, s{sq}, s2
  s_cmp_lg_u32 s{sq}, {2*G}
  s_cbranch_scc1 K_PREPD
  s_mov_b32 s{sq+1}, {NLOG2E}
  s_lshl_b32 s{sq}, s{sW}, 10
  s_waitcnt vmcnt({6+NA})""")
    for jj in range(8):
        a(f"  v_lshlrev_b32 v{D0+jj}, 16, v{D0+jj}\n  v_mul_f32 v{D0+jj}, s{sq+1}, v{D0+jj}")
    for i in range(4):
        a(f"  v_cvt_pk_bf16_f32 v{D0+8+i}, v{D0+2*i}, v{D0+1+2*i}")
    for i in range(4):
        a(f"""
  v_lshlrev_b32 v{t2}, 16, v{D0+8+i}
  v_and_b32 v{t3}, 0xffff0000, v{D0+8+i}
  v_sub_f32 v{t2}, v{D0+2*i}, v{t2}
  v_sub_f32 v{t3}, v{D0+1+2*i}, v{t3}
  v_cvt_pk_bf16_f32 v{D0+12+i}, v{t2}, v{t3}""")
    a(f"""
  s_add_u32 s{sq+1}, s{sq}, {WF_3L}
  s_add_u32 s{sq}, s{sq}, {WF_3H}
  buffer_store_dwordx4 {v(D0+8,4)}, v{t0}, {s(SW,4)}, s{sq} offen sc1
  buffer_store_dwordx4 {v(D0+12,4)}, v{t0}, {s(SW,4)}, s{sq+1} offen sc1
K_PREPD:""")
    own_x(4+NA)
    a(f"""
  s_sub_u32 s{sq}, s2, {2*G}
  s_lshl_b32 s{sq}, s{sq}, 1
  v_lshl_add_u32 v{t0}, v0, 7, s{sq}
  s_waitcnt vmcnt(0)
  s_barrier
  s_cmp_ge_u32 s{sW}, 4
  s_cbranch_scc1 K_PST
  buffer_store_dword v{t7}, v{t0}, {s(SF,4)}, 0 offen {FLF}
  s_branch K_PST""")
    a(f"""
K_OVF:
  s_waitcnt lgkmcnt(0)
  s_barrier
  s_mul_i32 s{sq+1}, s2, {OVSTR//2}
  s_add_u32 s{sq+1}, s{sq+1}, 64
  v_mov_b32 v{t5}, {L_FLG+8}
  v_mov_b32 v{t6}, -1""")
    for j in range(5):
        a(f"""
  v_cmp_le_u32 vcc, {CAP-1}, v{RK+j}
  s_and_b64 exec, exec, vcc
  s_cbranch_execz K_OV{j}
  v_add_u32 v{t1}, {L_BCNT}, v{B4+j}
  ds_read_b32 v{t1}, v{t1}
  s_waitcnt lgkmcnt(0)
  v_cmp_ne_u32 vcc, {CAP}, v{t1}
  s_nop 1
  v_cndmask_b32 v{t3}, v{SS_+j}, v{t6}, vcc
  ds_write_b32 v{CA+j}, v{t3} offset:{CELLB-8}
  s_and_b64 exec, exec, vcc
  s_cbranch_execz K_OV{j}
  ds_add_rtn_u32 v{t1}, v{t5}, v{vone}
  v_mov_b32 v{CV}, v{SS_+j}
  v_lshrrev_b32 v{CV+1}, 2, v{B4+j}
  s_waitcnt lgkmcnt(0)
  v_lshl_add_u32 v{t1}, v{t1}, 3, s{sq+1}
  buffer_store_dwordx2 {v(CV,2)}, v{t1}, {s(SV,4)}, 0 offen sc1
  s_waitcnt vmcnt(0)
K_OV{j}:
  s_mov_b64 exec, -1""")
    a(f"""
  s_waitcnt lgkmcnt(0)
  s_barrier
  ds_read_b32 v{t1}, v{t5}
  s_sub_u32 s{sq+1}, s{sq+1}, 64
  v_mov_b32 v{t3}, s{sq+1}
  v_mov_b32 v{t2}, 0
  s_waitcnt lgkmcnt(0)
  buffer_store_dword v{t1}, v{t3}, {s(SV,4)}, 0 offen sc1
  s_waitcnt vmcnt(0)
  s_branch K_OVFDONE""")
    for u in range(OPT["unroll"] - 1):
        a(f"K_OX{u}:\n  s_cmp_eq_u32 s{sCnt}, 0\n  s_cbranch_scc1 K_LOOPEND")
        for x in incs(u + 1): a(x)
        a("  s_branch K_QUAD")
    loop("quad")
    a("  s_branch K_LOOPEND")
    a("K_TEXTEND:")
    loop("safe")
    a("  s_branch K_LOOPEND")
    a(f"""
""")
    for x in rare: a(x)
    a(f"""
K_NOGEMM0:
  s_waitcnt vmcnt(0)
  s_branch K_NOGEMM
K_RESTART:
  s_mov_b32 s{sMode}, 1
  s_mov_b32 s{sKind}, 0
  s_waitcnt lgkmcnt(0)
  s_barrier
  v_mov_b32 v{CV}, 0
  v_mov_b32 v{CV+1}, 0
  v_mov_b32 v{CV+2}, 0
  v_mov_b32 v{CV+3}, 0""")
    for j in range(5):
        a(f"  ds_write_b128 v{vt16}, {v(CV,4)} offset:{L_ACC + j*8192}")
    a(f"""
  v_cmp_gt_u32 vcc, {(40*AS-5*8192)//16}, v0
  s_and_saveexec_b64 {s(sEx,2)}, vcc
  ds_write_b128 v{vt16}, {v(CV,4)} offset:{L_ACC + 5*8192}
  s_mov_b64 exec, {s(sEx,2)}
  s_branch K_RELOAD
K_SPLIT:
  s_mov_b32 s{sKind}, 1
  s_waitcnt lgkmcnt(0)
  s_barrier
  s_branch K_RELOAD
K_NEXT:
  s_cmp_eq_u32 s{sKind}, 4
  s_cbranch_scc1 K_NEXTOV
  s_cmp_eq_u32 s{sKind}, 3
  s_cbranch_scc1 K_OVPART1
  s_cmp_eq_u32 s{sKind}, 2
  s_cbranch_scc1 K_CELLSDONE
  s_mov_b32 s{sKind}, 2
K_RELOAD:
  v_lshrrev_b32 v{t1}, 2, v0
  s_mov_b32 s{sq}, {CH*32}
  v_mul_u32_u24 v{vebase}, s{sq}, v{t1}
  s_waitcnt vmcnt(0)""")
    for k in range(2):
        a(f"  buffer_load_dwordx4 {v(REC+4*k,4)}, v{vcell}, {s(SC,4)}, 0 offen offset:{64*k} sc1")
    a(f"""
  s_waitcnt vmcnt(0)
  s_mov_b32 exec_lo, 0xaaaaaaaa
  s_mov_b32 exec_hi, 0xaaaaaaaa
  v_mov_b32 v{REC+3}, 0
  v_mov_b32 v{REC+7}, 0
  s_mov_b64 exec, -1
  s_cmp_eq_u32 s{sKind}, 0
  s_cbranch_scc1 K_ROUND
  s_lshr_b32 s{sq}, s{sW}, 2
  s_add_u32 s{sq}, s{sq}, 1
  s_cmp_eq_u32 s{sq}, s{sKind}
  s_cbranch_scc1 K_ROUND""")
    for k in range(NR): a(f"  v_mov_b32 v{REC+k}, 0")
    a(f"""
K_ROUND:
  v_mov_b32 v{CV}, 0
  v_mov_b32 v{CV+1}, 0
  v_mov_b32 v{CV+2}, 0
  v_mov_b32 v{CV+3}, 0
  v_cmp_gt_u32 vcc, {(L_FLG-L_GN)//16}, v0
  s_and_saveexec_b64 {s(sEx,2)}, vcc
  ds_write_b128 v{vt16}, {v(CV,4)} offset:{L_GN}
  s_mov_b64 exec, {s(sEx,2)}""")
    prefill()
    a(f"""
  v_and_b32 v{vent}, 2047, v{vent}
  v_and_b32 v{vrow}, 2047, v{vrow}
  v_subrev_u32 v{vga}, {L_GN}, v{vga}
  v_and_b32 v{vga}, 255, v{vga}
  v_add_u32 v{vga}, {L_GN}, v{vga}
  v_and_b32 v{t2}, 12, v{vl}
  v_add_u32 v{vgq}, v{vga}, v{t2}
  s_waitcnt lgkmcnt(0)
  s_barrier
  s_branch K_PHASE1
K_STARTOV:""")
    for i in range(4): a(f"  v_readfirstlane_b32 s{sOV+i}, v{CV+i}")
    a(f"""
  s_mov_b32 s{sKind}, 4
  s_waitcnt lgkmcnt(0)
K_NEXTOV:""")
    for i in range(2):
        a(f"""
  s_ff1_i32_b64 s{sP}, {s(sOV+2*i,2)}
  s_cmp_eq_u32 s{sP}, -1
  s_cbranch_scc1 K_OVN{i}
  s_bitset0_b64 {s(sOV+2*i,2)}, s{sP}
  s_add_u32 s{sP}, s{sP}, {64*i}
  s_branch K_OVGO
K_OVN{i}:""")
    a(f"""
  s_branch K_CONV
K_OVGO:
  s_mov_b32 s{sKind}, 3
  v_mov_b32 v{t4}, v0
  s_branch K_OVLD
K_OVPART1:
  s_mov_b32 s{sKind}, 4
  v_add_u32 v{t4}, 2048, v0
K_OVLD:
  s_mul_i32 s{sq}, s{sP}, {OVSTR}
  s_mul_i32 s{sq+1}, s{sP}, {CH*32}
  v_mov_b32 v{vebase}, s{sq+1}
  v_mov_b32 v{t0}, s{sq}
  buffer_load_dword v{t1}, v{t0}, {s(SV,4)}, 0 offen sc1
  v_lshl_add_u32 v{t2}, v{t4}, 3, v{t0}""")
    for k in range(4):
        a(f"  buffer_load_dwordx2 {v(PF+2*k,2)}, v{t2}, {s(SV,4)}, 0 offen offset:64 sc1\n  v_add_u32 v{t2}, 4096, v{t2}")
    a(f"""
  s_waitcnt vmcnt(0)
  v_readfirstlane_b32 s{sq}, v{t1}
  s_cmp_le_u32 s{sq}, 2048
  s_cselect_b32 s{sKind}, 4, s{sKind}""")
    for k in range(4):
        a(f"""
  v_cmp_lt_u32 vcc, v{t4}, v{t1}
  v_cmp_eq_u32 {s(sEx,2)}, s2, v{PF+2*k+1}
  s_and_b64 vcc, vcc, {s(sEx,2)}
  v_add_u32 v{t4}, 512, v{t4}
  s_nop 1
  v_cndmask_b32 v{REC+k}, 0, v{PF+2*k}, vcc""")
    for k in range(4, NR): a(f"  v_mov_b32 v{REC+k}, 0")
    a("  s_branch K_ROUND")
    return a.text(), nv, NS

def gen_diag(idx):
    a = Asm()
    a(f"""
.globl mpnn_d_kernel
.p2align 8
.type mpnn_d_kernel,@function
mpnn_d_kernel:
  s_cmp_ge_u32 s2, 1
  s_cbranch_scc1 D_END
  s_load_dwordx2 s[4:5], s[0:1], 64
  s_waitcnt lgkmcnt(0)
  s_add_u32 s4, s4, {WS_STAMP + (OPT['wsb'] << 20)}
  s_addc_u32 s5, s5, 0
  s_load_dword s6, s[4:5], 0
  s_waitcnt lgkmcnt(0)
  s_sub_u32 s6, s6, 100000""")
    for q, (ix, ismax) in enumerate(((idx, 1), (0, 0))):
        op = "max" if ismax else "min"
        a(f"  v_lshlrev_b32 v1, {6 if not OPT['dodd'] else 10}, v0\n  v_add_u32 v1, {ix*4 + (512 + 64*(OPT['dodd']-1) if OPT['dodd'] else 0)}, v1\n  v_mov_b32 v3, {0 if ismax else -1}")
        nk = 32 if not OPT['dodd'] else 2
        for k in range(nk):
            a(f"  global_load_dword v{8+k}, v1, s[4:5]\n  v_add_u32 v1, {4096 if not OPT['dodd'] else 65536}, v1")
        a("  s_waitcnt vmcnt(0)")
        for k in range(nk):
            a(f"  v_subrev_u32 v2, s6, v{8+k}\n  v_{op}_u32 v3, v3, v2")
        a(f"  s_mov_b32 s{20+q}, {0 if ismax else -1}\n  s_nop 1")
        for l in range(64):
            a(f"  v_readlane_b32 s8, v3, {l}\n  s_nop 0\n  s_{op}_u32 s{20+q}, s{20+q}, s8")
    a(f"""
  s_sub_u32 s20, s20, s21
  s_min_u32 s20, s20, 20000
  s_lshl_b32 s20, s20, 3
  {'s_mov_b32 s20, 0' if OPT['dz'] else ''}
  s_memrealtime s[8:9]
  s_waitcnt lgkmcnt(0)
D_L:
  s_memrealtime s[10:11]
  s_waitcnt lgkmcnt(0)
  s_sub_u32 s12, s10, s8
  s_cmp_lt_u32 s12, s20
  s_cbranch_scc1 D_L
D_END:
  s_endpgm
""")
    return a.text()

HEAD = """; Kernarg layout for this problem (72 bytes, ptrs only, base s[0:1]):
;
"""
def main():
    k, nv, ns = gen()
    out = HEAD + f"; @launch grid=({NB},1,1) block=(512,1,1) lds={LDS}\n"
    if OPT["diag"] >= 0:
        out = HEAD + f"; @launch kernel={KN} grid=({NB},1,1) block=(512,1,1) lds={LDS}\n; @launch kernel=mpnn_d_kernel grid=(1,1,1) block=(64,1,1) lds=0\n"
        k += gen_diag(OPT["diag"])
    out += '.amdgcn_target "amdgcn-amd-amdhsa--gfx950"\n.text\n' + k
    out += f""".section .rodata,"a"
.p2align 6
.amdhsa_kernel {KN}
  .amdhsa_next_free_vgpr {nv}
  .amdhsa_next_free_sgpr {ns}
  .amdhsa_accum_offset {(nv+3)//4*4}
  .amdhsa_group_segment_fixed_size 0
  .amdhsa_kernarg_size 72
  .amdhsa_user_sgpr_count 2
  .amdhsa_user_sgpr_kernarg_segment_ptr 1
  .amdhsa_system_sgpr_workgroup_id_x 1
.end_amdhsa_kernel
"""
    if OPT["diag"] >= 0:
        out += """.p2align 6
.amdhsa_kernel mpnn_d_kernel
  .amdhsa_next_free_vgpr 48
  .amdhsa_next_free_sgpr 32
  .amdhsa_accum_offset 48
  .amdhsa_group_segment_fixed_size 0
  .amdhsa_kernarg_size 72
  .amdhsa_user_sgpr_count 2
  .amdhsa_user_sgpr_kernarg_segment_ptr 1
  .amdhsa_system_sgpr_workgroup_id_x 1
.end_amdhsa_kernel
"""
    out = "\n".join(l.rstrip() for l in out.split("\n") if l.strip()) + "\n"
    open(sys.argv[1], "w").write(out)
    print("vgprs", nv, "lds", LDS)
main()
```

```python
from common import *

N = 10000; E = 320000
G = 125
CH = 2560
NB = 256
MAGIC = 26843
CAP = 28
CELLB = 128
BSTR = G * CELLB

WS_P = 256
WS_CELL = 0x280000
WS_WF = 0x1280000
WF_W2, WF_UT, WF_UB, WF_3H, WF_3L = 0, 32768, 65536, 98304, 102400
WF_SIZE = 106496
WS_OVF = 0x12A0000
OVSTR = 64 + CH * 8
WS_FLAG = 0x1520000
WS_STAMP = 0x1600000

OPT = dict(lo=0, k8=1, stamp=0, nodma=0, noadd=0, noe=0, hot=0, align=1, unroll=2, dmapos=0, rdpos=0, dsc=1, pf=1, slp=0, stf=1, addpos=0, rdgap=0, prio=0, bench=0, octo=1, frep=8, fln=16, slp0=0, plf=1, flf=1, diag=-1, touch=0, dz=0, abl=0, dodd=0, wsb=0, claim=0, slpa=0, slpb=0, zt=0, cpf=0, pf2=0, stag=0, bdl=0, wfirst=0, fine=0, half=0, dbg=0, s0st=0, spf=0, spfb=0, early=0, gate=0, ord=0, s0m=0, idle=0, idle2=0, seq=0, smf=0, of=0, oc=0, pert=0, efirst=0, wpos=0, dgap=12, efl=0, pfl=0, idm=0, pdl=0, ocl=0, s0i=0)
for a_ in sys.argv[2:]:
    k_, v_ = a_.split("="); OPT[k_] = int(v_)
EXP = OPT["dbg"] or OPT["half"] or OPT["bench"] or OPT["nodma"] or OPT["noe"] or OPT["noadd"] or OPT["hot"]

FL_ = ['', 'sc1', 'sc0 sc1', 'sc1 nt', 'sc0 sc1 nt']; PLF = FL_[OPT['plf']]; FLF = FL_[OPT['flf']]
OFL = ['', 'sc1', 'nt', 'sc0 sc1', 'sc1 nt'][OPT['of']]
STF = ['', 'sc1', 'sc0 sc1', 'sc1 nt'][OPT['stf']]
FREP = OPT['frep']; FLN = OPT['fln']; FSH = (128//FLN).bit_length()-1; FHALF = FREP*FLN*256; FNON = 2*FHALF; FMASK = hex((1<<FREP)-1)
NA = 1 if OPT['claim'] & 4 else 0
NCL = (3 if OPT['claim'] & 1 else 0) + NA
NCC = (4 if OPT['claim'] & 2 else 0) + NA
CAPB = 70
L_ENT = 0
L_GN = (CAPB + 1) * 256
L_CNT = L_GN + (CAPB + 17) * 32
L_FLG = L_CNT + 256
L_ACC = L_FLG + 64
AS = 1040
L_Q = L_ACC + 40 * AS
QS = 320
L_X = L_Q + 40 * QS
XS = 288
L_STG = L_X + 40 * XS
STG = 8 * 1040 + 1024
LDS = L_STG + 8 * STG
L_CIMG = L_STG
L_BCNT = L_CIMG + NB * CELLB
WPITCH = 1088
L_GP = L_STG + 1024
L_WS = L_STG + 32 * WPITCH
assert L_BCNT + 1024 <= LDS and L_STG % 16 == 0 and L_ACC % 16 == 0
PADS, PADE = 0x8000003f, 0x80000000
KN = "standalone__mpnn_edge_mlp__graph_kernel"

IDMAP = ["""s_and_b32 s100, s2, 7
  s_lshl_b32 s100, s100, 1
  s_bfe_u32 s101, s2, 0x10003
  s_and_b32 s2, s2, 0xf0
  s_or_b32 s2, s2, s100
  s_or_b32 s2, s2, s101""",
"""s_lshr_b32 s100, s2, 7
  s_xor_b32 s100, s100, 1
  s_and_b32 s2, s2, 127
  s_lshl_b32 s2, s2, 1
  s_or_b32 s2, s2, s100""",
"""s_lshr_b32 s100, s2, 7
  s_and_b32 s2, s2, 127
  s_lshl_b32 s2, s2, 1
  s_or_b32 s2, s2, s100"""][OPT["idm"]]
def fstamp(a, i):
    if OPT["fine"]: a(f"  s_memrealtime s[{80+2*i}:{81+2*i}]")
def stamp(a, i, cyc=None):
    if OPT["fine"] and i in (1, 2, 3, 5): return
    if OPT["stamp"]:
        if cyc is None:
            a(f"  s_memrealtime s[{80+2*i}:{81+2*i}]\n  s_waitcnt lgkmcnt(0)")
        else:
            a(f"  s_memrealtime s[96:97]\n  s_memtime s[98:99]\n  s_waitcnt lgkmcnt(0)\n  s_mov_b32 s{i}, s96\n  s_mov_b32 s{i+2}, s98")

def gen():
    a = Asm()
    rare = []
    R = Regs(1)
    al = R.alloc
    vl = al("lane")
    t0 = al("t", 8, 2); t1, t2, t3, t4, t5, t6, t7 = range(t0+1, t0+8)
    vchunk = al("vchunk"); vechunk = al("vechunk")
    vent = al("vent"); vrow = al("vrow"); vgq = al("vgq"); vga = al("vga")
    vAlo = al("Alo"); vAhi = al("Ahi"); vEF = al("vEF")
    vAT = al("vAT", 4) if OPT["smf"] else None
    vqlane = al("vqlane"); vacl = al("vacl"); vxb = al("vxb"); vqw = al("vqw")
    vebase = al("vebase"); vone = al("vone"); vt16 = al("vt16"); vcell = al("vcell")
    vgl = al("vgl")
    vqa = al("vqa"); vsrow = al("vsrow"); vgn1 = al("vgn1")
    ENT = al("ENT", 2, 2)
    MAC = al("MAC", 2, 2)
    PAT = al("PAT", 2, 2)
    nq = 2 if OPT["k8"] else 4
    AQ = al("AQ", nq, 2)
    GN = al("GN", 4, 2); AD = al("AD", 4)
    DO = al("DO", 2)
    I0 = al("I0", 4, 2); I1 = al("I1", 4, 2)
    W3 = al("W3", 16, 2)
    W3L = al("W3L", 16, 2) if OPT["lo"] else None
    BQ = al("BQ", 4*nq, 2)
    EF = al("EF", 4, 2)
    PF = al("PF", 32, 2)
    D0 = al("D0", 16, 2); D1 = al("D1", 16, 2)
    EA = al("EA", 8, 4); TA = al("TA", 8, 4); EB = al("EB", 8, 4); TB = al("TB", 8, 4)
    RA = al("RA", 2, 2); RB = al("RB", 2, 2)
    SA = al("SA", 2, 2); SB = al("SB", 2, 2)
    CV = al("CV", 8, 2)
    U = al("U", 12, 2); WUB = al("WUB", 16, 2)
    DUM = al("DUM", 4, 2)
    DK = al("DK", 4, 2)
    nv = R.n
    assert TA == EA + 8 and EB == EA + 16 and TB == EA + 24 and D1 == D0 + 16
    DD = D0; SS_ = D0 + 5; B4 = D0 + 10; RK = D0 + 15; CA = D0 + 20
    CP = PF
    GX = W3
    XL = U
    W1F = WUB
    REC = D0; NOD = D0 + 8; RNK = D1
    W2F = EA; WUT = EB; XF = PF; QD = CV
    sW = 3
    pX, pE, pS, pD, pWM, pWU, pO, pWS = 4, 6, 8, 10, 12, 14, 16, 18
    SP, SE, SC, SW, SO, SV, SF = 20, 24, 28, 32, 36, 40, 44
    T0, T1, T2 = 48, 52, 56
    sStart, sNb, sStg, sCnt, sT, sMode, sKind, sFirst = 60, 61, 62, 63, 64, 65, 66, 67
    sAS, sQS, sTag, sP, sUB, sLo2 = 68, 69, 70, 71, 72, 73
    sCO = 59
    sK2 = 56
    sNp = 79
    sEx, sK, sBad = 74, 76, 78
    sTmp = 4
    sA = 48
    sOV = 48
    sOVT = 74
    sq = 100
    if OPT["stamp"]: NS = 102
    else: NS = 102

    a(f"""
.globl {KN}
.p2align 8
.type {KN},@function
{KN}:
  s_cmp_ge_u32 s2, {NB}
  s_cbranch_scc1 K_END""")
    if OPT["stamp"]: a("  s_memrealtime s[80:81]")
    a(f"""
  s_load_dwordx8 s[4:11], s[0:1], 0
  s_load_dwordx4 s[12:15], s[0:1], 32
  s_load_dwordx2 s[16:17], s[0:1], 48
  s_load_dwordx2 s[18:19], s[0:1], 64""")
    if OPT["cpf"]:
        a(f"""
  s_getpc_b64 s[20:21]
  v_lshlrev_b32 v{t1}, 7, v0
  v_cmp_gt_u32 vcc, (K_TEXTEND - {KN}) / 128, v0
  s_and_saveexec_b64 s[22:23], vcc
  s_cbranch_execz K_NOCPF
  global_load_dword v{DUM}, v{t1}, s[20:21]
K_NOCPF:
  s_mov_b64 exec, s[22:23]""")
    a(f"""
  v_lshrrev_b32 v{t0}, 6, v0
  v_and_b32 v{vl}, 63, v0
  s_and_b32 s{sP}, s2, {FREP-1}
  s_mul_i32 s{sP}, s{sP}, {FLN*256}
  {IDMAP}
  s_mul_i32 s{sStart}, s2, 640013
  v_readfirstlane_b32 s{sW}, v{t0}
  s_add_u32 s{sNb}, s{sStart}, {640013+16383}
  s_add_u32 s{sStart}, s{sStart}, 16383
  s_sub_u32 s{sNp}, s{sStart}, 640013
  s_lshr_b32 s{sStart}, s{sStart}, 14
  s_lshr_b32 s{sNb}, s{sNb}, 14
  s_lshr_b32 s{sNp}, s{sNp}, 14
  s_min_u32 s{sNb}, s{sNb}, {N}
  s_sub_u32 s{sCnt}, s{sNb}, s{sNp}
  s_sub_u32 s{sNb}, s{sNb}, s{sStart}
  s_lshl_b32 s{sT}, s{sNp}, 8
  s_sub_u32 s{sNp}, s{sStart}, s{sNp}
  s_mov_b32 s{sMode}, 0
  s_mov_b32 s{sKind}, 0
  s_mov_b32 s{sFirst}, 1
  s_mov_b32 s{sAS}, {AS}
  s_mov_b32 s{sQS}, {QS}
  s_mul_i32 s{sStg}, s{sW}, {STG}
  s_add_u32 s{sStg}, s{sStg}, {L_STG}
  v_lshlrev_b32 v{vt16}, 4, v0
  s_mul_i32 s{sq}, s2, {CH*2}
  v_lshl_add_u32 v{t2}, v0, 2, s{sq}
  v_add_u32 v{t3}, 4096, v{t2}
  v_lshrrev_b32 v{t4}, 4, v{vl}
  v_lshlrev_b32 v{t0}, 1, v{t4}
  v_xor_b32 v{t0}, v{t0}, v{vl}
  v_lshlrev_b32 v{t0}, 4, v{t0}
  s_lshl_b32 s{sq}, s{sW}, 12
  v_add_u32 v{t7}, s{sq}, v{t0}
  s_mul_i32 s{sUB}, s{sW}, {4*WPITCH}
  s_add_u32 s{sUB}, s{sUB}, {L_WS}
  v_add_u32 v{t6}, 8192, v{vt16}
  v_add_u32 v{t5}, 16384, v{vt16}
  s_waitcnt lgkmcnt(0)
  {"s_add_u32 s%d, s%d, %d" % (pWS, pWS, OPT["wsb"] << 20) + chr(10) + "  s_addc_u32 s%d, s%d, 0" % (pWS+1, pWS+1) if OPT["wsb"] else ""}
  s_bitcmp1_b32 s2, 0
  s_cbranch_scc1 K_LDG
  s_cmp_ge_u32 s2, {2*G}
  s_cbranch_scc1 K_LDP""")
    if OPT["bdl"]: a(f"  s_sleep {OPT['bdl']}")
    srd(a, T0, pD, E*4)
    srd(a, T1, pS, E*4)
    a(f"  s_movk_i32 s{sq}, 0x2000")
    for r_, T in ((DD, T0), (SS_, T1)):
        a(f"""
  buffer_load_dword v{r_}, v{t2}, {s(T,4)}, 0 offen
  buffer_load_dword v{r_+1}, v{t2}, {s(T,4)}, 0 offen offset:2048
  buffer_load_dword v{r_+2}, v{t3}, {s(T,4)}, 0 offen
  buffer_load_dword v{r_+3}, v{t3}, {s(T,4)}, 0 offen offset:2048
  buffer_load_dword v{r_+4}, v{t2}, {s(T,4)}, s{sq} offen""")
    if OPT["claim"] & 2:
        srd(a, T2, pWS, NB*BSTR, add=WS_CELL)
        a(f"""
  v_lshrrev_b32 v{t4}, 3, v0
  s_mov_b32 s{sq}, {BSTR}
  v_mul_u32_u24 v{t4}, s{sq}, v{t4}
  v_and_b32 v{t0}, 7, v0
  v_lshl_add_u32 v{t4}, v{t0}, 4, v{t4}
  s_lshl_b32 s{sq}, s2, 6
  v_mov_b32 v{PF}, 0
  v_mov_b32 v{PF+1}, 0
  v_mov_b32 v{PF+2}, 0
  v_mov_b32 v{PF+3}, 0""")
        for j in range(4):
            a(f"  buffer_store_dwordx4 {v(PF,4)}, v{t4}, {s(T2,4)}, s{sq} offen sc1\n  s_add_u32 s{sq}, s{sq}, {64*BSTR}")
    a("  s_branch K_LD3")
    def wdma(T):
        for q in range(4):
            a(f"  s_add_u32 m0, s{sUB}, {64*q}\n  s_nop 0\n  buffer_load_dwordx4 v{t7}, {s(T,4)}, 0 offen offset:{1024*q} lds")
    a(f"""
K_LDX:
  s_lshl_b32 s{sq}, s{sStart}, 8
  s_lshl_b32 s{sq+1}, s{sNb}, 8""")
    srd(a, T2, pX, f"s{sq+1}", addreg=sq)
    a(f"""
  buffer_load_dwordx4 {v(XL,4)}, v{vt16}, {s(T2,4)}, 0 offen
  buffer_load_dwordx4 {v(XL+4,4)}, v{t6}, {s(T2,4)}, 0 offen
  s_branch K_LD3
K_LDP:
  s_cmp_eq_u32 s2, {2*G}
  s_cselect_b32 s{T1}, s{pWM}, s{pWU}
  s_cselect_b32 s{T1+1}, s{pWM+1}, s{pWU+1}
  s_cmp_eq_u32 s2, {2*G+2}
  s_cselect_b32 s{sq}, 0, 32768
  s_add_u32 s{T1}, s{T1}, s{sq}
  s_addc_u32 s{T1+1}, s{T1+1}, 0
  s_mov_b32 s{T1+2}, 32768
  s_mov_b32 s{T1+3}, 0x20000""")
    wdma(T1)
    srd(a, T0, pWM, 16*256, add=256*256)
    a(f"""
  v_and_b32 v{t0}, 31, v{vl}
  v_lshrrev_b32 v{t1}, 5, v{vl}
  v_lshlrev_b32 v{t1}, 11, v{t1}
  v_lshl_add_u32 v{t1}, v{t0}, 1, v{t1}
  s_and_b32 s{sq}, s{sW}, 3
  s_lshl_b32 s{sq}, s{sq}, 6""")
    for jj in range(8):
        a(f"  buffer_load_ushort v{D0+jj}, v{t1}, {s(T0,4)}, s{sq} offen offset:{jj*256}")
    a(f"""
  s_branch K_LDX
K_LDG:
  s_lshl_b32 s{sCnt}, s{sCnt}, 8""")
    srd(a, T0, pX, f"s{sCnt}", addreg=sT)
    srd(a, T1, pWM, 128*256)
    if OPT["wfirst"]: wdma(T1)
    a(f"""
  buffer_load_dwordx4 {v(GX,4)}, v{vt16}, {s(T0,4)}, 0 offen
  buffer_load_dwordx4 {v(GX+4,4)}, v{t6}, {s(T0,4)}, 0 offen
  buffer_load_dwordx4 {v(GX+8,4)}, v{t5}, {s(T0,4)}, 0 offen""")
    if not OPT["wfirst"]: wdma(T1)
    if OPT["claim"] & 1:
        srd(a, T2, pWS, f"s{sCnt}", add=WS_P, addreg=sT)
        for r_ in (vt16, t6, t5):
            a(f"  buffer_store_dwordx4 {v(PF,4)}, v{r_}, {s(T2,4)}, 0 offen sc1")
    a(f"""
K_LD3:""")
    if OPT["claim"] & 4:
        a(f"  s_lshl_b32 s{sq}, s{sStart}, 8\n  s_lshl_b32 s{sq+1}, s{sNb}, 8")
        srd(a, SO, pWS, f"s{sq+1}", add=WS_P, addreg=sq)
        a(f"""
  s_mul_i32 s{sq}, s{sW}, 1280
  v_lshl_add_u32 v{t1}, v{vl}, 7, s{sq}
  v_mov_b32 v{t0}, 0
  s_mov_b64 exec, 0x3ff
  buffer_atomic_or v{t0}, v{t1}, {s(SO,4)}, 0 offen
  s_mov_b64 exec, -1""")
    a(f"""
  s_add_u32 s{SF}, s{pWS}, {WS_FLAG}
  s_addc_u32 s{SF+1}, s{pWS+1}, 0
  s_load_dword s{sTag}, s[{SF}:{SF+1}], {FNON}
  s_mov_b32 s{SF+2}, {FNON+4}
  s_mov_b32 s{SF+3}, 0x20000
  v_lshrrev_b32 v{t1}, 2, v0
  v_and_b32 v{t4}, 3, v0
  v_lshlrev_b32 v{t4}, 4, v{t4}
  v_lshl_add_u32 v{vcell}, v{t1}, {6 if OPT['half'] == 2 else 7}, v{t4}
  s_mov_b32 s{sq}, {CH*32}
  v_mul_u32_u24 v{vebase}, s{sq}, v{t1}""")
    a(f"""
  v_mov_b32 v{CV}, 0
  v_mov_b32 v{CV+1}, 0
  v_mov_b32 v{CV+2}, 0
  v_mov_b32 v{CV+3}, 0
  v_add_u32 v{t0}, {L_CIMG}, v{vt16}""")
    a(f"  s_bitcmp1_b32 s2, 0\n  s_cbranch_scc1 K_NOZ")
    for j in range(4):
        a(f"  ds_write_b128 v{t0}, {v(CV,4)} offset:{j*8192}")
    a(f"  s_cmp_lg_u32 s{sW}, 0\n  s_cbranch_scc1 K_NOZ\n  ds_write_b128 v{t0}, {v(CV,4)} offset:32768")
    a("K_NOZ:")
    for j in range(5):
        a(f"  ds_write_b128 v{vt16}, {v(CV,4)} offset:{L_GN + j*8192}")
    a(f"""
  v_cmp_gt_u32 vcc, {(L_Q-L_GN-5*8192)//16}, v0
  s_and_saveexec_b64 {s(sEx,2)}, vcc
  ds_write_b128 v{vt16}, {v(CV,4)} offset:{L_GN + 5*8192}
  s_mov_b64 exec, {s(sEx,2)}""")
    def prefill():
        a(f"""
  v_mov_b32 v{CV+4}, {PADS}
  v_mov_b32 v{CV+5}, {PADE}
  v_mov_b32 v{CV+6}, {PADS}
  v_mov_b32 v{CV+7}, {PADE}
  ds_write_b128 v{vt16}, {v(CV+4,4)}
  ds_write_b128 v{vt16}, {v(CV+4,4)} offset:8192
  v_cmp_gt_u32 vcc, {(L_GN-16384)//16}, v0
  s_and_saveexec_b64 {s(sEx,2)}, vcc
  ds_write_b128 v{vt16}, {v(CV+4,4)} offset:16384
  s_mov_b64 exec, {s(sEx,2)}""")
    prefill()
    a(f"  s_mul_i32 s{sq}, s2, {BSTR}\n  s_lshl_b32 s{sq+1}, s{sStart}, 8\n  s_lshl_b32 s{sK}, s{sNb}, 8")
    srd(a, SC, pWS, G*CELLB // (2 if OPT['half'] == 2 else 1), add=WS_CELL, addreg=sq)
    srd(a, SP, pWS, (N+1)*256)
    srd(a, SE, pE, E*32)
    srd(a, SW, pWS, WF_SIZE, add=WS_WF)
    srd(a, SO, pO, f"s{sK}", addreg=sq+1)
    srd(a, SV, pWS, G*OVSTR, add=WS_OVF)
    a(f"""
  v_mov_b32 v{vone}, 1
  v_mov_b32 v{MAC}, 0
  v_mov_b32 v{MAC+1}, 0
  v_and_b32 v{t0}, 15, v{vl}                 ; l&15
  v_bfe_u32 v{t1}, v{vl}, 4, 1               ; r4&1
  {"v_lshlrev_b32 v%d, 3, v%d" % (t2, t1) if not OPT["smf"] else "v_lshrrev_b32 v%d, 4, v%d" % (t2, vl) + chr(10) + "  v_lshlrev_b32 v%d, 2, v%d" % (t2, t2)}
  v_xor_b32 v{t2}, v{t0}, v{t2}
  v_lshlrev_b32 v{vchunk}, 4, v{t2}
  v_and_b32 v{t2}, 1, v{vl}
  v_xor_b32 v{t2}, v{t2}, v{t1}
  v_lshlrev_b32 v{vechunk}, 4, v{t2}
  v_lshrrev_b32 v{t2}, 4, v{vl}
  v_lshlrev_b32 v{t2}, 6, v{t2}
  v_lshrrev_b32 v{t4}, 1, v{t0}
  v_lshl_add_u32 v{t2}, v{t4}, 3, v{t2}
  s_lshl_b32 s{sq}, s{sW}, 8
  v_add_u32 v{vent}, s{sq}, v{t2}
  v_bfe_u32 v{t2}, v{vl}, 2, 1               ; h
  v_and_b32 v{t4}, 1, v{vl}                  ; xy
  v_lshl_add_u32 v{t5}, v{t2}, 1, v{t4}      ; r4
  v_bfe_u32 v{t6}, v{vl}, 3, 2
  v_bfe_u32 v{t7}, v{vl}, 1, 1
  v_lshl_add_u32 v{t6}, v{t6}, 1, v{t7}      ; j
  v_lshl_add_u32 v{t7}, v{t5}, 3, v{t6}      ; q = 8 r4 + j
  v_lshlrev_b32 v{t7}, 3, v{t7}
  v_add_u32 v{vrow}, s{sq}, v{t7}
  v_lshrrev_b32 v{t7}, 5, v{vl}              ; hh
  v_mul_u32_u24 v{vAlo}, 1040, v{t6}
  v_lshl_add_u32 v{vAlo}, v{t5}, 8, v{vAlo}
  v_lshl_add_u32 v{vAlo}, v{t7}, 4, v{vAlo}
  v_add_u32 v{vAlo}, s{sStg}, v{vAlo}
  v_xor_b32 v{vAhi}, 1, v{t4}
  v_lshl_add_u32 v{vAhi}, v{vAhi}, 7, v{vAlo}
  v_lshl_add_u32 v{vAlo}, v{t4}, 7, v{vAlo}
  v_xor_b32 v{vEF}, v{t7}, v{t4}
  v_lshl_add_u32 v{vEF}, v{t6}, 1, v{vEF}
  v_lshl_add_u32 v{vEF}, v{t5}, 4, v{vEF}
  v_lshlrev_b32 v{vEF}, 4, v{vEF}
  s_add_u32 s{sq+1}, s{sStg}, 8320
  v_add_u32 v{vEF}, s{sq+1}, v{vEF}
  v_bfe_u32 v{t5}, v{vl}, 4, 1               ; o
  v_lshlrev_b32 v{t5}, 4, v{t5}
  v_mov_b32 v{t6}, 0x3f80
  v_lshlrev_b32 v{t5}, v{t5}, v{t6}
  v_cmp_eq_u32 vcc, v{t7}, v{t2}
  s_nop 1
  v_cndmask_b32 v{t5}, 0, v{t5}, vcc
  v_cmp_eq_u32 vcc, 0, v{t4}
  s_nop 1
  v_cndmask_b32 v{PAT}, 0, v{t5}, vcc
  v_cndmask_b32 v{PAT+1}, v{t5}, 0, vcc
  s_lshl_b32 s{sq}, s{sW}, 5
  s_add_u32 s{sq+1}, s{sq}, {L_GN}
  v_lshlrev_b32 v{vga}, 4, v{t7}
  v_add_u32 v{vga}, s{sq+1}, v{vga}
  v_and_b32 v{t2}, 12, v{vl}
  v_add_u32 v{vgq}, v{vga}, v{t2}
  v_and_b32 v{t2}, 3, v{vl}
  v_lshlrev_b32 v{t2}, 3, v{t2}
  v_lshl_add_u32 v{t2}, v{t1}, 5, v{t2}
  v_add_u32 v{vqlane}, {L_Q}, v{t2}
  v_and_b32 v{t2}, 31, v{vl}
  v_lshlrev_b32 v{t4}, 3, v{t2}
  v_add_u32 v{vacl}, {L_ACC}, v{t4}
  v_lshrrev_b32 v{t4}, 4, v{vl}              ; g
  v_mul_u32_u24 v{vxb}, {XS}, v{t0}
  v_lshl_add_u32 v{vxb}, v{t4}, 4, v{vxb}
  v_add_u32 v{vxb}, {L_X}, v{vxb}
  v_mul_u32_u24 v{vqw}, {QS}, v{t0}
  v_lshl_add_u32 v{vqw}, v{t4}, 3, v{vqw}
  s_add_u32 s{sq+1}, s{sq}, {L_Q}
  v_add_u32 v{vqw}, s{sq+1}, v{vqw}
  v_mul_u32_u24 v{vqa}, {2*WPITCH}, v{t4}
  v_bfe_u32 v{t5}, v{vl}, 2, 2
  v_lshl_add_u32 v{vqa}, v{t5}, 8, v{vqa}
  v_xor_b32 v{t5}, s{sW}, v{t5}
  v_lshl_add_u32 v{vqa}, v{t5}, 5, v{vqa}
  v_and_b32 v{t5}, 3, v{vl}
  v_lshl_add_u32 v{vqa}, v{t5}, 3, v{vqa}
  v_add_u32 v{vqa}, {L_WS}, v{vqa}
  v_and_b32 v{t4}, 1, v{vl}
  v_lshlrev_b32 v{t4}, 4, v{t4}
  v_lshlrev_b32 v{t4}, v{t4}, v{t6}
  v_bfe_u32 v{t5}, v{vl}, 1, 4
  v_lshlrev_b32 v{t7}, 2, v{t7}
  v_sub_u32 v{t5}, v{t5}, v{t7}""")
    if OPT["smf"]:
        a(f"""
  v_bfe_u32 v{t4}, v{vl}, 4, 1
  v_bfe_u32 v{t5}, v{vl}, 1, 1
  v_lshl_add_u32 v{t4}, v{t4}, 1, v{t5}
  v_bfe_u32 v{t5}, v{vl}, 3, 1
  v_lshrrev_b32 v{t7}, 5, v{vl}
  v_xor_b32 v{t5}, v{t5}, v{t7}
  v_lshl_add_u32 v{t4}, v{t5}, 2, v{t4}""")
        for i in range(4):
            a(f"  v_cmp_eq_u32 vcc, {i}, v{t4}\n  s_nop 1\n  v_cndmask_b32 v{I0+i}, 0, v{t6}, vcc")
        a(f"""
  v_bfe_u32 v{t4}, v{vl}, 2, 1
  v_and_b32 v{t5}, 1, v{vl}
  v_lshl_add_u32 v{t4}, v{t4}, 1, v{t5}
  v_mul_u32_u24 v{I1}, 0x5555, v{t4}
  v_bfe_u32 v{t4}, v{vl}, 2, 2
  v_mul_u32_u24 v{t5}, {4*1040}, v{t7}
  v_lshl_add_u32 v{t5}, v{t4}, 8, v{t5}
  v_subrev_u32 v{t7}, {L_Q}, v{vqlane}
  v_add3_u32 v{t5}, v{t5}, v{t7}, s{sStg}""")
        for t in range(4):
            a(f"  v_xor_b32 v{t7}, {t}, v{t4}\n  v_lshl_add_u32 v{vAT+t}, v{t7}, 6, v{t5}")
    else:
        for i in range(4):
            a(f"  v_cmp_eq_u32 vcc, {i}, v{t5}\n  s_nop 1\n  v_cndmask_b32 v{I0+i}, 0, v{t4}, vcc")
            a(f"  v_cmp_eq_u32 vcc, {8+i}, v{t5}\n  s_nop 1\n  v_cndmask_b32 v{I1+i}, 0, v{t4}, vcc")
    if not OPT["k8"]:
        a(f"  v_mov_b32 v{AQ+2}, 0\n  v_mov_b32 v{AQ+3}, 0")
        for t in range(4):
            a(f"  v_mov_b32 v{BQ+4*t+2}, 0\n  v_mov_b32 v{BQ+4*t+3}, 0")
    def prefetch():
        if not OPT["pf"]: return
        a(f"  s_mul_i32 s{sq}, s2, 40000\n  s_sub_u32 s{sq}, s{sq}, 4096\n  v_add_u32 v{t0}, s{sq}, v{vt16}")
        for j in range(10):
            a(f"  buffer_load_dwordx4 {v(DUM,4)}, v{t0}, {s(SE,4)}, 0 offen")
            if j < 9: a(f"  v_add_u32 v{t0}, 4096, v{t0}")
    def wtr(dst, ad):
        for st in range(4):
            for hf in range(2):
                a(f"  ds_read_b64_tr_b16 {v(dst+4*st+2*hf,2)}, v{ad} offset:{(8*st+hf)*WPITCH}")
    def own_x(nyounger):
        a(f"""
  v_lshrrev_b32 v{t0}, 4, v0
  v_lshl_add_u32 v{t0}, v{t0}, 5, v{vt16}
  v_add_u32 v{t0}, {L_X}, v{t0}
  s_waitcnt vmcnt({nyounger})
  ds_write_b128 v{t0}, {v(XL,4)}
  s_mov_b32 exec_lo, s{sLo2}
  s_mov_b32 exec_hi, s{sLo2}
  ds_write_b128 v{t0}, {v(XL+4,4)} offset:{32*XS}
  s_mov_b64 exec, -1""")
    a(f"""
  s_cmp_lt_u32 s{sW}, 2
  s_cselect_b32 s{sLo2}, -1, 0
  s_lshr_b32 s{sq}, s2, {1+FSH}
  s_lshl_b32 s{sq}, s{sq}, 8
  s_bfe_u32 s{sq+1}, s2, {hex((FSH<<16)|1)}
  s_lshl_b32 s{sq+1}, s{sq+1}, 2
  s_add_u32 s{sq}, s{sq}, s{sq+1}
  s_and_b32 s{sq+1}, s2, 1
  s_mul_i32 s{sq+1}, s{sq+1}, {FHALF}
  s_add_u32 s{sq}, s{sq}, s{sq+1}
  v_mul_u32_u24 v{vgn1}, {FLN*256}, v{vl}
  v_add_u32 v{vgn1}, s{sq}, v{vgn1}
  v_lshrrev_b32 v{t2}, {FSH-1}, v{vl}
  v_lshlrev_b32 v{t2}, 8, v{t2}
  v_and_b32 v{t3}, {(1<<(FSH-1))-1}, v{vl}
  v_lshl_add_u32 v{t2}, v{t3}, 3, v{t2}
  v_add_u32 v{vsrow}, s{sP}, v{t2}
  s_mov_b32 s{sK}, {NLOG2E}
  s_mov_b32 s{sK+1}, {NLOG2E}
  s_waitcnt lgkmcnt(0)
  s_add_u32 s{sTag}, s{sTag}, 1
  s_max_u32 s{sTag}, s{sTag}, 1
  s_bitcmp1_b32 s2, 0
  s_cbranch_scc1 K_GEMM
  s_cmp_ge_u32 s2, {2*G}
  s_cbranch_scc1 K_PREP
  s_mov_b32 s{sq}, {MAGIC}
  v_lshlrev_b32 v{t7}, 6, v0
  v_add_u32 v{t7}, {1<<18}, v{t7}
  s_barrier
  s_waitcnt vmcnt({5+NCC})""")
    stamp(a, 1)
    for j in range(5):
        a(f"""
  v_mul_u32_u24 v{B4+j}, s{sq}, v{DD+j}
  v_lshrrev_b32 v{B4+j}, 18, v{B4+j}
  v_and_b32 v{B4+j}, 0x3fc, v{B4+j}
  v_add_u32 v{t0+j}, {L_BCNT}, v{B4+j}
  ds_add_rtn_u32 v{RK+j}, v{t0+j}, v{vone}""")
    def claim_pair():
        a(f"  s_lshl_b32 s{sT}, s{sStart}, 8\n  s_sub_u32 s{sCnt}, {N*256}, s{sT}")
        srd(a, T1, pWS, f"s{sCnt}", add=WS_P, addreg=sT)
        a(f"""
  s_mul_i32 s{sT}, s{sW}, 2560
  v_lshl_add_u32 v{DO}, v{vl}, 7, s{sT}
  v_mov_b32 v{DO+1}, 0
  s_mov_b64 exec, 0xfffff
  buffer_atomic_or v{DO+1}, v{DO}, {s(T1,4)}, 0 offen
  s_mov_b64 exec, -1""")
    if OPT["claim"] & 16: claim_pair()
    a(f"  s_waitcnt vmcnt({NCC + (1 if OPT['claim'] & 16 else 0)})")
    if OPT["claim"] & 8: claim_pair()
    for j in range(5):
        a(f"""
  v_lshl_add_u32 v{SS_+j}, v{SS_+j}, 18, v{t7}
  v_and_or_b32 v{SS_+j}, v{DD+j}, 63, v{SS_+j}
  v_lshlrev_b32 v{CA+j}, 5, v{B4+j}
  v_add_u32 v{CA+j}, {L_CIMG}, v{CA+j}""")
        if j < 4: a(f"  v_add_u32 v{t7}, {512<<6}, v{t7}")
    srd(a, T2, pWS, NB*BSTR if not OPT["dbg"] & 4 else 0, add=WS_CELL + (0x2000000 if OPT["dbg"] & 1 else 0))
    a(f"""
  v_lshrrev_b32 v{t4}, 3, v0
  s_mov_b32 s{sq}, {BSTR}
  v_mul_u32_u24 v{t4}, s{sq}, v{t4}
  v_and_b32 v{t5}, 7, v0
  v_lshl_add_u32 v{t4}, v{t5}, 4, v{t4}
  s_lshl_b32 s{sq}, s2, {5 if OPT['half'] == 2 else 6}
  s_mov_b64 {s(sBad,2)}, 0
  s_waitcnt lgkmcnt(0)""")
    for j in range(5):
        a(f"""
  v_mul_u32_u24 v{t1}, 37, v{RK+j}
  v_lshl_add_u32 v{t0}, v{RK+j}, 2, v{CA+j}
  v_lshrrev_b32 v{t1}, 8, v{t1}
  v_cmp_le_u32 vcc, {CAP}, v{RK+j}
  v_lshl_add_u32 v{t0}, v{t1}, 2, v{t0}
  s_or_b64 {s(sBad,2)}, {s(sBad,2)}, vcc
  s_andn2_b64 exec, exec, vcc
  ds_write_b32 v{t0}, v{SS_+j}
  s_mov_b64 exec, -1""")
    a(f"""
  v_add_u32 v{t0}, {L_CIMG}, v{vt16}
  v_mov_b32 v{t2}, {L_FLG+4}
  s_cmp_eq_u64 {s(sBad,2)}, 0
  s_cbranch_scc1 K_NOFULL
  ds_write_b32 v{t2}, v{vone}
K_NOFULL:
  s_waitcnt lgkmcnt(0)
  s_barrier""")
    stamp(a, 2)
    a(f"  ds_read_b32 v{t2}, v{t2}\nK_OVFDONE:")
    for j in range(4):
        a(f"  ds_read_b128 {v(CP+4*j,4)}, v{t0} offset:{8192*j}")
    a(f"""
  s_waitcnt vmcnt({2 if OPT['claim'] & 2 else 63}) lgkmcnt(4)
  v_cmp_ne_u32 vcc, 0, v{t2}
  s_cbranch_vccnz K_OVF""")
    for j in range(4):
        a(f"""
  s_mov_b32 exec_lo, 0xaaaaaaaa
  s_mov_b32 exec_hi, 0xaaaaaaaa
  s_waitcnt lgkmcnt({3-j})
  v_mov_b32 v{CP+4*j+3}, s{sTag}
  s_mov_b64 exec, -1
  {"s_mov_b32 exec_lo, 0x0f0f0f0f" + chr(10) + "  s_mov_b32 exec_hi, 0x0f0f0f0f" if OPT["half"] else ""}
  buffer_store_dwordx4 {v(CP+4*j,4)}, v{t4}, {s(T2,4)}, s{sq} offen {STF}
  s_mov_b64 exec, -1
  s_add_u32 s{sq}, s{sq}, {64*BSTR}""")
    a(f"  s_lshl_b32 s{sq}, s{sStart}, 8\n  s_lshl_b32 s{sq+1}, s{sNb}, 8")
    srd(a, T2, pX, f"s{sq+1}", addreg=sq)
    a(f"""
  v_add_u32 v{t6}, 8192, v{vt16}
  buffer_load_dwordx4 {v(XL,4)}, v{vt16}, {s(T2,4)}, 0 offen
  buffer_load_dwordx4 {v(XL+4,4)}, v{t6}, {s(T2,4)}, 0 offen""")
    own_x(0)
    a(f"""
  {"s_sleep %d" % OPT["slpa"] if OPT["slpa"] else ""}""")
    def spf(n, per_wave, base):
        if not n: return
        assert 8*OPT['spf'] + 4*OPT['spfb'] <= 640
        a(f"""
  s_lshr_b32 s{sq}, s2, 1
  s_min_u32 s{sq}, s{sq}, {G-1}
  s_mul_i32 s{sq}, s{sq}, {CH*32}
  s_mul_i32 s{sq+1}, s{sW}, {per_wave}
  s_add_u32 s{sq}, s{sq}, s{sq+1}
  s_add_u32 s{sq}, s{sq}, {base}
  s_add_u32 s{T0}, s{pE}, s{sq}
  s_addc_u32 s{T0+1}, s{pE+1}, 0""")
        for i in range(n):
            a(f"  s_load_dword s{T0+2}, s[{T0}:{T0+1}], {128*i}")
    spf(OPT["spf"], OPT["spf"]*128, 0)
    a(f"""
  s_branch K_PST
K_GW:
  {"s_sleep %d" % OPT["slpb"] if OPT["slpb"] else ""}""")
    spf(OPT["spfb"], OPT["spfb"]*128, OPT["spf"]*1024)
    a(f"""
  s_branch K_PST
K_GEMM:
  ; ---------------- P gemm role: rows of this bucket and the one before ----------------""")
    if OPT["touch"]:
        a(f"""
  s_cmp_lg_u32 s{sW}, 0
  s_cbranch_scc1 K_NOTOUCH
  s_waitcnt vmcnt(0)
  s_mov_b64 exec, {FMASK}
  buffer_load_dword v{DUM}, v{vgn1}, {s(SF,4)}, 0 offen sc1
  s_mov_b64 exec, -1
K_NOTOUCH:""")
    a(f"""
  s_mul_i32 s{sq}, s{sNp}, {XS}
  s_sub_u32 s{sq}, {L_X}, s{sq}
  v_lshrrev_b32 v{t0}, 4, v0
  v_lshl_add_u32 v{t0}, v{t0}, 5, v{vt16}
  v_add_u32 v{t3}, s{sq}, v{t0}
  s_cmp_lt_u32 s{sW}, 4
  s_cselect_b32 s{sq+1}, -1, 0
  v_subrev_u32 v{t1}, {L_X}, v{vxb}
  v_add_u32 v{t1}, s{sq}, v{t1}
  s_waitcnt vmcnt({(2 if OPT['wfirst'] else 6)+NCL})
  ds_write_b128 v{t3}, {v(GX,4)}
  s_waitcnt vmcnt({(1 if OPT['wfirst'] else 5)+NCL})
  ds_write_b128 v{t3}, {v(GX+4,4)} offset:{32*XS}
  s_waitcnt vmcnt({(0 if OPT['wfirst'] else 4)+NCL})
  s_mov_b32 exec_lo, s{sq+1}
  s_mov_b32 exec_hi, s{sq+1}
  ds_write_b128 v{t3}, {v(GX+8,4)} offset:{64*XS}
  s_mov_b64 exec, -1
  v_and_b32 v{t2}, 15, v{vl}
  v_mul_u32_u24 v{t2}, {XS}, v{t2}
  v_lshrrev_b32 v{t3}, 4, v{vl}
  v_lshl_add_u32 v{t2}, v{t3}, 3, v{t2}
  s_lshl_b32 s{sq}, s{sW}, 5
  s_add_u32 s{sq}, s{sq}, {L_GP}
  v_add_u32 v{t2}, s{sq}, v{t2}
  v_add_u32 v{t0}, {L_GP - 16*XS}, v{t0}
  v_subrev_u32 v{t4}, 4096, v{vt16}""")
    srd(a, T0, pWS, f"s{sCnt}", add=WS_P + (0x2800000 if OPT["dbg"] & 2 else 0), addreg=sT)
    a(f"  s_waitcnt vmcnt({NCL}) lgkmcnt(0)\n  s_barrier")
    stamp(a, 1)
    wtr(W1F, vqa)
    XT = [PF, PF+16, EA, EB, PF]
    for nt in range(4):
        for st in range(4):
            a(f"  ds_read_b128 {v(XT[nt]+4*st,4)}, v{t1} offset:{nt*16*XS + st*64}")
    for nt in range(5):
        a(f"  s_waitcnt lgkmcnt({(12, 12, 8, 4, 0)[nt]})")
        for st in range(4):
            c = "0" if st == 0 else v(D0+4*nt, 4)
            a(f"  v_mfma_f32_16x16x32_bf16 {v(D0+4*nt,4)}, {v(W1F+4*st,4)}, {v(XT[nt]+4*st,4)}, {c}")
        if nt == 0:
            for st in range(4):
                a(f"  ds_read_b128 {v(PF+4*st,4)}, v{t1} offset:{4*16*XS + st*64}")
    for nt in range(5):
        d = D0 + 4*nt
        if nt == 4: a("  s_nop 1")
        a(f"""
  v_pk_mul_f32 {v(d,2)}, {v(d,2)}, {s(sK,2)}
  v_pk_mul_f32 {v(d+2,2)}, {v(d+2,2)}, {s(sK,2)}
  v_cvt_pk_bf16_f32 v{W3+2*nt}, v{d}, v{d+1}
  v_cvt_pk_bf16_f32 v{W3+2*nt+1}, v{d+2}, v{d+3}
  ds_write_b64 v{t2}, {v(W3+2*nt,2)} offset:{nt*16*XS}""")
    a(f"  s_waitcnt vmcnt({NA}) lgkmcnt(0)\n  s_barrier")
    stamp(a, 2)
    a(f"""
  s_cmp_lt_u32 s{sW}, 4
  s_cbranch_scc1 K_GW""")
    if OPT["pdl"]: a(f"  s_sleep {OPT['pdl']}")
    for j in range(5):
        a(f"  ds_read_b128 {v(PF+4*j,4)}, v{t0} offset:{j*16*XS}")
    if OPT["zt"]:
        srd(a, T1, pWS, f"s{sCnt}", add=0x1800000, addreg=sT)
        a(f"  s_waitcnt lgkmcnt(0)\n  v_mov_b32 v{t1}, v{t4}")
        for j in range(5):
            a(f"  buffer_store_dwordx4 {v(PF+4*j,4)}, v{t1}, {s(T1,4)}, 0 offen {STF}\n  v_add_u32 v{t1}, 4096, v{t1}")
        a("  s_waitcnt vmcnt(0)")
        stamp(a, 1)
    for j in range(5):
        a(f"  s_waitcnt lgkmcnt({4-j})\n  buffer_store_dwordx4 {v(PF+4*j,4)}, v{t4}, {s(T0,4)}, 0 offen {STF}")
        if j < 4: a(f"  v_add_u32 v{t4}, 4096, v{t4}")
    a(f"""
  v_mov_b32 v{t0}, {L_FLG+12}
  v_mov_b32 v{t7}, s{sTag}
""")
    if OPT["early"]:
        a(f"""
  {"s_sleep %d" % OPT["early"] if OPT["early"] > 5 else "s_waitcnt vmcnt(%d)" % OPT["early"]}
  v_min_u32 v{t4}, 2, v{vl}
  s_lshl_b32 s{sq}, s2, 7
  v_lshl_add_u32 v{t4}, v{t4}, 2, s{sq}
  buffer_load_dwordx4 {v(REC,4)}, v{vcell}, {s(SC,4)}, 0 offen sc1
  buffer_load_dwordx4 {v(REC+4,4)}, v{vcell}, {s(SC,4)}, 0 offen offset:64 sc1
  {"buffer_load_dword v%d, v%d, %s, 0 offen sc1" % (t5, t4, s(SF,4)) if not OPT["s0m"] else ""}
  s_mov_b32 s{sKind}, 9""")
    a(f"""
  s_mov_b64 exec, 1
  s_waitcnt vmcnt({(2 if OPT["s0m"] else 3) if OPT["early"] else 0})""")
    stamp(a, 3)
    a(f"""
  ds_add_rtn_u32 v{t0}, v{t0}, v{vone}
  s_waitcnt lgkmcnt(0)
  v_readfirstlane_b32 s{sOV+5}, v{t0}
  s_mov_b64 exec, -1
  s_cmp_lg_u32 s{sOV+5}, 3
  s_cbranch_scc1 K_PST
K_FLAG:
  s_mov_b64 exec, {FMASK}
  buffer_store_dword v{t7}, v{vgn1}, {s(SF,4)}, 0 offen {FLF}
  s_mov_b64 exec, -1
K_PST:""")
    def node_gemm(WA, WB=None):
        for nt in range(3):
            xf = XF + 16*(nt & 1)
            if nt == 0:
                for n2 in range(2):
                    for st in range(4):
                        a(f"  ds_read_b128 {v(XF+16*n2+4*st,4)}, v{vxb} offset:{n2*16*XS + st*64}")
            a(f"  s_waitcnt lgkmcnt({4 if nt == 0 else 5 if nt == 1 else 1})")
            q = QD if nt != 1 else SA
            for st in range(4):
                c = "0" if st == 0 else v(q, 4)
                a(f"  v_mfma_f32_16x16x32_bf16 {v(q,4)}, {v(WA+4*st,4)}, {v(xf+4*st,4)}, {c}")
            if WB is not None:
                for st in range(4):
                    c = "0" if st == 0 else v(U+4*nt, 4)
                    a(f"  v_mfma_f32_16x16x32_bf16 {v(U+4*nt,4)}, {v(WB+4*st,4)}, {v(xf+4*st,4)}, {c}")
            if nt == 0:
                for st in range(4):
                    a(f"  ds_read_b128 {v(XF+4*st,4)}, v{vxb} offset:{2*16*XS + st*64}")
            a(f"""
  s_nop 7
  v_pk_mul_f32 {v(q,2)}, {v(q,2)}, {s(sK,2)}
  v_pk_mul_f32 {v(q+2,2)}, {v(q+2,2)}, {s(sK,2)}
  v_cvt_pk_bf16_f32 v{QD+4+2*(nt&1)}, v{q}, v{q+1}
  v_cvt_pk_bf16_f32 v{QD+5+2*(nt&1)}, v{q+2}, v{q+3}""")
            if nt == 2:
                a(f"  s_mov_b32 exec_lo, 0x00ff00ff\n  s_mov_b32 exec_hi, 0x00ff00ff")
            a(f"  ds_write_b64 v{vqw}, {v(QD+4+2*(nt&1),2)} offset:{nt*16*QS}")
            if nt == 2:
                a("  s_mov_b64 exec, -1")
    assert SB == SA + 2
    def poll(lab, off):
        a(f"""
  s_cmp_lg_u32 s{sW}, 1
  s_cbranch_scc1 {lab}_D
  s_mov_b32 s{sq}, 0
  s_mov_b32 s{sq+1}, {off}
  v_min_u32 v{t0}, 2, v{vl}
  s_lshl_b32 s{sBad}, s2, 7
  v_lshl_add_u32 v{t0}, v{t0}, 2, s{sBad}
{lab}:
  buffer_load_dwordx2 {v(DUM,2)}, v{vsrow}, {s(SF,4)}, s{sq+1} offen {PLF}
  buffer_load_dword v{DUM+2}, v{t0}, {s(SF,4)}, 0 offen {PLF}
  s_add_u32 s{sq}, s{sq}, 1
  s_waitcnt vmcnt(0)
  v_cmp_ne_u32 vcc, s{sTag}, v{DUM}
  v_cmp_ne_u32 {s(sBad,2)}, s{sTag}, v{DUM+1}
  s_or_b64 vcc, vcc, {s(sBad,2)}
  v_cmp_ne_u32 {s(sBad,2)}, s{sTag}, v{DUM+2}
  s_or_b64 vcc, vcc, {s(sBad,2)}
  s_cbranch_scc0 {lab}_D
  {"s_sleep %d" % OPT["slp"] if OPT["slp"] else ""}
  s_cmp_lt_u32 s{sq}, 0x8000
  s_cbranch_scc1 {lab}
{lab}_D:""")
    stamp(a, 5)
    nld = 16 if OPT["lo"] else 12
    a(f"""
  s_lshl_b32 s{sTmp}, s{sW}, 12
  s_add_u32 s{sTmp+1}, s{sTmp}, {WF_UT}
  s_add_u32 s{sUB}, s{sTmp}, {WF_UB}
  s_mov_b32 s{sTmp+2}, {WF_3H}
  s_mov_b32 s{sTmp+3}, {WF_3L}
  s_mov_b32 s{sOV}, {0xaaaaaaaa if not OPT["dbg"] & 5 else 0}
  s_cmp_eq_u32 s{sW}, 7
  s_cselect_b32 s{sOV+1}, {0xaaaaa if not OPT["dbg"] & 5 else 0}, s{sOV}
  v_min_u32 v{t4}, 2, v{vl}
  s_lshl_b32 s{sq}, s2, 7
  v_lshl_add_u32 v{t4}, v{t4}, 2, s{sq}
  s_mov_b32 s{sq}, 0
  {"s_sleep %d" % OPT["slp0"] if OPT["slp0"] else ""}
""")
    wl = [f"  buffer_load_dwordx4 {v(W2F+4*st,4)}, v{vgl}, {s(SW,4)}, s{sTmp} offen offset:{st*1024} sc1" for st in range(4)]
    wl += [f"  buffer_load_dwordx4 {v(WUT+4*st,4)}, v{vgl}, {s(SW,4)}, s{sTmp+1} offen offset:{st*1024} sc1" for st in range(4)]
    wl += [f"  buffer_load_dwordx4 {v(W3+4*st,4)}, v{vgl}, {s(SW,4)}, s{sTmp+2} offen offset:{st*1024} sc1" for st in range(4)]
    if OPT["lo"]:
        wl += [f"  buffer_load_dwordx4 {v(W3L+4*st,4)}, v{vgl}, {s(SW,4)}, s{sTmp+3} offen offset:{st*1024} sc1" for st in range(4)]
    a(f"""
  v_lshlrev_b32 v{vgl}, 4, v{vl}
  s_mov_b32 s{sOV+6}, 0
  v_mov_b32 v{DK+1}, 0
  {"s_cmp_eq_u32 s%d, 9" % sKind + chr(10) + "  s_mov_b32 s%d, 0" % sKind + chr(10) + "  s_cbranch_scc1 K_CPOLLW" if OPT["early"] else ""}
K_CPOLL:
  buffer_load_dwordx4 {v(REC,4)}, v{vcell}, {s(SC,4)}, 0 offen sc1
  {"buffer_load_dwordx4 %s, v%d, %s, 0 offen offset:64 sc1" % (v(REC+4,4), vcell, s(SC,4)) if not OPT["half"] else chr(10).join(["v_mov_b32 v%d, 0" % (REC+4+i) for i in range(3)] + ["v_mov_b32 v%d, s%d" % (REC+7, sTag)])}
  {"buffer_load_dword v%d, v%d, %s, 0 offen sc1" % (t5, t4, s(SF,4)) if not OPT["s0m"] else ""}
  s_add_u32 s{sq}, s{sq}, 1
  s_waitcnt vmcnt(0)
K_CPOLLC:
  v_cmp_ne_u32 vcc, s{sTag}, v{REC+3}
  v_cmp_ne_u32 {s(sBad,2)}, s{sTag}, v{REC+7}
  s_or_b64 {s(sBad,2)}, vcc, {s(sBad,2)}
  {"v_cmp_ne_u32 %s, s%d, v%d" % (s(sOV+2,2), sTag, t5) if not OPT["s0m"] else "s_mov_b64 %s, -1" % s(sOV+2,2)}
  s_and_b64 {s(sBad,2)}, {s(sBad,2)}, {s(sOV,2)}
  {"s_or_b64 %s, %s, %s" % (s(sBad,2), s(sBad,2), s(sOV+2,2)) if OPT["gate"] else ""}
  s_cbranch_scc1 K_CAGAIN""")
    rare.append(f"""
K_CPOLLW:
  s_waitcnt vmcnt(1)
  s_cmp_eq_u32 s{sOV+5}, 3
  s_cbranch_scc1 K_CPOLLC
  s_waitcnt vmcnt(0)
  s_branch K_CPOLLC
K_CAGAIN:
""" + (f"""
  s_cmp_lg_u64 {s(sOV+2,2)}, 0
  s_cbranch_scc1 K_CA2
  s_cmp_lg_u32 s{sOV+6}, 0
  s_cbranch_scc1 K_CA2
  s_mov_b32 s{sOV+6}, 1
""" + "\n".join(wl) if not OPT["s0i"] else f"""
  s_cmp_lg_u32 s{sOV+6}, 0
  s_cbranch_scc1 K_CA2
  s_cmp_lt_u32 s{sq}, {OPT["s0i"]}
  s_cbranch_scc1 K_CA2
  v_cmp_ne_u32 vcc, s{sTag}, v{DK+1}
  s_cbranch_vccz K_CA1
  buffer_load_dword v{DK+1}, v{t4}, {s(SF,4)}, 0 offen sc1
  s_branch K_CA2
K_CA1:
  s_mov_b32 s{sOV+6}, 1
""" + "\n".join(wl)) + f"""
K_CA2:
  {"s_sleep %d" % OPT["slp"] if OPT["slp"] else ""}
  s_cmp_lt_u32 s{sq}, 0x8000
  s_cbranch_scc1 K_CPOLL
  s_branch K_CPOLLD""")
    a(f"""
K_CPOLLD:
  {"v_mov_b32 v%d, v%d" % (DK+2, t4) + chr(10) + "  buffer_load_dword v%d, v%d, %s, 0 offen sc1" % (DK+1, t4, s(SF,4)) if OPT["s0m"] else ""}
  s_mov_b32 exec_lo, 0xaaaaaaaa
  s_mov_b32 exec_hi, 0xaaaaaaaa
  v_mov_b32 v{REC+3}, 0
  v_mov_b32 v{REC+7}, 0
  s_mov_b64 exec, -1
  {"v_mov_b32 v%d, 0" % (REC+7) if OPT["half"] else ""}""")
    stamp(a, 6)
    NR = 8
    a(f"""
K_PHASE1:
  v_cmp_le_u32 vcc, 0xfffc0000, v{REC+NR-2}
  s_cbranch_vccnz K_MARK
K_NOMARK:""")
    rare.append(f"""
K_MARK:
  s_and_saveexec_b64 {s(sEx,2)}, vcc
  v_lshrrev_b32 v{t0}, 2, v0                 ; producer
  v_lshrrev_b32 v{t1}, 5, v{t0}
  v_lshlrev_b32 v{t1}, 2, v{t1}
  v_lshlrev_b32 v{t0}, v{t0}, v{vone}
  ds_or_b32 v{t1}, v{t0} offset:{L_FLG+32}
  v_mov_b32 v{REC+NR-2}, 0
  s_mov_b64 exec, {s(sEx,2)}
  s_branch K_NOMARK""")
    for k in range(NR):
        if k == 4:
            a(f"""
  v_or3_b32 v{t3}, v{REC+k}, v{REC+k+1}, v{REC+k+2}
  v_or_b32 v{t3}, v{t3}, v{REC+k+3}
  v_cmp_ne_u32 vcc, 0, v{t3}
  s_cbranch_vccz K_P1E""")
        a(f"""
  v_lshlrev_b32 v{NOD+k}, 2, v{REC+k}
  v_and_b32 v{NOD+k}, 0xfc, v{NOD+k}
  v_cmpx_ne_u32 vcc, 0, v{REC+k}
  ds_add_rtn_u32 v{RNK+k}, v{NOD+k}, v{vone} offset:{L_CNT}
  s_mov_b64 exec, -1""")
    a(f"""
K_P1E:
  s_cmp_lg_u32 s{sOV+6}, 0
  s_cbranch_scc1 K_NOWL
  s_cmp_lg_u64 {s(sOV+2,2)}, 0
  s_cbranch_scc1 K_NOWL
  s_mov_b32 s{sOV+6}, 1""")
    if OPT["stamp"] and OPT["s0st"]: a("  s_memrealtime s[86:87]")
    for x in wl: a(x)
    a(f"""
K_NOWL:
  v_lshlrev_b32 v{t0}, 2, v{vl}
  v_subrev_u32 v{t4}, s{sStart}, v{vl}
  v_and_b32 v{t4}, 63, v{t4}
  s_waitcnt lgkmcnt(0)""")
    fstamp(a, 1)
    a(f"""
  s_barrier""")
    fstamp(a, 2)
    a(f"""
  ds_read_b32 v{t1}, v{t0} offset:{L_CNT}
  s_waitcnt lgkmcnt(0)
  v_add_u32 v{t1}, 3, v{t1}
  v_bfe_u32 v{t5}, v{t1}, 2, 1               ; left-over quad
  v_lshrrev_b32 v{t6}, 3, v{t1}
  v_lshl_or_b32 v{t1}, v{t5}, 16, v{t6}
  v_mov_b32 v{t2}, v{t1}
  s_nop 1
  v_add_u32_dpp v{t2}, v{t2}, v{t2} row_shr:1 row_mask:0xf bank_mask:0xf
  s_nop 1
  v_add_u32_dpp v{t2}, v{t2}, v{t2} row_shr:2 row_mask:0xf bank_mask:0xf
  s_nop 1
  v_add_u32_dpp v{t2}, v{t2}, v{t2} row_shr:4 row_mask:0xf bank_mask:0xf
  s_nop 1
  v_add_u32_dpp v{t2}, v{t2}, v{t2} row_shr:8 row_mask:0xf bank_mask:0xf
  s_nop 1
  v_add_u32_dpp v{t2}, v{t2}, v{t2} row_bcast:15 row_mask:0xa bank_mask:0xf
  s_nop 1
  v_add_u32_dpp v{t2}, v{t2}, v{t2} row_bcast:31 row_mask:0xc bank_mask:0xf
  s_nop 1
  v_readlane_b32 s{sT}, v{t2}, 63
  v_sub_u32 v{t1}, v{t2}, v{t1}
  s_lshr_b32 s{sq+1}, s{sT}, 16
  s_and_b32 s{sCO}, s{sT}, 0xffff
  s_lshl_b32 s{sq}, s{sCO}, 1                ; quads in the groups of eight
  s_lshr_b32 s{sCO}, s{sCO}, 2
  s_add_u32 s{sT}, s{sq}, s{sq+1}
  s_add_u32 s{sT}, s{sT}, 7
  s_lshr_b32 s{sT}, s{sT}, 3
  v_lshrrev_b32 v{t2}, 16, v{t1}
  v_add_u32 v{t2}, s{sq}, v{t2}              ; quad slot of the left-over quad
  v_and_b32 v{t1}, 0xffff, v{t1}
  v_lshl_or_b32 v{t0}, v{t6}, 16, v{t1}
  v_lshlrev_b32 v{t0}, 3, v{t0}              ; 8*start8 | 8*n8 << 16
  v_lshlrev_b32 v{t7}, 1, v{t6}
  v_sub_u32 v{t7}, v{t2}, v{t7}
  v_lshlrev_b32 v{t7}, 2, v{t7}              ; position base of the left-over quad
  s_cmp_gt_u32 s{sT}, {CAPB}
  s_cbranch_scc1 K_SPLIT""")
    fstamp(a, 3)
    def bp(ks):
        for k in ks:
            a(f"  ds_bpermute_b32 v{PF+16+k}, v{NOD+k}, v{t7}")
            a(f"  ds_bpermute_b32 v{NOD+k}, v{NOD+k}, v{t0}")
    def ent(ks):
        for k in ks:
            e = PF + 2*k
            a(f"""
  v_lshrrev_b32 v{e}, 10, v{REC+k}
  v_and_b32 v{e}, {hex(0xffffff00 if not OPT['hot'] else 0x1f00)}, v{e}
  v_bfe_u32 v{e+1}, v{REC+k}, 6, 12
  v_lshl_add_u32 v{e+1}, v{e+1}, 5, v{vebase}""")
    def put(ks):
        for k in ks:
            a(f"  v_cmp_lt_u32_sdwa {s(8+2*(k&3),2)}, v{RNK+k}, v{NOD+k} src0_sel:DWORD src1_sel:WORD_1")
        for k in ks:
            a(f"  v_and_b32 v{NOD+k}, 0xffff, v{NOD+k}")
        for k in ks:
            a(f"  v_cndmask_b32 v{NOD+k}, v{PF+16+k}, v{NOD+k}, {s(8+2*(k&3),2)}")
        for k in ks:
            a(f"""
  v_add_lshl_u32 v{NOD+k}, v{NOD+k}, v{RNK+k}, 3
  v_cmpx_ne_u32 vcc, 0, v{REC+k}
  ds_write_b64 v{NOD+k}, {v(PF+2*k,2)}
  s_mov_b64 exec, -1""")
    bp(range(4))
    a(f"""
  v_or3_b32 v{t3}, v{REC+4}, v{REC+5}, v{REC+6}
  v_or_b32 v{t3}, v{t3}, v{REC+7}
  v_cmp_ne_u32 {s(sK2,2)}, 0, v{t3}
  s_cmp_eq_u64 {s(sK2,2)}, 0
  s_cbranch_scc1 K_P2A""")
    bp(range(4, 8))
    ent(range(4, 8))
    a("K_P2A:")
    if OPT["s0m"]:
        a(f"""
  s_cmp_lg_u32 s{sOV+6}, 0
  s_cbranch_scc1 K_S0A
  s_waitcnt vmcnt(0)
  v_cmp_ne_u32 vcc, s{sTag}, v{DK+1}
  s_cbranch_vccnz K_S0AX
  s_mov_b32 s{sOV+6}, 1""")
        for x in wl: a(x)
        a("K_S0A:")
        rare.append(f"K_S0AX:\n  buffer_load_dword v{DK+1}, v{DK+2}, {s(SF,4)}, 0 offen sc1\n  s_branch K_S0A")
    ent(range(4))
    a(f"""
  v_lshlrev_b32 v{t2}, 2, v{t2}
  v_add_lshl_u32 v{t3}, v{t1}, v{t6}, 3
  v_lshl_add_u32 v{t1}, v{t1}, 1, s{sW}
  v_lshlrev_b32 v{t1}, 2, v{t1}
  s_waitcnt lgkmcnt(0)""")
    put(range(4))
    a(f"  s_cmp_eq_u64 {s(sK2,2)}, 0\n  s_cbranch_scc1 K_P2E")
    put(range(4, 8))
    a("K_P2E:")
    fstamp(a, 5)
    a(f"""
  v_cmpx_ne_u32 vcc, 0, v{t5}
  ds_write_b32 v{t2}, v{t4} offset:{L_GN}
  s_mov_b64 exec, -1
K_GNL:
  v_cmpx_lt_u32 vcc, v{t1}, v{t3}
  ds_write_b32 v{t1}, v{t4} offset:{L_GN}
  v_add_u32 v{t1}, 32, v{t1}
  v_cmpx_lt_u32 vcc, v{t1}, v{t3}
  ds_write_b32 v{t1}, v{t4} offset:{L_GN}
  v_add_u32 v{t1}, 32, v{t1}
  v_cmpx_lt_u32 vcc, v{t1}, v{t3}
  s_cbranch_execnz K_GNL
  s_mov_b64 exec, -1
  s_add_u32 s{sCnt}, s{sT}, 7
  s_sub_u32 s{sCnt}, s{sCnt}, s{sW}
  s_lshr_b32 s{sCnt}, s{sCnt}, 3
  s_add_u32 s{sCO}, s{sCO}, 7
  s_sub_u32 s{sCO}, s{sCO}, s{sW}
  s_lshr_b32 s{sCO}, s{sCO}, 3
  {("s_mov_b32 s%d, 40" % sCnt + chr(10) + "  s_movk_i32 s%d, 320" % sT + chr(10) + "  s_mov_b32 s%d, 40" % sCO) if OPT["bench"] else ""}
""")
    stamp(a, 4)
    if OPT["s0m"]:
        a(f"""
  s_cmp_lg_u32 s{sOV+6}, 0
  s_cbranch_scc1 K_S0B
  s_waitcnt vmcnt(0)
  v_cmp_ne_u32 vcc, s{sTag}, v{DK+1}
  s_cbranch_vccnz K_S0BX
  s_mov_b32 s{sOV+6}, 1""")
        for x in wl: a(x)
        a("K_S0B:")
        rare.append(f"K_S0BX:\n  s_nop 0\n  s_branch K_S0B")
    a(f"""
  s_cmp_eq_u32 s{sFirst}, 0
  s_cbranch_scc1 K_POLL2_D""")
    poll("K_POLL2", FHALF)
    a("  s_waitcnt lgkmcnt(0)\n  s_barrier")
    stamp(a, 7)
    dsc = [" sc1", " sc0 sc1", " sc1 nt"][OPT["pfl"]] if OPT["dsc"] else ""
    def dma_issue():
        L = []
        for j in range(8):
            d = DO + (j & 1)
            L.append([f"  s_add_u32 m0, s{sStg}, {j*1040}",
                      f"  v_add_u32_dpp v{d}, v{ENT}, v{vchunk} row_newbcast:{2*j} row_mask:0xf bank_mask:0xf",
                      f"  buffer_load_dwordx4 v{d}, {s(SP,4)}, 0 offen{dsc} lds" if not OPT["nodma"] else "  s_nop 0"])
        L.append([f"  s_add_u32 m0, s{sStg}, 8320",
                  f"  v_add_u32 v{DO}, v{ENT+1}, v{vechunk}",
                  f"  buffer_load_dwordx4 v{DO}, {s(SE,4)}, 0 offen {['', 'nt', 'sc1', 'sc0', 'sc0 sc1', 'sc1 nt'][OPT['efl']]} lds" if not (OPT["nodma"] or OPT["noe"]) else "  s_nop 0"])
        if OPT["efirst"]: L = L[8:] + L[:8]
        return L
    ndma = 0 if OPT["nodma"] else 8 if OPT["noe"] else 9
    def frag_reads():
        if OPT["smf"]:
            L = [f"  ds_read_b64_tr_b16 {v(PF+8*t+2*q,2)}, v{vAT+t} offset:{1040*q}" for t in range(4) for q in range(4)]
            L.insert(4, f"  ds_read_b128 {v(EF,4)}, v{vEF}")
            return L
        L = []
        for st in range(8):
            L.append(f"  ds_read_b128 {v(PF+4*st,4)}, v{vAlo if st < 4 else vAhi} offset:{32*(st&3)}")
        L.insert(2, f"  ds_read_b128 {v(EF,4)}, v{vEF}")
        return L
    def bq_reads():
        return [f"  ds_read_b64_tr_b16 {v(BQ+nq*t,2)}, v{vqa} offset:{64*t}" for t in range(4)]
    def chain(t, D):
        L = [f"  v_mfma_f32_32x32x16_bf16 {v(D,16)}, {v(EF,4)}, {v(W3+4*t,4)}, 0"]
        if OPT["lo"]:
            L.append(f"  v_mfma_f32_32x32x16_bf16 {v(D,16)}, {v(EF,4)}, {v(W3L+4*t,4)}, {v(D,16)}")
        if OPT["smf"]:
            L.append(f"  v_smfmac_f32_32x32x32_bf16 {v(D,16)}, {v(I0,4)}, {v(PF+8*t,8)}, v{I1}")
        else:
            L.append(f"  v_mfma_f32_32x32x16_bf16 {v(D,16)}, {v(PF+8*t,4)}, {v(I0,4)}, {v(D,16)}")
            L.append(f"  v_mfma_f32_32x32x16_bf16 {v(D,16)}, {v(PF+8*t+4,4)}, {v(I1,4)}, {v(D,16)}")
        if OPT["k8"]:
            L.append(f"  v_mfma_f32_32x32x8bf16_1k {v(D,16)}, {v(AQ,2)}, {v(BQ+2*t,2)}, {v(D,16)}")
        else:
            L.append(f"  v_mfma_f32_32x32x16_bf16 {v(D,16)}, {v(AQ,4)}, {v(BQ+4*t,4)}, {v(D,16)}")
        return L

    if OPT["stag"]:
        a(f"  s_cmp_lt_u32 s{sW}, 4\n  s_cbranch_scc1 K_STG\n  s_sleep {OPT['stag']}\nK_STG:")
    if OPT["idle"]: a(f"  s_sleep {OPT['idle']}")
    a(f"  ds_read_b64 {v(ENT,2)}, v{vent}")
    if OPT["ord"]:
        a(f"  s_lshr_b32 s{sq}, s{sW}, 2\n  s_and_b32 s{sK2}, s{sq}, s{sFirst}\n  s_cbranch_scc1 K_DLATER")
    a("  s_waitcnt lgkmcnt(0)")
    for x in dma_issue(): a("\n".join(x))
    a(f"""
  ds_read_b64 {v(ENT,2)}, v{vent} offset:2048
  s_cmp_eq_u32 s{sFirst}, 0
  s_cbranch_scc1 K_NOGEMM0
  s_cmp_eq_u32 s{sOV+6}, 0
  s_cbranch_scc1 K_WLATE
  s_waitcnt vmcnt({ndma}) lgkmcnt(0)
K_WOK:
  s_mov_b32 s{sFirst}, 0""")
    rare.append(f"K_WLATE:\n  s_mov_b32 s{sOV+6}, 1\n" + "\n".join(wl) + "\n  s_waitcnt vmcnt(0) lgkmcnt(0)\n  s_branch K_WOK")
    rare.append(f"K_DLATER:\n  s_cmp_eq_u32 s{sOV+6}, 0\n  s_cbranch_scc1 K_WLATE\n  s_waitcnt vmcnt(0) lgkmcnt(0)\n  s_branch K_WOK")
    node_gemm(W2F, WUT)
    if OPT["ord"]:
        a(f"  s_cmp_eq_u32 s{sK2}, 0\n  s_cbranch_scc1 K_DDONE")
        for x in dma_issue(): a("\n".join(x))
        a(f"  ds_read_b64 {v(ENT,2)}, v{vent} offset:2048\nK_DDONE:")
    for st in range(4):
        a(f"  buffer_load_dwordx4 {v(WUB+4*st,4)}, v{vgl}, {s(SW,4)}, s{sUB} offen offset:{st*1024} sc1")
    if OPT["ocl"]:
        a(f"  v_add_u32 v{t0}, 8192, v{vt16}\n  buffer_store_dwordx4 {v(I0,4)}, v{vt16}, {s(SO,4)}, 0 offen {['','','sc1','nt'][OPT['ocl']]}\n  buffer_store_dwordx4 {v(I0,4)}, v{t0}, {s(SO,4)}, 0 offen {['','','sc1','nt'][OPT['ocl']]}")
    def pf5():
        a(f"  s_mul_i32 s{sq}, s2, 40000\n  v_add_u32 v{t0}, s{sq}, v{vt16}")
        for j in range(5):
            a(f"  buffer_load_dwordx4 {v(DUM,4)}, v{t0}, {s(SE,4)}, 0 offen")
            if j < 4: a(f"  v_add_u32 v{t0}, 8192, v{t0}")
    if OPT["pf2"] == 1: pf5()
    a(f"""
  s_or_b32 s{sq}, s2, s{sW}
  s_cmp_lg_u32 s{sq}, 0
  s_cbranch_scc1 K_NONONCE
  s_mov_b64 exec, 1
  v_mov_b32 v{t0}, {FNON}
  v_mov_b32 v{t1}, s{sTag}
  buffer_store_dword v{t1}, v{t0}, {s(SF,4)}, 0 offen
  s_mov_b64 exec, -1
  s_waitcnt vmcnt(0)
K_NONONCE:
  s_waitcnt lgkmcnt(0)
  s_barrier
K_NOGEMM:
  ds_read_b32 v{vgn1}, v{vgq}
  ds_read_b32 v{vsrow}, v{vrow}
  ds_read_b128 {v(GN,4)}, v{vga}
  s_waitcnt vmcnt({6 if OPT["ocl"] else 4})""")
    stamp(a, 8, 96)
    for x in frag_reads(): a(x)
    a(f"""
  s_waitcnt lgkmcnt({9 if not OPT['smf'] else 15})
  v_mad_u32_u24 v{vqa}, v{vgn1}, s{sQS}, v{vqlane}
  v_lshrrev_b64 {v(AQ,2)}, v{vsrow}, {v(PAT,2)}""")
    for x in bq_reads(): a(x)
    a("  s_waitcnt lgkmcnt(0)")
    for x in dma_issue(): a("\n".join(x))
    if OPT["pf2"] == 2: pf5()
    if OPT["idle2"]: a(f"  s_sleep {OPT['idle2']}")
    for x in chain(0, D0): a(x)
    if OPT["prio"]:
        a(f"  s_cmp_lt_u32 s{sW}, 4\n  s_cbranch_scc1 K_PR\n  s_setprio 1\nK_PR:")
    a(f"""
  s_nop 7
  s_nop 3
  s_cmp_eq_u32 s{sCnt}, 0
  s_cbranch_scc1 K_LOOPEND
  s_cmp_lg_u32 s{sMode}, 0
  s_cbranch_scc1 K_SAFE
  {"s_branch K_QUAD" if not OPT["octo"] else ""}
  s_sub_u32 s{sCnt}, s{sCnt}, s{sCO}
  s_cmp_eq_u32 s{sCO}, 0
  s_cbranch_scc1 K_QUAD""")

    def p(r): return v(r, 2)
    def octet_fast(d, e, t, r, sres):
        ex = [f"  v_exp_f32 v{e+i}, v{d+i}" for i in range(8)]
        L = [f"  v_pk_add_f32 {p(t)}, {p(e)}, 1.0 op_sel_hi:[1,0]",
             f"  v_pk_add_f32 {p(t+2)}, {p(e+4)}, 1.0 op_sel_hi:[1,0]",
             f"  v_pk_fma_f32 {p(t+4)}, {p(d)}, {p(e+2)}, {p(d)}",
             f"  v_pk_fma_f32 {p(t+6)}, {p(d+4)}, {p(e+6)}, {p(d+4)}",
             f"  v_pk_fma_f32 {p(e)}, {p(t)}, {p(e+2)}, {p(t)}",
             f"  v_pk_fma_f32 {p(e+4)}, {p(t+2)}, {p(e+6)}, {p(t+2)}",
             f"  v_pk_fma_f32 {p(t+4)}, {p(d+2)}, {p(t)}, {p(t+4)}",
             f"  v_pk_fma_f32 {p(t+6)}, {p(d+6)}, {p(t+2)}, {p(t+6)}",
             f"  v_pk_mul_f32 {p(t)}, {p(e)}, {p(e+4)}",
             f"  v_pk_mul_f32 {p(t+4)}, {p(t+4)}, {p(e+4)}",
             f"  v_rcp_f32 v{r}, v{t}",
             f"  v_rcp_f32 v{r+1}, v{t+1}",
             f"  v_pk_fma_f32 {p(t+4)}, {p(t+6)}, {p(e)}, {p(t+4)}",
             f"  v_pk_mul_f32 {p(sres)}, {p(t+4)}, {p(r)}"]
        return ex, L
    def octet_safe(d, e, t, r, sres):
        ex = [f"  v_exp_f32 v{e+i}, v{d+i}" for i in range(8)]
        L = [f"  v_pk_add_f32 {p(e+2*i)}, {p(e+2*i)}, 1.0 op_sel_hi:[1,0]" for i in range(4)]
        L += [f"  v_rcp_f32 v{t+i}, v{e+i}" for i in range(8)]
        L += [f"  v_pk_mul_f32 {p(sres)}, {p(d)}, {p(t)}"]
        L += [f"  v_pk_fma_f32 {p(sres)}, {p(d+2*i)}, {p(t+2*i)}, {p(sres)}" for i in range(1, 4)]
        return ex, L
    def zipl(x, y):
        o = []
        for i in range(max(len(x), len(y))):
            if i < len(x): o.append(x[i])
            if i < len(y): o.append(y[i])
        return o
    def adds(t, kind):
        if OPT["noadd"]: return [f"  ds_read_b32 v{DUM}, v{vgq}"] * (2 if kind == "octo" else 4)
        if kind == "octo": return [f"  ds_add_f64 v{AD+2*xy}, {v(CV+2*xy,2)} offset:{256*t}" for xy in range(2)]
        return [f"  ds_add_f64 v{AD+2*xy+o}, {v(CV+2*(2*o+xy),2)} offset:{256*t}" for o in range(2) for xy in range(2)]
    def block_body(kind, u, nun):
        oc = octet_safe if kind == "safe" else octet_fast
        nadd = 2 if kind == "octo" else 4
        B = []
        for t in range(4):
            D = D0 if t % 2 == 0 else D1
            Dn = D1 if t % 2 == 0 else D0
            exa, La = oc(D, EA, TA, RA, SA)
            exb, Lb = oc(D+8, EB, TB, RB, SB)
            ex = exa + exb
            ch = chain((t+1) % 4, Dn)
            late = []
            if kind == "octo" and OPT["seq"]:
                dk = DK + 2*(t & 1)
                E_ = lambda i: p(EA+2*i) if i < 4 else p(EB+2*(i-4))
                def run(i0, n, Dr, Nr, Tr, Dlast):
                    L = [f"  v_pk_add_f32 {p(Dr)}, {E_(i0)}, 1.0 op_sel_hi:[1,0]"]
                    cur = p(D+2*i0)
                    for i in range(i0+1, i0+n):
                        L.append(f"  v_pk_fma_f32 {p(Tr)}, {cur}, {E_(i)}, {cur}")
                        nd = Dlast if i == i0+n-1 else (Dr ^ 2)
                        L.append(f"  v_pk_fma_f32 {p(nd)}, {p(Dr)}, {E_(i)}, {p(Dr)}")
                        L.append(f"  v_pk_fma_f32 {p(Nr)}, {p(D+2*i)}, {p(Dr)}, {p(Tr)}")
                        Dr = nd; cur = p(Nr)
                    return L
                assert TA % 4 == 0 and TB % 4 == 0
                if OPT["seq"] == 1:
                    pk = run(0, 8, TA, TA+4, TA+6, dk)
                    pk = pk[:-1] + [f"  v_rcp_f32 v{RA}, v{dk}", f"  v_rcp_f32 v{RA+1}, v{dk+1}"] + pk[-1:]
                    if t & 1: pk.append(f"  v_pk_fma_f32 {p(MAC)}, {p(DK)}, {p(DK+2)}, {p(MAC)}")
                    else: pk.append("  s_nop 0")
                    pk.append(f"  v_pk_mul_f32 {p(SA)}, {p(TA+4)}, {p(RA)}")
                else:
                    pk = zipl(run(0, 4, TA, TA+4, TA+6, RB), run(4, 4, TB, TB+4, TB+6, SB))
                    pk = pk[:-2] + [f"  v_pk_mul_f32 {p(dk)}, {p(RB)}, {p(SB)}"] + pk[-2:] + \
                         [f"  v_rcp_f32 v{RA}, v{dk}", f"  v_rcp_f32 v{RA+1}, v{dk+1}",
                          f"  v_pk_mul_f32 {p(TA+4)}, {p(TA+4)}, {p(SB)}"]
                    if t & 1: pk.append(f"  v_pk_fma_f32 {p(MAC)}, {p(DK)}, {p(DK+2)}, {p(MAC)}")
                    pk += [f"  v_pk_fma_f32 {p(TA+4)}, {p(TB+4)}, {p(RB)}, {p(TA+4)}",
                           f"  v_pk_mul_f32 {p(SA)}, {p(TA+4)}, {p(RA)}"]
                fin = [f"  v_cvt_f64_f32 {v(CV+2*xy,2)}, v{SA+xy}" for xy in range(2)]
                adr = (0, 2)
            elif kind == "octo":
                keep = lambda L: [x for x in L[:-1] if "v_rcp" not in x]
                dk = DK + 2*(t & 1)
                pk = zipl(keep(La), keep(Lb))
                pk = pk[:-4] + [f"  v_pk_mul_f32 {p(dk)}, {p(TA)}, {p(TB)}"] + pk[-4:-2] + \
                     [f"  v_rcp_f32 v{RA}, v{dk}", f"  v_rcp_f32 v{RA+1}, v{dk+1}"] + pk[-2:] + \
                     [f"  v_pk_mul_f32 {p(TA+4)}, {p(TA+4)}, {p(TB)}"]
                if t & 1: pk.append(f"  v_pk_fma_f32 {p(MAC)}, {p(DK)}, {p(DK+2)}, {p(MAC)}")
                pk += [f"  v_pk_fma_f32 {p(TA+4)}, {p(TB+4)}, {p(TA)}, {p(TA+4)}",
                       f"  v_pk_mul_f32 {p(SA)}, {p(TA+4)}, {p(RA)}"]
                fin = [f"  v_cvt_f64_f32 {v(CV+2*xy,2)}, v{SA+xy}" for xy in range(2)]
                adr = (0, 2)
            else:
                pk = zipl(La, Lb)
                if kind == "quad":
                    idx = max(i for i, x in enumerate(pk) if x.startswith(f"  v_pk_mul_f32 {p(TB)}, {p(EB)}"))
                    pk.insert(idx+1, f"  v_pk_fma_f32 {p(MAC)}, {p(TA)}, {p(TB)}, {p(MAC)}")
                fin = [f"  v_cvt_f64_f32 {v(CV+2*(2*o+xy),2)}, v{S+xy}" for o, S in ((0, SA), (1, SB)) for xy in range(2)]
                adr = range(4)
            fin += adds(t, kind)
            if t == 0:
                pk = pk[:4] + [f"  v_mad_u32_u24 v{AD+i}, v{GN+i}, s{sAS}, v{vacl}" for i in adr] + pk[4:]
            if t == 1:
                pk = pk[:8] + [f"  ds_read_b64 {v(ENT,2)}, v{vent} offset:{4096+2048*u}",
                      f"  ds_read_b32 v{vgn1}, v{vgq} offset:{256+256*u}",
                      f"  ds_read_b32 v{vsrow}, v{vrow} offset:{2048+2048*u}",
                      f"  ds_read_b128 {v(GN,4)}, v{vga} offset:{256+256*u}"] + pk[8:]
            if t == 3:
                B.append(f"  s_waitcnt lgkmcnt({nadd})")
            dma = dma_issue() if t == 3 and OPT["dmapos"] != 2 else []
            per = 16 // len(ch); e = 0
            for i, m in enumerate(ch):
                B.append(m)
                n = per if i < len(ch)-1 else 16 - e
                B += ex[e:e+2]
                if late: B.append(late.pop(0))
                B += ex[e+2:e+n]; e += n
                if OPT["dmapos"] == 0:
                    for _ in range(2):
                        if dma: B += dma.pop(0)
            if t == 2:
                mid = [f"  s_waitcnt vmcnt(0) lgkmcnt({nadd})",
                       f"  v_mad_u32_u24 v{vqa}, v{vgn1}, s{sQS}, v{vqlane}"]
                rd = frag_reads() + bq_reads()
                aq = [f"  v_lshrrev_b64 {v(AQ,2)}, v{vsrow}, {v(PAT,2)}"]
                if OPT["dmapos"] == 2:
                    rest = pk[OPT["wpos"]:]
                    B += pk[:OPT["wpos"]] + mid + rd + aq + rest[:OPT["dgap"]] + ["  s_waitcnt lgkmcnt(4)"] + [y for x in dma_issue() for y in x] + rest[OPT["dgap"]:]
                elif OPT["rdgap"] == 0: B += pk[:OPT["wpos"]] + mid + rd + aq + pk[OPT["wpos"]:]
                else:
                    q = []
                    for i, x in enumerate(aq + pk):
                        if rd and i % OPT["rdgap"] == 0: q.append(rd.pop(0))
                        q.append(x)
                    B += mid + q + rd
            elif t == 3:
                inc = []
                if u == nun - 1 and OPT["bench"]:
                    inc = [f"  v_add_u32 v{DUM+i}, {2048*nun}, v{vent}" for i in range(4)]
                elif u == nun - 1:
                    inc = incs(nun)
                pk = pk + inc
                if OPT["dmapos"] == 1:
                    q = []
                    for i, x in enumerate(pk):
                        if dma and i % 3 == 0: q += dma.pop(0)
                        q.append(x)
                    pk = q
                for x in dma: B += x
                B += pk
            else:
                B += pk
            B += fin
        return B
    def incs(n):
        return [f"  v_add_u32 v{vent}, {2048*n}, v{vent}", f"  v_add_u32 v{vrow}, {2048*n}, v{vrow}",
                f"  v_add_u32 v{vgq}, {256*n}, v{vgq}", f"  v_add_u32 v{vga}, {256*n}, v{vga}"]
    def loop(kind):
        lab = {"safe": "K_SAFE", "quad": "K_QUAD", "octo": "K_FAST"}[kind]
        nun = OPT["unroll"] if kind == "octo" else 1
        cnt = sCO if kind == "octo" else sCnt
        L = []
        for u in range(nun):
            L += block_body(kind, u, nun)
            L.append(f"  s_sub_u32 s{cnt}, s{cnt}, 1")
            L.append(f"  s_cmp_lg_u32 s{cnt}, 0")
            L.append(f"  s_cbranch_scc1 {lab}" if u == nun - 1 else f"  s_cbranch_scc0 K_OX{u}")
        ab = OPT["abl"]
        if ab & 1: L = [x for x in L if not ("v_mfma" in x and (f", {v(I0,4)}," in x or f", {v(I1,4)}," in x))]
        if ab & 2: L = [x for x in L if "v_mfma_f32_32x32x8" not in x and "tr_b16" not in x]
        if ab & 4: L = [x.replace("v_exp_f32", "v_mov_b32") for x in L]
        if ab & 8: L = [x for x in L if "v_pk_" not in x]
        if ab & 16: L = [x for x in L if "v_mfma" not in x]
        if ab & 32: L = [x for x in L if "ds_read_b128" not in x]
        if ab & 64: L = [x for x in L if "v_exp" not in x]
        if ab & 128:
            M = []
            for x in L:
                if "v_mfma" in x and f", {v(I1,4)}," in x: continue
                if "v_mfma" in x and f", {v(I0,4)}," in x:
                    m = re.match(r"\s*v_mfma_f32_32x32x16_bf16 (v\[\d+:\d+\]), v\[(\d+):", x)
                    M.append(f"  v_smfmac_f32_32x32x32_bf16 {m.group(1)}, {v(I0,4)}, {v(int(m.group(2)),8)}, v{vone}"); continue
                m = re.match(r"\s*ds_read_b128 v\[(\d+):\d+\], v(\d+) offset:(\d+)", x)
                if m and PF <= int(m.group(1)) < PF + 32:
                    r0 = int(m.group(1))
                    M.append(f"  ds_read_b64_tr_b16 {v(r0,2)}, v{vqa} offset:{m.group(3)}")
                    M.append(f"  ds_read_b64_tr_b16 {v(r0+2,2)}, v{vqa} offset:{int(m.group(3))+128}"); continue
                M.append(x)
            L = M
        if ab & 256:
            M = []
            for x in L:
                if "v_mfma" in x and (f", {v(I1,4)}," in x or f", {v(I0,4)}," in x): continue
                if "v_mfma_f32_32x32x16" in x and x.rstrip().endswith(", 0"): x = x.rstrip()[:-1] + v(PF, 16)
                m = re.match(r"\s*ds_read_b128 v\[(\d+):\d+\], v(\d+) offset:(\d+)", x)
                if m and PF <= int(m.group(1)) < PF + 32:
                    for q in range(8): M.append(f"  ds_read_u16_d16_hi v{PF+(int(m.group(1))+q)%32}, v{vacl} offset:{64*q}")
                    continue
                M.append(x)
            L = M
        if OPT["align"]: L = align8(L)
        a(f".p2align 6\n{lab}:")
        for x in L: a(x)
    loop("octo")
    a(f"""
K_OXE:
  s_cmp_lg_u32 s{sCnt}, 0
  s_cbranch_scc1 K_QUAD""")
    a(f"""
K_LOOPEND:""")
    a(f"""
  s_waitcnt vmcnt(0) lgkmcnt(0)
  s_barrier""")
    stamp(a, 9, 98)
    a(f"""
  s_cmp_lg_u32 s{sKind}, 0
  s_cbranch_scc1 K_NEXT
K_CELLSDONE:
  v_mov_b32 v{t0}, {L_FLG+32}
  ds_read_b128 {v(CV,4)}, v{t0}
K_CONV:
  s_mul_i32 s{sTmp}, s{sW}, {AS}
  s_add_u32 s{sTmp}, s{sTmp}, {L_ACC}
  v_lshlrev_b32 v{t1}, 4, v{vl}
  v_add_u32 v{t1}, s{sTmp}, v{t1}""")
    for k in range(5):
        a(f"  ds_read_b128 {v(D0+4*k,4)}, v{t1} offset:{k*8*AS}")
    a(f"""
  s_mul_i32 s{sTmp}, s{sW}, {XS}
  s_add_u32 s{sTmp}, s{sTmp}, {L_X}
  v_lshlrev_b32 v{t2}, 2, v{vl}
  v_add_u32 v{t2}, s{sTmp}, v{t2}
  s_cmp_ge_u32 s{sKind}, 3
  s_cbranch_scc1 K_CONV2
  s_waitcnt lgkmcnt(5)
  v_or3_b32 v{t0}, v{CV}, v{CV+1}, v{CV+2}
  v_or_b32 v{t0}, v{t0}, v{CV+3}
  v_cmp_ne_u32 vcc, 0, v{t0}
  s_cbranch_vccnz K_STARTOV
K_CONV2:
  s_mov_b32 s{sTmp}, 0x71800000              ; 2^100
  v_cmp_nle_f32 {s(sBad,2)}, v{MAC}, s{sTmp}
  v_cmp_nle_f32 vcc, v{MAC+1}, s{sTmp}
  s_or_b64 {s(sBad,2)}, {s(sBad,2)}, vcc
  s_movk_i32 s{sTmp}, 0x207""")
    for k in range(5):
        a(f"""
  s_waitcnt lgkmcnt(4)
  v_cvt_f32_f64 v{EA+2*k}, {v(D0+4*k,2)}
  v_cvt_f32_f64 v{EA+2*k+1}, {v(D0+4*k+2,2)}
  v_cvt_pk_bf16_f32 v{EB+k}, v{EA+2*k}, v{EA+2*k+1}
  ds_write_b32 v{t2}, v{EB+k} offset:{k*8*XS}""")
    a(f"  v_pk_mul_f32 {p(RA)}, {p(EA)}, 0 op_sel_hi:[1,0]")
    for k in range(1, 5):
        a(f"  v_pk_fma_f32 {p(RA)}, {p(EA+2*k)}, 0, {p(RA)} op_sel_hi:[1,0,1]")
    a(f"""
  v_add_f32 v{RA}, v{RA}, v{RA+1}
  v_cmp_class_f32 vcc, v{RA}, s{sTmp}
  s_or_b64 {s(sBad,2)}, {s(sBad,2)}, vcc""")
    a(f"""
  s_cmp_eq_u64 {s(sBad,2)}, 0
  s_cbranch_scc1 K_OKW
  v_mov_b32 v{t0}, {L_FLG}
  ds_write_b32 v{t0}, v{vone}
K_OKW:
  s_mov_b32 s{sK}, {NLN2}
  s_mov_b32 s{sK+1}, {NLN2}
  s_mov_b32 s{sTmp}, {NLOG2E}
  s_mov_b32 s{sTmp+1}, {NLOG2E}
  v_and_b32 v{t5}, 15, v{vl}
  v_lshlrev_b32 v{t5}, 8, v{t5}
  v_lshrrev_b32 v{t6}, 4, v{vl}
  v_lshl_add_u32 v{t5}, v{t6}, 3, v{t5}
  s_lshl_b32 s{sTmp+2}, s{sW}, 5
  v_add_u32 v{t5}, s{sTmp+2}, v{t5}
  v_add_u32 v{t6}, 4096, v{t5}
  v_add_u32 v{t7}, 8192, v{t5}
  v_mov_b32 v{t0}, {L_FLG}
  s_waitcnt lgkmcnt(0)
  s_barrier
  ds_read_b32 v{t0}, v{t0}""")
    AGF = [XF, XF+16, D1]
    for nt in range(3):
        for st in range(4):
            a(f"  ds_read_b128 {v(AGF[nt]+4*st,4)}, v{vxb} offset:{nt*16*XS + st*64}")
    a(f"""
  s_waitcnt lgkmcnt(8)
  v_readfirstlane_b32 s{sTmp+2}, v{t0}""")
    for nt in range(3):
        if nt: a(f"  s_waitcnt lgkmcnt({8-4*nt})")
        for st in range(4):
            c = "0" if st == 0 else v(D0+4*nt, 4)
            a(f"  v_mfma_f32_16x16x32_bf16 {v(D0+4*nt,4)}, {v(WUB+4*st,4)}, {v(AGF[nt]+4*st,4)}, {c}")
    a(f"""
  s_cmp_gt_u32 s{sTmp+2}, s{sMode}
  {"s_cbranch_scc1 K_RESTART" if not EXP else "s_nop 0"}""")
    def fin_store(nt):
        d = D0 + 4*nt
        a(f"""
  v_pk_mul_f32 {p(d)}, {p(d)}, {p(EA+4*nt)}
  v_pk_mul_f32 {p(d+2)}, {p(d+2)}, {p(EA+4*nt+2)}
  {chr(10).join("  v_mul_f32 v%d, %s, v%d" % (d+i, hex(f32(1+OPT["pert"]/1000.0)), d+i) for i in range(4)) if OPT["pert"] else ""}
  v_cvt_pk_bf16_f32 v{EB+2*nt}, v{d}, v{d+1}
  v_cvt_pk_bf16_f32 v{EB+2*nt+1}, v{d+2}, v{d+3}
  {"buffer_store_dwordx2 %s, v%d, %s, 0 offen %s" % (v(EB+2*nt,2), t5+nt, s(SO,4), OFL) if not OPT["oc"] else ("s_mov_b32 exec_lo, 0x00ff00ff" + chr(10) + "  s_mov_b32 exec_hi, 0x00ff00ff" + chr(10) if nt == 2 else "") + "  ds_write_b64 v%d, %s offset:%d" % (vqw, v(EB+2*nt,2), nt*16*QS)}""")
    for i in range(6):
        if i == 2: a("  s_nop 0")
        a(f"  v_pk_fma_f32 {p(D0+2*i)}, {p(D0+2*i)}, {s(sK,2)}, {p(U+2*i)}\n  v_pk_mul_f32 {p(EA+2*i)}, {p(D0+2*i)}, {s(sTmp,2)}")
    for i in range(12): a(f"  v_exp_f32 v{EA+i}, v{EA+i}")
    for i in range(6): a(f"  v_pk_add_f32 {p(EA+2*i)}, {p(EA+2*i)}, 1.0 op_sel_hi:[1,0]")
    for nt in range(3):
        for i in range(4): a(f"  v_rcp_f32 v{EA+4*nt+i}, v{EA+4*nt+i}")
        if nt:
            d = D0 + 4*(nt-1)
            fin_store(nt-1)
    a("  s_nop 0")
    fin_store(2)
    if OPT["oc"]:
        a(f"""
  s_mov_b64 exec, -1
  v_lshrrev_b32 v{t0}, 4, v0
  v_lshl_add_u32 v{t0}, v{t0}, 6, v{vt16}
  v_add_u32 v{t0}, {L_Q}, v{t0}
  v_add_u32 v{t1}, 8192, v{vt16}
  s_waitcnt lgkmcnt(0)
  s_barrier
  ds_read_b128 {v(PF,4)}, v{t0}
  ds_read_b128 {v(PF+4,4)}, v{t0} offset:{32*QS}
  s_waitcnt lgkmcnt(1)
  buffer_store_dwordx4 {v(PF,4)}, v{vt16}, {s(SO,4)}, 0 offen {OFL}
  s_waitcnt lgkmcnt(0)
  buffer_store_dwordx4 {v(PF+4,4)}, v{t1}, {s(SO,4)}, 0 offen {OFL}""")
    if OPT["stamp"]:
        a(f"""
  s_waitcnt vmcnt(0)
  s_memrealtime s[4:5]
  s_waitcnt lgkmcnt(0)
  s_lshl_b32 s6, s2, 3
  s_add_u32 s6, s6, s{sW}
  s_lshl_b32 s6, s6, 6
  s_add_u32 s6, s6, {WS_STAMP}
  s_add_u32 s6, s{pWS}, s6
  s_addc_u32 s7, s{pWS+1}, 0
  s_mov_b64 exec, 1
  v_mov_b32 v1, 0""")
        for i, r in enumerate([80+2*i for i in range(8)] + [96, 98, 4]):
            pass
        regs = [80, 82, 84, 86, 88, 90, 92, 94, 8, 9, 4, 10, 11, sT]
        for i, r in enumerate(regs):
            a(f"  v_mov_b32 v2, s{r}\n  global_store_dword v1, v2, s[6:7] offset:{4*i}")
    a(f"""
K_END:
  s_endpgm
""")
    a(f"""
K_PREP:
  s_sub_u32 s{sq}, s2, {2*G}
  s_lshl_b32 s{sq}, s{sq}, 14
  s_lshl_b32 s{sq+1}, s{sW}, 12
  s_add_u32 s{sq}, s{sq}, s{sq+1}
  v_lshlrev_b32 v{t0}, 4, v{vl}
  v_mov_b32 v{t7}, s{sTag}
  s_waitcnt vmcnt({10+NA})
  s_barrier""")
    wtr(PF, vqa)
    a("  s_waitcnt lgkmcnt(0)")
    for st in range(4):
        a(f"  buffer_store_dwordx4 {v(PF+4*st,4)}, v{t0}, {s(SW,4)}, s{sq} offen offset:{st*1024} sc1")
    a(f"""
  s_lshr_b32 s{sq}, s{sW}, 2
  s_add_u32 s{sq}, s{sq}, s2
  s_cmp_lg_u32 s{sq}, {2*G}
  s_cbranch_scc1 K_PREPD
  s_mov_b32 s{sq+1}, {NLOG2E}
  s_lshl_b32 s{sq}, s{sW}, 10
  s_waitcnt vmcnt({6+NA})""")
    for jj in range(8):
        a(f"  v_lshlrev_b32 v{D0+jj}, 16, v{D0+jj}\n  v_mul_f32 v{D0+jj}, s{sq+1}, v{D0+jj}")
    for i in range(4):
        a(f"  v_cvt_pk_bf16_f32 v{D0+8+i}, v{D0+2*i}, v{D0+1+2*i}")
    for i in range(4):
        a(f"""
  v_lshlrev_b32 v{t2}, 16, v{D0+8+i}
  v_and_b32 v{t3}, 0xffff0000, v{D0+8+i}
  v_sub_f32 v{t2}, v{D0+2*i}, v{t2}
  v_sub_f32 v{t3}, v{D0+1+2*i}, v{t3}
  v_cvt_pk_bf16_f32 v{D0+12+i}, v{t2}, v{t3}""")
    a(f"""
  s_add_u32 s{sq+1}, s{sq}, {WF_3L}
  s_add_u32 s{sq}, s{sq}, {WF_3H}
  buffer_store_dwordx4 {v(D0+8,4)}, v{t0}, {s(SW,4)}, s{sq} offen sc1
  buffer_store_dwordx4 {v(D0+12,4)}, v{t0}, {s(SW,4)}, s{sq+1} offen sc1
K_PREPD:""")
    own_x(4+NA)
    a(f"""
  s_sub_u32 s{sq}, s2, {2*G}
  s_lshl_b32 s{sq}, s{sq}, 1
  v_lshl_add_u32 v{t0}, v0, 7, s{sq}
  s_waitcnt vmcnt(0)
  s_barrier
  s_cmp_ge_u32 s{sW}, 4
  s_cbranch_scc1 K_PST
  buffer_store_dword v{t7}, v{t0}, {s(SF,4)}, 0 offen {FLF}
  s_branch K_PST""")
    a(f"""
K_OVF:
  s_waitcnt lgkmcnt(0)
  s_barrier
  s_mul_i32 s{sq+1}, s2, {OVSTR//2}
  s_add_u32 s{sq+1}, s{sq+1}, 64
  v_mov_b32 v{t5}, {L_FLG+8}
  v_mov_b32 v{t6}, -1""")
    for j in range(5):
        a(f"""
  v_cmp_le_u32 vcc, {CAP-1}, v{RK+j}
  s_and_b64 exec, exec, vcc
  s_cbranch_execz K_OV{j}
  v_add_u32 v{t1}, {L_BCNT}, v{B4+j}
  ds_read_b32 v{t1}, v{t1}
  s_waitcnt lgkmcnt(0)
  v_cmp_ne_u32 vcc, {CAP}, v{t1}
  s_nop 1
  v_cndmask_b32 v{t3}, v{SS_+j}, v{t6}, vcc
  ds_write_b32 v{CA+j}, v{t3} offset:{CELLB-8}
  s_and_b64 exec, exec, vcc
  s_cbranch_execz K_OV{j}
  ds_add_rtn_u32 v{t1}, v{t5}, v{vone}
  v_mov_b32 v{CV}, v{SS_+j}
  v_lshrrev_b32 v{CV+1}, 2, v{B4+j}
  s_waitcnt lgkmcnt(0)
  v_lshl_add_u32 v{t1}, v{t1}, 3, s{sq+1}
  buffer_store_dwordx2 {v(CV,2)}, v{t1}, {s(SV,4)}, 0 offen sc1
  s_waitcnt vmcnt(0)
K_OV{j}:
  s_mov_b64 exec, -1""")
    a(f"""
  s_waitcnt lgkmcnt(0)
  s_barrier
  ds_read_b32 v{t1}, v{t5}
  s_sub_u32 s{sq+1}, s{sq+1}, 64
  v_mov_b32 v{t3}, s{sq+1}
  v_mov_b32 v{t2}, 0
  s_waitcnt lgkmcnt(0)
  buffer_store_dword v{t1}, v{t3}, {s(SV,4)}, 0 offen sc1
  s_waitcnt vmcnt(0)
  s_branch K_OVFDONE""")
    for u in range(OPT["unroll"] - 1):
        a(f"K_OX{u}:\n  s_cmp_eq_u32 s{sCnt}, 0\n  s_cbranch_scc1 K_LOOPEND")
        for x in incs(u + 1): a(x)
        a("  s_branch K_QUAD")
    loop("quad")
    a("  s_branch K_LOOPEND")
    a("K_TEXTEND:")
    loop("safe")
    a("  s_branch K_LOOPEND")
    a(f"""
""")
    for x in rare: a(x)
    a(f"""
K_NOGEMM0:
  s_waitcnt vmcnt(0)
  s_branch K_NOGEMM
K_RESTART:
  s_mov_b32 s{sMode}, 1
  s_mov_b32 s{sKind}, 0
  s_waitcnt lgkmcnt(0)
  s_barrier
  v_mov_b32 v{CV}, 0
  v_mov_b32 v{CV+1}, 0
  v_mov_b32 v{CV+2}, 0
  v_mov_b32 v{CV+3}, 0""")
    for j in range(5):
        a(f"  ds_write_b128 v{vt16}, {v(CV,4)} offset:{L_ACC + j*8192}")
    a(f"""
  v_cmp_gt_u32 vcc, {(40*AS-5*8192)//16}, v0
  s_and_saveexec_b64 {s(sEx,2)}, vcc
  ds_write_b128 v{vt16}, {v(CV,4)} offset:{L_ACC + 5*8192}
  s_mov_b64 exec, {s(sEx,2)}
  s_branch K_RELOAD
K_SPLIT:
  s_mov_b32 s{sKind}, 1
  s_waitcnt lgkmcnt(0)
  s_barrier
  s_branch K_RELOAD
K_NEXT:
  s_cmp_eq_u32 s{sKind}, 4
  s_cbranch_scc1 K_NEXTOV
  s_cmp_eq_u32 s{sKind}, 3
  s_cbranch_scc1 K_OVPART1
  s_cmp_eq_u32 s{sKind}, 2
  s_cbranch_scc1 K_CELLSDONE
  s_mov_b32 s{sKind}, 2
K_RELOAD:
  v_lshrrev_b32 v{t1}, 2, v0
  s_mov_b32 s{sq}, {CH*32}
  v_mul_u32_u24 v{vebase}, s{sq}, v{t1}
  s_waitcnt vmcnt(0)""")
    for k in range(2):
        a(f"  buffer_load_dwordx4 {v(REC+4*k,4)}, v{vcell}, {s(SC,4)}, 0 offen offset:{64*k} sc1")
    a(f"""
  s_waitcnt vmcnt(0)
  s_mov_b32 exec_lo, 0xaaaaaaaa
  s_mov_b32 exec_hi, 0xaaaaaaaa
  v_mov_b32 v{REC+3}, 0
  v_mov_b32 v{REC+7}, 0
  s_mov_b64 exec, -1
  s_cmp_eq_u32 s{sKind}, 0
  s_cbranch_scc1 K_ROUND
  s_lshr_b32 s{sq}, s{sW}, 2
  s_add_u32 s{sq}, s{sq}, 1
  s_cmp_eq_u32 s{sq}, s{sKind}
  s_cbranch_scc1 K_ROUND""")
    for k in range(NR): a(f"  v_mov_b32 v{REC+k}, 0")
    a(f"""
K_ROUND:
  v_mov_b32 v{CV}, 0
  v_mov_b32 v{CV+1}, 0
  v_mov_b32 v{CV+2}, 0
  v_mov_b32 v{CV+3}, 0
  v_cmp_gt_u32 vcc, {(L_FLG-L_GN)//16}, v0
  s_and_saveexec_b64 {s(sEx,2)}, vcc
  ds_write_b128 v{vt16}, {v(CV,4)} offset:{L_GN}
  s_mov_b64 exec, {s(sEx,2)}""")
    prefill()
    a(f"""
  v_and_b32 v{vent}, 2047, v{vent}
  v_and_b32 v{vrow}, 2047, v{vrow}
  v_subrev_u32 v{vga}, {L_GN}, v{vga}
  v_and_b32 v{vga}, 255, v{vga}
  v_add_u32 v{vga}, {L_GN}, v{vga}
  v_and_b32 v{t2}, 12, v{vl}
  v_add_u32 v{vgq}, v{vga}, v{t2}
  s_waitcnt lgkmcnt(0)
  s_barrier
  s_branch K_PHASE1
K_STARTOV:""")
    for i in range(4): a(f"  v_readfirstlane_b32 s{sOV+i}, v{CV+i}")
    a(f"""
  s_mov_b32 s{sKind}, 4
  s_waitcnt lgkmcnt(0)
K_NEXTOV:""")
    for i in range(2):
        a(f"""
  s_ff1_i32_b64 s{sP}, {s(sOV+2*i,2)}
  s_cmp_eq_u32 s{sP}, -1
  s_cbranch_scc1 K_OVN{i}
  s_bitset0_b64 {s(sOV+2*i,2)}, s{sP}
  s_add_u32 s{sP}, s{sP}, {64*i}
  s_branch K_OVGO
K_OVN{i}:""")
    a(f"""
  s_branch K_CONV
K_OVGO:
  s_mov_b32 s{sKind}, 3
  v_mov_b32 v{t4}, v0
  s_branch K_OVLD
K_OVPART1:
  s_mov_b32 s{sKind}, 4
  v_add_u32 v{t4}, 2048, v0
K_OVLD:
  s_mul_i32 s{sq}, s{sP}, {OVSTR}
  s_mul_i32 s{sq+1}, s{sP}, {CH*32}
  v_mov_b32 v{vebase}, s{sq+1}
  v_mov_b32 v{t0}, s{sq}
  buffer_load_dword v{t1}, v{t0}, {s(SV,4)}, 0 offen sc1
  v_lshl_add_u32 v{t2}, v{t4}, 3, v{t0}""")
    for k in range(4):
        a(f"  buffer_load_dwordx2 {v(PF+2*k,2)}, v{t2}, {s(SV,4)}, 0 offen offset:64 sc1\n  v_add_u32 v{t2}, 4096, v{t2}")
    a(f"""
  s_waitcnt vmcnt(0)
  v_readfirstlane_b32 s{sq}, v{t1}
  s_cmp_le_u32 s{sq}, 2048
  s_cselect_b32 s{sKind}, 4, s{sKind}""")
    for k in range(4):
        a(f"""
  v_cmp_lt_u32 vcc, v{t4}, v{t1}
  v_cmp_eq_u32 {s(sEx,2)}, s2, v{PF+2*k+1}
  s_and_b64 vcc, vcc, {s(sEx,2)}
  v_add_u32 v{t4}, 512, v{t4}
  s_nop 1
  v_cndmask_b32 v{REC+k}, 0, v{PF+2*k}, vcc""")
    for k in range(4, NR): a(f"  v_mov_b32 v{REC+k}, 0")
    a("  s_branch K_ROUND")
    return a.text(), nv, NS

def gen_diag(idx):
    a = Asm()
    a(f"""
.globl mpnn_d_kernel
.p2align 8
.type mpnn_d_kernel,@function
mpnn_d_kernel:
  s_cmp_ge_u32 s2, 1
  s_cbranch_scc1 D_END
  s_load_dwordx2 s[4:5], s[0:1], 64
  s_waitcnt lgkmcnt(0)
  s_add_u32 s4, s4, {WS_STAMP + (OPT['wsb'] << 20)}
  s_addc_u32 s5, s5, 0
  s_load_dword s6, s[4:5], 0
  s_waitcnt lgkmcnt(0)
  s_sub_u32 s6, s6, 100000""")
    for q, (ix, ismax) in enumerate(((idx, 1), (0, 0))):
        op = "max" if ismax else "min"
        a(f"  v_lshlrev_b32 v1, {6 if not OPT['dodd'] else 10}, v0\n  v_add_u32 v1, {ix*4 + (512 + 64*(OPT['dodd']-1) if OPT['dodd'] else 0)}, v1\n  v_mov_b32 v3, {0 if ismax else -1}")
        nk = 32 if not OPT['dodd'] else 2
        for k in range(nk):
            a(f"  global_load_dword v{8+k}, v1, s[4:5]\n  v_add_u32 v1, {4096 if not OPT['dodd'] else 65536}, v1")
        a("  s_waitcnt vmcnt(0)")
        for k in range(nk):
            a(f"  v_subrev_u32 v2, s6, v{8+k}\n  v_{op}_u32 v3, v3, v2")
        a(f"  s_mov_b32 s{20+q}, {0 if ismax else -1}\n  s_nop 1")
        for l in range(64):
            a(f"  v_readlane_b32 s8, v3, {l}\n  s_nop 0\n  s_{op}_u32 s{20+q}, s{20+q}, s8")
    a(f"""
  s_sub_u32 s20, s20, s21
  s_min_u32 s20, s20, 20000
  s_lshl_b32 s20, s20, 3
  {'s_mov_b32 s20, 0' if OPT['dz'] else ''}
  s_memrealtime s[8:9]
  s_waitcnt lgkmcnt(0)
D_L:
  s_memrealtime s[10:11]
  s_waitcnt lgkmcnt(0)
  s_sub_u32 s12, s10, s8
  s_cmp_lt_u32 s12, s20
  s_cbranch_scc1 D_L
D_END:
  s_endpgm
""")
    return a.text()

HEAD = """; Kernarg layout for this problem (72 bytes, ptrs only, base s[0:1]):
;
"""
def main():
    k, nv, ns = gen()
    out = HEAD + f"; @launch grid=({NB},1,1) block=(512,1,1) lds={LDS}\n"
    if OPT["diag"] >= 0:
        out = HEAD + f"; @launch kernel={KN} grid=({NB},1,1) block=(512,1,1) lds={LDS}\n; @launch kernel=mpnn_d_kernel grid=(1,1,1) block=(64,1,1) lds=0\n"
        k += gen_diag(OPT["diag"])
    out += '.amdgcn_target "amdgcn-amd-amdhsa--gfx950"\n.text\n' + k
    out += f""".section .rodata,"a"
.p2align 6
.amdhsa_kernel {KN}
  .amdhsa_next_free_vgpr {nv}
  .amdhsa_next_free_sgpr {ns}
  .amdhsa_accum_offset {(nv+3)//4*4}
  .amdhsa_group_segment_fixed_size 0
  .amdhsa_kernarg_size 72
  .amdhsa_user_sgpr_count 2
  .amdhsa_user_sgpr_kernarg_segment_ptr 1
  .amdhsa_system_sgpr_workgroup_id_x 1
.end_amdhsa_kernel
"""
    if OPT["diag"] >= 0:
        out += """.p2align 6
.amdhsa_kernel mpnn_d_kernel
  .amdhsa_next_free_vgpr 48
  .amdhsa_next_free_sgpr 32
  .amdhsa_accum_offset 48
  .amdhsa_group_segment_fixed_size 0
  .amdhsa_kernarg_size 72
  .amdhsa_user_sgpr_count 2
  .amdhsa_user_sgpr_kernarg_segment_ptr 1
  .amdhsa_system_sgpr_workgroup_id_x 1
.end_amdhsa_kernel
"""
    out = "\n".join(l.rstrip() for l in out.split("\n") if l.strip()) + "\n"
    open(sys.argv[1], "w").write(out)
    print("vgprs", nv, "lds", LDS)
main()
```
